```python
import torch

def _softmax(x, axis=-1):
    return torch.softmax(x, dim=axis)
def _gelu(x):
    return torch.nn.functional.gelu(x, approximate="tanh")
def _silu(x):
    return torch.nn.functional.silu(x)
def _sigmoid(x):
    return torch.sigmoid(x)
def _layernorm(x, axis=-1, eps=1e-5):
    m = x.mean(dim=axis, keepdim=True)
    v = x.var(dim=axis, keepdim=True, unbiased=False)
    return (x - m) / torch.sqrt(v + eps)
def _scatter_add(tgt, idx, src, axis=0):
    return tgt.clone().index_add_(axis, idx, src)
def _segment_sum(src, seg, n):
    out = torch.zeros((n,) + src.shape[1:], dtype=src.dtype)
    return out.index_add_(0, seg, src)
def _pad(x, pw):
    flat = tuple(v for pair in reversed(pw) for v in pair)
    return torch.nn.functional.pad(x, flat)

kernel_name = 'gated_mix__linear_attn_block__dense_activation_mish__prompt'

def setup_inputs():

    _w = (lambda a: (lambda t: t.to(torch.bfloat16) if t.is_floating_point() else t)(torch.as_tensor(a)))
    def _A_setup():
        B, S, D = 1, 2048, 1024
        return {
            "x": _w((lambda *s: torch.randn(*s, dtype=torch.bfloat16) * 0.05)(B, S, D)),
            "wqkv": _w((lambda *s: torch.randn(*s, dtype=torch.bfloat16) * 0.8)(D, 3 * D)),
            "wo": _w((lambda *s: torch.randn(*s, dtype=torch.bfloat16) * 0.05)(D, D)),
        }
    _A_in = _A_setup()

    def _B_setup():
        B, S, D, F = 1, 2048, 1024, 3584
        return {
            "x": _w((lambda *s: torch.randn(*s, dtype=torch.bfloat16) * 0.05)(B, S, D)),
            "w1": _w((lambda *s: torch.randn(*s, dtype=torch.bfloat16) * 12.8)(D, F) * (D ** -0.5)),
            "b1": _w((lambda *s: torch.randn(*s, dtype=torch.bfloat16) * 0.4)(F)),
            "w2": _w((lambda *s: torch.randn(*s, dtype=torch.bfloat16) * 0.05)(F, D) * (F ** -0.5)),
        }
    _B_in = _B_setup()

    return {
        "A_x": _A_in["x"],
        "A_wqkv": _A_in["wqkv"],
        "A_wo": _A_in["wo"],
        "B_x": _B_in["x"],
        "B_w1": _B_in["w1"],
        "B_b1": _B_in["b1"],
        "B_w2": _B_in["w2"],
        "gate_w": _w((lambda *s: torch.randn(*s, dtype=torch.bfloat16) * 0.05)(1024) * 16.0),
    }

def reference(A_x, A_wqkv, A_wo, B_x, B_w1, B_b1, B_w2, gate_w):
    def _A_ref(x, wqkv, wo):
        B, S, D = x.shape
        H = 32; Dh = D // H
        qkv = (lambda x, *d: x.permute(*d))((x @ wqkv).reshape(B, S, 3, H, Dh), 2, 0, 3, 1, 4)
        q, k, v = qkv[0], qkv[1], qkv[2]
        phi = lambda t: torch.where(t > 0, t + 1, torch.exp(t)) + 1e-6
        pq, pk = phi(q), phi(k)
        kv = torch.einsum("bhsd,bhse->bhde", pk, v)
        z = torch.einsum("bhsd->bhd", pk)
        num = torch.einsum("bhqd,bhde->bhqe", pq, kv)
        den = torch.einsum("bhqd,bhd->bhq", pq, z)[..., None] + 1e-6
        o = num / den
        return (lambda x, *d: x.permute(*d))(o, 0, 2, 1, 3).reshape(B, S, D) @ wo

    def _B_ref(x, w1, b1, w2):
        h = torch.einsum("bsd,df->bsf", x, w1) + b1
        sp = torch.log1p(torch.exp(-torch.abs(h))) + torch.where(h > 0, h, torch.zeros_like(h))
        act = h * torch.tanh(sp)
        return torch.einsum("bsf,fd->bsd", act, w2)

    x = A_x
    g = _sigmoid((x * gate_w).sum(-1, keepdims=True))
    a = _A_ref(x, A_wqkv, A_wo)
    b = _B_ref(x, B_w1, B_b1, B_w2)
    return g * a + (1 - g) * b
```

```python
import sys

NAME = "gated_mix__linear_attn_block__dense_activation_mish__prompt"

AF_OFF = 0
AF_BYTES = 16 * 144 * 8 * 1024
KVP_OFF = AF_BYTES
KVP_BYTES = 16 * 8 * 12 * 1024
KVF_OFF = KVP_OFF + KVP_BYTES
KVF_BYTES = 32 * 3 * 1024
G_OFF = KVF_OFF + KVF_BYTES
WS_USED = G_OFF + 2048 * 4

EPS_HEX = "0x358637bd"
L2E_HEX = "0x3fb8aa3b"


class Asm:
    def __init__(self):
        self.lines = []
        self.vm = []

    def e(self, s):
        for ln in s.split("\n"):
            self.lines.append("  " + ln.strip())

    def label(self, s):
        self.lines.append(s + ":")

    def vmem(self, s, tag):
        self.e(s)
        self.vm.append(tag)

    def vm_count(self, tags):
        idx = -1
        for i, t in enumerate(self.vm):
            if t in tags:
                idx = i
        if idx < 0:
            return None
        n = len(self.vm) - 1 - idx
        self.vm = self.vm[idx + 1:]
        assert n <= 63, n
        return n

    def wait(self, tags=(), lgkm=False):
        n = self.vm_count(tags) if tags else None
        parts = []
        if n is not None:
            parts.append(f"vmcnt({n})")
        if lgkm:
            parts.append("lgkmcnt(0)")
        if parts:
            self.e("s_waitcnt " + " ".join(parts))


def vr(b, n=4):
    return f"v[{b}:{b + n - 1}]"


def ar(b, n=4):
    return f"a[{b}:{b + n - 1}]"


def interleave(a, mf, fillers, start=0, end=None):
    n = len(mf)
    if end is None:
        end = n
    nf = len(fillers)
    pos = [start + (j * (end - start)) // max(nf, 1) for j in range(nf)]
    j = 0
    for m in range(n):
        a.e(mf[m])
        while j < nf and pos[j] <= m:
            f = fillers[j]
            f()
            j += 1
    while j < nf:
        fillers[j]()
        j += 1


def srd(a, d, lo, hi, nbytes, bias=0):
    if bias:
        a.e(f"s_sub_u32 s{d}, s{lo}, {bias}")
        a.e(f"s_subb_u32 s{d + 1}, s{hi}, 0")
        a.e(f"s_and_b32 s{d + 1}, s{d + 1}, 0xffff")
    else:
        a.e(f"s_mov_b32 s{d}, s{lo}")
        a.e(f"s_and_b32 s{d + 1}, s{hi}, 0xffff")
    a.e(f"s_mov_b32 s{d + 2}, {nbytes + bias}")
    a.e(f"s_mov_b32 s{d + 3}, 0x20000")


K1_BSLOT = 13312
K1_AREA = 3328
K1_ABASE = 4 * K1_BSLOT
K1_LDS = K1_ABASE + 4 * 16384
ACC0 = 48


def acc(t, mt):
    return ACC0 + 16 * t + 4 * mt


V_LANE = 1
V_ARD = 2
V_QRD = 4
V_HRD = 8
V_ADMA = 9
V_BDMA = 13
V_L16 = 17
V_T = 18
S_X, S_Q, S_W1, S_WS, S_MISC = 4, 8, 12, 16, 20
S_WAVE, S_RB, S_P = 24, 25, 26
S_OFFA, S_OFFA2, S_OFFQ, S_OFFH = 27, 28, 29, 30
S_M0B, S_M0A = 31, 32
S_CNT = 33
S_QM = 34
S_PTR = 36
S_L2E = 58
S_T = 60
S_AFB = 72


def bset(s, t):
    return 52 * s + 4 * t


ASET = {"X": 104, "Y": 120, "Z": 136}


def k1_body(a, typ):
    T = "A" if typ == 0 else "B"
    nq = 8 if typ == 0 else 4
    nh = 13 - nq
    Ph = 2 * nh
    HB = 256 * nq
    e = a.e
    vi, vG, t0, t1, t2, t3 = V_T, V_T + 1, V_T + 2, V_T + 3, V_T + 4, V_T + 5
    e(f"v_and_b32 v{vi}, 15, v{V_LANE}")
    e(f"v_lshrrev_b32 v{vG}, 4, v{V_LANE}")
    GX = acc(12, 1)
    gx0, gx1, gw = acc(12, 1), acc(11, 1), acc(10, 1)
    e(f"v_lshlrev_b32 v{t0}, 5, v{V_LANE}")
    e(f"s_lshl_b32 s{S_T}, s2, 3")
    e(f"s_lshl_b32 s{S_T + 1}, s{S_WAVE}, 1")
    e(f"s_add_u32 s{S_T}, s{S_T}, s{S_T + 1}")
    e(f"s_lshl_b32 s{S_T + 1}, s{S_T}, 11")
    srd(a, S_MISC, S_PTR + 14, S_PTR + 15, 2048)
    a.vmem(f"buffer_load_dwordx4 {vr(gw)}, v{t0}, s[{S_MISC}:{S_MISC + 3}], 0 offen", "g")
    a.vmem(f"buffer_load_dwordx4 {vr(gw + 4)}, v{t0}, s[{S_MISC}:{S_MISC + 3}], 0 offen offset:16", "g")
    a.vmem(f"buffer_load_dwordx4 {vr(gx0)}, v{t0}, s[{S_X}:{S_X + 3}], s{S_T + 1} offen", "g")
    a.vmem(f"buffer_load_dwordx4 {vr(gx0 + 4)}, v{t0}, s[{S_X}:{S_X + 3}], s{S_T + 1} offen offset:16", "g")
    a.vmem(f"buffer_load_dwordx4 {vr(gx1)}, v{t0}, s[{S_X}:{S_X + 3}], s{S_T + 1} offen offset:2048", "g")
    a.vmem(f"buffer_load_dwordx4 {vr(gx1 + 4)}, v{t0}, s[{S_X}:{S_X + 3}], s{S_T + 1} offen offset:2064", "g")
    e(f"s_mul_i32 s{S_T + 2}, s{S_P}, 448")
    if typ:
        e(f"s_add_u32 s{S_T + 2}, s{S_T + 2}, 160")
    srd(a, S_T + 4, S_PTR + 10, S_PTR + 11, 7168)
    e(f"v_lshlrev_b32 v{t1}, 3, v{vG}")
    for j in range(nh):
        a.vmem(f"buffer_load_dwordx2 {vr(acc(nq + j, 3), 2)}, v{t1}, s[{S_T + 4}:{S_T + 7}], s{S_T + 2} offen offset:{32 * j}", "bias")

    e(f"s_lshr_b32 s{S_T + 8}, s{S_WAVE}, 1")
    e(f"s_lshl_b32 s{S_T + 8}, s{S_T + 8}, 4")
    e(f"s_and_b32 s{S_T + 9}, s{S_WAVE}, 1")
    e(f"s_lshl_b32 s{S_T + 9}, s{S_T + 9}, 2")
    e(f"s_add_u32 s{S_T + 8}, s{S_T + 8}, s{S_T + 9}")

    def krow(dst, kp, tmp):
        e(f"v_lshrrev_b32 v{tmp}, 2, v{kp}")
        e(f"v_lshlrev_b32 v{tmp}, 3, v{tmp}")
        e(f"v_and_b32 v{dst}, 3, v{kp}")
        e(f"v_add3_u32 v{dst}, v{dst}, v{tmp}, s{S_T + 8}")

    e(f"v_lshrrev_b32 v{t0}, 3, v{V_LANE}")
    krow(t1, t0, t2)
    e(f"v_mul_u32_u24 v{t1}, 6144, v{t1}")
    e(f"v_lshrrev_b32 v{t2}, 1, v{t0}")
    e(f"v_and_b32 v{t2}, 3, v{t2}")
    e(f"v_lshlrev_b32 v{t2}, 1, v{t2}")
    e(f"v_and_b32 v{t3}, 7, v{V_LANE}")
    e(f"v_xor_b32 v{t3}, v{t3}, v{t2}")
    e(f"v_lshlrev_b32 v{t3}, 4, v{t3}")
    e(f"v_add_u32 v{t1}, v{t1}, v{t3}")
    e(f"s_lshl_b32 s{S_T + 9}, s{S_P}, 7")
    e(f"s_add_u32 s{S_T + 9}, s{S_T + 9}, {4096 + (2048 if typ == 0 else 0)}")
    e(f"v_add_u32 v{V_BDMA}, s{S_T + 9}, v{t1}")
    if typ == 0:
        e(f"v_add_u32 v{V_BDMA + 1}, {2048 - 1024}, v{V_BDMA}")
    hins = [(2, 0), (3, 64)] if typ == 0 else [(1, 0), (2, 64), (3, 128)]
    magic, sh = (205, 11) if Ph == 10 else (57, 10)
    for s_ in range(8 * Ph + 64):
        if s_ < 8 * Ph:
            assert (s_ * magic) >> sh == s_ // Ph
    for slot, s0 in hins:
        e(f"v_add_u32 v{t0}, {s0}, v{V_LANE}")
        e(f"v_mul_u32_u24 v{t1}, {magic}, v{t0}")
        e(f"v_lshrrev_b32 v{t1}, {sh}, v{t1}")
        e(f"v_mul_u32_u24 v{t2}, {Ph}, v{t1}")
        e(f"v_sub_u32 v{t0}, v{t0}, v{t2}")
        e(f"v_and_b32 v{t1}, 7, v{t1}")
        krow(t2, t1, t3)
        e(f"v_mul_u32_u24 v{t2}, 7168, v{t2}")
        e(f"v_lshlrev_b32 v{t0}, 4, v{t0}")
        e(f"v_add3_u32 v{t0}, v{t0}, v{t2}, s{S_T + 2}")
        e(f"v_add_u32 v{V_BDMA + slot}, {4096 - 1024 * slot}, v{t0}")
    e(f"s_lshl_b32 s{S_T + 9}, s{S_RB}, 8")
    e(f"s_lshl_b32 s{S_T + 10}, s{S_WAVE}, 6")
    e(f"s_add_u32 s{S_T + 9}, s{S_T + 9}, s{S_T + 10}")
    e(f"s_lshl_b32 s{S_T + 9}, s{S_T + 9}, 11")
    e(f"v_lshrrev_b32 v{t0}, 3, v{V_LANE}")
    e(f"v_lshrrev_b32 v{t1}, 1, v{t0}")
    e(f"v_and_b32 v{t2}, 7, v{V_LANE}")
    e(f"v_xor_b32 v{t2}, v{t2}, v{t1}")
    e(f"v_lshlrev_b32 v{t0}, 11, v{t0}")
    e(f"v_add_u32 v{t0}, s{S_T + 9}, v{t0}")
    for j in range(4):
        if j & 1:
            e(f"v_xor_b32 v{t3}, 4, v{t2}")
            e(f"v_lshlrev_b32 v{t3}, 4, v{t3}")
        else:
            e(f"v_lshlrev_b32 v{t3}, 4, v{t2}")
        e(f"v_add_u32 v{t3}, v{t3}, v{t0}")
        e(f"v_add_u32 v{V_ADMA + j}, {j * (16384 - 1024)}, v{t3}")
    e(f"s_mul_i32 s{S_M0B}, s{S_WAVE}, {K1_AREA}")
    e(f"s_lshl_b32 s{S_M0A}, s{S_WAVE}, 14")
    e(f"s_add_u32 s{S_M0A}, s{S_M0A}, {K1_ABASE}")
    e(f"s_mov_b32 s{S_OFFA}, 0")
    e(f"s_mov_b32 s{S_OFFA2}, 65536")
    e(f"s_mov_b32 s{S_OFFQ}, 0")
    e(f"s_mov_b32 s{S_OFFH}, 0")
    e(f"s_mov_b32 s{S_QM}, 0xffff")
    e(f"s_mov_b32 s{S_QM + 1}, 0")

    def dmaB(tt):
        slot = tt % 4
        tag = f"B{tt}"
        f = []
        srcs = [(S_Q, S_OFFQ), (S_Q, S_OFFQ) if typ == 0 else (S_W1, S_OFFH), (S_W1, S_OFFH)]
        f.append(lambda: e(f"s_add_u32 m0, s{S_M0B}, {slot * K1_BSLOT}"))
        for j in range(3):
            sr, so = srcs[j]
            f.append(lambda j=j, sr=sr, so=so: a.vmem(
                f"buffer_load_dwordx4 v{V_BDMA + j}, s[{sr}:{sr + 3}], s{so} offen offset:{1024 * j} lds", tag))

        def q():
            e(f"s_mov_b64 exec, s[{S_QM}:{S_QM + 1}]")
            a.vmem(f"buffer_load_dwordx4 v{V_BDMA + 3}, s[{S_W1}:{S_W1 + 3}], s{S_OFFH} offen offset:3072 lds", tag)
            e("s_mov_b64 exec, -1")
        f.append(q)
        f.append(lambda: e(f"s_add_u32 s{S_OFFQ}, s{S_OFFQ}, {32 * 6144}"))
        f.append(lambda: e(f"s_add_u32 s{S_OFFH}, s{S_OFFH}, {32 * 7168}"))
        return f

    def dmaA(aa):
        slot = aa % 2
        tag = f"A{aa}"
        f = []
        for half in range(2):
            so = S_OFFA if half == 0 else S_OFFA2
            f.append(lambda half=half: e(f"s_add_u32 m0, s{S_M0A}, {slot * 8192 + half * 4096}"))
            for j in range(4):
                f.append(lambda j=j, so=so: a.vmem(
                    f"buffer_load_dwordx4 v{V_ADMA + j}, s[{S_X}:{S_X + 3}], s{so} offen offset:{1024 * j} lds", tag))
        f.append(lambda: e(f"s_add_u32 s{S_OFFA}, s{S_OFFA}, 128"))
        f.append(lambda: e(f"s_add_u32 s{S_OFFA2}, s{S_OFFA2}, 128"))
        return f

    def run_seq(fl):
        for fn in fl:
            n0 = len(a.lines)
            fn()
            if " m0," in a.lines[-1] and len(a.lines) == n0 + 1:
                e("s_nop 0")

    run_seq(dmaB(0))
    run_seq(dmaA(0))
    run_seq(dmaB(1))
    run_seq(dmaB(2))
    run_seq(dmaA(1))
    run_seq(dmaB(3))

    e(f"v_lshrrev_b32 v{t0}, 3, v{vi}")
    e(f"v_lshlrev_b32 v{t0}, 6, v{t0}")
    e(f"v_and_b32 v{t1}, 7, v{vi}")
    e(f"v_lshlrev_b32 v{t1}, 3, v{t1}")
    e(f"v_add_u32 v{t0}, v{t0}, v{t1}")
    e(f"v_lshrrev_b32 v{t1}, 1, v{vi}")
    e(f"v_xor_b32 v{t1}, v{t1}, v{vG}")
    e(f"v_add_u32 v{t2}, v{t0}, v{t1}")
    e(f"v_lshlrev_b32 v{t2}, 4, v{t2}")
    e(f"v_add_u32 v{V_ARD}, s{S_M0A}, v{t2}")
    e(f"v_xor_b32 v{t1}, 4, v{t1}")
    e(f"v_add_u32 v{t2}, v{t0}, v{t1}")
    e(f"v_lshlrev_b32 v{t2}, 4, v{t2}")
    e(f"v_add_u32 v{V_ARD + 1}, s{S_M0A}, v{t2}")
    e(f"v_and_b32 v{t0}, 1, v{vG}")
    e(f"v_lshlrev_b32 v{t0}, 2, v{t0}")
    e(f"v_lshrrev_b32 v{t1}, 2, v{vi}")
    e(f"v_add_u32 v{t0}, v{t0}, v{t1}")
    e(f"v_lshrrev_b32 v{t1}, 1, v{vG}")
    e(f"v_mul_u32_u24 v{t1}, {2 * K1_AREA}, v{t1}")
    e(f"v_and_b32 v{t2}, 3, v{vi}")
    e(f"v_lshlrev_b32 v{t2}, 3, v{t2}")
    e(f"v_add_u32 v{t1}, v{t1}, v{t2}")
    e(f"v_mul_u32_u24 v{t3}, {16 * Ph}, v{t0}")
    e(f"v_add3_u32 v{V_HRD}, v{t1}, v{t3}, {0}")
    e(f"v_add_u32 v{V_HRD}, {HB}, v{V_HRD}")
    e(f"v_lshlrev_b32 v{t3}, 7, v{t0}")
    e(f"v_add_u32 v{t1}, v{t1}, v{t3}")
    e(f"v_lshrrev_b32 v{t2}, 1, v{t0}")
    e(f"v_and_b32 v{t2}, 3, v{t2}")
    for t in range(4):
        e(f"v_xor_b32 v{t3}, {t}, v{t2}")
        e(f"v_lshlrev_b32 v{t3}, 5, v{t3}")
        e(f"v_add_u32 v{V_QRD + t}, v{t1}, v{t3}")
    e(f"v_lshlrev_b32 v{V_L16}, 4, v{V_LANE}")

    a.wait(["g"])
    d0, d1 = V_T + 2, V_T + 3
    e(f"v_mov_b32 v{d0}, 0")
    e(f"v_mov_b32 v{d1}, 0")
    for j in range(8):
        e(f"v_dot2_f32_bf16 v{d0}, v{gx0 + j}, v{gw + j}, v{d0}")
        e(f"v_dot2_f32_bf16 v{d1}, v{gx1 + j}, v{gw + j}, v{d1}")
    e("s_nop 4")
    for sh_ in (1, 2, 4, 8):
        e(f"v_add_f32_dpp v{d0}, v{d0}, v{d0} row_shr:{sh_} row_mask:0xf bank_mask:0xf bound_ctrl:0")
        e(f"v_add_f32_dpp v{d1}, v{d1}, v{d1} row_shr:{sh_} row_mask:0xf bank_mask:0xf bound_ctrl:0")
        e("s_nop 1")
    e(f"v_add_f32_dpp v{d0}, v{d0}, v{d0} row_bcast:15 row_mask:0xa bank_mask:0xf")
    e(f"v_add_f32_dpp v{d1}, v{d1}, v{d1} row_bcast:15 row_mask:0xa bank_mask:0xf")
    e("s_nop 1")
    e(f"v_add_f32_dpp v{d0}, v{d0}, v{d0} row_bcast:31 row_mask:0xc bank_mask:0xf")
    e(f"v_add_f32_dpp v{d1}, v{d1}, v{d1} row_bcast:31 row_mask:0xc bank_mask:0xf")
    e(f"v_mul_f32 v{d0}, 0xbfb8aa3b, v{d0}")
    e(f"v_mul_f32 v{d1}, 0xbfb8aa3b, v{d1}")
    e(f"v_exp_f32 v{d0}, v{d0}")
    e(f"v_exp_f32 v{d1}, v{d1}")
    e("s_nop 0")
    e(f"v_add_f32 v{d0}, 1.0, v{d0}")
    e(f"v_add_f32 v{d1}, 1.0, v{d1}")
    e(f"v_rcp_f32 v{d0}, v{d0}")
    e(f"v_rcp_f32 v{d1}, v{d1}")
    e(f"s_lshl_b32 s{S_T + 1}, s{S_T}, 2")
    e(f"s_add_u32 s{S_T + 1}, s{S_T + 1}, {G_OFF}")
    e(f"v_mov_b32 v{V_T + 4}, 0")
    e(f"s_mov_b32 s{S_T + 8}, 0")
    e(f"s_mov_b32 s{S_T + 9}, 0x80000000")
    e(f"s_mov_b64 exec, s[{S_T + 8}:{S_T + 9}]")
    a.vmem(f"buffer_store_dwordx2 v[{d0}:{d1}], v{V_T + 4}, s[{S_WS}:{S_WS + 3}], s{S_T + 1} offen", "gst")
    e("s_mov_b64 exec, -1")
    a.wait(["bias"])
    for j in range(nh):
        src = acc(nq + j, 3)
        d = acc(nq + j, 0)
        e(f"v_lshlrev_b32 v{d}, 16, v{src}")
        e(f"v_and_b32 v{d + 1}, 0xffff0000, v{src}")
        e(f"v_lshlrev_b32 v{d + 2}, 16, v{src + 1}")
        e(f"v_and_b32 v{d + 3}, 0xffff0000, v{src + 1}")
    for t in range(4):
        for r in range(4):
            e(f"v_mov_b32 v{acc(t, 0) + r}, {EPS_HEX}")

    def rdB(tt):
        slot = tt % 4
        s = tt % 2
        f = []
        for t in range(13):
            for ins in range(2):
                if t < nq:
                    addr = V_QRD + (t & 3)
                    off = slot * K1_BSLOT + ins * K1_AREA + 1024 * (t >> 2)
                else:
                    addr = V_HRD
                    off = slot * K1_BSLOT + ins * K1_AREA + 32 * (t - nq)
                d = bset(s, t) + 2 * ins
                f.append(lambda d=d, addr=addr, off=off: e(f"ds_read_b64_tr_b16 {ar(d, 2)}, v{addr} offset:{off}"))
        return f

    def aset_of(tt):
        if tt % 2 == 0:
            return ASET["X"]
        return ASET["Y"] if tt % 4 == 1 else ASET["Z"]

    def rdA(aa):
        slot = aa % 2
        f = []
        for hh in range(2):
            base = aset_of(2 * aa + hh)
            for mt in range(4):
                f.append(lambda hh=hh, mt=mt, base=base: e(
                    f"ds_read_b128 {ar(base + 4 * mt)}, v{V_ARD + hh} offset:{slot * 8192 + mt * 2048}"))
        return f

    a.wait(["B0", "A0"])
    e("s_barrier")
    for fn in rdA(0) + rdB(0):
        fn()
    a.wait(["B1"], lgkm=True)
    e("s_barrier")

    NSTEP = 32

    def step(tt):
        s = tt % 2
        ab = aset_of(tt)
        mf = []
        for t in range(13):
            order = [1, 2, 3, 0] if tt == 0 else [0, 1, 2, 3]
            for mt in order:
                D = vr(acc(t, mt))
                if tt == 0:
                    C = "0" if (typ == 0 and 4 <= t < 8) else vr(acc(t, 0))
                else:
                    C = D
                W = ar(bset(s, t))
                X = ar(ab + 4 * mt)
                if typ == 0 and t < 8:
                    mf.append(f"v_mfma_f32_16x16x32_bf16 {D}, {X}, {W}, {C}")
                else:
                    mf.append(f"v_mfma_f32_16x16x32_bf16 {D}, {W}, {X}, {C}")
        rd = []
        if tt + 1 < NSTEP:
            rd = rdB(tt + 1)
            if tt % 2 == 1:
                rd = rdA((tt + 1) // 2) + rd
        dm = []
        if tt + 4 < NSTEP:
            dm += dmaB(tt + 4)
        if tt % 2 == 0 and tt // 2 + 2 < NSTEP // 2:
            dm += dmaA(tt // 2 + 2)
        fl = []
        i1 = i2 = 0
        n1, n2 = len(rd), len(dm)
        while i1 < n1 or i2 < n2:
            if i2 < n2 and (i1 >= n1 or i2 * n1 <= i1 * n2):
                fl.append(dm[i2]); i2 += 1
            else:
                fl.append(rd[i1]); i1 += 1
        interleave(a, mf, fl, 0, 48)
        if tt + 1 < NSTEP:
            tags = []
            if tt + 2 < NSTEP:
                tags.append(f"B{tt + 2}")
            if tt % 2 == 0:
                tags.append(f"A{tt // 2 + 1}")
            a.wait(tags, lgkm=True)
            if tt + 2 < NSTEP:
                e("s_barrier")

    iters = []
    for it in range(8):
        n0 = len(a.lines)
        for tt in range(4 * it, 4 * it + 4):
            step(tt)
        iters.append(a.lines[n0:])
        del a.lines[n0:]
    for it in range(2, 7):
        assert iters[it] == iters[1], f"iteration {it} differs"
    a.lines += iters[0]
    e(f"s_mov_b32 s{S_CNT}, 6")
    a.label(f"L_k1{T}_loop")
    a.lines += iters[1]
    e(f"s_sub_u32 s{S_CNT}, s{S_CNT}, 1")
    e(f"s_cmp_lg_u32 s{S_CNT}, 0")
    e(f"s_cbranch_scc1 L_k1{T}_loop")
    a.lines += iters[7]
    assert all(not t.startswith(("A", "B")) for t in a.vm), a.vm

    e(f"s_mov_b32 s{S_L2E}, {L2E_HEX}")
    e(f"s_mov_b32 s{S_L2E + 1}, {L2E_HEX}")
    e(f"s_lshl_b32 s{S_T}, s{S_RB}, 1")
    e(f"s_lshr_b32 s{S_T + 1}, s{S_WAVE}, 1")
    e(f"s_add_u32 s{S_T}, s{S_T}, s{S_T + 1}")
    e(f"s_mul_i32 s{S_AFB}, s{S_T}, {144 * 8192}")
    e(f"s_and_b32 s{S_T + 1}, s{S_WAVE}, 1")
    e(f"s_lshl_b32 s{S_T + 1}, s{S_T + 1}, 12")
    e(f"s_add_u32 s{S_AFB}, s{S_AFB}, s{S_T + 1}")
    e("s_nop 7")
    TT, UU = V_T, V_T + 8

    def phi_group(ra, rb_):
        prs = [ra, ra + 2, rb_, rb_ + 2]
        for j, p in enumerate(prs):
            e(f"v_pk_mul_f32 {vr(TT + 2 * j, 2)}, {vr(p, 2)}, s[{S_L2E}:{S_L2E + 1}]")
        for j in range(8):
            e(f"v_exp_f32_e64 v{TT + j}, v{TT + j} clamp")
        for p in prs:
            e(f"v_max_f32 v{p}, {EPS_HEX}, v{p}")
            e(f"v_max_f32 v{p + 1}, {EPS_HEX}, v{p + 1}")
        for j, p in enumerate(prs):
            e(f"v_pk_add_f32 {vr(p, 2)}, {vr(p, 2)}, {vr(TT + 2 * j, 2)}")
        for j, p in enumerate(prs):
            e(f"v_cvt_pk_bf16_f32 v{ra + j}, v{p}, v{p + 1}")

    def cvt_group(ra, rb_):
        prs = [ra, ra + 2, rb_, rb_ + 2]
        for j, p in enumerate(prs):
            e(f"v_cvt_pk_bf16_f32 v{ra + j}, v{p}, v{p + 1}")

    def mish_group(ra, rb_, split=False):
        prs = [ra, ra + 2, rb_, rb_ + 2]
        for j, p in enumerate(prs):
            e(f"v_pk_mul_f32 {vr(TT + 2 * j, 2)}, {vr(p, 2)}, s[{S_L2E}:{S_L2E + 1}]")
        for j in range(8):
            e(f"v_exp_f32 v{TT + j}, v{TT + j}")
        for j in range(4):
            e(f"v_pk_fma_f32 {vr(UU + 2 * j, 2)}, {vr(TT + 2 * j, 2)}, 0.5, 1.0 op_sel_hi:[1,0,0]")
        for j in range(4):
            e(f"v_pk_fma_f32 {vr(UU + 2 * j, 2)}, {vr(TT + 2 * j, 2)}, {vr(UU + 2 * j, 2)}, 1.0 op_sel_hi:[1,1,0]")
        for j in range(8):
            e(f"v_rcp_f32 v{UU + j}, v{UU + j}")
        for j, p in enumerate(prs):
            e(f"v_pk_fma_f32 {vr(p, 2)}, {vr(UU + 2 * j, 2)}, {vr(p, 2)}, {vr(p, 2)} neg_lo:[1,0,0] neg_hi:[1,0,0]")
        if split:
            e(f"v_cvt_pk_bf16_f32 v{ra}, v{ra}, v{ra + 1}")
            e(f"v_cvt_pk_bf16_f32 v{ra + 1}, v{ra + 2}, v{ra + 3}")
            e(f"v_cvt_pk_bf16_f32 v{rb_}, v{rb_}, v{rb_ + 1}")
            e(f"v_cvt_pk_bf16_f32 v{rb_ + 1}, v{rb_ + 2}, v{rb_ + 3}")
        else:
            for j, p in enumerate(prs):
                e(f"v_cvt_pk_bf16_f32 v{ra + j}, v{p}, v{p + 1}")

    WS = f"s[{S_WS}:{S_WS + 3}]"

    def set_kb(sreg, mul, add):
        e(f"s_mul_i32 s{sreg}, s{S_P}, {mul * 8192}")
        e(f"s_add_u32 s{sreg}, s{sreg}, {add * 8192}")
        e(f"s_add_u32 s{sreg}, s{sreg}, s{S_AFB}")

    def h_full(tA, kbl):
        set_kb(S_T + 2, 7, kbl)
        for mt in range(4):
            mish_group(acc(tA, mt), acc(tA + 1, mt))
            a.vmem(f"buffer_store_dwordx4 {vr(acc(tA, mt))}, v{V_L16}, {WS}, s{S_T + 2} offen offset:{1024 * mt}", "st")

    def h_half(tA, kbl, half):
        set_kb(S_T + 2, 7, kbl)
        for mp in range(2):
            mish_group(acc(tA, 2 * mp), acc(tA, 2 * mp + 1), split=True)
            for mt in (2 * mp, 2 * mp + 1):
                a.vmem(f"buffer_store_dwordx2 {vr(acc(tA, mt), 2)}, v{V_L16}, {WS}, s{S_T + 2} offen offset:{1024 * mt + 8 * half}", "st")

    if typ == 1:
        for hd in range(2):
            set_kb(S_T + 2, 2, 112 + hd)
            for mt in range(4):
                phi_group(acc(2 * hd, mt), acc(2 * hd + 1, mt))
                a.vmem(f"buffer_store_dwordx4 {vr(acc(2 * hd, mt))}, v{V_L16}, {WS}, s{S_T + 2} offen offset:{1024 * mt}", "st")
        h_half(4, 2, 1)
        for j in range(4):
            h_full(5 + 2 * j, 3 + j)
        e("s_endpgm")
        return

    ONES = V_T + 16
    for r in range(4):
        e(f"v_mov_b32 v{ONES + r}, 0x3f803f80")
    for t in range(4):
        for pr in range(2):
            phi_group(acc(t, 2 * pr), acc(t, 2 * pr + 1))
    for t in range(4, 8):
        for pr in range(2):
            cvt_group(acc(t, 2 * pr), acc(t, 2 * pr + 1))
    e("s_nop 1")
    free = [acc(t, m) for t in range(8) for m in (1, 3)]

    def Dt(tau):
        return free[tau]
    for pr in range(2):
        for hd in range(2):
            for dt in range(2):
                for et in range(3):
                    tau = hd * 6 + dt * 3 + et
                    Aop = vr(acc(2 * hd + dt, 2 * pr))
                    Bop = vr(acc(4 + 2 * hd + et, 2 * pr)) if et < 2 else vr(ONES)
                    C = "0" if pr == 0 else vr(Dt(tau))
                    e(f"v_mfma_f32_16x16x32_bf16 {vr(Dt(tau))}, {Aop}, {Bop}, {C}")
    vw, vrd = V_T + 20, V_T + 21
    e(f"v_add_u32 v{vw}, s{S_M0A}, v{V_L16}")
    e(f"s_mul_i32 s{S_T}, s{S_WAVE}, 3072")
    e(f"s_add_u32 s{S_T}, s{S_T}, {K1_ABASE}")
    e(f"v_add_u32 v{vrd}, s{S_T}, v{V_L16}")
    e("s_nop 7")
    for tau in range(12):
        e(f"ds_write_b128 v{vw}, {vr(Dt(tau))} offset:{1024 * tau}")
    e("s_waitcnt lgkmcnt(0)")
    e("s_barrier")
    R = [acc(t, m) for t in range(8) for m in (0, 2)]
    for w2 in range(4):
        for j in range(3):
            e(f"ds_read_b128 {vr(R[3 * w2 + j])}, v{vrd} offset:{16384 * w2 + 1024 * j}")
    e(f"s_lshl_b32 s{S_T}, s{S_P}, 3")
    e(f"s_add_u32 s{S_T}, s{S_T}, s{S_RB}")
    e(f"s_mul_i32 s{S_T}, s{S_T}, 12288")
    e(f"s_mul_i32 s{S_T + 1}, s{S_WAVE}, 3072")
    e(f"s_add_u32 s{S_T}, s{S_T}, s{S_T + 1}")
    e(f"s_add_u32 s{S_T}, s{S_T}, {KVP_OFF}")
    e("s_waitcnt lgkmcnt(0)")
    for j in range(3):
        for h2 in range(2):
            b0 = R[j] + 2 * h2
            e(f"v_pk_add_f32 {vr(b0, 2)}, {vr(b0, 2)}, {vr(R[3 + j] + 2 * h2, 2)}")
            e(f"v_pk_add_f32 {vr(R[6 + j] + 2 * h2, 2)}, {vr(R[6 + j] + 2 * h2, 2)}, {vr(R[9 + j] + 2 * h2, 2)}")
        for h2 in range(2):
            b0 = R[j] + 2 * h2
            e(f"v_pk_add_f32 {vr(b0, 2)}, {vr(b0, 2)}, {vr(R[6 + j] + 2 * h2, 2)}")
        a.vmem(f"buffer_store_dwordx4 {vr(R[j])}, v{V_L16}, {WS}, s{S_T} offen offset:{1024 * j} sc1", "kvp")
    h_full(8, 0)
    a.wait(["kvp"])
    e("s_barrier")
    srd(a, S_MISC, S_PTR + 18, S_PTR + 19, 256)
    vat, vao = V_T + 22, V_T + 23
    e(f"v_mov_b32 v{vat}, 1")
    e(f"s_lshl_b32 s{S_T + 4}, s{S_P}, 2")
    e(f"v_mov_b32 v{vao}, s{S_T + 4}")
    e(f"s_cmp_lg_u32 s{S_WAVE}, 0")
    e(f"s_cbranch_scc1 L_k1A_noat")
    e(f"s_mov_b64 exec, 1")
    e(f"buffer_atomic_add v{vat}, v{vao}, s[{S_MISC}:{S_MISC + 3}], 0 offen sc0")
    e("s_waitcnt vmcnt(0)")
    e(f"v_mov_b32 v{vao}, 0")
    e(f"ds_write_b32 v{vao}, v{vat}")
    e("s_waitcnt lgkmcnt(0)")
    e(f"s_mov_b64 exec, -1")
    a.label("L_k1A_noat")
    h_full(10, 1)
    e("s_barrier")
    e(f"v_mov_b32 v{vao}, 0")
    e(f"ds_read_b32 v{vat}, v{vao}")
    e("s_waitcnt lgkmcnt(0)")
    e(f"v_readfirstlane_b32 s{S_T + 5}, v{vat}")
    e("s_nop 3")
    e(f"s_cmp_lg_u32 s{S_T + 5}, 7")
    e(f"s_cbranch_scc1 L_k1A_notlast")
    LR = [acc(t, m) for t in range(8) for m in range(4)]
    e(f"s_mul_i32 s{S_T}, s{S_P}, {8 * 12288}")
    e(f"s_mul_i32 s{S_T + 1}, s{S_WAVE}, 3072")
    e(f"s_add_u32 s{S_T}, s{S_T}, s{S_T + 1}")
    e(f"s_add_u32 s{S_T}, s{S_T}, {KVP_OFF}")
    for r8 in range(8):
        for j in range(3):
            e(f"buffer_load_dwordx4 {vr(LR[3 * r8 + j])}, v{V_L16}, {WS}, s{S_T} offen offset:{1024 * j} sc1")
        if r8 < 7:
            e(f"s_add_u32 s{S_T}, s{S_T}, 12288")
    save_vm = list(a.vm)
    h_half(12, 2, 0)
    e("s_waitcnt vmcnt(4)")
    for st in (1, 2, 4):
        for r8 in range(0, 8, 2 * st):
            for j in range(3):
                for h2 in range(2):
                    b0 = LR[3 * r8 + j] + 2 * h2
                    b1 = LR[3 * (r8 + st) + j] + 2 * h2
                    e(f"v_pk_add_f32 {vr(b0, 2)}, {vr(b0, 2)}, {vr(b1, 2)}")
    e(f"s_lshl_b32 s{S_T}, s{S_P}, 1")
    e(f"s_lshr_b32 s{S_T + 1}, s{S_WAVE}, 1")
    e(f"s_add_u32 s{S_T}, s{S_T}, s{S_T + 1}")
    e(f"s_mul_i32 s{S_T}, s{S_T}, 3072")
    e(f"s_and_b32 s{S_T + 1}, s{S_WAVE}, 1")
    e(f"s_lshl_b32 s{S_T + 1}, s{S_T + 1}, 3")
    e(f"s_add_u32 s{S_T}, s{S_T}, s{S_T + 1}")
    e(f"s_add_u32 s{S_T}, s{S_T}, {KVF_OFF}")
    for j in range(3):
        b0 = LR[j]
        e(f"v_cvt_pk_bf16_f32 v{b0}, v{b0}, v{b0 + 1}")
        e(f"v_cvt_pk_bf16_f32 v{b0 + 1}, v{b0 + 2}, v{b0 + 3}")
        e(f"buffer_store_dwordx2 {vr(b0, 2)}, v{V_L16}, {WS}, s{S_T} offen offset:{1024 * j}")
    e("s_endpgm")
    a.label("L_k1A_notlast")
    a.vm = save_vm
    h_half(12, 2, 0)
    e("s_endpgm")


def gen_k1():
    a = Asm()
    e = a.e
    a.lines.append(".globl k1_kernel\n.p2align 8\n.type k1_kernel,@function\nk1_kernel:")
    e("s_cmp_ge_u32 s2, 256")
    e("s_cbranch_scc1 L_k1_exit")
    e(f"s_load_dwordx16 s[{S_PTR}:{S_PTR + 15}], s[0:1], 0")
    e(f"s_load_dwordx4 s[{S_PTR + 16}:{S_PTR + 19}], s[0:1], 64")
    e(f"s_load_dwordx2 s[{S_PTR + 20}:{S_PTR + 21}], s[0:1], 80")
    e(f"v_and_b32 v{V_LANE}, 63, v0")
    e(f"v_lshrrev_b32 v{V_T}, 6, v0")
    e(f"s_and_b32 s{S_T}, s2, 7")
    e(f"v_readfirstlane_b32 s{S_WAVE}, v{V_T}")
    e(f"s_lshr_b32 s{S_T + 1}, s2, 3")
    e(f"s_and_b32 s{S_RB}, s{S_T}, 1")
    e(f"s_lshl_b32 s{S_RB}, s{S_RB}, 2")
    e(f"s_and_b32 s{S_T + 2}, s{S_T + 1}, 3")
    e(f"s_add_u32 s{S_RB}, s{S_RB}, s{S_T + 2}")
    e(f"s_lshr_b32 s{S_T}, s{S_T}, 1")
    e(f"s_lshl_b32 s{S_T}, s{S_T}, 3")
    e(f"s_lshr_b32 s{S_T + 1}, s{S_T + 1}, 2")
    e(f"s_add_u32 s{S_T}, s{S_T}, s{S_T + 1}")
    e(f"s_lshr_b32 s{S_P}, s{S_T}, 1")
    e(f"s_and_b32 s{S_T + 3}, s{S_T}, 1")
    e("s_waitcnt lgkmcnt(0)")
    srd(a, S_X, S_PTR + 0, S_PTR + 1, 2048 * 1024 * 2)
    srd(a, S_Q, S_PTR + 2, S_PTR + 3, 1024 * 3072 * 2, bias=4096)
    srd(a, S_W1, S_PTR + 8, S_PTR + 9, 1024 * 3584 * 2, bias=4096)
    srd(a, S_WS, S_PTR + 20, S_PTR + 21, WS_USED)
    e(f"s_cmp_lg_u32 s{S_T + 3}, 0")
    e("s_cbranch_scc1 L_k1_typeB")
    k1_body(a, 0)
    a.label("L_k1_typeB")
    a.vm = []
    k1_body(a, 1)
    a.label("L_k1_exit")
    e("s_endpgm")
    return a.lines


K2_LDS = 131072


def gen_k2():
    a = Asm()
    e = a.e
    SW2, SWO, SWS, SOUT = 4, 8, 12, 16
    SWAVE, SMT, SNT = 20, 21, 22
    SOA, SOB, SOKV, SM0, SCNT = 23, 24, 25, 26, 27
    SP = 36
    ST = 60
    VL = 1
    VBD = 2
    VBR = 6
    VL16 = 10
    VL16B = 11
    VG = 12
    VT = 20
    VEPS = 28
    VD = 32
    VOF = 68
    VR = 80
    VRED = 88
    AC = 128

    def acc2(mt, nt):
        return AC + 16 * mt + 4 * nt

    def Aset(t, mt):
        return 32 * (t % 4) + 4 * mt

    def Bf(t, nt):
        return 128 + 16 * (t % 2) + 4 * nt

    def KV(t, j):
        return 160 + 12 * (t % 4) + 4 * j

    a.lines.append(".globl k2_kernel\n.p2align 8\n.type k2_kernel,@function\nk2_kernel:")
    e("s_cmp_ge_u32 s2, 256")
    e("s_cbranch_scc1 L_k2_exit")
    e(f"s_load_dwordx16 s[{SP}:{SP + 15}], s[0:1], 0")
    e(f"s_load_dwordx4 s[{SP + 16}:{SP + 19}], s[0:1], 64")
    e(f"s_load_dwordx2 s[{SP + 20}:{SP + 21}], s[0:1], 80")
    e(f"v_and_b32 v{VL}, 63, v0")
    e(f"v_lshrrev_b32 v{VT}, 6, v0")
    e(f"s_and_b32 s{ST}, s2, 7")
    e(f"v_readfirstlane_b32 s{SWAVE}, v{VT}")
    e(f"s_lshr_b32 s{ST + 1}, s2, 3")
    e(f"s_and_b32 s{SMT}, s{ST}, 3")
    e(f"s_lshl_b32 s{SMT}, s{SMT}, 2")
    e(f"s_and_b32 s{ST + 2}, s{ST + 1}, 3")
    e(f"s_add_u32 s{SMT}, s{SMT}, s{ST + 2}")
    e(f"s_lshr_b32 s{SNT}, s{ST}, 2")
    e(f"s_lshl_b32 s{SNT}, s{SNT}, 3")
    e(f"s_lshr_b32 s{ST + 1}, s{ST + 1}, 2")
    e(f"s_add_u32 s{SNT}, s{SNT}, s{ST + 1}")
    vi, vG, t0, t1, t2, t3 = VT, VT + 1, VT + 2, VT + 3, VT + 4, VT + 5
    e(f"v_and_b32 v{vi}, 15, v{VL}")
    e(f"v_lshrrev_b32 v{vG}, 4, v{VL}")
    e(f"v_lshlrev_b32 v{VL16}, 4, v{VL}")
    e(f"v_add_u32 v{VL16B}, 4096, v{VL16}")
    e(f"v_lshrrev_b32 v{t0}, 3, v{VL}")
    e(f"v_lshrrev_b32 v{t1}, 1, v{t0}")
    e(f"v_lshlrev_b32 v{t1}, 1, v{t1}")
    e(f"v_and_b32 v{t2}, 7, v{VL}")
    e(f"v_xor_b32 v{t2}, v{t2}, v{t1}")
    e(f"v_lshlrev_b32 v{t2}, 4, v{t2}")
    e(f"v_lshlrev_b32 v{t0}, 11, v{t0}")
    e(f"s_lshl_b32 s{ST + 2}, s{SNT}, 7")
    e(f"v_add3_u32 v{VBD}, v{t0}, v{t2}, s{ST + 2}")
    for j in range(1, 4):
        e(f"v_add_u32 v{VBD + j}, {j * 15360}, v{VBD}")
    e(f"s_lshl_b32 s{SM0}, s{SWAVE}, 15")
    e(f"v_lshlrev_b32 v{t0}, 2, v{vG}")
    e(f"v_lshrrev_b32 v{t1}, 2, v{vi}")
    e(f"v_add_u32 v{t0}, v{t0}, v{t1}")
    e(f"v_lshrrev_b32 v{t1}, 1, v{t0}")
    e(f"v_and_b32 v{t1}, 3, v{t1}")
    e(f"v_lshlrev_b32 v{t0}, 7, v{t0}")
    e(f"v_and_b32 v{t2}, 3, v{vi}")
    e(f"v_lshlrev_b32 v{t2}, 3, v{t2}")
    e(f"v_add3_u32 v{t0}, v{t0}, v{t2}, s{SM0}")
    for t in range(4):
        e(f"v_xor_b32 v{t3}, {t}, v{t1}")
        e(f"v_lshlrev_b32 v{t3}, 5, v{t3}")
        e(f"v_add_u32 v{VBR + t}, v{t0}, v{t3}")
    for r in range(4):
        e(f"v_mov_b32 v{VEPS + r}, {EPS_HEX}")
    e("s_waitcnt lgkmcnt(0)")
    srd(a, SW2, SP + 12, SP + 13, 3584 * 1024 * 2)
    srd(a, SWO, SP + 4, SP + 5, 1024 * 1024 * 2)
    srd(a, SWS, SP + 20, SP + 21, WS_USED)
    srd(a, SOUT, SP + 16, SP + 17, 2048 * 1024 * 2)
    WS = f"s[{SWS}:{SWS + 3}]"
    e(f"v_lshlrev_b32 v{t0}, 2, v{vi}")
    e(f"s_lshl_b32 s{ST}, s{SMT}, 9")
    e(f"s_add_u32 s{ST}, s{ST}, {G_OFF}")
    for mt in range(8):
        a.vmem(f"buffer_load_dword v{VG + mt}, v{t0}, {WS}, s{ST} offen offset:{64 * mt}", "g")
    e(f"s_mul_i32 s{SOA}, s{SMT}, 144")
    e(f"s_mul_i32 s{ST}, s{SWAVE}, 28")
    e(f"s_add_u32 s{SOA}, s{SOA}, s{ST}")
    e(f"s_lshl_b32 s{SOA}, s{SOA}, 13")
    e(f"s_lshl_b32 s{SOB}, s{ST}, 16")
    e(f"s_mul_i32 s{SOKV}, s{SWAVE}, {8 * 3072}")
    e(f"s_add_u32 s{SOKV}, s{SOKV}, {KVF_OFF}")

    NB = 36
    NACT = 28

    def dmaB(t):
        f = []
        sr = SW2 if t < NACT else SWO
        if t == NACT:
            f.append(lambda: e(f"s_lshl_b32 s{SOB}, s{SWAVE}, 19"))
        f.append(lambda: e(f"s_add_u32 m0, s{SM0}, {(t % 4) * 4096}"))
        for j in range(4):
            f.append(lambda j=j: a.vmem(
                f"buffer_load_dwordx4 v{VBD + j}, s[{sr}:{sr + 3}], s{SOB} offen offset:{1024 * j} lds", f"B{t}"))
        f.append(lambda: e(f"s_add_u32 s{SOB}, s{SOB}, 65536"))
        return f

    def ldA(t, mt):
        def fn():
            if t == NACT and mt == 0:
                e(f"s_mul_i32 s{SOA}, s{SMT}, 144")
                e(f"s_lshl_b32 s{ST}, s{SWAVE}, 3")
                e(f"s_add_u32 s{SOA}, s{SOA}, s{ST}")
                e(f"s_add_u32 s{SOA}, s{SOA}, 112")
                e(f"s_lshl_b32 s{SOA}, s{SOA}, 13")
            va = VL16 if mt < 4 else VL16B
            a.vmem(f"buffer_load_dwordx4 {ar(Aset(t, mt))}, v{va}, {WS}, s{SOA} offen offset:{1024 * (mt & 3)}", f"A{t}")
            if mt == 7:
                e(f"s_add_u32 s{SOA}, s{SOA}, 8192")
        return fn

    def ldKV(t):
        f = []
        for j in range(3):
            f.append(lambda j=j: a.vmem(
                f"buffer_load_dwordx4 {ar(KV(t, j))}, v{VL16}, {WS}, s{SOKV} offen offset:{1024 * j}", f"A{t}"))
        f.append(lambda: e(f"s_add_u32 s{SOKV}, s{SOKV}, 3072"))
        return f

    def rdB(t):
        f = []
        for nt in range(4):
            for ins in range(2):
                f.append(lambda nt=nt, ins=ins: e(
                    f"ds_read_b64_tr_b16 {ar(Bf(t, nt) + 2 * ins, 2)}, v{VBR + nt} offset:{(t % 4) * 4096 + 2048 * ins}"))
        return f

    def run_seq(fl):
        for fn in fl:
            n0 = len(a.lines)
            fn()
            if " m0," in a.lines[-1] and len(a.lines) == n0 + 1:
                e("s_nop 0")

    for t in range(4):
        run_seq(dmaB(t))
        run_seq([ldA(t, mt) for mt in range(8)])
    a.wait(["B0"])
    run_seq(rdB(0))

    def block(t):
        tags = [f"A{t}"]
        if t + 1 < NB:
            tags.append(f"B{t + 1}")
        a.wait(tags, lgkm=True)
        pre = t + 4 < NB
        early = []
        if t + 1 < NB:
            early += rdB(t + 1)
        dm = dmaB(t + 4) if pre else []
        late = []
        if pre and t + 4 >= NACT:
            if t < NACT:
                dm = dm + ldKV(t + 4)
            else:
                late = ldKV(t + 4)
        fl = []
        i1 = i2 = 0
        n1, n2 = len(early), len(dm)
        while i1 < n1 or i2 < n2:
            if i2 < n2 and (i1 >= n1 or i2 * n1 <= i1 * n2):
                fl.append(dm[i2]); i2 += 1
            else:
                fl.append(early[i1]); i1 += 1
        if t < NACT:
            k = 0
            for mt in range(8):
                for nt in range(4):
                    D = vr(acc2(mt, nt))
                    C = "0" if t == 0 else D
                    e(f"v_mfma_f32_16x16x32_bf16 {D}, {ar(Bf(t, nt))}, {ar(Aset(t, mt))}, {C}")
                    if nt < 3 and k < len(fl):
                        fl[k](); k += 1
                if pre:
                    ldA(t + 4, mt)()
            while k < len(fl):
                fl[k](); k += 1
        else:
            if t == NACT:
                e("s_nop 7")
                for mt in range(8):
                    e(f"v_sub_f32 v{VT + 6}, 1.0, v{VG + mt}")
                    for q in range(8):
                        b0 = acc2(mt, 0) + 2 * q
                        e(f"v_pk_mul_f32 {vr(b0, 2)}, {vr(b0, 2)}, {vr(VT + 6, 2)} op_sel_hi:[1,0]")
            k = 0

            def S1(mt):
                d = VD + 12 * (mt % 3)
                pq = ar(Aset(t, mt))
                return [f"v_mfma_f32_16x16x32_bf16 {vr(d)}, {ar(KV(t, 0))}, {pq}, 0",
                        f"v_mfma_f32_16x16x32_bf16 {vr(d + 4)}, {ar(KV(t, 1))}, {pq}, 0",
                        f"v_mfma_f32_16x16x32_bf16 {vr(d + 8)}, {ar(KV(t, 2))}, {pq}, {vr(VEPS)}"]

            def S2(mt):
                d = VD + 12 * (mt % 3)
                r = VR + 2 * (mt % 3)
                o = VOF + 4 * (mt % 3)
                L = [f"v_rcp_f32 v{r}, v{d + 8}", "s_nop 0",
                     f"v_mul_f32 v{r}, v{r}, v{VG + mt}"]
                for q in range(4):
                    L.append(f"v_pk_mul_f32 {vr(d + 2 * q, 2)}, {vr(d + 2 * q, 2)}, {vr(r, 2)} op_sel_hi:[1,0]")
                for q in range(4):
                    L.append(f"v_cvt_pk_bf16_f32 v{o + q}, v{d + 2 * q}, v{d + 2 * q + 1}")
                return L

            def S3(mt):
                o = VOF + 4 * (mt % 3)
                return [f"v_mfma_f32_16x16x32_bf16 {vr(acc2(mt, nt))}, {ar(Bf(t, nt))}, {vr(o)}, {vr(acc2(mt, nt))}"
                        for nt in range(4)]

            for i in range(-2, 8):
                mf = []
                if i + 2 < 8:
                    mf += S1(i + 2)
                if i >= 0:
                    mf += S3(i)
                va = S2(i + 1) if 0 <= i + 1 < 8 else []
                if i == -1:
                    e("s_nop 7")
                vi_ = 0
                for m_i, m in enumerate(mf):
                    e(m)
                    for _ in range(2):
                        if vi_ < len(va):
                            e(va[vi_]); vi_ += 1
                    if i + 2 < 8 and m_i == 2 and pre:
                        ldA(t + 4, i + 2)()
                while vi_ < len(va):
                    e(va[vi_]); vi_ += 1
                if i >= 5:
                    e("s_nop 3")
                for _ in range(3):
                    if k < len(fl):
                        fl[k](); k += 1
            while k < len(fl):
                fl[k](); k += 1
            for fn in late:
                fn()

    iters = []
    for it in range(9):
        n0 = len(a.lines)
        for t in range(4 * it, 4 * it + 4):
            block(t)
        iters.append(a.lines[n0:])
        del a.lines[n0:]
    for it in range(2, 6):
        assert iters[it] == iters[1], f"k2 iteration {it} differs"
    a.lines += iters[0]
    e(f"s_mov_b32 s{SCNT}, 5")
    a.label("L_k2_loop")
    a.lines += iters[1]
    e(f"s_sub_u32 s{SCNT}, s{SCNT}, 1")
    e(f"s_cmp_lg_u32 s{SCNT}, 0")
    e("s_cbranch_scc1 L_k2_loop")
    for it in range(6, 9):
        a.lines += iters[it]
    vw, vrd, vo = VT, VT + 1, VT + 2
    e(f"v_add_u32 v{vw}, s{SM0}, v{VL16}")
    e(f"s_lshl_b32 s{ST}, s{SWAVE}, 13")
    e(f"v_add_u32 v{vrd}, s{ST}, v{VL16}")
    e("s_nop 7")
    for mt in range(8):
        for nt in range(4):
            e(f"ds_write_b128 v{vw}, {vr(acc2(mt, nt))} offset:{(4 * mt + nt) * 1024}")
    e("s_waitcnt lgkmcnt(0)")
    e("s_barrier")
    for w2 in range(4):
        if w2 == 2:
            e(f"v_add_u32 v{vrd}, 65536, v{vrd}")
        for j in range(8):
            e(f"ds_read_b128 {vr(AC + 32 * w2 + 4 * j)}, v{vrd} offset:{(w2 & 1) * 32768 + 1024 * j}")
    e(f"v_and_b32 v{t2}, 15, v{VL}")
    e(f"v_lshrrev_b32 v{t3}, 4, v{VL}")
    e(f"v_lshlrev_b32 v{t2}, 11, v{t2}")
    e(f"v_lshlrev_b32 v{t3}, 3, v{t3}")
    e(f"v_add_u32 v{vo}, v{t2}, v{t3}")
    e(f"v_add_u32 v{vo + 1}, 32768, v{vo}")
    e(f"s_lshl_b32 s{ST}, s{SMT}, 7")
    e(f"s_lshl_b32 s{ST + 1}, s{SWAVE}, 5")
    e(f"s_add_u32 s{ST}, s{ST}, s{ST + 1}")
    e(f"s_lshl_b32 s{ST}, s{ST}, 11")
    e(f"s_lshl_b32 s{ST + 1}, s{SNT}, 7")
    e(f"s_add_u32 s{ST}, s{ST}, s{ST + 1}")
    e("s_waitcnt lgkmcnt(0)")
    for j in range(8):
        for h2 in range(2):
            b = AC + 4 * j + 2 * h2
            e(f"v_pk_add_f32 {vr(b, 2)}, {vr(b, 2)}, {vr(b + 32, 2)}")
            e(f"v_pk_add_f32 {vr(b + 64, 2)}, {vr(b + 64, 2)}, {vr(b + 96, 2)}")
        for h2 in range(2):
            b = AC + 4 * j + 2 * h2
            e(f"v_pk_add_f32 {vr(b, 2)}, {vr(b, 2)}, {vr(b + 64, 2)}")
        b = AC + 4 * j
        e(f"v_cvt_pk_bf16_f32 v{b}, v{b}, v{b + 1}")
        e(f"v_cvt_pk_bf16_f32 v{b + 1}, v{b + 2}, v{b + 3}")
        e(f"buffer_store_dwordx2 {vr(b, 2)}, v{vo + (j >> 2)}, s[{SOUT}:{SOUT + 3}], s{ST} offen offset:{32 * (j & 3)}")
    a.label("L_k2_exit")
    e("s_endpgm")
    return a.lines


def fix_hazards(lines):
    out = []
    for i, ln in enumerate(lines):
        out.append(ln)
        if " m0," in ln and i + 1 < len(lines) and lines[i + 1].rstrip().endswith("lds"):
            out.append("  s_nop 0")
    return out


def kd(name, nfv, accum):
    return f""".amdhsa_kernel {name}
  .amdhsa_next_free_vgpr {nfv}
  .amdhsa_next_free_sgpr 96
  .amdhsa_accum_offset {accum}
  .amdhsa_group_segment_fixed_size 0
  .amdhsa_kernarg_size 88
  .amdhsa_user_sgpr_count 2
  .amdhsa_user_sgpr_kernarg_segment_ptr 1
  .amdhsa_system_sgpr_workgroup_id_x 1
.end_amdhsa_kernel"""


def main(path):
    hdr = open(f"cdna_kernels/{NAME}.s.ref").read().split("; Override launch")[0]
    out = [hdr.rstrip("\n")]
    out.append(f"; @launch kernel=k1_kernel grid=(256,1,1) block=(256,1,1) lds={K1_LDS}")
    out.append(f"; @launch kernel=k2_kernel grid=(256,1,1) block=(256,1,1) lds={K2_LDS}")
    out.append('.amdgcn_target "amdgcn-amd-amdhsa--gfx950"')
    out.append(".text")
    out += fix_hazards(gen_k1())
    out += fix_hazards(gen_k2())
    out.append('.section .rodata,"a"')
    out.append(".p2align 6")
    out.append(kd("k1_kernel", 256 + 152, 256))
    out.append(".p2align 6")
    out.append(kd("k2_kernel", 256 + 208, 256))
    open(path, "w").write("\n".join(out) + "\n")


if __name__ == "__main__":
    main(sys.argv[1] if len(sys.argv) > 1 else f"cdna_kernels/{NAME}.s")
```

```python
import sys

NAME = "gated_mix__linear_attn_block__dense_activation_mish__prompt"

AF_OFF = 0
AF_BYTES = 16 * 144 * 8 * 1024
KVP_OFF = AF_BYTES
KVP_BYTES = 16 * 8 * 12 * 1024
KVF_OFF = KVP_OFF + KVP_BYTES
KVF_BYTES = 32 * 3 * 1024
G_OFF = KVF_OFF + KVF_BYTES
PART_OFF = G_OFF + 8192
OF_OFF = PART_OFF + 128 * 65536
FLG_OFF = OF_OFF + 16 * 32 * 8192
WS_USED = FLG_OFF + 144 * 256

DIAG = False
OPT = dict(k1a="", k1b="", k2a="", k2b="", st="", pf=1, n0=33, map=2, S=4, pbf=1, pj=2, pprio=0, cprio=0, rdend=26)
DIAG_OFF = 0x2000000
EPS_HEX = "0x358637bd"
L2E_HEX = "0x3fb8aa3b"


class Asm:
    def __init__(self):
        self.lines = []
        self.vm = []

    def e(self, s):
        for ln in s.split("\n"):
            self.lines.append("  " + ln.strip())

    def label(self, s):
        self.lines.append(s + ":")

    def vmem(self, s, tag):
        self.e(s)
        self.vm.append(tag)

    def mark(self, tag):
        self.vm.append("#" + tag)

    def vm_count(self, tags, drop=True):
        idx = -1
        for i, t in enumerate(self.vm):
            if t in tags:
                idx = i
        if idx < 0:
            return None
        n = sum(1 for t in self.vm[idx + 1:] if not t.startswith("#"))
        if drop:
            self.vm = self.vm[idx + 1:]
        assert n <= 63, n
        return n

    def wait(self, tags=(), lgkm=False):
        n = self.vm_count(tags) if tags else None
        parts = []
        if n is not None:
            parts.append(f"vmcnt({n})")
        if lgkm:
            parts.append("lgkmcnt(0)")
        if parts:
            self.e("s_waitcnt " + " ".join(parts))


def stamp(a, idx, sbase=80):
    if not DIAG:
        return
    a.e(f"s_memtime s[{sbase - 4}:{sbase - 3}]")
    a.e(f"s_memrealtime s[{sbase - 2}:{sbase - 1}]")
    a.e("s_waitcnt lgkmcnt(0)")
    a.e(f"s_mov_b32 s{sbase + 2 * idx}, s{sbase - 4}")
    a.e(f"s_mov_b32 s{sbase + 2 * idx + 1}, s{sbase - 2}")


def stamp_dump(a, kidx, n, swave, sptr_lo, sptr_hi, vtmp, sbase=80):
    if not DIAG:
        return
    e = a.e
    e(f"s_mov_b32 s{sbase - 4}, s{sptr_lo}")
    e(f"s_and_b32 s{sbase - 3}, s{sptr_hi}, 0xffff")
    e(f"s_mov_b32 s{sbase - 2}, 0x4000000")
    e(f"s_mov_b32 s{sbase - 1}, 0x20000")
    e(f"s_lshl_b32 s75, s2, 2")
    e(f"s_add_u32 s75, s75, s{swave}")
    e(f"s_lshl_b32 s75, s75, 7")
    e(f"s_add_u32 s75, s75, {DIAG_OFF + kidx * 0x100000}")
    e(f"v_mov_b32 v{vtmp}, 0")
    e("s_mov_b64 exec, 1")
    for i in range(2 * n):
        e(f"v_mov_b32 v{vtmp + 1}, s{sbase + i}")
        e(f"buffer_store_dword v{vtmp + 1}, v{vtmp}, s[{sbase - 4}:{sbase - 1}], s75 offen offset:{4 * i}")
        e("s_nop 1")
    e("s_mov_b64 exec, -1")


def vr(b, n=4):
    return f"v[{b}:{b + n - 1}]"


def ar(b, n=4):
    return f"a[{b}:{b + n - 1}]"


def interleave(a, mf, fillers, start=0, end=None):
    n = len(mf)
    if end is None:
        end = n
    nf = len(fillers)
    pos = [start + (j * (end - start)) // max(nf, 1) for j in range(nf)]
    j = 0
    for m in range(n):
        a.e(mf[m])
        while j < nf and pos[j] <= m:
            f = fillers[j]
            f()
            j += 1
    while j < nf:
        fillers[j]()
        j += 1


def srd(a, d, lo, hi, nbytes, bias=0):
    if bias:
        a.e(f"s_sub_u32 s{d}, s{lo}, {bias}")
        a.e(f"s_subb_u32 s{d + 1}, s{hi}, 0")
        a.e(f"s_and_b32 s{d + 1}, s{d + 1}, 0xffff")
    else:
        a.e(f"s_mov_b32 s{d}, s{lo}")
        a.e(f"s_and_b32 s{d + 1}, s{hi}, 0xffff")
    a.e(f"s_mov_b32 s{d + 2}, {nbytes + bias}")
    a.e(f"s_mov_b32 s{d + 3}, 0x20000")


K1_BSLOT = 13312
K1_AREA = 3328
K1_ABASE = 4 * K1_BSLOT
K1_LDS = K1_ABASE + 4 * 16384
ACC0 = 48


def acc(t, mt):
    return ACC0 + 16 * t + 4 * mt


V_LANE = 1
V_ARD = 2
V_QRD = 4
V_HRD = 8
V_ADMA = 9
V_BDMA = 13
V_L16 = 17
V_T = 18
S_X, S_Q, S_W1, S_WS, S_MISC = 4, 8, 12, 16, 20
S_WAVE, S_RB, S_P = 24, 25, 26
S_OFFA, S_OFFA2, S_OFFQ, S_OFFH = 27, 28, 29, 30
S_M0B, S_M0A = 31, 32
S_CNT = 33
S_QM = 34
S_PTR = 36
S_L2E = 58
S_T = 60
S_AFB = 72
S_GROW = 73
S_PO1, S_PO2 = 74, 3
S_PF1, S_PF2 = 96, 20


def bset(s, t):
    return 52 * s + 4 * t


ASET = {"X": 104, "Y": 120, "Z": 136}


def k1_body(a, typ):
    T = "A" if typ == 0 else "B"
    nq = 8 if typ == 0 else 4
    nh = 13 - nq
    Ph = 2 * nh
    HB = 256 * nq
    e = a.e
    vi, vG, t0, t1, t2, t3 = V_T, V_T + 1, V_T + 2, V_T + 3, V_T + 4, V_T + 5
    e(f"v_and_b32 v{vi}, 15, v{V_LANE}")
    e(f"v_lshrrev_b32 v{vG}, 4, v{V_LANE}")
    e(f"s_mul_i32 s{S_T + 2}, s{S_P}, 448")
    if typ:
        e(f"s_add_u32 s{S_T + 2}, s{S_T + 2}, 160")

    e(f"s_lshr_b32 s{S_T + 8}, s{S_WAVE}, 1")
    e(f"s_lshl_b32 s{S_T + 8}, s{S_T + 8}, 4")
    e(f"s_and_b32 s{S_T + 9}, s{S_WAVE}, 1")
    e(f"s_lshl_b32 s{S_T + 9}, s{S_T + 9}, 2")
    e(f"s_add_u32 s{S_T + 8}, s{S_T + 8}, s{S_T + 9}")

    def krow(dst, kp, tmp):
        e(f"v_lshrrev_b32 v{tmp}, 2, v{kp}")
        e(f"v_lshlrev_b32 v{tmp}, 3, v{tmp}")
        e(f"v_and_b32 v{dst}, 3, v{kp}")
        e(f"v_add3_u32 v{dst}, v{dst}, v{tmp}, s{S_T + 8}")

    e(f"v_lshrrev_b32 v{t0}, 3, v{V_LANE}")
    krow(t1, t0, t2)
    e(f"v_mul_u32_u24 v{t1}, 6144, v{t1}")
    e(f"v_lshrrev_b32 v{t2}, 1, v{t0}")
    e(f"v_and_b32 v{t2}, 3, v{t2}")
    e(f"v_lshlrev_b32 v{t2}, 1, v{t2}")
    e(f"v_and_b32 v{t3}, 7, v{V_LANE}")
    e(f"v_xor_b32 v{t3}, v{t3}, v{t2}")
    e(f"v_lshlrev_b32 v{t3}, 4, v{t3}")
    e(f"v_add_u32 v{t1}, v{t1}, v{t3}")
    e(f"s_lshl_b32 s{S_T + 9}, s{S_P}, 7")
    e(f"s_add_u32 s{S_T + 9}, s{S_T + 9}, {4096 + (2048 if typ == 0 else 0)}")
    e(f"v_add_u32 v{V_BDMA}, s{S_T + 9}, v{t1}")
    if typ == 0:
        e(f"v_add_u32 v{V_BDMA + 1}, {2048 - 1024}, v{V_BDMA}")
    hins = [(2, 0), (3, 64)] if typ == 0 else [(1, 0), (2, 64), (3, 128)]
    magic, sh = (205, 11) if Ph == 10 else (57, 10)
    for s_ in range(8 * Ph + 64):
        if s_ < 8 * Ph:
            assert (s_ * magic) >> sh == s_ // Ph
    for slot, s0 in hins:
        e(f"v_add_u32 v{t0}, {s0}, v{V_LANE}")
        e(f"v_mul_u32_u24 v{t1}, {magic}, v{t0}")
        e(f"v_lshrrev_b32 v{t1}, {sh}, v{t1}")
        e(f"v_mul_u32_u24 v{t2}, {Ph}, v{t1}")
        e(f"v_sub_u32 v{t0}, v{t0}, v{t2}")
        e(f"v_and_b32 v{t1}, 7, v{t1}")
        krow(t2, t1, t3)
        e(f"v_mul_u32_u24 v{t2}, 7168, v{t2}")
        e(f"v_lshlrev_b32 v{t0}, 4, v{t0}")
        e(f"v_add3_u32 v{t0}, v{t0}, v{t2}, s{S_T + 2}")
        e(f"v_add_u32 v{V_BDMA + slot}, {4096 - 1024 * slot}, v{t0}")
    e(f"s_lshl_b32 s{S_T + 9}, s{S_RB}, 8")
    e(f"s_lshl_b32 s{S_T + 10}, s{S_WAVE}, 6")
    e(f"s_add_u32 s{S_T + 9}, s{S_T + 9}, s{S_T + 10}")
    e(f"s_lshl_b32 s{S_T + 9}, s{S_T + 9}, 11")
    e(f"v_lshrrev_b32 v{t0}, 3, v{V_LANE}")
    e(f"v_lshrrev_b32 v{t1}, 1, v{t0}")
    e(f"v_and_b32 v{t2}, 7, v{V_LANE}")
    e(f"v_xor_b32 v{t2}, v{t2}, v{t1}")
    e(f"v_lshlrev_b32 v{t0}, 11, v{t0}")
    e(f"v_add_u32 v{t0}, s{S_T + 9}, v{t0}")
    for j in range(4):
        if j & 1:
            e(f"v_xor_b32 v{t3}, 4, v{t2}")
            e(f"v_lshlrev_b32 v{t3}, 4, v{t3}")
        else:
            e(f"v_lshlrev_b32 v{t3}, 4, v{t2}")
        e(f"v_add_u32 v{t3}, v{t3}, v{t0}")
        e(f"v_add_u32 v{V_ADMA + j}, {j * (16384 - 1024)}, v{t3}")
    e(f"s_mul_i32 s{S_M0B}, s{S_WAVE}, {K1_AREA}")
    e(f"s_lshl_b32 s{S_M0A}, s{S_WAVE}, 14")
    e(f"s_add_u32 s{S_M0A}, s{S_M0A}, {K1_ABASE}")
    e(f"s_mov_b32 s{S_OFFA}, 0")
    e(f"s_mov_b32 s{S_OFFA2}, 65536")
    e(f"s_mov_b32 s{S_OFFQ}, 0")
    e(f"s_mov_b32 s{S_OFFH}, 0")
    e(f"s_mov_b32 s{S_QM}, 0xffff")
    e(f"s_mov_b32 s{S_QM + 1}, 0")

    def dmaB(tt):
        slot = tt % 4
        tag = f"B{tt}"
        f = []
        srcs = [(S_Q, S_OFFQ), (S_Q, S_OFFQ) if typ == 0 else (S_W1, S_OFFH), (S_W1, S_OFFH)]
        f.append(lambda: e(f"s_add_u32 m0, s{S_M0B}, {slot * K1_BSLOT}"))
        for j in range(3):
            sr, so = srcs[j]
            f.append(lambda j=j, sr=sr, so=so: a.vmem(
                f"buffer_load_dwordx4 v{V_BDMA + j}, s[{sr}:{sr + 3}], s{so} offen offset:{1024 * j} {OPT['k1b']} lds", tag))

        def q():
            e(f"s_mov_b64 exec, s[{S_QM}:{S_QM + 1}]")
            a.vmem(f"buffer_load_dwordx4 v{V_BDMA + 3}, s[{S_W1}:{S_W1 + 3}], s{S_OFFH} offen offset:3072 {OPT['k1b']} lds", tag)
            e("s_mov_b64 exec, -1")
        f.append(q)
        f.append(lambda: e(f"s_add_u32 s{S_OFFQ}, s{S_OFFQ}, {32 * 6144}"))
        f.append(lambda: e(f"s_add_u32 s{S_OFFH}, s{S_OFFH}, {32 * 7168}"))
        return f

    def dmaA(aa):
        slot = aa % 2
        tag = f"A{aa}"
        f = []
        for half in range(2):
            so = S_OFFA if half == 0 else S_OFFA2
            f.append(lambda half=half: e(f"s_add_u32 m0, s{S_M0A}, {slot * 8192 + half * 4096}"))
            for j in range(4):
                f.append(lambda j=j, so=so: a.vmem(
                    f"buffer_load_dwordx4 v{V_ADMA + j}, s[{S_X}:{S_X + 3}], s{so} offen offset:{1024 * j} {OPT['k1a']} lds", tag))
        f.append(lambda: e(f"s_add_u32 s{S_OFFA}, s{S_OFFA}, 128"))
        f.append(lambda: e(f"s_add_u32 s{S_OFFA2}, s{S_OFFA2}, 128"))
        return f

    def run_seq(fl):
        for fn in fl:
            n0 = len(a.lines)
            fn()
            if " m0," in a.lines[-1] and len(a.lines) == n0 + 1:
                e("s_nop 0")

    e("s_waitcnt lgkmcnt(0)")
    srd(a, S_Q, S_PTR + 2, S_PTR + 3, 1024 * 3072 * 2, bias=4096)
    srd(a, S_W1, S_PTR + 8, S_PTR + 9, 1024 * 3584 * 2, bias=4096)
    srd(a, S_X, S_PTR + 0, S_PTR + 1, 2048 * 1024 * 2)
    stamp(a, 0)
    run_seq(dmaB(0))
    run_seq(dmaA(0))
    srd(a, S_T + 4, S_PTR + 10, S_PTR + 11, 7168)
    e(f"v_lshlrev_b32 v{t1}, 3, v{vG}")
    for j in range(nh):
        a.vmem(f"buffer_load_dwordx2 {vr(acc(nq + j, 3), 2)}, v{t1}, s[{S_T + 4}:{S_T + 7}], s{S_T + 2} offen offset:{32 * j}", "bias")
    run_seq(dmaB(1))
    run_seq(dmaB(2))
    run_seq(dmaA(1))
    run_seq(dmaB(3))
    srd(a, S_WS, S_PTR + 20, S_PTR + 21, WS_USED)

    e(f"v_lshrrev_b32 v{t0}, 3, v{vi}")
    e(f"v_lshlrev_b32 v{t0}, 6, v{t0}")
    e(f"v_and_b32 v{t1}, 7, v{vi}")
    e(f"v_lshlrev_b32 v{t1}, 3, v{t1}")
    e(f"v_add_u32 v{t0}, v{t0}, v{t1}")
    e(f"v_lshrrev_b32 v{t1}, 1, v{vi}")
    e(f"v_xor_b32 v{t1}, v{t1}, v{vG}")
    e(f"v_add_u32 v{t2}, v{t0}, v{t1}")
    e(f"v_lshlrev_b32 v{t2}, 4, v{t2}")
    e(f"v_add_u32 v{V_ARD}, s{S_M0A}, v{t2}")
    e(f"v_xor_b32 v{t1}, 4, v{t1}")
    e(f"v_add_u32 v{t2}, v{t0}, v{t1}")
    e(f"v_lshlrev_b32 v{t2}, 4, v{t2}")
    e(f"v_add_u32 v{V_ARD + 1}, s{S_M0A}, v{t2}")
    e(f"v_and_b32 v{t0}, 1, v{vG}")
    e(f"v_lshlrev_b32 v{t0}, 2, v{t0}")
    e(f"v_lshrrev_b32 v{t1}, 2, v{vi}")
    e(f"v_add_u32 v{t0}, v{t0}, v{t1}")
    e(f"v_lshrrev_b32 v{t1}, 1, v{vG}")
    e(f"v_mul_u32_u24 v{t1}, {2 * K1_AREA}, v{t1}")
    e(f"v_and_b32 v{t2}, 3, v{vi}")
    e(f"v_lshlrev_b32 v{t2}, 3, v{t2}")
    e(f"v_add_u32 v{t1}, v{t1}, v{t2}")
    e(f"v_mul_u32_u24 v{t3}, {16 * Ph}, v{t0}")
    e(f"v_add3_u32 v{V_HRD}, v{t1}, v{t3}, {0}")
    e(f"v_add_u32 v{V_HRD}, {HB}, v{V_HRD}")
    e(f"v_lshlrev_b32 v{t3}, 7, v{t0}")
    e(f"v_add_u32 v{t1}, v{t1}, v{t3}")
    e(f"v_lshrrev_b32 v{t2}, 1, v{t0}")
    e(f"v_and_b32 v{t2}, 3, v{t2}")
    for t in range(4):
        e(f"v_xor_b32 v{t3}, {t}, v{t2}")
        e(f"v_lshlrev_b32 v{t3}, 5, v{t3}")
        e(f"v_add_u32 v{V_QRD + t}, v{t1}, v{t3}")
    e(f"v_lshlrev_b32 v{V_L16}, 4, v{V_LANE}")

    gw, gx0, gx1 = V_T, V_T + 8, V_T + 16
    gt = V_T + 24
    e(f"v_lshlrev_b32 v{gt}, 5, v{V_LANE}")
    e(f"s_lshl_b32 s{S_GROW}, s2, 3")
    e(f"s_lshl_b32 s{S_T + 1}, s{S_WAVE}, 1")
    e(f"s_add_u32 s{S_GROW}, s{S_GROW}, s{S_T + 1}")
    e(f"s_lshl_b32 s{S_T + 1}, s{S_GROW}, 11")
    srd(a, S_MISC, S_PTR + 14, S_PTR + 15, 2048)
    a.vmem(f"buffer_load_dwordx4 {vr(gw)}, v{gt}, s[{S_MISC}:{S_MISC + 3}], 0 offen", "g")
    a.vmem(f"buffer_load_dwordx4 {vr(gw + 4)}, v{gt}, s[{S_MISC}:{S_MISC + 3}], 0 offen offset:16", "g")
    a.vmem(f"buffer_load_dwordx4 {vr(gx0)}, v{gt}, s[{S_X}:{S_X + 3}], s{S_T + 1} offen", "g")
    a.vmem(f"buffer_load_dwordx4 {vr(gx0 + 4)}, v{gt}, s[{S_X}:{S_X + 3}], s{S_T + 1} offen offset:16", "g")
    a.vmem(f"buffer_load_dwordx4 {vr(gx1)}, v{gt}, s[{S_X}:{S_X + 3}], s{S_T + 1} offen offset:2048", "g")
    a.vmem(f"buffer_load_dwordx4 {vr(gx1 + 4)}, v{gt}, s[{S_X}:{S_X + 3}], s{S_T + 1} offen offset:2064", "g")

    if OPT['pf']:
        srd(a, S_PF1, S_PTR + 12, S_PTR + 13, 3584 * 1024 * 2)
        srd(a, S_PF2, S_PTR + 4, S_PTR + 5, 1024 * 1024 * 2)
        e(f"v_min_u32 v{V_T + 26}, 7, v{V_LANE}")
        e(f"v_lshlrev_b32 v{V_T + 26}, 7, v{V_T + 26}")
        e(f"v_min_u32 v{V_T + 27}, 2, v{V_LANE}")
        e(f"v_lshlrev_b32 v{V_T + 27}, 7, v{V_T + 27}")
        e(f"s_lshl_b32 s{S_T}, s2, 2")
        e(f"s_add_u32 s{S_T}, s{S_T}, s{S_WAVE}")
        e(f"s_mul_i32 s{S_PO1}, s{S_T}, 7168")
        e(f"s_lshl_b32 s{S_PO2}, s{S_T}, 11")

    def pf_items():
        return [lambda: a.vmem(f"buffer_load_dword v{V_T + 28}, v{V_T + 26}, s[{S_PF1}:{S_PF1 + 3}], s{S_PO1} offen", "pf"),
                lambda: a.vmem(f"buffer_load_dword v{V_T + 29}, v{V_T + 27}, s[{S_PF2}:{S_PF2 + 3}], s{S_PO2} offen", "pf"),
                lambda: e(f"s_add_u32 s{S_PO1}, s{S_PO1}, 1024"),
                lambda: e(f"s_add_u32 s{S_PO2}, s{S_PO2}, 384")]

    def g_items():
        d0, d1 = V_T + 24, V_T + 25
        L = []
        L.append(f"v_dot2_f32_bf16 v{d0}, v{gx0}, v{gw}, 0")
        L.append(f"v_dot2_f32_bf16 v{d1}, v{gx1}, v{gw}, 0")
        for j in range(1, 8):
            L.append(f"v_dot2_f32_bf16 v{d0}, v{gx0 + j}, v{gw + j}, v{d0}")
            L.append(f"v_dot2_f32_bf16 v{d1}, v{gx1 + j}, v{gw + j}, v{d1}")
        L.append("s_nop 3")
        for sh_ in (1, 2, 4, 8):
            L.append(f"s_nop 0\nv_add_f32_dpp v{d0}, v{d0}, v{d0} row_shr:{sh_} row_mask:0xf bank_mask:0xf bound_ctrl:0")
            L.append(f"s_nop 0\nv_add_f32_dpp v{d1}, v{d1}, v{d1} row_shr:{sh_} row_mask:0xf bank_mask:0xf bound_ctrl:0")
        L.append(f"s_nop 0\nv_add_f32_dpp v{d0}, v{d0}, v{d0} row_bcast:15 row_mask:0xa bank_mask:0xf")
        L.append(f"s_nop 0\nv_add_f32_dpp v{d1}, v{d1}, v{d1} row_bcast:15 row_mask:0xa bank_mask:0xf")
        L.append(f"s_nop 0\nv_add_f32_dpp v{d0}, v{d0}, v{d0} row_bcast:31 row_mask:0xc bank_mask:0xf")
        L.append(f"s_nop 0\nv_add_f32_dpp v{d1}, v{d1}, v{d1} row_bcast:31 row_mask:0xc bank_mask:0xf")
        L.append(f"v_mul_f32 v{d0}, 0xbfb8aa3b, v{d0}")
        L.append(f"v_mul_f32 v{d1}, 0xbfb8aa3b, v{d1}")
        L.append(f"v_exp_f32 v{d0}, v{d0}")
        L.append(f"v_exp_f32 v{d1}, v{d1}\ns_nop 0")
        L.append(f"v_add_f32 v{d0}, 1.0, v{d0}")
        L.append(f"v_add_f32 v{d1}, 1.0, v{d1}")
        L.append(f"v_rcp_f32 v{d0}, v{d0}")
        L.append(f"v_rcp_f32 v{d1}, v{d1}")
        L.append(f"v_mov_b32 v{gw}, 0")
        L.append(f"s_lshl_b32 s{S_T + 1}, s{S_GROW}, 2\ns_add_u32 s{S_T + 1}, s{S_T + 1}, {G_OFF}")
        L.append(f"s_lshl_b32 s{S_T + 3}, s2, 8\ns_add_u32 s{S_T + 3}, s{S_T + 3}, {FLG_OFF}")
        L.append(f"s_mov_b32 s{S_T + 8}, 0\ns_mov_b32 s{S_T + 9}, 0x80000000")
        F = [(lambda x=x: e(x)) for x in L]

        def st():
            e(f"s_mov_b64 exec, s[{S_T + 8}:{S_T + 9}]")
            a.vmem(f"buffer_store_dwordx2 v[{d0}:{d1}], v{gw}, s[{S_WS}:{S_WS + 3}], s{S_T + 1} offen", "gst")
            a.vmem(f"buffer_store_dword v{gw}, v{gw}, s[{S_WS}:{S_WS + 3}], s{S_T + 3} offen", "gst")
            e("s_mov_b64 exec, -1")
        F.append(st)
        return F

    a.wait(["bias"])
    for j in range(nh):
        src = acc(nq + j, 3)
        d = acc(nq + j, 0)
        e(f"v_lshlrev_b32 v{d}, 16, v{src}")
        e(f"v_and_b32 v{d + 1}, 0xffff0000, v{src}")
        e(f"v_lshlrev_b32 v{d + 2}, 16, v{src + 1}")
        e(f"v_and_b32 v{d + 3}, 0xffff0000, v{src + 1}")
    for t in range(4):
        for r in range(4):
            e(f"v_mov_b32 v{acc(t, 0) + r}, {EPS_HEX}")

    def rdB(tt):
        slot = tt % 4
        s = tt % 2
        f = []
        for t in range(13):
            for ins in range(2):
                if t < nq:
                    addr = V_QRD + (t & 3)
                    off = slot * K1_BSLOT + ins * K1_AREA + 1024 * (t >> 2)
                else:
                    addr = V_HRD
                    off = slot * K1_BSLOT + ins * K1_AREA + 32 * (t - nq)
                d = bset(s, t) + 2 * ins
                f.append(lambda d=d, addr=addr, off=off: e(f"ds_read_b64_tr_b16 {ar(d, 2)}, v{addr} offset:{off}"))
        return f

    def aset_of(tt):
        if tt % 2 == 0:
            return ASET["X"]
        return ASET["Y"] if tt % 4 == 1 else ASET["Z"]

    def rdA(aa):
        slot = aa % 2
        f = []
        for hh in range(2):
            base = aset_of(2 * aa + hh)
            for mt in range(4):
                f.append(lambda hh=hh, mt=mt, base=base: e(
                    f"ds_read_b128 {ar(base + 4 * mt)}, v{V_ARD + hh} offset:{slot * 8192 + mt * 2048}"))
        return f

    stamp(a, 1)
    a.wait(["B0", "A0"])
    e("s_barrier")
    stamp(a, 2)
    for fn in rdA(0) + rdB(0):
        fn()
    a.wait(["B1"], lgkm=True)
    e("s_barrier")

    NSTEP = 32

    def step(tt):
        s = tt % 2
        ab = aset_of(tt)
        mf = []
        for t in range(13):
            order = [1, 2, 3, 0] if tt == 0 else [0, 1, 2, 3]
            for mt in order:
                D = vr(acc(t, mt))
                if tt == 0:
                    C = "0" if (typ == 0 and 4 <= t < 8) else vr(acc(t, 0))
                else:
                    C = D
                W = ar(bset(s, t))
                X = ar(ab + 4 * mt)
                if typ == 0 and t < 8:
                    mf.append(f"v_mfma_f32_16x16x32_bf16 {D}, {X}, {W}, {C}")
                else:
                    mf.append(f"v_mfma_f32_16x16x32_bf16 {D}, {W}, {X}, {C}")
        rd = []
        if tt + 1 < NSTEP:
            rd = rdB(tt + 1)
            if tt % 2 == 1:
                rd = rdA((tt + 1) // 2) + rd
        dm = []
        if tt + 4 < NSTEP:
            dm += dmaB(tt + 4)
        if tt % 2 == 0 and tt // 2 + 2 < NSTEP // 2:
            dm += dmaA(tt // 2 + 2)
        if OPT['pf'] and tt % 4 == 1 and tt < 28:
            dm += pf_items()
        fl = []
        i1 = i2 = 0
        n1, n2 = len(rd), len(dm)
        while i1 < n1 or i2 < n2:
            if i2 < n2 and (i1 >= n1 or i2 * n1 <= i1 * n2):
                fl.append(dm[i2]); i2 += 1
            else:
                fl.append(rd[i1]); i1 += 1
        if tt == NSTEP - 1:
            assert "g" not in a.vm
            fl = g_items()
        interleave(a, mf, fl, 0, 48)
        if tt + 1 < NSTEP:
            tags = []
            if tt + 2 < NSTEP:
                tags.append(f"B{tt + 2}")
            if tt % 2 == 0:
                tags.append(f"A{tt // 2 + 1}")
            a.wait(tags, lgkm=True)
            if tt + 2 < NSTEP:
                e("s_barrier")

    iters = []
    for it in range(8):
        n0 = len(a.lines)
        for tt in range(4 * it, 4 * it + 4):
            step(tt)
        iters.append(a.lines[n0:])
        del a.lines[n0:]
    for it in range(2, 7):
        assert iters[it] == iters[1], f"iteration {it} differs"
    stamp(a, 3)
    a.lines += iters[0]
    stamp(a, 4)
    e(f"s_mov_b32 s{S_CNT}, 6")
    a.label(f"L_k1{T}_loop")
    a.lines += iters[1]
    e(f"s_sub_u32 s{S_CNT}, s{S_CNT}, 1")
    e(f"s_cmp_lg_u32 s{S_CNT}, 0")
    e(f"s_cbranch_scc1 L_k1{T}_loop")
    a.lines += iters[7]
    assert all(not t.startswith(("A", "B")) for t in a.vm), a.vm

    stamp(a, 5)

    def fin():
        stamp(a, 6)
        if DIAG:
            e("s_waitcnt vmcnt(0)")
        stamp(a, 7)
        stamp_dump(a, 0, 8, S_WAVE, S_PTR + 20, S_PTR + 21, V_T)
        e("s_endpgm")
    e(f"s_mov_b32 s{S_L2E}, {L2E_HEX}")
    e(f"s_mov_b32 s{S_L2E + 1}, {L2E_HEX}")
    e(f"s_lshl_b32 s{S_T}, s{S_RB}, 1")
    e(f"s_lshr_b32 s{S_T + 1}, s{S_WAVE}, 1")
    e(f"s_add_u32 s{S_T}, s{S_T}, s{S_T + 1}")
    e(f"s_mul_i32 s{S_AFB}, s{S_T}, {144 * 8192}")
    e(f"s_and_b32 s{S_T + 1}, s{S_WAVE}, 1")
    e(f"s_lshl_b32 s{S_T + 1}, s{S_T + 1}, 12")
    e(f"s_add_u32 s{S_AFB}, s{S_AFB}, s{S_T + 1}")
    e("s_nop 7")
    TT, UU = V_T, V_T + 8

    def phi_group(ra, rb_):
        prs = [ra, ra + 2, rb_, rb_ + 2]
        for j, p in enumerate(prs):
            e(f"v_pk_mul_f32 {vr(TT + 2 * j, 2)}, {vr(p, 2)}, s[{S_L2E}:{S_L2E + 1}]")
        for j in range(8):
            e(f"v_exp_f32_e64 v{TT + j}, v{TT + j} clamp")
        for p in prs:
            e(f"v_max_f32 v{p}, {EPS_HEX}, v{p}")
            e(f"v_max_f32 v{p + 1}, {EPS_HEX}, v{p + 1}")
        for j, p in enumerate(prs):
            e(f"v_pk_add_f32 {vr(p, 2)}, {vr(p, 2)}, {vr(TT + 2 * j, 2)}")
        for j, p in enumerate(prs):
            e(f"v_cvt_pk_bf16_f32 v{ra + j}, v{p}, v{p + 1}")

    def cvt_group(ra, rb_):
        prs = [ra, ra + 2, rb_, rb_ + 2]
        for j, p in enumerate(prs):
            e(f"v_cvt_pk_bf16_f32 v{ra + j}, v{p}, v{p + 1}")

    def mish_group(ra, rb_, split=False):
        prs = [ra, ra + 2, rb_, rb_ + 2]
        for j, p in enumerate(prs):
            e(f"v_pk_mul_f32 {vr(TT + 2 * j, 2)}, {vr(p, 2)}, s[{S_L2E}:{S_L2E + 1}]")
        for j in range(8):
            e(f"v_exp_f32 v{TT + j}, v{TT + j}")
        for j in range(4):
            e(f"v_pk_fma_f32 {vr(UU + 2 * j, 2)}, {vr(TT + 2 * j, 2)}, 0.5, 1.0 op_sel_hi:[1,0,0]")
        for j in range(4):
            e(f"v_pk_fma_f32 {vr(UU + 2 * j, 2)}, {vr(TT + 2 * j, 2)}, {vr(UU + 2 * j, 2)}, 1.0 op_sel_hi:[1,1,0]")
        for j in range(8):
            e(f"v_rcp_f32 v{UU + j}, v{UU + j}")
        for j, p in enumerate(prs):
            e(f"v_pk_fma_f32 {vr(p, 2)}, {vr(UU + 2 * j, 2)}, {vr(p, 2)}, {vr(p, 2)} neg_lo:[1,0,0] neg_hi:[1,0,0]")
        if split:
            e(f"v_cvt_pk_bf16_f32 v{ra}, v{ra}, v{ra + 1}")
            e(f"v_cvt_pk_bf16_f32 v{ra + 1}, v{ra + 2}, v{ra + 3}")
            e(f"v_cvt_pk_bf16_f32 v{rb_}, v{rb_}, v{rb_ + 1}")
            e(f"v_cvt_pk_bf16_f32 v{rb_ + 1}, v{rb_ + 2}, v{rb_ + 3}")
        else:
            for j, p in enumerate(prs):
                e(f"v_cvt_pk_bf16_f32 v{ra + j}, v{p}, v{p + 1}")

    WS = f"s[{S_WS}:{S_WS + 3}]"

    def set_kb(sreg, mul, add):
        e(f"s_mul_i32 s{sreg}, s{S_P}, {mul * 8192}")
        e(f"s_add_u32 s{sreg}, s{sreg}, {add * 8192}")
        e(f"s_add_u32 s{sreg}, s{sreg}, s{S_AFB}")

    def h_full(tA, kbl):
        set_kb(S_T + 2, 7, kbl)
        for mt in range(4):
            mish_group(acc(tA, mt), acc(tA + 1, mt))
            a.vmem(f"buffer_store_dwordx4 {vr(acc(tA, mt))}, v{V_L16}, {WS}, s{S_T + 2} offen offset:{1024 * mt} {OPT['st']}", "st")

    def h_half(tA, kbl, half):
        set_kb(S_T + 2, 7, kbl)
        for mp in range(2):
            mish_group(acc(tA, 2 * mp), acc(tA, 2 * mp + 1), split=True)
            for mt in (2 * mp, 2 * mp + 1):
                a.vmem(f"buffer_store_dwordx2 {vr(acc(tA, mt), 2)}, v{V_L16}, {WS}, s{S_T + 2} offen offset:{1024 * mt + 8 * half} {OPT['st']}", "st")

    if typ == 1:
        for hd in range(2):
            set_kb(S_T + 2, 2, 112 + hd)
            for mt in range(4):
                phi_group(acc(2 * hd, mt), acc(2 * hd + 1, mt))
                a.vmem(f"buffer_store_dwordx4 {vr(acc(2 * hd, mt))}, v{V_L16}, {WS}, s{S_T + 2} offen offset:{1024 * mt} {OPT['st']}", "st")
        h_half(4, 2, 1)
        for j in range(4):
            h_full(5 + 2 * j, 3 + j)
        fin()
        return

    ONES = V_T + 16
    for r in range(4):
        e(f"v_mov_b32 v{ONES + r}, 0x3f803f80")
    for t in range(4):
        for pr in range(2):
            phi_group(acc(t, 2 * pr), acc(t, 2 * pr + 1))
    for t in range(4, 8):
        for pr in range(2):
            cvt_group(acc(t, 2 * pr), acc(t, 2 * pr + 1))
    e("s_nop 1")
    free = [acc(t, m) for t in range(8) for m in (1, 3)]

    def Dt(tau):
        return free[tau]
    for pr in range(2):
        for hd in range(2):
            for dt in range(2):
                for et in range(3):
                    tau = hd * 6 + dt * 3 + et
                    Aop = vr(acc(2 * hd + dt, 2 * pr))
                    Bop = vr(acc(4 + 2 * hd + et, 2 * pr)) if et < 2 else vr(ONES)
                    C = "0" if pr == 0 else vr(Dt(tau))
                    e(f"v_mfma_f32_16x16x32_bf16 {vr(Dt(tau))}, {Aop}, {Bop}, {C}")
    vw, vrd = V_T + 20, V_T + 21
    e(f"v_add_u32 v{vw}, s{S_M0A}, v{V_L16}")
    e(f"s_mul_i32 s{S_T}, s{S_WAVE}, 3072")
    e(f"s_add_u32 s{S_T}, s{S_T}, {K1_ABASE}")
    e(f"v_add_u32 v{vrd}, s{S_T}, v{V_L16}")
    e("s_nop 7")
    for tau in range(12):
        e(f"ds_write_b128 v{vw}, {vr(Dt(tau))} offset:{1024 * tau}")
    h_full(8, 0)
    e("s_waitcnt lgkmcnt(0)")
    e("s_barrier")
    R = [acc(t, m) for t in range(8) for m in (0, 2)]
    for w2 in range(4):
        for j in range(3):
            e(f"ds_read_b128 {vr(R[3 * w2 + j])}, v{vrd} offset:{16384 * w2 + 1024 * j}")
    h_full(10, 1)
    e(f"s_lshl_b32 s{S_T}, s{S_P}, 3")
    e(f"s_add_u32 s{S_T}, s{S_T}, s{S_RB}")
    e(f"s_mul_i32 s{S_T}, s{S_T}, 12288")
    e(f"s_mul_i32 s{S_T + 1}, s{S_WAVE}, 3072")
    e(f"s_add_u32 s{S_T}, s{S_T}, s{S_T + 1}")
    e(f"s_add_u32 s{S_T}, s{S_T}, {KVP_OFF}")
    e("s_waitcnt lgkmcnt(0)")
    for j in range(3):
        for h2 in range(2):
            b0 = R[j] + 2 * h2
            e(f"v_pk_add_f32 {vr(b0, 2)}, {vr(b0, 2)}, {vr(R[3 + j] + 2 * h2, 2)}")
            e(f"v_pk_add_f32 {vr(R[6 + j] + 2 * h2, 2)}, {vr(R[6 + j] + 2 * h2, 2)}, {vr(R[9 + j] + 2 * h2, 2)}")
        for h2 in range(2):
            b0 = R[j] + 2 * h2
            e(f"v_pk_add_f32 {vr(b0, 2)}, {vr(b0, 2)}, {vr(R[6 + j] + 2 * h2, 2)}")
        a.vmem(f"buffer_store_dwordx4 {vr(R[j])}, v{V_L16}, {WS}, s{S_T} offen offset:{1024 * j}", "kvp")
    h_half(12, 2, 0)
    fin()


def gen_k1():
    a = Asm()
    e = a.e
    a.lines.append(".globl k1_kernel\n.p2align 8\n.type k1_kernel,@function\nk1_kernel:")
    e("s_cmp_ge_u32 s2, 256")
    e("s_cbranch_scc1 L_k1_exit")
    e(f"s_load_dwordx16 s[{S_PTR}:{S_PTR + 15}], s[0:1], 0")
    e(f"s_load_dwordx4 s[{S_PTR + 16}:{S_PTR + 19}], s[0:1], 64")
    e(f"s_load_dwordx2 s[{S_PTR + 20}:{S_PTR + 21}], s[0:1], 80")
    e(f"v_and_b32 v{V_LANE}, 63, v0")
    e(f"v_lshrrev_b32 v{V_T}, 6, v0")
    e(f"s_and_b32 s{S_T}, s2, 7")
    e(f"v_readfirstlane_b32 s{S_WAVE}, v{V_T}")
    e(f"s_lshr_b32 s{S_T + 1}, s2, 3")
    e(f"s_and_b32 s{S_RB}, s{S_T}, 1")
    e(f"s_lshl_b32 s{S_RB}, s{S_RB}, 2")
    e(f"s_and_b32 s{S_T + 2}, s{S_T + 1}, 3")
    e(f"s_add_u32 s{S_RB}, s{S_RB}, s{S_T + 2}")
    e(f"s_lshr_b32 s{S_T}, s{S_T}, 1")
    e(f"s_lshl_b32 s{S_T}, s{S_T}, 3")
    e(f"s_lshr_b32 s{S_T + 1}, s{S_T + 1}, 2")
    e(f"s_add_u32 s{S_T}, s{S_T}, s{S_T + 1}")
    e(f"s_lshr_b32 s{S_P}, s{S_T}, 1")
    e(f"s_and_b32 s{S_T + 3}, s{S_T}, 1")
    e(f"s_cmp_lg_u32 s{S_T + 3}, 0")
    e("s_cbranch_scc1 L_k1_typeB")
    k1_body(a, 0)
    a.label("L_k1_typeB")
    a.vm = []
    k1_body(a, 1)
    a.label("L_k1_exit")
    e("s_endpgm")
    return a.lines


def K2_LDS():
    return OPT['S'] * 32768 + 24576


def fold_loops(a, iters, period, scnt, name):
    n = len(iters)
    i = 0
    lab = 0
    while i < n:
        reps = 1
        while i + (reps + 1) * period <= n and all(
                iters[i + k] == iters[i + reps * period + k] for k in range(period)):
            reps += 1
        if reps >= 2:
            a.e(f"s_mov_b32 s{scnt}, {reps}")
            a.label(f"L_{name}_{lab}")
            for k in range(period):
                a.lines += iters[i + k]
            a.e(f"s_sub_u32 s{scnt}, s{scnt}, 1")
            a.e(f"s_cmp_lg_u32 s{scnt}, 0")
            a.e(f"s_cbranch_scc1 L_{name}_{lab}")
            lab += 1
            i += reps * period
        else:
            a.lines += iters[i]
            i += 1


def schedule(a, mf, streams):
    n = len(mf)
    placed = []
    for si, (items, start, end) in enumerate(streams):
        m = len(items)
        prev = 0
        for j, it in enumerate(items):
            fn, early = it if isinstance(it, tuple) else (it, 0)
            pos = start + (j * (end - start)) / max(m, 1)
            pos = max(pos, early, prev)
            prev = pos
            placed.append((pos, si, j, fn))
    placed.sort(key=lambda x: (x[0], x[1], x[2]))
    k = 0
    if n == 0:
        for p in placed:
            p[3]()
        return
    for i in range(n):
        a.e(mf[i])
        while k < len(placed) and placed[k][0] < i + 1:
            placed[k][3]()
            k += 1
    while k < len(placed):
        placed[k][3]()
        k += 1


def gen_k2():
    a = Asm()
    e = a.e
    S = OPT['S']
    n0 = OPT['n0']
    SLOT = 32768
    PBF = OPT['pbf']
    SW2, SWO, SWS, SOUT, SDBG = 4, 8, 12, 16, 20
    SWAVE, SMT, SNT, STILE, SROLE = 24, 25, 26, 27, 28
    SOA, SOB, SOKV, SOP, SM0A, SM0B, SCNT, SRED, SW8 = 29, 30, 31, 32, 33, 34, 35, 58, 59
    SP = 36
    ST = 60
    NBASE = (S + 1) // 2
    VL = 1
    VL16 = 2
    VT = 4
    VG = 14
    VOMG = 18
    VAR = 22
    VBR = 25
    AC = 64
    VBD = 22
    VAD = 26
    VAW = 27
    VFL = 30
    VEPS = 32
    VR = 36
    VOF = 40
    VD = 64
    VP = 64

    def acc2(mt, nt):
        return AC + 16 * mt + 4 * nt

    def FA(j, b, mt):
        return 64 * (j % 2) + 32 * b + 4 * mt

    def FB(j, b, nt):
        return 64 * (j % 2) + 32 * b + 16 + 4 * nt

    def PQ(j, i):
        return 28 * (j % 4) + 4 * i

    def KV(j, i):
        return 28 * (j % 4) + 16 + 4 * i

    a.lines.append(".globl k2_kernel\n.p2align 8\n.type k2_kernel,@function\nk2_kernel:")
    e("s_cmp_ge_u32 s2, 256")
    e("s_cbranch_scc1 L_k2_exit")
    e(f"s_load_dwordx16 s[{SP}:{SP + 15}], s[0:1], 0")
    e(f"s_load_dwordx4 s[{SP + 16}:{SP + 19}], s[0:1], 64")
    e(f"s_load_dwordx2 s[{SP + 20}:{SP + 21}], s[0:1], 80")
    e(f"v_and_b32 v{VL}, 63, v0")
    e(f"v_lshrrev_b32 v{VT}, 6, v0")
    e(f"s_and_b32 s{ST}, s2, 7")
    e(f"v_readfirstlane_b32 s{SW8}, v{VT}")
    e(f"s_lshr_b32 s{ST + 1}, s2, 3")
    if OPT['map'] == 0:
        e(f"s_and_b32 s{SROLE}, s{ST}, 1")
        e(f"s_lshr_b32 s{ST}, s{ST}, 1")
        e(f"s_and_b32 s{SMT}, s{ST}, 1")
        e(f"s_lshl_b32 s{SMT}, s{SMT}, 3")
        e(f"s_and_b32 s{ST + 2}, s{ST + 1}, 7")
        e(f"s_add_u32 s{SMT}, s{SMT}, s{ST + 2}")
        e(f"s_lshr_b32 s{SNT}, s{ST}, 1")
        e(f"s_lshl_b32 s{SNT}, s{SNT}, 2")
        e(f"s_lshr_b32 s{ST + 1}, s{ST + 1}, 3")
        e(f"s_add_u32 s{SNT}, s{SNT}, s{ST + 1}")
    elif OPT['map'] == 2:
        e(f"s_and_b32 s{SROLE}, s{ST}, 1")
        e(f"s_lshr_b32 s{ST}, s{ST}, 1")
        e(f"s_lshl_b32 s{SMT}, s{ST}, 2")
        e(f"s_and_b32 s{ST + 2}, s{ST + 1}, 3")
        e(f"s_add_u32 s{SMT}, s{SMT}, s{ST + 2}")
        e(f"s_lshr_b32 s{SNT}, s{ST + 1}, 2")
    elif OPT['map'] == 3:
        e(f"s_and_b32 s{SROLE}, s{ST}, 1")
        e(f"s_lshr_b32 s{ST}, s{ST}, 1")
        e(f"s_and_b32 s{SMT}, s{ST + 1}, 15")
        e(f"s_lshl_b32 s{SNT}, s{ST}, 1")
        e(f"s_lshr_b32 s{ST + 1}, s{ST + 1}, 4")
        e(f"s_add_u32 s{SNT}, s{SNT}, s{ST + 1}")
    else:
        e(f"s_and_b32 s{SROLE}, s{ST + 1}, 1")
        e(f"s_lshr_b32 s{ST + 1}, s{ST + 1}, 1")
        e(f"s_and_b32 s{SMT}, s{ST}, 3")
        e(f"s_lshl_b32 s{SMT}, s{SMT}, 2")
        e(f"s_and_b32 s{ST + 2}, s{ST + 1}, 3")
        e(f"s_add_u32 s{SMT}, s{SMT}, s{ST + 2}")
        e(f"s_lshr_b32 s{SNT}, s{ST}, 2")
        e(f"s_lshl_b32 s{SNT}, s{SNT}, 2")
        e(f"s_lshr_b32 s{ST + 1}, s{ST + 1}, 2")
        e(f"s_add_u32 s{SNT}, s{SNT}, s{ST + 1}")
    e(f"s_and_b32 s{SWAVE}, s{SW8}, 3")
    e(f"s_lshl_b32 s{STILE}, s{SMT}, 3")
    e(f"s_add_u32 s{STILE}, s{STILE}, s{SNT}")
    vi, vG, t0, t1, t2, t3 = VT, VT + 1, VT + 2, VT + 3, VT + 4, VT + 5
    e(f"v_and_b32 v{vi}, 15, v{VL}")
    e(f"v_lshrrev_b32 v{vG}, 4, v{VL}")
    e(f"v_lshlrev_b32 v{VL16}, 4, v{VL}")
    WS = f"s[{SWS}:{SWS + 3}]"
    DBG = f"s[{SDBG}:{SDBG + 3}]"
    PSZ = 8192 if PBF else 16384
    e(f"s_cmp_lt_u32 s{SW8}, 4")
    e(f"s_cbranch_scc1 L_k2_cons")

    def load_g():
        e(f"v_lshlrev_b32 v{t0}, 2, v{vi}")
        e(f"s_lshl_b32 s{ST}, s{SMT}, 9")
        e(f"s_and_b32 s{ST + 1}, s{SWAVE}, 1")
        e(f"s_lshl_b32 s{ST + 1}, s{ST + 1}, 8")
        e(f"s_add_u32 s{ST}, s{ST}, s{ST + 1}")
        e(f"s_add_u32 s{ST}, s{ST}, {G_OFF}")
        for i in range(4):
            a.vmem(f"buffer_load_dword v{VG + i}, v{t0}, {WS}, s{ST} offen offset:{64 * i}", "g")

    def run_seq(fl):
        for fn in fl:
            n_ = len(a.lines)
            fn()
            if " m0," in a.lines[-1] and len(a.lines) == n_ + 1:
                e("s_nop 0")

    import math
    PERIOD = S * 4 // math.gcd(S, 4)

    if OPT['pprio']:
        e(f"s_setprio {OPT['pprio']}")
    e(f"s_lshl_b32 s{SM0A}, s{SWAVE}, 12")
    e(f"s_add_u32 s{SM0B}, s{SM0A}, 16384")
    e(f"v_add_u32 v{VAD}, s{SM0A}, v{VL16}")
    e(f"s_lshl_b32 s{ST + 2}, s{SNT}, 8")
    e(f"s_lshl_b32 s{ST + 3}, s{SWAVE}, 15")
    e(f"s_add_u32 s{ST + 2}, s{ST + 2}, s{ST + 3}")
    e(f"v_lshlrev_b32 v{t0}, 11, v{vG}")
    e(f"v_add_u32 v{t0}, s{ST + 2}, v{t0}")
    e(f"v_lshlrev_b32 v{t1}, 1, v{vG}")
    e(f"v_xor_b32 v{t1}, v{t1}, v{vi}")
    for j in range(4):
        if j & 1:
            e(f"v_xor_b32 v{t2}, 8, v{t1}")
            e(f"v_lshlrev_b32 v{t2}, 4, v{t2}")
        else:
            e(f"v_lshlrev_b32 v{t2}, 4, v{t1}")
        e(f"v_add_u32 v{t2}, v{t2}, v{t0}")
        e(f"v_add_u32 v{VBD + j}, {j * (8192 - 1024)}, v{t2}")
    e(f"s_mul_i32 s{SOA}, s{SMT}, {144 * 8192}")
    e(f"s_add_u32 s{SOP}, s{SOA}, {112 * 8192}")
    e(f"s_mov_b32 s{SOB}, 0")
    e("s_waitcnt lgkmcnt(0)")
    srd(a, SW2, SP + 12, SP + 13, 3584 * 1024 * 2)
    srd(a, SWS, SP + 20, SP + 21, WS_USED)
    srd(a, SWO, SP + 4, SP + 5, 1024 * 1024 * 2)
    srd(a, SDBG, SP + 18, SP + 19, 256)
    e(f"s_cmp_eq_u32 s{SROLE}, 0")
    e(f"s_cbranch_scc1 L_k2_prod0")

    def producer(role):
        R = f"p{role}"
        nact = n0 if role == 0 else 56 - n0
        N = nact if role == 0 else nact + 16
        SCR = S * SLOT
        if role == 1:
            e(f"s_add_u32 s{SOA}, s{SOA}, {n0 * 16384}")
            e(f"s_mov_b32 s{SOB}, {n0 * 131072}")

        def dmaA(j):
            f = []
            if j == nact:
                def sw():
                    e(f"s_lshl_b32 s{SOA}, s{SMT}, 18")
                    e(f"s_add_u32 s{SOA}, s{SOA}, {OF_OFF}")
                f.append(sw)
            fl = OPT['k2a'] if j < nact else "sc1"
            f.append(lambda: e(f"s_add_u32 m0, s{SM0A}, {(j % S) * SLOT}"))
            for i in range(4):
                f.append(lambda i=i: a.vmem(
                    f"buffer_load_dwordx4 v{VAD}, {WS}, s{SOA} offen offset:{1024 * i} {fl} lds", f"D{j}"))
            f.append(lambda: e(f"s_add_u32 s{SOA}, s{SOA}, 16384"))
            return f

        def dmaB(j):
            sr = SW2 if j < nact else SWO
            f = []
            if j == nact:
                f.append(lambda: e(f"s_mov_b32 s{SOB}, 0"))
            f.append(lambda: e(f"s_add_u32 m0, s{SM0B}, {(j % S) * SLOT}"))
            for i in range(4):
                f.append(lambda i=i: a.vmem(
                    f"buffer_load_dwordx4 v{VBD + i}, s[{sr}:{sr + 3}], s{SOB} offen offset:{1024 * i} {OPT['k2b']} lds", f"D{j}"))
            f.append(lambda: e(f"s_add_u32 s{SOB}, s{SOB}, 131072"))
            return f

        def dma_stage(j):
            return dmaA(j) + dmaB(j)

        for j in range(S - 1):
            run_seq(dma_stage(j))
        a.wait(["D0"])
        e("s_barrier")

        JP = N - OPT['pj']
        assert JP - (1 if PBF else 2) + S >= N and OPT['pj'] >= 1
        JO = nact - (S - 1)

        def interval(j):
            lg = False
            if role == 1 and j == JO - 3:
                e(f"s_lshl_b32 s{ST}, s{SMT}, 8")
                e(f"s_add_u32 s{ST}, s{ST}, {FLG_OFF}")
                e(f"v_mov_b32 v{VFL + 1}, s{ST}")
                a.vmem(f"buffer_load_dword v{VFL}, v{VFL + 1}, {WS}, 0 offen sc1", "F")
            if role == 1 and j == JO:
                a.wait(["F"])
                a.label("L_k2_kvwait")
                e(f"v_readfirstlane_b32 s{ST}, v{VFL}")
                e("s_nop 3")
                e(f"s_cmp_ge_u32 s{ST}, 64")
                e("s_cbranch_scc1 L_k2_kvok")
                e("s_sleep 8")
                e(f"buffer_load_dword v{VFL}, v{VFL + 1}, {WS}, 0 offen sc1")
                e("s_waitcnt vmcnt(0)")
                e("s_branch L_k2_kvwait")
                a.label("L_k2_kvok")
            if j + S - 1 < N:
                run_seq(dma_stage(j + S - 1))
            if role == 1 and j == JP:
                e(f"s_lshl_b32 s{ST}, s{STILE}, 8")
                e(f"s_add_u32 s{ST}, s{ST}, {FLG_OFF + 4096}")
                e(f"v_mov_b32 v{VFL + 1}, s{ST}")
                a.label("L_k2_pwait")
                e(f"buffer_load_dword v{VFL}, v{VFL + 1}, {WS}, 0 offen sc1")
                e("s_waitcnt vmcnt(0)")
                a.vm = []
                e(f"v_readfirstlane_b32 s{ST}, v{VFL}")
                e("s_nop 3")
                e(f"s_cmp_lg_u32 s{ST}, 0")
                e("s_cbranch_scc1 L_k2_pok")
                e("s_sleep 4")
                e("s_branch L_k2_pwait")
                a.label("L_k2_pok")
                e(f"s_lshl_b32 s{ST}, s{STILE}, 16")
                e(f"s_mul_i32 s{ST + 1}, s{SWAVE}, {PSZ}")
                e(f"s_add_u32 s{ST}, s{ST}, s{ST + 1}")
                e(f"s_add_u32 s{ST}, s{ST}, {PART_OFF}")
                ps = [(JP - 2) % S, (JP - 1) % S]
                if PBF:
                    e(f"s_add_u32 s{ST + 1}, s{ST + 1}, {ps[1] * SLOT}")
                else:
                    e(f"s_and_b32 s{ST + 1}, s{SWAVE}, 1")
                    e(f"s_lshl_b32 s{ST + 1}, s{ST + 1}, 14")
                    e(f"s_cmp_lt_u32 s{SWAVE}, 2")
                    e(f"s_mov_b32 s{ST + 3}, {ps[1] * SLOT}")
                    e(f"s_cselect_b32 s{ST + 2}, {ps[0] * SLOT}, s{ST + 3}")
                    e(f"s_add_u32 s{ST + 1}, s{ST + 1}, s{ST + 2}")
                for q in range(PSZ // 1024):
                    if q & 3 == 0:
                        e(f"s_add_u32 m0, s{ST + 1}, {1024 * q}")
                        e("s_nop 0")
                    a.vmem(f"buffer_load_dwordx4 v{VL16}, {WS}, s{ST} offen offset:{1024 * (q & 3)} sc1 lds", "PT")
                    if q & 3 == 3:
                        e(f"s_add_u32 s{ST}, s{ST}, 4096")
            if j + 1 < N:
                a.wait([f"D{j + 1}"], lgkm=lg)
                e("s_barrier")

        iters = []
        for j in range(N):
            n_ = len(a.lines)
            interval(j)
            iters.append(a.lines[n_:])
            del a.lines[n_:]
        fold_loops(a, iters, PERIOD, SCNT, f"k2{R}")
        if role == 1:
            e("s_waitcnt vmcnt(0)")
            e("s_barrier")
        e("s_endpgm")

    producer(1)
    a.label("L_k2_prod0")
    a.vm = []
    producer(0)

    a.label("L_k2_cons")
    a.vm = []
    if OPT['cprio']:
        e(f"s_setprio {OPT['cprio']}")
    SCR = S * SLOT
    CG = 40
    CR = 44
    CKV = 48
    CEPS = 60
    CW = 38
    SHD, SM2 = SOKV, SRED
    e(f"s_and_b32 s{SHD}, s2, 31")
    e(f"s_lshr_b32 s{SM2}, s2, 5")
    e(f"s_lshl_b32 s{SM2}, s{SM2}, 1")
    e(f"s_lshr_b32 s{ST}, s{SWAVE}, 1")
    e(f"s_add_u32 s{SM2}, s{SM2}, s{ST}")
    e(f"s_lshr_b32 s{ST}, s{SHD}, 1")
    e(f"s_lshl_b32 s{ST}, s{ST}, 3")
    e(f"s_lshl_b32 s{ST + 1}, s{SWAVE}, 1")
    e(f"s_add_u32 s{ST}, s{ST}, s{ST + 1}")
    e(f"s_mul_i32 s{ST}, s{ST}, 12")
    e(f"s_and_b32 s{ST + 1}, s{SHD}, 1")
    e(f"s_mul_i32 s{ST + 1}, s{ST + 1}, 6")
    e(f"s_add_u32 s{ST}, s{ST}, s{ST + 1}")
    e(f"s_lshl_b32 s{ST}, s{ST}, 10")
    e(f"s_add_u32 s{ST}, s{ST}, {KVP_OFF}")
    e("s_waitcnt lgkmcnt(0)")
    srd(a, SWS, SP + 20, SP + 21, WS_USED)
    for r2 in range(2):
        for t6 in range(6):
            if t6 == 3:
                e(f"s_add_u32 s{ST}, s{ST}, 3072")
            a.vmem(f"buffer_load_dwordx4 {vr(VP + 24 * r2 + 4 * t6)}, v{VL16}, {WS}, s{ST} offen offset:{1024 * (t6 % 3)}", "kvp")
        if r2 == 0:
            e(f"s_add_u32 s{ST}, s{ST}, {12288 - 3072}")
    e(f"s_mul_i32 s{ST}, s{SM2}, 144")
    e(f"s_add_u32 s{ST}, s{ST}, s{SHD}")
    e(f"s_add_u32 s{ST}, s{ST}, 112")
    e(f"s_lshl_b32 s{ST}, s{ST}, 13")
    e(f"s_and_b32 s{ST + 1}, s{SWAVE}, 1")
    e(f"s_lshl_b32 s{ST + 1}, s{ST + 1}, 12")
    e(f"s_add_u32 s{ST}, s{ST}, s{ST + 1}")
    for i in range(4):
        a.vmem(f"buffer_load_dwordx4 {ar(64 + 4 * i)}, v{VL16}, {WS}, s{ST} offen offset:{1024 * i}", "pq")
    e(f"s_lshl_b32 s{SOP}, s{SM2}, 5")
    e(f"s_add_u32 s{SOP}, s{SOP}, s{SHD}")
    e(f"s_lshl_b32 s{SOP}, s{SOP}, 13")
    e(f"s_add_u32 s{SOP}, s{SOP}, s{ST + 1}")
    e(f"s_add_u32 s{SOP}, s{SOP}, {OF_OFF}")
    e(f"v_lshlrev_b32 v{t0}, 2, v{vi}")
    e(f"s_lshl_b32 s{ST}, s{SM2}, 9")
    e(f"s_lshr_b32 s{ST + 1}, s{ST + 1}, 4")
    e(f"s_add_u32 s{ST}, s{ST}, s{ST + 1}")
    e(f"s_add_u32 s{ST}, s{ST}, {G_OFF}")
    for i in range(4):
        a.vmem(f"buffer_load_dword v{CG + i}, v{t0}, {WS}, s{ST} offen offset:{64 * i}", "pq")
    load_g()
    srd(a, SOUT, SP + 16, SP + 17, 2048 * 1024 * 2)
    for r in range(4):
        e(f"v_mov_b32 v{CEPS + r}, {EPS_HEX}")
    e(f"s_mul_i32 s{ST}, s{SWAVE}, 6144")
    e(f"s_add_u32 s{ST}, s{ST}, {SCR}")
    e(f"v_add_u32 v{CW}, s{ST}, v{VL16}")
    e(f"v_add_u32 v{CW + 1}, {SCR}, v{VL16}")
    e(f"s_and_b32 s{ST}, s{SWAVE}, 1")
    e(f"s_lshl_b32 s{ST}, s{ST}, 12")
    e(f"v_add_u32 v{VAR}, s{ST}, v{VL16}")
    for k in range(1, NBASE):
        e(f"v_add_u32 v{VAR + k}, {65536 * k}, v{VAR}")
    e(f"v_lshlrev_b32 v{t0}, 2, v{vG}")
    e(f"v_lshrrev_b32 v{t1}, 2, v{vi}")
    e(f"v_add_u32 v{t0}, v{t0}, v{t1}")
    e(f"v_and_b32 v{t1}, 7, v{t0}")
    e(f"s_lshr_b32 s{ST}, s{SWAVE}, 1")
    e(f"s_lshl_b32 s{ST}, s{ST}, 2")
    e(f"v_xor_b32 v{t1}, s{ST}, v{t1}")
    e(f"v_lshlrev_b32 v{t0}, 8, v{t0}")
    e(f"v_and_b32 v{t2}, 3, v{vi}")
    e(f"v_lshlrev_b32 v{t2}, 3, v{t2}")
    e(f"v_add_u32 v{t0}, v{t0}, v{t2}")
    e(f"v_add_u32 v{t0}, 16384, v{t0}")
    for nt in range(4):
        e(f"v_xor_b32 v{t3}, {nt}, v{t1}")
        e(f"v_lshlrev_b32 v{t3}, 5, v{t3}")
        e(f"v_add_u32 v{VBR + nt}, v{t0}, v{t3}")
        for k in range(1, NBASE):
            e(f"v_add_u32 v{VBR + 4 * k + nt}, {65536 * k}, v{VBR + nt}")
    e(f"s_cmp_eq_u32 s{SROLE}, 0")
    e(f"s_cbranch_scc1 L_k2_cons0")

    def consumer(role):
        R = f"c{role}"
        nact = n0 if role == 0 else 56 - n0
        N = nact if role == 0 else nact + 16
        stamp(a, 0)
        a.wait(["kvp"])
        for q in range(12):
            e(f"v_pk_add_f32 {vr(VP + 2 * q, 2)}, {vr(VP + 2 * q, 2)}, {vr(VP + 24 + 2 * q, 2)}")
        for t6 in range(6):
            e(f"ds_write_b128 v{CW}, {vr(VP + 4 * t6)} offset:{1024 * t6}")
        e("s_waitcnt lgkmcnt(0)")
        stamp(a, 1)
        e("s_barrier")
        stamp(a, 2)

        def produce():
            for dt in range(2):
                for w2 in range(4):
                    for et in range(3):
                        e(f"ds_read_b128 {vr(VP + 12 * w2 + 4 * et)}, v{CW + 1} offset:{6144 * w2 + 1024 * (3 * dt + et)}")
                if dt == 0:
                    for fn in reads(0):
                        fn()
                e("s_waitcnt lgkmcnt(0)")
                for q in range(6):
                    e(f"v_pk_add_f32 {vr(VP + 2 * q, 2)}, {vr(VP + 2 * q, 2)}, {vr(VP + 12 + 2 * q, 2)}")
                    e(f"v_pk_add_f32 {vr(VP + 24 + 2 * q, 2)}, {vr(VP + 24 + 2 * q, 2)}, {vr(VP + 36 + 2 * q, 2)}")
                for q in range(6):
                    e(f"v_pk_add_f32 {vr(VP + 2 * q, 2)}, {vr(VP + 2 * q, 2)}, {vr(VP + 24 + 2 * q, 2)}")
                for et in range(3):
                    for h2 in range(2):
                        e(f"v_cvt_pk_bf16_f32 v{CKV + 4 * et + 2 * dt + h2}, v{VP + 4 * et + 2 * h2}, v{VP + 4 * et + 2 * h2 + 1}")
            a.wait(["pq", "g"])
            e("s_nop 1")
            for i in range(4):
                d = VD + 12 * i
                pq = ar(64 + 4 * i)
                e(f"v_mfma_f32_16x16x32_bf16 {vr(d + 8)}, {vr(CKV + 8)}, {pq}, {vr(CEPS)}")
                e(f"v_mfma_f32_16x16x32_bf16 {vr(d)}, {vr(CKV)}, {pq}, 0")
                e(f"v_mfma_f32_16x16x32_bf16 {vr(d + 4)}, {vr(CKV + 4)}, {pq}, 0")
            for i in range(4):
                e(f"v_sub_f32 v{VOMG + i}, 1.0, v{VG + i}")
            e("s_nop 3")
            for i in range(4):
                e(f"v_rcp_f32 v{CR + i}, v{VD + 12 * i + 8}")
            e("s_nop 0")
            for i in range(4):
                e(f"v_mul_f32 v{CR + i}, v{CR + i}, v{CG + i}")
            for i in range(4):
                d = VD + 12 * i
                sel = "op_sel:[0,1] op_sel_hi:[1,1]" if i & 1 else "op_sel_hi:[1,0]"
                for q in range(4):
                    e(f"v_pk_mul_f32 {vr(d + 2 * q, 2)}, {vr(d + 2 * q, 2)}, {vr(CR + (i & 2), 2)} {sel}")
                o = 112 + 4 * i
                for q in range(4):
                    e(f"v_cvt_pk_bf16_f32 v{o + q}, v{d + 2 * q}, v{d + 2 * q + 1}")
                a.vmem(f"buffer_store_dwordx4 {vr(o)}, v{VL16}, {WS}, s{SOP} offen offset:{1024 * i} sc1", "ost")

        def reads(j):
            sl = j % S
            k, so = sl // 2, (sl % 2) * SLOT
            f = []
            for q in range(4):
                for b in range(2):
                    f.append(lambda b=b, q=q: e(
                        f"ds_read_b128 {ar(FA(j, b, q))}, v{VAR + k} offset:{so + 8192 * b + 1024 * q}"))
                    for ins in range(2):
                        f.append(lambda b=b, q=q, ins=ins: e(
                            f"ds_read_b64_tr_b16 {ar(FB(j, b, q) + 2 * ins, 2)}, v{VBR + 4 * k + q} offset:{so + 8192 * b + 4096 * ins}"))
            return f

        def interval(j):
            main = []
            if j >= 1:
                for mt in range(4):
                    for nt in range(4):
                        D = vr(acc2(mt, nt))
                        for b in range(2):
                            C = "0" if (j == 1 and b == 0) else D
                            main.append(f"v_mfma_f32_16x16x32_bf16 {D}, {ar(FB(j - 1, b, nt))}, {ar(FA(j - 1, b, mt))}, {C}")
            rd = reads(j) if j < N else []
            if j == 0:
                produce()
                rd = []
            if j == 5:
                a.wait(["ost"])
                e(f"s_lshl_b32 s{ST}, s{SM2}, 8")
                e(f"s_add_u32 s{ST}, s{ST}, {FLG_OFF}")
                e(f"v_mov_b32 v{CW}, 1")
                e(f"v_mov_b32 v{CW + 1}, s{ST}")
                e("s_mov_b64 exec, 1")
                e(f"buffer_atomic_add v{CW}, v{CW + 1}, {WS}, 0 offen")
                e("s_mov_b64 exec, -1")
            if role == 1 and j == nact + 1:
                e("s_nop 7")
                for mt in range(4):
                    for q in range(16):
                        b0 = acc2(mt, 0) + q
                        e(f"v_mul_f32 v{b0}, v{VOMG + mt}, v{b0}")
                e("s_nop 1")
            schedule(a, main, [(rd, 0, OPT['rdend'])])
            if j < N:
                e("s_waitcnt lgkmcnt(0)")
                if j + 1 < N:
                    e("s_barrier")

        iters = []
        for j in range(N + 1):
            n_ = len(a.lines)
            if j == 4:
                stamp(a, 3)
            if role == 1 and j == nact:
                stamp(a, 4)
            interval(j)
            iters.append(a.lines[n_:])
            del a.lines[n_:]
        fold_loops(a, iters, PERIOD, SCNT, f"k2{R}")
        if role == 0:
            stamp(a, 4)
        stamp(a, 5)
        if role == 0:
            e(f"s_lshl_b32 s{ST}, s{STILE}, 16")
            e(f"s_mul_i32 s{ST + 1}, s{SWAVE}, {PSZ}")
            e(f"s_add_u32 s{ST}, s{ST}, s{ST + 1}")
            e(f"s_add_u32 s{ST}, s{ST}, {PART_OFF}")
            e("s_nop 7")
            if PBF:
                for q in range(8):
                    b0 = AC + 8 * q
                    for r in range(4):
                        e(f"v_cvt_pk_bf16_f32 v{b0 + r}, v{b0 + 2 * r}, v{b0 + 2 * r + 1}")
                    e(f"buffer_store_dwordx4 {vr(b0)}, v{VL16}, {WS}, s{ST} offen offset:{1024 * (q & 3)} sc1")
                    if q & 3 == 3:
                        e(f"s_add_u32 s{ST}, s{ST}, 4096")
            else:
                for q in range(16):
                    e(f"buffer_store_dwordx4 {vr(AC + 4 * q)}, v{VL16}, {WS}, s{ST} offen offset:{1024 * (q & 3)} sc1")
                    if q & 3 == 3:
                        e(f"s_add_u32 s{ST}, s{ST}, 4096")
            e(f"s_lshl_b32 s{ST}, s{STILE}, 8")
            e(f"s_add_u32 s{ST}, s{ST}, {FLG_OFF + 4096}")
            e(f"v_mov_b32 v{VT + 1}, s{ST}")
            e(f"v_mov_b32 v{VT}, 1")
            e("s_waitcnt vmcnt(0)")
            e("s_barrier")
            stamp(a, 6)
            e(f"s_cmp_lg_u32 s{SWAVE}, 0")
            e(f"s_cbranch_scc1 L_k2_p0end")
            e("s_mov_b64 exec, 1")
            e(f"buffer_store_dword v{VT}, v{VT + 1}, {WS}, 0 offen sc1")
            e("s_mov_b64 exec, -1")
            a.label("L_k2_p0end")
        else:
            JP = N - OPT['pj']
            ps = [(JP - 2) % S, (JP - 1) % S]
            vo, vpr = VT + 6, VT + 7
            e(f"v_and_b32 v{t2}, 15, v{VL}")
            e(f"v_lshlrev_b32 v{t2}, 11, v{t2}")
            e(f"v_bfe_u32 v{t3}, v{VL}, 4, 1")
            e(f"v_lshlrev_b32 v{t3}, 5, v{t3}")
            e(f"v_add_u32 v{t2}, v{t2}, v{t3}")
            e(f"v_lshrrev_b32 v{t3}, 5, v{VL}")
            e(f"v_lshlrev_b32 v{t3}, 4, v{t3}")
            e(f"v_add_u32 v{vo}, v{t2}, v{t3}")
            if PBF:
                e(f"s_mul_i32 s{ST + 1}, s{SWAVE}, {PSZ}")
                e(f"s_add_u32 s{ST + 1}, s{ST + 1}, {ps[1] * SLOT}")
            else:
                e(f"s_and_b32 s{ST + 1}, s{SWAVE}, 1")
                e(f"s_lshl_b32 s{ST + 1}, s{ST + 1}, 14")
                e(f"s_cmp_lt_u32 s{SWAVE}, 2")
                e(f"s_mov_b32 s{ST + 3}, {ps[1] * SLOT}")
                e(f"s_cselect_b32 s{ST + 2}, {ps[0] * SLOT}, s{ST + 3}")
                e(f"s_add_u32 s{ST + 1}, s{ST + 1}, s{ST + 2}")
            e(f"v_add_u32 v{vpr}, s{ST + 1}, v{VL16}")
            e(f"s_lshl_b32 s{ST}, s{SMT}, 7")
            e(f"s_and_b32 s{ST + 1}, s{SWAVE}, 1")
            e(f"s_lshl_b32 s{ST + 1}, s{ST + 1}, 6")
            e(f"s_add_u32 s{ST}, s{ST}, s{ST + 1}")
            e(f"s_lshl_b32 s{ST}, s{ST}, 11")
            e(f"s_lshl_b32 s{ST + 1}, s{SNT}, 8")
            e(f"s_add_u32 s{ST}, s{ST}, s{ST + 1}")
            e(f"s_lshr_b32 s{ST + 1}, s{SWAVE}, 1")
            e(f"s_lshl_b32 s{ST + 1}, s{ST + 1}, 7")
            e(f"s_add_u32 s{ST}, s{ST}, s{ST + 1}")
            e("s_barrier")
            PT = 24
            for mh2 in range(2):
                if PBF:
                    for q in range(4):
                        e(f"ds_read_b128 {vr(PT + 4 * q)}, v{vpr} offset:{1024 * (4 * mh2 + q)}")
                else:
                    for q in range(8):
                        e(f"ds_read_b128 {vr(PT + 4 * q)}, v{vpr} offset:{1024 * (8 * mh2 + q)}")
                e("s_waitcnt lgkmcnt(0)")
                for m2 in range(2):
                    mt = 2 * mh2 + m2
                    if PBF:
                        for q in range(8):
                            b0 = acc2(mt, 0) + 2 * q
                            p0 = PT + 8 * m2 + q
                            e(f"v_lshlrev_b32 v{PT + 16}, 16, v{p0}")
                            e(f"v_and_b32 v{PT + 17}, 0xffff0000, v{p0}")
                            e(f"v_fmac_f32 v{b0}, v{VOMG + mt}, v{PT + 16}")
                            e(f"v_fmac_f32 v{b0 + 1}, v{VOMG + mt}, v{PT + 17}")
                    else:
                        sel = "op_sel:[1,0,0] op_sel_hi:[1,1,1]" if mt & 1 else "op_sel_hi:[0,1,1]"
                        for q in range(8):
                            b0 = acc2(mt, 0) + 2 * q
                            p0 = PT + 16 * m2 + 2 * q
                            e(f"v_pk_fma_f32 {vr(b0, 2)}, {vr(VOMG + (mt & 2), 2)}, {vr(p0, 2)}, {vr(b0, 2)} {sel}")
                    for pr in range(2):
                        b0 = acc2(mt, 2 * pr)
                        for q in range(4):
                            e(f"v_cvt_pk_bf16_f32 v{b0 + q}, v{b0 + 2 * q}, v{b0 + 2 * q + 1}")
                    e("s_nop 1")
                    for pr in range(2):
                        b0 = acc2(mt, 2 * pr)
                        e(f"v_permlane16_swap_b32 v{b0}, v{b0 + 2}")
                        e(f"v_permlane16_swap_b32 v{b0 + 1}, v{b0 + 3}")
                    for pr in range(2):
                        b0 = acc2(mt, 2 * pr)
                        e(f"buffer_store_dwordx4 {vr(b0)}, v{vo}, s[{SOUT}:{SOUT + 3}], s{ST} offen offset:{64 * pr}")
                    if mt < 3:
                        e(f"s_add_u32 s{ST}, s{ST}, 32768")
            stamp(a, 6)
        if DIAG:
            e("s_waitcnt vmcnt(0)")
        stamp(a, 7)
        stamp_dump(a, 1, 8, SWAVE, SP + 20, SP + 21, VT + 8)
        e("s_endpgm")

    vm_save = list(a.vm)
    consumer(1)
    a.label("L_k2_cons0")
    a.vm = vm_save
    consumer(0)
    a.label("L_k2_exit")
    e("s_endpgm")
    return a.lines


def fix_hazards(lines):
    out = []
    for i, ln in enumerate(lines):
        out.append(ln)
        if " m0," in ln and i + 1 < len(lines) and lines[i + 1].rstrip().endswith("lds"):
            out.append("  s_nop 0")
    return out


def kd(name, nfv, accum):
    return f""".amdhsa_kernel {name}
  .amdhsa_next_free_vgpr {nfv}
  .amdhsa_next_free_sgpr 102
  .amdhsa_accum_offset {accum}
  .amdhsa_group_segment_fixed_size 0
  .amdhsa_kernarg_size 88
  .amdhsa_user_sgpr_count 2
  .amdhsa_user_sgpr_kernarg_segment_ptr 1
  .amdhsa_system_sgpr_workgroup_id_x 1
.end_amdhsa_kernel"""


def main(path):
    hdr = open(f"cdna_kernels/{NAME}.s.ref").read().split("; Override launch")[0]
    out = [hdr.rstrip("\n")]
    out.append(f"; @launch kernel=k1_kernel grid=(256,1,1) block=(256,1,1) lds={K1_LDS}")
    out.append(f"; @launch kernel=k2_kernel grid=(256,1,1) block=(512,1,1) lds={K2_LDS()}")
    out.append('.amdgcn_target "amdgcn-amd-amdhsa--gfx950"')
    out.append(".text")
    out += fix_hazards(gen_k1())
    out += fix_hazards(gen_k2())
    out.append('.section .rodata,"a"')
    out.append(".p2align 6")
    out.append(kd("k1_kernel", 256 + 152, 256))
    out.append(".p2align 6")
    out.append(kd("k2_kernel", 256, 128))
    open(path, "w").write("\n".join(out) + "\n")


if __name__ == "__main__":
    if "--diag" in sys.argv:
        DIAG = True
        sys.argv.remove("--diag")
    for arg in list(sys.argv):
        if "=" in arg:
            k_, v_ = arg.split("=")
            OPT[k_] = int(v_) if v_.isdigit() else v_.replace("+", " ")
            sys.argv.remove(arg)
    main(sys.argv[1] if len(sys.argv) > 1 else f"cdna_kernels/{NAME}.s")
```

```python
import sys

NAME = "gated_mix__linear_attn_block__dense_activation_mish__prompt"

AF_OFF = 0
AF_BYTES = 16 * 144 * 8 * 1024
KVP_OFF = AF_BYTES
KVP_BYTES = 16 * 8 * 12 * 1024
KVF_OFF = KVP_OFF + KVP_BYTES
KVF_BYTES = 32 * 3 * 1024
G_OFF = KVF_OFF + KVF_BYTES
PART_OFF = G_OFF + 8192
OF_OFF = PART_OFF + 128 * 65536
FLG_OFF = OF_OFF + 16 * 32 * 8192
WS_USED = FLG_OFF + 144 * 256

DIAG = False
OPT = dict(k1a="", k1b="", k2a="", k2b="", st="", pf=1, n0=33, map=2, S=4, pbf=1, pj=2, pprio=0, cprio=0, rdend=26)
DIAG_OFF = 0x2000000
EPS_HEX = "0x358637bd"
L2E_HEX = "0x3fb8aa3b"


class Asm:
    def __init__(self):
        self.lines = []
        self.vm = []

    def e(self, s):
        for ln in s.split("\n"):
            self.lines.append("  " + ln.strip())

    def label(self, s):
        self.lines.append(s + ":")

    def vmem(self, s, tag):
        self.e(s)
        self.vm.append(tag)

    def mark(self, tag):
        self.vm.append("#" + tag)

    def vm_count(self, tags, drop=True):
        idx = -1
        for i, t in enumerate(self.vm):
            if t in tags:
                idx = i
        if idx < 0:
            return None
        n = sum(1 for t in self.vm[idx + 1:] if not t.startswith("#"))
        if drop:
            self.vm = self.vm[idx + 1:]
        assert n <= 63, n
        return n

    def wait(self, tags=(), lgkm=False):
        n = self.vm_count(tags) if tags else None
        parts = []
        if n is not None:
            parts.append(f"vmcnt({n})")
        if lgkm:
            parts.append("lgkmcnt(0)")
        if parts:
            self.e("s_waitcnt " + " ".join(parts))


def stamp(a, idx, sbase=80):
    if not DIAG:
        return
    a.e(f"s_memtime s[{sbase - 4}:{sbase - 3}]")
    a.e(f"s_memrealtime s[{sbase - 2}:{sbase - 1}]")
    a.e("s_waitcnt lgkmcnt(0)")
    a.e(f"s_mov_b32 s{sbase + 2 * idx}, s{sbase - 4}")
    a.e(f"s_mov_b32 s{sbase + 2 * idx + 1}, s{sbase - 2}")


def stamp_dump(a, kidx, n, swave, sptr_lo, sptr_hi, vtmp, sbase=80):
    if not DIAG:
        return
    e = a.e
    e(f"s_mov_b32 s{sbase - 4}, s{sptr_lo}")
    e(f"s_and_b32 s{sbase - 3}, s{sptr_hi}, 0xffff")
    e(f"s_mov_b32 s{sbase - 2}, 0x4000000")
    e(f"s_mov_b32 s{sbase - 1}, 0x20000")
    e(f"s_lshl_b32 s75, s2, 2")
    e(f"s_add_u32 s75, s75, s{swave}")
    e(f"s_lshl_b32 s75, s75, 7")
    e(f"s_add_u32 s75, s75, {DIAG_OFF + kidx * 0x100000}")
    e(f"v_mov_b32 v{vtmp}, 0")
    e("s_mov_b64 exec, 1")
    for i in range(2 * n):
        e(f"v_mov_b32 v{vtmp + 1}, s{sbase + i}")
        e(f"buffer_store_dword v{vtmp + 1}, v{vtmp}, s[{sbase - 4}:{sbase - 1}], s75 offen offset:{4 * i}")
        e("s_nop 1")
    e("s_mov_b64 exec, -1")


def vr(b, n=4):
    return f"v[{b}:{b + n - 1}]"


def ar(b, n=4):
    return f"a[{b}:{b + n - 1}]"


def interleave(a, mf, fillers, start=0, end=None):
    n = len(mf)
    if end is None:
        end = n
    nf = len(fillers)
    pos = [start + (j * (end - start)) // max(nf, 1) for j in range(nf)]
    j = 0
    for m in range(n):
        a.e(mf[m])
        while j < nf and pos[j] <= m:
            f = fillers[j]
            f()
            j += 1
    while j < nf:
        fillers[j]()
        j += 1


def srd(a, d, lo, hi, nbytes, bias=0):
    if bias:
        a.e(f"s_sub_u32 s{d}, s{lo}, {bias}")
        a.e(f"s_subb_u32 s{d + 1}, s{hi}, 0")
        a.e(f"s_and_b32 s{d + 1}, s{d + 1}, 0xffff")
    else:
        a.e(f"s_mov_b32 s{d}, s{lo}")
        a.e(f"s_and_b32 s{d + 1}, s{hi}, 0xffff")
    a.e(f"s_mov_b32 s{d + 2}, {nbytes + bias}")
    a.e(f"s_mov_b32 s{d + 3}, 0x20000")


K1_BSLOT = 13312
K1_AREA = 3328
K1_ABASE = 4 * K1_BSLOT
K1_LDS = K1_ABASE + 4 * 16384
ACC0 = 48


def acc(t, mt):
    return ACC0 + 16 * t + 4 * mt


V_LANE = 1
V_ARD = 2
V_QRD = 4
V_HRD = 8
V_ADMA = 9
V_BDMA = 13
V_L16 = 17
V_T = 18
S_X, S_Q, S_W1, S_WS, S_MISC = 4, 8, 12, 16, 20
S_WAVE, S_RB, S_P = 24, 25, 26
S_OFFA, S_OFFA2, S_OFFQ, S_OFFH = 27, 28, 29, 30
S_M0B, S_M0A = 31, 32
S_CNT = 33
S_QM = 34
S_PTR = 36
S_L2E = 58
S_T = 60
S_AFB = 72
S_GROW = 73
S_PO1, S_PO2 = 74, 3
S_PT, S_PTE = 100, 101
S_PF1, S_PF2 = 96, 20


def bset(s, t):
    return 52 * s + 4 * t


ASET = {"X": 104, "Y": 120, "Z": 136}


def k1_body(a, typ):
    T = "A" if typ == 0 else "B"
    nq = 8 if typ == 0 else 4
    nh = 13 - nq
    Ph = 2 * nh
    HB = 256 * nq
    e = a.e
    vi, vG, t0, t1, t2, t3 = V_T, V_T + 1, V_T + 2, V_T + 3, V_T + 4, V_T + 5
    e(f"v_and_b32 v{vi}, 15, v{V_LANE}")
    e(f"v_lshrrev_b32 v{vG}, 4, v{V_LANE}")
    e(f"s_mul_i32 s{S_T + 2}, s{S_P}, 448")
    if typ:
        e(f"s_add_u32 s{S_T + 2}, s{S_T + 2}, 160")

    e(f"s_lshr_b32 s{S_T + 8}, s{S_WAVE}, 1")
    e(f"s_lshl_b32 s{S_T + 8}, s{S_T + 8}, 4")
    e(f"s_and_b32 s{S_T + 9}, s{S_WAVE}, 1")
    e(f"s_lshl_b32 s{S_T + 9}, s{S_T + 9}, 2")
    e(f"s_add_u32 s{S_T + 8}, s{S_T + 8}, s{S_T + 9}")

    def krow(dst, kp, tmp):
        e(f"v_lshrrev_b32 v{tmp}, 2, v{kp}")
        e(f"v_lshlrev_b32 v{tmp}, 3, v{tmp}")
        e(f"v_and_b32 v{dst}, 3, v{kp}")
        e(f"v_add3_u32 v{dst}, v{dst}, v{tmp}, s{S_T + 8}")

    e(f"v_lshrrev_b32 v{t0}, 3, v{V_LANE}")
    krow(t1, t0, t2)
    e(f"v_mul_u32_u24 v{t1}, 6144, v{t1}")
    e(f"v_lshrrev_b32 v{t2}, 1, v{t0}")
    e(f"v_and_b32 v{t2}, 3, v{t2}")
    e(f"v_lshlrev_b32 v{t2}, 1, v{t2}")
    e(f"v_and_b32 v{t3}, 7, v{V_LANE}")
    e(f"v_xor_b32 v{t3}, v{t3}, v{t2}")
    e(f"v_lshlrev_b32 v{t3}, 4, v{t3}")
    e(f"v_add_u32 v{t1}, v{t1}, v{t3}")
    e(f"s_lshl_b32 s{S_T + 9}, s{S_P}, 7")
    e(f"s_add_u32 s{S_T + 9}, s{S_T + 9}, {4096 + (2048 if typ == 0 else 0)}")
    e(f"v_add_u32 v{V_BDMA}, s{S_T + 9}, v{t1}")
    if typ == 0:
        e(f"v_add_u32 v{V_BDMA + 1}, {2048 - 1024}, v{V_BDMA}")
    hins = [(2, 0), (3, 64)] if typ == 0 else [(1, 0), (2, 64), (3, 128)]
    magic, sh = (205, 11) if Ph == 10 else (57, 10)
    for s_ in range(8 * Ph + 64):
        if s_ < 8 * Ph:
            assert (s_ * magic) >> sh == s_ // Ph
    for slot, s0 in hins:
        e(f"v_add_u32 v{t0}, {s0}, v{V_LANE}")
        e(f"v_mul_u32_u24 v{t1}, {magic}, v{t0}")
        e(f"v_lshrrev_b32 v{t1}, {sh}, v{t1}")
        e(f"v_mul_u32_u24 v{t2}, {Ph}, v{t1}")
        e(f"v_sub_u32 v{t0}, v{t0}, v{t2}")
        e(f"v_and_b32 v{t1}, 7, v{t1}")
        krow(t2, t1, t3)
        e(f"v_mul_u32_u24 v{t2}, 7168, v{t2}")
        e(f"v_lshlrev_b32 v{t0}, 4, v{t0}")
        e(f"v_add3_u32 v{t0}, v{t0}, v{t2}, s{S_T + 2}")
        e(f"v_add_u32 v{V_BDMA + slot}, {4096 - 1024 * slot}, v{t0}")
    e(f"s_lshl_b32 s{S_T + 9}, s{S_RB}, 8")
    e(f"s_lshl_b32 s{S_T + 10}, s{S_WAVE}, 6")
    e(f"s_add_u32 s{S_T + 9}, s{S_T + 9}, s{S_T + 10}")
    e(f"s_lshl_b32 s{S_T + 9}, s{S_T + 9}, 11")
    e(f"v_lshrrev_b32 v{t0}, 3, v{V_LANE}")
    e(f"v_lshrrev_b32 v{t1}, 1, v{t0}")
    e(f"v_and_b32 v{t2}, 7, v{V_LANE}")
    e(f"v_xor_b32 v{t2}, v{t2}, v{t1}")
    e(f"v_lshlrev_b32 v{t0}, 11, v{t0}")
    e(f"v_add_u32 v{t0}, s{S_T + 9}, v{t0}")
    for j in range(4):
        if j & 1:
            e(f"v_xor_b32 v{t3}, 4, v{t2}")
            e(f"v_lshlrev_b32 v{t3}, 4, v{t3}")
        else:
            e(f"v_lshlrev_b32 v{t3}, 4, v{t2}")
        e(f"v_add_u32 v{t3}, v{t3}, v{t0}")
        e(f"v_add_u32 v{V_ADMA + j}, {j * (16384 - 1024)}, v{t3}")
    e(f"s_mul_i32 s{S_M0B}, s{S_WAVE}, {K1_AREA}")
    e(f"s_lshl_b32 s{S_M0A}, s{S_WAVE}, 14")
    e(f"s_add_u32 s{S_M0A}, s{S_M0A}, {K1_ABASE}")
    e(f"s_mov_b32 s{S_OFFA}, 0")
    e(f"s_mov_b32 s{S_OFFA2}, 65536")
    e(f"s_mov_b32 s{S_OFFQ}, 0")
    e(f"s_mov_b32 s{S_OFFH}, 0")
    e(f"s_mov_b32 s{S_QM}, 0xffff")
    e(f"s_mov_b32 s{S_QM + 1}, 0")

    def dmaB(tt):
        slot = tt % 4
        tag = f"B{tt}"
        f = []
        srcs = [(S_Q, S_OFFQ), (S_Q, S_OFFQ) if typ == 0 else (S_W1, S_OFFH), (S_W1, S_OFFH)]
        f.append(lambda: e(f"s_add_u32 m0, s{S_M0B}, {slot * K1_BSLOT}"))
        for j in range(3):
            sr, so = srcs[j]
            f.append(lambda j=j, sr=sr, so=so: a.vmem(
                f"buffer_load_dwordx4 v{V_BDMA + j}, s[{sr}:{sr + 3}], s{so} offen offset:{1024 * j} {OPT['k1b']} lds", tag))

        def q():
            e(f"s_mov_b64 exec, s[{S_QM}:{S_QM + 1}]")
            a.vmem(f"buffer_load_dwordx4 v{V_BDMA + 3}, s[{S_W1}:{S_W1 + 3}], s{S_OFFH} offen offset:3072 {OPT['k1b']} lds", tag)
            e("s_mov_b64 exec, -1")
        f.append(q)
        f.append(lambda: e(f"s_add_u32 s{S_OFFQ}, s{S_OFFQ}, {32 * 6144}"))
        f.append(lambda: e(f"s_add_u32 s{S_OFFH}, s{S_OFFH}, {32 * 7168}"))
        return f

    def dmaA(aa):
        slot = aa % 2
        tag = f"A{aa}"
        f = []
        for half in range(2):
            so = S_OFFA if half == 0 else S_OFFA2
            f.append(lambda half=half: e(f"s_add_u32 m0, s{S_M0A}, {slot * 8192 + half * 4096}"))
            for j in range(4):
                f.append(lambda j=j, so=so: a.vmem(
                    f"buffer_load_dwordx4 v{V_ADMA + j}, s[{S_X}:{S_X + 3}], s{so} offen offset:{1024 * j} {OPT['k1a']} lds", tag))
        f.append(lambda: e(f"s_add_u32 s{S_OFFA}, s{S_OFFA}, 128"))
        f.append(lambda: e(f"s_add_u32 s{S_OFFA2}, s{S_OFFA2}, 128"))
        return f

    def run_seq(fl):
        for fn in fl:
            n0 = len(a.lines)
            fn()
            if " m0," in a.lines[-1] and len(a.lines) == n0 + 1:
                e("s_nop 0")

    e("s_waitcnt lgkmcnt(0)")
    srd(a, S_Q, S_PTR + 2, S_PTR + 3, 1024 * 3072 * 2, bias=4096)
    srd(a, S_W1, S_PTR + 8, S_PTR + 9, 1024 * 3584 * 2, bias=4096)
    srd(a, S_X, S_PTR + 0, S_PTR + 1, 2048 * 1024 * 2)
    stamp(a, 0)
    run_seq(dmaB(0))
    run_seq(dmaA(0))
    srd(a, S_T + 4, S_PTR + 10, S_PTR + 11, 7168)
    e(f"v_lshlrev_b32 v{t1}, 3, v{vG}")
    for j in range(nh):
        a.vmem(f"buffer_load_dwordx2 {vr(acc(nq + j, 3), 2)}, v{t1}, s[{S_T + 4}:{S_T + 7}], s{S_T + 2} offen offset:{32 * j}", "bias")
    run_seq(dmaB(1))
    run_seq(dmaB(2))
    run_seq(dmaA(1))
    run_seq(dmaB(3))
    srd(a, S_WS, S_PTR + 20, S_PTR + 21, WS_USED)

    e(f"v_lshrrev_b32 v{t0}, 3, v{vi}")
    e(f"v_lshlrev_b32 v{t0}, 6, v{t0}")
    e(f"v_and_b32 v{t1}, 7, v{vi}")
    e(f"v_lshlrev_b32 v{t1}, 3, v{t1}")
    e(f"v_add_u32 v{t0}, v{t0}, v{t1}")
    e(f"v_lshrrev_b32 v{t1}, 1, v{vi}")
    e(f"v_xor_b32 v{t1}, v{t1}, v{vG}")
    e(f"v_add_u32 v{t2}, v{t0}, v{t1}")
    e(f"v_lshlrev_b32 v{t2}, 4, v{t2}")
    e(f"v_add_u32 v{V_ARD}, s{S_M0A}, v{t2}")
    e(f"v_xor_b32 v{t1}, 4, v{t1}")
    e(f"v_add_u32 v{t2}, v{t0}, v{t1}")
    e(f"v_lshlrev_b32 v{t2}, 4, v{t2}")
    e(f"v_add_u32 v{V_ARD + 1}, s{S_M0A}, v{t2}")
    e(f"v_and_b32 v{t0}, 1, v{vG}")
    e(f"v_lshlrev_b32 v{t0}, 2, v{t0}")
    e(f"v_lshrrev_b32 v{t1}, 2, v{vi}")
    e(f"v_add_u32 v{t0}, v{t0}, v{t1}")
    e(f"v_lshrrev_b32 v{t1}, 1, v{vG}")
    e(f"v_mul_u32_u24 v{t1}, {2 * K1_AREA}, v{t1}")
    e(f"v_and_b32 v{t2}, 3, v{vi}")
    e(f"v_lshlrev_b32 v{t2}, 3, v{t2}")
    e(f"v_add_u32 v{t1}, v{t1}, v{t2}")
    e(f"v_mul_u32_u24 v{t3}, {16 * Ph}, v{t0}")
    e(f"v_add3_u32 v{V_HRD}, v{t1}, v{t3}, {0}")
    e(f"v_add_u32 v{V_HRD}, {HB}, v{V_HRD}")
    e(f"v_lshlrev_b32 v{t3}, 7, v{t0}")
    e(f"v_add_u32 v{t1}, v{t1}, v{t3}")
    e(f"v_lshrrev_b32 v{t2}, 1, v{t0}")
    e(f"v_and_b32 v{t2}, 3, v{t2}")
    for t in range(4):
        e(f"v_xor_b32 v{t3}, {t}, v{t2}")
        e(f"v_lshlrev_b32 v{t3}, 5, v{t3}")
        e(f"v_add_u32 v{V_QRD + t}, v{t1}, v{t3}")
    e(f"v_lshlrev_b32 v{V_L16}, 4, v{V_LANE}")

    gw, gx0, gx1 = V_T, V_T + 8, V_T + 16
    gt = V_T + 24
    e(f"v_lshlrev_b32 v{gt}, 5, v{V_LANE}")
    e(f"s_lshl_b32 s{S_GROW}, s2, 3")
    e(f"s_lshl_b32 s{S_T + 1}, s{S_WAVE}, 1")
    e(f"s_add_u32 s{S_GROW}, s{S_GROW}, s{S_T + 1}")
    e(f"s_lshl_b32 s{S_T + 1}, s{S_GROW}, 11")
    srd(a, S_MISC, S_PTR + 14, S_PTR + 15, 2048)
    a.vmem(f"buffer_load_dwordx4 {vr(gw)}, v{gt}, s[{S_MISC}:{S_MISC + 3}], 0 offen", "g")
    a.vmem(f"buffer_load_dwordx4 {vr(gw + 4)}, v{gt}, s[{S_MISC}:{S_MISC + 3}], 0 offen offset:16", "g")
    a.vmem(f"buffer_load_dwordx4 {vr(gx0)}, v{gt}, s[{S_X}:{S_X + 3}], s{S_T + 1} offen", "g")
    a.vmem(f"buffer_load_dwordx4 {vr(gx0 + 4)}, v{gt}, s[{S_X}:{S_X + 3}], s{S_T + 1} offen offset:16", "g")
    a.vmem(f"buffer_load_dwordx4 {vr(gx1)}, v{gt}, s[{S_X}:{S_X + 3}], s{S_T + 1} offen offset:2048", "g")
    a.vmem(f"buffer_load_dwordx4 {vr(gx1 + 4)}, v{gt}, s[{S_X}:{S_X + 3}], s{S_T + 1} offen offset:2064", "g")

    if OPT['pf']:
        srd(a, S_PF1, S_PTR + 12, S_PTR + 13, 3584 * 1024 * 2)
        srd(a, S_PF2, S_PTR + 4, S_PTR + 5, 1024 * 1024 * 2)
        e(f"v_min_u32 v{V_T + 26}, 7, v{V_LANE}")
        e(f"v_lshlrev_b32 v{V_T + 26}, 7, v{V_T + 26}")
        e(f"v_min_u32 v{V_T + 27}, 2, v{V_LANE}")
        e(f"v_lshlrev_b32 v{V_T + 27}, 7, v{V_T + 27}")
        e(f"s_lshl_b32 s{S_T}, s2, 2")
        e(f"s_add_u32 s{S_T}, s{S_T}, s{S_WAVE}")
        e(f"s_mul_i32 s{S_PO1}, s{S_T}, 7168")
        e(f"s_lshl_b32 s{S_PO2}, s{S_T}, 11")

    if OPT.get('pt'):
        e(f"s_lshl_b32 s{S_T}, s{S_RB}, 1")
        e(f"s_lshr_b32 s{S_T + 1}, s{S_WAVE}, 1")
        e(f"s_add_u32 s{S_T}, s{S_T}, s{S_T + 1}")
        e(f"s_mul_i32 s{S_AFB}, s{S_T}, {144 * 8192}")
        e(f"s_and_b32 s{S_T + 1}, s{S_WAVE}, 1")
        e(f"s_lshl_b32 s{S_T + 1}, s{S_T + 1}, 12")
        e(f"s_add_u32 s{S_AFB}, s{S_AFB}, s{S_T + 1}")
        e(f"s_mul_i32 s{S_PT}, s{S_P}, {7 * 8192}")
        e(f"s_add_u32 s{S_PT}, s{S_PT}, s{S_AFB}")
        if typ:
            e(f"s_add_u32 s{S_PT}, s{S_PT}, {2 * 8192}")
        e(f"s_add_u32 s{S_PTE}, s{S_PT}, {(4 if typ else 2) * 8192}")
        e(f"v_and_b32 v{V_T + 25}, 31, v{V_LANE}")
        e(f"v_lshlrev_b32 v{V_T + 25}, 7, v{V_T + 25}")
        if typ:
            e(f"v_lshrrev_b32 v{V_T + 29}, 5, v{V_LANE}")
            e(f"v_lshlrev_b32 v{V_T + 29}, 13, v{V_T + 29}")
            e(f"v_add_u32 v{V_T + 29}, v{V_T + 29}, v{V_T + 25}")
            e(f"s_mul_i32 s{S_T}, s{S_P}, {2 * 8192}")
            e(f"s_add_u32 s{S_T}, s{S_T}, {112 * 8192}")
            e(f"s_add_u32 s{S_T}, s{S_T}, s{S_AFB}")
            a.vmem(f"buffer_load_dword v{V_T + 28}, v{V_T + 29}, s[{S_WS}:{S_WS + 3}], s{S_T} offen", "pf")

    def pt_items():
        return [lambda: a.vmem(f"buffer_load_dword v{V_T + 28}, v{V_T + 25}, s[{S_WS}:{S_WS + 3}], s{S_PT} offen", "pf"),
                lambda: e(f"s_add_u32 s{S_PT}, s{S_PT}, 8192"),
                lambda: e(f"s_min_u32 s{S_PT}, s{S_PT}, s{S_PTE}")]

    def pf_items():
        return [lambda: a.vmem(f"buffer_load_dword v{V_T + 28}, v{V_T + 26}, s[{S_PF1}:{S_PF1 + 3}], s{S_PO1} offen", "pf"),
                lambda: a.vmem(f"buffer_load_dword v{V_T + 29}, v{V_T + 27}, s[{S_PF2}:{S_PF2 + 3}], s{S_PO2} offen", "pf"),
                lambda: e(f"s_add_u32 s{S_PO1}, s{S_PO1}, 1024"),
                lambda: e(f"s_add_u32 s{S_PO2}, s{S_PO2}, 384")]

    def g_items():
        d0, d1 = V_T + 24, V_T + 25
        L = []
        L.append(f"v_dot2_f32_bf16 v{d0}, v{gx0}, v{gw}, 0")
        L.append(f"v_dot2_f32_bf16 v{d1}, v{gx1}, v{gw}, 0")
        for j in range(1, 8):
            L.append(f"v_dot2_f32_bf16 v{d0}, v{gx0 + j}, v{gw + j}, v{d0}")
            L.append(f"v_dot2_f32_bf16 v{d1}, v{gx1 + j}, v{gw + j}, v{d1}")
        L.append("s_nop 3")
        for sh_ in (1, 2, 4, 8):
            L.append(f"s_nop 0\nv_add_f32_dpp v{d0}, v{d0}, v{d0} row_shr:{sh_} row_mask:0xf bank_mask:0xf bound_ctrl:0")
            L.append(f"s_nop 0\nv_add_f32_dpp v{d1}, v{d1}, v{d1} row_shr:{sh_} row_mask:0xf bank_mask:0xf bound_ctrl:0")
        L.append(f"s_nop 0\nv_add_f32_dpp v{d0}, v{d0}, v{d0} row_bcast:15 row_mask:0xa bank_mask:0xf")
        L.append(f"s_nop 0\nv_add_f32_dpp v{d1}, v{d1}, v{d1} row_bcast:15 row_mask:0xa bank_mask:0xf")
        L.append(f"s_nop 0\nv_add_f32_dpp v{d0}, v{d0}, v{d0} row_bcast:31 row_mask:0xc bank_mask:0xf")
        L.append(f"s_nop 0\nv_add_f32_dpp v{d1}, v{d1}, v{d1} row_bcast:31 row_mask:0xc bank_mask:0xf")
        L.append(f"v_mul_f32 v{d0}, 0xbfb8aa3b, v{d0}")
        L.append(f"v_mul_f32 v{d1}, 0xbfb8aa3b, v{d1}")
        L.append(f"v_exp_f32 v{d0}, v{d0}")
        L.append(f"v_exp_f32 v{d1}, v{d1}\ns_nop 0")
        L.append(f"v_add_f32 v{d0}, 1.0, v{d0}")
        L.append(f"v_add_f32 v{d1}, 1.0, v{d1}")
        L.append(f"v_rcp_f32 v{d0}, v{d0}")
        L.append(f"v_rcp_f32 v{d1}, v{d1}")
        L.append(f"v_mov_b32 v{gw}, 0")
        L.append(f"s_lshl_b32 s{S_T + 1}, s{S_GROW}, 2\ns_add_u32 s{S_T + 1}, s{S_T + 1}, {G_OFF}")
        L.append(f"s_lshl_b32 s{S_T + 3}, s2, 8\ns_add_u32 s{S_T + 3}, s{S_T + 3}, {FLG_OFF}")
        L.append(f"s_mov_b32 s{S_T + 8}, 0\ns_mov_b32 s{S_T + 9}, 0x80000000")
        F = [(lambda x=x: e(x)) for x in L]

        def st():
            e(f"s_mov_b64 exec, s[{S_T + 8}:{S_T + 9}]")
            a.vmem(f"buffer_store_dwordx2 v[{d0}:{d1}], v{gw}, s[{S_WS}:{S_WS + 3}], s{S_T + 1} offen", "gst")
            a.vmem(f"buffer_store_dword v{gw}, v{gw}, s[{S_WS}:{S_WS + 3}], s{S_T + 3} offen", "gst")
            e("s_mov_b64 exec, -1")
        F.append(st)
        return F

    a.wait(["bias"])
    for j in range(nh):
        src = acc(nq + j, 3)
        d = acc(nq + j, 0)
        e(f"v_lshlrev_b32 v{d}, 16, v{src}")
        e(f"v_and_b32 v{d + 1}, 0xffff0000, v{src}")
        e(f"v_lshlrev_b32 v{d + 2}, 16, v{src + 1}")
        e(f"v_and_b32 v{d + 3}, 0xffff0000, v{src + 1}")
    for t in range(4):
        for r in range(4):
            e(f"v_mov_b32 v{acc(t, 0) + r}, {EPS_HEX}")

    def rdB(tt):
        slot = tt % 4
        s = tt % 2
        f = []
        for t in range(13):
            for ins in range(2):
                if t < nq:
                    addr = V_QRD + (t & 3)
                    off = slot * K1_BSLOT + ins * K1_AREA + 1024 * (t >> 2)
                else:
                    addr = V_HRD
                    off = slot * K1_BSLOT + ins * K1_AREA + 32 * (t - nq)
                d = bset(s, t) + 2 * ins
                f.append(lambda d=d, addr=addr, off=off: e(f"ds_read_b64_tr_b16 {ar(d, 2)}, v{addr} offset:{off}"))
        return f

    def aset_of(tt):
        if tt % 2 == 0:
            return ASET["X"]
        return ASET["Y"] if tt % 4 == 1 else ASET["Z"]

    def rdA(aa):
        slot = aa % 2
        f = []
        for hh in range(2):
            base = aset_of(2 * aa + hh)
            for mt in range(4):
                f.append(lambda hh=hh, mt=mt, base=base: e(
                    f"ds_read_b128 {ar(base + 4 * mt)}, v{V_ARD + hh} offset:{slot * 8192 + mt * 2048}"))
        return f

    stamp(a, 1)
    a.wait(["B0", "A0"])
    e("s_barrier")
    stamp(a, 2)
    for fn in rdA(0) + rdB(0):
        fn()
    a.wait(["B1"], lgkm=True)
    e("s_barrier")

    NSTEP = 32

    def step(tt):
        s = tt % 2
        ab = aset_of(tt)
        mf = []
        for t in range(13):
            order = [1, 2, 3, 0] if tt == 0 else [0, 1, 2, 3]
            for mt in order:
                D = vr(acc(t, mt))
                if tt == 0:
                    C = "0" if (typ == 0 and 4 <= t < 8) else vr(acc(t, 0))
                else:
                    C = D
                W = ar(bset(s, t))
                X = ar(ab + 4 * mt)
                if typ == 0 and t < 8:
                    mf.append(f"v_mfma_f32_16x16x32_bf16 {D}, {X}, {W}, {C}")
                else:
                    mf.append(f"v_mfma_f32_16x16x32_bf16 {D}, {W}, {X}, {C}")
        rd = []
        if tt + 1 < NSTEP:
            rd = rdB(tt + 1)
            if tt % 2 == 1:
                rd = rdA((tt + 1) // 2) + rd
        dm = []
        if tt + 4 < NSTEP:
            dm += dmaB(tt + 4)
        if tt % 2 == 0 and tt // 2 + 2 < NSTEP // 2:
            dm += dmaA(tt // 2 + 2)
        if OPT['pf'] and tt % 4 == 1 and tt < 28:
            dm += pf_items()
        if OPT.get('pt') and tt % 4 == 3 and tt < 28:
            dm += pt_items()
        fl = []
        i1 = i2 = 0
        n1, n2 = len(rd), len(dm)
        while i1 < n1 or i2 < n2:
            if i2 < n2 and (i1 >= n1 or i2 * n1 <= i1 * n2):
                fl.append(dm[i2]); i2 += 1
            else:
                fl.append(rd[i1]); i1 += 1
        if tt == NSTEP - 1:
            assert "g" not in a.vm
            fl = g_items()
        interleave(a, mf, fl, 0, 48)
        if tt + 1 < NSTEP:
            tags = []
            if tt + 2 < NSTEP:
                tags.append(f"B{tt + 2}")
            if tt % 2 == 0:
                tags.append(f"A{tt // 2 + 1}")
            a.wait(tags, lgkm=True)
            if tt + 2 < NSTEP:
                e("s_barrier")

    iters = []
    for it in range(8):
        n0 = len(a.lines)
        for tt in range(4 * it, 4 * it + 4):
            step(tt)
        iters.append(a.lines[n0:])
        del a.lines[n0:]
    for it in range(2, 7):
        assert iters[it] == iters[1], f"iteration {it} differs"
    stamp(a, 3)
    a.lines += iters[0]
    stamp(a, 4)
    e(f"s_mov_b32 s{S_CNT}, 6")
    a.label(f"L_k1{T}_loop")
    a.lines += iters[1]
    e(f"s_sub_u32 s{S_CNT}, s{S_CNT}, 1")
    e(f"s_cmp_lg_u32 s{S_CNT}, 0")
    e(f"s_cbranch_scc1 L_k1{T}_loop")
    a.lines += iters[7]
    assert all(not t.startswith(("A", "B")) for t in a.vm), a.vm

    stamp(a, 5)

    def fin():
        stamp(a, 6)
        if DIAG:
            e("s_waitcnt vmcnt(0)")
        stamp(a, 7)
        stamp_dump(a, 0, 8, S_WAVE, S_PTR + 20, S_PTR + 21, V_T)
        e("s_endpgm")
    e(f"s_mov_b32 s{S_L2E}, {L2E_HEX}")
    e(f"s_mov_b32 s{S_L2E + 1}, {L2E_HEX}")
    e(f"s_lshl_b32 s{S_T}, s{S_RB}, 1")
    e(f"s_lshr_b32 s{S_T + 1}, s{S_WAVE}, 1")
    e(f"s_add_u32 s{S_T}, s{S_T}, s{S_T + 1}")
    e(f"s_mul_i32 s{S_AFB}, s{S_T}, {144 * 8192}")
    e(f"s_and_b32 s{S_T + 1}, s{S_WAVE}, 1")
    e(f"s_lshl_b32 s{S_T + 1}, s{S_T + 1}, 12")
    e(f"s_add_u32 s{S_AFB}, s{S_AFB}, s{S_T + 1}")
    e("s_nop 7")
    TT, UU = V_T, V_T + 8

    def phi_group(ra, rb_):
        prs = [ra, ra + 2, rb_, rb_ + 2]
        for j, p in enumerate(prs):
            e(f"v_pk_mul_f32 {vr(TT + 2 * j, 2)}, {vr(p, 2)}, s[{S_L2E}:{S_L2E + 1}]")
        for j in range(8):
            e(f"v_exp_f32_e64 v{TT + j}, v{TT + j} clamp")
        for p in prs:
            e(f"v_max_f32 v{p}, {EPS_HEX}, v{p}")
            e(f"v_max_f32 v{p + 1}, {EPS_HEX}, v{p + 1}")
        for j, p in enumerate(prs):
            e(f"v_pk_add_f32 {vr(p, 2)}, {vr(p, 2)}, {vr(TT + 2 * j, 2)}")
        for j, p in enumerate(prs):
            e(f"v_cvt_pk_bf16_f32 v{ra + j}, v{p}, v{p + 1}")

    def cvt_group(ra, rb_):
        prs = [ra, ra + 2, rb_, rb_ + 2]
        for j, p in enumerate(prs):
            e(f"v_cvt_pk_bf16_f32 v{ra + j}, v{p}, v{p + 1}")

    def mish_group(ra, rb_, split=False):
        prs = [ra, ra + 2, rb_, rb_ + 2]
        for j, p in enumerate(prs):
            e(f"v_pk_mul_f32 {vr(TT + 2 * j, 2)}, {vr(p, 2)}, s[{S_L2E}:{S_L2E + 1}]")
        for j in range(8):
            e(f"v_exp_f32 v{TT + j}, v{TT + j}")
        for j in range(4):
            e(f"v_pk_fma_f32 {vr(UU + 2 * j, 2)}, {vr(TT + 2 * j, 2)}, 0.5, 1.0 op_sel_hi:[1,0,0]")
        for j in range(4):
            e(f"v_pk_fma_f32 {vr(UU + 2 * j, 2)}, {vr(TT + 2 * j, 2)}, {vr(UU + 2 * j, 2)}, 1.0 op_sel_hi:[1,1,0]")
        for j in range(8):
            e(f"v_rcp_f32 v{UU + j}, v{UU + j}")
        for j, p in enumerate(prs):
            e(f"v_pk_fma_f32 {vr(p, 2)}, {vr(UU + 2 * j, 2)}, {vr(p, 2)}, {vr(p, 2)} neg_lo:[1,0,0] neg_hi:[1,0,0]")
        if split:
            e(f"v_cvt_pk_bf16_f32 v{ra}, v{ra}, v{ra + 1}")
            e(f"v_cvt_pk_bf16_f32 v{ra + 1}, v{ra + 2}, v{ra + 3}")
            e(f"v_cvt_pk_bf16_f32 v{rb_}, v{rb_}, v{rb_ + 1}")
            e(f"v_cvt_pk_bf16_f32 v{rb_ + 1}, v{rb_ + 2}, v{rb_ + 3}")
        else:
            for j, p in enumerate(prs):
                e(f"v_cvt_pk_bf16_f32 v{ra + j}, v{p}, v{p + 1}")

    WS = f"s[{S_WS}:{S_WS + 3}]"

    def set_kb(sreg, mul, add):
        e(f"s_mul_i32 s{sreg}, s{S_P}, {mul * 8192}")
        e(f"s_add_u32 s{sreg}, s{sreg}, {add * 8192}")
        e(f"s_add_u32 s{sreg}, s{sreg}, s{S_AFB}")

    def h_full(tA, kbl):
        set_kb(S_T + 2, 7, kbl)
        for mt in range(4):
            mish_group(acc(tA, mt), acc(tA + 1, mt))
            a.vmem(f"buffer_store_dwordx4 {vr(acc(tA, mt))}, v{V_L16}, {WS}, s{S_T + 2} offen offset:{1024 * mt} {OPT['st']}", "st")

    def h_half(tA, kbl, half):
        set_kb(S_T + 2, 7, kbl)
        for mp in range(2):
            mish_group(acc(tA, 2 * mp), acc(tA, 2 * mp + 1), split=True)
            for mt in (2 * mp, 2 * mp + 1):
                a.vmem(f"buffer_store_dwordx2 {vr(acc(tA, mt), 2)}, v{V_L16}, {WS}, s{S_T + 2} offen offset:{1024 * mt + 8 * half} {OPT['st']}", "st")

    if typ == 1:
        for hd in range(2):
            set_kb(S_T + 2, 2, 112 + hd)
            for mt in range(4):
                phi_group(acc(2 * hd, mt), acc(2 * hd + 1, mt))
                a.vmem(f"buffer_store_dwordx4 {vr(acc(2 * hd, mt))}, v{V_L16}, {WS}, s{S_T + 2} offen offset:{1024 * mt} {OPT['st']}", "st")
        h_half(4, 2, 1)
        for j in range(4):
            h_full(5 + 2 * j, 3 + j)
        fin()
        return

    ONES = V_T + 16
    for r in range(4):
        e(f"v_mov_b32 v{ONES + r}, 0x3f803f80")
    for t in range(4):
        for pr in range(2):
            phi_group(acc(t, 2 * pr), acc(t, 2 * pr + 1))
    for t in range(4, 8):
        for pr in range(2):
            cvt_group(acc(t, 2 * pr), acc(t, 2 * pr + 1))
    e("s_nop 1")
    free = [acc(t, m) for t in range(8) for m in (1, 3)]

    def Dt(tau):
        return free[tau]
    for pr in range(2):
        for hd in range(2):
            for dt in range(2):
                for et in range(3):
                    tau = hd * 6 + dt * 3 + et
                    Aop = vr(acc(2 * hd + dt, 2 * pr))
                    Bop = vr(acc(4 + 2 * hd + et, 2 * pr)) if et < 2 else vr(ONES)
                    C = "0" if pr == 0 else vr(Dt(tau))
                    e(f"v_mfma_f32_16x16x32_bf16 {vr(Dt(tau))}, {Aop}, {Bop}, {C}")
    vw, vrd = V_T + 20, V_T + 21
    e(f"v_add_u32 v{vw}, s{S_M0A}, v{V_L16}")
    e(f"s_mul_i32 s{S_T}, s{S_WAVE}, 3072")
    e(f"s_add_u32 s{S_T}, s{S_T}, {K1_ABASE}")
    e(f"v_add_u32 v{vrd}, s{S_T}, v{V_L16}")
    e("s_nop 7")
    for tau in range(12):
        e(f"ds_write_b128 v{vw}, {vr(Dt(tau))} offset:{1024 * tau}")
    h_full(8, 0)
    e("s_waitcnt lgkmcnt(0)")
    e("s_barrier")
    R = [acc(t, m) for t in range(8) for m in (0, 2)]
    for w2 in range(4):
        for j in range(3):
            e(f"ds_read_b128 {vr(R[3 * w2 + j])}, v{vrd} offset:{16384 * w2 + 1024 * j}")
    h_full(10, 1)
    e(f"s_lshl_b32 s{S_T}, s{S_P}, 3")
    e(f"s_add_u32 s{S_T}, s{S_T}, s{S_RB}")
    e(f"s_mul_i32 s{S_T}, s{S_T}, 12288")
    e(f"s_mul_i32 s{S_T + 1}, s{S_WAVE}, 3072")
    e(f"s_add_u32 s{S_T}, s{S_T}, s{S_T + 1}")
    e(f"s_add_u32 s{S_T}, s{S_T}, {KVP_OFF}")
    e("s_waitcnt lgkmcnt(0)")
    for j in range(3):
        for h2 in range(2):
            b0 = R[j] + 2 * h2
            e(f"v_pk_add_f32 {vr(b0, 2)}, {vr(b0, 2)}, {vr(R[3 + j] + 2 * h2, 2)}")
            e(f"v_pk_add_f32 {vr(R[6 + j] + 2 * h2, 2)}, {vr(R[6 + j] + 2 * h2, 2)}, {vr(R[9 + j] + 2 * h2, 2)}")
        for h2 in range(2):
            b0 = R[j] + 2 * h2
            e(f"v_pk_add_f32 {vr(b0, 2)}, {vr(b0, 2)}, {vr(R[6 + j] + 2 * h2, 2)}")
        a.vmem(f"buffer_store_dwordx4 {vr(R[j])}, v{V_L16}, {WS}, s{S_T} offen offset:{1024 * j}", "kvp")
    h_half(12, 2, 0)
    fin()


def gen_k1():
    a = Asm()
    e = a.e
    a.lines.append(".globl k1_kernel\n.p2align 8\n.type k1_kernel,@function\nk1_kernel:")
    e("s_cmp_ge_u32 s2, 256")
    e("s_cbranch_scc1 L_k1_exit")
    e(f"s_load_dwordx16 s[{S_PTR}:{S_PTR + 15}], s[0:1], 0")
    e(f"s_load_dwordx4 s[{S_PTR + 16}:{S_PTR + 19}], s[0:1], 64")
    e(f"s_load_dwordx2 s[{S_PTR + 20}:{S_PTR + 21}], s[0:1], 80")
    e(f"v_and_b32 v{V_LANE}, 63, v0")
    e(f"v_lshrrev_b32 v{V_T}, 6, v0")
    e(f"s_and_b32 s{S_T}, s2, 7")
    e(f"v_readfirstlane_b32 s{S_WAVE}, v{V_T}")
    e(f"s_lshr_b32 s{S_T + 1}, s2, 3")
    if OPT.get('map1', 0) == 0:
        e(f"s_and_b32 s{S_RB}, s{S_T}, 1")
        e(f"s_lshl_b32 s{S_RB}, s{S_RB}, 2")
        e(f"s_and_b32 s{S_T + 2}, s{S_T + 1}, 3")
        e(f"s_add_u32 s{S_RB}, s{S_RB}, s{S_T + 2}")
        e(f"s_lshr_b32 s{S_T}, s{S_T}, 1")
        e(f"s_lshl_b32 s{S_T}, s{S_T}, 3")
        e(f"s_lshr_b32 s{S_T + 1}, s{S_T + 1}, 2")
        e(f"s_add_u32 s{S_T}, s{S_T}, s{S_T + 1}")
    elif OPT['map1'] == 1:
        e(f"s_and_b32 s{S_RB}, s{S_T + 1}, 7")
        e(f"s_lshl_b32 s{S_T}, s{S_T}, 2")
        e(f"s_lshr_b32 s{S_T + 1}, s{S_T + 1}, 3")
        e(f"s_add_u32 s{S_T}, s{S_T}, s{S_T + 1}")
    else:
        e(f"s_and_b32 s{S_RB}, s{S_T}, 3")
        e(f"s_lshl_b32 s{S_RB}, s{S_RB}, 1")
        e(f"s_and_b32 s{S_T + 2}, s{S_T + 1}, 1")
        e(f"s_add_u32 s{S_RB}, s{S_RB}, s{S_T + 2}")
        e(f"s_lshr_b32 s{S_T}, s{S_T}, 2")
        e(f"s_lshl_b32 s{S_T}, s{S_T}, 4")
        e(f"s_lshr_b32 s{S_T + 1}, s{S_T + 1}, 1")
        e(f"s_add_u32 s{S_T}, s{S_T}, s{S_T + 1}")
    e(f"s_lshr_b32 s{S_P}, s{S_T}, 1")
    e(f"s_and_b32 s{S_T + 3}, s{S_T}, 1")
    e(f"s_cmp_lg_u32 s{S_T + 3}, 0")
    e("s_cbranch_scc1 L_k1_typeB")
    k1_body(a, 0)
    a.label("L_k1_typeB")
    a.vm = []
    k1_body(a, 1)
    a.label("L_k1_exit")
    e("s_endpgm")
    return a.lines


def K2_LDS():
    return OPT['S'] * 32768 + 24576


def fold_loops(a, iters, period, scnt, name):
    n = len(iters)
    i = 0
    lab = 0
    while i < n:
        reps = 1
        while i + (reps + 1) * period <= n and all(
                iters[i + k] == iters[i + reps * period + k] for k in range(period)):
            reps += 1
        if reps >= 2:
            a.e(f"s_mov_b32 s{scnt}, {reps}")
            a.label(f"L_{name}_{lab}")
            for k in range(period):
                a.lines += iters[i + k]
            a.e(f"s_sub_u32 s{scnt}, s{scnt}, 1")
            a.e(f"s_cmp_lg_u32 s{scnt}, 0")
            a.e(f"s_cbranch_scc1 L_{name}_{lab}")
            lab += 1
            i += reps * period
        else:
            a.lines += iters[i]
            i += 1


def schedule(a, mf, streams):
    n = len(mf)
    placed = []
    for si, (items, start, end) in enumerate(streams):
        m = len(items)
        prev = 0
        for j, it in enumerate(items):
            fn, early = it if isinstance(it, tuple) else (it, 0)
            pos = start + (j * (end - start)) / max(m, 1)
            pos = max(pos, early, prev)
            prev = pos
            placed.append((pos, si, j, fn))
    placed.sort(key=lambda x: (x[0], x[1], x[2]))
    k = 0
    if n == 0:
        for p in placed:
            p[3]()
        return
    for i in range(n):
        a.e(mf[i])
        while k < len(placed) and placed[k][0] < i + 1:
            placed[k][3]()
            k += 1
    while k < len(placed):
        placed[k][3]()
        k += 1


def gen_k2():
    a = Asm()
    e = a.e
    S = OPT['S']
    n0 = OPT['n0']
    SLOT = 32768
    PBF = OPT['pbf']
    SW2, SWO, SWS, SOUT, SDBG = 4, 8, 12, 16, 20
    SWAVE, SMT, SNT, STILE, SROLE = 24, 25, 26, 27, 28
    SOA, SOB, SOKV, SOP, SM0A, SM0B, SCNT, SRED, SW8 = 29, 30, 31, 32, 33, 34, 35, 58, 59
    SP = 36
    ST = 60
    NBASE = (S + 1) // 2
    VL = 1
    VL16 = 2
    VT = 4
    VG = 14
    VOMG = 18
    VAR = 22
    VBR = 25
    AC = 64
    VBD = 22
    VAD = 26
    VAW = 27
    VFL = 30
    VEPS = 32
    VR = 36
    VOF = 40
    VD = 64
    VP = 64

    def acc2(mt, nt):
        return AC + 16 * mt + 4 * nt

    def FA(j, b, mt):
        return 64 * (j % 2) + 32 * b + 4 * mt

    def FB(j, b, nt):
        return 64 * (j % 2) + 32 * b + 16 + 4 * nt

    def PQ(j, i):
        return 28 * (j % 4) + 4 * i

    def KV(j, i):
        return 28 * (j % 4) + 16 + 4 * i

    a.lines.append(".globl k2_kernel\n.p2align 8\n.type k2_kernel,@function\nk2_kernel:")
    e("s_cmp_ge_u32 s2, 256")
    e("s_cbranch_scc1 L_k2_exit")
    e(f"s_load_dwordx16 s[{SP}:{SP + 15}], s[0:1], 0")
    e(f"s_load_dwordx4 s[{SP + 16}:{SP + 19}], s[0:1], 64")
    e(f"s_load_dwordx2 s[{SP + 20}:{SP + 21}], s[0:1], 80")
    e(f"v_and_b32 v{VL}, 63, v0")
    e(f"v_lshrrev_b32 v{VT}, 6, v0")
    e(f"s_and_b32 s{ST}, s2, 7")
    e(f"v_readfirstlane_b32 s{SW8}, v{VT}")
    e(f"s_lshr_b32 s{ST + 1}, s2, 3")
    if OPT['map'] == 0:
        e(f"s_and_b32 s{SROLE}, s{ST}, 1")
        e(f"s_lshr_b32 s{ST}, s{ST}, 1")
        e(f"s_and_b32 s{SMT}, s{ST}, 1")
        e(f"s_lshl_b32 s{SMT}, s{SMT}, 3")
        e(f"s_and_b32 s{ST + 2}, s{ST + 1}, 7")
        e(f"s_add_u32 s{SMT}, s{SMT}, s{ST + 2}")
        e(f"s_lshr_b32 s{SNT}, s{ST}, 1")
        e(f"s_lshl_b32 s{SNT}, s{SNT}, 2")
        e(f"s_lshr_b32 s{ST + 1}, s{ST + 1}, 3")
        e(f"s_add_u32 s{SNT}, s{SNT}, s{ST + 1}")
    elif OPT['map'] == 2:
        e(f"s_and_b32 s{SROLE}, s{ST}, 1")
        e(f"s_lshr_b32 s{ST}, s{ST}, 1")
        e(f"s_lshl_b32 s{SMT}, s{ST}, 2")
        e(f"s_and_b32 s{ST + 2}, s{ST + 1}, 3")
        e(f"s_add_u32 s{SMT}, s{SMT}, s{ST + 2}")
        e(f"s_lshr_b32 s{SNT}, s{ST + 1}, 2")
    elif OPT['map'] == 3:
        e(f"s_and_b32 s{SROLE}, s{ST}, 1")
        e(f"s_lshr_b32 s{ST}, s{ST}, 1")
        e(f"s_and_b32 s{SMT}, s{ST + 1}, 15")
        e(f"s_lshl_b32 s{SNT}, s{ST}, 1")
        e(f"s_lshr_b32 s{ST + 1}, s{ST + 1}, 4")
        e(f"s_add_u32 s{SNT}, s{SNT}, s{ST + 1}")
    else:
        e(f"s_and_b32 s{SROLE}, s{ST + 1}, 1")
        e(f"s_lshr_b32 s{ST + 1}, s{ST + 1}, 1")
        e(f"s_and_b32 s{SMT}, s{ST}, 3")
        e(f"s_lshl_b32 s{SMT}, s{SMT}, 2")
        e(f"s_and_b32 s{ST + 2}, s{ST + 1}, 3")
        e(f"s_add_u32 s{SMT}, s{SMT}, s{ST + 2}")
        e(f"s_lshr_b32 s{SNT}, s{ST}, 2")
        e(f"s_lshl_b32 s{SNT}, s{SNT}, 2")
        e(f"s_lshr_b32 s{ST + 1}, s{ST + 1}, 2")
        e(f"s_add_u32 s{SNT}, s{SNT}, s{ST + 1}")
    e(f"s_and_b32 s{SWAVE}, s{SW8}, 3")
    e(f"s_lshl_b32 s{STILE}, s{SMT}, 3")
    e(f"s_add_u32 s{STILE}, s{STILE}, s{SNT}")
    vi, vG, t0, t1, t2, t3 = VT, VT + 1, VT + 2, VT + 3, VT + 4, VT + 5
    e(f"v_and_b32 v{vi}, 15, v{VL}")
    e(f"v_lshrrev_b32 v{vG}, 4, v{VL}")
    e(f"v_lshlrev_b32 v{VL16}, 4, v{VL}")
    WS = f"s[{SWS}:{SWS + 3}]"
    DBG = f"s[{SDBG}:{SDBG + 3}]"
    PSZ = 8192 if PBF else 16384
    e(f"s_cmp_lt_u32 s{SW8}, 4")
    e(f"s_cbranch_scc1 L_k2_cons")

    def load_g():
        e(f"v_lshlrev_b32 v{t0}, 2, v{vi}")
        e(f"s_lshl_b32 s{ST}, s{SMT}, 9")
        e(f"s_and_b32 s{ST + 1}, s{SWAVE}, 1")
        e(f"s_lshl_b32 s{ST + 1}, s{ST + 1}, 8")
        e(f"s_add_u32 s{ST}, s{ST}, s{ST + 1}")
        e(f"s_add_u32 s{ST}, s{ST}, {G_OFF}")
        for i in range(4):
            a.vmem(f"buffer_load_dword v{VG + i}, v{t0}, {WS}, s{ST} offen offset:{64 * i}", "g")

    def run_seq(fl):
        for fn in fl:
            n_ = len(a.lines)
            fn()
            if " m0," in a.lines[-1] and len(a.lines) == n_ + 1:
                e("s_nop 0")

    import math
    PERIOD = S * 4 // math.gcd(S, 4)

    if OPT['pprio']:
        e(f"s_setprio {OPT['pprio']}")
    e(f"s_lshl_b32 s{SM0A}, s{SWAVE}, 12")
    e(f"s_add_u32 s{SM0B}, s{SM0A}, 16384")
    e(f"v_add_u32 v{VAD}, s{SM0A}, v{VL16}")
    e(f"s_lshl_b32 s{ST + 2}, s{SNT}, 8")
    e(f"s_lshl_b32 s{ST + 3}, s{SWAVE}, 15")
    e(f"s_add_u32 s{ST + 2}, s{ST + 2}, s{ST + 3}")
    e(f"v_lshlrev_b32 v{t0}, 11, v{vG}")
    e(f"v_add_u32 v{t0}, s{ST + 2}, v{t0}")
    e(f"v_lshlrev_b32 v{t1}, 1, v{vG}")
    e(f"v_xor_b32 v{t1}, v{t1}, v{vi}")
    for j in range(4):
        if j & 1:
            e(f"v_xor_b32 v{t2}, 8, v{t1}")
            e(f"v_lshlrev_b32 v{t2}, 4, v{t2}")
        else:
            e(f"v_lshlrev_b32 v{t2}, 4, v{t1}")
        e(f"v_add_u32 v{t2}, v{t2}, v{t0}")
        e(f"v_add_u32 v{VBD + j}, {j * (8192 - 1024)}, v{t2}")
    e(f"s_mul_i32 s{SOA}, s{SMT}, {144 * 8192}")
    e(f"s_add_u32 s{SOP}, s{SOA}, {112 * 8192}")
    e(f"s_mov_b32 s{SOB}, 0")
    e("s_waitcnt lgkmcnt(0)")
    srd(a, SW2, SP + 12, SP + 13, 3584 * 1024 * 2)
    srd(a, SWS, SP + 20, SP + 21, WS_USED)
    srd(a, SWO, SP + 4, SP + 5, 1024 * 1024 * 2)
    srd(a, SDBG, SP + 18, SP + 19, 256)
    e(f"s_cmp_eq_u32 s{SROLE}, 0")
    e(f"s_cbranch_scc1 L_k2_prod0")

    def producer(role):
        R = f"p{role}"
        nact = n0 if role == 0 else 56 - n0
        N = nact if role == 0 else nact + 16
        SCR = S * SLOT
        if role == 1:
            e(f"s_add_u32 s{SOA}, s{SOA}, {n0 * 16384}")
            e(f"s_mov_b32 s{SOB}, {n0 * 131072}")

        def dmaA(j):
            f = []
            if j == nact:
                def sw():
                    e(f"s_lshl_b32 s{SOA}, s{SMT}, 18")
                    e(f"s_add_u32 s{SOA}, s{SOA}, {OF_OFF}")
                f.append(sw)
            fl = OPT['k2a'] if j < nact else "sc1"
            f.append(lambda: e(f"s_add_u32 m0, s{SM0A}, {(j % S) * SLOT}"))
            for i in range(4):
                f.append(lambda i=i: a.vmem(
                    f"buffer_load_dwordx4 v{VAD}, {WS}, s{SOA} offen offset:{1024 * i} {fl} lds", f"D{j}"))
            f.append(lambda: e(f"s_add_u32 s{SOA}, s{SOA}, 16384"))
            return f

        def dmaB(j):
            sr = SW2 if j < nact else SWO
            f = []
            if j == nact:
                f.append(lambda: e(f"s_mov_b32 s{SOB}, 0"))
            f.append(lambda: e(f"s_add_u32 m0, s{SM0B}, {(j % S) * SLOT}"))
            for i in range(4):
                f.append(lambda i=i: a.vmem(
                    f"buffer_load_dwordx4 v{VBD + i}, s[{sr}:{sr + 3}], s{SOB} offen offset:{1024 * i} {OPT['k2b']} lds", f"D{j}"))
            f.append(lambda: e(f"s_add_u32 s{SOB}, s{SOB}, 131072"))
            return f

        def dma_stage(j):
            return dmaA(j) + dmaB(j)

        for j in range(S - 1):
            run_seq(dma_stage(j))
        a.wait(["D0"])
        e("s_barrier")

        JP = N - OPT['pj']
        assert JP - (1 if PBF else 2) + S >= N and OPT['pj'] >= 1
        JO = nact - (S - 1)

        def interval(j):
            lg = False
            if role == 1 and j == JO - 3:
                e(f"s_lshl_b32 s{ST}, s{SMT}, 8")
                e(f"s_add_u32 s{ST}, s{ST}, {FLG_OFF}")
                e(f"v_mov_b32 v{VFL + 1}, s{ST}")
                a.vmem(f"buffer_load_dword v{VFL}, v{VFL + 1}, {WS}, 0 offen sc1", "F")
            if role == 1 and j == JO:
                a.wait(["F"])
                a.label("L_k2_kvwait")
                e(f"v_readfirstlane_b32 s{ST}, v{VFL}")
                e("s_nop 3")
                e(f"s_cmp_ge_u32 s{ST}, 64")
                e("s_cbranch_scc1 L_k2_kvok")
                e("s_sleep 8")
                e(f"buffer_load_dword v{VFL}, v{VFL + 1}, {WS}, 0 offen sc1")
                e("s_waitcnt vmcnt(0)")
                e("s_branch L_k2_kvwait")
                a.label("L_k2_kvok")
            if j + S - 1 < N:
                run_seq(dma_stage(j + S - 1))
            if role == 1 and j == JP:
                e(f"s_lshl_b32 s{ST}, s{STILE}, 8")
                e(f"s_add_u32 s{ST}, s{ST}, {FLG_OFF + 4096}")
                e(f"v_mov_b32 v{VFL + 1}, s{ST}")
                a.label("L_k2_pwait")
                e(f"buffer_load_dword v{VFL}, v{VFL + 1}, {WS}, 0 offen sc1")
                e("s_waitcnt vmcnt(0)")
                a.vm = []
                e(f"v_readfirstlane_b32 s{ST}, v{VFL}")
                e("s_nop 3")
                e(f"s_cmp_lg_u32 s{ST}, 0")
                e("s_cbranch_scc1 L_k2_pok")
                e("s_sleep 4")
                e("s_branch L_k2_pwait")
                a.label("L_k2_pok")
                e(f"s_lshl_b32 s{ST}, s{STILE}, 16")
                e(f"s_mul_i32 s{ST + 1}, s{SWAVE}, {PSZ}")
                e(f"s_add_u32 s{ST}, s{ST}, s{ST + 1}")
                e(f"s_add_u32 s{ST}, s{ST}, {PART_OFF}")
                ps = [(JP - 2) % S, (JP - 1) % S]
                if PBF:
                    e(f"s_add_u32 s{ST + 1}, s{ST + 1}, {ps[1] * SLOT}")
                else:
                    e(f"s_and_b32 s{ST + 1}, s{SWAVE}, 1")
                    e(f"s_lshl_b32 s{ST + 1}, s{ST + 1}, 14")
                    e(f"s_cmp_lt_u32 s{SWAVE}, 2")
                    e(f"s_mov_b32 s{ST + 3}, {ps[1] * SLOT}")
                    e(f"s_cselect_b32 s{ST + 2}, {ps[0] * SLOT}, s{ST + 3}")
                    e(f"s_add_u32 s{ST + 1}, s{ST + 1}, s{ST + 2}")
                for q in range(PSZ // 1024):
                    if q & 3 == 0:
                        e(f"s_add_u32 m0, s{ST + 1}, {1024 * q}")
                        e("s_nop 0")
                    a.vmem(f"buffer_load_dwordx4 v{VL16}, {WS}, s{ST} offen offset:{1024 * (q & 3)} sc1 lds", "PT")
                    if q & 3 == 3:
                        e(f"s_add_u32 s{ST}, s{ST}, 4096")
            if j + 1 < N:
                a.wait([f"D{j + 1}"], lgkm=lg)
                e("s_barrier")

        iters = []
        for j in range(N):
            n_ = len(a.lines)
            interval(j)
            iters.append(a.lines[n_:])
            del a.lines[n_:]
        fold_loops(a, iters, PERIOD, SCNT, f"k2{R}")
        if role == 1:
            e("s_waitcnt vmcnt(0)")
            e("s_barrier")
        e("s_endpgm")

    producer(1)
    a.label("L_k2_prod0")
    a.vm = []
    producer(0)

    a.label("L_k2_cons")
    a.vm = []
    if OPT['cprio']:
        e(f"s_setprio {OPT['cprio']}")
    SCR = S * SLOT
    CG = 40
    CR = 44
    CKV = 48
    CEPS = 60
    CW = 38
    SHD, SM2 = SOKV, SRED
    e(f"s_and_b32 s{SHD}, s2, 31")
    e(f"s_lshr_b32 s{SM2}, s2, 5")
    e(f"s_lshl_b32 s{SM2}, s{SM2}, 1")
    e(f"s_lshr_b32 s{ST}, s{SWAVE}, 1")
    e(f"s_add_u32 s{SM2}, s{SM2}, s{ST}")
    e(f"s_lshr_b32 s{ST}, s{SHD}, 1")
    e(f"s_lshl_b32 s{ST}, s{ST}, 3")
    e(f"s_lshl_b32 s{ST + 1}, s{SWAVE}, 1")
    e(f"s_add_u32 s{ST}, s{ST}, s{ST + 1}")
    e(f"s_mul_i32 s{ST}, s{ST}, 12")
    e(f"s_and_b32 s{ST + 1}, s{SHD}, 1")
    e(f"s_mul_i32 s{ST + 1}, s{ST + 1}, 6")
    e(f"s_add_u32 s{ST}, s{ST}, s{ST + 1}")
    e(f"s_lshl_b32 s{ST}, s{ST}, 10")
    e(f"s_add_u32 s{ST}, s{ST}, {KVP_OFF}")
    e("s_waitcnt lgkmcnt(0)")
    srd(a, SWS, SP + 20, SP + 21, WS_USED)
    for r2 in range(2):
        for t6 in range(6):
            if t6 == 3:
                e(f"s_add_u32 s{ST}, s{ST}, 3072")
            a.vmem(f"buffer_load_dwordx4 {vr(VP + 24 * r2 + 4 * t6)}, v{VL16}, {WS}, s{ST} offen offset:{1024 * (t6 % 3)}", "kvp")
        if r2 == 0:
            e(f"s_add_u32 s{ST}, s{ST}, {12288 - 3072}")
    e(f"s_mul_i32 s{ST}, s{SM2}, 144")
    e(f"s_add_u32 s{ST}, s{ST}, s{SHD}")
    e(f"s_add_u32 s{ST}, s{ST}, 112")
    e(f"s_lshl_b32 s{ST}, s{ST}, 13")
    e(f"s_and_b32 s{ST + 1}, s{SWAVE}, 1")
    e(f"s_lshl_b32 s{ST + 1}, s{ST + 1}, 12")
    e(f"s_add_u32 s{ST}, s{ST}, s{ST + 1}")
    for i in range(4):
        a.vmem(f"buffer_load_dwordx4 {ar(64 + 4 * i)}, v{VL16}, {WS}, s{ST} offen offset:{1024 * i}", "pq")
    e(f"s_lshl_b32 s{SOP}, s{SM2}, 5")
    e(f"s_add_u32 s{SOP}, s{SOP}, s{SHD}")
    e(f"s_lshl_b32 s{SOP}, s{SOP}, 13")
    e(f"s_add_u32 s{SOP}, s{SOP}, s{ST + 1}")
    e(f"s_add_u32 s{SOP}, s{SOP}, {OF_OFF}")
    e(f"v_lshlrev_b32 v{t0}, 2, v{vi}")
    e(f"s_lshl_b32 s{ST}, s{SM2}, 9")
    e(f"s_lshr_b32 s{ST + 1}, s{ST + 1}, 4")
    e(f"s_add_u32 s{ST}, s{ST}, s{ST + 1}")
    e(f"s_add_u32 s{ST}, s{ST}, {G_OFF}")
    for i in range(4):
        a.vmem(f"buffer_load_dword v{CG + i}, v{t0}, {WS}, s{ST} offen offset:{64 * i}", "pq")
    load_g()
    srd(a, SOUT, SP + 16, SP + 17, 2048 * 1024 * 2)
    for r in range(4):
        e(f"v_mov_b32 v{CEPS + r}, {EPS_HEX}")
    e(f"s_mul_i32 s{ST}, s{SWAVE}, 6144")
    e(f"s_add_u32 s{ST}, s{ST}, {SCR}")
    e(f"v_add_u32 v{CW}, s{ST}, v{VL16}")
    e(f"v_add_u32 v{CW + 1}, {SCR}, v{VL16}")
    e(f"s_and_b32 s{ST}, s{SWAVE}, 1")
    e(f"s_lshl_b32 s{ST}, s{ST}, 12")
    e(f"v_add_u32 v{VAR}, s{ST}, v{VL16}")
    for k in range(1, NBASE):
        e(f"v_add_u32 v{VAR + k}, {65536 * k}, v{VAR}")
    e(f"v_lshlrev_b32 v{t0}, 2, v{vG}")
    e(f"v_lshrrev_b32 v{t1}, 2, v{vi}")
    e(f"v_add_u32 v{t0}, v{t0}, v{t1}")
    e(f"v_and_b32 v{t1}, 7, v{t0}")
    e(f"s_lshr_b32 s{ST}, s{SWAVE}, 1")
    e(f"s_lshl_b32 s{ST}, s{ST}, 2")
    e(f"v_xor_b32 v{t1}, s{ST}, v{t1}")
    e(f"v_lshlrev_b32 v{t0}, 8, v{t0}")
    e(f"v_and_b32 v{t2}, 3, v{vi}")
    e(f"v_lshlrev_b32 v{t2}, 3, v{t2}")
    e(f"v_add_u32 v{t0}, v{t0}, v{t2}")
    e(f"v_add_u32 v{t0}, 16384, v{t0}")
    for nt in range(4):
        e(f"v_xor_b32 v{t3}, {nt}, v{t1}")
        e(f"v_lshlrev_b32 v{t3}, 5, v{t3}")
        e(f"v_add_u32 v{VBR + nt}, v{t0}, v{t3}")
        for k in range(1, NBASE):
            e(f"v_add_u32 v{VBR + 4 * k + nt}, {65536 * k}, v{VBR + nt}")
    e(f"s_cmp_eq_u32 s{SROLE}, 0")
    e(f"s_cbranch_scc1 L_k2_cons0")

    def consumer(role):
        R = f"c{role}"
        nact = n0 if role == 0 else 56 - n0
        N = nact if role == 0 else nact + 16
        stamp(a, 0)
        a.wait(["kvp"])
        for q in range(12):
            e(f"v_pk_add_f32 {vr(VP + 2 * q, 2)}, {vr(VP + 2 * q, 2)}, {vr(VP + 24 + 2 * q, 2)}")
        for t6 in range(6):
            e(f"ds_write_b128 v{CW}, {vr(VP + 4 * t6)} offset:{1024 * t6}")
        e("s_waitcnt lgkmcnt(0)")
        stamp(a, 1)
        e("s_barrier")
        stamp(a, 2)

        def produce():
            for dt in range(2):
                for w2 in range(4):
                    for et in range(3):
                        e(f"ds_read_b128 {vr(VP + 12 * w2 + 4 * et)}, v{CW + 1} offset:{6144 * w2 + 1024 * (3 * dt + et)}")
                if dt == 0:
                    for fn in reads(0):
                        fn()
                e("s_waitcnt lgkmcnt(0)")
                for q in range(6):
                    e(f"v_pk_add_f32 {vr(VP + 2 * q, 2)}, {vr(VP + 2 * q, 2)}, {vr(VP + 12 + 2 * q, 2)}")
                    e(f"v_pk_add_f32 {vr(VP + 24 + 2 * q, 2)}, {vr(VP + 24 + 2 * q, 2)}, {vr(VP + 36 + 2 * q, 2)}")
                for q in range(6):
                    e(f"v_pk_add_f32 {vr(VP + 2 * q, 2)}, {vr(VP + 2 * q, 2)}, {vr(VP + 24 + 2 * q, 2)}")
                for et in range(3):
                    for h2 in range(2):
                        e(f"v_cvt_pk_bf16_f32 v{CKV + 4 * et + 2 * dt + h2}, v{VP + 4 * et + 2 * h2}, v{VP + 4 * et + 2 * h2 + 1}")
            a.wait(["pq", "g"])
            e("s_nop 1")
            for i in range(4):
                d = VD + 12 * i
                pq = ar(64 + 4 * i)
                e(f"v_mfma_f32_16x16x32_bf16 {vr(d + 8)}, {vr(CKV + 8)}, {pq}, {vr(CEPS)}")
                e(f"v_mfma_f32_16x16x32_bf16 {vr(d)}, {vr(CKV)}, {pq}, 0")
                e(f"v_mfma_f32_16x16x32_bf16 {vr(d + 4)}, {vr(CKV + 4)}, {pq}, 0")
            for i in range(4):
                e(f"v_sub_f32 v{VOMG + i}, 1.0, v{VG + i}")
            e("s_nop 3")
            for i in range(4):
                e(f"v_rcp_f32 v{CR + i}, v{VD + 12 * i + 8}")
            e("s_nop 0")
            for i in range(4):
                e(f"v_mul_f32 v{CR + i}, v{CR + i}, v{CG + i}")
            for i in range(4):
                d = VD + 12 * i
                sel = "op_sel:[0,1] op_sel_hi:[1,1]" if i & 1 else "op_sel_hi:[1,0]"
                for q in range(4):
                    e(f"v_pk_mul_f32 {vr(d + 2 * q, 2)}, {vr(d + 2 * q, 2)}, {vr(CR + (i & 2), 2)} {sel}")
                o = 112 + 4 * i
                for q in range(4):
                    e(f"v_cvt_pk_bf16_f32 v{o + q}, v{d + 2 * q}, v{d + 2 * q + 1}")
                a.vmem(f"buffer_store_dwordx4 {vr(o)}, v{VL16}, {WS}, s{SOP} offen offset:{1024 * i} sc1", "ost")

        def reads(j):
            sl = j % S
            k, so = sl // 2, (sl % 2) * SLOT
            f = []
            for q in range(4):
                for b in range(2):
                    f.append(lambda b=b, q=q: e(
                        f"ds_read_b128 {ar(FA(j, b, q))}, v{VAR + k} offset:{so + 8192 * b + 1024 * q}"))
                    for ins in range(2):
                        f.append(lambda b=b, q=q, ins=ins: e(
                            f"ds_read_b64_tr_b16 {ar(FB(j, b, q) + 2 * ins, 2)}, v{VBR + 4 * k + q} offset:{so + 8192 * b + 4096 * ins}"))
            return f

        def interval(j):
            main = []
            if j >= 1:
                for mt in range(4):
                    for nt in range(4):
                        D = vr(acc2(mt, nt))
                        for b in range(2):
                            C = "0" if (j == 1 and b == 0) else D
                            main.append(f"v_mfma_f32_16x16x32_bf16 {D}, {ar(FB(j - 1, b, nt))}, {ar(FA(j - 1, b, mt))}, {C}")
            rd = reads(j) if j < N else []
            if j == 0:
                produce()
                rd = []
            if j == 5:
                a.wait(["ost"])
                e(f"s_lshl_b32 s{ST}, s{SM2}, 8")
                e(f"s_add_u32 s{ST}, s{ST}, {FLG_OFF}")
                e(f"v_mov_b32 v{CW}, 1")
                e(f"v_mov_b32 v{CW + 1}, s{ST}")
                e("s_mov_b64 exec, 1")
                e(f"buffer_atomic_add v{CW}, v{CW + 1}, {WS}, 0 offen")
                e("s_mov_b64 exec, -1")
            if role == 1 and j == nact + 1:
                e("s_nop 7")
                for mt in range(4):
                    for q in range(16):
                        b0 = acc2(mt, 0) + q
                        e(f"v_mul_f32 v{b0}, v{VOMG + mt}, v{b0}")
                e("s_nop 1")
            schedule(a, main, [(rd, 0, OPT['rdend'])])
            if j < N:
                e("s_waitcnt lgkmcnt(0)")
                if j + 1 < N:
                    e("s_barrier")

        iters = []
        for j in range(N + 1):
            n_ = len(a.lines)
            if j == 4:
                stamp(a, 3)
            if role == 1 and j == nact:
                stamp(a, 4)
            interval(j)
            iters.append(a.lines[n_:])
            del a.lines[n_:]
        fold_loops(a, iters, PERIOD, SCNT, f"k2{R}")
        if role == 0:
            stamp(a, 4)
        stamp(a, 5)
        if role == 0:
            e(f"s_lshl_b32 s{ST}, s{STILE}, 16")
            e(f"s_mul_i32 s{ST + 1}, s{SWAVE}, {PSZ}")
            e(f"s_add_u32 s{ST}, s{ST}, s{ST + 1}")
            e(f"s_add_u32 s{ST}, s{ST}, {PART_OFF}")
            e("s_nop 7")
            if PBF:
                for q in range(8):
                    b0 = AC + 8 * q
                    for r in range(4):
                        e(f"v_cvt_pk_bf16_f32 v{b0 + r}, v{b0 + 2 * r}, v{b0 + 2 * r + 1}")
                    e(f"buffer_store_dwordx4 {vr(b0)}, v{VL16}, {WS}, s{ST} offen offset:{1024 * (q & 3)} sc1")
                    if q & 3 == 3:
                        e(f"s_add_u32 s{ST}, s{ST}, 4096")
            else:
                for q in range(16):
                    e(f"buffer_store_dwordx4 {vr(AC + 4 * q)}, v{VL16}, {WS}, s{ST} offen offset:{1024 * (q & 3)} sc1")
                    if q & 3 == 3:
                        e(f"s_add_u32 s{ST}, s{ST}, 4096")
            e(f"s_lshl_b32 s{ST}, s{STILE}, 8")
            e(f"s_add_u32 s{ST}, s{ST}, {FLG_OFF + 4096}")
            e(f"v_mov_b32 v{VT + 1}, s{ST}")
            e(f"v_mov_b32 v{VT}, 1")
            e("s_waitcnt vmcnt(0)")
            e("s_barrier")
            stamp(a, 6)
            e(f"s_cmp_lg_u32 s{SWAVE}, 0")
            e(f"s_cbranch_scc1 L_k2_p0end")
            e("s_mov_b64 exec, 1")
            e(f"buffer_store_dword v{VT}, v{VT + 1}, {WS}, 0 offen sc1")
            e("s_mov_b64 exec, -1")
            a.label("L_k2_p0end")
        else:
            JP = N - OPT['pj']
            ps = [(JP - 2) % S, (JP - 1) % S]
            vo, vpr = VT + 6, VT + 7
            e(f"v_and_b32 v{t2}, 15, v{VL}")
            e(f"v_lshlrev_b32 v{t2}, 11, v{t2}")
            e(f"v_bfe_u32 v{t3}, v{VL}, 4, 1")
            e(f"v_lshlrev_b32 v{t3}, 5, v{t3}")
            e(f"v_add_u32 v{t2}, v{t2}, v{t3}")
            e(f"v_lshrrev_b32 v{t3}, 5, v{VL}")
            e(f"v_lshlrev_b32 v{t3}, 4, v{t3}")
            e(f"v_add_u32 v{vo}, v{t2}, v{t3}")
            if PBF:
                e(f"s_mul_i32 s{ST + 1}, s{SWAVE}, {PSZ}")
                e(f"s_add_u32 s{ST + 1}, s{ST + 1}, {ps[1] * SLOT}")
            else:
                e(f"s_and_b32 s{ST + 1}, s{SWAVE}, 1")
                e(f"s_lshl_b32 s{ST + 1}, s{ST + 1}, 14")
                e(f"s_cmp_lt_u32 s{SWAVE}, 2")
                e(f"s_mov_b32 s{ST + 3}, {ps[1] * SLOT}")
                e(f"s_cselect_b32 s{ST + 2}, {ps[0] * SLOT}, s{ST + 3}")
                e(f"s_add_u32 s{ST + 1}, s{ST + 1}, s{ST + 2}")
            e(f"v_add_u32 v{vpr}, s{ST + 1}, v{VL16}")
            e(f"s_lshl_b32 s{ST}, s{SMT}, 7")
            e(f"s_and_b32 s{ST + 1}, s{SWAVE}, 1")
            e(f"s_lshl_b32 s{ST + 1}, s{ST + 1}, 6")
            e(f"s_add_u32 s{ST}, s{ST}, s{ST + 1}")
            e(f"s_lshl_b32 s{ST}, s{ST}, 11")
            e(f"s_lshl_b32 s{ST + 1}, s{SNT}, 8")
            e(f"s_add_u32 s{ST}, s{ST}, s{ST + 1}")
            e(f"s_lshr_b32 s{ST + 1}, s{SWAVE}, 1")
            e(f"s_lshl_b32 s{ST + 1}, s{ST + 1}, 7")
            e(f"s_add_u32 s{ST}, s{ST}, s{ST + 1}")
            e("s_barrier")
            PT = 24
            for mh2 in range(2):
                if PBF:
                    for q in range(4):
                        e(f"ds_read_b128 {vr(PT + 4 * q)}, v{vpr} offset:{1024 * (4 * mh2 + q)}")
                else:
                    for q in range(8):
                        e(f"ds_read_b128 {vr(PT + 4 * q)}, v{vpr} offset:{1024 * (8 * mh2 + q)}")
                e("s_waitcnt lgkmcnt(0)")
                for m2 in range(2):
                    mt = 2 * mh2 + m2
                    if PBF:
                        for q in range(8):
                            b0 = acc2(mt, 0) + 2 * q
                            p0 = PT + 8 * m2 + q
                            e(f"v_lshlrev_b32 v{PT + 16}, 16, v{p0}")
                            e(f"v_and_b32 v{PT + 17}, 0xffff0000, v{p0}")
                            e(f"v_fmac_f32 v{b0}, v{VOMG + mt}, v{PT + 16}")
                            e(f"v_fmac_f32 v{b0 + 1}, v{VOMG + mt}, v{PT + 17}")
                    else:
                        sel = "op_sel:[1,0,0] op_sel_hi:[1,1,1]" if mt & 1 else "op_sel_hi:[0,1,1]"
                        for q in range(8):
                            b0 = acc2(mt, 0) + 2 * q
                            p0 = PT + 16 * m2 + 2 * q
                            e(f"v_pk_fma_f32 {vr(b0, 2)}, {vr(VOMG + (mt & 2), 2)}, {vr(p0, 2)}, {vr(b0, 2)} {sel}")
                    for pr in range(2):
                        b0 = acc2(mt, 2 * pr)
                        for q in range(4):
                            e(f"v_cvt_pk_bf16_f32 v{b0 + q}, v{b0 + 2 * q}, v{b0 + 2 * q + 1}")
                    e("s_nop 1")
                    for pr in range(2):
                        b0 = acc2(mt, 2 * pr)
                        e(f"v_permlane16_swap_b32 v{b0}, v{b0 + 2}")
                        e(f"v_permlane16_swap_b32 v{b0 + 1}, v{b0 + 3}")
                    for pr in range(2):
                        b0 = acc2(mt, 2 * pr)
                        e(f"buffer_store_dwordx4 {vr(b0)}, v{vo}, s[{SOUT}:{SOUT + 3}], s{ST} offen offset:{64 * pr}")
                    if mt < 3:
                        e(f"s_add_u32 s{ST}, s{ST}, 32768")
            stamp(a, 6)
        if DIAG:
            e("s_waitcnt vmcnt(0)")
        stamp(a, 7)
        stamp_dump(a, 1, 8, SWAVE, SP + 20, SP + 21, VT + 8)
        e("s_endpgm")

    vm_save = list(a.vm)
    consumer(1)
    a.label("L_k2_cons0")
    a.vm = vm_save
    consumer(0)
    a.label("L_k2_exit")
    e("s_endpgm")
    return a.lines


def fix_hazards(lines):
    out = []
    for i, ln in enumerate(lines):
        out.append(ln)
        if " m0," in ln and i + 1 < len(lines) and lines[i + 1].rstrip().endswith("lds"):
            out.append("  s_nop 0")
    return out


def kd(name, nfv, accum):
    return f""".amdhsa_kernel {name}
  .amdhsa_next_free_vgpr {nfv}
  .amdhsa_next_free_sgpr 102
  .amdhsa_accum_offset {accum}
  .amdhsa_group_segment_fixed_size 0
  .amdhsa_kernarg_size 88
  .amdhsa_user_sgpr_count 2
  .amdhsa_user_sgpr_kernarg_segment_ptr 1
  .amdhsa_system_sgpr_workgroup_id_x 1
.end_amdhsa_kernel"""


def main(path):
    hdr = open(f"cdna_kernels/{NAME}.s.ref").read().split("; Override launch")[0]
    out = [hdr.rstrip("\n")]
    out.append(f"; @launch kernel=k1_kernel grid=(256,1,1) block=(256,1,1) lds={K1_LDS}")
    out.append(f"; @launch kernel=k2_kernel grid=(256,1,1) block=(512,1,1) lds={K2_LDS()}")
    out.append('.amdgcn_target "amdgcn-amd-amdhsa--gfx950"')
    out.append(".text")
    out += fix_hazards(gen_k1())
    out += fix_hazards(gen_k2())
    out.append('.section .rodata,"a"')
    out.append(".p2align 6")
    out.append(kd("k1_kernel", 256 + 152, 256))
    out.append(".p2align 6")
    out.append(kd("k2_kernel", 256, 128))
    open(path, "w").write("\n".join(out) + "\n")


if __name__ == "__main__":
    if "--diag" in sys.argv:
        DIAG = True
        sys.argv.remove("--diag")
    for arg in list(sys.argv):
        if "=" in arg:
            k_, v_ = arg.split("=")
            OPT[k_] = int(v_) if v_.isdigit() else v_.replace("+", " ")
            sys.argv.remove(arg)
    main(sys.argv[1] if len(sys.argv) > 1 else f"cdna_kernels/{NAME}.s")
```

```python
import sys

NAME = "gated_mix__linear_attn_block__dense_activation_mish__prompt"

AF_OFF = 0
AF_BYTES = 16 * 144 * 8 * 1024
KVP_OFF = AF_BYTES
KVP_BYTES = 16 * 8 * 12 * 1024
KVF_OFF = KVP_OFF + KVP_BYTES
KVF_BYTES = 32 * 3 * 1024
G_OFF = KVF_OFF + KVF_BYTES
PART_OFF = G_OFF + 8192
OF_OFF = PART_OFF + 128 * 65536
FLG_OFF = OF_OFF + 16 * 32 * 8192
WS_USED = FLG_OFF + 144 * 256

DIAG = False
DBGOUT = False
OPT = dict(k1a="", k1b="", k2a="", k2b="", st="", pf=1, n0=33, map=2, S=4, pbf=1, pj=2, pprio=0, cprio=0, rdend=26)
DIAG_OFF = 0x2000000
EPS_HEX = "0x358637bd"
L2E_HEX = "0x3fb8aa3b"


class Asm:
    def __init__(self):
        self.lines = []
        self.vm = []

    def e(self, s):
        for ln in s.split("\n"):
            self.lines.append("  " + ln.strip())

    def label(self, s):
        self.lines.append(s + ":")

    def vmem(self, s, tag):
        self.e(s)
        self.vm.append(tag)

    def mark(self, tag):
        self.vm.append("#" + tag)

    def vm_count(self, tags, drop=True):
        idx = -1
        for i, t in enumerate(self.vm):
            if t in tags:
                idx = i
        if idx < 0:
            return None
        n = sum(1 for t in self.vm[idx + 1:] if not t.startswith("#"))
        if drop:
            self.vm = self.vm[idx + 1:]
        assert n <= 63, n
        return n

    def wait(self, tags=(), lgkm=False):
        n = self.vm_count(tags) if tags else None
        parts = []
        if n is not None:
            parts.append(f"vmcnt({n})")
        if lgkm:
            parts.append("lgkmcnt(0)")
        if parts:
            self.e("s_waitcnt " + " ".join(parts))


def stamp(a, idx, sbase=80):
    if not DIAG:
        return
    a.e(f"s_memtime s[{sbase - 4}:{sbase - 3}]")
    a.e(f"s_memrealtime s[{sbase - 2}:{sbase - 1}]")
    a.e("s_waitcnt lgkmcnt(0)")
    a.e(f"s_mov_b32 s{sbase + 2 * idx}, s{sbase - 4}")
    a.e(f"s_mov_b32 s{sbase + 2 * idx + 1}, s{sbase - 2}")


def stamp_dump(a, kidx, n, swave, sptr_lo, sptr_hi, vtmp, sbase=80):
    if not DIAG:
        return
    e = a.e
    e(f"s_mov_b32 s{sbase - 4}, s{sptr_lo}")
    e(f"s_and_b32 s{sbase - 3}, s{sptr_hi}, 0xffff")
    e(f"s_mov_b32 s{sbase - 2}, 0x4000000")
    e(f"s_mov_b32 s{sbase - 1}, 0x20000")
    e(f"s_lshl_b32 s75, s2, 2")
    e(f"s_add_u32 s75, s75, s{swave}")
    e(f"s_lshl_b32 s75, s75, 7")
    e(f"s_add_u32 s75, s75, {DIAG_OFF + kidx * 0x100000}")
    e(f"v_mov_b32 v{vtmp}, 0")
    e("s_mov_b64 exec, 1")
    for i in range(2 * n):
        e(f"v_mov_b32 v{vtmp + 1}, s{sbase + i}")
        e(f"buffer_store_dword v{vtmp + 1}, v{vtmp}, s[{sbase - 4}:{sbase - 1}], s75 offen offset:{4 * i}")
        e("s_nop 1")
    e("s_mov_b64 exec, -1")
    if DBGOUT:
        lab = f"L_dbg_{len(a.lines)}"
        e(f"s_cmp_lg_u32 s2, 1")
        e(f"s_cbranch_scc1 {lab}")
        e(f"s_cmp_lg_u32 s{swave}, 0")
        e(f"s_cbranch_scc1 {lab}")
        e(f"s_mov_b32 s{sbase - 4}, s{sptr_lo - 2}")
        e(f"s_and_b32 s{sbase - 3}, s{sptr_hi - 2}, 0xffff")
        e(f"s_mov_b32 s{sbase - 2}, 256")
        e("s_mov_b64 exec, 1")
        for i in range(n):
            e(f"v_mov_b32 v{vtmp + 1}, s{sbase + 2 * i + 1}")
            e(f"buffer_store_dword v{vtmp + 1}, v{vtmp}, s[{sbase - 4}:{sbase - 1}], 0 offen offset:{4 * i + 32 * kidx}")
            e("s_nop 1")
        e("s_mov_b64 exec, -1")
        a.label(lab)


def vr(b, n=4):
    return f"v[{b}:{b + n - 1}]"


def ar(b, n=4):
    return f"a[{b}:{b + n - 1}]"


def interleave(a, mf, fillers, start=0, end=None):
    n = len(mf)
    if end is None:
        end = n
    nf = len(fillers)
    pos = [start + (j * (end - start)) // max(nf, 1) for j in range(nf)]
    j = 0
    for m in range(n):
        a.e(mf[m])
        while j < nf and pos[j] <= m:
            f = fillers[j]
            f()
            j += 1
    while j < nf:
        fillers[j]()
        j += 1


def srd(a, d, lo, hi, nbytes, bias=0):
    if bias:
        a.e(f"s_sub_u32 s{d}, s{lo}, {bias}")
        a.e(f"s_subb_u32 s{d + 1}, s{hi}, 0")
        a.e(f"s_and_b32 s{d + 1}, s{d + 1}, 0xffff")
    else:
        a.e(f"s_mov_b32 s{d}, s{lo}")
        a.e(f"s_and_b32 s{d + 1}, s{hi}, 0xffff")
    a.e(f"s_mov_b32 s{d + 2}, {nbytes + bias}")
    a.e(f"s_mov_b32 s{d + 3}, 0x20000")


K1_BSLOT = 13312
K1_AREA = 3328
K1_ABASE = 4 * K1_BSLOT
K1_LDS = K1_ABASE + 4 * 16384
ACC0 = 48


def acc(t, mt):
    return ACC0 + 16 * t + 4 * mt


V_LANE = 1
V_ARD = 2
V_QRD = 4
V_HRD = 8
V_ADMA = 9
V_BDMA = 13
V_L16 = 17
V_T = 18
S_X, S_Q, S_W1, S_WS, S_MISC = 4, 8, 12, 16, 20
S_WAVE, S_RB, S_P = 24, 25, 26
S_OFFA, S_OFFA2, S_OFFQ, S_OFFH = 27, 28, 29, 30
S_M0B, S_M0A = 31, 32
S_CNT = 33
S_QM = 34
S_PTR = 36
S_L2E = 58
S_T = 60
S_AFB = 72
S_GROW = 73
S_PO1, S_PO2 = 74, 3
S_PT, S_PTE = 100, 101
S_PF1, S_PF2 = 96, 20


def bset(s, t):
    return 52 * s + 4 * t


ASET = {"X": 104, "Y": 120, "Z": 136}


def k1_body(a, typ):
    T = "A" if typ == 0 else "B"
    nq = 8 if typ == 0 else 4
    nh = 13 - nq
    Ph = 2 * nh
    HB = 256 * nq
    e = a.e
    vi, vG, t0, t1, t2, t3 = V_T, V_T + 1, V_T + 2, V_T + 3, V_T + 4, V_T + 5
    e(f"v_and_b32 v{vi}, 15, v{V_LANE}")
    e(f"v_lshrrev_b32 v{vG}, 4, v{V_LANE}")
    e(f"s_mul_i32 s{S_T + 2}, s{S_P}, 448")
    if typ:
        e(f"s_add_u32 s{S_T + 2}, s{S_T + 2}, 160")

    e(f"s_lshr_b32 s{S_T + 8}, s{S_WAVE}, 1")
    e(f"s_lshl_b32 s{S_T + 8}, s{S_T + 8}, 4")
    e(f"s_and_b32 s{S_T + 9}, s{S_WAVE}, 1")
    e(f"s_lshl_b32 s{S_T + 9}, s{S_T + 9}, 2")
    e(f"s_add_u32 s{S_T + 8}, s{S_T + 8}, s{S_T + 9}")

    def krow(dst, kp, tmp):
        e(f"v_lshrrev_b32 v{tmp}, 2, v{kp}")
        e(f"v_lshlrev_b32 v{tmp}, 3, v{tmp}")
        e(f"v_and_b32 v{dst}, 3, v{kp}")
        e(f"v_add3_u32 v{dst}, v{dst}, v{tmp}, s{S_T + 8}")

    e(f"v_lshrrev_b32 v{t0}, 3, v{V_LANE}")
    krow(t1, t0, t2)
    e(f"v_mul_u32_u24 v{t1}, 6144, v{t1}")
    e(f"v_lshrrev_b32 v{t2}, 1, v{t0}")
    e(f"v_and_b32 v{t2}, 3, v{t2}")
    e(f"v_lshlrev_b32 v{t2}, 1, v{t2}")
    e(f"v_and_b32 v{t3}, 7, v{V_LANE}")
    e(f"v_xor_b32 v{t3}, v{t3}, v{t2}")
    e(f"v_lshlrev_b32 v{t3}, 4, v{t3}")
    e(f"v_add_u32 v{t1}, v{t1}, v{t3}")
    e(f"s_lshl_b32 s{S_T + 9}, s{S_P}, 7")
    e(f"s_add_u32 s{S_T + 9}, s{S_T + 9}, {4096 + (2048 if typ == 0 else 0)}")
    e(f"v_add_u32 v{V_BDMA}, s{S_T + 9}, v{t1}")
    if typ == 0:
        e(f"v_add_u32 v{V_BDMA + 1}, {2048 - 1024}, v{V_BDMA}")
    hins = [(2, 0), (3, 64)] if typ == 0 else [(1, 0), (2, 64), (3, 128)]
    magic, sh = (205, 11) if Ph == 10 else (57, 10)
    for s_ in range(8 * Ph + 64):
        if s_ < 8 * Ph:
            assert (s_ * magic) >> sh == s_ // Ph
    for slot, s0 in hins:
        e(f"v_add_u32 v{t0}, {s0}, v{V_LANE}")
        e(f"v_mul_u32_u24 v{t1}, {magic}, v{t0}")
        e(f"v_lshrrev_b32 v{t1}, {sh}, v{t1}")
        e(f"v_mul_u32_u24 v{t2}, {Ph}, v{t1}")
        e(f"v_sub_u32 v{t0}, v{t0}, v{t2}")
        e(f"v_and_b32 v{t1}, 7, v{t1}")
        krow(t2, t1, t3)
        e(f"v_mul_u32_u24 v{t2}, 7168, v{t2}")
        e(f"v_lshlrev_b32 v{t0}, 4, v{t0}")
        e(f"v_add3_u32 v{t0}, v{t0}, v{t2}, s{S_T + 2}")
        e(f"v_add_u32 v{V_BDMA + slot}, {4096 - 1024 * slot}, v{t0}")
    e(f"s_lshl_b32 s{S_T + 9}, s{S_RB}, 8")
    e(f"s_lshl_b32 s{S_T + 10}, s{S_WAVE}, 6")
    e(f"s_add_u32 s{S_T + 9}, s{S_T + 9}, s{S_T + 10}")
    e(f"s_lshl_b32 s{S_T + 9}, s{S_T + 9}, 11")
    e(f"v_lshrrev_b32 v{t0}, 3, v{V_LANE}")
    e(f"v_lshrrev_b32 v{t1}, 1, v{t0}")
    e(f"v_and_b32 v{t2}, 7, v{V_LANE}")
    e(f"v_xor_b32 v{t2}, v{t2}, v{t1}")
    e(f"v_lshlrev_b32 v{t0}, 11, v{t0}")
    e(f"v_add_u32 v{t0}, s{S_T + 9}, v{t0}")
    for j in range(4):
        if j & 1:
            e(f"v_xor_b32 v{t3}, 4, v{t2}")
            e(f"v_lshlrev_b32 v{t3}, 4, v{t3}")
        else:
            e(f"v_lshlrev_b32 v{t3}, 4, v{t2}")
        e(f"v_add_u32 v{t3}, v{t3}, v{t0}")
        e(f"v_add_u32 v{V_ADMA + j}, {j * (16384 - 1024)}, v{t3}")
    e(f"s_mul_i32 s{S_M0B}, s{S_WAVE}, {K1_AREA}")
    e(f"s_lshl_b32 s{S_M0A}, s{S_WAVE}, 14")
    e(f"s_add_u32 s{S_M0A}, s{S_M0A}, {K1_ABASE}")
    e(f"s_mov_b32 s{S_OFFA}, 0")
    e(f"s_mov_b32 s{S_OFFA2}, 65536")
    e(f"s_mov_b32 s{S_OFFQ}, 0")
    e(f"s_mov_b32 s{S_OFFH}, 0")
    e(f"s_mov_b32 s{S_QM}, 0xffff")
    e(f"s_mov_b32 s{S_QM + 1}, 0")

    def dmaB(tt):
        slot = tt % 4
        tag = f"B{tt}"
        f = []
        srcs = [(S_Q, S_OFFQ), (S_Q, S_OFFQ) if typ == 0 else (S_W1, S_OFFH), (S_W1, S_OFFH)]
        f.append(lambda: e(f"s_add_u32 m0, s{S_M0B}, {slot * K1_BSLOT}"))
        for j in range(3):
            sr, so = srcs[j]
            f.append(lambda j=j, sr=sr, so=so: a.vmem(
                f"buffer_load_dwordx4 v{V_BDMA + j}, s[{sr}:{sr + 3}], s{so} offen offset:{1024 * j} {OPT['k1b']} lds", tag))

        def q():
            e(f"s_mov_b64 exec, s[{S_QM}:{S_QM + 1}]")
            a.vmem(f"buffer_load_dwordx4 v{V_BDMA + 3}, s[{S_W1}:{S_W1 + 3}], s{S_OFFH} offen offset:3072 {OPT['k1b']} lds", tag)
            e("s_mov_b64 exec, -1")
        f.append(q)
        f.append(lambda: e(f"s_add_u32 s{S_OFFQ}, s{S_OFFQ}, {32 * 6144}"))
        f.append(lambda: e(f"s_add_u32 s{S_OFFH}, s{S_OFFH}, {32 * 7168}"))
        return f

    def dmaA(aa):
        slot = aa % 2
        tag = f"A{aa}"
        f = []
        for half in range(2):
            so = S_OFFA if half == 0 else S_OFFA2
            f.append(lambda half=half: e(f"s_add_u32 m0, s{S_M0A}, {slot * 8192 + half * 4096}"))
            for j in range(4):
                f.append(lambda j=j, so=so: a.vmem(
                    f"buffer_load_dwordx4 v{V_ADMA + j}, s[{S_X}:{S_X + 3}], s{so} offen offset:{1024 * j} {OPT['k1a']} lds", tag))
        f.append(lambda: e(f"s_add_u32 s{S_OFFA}, s{S_OFFA}, 128"))
        f.append(lambda: e(f"s_add_u32 s{S_OFFA2}, s{S_OFFA2}, 128"))
        return f

    def run_seq(fl):
        for fn in fl:
            n0 = len(a.lines)
            fn()
            if " m0," in a.lines[-1] and len(a.lines) == n0 + 1:
                e("s_nop 0")

    e("s_waitcnt lgkmcnt(0)")
    srd(a, S_Q, S_PTR + 2, S_PTR + 3, 1024 * 3072 * 2, bias=4096)
    srd(a, S_W1, S_PTR + 8, S_PTR + 9, 1024 * 3584 * 2, bias=4096)
    srd(a, S_X, S_PTR + 0, S_PTR + 1, 2048 * 1024 * 2)
    stamp(a, 0)
    run_seq(dmaB(0))
    run_seq(dmaA(0))
    srd(a, S_T + 4, S_PTR + 10, S_PTR + 11, 7168)
    e(f"v_lshlrev_b32 v{t1}, 3, v{vG}")
    for j in range(nh):
        a.vmem(f"buffer_load_dwordx2 {vr(acc(nq + j, 3), 2)}, v{t1}, s[{S_T + 4}:{S_T + 7}], s{S_T + 2} offen offset:{32 * j}", "bias")
    run_seq(dmaB(1))
    run_seq(dmaB(2))
    run_seq(dmaA(1))
    run_seq(dmaB(3))
    srd(a, S_WS, S_PTR + 20, S_PTR + 21, WS_USED)

    e(f"v_lshrrev_b32 v{t0}, 3, v{vi}")
    e(f"v_lshlrev_b32 v{t0}, 6, v{t0}")
    e(f"v_and_b32 v{t1}, 7, v{vi}")
    e(f"v_lshlrev_b32 v{t1}, 3, v{t1}")
    e(f"v_add_u32 v{t0}, v{t0}, v{t1}")
    e(f"v_lshrrev_b32 v{t1}, 1, v{vi}")
    e(f"v_xor_b32 v{t1}, v{t1}, v{vG}")
    e(f"v_add_u32 v{t2}, v{t0}, v{t1}")
    e(f"v_lshlrev_b32 v{t2}, 4, v{t2}")
    e(f"v_add_u32 v{V_ARD}, s{S_M0A}, v{t2}")
    e(f"v_xor_b32 v{t1}, 4, v{t1}")
    e(f"v_add_u32 v{t2}, v{t0}, v{t1}")
    e(f"v_lshlrev_b32 v{t2}, 4, v{t2}")
    e(f"v_add_u32 v{V_ARD + 1}, s{S_M0A}, v{t2}")
    e(f"v_and_b32 v{t0}, 1, v{vG}")
    e(f"v_lshlrev_b32 v{t0}, 2, v{t0}")
    e(f"v_lshrrev_b32 v{t1}, 2, v{vi}")
    e(f"v_add_u32 v{t0}, v{t0}, v{t1}")
    e(f"v_lshrrev_b32 v{t1}, 1, v{vG}")
    e(f"v_mul_u32_u24 v{t1}, {2 * K1_AREA}, v{t1}")
    e(f"v_and_b32 v{t2}, 3, v{vi}")
    e(f"v_lshlrev_b32 v{t2}, 3, v{t2}")
    e(f"v_add_u32 v{t1}, v{t1}, v{t2}")
    e(f"v_mul_u32_u24 v{t3}, {16 * Ph}, v{t0}")
    e(f"v_add3_u32 v{V_HRD}, v{t1}, v{t3}, {0}")
    e(f"v_add_u32 v{V_HRD}, {HB}, v{V_HRD}")
    e(f"v_lshlrev_b32 v{t3}, 7, v{t0}")
    e(f"v_add_u32 v{t1}, v{t1}, v{t3}")
    e(f"v_lshrrev_b32 v{t2}, 1, v{t0}")
    e(f"v_and_b32 v{t2}, 3, v{t2}")
    for t in range(4):
        e(f"v_xor_b32 v{t3}, {t}, v{t2}")
        e(f"v_lshlrev_b32 v{t3}, 5, v{t3}")
        e(f"v_add_u32 v{V_QRD + t}, v{t1}, v{t3}")
    e(f"v_lshlrev_b32 v{V_L16}, 4, v{V_LANE}")

    gw, gx0, gx1 = V_T, V_T + 8, V_T + 16
    gt = V_T + 24
    e(f"v_lshlrev_b32 v{gt}, 5, v{V_LANE}")
    e(f"s_lshl_b32 s{S_GROW}, s2, 3")
    e(f"s_lshl_b32 s{S_T + 1}, s{S_WAVE}, 1")
    e(f"s_add_u32 s{S_GROW}, s{S_GROW}, s{S_T + 1}")
    e(f"s_lshl_b32 s{S_T + 1}, s{S_GROW}, 11")
    srd(a, S_MISC, S_PTR + 14, S_PTR + 15, 2048)
    a.vmem(f"buffer_load_dwordx4 {vr(gw)}, v{gt}, s[{S_MISC}:{S_MISC + 3}], 0 offen", "g")
    a.vmem(f"buffer_load_dwordx4 {vr(gw + 4)}, v{gt}, s[{S_MISC}:{S_MISC + 3}], 0 offen offset:16", "g")
    a.vmem(f"buffer_load_dwordx4 {vr(gx0)}, v{gt}, s[{S_X}:{S_X + 3}], s{S_T + 1} offen", "g")
    a.vmem(f"buffer_load_dwordx4 {vr(gx0 + 4)}, v{gt}, s[{S_X}:{S_X + 3}], s{S_T + 1} offen offset:16", "g")
    a.vmem(f"buffer_load_dwordx4 {vr(gx1)}, v{gt}, s[{S_X}:{S_X + 3}], s{S_T + 1} offen offset:2048", "g")
    a.vmem(f"buffer_load_dwordx4 {vr(gx1 + 4)}, v{gt}, s[{S_X}:{S_X + 3}], s{S_T + 1} offen offset:2064", "g")

    if OPT['pf']:
        srd(a, S_PF1, S_PTR + 12, S_PTR + 13, 3584 * 1024 * 2)
        srd(a, S_PF2, S_PTR + 4, S_PTR + 5, 1024 * 1024 * 2)
        e(f"v_min_u32 v{V_T + 26}, 7, v{V_LANE}")
        e(f"v_lshlrev_b32 v{V_T + 26}, 7, v{V_T + 26}")
        e(f"v_min_u32 v{V_T + 27}, 2, v{V_LANE}")
        e(f"v_lshlrev_b32 v{V_T + 27}, 7, v{V_T + 27}")
        e(f"s_lshl_b32 s{S_T}, s2, 2")
        e(f"s_add_u32 s{S_T}, s{S_T}, s{S_WAVE}")
        e(f"s_mul_i32 s{S_PO1}, s{S_T}, 7168")
        e(f"s_lshl_b32 s{S_PO2}, s{S_T}, 11")

    if OPT.get('pt'):
        e(f"s_lshl_b32 s{S_T}, s{S_RB}, 1")
        e(f"s_lshr_b32 s{S_T + 1}, s{S_WAVE}, 1")
        e(f"s_add_u32 s{S_T}, s{S_T}, s{S_T + 1}")
        e(f"s_mul_i32 s{S_AFB}, s{S_T}, {144 * 8192}")
        e(f"s_and_b32 s{S_T + 1}, s{S_WAVE}, 1")
        e(f"s_lshl_b32 s{S_T + 1}, s{S_T + 1}, 12")
        e(f"s_add_u32 s{S_AFB}, s{S_AFB}, s{S_T + 1}")
        e(f"s_mul_i32 s{S_PT}, s{S_P}, {7 * 8192}")
        e(f"s_add_u32 s{S_PT}, s{S_PT}, s{S_AFB}")
        if typ:
            e(f"s_add_u32 s{S_PT}, s{S_PT}, {2 * 8192}")
        e(f"s_add_u32 s{S_PTE}, s{S_PT}, {(4 if typ else 2) * 8192}")
        e(f"v_and_b32 v{V_T + 25}, 31, v{V_LANE}")
        e(f"v_lshlrev_b32 v{V_T + 25}, 7, v{V_T + 25}")
        if typ:
            e(f"v_lshrrev_b32 v{V_T + 29}, 5, v{V_LANE}")
            e(f"v_lshlrev_b32 v{V_T + 29}, 13, v{V_T + 29}")
            e(f"v_add_u32 v{V_T + 29}, v{V_T + 29}, v{V_T + 25}")
            e(f"s_mul_i32 s{S_T}, s{S_P}, {2 * 8192}")
            e(f"s_add_u32 s{S_T}, s{S_T}, {112 * 8192}")
            e(f"s_add_u32 s{S_T}, s{S_T}, s{S_AFB}")
            a.vmem(f"buffer_load_dword v{V_T + 28}, v{V_T + 29}, s[{S_WS}:{S_WS + 3}], s{S_T} offen", "pf")

    def pt_items():
        return [lambda: a.vmem(f"buffer_load_dword v{V_T + 28}, v{V_T + 25}, s[{S_WS}:{S_WS + 3}], s{S_PT} offen", "pf"),
                lambda: e(f"s_add_u32 s{S_PT}, s{S_PT}, 8192"),
                lambda: e(f"s_min_u32 s{S_PT}, s{S_PT}, s{S_PTE}")]

    def pf_items():
        return [lambda: a.vmem(f"buffer_load_dword v{V_T + 28}, v{V_T + 26}, s[{S_PF1}:{S_PF1 + 3}], s{S_PO1} offen", "pf"),
                lambda: a.vmem(f"buffer_load_dword v{V_T + 29}, v{V_T + 27}, s[{S_PF2}:{S_PF2 + 3}], s{S_PO2} offen", "pf"),
                lambda: e(f"s_add_u32 s{S_PO1}, s{S_PO1}, 1024"),
                lambda: e(f"s_add_u32 s{S_PO2}, s{S_PO2}, 384")]

    def g_items():
        d0, d1 = V_T + 24, V_T + 25
        L = []
        L.append(f"v_dot2_f32_bf16 v{d0}, v{gx0}, v{gw}, 0")
        L.append(f"v_dot2_f32_bf16 v{d1}, v{gx1}, v{gw}, 0")
        for j in range(1, 8):
            L.append(f"v_dot2_f32_bf16 v{d0}, v{gx0 + j}, v{gw + j}, v{d0}")
            L.append(f"v_dot2_f32_bf16 v{d1}, v{gx1 + j}, v{gw + j}, v{d1}")
        L.append("s_nop 3")
        for sh_ in (1, 2, 4, 8):
            L.append(f"s_nop 0\nv_add_f32_dpp v{d0}, v{d0}, v{d0} row_shr:{sh_} row_mask:0xf bank_mask:0xf bound_ctrl:0")
            L.append(f"s_nop 0\nv_add_f32_dpp v{d1}, v{d1}, v{d1} row_shr:{sh_} row_mask:0xf bank_mask:0xf bound_ctrl:0")
        L.append(f"s_nop 0\nv_add_f32_dpp v{d0}, v{d0}, v{d0} row_bcast:15 row_mask:0xa bank_mask:0xf")
        L.append(f"s_nop 0\nv_add_f32_dpp v{d1}, v{d1}, v{d1} row_bcast:15 row_mask:0xa bank_mask:0xf")
        L.append(f"s_nop 0\nv_add_f32_dpp v{d0}, v{d0}, v{d0} row_bcast:31 row_mask:0xc bank_mask:0xf")
        L.append(f"s_nop 0\nv_add_f32_dpp v{d1}, v{d1}, v{d1} row_bcast:31 row_mask:0xc bank_mask:0xf")
        L.append(f"v_mul_f32 v{d0}, 0xbfb8aa3b, v{d0}")
        L.append(f"v_mul_f32 v{d1}, 0xbfb8aa3b, v{d1}")
        L.append(f"v_exp_f32 v{d0}, v{d0}")
        L.append(f"v_exp_f32 v{d1}, v{d1}\ns_nop 0")
        L.append(f"v_add_f32 v{d0}, 1.0, v{d0}")
        L.append(f"v_add_f32 v{d1}, 1.0, v{d1}")
        L.append(f"v_rcp_f32 v{d0}, v{d0}")
        L.append(f"v_rcp_f32 v{d1}, v{d1}")
        L.append(f"v_mov_b32 v{gw}, 0")
        L.append(f"s_lshl_b32 s{S_T + 1}, s{S_GROW}, 2\ns_add_u32 s{S_T + 1}, s{S_T + 1}, {G_OFF}")
        L.append(f"s_lshl_b32 s{S_T + 3}, s2, 8\ns_add_u32 s{S_T + 3}, s{S_T + 3}, {FLG_OFF}")
        L.append(f"s_mov_b32 s{S_T + 8}, 0\ns_mov_b32 s{S_T + 9}, 0x80000000")
        F = [(lambda x=x: e(x)) for x in L]

        def st():
            e(f"s_mov_b64 exec, s[{S_T + 8}:{S_T + 9}]")
            a.vmem(f"buffer_store_dwordx2 v[{d0}:{d1}], v{gw}, s[{S_WS}:{S_WS + 3}], s{S_T + 1} offen", "gst")
            a.vmem(f"buffer_store_dword v{gw}, v{gw}, s[{S_WS}:{S_WS + 3}], s{S_T + 3} offen", "gst")
            e("s_mov_b64 exec, -1")
        F.append(st)
        return F

    a.wait(["bias"])
    for j in range(nh):
        src = acc(nq + j, 3)
        d = acc(nq + j, 0)
        e(f"v_lshlrev_b32 v{d}, 16, v{src}")
        e(f"v_and_b32 v{d + 1}, 0xffff0000, v{src}")
        e(f"v_lshlrev_b32 v{d + 2}, 16, v{src + 1}")
        e(f"v_and_b32 v{d + 3}, 0xffff0000, v{src + 1}")
    for t in range(4):
        for r in range(4):
            e(f"v_mov_b32 v{acc(t, 0) + r}, {EPS_HEX}")

    def rdB(tt):
        slot = tt % 4
        s = tt % 2
        f = []
        for t in range(13):
            for ins in range(2):
                if t < nq:
                    addr = V_QRD + (t & 3)
                    off = slot * K1_BSLOT + ins * K1_AREA + 1024 * (t >> 2)
                else:
                    addr = V_HRD
                    off = slot * K1_BSLOT + ins * K1_AREA + 32 * (t - nq)
                d = bset(s, t) + 2 * ins
                f.append(lambda d=d, addr=addr, off=off: e(f"ds_read_b64_tr_b16 {ar(d, 2)}, v{addr} offset:{off}"))
        return f

    def aset_of(tt):
        if tt % 2 == 0:
            return ASET["X"]
        return ASET["Y"] if tt % 4 == 1 else ASET["Z"]

    def rdA(aa):
        slot = aa % 2
        f = []
        for hh in range(2):
            base = aset_of(2 * aa + hh)
            for mt in range(4):
                f.append(lambda hh=hh, mt=mt, base=base: e(
                    f"ds_read_b128 {ar(base + 4 * mt)}, v{V_ARD + hh} offset:{slot * 8192 + mt * 2048}"))
        return f

    stamp(a, 1)
    a.wait(["B0", "A0"])
    e("s_barrier")
    stamp(a, 2)
    for fn in rdA(0) + rdB(0):
        fn()
    a.wait(["B1"], lgkm=True)
    e("s_barrier")

    NSTEP = 32

    def step(tt):
        s = tt % 2
        ab = aset_of(tt)
        mf = []
        for t in range(13):
            order = [1, 2, 3, 0] if tt == 0 else [0, 1, 2, 3]
            for mt in order:
                D = vr(acc(t, mt))
                if tt == 0:
                    C = "0" if (typ == 0 and 4 <= t < 8) else vr(acc(t, 0))
                else:
                    C = D
                W = ar(bset(s, t))
                X = ar(ab + 4 * mt)
                if typ == 0 and t < 8:
                    mf.append(f"v_mfma_f32_16x16x32_bf16 {D}, {X}, {W}, {C}")
                else:
                    mf.append(f"v_mfma_f32_16x16x32_bf16 {D}, {W}, {X}, {C}")
        rd = []
        if tt + 1 < NSTEP:
            rd = rdB(tt + 1)
            if tt % 2 == 1:
                rd = rdA((tt + 1) // 2) + rd
        dm = []
        if tt + 4 < NSTEP:
            dm += dmaB(tt + 4)
        if tt % 2 == 0 and tt // 2 + 2 < NSTEP // 2:
            dm += dmaA(tt // 2 + 2)
        if OPT['pf'] and tt % 4 == 1 and tt < 28:
            dm += pf_items()
        if OPT.get('pt') and tt % 4 == 3 and tt < 28:
            dm += pt_items()
        fl = []
        i1 = i2 = 0
        n1, n2 = len(rd), len(dm)
        while i1 < n1 or i2 < n2:
            if i2 < n2 and (i1 >= n1 or i2 * n1 <= i1 * n2):
                fl.append(dm[i2]); i2 += 1
            else:
                fl.append(rd[i1]); i1 += 1
        if tt == NSTEP - 1:
            assert "g" not in a.vm
            fl = g_items()
        interleave(a, mf, fl, 0, 48)
        if tt + 1 < NSTEP:
            tags = []
            if tt + 2 < NSTEP:
                tags.append(f"B{tt + 2}")
            if tt % 2 == 0:
                tags.append(f"A{tt // 2 + 1}")
            a.wait(tags, lgkm=True)
            if tt + 2 < NSTEP:
                e("s_barrier")

    iters = []
    for it in range(8):
        n0 = len(a.lines)
        for tt in range(4 * it, 4 * it + 4):
            step(tt)
        iters.append(a.lines[n0:])
        del a.lines[n0:]
    for it in range(2, 7):
        assert iters[it] == iters[1], f"iteration {it} differs"
    stamp(a, 3)
    a.lines += iters[0]
    stamp(a, 4)
    e(f"s_mov_b32 s{S_CNT}, 6")
    a.label(f"L_k1{T}_loop")
    a.lines += iters[1]
    e(f"s_sub_u32 s{S_CNT}, s{S_CNT}, 1")
    e(f"s_cmp_lg_u32 s{S_CNT}, 0")
    e(f"s_cbranch_scc1 L_k1{T}_loop")
    a.lines += iters[7]
    assert all(not t.startswith(("A", "B")) for t in a.vm), a.vm

    stamp(a, 5)

    def fin():
        stamp(a, 6)
        if DIAG:
            e("s_waitcnt vmcnt(0)")
        stamp(a, 7)
        stamp_dump(a, 0, 8, S_WAVE, S_PTR + 20, S_PTR + 21, V_T)
        e("s_endpgm")
    e(f"s_mov_b32 s{S_L2E}, {L2E_HEX}")
    e(f"s_mov_b32 s{S_L2E + 1}, {L2E_HEX}")
    e(f"s_lshl_b32 s{S_T}, s{S_RB}, 1")
    e(f"s_lshr_b32 s{S_T + 1}, s{S_WAVE}, 1")
    e(f"s_add_u32 s{S_T}, s{S_T}, s{S_T + 1}")
    e(f"s_mul_i32 s{S_AFB}, s{S_T}, {144 * 8192}")
    e(f"s_and_b32 s{S_T + 1}, s{S_WAVE}, 1")
    e(f"s_lshl_b32 s{S_T + 1}, s{S_T + 1}, 12")
    e(f"s_add_u32 s{S_AFB}, s{S_AFB}, s{S_T + 1}")
    e("s_nop 7")
    TT, UU = V_T, V_T + 8

    def phi_group(ra, rb_):
        prs = [ra, ra + 2, rb_, rb_ + 2]
        for j, p in enumerate(prs):
            e(f"v_pk_mul_f32 {vr(TT + 2 * j, 2)}, {vr(p, 2)}, s[{S_L2E}:{S_L2E + 1}]")
        for j in range(8):
            e(f"v_exp_f32_e64 v{TT + j}, v{TT + j} clamp")
        for p in prs:
            e(f"v_max_f32 v{p}, {EPS_HEX}, v{p}")
            e(f"v_max_f32 v{p + 1}, {EPS_HEX}, v{p + 1}")
        for j, p in enumerate(prs):
            e(f"v_pk_add_f32 {vr(p, 2)}, {vr(p, 2)}, {vr(TT + 2 * j, 2)}")
        for j, p in enumerate(prs):
            e(f"v_cvt_pk_bf16_f32 v{ra + j}, v{p}, v{p + 1}")

    def cvt_group(ra, rb_):
        prs = [ra, ra + 2, rb_, rb_ + 2]
        for j, p in enumerate(prs):
            e(f"v_cvt_pk_bf16_f32 v{ra + j}, v{p}, v{p + 1}")

    def mish_group(ra, rb_, split=False):
        prs = [ra, ra + 2, rb_, rb_ + 2]
        for j, p in enumerate(prs):
            e(f"v_pk_mul_f32 {vr(TT + 2 * j, 2)}, {vr(p, 2)}, s[{S_L2E}:{S_L2E + 1}]")
        for j in range(8):
            e(f"v_exp_f32 v{TT + j}, v{TT + j}")
        for j in range(4):
            e(f"v_pk_fma_f32 {vr(UU + 2 * j, 2)}, {vr(TT + 2 * j, 2)}, 0.5, 1.0 op_sel_hi:[1,0,0]")
        for j in range(4):
            e(f"v_pk_fma_f32 {vr(UU + 2 * j, 2)}, {vr(TT + 2 * j, 2)}, {vr(UU + 2 * j, 2)}, 1.0 op_sel_hi:[1,1,0]")
        for j in range(8):
            e(f"v_rcp_f32 v{UU + j}, v{UU + j}")
        for j, p in enumerate(prs):
            e(f"v_pk_fma_f32 {vr(p, 2)}, {vr(UU + 2 * j, 2)}, {vr(p, 2)}, {vr(p, 2)} neg_lo:[1,0,0] neg_hi:[1,0,0]")
        if split:
            e(f"v_cvt_pk_bf16_f32 v{ra}, v{ra}, v{ra + 1}")
            e(f"v_cvt_pk_bf16_f32 v{ra + 1}, v{ra + 2}, v{ra + 3}")
            e(f"v_cvt_pk_bf16_f32 v{rb_}, v{rb_}, v{rb_ + 1}")
            e(f"v_cvt_pk_bf16_f32 v{rb_ + 1}, v{rb_ + 2}, v{rb_ + 3}")
        else:
            for j, p in enumerate(prs):
                e(f"v_cvt_pk_bf16_f32 v{ra + j}, v{p}, v{p + 1}")

    WS = f"s[{S_WS}:{S_WS + 3}]"

    def set_kb(sreg, mul, add):
        e(f"s_mul_i32 s{sreg}, s{S_P}, {mul * 8192}")
        e(f"s_add_u32 s{sreg}, s{sreg}, {add * 8192}")
        e(f"s_add_u32 s{sreg}, s{sreg}, s{S_AFB}")

    def h_full(tA, kbl):
        set_kb(S_T + 2, 7, kbl)
        for mt in range(4):
            mish_group(acc(tA, mt), acc(tA + 1, mt))
            a.vmem(f"buffer_store_dwordx4 {vr(acc(tA, mt))}, v{V_L16}, {WS}, s{S_T + 2} offen offset:{1024 * mt} {OPT['st']}", "st")

    def h_half(tA, kbl, half):
        set_kb(S_T + 2, 7, kbl)
        for mp in range(2):
            mish_group(acc(tA, 2 * mp), acc(tA, 2 * mp + 1), split=True)
            for mt in (2 * mp, 2 * mp + 1):
                a.vmem(f"buffer_store_dwordx2 {vr(acc(tA, mt), 2)}, v{V_L16}, {WS}, s{S_T + 2} offen offset:{1024 * mt + 8 * half} {OPT['st']}", "st")

    if typ == 1:
        for hd in range(2):
            set_kb(S_T + 2, 2, 112 + hd)
            for mt in range(4):
                phi_group(acc(2 * hd, mt), acc(2 * hd + 1, mt))
                a.vmem(f"buffer_store_dwordx4 {vr(acc(2 * hd, mt))}, v{V_L16}, {WS}, s{S_T + 2} offen offset:{1024 * mt} {OPT['st']}", "st")
        h_half(4, 2, 1)
        for j in range(4):
            h_full(5 + 2 * j, 3 + j)
        fin()
        return

    ONES = V_T + 16
    for r in range(4):
        e(f"v_mov_b32 v{ONES + r}, 0x3f803f80")
    for t in range(4):
        for pr in range(2):
            phi_group(acc(t, 2 * pr), acc(t, 2 * pr + 1))
    for t in range(4, 8):
        for pr in range(2):
            cvt_group(acc(t, 2 * pr), acc(t, 2 * pr + 1))
    e("s_nop 1")
    free = [acc(t, m) for t in range(8) for m in (1, 3)]

    def Dt(tau):
        return free[tau]
    for pr in range(2):
        for hd in range(2):
            for dt in range(2):
                for et in range(3):
                    tau = hd * 6 + dt * 3 + et
                    Aop = vr(acc(2 * hd + dt, 2 * pr))
                    Bop = vr(acc(4 + 2 * hd + et, 2 * pr)) if et < 2 else vr(ONES)
                    C = "0" if pr == 0 else vr(Dt(tau))
                    e(f"v_mfma_f32_16x16x32_bf16 {vr(Dt(tau))}, {Aop}, {Bop}, {C}")
    vw, vrd = V_T + 20, V_T + 21
    e(f"v_add_u32 v{vw}, s{S_M0A}, v{V_L16}")
    e(f"s_mul_i32 s{S_T}, s{S_WAVE}, 3072")
    e(f"s_add_u32 s{S_T}, s{S_T}, {K1_ABASE}")
    e(f"v_add_u32 v{vrd}, s{S_T}, v{V_L16}")
    e("s_nop 7")
    for tau in range(12):
        e(f"ds_write_b128 v{vw}, {vr(Dt(tau))} offset:{1024 * tau}")
    h_full(8, 0)
    e("s_waitcnt lgkmcnt(0)")
    e("s_barrier")
    R = [acc(t, m) for t in range(8) for m in (0, 2)]
    for w2 in range(4):
        for j in range(3):
            e(f"ds_read_b128 {vr(R[3 * w2 + j])}, v{vrd} offset:{16384 * w2 + 1024 * j}")
    h_full(10, 1)
    e(f"s_lshl_b32 s{S_T}, s{S_P}, 3")
    e(f"s_add_u32 s{S_T}, s{S_T}, s{S_RB}")
    e(f"s_mul_i32 s{S_T}, s{S_T}, 12288")
    e(f"s_mul_i32 s{S_T + 1}, s{S_WAVE}, 3072")
    e(f"s_add_u32 s{S_T}, s{S_T}, s{S_T + 1}")
    e(f"s_add_u32 s{S_T}, s{S_T}, {KVP_OFF}")
    e("s_waitcnt lgkmcnt(0)")
    for j in range(3):
        for h2 in range(2):
            b0 = R[j] + 2 * h2
            e(f"v_pk_add_f32 {vr(b0, 2)}, {vr(b0, 2)}, {vr(R[3 + j] + 2 * h2, 2)}")
            e(f"v_pk_add_f32 {vr(R[6 + j] + 2 * h2, 2)}, {vr(R[6 + j] + 2 * h2, 2)}, {vr(R[9 + j] + 2 * h2, 2)}")
        for h2 in range(2):
            b0 = R[j] + 2 * h2
            e(f"v_pk_add_f32 {vr(b0, 2)}, {vr(b0, 2)}, {vr(R[6 + j] + 2 * h2, 2)}")
        a.vmem(f"buffer_store_dwordx4 {vr(R[j])}, v{V_L16}, {WS}, s{S_T} offen offset:{1024 * j}", "kvp")
    h_half(12, 2, 0)
    fin()


def gen_k1():
    a = Asm()
    e = a.e
    a.lines.append(".globl k1_kernel\n.p2align 8\n.type k1_kernel,@function\nk1_kernel:")
    e("s_cmp_ge_u32 s2, 256")
    e("s_cbranch_scc1 L_k1_exit")
    e(f"s_load_dwordx16 s[{S_PTR}:{S_PTR + 15}], s[0:1], 0")
    e(f"s_load_dwordx4 s[{S_PTR + 16}:{S_PTR + 19}], s[0:1], 64")
    e(f"s_load_dwordx2 s[{S_PTR + 20}:{S_PTR + 21}], s[0:1], 80")
    e(f"v_and_b32 v{V_LANE}, 63, v0")
    e(f"v_lshrrev_b32 v{V_T}, 6, v0")
    e(f"s_and_b32 s{S_T}, s2, 7")
    e(f"v_readfirstlane_b32 s{S_WAVE}, v{V_T}")
    e(f"s_lshr_b32 s{S_T + 1}, s2, 3")
    if OPT.get('map1', 0) == 0:
        e(f"s_and_b32 s{S_RB}, s{S_T}, 1")
        e(f"s_lshl_b32 s{S_RB}, s{S_RB}, 2")
        e(f"s_and_b32 s{S_T + 2}, s{S_T + 1}, 3")
        e(f"s_add_u32 s{S_RB}, s{S_RB}, s{S_T + 2}")
        e(f"s_lshr_b32 s{S_T}, s{S_T}, 1")
        e(f"s_lshl_b32 s{S_T}, s{S_T}, 3")
        e(f"s_lshr_b32 s{S_T + 1}, s{S_T + 1}, 2")
        e(f"s_add_u32 s{S_T}, s{S_T}, s{S_T + 1}")
    elif OPT['map1'] == 1:
        e(f"s_and_b32 s{S_RB}, s{S_T + 1}, 7")
        e(f"s_lshl_b32 s{S_T}, s{S_T}, 2")
        e(f"s_lshr_b32 s{S_T + 1}, s{S_T + 1}, 3")
        e(f"s_add_u32 s{S_T}, s{S_T}, s{S_T + 1}")
    else:
        e(f"s_and_b32 s{S_RB}, s{S_T}, 3")
        e(f"s_lshl_b32 s{S_RB}, s{S_RB}, 1")
        e(f"s_and_b32 s{S_T + 2}, s{S_T + 1}, 1")
        e(f"s_add_u32 s{S_RB}, s{S_RB}, s{S_T + 2}")
        e(f"s_lshr_b32 s{S_T}, s{S_T}, 2")
        e(f"s_lshl_b32 s{S_T}, s{S_T}, 4")
        e(f"s_lshr_b32 s{S_T + 1}, s{S_T + 1}, 1")
        e(f"s_add_u32 s{S_T}, s{S_T}, s{S_T + 1}")
    e(f"s_lshr_b32 s{S_P}, s{S_T}, 1")
    e(f"s_and_b32 s{S_T + 3}, s{S_T}, 1")
    e(f"s_cmp_lg_u32 s{S_T + 3}, 0")
    e("s_cbranch_scc1 L_k1_typeB")
    k1_body(a, 0)
    a.label("L_k1_typeB")
    a.vm = []
    k1_body(a, 1)
    a.label("L_k1_exit")
    e("s_endpgm")
    return a.lines


def K2_LDS():
    return OPT['S'] * 32768 + 24576


def fold_loops(a, iters, period, scnt, name):
    n = len(iters)
    i = 0
    lab = 0
    while i < n:
        reps = 1
        while i + (reps + 1) * period <= n and all(
                iters[i + k] == iters[i + reps * period + k] for k in range(period)):
            reps += 1
        if reps >= 2:
            a.e(f"s_mov_b32 s{scnt}, {reps}")
            a.label(f"L_{name}_{lab}")
            for k in range(period):
                a.lines += iters[i + k]
            a.e(f"s_sub_u32 s{scnt}, s{scnt}, 1")
            a.e(f"s_cmp_lg_u32 s{scnt}, 0")
            a.e(f"s_cbranch_scc1 L_{name}_{lab}")
            lab += 1
            i += reps * period
        else:
            a.lines += iters[i]
            i += 1


def schedule(a, mf, streams):
    n = len(mf)
    placed = []
    for si, (items, start, end) in enumerate(streams):
        m = len(items)
        prev = 0
        for j, it in enumerate(items):
            fn, early = it if isinstance(it, tuple) else (it, 0)
            pos = start + (j * (end - start)) / max(m, 1)
            pos = max(pos, early, prev)
            prev = pos
            placed.append((pos, si, j, fn))
    placed.sort(key=lambda x: (x[0], x[1], x[2]))
    k = 0
    if n == 0:
        for p in placed:
            p[3]()
        return
    for i in range(n):
        a.e(mf[i])
        while k < len(placed) and placed[k][0] < i + 1:
            placed[k][3]()
            k += 1
    while k < len(placed):
        placed[k][3]()
        k += 1


def gen_k2():
    a = Asm()
    e = a.e
    S = OPT['S']
    n0 = OPT['n0']
    SLOT = 32768
    PBF = OPT['pbf']
    SW2, SWO, SWS, SOUT, SDBG = 4, 8, 12, 16, 20
    SWAVE, SMT, SNT, STILE, SROLE = 24, 25, 26, 27, 28
    SOA, SOB, SOKV, SOP, SM0A, SM0B, SCNT, SRED, SW8 = 29, 30, 31, 32, 33, 34, 35, 58, 59
    SP = 36
    ST = 60
    NBASE = (S + 1) // 2
    VL = 1
    VL16 = 2
    VT = 4
    VG = 14
    VOMG = 18
    VAR = 22
    VBR = 25
    AC = 64
    VBD = 22
    VAD = 26
    VAW = 27
    VFL = 30
    VEPS = 32
    VR = 36
    VOF = 40
    VD = 64
    VP = 64

    def acc2(mt, nt):
        return AC + 16 * mt + 4 * nt

    def FA(j, b, mt):
        return 64 * (j % 2) + 32 * b + 4 * mt

    def FB(j, b, nt):
        return 64 * (j % 2) + 32 * b + 16 + 4 * nt

    def PQ(j, i):
        return 28 * (j % 4) + 4 * i

    def KV(j, i):
        return 28 * (j % 4) + 16 + 4 * i

    a.lines.append(".globl k2_kernel\n.p2align 8\n.type k2_kernel,@function\nk2_kernel:")
    e("s_cmp_ge_u32 s2, 256")
    e("s_cbranch_scc1 L_k2_exit")
    e(f"s_load_dwordx16 s[{SP}:{SP + 15}], s[0:1], 0")
    e(f"s_load_dwordx4 s[{SP + 16}:{SP + 19}], s[0:1], 64")
    e(f"s_load_dwordx2 s[{SP + 20}:{SP + 21}], s[0:1], 80")
    e(f"v_and_b32 v{VL}, 63, v0")
    e(f"v_lshrrev_b32 v{VT}, 6, v0")
    e(f"s_and_b32 s{ST}, s2, 7")
    e(f"v_readfirstlane_b32 s{SW8}, v{VT}")
    e(f"s_lshr_b32 s{ST + 1}, s2, 3")
    if OPT['map'] == 0:
        e(f"s_and_b32 s{SROLE}, s{ST}, 1")
        e(f"s_lshr_b32 s{ST}, s{ST}, 1")
        e(f"s_and_b32 s{SMT}, s{ST}, 1")
        e(f"s_lshl_b32 s{SMT}, s{SMT}, 3")
        e(f"s_and_b32 s{ST + 2}, s{ST + 1}, 7")
        e(f"s_add_u32 s{SMT}, s{SMT}, s{ST + 2}")
        e(f"s_lshr_b32 s{SNT}, s{ST}, 1")
        e(f"s_lshl_b32 s{SNT}, s{SNT}, 2")
        e(f"s_lshr_b32 s{ST + 1}, s{ST + 1}, 3")
        e(f"s_add_u32 s{SNT}, s{SNT}, s{ST + 1}")
    elif OPT['map'] == 2:
        e(f"s_and_b32 s{SROLE}, s{ST}, 1")
        e(f"s_lshr_b32 s{ST}, s{ST}, 1")
        e(f"s_lshl_b32 s{SMT}, s{ST}, 2")
        e(f"s_and_b32 s{ST + 2}, s{ST + 1}, 3")
        e(f"s_add_u32 s{SMT}, s{SMT}, s{ST + 2}")
        e(f"s_lshr_b32 s{SNT}, s{ST + 1}, 2")
    elif OPT['map'] == 3:
        e(f"s_and_b32 s{SROLE}, s{ST}, 1")
        e(f"s_lshr_b32 s{ST}, s{ST}, 1")
        e(f"s_and_b32 s{SMT}, s{ST + 1}, 15")
        e(f"s_lshl_b32 s{SNT}, s{ST}, 1")
        e(f"s_lshr_b32 s{ST + 1}, s{ST + 1}, 4")
        e(f"s_add_u32 s{SNT}, s{SNT}, s{ST + 1}")
    else:
        e(f"s_and_b32 s{SROLE}, s{ST + 1}, 1")
        e(f"s_lshr_b32 s{ST + 1}, s{ST + 1}, 1")
        e(f"s_and_b32 s{SMT}, s{ST}, 3")
        e(f"s_lshl_b32 s{SMT}, s{SMT}, 2")
        e(f"s_and_b32 s{ST + 2}, s{ST + 1}, 3")
        e(f"s_add_u32 s{SMT}, s{SMT}, s{ST + 2}")
        e(f"s_lshr_b32 s{SNT}, s{ST}, 2")
        e(f"s_lshl_b32 s{SNT}, s{SNT}, 2")
        e(f"s_lshr_b32 s{ST + 1}, s{ST + 1}, 2")
        e(f"s_add_u32 s{SNT}, s{SNT}, s{ST + 1}")
    e(f"s_and_b32 s{SWAVE}, s{SW8}, 3")
    e(f"s_lshl_b32 s{STILE}, s{SMT}, 3")
    e(f"s_add_u32 s{STILE}, s{STILE}, s{SNT}")
    vi, vG, t0, t1, t2, t3 = VT, VT + 1, VT + 2, VT + 3, VT + 4, VT + 5
    e(f"v_and_b32 v{vi}, 15, v{VL}")
    e(f"v_lshrrev_b32 v{vG}, 4, v{VL}")
    e(f"v_lshlrev_b32 v{VL16}, 4, v{VL}")
    WS = f"s[{SWS}:{SWS + 3}]"
    DBG = f"s[{SDBG}:{SDBG + 3}]"
    PSZ = 8192 if PBF else 16384
    e(f"s_cmp_lt_u32 s{SW8}, 4")
    e(f"s_cbranch_scc1 L_k2_cons")

    def load_g():
        e(f"v_lshlrev_b32 v{t0}, 2, v{vi}")
        e(f"s_lshl_b32 s{ST}, s{SMT}, 9")
        e(f"s_and_b32 s{ST + 1}, s{SWAVE}, 1")
        e(f"s_lshl_b32 s{ST + 1}, s{ST + 1}, 8")
        e(f"s_add_u32 s{ST}, s{ST}, s{ST + 1}")
        e(f"s_add_u32 s{ST}, s{ST}, {G_OFF}")
        for i in range(4):
            a.vmem(f"buffer_load_dword v{VG + i}, v{t0}, {WS}, s{ST} offen offset:{64 * i}", "g")

    def run_seq(fl):
        for fn in fl:
            n_ = len(a.lines)
            fn()
            if " m0," in a.lines[-1] and len(a.lines) == n_ + 1:
                e("s_nop 0")

    import math
    PERIOD = S * 4 // math.gcd(S, 4)

    if OPT['pprio']:
        e(f"s_setprio {OPT['pprio']}")
    e(f"s_lshl_b32 s{SM0A}, s{SWAVE}, 12")
    e(f"s_add_u32 s{SM0B}, s{SM0A}, 16384")
    e(f"v_add_u32 v{VAD}, s{SM0A}, v{VL16}")
    e(f"s_lshl_b32 s{ST + 2}, s{SNT}, 8")
    e(f"s_lshl_b32 s{ST + 3}, s{SWAVE}, 15")
    e(f"s_add_u32 s{ST + 2}, s{ST + 2}, s{ST + 3}")
    e(f"v_lshlrev_b32 v{t0}, 11, v{vG}")
    e(f"v_add_u32 v{t0}, s{ST + 2}, v{t0}")
    e(f"v_lshlrev_b32 v{t1}, 1, v{vG}")
    e(f"v_xor_b32 v{t1}, v{t1}, v{vi}")
    for j in range(4):
        if j & 1:
            e(f"v_xor_b32 v{t2}, 8, v{t1}")
            e(f"v_lshlrev_b32 v{t2}, 4, v{t2}")
        else:
            e(f"v_lshlrev_b32 v{t2}, 4, v{t1}")
        e(f"v_add_u32 v{t2}, v{t2}, v{t0}")
        e(f"v_add_u32 v{VBD + j}, {j * (8192 - 1024)}, v{t2}")
    e(f"s_mul_i32 s{SOA}, s{SMT}, {144 * 8192}")
    e(f"s_add_u32 s{SOP}, s{SOA}, {112 * 8192}")
    e(f"s_mov_b32 s{SOB}, 0")
    e("s_waitcnt lgkmcnt(0)")
    srd(a, SW2, SP + 12, SP + 13, 3584 * 1024 * 2)
    srd(a, SWS, SP + 20, SP + 21, WS_USED)
    srd(a, SWO, SP + 4, SP + 5, 1024 * 1024 * 2)
    srd(a, SDBG, SP + 18, SP + 19, 256)
    e(f"s_cmp_eq_u32 s{SROLE}, 0")
    e(f"s_cbranch_scc1 L_k2_prod0")

    def producer(role):
        R = f"p{role}"
        nact = n0 if role == 0 else 56 - n0
        N = nact if role == 0 else nact + 16
        SCR = S * SLOT
        if role == 1:
            e(f"s_add_u32 s{SOA}, s{SOA}, {n0 * 16384}")
            e(f"s_mov_b32 s{SOB}, {n0 * 131072}")

        def dmaA(j):
            f = []
            if j == nact:
                def sw():
                    e(f"s_lshl_b32 s{SOA}, s{SMT}, 18")
                    e(f"s_add_u32 s{SOA}, s{SOA}, {OF_OFF}")
                f.append(sw)
            fl = OPT['k2a'] if j < nact else "sc1"
            f.append(lambda: e(f"s_add_u32 m0, s{SM0A}, {(j % S) * SLOT}"))
            for i in range(4):
                f.append(lambda i=i: a.vmem(
                    f"buffer_load_dwordx4 v{VAD}, {WS}, s{SOA} offen offset:{1024 * i} {fl} lds", f"D{j}"))
            f.append(lambda: e(f"s_add_u32 s{SOA}, s{SOA}, 16384"))
            return f

        def dmaB(j):
            sr = SW2 if j < nact else SWO
            f = []
            if j == nact:
                f.append(lambda: e(f"s_mov_b32 s{SOB}, 0"))
            f.append(lambda: e(f"s_add_u32 m0, s{SM0B}, {(j % S) * SLOT}"))
            for i in range(4):
                f.append(lambda i=i: a.vmem(
                    f"buffer_load_dwordx4 v{VBD + i}, s[{sr}:{sr + 3}], s{SOB} offen offset:{1024 * i} {OPT['k2b']} lds", f"D{j}"))
            f.append(lambda: e(f"s_add_u32 s{SOB}, s{SOB}, 131072"))
            return f

        def dma_stage(j):
            return dmaA(j) + dmaB(j)

        for j in range(S - 1):
            run_seq(dma_stage(j))
        a.wait(["D0"])
        e("s_barrier")

        JP = N - OPT['pj']
        assert JP - (1 if PBF else 2) + S >= N and OPT['pj'] >= 1
        JO = nact - (S - 1)

        def interval(j):
            lg = False
            if role == 1 and j == JO - 3:
                e(f"s_lshl_b32 s{ST}, s{SMT}, 8")
                e(f"s_add_u32 s{ST}, s{ST}, {FLG_OFF}")
                e(f"v_mov_b32 v{VFL + 1}, s{ST}")
                a.vmem(f"buffer_load_dword v{VFL}, v{VFL + 1}, {WS}, 0 offen sc1", "F")
            if role == 1 and j == JO:
                a.wait(["F"])
                a.label("L_k2_kvwait")
                e(f"v_readfirstlane_b32 s{ST}, v{VFL}")
                e("s_nop 3")
                e(f"s_cmp_ge_u32 s{ST}, 64")
                e("s_cbranch_scc1 L_k2_kvok")
                e("s_sleep 8")
                e(f"buffer_load_dword v{VFL}, v{VFL + 1}, {WS}, 0 offen sc1")
                e("s_waitcnt vmcnt(0)")
                e("s_branch L_k2_kvwait")
                a.label("L_k2_kvok")
            if j + S - 1 < N:
                run_seq(dma_stage(j + S - 1))
            if role == 1 and j == JP:
                e(f"s_lshl_b32 s{ST}, s{STILE}, 8")
                e(f"s_add_u32 s{ST}, s{ST}, {FLG_OFF + 4096}")
                e(f"v_mov_b32 v{VFL + 1}, s{ST}")
                a.label("L_k2_pwait")
                e(f"buffer_load_dword v{VFL}, v{VFL + 1}, {WS}, 0 offen sc1")
                e("s_waitcnt vmcnt(0)")
                a.vm = []
                e(f"v_readfirstlane_b32 s{ST}, v{VFL}")
                e("s_nop 3")
                e(f"s_cmp_lg_u32 s{ST}, 0")
                e("s_cbranch_scc1 L_k2_pok")
                e("s_sleep 4")
                e("s_branch L_k2_pwait")
                a.label("L_k2_pok")
                e(f"s_lshl_b32 s{ST}, s{STILE}, 16")
                e(f"s_mul_i32 s{ST + 1}, s{SWAVE}, {PSZ}")
                e(f"s_add_u32 s{ST}, s{ST}, s{ST + 1}")
                e(f"s_add_u32 s{ST}, s{ST}, {PART_OFF}")
                ps = [(JP - 2) % S, (JP - 1) % S]
                if PBF:
                    e(f"s_add_u32 s{ST + 1}, s{ST + 1}, {ps[1] * SLOT}")
                else:
                    e(f"s_and_b32 s{ST + 1}, s{SWAVE}, 1")
                    e(f"s_lshl_b32 s{ST + 1}, s{ST + 1}, 14")
                    e(f"s_cmp_lt_u32 s{SWAVE}, 2")
                    e(f"s_mov_b32 s{ST + 3}, {ps[1] * SLOT}")
                    e(f"s_cselect_b32 s{ST + 2}, {ps[0] * SLOT}, s{ST + 3}")
                    e(f"s_add_u32 s{ST + 1}, s{ST + 1}, s{ST + 2}")
                for q in range(PSZ // 1024):
                    if q & 3 == 0:
                        e(f"s_add_u32 m0, s{ST + 1}, {1024 * q}")
                        e("s_nop 0")
                    a.vmem(f"buffer_load_dwordx4 v{VL16}, {WS}, s{ST} offen offset:{1024 * (q & 3)} sc1 lds", "PT")
                    if q & 3 == 3:
                        e(f"s_add_u32 s{ST}, s{ST}, 4096")
            if j + 1 < N:
                a.wait([f"D{j + 1}"], lgkm=lg)
                e("s_barrier")

        iters = []
        for j in range(N):
            n_ = len(a.lines)
            interval(j)
            iters.append(a.lines[n_:])
            del a.lines[n_:]
        fold_loops(a, iters, PERIOD, SCNT, f"k2{R}")
        if role == 1:
            e("s_waitcnt vmcnt(0)")
            e("s_barrier")
        e("s_endpgm")

    producer(1)
    a.label("L_k2_prod0")
    a.vm = []
    producer(0)

    a.label("L_k2_cons")
    a.vm = []
    if OPT['cprio']:
        e(f"s_setprio {OPT['cprio']}")
    SCR = S * SLOT
    CG = 40
    CR = 44
    CKV = 48
    CEPS = 60
    CW = 38
    SHD, SM2 = SOKV, SRED
    e(f"s_and_b32 s{SHD}, s2, 31")
    e(f"s_lshr_b32 s{SM2}, s2, 5")
    e(f"s_lshl_b32 s{SM2}, s{SM2}, 1")
    e(f"s_lshr_b32 s{ST}, s{SWAVE}, 1")
    e(f"s_add_u32 s{SM2}, s{SM2}, s{ST}")
    e(f"s_lshr_b32 s{ST}, s{SHD}, 1")
    e(f"s_lshl_b32 s{ST}, s{ST}, 3")
    e(f"s_lshl_b32 s{ST + 1}, s{SWAVE}, 1")
    e(f"s_add_u32 s{ST}, s{ST}, s{ST + 1}")
    e(f"s_mul_i32 s{ST}, s{ST}, 12")
    e(f"s_and_b32 s{ST + 1}, s{SHD}, 1")
    e(f"s_mul_i32 s{ST + 1}, s{ST + 1}, 6")
    e(f"s_add_u32 s{ST}, s{ST}, s{ST + 1}")
    e(f"s_lshl_b32 s{ST}, s{ST}, 10")
    e(f"s_add_u32 s{ST}, s{ST}, {KVP_OFF}")
    e("s_waitcnt lgkmcnt(0)")
    srd(a, SWS, SP + 20, SP + 21, WS_USED)
    for r2 in range(2):
        for t6 in range(6):
            if t6 == 3:
                e(f"s_add_u32 s{ST}, s{ST}, 3072")
            a.vmem(f"buffer_load_dwordx4 {vr(VP + 24 * r2 + 4 * t6)}, v{VL16}, {WS}, s{ST} offen offset:{1024 * (t6 % 3)}", "kvp")
        if r2 == 0:
            e(f"s_add_u32 s{ST}, s{ST}, {12288 - 3072}")
    e(f"s_mul_i32 s{ST}, s{SM2}, 144")
    e(f"s_add_u32 s{ST}, s{ST}, s{SHD}")
    e(f"s_add_u32 s{ST}, s{ST}, 112")
    e(f"s_lshl_b32 s{ST}, s{ST}, 13")
    e(f"s_and_b32 s{ST + 1}, s{SWAVE}, 1")
    e(f"s_lshl_b32 s{ST + 1}, s{ST + 1}, 12")
    e(f"s_add_u32 s{ST}, s{ST}, s{ST + 1}")
    for i in range(4):
        a.vmem(f"buffer_load_dwordx4 {ar(64 + 4 * i)}, v{VL16}, {WS}, s{ST} offen offset:{1024 * i}", "pq")
    e(f"s_lshl_b32 s{SOP}, s{SM2}, 5")
    e(f"s_add_u32 s{SOP}, s{SOP}, s{SHD}")
    e(f"s_lshl_b32 s{SOP}, s{SOP}, 13")
    e(f"s_add_u32 s{SOP}, s{SOP}, s{ST + 1}")
    e(f"s_add_u32 s{SOP}, s{SOP}, {OF_OFF}")
    e(f"v_lshlrev_b32 v{t0}, 2, v{vi}")
    e(f"s_lshl_b32 s{ST}, s{SM2}, 9")
    e(f"s_lshr_b32 s{ST + 1}, s{ST + 1}, 4")
    e(f"s_add_u32 s{ST}, s{ST}, s{ST + 1}")
    e(f"s_add_u32 s{ST}, s{ST}, {G_OFF}")
    for i in range(4):
        a.vmem(f"buffer_load_dword v{CG + i}, v{t0}, {WS}, s{ST} offen offset:{64 * i}", "pq")
    load_g()
    srd(a, SOUT, SP + 16, SP + 17, 2048 * 1024 * 2)
    for r in range(4):
        e(f"v_mov_b32 v{CEPS + r}, {EPS_HEX}")
    e(f"s_mul_i32 s{ST}, s{SWAVE}, 6144")
    e(f"s_add_u32 s{ST}, s{ST}, {SCR}")
    e(f"v_add_u32 v{CW}, s{ST}, v{VL16}")
    e(f"v_add_u32 v{CW + 1}, {SCR}, v{VL16}")
    e(f"s_and_b32 s{ST}, s{SWAVE}, 1")
    e(f"s_lshl_b32 s{ST}, s{ST}, 12")
    e(f"v_add_u32 v{VAR}, s{ST}, v{VL16}")
    for k in range(1, NBASE):
        e(f"v_add_u32 v{VAR + k}, {65536 * k}, v{VAR}")
    e(f"v_lshlrev_b32 v{t0}, 2, v{vG}")
    e(f"v_lshrrev_b32 v{t1}, 2, v{vi}")
    e(f"v_add_u32 v{t0}, v{t0}, v{t1}")
    e(f"v_and_b32 v{t1}, 7, v{t0}")
    e(f"s_lshr_b32 s{ST}, s{SWAVE}, 1")
    e(f"s_lshl_b32 s{ST}, s{ST}, 2")
    e(f"v_xor_b32 v{t1}, s{ST}, v{t1}")
    e(f"v_lshlrev_b32 v{t0}, 8, v{t0}")
    e(f"v_and_b32 v{t2}, 3, v{vi}")
    e(f"v_lshlrev_b32 v{t2}, 3, v{t2}")
    e(f"v_add_u32 v{t0}, v{t0}, v{t2}")
    e(f"v_add_u32 v{t0}, 16384, v{t0}")
    for nt in range(4):
        e(f"v_xor_b32 v{t3}, {nt}, v{t1}")
        e(f"v_lshlrev_b32 v{t3}, 5, v{t3}")
        e(f"v_add_u32 v{VBR + nt}, v{t0}, v{t3}")
        for k in range(1, NBASE):
            e(f"v_add_u32 v{VBR + 4 * k + nt}, {65536 * k}, v{VBR + nt}")
    e(f"s_cmp_eq_u32 s{SROLE}, 0")
    e(f"s_cbranch_scc1 L_k2_cons0")

    def consumer(role):
        R = f"c{role}"
        nact = n0 if role == 0 else 56 - n0
        N = nact if role == 0 else nact + 16
        stamp(a, 0)
        a.wait(["kvp"])
        for q in range(12):
            e(f"v_pk_add_f32 {vr(VP + 2 * q, 2)}, {vr(VP + 2 * q, 2)}, {vr(VP + 24 + 2 * q, 2)}")
        for t6 in range(6):
            e(f"ds_write_b128 v{CW}, {vr(VP + 4 * t6)} offset:{1024 * t6}")
        e("s_waitcnt lgkmcnt(0)")
        stamp(a, 1)
        e("s_barrier")
        stamp(a, 2)

        def produce():
            for dt in range(2):
                for w2 in range(4):
                    for et in range(3):
                        e(f"ds_read_b128 {vr(VP + 12 * w2 + 4 * et)}, v{CW + 1} offset:{6144 * w2 + 1024 * (3 * dt + et)}")
                if dt == 0:
                    for fn in reads(0):
                        fn()
                e("s_waitcnt lgkmcnt(0)")
                for q in range(6):
                    e(f"v_pk_add_f32 {vr(VP + 2 * q, 2)}, {vr(VP + 2 * q, 2)}, {vr(VP + 12 + 2 * q, 2)}")
                    e(f"v_pk_add_f32 {vr(VP + 24 + 2 * q, 2)}, {vr(VP + 24 + 2 * q, 2)}, {vr(VP + 36 + 2 * q, 2)}")
                for q in range(6):
                    e(f"v_pk_add_f32 {vr(VP + 2 * q, 2)}, {vr(VP + 2 * q, 2)}, {vr(VP + 24 + 2 * q, 2)}")
                for et in range(3):
                    for h2 in range(2):
                        e(f"v_cvt_pk_bf16_f32 v{CKV + 4 * et + 2 * dt + h2}, v{VP + 4 * et + 2 * h2}, v{VP + 4 * et + 2 * h2 + 1}")
            a.wait(["pq", "g"])
            e("s_nop 1")
            for i in range(4):
                d = VD + 12 * i
                pq = ar(64 + 4 * i)
                e(f"v_mfma_f32_16x16x32_bf16 {vr(d + 8)}, {vr(CKV + 8)}, {pq}, {vr(CEPS)}")
                e(f"v_mfma_f32_16x16x32_bf16 {vr(d)}, {vr(CKV)}, {pq}, 0")
                e(f"v_mfma_f32_16x16x32_bf16 {vr(d + 4)}, {vr(CKV + 4)}, {pq}, 0")
            for i in range(4):
                e(f"v_sub_f32 v{VOMG + i}, 1.0, v{VG + i}")
            e("s_nop 3")
            for i in range(4):
                e(f"v_rcp_f32 v{CR + i}, v{VD + 12 * i + 8}")
            e("s_nop 0")
            for i in range(4):
                e(f"v_mul_f32 v{CR + i}, v{CR + i}, v{CG + i}")
            for i in range(4):
                d = VD + 12 * i
                sel = "op_sel:[0,1] op_sel_hi:[1,1]" if i & 1 else "op_sel_hi:[1,0]"
                for q in range(4):
                    e(f"v_pk_mul_f32 {vr(d + 2 * q, 2)}, {vr(d + 2 * q, 2)}, {vr(CR + (i & 2), 2)} {sel}")
                o = 112 + 4 * i
                for q in range(4):
                    e(f"v_cvt_pk_bf16_f32 v{o + q}, v{d + 2 * q}, v{d + 2 * q + 1}")
                a.vmem(f"buffer_store_dwordx4 {vr(o)}, v{VL16}, {WS}, s{SOP} offen offset:{1024 * i} sc1", "ost")

        def reads(j):
            sl = j % S
            k, so = sl // 2, (sl % 2) * SLOT
            f = []
            for q in range(4):
                for b in range(2):
                    f.append(lambda b=b, q=q: e(
                        f"ds_read_b128 {ar(FA(j, b, q))}, v{VAR + k} offset:{so + 8192 * b + 1024 * q}"))
                    for ins in range(2):
                        f.append(lambda b=b, q=q, ins=ins: e(
                            f"ds_read_b64_tr_b16 {ar(FB(j, b, q) + 2 * ins, 2)}, v{VBR + 4 * k + q} offset:{so + 8192 * b + 4096 * ins}"))
            return f

        def interval(j):
            main = []
            if j >= 1:
                for mt in range(4):
                    for nt in range(4):
                        D = vr(acc2(mt, nt))
                        for b in range(2):
                            C = "0" if (j == 1 and b == 0) else D
                            main.append(f"v_mfma_f32_16x16x32_bf16 {D}, {ar(FB(j - 1, b, nt))}, {ar(FA(j - 1, b, mt))}, {C}")
            rd = reads(j) if j < N else []
            if j == 0:
                produce()
                rd = []
            if j == 5:
                a.wait(["ost"])
                e(f"s_lshl_b32 s{ST}, s{SM2}, 8")
                e(f"s_add_u32 s{ST}, s{ST}, {FLG_OFF}")
                e(f"v_mov_b32 v{CW}, 1")
                e(f"v_mov_b32 v{CW + 1}, s{ST}")
                e("s_mov_b64 exec, 1")
                e(f"buffer_atomic_add v{CW}, v{CW + 1}, {WS}, 0 offen")
                e("s_mov_b64 exec, -1")
            if role == 1 and j == nact + 1:
                e("s_nop 7")
                for mt in range(4):
                    for q in range(16):
                        b0 = acc2(mt, 0) + q
                        e(f"v_mul_f32 v{b0}, v{VOMG + mt}, v{b0}")
                e("s_nop 1")
            schedule(a, main, [(rd, 0, OPT['rdend'])])
            if j < N:
                e("s_waitcnt lgkmcnt(0)")
                if j + 1 < N:
                    e("s_barrier")

        iters = []
        for j in range(N + 1):
            n_ = len(a.lines)
            if j == 4:
                stamp(a, 3)
            if role == 1 and j == nact:
                stamp(a, 4)
            interval(j)
            iters.append(a.lines[n_:])
            del a.lines[n_:]
        fold_loops(a, iters, PERIOD, SCNT, f"k2{R}")
        if role == 0:
            stamp(a, 4)
        stamp(a, 5)
        if role == 0:
            e(f"s_lshl_b32 s{ST}, s{STILE}, 16")
            e(f"s_mul_i32 s{ST + 1}, s{SWAVE}, {PSZ}")
            e(f"s_add_u32 s{ST}, s{ST}, s{ST + 1}")
            e(f"s_add_u32 s{ST}, s{ST}, {PART_OFF}")
            e("s_nop 7")
            if PBF:
                for q in range(8):
                    b0 = AC + 8 * q
                    for r in range(4):
                        e(f"v_cvt_pk_bf16_f32 v{b0 + r}, v{b0 + 2 * r}, v{b0 + 2 * r + 1}")
                    e(f"buffer_store_dwordx4 {vr(b0)}, v{VL16}, {WS}, s{ST} offen offset:{1024 * (q & 3)} sc1")
                    if q & 3 == 3:
                        e(f"s_add_u32 s{ST}, s{ST}, 4096")
            else:
                for q in range(16):
                    e(f"buffer_store_dwordx4 {vr(AC + 4 * q)}, v{VL16}, {WS}, s{ST} offen offset:{1024 * (q & 3)} sc1")
                    if q & 3 == 3:
                        e(f"s_add_u32 s{ST}, s{ST}, 4096")
            e(f"s_lshl_b32 s{ST}, s{STILE}, 8")
            e(f"s_add_u32 s{ST}, s{ST}, {FLG_OFF + 4096}")
            e(f"v_mov_b32 v{VT + 1}, s{ST}")
            e(f"v_mov_b32 v{VT}, 1")
            e("s_waitcnt vmcnt(0)")
            e("s_barrier")
            stamp(a, 6)
            e(f"s_cmp_lg_u32 s{SWAVE}, 0")
            e(f"s_cbranch_scc1 L_k2_p0end")
            e("s_mov_b64 exec, 1")
            e(f"buffer_store_dword v{VT}, v{VT + 1}, {WS}, 0 offen sc1")
            e("s_mov_b64 exec, -1")
            a.label("L_k2_p0end")
        else:
            JP = N - OPT['pj']
            ps = [(JP - 2) % S, (JP - 1) % S]
            vo, vpr = VT + 6, VT + 7
            e(f"v_and_b32 v{t2}, 15, v{VL}")
            e(f"v_lshlrev_b32 v{t2}, 11, v{t2}")
            e(f"v_bfe_u32 v{t3}, v{VL}, 4, 1")
            e(f"v_lshlrev_b32 v{t3}, 5, v{t3}")
            e(f"v_add_u32 v{t2}, v{t2}, v{t3}")
            e(f"v_lshrrev_b32 v{t3}, 5, v{VL}")
            e(f"v_lshlrev_b32 v{t3}, 4, v{t3}")
            e(f"v_add_u32 v{vo}, v{t2}, v{t3}")
            if PBF:
                e(f"s_mul_i32 s{ST + 1}, s{SWAVE}, {PSZ}")
                e(f"s_add_u32 s{ST + 1}, s{ST + 1}, {ps[1] * SLOT}")
            else:
                e(f"s_and_b32 s{ST + 1}, s{SWAVE}, 1")
                e(f"s_lshl_b32 s{ST + 1}, s{ST + 1}, 14")
                e(f"s_cmp_lt_u32 s{SWAVE}, 2")
                e(f"s_mov_b32 s{ST + 3}, {ps[1] * SLOT}")
                e(f"s_cselect_b32 s{ST + 2}, {ps[0] * SLOT}, s{ST + 3}")
                e(f"s_add_u32 s{ST + 1}, s{ST + 1}, s{ST + 2}")
            e(f"v_add_u32 v{vpr}, s{ST + 1}, v{VL16}")
            e(f"s_lshl_b32 s{ST}, s{SMT}, 7")
            e(f"s_and_b32 s{ST + 1}, s{SWAVE}, 1")
            e(f"s_lshl_b32 s{ST + 1}, s{ST + 1}, 6")
            e(f"s_add_u32 s{ST}, s{ST}, s{ST + 1}")
            e(f"s_lshl_b32 s{ST}, s{ST}, 11")
            e(f"s_lshl_b32 s{ST + 1}, s{SNT}, 8")
            e(f"s_add_u32 s{ST}, s{ST}, s{ST + 1}")
            e(f"s_lshr_b32 s{ST + 1}, s{SWAVE}, 1")
            e(f"s_lshl_b32 s{ST + 1}, s{ST + 1}, 7")
            e(f"s_add_u32 s{ST}, s{ST}, s{ST + 1}")
            e("s_barrier")
            PT = 24
            for mh2 in range(2):
                if PBF:
                    for q in range(4):
                        e(f"ds_read_b128 {vr(PT + 4 * q)}, v{vpr} offset:{1024 * (4 * mh2 + q)}")
                else:
                    for q in range(8):
                        e(f"ds_read_b128 {vr(PT + 4 * q)}, v{vpr} offset:{1024 * (8 * mh2 + q)}")
                e("s_waitcnt lgkmcnt(0)")
                for m2 in range(2):
                    mt = 2 * mh2 + m2
                    if PBF:
                        for q in range(8):
                            b0 = acc2(mt, 0) + 2 * q
                            p0 = PT + 8 * m2 + q
                            e(f"v_lshlrev_b32 v{PT + 16}, 16, v{p0}")
                            e(f"v_and_b32 v{PT + 17}, 0xffff0000, v{p0}")
                            e(f"v_fmac_f32 v{b0}, v{VOMG + mt}, v{PT + 16}")
                            e(f"v_fmac_f32 v{b0 + 1}, v{VOMG + mt}, v{PT + 17}")
                    else:
                        sel = "op_sel:[1,0,0] op_sel_hi:[1,1,1]" if mt & 1 else "op_sel_hi:[0,1,1]"
                        for q in range(8):
                            b0 = acc2(mt, 0) + 2 * q
                            p0 = PT + 16 * m2 + 2 * q
                            e(f"v_pk_fma_f32 {vr(b0, 2)}, {vr(VOMG + (mt & 2), 2)}, {vr(p0, 2)}, {vr(b0, 2)} {sel}")
                    for pr in range(2):
                        b0 = acc2(mt, 2 * pr)
                        for q in range(4):
                            e(f"v_cvt_pk_bf16_f32 v{b0 + q}, v{b0 + 2 * q}, v{b0 + 2 * q + 1}")
                    e("s_nop 1")
                    for pr in range(2):
                        b0 = acc2(mt, 2 * pr)
                        e(f"v_permlane16_swap_b32 v{b0}, v{b0 + 2}")
                        e(f"v_permlane16_swap_b32 v{b0 + 1}, v{b0 + 3}")
                    for pr in range(2):
                        b0 = acc2(mt, 2 * pr)
                        e(f"buffer_store_dwordx4 {vr(b0)}, v{vo}, s[{SOUT}:{SOUT + 3}], s{ST} offen offset:{64 * pr}")
                    if mt < 3:
                        e(f"s_add_u32 s{ST}, s{ST}, 32768")
            stamp(a, 6)
        if DIAG:
            e("s_waitcnt vmcnt(0)")
        stamp(a, 7)
        stamp_dump(a, 1, 8, SWAVE, SP + 20, SP + 21, VT + 8)
        e("s_endpgm")

    vm_save = list(a.vm)
    consumer(1)
    a.label("L_k2_cons0")
    a.vm = vm_save
    consumer(0)
    a.label("L_k2_exit")
    e("s_endpgm")
    return a.lines


def fix_hazards(lines):
    out = []
    for i, ln in enumerate(lines):
        out.append(ln)
        if " m0," in ln and i + 1 < len(lines) and lines[i + 1].rstrip().endswith("lds"):
            out.append("  s_nop 0")
    return out


def kd(name, nfv, accum):
    return f""".amdhsa_kernel {name}
  .amdhsa_next_free_vgpr {nfv}
  .amdhsa_next_free_sgpr 102
  .amdhsa_accum_offset {accum}
  .amdhsa_group_segment_fixed_size 0
  .amdhsa_kernarg_size 88
  .amdhsa_user_sgpr_count 2
  .amdhsa_user_sgpr_kernarg_segment_ptr 1
  .amdhsa_system_sgpr_workgroup_id_x 1
.end_amdhsa_kernel"""


def main(path):
    hdr = open(f"cdna_kernels/{NAME}.s.ref").read().split("; Override launch")[0]
    out = [hdr.rstrip("\n")]
    out.append(f"; @launch kernel=k1_kernel grid=(256,1,1) block=(256,1,1) lds={K1_LDS}")
    out.append(f"; @launch kernel=k2_kernel grid=(256,1,1) block=(512,1,1) lds={K2_LDS()}")
    out.append('.amdgcn_target "amdgcn-amd-amdhsa--gfx950"')
    out.append(".text")
    out += fix_hazards(gen_k1())
    out += fix_hazards(gen_k2())
    out.append('.section .rodata,"a"')
    out.append(".p2align 6")
    out.append(kd("k1_kernel", 256 + 152, 256))
    out.append(".p2align 6")
    out.append(kd("k2_kernel", 256, 128))
    open(path, "w").write("\n".join(out) + "\n")


if __name__ == "__main__":
    if "--dbgout" in sys.argv:
        DBGOUT = True
        sys.argv.remove("--dbgout")
    if "--diag" in sys.argv:
        DIAG = True
        sys.argv.remove("--diag")
    for arg in list(sys.argv):
        if "=" in arg:
            k_, v_ = arg.split("=")
            OPT[k_] = int(v_) if v_.isdigit() else v_.replace("+", " ")
            sys.argv.remove(arg)
    main(sys.argv[1] if len(sys.argv) > 1 else f"cdna_kernels/{NAME}.s")
```

```python
import sys

NAME = "gated_mix__linear_attn_block__dense_activation_mish__prompt"

AF_OFF = 0
AF_BYTES = 16 * 144 * 8 * 1024
KVP_OFF = AF_BYTES
KVP_BYTES = 16 * 8 * 12 * 1024
KVF_OFF = KVP_OFF + KVP_BYTES
KVF_BYTES = 32 * 3 * 1024
G_OFF = KVF_OFF + KVF_BYTES
PART_OFF = G_OFF + 8192
OF_OFF = PART_OFF + 128 * 65536
FLG_OFF = OF_OFF + 16 * 32 * 8192
WS_USED = FLG_OFF + 144 * 256

DIAG = False
DBGOUT = False
OPT = dict(k1a="", k1b="", k2a="", k2b="", st="", pf=1, n0=33, map=2, S=4, pbf=1, pj=2, pprio=0, cprio=0, rdend=26)
DIAG_OFF = 0x2000000
EPS_HEX = "0x358637bd"
L2E_HEX = "0x3fb8aa3b"


class Asm:
    def __init__(self):
        self.lines = []
        self.vm = []

    def e(self, s):
        for ln in s.split("\n"):
            self.lines.append("  " + ln.strip())

    def label(self, s):
        self.lines.append(s + ":")

    def vmem(self, s, tag):
        self.e(s)
        self.vm.append(tag)

    def mark(self, tag):
        self.vm.append("#" + tag)

    def vm_count(self, tags, drop=True):
        idx = -1
        for i, t in enumerate(self.vm):
            if t in tags:
                idx = i
        if idx < 0:
            return None
        n = sum(1 for t in self.vm[idx + 1:] if not t.startswith("#"))
        if drop:
            self.vm = self.vm[idx + 1:]
        assert n <= 63, n
        return n

    def wait(self, tags=(), lgkm=False):
        n = self.vm_count(tags) if tags else None
        parts = []
        if n is not None:
            parts.append(f"vmcnt({n})")
        if lgkm:
            parts.append("lgkmcnt(0)")
        if parts:
            self.e("s_waitcnt " + " ".join(parts))


def stamp(a, idx, sbase=80):
    if not DIAG:
        return
    a.e(f"s_memtime s[{sbase - 4}:{sbase - 3}]")
    a.e(f"s_memrealtime s[{sbase - 2}:{sbase - 1}]")
    a.e("s_waitcnt lgkmcnt(0)")
    a.e(f"s_mov_b32 s{sbase + 2 * idx}, s{sbase - 4}")
    a.e(f"s_mov_b32 s{sbase + 2 * idx + 1}, s{sbase - 2}")


def stamp_dump(a, kidx, n, swave, sptr_lo, sptr_hi, vtmp, sbase=80):
    if not DIAG:
        return
    e = a.e
    e(f"s_mov_b32 s{sbase - 4}, s{sptr_lo}")
    e(f"s_and_b32 s{sbase - 3}, s{sptr_hi}, 0xffff")
    e(f"s_mov_b32 s{sbase - 2}, 0x4000000")
    e(f"s_mov_b32 s{sbase - 1}, 0x20000")
    e(f"s_lshl_b32 s75, s2, 2")
    e(f"s_add_u32 s75, s75, s{swave}")
    e(f"s_lshl_b32 s75, s75, 7")
    e(f"s_add_u32 s75, s75, {DIAG_OFF + kidx * 0x100000}")
    e(f"v_mov_b32 v{vtmp}, 0")
    e("s_mov_b64 exec, 1")
    for i in range(2 * n):
        e(f"v_mov_b32 v{vtmp + 1}, s{sbase + i}")
        e(f"buffer_store_dword v{vtmp + 1}, v{vtmp}, s[{sbase - 4}:{sbase - 1}], s75 offen offset:{4 * i}")
        e("s_nop 1")
    e("s_mov_b64 exec, -1")
    if DBGOUT:
        lab = f"L_dbg_{len(a.lines)}"
        e(f"s_cmp_lg_u32 s2, 1")
        e(f"s_cbranch_scc1 {lab}")
        e(f"s_cmp_lg_u32 s{swave}, 0")
        e(f"s_cbranch_scc1 {lab}")
        e(f"s_mov_b32 s{sbase - 4}, s{sptr_lo - 2}")
        e(f"s_and_b32 s{sbase - 3}, s{sptr_hi - 2}, 0xffff")
        e(f"s_mov_b32 s{sbase - 2}, 256")
        e("s_mov_b64 exec, 1")
        for i in range(n):
            e(f"v_mov_b32 v{vtmp + 1}, s{sbase + 2 * i + 1}")
            e(f"buffer_store_dword v{vtmp + 1}, v{vtmp}, s[{sbase - 4}:{sbase - 1}], 0 offen offset:{4 * i + 32 * kidx}")
            e("s_nop 1")
        e("s_mov_b64 exec, -1")
        a.label(lab)


def vr(b, n=4):
    return f"v[{b}:{b + n - 1}]"


def ar(b, n=4):
    return f"a[{b}:{b + n - 1}]"


def interleave(a, mf, fillers, start=0, end=None):
    n = len(mf)
    if end is None:
        end = n
    nf = len(fillers)
    pos = [start + (j * (end - start)) // max(nf, 1) for j in range(nf)]
    j = 0
    for m in range(n):
        a.e(mf[m])
        while j < nf and pos[j] <= m:
            f = fillers[j]
            f()
            j += 1
    while j < nf:
        fillers[j]()
        j += 1


def srd(a, d, lo, hi, nbytes, bias=0):
    if bias:
        a.e(f"s_sub_u32 s{d}, s{lo}, {bias}")
        a.e(f"s_subb_u32 s{d + 1}, s{hi}, 0")
        a.e(f"s_and_b32 s{d + 1}, s{d + 1}, 0xffff")
    else:
        a.e(f"s_mov_b32 s{d}, s{lo}")
        a.e(f"s_and_b32 s{d + 1}, s{hi}, 0xffff")
    a.e(f"s_mov_b32 s{d + 2}, {nbytes + bias}")
    a.e(f"s_mov_b32 s{d + 3}, 0x20000")


K1_BSLOT = 13312
K1_AREA = 3328
K1_ABASE = 4 * K1_BSLOT
K1_LDS = K1_ABASE + 4 * 16384
ACC0 = 48


def acc(t, mt):
    return ACC0 + 16 * t + 4 * mt


V_LANE = 1
V_ARD = 2
V_QRD = 4
V_HRD = 8
V_ADMA = 9
V_BDMA = 13
V_L16 = 17
V_T = 18
S_X, S_Q, S_W1, S_WS, S_MISC = 4, 8, 12, 16, 20
S_WAVE, S_RB, S_P = 24, 25, 26
S_OFFA, S_OFFA2, S_OFFQ, S_OFFH = 27, 28, 29, 30
S_M0B, S_M0A = 31, 32
S_CNT = 33
S_QM = 34
S_PTR = 36
S_L2E = 58
S_T = 60
S_AFB = 72
S_GROW = 73
S_PO1, S_PO2 = 74, 3
S_PT, S_PTE = 100, 101
S_PF1, S_PF2 = 96, 20


def bset(s, t):
    return 52 * s + 4 * t


ASET = {"X": 104, "Y": 120, "Z": 136}


def k1_body(a, typ):
    T = "A" if typ == 0 else "B"
    nq = 8 if typ == 0 else 4
    nh = 13 - nq
    Ph = 2 * nh
    HB = 256 * nq
    e = a.e
    vi, vG, t0, t1, t2, t3 = V_T, V_T + 1, V_T + 2, V_T + 3, V_T + 4, V_T + 5
    e(f"v_and_b32 v{vi}, 15, v{V_LANE}")
    e(f"v_lshrrev_b32 v{vG}, 4, v{V_LANE}")
    e(f"s_mul_i32 s{S_T + 2}, s{S_P}, 448")
    if typ:
        e(f"s_add_u32 s{S_T + 2}, s{S_T + 2}, 160")

    e(f"s_lshr_b32 s{S_T + 8}, s{S_WAVE}, 1")
    e(f"s_lshl_b32 s{S_T + 8}, s{S_T + 8}, 4")
    e(f"s_and_b32 s{S_T + 9}, s{S_WAVE}, 1")
    e(f"s_lshl_b32 s{S_T + 9}, s{S_T + 9}, 2")
    e(f"s_add_u32 s{S_T + 8}, s{S_T + 8}, s{S_T + 9}")

    def krow(dst, kp, tmp):
        e(f"v_lshrrev_b32 v{tmp}, 2, v{kp}")
        e(f"v_lshlrev_b32 v{tmp}, 3, v{tmp}")
        e(f"v_and_b32 v{dst}, 3, v{kp}")
        e(f"v_add3_u32 v{dst}, v{dst}, v{tmp}, s{S_T + 8}")

    e(f"v_lshrrev_b32 v{t0}, 3, v{V_LANE}")
    krow(t1, t0, t2)
    e(f"v_mul_u32_u24 v{t1}, 6144, v{t1}")
    e(f"v_lshrrev_b32 v{t2}, 1, v{t0}")
    e(f"v_and_b32 v{t2}, 3, v{t2}")
    e(f"v_lshlrev_b32 v{t2}, 1, v{t2}")
    e(f"v_and_b32 v{t3}, 7, v{V_LANE}")
    e(f"v_xor_b32 v{t3}, v{t3}, v{t2}")
    e(f"v_lshlrev_b32 v{t3}, 4, v{t3}")
    e(f"v_add_u32 v{t1}, v{t1}, v{t3}")
    e(f"s_lshl_b32 s{S_T + 9}, s{S_P}, 7")
    e(f"s_add_u32 s{S_T + 9}, s{S_T + 9}, {4096 + (2048 if typ == 0 else 0)}")
    e(f"v_add_u32 v{V_BDMA}, s{S_T + 9}, v{t1}")
    if typ == 0:
        e(f"v_add_u32 v{V_BDMA + 1}, {2048 - 1024}, v{V_BDMA}")
    hins = [(2, 0), (3, 64)] if typ == 0 else [(1, 0), (2, 64), (3, 128)]
    magic, sh = (205, 11) if Ph == 10 else (57, 10)
    for s_ in range(8 * Ph + 64):
        if s_ < 8 * Ph:
            assert (s_ * magic) >> sh == s_ // Ph
    for slot, s0 in hins:
        e(f"v_add_u32 v{t0}, {s0}, v{V_LANE}")
        e(f"v_mul_u32_u24 v{t1}, {magic}, v{t0}")
        e(f"v_lshrrev_b32 v{t1}, {sh}, v{t1}")
        e(f"v_mul_u32_u24 v{t2}, {Ph}, v{t1}")
        e(f"v_sub_u32 v{t0}, v{t0}, v{t2}")
        e(f"v_and_b32 v{t1}, 7, v{t1}")
        krow(t2, t1, t3)
        e(f"v_mul_u32_u24 v{t2}, 7168, v{t2}")
        e(f"v_lshlrev_b32 v{t0}, 4, v{t0}")
        e(f"v_add3_u32 v{t0}, v{t0}, v{t2}, s{S_T + 2}")
        e(f"v_add_u32 v{V_BDMA + slot}, {4096 - 1024 * slot}, v{t0}")
    e(f"s_lshl_b32 s{S_T + 9}, s{S_RB}, 8")
    e(f"s_lshl_b32 s{S_T + 10}, s{S_WAVE}, 6")
    e(f"s_add_u32 s{S_T + 9}, s{S_T + 9}, s{S_T + 10}")
    e(f"s_lshl_b32 s{S_T + 9}, s{S_T + 9}, 11")
    e(f"v_lshrrev_b32 v{t0}, 3, v{V_LANE}")
    e(f"v_lshrrev_b32 v{t1}, 1, v{t0}")
    e(f"v_and_b32 v{t2}, 7, v{V_LANE}")
    e(f"v_xor_b32 v{t2}, v{t2}, v{t1}")
    e(f"v_lshlrev_b32 v{t0}, 11, v{t0}")
    e(f"v_add_u32 v{t0}, s{S_T + 9}, v{t0}")
    for j in range(4):
        if j & 1:
            e(f"v_xor_b32 v{t3}, 4, v{t2}")
            e(f"v_lshlrev_b32 v{t3}, 4, v{t3}")
        else:
            e(f"v_lshlrev_b32 v{t3}, 4, v{t2}")
        e(f"v_add_u32 v{t3}, v{t3}, v{t0}")
        e(f"v_add_u32 v{V_ADMA + j}, {j * (16384 - 1024)}, v{t3}")
    e(f"s_mul_i32 s{S_M0B}, s{S_WAVE}, {K1_AREA}")
    e(f"s_lshl_b32 s{S_M0A}, s{S_WAVE}, 14")
    e(f"s_add_u32 s{S_M0A}, s{S_M0A}, {K1_ABASE}")
    e(f"s_mov_b32 s{S_OFFA}, 0")
    e(f"s_mov_b32 s{S_OFFA2}, 65536")
    e(f"s_mov_b32 s{S_OFFQ}, 0")
    e(f"s_mov_b32 s{S_OFFH}, 0")
    e(f"s_mov_b32 s{S_QM}, 0xffff")
    e(f"s_mov_b32 s{S_QM + 1}, 0")

    def dmaB(tt):
        slot = tt % 4
        tag = f"B{tt}"
        f = []
        srcs = [(S_Q, S_OFFQ), (S_Q, S_OFFQ) if typ == 0 else (S_W1, S_OFFH), (S_W1, S_OFFH)]
        f.append(lambda: e(f"s_add_u32 m0, s{S_M0B}, {slot * K1_BSLOT}"))
        for j in range(3):
            sr, so = srcs[j]
            f.append(lambda j=j, sr=sr, so=so: a.vmem(
                f"buffer_load_dwordx4 v{V_BDMA + j}, s[{sr}:{sr + 3}], s{so} offen offset:{1024 * j} {OPT['k1b']} lds", tag))

        def q():
            e(f"s_mov_b64 exec, s[{S_QM}:{S_QM + 1}]")
            a.vmem(f"buffer_load_dwordx4 v{V_BDMA + 3}, s[{S_W1}:{S_W1 + 3}], s{S_OFFH} offen offset:3072 {OPT['k1b']} lds", tag)
            e("s_mov_b64 exec, -1")
        f.append(q)
        f.append(lambda: e(f"s_add_u32 s{S_OFFQ}, s{S_OFFQ}, {32 * 6144}"))
        f.append(lambda: e(f"s_add_u32 s{S_OFFH}, s{S_OFFH}, {32 * 7168}"))
        return f

    def dmaA(aa):
        slot = aa % 2
        tag = f"A{aa}"
        f = []
        for half in range(2):
            so = S_OFFA if half == 0 else S_OFFA2
            f.append(lambda half=half: e(f"s_add_u32 m0, s{S_M0A}, {slot * 8192 + half * 4096}"))
            for j in range(4):
                f.append(lambda j=j, so=so: a.vmem(
                    f"buffer_load_dwordx4 v{V_ADMA + j}, s[{S_X}:{S_X + 3}], s{so} offen offset:{1024 * j} {OPT['k1a']} lds", tag))
        f.append(lambda: e(f"s_add_u32 s{S_OFFA}, s{S_OFFA}, 128"))
        f.append(lambda: e(f"s_add_u32 s{S_OFFA2}, s{S_OFFA2}, 128"))
        return f

    def run_seq(fl):
        for fn in fl:
            n0 = len(a.lines)
            fn()
            if " m0," in a.lines[-1] and len(a.lines) == n0 + 1:
                e("s_nop 0")

    e("s_waitcnt lgkmcnt(0)")
    srd(a, S_Q, S_PTR + 2, S_PTR + 3, 1024 * 3072 * 2, bias=4096)
    srd(a, S_W1, S_PTR + 8, S_PTR + 9, 1024 * 3584 * 2, bias=4096)
    srd(a, S_X, S_PTR + 0, S_PTR + 1, 2048 * 1024 * 2)
    stamp(a, 0)
    run_seq(dmaB(0))
    run_seq(dmaA(0))
    srd(a, S_T + 4, S_PTR + 10, S_PTR + 11, 7168)
    e(f"v_lshlrev_b32 v{t1}, 3, v{vG}")
    for j in range(nh):
        a.vmem(f"buffer_load_dwordx2 {vr(acc(nq + j, 3), 2)}, v{t1}, s[{S_T + 4}:{S_T + 7}], s{S_T + 2} offen offset:{32 * j}", "bias")
    run_seq(dmaB(1))
    run_seq(dmaB(2))
    run_seq(dmaA(1))
    run_seq(dmaB(3))
    srd(a, S_WS, S_PTR + 20, S_PTR + 21, WS_USED)
    if OPT.get('xpf') == 1:
        e(f"v_and_b32 v{V_T + 28}, 31, v{V_LANE}")
        e(f"v_lshlrev_b32 v{V_T + 28}, 7, v{V_T + 28}")
        e(f"s_lshl_b32 s{S_T}, s2, 2")
        e(f"s_add_u32 s{S_T}, s{S_T}, s{S_WAVE}")
        e(f"s_lshl_b32 s{S_T}, s{S_T}, 12")
        a.vmem(f"buffer_load_dword v{V_T + 28}, v{V_T + 28}, s[{S_X}:{S_X + 3}], s{S_T} offen", "pf")
    if OPT.get('xpf') == 2:
        e(f"v_lshlrev_b32 v{V_T + 27}, 7, v{V_LANE}")
        e(f"s_lshr_b32 s{S_T}, s2, 5")
        e(f"s_lshl_b32 s{S_T}, s{S_T}, 2")
        e(f"s_add_u32 s{S_T}, s{S_T}, s{S_WAVE}")
        e(f"s_lshl_b32 s{S_T}, s{S_T}, 14")
        e(f"s_lshl_b32 s{S_T + 1}, s{S_RB}, 19")
        e(f"s_add_u32 s{S_T}, s{S_T}, s{S_T + 1}")
        a.vmem(f"buffer_load_dword v{V_T + 28}, v{V_T + 27}, s[{S_X}:{S_X + 3}], s{S_T} offen", "pf")
        e(f"s_add_u32 s{S_T}, s{S_T}, 8192")
        a.vmem(f"buffer_load_dword v{V_T + 28}, v{V_T + 27}, s[{S_X}:{S_X + 3}], s{S_T} offen", "pf")

    e(f"v_lshrrev_b32 v{t0}, 3, v{vi}")
    e(f"v_lshlrev_b32 v{t0}, 6, v{t0}")
    e(f"v_and_b32 v{t1}, 7, v{vi}")
    e(f"v_lshlrev_b32 v{t1}, 3, v{t1}")
    e(f"v_add_u32 v{t0}, v{t0}, v{t1}")
    e(f"v_lshrrev_b32 v{t1}, 1, v{vi}")
    e(f"v_xor_b32 v{t1}, v{t1}, v{vG}")
    e(f"v_add_u32 v{t2}, v{t0}, v{t1}")
    e(f"v_lshlrev_b32 v{t2}, 4, v{t2}")
    e(f"v_add_u32 v{V_ARD}, s{S_M0A}, v{t2}")
    e(f"v_xor_b32 v{t1}, 4, v{t1}")
    e(f"v_add_u32 v{t2}, v{t0}, v{t1}")
    e(f"v_lshlrev_b32 v{t2}, 4, v{t2}")
    e(f"v_add_u32 v{V_ARD + 1}, s{S_M0A}, v{t2}")
    e(f"v_and_b32 v{t0}, 1, v{vG}")
    e(f"v_lshlrev_b32 v{t0}, 2, v{t0}")
    e(f"v_lshrrev_b32 v{t1}, 2, v{vi}")
    e(f"v_add_u32 v{t0}, v{t0}, v{t1}")
    e(f"v_lshrrev_b32 v{t1}, 1, v{vG}")
    e(f"v_mul_u32_u24 v{t1}, {2 * K1_AREA}, v{t1}")
    e(f"v_and_b32 v{t2}, 3, v{vi}")
    e(f"v_lshlrev_b32 v{t2}, 3, v{t2}")
    e(f"v_add_u32 v{t1}, v{t1}, v{t2}")
    e(f"v_mul_u32_u24 v{t3}, {16 * Ph}, v{t0}")
    e(f"v_add3_u32 v{V_HRD}, v{t1}, v{t3}, {0}")
    e(f"v_add_u32 v{V_HRD}, {HB}, v{V_HRD}")
    e(f"v_lshlrev_b32 v{t3}, 7, v{t0}")
    e(f"v_add_u32 v{t1}, v{t1}, v{t3}")
    e(f"v_lshrrev_b32 v{t2}, 1, v{t0}")
    e(f"v_and_b32 v{t2}, 3, v{t2}")
    for t in range(4):
        e(f"v_xor_b32 v{t3}, {t}, v{t2}")
        e(f"v_lshlrev_b32 v{t3}, 5, v{t3}")
        e(f"v_add_u32 v{V_QRD + t}, v{t1}, v{t3}")
    e(f"v_lshlrev_b32 v{V_L16}, 4, v{V_LANE}")

    gw, gx0, gx1 = V_T, V_T + 8, V_T + 16
    gt = V_T + 24
    e(f"v_lshlrev_b32 v{gt}, 5, v{V_LANE}")
    e(f"s_lshl_b32 s{S_GROW}, s2, 3")
    e(f"s_lshl_b32 s{S_T + 1}, s{S_WAVE}, 1")
    e(f"s_add_u32 s{S_GROW}, s{S_GROW}, s{S_T + 1}")
    e(f"s_lshl_b32 s{S_T + 1}, s{S_GROW}, 11")
    srd(a, S_MISC, S_PTR + 14, S_PTR + 15, 2048)
    a.vmem(f"buffer_load_dwordx4 {vr(gw)}, v{gt}, s[{S_MISC}:{S_MISC + 3}], 0 offen", "g")
    a.vmem(f"buffer_load_dwordx4 {vr(gw + 4)}, v{gt}, s[{S_MISC}:{S_MISC + 3}], 0 offen offset:16", "g")
    a.vmem(f"buffer_load_dwordx4 {vr(gx0)}, v{gt}, s[{S_X}:{S_X + 3}], s{S_T + 1} offen", "g")
    a.vmem(f"buffer_load_dwordx4 {vr(gx0 + 4)}, v{gt}, s[{S_X}:{S_X + 3}], s{S_T + 1} offen offset:16", "g")
    a.vmem(f"buffer_load_dwordx4 {vr(gx1)}, v{gt}, s[{S_X}:{S_X + 3}], s{S_T + 1} offen offset:2048", "g")
    a.vmem(f"buffer_load_dwordx4 {vr(gx1 + 4)}, v{gt}, s[{S_X}:{S_X + 3}], s{S_T + 1} offen offset:2064", "g")

    if OPT['pf']:
        srd(a, S_PF1, S_PTR + 12, S_PTR + 13, 3584 * 1024 * 2)
        srd(a, S_PF2, S_PTR + 4, S_PTR + 5, 1024 * 1024 * 2)
        e(f"v_min_u32 v{V_T + 26}, 7, v{V_LANE}")
        e(f"v_lshlrev_b32 v{V_T + 26}, 7, v{V_T + 26}")
        e(f"v_min_u32 v{V_T + 27}, 2, v{V_LANE}")
        e(f"v_lshlrev_b32 v{V_T + 27}, 7, v{V_T + 27}")
        e(f"s_lshl_b32 s{S_T}, s2, 2")
        e(f"s_add_u32 s{S_T}, s{S_T}, s{S_WAVE}")
        e(f"s_mul_i32 s{S_PO1}, s{S_T}, 7168")
        e(f"s_lshl_b32 s{S_PO2}, s{S_T}, 11")

    if OPT.get('pt'):
        e(f"s_lshl_b32 s{S_T}, s{S_RB}, 1")
        e(f"s_lshr_b32 s{S_T + 1}, s{S_WAVE}, 1")
        e(f"s_add_u32 s{S_T}, s{S_T}, s{S_T + 1}")
        e(f"s_mul_i32 s{S_AFB}, s{S_T}, {144 * 8192}")
        e(f"s_and_b32 s{S_T + 1}, s{S_WAVE}, 1")
        e(f"s_lshl_b32 s{S_T + 1}, s{S_T + 1}, 12")
        e(f"s_add_u32 s{S_AFB}, s{S_AFB}, s{S_T + 1}")
        e(f"s_mul_i32 s{S_PT}, s{S_P}, {7 * 8192}")
        e(f"s_add_u32 s{S_PT}, s{S_PT}, s{S_AFB}")
        if typ:
            e(f"s_add_u32 s{S_PT}, s{S_PT}, {2 * 8192}")
        e(f"s_add_u32 s{S_PTE}, s{S_PT}, {(4 if typ else 2) * 8192}")
        e(f"v_and_b32 v{V_T + 25}, 31, v{V_LANE}")
        e(f"v_lshlrev_b32 v{V_T + 25}, 7, v{V_T + 25}")
        if typ:
            e(f"v_lshrrev_b32 v{V_T + 29}, 5, v{V_LANE}")
            e(f"v_lshlrev_b32 v{V_T + 29}, 13, v{V_T + 29}")
            e(f"v_add_u32 v{V_T + 29}, v{V_T + 29}, v{V_T + 25}")
            e(f"s_mul_i32 s{S_T}, s{S_P}, {2 * 8192}")
            e(f"s_add_u32 s{S_T}, s{S_T}, {112 * 8192}")
            e(f"s_add_u32 s{S_T}, s{S_T}, s{S_AFB}")
            a.vmem(f"buffer_load_dword v{V_T + 28}, v{V_T + 29}, s[{S_WS}:{S_WS + 3}], s{S_T} offen", "pf")

    def pt_items():
        return [lambda: a.vmem(f"buffer_load_dword v{V_T + 28}, v{V_T + 25}, s[{S_WS}:{S_WS + 3}], s{S_PT} offen", "pf"),
                lambda: e(f"s_add_u32 s{S_PT}, s{S_PT}, 8192"),
                lambda: e(f"s_min_u32 s{S_PT}, s{S_PT}, s{S_PTE}")]

    def pf_items():
        return [lambda: a.vmem(f"buffer_load_dword v{V_T + 28}, v{V_T + 26}, s[{S_PF1}:{S_PF1 + 3}], s{S_PO1} offen", "pf"),
                lambda: a.vmem(f"buffer_load_dword v{V_T + 28}, v{V_T + 27}, s[{S_PF2}:{S_PF2 + 3}], s{S_PO2} offen", "pf"),
                lambda: e(f"s_add_u32 s{S_PO1}, s{S_PO1}, 1024"),
                lambda: e(f"s_add_u32 s{S_PO2}, s{S_PO2}, 384")]

    def g_items():
        d0, d1 = V_T + 24, V_T + 25
        L = []
        L.append(f"v_dot2_f32_bf16 v{d0}, v{gx0}, v{gw}, 0")
        L.append(f"v_dot2_f32_bf16 v{d1}, v{gx1}, v{gw}, 0")
        for j in range(1, 8):
            L.append(f"v_dot2_f32_bf16 v{d0}, v{gx0 + j}, v{gw + j}, v{d0}")
            L.append(f"v_dot2_f32_bf16 v{d1}, v{gx1 + j}, v{gw + j}, v{d1}")
        L.append("s_nop 3")
        for sh_ in (1, 2, 4, 8):
            L.append(f"s_nop 0\nv_add_f32_dpp v{d0}, v{d0}, v{d0} row_shr:{sh_} row_mask:0xf bank_mask:0xf bound_ctrl:0")
            L.append(f"s_nop 0\nv_add_f32_dpp v{d1}, v{d1}, v{d1} row_shr:{sh_} row_mask:0xf bank_mask:0xf bound_ctrl:0")
        L.append(f"s_nop 0\nv_add_f32_dpp v{d0}, v{d0}, v{d0} row_bcast:15 row_mask:0xa bank_mask:0xf")
        L.append(f"s_nop 0\nv_add_f32_dpp v{d1}, v{d1}, v{d1} row_bcast:15 row_mask:0xa bank_mask:0xf")
        L.append(f"s_nop 0\nv_add_f32_dpp v{d0}, v{d0}, v{d0} row_bcast:31 row_mask:0xc bank_mask:0xf")
        L.append(f"s_nop 0\nv_add_f32_dpp v{d1}, v{d1}, v{d1} row_bcast:31 row_mask:0xc bank_mask:0xf")
        L.append(f"v_mul_f32 v{d0}, 0xbfb8aa3b, v{d0}")
        L.append(f"v_mul_f32 v{d1}, 0xbfb8aa3b, v{d1}")
        L.append(f"v_exp_f32 v{d0}, v{d0}")
        L.append(f"v_exp_f32 v{d1}, v{d1}\ns_nop 0")
        L.append(f"v_add_f32 v{d0}, 1.0, v{d0}")
        L.append(f"v_add_f32 v{d1}, 1.0, v{d1}")
        L.append(f"v_rcp_f32 v{d0}, v{d0}")
        L.append(f"v_rcp_f32 v{d1}, v{d1}")
        L.append(f"v_mov_b32 v{gw}, 0")
        L.append(f"s_lshl_b32 s{S_T + 1}, s{S_GROW}, 2\ns_add_u32 s{S_T + 1}, s{S_T + 1}, {G_OFF}")
        L.append(f"s_lshl_b32 s{S_T + 3}, s2, 8\ns_add_u32 s{S_T + 3}, s{S_T + 3}, {FLG_OFF}")
        L.append(f"s_mov_b32 s{S_T + 8}, 0\ns_mov_b32 s{S_T + 9}, 0x80000000")
        F = [(lambda x=x: e(x)) for x in L]

        def st():
            e(f"s_mov_b64 exec, s[{S_T + 8}:{S_T + 9}]")
            a.vmem(f"buffer_store_dwordx2 v[{d0}:{d1}], v{gw}, s[{S_WS}:{S_WS + 3}], s{S_T + 1} offen", "gst")
            a.vmem(f"buffer_store_dword v{gw}, v{gw}, s[{S_WS}:{S_WS + 3}], s{S_T + 3} offen", "gst")
            e("s_mov_b64 exec, -1")
        F.append(st)
        return F

    a.wait(["bias"])
    for j in range(nh):
        src = acc(nq + j, 3)
        d = acc(nq + j, 0)
        e(f"v_lshlrev_b32 v{d}, 16, v{src}")
        e(f"v_and_b32 v{d + 1}, 0xffff0000, v{src}")
        e(f"v_lshlrev_b32 v{d + 2}, 16, v{src + 1}")
        e(f"v_and_b32 v{d + 3}, 0xffff0000, v{src + 1}")
    for t in range(4):
        for r in range(4):
            e(f"v_mov_b32 v{acc(t, 0) + r}, {EPS_HEX}")

    def rdB(tt):
        slot = tt % 4
        s = tt % 2
        f = []
        for t in range(13):
            for ins in range(2):
                if t < nq:
                    addr = V_QRD + (t & 3)
                    off = slot * K1_BSLOT + ins * K1_AREA + 1024 * (t >> 2)
                else:
                    addr = V_HRD
                    off = slot * K1_BSLOT + ins * K1_AREA + 32 * (t - nq)
                d = bset(s, t) + 2 * ins
                f.append(lambda d=d, addr=addr, off=off: e(f"ds_read_b64_tr_b16 {ar(d, 2)}, v{addr} offset:{off}"))
        return f

    def aset_of(tt):
        if tt % 2 == 0:
            return ASET["X"]
        return ASET["Y"] if tt % 4 == 1 else ASET["Z"]

    def rdA(aa):
        slot = aa % 2
        f = []
        for hh in range(2):
            base = aset_of(2 * aa + hh)
            for mt in range(4):
                f.append(lambda hh=hh, mt=mt, base=base: e(
                    f"ds_read_b128 {ar(base + 4 * mt)}, v{V_ARD + hh} offset:{slot * 8192 + mt * 2048}"))
        return f

    stamp(a, 1)
    a.wait(["B0", "A0"])
    e("s_barrier")
    stamp(a, 2)
    for fn in rdA(0) + rdB(0):
        fn()
    a.wait(["B1"], lgkm=True)
    e("s_barrier")

    NSTEP = 32

    def step(tt):
        if DIAG and OPT.get('ts'):
            e("s_memrealtime s[76:77]")
            e("s_waitcnt lgkmcnt(0)")
            e("s_mov_b32 m0, s78")
            e("s_nop 0")
            e(f"v_writelane_b32 v{V_T + 29}, s76, m0")
            e("s_add_u32 s78, s78, 1")
        s = tt % 2
        ab = aset_of(tt)
        mf = []
        for t in range(13):
            order = [1, 2, 3, 0] if tt == 0 else [0, 1, 2, 3]
            for mt in order:
                D = vr(acc(t, mt))
                if tt == 0:
                    C = "0" if (typ == 0 and 4 <= t < 8) else vr(acc(t, 0))
                else:
                    C = D
                W = ar(bset(s, t))
                X = ar(ab + 4 * mt)
                if typ == 0 and t < 8:
                    mf.append(f"v_mfma_f32_16x16x32_bf16 {D}, {X}, {W}, {C}")
                else:
                    mf.append(f"v_mfma_f32_16x16x32_bf16 {D}, {W}, {X}, {C}")
        rd = []
        if tt + 1 < NSTEP:
            rd = rdB(tt + 1)
            if tt % 2 == 1:
                rd = rdA((tt + 1) // 2) + rd
        dm = []
        if OPT.get('afirst', 1) and tt % 2 == 0 and tt // 2 + 2 < NSTEP // 2:
            dm += dmaA(tt // 2 + 2)
        if tt + 4 < NSTEP:
            dm += dmaB(tt + 4)
        if not OPT.get('afirst', 1) and tt % 2 == 0 and tt // 2 + 2 < NSTEP // 2:
            dm += dmaA(tt // 2 + 2)
        if OPT['pf'] and tt % 4 == 1 and tt < 28:
            dm += pf_items()
        if OPT.get('pt') and tt % 4 == 3 and tt < 28:
            dm += pt_items()
        fl = []
        i1 = i2 = 0
        n1, n2 = len(rd), len(dm)
        while i1 < n1 or i2 < n2:
            if i2 < n2 and (i1 >= n1 or i2 * n1 <= i1 * n2):
                fl.append(dm[i2]); i2 += 1
            else:
                fl.append(rd[i1]); i1 += 1
        if tt == NSTEP - 1:
            assert "g" not in a.vm
            fl = g_items()
        interleave(a, mf, fl, 0, 48)
        if tt + 1 < NSTEP:
            tags = []
            if tt + 2 < NSTEP:
                tags.append(f"B{tt + 2}")
            if tt % 2 == 0:
                tags.append(f"A{tt // 2 + 1}")
            a.wait(tags, lgkm=True)
            if tt + 2 < NSTEP:
                e("s_barrier")

    iters = []
    for it in range(8):
        n0 = len(a.lines)
        for tt in range(4 * it, 4 * it + 4):
            step(tt)
        iters.append(a.lines[n0:])
        del a.lines[n0:]
    for it in range(2, 7):
        assert iters[it] == iters[1], f"iteration {it} differs"
    stamp(a, 3)
    if DIAG and OPT.get('ts'):
        e("s_mov_b32 s78, 0")
    a.lines += iters[0]
    if not OPT.get('ts'):
        stamp(a, 4)
    e(f"s_mov_b32 s{S_CNT}, 6")
    a.label(f"L_k1{T}_loop")
    a.lines += iters[1]
    e(f"s_sub_u32 s{S_CNT}, s{S_CNT}, 1")
    e(f"s_cmp_lg_u32 s{S_CNT}, 0")
    e(f"s_cbranch_scc1 L_k1{T}_loop")
    a.lines += iters[7]
    assert all(not t.startswith(("A", "B")) for t in a.vm), a.vm

    stamp(a, 5)

    def fin():
        if DIAG and OPT.get('ts'):
            e(f"s_mov_b32 s76, s{S_PTR + 20}")
            e(f"s_and_b32 s77, s{S_PTR + 21}, 0xffff")
            e(f"s_mov_b32 s78, 0x4000000")
            e(f"s_mov_b32 s79, 0x20000")
            e(f"s_lshl_b32 s75, s2, 2")
            e(f"s_add_u32 s75, s75, s{S_WAVE}")
            e(f"s_lshl_b32 s75, s75, 8")
            e(f"s_add_u32 s75, s75, {DIAG_OFF + 0x200000}")
            e(f"v_lshlrev_b32 v{V_T}, 2, v{V_LANE}")
            e(f"buffer_store_dword v{V_T + 29}, v{V_T}, s[76:79], s75 offen")
        stamp(a, 6)
        if DIAG:
            e("s_waitcnt vmcnt(0)")
        stamp(a, 7)
        stamp_dump(a, 0, 8, S_WAVE, S_PTR + 20, S_PTR + 21, V_T)
        e("s_endpgm")
    e(f"s_mov_b32 s{S_L2E}, {L2E_HEX}")
    e(f"s_mov_b32 s{S_L2E + 1}, {L2E_HEX}")
    e(f"s_lshl_b32 s{S_T}, s{S_RB}, 1")
    e(f"s_lshr_b32 s{S_T + 1}, s{S_WAVE}, 1")
    e(f"s_add_u32 s{S_T}, s{S_T}, s{S_T + 1}")
    e(f"s_mul_i32 s{S_AFB}, s{S_T}, {144 * 8192}")
    e(f"s_and_b32 s{S_T + 1}, s{S_WAVE}, 1")
    e(f"s_lshl_b32 s{S_T + 1}, s{S_T + 1}, 12")
    e(f"s_add_u32 s{S_AFB}, s{S_AFB}, s{S_T + 1}")
    e("s_nop 7")
    TT, UU = V_T, V_T + 8

    def phi_group(ra, rb_):
        prs = [ra, ra + 2, rb_, rb_ + 2]
        for j, p in enumerate(prs):
            e(f"v_pk_mul_f32 {vr(TT + 2 * j, 2)}, {vr(p, 2)}, s[{S_L2E}:{S_L2E + 1}]")
        for j in range(8):
            e(f"v_exp_f32_e64 v{TT + j}, v{TT + j} clamp")
        for p in prs:
            e(f"v_max_f32 v{p}, {EPS_HEX}, v{p}")
            e(f"v_max_f32 v{p + 1}, {EPS_HEX}, v{p + 1}")
        for j, p in enumerate(prs):
            e(f"v_pk_add_f32 {vr(p, 2)}, {vr(p, 2)}, {vr(TT + 2 * j, 2)}")
        for j, p in enumerate(prs):
            e(f"v_cvt_pk_bf16_f32 v{ra + j}, v{p}, v{p + 1}")

    def cvt_group(ra, rb_):
        prs = [ra, ra + 2, rb_, rb_ + 2]
        for j, p in enumerate(prs):
            e(f"v_cvt_pk_bf16_f32 v{ra + j}, v{p}, v{p + 1}")

    def mish_group(ra, rb_, split=False):
        prs = [ra, ra + 2, rb_, rb_ + 2]
        for j, p in enumerate(prs):
            e(f"v_pk_mul_f32 {vr(TT + 2 * j, 2)}, {vr(p, 2)}, s[{S_L2E}:{S_L2E + 1}]")
        for j in range(8):
            e(f"v_exp_f32 v{TT + j}, v{TT + j}")
        for j in range(4):
            e(f"v_pk_fma_f32 {vr(UU + 2 * j, 2)}, {vr(TT + 2 * j, 2)}, 0.5, 1.0 op_sel_hi:[1,0,0]")
        for j in range(4):
            e(f"v_pk_fma_f32 {vr(UU + 2 * j, 2)}, {vr(TT + 2 * j, 2)}, {vr(UU + 2 * j, 2)}, 1.0 op_sel_hi:[1,1,0]")
        for j in range(8):
            e(f"v_rcp_f32 v{UU + j}, v{UU + j}")
        for j, p in enumerate(prs):
            e(f"v_pk_fma_f32 {vr(p, 2)}, {vr(UU + 2 * j, 2)}, {vr(p, 2)}, {vr(p, 2)} neg_lo:[1,0,0] neg_hi:[1,0,0]")
        if split:
            e(f"v_cvt_pk_bf16_f32 v{ra}, v{ra}, v{ra + 1}")
            e(f"v_cvt_pk_bf16_f32 v{ra + 1}, v{ra + 2}, v{ra + 3}")
            e(f"v_cvt_pk_bf16_f32 v{rb_}, v{rb_}, v{rb_ + 1}")
            e(f"v_cvt_pk_bf16_f32 v{rb_ + 1}, v{rb_ + 2}, v{rb_ + 3}")
        else:
            for j, p in enumerate(prs):
                e(f"v_cvt_pk_bf16_f32 v{ra + j}, v{p}, v{p + 1}")

    WS = f"s[{S_WS}:{S_WS + 3}]"

    def set_kb(sreg, mul, add):
        e(f"s_mul_i32 s{sreg}, s{S_P}, {mul * 8192}")
        e(f"s_add_u32 s{sreg}, s{sreg}, {add * 8192}")
        e(f"s_add_u32 s{sreg}, s{sreg}, s{S_AFB}")

    def h_full(tA, kbl):
        set_kb(S_T + 2, 7, kbl)
        for mt in range(4):
            mish_group(acc(tA, mt), acc(tA + 1, mt))
            a.vmem(f"buffer_store_dwordx4 {vr(acc(tA, mt))}, v{V_L16}, {WS}, s{S_T + 2} offen offset:{1024 * mt} {OPT['st']}", "st")

    def h_half(tA, kbl, half):
        set_kb(S_T + 2, 7, kbl)
        for mp in range(2):
            mish_group(acc(tA, 2 * mp), acc(tA, 2 * mp + 1), split=True)
            for mt in (2 * mp, 2 * mp + 1):
                a.vmem(f"buffer_store_dwordx2 {vr(acc(tA, mt), 2)}, v{V_L16}, {WS}, s{S_T + 2} offen offset:{1024 * mt + 8 * half} {OPT['st']}", "st")

    if typ == 1:
        for hd in range(2):
            set_kb(S_T + 2, 2, 112 + hd)
            for mt in range(4):
                phi_group(acc(2 * hd, mt), acc(2 * hd + 1, mt))
                a.vmem(f"buffer_store_dwordx4 {vr(acc(2 * hd, mt))}, v{V_L16}, {WS}, s{S_T + 2} offen offset:{1024 * mt} {OPT['st']}", "st")
        h_half(4, 2, 1)
        for j in range(4):
            h_full(5 + 2 * j, 3 + j)
        fin()
        return

    ONES = V_T + 16
    for r in range(4):
        e(f"v_mov_b32 v{ONES + r}, 0x3f803f80")
    for t in range(4):
        for pr in range(2):
            phi_group(acc(t, 2 * pr), acc(t, 2 * pr + 1))
    for t in range(4, 8):
        for pr in range(2):
            cvt_group(acc(t, 2 * pr), acc(t, 2 * pr + 1))
    e("s_nop 1")
    free = [acc(t, m) for t in range(8) for m in (1, 3)]

    def Dt(tau):
        return free[tau]
    for pr in range(2):
        for hd in range(2):
            for dt in range(2):
                for et in range(3):
                    tau = hd * 6 + dt * 3 + et
                    Aop = vr(acc(2 * hd + dt, 2 * pr))
                    Bop = vr(acc(4 + 2 * hd + et, 2 * pr)) if et < 2 else vr(ONES)
                    C = "0" if pr == 0 else vr(Dt(tau))
                    e(f"v_mfma_f32_16x16x32_bf16 {vr(Dt(tau))}, {Aop}, {Bop}, {C}")
    vw, vrd = V_T + 20, V_T + 21
    e(f"v_add_u32 v{vw}, s{S_M0A}, v{V_L16}")
    e(f"s_mul_i32 s{S_T}, s{S_WAVE}, 3072")
    e(f"s_add_u32 s{S_T}, s{S_T}, {K1_ABASE}")
    e(f"v_add_u32 v{vrd}, s{S_T}, v{V_L16}")
    e("s_nop 7")
    for tau in range(12):
        e(f"ds_write_b128 v{vw}, {vr(Dt(tau))} offset:{1024 * tau}")
    h_full(8, 0)
    e("s_waitcnt lgkmcnt(0)")
    e("s_barrier")
    R = [acc(t, m) for t in range(8) for m in (0, 2)]
    for w2 in range(4):
        for j in range(3):
            e(f"ds_read_b128 {vr(R[3 * w2 + j])}, v{vrd} offset:{16384 * w2 + 1024 * j}")
    h_full(10, 1)
    e(f"s_lshl_b32 s{S_T}, s{S_P}, 3")
    e(f"s_add_u32 s{S_T}, s{S_T}, s{S_RB}")
    e(f"s_mul_i32 s{S_T}, s{S_T}, 12288")
    e(f"s_mul_i32 s{S_T + 1}, s{S_WAVE}, 3072")
    e(f"s_add_u32 s{S_T}, s{S_T}, s{S_T + 1}")
    e(f"s_add_u32 s{S_T}, s{S_T}, {KVP_OFF}")
    e("s_waitcnt lgkmcnt(0)")
    for j in range(3):
        for h2 in range(2):
            b0 = R[j] + 2 * h2
            e(f"v_pk_add_f32 {vr(b0, 2)}, {vr(b0, 2)}, {vr(R[3 + j] + 2 * h2, 2)}")
            e(f"v_pk_add_f32 {vr(R[6 + j] + 2 * h2, 2)}, {vr(R[6 + j] + 2 * h2, 2)}, {vr(R[9 + j] + 2 * h2, 2)}")
        for h2 in range(2):
            b0 = R[j] + 2 * h2
            e(f"v_pk_add_f32 {vr(b0, 2)}, {vr(b0, 2)}, {vr(R[6 + j] + 2 * h2, 2)}")
        a.vmem(f"buffer_store_dwordx4 {vr(R[j])}, v{V_L16}, {WS}, s{S_T} offen offset:{1024 * j}", "kvp")
    h_half(12, 2, 0)
    fin()


def gen_k1():
    a = Asm()
    e = a.e
    a.lines.append(".globl k1_kernel\n.p2align 8\n.type k1_kernel,@function\nk1_kernel:")
    e("s_cmp_ge_u32 s2, 256")
    e("s_cbranch_scc1 L_k1_exit")
    e(f"s_load_dwordx16 s[{S_PTR}:{S_PTR + 15}], s[0:1], 0")
    e(f"s_load_dwordx4 s[{S_PTR + 16}:{S_PTR + 19}], s[0:1], 64")
    e(f"s_load_dwordx2 s[{S_PTR + 20}:{S_PTR + 21}], s[0:1], 80")
    e(f"v_and_b32 v{V_LANE}, 63, v0")
    e(f"v_lshrrev_b32 v{V_T}, 6, v0")
    e(f"s_and_b32 s{S_T}, s2, 7")
    e(f"v_readfirstlane_b32 s{S_WAVE}, v{V_T}")
    e(f"s_lshr_b32 s{S_T + 1}, s2, 3")
    if OPT.get('map1', 0) == 0:
        e(f"s_and_b32 s{S_RB}, s{S_T}, 1")
        e(f"s_lshl_b32 s{S_RB}, s{S_RB}, 2")
        e(f"s_and_b32 s{S_T + 2}, s{S_T + 1}, 3")
        e(f"s_add_u32 s{S_RB}, s{S_RB}, s{S_T + 2}")
        e(f"s_lshr_b32 s{S_T}, s{S_T}, 1")
        e(f"s_lshl_b32 s{S_T}, s{S_T}, 3")
        e(f"s_lshr_b32 s{S_T + 1}, s{S_T + 1}, 2")
        e(f"s_add_u32 s{S_T}, s{S_T}, s{S_T + 1}")
    elif OPT['map1'] == 1:
        e(f"s_and_b32 s{S_RB}, s{S_T + 1}, 7")
        e(f"s_lshl_b32 s{S_T}, s{S_T}, 2")
        e(f"s_lshr_b32 s{S_T + 1}, s{S_T + 1}, 3")
        e(f"s_add_u32 s{S_T}, s{S_T}, s{S_T + 1}")
    else:
        e(f"s_and_b32 s{S_RB}, s{S_T}, 3")
        e(f"s_lshl_b32 s{S_RB}, s{S_RB}, 1")
        e(f"s_and_b32 s{S_T + 2}, s{S_T + 1}, 1")
        e(f"s_add_u32 s{S_RB}, s{S_RB}, s{S_T + 2}")
        e(f"s_lshr_b32 s{S_T}, s{S_T}, 2")
        e(f"s_lshl_b32 s{S_T}, s{S_T}, 4")
        e(f"s_lshr_b32 s{S_T + 1}, s{S_T + 1}, 1")
        e(f"s_add_u32 s{S_T}, s{S_T}, s{S_T + 1}")
    e(f"s_lshr_b32 s{S_P}, s{S_T}, 1")
    e(f"s_and_b32 s{S_T + 3}, s{S_T}, 1")
    e(f"s_cmp_lg_u32 s{S_T + 3}, 0")
    e("s_cbranch_scc1 L_k1_typeB")
    k1_body(a, 0)
    a.label("L_k1_typeB")
    a.vm = []
    k1_body(a, 1)
    a.label("L_k1_exit")
    e("s_endpgm")
    return a.lines


def K2_LDS():
    return OPT['S'] * 32768 + 24576


def fold_loops(a, iters, period, scnt, name):
    n = len(iters)
    i = 0
    lab = 0
    while i < n:
        reps = 1
        while i + (reps + 1) * period <= n and all(
                iters[i + k] == iters[i + reps * period + k] for k in range(period)):
            reps += 1
        if reps >= 2:
            a.e(f"s_mov_b32 s{scnt}, {reps}")
            a.label(f"L_{name}_{lab}")
            for k in range(period):
                a.lines += iters[i + k]
            a.e(f"s_sub_u32 s{scnt}, s{scnt}, 1")
            a.e(f"s_cmp_lg_u32 s{scnt}, 0")
            a.e(f"s_cbranch_scc1 L_{name}_{lab}")
            lab += 1
            i += reps * period
        else:
            a.lines += iters[i]
            i += 1


def schedule(a, mf, streams):
    n = len(mf)
    placed = []
    for si, (items, start, end) in enumerate(streams):
        m = len(items)
        prev = 0
        for j, it in enumerate(items):
            fn, early = it if isinstance(it, tuple) else (it, 0)
            pos = start + (j * (end - start)) / max(m, 1)
            pos = max(pos, early, prev)
            prev = pos
            placed.append((pos, si, j, fn))
    placed.sort(key=lambda x: (x[0], x[1], x[2]))
    k = 0
    if n == 0:
        for p in placed:
            p[3]()
        return
    for i in range(n):
        a.e(mf[i])
        while k < len(placed) and placed[k][0] < i + 1:
            placed[k][3]()
            k += 1
    while k < len(placed):
        placed[k][3]()
        k += 1


def gen_k2():
    a = Asm()
    e = a.e
    S = OPT['S']
    n0 = OPT['n0']
    SLOT = 32768
    PBF = OPT['pbf']
    SW2, SWO, SWS, SOUT, SDBG = 4, 8, 12, 16, 20
    SWAVE, SMT, SNT, STILE, SROLE = 24, 25, 26, 27, 28
    SOA, SOB, SOKV, SOP, SM0A, SM0B, SCNT, SRED, SW8 = 29, 30, 31, 32, 33, 34, 35, 58, 59
    SP = 36
    ST = 60
    NBASE = (S + 1) // 2
    VL = 1
    VL16 = 2
    VT = 4
    VG = 14
    VOMG = 18
    VAR = 22
    VBR = 25
    AC = 64
    VBD = 22
    VAD = 26
    VAW = 27
    VFL = 30
    VEPS = 32
    VR = 36
    VOF = 40
    VD = 64
    VP = 64

    def acc2(mt, nt):
        return AC + 16 * mt + 4 * nt

    def FA(j, b, mt):
        return 64 * (j % 2) + 32 * b + 4 * mt

    def FB(j, b, nt):
        return 64 * (j % 2) + 32 * b + 16 + 4 * nt

    def PQ(j, i):
        return 28 * (j % 4) + 4 * i

    def KV(j, i):
        return 28 * (j % 4) + 16 + 4 * i

    a.lines.append(".globl k2_kernel\n.p2align 8\n.type k2_kernel,@function\nk2_kernel:")
    e("s_cmp_ge_u32 s2, 256")
    e("s_cbranch_scc1 L_k2_exit")
    e(f"s_load_dwordx16 s[{SP}:{SP + 15}], s[0:1], 0")
    e(f"s_load_dwordx4 s[{SP + 16}:{SP + 19}], s[0:1], 64")
    e(f"s_load_dwordx2 s[{SP + 20}:{SP + 21}], s[0:1], 80")
    e(f"v_and_b32 v{VL}, 63, v0")
    e(f"v_lshrrev_b32 v{VT}, 6, v0")
    e(f"s_and_b32 s{ST}, s2, 7")
    e(f"v_readfirstlane_b32 s{SW8}, v{VT}")
    e(f"s_lshr_b32 s{ST + 1}, s2, 3")
    if OPT['map'] == 0:
        e(f"s_and_b32 s{SROLE}, s{ST}, 1")
        e(f"s_lshr_b32 s{ST}, s{ST}, 1")
        e(f"s_and_b32 s{SMT}, s{ST}, 1")
        e(f"s_lshl_b32 s{SMT}, s{SMT}, 3")
        e(f"s_and_b32 s{ST + 2}, s{ST + 1}, 7")
        e(f"s_add_u32 s{SMT}, s{SMT}, s{ST + 2}")
        e(f"s_lshr_b32 s{SNT}, s{ST}, 1")
        e(f"s_lshl_b32 s{SNT}, s{SNT}, 2")
        e(f"s_lshr_b32 s{ST + 1}, s{ST + 1}, 3")
        e(f"s_add_u32 s{SNT}, s{SNT}, s{ST + 1}")
    elif OPT['map'] == 2:
        e(f"s_and_b32 s{SROLE}, s{ST}, 1")
        e(f"s_lshr_b32 s{ST}, s{ST}, 1")
        e(f"s_lshl_b32 s{SMT}, s{ST}, 2")
        e(f"s_and_b32 s{ST + 2}, s{ST + 1}, 3")
        e(f"s_add_u32 s{SMT}, s{SMT}, s{ST + 2}")
        e(f"s_lshr_b32 s{SNT}, s{ST + 1}, 2")
    elif OPT['map'] == 3:
        e(f"s_and_b32 s{SROLE}, s{ST}, 1")
        e(f"s_lshr_b32 s{ST}, s{ST}, 1")
        e(f"s_and_b32 s{SMT}, s{ST + 1}, 15")
        e(f"s_lshl_b32 s{SNT}, s{ST}, 1")
        e(f"s_lshr_b32 s{ST + 1}, s{ST + 1}, 4")
        e(f"s_add_u32 s{SNT}, s{SNT}, s{ST + 1}")
    else:
        e(f"s_and_b32 s{SROLE}, s{ST + 1}, 1")
        e(f"s_lshr_b32 s{ST + 1}, s{ST + 1}, 1")
        e(f"s_and_b32 s{SMT}, s{ST}, 3")
        e(f"s_lshl_b32 s{SMT}, s{SMT}, 2")
        e(f"s_and_b32 s{ST + 2}, s{ST + 1}, 3")
        e(f"s_add_u32 s{SMT}, s{SMT}, s{ST + 2}")
        e(f"s_lshr_b32 s{SNT}, s{ST}, 2")
        e(f"s_lshl_b32 s{SNT}, s{SNT}, 2")
        e(f"s_lshr_b32 s{ST + 1}, s{ST + 1}, 2")
        e(f"s_add_u32 s{SNT}, s{SNT}, s{ST + 1}")
    e(f"s_and_b32 s{SWAVE}, s{SW8}, 3")
    e(f"s_lshl_b32 s{STILE}, s{SMT}, 3")
    e(f"s_add_u32 s{STILE}, s{STILE}, s{SNT}")
    vi, vG, t0, t1, t2, t3 = VT, VT + 1, VT + 2, VT + 3, VT + 4, VT + 5
    e(f"v_and_b32 v{vi}, 15, v{VL}")
    e(f"v_lshrrev_b32 v{vG}, 4, v{VL}")
    e(f"v_lshlrev_b32 v{VL16}, 4, v{VL}")
    WS = f"s[{SWS}:{SWS + 3}]"
    DBG = f"s[{SDBG}:{SDBG + 3}]"
    PSZ = 8192 if PBF else 16384
    e(f"s_cmp_lt_u32 s{SW8}, 4")
    e(f"s_cbranch_scc1 L_k2_cons")

    def load_g():
        e(f"v_lshlrev_b32 v{t0}, 2, v{vi}")
        e(f"s_lshl_b32 s{ST}, s{SMT}, 9")
        e(f"s_and_b32 s{ST + 1}, s{SWAVE}, 1")
        e(f"s_lshl_b32 s{ST + 1}, s{ST + 1}, 8")
        e(f"s_add_u32 s{ST}, s{ST}, s{ST + 1}")
        e(f"s_add_u32 s{ST}, s{ST}, {G_OFF}")
        for i in range(4):
            a.vmem(f"buffer_load_dword v{VG + i}, v{t0}, {WS}, s{ST} offen offset:{64 * i}", "g")

    def run_seq(fl):
        for fn in fl:
            n_ = len(a.lines)
            fn()
            if " m0," in a.lines[-1] and len(a.lines) == n_ + 1:
                e("s_nop 0")

    import math
    PERIOD = S * 4 // math.gcd(S, 4)

    if OPT['pprio']:
        e(f"s_setprio {OPT['pprio']}")
    e(f"s_lshl_b32 s{SM0A}, s{SWAVE}, 12")
    e(f"s_add_u32 s{SM0B}, s{SM0A}, 16384")
    e(f"v_add_u32 v{VAD}, s{SM0A}, v{VL16}")
    e(f"s_lshl_b32 s{ST + 2}, s{SNT}, 8")
    e(f"s_lshl_b32 s{ST + 3}, s{SWAVE}, 15")
    e(f"s_add_u32 s{ST + 2}, s{ST + 2}, s{ST + 3}")
    e(f"v_lshlrev_b32 v{t0}, 11, v{vG}")
    e(f"v_add_u32 v{t0}, s{ST + 2}, v{t0}")
    e(f"v_lshlrev_b32 v{t1}, 1, v{vG}")
    e(f"v_xor_b32 v{t1}, v{t1}, v{vi}")
    for j in range(4):
        if j & 1:
            e(f"v_xor_b32 v{t2}, 8, v{t1}")
            e(f"v_lshlrev_b32 v{t2}, 4, v{t2}")
        else:
            e(f"v_lshlrev_b32 v{t2}, 4, v{t1}")
        e(f"v_add_u32 v{t2}, v{t2}, v{t0}")
        e(f"v_add_u32 v{VBD + j}, {j * (8192 - 1024)}, v{t2}")
    e(f"s_mul_i32 s{SOA}, s{SMT}, {144 * 8192}")
    e(f"s_add_u32 s{SOP}, s{SOA}, {112 * 8192}")
    e(f"s_mov_b32 s{SOB}, 0")
    e("s_waitcnt lgkmcnt(0)")
    srd(a, SW2, SP + 12, SP + 13, 3584 * 1024 * 2)
    srd(a, SWS, SP + 20, SP + 21, WS_USED)
    srd(a, SWO, SP + 4, SP + 5, 1024 * 1024 * 2)
    srd(a, SDBG, SP + 18, SP + 19, 256)
    e(f"s_cmp_eq_u32 s{SROLE}, 0")
    e(f"s_cbranch_scc1 L_k2_prod0")

    def producer(role):
        R = f"p{role}"
        nact = n0 if role == 0 else 56 - n0
        N = nact if role == 0 else nact + 16
        SCR = S * SLOT
        if role == 1:
            e(f"s_add_u32 s{SOA}, s{SOA}, {n0 * 16384}")
            e(f"s_mov_b32 s{SOB}, {n0 * 131072}")

        def dmaA(j):
            f = []
            if j == nact:
                def sw():
                    e(f"s_lshl_b32 s{SOA}, s{SMT}, 18")
                    e(f"s_add_u32 s{SOA}, s{SOA}, {OF_OFF}")
                f.append(sw)
            fl = OPT['k2a'] if j < nact else "sc1"
            f.append(lambda: e(f"s_add_u32 m0, s{SM0A}, {(j % S) * SLOT}"))
            for i in range(4):
                f.append(lambda i=i: a.vmem(
                    f"buffer_load_dwordx4 v{VAD}, {WS}, s{SOA} offen offset:{1024 * i} {fl} lds", f"D{j}"))
            f.append(lambda: e(f"s_add_u32 s{SOA}, s{SOA}, 16384"))
            return f

        def dmaB(j):
            sr = SW2 if j < nact else SWO
            f = []
            if j == nact:
                f.append(lambda: e(f"s_mov_b32 s{SOB}, 0"))
            f.append(lambda: e(f"s_add_u32 m0, s{SM0B}, {(j % S) * SLOT}"))
            for i in range(4):
                f.append(lambda i=i: a.vmem(
                    f"buffer_load_dwordx4 v{VBD + i}, s[{sr}:{sr + 3}], s{SOB} offen offset:{1024 * i} {OPT['k2b']} lds", f"D{j}"))
            f.append(lambda: e(f"s_add_u32 s{SOB}, s{SOB}, 131072"))
            return f

        def dma_stage(j):
            return dmaA(j) + dmaB(j)

        for j in range(S - 1):
            run_seq(dma_stage(j))
        a.wait(["D0"])
        e("s_barrier")

        JP = N - OPT['pj']
        assert JP - (1 if PBF else 2) + S >= N and OPT['pj'] >= 1
        JO = nact - (S - 1)

        def interval(j):
            lg = False
            if role == 1 and j == JO - 3:
                e(f"s_lshl_b32 s{ST}, s{SMT}, 8")
                e(f"s_add_u32 s{ST}, s{ST}, {FLG_OFF}")
                e(f"v_mov_b32 v{VFL + 1}, s{ST}")
                a.vmem(f"buffer_load_dword v{VFL}, v{VFL + 1}, {WS}, 0 offen sc1", "F")
            if role == 1 and j == JO:
                a.wait(["F"])
                a.label("L_k2_kvwait")
                e(f"v_readfirstlane_b32 s{ST}, v{VFL}")
                e("s_nop 3")
                e(f"s_cmp_ge_u32 s{ST}, 64")
                e("s_cbranch_scc1 L_k2_kvok")
                e("s_sleep 8")
                e(f"buffer_load_dword v{VFL}, v{VFL + 1}, {WS}, 0 offen sc1")
                e("s_waitcnt vmcnt(0)")
                e("s_branch L_k2_kvwait")
                a.label("L_k2_kvok")
            if j + S - 1 < N:
                run_seq(dma_stage(j + S - 1))
            if role == 1 and j == JP:
                e(f"s_lshl_b32 s{ST}, s{STILE}, 8")
                e(f"s_add_u32 s{ST}, s{ST}, {FLG_OFF + 4096}")
                e(f"v_mov_b32 v{VFL + 1}, s{ST}")
                a.label("L_k2_pwait")
                e(f"buffer_load_dword v{VFL}, v{VFL + 1}, {WS}, 0 offen sc1")
                e("s_waitcnt vmcnt(0)")
                a.vm = []
                e(f"v_readfirstlane_b32 s{ST}, v{VFL}")
                e("s_nop 3")
                e(f"s_cmp_lg_u32 s{ST}, 0")
                e("s_cbranch_scc1 L_k2_pok")
                e("s_sleep 4")
                e("s_branch L_k2_pwait")
                a.label("L_k2_pok")
                e(f"s_lshl_b32 s{ST}, s{STILE}, 16")
                e(f"s_mul_i32 s{ST + 1}, s{SWAVE}, {PSZ}")
                e(f"s_add_u32 s{ST}, s{ST}, s{ST + 1}")
                e(f"s_add_u32 s{ST}, s{ST}, {PART_OFF}")
                ps = [(JP - 2) % S, (JP - 1) % S]
                if PBF:
                    e(f"s_add_u32 s{ST + 1}, s{ST + 1}, {ps[1] * SLOT}")
                else:
                    e(f"s_and_b32 s{ST + 1}, s{SWAVE}, 1")
                    e(f"s_lshl_b32 s{ST + 1}, s{ST + 1}, 14")
                    e(f"s_cmp_lt_u32 s{SWAVE}, 2")
                    e(f"s_mov_b32 s{ST + 3}, {ps[1] * SLOT}")
                    e(f"s_cselect_b32 s{ST + 2}, {ps[0] * SLOT}, s{ST + 3}")
                    e(f"s_add_u32 s{ST + 1}, s{ST + 1}, s{ST + 2}")
                for q in range(PSZ // 1024):
                    if q & 3 == 0:
                        e(f"s_add_u32 m0, s{ST + 1}, {1024 * q}")
                        e("s_nop 0")
                    a.vmem(f"buffer_load_dwordx4 v{VL16}, {WS}, s{ST} offen offset:{1024 * (q & 3)} sc1 lds", "PT")
                    if q & 3 == 3:
                        e(f"s_add_u32 s{ST}, s{ST}, 4096")
            if j + 1 < N:
                a.wait([f"D{j + 1}"], lgkm=lg)
                e("s_barrier")

        iters = []
        for j in range(N):
            n_ = len(a.lines)
            interval(j)
            iters.append(a.lines[n_:])
            del a.lines[n_:]
        fold_loops(a, iters, PERIOD, SCNT, f"k2{R}")
        if role == 1:
            e("s_waitcnt vmcnt(0)")
            e("s_barrier")
        e("s_endpgm")

    producer(1)
    a.label("L_k2_prod0")
    a.vm = []
    producer(0)

    a.label("L_k2_cons")
    a.vm = []
    if OPT['cprio']:
        e(f"s_setprio {OPT['cprio']}")
    SCR = S * SLOT
    CG = 40
    CR = 44
    CKV = 48
    CEPS = 60
    CW = 38
    SHD, SM2 = SOKV, SRED
    e(f"s_and_b32 s{SHD}, s2, 31")
    e(f"s_lshr_b32 s{SM2}, s2, 5")
    e(f"s_lshl_b32 s{SM2}, s{SM2}, 1")
    e(f"s_lshr_b32 s{ST}, s{SWAVE}, 1")
    e(f"s_add_u32 s{SM2}, s{SM2}, s{ST}")
    e(f"s_lshr_b32 s{ST}, s{SHD}, 1")
    e(f"s_lshl_b32 s{ST}, s{ST}, 3")
    e(f"s_lshl_b32 s{ST + 1}, s{SWAVE}, 1")
    e(f"s_add_u32 s{ST}, s{ST}, s{ST + 1}")
    e(f"s_mul_i32 s{ST}, s{ST}, 12")
    e(f"s_and_b32 s{ST + 1}, s{SHD}, 1")
    e(f"s_mul_i32 s{ST + 1}, s{ST + 1}, 6")
    e(f"s_add_u32 s{ST}, s{ST}, s{ST + 1}")
    e(f"s_lshl_b32 s{ST}, s{ST}, 10")
    e(f"s_add_u32 s{ST}, s{ST}, {KVP_OFF}")
    e("s_waitcnt lgkmcnt(0)")
    srd(a, SWS, SP + 20, SP + 21, WS_USED)
    for r2 in range(2):
        for t6 in range(6):
            if t6 == 3:
                e(f"s_add_u32 s{ST}, s{ST}, 3072")
            a.vmem(f"buffer_load_dwordx4 {vr(VP + 24 * r2 + 4 * t6)}, v{VL16}, {WS}, s{ST} offen offset:{1024 * (t6 % 3)}", "kvp")
        if r2 == 0:
            e(f"s_add_u32 s{ST}, s{ST}, {12288 - 3072}")
    e(f"s_mul_i32 s{ST}, s{SM2}, 144")
    e(f"s_add_u32 s{ST}, s{ST}, s{SHD}")
    e(f"s_add_u32 s{ST}, s{ST}, 112")
    e(f"s_lshl_b32 s{ST}, s{ST}, 13")
    e(f"s_and_b32 s{ST + 1}, s{SWAVE}, 1")
    e(f"s_lshl_b32 s{ST + 1}, s{ST + 1}, 12")
    e(f"s_add_u32 s{ST}, s{ST}, s{ST + 1}")
    for i in range(4):
        a.vmem(f"buffer_load_dwordx4 {ar(64 + 4 * i)}, v{VL16}, {WS}, s{ST} offen offset:{1024 * i}", "pq")
    e(f"s_lshl_b32 s{SOP}, s{SM2}, 5")
    e(f"s_add_u32 s{SOP}, s{SOP}, s{SHD}")
    e(f"s_lshl_b32 s{SOP}, s{SOP}, 13")
    e(f"s_add_u32 s{SOP}, s{SOP}, s{ST + 1}")
    e(f"s_add_u32 s{SOP}, s{SOP}, {OF_OFF}")
    e(f"v_lshlrev_b32 v{t0}, 2, v{vi}")
    e(f"s_lshl_b32 s{ST}, s{SM2}, 9")
    e(f"s_lshr_b32 s{ST + 1}, s{ST + 1}, 4")
    e(f"s_add_u32 s{ST}, s{ST}, s{ST + 1}")
    e(f"s_add_u32 s{ST}, s{ST}, {G_OFF}")
    for i in range(4):
        a.vmem(f"buffer_load_dword v{CG + i}, v{t0}, {WS}, s{ST} offen offset:{64 * i}", "pq")
    load_g()
    srd(a, SOUT, SP + 16, SP + 17, 2048 * 1024 * 2)
    for r in range(4):
        e(f"v_mov_b32 v{CEPS + r}, {EPS_HEX}")
    e(f"s_mul_i32 s{ST}, s{SWAVE}, 6144")
    e(f"s_add_u32 s{ST}, s{ST}, {SCR}")
    e(f"v_add_u32 v{CW}, s{ST}, v{VL16}")
    e(f"v_add_u32 v{CW + 1}, {SCR}, v{VL16}")
    e(f"s_and_b32 s{ST}, s{SWAVE}, 1")
    e(f"s_lshl_b32 s{ST}, s{ST}, 12")
    e(f"v_add_u32 v{VAR}, s{ST}, v{VL16}")
    for k in range(1, NBASE):
        e(f"v_add_u32 v{VAR + k}, {65536 * k}, v{VAR}")
    e(f"v_lshlrev_b32 v{t0}, 2, v{vG}")
    e(f"v_lshrrev_b32 v{t1}, 2, v{vi}")
    e(f"v_add_u32 v{t0}, v{t0}, v{t1}")
    e(f"v_and_b32 v{t1}, 7, v{t0}")
    e(f"s_lshr_b32 s{ST}, s{SWAVE}, 1")
    e(f"s_lshl_b32 s{ST}, s{ST}, 2")
    e(f"v_xor_b32 v{t1}, s{ST}, v{t1}")
    e(f"v_lshlrev_b32 v{t0}, 8, v{t0}")
    e(f"v_and_b32 v{t2}, 3, v{vi}")
    e(f"v_lshlrev_b32 v{t2}, 3, v{t2}")
    e(f"v_add_u32 v{t0}, v{t0}, v{t2}")
    e(f"v_add_u32 v{t0}, 16384, v{t0}")
    for nt in range(4):
        e(f"v_xor_b32 v{t3}, {nt}, v{t1}")
        e(f"v_lshlrev_b32 v{t3}, 5, v{t3}")
        e(f"v_add_u32 v{VBR + nt}, v{t0}, v{t3}")
        for k in range(1, NBASE):
            e(f"v_add_u32 v{VBR + 4 * k + nt}, {65536 * k}, v{VBR + nt}")
    e(f"s_cmp_eq_u32 s{SROLE}, 0")
    e(f"s_cbranch_scc1 L_k2_cons0")

    def consumer(role):
        R = f"c{role}"
        nact = n0 if role == 0 else 56 - n0
        N = nact if role == 0 else nact + 16
        stamp(a, 0)
        a.wait(["kvp"])
        for q in range(12):
            e(f"v_pk_add_f32 {vr(VP + 2 * q, 2)}, {vr(VP + 2 * q, 2)}, {vr(VP + 24 + 2 * q, 2)}")
        for t6 in range(6):
            e(f"ds_write_b128 v{CW}, {vr(VP + 4 * t6)} offset:{1024 * t6}")
        e("s_waitcnt lgkmcnt(0)")
        stamp(a, 1)
        e("s_barrier")
        stamp(a, 2)

        def produce():
            for dt in range(2):
                for w2 in range(4):
                    for et in range(3):
                        e(f"ds_read_b128 {vr(VP + 12 * w2 + 4 * et)}, v{CW + 1} offset:{6144 * w2 + 1024 * (3 * dt + et)}")
                if dt == 0:
                    for fn in reads(0):
                        fn()
                e("s_waitcnt lgkmcnt(0)")
                for q in range(6):
                    e(f"v_pk_add_f32 {vr(VP + 2 * q, 2)}, {vr(VP + 2 * q, 2)}, {vr(VP + 12 + 2 * q, 2)}")
                    e(f"v_pk_add_f32 {vr(VP + 24 + 2 * q, 2)}, {vr(VP + 24 + 2 * q, 2)}, {vr(VP + 36 + 2 * q, 2)}")
                for q in range(6):
                    e(f"v_pk_add_f32 {vr(VP + 2 * q, 2)}, {vr(VP + 2 * q, 2)}, {vr(VP + 24 + 2 * q, 2)}")
                for et in range(3):
                    for h2 in range(2):
                        e(f"v_cvt_pk_bf16_f32 v{CKV + 4 * et + 2 * dt + h2}, v{VP + 4 * et + 2 * h2}, v{VP + 4 * et + 2 * h2 + 1}")
            a.wait(["pq", "g"])
            e("s_nop 1")
            for i in range(4):
                d = VD + 12 * i
                pq = ar(64 + 4 * i)
                e(f"v_mfma_f32_16x16x32_bf16 {vr(d + 8)}, {vr(CKV + 8)}, {pq}, {vr(CEPS)}")
                e(f"v_mfma_f32_16x16x32_bf16 {vr(d)}, {vr(CKV)}, {pq}, 0")
                e(f"v_mfma_f32_16x16x32_bf16 {vr(d + 4)}, {vr(CKV + 4)}, {pq}, 0")
            for i in range(4):
                e(f"v_sub_f32 v{VOMG + i}, 1.0, v{VG + i}")
            e("s_nop 3")
            for i in range(4):
                e(f"v_rcp_f32 v{CR + i}, v{VD + 12 * i + 8}")
            e("s_nop 0")
            for i in range(4):
                e(f"v_mul_f32 v{CR + i}, v{CR + i}, v{CG + i}")
            for i in range(4):
                d = VD + 12 * i
                sel = "op_sel:[0,1] op_sel_hi:[1,1]" if i & 1 else "op_sel_hi:[1,0]"
                for q in range(4):
                    e(f"v_pk_mul_f32 {vr(d + 2 * q, 2)}, {vr(d + 2 * q, 2)}, {vr(CR + (i & 2), 2)} {sel}")
                o = 112 + 4 * i
                for q in range(4):
                    e(f"v_cvt_pk_bf16_f32 v{o + q}, v{d + 2 * q}, v{d + 2 * q + 1}")
                a.vmem(f"buffer_store_dwordx4 {vr(o)}, v{VL16}, {WS}, s{SOP} offen offset:{1024 * i} sc1", "ost")

        def reads(j):
            sl = j % S
            k, so = sl // 2, (sl % 2) * SLOT
            f = []
            for q in range(4):
                for b in range(2):
                    f.append(lambda b=b, q=q: e(
                        f"ds_read_b128 {ar(FA(j, b, q))}, v{VAR + k} offset:{so + 8192 * b + 1024 * q}"))
                    for ins in range(2):
                        f.append(lambda b=b, q=q, ins=ins: e(
                            f"ds_read_b64_tr_b16 {ar(FB(j, b, q) + 2 * ins, 2)}, v{VBR + 4 * k + q} offset:{so + 8192 * b + 4096 * ins}"))
            return f

        def interval(j):
            main = []
            if j >= 1:
                for mt in range(4):
                    for nt in range(4):
                        D = vr(acc2(mt, nt))
                        for b in range(2):
                            C = "0" if (j == 1 and b == 0) else D
                            main.append(f"v_mfma_f32_16x16x32_bf16 {D}, {ar(FB(j - 1, b, nt))}, {ar(FA(j - 1, b, mt))}, {C}")
            rd = reads(j) if j < N else []
            if j == 0:
                produce()
                rd = []
            if j == 5:
                a.wait(["ost"])
                e(f"s_lshl_b32 s{ST}, s{SM2}, 8")
                e(f"s_add_u32 s{ST}, s{ST}, {FLG_OFF}")
                e(f"v_mov_b32 v{CW}, 1")
                e(f"v_mov_b32 v{CW + 1}, s{ST}")
                e("s_mov_b64 exec, 1")
                e(f"buffer_atomic_add v{CW}, v{CW + 1}, {WS}, 0 offen")
                e("s_mov_b64 exec, -1")
            if role == 1 and j == nact + 1:
                e("s_nop 7")
                for mt in range(4):
                    for q in range(16):
                        b0 = acc2(mt, 0) + q
                        e(f"v_mul_f32 v{b0}, v{VOMG + mt}, v{b0}")
                e("s_nop 1")
            schedule(a, main, [(rd, 0, OPT['rdend'])])
            if j < N:
                e("s_waitcnt lgkmcnt(0)")
                if j + 1 < N:
                    e("s_barrier")

        iters = []
        for j in range(N + 1):
            n_ = len(a.lines)
            if j == 4:
                stamp(a, 3)
            if role == 1 and j == nact:
                stamp(a, 4)
            interval(j)
            iters.append(a.lines[n_:])
            del a.lines[n_:]
        fold_loops(a, iters, PERIOD, SCNT, f"k2{R}")
        if role == 0:
            stamp(a, 4)
        stamp(a, 5)
        if role == 0:
            e(f"s_lshl_b32 s{ST}, s{STILE}, 16")
            e(f"s_mul_i32 s{ST + 1}, s{SWAVE}, {PSZ}")
            e(f"s_add_u32 s{ST}, s{ST}, s{ST + 1}")
            e(f"s_add_u32 s{ST}, s{ST}, {PART_OFF}")
            e("s_nop 7")
            if PBF:
                for q in range(8):
                    b0 = AC + 8 * q
                    for r in range(4):
                        e(f"v_cvt_pk_bf16_f32 v{b0 + r}, v{b0 + 2 * r}, v{b0 + 2 * r + 1}")
                    e(f"buffer_store_dwordx4 {vr(b0)}, v{VL16}, {WS}, s{ST} offen offset:{1024 * (q & 3)} sc1")
                    if q & 3 == 3:
                        e(f"s_add_u32 s{ST}, s{ST}, 4096")
            else:
                for q in range(16):
                    e(f"buffer_store_dwordx4 {vr(AC + 4 * q)}, v{VL16}, {WS}, s{ST} offen offset:{1024 * (q & 3)} sc1")
                    if q & 3 == 3:
                        e(f"s_add_u32 s{ST}, s{ST}, 4096")
            e(f"s_lshl_b32 s{ST}, s{STILE}, 8")
            e(f"s_add_u32 s{ST}, s{ST}, {FLG_OFF + 4096}")
            e(f"v_mov_b32 v{VT + 1}, s{ST}")
            e(f"v_mov_b32 v{VT}, 1")
            e("s_waitcnt vmcnt(0)")
            e("s_barrier")
            stamp(a, 6)
            e(f"s_cmp_lg_u32 s{SWAVE}, 0")
            e(f"s_cbranch_scc1 L_k2_p0end")
            e("s_mov_b64 exec, 1")
            e(f"buffer_store_dword v{VT}, v{VT + 1}, {WS}, 0 offen sc1")
            e("s_mov_b64 exec, -1")
            a.label("L_k2_p0end")
        else:
            JP = N - OPT['pj']
            ps = [(JP - 2) % S, (JP - 1) % S]
            vo, vpr = VT + 6, VT + 7
            e(f"v_and_b32 v{t2}, 15, v{VL}")
            e(f"v_lshlrev_b32 v{t2}, 11, v{t2}")
            e(f"v_bfe_u32 v{t3}, v{VL}, 4, 1")
            e(f"v_lshlrev_b32 v{t3}, 5, v{t3}")
            e(f"v_add_u32 v{t2}, v{t2}, v{t3}")
            e(f"v_lshrrev_b32 v{t3}, 5, v{VL}")
            e(f"v_lshlrev_b32 v{t3}, 4, v{t3}")
            e(f"v_add_u32 v{vo}, v{t2}, v{t3}")
            if PBF:
                e(f"s_mul_i32 s{ST + 1}, s{SWAVE}, {PSZ}")
                e(f"s_add_u32 s{ST + 1}, s{ST + 1}, {ps[1] * SLOT}")
            else:
                e(f"s_and_b32 s{ST + 1}, s{SWAVE}, 1")
                e(f"s_lshl_b32 s{ST + 1}, s{ST + 1}, 14")
                e(f"s_cmp_lt_u32 s{SWAVE}, 2")
                e(f"s_mov_b32 s{ST + 3}, {ps[1] * SLOT}")
                e(f"s_cselect_b32 s{ST + 2}, {ps[0] * SLOT}, s{ST + 3}")
                e(f"s_add_u32 s{ST + 1}, s{ST + 1}, s{ST + 2}")
            e(f"v_add_u32 v{vpr}, s{ST + 1}, v{VL16}")
            e(f"s_lshl_b32 s{ST}, s{SMT}, 7")
            e(f"s_and_b32 s{ST + 1}, s{SWAVE}, 1")
            e(f"s_lshl_b32 s{ST + 1}, s{ST + 1}, 6")
            e(f"s_add_u32 s{ST}, s{ST}, s{ST + 1}")
            e(f"s_lshl_b32 s{ST}, s{ST}, 11")
            e(f"s_lshl_b32 s{ST + 1}, s{SNT}, 8")
            e(f"s_add_u32 s{ST}, s{ST}, s{ST + 1}")
            e(f"s_lshr_b32 s{ST + 1}, s{SWAVE}, 1")
            e(f"s_lshl_b32 s{ST + 1}, s{ST + 1}, 7")
            e(f"s_add_u32 s{ST}, s{ST}, s{ST + 1}")
            e("s_barrier")
            PT = 24
            for mh2 in range(2):
                if PBF:
                    for q in range(4):
                        e(f"ds_read_b128 {vr(PT + 4 * q)}, v{vpr} offset:{1024 * (4 * mh2 + q)}")
                else:
                    for q in range(8):
                        e(f"ds_read_b128 {vr(PT + 4 * q)}, v{vpr} offset:{1024 * (8 * mh2 + q)}")
                e("s_waitcnt lgkmcnt(0)")
                for m2 in range(2):
                    mt = 2 * mh2 + m2
                    if PBF:
                        for q in range(8):
                            b0 = acc2(mt, 0) + 2 * q
                            p0 = PT + 8 * m2 + q
                            e(f"v_lshlrev_b32 v{PT + 16}, 16, v{p0}")
                            e(f"v_and_b32 v{PT + 17}, 0xffff0000, v{p0}")
                            e(f"v_fmac_f32 v{b0}, v{VOMG + mt}, v{PT + 16}")
                            e(f"v_fmac_f32 v{b0 + 1}, v{VOMG + mt}, v{PT + 17}")
                    else:
                        sel = "op_sel:[1,0,0] op_sel_hi:[1,1,1]" if mt & 1 else "op_sel_hi:[0,1,1]"
                        for q in range(8):
                            b0 = acc2(mt, 0) + 2 * q
                            p0 = PT + 16 * m2 + 2 * q
                            e(f"v_pk_fma_f32 {vr(b0, 2)}, {vr(VOMG + (mt & 2), 2)}, {vr(p0, 2)}, {vr(b0, 2)} {sel}")
                    for pr in range(2):
                        b0 = acc2(mt, 2 * pr)
                        for q in range(4):
                            e(f"v_cvt_pk_bf16_f32 v{b0 + q}, v{b0 + 2 * q}, v{b0 + 2 * q + 1}")
                    e("s_nop 1")
                    for pr in range(2):
                        b0 = acc2(mt, 2 * pr)
                        e(f"v_permlane16_swap_b32 v{b0}, v{b0 + 2}")
                        e(f"v_permlane16_swap_b32 v{b0 + 1}, v{b0 + 3}")
                    for pr in range(2):
                        b0 = acc2(mt, 2 * pr)
                        e(f"buffer_store_dwordx4 {vr(b0)}, v{vo}, s[{SOUT}:{SOUT + 3}], s{ST} offen offset:{64 * pr}")
                    if mt < 3:
                        e(f"s_add_u32 s{ST}, s{ST}, 32768")
            stamp(a, 6)
        if DIAG:
            e("s_waitcnt vmcnt(0)")
        stamp(a, 7)
        stamp_dump(a, 1, 8, SWAVE, SP + 20, SP + 21, VT + 8)
        e("s_endpgm")

    vm_save = list(a.vm)
    consumer(1)
    a.label("L_k2_cons0")
    a.vm = vm_save
    consumer(0)
    a.label("L_k2_exit")
    e("s_endpgm")
    return a.lines


def fix_hazards(lines):
    out = []
    for i, ln in enumerate(lines):
        out.append(ln)
        if " m0," in ln and i + 1 < len(lines) and lines[i + 1].rstrip().endswith("lds"):
            out.append("  s_nop 0")
    return out


def kd(name, nfv, accum):
    return f""".amdhsa_kernel {name}
  .amdhsa_next_free_vgpr {nfv}
  .amdhsa_next_free_sgpr 102
  .amdhsa_accum_offset {accum}
  .amdhsa_group_segment_fixed_size 0
  .amdhsa_kernarg_size 88
  .amdhsa_user_sgpr_count 2
  .amdhsa_user_sgpr_kernarg_segment_ptr 1
  .amdhsa_system_sgpr_workgroup_id_x 1
.end_amdhsa_kernel"""


def main(path):
    hdr = open(f"cdna_kernels/{NAME}.s.ref").read().split("; Override launch")[0]
    out = [hdr.rstrip("\n")]
    out.append(f"; @launch kernel=k1_kernel grid=(256,1,1) block=(256,1,1) lds={K1_LDS}")
    out.append(f"; @launch kernel=k2_kernel grid=(256,1,1) block=(512,1,1) lds={K2_LDS()}")
    out.append('.amdgcn_target "amdgcn-amd-amdhsa--gfx950"')
    out.append(".text")
    out += fix_hazards(gen_k1())
    out += fix_hazards(gen_k2())
    out.append('.section .rodata,"a"')
    out.append(".p2align 6")
    out.append(kd("k1_kernel", 256 + 152, 256))
    out.append(".p2align 6")
    out.append(kd("k2_kernel", 256, 128))
    open(path, "w").write("\n".join(out) + "\n")


if __name__ == "__main__":
    if "--dbgout" in sys.argv:
        DBGOUT = True
        sys.argv.remove("--dbgout")
    if "--diag" in sys.argv:
        DIAG = True
        sys.argv.remove("--diag")
    for arg in list(sys.argv):
        if "=" in arg:
            k_, v_ = arg.split("=")
            OPT[k_] = int(v_) if v_.isdigit() else v_.replace("+", " ")
            sys.argv.remove(arg)
    main(sys.argv[1] if len(sys.argv) > 1 else f"cdna_kernels/{NAME}.s")
```

```python
import sys

NAME = "gated_mix__linear_attn_block__dense_activation_mish__prompt"

AF_OFF = 0
AF_BYTES = 16 * 144 * 8 * 1024
KVP_OFF = AF_BYTES
KVP_BYTES = 16 * 8 * 12 * 1024
KVF_OFF = KVP_OFF + KVP_BYTES
KVF_BYTES = 32 * 3 * 1024
G_OFF = KVF_OFF + KVF_BYTES
PART_OFF = G_OFF + 8192
OF_OFF = PART_OFF + 128 * 65536
FLG_OFF = OF_OFF + 16 * 32 * 8192
WS_USED = FLG_OFF + 144 * 256

DIAG = False
DBGOUT = False
OPT = dict(k1a="", k1b="", k2a="", k2b="", st="", pf=2, xpf=1, n0=33, map=2, S=4, pbf=1, pj=2, pprio=0, cprio=0, rdend=26)
DIAG_OFF = 0x2000000
EPS_HEX = "0x358637bd"
L2E_HEX = "0x3fb8aa3b"


class Asm:
    def __init__(self):
        self.lines = []
        self.vm = []

    def e(self, s):
        for ln in s.split("\n"):
            self.lines.append("  " + ln.strip())

    def label(self, s):
        self.lines.append(s + ":")

    def vmem(self, s, tag):
        self.e(s)
        self.vm.append(tag)

    def mark(self, tag):
        self.vm.append("#" + tag)

    def vm_count(self, tags, drop=True):
        idx = -1
        for i, t in enumerate(self.vm):
            if t in tags:
                idx = i
        if idx < 0:
            return None
        n = sum(1 for t in self.vm[idx + 1:] if not t.startswith("#"))
        if drop:
            self.vm = self.vm[idx + 1:]
        assert n <= 63, n
        return n

    def wait(self, tags=(), lgkm=False):
        n = self.vm_count(tags) if tags else None
        parts = []
        if n is not None:
            parts.append(f"vmcnt({n})")
        if lgkm:
            parts.append("lgkmcnt(0)")
        if parts:
            self.e("s_waitcnt " + " ".join(parts))


def stamp(a, idx, sbase=80):
    if not DIAG:
        return
    a.e(f"s_memtime s[{sbase - 4}:{sbase - 3}]")
    a.e(f"s_memrealtime s[{sbase - 2}:{sbase - 1}]")
    a.e("s_waitcnt lgkmcnt(0)")
    a.e(f"s_mov_b32 s{sbase + 2 * idx}, s{sbase - 4}")
    a.e(f"s_mov_b32 s{sbase + 2 * idx + 1}, s{sbase - 2}")


def stamp_dump(a, kidx, n, swave, sptr_lo, sptr_hi, vtmp, sbase=80):
    if not DIAG:
        return
    e = a.e
    e(f"s_mov_b32 s{sbase - 4}, s{sptr_lo}")
    e(f"s_and_b32 s{sbase - 3}, s{sptr_hi}, 0xffff")
    e(f"s_mov_b32 s{sbase - 2}, 0x4000000")
    e(f"s_mov_b32 s{sbase - 1}, 0x20000")
    e(f"s_lshl_b32 s75, s2, 2")
    e(f"s_add_u32 s75, s75, s{swave}")
    e(f"s_lshl_b32 s75, s75, 7")
    e(f"s_add_u32 s75, s75, {DIAG_OFF + kidx * 0x100000}")
    e(f"v_mov_b32 v{vtmp}, 0")
    e("s_mov_b64 exec, 1")
    for i in range(2 * n):
        e(f"v_mov_b32 v{vtmp + 1}, s{sbase + i}")
        e(f"buffer_store_dword v{vtmp + 1}, v{vtmp}, s[{sbase - 4}:{sbase - 1}], s75 offen offset:{4 * i}")
        e("s_nop 1")
    e("s_mov_b64 exec, -1")
    if DBGOUT:
        lab = f"L_dbg_{len(a.lines)}"
        e(f"s_cmp_lg_u32 s2, 1")
        e(f"s_cbranch_scc1 {lab}")
        e(f"s_cmp_lg_u32 s{swave}, 0")
        e(f"s_cbranch_scc1 {lab}")
        e(f"s_mov_b32 s{sbase - 4}, s{sptr_lo - 2}")
        e(f"s_and_b32 s{sbase - 3}, s{sptr_hi - 2}, 0xffff")
        e(f"s_mov_b32 s{sbase - 2}, 256")
        e("s_mov_b64 exec, 1")
        for i in range(n):
            e(f"v_mov_b32 v{vtmp + 1}, s{sbase + 2 * i + 1}")
            e(f"buffer_store_dword v{vtmp + 1}, v{vtmp}, s[{sbase - 4}:{sbase - 1}], 0 offen offset:{4 * i + 32 * kidx}")
            e("s_nop 1")
        e("s_mov_b64 exec, -1")
        a.label(lab)


def vr(b, n=4):
    return f"v[{b}:{b + n - 1}]"


def ar(b, n=4):
    return f"a[{b}:{b + n - 1}]"


def interleave(a, mf, fillers, start=0, end=None):
    n = len(mf)
    if end is None:
        end = n
    nf = len(fillers)
    pos = [start + (j * (end - start)) // max(nf, 1) for j in range(nf)]
    j = 0
    for m in range(n):
        a.e(mf[m])
        while j < nf and pos[j] <= m:
            f = fillers[j]
            f()
            j += 1
    while j < nf:
        fillers[j]()
        j += 1


def srd(a, d, lo, hi, nbytes, bias=0):
    if bias:
        a.e(f"s_sub_u32 s{d}, s{lo}, {bias}")
        a.e(f"s_subb_u32 s{d + 1}, s{hi}, 0")
        a.e(f"s_and_b32 s{d + 1}, s{d + 1}, 0xffff")
    else:
        a.e(f"s_mov_b32 s{d}, s{lo}")
        a.e(f"s_and_b32 s{d + 1}, s{hi}, 0xffff")
    a.e(f"s_mov_b32 s{d + 2}, {nbytes + bias}")
    a.e(f"s_mov_b32 s{d + 3}, 0x20000")


K1_BSLOT = 13312
K1_AREA = 3328
K1_ABASE = 4 * K1_BSLOT
K1_LDS = K1_ABASE + 4 * 16384
ACC0 = 48


def acc(t, mt):
    return ACC0 + 16 * t + 4 * mt


V_LANE = 1
V_ARD = 2
V_QRD = 4
V_HRD = 8
V_ADMA = 9
V_BDMA = 13
V_L16 = 17
V_T = 18
S_X, S_Q, S_W1, S_WS, S_MISC = 4, 8, 12, 16, 20
S_WAVE, S_RB, S_P = 24, 25, 26
S_OFFA, S_OFFA2, S_OFFQ, S_OFFH = 27, 28, 29, 30
S_M0B, S_M0A = 31, 32
S_CNT = 33
S_QM = 34
S_PTR = 36
S_L2E = 58
S_T = 60
S_AFB = 72
S_GROW = 73
S_PO1, S_PO2 = 74, 3
S_PT, S_PTE = 100, 101
S_PF1, S_PF2 = 96, 20


def bset(s, t):
    return 52 * s + 4 * t


ASET = {"X": 104, "Y": 120, "Z": 136}


def k1_body(a, typ):
    T = "A" if typ == 0 else "B"
    nq = 8 if typ == 0 else 4
    nh = 13 - nq
    Ph = 2 * nh
    HB = 256 * nq
    e = a.e
    vi, vG, t0, t1, t2, t3 = V_T, V_T + 1, V_T + 2, V_T + 3, V_T + 4, V_T + 5
    e(f"v_and_b32 v{vi}, 15, v{V_LANE}")
    e(f"v_lshrrev_b32 v{vG}, 4, v{V_LANE}")
    e(f"s_mul_i32 s{S_T + 2}, s{S_P}, 448")
    if typ:
        e(f"s_add_u32 s{S_T + 2}, s{S_T + 2}, 160")

    e(f"s_lshr_b32 s{S_T + 8}, s{S_WAVE}, 1")
    e(f"s_lshl_b32 s{S_T + 8}, s{S_T + 8}, 4")
    e(f"s_and_b32 s{S_T + 9}, s{S_WAVE}, 1")
    e(f"s_lshl_b32 s{S_T + 9}, s{S_T + 9}, 2")
    e(f"s_add_u32 s{S_T + 8}, s{S_T + 8}, s{S_T + 9}")

    def krow(dst, kp, tmp):
        e(f"v_lshrrev_b32 v{tmp}, 2, v{kp}")
        e(f"v_lshlrev_b32 v{tmp}, 3, v{tmp}")
        e(f"v_and_b32 v{dst}, 3, v{kp}")
        e(f"v_add3_u32 v{dst}, v{dst}, v{tmp}, s{S_T + 8}")

    e(f"v_lshrrev_b32 v{t0}, 3, v{V_LANE}")
    krow(t1, t0, t2)
    e(f"v_mul_u32_u24 v{t1}, 6144, v{t1}")
    e(f"v_lshrrev_b32 v{t2}, 1, v{t0}")
    e(f"v_and_b32 v{t2}, 3, v{t2}")
    e(f"v_lshlrev_b32 v{t2}, 1, v{t2}")
    e(f"v_and_b32 v{t3}, 7, v{V_LANE}")
    e(f"v_xor_b32 v{t3}, v{t3}, v{t2}")
    e(f"v_lshlrev_b32 v{t3}, 4, v{t3}")
    e(f"v_add_u32 v{t1}, v{t1}, v{t3}")
    e(f"s_lshl_b32 s{S_T + 9}, s{S_P}, 7")
    e(f"s_add_u32 s{S_T + 9}, s{S_T + 9}, {4096 + (2048 if typ == 0 else 0)}")
    e(f"v_add_u32 v{V_BDMA}, s{S_T + 9}, v{t1}")
    if typ == 0:
        e(f"v_add_u32 v{V_BDMA + 1}, {2048 - 1024}, v{V_BDMA}")
    hins = [(2, 0), (3, 64)] if typ == 0 else [(1, 0), (2, 64), (3, 128)]
    magic, sh = (205, 11) if Ph == 10 else (57, 10)
    for s_ in range(8 * Ph + 64):
        if s_ < 8 * Ph:
            assert (s_ * magic) >> sh == s_ // Ph
    for slot, s0 in hins:
        e(f"v_add_u32 v{t0}, {s0}, v{V_LANE}")
        e(f"v_mul_u32_u24 v{t1}, {magic}, v{t0}")
        e(f"v_lshrrev_b32 v{t1}, {sh}, v{t1}")
        e(f"v_mul_u32_u24 v{t2}, {Ph}, v{t1}")
        e(f"v_sub_u32 v{t0}, v{t0}, v{t2}")
        e(f"v_and_b32 v{t1}, 7, v{t1}")
        krow(t2, t1, t3)
        e(f"v_mul_u32_u24 v{t2}, 7168, v{t2}")
        e(f"v_lshlrev_b32 v{t0}, 4, v{t0}")
        e(f"v_add3_u32 v{t0}, v{t0}, v{t2}, s{S_T + 2}")
        e(f"v_add_u32 v{V_BDMA + slot}, {4096 - 1024 * slot}, v{t0}")
    e(f"s_lshl_b32 s{S_T + 9}, s{S_RB}, 8")
    e(f"s_lshl_b32 s{S_T + 10}, s{S_WAVE}, 6")
    e(f"s_add_u32 s{S_T + 9}, s{S_T + 9}, s{S_T + 10}")
    e(f"s_lshl_b32 s{S_T + 9}, s{S_T + 9}, 11")
    e(f"v_lshrrev_b32 v{t0}, 3, v{V_LANE}")
    e(f"v_lshrrev_b32 v{t1}, 1, v{t0}")
    e(f"v_and_b32 v{t2}, 7, v{V_LANE}")
    e(f"v_xor_b32 v{t2}, v{t2}, v{t1}")
    e(f"v_lshlrev_b32 v{t0}, 11, v{t0}")
    e(f"v_add_u32 v{t0}, s{S_T + 9}, v{t0}")
    for j in range(4):
        if j & 1:
            e(f"v_xor_b32 v{t3}, 4, v{t2}")
            e(f"v_lshlrev_b32 v{t3}, 4, v{t3}")
        else:
            e(f"v_lshlrev_b32 v{t3}, 4, v{t2}")
        e(f"v_add_u32 v{t3}, v{t3}, v{t0}")
        e(f"v_add_u32 v{V_ADMA + j}, {j * (16384 - 1024)}, v{t3}")
    e(f"s_mul_i32 s{S_M0B}, s{S_WAVE}, {K1_AREA}")
    e(f"s_lshl_b32 s{S_M0A}, s{S_WAVE}, 14")
    e(f"s_add_u32 s{S_M0A}, s{S_M0A}, {K1_ABASE}")
    e(f"s_mov_b32 s{S_OFFA}, 0")
    e(f"s_mov_b32 s{S_OFFA2}, 65536")
    e(f"s_mov_b32 s{S_OFFQ}, 0")
    e(f"s_mov_b32 s{S_OFFH}, 0")
    e(f"s_mov_b32 s{S_QM}, 0xffff")
    e(f"s_mov_b32 s{S_QM + 1}, 0")

    def dmaB(tt):
        slot = tt % 4
        tag = f"B{tt}"
        f = []
        srcs = [(S_Q, S_OFFQ), (S_Q, S_OFFQ) if typ == 0 else (S_W1, S_OFFH), (S_W1, S_OFFH)]
        f.append(lambda: e(f"s_add_u32 m0, s{S_M0B}, {slot * K1_BSLOT}"))
        for j in range(3):
            sr, so = srcs[j]
            f.append(lambda j=j, sr=sr, so=so: a.vmem(
                f"buffer_load_dwordx4 v{V_BDMA + j}, s[{sr}:{sr + 3}], s{so} offen offset:{1024 * j} {OPT['k1b']} lds", tag))

        def q():
            e(f"s_mov_b64 exec, s[{S_QM}:{S_QM + 1}]")
            a.vmem(f"buffer_load_dwordx4 v{V_BDMA + 3}, s[{S_W1}:{S_W1 + 3}], s{S_OFFH} offen offset:3072 {OPT['k1b']} lds", tag)
            e("s_mov_b64 exec, -1")
        f.append(q)
        f.append(lambda: e(f"s_add_u32 s{S_OFFQ}, s{S_OFFQ}, {32 * 6144}"))
        f.append(lambda: e(f"s_add_u32 s{S_OFFH}, s{S_OFFH}, {32 * 7168}"))
        return f

    def dmaA(aa):
        slot = aa % 2
        tag = f"A{aa}"
        f = []
        for half in range(2):
            so = S_OFFA if half == 0 else S_OFFA2
            f.append(lambda half=half: e(f"s_add_u32 m0, s{S_M0A}, {slot * 8192 + half * 4096}"))
            for j in range(4):
                f.append(lambda j=j, so=so: a.vmem(
                    f"buffer_load_dwordx4 v{V_ADMA + j}, s[{S_X}:{S_X + 3}], s{so} offen offset:{1024 * j} {OPT['k1a']} lds", tag))
        f.append(lambda: e(f"s_add_u32 s{S_OFFA}, s{S_OFFA}, 128"))
        f.append(lambda: e(f"s_add_u32 s{S_OFFA2}, s{S_OFFA2}, 128"))
        return f

    def run_seq(fl):
        for fn in fl:
            n0 = len(a.lines)
            fn()
            if " m0," in a.lines[-1] and len(a.lines) == n0 + 1:
                e("s_nop 0")

    e("s_waitcnt lgkmcnt(0)")
    srd(a, S_Q, S_PTR + 2, S_PTR + 3, 1024 * 3072 * 2, bias=4096)
    srd(a, S_W1, S_PTR + 8, S_PTR + 9, 1024 * 3584 * 2, bias=4096)
    srd(a, S_X, S_PTR + 0, S_PTR + 1, 2048 * 1024 * 2)
    stamp(a, 0)
    run_seq(dmaB(0))
    run_seq(dmaA(0))
    srd(a, S_T + 4, S_PTR + 10, S_PTR + 11, 7168)
    e(f"v_lshlrev_b32 v{t1}, 3, v{vG}")
    for j in range(nh):
        a.vmem(f"buffer_load_dwordx2 {vr(acc(nq + j, 3), 2)}, v{t1}, s[{S_T + 4}:{S_T + 7}], s{S_T + 2} offen offset:{32 * j}", "bias")
    run_seq(dmaB(1))
    run_seq(dmaB(2))
    run_seq(dmaA(1))
    run_seq(dmaB(3))
    srd(a, S_WS, S_PTR + 20, S_PTR + 21, WS_USED)
    if OPT.get('xpf') == 1:
        e(f"v_and_b32 v{V_T + 28}, 31, v{V_LANE}")
        e(f"v_lshlrev_b32 v{V_T + 28}, 7, v{V_T + 28}")
        e(f"s_lshl_b32 s{S_T}, s2, 2")
        e(f"s_add_u32 s{S_T}, s{S_T}, s{S_WAVE}")
        e(f"s_lshl_b32 s{S_T}, s{S_T}, 12")
        a.vmem(f"buffer_load_dword v{V_T + 28}, v{V_T + 28}, s[{S_X}:{S_X + 3}], s{S_T} offen", "pf")
    if OPT.get('xpf') == 2:
        e(f"v_lshlrev_b32 v{V_T + 27}, 7, v{V_LANE}")
        e(f"s_lshr_b32 s{S_T}, s2, 5")
        e(f"s_lshl_b32 s{S_T}, s{S_T}, 2")
        e(f"s_add_u32 s{S_T}, s{S_T}, s{S_WAVE}")
        e(f"s_lshl_b32 s{S_T}, s{S_T}, 14")
        e(f"s_lshl_b32 s{S_T + 1}, s{S_RB}, 19")
        e(f"s_add_u32 s{S_T}, s{S_T}, s{S_T + 1}")
        a.vmem(f"buffer_load_dword v{V_T + 28}, v{V_T + 27}, s[{S_X}:{S_X + 3}], s{S_T} offen", "pf")
        e(f"s_add_u32 s{S_T}, s{S_T}, 8192")
        a.vmem(f"buffer_load_dword v{V_T + 28}, v{V_T + 27}, s[{S_X}:{S_X + 3}], s{S_T} offen", "pf")

    e(f"v_lshrrev_b32 v{t0}, 3, v{vi}")
    e(f"v_lshlrev_b32 v{t0}, 6, v{t0}")
    e(f"v_and_b32 v{t1}, 7, v{vi}")
    e(f"v_lshlrev_b32 v{t1}, 3, v{t1}")
    e(f"v_add_u32 v{t0}, v{t0}, v{t1}")
    e(f"v_lshrrev_b32 v{t1}, 1, v{vi}")
    e(f"v_xor_b32 v{t1}, v{t1}, v{vG}")
    e(f"v_add_u32 v{t2}, v{t0}, v{t1}")
    e(f"v_lshlrev_b32 v{t2}, 4, v{t2}")
    e(f"v_add_u32 v{V_ARD}, s{S_M0A}, v{t2}")
    e(f"v_xor_b32 v{t1}, 4, v{t1}")
    e(f"v_add_u32 v{t2}, v{t0}, v{t1}")
    e(f"v_lshlrev_b32 v{t2}, 4, v{t2}")
    e(f"v_add_u32 v{V_ARD + 1}, s{S_M0A}, v{t2}")
    e(f"v_and_b32 v{t0}, 1, v{vG}")
    e(f"v_lshlrev_b32 v{t0}, 2, v{t0}")
    e(f"v_lshrrev_b32 v{t1}, 2, v{vi}")
    e(f"v_add_u32 v{t0}, v{t0}, v{t1}")
    e(f"v_lshrrev_b32 v{t1}, 1, v{vG}")
    e(f"v_mul_u32_u24 v{t1}, {2 * K1_AREA}, v{t1}")
    e(f"v_and_b32 v{t2}, 3, v{vi}")
    e(f"v_lshlrev_b32 v{t2}, 3, v{t2}")
    e(f"v_add_u32 v{t1}, v{t1}, v{t2}")
    e(f"v_mul_u32_u24 v{t3}, {16 * Ph}, v{t0}")
    e(f"v_add3_u32 v{V_HRD}, v{t1}, v{t3}, {0}")
    e(f"v_add_u32 v{V_HRD}, {HB}, v{V_HRD}")
    e(f"v_lshlrev_b32 v{t3}, 7, v{t0}")
    e(f"v_add_u32 v{t1}, v{t1}, v{t3}")
    e(f"v_lshrrev_b32 v{t2}, 1, v{t0}")
    e(f"v_and_b32 v{t2}, 3, v{t2}")
    for t in range(4):
        e(f"v_xor_b32 v{t3}, {t}, v{t2}")
        e(f"v_lshlrev_b32 v{t3}, 5, v{t3}")
        e(f"v_add_u32 v{V_QRD + t}, v{t1}, v{t3}")
    e(f"v_lshlrev_b32 v{V_L16}, 4, v{V_LANE}")

    gw, gx0, gx1 = V_T, V_T + 8, V_T + 16
    gt = V_T + 24
    e(f"v_lshlrev_b32 v{gt}, 5, v{V_LANE}")
    e(f"s_lshl_b32 s{S_GROW}, s2, 3")
    e(f"s_lshl_b32 s{S_T + 1}, s{S_WAVE}, 1")
    e(f"s_add_u32 s{S_GROW}, s{S_GROW}, s{S_T + 1}")
    e(f"s_lshl_b32 s{S_T + 1}, s{S_GROW}, 11")
    srd(a, S_MISC, S_PTR + 14, S_PTR + 15, 2048)
    a.vmem(f"buffer_load_dwordx4 {vr(gw)}, v{gt}, s[{S_MISC}:{S_MISC + 3}], 0 offen", "g")
    a.vmem(f"buffer_load_dwordx4 {vr(gw + 4)}, v{gt}, s[{S_MISC}:{S_MISC + 3}], 0 offen offset:16", "g")
    a.vmem(f"buffer_load_dwordx4 {vr(gx0)}, v{gt}, s[{S_X}:{S_X + 3}], s{S_T + 1} offen", "g")
    a.vmem(f"buffer_load_dwordx4 {vr(gx0 + 4)}, v{gt}, s[{S_X}:{S_X + 3}], s{S_T + 1} offen offset:16", "g")
    a.vmem(f"buffer_load_dwordx4 {vr(gx1)}, v{gt}, s[{S_X}:{S_X + 3}], s{S_T + 1} offen offset:2048", "g")
    a.vmem(f"buffer_load_dwordx4 {vr(gx1 + 4)}, v{gt}, s[{S_X}:{S_X + 3}], s{S_T + 1} offen offset:2064", "g")

    if OPT['pf']:
        srd(a, S_PF1, S_PTR + 12, S_PTR + 13, 3584 * 1024 * 2)
        srd(a, S_PF2, S_PTR + 4, S_PTR + 5, 1024 * 1024 * 2)
        nb = {1: 7, 2: 1, 3: 2, 4: 3}[OPT['pf']]
        PL1, PL2 = -(-56 // nb), -(-16 // nb)
        e(f"v_min_u32 v{V_T + 26}, {PL1 - 1}, v{V_LANE}")
        e(f"v_lshlrev_b32 v{V_T + 26}, 7, v{V_T + 26}")
        e(f"v_min_u32 v{V_T + 27}, {PL2 - 1}, v{V_LANE}")
        e(f"v_lshlrev_b32 v{V_T + 27}, 7, v{V_T + 27}")
        e(f"s_lshl_b32 s{S_T}, s2, 2")
        e(f"s_add_u32 s{S_T}, s{S_T}, s{S_WAVE}")
        e(f"s_mul_i32 s{S_PO1}, s{S_T}, 7168")
        e(f"s_lshl_b32 s{S_PO2}, s{S_T}, 11")

    if OPT.get('pt'):
        e(f"s_lshl_b32 s{S_T}, s{S_RB}, 1")
        e(f"s_lshr_b32 s{S_T + 1}, s{S_WAVE}, 1")
        e(f"s_add_u32 s{S_T}, s{S_T}, s{S_T + 1}")
        e(f"s_mul_i32 s{S_AFB}, s{S_T}, {144 * 8192}")
        e(f"s_and_b32 s{S_T + 1}, s{S_WAVE}, 1")
        e(f"s_lshl_b32 s{S_T + 1}, s{S_T + 1}, 12")
        e(f"s_add_u32 s{S_AFB}, s{S_AFB}, s{S_T + 1}")
        e(f"s_mul_i32 s{S_PT}, s{S_P}, {7 * 8192}")
        e(f"s_add_u32 s{S_PT}, s{S_PT}, s{S_AFB}")
        if typ:
            e(f"s_add_u32 s{S_PT}, s{S_PT}, {2 * 8192}")
        e(f"s_add_u32 s{S_PTE}, s{S_PT}, {(4 if typ else 2) * 8192}")
        e(f"v_and_b32 v{V_T + 25}, 31, v{V_LANE}")
        e(f"v_lshlrev_b32 v{V_T + 25}, 7, v{V_T + 25}")
        if typ:
            e(f"v_lshrrev_b32 v{V_T + 29}, 5, v{V_LANE}")
            e(f"v_lshlrev_b32 v{V_T + 29}, 13, v{V_T + 29}")
            e(f"v_add_u32 v{V_T + 29}, v{V_T + 29}, v{V_T + 25}")
            e(f"s_mul_i32 s{S_T}, s{S_P}, {2 * 8192}")
            e(f"s_add_u32 s{S_T}, s{S_T}, {112 * 8192}")
            e(f"s_add_u32 s{S_T}, s{S_T}, s{S_AFB}")
            a.vmem(f"buffer_load_dword v{V_T + 28}, v{V_T + 29}, s[{S_WS}:{S_WS + 3}], s{S_T} offen", "pf")

    def pt_items():
        return [lambda: a.vmem(f"buffer_load_dword v{V_T + 28}, v{V_T + 25}, s[{S_WS}:{S_WS + 3}], s{S_PT} offen", "pf"),
                lambda: e(f"s_add_u32 s{S_PT}, s{S_PT}, 8192"),
                lambda: e(f"s_min_u32 s{S_PT}, s{S_PT}, s{S_PTE}")]

    def pf_items(cond=None):
        if cond is None:
            return [lambda: a.vmem(f"buffer_load_dword v{V_T + 28}, v{V_T + 26}, s[{S_PF1}:{S_PF1 + 3}], s{S_PO1} offen", "pf"),
                    lambda: a.vmem(f"buffer_load_dword v{V_T + 28}, v{V_T + 27}, s[{S_PF2}:{S_PF2 + 3}], s{S_PO2} offen", "pf"),
                    lambda: e(f"s_add_u32 s{S_PO1}, s{S_PO1}, {128 * PL1}"),
                    lambda: e(f"s_add_u32 s{S_PO2}, s{S_PO2}, {128 * PL2}")]

        def blk():
            e(f"s_lshl_b32 s{S_T}, 1, s{S_CNT}")
            e(f"s_and_b32 s{S_T}, s{S_T}, {cond}")
            e(f"s_cbranch_scc0 L_k1{T}_nopf")
            e(f"buffer_load_dword v{V_T + 28}, v{V_T + 26}, s[{S_PF1}:{S_PF1 + 3}], s{S_PO1} offen")
            e(f"buffer_load_dword v{V_T + 28}, v{V_T + 27}, s[{S_PF2}:{S_PF2 + 3}], s{S_PO2} offen")
            e(f"s_add_u32 s{S_PO1}, s{S_PO1}, {128 * PL1}")
            e(f"s_add_u32 s{S_PO2}, s{S_PO2}, {128 * PL2}")
            a.label(f"L_k1{T}_nopf")
        return [blk]

    def g_items():
        d0, d1 = V_T + 24, V_T + 25
        L = []
        L.append(f"v_dot2_f32_bf16 v{d0}, v{gx0}, v{gw}, 0")
        L.append(f"v_dot2_f32_bf16 v{d1}, v{gx1}, v{gw}, 0")
        for j in range(1, 8):
            L.append(f"v_dot2_f32_bf16 v{d0}, v{gx0 + j}, v{gw + j}, v{d0}")
            L.append(f"v_dot2_f32_bf16 v{d1}, v{gx1 + j}, v{gw + j}, v{d1}")
        L.append("s_nop 3")
        for sh_ in (1, 2, 4, 8):
            L.append(f"s_nop 0\nv_add_f32_dpp v{d0}, v{d0}, v{d0} row_shr:{sh_} row_mask:0xf bank_mask:0xf bound_ctrl:0")
            L.append(f"s_nop 0\nv_add_f32_dpp v{d1}, v{d1}, v{d1} row_shr:{sh_} row_mask:0xf bank_mask:0xf bound_ctrl:0")
        L.append(f"s_nop 0\nv_add_f32_dpp v{d0}, v{d0}, v{d0} row_bcast:15 row_mask:0xa bank_mask:0xf")
        L.append(f"s_nop 0\nv_add_f32_dpp v{d1}, v{d1}, v{d1} row_bcast:15 row_mask:0xa bank_mask:0xf")
        L.append(f"s_nop 0\nv_add_f32_dpp v{d0}, v{d0}, v{d0} row_bcast:31 row_mask:0xc bank_mask:0xf")
        L.append(f"s_nop 0\nv_add_f32_dpp v{d1}, v{d1}, v{d1} row_bcast:31 row_mask:0xc bank_mask:0xf")
        L.append(f"v_mul_f32 v{d0}, 0xbfb8aa3b, v{d0}")
        L.append(f"v_mul_f32 v{d1}, 0xbfb8aa3b, v{d1}")
        L.append(f"v_exp_f32 v{d0}, v{d0}")
        L.append(f"v_exp_f32 v{d1}, v{d1}\ns_nop 0")
        L.append(f"v_add_f32 v{d0}, 1.0, v{d0}")
        L.append(f"v_add_f32 v{d1}, 1.0, v{d1}")
        L.append(f"v_rcp_f32 v{d0}, v{d0}")
        L.append(f"v_rcp_f32 v{d1}, v{d1}")
        L.append(f"v_mov_b32 v{gw}, 0")
        L.append(f"s_lshl_b32 s{S_T + 1}, s{S_GROW}, 2\ns_add_u32 s{S_T + 1}, s{S_T + 1}, {G_OFF}")
        L.append(f"s_lshl_b32 s{S_T + 3}, s2, 8\ns_add_u32 s{S_T + 3}, s{S_T + 3}, {FLG_OFF}")
        L.append(f"s_mov_b32 s{S_T + 8}, 0\ns_mov_b32 s{S_T + 9}, 0x80000000")
        F = [(lambda x=x: e(x)) for x in L]

        def st():
            e(f"s_mov_b64 exec, s[{S_T + 8}:{S_T + 9}]")
            a.vmem(f"buffer_store_dwordx2 v[{d0}:{d1}], v{gw}, s[{S_WS}:{S_WS + 3}], s{S_T + 1} offen", "gst")
            a.vmem(f"buffer_store_dword v{gw}, v{gw}, s[{S_WS}:{S_WS + 3}], s{S_T + 3} offen", "gst")
            e("s_mov_b64 exec, -1")
        F.append(st)
        return F

    a.wait(["bias"])
    for j in range(nh):
        src = acc(nq + j, 3)
        d = acc(nq + j, 0)
        e(f"v_lshlrev_b32 v{d}, 16, v{src}")
        e(f"v_and_b32 v{d + 1}, 0xffff0000, v{src}")
        e(f"v_lshlrev_b32 v{d + 2}, 16, v{src + 1}")
        e(f"v_and_b32 v{d + 3}, 0xffff0000, v{src + 1}")
    for t in range(4):
        for r in range(4):
            e(f"v_mov_b32 v{acc(t, 0) + r}, {EPS_HEX}")

    def rdB(tt):
        slot = tt % 4
        s = tt % 2
        f = []
        for t in range(13):
            for ins in range(2):
                if t < nq:
                    addr = V_QRD + (t & 3)
                    off = slot * K1_BSLOT + ins * K1_AREA + 1024 * (t >> 2)
                else:
                    addr = V_HRD
                    off = slot * K1_BSLOT + ins * K1_AREA + 32 * (t - nq)
                d = bset(s, t) + 2 * ins
                f.append(lambda d=d, addr=addr, off=off: e(f"ds_read_b64_tr_b16 {ar(d, 2)}, v{addr} offset:{off}"))
        return f

    def aset_of(tt):
        if tt % 2 == 0:
            return ASET["X"]
        return ASET["Y"] if tt % 4 == 1 else ASET["Z"]

    def rdA(aa):
        slot = aa % 2
        f = []
        for hh in range(2):
            base = aset_of(2 * aa + hh)
            for mt in range(4):
                f.append(lambda hh=hh, mt=mt, base=base: e(
                    f"ds_read_b128 {ar(base + 4 * mt)}, v{V_ARD + hh} offset:{slot * 8192 + mt * 2048}"))
        return f

    stamp(a, 1)
    a.wait(["B0", "A0"])
    e("s_barrier")
    stamp(a, 2)
    for fn in rdA(0) + rdB(0):
        fn()
    a.wait(["B1"], lgkm=True)
    e("s_barrier")

    NSTEP = 32

    def step(tt):
        if DIAG and OPT.get('ts'):
            e("s_memrealtime s[76:77]")
            e("s_waitcnt lgkmcnt(0)")
            e("s_mov_b32 m0, s78")
            e("s_nop 0")
            e(f"v_writelane_b32 v{V_T + 29}, s76, m0")
            e("s_add_u32 s78, s78, 1")
        s = tt % 2
        ab = aset_of(tt)
        mf = []
        for t in range(13):
            order = [1, 2, 3, 0] if tt == 0 else [0, 1, 2, 3]
            for mt in order:
                D = vr(acc(t, mt))
                if tt == 0:
                    C = "0" if (typ == 0 and 4 <= t < 8) else vr(acc(t, 0))
                else:
                    C = D
                W = ar(bset(s, t))
                X = ar(ab + 4 * mt)
                if typ == 0 and t < 8:
                    mf.append(f"v_mfma_f32_16x16x32_bf16 {D}, {X}, {W}, {C}")
                else:
                    mf.append(f"v_mfma_f32_16x16x32_bf16 {D}, {W}, {X}, {C}")
        rd = []
        if tt + 1 < NSTEP:
            rd = rdB(tt + 1)
            if tt % 2 == 1:
                rd = rdA((tt + 1) // 2) + rd
        dm = []
        if OPT.get('afirst', 1) and tt % 2 == 0 and tt // 2 + 2 < NSTEP // 2:
            dm += dmaA(tt // 2 + 2)
        if tt + 4 < NSTEP:
            dm += dmaB(tt + 4)
        if not OPT.get('afirst', 1) and tt % 2 == 0 and tt // 2 + 2 < NSTEP // 2:
            dm += dmaA(tt // 2 + 2)
        if OPT['pf'] == 1 and tt % 4 == 1 and tt < 28:
            dm += pf_items()
        if OPT['pf'] in (2, 3, 4) and tt == 28:
            dm += pf_items()
        if OPT['pf'] in (3, 4) and tt % 4 == 1 and 4 <= tt < 28:
            dm += pf_items({3: 1 << 4, 4: (1 << 5) | (1 << 3)}[OPT['pf']])
        if OPT.get('pt') and tt % 4 == 3 and tt < 28:
            dm += pt_items()
        fl = []
        i1 = i2 = 0
        n1, n2 = len(rd), len(dm)
        while i1 < n1 or i2 < n2:
            if i2 < n2 and (i1 >= n1 or i2 * n1 <= i1 * n2):
                fl.append(dm[i2]); i2 += 1
            else:
                fl.append(rd[i1]); i1 += 1
        if tt == NSTEP - 1:
            assert "g" not in a.vm
            fl = g_items()
        interleave(a, mf, fl, 0, 48)
        if tt + 1 < NSTEP:
            tags = []
            if tt + 2 < NSTEP:
                tags.append(f"B{tt + 2}")
            if tt % 2 == 0:
                tags.append(f"A{tt // 2 + 1}")
            a.wait(tags, lgkm=True)
            if tt + 2 < NSTEP:
                e("s_barrier")

    iters = []
    for it in range(8):
        n0 = len(a.lines)
        for tt in range(4 * it, 4 * it + 4):
            step(tt)
        iters.append(a.lines[n0:])
        del a.lines[n0:]
    for it in range(2, 7):
        assert iters[it] == iters[1], f"iteration {it} differs"
    stamp(a, 3)
    if DIAG and OPT.get('ts'):
        e("s_mov_b32 s78, 0")
    a.lines += iters[0]
    if not OPT.get('ts'):
        stamp(a, 4)
    e(f"s_mov_b32 s{S_CNT}, 6")
    a.label(f"L_k1{T}_loop")
    a.lines += iters[1]
    e(f"s_sub_u32 s{S_CNT}, s{S_CNT}, 1")
    e(f"s_cmp_lg_u32 s{S_CNT}, 0")
    e(f"s_cbranch_scc1 L_k1{T}_loop")
    a.lines += iters[7]
    assert all(not t.startswith(("A", "B")) for t in a.vm), a.vm

    stamp(a, 5)

    def fin():
        if DIAG and OPT.get('ts'):
            e(f"s_mov_b32 s76, s{S_PTR + 20}")
            e(f"s_and_b32 s77, s{S_PTR + 21}, 0xffff")
            e(f"s_mov_b32 s78, 0x4000000")
            e(f"s_mov_b32 s79, 0x20000")
            e(f"s_lshl_b32 s75, s2, 2")
            e(f"s_add_u32 s75, s75, s{S_WAVE}")
            e(f"s_lshl_b32 s75, s75, 8")
            e(f"s_add_u32 s75, s75, {DIAG_OFF + 0x200000}")
            e(f"v_lshlrev_b32 v{V_T}, 2, v{V_LANE}")
            e(f"buffer_store_dword v{V_T + 29}, v{V_T}, s[76:79], s75 offen")
        stamp(a, 6)
        if DIAG:
            e("s_waitcnt vmcnt(0)")
        stamp(a, 7)
        stamp_dump(a, 0, 8, S_WAVE, S_PTR + 20, S_PTR + 21, V_T)
        e("s_endpgm")
    e(f"s_mov_b32 s{S_L2E}, {L2E_HEX}")
    e(f"s_mov_b32 s{S_L2E + 1}, {L2E_HEX}")
    e(f"s_lshl_b32 s{S_T}, s{S_RB}, 1")
    e(f"s_lshr_b32 s{S_T + 1}, s{S_WAVE}, 1")
    e(f"s_add_u32 s{S_T}, s{S_T}, s{S_T + 1}")
    e(f"s_mul_i32 s{S_AFB}, s{S_T}, {144 * 8192}")
    e(f"s_and_b32 s{S_T + 1}, s{S_WAVE}, 1")
    e(f"s_lshl_b32 s{S_T + 1}, s{S_T + 1}, 12")
    e(f"s_add_u32 s{S_AFB}, s{S_AFB}, s{S_T + 1}")
    e("s_nop 7")
    TT, UU = V_T, V_T + 8

    def phi_group(ra, rb_):
        prs = [ra, ra + 2, rb_, rb_ + 2]
        for j, p in enumerate(prs):
            e(f"v_pk_mul_f32 {vr(TT + 2 * j, 2)}, {vr(p, 2)}, s[{S_L2E}:{S_L2E + 1}]")
        for j in range(8):
            e(f"v_exp_f32_e64 v{TT + j}, v{TT + j} clamp")
        for p in prs:
            e(f"v_max_f32 v{p}, {EPS_HEX}, v{p}")
            e(f"v_max_f32 v{p + 1}, {EPS_HEX}, v{p + 1}")
        for j, p in enumerate(prs):
            e(f"v_pk_add_f32 {vr(p, 2)}, {vr(p, 2)}, {vr(TT + 2 * j, 2)}")
        for j, p in enumerate(prs):
            e(f"v_cvt_pk_bf16_f32 v{ra + j}, v{p}, v{p + 1}")

    def cvt_group(ra, rb_):
        prs = [ra, ra + 2, rb_, rb_ + 2]
        for j, p in enumerate(prs):
            e(f"v_cvt_pk_bf16_f32 v{ra + j}, v{p}, v{p + 1}")

    def mish_group(ra, rb_, split=False):
        prs = [ra, ra + 2, rb_, rb_ + 2]
        for j, p in enumerate(prs):
            e(f"v_pk_mul_f32 {vr(TT + 2 * j, 2)}, {vr(p, 2)}, s[{S_L2E}:{S_L2E + 1}]")
        for j in range(8):
            e(f"v_exp_f32 v{TT + j}, v{TT + j}")
        for j in range(4):
            e(f"v_pk_fma_f32 {vr(UU + 2 * j, 2)}, {vr(TT + 2 * j, 2)}, 0.5, 1.0 op_sel_hi:[1,0,0]")
        for j in range(4):
            e(f"v_pk_fma_f32 {vr(UU + 2 * j, 2)}, {vr(TT + 2 * j, 2)}, {vr(UU + 2 * j, 2)}, 1.0 op_sel_hi:[1,1,0]")
        for j in range(8):
            e(f"v_rcp_f32 v{UU + j}, v{UU + j}")
        for j, p in enumerate(prs):
            e(f"v_pk_fma_f32 {vr(p, 2)}, {vr(UU + 2 * j, 2)}, {vr(p, 2)}, {vr(p, 2)} neg_lo:[1,0,0] neg_hi:[1,0,0]")
        if split:
            e(f"v_cvt_pk_bf16_f32 v{ra}, v{ra}, v{ra + 1}")
            e(f"v_cvt_pk_bf16_f32 v{ra + 1}, v{ra + 2}, v{ra + 3}")
            e(f"v_cvt_pk_bf16_f32 v{rb_}, v{rb_}, v{rb_ + 1}")
            e(f"v_cvt_pk_bf16_f32 v{rb_ + 1}, v{rb_ + 2}, v{rb_ + 3}")
        else:
            for j, p in enumerate(prs):
                e(f"v_cvt_pk_bf16_f32 v{ra + j}, v{p}, v{p + 1}")

    WS = f"s[{S_WS}:{S_WS + 3}]"

    def set_kb(sreg, mul, add):
        e(f"s_mul_i32 s{sreg}, s{S_P}, {mul * 8192}")
        e(f"s_add_u32 s{sreg}, s{sreg}, {add * 8192}")
        e(f"s_add_u32 s{sreg}, s{sreg}, s{S_AFB}")

    def h_full(tA, kbl):
        set_kb(S_T + 2, 7, kbl)
        for mt in range(4):
            mish_group(acc(tA, mt), acc(tA + 1, mt))
            a.vmem(f"buffer_store_dwordx4 {vr(acc(tA, mt))}, v{V_L16}, {WS}, s{S_T + 2} offen offset:{1024 * mt} {OPT['st']}", "st")

    def h_half(tA, kbl, half):
        set_kb(S_T + 2, 7, kbl)
        for mp in range(2):
            mish_group(acc(tA, 2 * mp), acc(tA, 2 * mp + 1), split=True)
            for mt in (2 * mp, 2 * mp + 1):
                a.vmem(f"buffer_store_dwordx2 {vr(acc(tA, mt), 2)}, v{V_L16}, {WS}, s{S_T + 2} offen offset:{1024 * mt + 8 * half} {OPT['st']}", "st")

    if typ == 1:
        for hd in range(2):
            set_kb(S_T + 2, 2, 112 + hd)
            for mt in range(4):
                phi_group(acc(2 * hd, mt), acc(2 * hd + 1, mt))
                a.vmem(f"buffer_store_dwordx4 {vr(acc(2 * hd, mt))}, v{V_L16}, {WS}, s{S_T + 2} offen offset:{1024 * mt} {OPT['st']}", "st")
        h_half(4, 2, 1)
        for j in range(4):
            h_full(5 + 2 * j, 3 + j)
        fin()
        return

    ONES = V_T + 16
    for r in range(4):
        e(f"v_mov_b32 v{ONES + r}, 0x3f803f80")
    for t in range(4):
        for pr in range(2):
            phi_group(acc(t, 2 * pr), acc(t, 2 * pr + 1))
    for t in range(4, 8):
        for pr in range(2):
            cvt_group(acc(t, 2 * pr), acc(t, 2 * pr + 1))
    e("s_nop 1")
    free = [acc(t, m) for t in range(8) for m in (1, 3)]

    def Dt(tau):
        return free[tau]
    for pr in range(2):
        for hd in range(2):
            for dt in range(2):
                for et in range(3):
                    tau = hd * 6 + dt * 3 + et
                    Aop = vr(acc(2 * hd + dt, 2 * pr))
                    Bop = vr(acc(4 + 2 * hd + et, 2 * pr)) if et < 2 else vr(ONES)
                    C = "0" if pr == 0 else vr(Dt(tau))
                    e(f"v_mfma_f32_16x16x32_bf16 {vr(Dt(tau))}, {Aop}, {Bop}, {C}")
    vw, vrd = V_T + 20, V_T + 21
    e(f"v_add_u32 v{vw}, s{S_M0A}, v{V_L16}")
    e(f"s_mul_i32 s{S_T}, s{S_WAVE}, 3072")
    e(f"s_add_u32 s{S_T}, s{S_T}, {K1_ABASE}")
    e(f"v_add_u32 v{vrd}, s{S_T}, v{V_L16}")
    e("s_nop 7")
    for tau in range(12):
        e(f"ds_write_b128 v{vw}, {vr(Dt(tau))} offset:{1024 * tau}")
    h_full(8, 0)
    e("s_waitcnt lgkmcnt(0)")
    e("s_barrier")
    R = [acc(t, m) for t in range(8) for m in (0, 2)]
    for w2 in range(4):
        for j in range(3):
            e(f"ds_read_b128 {vr(R[3 * w2 + j])}, v{vrd} offset:{16384 * w2 + 1024 * j}")
    h_full(10, 1)
    e(f"s_lshl_b32 s{S_T}, s{S_P}, 3")
    e(f"s_add_u32 s{S_T}, s{S_T}, s{S_RB}")
    e(f"s_mul_i32 s{S_T}, s{S_T}, 12288")
    e(f"s_mul_i32 s{S_T + 1}, s{S_WAVE}, 3072")
    e(f"s_add_u32 s{S_T}, s{S_T}, s{S_T + 1}")
    e(f"s_add_u32 s{S_T}, s{S_T}, {KVP_OFF}")
    e("s_waitcnt lgkmcnt(0)")
    for j in range(3):
        for h2 in range(2):
            b0 = R[j] + 2 * h2
            e(f"v_pk_add_f32 {vr(b0, 2)}, {vr(b0, 2)}, {vr(R[3 + j] + 2 * h2, 2)}")
            e(f"v_pk_add_f32 {vr(R[6 + j] + 2 * h2, 2)}, {vr(R[6 + j] + 2 * h2, 2)}, {vr(R[9 + j] + 2 * h2, 2)}")
        for h2 in range(2):
            b0 = R[j] + 2 * h2
            e(f"v_pk_add_f32 {vr(b0, 2)}, {vr(b0, 2)}, {vr(R[6 + j] + 2 * h2, 2)}")
        a.vmem(f"buffer_store_dwordx4 {vr(R[j])}, v{V_L16}, {WS}, s{S_T} offen offset:{1024 * j}", "kvp")
    h_half(12, 2, 0)
    fin()


def gen_k1():
    a = Asm()
    e = a.e
    a.lines.append(".globl k1_kernel\n.p2align 8\n.type k1_kernel,@function\nk1_kernel:")
    e("s_cmp_ge_u32 s2, 256")
    e("s_cbranch_scc1 L_k1_exit")
    e(f"s_load_dwordx16 s[{S_PTR}:{S_PTR + 15}], s[0:1], 0")
    e(f"s_load_dwordx4 s[{S_PTR + 16}:{S_PTR + 19}], s[0:1], 64")
    e(f"s_load_dwordx2 s[{S_PTR + 20}:{S_PTR + 21}], s[0:1], 80")
    e(f"v_and_b32 v{V_LANE}, 63, v0")
    e(f"v_lshrrev_b32 v{V_T}, 6, v0")
    e(f"s_and_b32 s{S_T}, s2, 7")
    e(f"v_readfirstlane_b32 s{S_WAVE}, v{V_T}")
    e(f"s_lshr_b32 s{S_T + 1}, s2, 3")
    if OPT.get('map1', 0) == 0:
        e(f"s_and_b32 s{S_RB}, s{S_T}, 1")
        e(f"s_lshl_b32 s{S_RB}, s{S_RB}, 2")
        e(f"s_and_b32 s{S_T + 2}, s{S_T + 1}, 3")
        e(f"s_add_u32 s{S_RB}, s{S_RB}, s{S_T + 2}")
        e(f"s_lshr_b32 s{S_T}, s{S_T}, 1")
        e(f"s_lshl_b32 s{S_T}, s{S_T}, 3")
        e(f"s_lshr_b32 s{S_T + 1}, s{S_T + 1}, 2")
        e(f"s_add_u32 s{S_T}, s{S_T}, s{S_T + 1}")
    elif OPT['map1'] == 1:
        e(f"s_and_b32 s{S_RB}, s{S_T + 1}, 7")
        e(f"s_lshl_b32 s{S_T}, s{S_T}, 2")
        e(f"s_lshr_b32 s{S_T + 1}, s{S_T + 1}, 3")
        e(f"s_add_u32 s{S_T}, s{S_T}, s{S_T + 1}")
    else:
        e(f"s_and_b32 s{S_RB}, s{S_T}, 3")
        e(f"s_lshl_b32 s{S_RB}, s{S_RB}, 1")
        e(f"s_and_b32 s{S_T + 2}, s{S_T + 1}, 1")
        e(f"s_add_u32 s{S_RB}, s{S_RB}, s{S_T + 2}")
        e(f"s_lshr_b32 s{S_T}, s{S_T}, 2")
        e(f"s_lshl_b32 s{S_T}, s{S_T}, 4")
        e(f"s_lshr_b32 s{S_T + 1}, s{S_T + 1}, 1")
        e(f"s_add_u32 s{S_T}, s{S_T}, s{S_T + 1}")
    e(f"s_lshr_b32 s{S_P}, s{S_T}, 1")
    e(f"s_and_b32 s{S_T + 3}, s{S_T}, 1")
    e(f"s_cmp_lg_u32 s{S_T + 3}, 0")
    e("s_cbranch_scc1 L_k1_typeB")
    k1_body(a, 0)
    a.label("L_k1_typeB")
    a.vm = []
    k1_body(a, 1)
    a.label("L_k1_exit")
    e("s_endpgm")
    return a.lines


def K2_LDS():
    return OPT['S'] * 32768 + 24576


def fold_loops(a, iters, period, scnt, name):
    n = len(iters)
    i = 0
    lab = 0
    while i < n:
        reps = 1
        while i + (reps + 1) * period <= n and all(
                iters[i + k] == iters[i + reps * period + k] for k in range(period)):
            reps += 1
        if reps >= 2:
            a.e(f"s_mov_b32 s{scnt}, {reps}")
            a.label(f"L_{name}_{lab}")
            for k in range(period):
                a.lines += iters[i + k]
            a.e(f"s_sub_u32 s{scnt}, s{scnt}, 1")
            a.e(f"s_cmp_lg_u32 s{scnt}, 0")
            a.e(f"s_cbranch_scc1 L_{name}_{lab}")
            lab += 1
            i += reps * period
        else:
            a.lines += iters[i]
            i += 1


def schedule(a, mf, streams):
    n = len(mf)
    placed = []
    for si, (items, start, end) in enumerate(streams):
        m = len(items)
        prev = 0
        for j, it in enumerate(items):
            fn, early = it if isinstance(it, tuple) else (it, 0)
            pos = start + (j * (end - start)) / max(m, 1)
            pos = max(pos, early, prev)
            prev = pos
            placed.append((pos, si, j, fn))
    placed.sort(key=lambda x: (x[0], x[1], x[2]))
    k = 0
    if n == 0:
        for p in placed:
            p[3]()
        return
    for i in range(n):
        a.e(mf[i])
        while k < len(placed) and placed[k][0] < i + 1:
            placed[k][3]()
            k += 1
    while k < len(placed):
        placed[k][3]()
        k += 1


def gen_k2():
    a = Asm()
    e = a.e
    S = OPT['S']
    n0 = OPT['n0']
    SLOT = 32768
    PBF = OPT['pbf']
    SW2, SWO, SWS, SOUT, SDBG = 4, 8, 12, 16, 20
    SWAVE, SMT, SNT, STILE, SROLE = 24, 25, 26, 27, 28
    SOA, SOB, SOKV, SOP, SM0A, SM0B, SCNT, SRED, SW8 = 29, 30, 31, 32, 33, 34, 35, 58, 59
    SP = 36
    ST = 60
    NBASE = (S + 1) // 2
    VL = 1
    VL16 = 2
    VT = 4
    VG = 14
    VOMG = 18
    VAR = 22
    VBR = 25
    AC = 64
    VBD = 22
    VAD = 26
    VAW = 27
    VFL = 30
    VEPS = 32
    VR = 36
    VOF = 40
    VD = 64
    VP = 64

    def acc2(mt, nt):
        return AC + 16 * mt + 4 * nt

    def FA(j, b, mt):
        return 64 * (j % 2) + 32 * b + 4 * mt

    def FB(j, b, nt):
        return 64 * (j % 2) + 32 * b + 16 + 4 * nt

    def PQ(j, i):
        return 28 * (j % 4) + 4 * i

    def KV(j, i):
        return 28 * (j % 4) + 16 + 4 * i

    a.lines.append(".globl k2_kernel\n.p2align 8\n.type k2_kernel,@function\nk2_kernel:")
    e("s_cmp_ge_u32 s2, 256")
    e("s_cbranch_scc1 L_k2_exit")
    e(f"s_load_dwordx16 s[{SP}:{SP + 15}], s[0:1], 0")
    e(f"s_load_dwordx4 s[{SP + 16}:{SP + 19}], s[0:1], 64")
    e(f"s_load_dwordx2 s[{SP + 20}:{SP + 21}], s[0:1], 80")
    e(f"v_and_b32 v{VL}, 63, v0")
    e(f"v_lshrrev_b32 v{VT}, 6, v0")
    e(f"s_and_b32 s{ST}, s2, 7")
    e(f"v_readfirstlane_b32 s{SW8}, v{VT}")
    e(f"s_lshr_b32 s{ST + 1}, s2, 3")
    if OPT['map'] == 0:
        e(f"s_and_b32 s{SROLE}, s{ST}, 1")
        e(f"s_lshr_b32 s{ST}, s{ST}, 1")
        e(f"s_and_b32 s{SMT}, s{ST}, 1")
        e(f"s_lshl_b32 s{SMT}, s{SMT}, 3")
        e(f"s_and_b32 s{ST + 2}, s{ST + 1}, 7")
        e(f"s_add_u32 s{SMT}, s{SMT}, s{ST + 2}")
        e(f"s_lshr_b32 s{SNT}, s{ST}, 1")
        e(f"s_lshl_b32 s{SNT}, s{SNT}, 2")
        e(f"s_lshr_b32 s{ST + 1}, s{ST + 1}, 3")
        e(f"s_add_u32 s{SNT}, s{SNT}, s{ST + 1}")
    elif OPT['map'] == 2:
        e(f"s_and_b32 s{SROLE}, s{ST}, 1")
        e(f"s_lshr_b32 s{ST}, s{ST}, 1")
        e(f"s_lshl_b32 s{SMT}, s{ST}, 2")
        e(f"s_and_b32 s{ST + 2}, s{ST + 1}, 3")
        e(f"s_add_u32 s{SMT}, s{SMT}, s{ST + 2}")
        e(f"s_lshr_b32 s{SNT}, s{ST + 1}, 2")
    elif OPT['map'] == 3:
        e(f"s_and_b32 s{SROLE}, s{ST}, 1")
        e(f"s_lshr_b32 s{ST}, s{ST}, 1")
        e(f"s_and_b32 s{SMT}, s{ST + 1}, 15")
        e(f"s_lshl_b32 s{SNT}, s{ST}, 1")
        e(f"s_lshr_b32 s{ST + 1}, s{ST + 1}, 4")
        e(f"s_add_u32 s{SNT}, s{SNT}, s{ST + 1}")
    else:
        e(f"s_and_b32 s{SROLE}, s{ST + 1}, 1")
        e(f"s_lshr_b32 s{ST + 1}, s{ST + 1}, 1")
        e(f"s_and_b32 s{SMT}, s{ST}, 3")
        e(f"s_lshl_b32 s{SMT}, s{SMT}, 2")
        e(f"s_and_b32 s{ST + 2}, s{ST + 1}, 3")
        e(f"s_add_u32 s{SMT}, s{SMT}, s{ST + 2}")
        e(f"s_lshr_b32 s{SNT}, s{ST}, 2")
        e(f"s_lshl_b32 s{SNT}, s{SNT}, 2")
        e(f"s_lshr_b32 s{ST + 1}, s{ST + 1}, 2")
        e(f"s_add_u32 s{SNT}, s{SNT}, s{ST + 1}")
    e(f"s_and_b32 s{SWAVE}, s{SW8}, 3")
    e(f"s_lshl_b32 s{STILE}, s{SMT}, 3")
    e(f"s_add_u32 s{STILE}, s{STILE}, s{SNT}")
    vi, vG, t0, t1, t2, t3 = VT, VT + 1, VT + 2, VT + 3, VT + 4, VT + 5
    e(f"v_and_b32 v{vi}, 15, v{VL}")
    e(f"v_lshrrev_b32 v{vG}, 4, v{VL}")
    e(f"v_lshlrev_b32 v{VL16}, 4, v{VL}")
    WS = f"s[{SWS}:{SWS + 3}]"
    DBG = f"s[{SDBG}:{SDBG + 3}]"
    PSZ = 8192 if PBF else 16384
    e(f"s_cmp_lt_u32 s{SW8}, 4")
    e(f"s_cbranch_scc1 L_k2_cons")

    def load_g():
        e(f"v_lshlrev_b32 v{t0}, 2, v{vi}")
        e(f"s_lshl_b32 s{ST}, s{SMT}, 9")
        e(f"s_and_b32 s{ST + 1}, s{SWAVE}, 1")
        e(f"s_lshl_b32 s{ST + 1}, s{ST + 1}, 8")
        e(f"s_add_u32 s{ST}, s{ST}, s{ST + 1}")
        e(f"s_add_u32 s{ST}, s{ST}, {G_OFF}")
        for i in range(4):
            a.vmem(f"buffer_load_dword v{VG + i}, v{t0}, {WS}, s{ST} offen offset:{64 * i}", "g")

    def run_seq(fl):
        for fn in fl:
            n_ = len(a.lines)
            fn()
            if " m0," in a.lines[-1] and len(a.lines) == n_ + 1:
                e("s_nop 0")

    import math
    PERIOD = S * 4 // math.gcd(S, 4)

    if OPT['pprio']:
        e(f"s_setprio {OPT['pprio']}")
    e(f"s_lshl_b32 s{SM0A}, s{SWAVE}, 12")
    e(f"s_add_u32 s{SM0B}, s{SM0A}, 16384")
    e(f"v_add_u32 v{VAD}, s{SM0A}, v{VL16}")
    e(f"s_lshl_b32 s{ST + 2}, s{SNT}, 8")
    e(f"s_lshl_b32 s{ST + 3}, s{SWAVE}, 15")
    e(f"s_add_u32 s{ST + 2}, s{ST + 2}, s{ST + 3}")
    e(f"v_lshlrev_b32 v{t0}, 11, v{vG}")
    e(f"v_add_u32 v{t0}, s{ST + 2}, v{t0}")
    e(f"v_lshlrev_b32 v{t1}, 1, v{vG}")
    e(f"v_xor_b32 v{t1}, v{t1}, v{vi}")
    for j in range(4):
        if j & 1:
            e(f"v_xor_b32 v{t2}, 8, v{t1}")
            e(f"v_lshlrev_b32 v{t2}, 4, v{t2}")
        else:
            e(f"v_lshlrev_b32 v{t2}, 4, v{t1}")
        e(f"v_add_u32 v{t2}, v{t2}, v{t0}")
        e(f"v_add_u32 v{VBD + j}, {j * (8192 - 1024)}, v{t2}")
    e(f"s_mul_i32 s{SOA}, s{SMT}, {144 * 8192}")
    e(f"s_add_u32 s{SOP}, s{SOA}, {112 * 8192}")
    e(f"s_mov_b32 s{SOB}, 0")
    e("s_waitcnt lgkmcnt(0)")
    srd(a, SW2, SP + 12, SP + 13, 3584 * 1024 * 2)
    srd(a, SWS, SP + 20, SP + 21, WS_USED)
    srd(a, SWO, SP + 4, SP + 5, 1024 * 1024 * 2)
    srd(a, SDBG, SP + 18, SP + 19, 256)
    e(f"s_cmp_eq_u32 s{SROLE}, 0")
    e(f"s_cbranch_scc1 L_k2_prod0")

    def producer(role):
        R = f"p{role}"
        nact = n0 if role == 0 else 56 - n0
        N = nact if role == 0 else nact + 16
        SCR = S * SLOT
        if role == 1:
            e(f"s_add_u32 s{SOA}, s{SOA}, {n0 * 16384}")
            e(f"s_mov_b32 s{SOB}, {n0 * 131072}")

        def dmaA(j):
            f = []
            if j == nact:
                def sw():
                    e(f"s_lshl_b32 s{SOA}, s{SMT}, 18")
                    e(f"s_add_u32 s{SOA}, s{SOA}, {OF_OFF}")
                f.append(sw)
            fl = OPT['k2a'] if j < nact else "sc1"
            f.append(lambda: e(f"s_add_u32 m0, s{SM0A}, {(j % S) * SLOT}"))
            for i in range(4):
                f.append(lambda i=i: a.vmem(
                    f"buffer_load_dwordx4 v{VAD}, {WS}, s{SOA} offen offset:{1024 * i} {fl} lds", f"D{j}"))
            f.append(lambda: e(f"s_add_u32 s{SOA}, s{SOA}, 16384"))
            return f

        def dmaB(j):
            sr = SW2 if j < nact else SWO
            f = []
            if j == nact:
                f.append(lambda: e(f"s_mov_b32 s{SOB}, 0"))
            f.append(lambda: e(f"s_add_u32 m0, s{SM0B}, {(j % S) * SLOT}"))
            for i in range(4):
                f.append(lambda i=i: a.vmem(
                    f"buffer_load_dwordx4 v{VBD + i}, s[{sr}:{sr + 3}], s{SOB} offen offset:{1024 * i} {OPT['k2b']} lds", f"D{j}"))
            f.append(lambda: e(f"s_add_u32 s{SOB}, s{SOB}, 131072"))
            return f

        def dma_stage(j):
            return dmaA(j) + dmaB(j)

        for j in range(S - 1):
            run_seq(dma_stage(j))
        a.wait(["D0"])
        e("s_barrier")

        JP = N - OPT['pj']
        assert JP - (1 if PBF else 2) + S >= N and OPT['pj'] >= 1
        JO = nact - (S - 1)

        def interval(j):
            lg = False
            if role == 1 and j == JO - 3:
                e(f"s_lshl_b32 s{ST}, s{SMT}, 8")
                e(f"s_add_u32 s{ST}, s{ST}, {FLG_OFF}")
                e(f"v_mov_b32 v{VFL + 1}, s{ST}")
                a.vmem(f"buffer_load_dword v{VFL}, v{VFL + 1}, {WS}, 0 offen sc1", "F")
            if role == 1 and j == JO:
                a.wait(["F"])
                a.label("L_k2_kvwait")
                e(f"v_readfirstlane_b32 s{ST}, v{VFL}")
                e("s_nop 3")
                e(f"s_cmp_ge_u32 s{ST}, 64")
                e("s_cbranch_scc1 L_k2_kvok")
                e("s_sleep 8")
                e(f"buffer_load_dword v{VFL}, v{VFL + 1}, {WS}, 0 offen sc1")
                e("s_waitcnt vmcnt(0)")
                e("s_branch L_k2_kvwait")
                a.label("L_k2_kvok")
            if j + S - 1 < N:
                run_seq(dma_stage(j + S - 1))
            if role == 1 and j == JP:
                e(f"s_lshl_b32 s{ST}, s{STILE}, 8")
                e(f"s_add_u32 s{ST}, s{ST}, {FLG_OFF + 4096}")
                e(f"v_mov_b32 v{VFL + 1}, s{ST}")
                a.label("L_k2_pwait")
                e(f"buffer_load_dword v{VFL}, v{VFL + 1}, {WS}, 0 offen sc1")
                e("s_waitcnt vmcnt(0)")
                a.vm = []
                e(f"v_readfirstlane_b32 s{ST}, v{VFL}")
                e("s_nop 3")
                e(f"s_cmp_lg_u32 s{ST}, 0")
                e("s_cbranch_scc1 L_k2_pok")
                e("s_sleep 4")
                e("s_branch L_k2_pwait")
                a.label("L_k2_pok")
                e(f"s_lshl_b32 s{ST}, s{STILE}, 16")
                e(f"s_mul_i32 s{ST + 1}, s{SWAVE}, {PSZ}")
                e(f"s_add_u32 s{ST}, s{ST}, s{ST + 1}")
                e(f"s_add_u32 s{ST}, s{ST}, {PART_OFF}")
                ps = [(JP - 2) % S, (JP - 1) % S]
                if PBF:
                    e(f"s_add_u32 s{ST + 1}, s{ST + 1}, {ps[1] * SLOT}")
                else:
                    e(f"s_and_b32 s{ST + 1}, s{SWAVE}, 1")
                    e(f"s_lshl_b32 s{ST + 1}, s{ST + 1}, 14")
                    e(f"s_cmp_lt_u32 s{SWAVE}, 2")
                    e(f"s_mov_b32 s{ST + 3}, {ps[1] * SLOT}")
                    e(f"s_cselect_b32 s{ST + 2}, {ps[0] * SLOT}, s{ST + 3}")
                    e(f"s_add_u32 s{ST + 1}, s{ST + 1}, s{ST + 2}")
                for q in range(PSZ // 1024):
                    if q & 3 == 0:
                        e(f"s_add_u32 m0, s{ST + 1}, {1024 * q}")
                        e("s_nop 0")
                    a.vmem(f"buffer_load_dwordx4 v{VL16}, {WS}, s{ST} offen offset:{1024 * (q & 3)} sc1 lds", "PT")
                    if q & 3 == 3:
                        e(f"s_add_u32 s{ST}, s{ST}, 4096")
            if j + 1 < N:
                a.wait([f"D{j + 1}"], lgkm=lg)
                e("s_barrier")

        iters = []
        for j in range(N):
            n_ = len(a.lines)
            interval(j)
            iters.append(a.lines[n_:])
            del a.lines[n_:]
        fold_loops(a, iters, PERIOD, SCNT, f"k2{R}")
        if role == 1:
            e("s_waitcnt vmcnt(0)")
            e("s_barrier")
        e("s_endpgm")

    producer(1)
    a.label("L_k2_prod0")
    a.vm = []
    producer(0)

    a.label("L_k2_cons")
    a.vm = []
    if OPT['cprio']:
        e(f"s_setprio {OPT['cprio']}")
    SCR = S * SLOT
    CG = 40
    CR = 44
    CKV = 48
    CEPS = 60
    CW = 38
    SHD, SM2 = SOKV, SRED
    e(f"s_and_b32 s{SHD}, s2, 31")
    e(f"s_lshr_b32 s{SM2}, s2, 5")
    e(f"s_lshl_b32 s{SM2}, s{SM2}, 1")
    e(f"s_lshr_b32 s{ST}, s{SWAVE}, 1")
    e(f"s_add_u32 s{SM2}, s{SM2}, s{ST}")
    e(f"s_lshr_b32 s{ST}, s{SHD}, 1")
    e(f"s_lshl_b32 s{ST}, s{ST}, 3")
    e(f"s_lshl_b32 s{ST + 1}, s{SWAVE}, 1")
    e(f"s_add_u32 s{ST}, s{ST}, s{ST + 1}")
    e(f"s_mul_i32 s{ST}, s{ST}, 12")
    e(f"s_and_b32 s{ST + 1}, s{SHD}, 1")
    e(f"s_mul_i32 s{ST + 1}, s{ST + 1}, 6")
    e(f"s_add_u32 s{ST}, s{ST}, s{ST + 1}")
    e(f"s_lshl_b32 s{ST}, s{ST}, 10")
    e(f"s_add_u32 s{ST}, s{ST}, {KVP_OFF}")
    e("s_waitcnt lgkmcnt(0)")
    srd(a, SWS, SP + 20, SP + 21, WS_USED)
    for r2 in range(2):
        for t6 in range(6):
            if t6 == 3:
                e(f"s_add_u32 s{ST}, s{ST}, 3072")
            a.vmem(f"buffer_load_dwordx4 {vr(VP + 24 * r2 + 4 * t6)}, v{VL16}, {WS}, s{ST} offen offset:{1024 * (t6 % 3)}", "kvp")
        if r2 == 0:
            e(f"s_add_u32 s{ST}, s{ST}, {12288 - 3072}")
    e(f"s_mul_i32 s{ST}, s{SM2}, 144")
    e(f"s_add_u32 s{ST}, s{ST}, s{SHD}")
    e(f"s_add_u32 s{ST}, s{ST}, 112")
    e(f"s_lshl_b32 s{ST}, s{ST}, 13")
    e(f"s_and_b32 s{ST + 1}, s{SWAVE}, 1")
    e(f"s_lshl_b32 s{ST + 1}, s{ST + 1}, 12")
    e(f"s_add_u32 s{ST}, s{ST}, s{ST + 1}")
    for i in range(4):
        a.vmem(f"buffer_load_dwordx4 {ar(64 + 4 * i)}, v{VL16}, {WS}, s{ST} offen offset:{1024 * i}", "pq")
    e(f"s_lshl_b32 s{SOP}, s{SM2}, 5")
    e(f"s_add_u32 s{SOP}, s{SOP}, s{SHD}")
    e(f"s_lshl_b32 s{SOP}, s{SOP}, 13")
    e(f"s_add_u32 s{SOP}, s{SOP}, s{ST + 1}")
    e(f"s_add_u32 s{SOP}, s{SOP}, {OF_OFF}")
    e(f"v_lshlrev_b32 v{t0}, 2, v{vi}")
    e(f"s_lshl_b32 s{ST}, s{SM2}, 9")
    e(f"s_lshr_b32 s{ST + 1}, s{ST + 1}, 4")
    e(f"s_add_u32 s{ST}, s{ST}, s{ST + 1}")
    e(f"s_add_u32 s{ST}, s{ST}, {G_OFF}")
    for i in range(4):
        a.vmem(f"buffer_load_dword v{CG + i}, v{t0}, {WS}, s{ST} offen offset:{64 * i}", "pq")
    load_g()
    srd(a, SOUT, SP + 16, SP + 17, 2048 * 1024 * 2)
    for r in range(4):
        e(f"v_mov_b32 v{CEPS + r}, {EPS_HEX}")
    e(f"s_mul_i32 s{ST}, s{SWAVE}, 6144")
    e(f"s_add_u32 s{ST}, s{ST}, {SCR}")
    e(f"v_add_u32 v{CW}, s{ST}, v{VL16}")
    e(f"v_add_u32 v{CW + 1}, {SCR}, v{VL16}")
    e(f"s_and_b32 s{ST}, s{SWAVE}, 1")
    e(f"s_lshl_b32 s{ST}, s{ST}, 12")
    e(f"v_add_u32 v{VAR}, s{ST}, v{VL16}")
    for k in range(1, NBASE):
        e(f"v_add_u32 v{VAR + k}, {65536 * k}, v{VAR}")
    e(f"v_lshlrev_b32 v{t0}, 2, v{vG}")
    e(f"v_lshrrev_b32 v{t1}, 2, v{vi}")
    e(f"v_add_u32 v{t0}, v{t0}, v{t1}")
    e(f"v_and_b32 v{t1}, 7, v{t0}")
    e(f"s_lshr_b32 s{ST}, s{SWAVE}, 1")
    e(f"s_lshl_b32 s{ST}, s{ST}, 2")
    e(f"v_xor_b32 v{t1}, s{ST}, v{t1}")
    e(f"v_lshlrev_b32 v{t0}, 8, v{t0}")
    e(f"v_and_b32 v{t2}, 3, v{vi}")
    e(f"v_lshlrev_b32 v{t2}, 3, v{t2}")
    e(f"v_add_u32 v{t0}, v{t0}, v{t2}")
    e(f"v_add_u32 v{t0}, 16384, v{t0}")
    for nt in range(4):
        e(f"v_xor_b32 v{t3}, {nt}, v{t1}")
        e(f"v_lshlrev_b32 v{t3}, 5, v{t3}")
        e(f"v_add_u32 v{VBR + nt}, v{t0}, v{t3}")
        for k in range(1, NBASE):
            e(f"v_add_u32 v{VBR + 4 * k + nt}, {65536 * k}, v{VBR + nt}")
    e(f"s_cmp_eq_u32 s{SROLE}, 0")
    e(f"s_cbranch_scc1 L_k2_cons0")

    def consumer(role):
        R = f"c{role}"
        nact = n0 if role == 0 else 56 - n0
        N = nact if role == 0 else nact + 16
        stamp(a, 0)
        a.wait(["kvp"])
        for q in range(12):
            e(f"v_pk_add_f32 {vr(VP + 2 * q, 2)}, {vr(VP + 2 * q, 2)}, {vr(VP + 24 + 2 * q, 2)}")
        for t6 in range(6):
            e(f"ds_write_b128 v{CW}, {vr(VP + 4 * t6)} offset:{1024 * t6}")
        e("s_waitcnt lgkmcnt(0)")
        stamp(a, 1)
        e("s_barrier")
        stamp(a, 2)

        def produce():
            for dt in range(2):
                for w2 in range(4):
                    for et in range(3):
                        e(f"ds_read_b128 {vr(VP + 12 * w2 + 4 * et)}, v{CW + 1} offset:{6144 * w2 + 1024 * (3 * dt + et)}")
                if dt == 0:
                    for fn in reads(0):
                        fn()
                e("s_waitcnt lgkmcnt(0)")
                for q in range(6):
                    e(f"v_pk_add_f32 {vr(VP + 2 * q, 2)}, {vr(VP + 2 * q, 2)}, {vr(VP + 12 + 2 * q, 2)}")
                    e(f"v_pk_add_f32 {vr(VP + 24 + 2 * q, 2)}, {vr(VP + 24 + 2 * q, 2)}, {vr(VP + 36 + 2 * q, 2)}")
                for q in range(6):
                    e(f"v_pk_add_f32 {vr(VP + 2 * q, 2)}, {vr(VP + 2 * q, 2)}, {vr(VP + 24 + 2 * q, 2)}")
                for et in range(3):
                    for h2 in range(2):
                        e(f"v_cvt_pk_bf16_f32 v{CKV + 4 * et + 2 * dt + h2}, v{VP + 4 * et + 2 * h2}, v{VP + 4 * et + 2 * h2 + 1}")
            a.wait(["pq", "g"])
            e("s_nop 1")
            for i in range(4):
                d = VD + 12 * i
                pq = ar(64 + 4 * i)
                e(f"v_mfma_f32_16x16x32_bf16 {vr(d + 8)}, {vr(CKV + 8)}, {pq}, {vr(CEPS)}")
                e(f"v_mfma_f32_16x16x32_bf16 {vr(d)}, {vr(CKV)}, {pq}, 0")
                e(f"v_mfma_f32_16x16x32_bf16 {vr(d + 4)}, {vr(CKV + 4)}, {pq}, 0")
            for i in range(4):
                e(f"v_sub_f32 v{VOMG + i}, 1.0, v{VG + i}")
            e("s_nop 3")
            for i in range(4):
                e(f"v_rcp_f32 v{CR + i}, v{VD + 12 * i + 8}")
            e("s_nop 0")
            for i in range(4):
                e(f"v_mul_f32 v{CR + i}, v{CR + i}, v{CG + i}")
            for i in range(4):
                d = VD + 12 * i
                sel = "op_sel:[0,1] op_sel_hi:[1,1]" if i & 1 else "op_sel_hi:[1,0]"
                for q in range(4):
                    e(f"v_pk_mul_f32 {vr(d + 2 * q, 2)}, {vr(d + 2 * q, 2)}, {vr(CR + (i & 2), 2)} {sel}")
                o = 112 + 4 * i
                for q in range(4):
                    e(f"v_cvt_pk_bf16_f32 v{o + q}, v{d + 2 * q}, v{d + 2 * q + 1}")
                a.vmem(f"buffer_store_dwordx4 {vr(o)}, v{VL16}, {WS}, s{SOP} offen offset:{1024 * i} sc1", "ost")

        def reads(j):
            sl = j % S
            k, so = sl // 2, (sl % 2) * SLOT
            f = []
            for q in range(4):
                for b in range(2):
                    f.append(lambda b=b, q=q: e(
                        f"ds_read_b128 {ar(FA(j, b, q))}, v{VAR + k} offset:{so + 8192 * b + 1024 * q}"))
                    for ins in range(2):
                        f.append(lambda b=b, q=q, ins=ins: e(
                            f"ds_read_b64_tr_b16 {ar(FB(j, b, q) + 2 * ins, 2)}, v{VBR + 4 * k + q} offset:{so + 8192 * b + 4096 * ins}"))
            return f

        def interval(j):
            main = []
            if j >= 1:
                for mt in range(4):
                    for nt in range(4):
                        D = vr(acc2(mt, nt))
                        for b in range(2):
                            C = "0" if (j == 1 and b == 0) else D
                            main.append(f"v_mfma_f32_16x16x32_bf16 {D}, {ar(FB(j - 1, b, nt))}, {ar(FA(j - 1, b, mt))}, {C}")
            rd = reads(j) if j < N else []
            if j == 0:
                produce()
                rd = []
            if j == 5:
                a.wait(["ost"])
                e(f"s_lshl_b32 s{ST}, s{SM2}, 8")
                e(f"s_add_u32 s{ST}, s{ST}, {FLG_OFF}")
                e(f"v_mov_b32 v{CW}, 1")
                e(f"v_mov_b32 v{CW + 1}, s{ST}")
                e("s_mov_b64 exec, 1")
                e(f"buffer_atomic_add v{CW}, v{CW + 1}, {WS}, 0 offen")
                e("s_mov_b64 exec, -1")
            if role == 1 and j == nact + 1:
                e("s_nop 7")
                for mt in range(4):
                    for q in range(16):
                        b0 = acc2(mt, 0) + q
                        e(f"v_mul_f32 v{b0}, v{VOMG + mt}, v{b0}")
                e("s_nop 1")
            schedule(a, main, [(rd, 0, OPT['rdend'])])
            if j < N:
                e("s_waitcnt lgkmcnt(0)")
                if j + 1 < N:
                    e("s_barrier")

        iters = []
        for j in range(N + 1):
            n_ = len(a.lines)
            if j == 4:
                stamp(a, 3)
            if role == 1 and j == nact:
                stamp(a, 4)
            interval(j)
            iters.append(a.lines[n_:])
            del a.lines[n_:]
        fold_loops(a, iters, PERIOD, SCNT, f"k2{R}")
        if role == 0:
            stamp(a, 4)
        stamp(a, 5)
        if role == 0:
            e(f"s_lshl_b32 s{ST}, s{STILE}, 16")
            e(f"s_mul_i32 s{ST + 1}, s{SWAVE}, {PSZ}")
            e(f"s_add_u32 s{ST}, s{ST}, s{ST + 1}")
            e(f"s_add_u32 s{ST}, s{ST}, {PART_OFF}")
            e("s_nop 7")
            if PBF:
                for q in range(8):
                    b0 = AC + 8 * q
                    for r in range(4):
                        e(f"v_cvt_pk_bf16_f32 v{b0 + r}, v{b0 + 2 * r}, v{b0 + 2 * r + 1}")
                    e(f"buffer_store_dwordx4 {vr(b0)}, v{VL16}, {WS}, s{ST} offen offset:{1024 * (q & 3)} sc1")
                    if q & 3 == 3:
                        e(f"s_add_u32 s{ST}, s{ST}, 4096")
            else:
                for q in range(16):
                    e(f"buffer_store_dwordx4 {vr(AC + 4 * q)}, v{VL16}, {WS}, s{ST} offen offset:{1024 * (q & 3)} sc1")
                    if q & 3 == 3:
                        e(f"s_add_u32 s{ST}, s{ST}, 4096")
            e(f"s_lshl_b32 s{ST}, s{STILE}, 8")
            e(f"s_add_u32 s{ST}, s{ST}, {FLG_OFF + 4096}")
            e(f"v_mov_b32 v{VT + 1}, s{ST}")
            e(f"v_mov_b32 v{VT}, 1")
            e("s_waitcnt vmcnt(0)")
            e("s_barrier")
            stamp(a, 6)
            e(f"s_cmp_lg_u32 s{SWAVE}, 0")
            e(f"s_cbranch_scc1 L_k2_p0end")
            e("s_mov_b64 exec, 1")
            e(f"buffer_store_dword v{VT}, v{VT + 1}, {WS}, 0 offen sc1")
            e("s_mov_b64 exec, -1")
            a.label("L_k2_p0end")
        else:
            JP = N - OPT['pj']
            ps = [(JP - 2) % S, (JP - 1) % S]
            vo, vpr = VT + 6, VT + 7
            e(f"v_and_b32 v{t2}, 15, v{VL}")
            e(f"v_lshlrev_b32 v{t2}, 11, v{t2}")
            e(f"v_bfe_u32 v{t3}, v{VL}, 4, 1")
            e(f"v_lshlrev_b32 v{t3}, 5, v{t3}")
            e(f"v_add_u32 v{t2}, v{t2}, v{t3}")
            e(f"v_lshrrev_b32 v{t3}, 5, v{VL}")
            e(f"v_lshlrev_b32 v{t3}, 4, v{t3}")
            e(f"v_add_u32 v{vo}, v{t2}, v{t3}")
            if PBF:
                e(f"s_mul_i32 s{ST + 1}, s{SWAVE}, {PSZ}")
                e(f"s_add_u32 s{ST + 1}, s{ST + 1}, {ps[1] * SLOT}")
            else:
                e(f"s_and_b32 s{ST + 1}, s{SWAVE}, 1")
                e(f"s_lshl_b32 s{ST + 1}, s{ST + 1}, 14")
                e(f"s_cmp_lt_u32 s{SWAVE}, 2")
                e(f"s_mov_b32 s{ST + 3}, {ps[1] * SLOT}")
                e(f"s_cselect_b32 s{ST + 2}, {ps[0] * SLOT}, s{ST + 3}")
                e(f"s_add_u32 s{ST + 1}, s{ST + 1}, s{ST + 2}")
            e(f"v_add_u32 v{vpr}, s{ST + 1}, v{VL16}")
            e(f"s_lshl_b32 s{ST}, s{SMT}, 7")
            e(f"s_and_b32 s{ST + 1}, s{SWAVE}, 1")
            e(f"s_lshl_b32 s{ST + 1}, s{ST + 1}, 6")
            e(f"s_add_u32 s{ST}, s{ST}, s{ST + 1}")
            e(f"s_lshl_b32 s{ST}, s{ST}, 11")
            e(f"s_lshl_b32 s{ST + 1}, s{SNT}, 8")
            e(f"s_add_u32 s{ST}, s{ST}, s{ST + 1}")
            e(f"s_lshr_b32 s{ST + 1}, s{SWAVE}, 1")
            e(f"s_lshl_b32 s{ST + 1}, s{ST + 1}, 7")
            e(f"s_add_u32 s{ST}, s{ST}, s{ST + 1}")
            e("s_barrier")
            PT = 24
            for mh2 in range(2):
                if PBF:
                    for q in range(4):
                        e(f"ds_read_b128 {vr(PT + 4 * q)}, v{vpr} offset:{1024 * (4 * mh2 + q)}")
                else:
                    for q in range(8):
                        e(f"ds_read_b128 {vr(PT + 4 * q)}, v{vpr} offset:{1024 * (8 * mh2 + q)}")
                e("s_waitcnt lgkmcnt(0)")
                for m2 in range(2):
                    mt = 2 * mh2 + m2
                    if PBF:
                        for q in range(8):
                            b0 = acc2(mt, 0) + 2 * q
                            p0 = PT + 8 * m2 + q
                            e(f"v_lshlrev_b32 v{PT + 16}, 16, v{p0}")
                            e(f"v_and_b32 v{PT + 17}, 0xffff0000, v{p0}")
                            e(f"v_fmac_f32 v{b0}, v{VOMG + mt}, v{PT + 16}")
                            e(f"v_fmac_f32 v{b0 + 1}, v{VOMG + mt}, v{PT + 17}")
                    else:
                        sel = "op_sel:[1,0,0] op_sel_hi:[1,1,1]" if mt & 1 else "op_sel_hi:[0,1,1]"
                        for q in range(8):
                            b0 = acc2(mt, 0) + 2 * q
                            p0 = PT + 16 * m2 + 2 * q
                            e(f"v_pk_fma_f32 {vr(b0, 2)}, {vr(VOMG + (mt & 2), 2)}, {vr(p0, 2)}, {vr(b0, 2)} {sel}")
                    for pr in range(2):
                        b0 = acc2(mt, 2 * pr)
                        for q in range(4):
                            e(f"v_cvt_pk_bf16_f32 v{b0 + q}, v{b0 + 2 * q}, v{b0 + 2 * q + 1}")
                    e("s_nop 1")
                    for pr in range(2):
                        b0 = acc2(mt, 2 * pr)
                        e(f"v_permlane16_swap_b32 v{b0}, v{b0 + 2}")
                        e(f"v_permlane16_swap_b32 v{b0 + 1}, v{b0 + 3}")
                    for pr in range(2):
                        b0 = acc2(mt, 2 * pr)
                        e(f"buffer_store_dwordx4 {vr(b0)}, v{vo}, s[{SOUT}:{SOUT + 3}], s{ST} offen offset:{64 * pr}")
                    if mt < 3:
                        e(f"s_add_u32 s{ST}, s{ST}, 32768")
            stamp(a, 6)
        if DIAG:
            e("s_waitcnt vmcnt(0)")
        stamp(a, 7)
        stamp_dump(a, 1, 8, SWAVE, SP + 20, SP + 21, VT + 8)
        e("s_endpgm")

    vm_save = list(a.vm)
    consumer(1)
    a.label("L_k2_cons0")
    a.vm = vm_save
    consumer(0)
    a.label("L_k2_exit")
    e("s_endpgm")
    return a.lines


def fix_hazards(lines):
    out = []
    for i, ln in enumerate(lines):
        out.append(ln)
        if " m0," in ln and i + 1 < len(lines) and lines[i + 1].rstrip().endswith("lds"):
            out.append("  s_nop 0")
    return out


def kd(name, nfv, accum):
    return f""".amdhsa_kernel {name}
  .amdhsa_next_free_vgpr {nfv}
  .amdhsa_next_free_sgpr 102
  .amdhsa_accum_offset {accum}
  .amdhsa_group_segment_fixed_size 0
  .amdhsa_kernarg_size 88
  .amdhsa_user_sgpr_count 2
  .amdhsa_user_sgpr_kernarg_segment_ptr 1
  .amdhsa_system_sgpr_workgroup_id_x 1
.end_amdhsa_kernel"""


def main(path):
    hdr = open(f"cdna_kernels/{NAME}.s.ref").read().split("; Override launch")[0]
    out = [hdr.rstrip("\n")]
    out.append(f"; @launch kernel=k1_kernel grid=(256,1,1) block=(256,1,1) lds={K1_LDS}")
    out.append(f"; @launch kernel=k2_kernel grid=(256,1,1) block=(512,1,1) lds={K2_LDS()}")
    out.append('.amdgcn_target "amdgcn-amd-amdhsa--gfx950"')
    out.append(".text")
    out += fix_hazards(gen_k1())
    out += fix_hazards(gen_k2())
    out.append('.section .rodata,"a"')
    out.append(".p2align 6")
    out.append(kd("k1_kernel", 256 + 152, 256))
    out.append(".p2align 6")
    out.append(kd("k2_kernel", 256, 128))
    open(path, "w").write("\n".join(out) + "\n")


if __name__ == "__main__":
    if "--dbgout" in sys.argv:
        DBGOUT = True
        sys.argv.remove("--dbgout")
    if "--diag" in sys.argv:
        DIAG = True
        sys.argv.remove("--diag")
    for arg in list(sys.argv):
        if "=" in arg:
            k_, v_ = arg.split("=")
            OPT[k_] = int(v_) if v_.isdigit() else v_.replace("+", " ")
            sys.argv.remove(arg)
    main(sys.argv[1] if len(sys.argv) > 1 else f"cdna_kernels/{NAME}.s")
```

```python
import sys

NAME = "gated_mix__linear_attn_block__dense_activation_mish__prompt"

AF_OFF = 0
AF_BYTES = 16 * 144 * 8 * 1024
KVP_OFF = AF_BYTES
KVP_BYTES = 16 * 8 * 12 * 1024
KVF_OFF = KVP_OFF + KVP_BYTES
KVF_BYTES = 32 * 3 * 1024
G_OFF = KVF_OFF + KVF_BYTES
PART_OFF = G_OFF + 8192
OF_OFF = PART_OFF + 128 * 65536
FLG_OFF = OF_OFF + 16 * 32 * 8192
WS_USED = FLG_OFF + 144 * 256

DIAG = False
DBGOUT = False
OPT = dict(k1a="", k1b="", k2a="", k2b="", st="", pf=2, xpf=1, n0=33, map=2, S=4, pbf=1, pj=2, pprio=0, cprio=0, rdend=26)
DIAG_OFF = 0x2000000
EPS_HEX = "0x358637bd"
L2E_HEX = "0x3fb8aa3b"


class Asm:
    def __init__(self):
        self.lines = []
        self.vm = []

    def e(self, s):
        for ln in s.split("\n"):
            self.lines.append("  " + ln.strip())

    def label(self, s):
        self.lines.append(s + ":")

    def vmem(self, s, tag):
        self.e(s)
        self.vm.append(tag)

    def mark(self, tag):
        self.vm.append("#" + tag)

    def vm_count(self, tags, drop=True):
        idx = -1
        for i, t in enumerate(self.vm):
            if t in tags:
                idx = i
        if idx < 0:
            return None
        n = sum(1 for t in self.vm[idx + 1:] if not t.startswith("#"))
        if drop:
            self.vm = self.vm[idx + 1:]
        assert n <= 63, n
        return n

    def wait(self, tags=(), lgkm=False):
        n = self.vm_count(tags) if tags else None
        parts = []
        if n is not None:
            parts.append(f"vmcnt({n})")
        if lgkm:
            parts.append("lgkmcnt(0)")
        if parts:
            self.e("s_waitcnt " + " ".join(parts))


def stamp(a, idx, sbase=80):
    if not DIAG:
        return
    a.e(f"s_memtime s[{sbase - 4}:{sbase - 3}]")
    a.e(f"s_memrealtime s[{sbase - 2}:{sbase - 1}]")
    a.e("s_waitcnt lgkmcnt(0)")
    a.e(f"s_mov_b32 s{sbase + 2 * idx}, s{sbase - 4}")
    a.e(f"s_mov_b32 s{sbase + 2 * idx + 1}, s{sbase - 2}")


def stamp_dump(a, kidx, n, swave, sptr_lo, sptr_hi, vtmp, sbase=80):
    if not DIAG:
        return
    e = a.e
    e(f"s_mov_b32 s{sbase - 4}, s{sptr_lo}")
    e(f"s_and_b32 s{sbase - 3}, s{sptr_hi}, 0xffff")
    e(f"s_mov_b32 s{sbase - 2}, 0x4000000")
    e(f"s_mov_b32 s{sbase - 1}, 0x20000")
    e(f"s_lshl_b32 s75, s2, 2")
    e(f"s_add_u32 s75, s75, s{swave}")
    e(f"s_lshl_b32 s75, s75, 7")
    e(f"s_add_u32 s75, s75, {DIAG_OFF + kidx * 0x100000}")
    e(f"v_mov_b32 v{vtmp}, 0")
    e("s_mov_b64 exec, 1")
    for i in range(2 * n):
        e(f"v_mov_b32 v{vtmp + 1}, s{sbase + i}")
        e(f"buffer_store_dword v{vtmp + 1}, v{vtmp}, s[{sbase - 4}:{sbase - 1}], s75 offen offset:{4 * i}")
        e("s_nop 1")
    e("s_mov_b64 exec, -1")
    if DBGOUT:
        lab = f"L_dbg_{len(a.lines)}"
        e(f"s_cmp_lg_u32 s2, 1")
        e(f"s_cbranch_scc1 {lab}")
        e(f"s_cmp_lg_u32 s{swave}, 0")
        e(f"s_cbranch_scc1 {lab}")
        e(f"s_mov_b32 s{sbase - 4}, s{sptr_lo - 2}")
        e(f"s_and_b32 s{sbase - 3}, s{sptr_hi - 2}, 0xffff")
        e(f"s_mov_b32 s{sbase - 2}, 256")
        e("s_mov_b64 exec, 1")
        for i in range(n):
            e(f"v_mov_b32 v{vtmp + 1}, s{sbase + 2 * i + 1}")
            e(f"buffer_store_dword v{vtmp + 1}, v{vtmp}, s[{sbase - 4}:{sbase - 1}], 0 offen offset:{4 * i + 32 * kidx}")
            e("s_nop 1")
        e("s_mov_b64 exec, -1")
        a.label(lab)


def vr(b, n=4):
    return f"v[{b}:{b + n - 1}]"


def ar(b, n=4):
    return f"a[{b}:{b + n - 1}]"


def interleave(a, mf, fillers, start=0, end=None):
    n = len(mf)
    if end is None:
        end = n
    nf = len(fillers)
    pos = [start + (j * (end - start)) // max(nf, 1) for j in range(nf)]
    j = 0
    for m in range(n):
        a.e(mf[m])
        while j < nf and pos[j] <= m:
            f = fillers[j]
            f()
            j += 1
    while j < nf:
        fillers[j]()
        j += 1


def srd(a, d, lo, hi, nbytes, bias=0):
    if bias:
        a.e(f"s_sub_u32 s{d}, s{lo}, {bias}")
        a.e(f"s_subb_u32 s{d + 1}, s{hi}, 0")
        a.e(f"s_and_b32 s{d + 1}, s{d + 1}, 0xffff")
    else:
        a.e(f"s_mov_b32 s{d}, s{lo}")
        a.e(f"s_and_b32 s{d + 1}, s{hi}, 0xffff")
    a.e(f"s_mov_b32 s{d + 2}, {nbytes + bias}")
    a.e(f"s_mov_b32 s{d + 3}, 0x20000")


K1_BSLOT = 13312
K1_AREA = 3328
K1_ABASE = 4 * K1_BSLOT
K1_LDS = K1_ABASE + 4 * 16384
ACC0 = 48


def acc(t, mt):
    return ACC0 + 16 * t + 4 * mt


V_LANE = 1
V_ARD = 2
V_QRD = 4
V_HRD = 8
V_ADMA = 9
V_BDMA = 13
V_L16 = 17
V_T = 18
S_X, S_Q, S_W1, S_WS, S_MISC = 4, 8, 12, 16, 20
S_WAVE, S_RB, S_P = 24, 25, 26
S_OFFA, S_OFFA2, S_OFFQ, S_OFFH = 27, 28, 29, 30
S_M0B, S_M0A = 31, 32
S_CNT = 33
S_QM = 34
S_PTR = 36
S_L2E = 58
S_T = 60
S_AFB = 72
S_GROW = 73
S_PO1, S_PO2 = 74, 3
S_PT, S_PTE = 100, 101
S_PF1, S_PF2 = 96, 20


def bset(s, t):
    return 52 * s + 4 * t


ASET = {"X": 104, "Y": 120, "Z": 136}


def k1_body(a, typ):
    T = "A" if typ == 0 else "B"
    nq = 8 if typ == 0 else 4
    nh = 13 - nq
    Ph = 2 * nh
    HB = 256 * nq
    e = a.e
    vi, vG, t0, t1, t2, t3 = V_T, V_T + 1, V_T + 2, V_T + 3, V_T + 4, V_T + 5
    e(f"v_and_b32 v{vi}, 15, v{V_LANE}")
    e(f"v_lshrrev_b32 v{vG}, 4, v{V_LANE}")
    e(f"s_mul_i32 s{S_T + 2}, s{S_P}, 448")
    if typ:
        e(f"s_add_u32 s{S_T + 2}, s{S_T + 2}, 160")

    e(f"s_lshr_b32 s{S_T + 8}, s{S_WAVE}, 1")
    e(f"s_lshl_b32 s{S_T + 8}, s{S_T + 8}, 4")
    e(f"s_and_b32 s{S_T + 9}, s{S_WAVE}, 1")
    e(f"s_lshl_b32 s{S_T + 9}, s{S_T + 9}, 2")
    e(f"s_add_u32 s{S_T + 8}, s{S_T + 8}, s{S_T + 9}")

    def krow(dst, kp, tmp):
        e(f"v_lshrrev_b32 v{tmp}, 2, v{kp}")
        e(f"v_lshlrev_b32 v{tmp}, 3, v{tmp}")
        e(f"v_and_b32 v{dst}, 3, v{kp}")
        e(f"v_add3_u32 v{dst}, v{dst}, v{tmp}, s{S_T + 8}")

    e(f"v_lshrrev_b32 v{t0}, 3, v{V_LANE}")
    krow(t1, t0, t2)
    e(f"v_mul_u32_u24 v{t1}, 6144, v{t1}")
    e(f"v_lshrrev_b32 v{t2}, 1, v{t0}")
    e(f"v_and_b32 v{t2}, 3, v{t2}")
    e(f"v_lshlrev_b32 v{t2}, 1, v{t2}")
    e(f"v_and_b32 v{t3}, 7, v{V_LANE}")
    e(f"v_xor_b32 v{t3}, v{t3}, v{t2}")
    e(f"v_lshlrev_b32 v{t3}, 4, v{t3}")
    e(f"v_add_u32 v{t1}, v{t1}, v{t3}")
    e(f"s_lshl_b32 s{S_T + 9}, s{S_P}, 7")
    e(f"s_add_u32 s{S_T + 9}, s{S_T + 9}, {4096 + (2048 if typ == 0 else 0)}")
    e(f"v_add_u32 v{V_BDMA}, s{S_T + 9}, v{t1}")
    if typ == 0:
        e(f"v_add_u32 v{V_BDMA + 1}, {2048 - 1024}, v{V_BDMA}")
    hins = [(2, 0), (3, 64)] if typ == 0 else [(1, 0), (2, 64), (3, 128)]
    magic, sh = (205, 11) if Ph == 10 else (57, 10)
    for s_ in range(8 * Ph + 64):
        if s_ < 8 * Ph:
            assert (s_ * magic) >> sh == s_ // Ph
    for slot, s0 in hins:
        e(f"v_add_u32 v{t0}, {s0}, v{V_LANE}")
        e(f"v_mul_u32_u24 v{t1}, {magic}, v{t0}")
        e(f"v_lshrrev_b32 v{t1}, {sh}, v{t1}")
        e(f"v_mul_u32_u24 v{t2}, {Ph}, v{t1}")
        e(f"v_sub_u32 v{t0}, v{t0}, v{t2}")
        e(f"v_and_b32 v{t1}, 7, v{t1}")
        krow(t2, t1, t3)
        e(f"v_mul_u32_u24 v{t2}, 7168, v{t2}")
        e(f"v_lshlrev_b32 v{t0}, 4, v{t0}")
        e(f"v_add3_u32 v{t0}, v{t0}, v{t2}, s{S_T + 2}")
        e(f"v_add_u32 v{V_BDMA + slot}, {4096 - 1024 * slot}, v{t0}")
    e(f"s_lshl_b32 s{S_T + 9}, s{S_RB}, 8")
    e(f"s_lshl_b32 s{S_T + 10}, s{S_WAVE}, 6")
    e(f"s_add_u32 s{S_T + 9}, s{S_T + 9}, s{S_T + 10}")
    e(f"s_lshl_b32 s{S_T + 9}, s{S_T + 9}, 11")
    e(f"v_lshrrev_b32 v{t0}, 3, v{V_LANE}")
    e(f"v_lshrrev_b32 v{t1}, 1, v{t0}")
    e(f"v_and_b32 v{t2}, 7, v{V_LANE}")
    e(f"v_xor_b32 v{t2}, v{t2}, v{t1}")
    e(f"v_lshlrev_b32 v{t0}, 11, v{t0}")
    e(f"v_add_u32 v{t0}, s{S_T + 9}, v{t0}")
    for j in range(4):
        if j & 1:
            e(f"v_xor_b32 v{t3}, 4, v{t2}")
            e(f"v_lshlrev_b32 v{t3}, 4, v{t3}")
        else:
            e(f"v_lshlrev_b32 v{t3}, 4, v{t2}")
        e(f"v_add_u32 v{t3}, v{t3}, v{t0}")
        e(f"v_add_u32 v{V_ADMA + j}, {j * (16384 - 1024)}, v{t3}")
    e(f"s_mul_i32 s{S_M0B}, s{S_WAVE}, {K1_AREA}")
    e(f"s_lshl_b32 s{S_M0A}, s{S_WAVE}, 14")
    e(f"s_add_u32 s{S_M0A}, s{S_M0A}, {K1_ABASE}")
    e(f"s_mov_b32 s{S_OFFA}, 0")
    e(f"s_mov_b32 s{S_OFFA2}, 65536")
    e(f"s_mov_b32 s{S_OFFQ}, 0")
    e(f"s_mov_b32 s{S_OFFH}, 0")
    e(f"s_mov_b32 s{S_QM}, 0xffff")
    e(f"s_mov_b32 s{S_QM + 1}, 0")

    def dmaB(tt):
        slot = tt % 4
        tag = f"B{tt}"
        f = []
        srcs = [(S_Q, S_OFFQ), (S_Q, S_OFFQ) if typ == 0 else (S_W1, S_OFFH), (S_W1, S_OFFH)]
        f.append(lambda: e(f"s_add_u32 m0, s{S_M0B}, {slot * K1_BSLOT}"))
        for j in range(3):
            sr, so = srcs[j]
            f.append(lambda j=j, sr=sr, so=so: a.vmem(
                f"buffer_load_dwordx4 v{V_BDMA + j}, s[{sr}:{sr + 3}], s{so} offen offset:{1024 * j} {OPT['k1b']} lds", tag))

        def q():
            e(f"s_mov_b64 exec, s[{S_QM}:{S_QM + 1}]")
            a.vmem(f"buffer_load_dwordx4 v{V_BDMA + 3}, s[{S_W1}:{S_W1 + 3}], s{S_OFFH} offen offset:3072 {OPT['k1b']} lds", tag)
            e("s_mov_b64 exec, -1")
        f.append(q)
        f.append(lambda: e(f"s_add_u32 s{S_OFFQ}, s{S_OFFQ}, {32 * 6144}"))
        f.append(lambda: e(f"s_add_u32 s{S_OFFH}, s{S_OFFH}, {32 * 7168}"))
        return f

    def dmaA(aa):
        slot = aa % 2
        tag = f"A{aa}"
        f = []
        for half in range(2):
            so = S_OFFA if half == 0 else S_OFFA2
            f.append(lambda half=half: e(f"s_add_u32 m0, s{S_M0A}, {slot * 8192 + half * 4096}"))
            for j in range(4):
                f.append(lambda j=j, so=so: a.vmem(
                    f"buffer_load_dwordx4 v{V_ADMA + j}, s[{S_X}:{S_X + 3}], s{so} offen offset:{1024 * j} {OPT['k1a']} lds", tag))
        f.append(lambda: e(f"s_add_u32 s{S_OFFA}, s{S_OFFA}, 128"))
        f.append(lambda: e(f"s_add_u32 s{S_OFFA2}, s{S_OFFA2}, 128"))
        return f

    def run_seq(fl):
        for fn in fl:
            n0 = len(a.lines)
            fn()
            if " m0," in a.lines[-1] and len(a.lines) == n0 + 1:
                e("s_nop 0")

    e("s_waitcnt lgkmcnt(0)")
    srd(a, S_Q, S_PTR + 2, S_PTR + 3, 1024 * 3072 * 2, bias=4096)
    srd(a, S_W1, S_PTR + 8, S_PTR + 9, 1024 * 3584 * 2, bias=4096)
    srd(a, S_X, S_PTR + 0, S_PTR + 1, 2048 * 1024 * 2)
    if not OPT.get('spin'):
        stamp(a, 0)
    run_seq(dmaB(0))
    run_seq(dmaA(0))
    srd(a, S_T + 4, S_PTR + 10, S_PTR + 11, 7168)
    e(f"v_lshlrev_b32 v{t1}, 3, v{vG}")
    for j in range(nh):
        a.vmem(f"buffer_load_dwordx2 {vr(acc(nq + j, 3), 2)}, v{t1}, s[{S_T + 4}:{S_T + 7}], s{S_T + 2} offen offset:{32 * j}", "bias")
    run_seq(dmaB(1))
    run_seq(dmaB(2))
    run_seq(dmaA(1))
    run_seq(dmaB(3))
    srd(a, S_WS, S_PTR + 20, S_PTR + 21, WS_USED)
    if OPT.get('xpf') == 1:
        e(f"v_and_b32 v{V_T + 28}, 31, v{V_LANE}")
        e(f"v_lshlrev_b32 v{V_T + 28}, 7, v{V_T + 28}")
        e(f"s_lshl_b32 s{S_T}, s2, 2")
        e(f"s_add_u32 s{S_T}, s{S_T}, s{S_WAVE}")
        e(f"s_lshl_b32 s{S_T}, s{S_T}, 12")
        a.vmem(f"buffer_load_dword v{V_T + 28}, v{V_T + 28}, s[{S_X}:{S_X + 3}], s{S_T} offen", "pf")
    if OPT.get('xpf') == 2:
        e(f"v_lshlrev_b32 v{V_T + 27}, 7, v{V_LANE}")
        e(f"s_lshr_b32 s{S_T}, s2, 5")
        e(f"s_lshl_b32 s{S_T}, s{S_T}, 2")
        e(f"s_add_u32 s{S_T}, s{S_T}, s{S_WAVE}")
        e(f"s_lshl_b32 s{S_T}, s{S_T}, 14")
        e(f"s_lshl_b32 s{S_T + 1}, s{S_RB}, 19")
        e(f"s_add_u32 s{S_T}, s{S_T}, s{S_T + 1}")
        a.vmem(f"buffer_load_dword v{V_T + 28}, v{V_T + 27}, s[{S_X}:{S_X + 3}], s{S_T} offen", "pf")
        e(f"s_add_u32 s{S_T}, s{S_T}, 8192")
        a.vmem(f"buffer_load_dword v{V_T + 28}, v{V_T + 27}, s[{S_X}:{S_X + 3}], s{S_T} offen", "pf")

    e(f"v_lshrrev_b32 v{t0}, 3, v{vi}")
    e(f"v_lshlrev_b32 v{t0}, 6, v{t0}")
    e(f"v_and_b32 v{t1}, 7, v{vi}")
    e(f"v_lshlrev_b32 v{t1}, 3, v{t1}")
    e(f"v_add_u32 v{t0}, v{t0}, v{t1}")
    e(f"v_lshrrev_b32 v{t1}, 1, v{vi}")
    e(f"v_xor_b32 v{t1}, v{t1}, v{vG}")
    e(f"v_add_u32 v{t2}, v{t0}, v{t1}")
    e(f"v_lshlrev_b32 v{t2}, 4, v{t2}")
    e(f"v_add_u32 v{V_ARD}, s{S_M0A}, v{t2}")
    e(f"v_xor_b32 v{t1}, 4, v{t1}")
    e(f"v_add_u32 v{t2}, v{t0}, v{t1}")
    e(f"v_lshlrev_b32 v{t2}, 4, v{t2}")
    e(f"v_add_u32 v{V_ARD + 1}, s{S_M0A}, v{t2}")
    e(f"v_and_b32 v{t0}, 1, v{vG}")
    e(f"v_lshlrev_b32 v{t0}, 2, v{t0}")
    e(f"v_lshrrev_b32 v{t1}, 2, v{vi}")
    e(f"v_add_u32 v{t0}, v{t0}, v{t1}")
    e(f"v_lshrrev_b32 v{t1}, 1, v{vG}")
    e(f"v_mul_u32_u24 v{t1}, {2 * K1_AREA}, v{t1}")
    e(f"v_and_b32 v{t2}, 3, v{vi}")
    e(f"v_lshlrev_b32 v{t2}, 3, v{t2}")
    e(f"v_add_u32 v{t1}, v{t1}, v{t2}")
    e(f"v_mul_u32_u24 v{t3}, {16 * Ph}, v{t0}")
    e(f"v_add3_u32 v{V_HRD}, v{t1}, v{t3}, {0}")
    e(f"v_add_u32 v{V_HRD}, {HB}, v{V_HRD}")
    e(f"v_lshlrev_b32 v{t3}, 7, v{t0}")
    e(f"v_add_u32 v{t1}, v{t1}, v{t3}")
    e(f"v_lshrrev_b32 v{t2}, 1, v{t0}")
    e(f"v_and_b32 v{t2}, 3, v{t2}")
    for t in range(4):
        e(f"v_xor_b32 v{t3}, {t}, v{t2}")
        e(f"v_lshlrev_b32 v{t3}, 5, v{t3}")
        e(f"v_add_u32 v{V_QRD + t}, v{t1}, v{t3}")
    e(f"v_lshlrev_b32 v{V_L16}, 4, v{V_LANE}")

    gw, gx0, gx1 = V_T, V_T + 8, V_T + 16
    gt = V_T + 24
    e(f"v_lshlrev_b32 v{gt}, 5, v{V_LANE}")
    e(f"s_lshl_b32 s{S_GROW}, s2, 3")
    e(f"s_lshl_b32 s{S_T + 1}, s{S_WAVE}, 1")
    e(f"s_add_u32 s{S_GROW}, s{S_GROW}, s{S_T + 1}")
    e(f"s_lshl_b32 s{S_T + 1}, s{S_GROW}, 11")
    srd(a, S_MISC, S_PTR + 14, S_PTR + 15, 2048)
    a.vmem(f"buffer_load_dwordx4 {vr(gw)}, v{gt}, s[{S_MISC}:{S_MISC + 3}], 0 offen", "g")
    a.vmem(f"buffer_load_dwordx4 {vr(gw + 4)}, v{gt}, s[{S_MISC}:{S_MISC + 3}], 0 offen offset:16", "g")
    a.vmem(f"buffer_load_dwordx4 {vr(gx0)}, v{gt}, s[{S_X}:{S_X + 3}], s{S_T + 1} offen", "g")
    a.vmem(f"buffer_load_dwordx4 {vr(gx0 + 4)}, v{gt}, s[{S_X}:{S_X + 3}], s{S_T + 1} offen offset:16", "g")
    a.vmem(f"buffer_load_dwordx4 {vr(gx1)}, v{gt}, s[{S_X}:{S_X + 3}], s{S_T + 1} offen offset:2048", "g")
    a.vmem(f"buffer_load_dwordx4 {vr(gx1 + 4)}, v{gt}, s[{S_X}:{S_X + 3}], s{S_T + 1} offen offset:2064", "g")

    if OPT['pf']:
        srd(a, S_PF1, S_PTR + 12, S_PTR + 13, 3584 * 1024 * 2)
        srd(a, S_PF2, S_PTR + 4, S_PTR + 5, 1024 * 1024 * 2)
        nb = {1: 7, 2: 1, 3: 2, 4: 3}[OPT['pf']]
        PL1, PL2 = -(-56 // nb), -(-16 // nb)
        e(f"v_min_u32 v{V_T + 26}, {PL1 - 1}, v{V_LANE}")
        e(f"v_lshlrev_b32 v{V_T + 26}, 7, v{V_T + 26}")
        e(f"v_min_u32 v{V_T + 27}, {PL2 - 1}, v{V_LANE}")
        e(f"v_lshlrev_b32 v{V_T + 27}, 7, v{V_T + 27}")
        e(f"s_lshl_b32 s{S_T}, s2, 2")
        e(f"s_add_u32 s{S_T}, s{S_T}, s{S_WAVE}")
        e(f"s_mul_i32 s{S_PO1}, s{S_T}, 7168")
        e(f"s_lshl_b32 s{S_PO2}, s{S_T}, 11")

    if OPT.get('pt'):
        e(f"s_lshl_b32 s{S_T}, s{S_RB}, 1")
        e(f"s_lshr_b32 s{S_T + 1}, s{S_WAVE}, 1")
        e(f"s_add_u32 s{S_T}, s{S_T}, s{S_T + 1}")
        e(f"s_mul_i32 s{S_AFB}, s{S_T}, {144 * 8192}")
        e(f"s_and_b32 s{S_T + 1}, s{S_WAVE}, 1")
        e(f"s_lshl_b32 s{S_T + 1}, s{S_T + 1}, 12")
        e(f"s_add_u32 s{S_AFB}, s{S_AFB}, s{S_T + 1}")
        e(f"s_mul_i32 s{S_PT}, s{S_P}, {7 * 8192}")
        e(f"s_add_u32 s{S_PT}, s{S_PT}, s{S_AFB}")
        if typ:
            e(f"s_add_u32 s{S_PT}, s{S_PT}, {2 * 8192}")
        e(f"s_add_u32 s{S_PTE}, s{S_PT}, {(4 if typ else 2) * 8192}")
        e(f"v_and_b32 v{V_T + 25}, 31, v{V_LANE}")
        e(f"v_lshlrev_b32 v{V_T + 25}, 7, v{V_T + 25}")
        if typ:
            e(f"v_lshrrev_b32 v{V_T + 29}, 5, v{V_LANE}")
            e(f"v_lshlrev_b32 v{V_T + 29}, 13, v{V_T + 29}")
            e(f"v_add_u32 v{V_T + 29}, v{V_T + 29}, v{V_T + 25}")
            e(f"s_mul_i32 s{S_T}, s{S_P}, {2 * 8192}")
            e(f"s_add_u32 s{S_T}, s{S_T}, {112 * 8192}")
            e(f"s_add_u32 s{S_T}, s{S_T}, s{S_AFB}")
            a.vmem(f"buffer_load_dword v{V_T + 28}, v{V_T + 29}, s[{S_WS}:{S_WS + 3}], s{S_T} offen", "pf")

    def pt_items():
        return [lambda: a.vmem(f"buffer_load_dword v{V_T + 28}, v{V_T + 25}, s[{S_WS}:{S_WS + 3}], s{S_PT} offen", "pf"),
                lambda: e(f"s_add_u32 s{S_PT}, s{S_PT}, 8192"),
                lambda: e(f"s_min_u32 s{S_PT}, s{S_PT}, s{S_PTE}")]

    def pf_items(cond=None):
        if cond is None:
            return [lambda: a.vmem(f"buffer_load_dword v{V_T + 28}, v{V_T + 26}, s[{S_PF1}:{S_PF1 + 3}], s{S_PO1} offen", "pf"),
                    lambda: a.vmem(f"buffer_load_dword v{V_T + 28}, v{V_T + 27}, s[{S_PF2}:{S_PF2 + 3}], s{S_PO2} offen", "pf"),
                    lambda: e(f"s_add_u32 s{S_PO1}, s{S_PO1}, {128 * PL1}"),
                    lambda: e(f"s_add_u32 s{S_PO2}, s{S_PO2}, {128 * PL2}")]

        def blk():
            e(f"s_lshl_b32 s{S_T}, 1, s{S_CNT}")
            e(f"s_and_b32 s{S_T}, s{S_T}, {cond}")
            e(f"s_cbranch_scc0 L_k1{T}_nopf")
            e(f"buffer_load_dword v{V_T + 28}, v{V_T + 26}, s[{S_PF1}:{S_PF1 + 3}], s{S_PO1} offen")
            e(f"buffer_load_dword v{V_T + 28}, v{V_T + 27}, s[{S_PF2}:{S_PF2 + 3}], s{S_PO2} offen")
            e(f"s_add_u32 s{S_PO1}, s{S_PO1}, {128 * PL1}")
            e(f"s_add_u32 s{S_PO2}, s{S_PO2}, {128 * PL2}")
            a.label(f"L_k1{T}_nopf")
        return [blk]

    def g_items():
        d0, d1 = V_T + 24, V_T + 25
        L = []
        L.append(f"v_dot2_f32_bf16 v{d0}, v{gx0}, v{gw}, 0")
        L.append(f"v_dot2_f32_bf16 v{d1}, v{gx1}, v{gw}, 0")
        for j in range(1, 8):
            L.append(f"v_dot2_f32_bf16 v{d0}, v{gx0 + j}, v{gw + j}, v{d0}")
            L.append(f"v_dot2_f32_bf16 v{d1}, v{gx1 + j}, v{gw + j}, v{d1}")
        L.append("s_nop 3")
        for sh_ in (1, 2, 4, 8):
            L.append(f"s_nop 0\nv_add_f32_dpp v{d0}, v{d0}, v{d0} row_shr:{sh_} row_mask:0xf bank_mask:0xf bound_ctrl:0")
            L.append(f"s_nop 0\nv_add_f32_dpp v{d1}, v{d1}, v{d1} row_shr:{sh_} row_mask:0xf bank_mask:0xf bound_ctrl:0")
        L.append(f"s_nop 0\nv_add_f32_dpp v{d0}, v{d0}, v{d0} row_bcast:15 row_mask:0xa bank_mask:0xf")
        L.append(f"s_nop 0\nv_add_f32_dpp v{d1}, v{d1}, v{d1} row_bcast:15 row_mask:0xa bank_mask:0xf")
        L.append(f"s_nop 0\nv_add_f32_dpp v{d0}, v{d0}, v{d0} row_bcast:31 row_mask:0xc bank_mask:0xf")
        L.append(f"s_nop 0\nv_add_f32_dpp v{d1}, v{d1}, v{d1} row_bcast:31 row_mask:0xc bank_mask:0xf")
        L.append(f"v_mul_f32 v{d0}, 0xbfb8aa3b, v{d0}")
        L.append(f"v_mul_f32 v{d1}, 0xbfb8aa3b, v{d1}")
        L.append(f"v_exp_f32 v{d0}, v{d0}")
        L.append(f"v_exp_f32 v{d1}, v{d1}\ns_nop 0")
        L.append(f"v_add_f32 v{d0}, 1.0, v{d0}")
        L.append(f"v_add_f32 v{d1}, 1.0, v{d1}")
        L.append(f"v_rcp_f32 v{d0}, v{d0}")
        L.append(f"v_rcp_f32 v{d1}, v{d1}")
        L.append(f"v_mov_b32 v{gw}, 0")
        L.append(f"s_lshl_b32 s{S_T + 1}, s{S_GROW}, 2\ns_add_u32 s{S_T + 1}, s{S_T + 1}, {G_OFF}")
        L.append(f"s_lshl_b32 s{S_T + 3}, s2, 8\ns_add_u32 s{S_T + 3}, s{S_T + 3}, {FLG_OFF}")
        L.append(f"s_mov_b32 s{S_T + 8}, 0\ns_mov_b32 s{S_T + 9}, 0x80000000")
        F = [(lambda x=x: e(x)) for x in L]

        def st():
            e(f"s_mov_b64 exec, s[{S_T + 8}:{S_T + 9}]")
            a.vmem(f"buffer_store_dwordx2 v[{d0}:{d1}], v{gw}, s[{S_WS}:{S_WS + 3}], s{S_T + 1} offen", "gst")
            a.vmem(f"buffer_store_dword v{gw}, v{gw}, s[{S_WS}:{S_WS + 3}], s{S_T + 3} offen", "gst")
            e("s_mov_b64 exec, -1")
        F.append(st)
        return F

    a.wait(["bias"])
    for j in range(nh):
        src = acc(nq + j, 3)
        d = acc(nq + j, 0)
        e(f"v_lshlrev_b32 v{d}, 16, v{src}")
        e(f"v_and_b32 v{d + 1}, 0xffff0000, v{src}")
        e(f"v_lshlrev_b32 v{d + 2}, 16, v{src + 1}")
        e(f"v_and_b32 v{d + 3}, 0xffff0000, v{src + 1}")
    for t in range(4):
        for r in range(4):
            e(f"v_mov_b32 v{acc(t, 0) + r}, {EPS_HEX}")

    def rdB(tt):
        slot = tt % 4
        s = tt % 2
        f = []
        for t in range(13):
            for ins in range(2):
                if t < nq:
                    addr = V_QRD + (t & 3)
                    off = slot * K1_BSLOT + ins * K1_AREA + 1024 * (t >> 2)
                else:
                    addr = V_HRD
                    off = slot * K1_BSLOT + ins * K1_AREA + 32 * (t - nq)
                d = bset(s, t) + 2 * ins
                f.append(lambda d=d, addr=addr, off=off: e(f"ds_read_b64_tr_b16 {ar(d, 2)}, v{addr} offset:{off}"))
        return f

    def aset_of(tt):
        if tt % 2 == 0:
            return ASET["X"]
        return ASET["Y"] if tt % 4 == 1 else ASET["Z"]

    def rdA(aa):
        slot = aa % 2
        f = []
        for hh in range(2):
            base = aset_of(2 * aa + hh)
            for mt in range(4):
                f.append(lambda hh=hh, mt=mt, base=base: e(
                    f"ds_read_b128 {ar(base + 4 * mt)}, v{V_ARD + hh} offset:{slot * 8192 + mt * 2048}"))
        return f

    stamp(a, 1)
    a.wait(["B0", "A0"])
    e("s_barrier")
    stamp(a, 2)
    for fn in rdA(0) + rdB(0):
        fn()
    a.wait(["B1"], lgkm=True)
    e("s_barrier")

    NSTEP = 32

    def step(tt):
        if DIAG and OPT.get('ts'):
            e("s_memrealtime s[76:77]")
            e("s_waitcnt lgkmcnt(0)")
            e("s_mov_b32 m0, s78")
            e("s_nop 0")
            e(f"v_writelane_b32 v{V_T + 29}, s76, m0")
            e("s_add_u32 s78, s78, 1")
        s = tt % 2
        ab = aset_of(tt)
        mf = []
        for t in range(13):
            order = [1, 2, 3, 0] if tt == 0 else [0, 1, 2, 3]
            for mt in order:
                D = vr(acc(t, mt))
                if tt == 0:
                    C = "0" if (typ == 0 and 4 <= t < 8) else vr(acc(t, 0))
                else:
                    C = D
                W = ar(bset(s, t))
                X = ar(ab + 4 * mt)
                if typ == 0 and t < 8:
                    mf.append(f"v_mfma_f32_16x16x32_bf16 {D}, {X}, {W}, {C}")
                else:
                    mf.append(f"v_mfma_f32_16x16x32_bf16 {D}, {W}, {X}, {C}")
        rd = []
        if tt + 1 < NSTEP:
            rd = rdB(tt + 1)
            if tt % 2 == 1:
                rd = rdA((tt + 1) // 2) + rd
        dm = []
        if OPT.get('afirst', 1) and tt % 2 == 0 and tt // 2 + 2 < NSTEP // 2:
            dm += dmaA(tt // 2 + 2)
        if tt + 4 < NSTEP:
            dm += dmaB(tt + 4)
        if not OPT.get('afirst', 1) and tt % 2 == 0 and tt // 2 + 2 < NSTEP // 2:
            dm += dmaA(tt // 2 + 2)
        if OPT['pf'] == 1 and tt % 4 == 1 and tt < 28:
            dm += pf_items()
        if OPT['pf'] in (2, 3, 4) and tt == 28:
            dm += pf_items()
        if OPT['pf'] in (3, 4) and tt % 4 == 1 and 4 <= tt < 28:
            dm += pf_items({3: 1 << 4, 4: (1 << 5) | (1 << 3)}[OPT['pf']])
        if OPT.get('pt') and tt % 4 == 3 and tt < 28:
            dm += pt_items()
        fl = []
        i1 = i2 = 0
        n1, n2 = len(rd), len(dm)
        while i1 < n1 or i2 < n2:
            if i2 < n2 and (i1 >= n1 or i2 * n1 <= i1 * n2):
                fl.append(dm[i2]); i2 += 1
            else:
                fl.append(rd[i1]); i1 += 1
        if tt == NSTEP - 1:
            assert "g" not in a.vm
            fl = g_items()
        interleave(a, mf, fl, 0, 48)
        if tt + 1 < NSTEP:
            tags = []
            if tt + 2 < NSTEP:
                tags.append(f"B{tt + 2}")
            if tt % 2 == 0:
                tags.append(f"A{tt // 2 + 1}")
            a.wait(tags, lgkm=True)
            if tt + 2 < NSTEP:
                e("s_barrier")

    iters = []
    for it in range(8):
        n0 = len(a.lines)
        for tt in range(4 * it, 4 * it + 4):
            step(tt)
        iters.append(a.lines[n0:])
        del a.lines[n0:]
    for it in range(2, 7):
        assert iters[it] == iters[1], f"iteration {it} differs"
    stamp(a, 3)
    if DIAG and OPT.get('ts'):
        e("s_mov_b32 s78, 0")
    a.lines += iters[0]
    if not OPT.get('ts'):
        stamp(a, 4)
    e(f"s_mov_b32 s{S_CNT}, 6")
    a.label(f"L_k1{T}_loop")
    a.lines += iters[1]
    e(f"s_sub_u32 s{S_CNT}, s{S_CNT}, 1")
    e(f"s_cmp_lg_u32 s{S_CNT}, 0")
    e(f"s_cbranch_scc1 L_k1{T}_loop")
    a.lines += iters[7]
    assert all(not t.startswith(("A", "B")) for t in a.vm), a.vm

    stamp(a, 5)

    def fin():
        if DIAG and OPT.get('ts'):
            e(f"s_mov_b32 s76, s{S_PTR + 20}")
            e(f"s_and_b32 s77, s{S_PTR + 21}, 0xffff")
            e(f"s_mov_b32 s78, 0x4000000")
            e(f"s_mov_b32 s79, 0x20000")
            e(f"s_lshl_b32 s75, s2, 2")
            e(f"s_add_u32 s75, s75, s{S_WAVE}")
            e(f"s_lshl_b32 s75, s75, 8")
            e(f"s_add_u32 s75, s75, {DIAG_OFF + 0x200000}")
            e(f"v_lshlrev_b32 v{V_T}, 2, v{V_LANE}")
            e(f"buffer_store_dword v{V_T + 29}, v{V_T}, s[76:79], s75 offen")
        stamp(a, 6)
        if DIAG:
            e("s_waitcnt vmcnt(0)")
        stamp(a, 7)
        stamp_dump(a, 0, 8, S_WAVE, S_PTR + 20, S_PTR + 21, V_T)
        e("s_endpgm")
    e(f"s_mov_b32 s{S_L2E}, {L2E_HEX}")
    e(f"s_mov_b32 s{S_L2E + 1}, {L2E_HEX}")
    e(f"s_lshl_b32 s{S_T}, s{S_RB}, 1")
    e(f"s_lshr_b32 s{S_T + 1}, s{S_WAVE}, 1")
    e(f"s_add_u32 s{S_T}, s{S_T}, s{S_T + 1}")
    e(f"s_mul_i32 s{S_AFB}, s{S_T}, {144 * 8192}")
    e(f"s_and_b32 s{S_T + 1}, s{S_WAVE}, 1")
    e(f"s_lshl_b32 s{S_T + 1}, s{S_T + 1}, 12")
    e(f"s_add_u32 s{S_AFB}, s{S_AFB}, s{S_T + 1}")
    e("s_nop 7")
    TT, UU = V_T, V_T + 8

    def phi_group(ra, rb_):
        prs = [ra, ra + 2, rb_, rb_ + 2]
        for j, p in enumerate(prs):
            e(f"v_pk_mul_f32 {vr(TT + 2 * j, 2)}, {vr(p, 2)}, s[{S_L2E}:{S_L2E + 1}]")
        for j in range(8):
            e(f"v_exp_f32_e64 v{TT + j}, v{TT + j} clamp")
        for p in prs:
            e(f"v_max_f32 v{p}, {EPS_HEX}, v{p}")
            e(f"v_max_f32 v{p + 1}, {EPS_HEX}, v{p + 1}")
        for j, p in enumerate(prs):
            e(f"v_pk_add_f32 {vr(p, 2)}, {vr(p, 2)}, {vr(TT + 2 * j, 2)}")
        for j, p in enumerate(prs):
            e(f"v_cvt_pk_bf16_f32 v{ra + j}, v{p}, v{p + 1}")

    def cvt_group(ra, rb_):
        prs = [ra, ra + 2, rb_, rb_ + 2]
        for j, p in enumerate(prs):
            e(f"v_cvt_pk_bf16_f32 v{ra + j}, v{p}, v{p + 1}")

    def mish_group(ra, rb_, split=False):
        prs = [ra, ra + 2, rb_, rb_ + 2]
        for j, p in enumerate(prs):
            e(f"v_pk_mul_f32 {vr(TT + 2 * j, 2)}, {vr(p, 2)}, s[{S_L2E}:{S_L2E + 1}]")
        for j in range(8):
            e(f"v_exp_f32 v{TT + j}, v{TT + j}")
        for j in range(4):
            e(f"v_pk_fma_f32 {vr(UU + 2 * j, 2)}, {vr(TT + 2 * j, 2)}, 0.5, 1.0 op_sel_hi:[1,0,0]")
        for j in range(4):
            e(f"v_pk_fma_f32 {vr(UU + 2 * j, 2)}, {vr(TT + 2 * j, 2)}, {vr(UU + 2 * j, 2)}, 1.0 op_sel_hi:[1,1,0]")
        for j in range(8):
            e(f"v_rcp_f32 v{UU + j}, v{UU + j}")
        for j, p in enumerate(prs):
            e(f"v_pk_fma_f32 {vr(p, 2)}, {vr(UU + 2 * j, 2)}, {vr(p, 2)}, {vr(p, 2)} neg_lo:[1,0,0] neg_hi:[1,0,0]")
        if split:
            e(f"v_cvt_pk_bf16_f32 v{ra}, v{ra}, v{ra + 1}")
            e(f"v_cvt_pk_bf16_f32 v{ra + 1}, v{ra + 2}, v{ra + 3}")
            e(f"v_cvt_pk_bf16_f32 v{rb_}, v{rb_}, v{rb_ + 1}")
            e(f"v_cvt_pk_bf16_f32 v{rb_ + 1}, v{rb_ + 2}, v{rb_ + 3}")
        else:
            for j, p in enumerate(prs):
                e(f"v_cvt_pk_bf16_f32 v{ra + j}, v{p}, v{p + 1}")

    WS = f"s[{S_WS}:{S_WS + 3}]"

    def set_kb(sreg, mul, add):
        e(f"s_mul_i32 s{sreg}, s{S_P}, {mul * 8192}")
        e(f"s_add_u32 s{sreg}, s{sreg}, {add * 8192}")
        e(f"s_add_u32 s{sreg}, s{sreg}, s{S_AFB}")

    def h_full(tA, kbl):
        set_kb(S_T + 2, 7, kbl)
        for mt in range(4):
            mish_group(acc(tA, mt), acc(tA + 1, mt))
            a.vmem(f"buffer_store_dwordx4 {vr(acc(tA, mt))}, v{V_L16}, {WS}, s{S_T + 2} offen offset:{1024 * mt} {OPT['st']}", "st")

    def h_half(tA, kbl, half):
        set_kb(S_T + 2, 7, kbl)
        for mp in range(2):
            mish_group(acc(tA, 2 * mp), acc(tA, 2 * mp + 1), split=True)
            for mt in (2 * mp, 2 * mp + 1):
                a.vmem(f"buffer_store_dwordx2 {vr(acc(tA, mt), 2)}, v{V_L16}, {WS}, s{S_T + 2} offen offset:{1024 * mt + 8 * half} {OPT['st']}", "st")

    if typ == 1:
        for hd in range(2):
            set_kb(S_T + 2, 2, 112 + hd)
            for mt in range(4):
                phi_group(acc(2 * hd, mt), acc(2 * hd + 1, mt))
                a.vmem(f"buffer_store_dwordx4 {vr(acc(2 * hd, mt))}, v{V_L16}, {WS}, s{S_T + 2} offen offset:{1024 * mt} {OPT['st']}", "st")
        h_half(4, 2, 1)
        for j in range(4):
            h_full(5 + 2 * j, 3 + j)
        fin()
        return

    ONES = V_T + 16
    for r in range(4):
        e(f"v_mov_b32 v{ONES + r}, 0x3f803f80")
    for t in range(4):
        for pr in range(2):
            phi_group(acc(t, 2 * pr), acc(t, 2 * pr + 1))
    for t in range(4, 8):
        for pr in range(2):
            cvt_group(acc(t, 2 * pr), acc(t, 2 * pr + 1))
    e("s_nop 1")
    free = [acc(t, m) for t in range(8) for m in (1, 3)]

    def Dt(tau):
        return free[tau]
    for pr in range(2):
        for hd in range(2):
            for dt in range(2):
                for et in range(3):
                    tau = hd * 6 + dt * 3 + et
                    Aop = vr(acc(2 * hd + dt, 2 * pr))
                    Bop = vr(acc(4 + 2 * hd + et, 2 * pr)) if et < 2 else vr(ONES)
                    C = "0" if pr == 0 else vr(Dt(tau))
                    e(f"v_mfma_f32_16x16x32_bf16 {vr(Dt(tau))}, {Aop}, {Bop}, {C}")
    vw, vrd = V_T + 20, V_T + 21
    e(f"v_add_u32 v{vw}, s{S_M0A}, v{V_L16}")
    e(f"s_mul_i32 s{S_T}, s{S_WAVE}, 3072")
    e(f"s_add_u32 s{S_T}, s{S_T}, {K1_ABASE}")
    e(f"v_add_u32 v{vrd}, s{S_T}, v{V_L16}")
    e("s_nop 7")
    for tau in range(12):
        e(f"ds_write_b128 v{vw}, {vr(Dt(tau))} offset:{1024 * tau}")
    h_full(8, 0)
    e("s_waitcnt lgkmcnt(0)")
    e("s_barrier")
    R = [acc(t, m) for t in range(8) for m in (0, 2)]
    for w2 in range(4):
        for j in range(3):
            e(f"ds_read_b128 {vr(R[3 * w2 + j])}, v{vrd} offset:{16384 * w2 + 1024 * j}")
    h_full(10, 1)
    e(f"s_lshl_b32 s{S_T}, s{S_P}, 3")
    e(f"s_add_u32 s{S_T}, s{S_T}, s{S_RB}")
    e(f"s_mul_i32 s{S_T}, s{S_T}, 12288")
    e(f"s_mul_i32 s{S_T + 1}, s{S_WAVE}, 3072")
    e(f"s_add_u32 s{S_T}, s{S_T}, s{S_T + 1}")
    e(f"s_add_u32 s{S_T}, s{S_T}, {KVP_OFF}")
    e("s_waitcnt lgkmcnt(0)")
    for j in range(3):
        for h2 in range(2):
            b0 = R[j] + 2 * h2
            e(f"v_pk_add_f32 {vr(b0, 2)}, {vr(b0, 2)}, {vr(R[3 + j] + 2 * h2, 2)}")
            e(f"v_pk_add_f32 {vr(R[6 + j] + 2 * h2, 2)}, {vr(R[6 + j] + 2 * h2, 2)}, {vr(R[9 + j] + 2 * h2, 2)}")
        for h2 in range(2):
            b0 = R[j] + 2 * h2
            e(f"v_pk_add_f32 {vr(b0, 2)}, {vr(b0, 2)}, {vr(R[6 + j] + 2 * h2, 2)}")
        a.vmem(f"buffer_store_dwordx4 {vr(R[j])}, v{V_L16}, {WS}, s{S_T} offen offset:{1024 * j}", "kvp")
    h_half(12, 2, 0)
    fin()


def gen_k1():
    a = Asm()
    e = a.e
    a.lines.append(".globl k1_kernel\n.p2align 8\n.type k1_kernel,@function\nk1_kernel:")
    if OPT.get('spin'):
        stamp(a, 0)
    e("s_cmp_ge_u32 s2, 256")
    e("s_cbranch_scc1 L_k1_exit")
    e(f"s_load_dwordx16 s[{S_PTR}:{S_PTR + 15}], s[0:1], 0")
    e(f"s_load_dwordx4 s[{S_PTR + 16}:{S_PTR + 19}], s[0:1], 64")
    e(f"s_load_dwordx2 s[{S_PTR + 20}:{S_PTR + 21}], s[0:1], 80")
    e(f"v_and_b32 v{V_LANE}, 63, v0")
    e(f"v_lshrrev_b32 v{V_T}, 6, v0")
    e(f"s_and_b32 s{S_T}, s2, 7")
    e(f"v_readfirstlane_b32 s{S_WAVE}, v{V_T}")
    e(f"s_lshr_b32 s{S_T + 1}, s2, 3")
    if OPT.get('map1', 0) == 0:
        e(f"s_and_b32 s{S_RB}, s{S_T}, 1")
        e(f"s_lshl_b32 s{S_RB}, s{S_RB}, 2")
        e(f"s_and_b32 s{S_T + 2}, s{S_T + 1}, 3")
        e(f"s_add_u32 s{S_RB}, s{S_RB}, s{S_T + 2}")
        e(f"s_lshr_b32 s{S_T}, s{S_T}, 1")
        e(f"s_lshl_b32 s{S_T}, s{S_T}, 3")
        e(f"s_lshr_b32 s{S_T + 1}, s{S_T + 1}, 2")
        e(f"s_add_u32 s{S_T}, s{S_T}, s{S_T + 1}")
    elif OPT['map1'] == 1:
        e(f"s_and_b32 s{S_RB}, s{S_T + 1}, 7")
        e(f"s_lshl_b32 s{S_T}, s{S_T}, 2")
        e(f"s_lshr_b32 s{S_T + 1}, s{S_T + 1}, 3")
        e(f"s_add_u32 s{S_T}, s{S_T}, s{S_T + 1}")
    else:
        e(f"s_and_b32 s{S_RB}, s{S_T}, 3")
        e(f"s_lshl_b32 s{S_RB}, s{S_RB}, 1")
        e(f"s_and_b32 s{S_T + 2}, s{S_T + 1}, 1")
        e(f"s_add_u32 s{S_RB}, s{S_RB}, s{S_T + 2}")
        e(f"s_lshr_b32 s{S_T}, s{S_T}, 2")
        e(f"s_lshl_b32 s{S_T}, s{S_T}, 4")
        e(f"s_lshr_b32 s{S_T + 1}, s{S_T + 1}, 1")
        e(f"s_add_u32 s{S_T}, s{S_T}, s{S_T + 1}")
    e(f"s_lshr_b32 s{S_P}, s{S_T}, 1")
    e(f"s_and_b32 s{S_T + 3}, s{S_T}, 1")
    e(f"s_cmp_lg_u32 s{S_T + 3}, 0")
    e("s_cbranch_scc1 L_k1_typeB")
    k1_body(a, 0)
    a.label("L_k1_typeB")
    a.vm = []
    k1_body(a, 1)
    a.label("L_k1_exit")
    e("s_endpgm")
    return a.lines


def K2_LDS():
    return OPT['S'] * 32768 + 24576


def fold_loops(a, iters, period, scnt, name):
    n = len(iters)
    i = 0
    lab = 0
    while i < n:
        reps = 1
        while i + (reps + 1) * period <= n and all(
                iters[i + k] == iters[i + reps * period + k] for k in range(period)):
            reps += 1
        if reps >= 2:
            a.e(f"s_mov_b32 s{scnt}, {reps}")
            a.label(f"L_{name}_{lab}")
            for k in range(period):
                a.lines += iters[i + k]
            a.e(f"s_sub_u32 s{scnt}, s{scnt}, 1")
            a.e(f"s_cmp_lg_u32 s{scnt}, 0")
            a.e(f"s_cbranch_scc1 L_{name}_{lab}")
            lab += 1
            i += reps * period
        else:
            a.lines += iters[i]
            i += 1


def schedule(a, mf, streams):
    n = len(mf)
    placed = []
    for si, (items, start, end) in enumerate(streams):
        m = len(items)
        prev = 0
        for j, it in enumerate(items):
            fn, early = it if isinstance(it, tuple) else (it, 0)
            pos = start + (j * (end - start)) / max(m, 1)
            pos = max(pos, early, prev)
            prev = pos
            placed.append((pos, si, j, fn))
    placed.sort(key=lambda x: (x[0], x[1], x[2]))
    k = 0
    if n == 0:
        for p in placed:
            p[3]()
        return
    for i in range(n):
        a.e(mf[i])
        while k < len(placed) and placed[k][0] < i + 1:
            placed[k][3]()
            k += 1
    while k < len(placed):
        placed[k][3]()
        k += 1


def gen_k2():
    a = Asm()
    e = a.e
    S = OPT['S']
    n0 = OPT['n0']
    SLOT = 32768
    PBF = OPT['pbf']
    SW2, SWO, SWS, SOUT, SDBG = 4, 8, 12, 16, 20
    SWAVE, SMT, SNT, STILE, SROLE = 24, 25, 26, 27, 28
    SOA, SOB, SOKV, SOP, SM0A, SM0B, SCNT, SRED, SW8 = 29, 30, 31, 32, 33, 34, 35, 58, 59
    SP = 36
    ST = 60
    NBASE = (S + 1) // 2
    VL = 1
    VL16 = 2
    VT = 4
    VG = 14
    VOMG = 18
    VAR = 22
    VBR = 25
    AC = 64
    VBD = 22
    VAD = 26
    VAW = 27
    VFL = 30
    VEPS = 32
    VR = 36
    VOF = 40
    VD = 64
    VP = 64

    def acc2(mt, nt):
        return AC + 16 * mt + 4 * nt

    def FA(j, b, mt):
        return 64 * (j % 2) + 32 * b + 4 * mt

    def FB(j, b, nt):
        return 64 * (j % 2) + 32 * b + 16 + 4 * nt

    def PQ(j, i):
        return 28 * (j % 4) + 4 * i

    def KV(j, i):
        return 28 * (j % 4) + 16 + 4 * i

    a.lines.append(".globl k2_kernel\n.p2align 8\n.type k2_kernel,@function\nk2_kernel:")
    if OPT.get('spin'):
        stamp(a, 0)
    e("s_cmp_ge_u32 s2, 256")
    e("s_cbranch_scc1 L_k2_exit")
    e(f"s_load_dwordx16 s[{SP}:{SP + 15}], s[0:1], 0")
    e(f"s_load_dwordx4 s[{SP + 16}:{SP + 19}], s[0:1], 64")
    e(f"s_load_dwordx2 s[{SP + 20}:{SP + 21}], s[0:1], 80")
    e(f"v_and_b32 v{VL}, 63, v0")
    e(f"v_lshrrev_b32 v{VT}, 6, v0")
    e(f"s_and_b32 s{ST}, s2, 7")
    e(f"v_readfirstlane_b32 s{SW8}, v{VT}")
    e(f"s_lshr_b32 s{ST + 1}, s2, 3")
    if OPT['map'] == 0:
        e(f"s_and_b32 s{SROLE}, s{ST}, 1")
        e(f"s_lshr_b32 s{ST}, s{ST}, 1")
        e(f"s_and_b32 s{SMT}, s{ST}, 1")
        e(f"s_lshl_b32 s{SMT}, s{SMT}, 3")
        e(f"s_and_b32 s{ST + 2}, s{ST + 1}, 7")
        e(f"s_add_u32 s{SMT}, s{SMT}, s{ST + 2}")
        e(f"s_lshr_b32 s{SNT}, s{ST}, 1")
        e(f"s_lshl_b32 s{SNT}, s{SNT}, 2")
        e(f"s_lshr_b32 s{ST + 1}, s{ST + 1}, 3")
        e(f"s_add_u32 s{SNT}, s{SNT}, s{ST + 1}")
    elif OPT['map'] == 2:
        e(f"s_and_b32 s{SROLE}, s{ST}, 1")
        e(f"s_lshr_b32 s{ST}, s{ST}, 1")
        e(f"s_lshl_b32 s{SMT}, s{ST}, 2")
        e(f"s_and_b32 s{ST + 2}, s{ST + 1}, 3")
        e(f"s_add_u32 s{SMT}, s{SMT}, s{ST + 2}")
        e(f"s_lshr_b32 s{SNT}, s{ST + 1}, 2")
    elif OPT['map'] == 3:
        e(f"s_and_b32 s{SROLE}, s{ST}, 1")
        e(f"s_lshr_b32 s{ST}, s{ST}, 1")
        e(f"s_and_b32 s{SMT}, s{ST + 1}, 15")
        e(f"s_lshl_b32 s{SNT}, s{ST}, 1")
        e(f"s_lshr_b32 s{ST + 1}, s{ST + 1}, 4")
        e(f"s_add_u32 s{SNT}, s{SNT}, s{ST + 1}")
    else:
        e(f"s_and_b32 s{SROLE}, s{ST + 1}, 1")
        e(f"s_lshr_b32 s{ST + 1}, s{ST + 1}, 1")
        e(f"s_and_b32 s{SMT}, s{ST}, 3")
        e(f"s_lshl_b32 s{SMT}, s{SMT}, 2")
        e(f"s_and_b32 s{ST + 2}, s{ST + 1}, 3")
        e(f"s_add_u32 s{SMT}, s{SMT}, s{ST + 2}")
        e(f"s_lshr_b32 s{SNT}, s{ST}, 2")
        e(f"s_lshl_b32 s{SNT}, s{SNT}, 2")
        e(f"s_lshr_b32 s{ST + 1}, s{ST + 1}, 2")
        e(f"s_add_u32 s{SNT}, s{SNT}, s{ST + 1}")
    e(f"s_and_b32 s{SWAVE}, s{SW8}, 3")
    e(f"s_lshl_b32 s{STILE}, s{SMT}, 3")
    e(f"s_add_u32 s{STILE}, s{STILE}, s{SNT}")
    vi, vG, t0, t1, t2, t3 = VT, VT + 1, VT + 2, VT + 3, VT + 4, VT + 5
    e(f"v_and_b32 v{vi}, 15, v{VL}")
    e(f"v_lshrrev_b32 v{vG}, 4, v{VL}")
    e(f"v_lshlrev_b32 v{VL16}, 4, v{VL}")
    WS = f"s[{SWS}:{SWS + 3}]"
    DBG = f"s[{SDBG}:{SDBG + 3}]"
    PSZ = 8192 if PBF else 16384
    e(f"s_cmp_lt_u32 s{SW8}, 4")
    e(f"s_cbranch_scc1 L_k2_cons")

    def load_g():
        e(f"v_lshlrev_b32 v{t0}, 2, v{vi}")
        e(f"s_lshl_b32 s{ST}, s{SMT}, 9")
        e(f"s_and_b32 s{ST + 1}, s{SWAVE}, 1")
        e(f"s_lshl_b32 s{ST + 1}, s{ST + 1}, 8")
        e(f"s_add_u32 s{ST}, s{ST}, s{ST + 1}")
        e(f"s_add_u32 s{ST}, s{ST}, {G_OFF}")
        for i in range(4):
            a.vmem(f"buffer_load_dword v{VG + i}, v{t0}, {WS}, s{ST} offen offset:{64 * i}", "g")

    def run_seq(fl):
        for fn in fl:
            n_ = len(a.lines)
            fn()
            if " m0," in a.lines[-1] and len(a.lines) == n_ + 1:
                e("s_nop 0")

    import math
    PERIOD = S * 4 // math.gcd(S, 4)

    if OPT['pprio']:
        e(f"s_setprio {OPT['pprio']}")
    e(f"s_lshl_b32 s{SM0A}, s{SWAVE}, 12")
    e(f"s_add_u32 s{SM0B}, s{SM0A}, 16384")
    e(f"v_add_u32 v{VAD}, s{SM0A}, v{VL16}")
    e(f"s_lshl_b32 s{ST + 2}, s{SNT}, 8")
    e(f"s_lshl_b32 s{ST + 3}, s{SWAVE}, 15")
    e(f"s_add_u32 s{ST + 2}, s{ST + 2}, s{ST + 3}")
    e(f"v_lshlrev_b32 v{t0}, 11, v{vG}")
    e(f"v_add_u32 v{t0}, s{ST + 2}, v{t0}")
    e(f"v_lshlrev_b32 v{t1}, 1, v{vG}")
    e(f"v_xor_b32 v{t1}, v{t1}, v{vi}")
    for j in range(4):
        if j & 1:
            e(f"v_xor_b32 v{t2}, 8, v{t1}")
            e(f"v_lshlrev_b32 v{t2}, 4, v{t2}")
        else:
            e(f"v_lshlrev_b32 v{t2}, 4, v{t1}")
        e(f"v_add_u32 v{t2}, v{t2}, v{t0}")
        e(f"v_add_u32 v{VBD + j}, {j * (8192 - 1024)}, v{t2}")
    e(f"s_mul_i32 s{SOA}, s{SMT}, {144 * 8192}")
    e(f"s_add_u32 s{SOP}, s{SOA}, {112 * 8192}")
    e(f"s_mov_b32 s{SOB}, 0")
    e("s_waitcnt lgkmcnt(0)")
    srd(a, SW2, SP + 12, SP + 13, 3584 * 1024 * 2)
    srd(a, SWS, SP + 20, SP + 21, WS_USED)
    srd(a, SWO, SP + 4, SP + 5, 1024 * 1024 * 2)
    srd(a, SDBG, SP + 18, SP + 19, 256)
    e(f"s_cmp_eq_u32 s{SROLE}, 0")
    e(f"s_cbranch_scc1 L_k2_prod0")

    def producer(role):
        R = f"p{role}"
        nact = n0 if role == 0 else 56 - n0
        N = nact if role == 0 else nact + 16
        SCR = S * SLOT
        if role == 1:
            e(f"s_add_u32 s{SOA}, s{SOA}, {n0 * 16384}")
            e(f"s_mov_b32 s{SOB}, {n0 * 131072}")

        def dmaA(j):
            f = []
            if j == nact:
                def sw():
                    e(f"s_lshl_b32 s{SOA}, s{SMT}, 18")
                    e(f"s_add_u32 s{SOA}, s{SOA}, {OF_OFF}")
                f.append(sw)
            fl = OPT['k2a'] if j < nact else "sc1"
            f.append(lambda: e(f"s_add_u32 m0, s{SM0A}, {(j % S) * SLOT}"))
            for i in range(4):
                f.append(lambda i=i: a.vmem(
                    f"buffer_load_dwordx4 v{VAD}, {WS}, s{SOA} offen offset:{1024 * i} {fl} lds", f"D{j}"))
            f.append(lambda: e(f"s_add_u32 s{SOA}, s{SOA}, 16384"))
            return f

        def dmaB(j):
            sr = SW2 if j < nact else SWO
            f = []
            if j == nact:
                f.append(lambda: e(f"s_mov_b32 s{SOB}, 0"))
            f.append(lambda: e(f"s_add_u32 m0, s{SM0B}, {(j % S) * SLOT}"))
            for i in range(4):
                f.append(lambda i=i: a.vmem(
                    f"buffer_load_dwordx4 v{VBD + i}, s[{sr}:{sr + 3}], s{SOB} offen offset:{1024 * i} {OPT['k2b']} lds", f"D{j}"))
            f.append(lambda: e(f"s_add_u32 s{SOB}, s{SOB}, 131072"))
            return f

        def dma_stage(j):
            return dmaA(j) + dmaB(j)

        for j in range(S - 1):
            run_seq(dma_stage(j))
        a.wait(["D0"])
        e("s_barrier")

        JP = N - OPT['pj']
        assert JP - (1 if PBF else 2) + S >= N and OPT['pj'] >= 1
        JO = nact - (S - 1)

        def interval(j):
            lg = False
            if role == 1 and j == JO - 3:
                e(f"s_lshl_b32 s{ST}, s{SMT}, 8")
                e(f"s_add_u32 s{ST}, s{ST}, {FLG_OFF}")
                e(f"v_mov_b32 v{VFL + 1}, s{ST}")
                a.vmem(f"buffer_load_dword v{VFL}, v{VFL + 1}, {WS}, 0 offen sc1", "F")
            if role == 1 and j == JO:
                a.wait(["F"])
                a.label("L_k2_kvwait")
                e(f"v_readfirstlane_b32 s{ST}, v{VFL}")
                e("s_nop 3")
                e(f"s_cmp_ge_u32 s{ST}, 64")
                e("s_cbranch_scc1 L_k2_kvok")
                e("s_sleep 8")
                e(f"buffer_load_dword v{VFL}, v{VFL + 1}, {WS}, 0 offen sc1")
                e("s_waitcnt vmcnt(0)")
                e("s_branch L_k2_kvwait")
                a.label("L_k2_kvok")
            if j + S - 1 < N:
                run_seq(dma_stage(j + S - 1))
            if role == 1 and j == JP:
                e(f"s_lshl_b32 s{ST}, s{STILE}, 8")
                e(f"s_add_u32 s{ST}, s{ST}, {FLG_OFF + 4096}")
                e(f"v_mov_b32 v{VFL + 1}, s{ST}")
                a.label("L_k2_pwait")
                e(f"buffer_load_dword v{VFL}, v{VFL + 1}, {WS}, 0 offen sc1")
                e("s_waitcnt vmcnt(0)")
                a.vm = []
                e(f"v_readfirstlane_b32 s{ST}, v{VFL}")
                e("s_nop 3")
                e(f"s_cmp_lg_u32 s{ST}, 0")
                e("s_cbranch_scc1 L_k2_pok")
                e("s_sleep 4")
                e("s_branch L_k2_pwait")
                a.label("L_k2_pok")
                e(f"s_lshl_b32 s{ST}, s{STILE}, 16")
                e(f"s_mul_i32 s{ST + 1}, s{SWAVE}, {PSZ}")
                e(f"s_add_u32 s{ST}, s{ST}, s{ST + 1}")
                e(f"s_add_u32 s{ST}, s{ST}, {PART_OFF}")
                ps = [(JP - 2) % S, (JP - 1) % S]
                if PBF:
                    e(f"s_add_u32 s{ST + 1}, s{ST + 1}, {ps[1] * SLOT}")
                else:
                    e(f"s_and_b32 s{ST + 1}, s{SWAVE}, 1")
                    e(f"s_lshl_b32 s{ST + 1}, s{ST + 1}, 14")
                    e(f"s_cmp_lt_u32 s{SWAVE}, 2")
                    e(f"s_mov_b32 s{ST + 3}, {ps[1] * SLOT}")
                    e(f"s_cselect_b32 s{ST + 2}, {ps[0] * SLOT}, s{ST + 3}")
                    e(f"s_add_u32 s{ST + 1}, s{ST + 1}, s{ST + 2}")
                for q in range(PSZ // 1024):
                    if q & 3 == 0:
                        e(f"s_add_u32 m0, s{ST + 1}, {1024 * q}")
                        e("s_nop 0")
                    a.vmem(f"buffer_load_dwordx4 v{VL16}, {WS}, s{ST} offen offset:{1024 * (q & 3)} sc1 lds", "PT")
                    if q & 3 == 3:
                        e(f"s_add_u32 s{ST}, s{ST}, 4096")
            if j + 1 < N:
                a.wait([f"D{j + 1}"], lgkm=lg)
                e("s_barrier")

        iters = []
        for j in range(N):
            n_ = len(a.lines)
            interval(j)
            iters.append(a.lines[n_:])
            del a.lines[n_:]
        fold_loops(a, iters, PERIOD, SCNT, f"k2{R}")
        if role == 1:
            e("s_waitcnt vmcnt(0)")
            e("s_barrier")
        e("s_endpgm")

    producer(1)
    a.label("L_k2_prod0")
    a.vm = []
    producer(0)

    a.label("L_k2_cons")
    a.vm = []
    if OPT['cprio']:
        e(f"s_setprio {OPT['cprio']}")
    SCR = S * SLOT
    CG = 40
    CR = 44
    CKV = 48
    CEPS = 60
    CW = 38
    SHD, SM2 = SOKV, SRED
    e(f"s_and_b32 s{SHD}, s2, 31")
    e(f"s_lshr_b32 s{SM2}, s2, 5")
    e(f"s_lshl_b32 s{SM2}, s{SM2}, 1")
    e(f"s_lshr_b32 s{ST}, s{SWAVE}, 1")
    e(f"s_add_u32 s{SM2}, s{SM2}, s{ST}")
    e(f"s_lshr_b32 s{ST}, s{SHD}, 1")
    e(f"s_lshl_b32 s{ST}, s{ST}, 3")
    e(f"s_lshl_b32 s{ST + 1}, s{SWAVE}, 1")
    e(f"s_add_u32 s{ST}, s{ST}, s{ST + 1}")
    e(f"s_mul_i32 s{ST}, s{ST}, 12")
    e(f"s_and_b32 s{ST + 1}, s{SHD}, 1")
    e(f"s_mul_i32 s{ST + 1}, s{ST + 1}, 6")
    e(f"s_add_u32 s{ST}, s{ST}, s{ST + 1}")
    e(f"s_lshl_b32 s{ST}, s{ST}, 10")
    e(f"s_add_u32 s{ST}, s{ST}, {KVP_OFF}")
    e("s_waitcnt lgkmcnt(0)")
    srd(a, SWS, SP + 20, SP + 21, WS_USED)
    for r2 in range(2):
        for t6 in range(6):
            if t6 == 3:
                e(f"s_add_u32 s{ST}, s{ST}, 3072")
            a.vmem(f"buffer_load_dwordx4 {vr(VP + 24 * r2 + 4 * t6)}, v{VL16}, {WS}, s{ST} offen offset:{1024 * (t6 % 3)}", "kvp")
        if r2 == 0:
            e(f"s_add_u32 s{ST}, s{ST}, {12288 - 3072}")
    e(f"s_mul_i32 s{ST}, s{SM2}, 144")
    e(f"s_add_u32 s{ST}, s{ST}, s{SHD}")
    e(f"s_add_u32 s{ST}, s{ST}, 112")
    e(f"s_lshl_b32 s{ST}, s{ST}, 13")
    e(f"s_and_b32 s{ST + 1}, s{SWAVE}, 1")
    e(f"s_lshl_b32 s{ST + 1}, s{ST + 1}, 12")
    e(f"s_add_u32 s{ST}, s{ST}, s{ST + 1}")
    for i in range(4):
        a.vmem(f"buffer_load_dwordx4 {ar(64 + 4 * i)}, v{VL16}, {WS}, s{ST} offen offset:{1024 * i}", "pq")
    e(f"s_lshl_b32 s{SOP}, s{SM2}, 5")
    e(f"s_add_u32 s{SOP}, s{SOP}, s{SHD}")
    e(f"s_lshl_b32 s{SOP}, s{SOP}, 13")
    e(f"s_add_u32 s{SOP}, s{SOP}, s{ST + 1}")
    e(f"s_add_u32 s{SOP}, s{SOP}, {OF_OFF}")
    e(f"v_lshlrev_b32 v{t0}, 2, v{vi}")
    e(f"s_lshl_b32 s{ST}, s{SM2}, 9")
    e(f"s_lshr_b32 s{ST + 1}, s{ST + 1}, 4")
    e(f"s_add_u32 s{ST}, s{ST}, s{ST + 1}")
    e(f"s_add_u32 s{ST}, s{ST}, {G_OFF}")
    for i in range(4):
        a.vmem(f"buffer_load_dword v{CG + i}, v{t0}, {WS}, s{ST} offen offset:{64 * i}", "pq")
    load_g()
    srd(a, SOUT, SP + 16, SP + 17, 2048 * 1024 * 2)
    for r in range(4):
        e(f"v_mov_b32 v{CEPS + r}, {EPS_HEX}")
    e(f"s_mul_i32 s{ST}, s{SWAVE}, 6144")
    e(f"s_add_u32 s{ST}, s{ST}, {SCR}")
    e(f"v_add_u32 v{CW}, s{ST}, v{VL16}")
    e(f"v_add_u32 v{CW + 1}, {SCR}, v{VL16}")
    e(f"s_and_b32 s{ST}, s{SWAVE}, 1")
    e(f"s_lshl_b32 s{ST}, s{ST}, 12")
    e(f"v_add_u32 v{VAR}, s{ST}, v{VL16}")
    for k in range(1, NBASE):
        e(f"v_add_u32 v{VAR + k}, {65536 * k}, v{VAR}")
    e(f"v_lshlrev_b32 v{t0}, 2, v{vG}")
    e(f"v_lshrrev_b32 v{t1}, 2, v{vi}")
    e(f"v_add_u32 v{t0}, v{t0}, v{t1}")
    e(f"v_and_b32 v{t1}, 7, v{t0}")
    e(f"s_lshr_b32 s{ST}, s{SWAVE}, 1")
    e(f"s_lshl_b32 s{ST}, s{ST}, 2")
    e(f"v_xor_b32 v{t1}, s{ST}, v{t1}")
    e(f"v_lshlrev_b32 v{t0}, 8, v{t0}")
    e(f"v_and_b32 v{t2}, 3, v{vi}")
    e(f"v_lshlrev_b32 v{t2}, 3, v{t2}")
    e(f"v_add_u32 v{t0}, v{t0}, v{t2}")
    e(f"v_add_u32 v{t0}, 16384, v{t0}")
    for nt in range(4):
        e(f"v_xor_b32 v{t3}, {nt}, v{t1}")
        e(f"v_lshlrev_b32 v{t3}, 5, v{t3}")
        e(f"v_add_u32 v{VBR + nt}, v{t0}, v{t3}")
        for k in range(1, NBASE):
            e(f"v_add_u32 v{VBR + 4 * k + nt}, {65536 * k}, v{VBR + nt}")
    e(f"s_cmp_eq_u32 s{SROLE}, 0")
    e(f"s_cbranch_scc1 L_k2_cons0")

    def consumer(role):
        R = f"c{role}"
        nact = n0 if role == 0 else 56 - n0
        N = nact if role == 0 else nact + 16
        if not OPT.get('spin'):
            stamp(a, 0)
        a.wait(["kvp"])
        for q in range(12):
            e(f"v_pk_add_f32 {vr(VP + 2 * q, 2)}, {vr(VP + 2 * q, 2)}, {vr(VP + 24 + 2 * q, 2)}")
        for t6 in range(6):
            e(f"ds_write_b128 v{CW}, {vr(VP + 4 * t6)} offset:{1024 * t6}")
        e("s_waitcnt lgkmcnt(0)")
        stamp(a, 1)
        e("s_barrier")
        stamp(a, 2)

        def produce():
            for dt in range(2):
                for w2 in range(4):
                    for et in range(3):
                        e(f"ds_read_b128 {vr(VP + 12 * w2 + 4 * et)}, v{CW + 1} offset:{6144 * w2 + 1024 * (3 * dt + et)}")
                if dt == 0:
                    for fn in reads(0):
                        fn()
                e("s_waitcnt lgkmcnt(0)")
                for q in range(6):
                    e(f"v_pk_add_f32 {vr(VP + 2 * q, 2)}, {vr(VP + 2 * q, 2)}, {vr(VP + 12 + 2 * q, 2)}")
                    e(f"v_pk_add_f32 {vr(VP + 24 + 2 * q, 2)}, {vr(VP + 24 + 2 * q, 2)}, {vr(VP + 36 + 2 * q, 2)}")
                for q in range(6):
                    e(f"v_pk_add_f32 {vr(VP + 2 * q, 2)}, {vr(VP + 2 * q, 2)}, {vr(VP + 24 + 2 * q, 2)}")
                for et in range(3):
                    for h2 in range(2):
                        e(f"v_cvt_pk_bf16_f32 v{CKV + 4 * et + 2 * dt + h2}, v{VP + 4 * et + 2 * h2}, v{VP + 4 * et + 2 * h2 + 1}")
            a.wait(["pq", "g"])
            e("s_nop 1")
            for i in range(4):
                d = VD + 12 * i
                pq = ar(64 + 4 * i)
                e(f"v_mfma_f32_16x16x32_bf16 {vr(d + 8)}, {vr(CKV + 8)}, {pq}, {vr(CEPS)}")
                e(f"v_mfma_f32_16x16x32_bf16 {vr(d)}, {vr(CKV)}, {pq}, 0")
                e(f"v_mfma_f32_16x16x32_bf16 {vr(d + 4)}, {vr(CKV + 4)}, {pq}, 0")
            for i in range(4):
                e(f"v_sub_f32 v{VOMG + i}, 1.0, v{VG + i}")
            e("s_nop 3")
            for i in range(4):
                e(f"v_rcp_f32 v{CR + i}, v{VD + 12 * i + 8}")
            e("s_nop 0")
            for i in range(4):
                e(f"v_mul_f32 v{CR + i}, v{CR + i}, v{CG + i}")
            for i in range(4):
                d = VD + 12 * i
                sel = "op_sel:[0,1] op_sel_hi:[1,1]" if i & 1 else "op_sel_hi:[1,0]"
                for q in range(4):
                    e(f"v_pk_mul_f32 {vr(d + 2 * q, 2)}, {vr(d + 2 * q, 2)}, {vr(CR + (i & 2), 2)} {sel}")
                o = 112 + 4 * i
                for q in range(4):
                    e(f"v_cvt_pk_bf16_f32 v{o + q}, v{d + 2 * q}, v{d + 2 * q + 1}")
                a.vmem(f"buffer_store_dwordx4 {vr(o)}, v{VL16}, {WS}, s{SOP} offen offset:{1024 * i} sc1", "ost")

        def reads(j):
            sl = j % S
            k, so = sl // 2, (sl % 2) * SLOT
            f = []
            for q in range(4):
                for b in range(2):
                    f.append(lambda b=b, q=q: e(
                        f"ds_read_b128 {ar(FA(j, b, q))}, v{VAR + k} offset:{so + 8192 * b + 1024 * q}"))
                    for ins in range(2):
                        f.append(lambda b=b, q=q, ins=ins: e(
                            f"ds_read_b64_tr_b16 {ar(FB(j, b, q) + 2 * ins, 2)}, v{VBR + 4 * k + q} offset:{so + 8192 * b + 4096 * ins}"))
            return f

        def interval(j):
            main = []
            if j >= 1:
                for mt in range(4):
                    for nt in range(4):
                        D = vr(acc2(mt, nt))
                        for b in range(2):
                            C = "0" if (j == 1 and b == 0) else D
                            main.append(f"v_mfma_f32_16x16x32_bf16 {D}, {ar(FB(j - 1, b, nt))}, {ar(FA(j - 1, b, mt))}, {C}")
            rd = reads(j) if j < N else []
            if j == 0:
                produce()
                rd = []
            if j == 5:
                a.wait(["ost"])
                e(f"s_lshl_b32 s{ST}, s{SM2}, 8")
                e(f"s_add_u32 s{ST}, s{ST}, {FLG_OFF}")
                e(f"v_mov_b32 v{CW}, 1")
                e(f"v_mov_b32 v{CW + 1}, s{ST}")
                e("s_mov_b64 exec, 1")
                e(f"buffer_atomic_add v{CW}, v{CW + 1}, {WS}, 0 offen")
                e("s_mov_b64 exec, -1")
            if role == 1 and j == nact + 1:
                e("s_nop 7")
                for mt in range(4):
                    for q in range(16):
                        b0 = acc2(mt, 0) + q
                        e(f"v_mul_f32 v{b0}, v{VOMG + mt}, v{b0}")
                e("s_nop 1")
            schedule(a, main, [(rd, 0, OPT['rdend'])])
            if j < N:
                e("s_waitcnt lgkmcnt(0)")
                if j + 1 < N:
                    e("s_barrier")

        iters = []
        for j in range(N + 1):
            n_ = len(a.lines)
            if j == 4:
                stamp(a, 3)
            if role == 1 and j == nact:
                stamp(a, 4)
            interval(j)
            iters.append(a.lines[n_:])
            del a.lines[n_:]
        fold_loops(a, iters, PERIOD, SCNT, f"k2{R}")
        if role == 0:
            stamp(a, 4)
        stamp(a, 5)
        if role == 0:
            e(f"s_lshl_b32 s{ST}, s{STILE}, 16")
            e(f"s_mul_i32 s{ST + 1}, s{SWAVE}, {PSZ}")
            e(f"s_add_u32 s{ST}, s{ST}, s{ST + 1}")
            e(f"s_add_u32 s{ST}, s{ST}, {PART_OFF}")
            e("s_nop 7")
            if PBF:
                for q in range(8):
                    b0 = AC + 8 * q
                    for r in range(4):
                        e(f"v_cvt_pk_bf16_f32 v{b0 + r}, v{b0 + 2 * r}, v{b0 + 2 * r + 1}")
                    e(f"buffer_store_dwordx4 {vr(b0)}, v{VL16}, {WS}, s{ST} offen offset:{1024 * (q & 3)} sc1")
                    if q & 3 == 3:
                        e(f"s_add_u32 s{ST}, s{ST}, 4096")
            else:
                for q in range(16):
                    e(f"buffer_store_dwordx4 {vr(AC + 4 * q)}, v{VL16}, {WS}, s{ST} offen offset:{1024 * (q & 3)} sc1")
                    if q & 3 == 3:
                        e(f"s_add_u32 s{ST}, s{ST}, 4096")
            e(f"s_lshl_b32 s{ST}, s{STILE}, 8")
            e(f"s_add_u32 s{ST}, s{ST}, {FLG_OFF + 4096}")
            e(f"v_mov_b32 v{VT + 1}, s{ST}")
            e(f"v_mov_b32 v{VT}, 1")
            e("s_waitcnt vmcnt(0)")
            e("s_barrier")
            stamp(a, 6)
            e(f"s_cmp_lg_u32 s{SWAVE}, 0")
            e(f"s_cbranch_scc1 L_k2_p0end")
            e("s_mov_b64 exec, 1")
            e(f"buffer_store_dword v{VT}, v{VT + 1}, {WS}, 0 offen sc1")
            e("s_mov_b64 exec, -1")
            a.label("L_k2_p0end")
        else:
            JP = N - OPT['pj']
            ps = [(JP - 2) % S, (JP - 1) % S]
            vo, vpr = VT + 6, VT + 7
            e(f"v_and_b32 v{t2}, 15, v{VL}")
            e(f"v_lshlrev_b32 v{t2}, 11, v{t2}")
            e(f"v_bfe_u32 v{t3}, v{VL}, 4, 1")
            e(f"v_lshlrev_b32 v{t3}, 5, v{t3}")
            e(f"v_add_u32 v{t2}, v{t2}, v{t3}")
            e(f"v_lshrrev_b32 v{t3}, 5, v{VL}")
            e(f"v_lshlrev_b32 v{t3}, 4, v{t3}")
            e(f"v_add_u32 v{vo}, v{t2}, v{t3}")
            if PBF:
                e(f"s_mul_i32 s{ST + 1}, s{SWAVE}, {PSZ}")
                e(f"s_add_u32 s{ST + 1}, s{ST + 1}, {ps[1] * SLOT}")
            else:
                e(f"s_and_b32 s{ST + 1}, s{SWAVE}, 1")
                e(f"s_lshl_b32 s{ST + 1}, s{ST + 1}, 14")
                e(f"s_cmp_lt_u32 s{SWAVE}, 2")
                e(f"s_mov_b32 s{ST + 3}, {ps[1] * SLOT}")
                e(f"s_cselect_b32 s{ST + 2}, {ps[0] * SLOT}, s{ST + 3}")
                e(f"s_add_u32 s{ST + 1}, s{ST + 1}, s{ST + 2}")
            e(f"v_add_u32 v{vpr}, s{ST + 1}, v{VL16}")
            e(f"s_lshl_b32 s{ST}, s{SMT}, 7")
            e(f"s_and_b32 s{ST + 1}, s{SWAVE}, 1")
            e(f"s_lshl_b32 s{ST + 1}, s{ST + 1}, 6")
            e(f"s_add_u32 s{ST}, s{ST}, s{ST + 1}")
            e(f"s_lshl_b32 s{ST}, s{ST}, 11")
            e(f"s_lshl_b32 s{ST + 1}, s{SNT}, 8")
            e(f"s_add_u32 s{ST}, s{ST}, s{ST + 1}")
            e(f"s_lshr_b32 s{ST + 1}, s{SWAVE}, 1")
            e(f"s_lshl_b32 s{ST + 1}, s{ST + 1}, 7")
            e(f"s_add_u32 s{ST}, s{ST}, s{ST + 1}")
            e("s_barrier")
            PT = 24
            for mh2 in range(2):
                if PBF:
                    for q in range(4):
                        e(f"ds_read_b128 {vr(PT + 4 * q)}, v{vpr} offset:{1024 * (4 * mh2 + q)}")
                else:
                    for q in range(8):
                        e(f"ds_read_b128 {vr(PT + 4 * q)}, v{vpr} offset:{1024 * (8 * mh2 + q)}")
                e("s_waitcnt lgkmcnt(0)")
                for m2 in range(2):
                    mt = 2 * mh2 + m2
                    if PBF:
                        for q in range(8):
                            b0 = acc2(mt, 0) + 2 * q
                            p0 = PT + 8 * m2 + q
                            e(f"v_lshlrev_b32 v{PT + 16}, 16, v{p0}")
                            e(f"v_and_b32 v{PT + 17}, 0xffff0000, v{p0}")
                            e(f"v_fmac_f32 v{b0}, v{VOMG + mt}, v{PT + 16}")
                            e(f"v_fmac_f32 v{b0 + 1}, v{VOMG + mt}, v{PT + 17}")
                    else:
                        sel = "op_sel:[1,0,0] op_sel_hi:[1,1,1]" if mt & 1 else "op_sel_hi:[0,1,1]"
                        for q in range(8):
                            b0 = acc2(mt, 0) + 2 * q
                            p0 = PT + 16 * m2 + 2 * q
                            e(f"v_pk_fma_f32 {vr(b0, 2)}, {vr(VOMG + (mt & 2), 2)}, {vr(p0, 2)}, {vr(b0, 2)} {sel}")
                    for pr in range(2):
                        b0 = acc2(mt, 2 * pr)
                        for q in range(4):
                            e(f"v_cvt_pk_bf16_f32 v{b0 + q}, v{b0 + 2 * q}, v{b0 + 2 * q + 1}")
                    e("s_nop 1")
                    for pr in range(2):
                        b0 = acc2(mt, 2 * pr)
                        e(f"v_permlane16_swap_b32 v{b0}, v{b0 + 2}")
                        e(f"v_permlane16_swap_b32 v{b0 + 1}, v{b0 + 3}")
                    for pr in range(2):
                        b0 = acc2(mt, 2 * pr)
                        e(f"buffer_store_dwordx4 {vr(b0)}, v{vo}, s[{SOUT}:{SOUT + 3}], s{ST} offen offset:{64 * pr}")
                    if mt < 3:
                        e(f"s_add_u32 s{ST}, s{ST}, 32768")
            stamp(a, 6)
        if DIAG:
            e("s_waitcnt vmcnt(0)")
        stamp(a, 7)
        stamp_dump(a, 1, 8, SWAVE, SP + 20, SP + 21, VT + 8)
        e("s_endpgm")

    vm_save = list(a.vm)
    consumer(1)
    a.label("L_k2_cons0")
    a.vm = vm_save
    consumer(0)
    a.label("L_k2_exit")
    e("s_endpgm")
    return a.lines


def fix_hazards(lines):
    out = []
    for i, ln in enumerate(lines):
        out.append(ln)
        if " m0," in ln and i + 1 < len(lines) and lines[i + 1].rstrip().endswith("lds"):
            out.append("  s_nop 0")
    return out


def gen_spin():
    a = Asm()
    e = a.e
    spec = OPT['spin']
    A_, B_, M = spec.split(",")
    a.lines.append(".globl spin_kernel\n.p2align 8\n.type spin_kernel,@function\nspin_kernel:")
    e("s_cmp_lg_u32 s2, 0")
    e("s_cbranch_scc1 L_spin_end")
    e("s_load_dwordx2 s[4:5], s[0:1], 80")
    e("v_lshlrev_b32 v1, 7, v0")
    e("s_waitcnt lgkmcnt(0)")
    e("s_mov_b32 s8, s4\ns_and_b32 s9, s5, 0xffff\ns_mov_b32 s10, 0x4000000\ns_mov_b32 s11, 0x20000")

    def red(sp, sdst):
        k, st, op = sp.split(".")
        base = DIAG_OFF + int(k) * 0x100000 + 8 * int(st) + 4
        for i in range(16):
            e(f"s_mov_b32 s12, {base + i * 8192}")
            e(f"buffer_load_dword v{8 + i}, v1, s[8:11], s12 offen")
        e("s_waitcnt vmcnt(0)")
        for i in range(1, 16):
            e(f"v_{op}_u32 v8, v8, v{8 + i}")
        e("s_nop 1")
        e(f"v_readlane_b32 s{sdst}, v8, 0")
        for l in range(1, 64):
            e(f"v_readlane_b32 s13, v8, {l}")
            e("s_nop 0")
            e(f"s_{op}_u32 s{sdst}, s{sdst}, s13")
    red("0.0.min", 20)
    red(A_, 21)
    red(B_, 22)
    e("s_sub_u32 s22, s22, s21")
    e(f"s_mul_i32 s22, s22, {M}")
    e("s_add_u32 s22, s22, 12000")
    e("s_min_u32 s22, s22, 60000")
    a.label("L_spin")
    e("s_memrealtime s[14:15]")
    e("s_waitcnt lgkmcnt(0)")
    e("s_sub_u32 s16, s14, s20")
    e("s_cmp_lt_u32 s16, s22")
    e("s_cbranch_scc1 L_spin")
    a.label("L_spin_end")
    e("s_endpgm")
    return a.lines


def kd(name, nfv, accum):
    return f""".amdhsa_kernel {name}
  .amdhsa_next_free_vgpr {nfv}
  .amdhsa_next_free_sgpr 102
  .amdhsa_accum_offset {accum}
  .amdhsa_group_segment_fixed_size 0
  .amdhsa_kernarg_size 88
  .amdhsa_user_sgpr_count 2
  .amdhsa_user_sgpr_kernarg_segment_ptr 1
  .amdhsa_system_sgpr_workgroup_id_x 1
.end_amdhsa_kernel"""


def main(path):
    hdr = open(f"cdna_kernels/{NAME}.s.ref").read().split("; Override launch")[0]
    out = [hdr.rstrip("\n")]
    out.append(f"; @launch kernel=k1_kernel grid=(256,1,1) block=(256,1,1) lds={K1_LDS}")
    out.append(f"; @launch kernel=k2_kernel grid=(256,1,1) block=(512,1,1) lds={K2_LDS()}")
    if OPT.get('spin'):
        out.append("; @launch kernel=spin_kernel grid=(1,1,1) block=(64,1,1) lds=0")
    out.append('.amdgcn_target "amdgcn-amd-amdhsa--gfx950"')
    out.append(".text")
    out += fix_hazards(gen_k1())
    out += fix_hazards(gen_k2())
    if OPT.get('spin'):
        out += gen_spin()
    out.append('.section .rodata,"a"')
    if OPT.get('spin'):
        out.append(".p2align 6")
        out.append(kd("spin_kernel", 32, 32))
    out.append(".p2align 6")
    out.append(kd("k1_kernel", 256 + 152, 256))
    out.append(".p2align 6")
    out.append(kd("k2_kernel", 256, 128))
    open(path, "w").write("\n".join(out) + "\n")


if __name__ == "__main__":
    if "--dbgout" in sys.argv:
        DBGOUT = True
        sys.argv.remove("--dbgout")
    if "--diag" in sys.argv:
        DIAG = True
        sys.argv.remove("--diag")
    for arg in list(sys.argv):
        if "=" in arg:
            k_, v_ = arg.split("=")
            OPT[k_] = int(v_) if v_.isdigit() else v_.replace("+", " ")
            sys.argv.remove(arg)
    main(sys.argv[1] if len(sys.argv) > 1 else f"cdna_kernels/{NAME}.s")
```

```python
import sys

NAME = "gated_mix__linear_attn_block__dense_activation_mish__prompt"

AF_OFF = 0
AF_BYTES = 16 * 144 * 8 * 1024
KVP_OFF = AF_BYTES
KVP_BYTES = 16 * 8 * 12 * 1024
KVF_OFF = KVP_OFF + KVP_BYTES
KVF_BYTES = 32 * 3 * 1024
G_OFF = KVF_OFF + KVF_BYTES
PART_OFF = G_OFF + 8192
OF_OFF = PART_OFF + 128 * 65536
FLG_OFF = OF_OFF + 16 * 32 * 8192
WS_USED = FLG_OFF + 144 * 256

DIAG = False
DBGOUT = False
OPT = dict(k1a="", k1b="", k2a="", k2b="", st="", pf=3, xpf=1, n0=33, map=2, S=4, pbf=1, pj=2, pprio=0, cprio=0, rdend=26)
DIAG_OFF = 0x2000000
EPS_HEX = "0x358637bd"
L2E_HEX = "0x3fb8aa3b"


class Asm:
    def __init__(self):
        self.lines = []
        self.vm = []

    def e(self, s):
        for ln in s.split("\n"):
            self.lines.append("  " + ln.strip())

    def label(self, s):
        self.lines.append(s + ":")

    def vmem(self, s, tag):
        self.e(s)
        self.vm.append(tag)

    def mark(self, tag):
        self.vm.append("#" + tag)

    def vm_count(self, tags, drop=True):
        idx = -1
        for i, t in enumerate(self.vm):
            if t in tags:
                idx = i
        if idx < 0:
            return None
        n = sum(1 for t in self.vm[idx + 1:] if not t.startswith("#"))
        if drop:
            self.vm = self.vm[idx + 1:]
        assert n <= 63, n
        return n

    def wait(self, tags=(), lgkm=False):
        n = self.vm_count(tags) if tags else None
        parts = []
        if n is not None:
            parts.append(f"vmcnt({n})")
        if lgkm:
            parts.append("lgkmcnt(0)")
        if parts:
            self.e("s_waitcnt " + " ".join(parts))


def stamp(a, idx, sbase=80):
    if not DIAG:
        return
    a.e(f"s_memtime s[{sbase - 4}:{sbase - 3}]")
    a.e(f"s_memrealtime s[{sbase - 2}:{sbase - 1}]")
    a.e("s_waitcnt lgkmcnt(0)")
    a.e(f"s_mov_b32 s{sbase + 2 * idx}, s{sbase - 4}")
    a.e(f"s_mov_b32 s{sbase + 2 * idx + 1}, s{sbase - 2}")


def stamp_dump(a, kidx, n, swave, sptr_lo, sptr_hi, vtmp, sbase=80):
    if not DIAG:
        return
    e = a.e
    e(f"s_mov_b32 s{sbase - 4}, s{sptr_lo}")
    e(f"s_and_b32 s{sbase - 3}, s{sptr_hi}, 0xffff")
    e(f"s_mov_b32 s{sbase - 2}, 0x4000000")
    e(f"s_mov_b32 s{sbase - 1}, 0x20000")
    e(f"s_lshl_b32 s75, s2, 2")
    e(f"s_add_u32 s75, s75, s{swave}")
    e(f"s_lshl_b32 s75, s75, 7")
    e(f"s_add_u32 s75, s75, {DIAG_OFF + kidx * 0x100000}")
    e(f"v_mov_b32 v{vtmp}, 0")
    e("s_mov_b64 exec, 1")
    for i in range(2 * n):
        e(f"v_mov_b32 v{vtmp + 1}, s{sbase + i}")
        e(f"buffer_store_dword v{vtmp + 1}, v{vtmp}, s[{sbase - 4}:{sbase - 1}], s75 offen offset:{4 * i}")
        e("s_nop 1")
    e("s_mov_b64 exec, -1")
    if DBGOUT:
        lab = f"L_dbg_{len(a.lines)}"
        e(f"s_cmp_lg_u32 s2, 1")
        e(f"s_cbranch_scc1 {lab}")
        e(f"s_cmp_lg_u32 s{swave}, 0")
        e(f"s_cbranch_scc1 {lab}")
        e(f"s_mov_b32 s{sbase - 4}, s{sptr_lo - 2}")
        e(f"s_and_b32 s{sbase - 3}, s{sptr_hi - 2}, 0xffff")
        e(f"s_mov_b32 s{sbase - 2}, 256")
        e("s_mov_b64 exec, 1")
        for i in range(n):
            e(f"v_mov_b32 v{vtmp + 1}, s{sbase + 2 * i + 1}")
            e(f"buffer_store_dword v{vtmp + 1}, v{vtmp}, s[{sbase - 4}:{sbase - 1}], 0 offen offset:{4 * i + 32 * kidx}")
            e("s_nop 1")
        e("s_mov_b64 exec, -1")
        a.label(lab)


def vr(b, n=4):
    return f"v[{b}:{b + n - 1}]"


def ar(b, n=4):
    return f"a[{b}:{b + n - 1}]"


def interleave(a, mf, fillers, start=0, end=None):
    n = len(mf)
    if end is None:
        end = n
    nf = len(fillers)
    pos = [start + (j * (end - start)) // max(nf, 1) for j in range(nf)]
    j = 0
    for m in range(n):
        a.e(mf[m])
        while j < nf and pos[j] <= m:
            f = fillers[j]
            f()
            j += 1
    while j < nf:
        fillers[j]()
        j += 1


def srd(a, d, lo, hi, nbytes, bias=0):
    if bias:
        a.e(f"s_sub_u32 s{d}, s{lo}, {bias}")
        a.e(f"s_subb_u32 s{d + 1}, s{hi}, 0")
        a.e(f"s_and_b32 s{d + 1}, s{d + 1}, 0xffff")
    else:
        a.e(f"s_mov_b32 s{d}, s{lo}")
        a.e(f"s_and_b32 s{d + 1}, s{hi}, 0xffff")
    a.e(f"s_mov_b32 s{d + 2}, {nbytes + bias}")
    a.e(f"s_mov_b32 s{d + 3}, 0x20000")


K1_BSLOT = 13312
K1_AREA = 3328
K1_ABASE = 4 * K1_BSLOT
K1_LDS = K1_ABASE + 4 * 16384
ACC0 = 48


def acc(t, mt):
    return ACC0 + 16 * t + 4 * mt


V_LANE = 1
V_ARD = 2
V_QRD = 4
V_HRD = 8
V_ADMA = 9
V_BDMA = 13
V_L16 = 17
V_T = 18
S_X, S_Q, S_W1, S_WS, S_MISC = 4, 8, 12, 16, 20
S_WAVE, S_RB, S_P = 24, 25, 26
S_OFFA, S_OFFA2, S_OFFQ, S_OFFH = 27, 28, 29, 30
S_M0B, S_M0A = 31, 32
S_CNT = 33
S_QM = 34
S_PTR = 36
S_L2E = 58
S_T = 60
S_AFB = 72
S_GROW = 73
S_PO1, S_PO2 = 74, 3
S_PT, S_PTE = 100, 101
S_PF1, S_PF2 = 96, 20


def bset(s, t):
    return 52 * s + 4 * t


ASET = {"X": 104, "Y": 120, "Z": 136}


def k1_body(a, typ):
    T = "A" if typ == 0 else "B"
    nq = 8 if typ == 0 else 4
    nh = 13 - nq
    Ph = 2 * nh
    HB = 256 * nq
    e = a.e
    vi, vG, t0, t1, t2, t3 = V_T, V_T + 1, V_T + 2, V_T + 3, V_T + 4, V_T + 5
    e(f"v_and_b32 v{vi}, 15, v{V_LANE}")
    e(f"v_lshrrev_b32 v{vG}, 4, v{V_LANE}")
    e(f"s_mul_i32 s{S_T + 2}, s{S_P}, 448")
    if typ:
        e(f"s_add_u32 s{S_T + 2}, s{S_T + 2}, 160")

    e(f"s_lshr_b32 s{S_T + 8}, s{S_WAVE}, 1")
    e(f"s_lshl_b32 s{S_T + 8}, s{S_T + 8}, 4")
    e(f"s_and_b32 s{S_T + 9}, s{S_WAVE}, 1")
    e(f"s_lshl_b32 s{S_T + 9}, s{S_T + 9}, 2")
    e(f"s_add_u32 s{S_T + 8}, s{S_T + 8}, s{S_T + 9}")

    def krow(dst, kp, tmp):
        e(f"v_lshrrev_b32 v{tmp}, 2, v{kp}")
        e(f"v_lshlrev_b32 v{tmp}, 3, v{tmp}")
        e(f"v_and_b32 v{dst}, 3, v{kp}")
        e(f"v_add3_u32 v{dst}, v{dst}, v{tmp}, s{S_T + 8}")

    e(f"v_lshrrev_b32 v{t0}, 3, v{V_LANE}")
    krow(t1, t0, t2)
    e(f"v_mul_u32_u24 v{t1}, 6144, v{t1}")
    e(f"v_lshrrev_b32 v{t2}, 1, v{t0}")
    e(f"v_and_b32 v{t2}, 3, v{t2}")
    e(f"v_lshlrev_b32 v{t2}, 1, v{t2}")
    e(f"v_and_b32 v{t3}, 7, v{V_LANE}")
    e(f"v_xor_b32 v{t3}, v{t3}, v{t2}")
    e(f"v_lshlrev_b32 v{t3}, 4, v{t3}")
    e(f"v_add_u32 v{t1}, v{t1}, v{t3}")
    e(f"s_lshl_b32 s{S_T + 9}, s{S_P}, 7")
    e(f"s_add_u32 s{S_T + 9}, s{S_T + 9}, {4096 + (2048 if typ == 0 else 0)}")
    e(f"v_add_u32 v{V_BDMA}, s{S_T + 9}, v{t1}")
    if typ == 0:
        e(f"v_add_u32 v{V_BDMA + 1}, {2048 - 1024}, v{V_BDMA}")
    hins = [(2, 0), (3, 64)] if typ == 0 else [(1, 0), (2, 64), (3, 128)]
    magic, sh = (205, 11) if Ph == 10 else (57, 10)
    for s_ in range(8 * Ph + 64):
        if s_ < 8 * Ph:
            assert (s_ * magic) >> sh == s_ // Ph
    for slot, s0 in hins:
        e(f"v_add_u32 v{t0}, {s0}, v{V_LANE}")
        e(f"v_mul_u32_u24 v{t1}, {magic}, v{t0}")
        e(f"v_lshrrev_b32 v{t1}, {sh}, v{t1}")
        e(f"v_mul_u32_u24 v{t2}, {Ph}, v{t1}")
        e(f"v_sub_u32 v{t0}, v{t0}, v{t2}")
        e(f"v_and_b32 v{t1}, 7, v{t1}")
        krow(t2, t1, t3)
        e(f"v_mul_u32_u24 v{t2}, 7168, v{t2}")
        e(f"v_lshlrev_b32 v{t0}, 4, v{t0}")
        e(f"v_add3_u32 v{t0}, v{t0}, v{t2}, s{S_T + 2}")
        e(f"v_add_u32 v{V_BDMA + slot}, {4096 - 1024 * slot}, v{t0}")
    e(f"s_lshl_b32 s{S_T + 9}, s{S_RB}, 8")
    e(f"s_lshl_b32 s{S_T + 10}, s{S_WAVE}, 6")
    e(f"s_add_u32 s{S_T + 9}, s{S_T + 9}, s{S_T + 10}")
    e(f"s_lshl_b32 s{S_T + 9}, s{S_T + 9}, 11")
    e(f"v_lshrrev_b32 v{t0}, 3, v{V_LANE}")
    e(f"v_lshrrev_b32 v{t1}, 1, v{t0}")
    e(f"v_and_b32 v{t2}, 7, v{V_LANE}")
    e(f"v_xor_b32 v{t2}, v{t2}, v{t1}")
    e(f"v_lshlrev_b32 v{t0}, 11, v{t0}")
    e(f"v_add_u32 v{t0}, s{S_T + 9}, v{t0}")
    for j in range(4):
        if j & 1:
            e(f"v_xor_b32 v{t3}, 4, v{t2}")
            e(f"v_lshlrev_b32 v{t3}, 4, v{t3}")
        else:
            e(f"v_lshlrev_b32 v{t3}, 4, v{t2}")
        e(f"v_add_u32 v{t3}, v{t3}, v{t0}")
        e(f"v_add_u32 v{V_ADMA + j}, {j * (16384 - 1024)}, v{t3}")
    e(f"s_mul_i32 s{S_M0B}, s{S_WAVE}, {K1_AREA}")
    e(f"s_lshl_b32 s{S_M0A}, s{S_WAVE}, 14")
    e(f"s_add_u32 s{S_M0A}, s{S_M0A}, {K1_ABASE}")
    e(f"s_mov_b32 s{S_OFFA}, 0")
    e(f"s_mov_b32 s{S_OFFA2}, 65536")
    e(f"s_mov_b32 s{S_OFFQ}, 0")
    e(f"s_mov_b32 s{S_OFFH}, 0")
    e(f"s_mov_b32 s{S_QM}, 0xffff")
    e(f"s_mov_b32 s{S_QM + 1}, 0")

    def dmaB(tt):
        slot = tt % 4
        tag = f"B{tt}"
        f = []
        srcs = [(S_Q, S_OFFQ), (S_Q, S_OFFQ) if typ == 0 else (S_W1, S_OFFH), (S_W1, S_OFFH)]
        f.append(lambda: e(f"s_add_u32 m0, s{S_M0B}, {slot * K1_BSLOT}"))
        for j in range(3):
            sr, so = srcs[j]
            f.append(lambda j=j, sr=sr, so=so: a.vmem(
                f"buffer_load_dwordx4 v{V_BDMA + j}, s[{sr}:{sr + 3}], s{so} offen offset:{1024 * j} {OPT['k1b']} lds", tag))

        def q():
            e(f"s_mov_b64 exec, s[{S_QM}:{S_QM + 1}]")
            a.vmem(f"buffer_load_dwordx4 v{V_BDMA + 3}, s[{S_W1}:{S_W1 + 3}], s{S_OFFH} offen offset:3072 {OPT['k1b']} lds", tag)
            e("s_mov_b64 exec, -1")
        f.append(q)
        f.append(lambda: e(f"s_add_u32 s{S_OFFQ}, s{S_OFFQ}, {32 * 6144}"))
        f.append(lambda: e(f"s_add_u32 s{S_OFFH}, s{S_OFFH}, {32 * 7168}"))
        return f

    def dmaA(aa):
        slot = aa % 2
        tag = f"A{aa}"
        f = []
        for half in range(2):
            so = S_OFFA if half == 0 else S_OFFA2
            f.append(lambda half=half: e(f"s_add_u32 m0, s{S_M0A}, {slot * 8192 + half * 4096}"))
            for j in range(4):
                f.append(lambda j=j, so=so: a.vmem(
                    f"buffer_load_dwordx4 v{V_ADMA + j}, s[{S_X}:{S_X + 3}], s{so} offen offset:{1024 * j} {OPT['k1a']} lds", tag))
        f.append(lambda: e(f"s_add_u32 s{S_OFFA}, s{S_OFFA}, 128"))
        f.append(lambda: e(f"s_add_u32 s{S_OFFA2}, s{S_OFFA2}, 128"))
        return f

    def run_seq(fl):
        for fn in fl:
            n0 = len(a.lines)
            fn()
            if " m0," in a.lines[-1] and len(a.lines) == n0 + 1:
                e("s_nop 0")

    e("s_waitcnt lgkmcnt(0)")
    srd(a, S_Q, S_PTR + 2, S_PTR + 3, 1024 * 3072 * 2, bias=4096)
    srd(a, S_W1, S_PTR + 8, S_PTR + 9, 1024 * 3584 * 2, bias=4096)
    srd(a, S_X, S_PTR + 0, S_PTR + 1, 2048 * 1024 * 2)
    if not OPT.get('spin'):
        stamp(a, 0)
    run_seq(dmaB(0))
    run_seq(dmaA(0))
    srd(a, S_T + 4, S_PTR + 10, S_PTR + 11, 7168)
    e(f"v_lshlrev_b32 v{t1}, 3, v{vG}")
    for j in range(nh):
        a.vmem(f"buffer_load_dwordx2 {vr(acc(nq + j, 3), 2)}, v{t1}, s[{S_T + 4}:{S_T + 7}], s{S_T + 2} offen offset:{32 * j}", "bias")
    run_seq(dmaB(1))
    run_seq(dmaB(2))
    run_seq(dmaA(1))
    run_seq(dmaB(3))
    srd(a, S_WS, S_PTR + 20, S_PTR + 21, WS_USED)
    if OPT.get('cpf'):
        e(f"s_getpc_b64 s[{S_T + 4}:{S_T + 5}]")
        a.label(f"L_pc_{T}")
        e(f"s_sub_u32 s{S_T + 4}, s{S_T + 4}, L_pc_{T}-k1_kernel")
        e(f"s_subb_u32 s{S_T + 5}, s{S_T + 5}, 0")
        e(f"s_lshr_b32 s{S_T}, s2, 3")
        e(f"s_and_b32 s{S_T}, s{S_T}, 3")
        e(f"s_lshl_b32 s{S_T}, s{S_T}, 2")
        e(f"s_add_u32 s{S_T}, s{S_T}, s{S_WAVE}")
        e(f"s_lshl_b32 s{S_T}, s{S_T}, 13")
        e(f"v_lshlrev_b32 v{V_T + 29}, 7, v{V_LANE}")
        e(f"v_add_u32 v{V_T + 29}, s{S_T}, v{V_T + 29}")
        e(f"v_min_u32 v{V_T + 29}, L_code_end-k1_kernel-4, v{V_T + 29}")
        a.vmem(f"global_load_dword v{V_T + 29}, v{V_T + 29}, s[{S_T + 4}:{S_T + 5}]", "pf")
    if OPT.get('xpf') == 1:
        e(f"v_and_b32 v{V_T + 28}, 31, v{V_LANE}")
        e(f"v_lshlrev_b32 v{V_T + 28}, 7, v{V_T + 28}")
        e(f"s_lshl_b32 s{S_T}, s2, 2")
        e(f"s_add_u32 s{S_T}, s{S_T}, s{S_WAVE}")
        e(f"s_lshl_b32 s{S_T}, s{S_T}, 12")
        a.vmem(f"buffer_load_dword v{V_T + 28}, v{V_T + 28}, s[{S_X}:{S_X + 3}], s{S_T} offen", "pf")
    if OPT.get('xpf') == 2:
        e(f"v_lshlrev_b32 v{V_T + 27}, 7, v{V_LANE}")
        e(f"s_lshr_b32 s{S_T}, s2, 5")
        e(f"s_lshl_b32 s{S_T}, s{S_T}, 2")
        e(f"s_add_u32 s{S_T}, s{S_T}, s{S_WAVE}")
        e(f"s_lshl_b32 s{S_T}, s{S_T}, 14")
        e(f"s_lshl_b32 s{S_T + 1}, s{S_RB}, 19")
        e(f"s_add_u32 s{S_T}, s{S_T}, s{S_T + 1}")
        a.vmem(f"buffer_load_dword v{V_T + 28}, v{V_T + 27}, s[{S_X}:{S_X + 3}], s{S_T} offen", "pf")
        e(f"s_add_u32 s{S_T}, s{S_T}, 8192")
        a.vmem(f"buffer_load_dword v{V_T + 28}, v{V_T + 27}, s[{S_X}:{S_X + 3}], s{S_T} offen", "pf")

    e(f"v_lshrrev_b32 v{t0}, 3, v{vi}")
    e(f"v_lshlrev_b32 v{t0}, 6, v{t0}")
    e(f"v_and_b32 v{t1}, 7, v{vi}")
    e(f"v_lshlrev_b32 v{t1}, 3, v{t1}")
    e(f"v_add_u32 v{t0}, v{t0}, v{t1}")
    e(f"v_lshrrev_b32 v{t1}, 1, v{vi}")
    e(f"v_xor_b32 v{t1}, v{t1}, v{vG}")
    e(f"v_add_u32 v{t2}, v{t0}, v{t1}")
    e(f"v_lshlrev_b32 v{t2}, 4, v{t2}")
    e(f"v_add_u32 v{V_ARD}, s{S_M0A}, v{t2}")
    e(f"v_xor_b32 v{t1}, 4, v{t1}")
    e(f"v_add_u32 v{t2}, v{t0}, v{t1}")
    e(f"v_lshlrev_b32 v{t2}, 4, v{t2}")
    e(f"v_add_u32 v{V_ARD + 1}, s{S_M0A}, v{t2}")
    e(f"v_and_b32 v{t0}, 1, v{vG}")
    e(f"v_lshlrev_b32 v{t0}, 2, v{t0}")
    e(f"v_lshrrev_b32 v{t1}, 2, v{vi}")
    e(f"v_add_u32 v{t0}, v{t0}, v{t1}")
    e(f"v_lshrrev_b32 v{t1}, 1, v{vG}")
    e(f"v_mul_u32_u24 v{t1}, {2 * K1_AREA}, v{t1}")
    e(f"v_and_b32 v{t2}, 3, v{vi}")
    e(f"v_lshlrev_b32 v{t2}, 3, v{t2}")
    e(f"v_add_u32 v{t1}, v{t1}, v{t2}")
    e(f"v_mul_u32_u24 v{t3}, {16 * Ph}, v{t0}")
    e(f"v_add3_u32 v{V_HRD}, v{t1}, v{t3}, {0}")
    e(f"v_add_u32 v{V_HRD}, {HB}, v{V_HRD}")
    e(f"v_lshlrev_b32 v{t3}, 7, v{t0}")
    e(f"v_add_u32 v{t1}, v{t1}, v{t3}")
    e(f"v_lshrrev_b32 v{t2}, 1, v{t0}")
    e(f"v_and_b32 v{t2}, 3, v{t2}")
    for t in range(4):
        e(f"v_xor_b32 v{t3}, {t}, v{t2}")
        e(f"v_lshlrev_b32 v{t3}, 5, v{t3}")
        e(f"v_add_u32 v{V_QRD + t}, v{t1}, v{t3}")
    e(f"v_lshlrev_b32 v{V_L16}, 4, v{V_LANE}")

    gw, gx0, gx1 = V_T, V_T + 8, V_T + 16
    gt = V_T + 24
    e(f"v_lshlrev_b32 v{gt}, 5, v{V_LANE}")
    e(f"s_lshl_b32 s{S_GROW}, s2, 3")
    e(f"s_lshl_b32 s{S_T + 1}, s{S_WAVE}, 1")
    e(f"s_add_u32 s{S_GROW}, s{S_GROW}, s{S_T + 1}")
    e(f"s_lshl_b32 s{S_T + 1}, s{S_GROW}, 11")
    srd(a, S_MISC, S_PTR + 14, S_PTR + 15, 2048)
    a.vmem(f"buffer_load_dwordx4 {vr(gw)}, v{gt}, s[{S_MISC}:{S_MISC + 3}], 0 offen", "g")
    a.vmem(f"buffer_load_dwordx4 {vr(gw + 4)}, v{gt}, s[{S_MISC}:{S_MISC + 3}], 0 offen offset:16", "g")
    a.vmem(f"buffer_load_dwordx4 {vr(gx0)}, v{gt}, s[{S_X}:{S_X + 3}], s{S_T + 1} offen", "g")
    a.vmem(f"buffer_load_dwordx4 {vr(gx0 + 4)}, v{gt}, s[{S_X}:{S_X + 3}], s{S_T + 1} offen offset:16", "g")
    a.vmem(f"buffer_load_dwordx4 {vr(gx1)}, v{gt}, s[{S_X}:{S_X + 3}], s{S_T + 1} offen offset:2048", "g")
    a.vmem(f"buffer_load_dwordx4 {vr(gx1 + 4)}, v{gt}, s[{S_X}:{S_X + 3}], s{S_T + 1} offen offset:2064", "g")

    if OPT['pf']:
        srd(a, S_PF1, S_PTR + 12, S_PTR + 13, 3584 * 1024 * 2)
        srd(a, S_PF2, S_PTR + 4, S_PTR + 5, 1024 * 1024 * 2)
        nb = {1: 7, 2: 1, 3: 2, 4: 3}[OPT['pf']]
        PL1, PL2 = -(-56 // nb), -(-16 // nb)
        e(f"v_min_u32 v{V_T + 26}, {PL1 - 1}, v{V_LANE}")
        e(f"v_lshlrev_b32 v{V_T + 26}, 7, v{V_T + 26}")
        e(f"v_min_u32 v{V_T + 27}, {PL2 - 1}, v{V_LANE}")
        e(f"v_lshlrev_b32 v{V_T + 27}, 7, v{V_T + 27}")
        e(f"s_lshl_b32 s{S_T}, s2, 2")
        e(f"s_add_u32 s{S_T}, s{S_T}, s{S_WAVE}")
        e(f"s_mul_i32 s{S_PO1}, s{S_T}, 7168")
        e(f"s_lshl_b32 s{S_PO2}, s{S_T}, 11")

    if OPT.get('pt'):
        e(f"s_lshl_b32 s{S_T}, s{S_RB}, 1")
        e(f"s_lshr_b32 s{S_T + 1}, s{S_WAVE}, 1")
        e(f"s_add_u32 s{S_T}, s{S_T}, s{S_T + 1}")
        e(f"s_mul_i32 s{S_AFB}, s{S_T}, {144 * 8192}")
        e(f"s_and_b32 s{S_T + 1}, s{S_WAVE}, 1")
        e(f"s_lshl_b32 s{S_T + 1}, s{S_T + 1}, 12")
        e(f"s_add_u32 s{S_AFB}, s{S_AFB}, s{S_T + 1}")
        e(f"s_mul_i32 s{S_PT}, s{S_P}, {7 * 8192}")
        e(f"s_add_u32 s{S_PT}, s{S_PT}, s{S_AFB}")
        if typ:
            e(f"s_add_u32 s{S_PT}, s{S_PT}, {2 * 8192}")
        e(f"s_add_u32 s{S_PTE}, s{S_PT}, {(4 if typ else 2) * 8192}")
        e(f"v_and_b32 v{V_T + 25}, 31, v{V_LANE}")
        e(f"v_lshlrev_b32 v{V_T + 25}, 7, v{V_T + 25}")
        if typ:
            e(f"v_lshrrev_b32 v{V_T + 29}, 5, v{V_LANE}")
            e(f"v_lshlrev_b32 v{V_T + 29}, 13, v{V_T + 29}")
            e(f"v_add_u32 v{V_T + 29}, v{V_T + 29}, v{V_T + 25}")
            e(f"s_mul_i32 s{S_T}, s{S_P}, {2 * 8192}")
            e(f"s_add_u32 s{S_T}, s{S_T}, {112 * 8192}")
            e(f"s_add_u32 s{S_T}, s{S_T}, s{S_AFB}")
            a.vmem(f"buffer_load_dword v{V_T + 28}, v{V_T + 29}, s[{S_WS}:{S_WS + 3}], s{S_T} offen", "pf")

    def pt_items():
        return [lambda: a.vmem(f"buffer_load_dword v{V_T + 28}, v{V_T + 25}, s[{S_WS}:{S_WS + 3}], s{S_PT} offen", "pf"),
                lambda: e(f"s_add_u32 s{S_PT}, s{S_PT}, 8192"),
                lambda: e(f"s_min_u32 s{S_PT}, s{S_PT}, s{S_PTE}")]

    def pf_items(cond=None):
        if cond is None:
            return [lambda: a.vmem(f"buffer_load_dword v{V_T + 28}, v{V_T + 26}, s[{S_PF1}:{S_PF1 + 3}], s{S_PO1} offen", "pf"),
                    lambda: a.vmem(f"buffer_load_dword v{V_T + 28}, v{V_T + 27}, s[{S_PF2}:{S_PF2 + 3}], s{S_PO2} offen", "pf"),
                    lambda: e(f"s_add_u32 s{S_PO1}, s{S_PO1}, {128 * PL1}"),
                    lambda: e(f"s_add_u32 s{S_PO2}, s{S_PO2}, {128 * PL2}")]

        def blk():
            e(f"s_lshl_b32 s{S_T}, 1, s{S_CNT}")
            e(f"s_and_b32 s{S_T}, s{S_T}, {cond}")
            e(f"s_cbranch_scc0 L_k1{T}_nopf")
            e(f"buffer_load_dword v{V_T + 28}, v{V_T + 26}, s[{S_PF1}:{S_PF1 + 3}], s{S_PO1} offen")
            e(f"buffer_load_dword v{V_T + 28}, v{V_T + 27}, s[{S_PF2}:{S_PF2 + 3}], s{S_PO2} offen")
            e(f"s_add_u32 s{S_PO1}, s{S_PO1}, {128 * PL1}")
            e(f"s_add_u32 s{S_PO2}, s{S_PO2}, {128 * PL2}")
            a.label(f"L_k1{T}_nopf")
        return [blk]

    def g_items():
        d0, d1 = V_T + 24, V_T + 25
        L = []
        L.append(f"v_dot2_f32_bf16 v{d0}, v{gx0}, v{gw}, 0")
        L.append(f"v_dot2_f32_bf16 v{d1}, v{gx1}, v{gw}, 0")
        for j in range(1, 8):
            L.append(f"v_dot2_f32_bf16 v{d0}, v{gx0 + j}, v{gw + j}, v{d0}")
            L.append(f"v_dot2_f32_bf16 v{d1}, v{gx1 + j}, v{gw + j}, v{d1}")
        L.append("s_nop 3")
        for sh_ in (1, 2, 4, 8):
            L.append(f"s_nop 0\nv_add_f32_dpp v{d0}, v{d0}, v{d0} row_shr:{sh_} row_mask:0xf bank_mask:0xf bound_ctrl:0")
            L.append(f"s_nop 0\nv_add_f32_dpp v{d1}, v{d1}, v{d1} row_shr:{sh_} row_mask:0xf bank_mask:0xf bound_ctrl:0")
        L.append(f"s_nop 0\nv_add_f32_dpp v{d0}, v{d0}, v{d0} row_bcast:15 row_mask:0xa bank_mask:0xf")
        L.append(f"s_nop 0\nv_add_f32_dpp v{d1}, v{d1}, v{d1} row_bcast:15 row_mask:0xa bank_mask:0xf")
        L.append(f"s_nop 0\nv_add_f32_dpp v{d0}, v{d0}, v{d0} row_bcast:31 row_mask:0xc bank_mask:0xf")
        L.append(f"s_nop 0\nv_add_f32_dpp v{d1}, v{d1}, v{d1} row_bcast:31 row_mask:0xc bank_mask:0xf")
        L.append(f"v_mul_f32 v{d0}, 0xbfb8aa3b, v{d0}")
        L.append(f"v_mul_f32 v{d1}, 0xbfb8aa3b, v{d1}")
        L.append(f"v_exp_f32 v{d0}, v{d0}")
        L.append(f"v_exp_f32 v{d1}, v{d1}\ns_nop 0")
        L.append(f"v_add_f32 v{d0}, 1.0, v{d0}")
        L.append(f"v_add_f32 v{d1}, 1.0, v{d1}")
        L.append(f"v_rcp_f32 v{d0}, v{d0}")
        L.append(f"v_rcp_f32 v{d1}, v{d1}")
        L.append(f"v_mov_b32 v{gw}, 0")
        L.append(f"s_lshl_b32 s{S_T + 1}, s{S_GROW}, 2\ns_add_u32 s{S_T + 1}, s{S_T + 1}, {G_OFF}")
        L.append(f"s_lshl_b32 s{S_T + 3}, s2, 8\ns_add_u32 s{S_T + 3}, s{S_T + 3}, {FLG_OFF}")
        L.append(f"s_mov_b32 s{S_T + 8}, 0\ns_mov_b32 s{S_T + 9}, 0x80000000")
        F = [(lambda x=x: e(x)) for x in L]

        def st():
            e(f"s_mov_b64 exec, s[{S_T + 8}:{S_T + 9}]")
            a.vmem(f"buffer_store_dwordx2 v[{d0}:{d1}], v{gw}, s[{S_WS}:{S_WS + 3}], s{S_T + 1} offen", "gst")
            a.vmem(f"buffer_store_dword v{gw}, v{gw}, s[{S_WS}:{S_WS + 3}], s{S_T + 3} offen", "gst")
            e("s_mov_b64 exec, -1")
        F.append(st)
        return F

    a.wait(["bias"])
    for j in range(nh):
        src = acc(nq + j, 3)
        d = acc(nq + j, 0)
        e(f"v_lshlrev_b32 v{d}, 16, v{src}")
        e(f"v_and_b32 v{d + 1}, 0xffff0000, v{src}")
        e(f"v_lshlrev_b32 v{d + 2}, 16, v{src + 1}")
        e(f"v_and_b32 v{d + 3}, 0xffff0000, v{src + 1}")
    for t in range(4):
        for r in range(4):
            e(f"v_mov_b32 v{acc(t, 0) + r}, {EPS_HEX}")

    def rdB(tt):
        slot = tt % 4
        s = tt % 2
        f = []
        for t in range(13):
            for ins in range(2):
                if t < nq:
                    addr = V_QRD + (t & 3)
                    off = slot * K1_BSLOT + ins * K1_AREA + 1024 * (t >> 2)
                else:
                    addr = V_HRD
                    off = slot * K1_BSLOT + ins * K1_AREA + 32 * (t - nq)
                d = bset(s, t) + 2 * ins
                f.append(lambda d=d, addr=addr, off=off: e(f"ds_read_b64_tr_b16 {ar(d, 2)}, v{addr} offset:{off}"))
        return f

    def aset_of(tt):
        if tt % 2 == 0:
            return ASET["X"]
        return ASET["Y"] if tt % 4 == 1 else ASET["Z"]

    def rdA(aa):
        slot = aa % 2
        f = []
        for hh in range(2):
            base = aset_of(2 * aa + hh)
            for mt in range(4):
                f.append(lambda hh=hh, mt=mt, base=base: e(
                    f"ds_read_b128 {ar(base + 4 * mt)}, v{V_ARD + hh} offset:{slot * 8192 + mt * 2048}"))
        return f

    stamp(a, 1)
    a.wait(["B0", "A0"])
    e("s_barrier")
    stamp(a, 2)
    for fn in rdA(0) + rdB(0):
        fn()
    a.wait(["B1"], lgkm=True)
    e("s_barrier")

    NSTEP = 32

    def step(tt):
        if DIAG and OPT.get('ts'):
            e("s_memrealtime s[76:77]")
            e("s_waitcnt lgkmcnt(0)")
            e("s_mov_b32 m0, s78")
            e("s_nop 0")
            e(f"v_writelane_b32 v{V_T + 29}, s76, m0")
            e("s_add_u32 s78, s78, 1")
        s = tt % 2
        ab = aset_of(tt)
        mf = []
        for t in range(13):
            order = [1, 2, 3, 0] if tt == 0 else [0, 1, 2, 3]
            for mt in order:
                D = vr(acc(t, mt))
                if tt == 0:
                    C = "0" if (typ == 0 and 4 <= t < 8) else vr(acc(t, 0))
                else:
                    C = D
                W = ar(bset(s, t))
                X = ar(ab + 4 * mt)
                if typ == 0 and t < 8:
                    mf.append(f"v_mfma_f32_16x16x32_bf16 {D}, {X}, {W}, {C}")
                else:
                    mf.append(f"v_mfma_f32_16x16x32_bf16 {D}, {W}, {X}, {C}")
        rd = []
        if tt + 1 < NSTEP:
            rd = rdB(tt + 1)
            if tt % 2 == 1:
                rd = rdA((tt + 1) // 2) + rd
        dm = []
        if OPT.get('afirst', 1) and tt % 2 == 0 and tt // 2 + 2 < NSTEP // 2:
            dm += dmaA(tt // 2 + 2)
        if tt + 4 < NSTEP:
            dm += dmaB(tt + 4)
        if not OPT.get('afirst', 1) and tt % 2 == 0 and tt // 2 + 2 < NSTEP // 2:
            dm += dmaA(tt // 2 + 2)
        if OPT['pf'] == 1 and tt % 4 == 1 and tt < 28:
            dm += pf_items()
        if OPT['pf'] in (2, 3, 4) and tt == 28:
            dm += pf_items()
        if OPT['pf'] in (3, 4) and tt % 4 == 1 and 4 <= tt < 28:
            dm += pf_items({3: 1 << 4, 4: (1 << 5) | (1 << 3)}[OPT['pf']])
        if OPT.get('pt') and tt % 4 == 3 and tt < 28:
            dm += pt_items()
        fl = []
        i1 = i2 = 0
        n1, n2 = len(rd), len(dm)
        while i1 < n1 or i2 < n2:
            if i2 < n2 and (i1 >= n1 or i2 * n1 <= i1 * n2):
                fl.append(dm[i2]); i2 += 1
            else:
                fl.append(rd[i1]); i1 += 1
        if tt == NSTEP - 1:
            assert "g" not in a.vm
            fl = g_items()
        interleave(a, mf, fl, 0, 48)
        if tt + 1 < NSTEP:
            tags = []
            if tt + 2 < NSTEP:
                tags.append(f"B{tt + 2}")
            if tt % 2 == 0:
                tags.append(f"A{tt // 2 + 1}")
            a.wait(tags, lgkm=True)
            if tt + 2 < NSTEP:
                e("s_barrier")

    iters = []
    for it in range(8):
        n0 = len(a.lines)
        for tt in range(4 * it, 4 * it + 4):
            step(tt)
        iters.append(a.lines[n0:])
        del a.lines[n0:]
    for it in range(2, 7):
        assert iters[it] == iters[1], f"iteration {it} differs"
    stamp(a, 3)
    if DIAG and OPT.get('ts'):
        e("s_mov_b32 s78, 0")
    a.lines += iters[0]
    if not OPT.get('ts'):
        stamp(a, 4)
    e(f"s_mov_b32 s{S_CNT}, 6")
    a.label(f"L_k1{T}_loop")
    a.lines += iters[1]
    e(f"s_sub_u32 s{S_CNT}, s{S_CNT}, 1")
    e(f"s_cmp_lg_u32 s{S_CNT}, 0")
    e(f"s_cbranch_scc1 L_k1{T}_loop")
    a.lines += iters[7]
    assert all(not t.startswith(("A", "B")) for t in a.vm), a.vm

    stamp(a, 5)

    def fin():
        if DIAG and OPT.get('ts'):
            e(f"s_mov_b32 s76, s{S_PTR + 20}")
            e(f"s_and_b32 s77, s{S_PTR + 21}, 0xffff")
            e(f"s_mov_b32 s78, 0x4000000")
            e(f"s_mov_b32 s79, 0x20000")
            e(f"s_lshl_b32 s75, s2, 2")
            e(f"s_add_u32 s75, s75, s{S_WAVE}")
            e(f"s_lshl_b32 s75, s75, 8")
            e(f"s_add_u32 s75, s75, {DIAG_OFF + 0x200000}")
            e(f"v_lshlrev_b32 v{V_T}, 2, v{V_LANE}")
            e(f"buffer_store_dword v{V_T + 29}, v{V_T}, s[76:79], s75 offen")
        stamp(a, 6)
        if DIAG:
            e("s_waitcnt vmcnt(0)")
        stamp(a, 7)
        stamp_dump(a, 0, 8, S_WAVE, S_PTR + 20, S_PTR + 21, V_T)
        e("s_endpgm")
    e(f"s_mov_b32 s{S_L2E}, {L2E_HEX}")
    e(f"s_mov_b32 s{S_L2E + 1}, {L2E_HEX}")
    e(f"s_lshl_b32 s{S_T}, s{S_RB}, 1")
    e(f"s_lshr_b32 s{S_T + 1}, s{S_WAVE}, 1")
    e(f"s_add_u32 s{S_T}, s{S_T}, s{S_T + 1}")
    e(f"s_mul_i32 s{S_AFB}, s{S_T}, {144 * 8192}")
    e(f"s_and_b32 s{S_T + 1}, s{S_WAVE}, 1")
    e(f"s_lshl_b32 s{S_T + 1}, s{S_T + 1}, 12")
    e(f"s_add_u32 s{S_AFB}, s{S_AFB}, s{S_T + 1}")
    e("s_nop 7")
    TT, UU = V_T, V_T + 8

    def phi_group(ra, rb_):
        prs = [ra, ra + 2, rb_, rb_ + 2]
        for j, p in enumerate(prs):
            e(f"v_pk_mul_f32 {vr(TT + 2 * j, 2)}, {vr(p, 2)}, s[{S_L2E}:{S_L2E + 1}]")
        for j in range(8):
            e(f"v_exp_f32_e64 v{TT + j}, v{TT + j} clamp")
        for p in prs:
            e(f"v_max_f32 v{p}, {EPS_HEX}, v{p}")
            e(f"v_max_f32 v{p + 1}, {EPS_HEX}, v{p + 1}")
        for j, p in enumerate(prs):
            e(f"v_pk_add_f32 {vr(p, 2)}, {vr(p, 2)}, {vr(TT + 2 * j, 2)}")
        for j, p in enumerate(prs):
            e(f"v_cvt_pk_bf16_f32 v{ra + j}, v{p}, v{p + 1}")

    def cvt_group(ra, rb_):
        prs = [ra, ra + 2, rb_, rb_ + 2]
        for j, p in enumerate(prs):
            e(f"v_cvt_pk_bf16_f32 v{ra + j}, v{p}, v{p + 1}")

    def mish_group(ra, rb_, split=False):
        prs = [ra, ra + 2, rb_, rb_ + 2]
        for j, p in enumerate(prs):
            e(f"v_pk_mul_f32 {vr(TT + 2 * j, 2)}, {vr(p, 2)}, s[{S_L2E}:{S_L2E + 1}]")
        for j in range(8):
            e(f"v_exp_f32 v{TT + j}, v{TT + j}")
        for j in range(4):
            e(f"v_pk_fma_f32 {vr(UU + 2 * j, 2)}, {vr(TT + 2 * j, 2)}, 0.5, 1.0 op_sel_hi:[1,0,0]")
        for j in range(4):
            e(f"v_pk_fma_f32 {vr(UU + 2 * j, 2)}, {vr(TT + 2 * j, 2)}, {vr(UU + 2 * j, 2)}, 1.0 op_sel_hi:[1,1,0]")
        for j in range(8):
            e(f"v_rcp_f32 v{UU + j}, v{UU + j}")
        for j, p in enumerate(prs):
            e(f"v_pk_fma_f32 {vr(p, 2)}, {vr(UU + 2 * j, 2)}, {vr(p, 2)}, {vr(p, 2)} neg_lo:[1,0,0] neg_hi:[1,0,0]")
        if split:
            e(f"v_cvt_pk_bf16_f32 v{ra}, v{ra}, v{ra + 1}")
            e(f"v_cvt_pk_bf16_f32 v{ra + 1}, v{ra + 2}, v{ra + 3}")
            e(f"v_cvt_pk_bf16_f32 v{rb_}, v{rb_}, v{rb_ + 1}")
            e(f"v_cvt_pk_bf16_f32 v{rb_ + 1}, v{rb_ + 2}, v{rb_ + 3}")
        else:
            for j, p in enumerate(prs):
                e(f"v_cvt_pk_bf16_f32 v{ra + j}, v{p}, v{p + 1}")

    WS = f"s[{S_WS}:{S_WS + 3}]"

    def set_kb(sreg, mul, add):
        e(f"s_mul_i32 s{sreg}, s{S_P}, {mul * 8192}")
        e(f"s_add_u32 s{sreg}, s{sreg}, {add * 8192}")
        e(f"s_add_u32 s{sreg}, s{sreg}, s{S_AFB}")

    def h_full(tA, kbl):
        set_kb(S_T + 2, 7, kbl)
        for mt in range(4):
            mish_group(acc(tA, mt), acc(tA + 1, mt))
            a.vmem(f"buffer_store_dwordx4 {vr(acc(tA, mt))}, v{V_L16}, {WS}, s{S_T + 2} offen offset:{1024 * mt} {OPT['st']}", "st")

    def h_half(tA, kbl, half):
        set_kb(S_T + 2, 7, kbl)
        for mp in range(2):
            mish_group(acc(tA, 2 * mp), acc(tA, 2 * mp + 1), split=True)
            for mt in (2 * mp, 2 * mp + 1):
                a.vmem(f"buffer_store_dwordx2 {vr(acc(tA, mt), 2)}, v{V_L16}, {WS}, s{S_T + 2} offen offset:{1024 * mt + 8 * half} {OPT['st']}", "st")

    if typ == 1:
        for hd in range(2):
            set_kb(S_T + 2, 2, 112 + hd)
            for mt in range(4):
                phi_group(acc(2 * hd, mt), acc(2 * hd + 1, mt))
                a.vmem(f"buffer_store_dwordx4 {vr(acc(2 * hd, mt))}, v{V_L16}, {WS}, s{S_T + 2} offen offset:{1024 * mt} {OPT['st']}", "st")
        h_half(4, 2, 1)
        for j in range(4):
            h_full(5 + 2 * j, 3 + j)
        fin()
        return

    ONES = V_T + 16
    for r in range(4):
        e(f"v_mov_b32 v{ONES + r}, 0x3f803f80")
    for t in range(4):
        for pr in range(2):
            phi_group(acc(t, 2 * pr), acc(t, 2 * pr + 1))
    for t in range(4, 8):
        for pr in range(2):
            cvt_group(acc(t, 2 * pr), acc(t, 2 * pr + 1))
    e("s_nop 1")
    free = [acc(t, m) for t in range(8) for m in (1, 3)]

    def Dt(tau):
        return free[tau]
    for pr in range(2):
        for hd in range(2):
            for dt in range(2):
                for et in range(3):
                    tau = hd * 6 + dt * 3 + et
                    Aop = vr(acc(2 * hd + dt, 2 * pr))
                    Bop = vr(acc(4 + 2 * hd + et, 2 * pr)) if et < 2 else vr(ONES)
                    C = "0" if pr == 0 else vr(Dt(tau))
                    e(f"v_mfma_f32_16x16x32_bf16 {vr(Dt(tau))}, {Aop}, {Bop}, {C}")
    vw, vrd = V_T + 20, V_T + 21
    e(f"v_add_u32 v{vw}, s{S_M0A}, v{V_L16}")
    e(f"s_mul_i32 s{S_T}, s{S_WAVE}, 3072")
    e(f"s_add_u32 s{S_T}, s{S_T}, {K1_ABASE}")
    e(f"v_add_u32 v{vrd}, s{S_T}, v{V_L16}")
    e("s_nop 7")
    for tau in range(12):
        e(f"ds_write_b128 v{vw}, {vr(Dt(tau))} offset:{1024 * tau}")
    h_full(8, 0)
    e("s_waitcnt lgkmcnt(0)")
    e("s_barrier")
    R = [acc(t, m) for t in range(8) for m in (0, 2)]
    for w2 in range(4):
        for j in range(3):
            e(f"ds_read_b128 {vr(R[3 * w2 + j])}, v{vrd} offset:{16384 * w2 + 1024 * j}")
    h_full(10, 1)
    e(f"s_lshl_b32 s{S_T}, s{S_P}, 3")
    e(f"s_add_u32 s{S_T}, s{S_T}, s{S_RB}")
    e(f"s_mul_i32 s{S_T}, s{S_T}, 12288")
    e(f"s_mul_i32 s{S_T + 1}, s{S_WAVE}, 3072")
    e(f"s_add_u32 s{S_T}, s{S_T}, s{S_T + 1}")
    e(f"s_add_u32 s{S_T}, s{S_T}, {KVP_OFF}")
    e("s_waitcnt lgkmcnt(0)")
    for j in range(3):
        for h2 in range(2):
            b0 = R[j] + 2 * h2
            e(f"v_pk_add_f32 {vr(b0, 2)}, {vr(b0, 2)}, {vr(R[3 + j] + 2 * h2, 2)}")
            e(f"v_pk_add_f32 {vr(R[6 + j] + 2 * h2, 2)}, {vr(R[6 + j] + 2 * h2, 2)}, {vr(R[9 + j] + 2 * h2, 2)}")
        for h2 in range(2):
            b0 = R[j] + 2 * h2
            e(f"v_pk_add_f32 {vr(b0, 2)}, {vr(b0, 2)}, {vr(R[6 + j] + 2 * h2, 2)}")
        a.vmem(f"buffer_store_dwordx4 {vr(R[j])}, v{V_L16}, {WS}, s{S_T} offen offset:{1024 * j}", "kvp")
    h_half(12, 2, 0)
    fin()


def gen_k1():
    a = Asm()
    e = a.e
    a.lines.append(".globl k1_kernel\n.p2align 8\n.type k1_kernel,@function\nk1_kernel:")
    if OPT.get('spin'):
        stamp(a, 0)
    e("s_cmp_ge_u32 s2, 256")
    e("s_cbranch_scc1 L_k1_exit")
    e(f"s_load_dwordx16 s[{S_PTR}:{S_PTR + 15}], s[0:1], 0")
    e(f"s_load_dwordx4 s[{S_PTR + 16}:{S_PTR + 19}], s[0:1], 64")
    e(f"s_load_dwordx2 s[{S_PTR + 20}:{S_PTR + 21}], s[0:1], 80")
    e(f"v_and_b32 v{V_LANE}, 63, v0")
    e(f"v_lshrrev_b32 v{V_T}, 6, v0")
    e(f"s_and_b32 s{S_T}, s2, 7")
    e(f"v_readfirstlane_b32 s{S_WAVE}, v{V_T}")
    e(f"s_lshr_b32 s{S_T + 1}, s2, 3")
    if OPT.get('map1', 0) == 0:
        e(f"s_and_b32 s{S_RB}, s{S_T}, 1")
        e(f"s_lshl_b32 s{S_RB}, s{S_RB}, 2")
        e(f"s_and_b32 s{S_T + 2}, s{S_T + 1}, 3")
        e(f"s_add_u32 s{S_RB}, s{S_RB}, s{S_T + 2}")
        e(f"s_lshr_b32 s{S_T}, s{S_T}, 1")
        e(f"s_lshl_b32 s{S_T}, s{S_T}, 3")
        e(f"s_lshr_b32 s{S_T + 1}, s{S_T + 1}, 2")
        e(f"s_add_u32 s{S_T}, s{S_T}, s{S_T + 1}")
    elif OPT['map1'] == 1:
        e(f"s_and_b32 s{S_RB}, s{S_T + 1}, 7")
        e(f"s_lshl_b32 s{S_T}, s{S_T}, 2")
        e(f"s_lshr_b32 s{S_T + 1}, s{S_T + 1}, 3")
        e(f"s_add_u32 s{S_T}, s{S_T}, s{S_T + 1}")
    else:
        e(f"s_and_b32 s{S_RB}, s{S_T}, 3")
        e(f"s_lshl_b32 s{S_RB}, s{S_RB}, 1")
        e(f"s_and_b32 s{S_T + 2}, s{S_T + 1}, 1")
        e(f"s_add_u32 s{S_RB}, s{S_RB}, s{S_T + 2}")
        e(f"s_lshr_b32 s{S_T}, s{S_T}, 2")
        e(f"s_lshl_b32 s{S_T}, s{S_T}, 4")
        e(f"s_lshr_b32 s{S_T + 1}, s{S_T + 1}, 1")
        e(f"s_add_u32 s{S_T}, s{S_T}, s{S_T + 1}")
    e(f"s_lshr_b32 s{S_P}, s{S_T}, 1")
    e(f"s_and_b32 s{S_T + 3}, s{S_T}, 1")
    e(f"s_cmp_lg_u32 s{S_T + 3}, 0")
    e("s_cbranch_scc1 L_k1_typeB")
    k1_body(a, 0)
    a.label("L_k1_typeB")
    a.vm = []
    k1_body(a, 1)
    a.label("L_k1_exit")
    e("s_endpgm")
    return a.lines


def K2_LDS():
    return OPT['S'] * 32768 + 24576


def fold_loops(a, iters, period, scnt, name):
    n = len(iters)
    i = 0
    lab = 0
    while i < n:
        reps = 1
        while i + (reps + 1) * period <= n and all(
                iters[i + k] == iters[i + reps * period + k] for k in range(period)):
            reps += 1
        if reps >= 2:
            a.e(f"s_mov_b32 s{scnt}, {reps}")
            a.label(f"L_{name}_{lab}")
            for k in range(period):
                a.lines += iters[i + k]
            a.e(f"s_sub_u32 s{scnt}, s{scnt}, 1")
            a.e(f"s_cmp_lg_u32 s{scnt}, 0")
            a.e(f"s_cbranch_scc1 L_{name}_{lab}")
            lab += 1
            i += reps * period
        else:
            a.lines += iters[i]
            i += 1


def schedule(a, mf, streams):
    n = len(mf)
    placed = []
    for si, (items, start, end) in enumerate(streams):
        m = len(items)
        prev = 0
        for j, it in enumerate(items):
            fn, early = it if isinstance(it, tuple) else (it, 0)
            pos = start + (j * (end - start)) / max(m, 1)
            pos = max(pos, early, prev)
            prev = pos
            placed.append((pos, si, j, fn))
    placed.sort(key=lambda x: (x[0], x[1], x[2]))
    k = 0
    if n == 0:
        for p in placed:
            p[3]()
        return
    for i in range(n):
        a.e(mf[i])
        while k < len(placed) and placed[k][0] < i + 1:
            placed[k][3]()
            k += 1
    while k < len(placed):
        placed[k][3]()
        k += 1


def gen_k2():
    a = Asm()
    e = a.e
    S = OPT['S']
    n0 = OPT['n0']
    SLOT = 32768
    PBF = OPT['pbf']
    SW2, SWO, SWS, SOUT, SDBG = 4, 8, 12, 16, 20
    SWAVE, SMT, SNT, STILE, SROLE = 24, 25, 26, 27, 28
    SOA, SOB, SOKV, SOP, SM0A, SM0B, SCNT, SRED, SW8 = 29, 30, 31, 32, 33, 34, 35, 58, 59
    SP = 36
    ST = 60
    NBASE = (S + 1) // 2
    VL = 1
    VL16 = 2
    VT = 4
    VG = 14
    VOMG = 18
    VAR = 22
    VBR = 25
    AC = 64
    VBD = 22
    VAD = 26
    VAW = 27
    VFL = 30
    VEPS = 32
    VR = 36
    VOF = 40
    VD = 64
    VP = 64

    def acc2(mt, nt):
        return AC + 16 * mt + 4 * nt

    def FA(j, b, mt):
        return 64 * (j % 2) + 32 * b + 4 * mt

    def FB(j, b, nt):
        return 64 * (j % 2) + 32 * b + 16 + 4 * nt

    def PQ(j, i):
        return 28 * (j % 4) + 4 * i

    def KV(j, i):
        return 28 * (j % 4) + 16 + 4 * i

    a.lines.append(".globl k2_kernel\n.p2align 8\n.type k2_kernel,@function\nk2_kernel:")
    if OPT.get('spin'):
        stamp(a, 0)
    e("s_cmp_ge_u32 s2, 256")
    e("s_cbranch_scc1 L_k2_exit")
    e(f"s_load_dwordx16 s[{SP}:{SP + 15}], s[0:1], 0")
    e(f"s_load_dwordx4 s[{SP + 16}:{SP + 19}], s[0:1], 64")
    e(f"s_load_dwordx2 s[{SP + 20}:{SP + 21}], s[0:1], 80")
    e(f"v_and_b32 v{VL}, 63, v0")
    e(f"v_lshrrev_b32 v{VT}, 6, v0")
    e(f"s_and_b32 s{ST}, s2, 7")
    e(f"v_readfirstlane_b32 s{SW8}, v{VT}")
    e(f"s_lshr_b32 s{ST + 1}, s2, 3")
    if OPT['map'] == 0:
        e(f"s_and_b32 s{SROLE}, s{ST}, 1")
        e(f"s_lshr_b32 s{ST}, s{ST}, 1")
        e(f"s_and_b32 s{SMT}, s{ST}, 1")
        e(f"s_lshl_b32 s{SMT}, s{SMT}, 3")
        e(f"s_and_b32 s{ST + 2}, s{ST + 1}, 7")
        e(f"s_add_u32 s{SMT}, s{SMT}, s{ST + 2}")
        e(f"s_lshr_b32 s{SNT}, s{ST}, 1")
        e(f"s_lshl_b32 s{SNT}, s{SNT}, 2")
        e(f"s_lshr_b32 s{ST + 1}, s{ST + 1}, 3")
        e(f"s_add_u32 s{SNT}, s{SNT}, s{ST + 1}")
    elif OPT['map'] == 2:
        e(f"s_and_b32 s{SROLE}, s{ST}, 1")
        e(f"s_lshr_b32 s{ST}, s{ST}, 1")
        e(f"s_lshl_b32 s{SMT}, s{ST}, 2")
        e(f"s_and_b32 s{ST + 2}, s{ST + 1}, 3")
        e(f"s_add_u32 s{SMT}, s{SMT}, s{ST + 2}")
        e(f"s_lshr_b32 s{SNT}, s{ST + 1}, 2")
    elif OPT['map'] == 3:
        e(f"s_and_b32 s{SROLE}, s{ST}, 1")
        e(f"s_lshr_b32 s{ST}, s{ST}, 1")
        e(f"s_and_b32 s{SMT}, s{ST + 1}, 15")
        e(f"s_lshl_b32 s{SNT}, s{ST}, 1")
        e(f"s_lshr_b32 s{ST + 1}, s{ST + 1}, 4")
        e(f"s_add_u32 s{SNT}, s{SNT}, s{ST + 1}")
    else:
        e(f"s_and_b32 s{SROLE}, s{ST + 1}, 1")
        e(f"s_lshr_b32 s{ST + 1}, s{ST + 1}, 1")
        e(f"s_and_b32 s{SMT}, s{ST}, 3")
        e(f"s_lshl_b32 s{SMT}, s{SMT}, 2")
        e(f"s_and_b32 s{ST + 2}, s{ST + 1}, 3")
        e(f"s_add_u32 s{SMT}, s{SMT}, s{ST + 2}")
        e(f"s_lshr_b32 s{SNT}, s{ST}, 2")
        e(f"s_lshl_b32 s{SNT}, s{SNT}, 2")
        e(f"s_lshr_b32 s{ST + 1}, s{ST + 1}, 2")
        e(f"s_add_u32 s{SNT}, s{SNT}, s{ST + 1}")
    e(f"s_and_b32 s{SWAVE}, s{SW8}, 3")
    e(f"s_lshl_b32 s{STILE}, s{SMT}, 3")
    e(f"s_add_u32 s{STILE}, s{STILE}, s{SNT}")
    vi, vG, t0, t1, t2, t3 = VT, VT + 1, VT + 2, VT + 3, VT + 4, VT + 5
    e(f"v_and_b32 v{vi}, 15, v{VL}")
    e(f"v_lshrrev_b32 v{vG}, 4, v{VL}")
    e(f"v_lshlrev_b32 v{VL16}, 4, v{VL}")
    WS = f"s[{SWS}:{SWS + 3}]"
    DBG = f"s[{SDBG}:{SDBG + 3}]"
    PSZ = 8192 if PBF else 16384
    e(f"s_cmp_lt_u32 s{SW8}, 4")
    e(f"s_cbranch_scc1 L_k2_cons")

    def load_g():
        e(f"v_lshlrev_b32 v{t0}, 2, v{vi}")
        e(f"s_lshl_b32 s{ST}, s{SMT}, 9")
        e(f"s_and_b32 s{ST + 1}, s{SWAVE}, 1")
        e(f"s_lshl_b32 s{ST + 1}, s{ST + 1}, 8")
        e(f"s_add_u32 s{ST}, s{ST}, s{ST + 1}")
        e(f"s_add_u32 s{ST}, s{ST}, {G_OFF}")
        for i in range(4):
            a.vmem(f"buffer_load_dword v{VG + i}, v{t0}, {WS}, s{ST} offen offset:{64 * i}", "g")

    def run_seq(fl):
        for fn in fl:
            n_ = len(a.lines)
            fn()
            if " m0," in a.lines[-1] and len(a.lines) == n_ + 1:
                e("s_nop 0")

    import math
    PERIOD = S * 4 // math.gcd(S, 4)

    if OPT['pprio']:
        e(f"s_setprio {OPT['pprio']}")
    e(f"s_lshl_b32 s{SM0A}, s{SWAVE}, 12")
    e(f"s_add_u32 s{SM0B}, s{SM0A}, 16384")
    e(f"v_add_u32 v{VAD}, s{SM0A}, v{VL16}")
    e(f"s_lshl_b32 s{ST + 2}, s{SNT}, 8")
    e(f"s_lshl_b32 s{ST + 3}, s{SWAVE}, 15")
    e(f"s_add_u32 s{ST + 2}, s{ST + 2}, s{ST + 3}")
    e(f"v_lshlrev_b32 v{t0}, 11, v{vG}")
    e(f"v_add_u32 v{t0}, s{ST + 2}, v{t0}")
    e(f"v_lshlrev_b32 v{t1}, 1, v{vG}")
    e(f"v_xor_b32 v{t1}, v{t1}, v{vi}")
    for j in range(4):
        if j & 1:
            e(f"v_xor_b32 v{t2}, 8, v{t1}")
            e(f"v_lshlrev_b32 v{t2}, 4, v{t2}")
        else:
            e(f"v_lshlrev_b32 v{t2}, 4, v{t1}")
        e(f"v_add_u32 v{t2}, v{t2}, v{t0}")
        e(f"v_add_u32 v{VBD + j}, {j * (8192 - 1024)}, v{t2}")
    e(f"s_mul_i32 s{SOA}, s{SMT}, {144 * 8192}")
    e(f"s_add_u32 s{SOP}, s{SOA}, {112 * 8192}")
    e(f"s_mov_b32 s{SOB}, 0")
    e("s_waitcnt lgkmcnt(0)")
    srd(a, SW2, SP + 12, SP + 13, 3584 * 1024 * 2)
    srd(a, SWS, SP + 20, SP + 21, WS_USED)
    srd(a, SWO, SP + 4, SP + 5, 1024 * 1024 * 2)
    srd(a, SDBG, SP + 18, SP + 19, 256)
    e(f"s_cmp_eq_u32 s{SROLE}, 0")
    e(f"s_cbranch_scc1 L_k2_prod0")

    def producer(role):
        R = f"p{role}"
        nact = n0 if role == 0 else 56 - n0
        N = nact if role == 0 else nact + 16
        SCR = S * SLOT
        if role == 1:
            e(f"s_add_u32 s{SOA}, s{SOA}, {n0 * 16384}")
            e(f"s_mov_b32 s{SOB}, {n0 * 131072}")

        def dmaA(j):
            f = []
            if j == nact:
                def sw():
                    e(f"s_lshl_b32 s{SOA}, s{SMT}, 18")
                    e(f"s_add_u32 s{SOA}, s{SOA}, {OF_OFF}")
                f.append(sw)
            fl = OPT['k2a'] if j < nact else "sc1"
            f.append(lambda: e(f"s_add_u32 m0, s{SM0A}, {(j % S) * SLOT}"))
            for i in range(4):
                f.append(lambda i=i: a.vmem(
                    f"buffer_load_dwordx4 v{VAD}, {WS}, s{SOA} offen offset:{1024 * i} {fl} lds", f"D{j}"))
            f.append(lambda: e(f"s_add_u32 s{SOA}, s{SOA}, 16384"))
            return f

        def dmaB(j):
            sr = SW2 if j < nact else SWO
            f = []
            if j == nact:
                f.append(lambda: e(f"s_mov_b32 s{SOB}, 0"))
            f.append(lambda: e(f"s_add_u32 m0, s{SM0B}, {(j % S) * SLOT}"))
            for i in range(4):
                f.append(lambda i=i: a.vmem(
                    f"buffer_load_dwordx4 v{VBD + i}, s[{sr}:{sr + 3}], s{SOB} offen offset:{1024 * i} {OPT['k2b']} lds", f"D{j}"))
            f.append(lambda: e(f"s_add_u32 s{SOB}, s{SOB}, 131072"))
            return f

        def dma_stage(j):
            return dmaA(j) + dmaB(j)

        for j in range(S - 1):
            run_seq(dma_stage(j))
        a.wait(["D0"])
        e("s_barrier")

        JP = N - OPT['pj']
        assert JP - (1 if PBF else 2) + S >= N and OPT['pj'] >= 1
        JO = nact - (S - 1)

        def interval(j):
            lg = False
            if role == 1 and j == JO - 3:
                e(f"s_lshl_b32 s{ST}, s{SMT}, 8")
                e(f"s_add_u32 s{ST}, s{ST}, {FLG_OFF}")
                e(f"v_mov_b32 v{VFL + 1}, s{ST}")
                a.vmem(f"buffer_load_dword v{VFL}, v{VFL + 1}, {WS}, 0 offen sc1", "F")
            if role == 1 and j == JO:
                a.wait(["F"])
                a.label("L_k2_kvwait")
                e(f"v_readfirstlane_b32 s{ST}, v{VFL}")
                e("s_nop 3")
                e(f"s_cmp_ge_u32 s{ST}, 64")
                e("s_cbranch_scc1 L_k2_kvok")
                e("s_sleep 8")
                e(f"buffer_load_dword v{VFL}, v{VFL + 1}, {WS}, 0 offen sc1")
                e("s_waitcnt vmcnt(0)")
                e("s_branch L_k2_kvwait")
                a.label("L_k2_kvok")
            if j + S - 1 < N:
                run_seq(dma_stage(j + S - 1))
            if role == 1 and j == JP:
                e(f"s_lshl_b32 s{ST}, s{STILE}, 8")
                e(f"s_add_u32 s{ST}, s{ST}, {FLG_OFF + 4096}")
                e(f"v_mov_b32 v{VFL + 1}, s{ST}")
                a.label("L_k2_pwait")
                e(f"buffer_load_dword v{VFL}, v{VFL + 1}, {WS}, 0 offen sc1")
                e("s_waitcnt vmcnt(0)")
                a.vm = []
                e(f"v_readfirstlane_b32 s{ST}, v{VFL}")
                e("s_nop 3")
                e(f"s_cmp_lg_u32 s{ST}, 0")
                e("s_cbranch_scc1 L_k2_pok")
                e("s_sleep 4")
                e("s_branch L_k2_pwait")
                a.label("L_k2_pok")
                e(f"s_lshl_b32 s{ST}, s{STILE}, 16")
                e(f"s_mul_i32 s{ST + 1}, s{SWAVE}, {PSZ}")
                e(f"s_add_u32 s{ST}, s{ST}, s{ST + 1}")
                e(f"s_add_u32 s{ST}, s{ST}, {PART_OFF}")
                ps = [(JP - 2) % S, (JP - 1) % S]
                if PBF:
                    e(f"s_add_u32 s{ST + 1}, s{ST + 1}, {ps[1] * SLOT}")
                else:
                    e(f"s_and_b32 s{ST + 1}, s{SWAVE}, 1")
                    e(f"s_lshl_b32 s{ST + 1}, s{ST + 1}, 14")
                    e(f"s_cmp_lt_u32 s{SWAVE}, 2")
                    e(f"s_mov_b32 s{ST + 3}, {ps[1] * SLOT}")
                    e(f"s_cselect_b32 s{ST + 2}, {ps[0] * SLOT}, s{ST + 3}")
                    e(f"s_add_u32 s{ST + 1}, s{ST + 1}, s{ST + 2}")
                for q in range(PSZ // 1024):
                    if q & 3 == 0:
                        e(f"s_add_u32 m0, s{ST + 1}, {1024 * q}")
                        e("s_nop 0")
                    a.vmem(f"buffer_load_dwordx4 v{VL16}, {WS}, s{ST} offen offset:{1024 * (q & 3)} sc1 lds", "PT")
                    if q & 3 == 3:
                        e(f"s_add_u32 s{ST}, s{ST}, 4096")
            if j + 1 < N:
                a.wait([f"D{j + 1}"], lgkm=lg)
                e("s_barrier")

        iters = []
        for j in range(N):
            n_ = len(a.lines)
            interval(j)
            iters.append(a.lines[n_:])
            del a.lines[n_:]
        fold_loops(a, iters, PERIOD, SCNT, f"k2{R}")
        if role == 1:
            e("s_waitcnt vmcnt(0)")
            e("s_barrier")
        e("s_endpgm")

    producer(1)
    a.label("L_k2_prod0")
    a.vm = []
    producer(0)

    a.label("L_k2_cons")
    a.vm = []
    if OPT['cprio']:
        e(f"s_setprio {OPT['cprio']}")
    SCR = S * SLOT
    CG = 40
    CR = 44
    CKV = 48
    CEPS = 60
    CW = 38
    SHD, SM2 = SOKV, SRED
    e(f"s_and_b32 s{SHD}, s2, 31")
    e(f"s_lshr_b32 s{SM2}, s2, 5")
    e(f"s_lshl_b32 s{SM2}, s{SM2}, 1")
    e(f"s_lshr_b32 s{ST}, s{SWAVE}, 1")
    e(f"s_add_u32 s{SM2}, s{SM2}, s{ST}")
    e(f"s_lshr_b32 s{ST}, s{SHD}, 1")
    e(f"s_lshl_b32 s{ST}, s{ST}, 3")
    e(f"s_lshl_b32 s{ST + 1}, s{SWAVE}, 1")
    e(f"s_add_u32 s{ST}, s{ST}, s{ST + 1}")
    e(f"s_mul_i32 s{ST}, s{ST}, 12")
    e(f"s_and_b32 s{ST + 1}, s{SHD}, 1")
    e(f"s_mul_i32 s{ST + 1}, s{ST + 1}, 6")
    e(f"s_add_u32 s{ST}, s{ST}, s{ST + 1}")
    e(f"s_lshl_b32 s{ST}, s{ST}, 10")
    e(f"s_add_u32 s{ST}, s{ST}, {KVP_OFF}")
    e("s_waitcnt lgkmcnt(0)")
    srd(a, SWS, SP + 20, SP + 21, WS_USED)
    for r2 in range(2):
        for t6 in range(6):
            if t6 == 3:
                e(f"s_add_u32 s{ST}, s{ST}, 3072")
            a.vmem(f"buffer_load_dwordx4 {vr(VP + 24 * r2 + 4 * t6)}, v{VL16}, {WS}, s{ST} offen offset:{1024 * (t6 % 3)}", "kvp")
        if r2 == 0:
            e(f"s_add_u32 s{ST}, s{ST}, {12288 - 3072}")
    e(f"s_mul_i32 s{ST}, s{SM2}, 144")
    e(f"s_add_u32 s{ST}, s{ST}, s{SHD}")
    e(f"s_add_u32 s{ST}, s{ST}, 112")
    e(f"s_lshl_b32 s{ST}, s{ST}, 13")
    e(f"s_and_b32 s{ST + 1}, s{SWAVE}, 1")
    e(f"s_lshl_b32 s{ST + 1}, s{ST + 1}, 12")
    e(f"s_add_u32 s{ST}, s{ST}, s{ST + 1}")
    for i in range(4):
        a.vmem(f"buffer_load_dwordx4 {ar(64 + 4 * i)}, v{VL16}, {WS}, s{ST} offen offset:{1024 * i}", "pq")
    e(f"s_lshl_b32 s{SOP}, s{SM2}, 5")
    e(f"s_add_u32 s{SOP}, s{SOP}, s{SHD}")
    e(f"s_lshl_b32 s{SOP}, s{SOP}, 13")
    e(f"s_add_u32 s{SOP}, s{SOP}, s{ST + 1}")
    e(f"s_add_u32 s{SOP}, s{SOP}, {OF_OFF}")
    e(f"v_lshlrev_b32 v{t0}, 2, v{vi}")
    e(f"s_lshl_b32 s{ST}, s{SM2}, 9")
    e(f"s_lshr_b32 s{ST + 1}, s{ST + 1}, 4")
    e(f"s_add_u32 s{ST}, s{ST}, s{ST + 1}")
    e(f"s_add_u32 s{ST}, s{ST}, {G_OFF}")
    for i in range(4):
        a.vmem(f"buffer_load_dword v{CG + i}, v{t0}, {WS}, s{ST} offen offset:{64 * i}", "pq")
    load_g()
    srd(a, SOUT, SP + 16, SP + 17, 2048 * 1024 * 2)
    for r in range(4):
        e(f"v_mov_b32 v{CEPS + r}, {EPS_HEX}")
    e(f"s_mul_i32 s{ST}, s{SWAVE}, 6144")
    e(f"s_add_u32 s{ST}, s{ST}, {SCR}")
    e(f"v_add_u32 v{CW}, s{ST}, v{VL16}")
    e(f"v_add_u32 v{CW + 1}, {SCR}, v{VL16}")
    e(f"s_and_b32 s{ST}, s{SWAVE}, 1")
    e(f"s_lshl_b32 s{ST}, s{ST}, 12")
    e(f"v_add_u32 v{VAR}, s{ST}, v{VL16}")
    for k in range(1, NBASE):
        e(f"v_add_u32 v{VAR + k}, {65536 * k}, v{VAR}")
    e(f"v_lshlrev_b32 v{t0}, 2, v{vG}")
    e(f"v_lshrrev_b32 v{t1}, 2, v{vi}")
    e(f"v_add_u32 v{t0}, v{t0}, v{t1}")
    e(f"v_and_b32 v{t1}, 7, v{t0}")
    e(f"s_lshr_b32 s{ST}, s{SWAVE}, 1")
    e(f"s_lshl_b32 s{ST}, s{ST}, 2")
    e(f"v_xor_b32 v{t1}, s{ST}, v{t1}")
    e(f"v_lshlrev_b32 v{t0}, 8, v{t0}")
    e(f"v_and_b32 v{t2}, 3, v{vi}")
    e(f"v_lshlrev_b32 v{t2}, 3, v{t2}")
    e(f"v_add_u32 v{t0}, v{t0}, v{t2}")
    e(f"v_add_u32 v{t0}, 16384, v{t0}")
    for nt in range(4):
        e(f"v_xor_b32 v{t3}, {nt}, v{t1}")
        e(f"v_lshlrev_b32 v{t3}, 5, v{t3}")
        e(f"v_add_u32 v{VBR + nt}, v{t0}, v{t3}")
        for k in range(1, NBASE):
            e(f"v_add_u32 v{VBR + 4 * k + nt}, {65536 * k}, v{VBR + nt}")
    e(f"s_cmp_eq_u32 s{SROLE}, 0")
    e(f"s_cbranch_scc1 L_k2_cons0")

    def consumer(role):
        R = f"c{role}"
        nact = n0 if role == 0 else 56 - n0
        N = nact if role == 0 else nact + 16
        if not OPT.get('spin'):
            stamp(a, 0)
        a.wait(["kvp"])
        for q in range(12):
            e(f"v_pk_add_f32 {vr(VP + 2 * q, 2)}, {vr(VP + 2 * q, 2)}, {vr(VP + 24 + 2 * q, 2)}")
        for t6 in range(6):
            e(f"ds_write_b128 v{CW}, {vr(VP + 4 * t6)} offset:{1024 * t6}")
        e("s_waitcnt lgkmcnt(0)")
        stamp(a, 1)
        e("s_barrier")
        stamp(a, 2)

        def produce():
            for dt in range(2):
                for w2 in range(4):
                    for et in range(3):
                        e(f"ds_read_b128 {vr(VP + 12 * w2 + 4 * et)}, v{CW + 1} offset:{6144 * w2 + 1024 * (3 * dt + et)}")
                if dt == 0:
                    for fn in reads(0):
                        fn()
                e("s_waitcnt lgkmcnt(0)")
                for q in range(6):
                    e(f"v_pk_add_f32 {vr(VP + 2 * q, 2)}, {vr(VP + 2 * q, 2)}, {vr(VP + 12 + 2 * q, 2)}")
                    e(f"v_pk_add_f32 {vr(VP + 24 + 2 * q, 2)}, {vr(VP + 24 + 2 * q, 2)}, {vr(VP + 36 + 2 * q, 2)}")
                for q in range(6):
                    e(f"v_pk_add_f32 {vr(VP + 2 * q, 2)}, {vr(VP + 2 * q, 2)}, {vr(VP + 24 + 2 * q, 2)}")
                for et in range(3):
                    for h2 in range(2):
                        e(f"v_cvt_pk_bf16_f32 v{CKV + 4 * et + 2 * dt + h2}, v{VP + 4 * et + 2 * h2}, v{VP + 4 * et + 2 * h2 + 1}")
            a.wait(["pq", "g"])
            e("s_nop 1")
            for i in range(4):
                d = VD + 12 * i
                pq = ar(64 + 4 * i)
                e(f"v_mfma_f32_16x16x32_bf16 {vr(d + 8)}, {vr(CKV + 8)}, {pq}, {vr(CEPS)}")
                e(f"v_mfma_f32_16x16x32_bf16 {vr(d)}, {vr(CKV)}, {pq}, 0")
                e(f"v_mfma_f32_16x16x32_bf16 {vr(d + 4)}, {vr(CKV + 4)}, {pq}, 0")
            for i in range(4):
                e(f"v_sub_f32 v{VOMG + i}, 1.0, v{VG + i}")
            e("s_nop 3")
            for i in range(4):
                e(f"v_rcp_f32 v{CR + i}, v{VD + 12 * i + 8}")
            e("s_nop 0")
            for i in range(4):
                e(f"v_mul_f32 v{CR + i}, v{CR + i}, v{CG + i}")
            for i in range(4):
                d = VD + 12 * i
                sel = "op_sel:[0,1] op_sel_hi:[1,1]" if i & 1 else "op_sel_hi:[1,0]"
                for q in range(4):
                    e(f"v_pk_mul_f32 {vr(d + 2 * q, 2)}, {vr(d + 2 * q, 2)}, {vr(CR + (i & 2), 2)} {sel}")
                o = 112 + 4 * i
                for q in range(4):
                    e(f"v_cvt_pk_bf16_f32 v{o + q}, v{d + 2 * q}, v{d + 2 * q + 1}")
                a.vmem(f"buffer_store_dwordx4 {vr(o)}, v{VL16}, {WS}, s{SOP} offen offset:{1024 * i} sc1", "ost")

        def reads(j):
            sl = j % S
            k, so = sl // 2, (sl % 2) * SLOT
            f = []
            for q in range(4):
                for b in range(2):
                    f.append(lambda b=b, q=q: e(
                        f"ds_read_b128 {ar(FA(j, b, q))}, v{VAR + k} offset:{so + 8192 * b + 1024 * q}"))
                    for ins in range(2):
                        f.append(lambda b=b, q=q, ins=ins: e(
                            f"ds_read_b64_tr_b16 {ar(FB(j, b, q) + 2 * ins, 2)}, v{VBR + 4 * k + q} offset:{so + 8192 * b + 4096 * ins}"))
            return f

        def interval(j):
            main = []
            if j >= 1:
                for mt in range(4):
                    for nt in range(4):
                        D = vr(acc2(mt, nt))
                        for b in range(2):
                            C = "0" if (j == 1 and b == 0) else D
                            main.append(f"v_mfma_f32_16x16x32_bf16 {D}, {ar(FB(j - 1, b, nt))}, {ar(FA(j - 1, b, mt))}, {C}")
            rd = reads(j) if j < N else []
            if j == 0:
                produce()
                rd = []
            if j == 5:
                a.wait(["ost"])
                e(f"s_lshl_b32 s{ST}, s{SM2}, 8")
                e(f"s_add_u32 s{ST}, s{ST}, {FLG_OFF}")
                e(f"v_mov_b32 v{CW}, 1")
                e(f"v_mov_b32 v{CW + 1}, s{ST}")
                e("s_mov_b64 exec, 1")
                e(f"buffer_atomic_add v{CW}, v{CW + 1}, {WS}, 0 offen")
                e("s_mov_b64 exec, -1")
            if role == 1 and j == nact + 1:
                e("s_nop 7")
                for mt in range(4):
                    for q in range(16):
                        b0 = acc2(mt, 0) + q
                        e(f"v_mul_f32 v{b0}, v{VOMG + mt}, v{b0}")
                e("s_nop 1")
            schedule(a, main, [(rd, 0, OPT['rdend'])])
            if j < N:
                e("s_waitcnt lgkmcnt(0)")
                if j + 1 < N:
                    e("s_barrier")

        iters = []
        for j in range(N + 1):
            n_ = len(a.lines)
            if j == 4:
                stamp(a, 3)
            if role == 1 and j == nact:
                stamp(a, 4)
            interval(j)
            iters.append(a.lines[n_:])
            del a.lines[n_:]
        fold_loops(a, iters, PERIOD, SCNT, f"k2{R}")
        if role == 0:
            stamp(a, 4)
        stamp(a, 5)
        if role == 0:
            e(f"s_lshl_b32 s{ST}, s{STILE}, 16")
            e(f"s_mul_i32 s{ST + 1}, s{SWAVE}, {PSZ}")
            e(f"s_add_u32 s{ST}, s{ST}, s{ST + 1}")
            e(f"s_add_u32 s{ST}, s{ST}, {PART_OFF}")
            e("s_nop 7")
            if PBF:
                for q in range(8):
                    b0 = AC + 8 * q
                    for r in range(4):
                        e(f"v_cvt_pk_bf16_f32 v{b0 + r}, v{b0 + 2 * r}, v{b0 + 2 * r + 1}")
                    e(f"buffer_store_dwordx4 {vr(b0)}, v{VL16}, {WS}, s{ST} offen offset:{1024 * (q & 3)} sc1")
                    if q & 3 == 3:
                        e(f"s_add_u32 s{ST}, s{ST}, 4096")
            else:
                for q in range(16):
                    e(f"buffer_store_dwordx4 {vr(AC + 4 * q)}, v{VL16}, {WS}, s{ST} offen offset:{1024 * (q & 3)} sc1")
                    if q & 3 == 3:
                        e(f"s_add_u32 s{ST}, s{ST}, 4096")
            e(f"s_lshl_b32 s{ST}, s{STILE}, 8")
            e(f"s_add_u32 s{ST}, s{ST}, {FLG_OFF + 4096}")
            e(f"v_mov_b32 v{VT + 1}, s{ST}")
            e(f"v_mov_b32 v{VT}, 1")
            e("s_waitcnt vmcnt(0)")
            e("s_barrier")
            stamp(a, 6)
            e(f"s_cmp_lg_u32 s{SWAVE}, 0")
            e(f"s_cbranch_scc1 L_k2_p0end")
            e("s_mov_b64 exec, 1")
            e(f"buffer_store_dword v{VT}, v{VT + 1}, {WS}, 0 offen sc1")
            e("s_mov_b64 exec, -1")
            a.label("L_k2_p0end")
        else:
            JP = N - OPT['pj']
            ps = [(JP - 2) % S, (JP - 1) % S]
            vo, vpr = VT + 6, VT + 7
            e(f"v_and_b32 v{t2}, 15, v{VL}")
            e(f"v_lshlrev_b32 v{t2}, 11, v{t2}")
            e(f"v_bfe_u32 v{t3}, v{VL}, 4, 1")
            e(f"v_lshlrev_b32 v{t3}, 5, v{t3}")
            e(f"v_add_u32 v{t2}, v{t2}, v{t3}")
            e(f"v_lshrrev_b32 v{t3}, 5, v{VL}")
            e(f"v_lshlrev_b32 v{t3}, 4, v{t3}")
            e(f"v_add_u32 v{vo}, v{t2}, v{t3}")
            if PBF:
                e(f"s_mul_i32 s{ST + 1}, s{SWAVE}, {PSZ}")
                e(f"s_add_u32 s{ST + 1}, s{ST + 1}, {ps[1] * SLOT}")
            else:
                e(f"s_and_b32 s{ST + 1}, s{SWAVE}, 1")
                e(f"s_lshl_b32 s{ST + 1}, s{ST + 1}, 14")
                e(f"s_cmp_lt_u32 s{SWAVE}, 2")
                e(f"s_mov_b32 s{ST + 3}, {ps[1] * SLOT}")
                e(f"s_cselect_b32 s{ST + 2}, {ps[0] * SLOT}, s{ST + 3}")
                e(f"s_add_u32 s{ST + 1}, s{ST + 1}, s{ST + 2}")
            e(f"v_add_u32 v{vpr}, s{ST + 1}, v{VL16}")
            e(f"s_lshl_b32 s{ST}, s{SMT}, 7")
            e(f"s_and_b32 s{ST + 1}, s{SWAVE}, 1")
            e(f"s_lshl_b32 s{ST + 1}, s{ST + 1}, 6")
            e(f"s_add_u32 s{ST}, s{ST}, s{ST + 1}")
            e(f"s_lshl_b32 s{ST}, s{ST}, 11")
            e(f"s_lshl_b32 s{ST + 1}, s{SNT}, 8")
            e(f"s_add_u32 s{ST}, s{ST}, s{ST + 1}")
            e(f"s_lshr_b32 s{ST + 1}, s{SWAVE}, 1")
            e(f"s_lshl_b32 s{ST + 1}, s{ST + 1}, 7")
            e(f"s_add_u32 s{ST}, s{ST}, s{ST + 1}")
            e("s_barrier")
            PT = 24
            for mh2 in range(2):
                if PBF:
                    for q in range(4):
                        e(f"ds_read_b128 {vr(PT + 4 * q)}, v{vpr} offset:{1024 * (4 * mh2 + q)}")
                else:
                    for q in range(8):
                        e(f"ds_read_b128 {vr(PT + 4 * q)}, v{vpr} offset:{1024 * (8 * mh2 + q)}")
                e("s_waitcnt lgkmcnt(0)")
                for m2 in range(2):
                    mt = 2 * mh2 + m2
                    if PBF:
                        for q in range(8):
                            b0 = acc2(mt, 0) + 2 * q
                            p0 = PT + 8 * m2 + q
                            e(f"v_lshlrev_b32 v{PT + 16}, 16, v{p0}")
                            e(f"v_and_b32 v{PT + 17}, 0xffff0000, v{p0}")
                            e(f"v_fmac_f32 v{b0}, v{VOMG + mt}, v{PT + 16}")
                            e(f"v_fmac_f32 v{b0 + 1}, v{VOMG + mt}, v{PT + 17}")
                    else:
                        sel = "op_sel:[1,0,0] op_sel_hi:[1,1,1]" if mt & 1 else "op_sel_hi:[0,1,1]"
                        for q in range(8):
                            b0 = acc2(mt, 0) + 2 * q
                            p0 = PT + 16 * m2 + 2 * q
                            e(f"v_pk_fma_f32 {vr(b0, 2)}, {vr(VOMG + (mt & 2), 2)}, {vr(p0, 2)}, {vr(b0, 2)} {sel}")
                    for pr in range(2):
                        b0 = acc2(mt, 2 * pr)
                        for q in range(4):
                            e(f"v_cvt_pk_bf16_f32 v{b0 + q}, v{b0 + 2 * q}, v{b0 + 2 * q + 1}")
                    e("s_nop 1")
                    for pr in range(2):
                        b0 = acc2(mt, 2 * pr)
                        e(f"v_permlane16_swap_b32 v{b0}, v{b0 + 2}")
                        e(f"v_permlane16_swap_b32 v{b0 + 1}, v{b0 + 3}")
                    for pr in range(2):
                        b0 = acc2(mt, 2 * pr)
                        e(f"buffer_store_dwordx4 {vr(b0)}, v{vo}, s[{SOUT}:{SOUT + 3}], s{ST} offen offset:{64 * pr}")
                    if mt < 3:
                        e(f"s_add_u32 s{ST}, s{ST}, 32768")
            stamp(a, 6)
        if DIAG:
            e("s_waitcnt vmcnt(0)")
        stamp(a, 7)
        stamp_dump(a, 1, 8, SWAVE, SP + 20, SP + 21, VT + 8)
        e("s_endpgm")

    vm_save = list(a.vm)
    consumer(1)
    a.label("L_k2_cons0")
    a.vm = vm_save
    consumer(0)
    a.label("L_k2_exit")
    e("s_endpgm")
    a.label("L_code_end")
    return a.lines


def fix_hazards(lines):
    out = []
    for i, ln in enumerate(lines):
        out.append(ln)
        if " m0," in ln and i + 1 < len(lines) and lines[i + 1].rstrip().endswith("lds"):
            out.append("  s_nop 0")
    return out


def gen_spin():
    a = Asm()
    e = a.e
    spec = OPT['spin']
    A_, B_, M = spec.split(",")
    a.lines.append(".globl spin_kernel\n.p2align 8\n.type spin_kernel,@function\nspin_kernel:")
    e("s_cmp_lg_u32 s2, 0")
    e("s_cbranch_scc1 L_spin_end")
    e("s_load_dwordx2 s[4:5], s[0:1], 80")
    e("v_lshlrev_b32 v1, 7, v0")
    e("s_waitcnt lgkmcnt(0)")
    e("s_mov_b32 s8, s4\ns_and_b32 s9, s5, 0xffff\ns_mov_b32 s10, 0x4000000\ns_mov_b32 s11, 0x20000")

    def red(sp, sdst):
        k, st, op = sp.split(".")
        base = DIAG_OFF + int(k) * 0x100000 + 8 * int(st) + 4
        for i in range(16):
            e(f"s_mov_b32 s12, {base + i * 8192}")
            e(f"buffer_load_dword v{8 + i}, v1, s[8:11], s12 offen")
        e("s_waitcnt vmcnt(0)")
        for i in range(1, 16):
            e(f"v_{op}_u32 v8, v8, v{8 + i}")
        e("s_nop 1")
        e(f"v_readlane_b32 s{sdst}, v8, 0")
        for l in range(1, 64):
            e(f"v_readlane_b32 s13, v8, {l}")
            e("s_nop 0")
            e(f"s_{op}_u32 s{sdst}, s{sdst}, s13")
    red("0.0.min", 20)
    red(A_, 21)
    red(B_, 22)
    e("s_sub_u32 s22, s22, s21")
    e(f"s_mul_i32 s22, s22, {M}")
    e("s_add_u32 s22, s22, 12000")
    e("s_min_u32 s22, s22, 60000")
    a.label("L_spin")
    e("s_memrealtime s[14:15]")
    e("s_waitcnt lgkmcnt(0)")
    e("s_sub_u32 s16, s14, s20")
    e("s_cmp_lt_u32 s16, s22")
    e("s_cbranch_scc1 L_spin")
    a.label("L_spin_end")
    e("s_endpgm")
    return a.lines


def kd(name, nfv, accum):
    return f""".amdhsa_kernel {name}
  .amdhsa_next_free_vgpr {nfv}
  .amdhsa_next_free_sgpr 102
  .amdhsa_accum_offset {accum}
  .amdhsa_group_segment_fixed_size 0
  .amdhsa_kernarg_size 88
  .amdhsa_user_sgpr_count 2
  .amdhsa_user_sgpr_kernarg_segment_ptr 1
  .amdhsa_system_sgpr_workgroup_id_x 1
.end_amdhsa_kernel"""


def main(path):
    hdr = open(f"cdna_kernels/{NAME}.s.ref").read().split("; Override launch")[0]
    out = [hdr.rstrip("\n")]
    out.append(f"; @launch kernel=k1_kernel grid=(256,1,1) block=(256,1,1) lds={K1_LDS}")
    out.append(f"; @launch kernel=k2_kernel grid=(256,1,1) block=(512,1,1) lds={K2_LDS()}")
    if OPT.get('spin'):
        out.append("; @launch kernel=spin_kernel grid=(1,1,1) block=(64,1,1) lds=0")
    out.append('.amdgcn_target "amdgcn-amd-amdhsa--gfx950"')
    out.append(".text")
    out += fix_hazards(gen_k1())
    out += fix_hazards(gen_k2())
    if OPT.get('spin'):
        out += gen_spin()
    out.append('.section .rodata,"a"')
    if OPT.get('spin'):
        out.append(".p2align 6")
        out.append(kd("spin_kernel", 32, 32))
    out.append(".p2align 6")
    out.append(kd("k1_kernel", 256 + 152, 256))
    out.append(".p2align 6")
    out.append(kd("k2_kernel", 256, 128))
    open(path, "w").write("\n".join(out) + "\n")


if __name__ == "__main__":
    if "--dbgout" in sys.argv:
        DBGOUT = True
        sys.argv.remove("--dbgout")
    if "--diag" in sys.argv:
        DIAG = True
        sys.argv.remove("--diag")
    for arg in list(sys.argv):
        if "=" in arg:
            k_, v_ = arg.split("=")
            OPT[k_] = int(v_) if v_.isdigit() else v_.replace("+", " ")
            sys.argv.remove(arg)
    main(sys.argv[1] if len(sys.argv) > 1 else f"cdna_kernels/{NAME}.s")
```

```python
import sys

NAME = "gated_mix__linear_attn_block__dense_activation_mish__prompt"

AF_OFF = 0
AF_BYTES = 16 * 144 * 8 * 1024
KVP_OFF = AF_BYTES
KVP_BYTES = 16 * 8 * 12 * 1024
KVF_OFF = KVP_OFF + KVP_BYTES
KVF_BYTES = 32 * 3 * 1024
G_OFF = KVF_OFF + KVF_BYTES
PART_OFF = G_OFF + 8192
OF_OFF = PART_OFF + 128 * 65536
FLG_OFF = OF_OFF + 16 * 32 * 8192
FA_OFF = FLG_OFF
FQ_OFF = FA_OFF + 8192
FO_OFF = FQ_OFF + 8192
FP_OFF = FO_OFF + 8192
WS_USED = FP_OFF + 128 * 256
V_TOK = 14

DIAG = False
DBGOUT = False
OPT = dict(k1a="", k1b="", k2a="", k2b="", st="sc1", pf=3, xpf=1, n0=34, cpf=1, map=2, S=4, pbf=1, pj=2, pprio=0, cprio=0, rdend=26)
DIAG_OFF = 0x2000000
EPS_HEX = "0x358637bd"
L2E_HEX = "0x3fb8aa3b"


class Asm:
    def __init__(self):
        self.lines = []
        self.vm = []

    def e(self, s):
        for ln in s.split("\n"):
            self.lines.append("  " + ln.strip())

    def label(self, s):
        self.lines.append(s + ":")

    def vmem(self, s, tag):
        self.e(s)
        self.vm.append(tag)

    def mark(self, tag):
        self.vm.append("#" + tag)

    def vm_count(self, tags, drop=True):
        idx = -1
        for i, t in enumerate(self.vm):
            if t in tags:
                idx = i
        if idx < 0:
            return None
        n = sum(1 for t in self.vm[idx + 1:] if not t.startswith("#"))
        if drop:
            self.vm = self.vm[idx + 1:]
        assert n <= 63, n
        return n

    def wait(self, tags=(), lgkm=False):
        n = self.vm_count(tags) if tags else None
        parts = []
        if n is not None:
            parts.append(f"vmcnt({n})")
        if lgkm:
            parts.append("lgkmcnt(0)")
        if parts:
            self.e("s_waitcnt " + " ".join(parts))


def stamp(a, idx, sbase=80):
    if not DIAG:
        return
    a.e(f"s_memtime s[{sbase - 4}:{sbase - 3}]")
    a.e(f"s_memrealtime s[{sbase - 2}:{sbase - 1}]")
    a.e("s_waitcnt lgkmcnt(0)")
    a.e(f"s_mov_b32 s{sbase + 2 * idx}, s{sbase - 4}")
    a.e(f"s_mov_b32 s{sbase + 2 * idx + 1}, s{sbase - 2}")


def stamp_dump(a, kidx, n, swave, sptr_lo, sptr_hi, vtmp, sbase=80):
    if not DIAG:
        return
    e = a.e
    e(f"s_mov_b32 s{sbase - 4}, s{sptr_lo}")
    e(f"s_and_b32 s{sbase - 3}, s{sptr_hi}, 0xffff")
    e(f"s_mov_b32 s{sbase - 2}, 0x4000000")
    e(f"s_mov_b32 s{sbase - 1}, 0x20000")
    e(f"s_lshl_b32 s75, s2, 2")
    e(f"s_add_u32 s75, s75, s{swave}")
    e(f"s_lshl_b32 s75, s75, 7")
    e(f"s_add_u32 s75, s75, {DIAG_OFF + kidx * 0x100000}")
    e(f"v_mov_b32 v{vtmp}, 0")
    e("s_mov_b64 exec, 1")
    for i in range(2 * n):
        e(f"v_mov_b32 v{vtmp + 1}, s{sbase + i}")
        e(f"buffer_store_dword v{vtmp + 1}, v{vtmp}, s[{sbase - 4}:{sbase - 1}], s75 offen offset:{4 * i}")
        e("s_nop 1")
    e("s_mov_b64 exec, -1")
    if DBGOUT:
        lab = f"L_dbg_{len(a.lines)}"
        e(f"s_cmp_lg_u32 s2, 1")
        e(f"s_cbranch_scc1 {lab}")
        e(f"s_cmp_lg_u32 s{swave}, 0")
        e(f"s_cbranch_scc1 {lab}")
        e(f"s_mov_b32 s{sbase - 4}, s{sptr_lo - 2}")
        e(f"s_and_b32 s{sbase - 3}, s{sptr_hi - 2}, 0xffff")
        e(f"s_mov_b32 s{sbase - 2}, 256")
        e("s_mov_b64 exec, 1")
        for i in range(n):
            e(f"v_mov_b32 v{vtmp + 1}, s{sbase + 2 * i + 1}")
            e(f"buffer_store_dword v{vtmp + 1}, v{vtmp}, s[{sbase - 4}:{sbase - 1}], 0 offen offset:{4 * i + 32 * kidx}")
            e("s_nop 1")
        e("s_mov_b64 exec, -1")
        a.label(lab)


def vr(b, n=4):
    return f"v[{b}:{b + n - 1}]"


def ar(b, n=4):
    return f"a[{b}:{b + n - 1}]"


def interleave(a, mf, fillers, start=0, end=None):
    n = len(mf)
    if end is None:
        end = n
    nf = len(fillers)
    pos = [start + (j * (end - start)) // max(nf, 1) for j in range(nf)]
    j = 0
    for m in range(n):
        a.e(mf[m])
        while j < nf and pos[j] <= m:
            f = fillers[j]
            f()
            j += 1
    while j < nf:
        fillers[j]()
        j += 1


def srd(a, d, lo, hi, nbytes, bias=0):
    if bias:
        a.e(f"s_sub_u32 s{d}, s{lo}, {bias}")
        a.e(f"s_subb_u32 s{d + 1}, s{hi}, 0")
        a.e(f"s_and_b32 s{d + 1}, s{d + 1}, 0xffff")
    else:
        a.e(f"s_mov_b32 s{d}, s{lo}")
        a.e(f"s_and_b32 s{d + 1}, s{hi}, 0xffff")
    a.e(f"s_mov_b32 s{d + 2}, {nbytes + bias}")
    a.e(f"s_mov_b32 s{d + 3}, 0x20000")


K1_BSLOT = 13312
K1_AREA = 3328
K1_ABASE = 4 * K1_BSLOT
K1_LDS = K1_ABASE + 4 * 16384
ACC0 = 48


def acc(t, mt):
    return ACC0 + 16 * t + 4 * mt


V_LANE = 1
V_ARD = 2
V_QRD = 4
V_HRD = 8
V_ADMA = 9
V_BDMA = 13
V_L16 = 17
V_T = 18
S_X, S_Q, S_W1, S_WS, S_MISC = 4, 8, 12, 16, 20
S_WAVE, S_RB, S_P = 24, 25, 26
S_OFFA, S_OFFA2, S_OFFQ, S_OFFH = 27, 28, 29, 30
S_M0B, S_M0A = 31, 32
S_CNT = 33
S_QM = 34
S_PTR = 36
S_L2E = 58
S_T = 60
S_AFB = 72
S_GROW = 73
S_PO1, S_PO2 = 74, 3
S_PT, S_PTE = 100, 101
S_PF1, S_PF2 = 96, 20


def bset(s, t):
    return 52 * s + 4 * t


ASET = {"X": 104, "Y": 120, "Z": 136}


def k1_body(a, typ):
    T = "A" if typ == 0 else "B"
    nq = 8 if typ == 0 else 4
    nh = 13 - nq
    Ph = 2 * nh
    HB = 256 * nq
    e = a.e
    vi, vG, t0, t1, t2, t3 = V_T, V_T + 1, V_T + 2, V_T + 3, V_T + 4, V_T + 5
    e(f"v_and_b32 v{vi}, 15, v{V_LANE}")
    e(f"v_lshrrev_b32 v{vG}, 4, v{V_LANE}")
    e(f"s_mul_i32 s{S_T + 2}, s{S_P}, 448")
    if typ:
        e(f"s_add_u32 s{S_T + 2}, s{S_T + 2}, 160")

    e(f"s_lshr_b32 s{S_T + 8}, s{S_WAVE}, 1")
    e(f"s_lshl_b32 s{S_T + 8}, s{S_T + 8}, 4")
    e(f"s_and_b32 s{S_T + 9}, s{S_WAVE}, 1")
    e(f"s_lshl_b32 s{S_T + 9}, s{S_T + 9}, 2")
    e(f"s_add_u32 s{S_T + 8}, s{S_T + 8}, s{S_T + 9}")

    def krow(dst, kp, tmp):
        e(f"v_lshrrev_b32 v{tmp}, 2, v{kp}")
        e(f"v_lshlrev_b32 v{tmp}, 3, v{tmp}")
        e(f"v_and_b32 v{dst}, 3, v{kp}")
        e(f"v_add3_u32 v{dst}, v{dst}, v{tmp}, s{S_T + 8}")

    e(f"v_lshrrev_b32 v{t0}, 3, v{V_LANE}")
    krow(t1, t0, t2)
    e(f"v_mul_u32_u24 v{t1}, 6144, v{t1}")
    e(f"v_lshrrev_b32 v{t2}, 1, v{t0}")
    e(f"v_and_b32 v{t2}, 3, v{t2}")
    e(f"v_lshlrev_b32 v{t2}, 1, v{t2}")
    e(f"v_and_b32 v{t3}, 7, v{V_LANE}")
    e(f"v_xor_b32 v{t3}, v{t3}, v{t2}")
    e(f"v_lshlrev_b32 v{t3}, 4, v{t3}")
    e(f"v_add_u32 v{t1}, v{t1}, v{t3}")
    e(f"s_lshl_b32 s{S_T + 9}, s{S_P}, 7")
    e(f"s_add_u32 s{S_T + 9}, s{S_T + 9}, {4096 + (2048 if typ == 0 else 0)}")
    e(f"v_add_u32 v{V_BDMA}, s{S_T + 9}, v{t1}")
    if typ == 0:
        e(f"v_add_u32 v{V_BDMA + 1}, {2048 - 1024}, v{V_BDMA}")
    hins = [(2, 0), (3, 64)] if typ == 0 else [(1, 0), (2, 64), (3, 128)]
    magic, sh = (205, 11) if Ph == 10 else (57, 10)
    for s_ in range(8 * Ph + 64):
        if s_ < 8 * Ph:
            assert (s_ * magic) >> sh == s_ // Ph
    for slot, s0 in hins:
        e(f"v_add_u32 v{t0}, {s0}, v{V_LANE}")
        e(f"v_mul_u32_u24 v{t1}, {magic}, v{t0}")
        e(f"v_lshrrev_b32 v{t1}, {sh}, v{t1}")
        e(f"v_mul_u32_u24 v{t2}, {Ph}, v{t1}")
        e(f"v_sub_u32 v{t0}, v{t0}, v{t2}")
        e(f"v_and_b32 v{t1}, 7, v{t1}")
        krow(t2, t1, t3)
        e(f"v_mul_u32_u24 v{t2}, 7168, v{t2}")
        e(f"v_lshlrev_b32 v{t0}, 4, v{t0}")
        e(f"v_add3_u32 v{t0}, v{t0}, v{t2}, s{S_T + 2}")
        e(f"v_add_u32 v{V_BDMA + slot}, {4096 - 1024 * slot}, v{t0}")
    e(f"s_lshl_b32 s{S_T + 9}, s{S_RB}, 8")
    e(f"s_lshl_b32 s{S_T + 10}, s{S_WAVE}, 6")
    e(f"s_add_u32 s{S_T + 9}, s{S_T + 9}, s{S_T + 10}")
    e(f"s_lshl_b32 s{S_T + 9}, s{S_T + 9}, 11")
    e(f"v_lshrrev_b32 v{t0}, 3, v{V_LANE}")
    e(f"v_lshrrev_b32 v{t1}, 1, v{t0}")
    e(f"v_and_b32 v{t2}, 7, v{V_LANE}")
    e(f"v_xor_b32 v{t2}, v{t2}, v{t1}")
    e(f"v_lshlrev_b32 v{t0}, 11, v{t0}")
    e(f"v_add_u32 v{t0}, s{S_T + 9}, v{t0}")
    for j in range(4):
        if j & 1:
            e(f"v_xor_b32 v{t3}, 4, v{t2}")
            e(f"v_lshlrev_b32 v{t3}, 4, v{t3}")
        else:
            e(f"v_lshlrev_b32 v{t3}, 4, v{t2}")
        e(f"v_add_u32 v{t3}, v{t3}, v{t0}")
        e(f"v_add_u32 v{V_ADMA + j}, {j * (16384 - 1024)}, v{t3}")
    e(f"s_mul_i32 s{S_M0B}, s{S_WAVE}, {K1_AREA}")
    e(f"s_lshl_b32 s{S_M0A}, s{S_WAVE}, 14")
    e(f"s_add_u32 s{S_M0A}, s{S_M0A}, {K1_ABASE}")
    e(f"s_mov_b32 s{S_OFFA}, 0")
    e(f"s_mov_b32 s{S_OFFA2}, 65536")
    e(f"s_mov_b32 s{S_OFFQ}, 0")
    e(f"s_mov_b32 s{S_OFFH}, 0")
    e(f"s_mov_b32 s{S_QM}, 0xffff")
    e(f"s_mov_b32 s{S_QM + 1}, 0")

    def dmaB(tt):
        slot = tt % 4
        tag = f"B{tt}"
        f = []
        srcs = [(S_Q, S_OFFQ), (S_Q, S_OFFQ) if typ == 0 else (S_W1, S_OFFH), (S_W1, S_OFFH)]
        f.append(lambda: e(f"s_add_u32 m0, s{S_M0B}, {slot * K1_BSLOT}"))
        for j in range(3):
            sr, so = srcs[j]
            f.append(lambda j=j, sr=sr, so=so: a.vmem(
                f"buffer_load_dwordx4 v{V_BDMA + j}, s[{sr}:{sr + 3}], s{so} offen offset:{1024 * j} {OPT['k1b']} lds", tag))

        def q():
            e(f"s_mov_b64 exec, s[{S_QM}:{S_QM + 1}]")
            a.vmem(f"buffer_load_dwordx4 v{V_BDMA + 3}, s[{S_W1}:{S_W1 + 3}], s{S_OFFH} offen offset:3072 {OPT['k1b']} lds", tag)
            e("s_mov_b64 exec, -1")
        f.append(q)
        f.append(lambda: e(f"s_add_u32 s{S_OFFQ}, s{S_OFFQ}, {32 * 6144}"))
        f.append(lambda: e(f"s_add_u32 s{S_OFFH}, s{S_OFFH}, {32 * 7168}"))
        return f

    def dmaA(aa):
        slot = aa % 2
        tag = f"A{aa}"
        f = []
        for half in range(2):
            so = S_OFFA if half == 0 else S_OFFA2
            f.append(lambda half=half: e(f"s_add_u32 m0, s{S_M0A}, {slot * 8192 + half * 4096}"))
            for j in range(4):
                f.append(lambda j=j, so=so: a.vmem(
                    f"buffer_load_dwordx4 v{V_ADMA + j}, s[{S_X}:{S_X + 3}], s{so} offen offset:{1024 * j} {OPT['k1a']} lds", tag))
        f.append(lambda: e(f"s_add_u32 s{S_OFFA}, s{S_OFFA}, 128"))
        f.append(lambda: e(f"s_add_u32 s{S_OFFA2}, s{S_OFFA2}, 128"))
        return f

    def run_seq(fl):
        for fn in fl:
            n0 = len(a.lines)
            fn()
            if " m0," in a.lines[-1] and len(a.lines) == n0 + 1:
                e("s_nop 0")

    e("s_waitcnt lgkmcnt(0)")
    srd(a, S_Q, S_PTR + 2, S_PTR + 3, 1024 * 3072 * 2, bias=4096)
    srd(a, S_W1, S_PTR + 8, S_PTR + 9, 1024 * 3584 * 2, bias=4096)
    srd(a, S_X, S_PTR + 0, S_PTR + 1, 2048 * 1024 * 2)
    if not OPT.get('spin'):
        stamp(a, 0)
    run_seq(dmaB(0))
    run_seq(dmaA(0))
    srd(a, S_T + 4, S_PTR + 10, S_PTR + 11, 7168)
    e(f"v_lshlrev_b32 v{t1}, 3, v{vG}")
    for j in range(nh):
        a.vmem(f"buffer_load_dwordx2 {vr(acc(nq + j, 3), 2)}, v{t1}, s[{S_T + 4}:{S_T + 7}], s{S_T + 2} offen offset:{32 * j}", "bias")
    run_seq(dmaB(1))
    run_seq(dmaB(2))
    run_seq(dmaA(1))
    run_seq(dmaB(3))
    srd(a, S_WS, S_PTR + 20, S_PTR + 21, WS_USED)
    tile_decode(a, S_T + 4, S_T + 5, S_T + 6, S_T + 7, S_T)
    e(f"s_lshl_b32 s{S_T}, s{S_RB}, 1")
    e(f"s_lshr_b32 s{S_T + 1}, s{S_WAVE}, 1")
    e(f"s_add_u32 s{S_T}, s{S_T}, s{S_T + 1}")
    e(f"s_lshl_b32 s{S_T}, s{S_T}, 5")
    e(f"s_lshl_b32 s{S_T + 1}, s{S_P}, 1")
    e(f"s_add_u32 s{S_T}, s{S_T}, s{S_T + 1}")
    if typ:
        e(f"s_add_u32 s{S_T}, s{S_T}, 1")
    e(f"s_lshl_b32 s{S_T}, s{S_T}, 1")
    e(f"s_and_b32 s{S_T + 1}, s{S_WAVE}, 1")
    e(f"s_add_u32 s{S_T}, s{S_T}, s{S_T + 1}")
    e(f"s_lshl_b32 s{S_T}, s{S_T}, 3")
    e(f"s_add_u32 s{S_T}, s{S_T}, {FA_OFF}")
    e(f"v_writelane_b32 v0, s{S_T}, 0")
    e(f"s_lshl_b32 s{S_T}, s{S_P}, 4")
    e(f"s_add_u32 s{S_T}, s{S_T}, s{S_RB}")
    e(f"s_lshl_b32 s{S_T}, s{S_T}, 2")
    e(f"s_add_u32 s{S_T}, s{S_T}, s{S_WAVE}")
    e(f"s_lshl_b32 s{S_T}, s{S_T}, 3")
    e(f"s_add_u32 s{S_T}, s{S_T}, {FQ_OFF + 256 * typ}")
    e(f"v_writelane_b32 v0, s{S_T}, 1")
    e(f"s_lshr_b32 s{S_T}, s2, 5")
    e(f"s_lshl_b32 s{S_T}, s{S_T}, 1")
    e(f"s_lshr_b32 s{S_T + 1}, s{S_WAVE}, 1")
    e(f"s_add_u32 s{S_T}, s{S_T}, s{S_T + 1}")
    e(f"s_lshl_b32 s{S_T}, s{S_T}, 9")
    e(f"s_and_b32 s{S_T + 1}, s2, 31")
    e(f"s_lshl_b32 s{S_T + 1}, s{S_T + 1}, 4")
    e(f"s_add_u32 s{S_T}, s{S_T}, s{S_T + 1}")
    e(f"s_and_b32 s{S_T + 1}, s{S_WAVE}, 1")
    e(f"s_lshl_b32 s{S_T + 1}, s{S_T + 1}, 3")
    e(f"s_add_u32 s{S_T}, s{S_T}, s{S_T + 1}")
    e(f"s_add_u32 s{S_T}, s{S_T}, {FO_OFF}")
    e(f"s_lshl_b32 s{S_T + 1}, s{S_T + 7}, 8")
    e(f"s_lshl_b32 s{S_T + 3}, s{S_WAVE}, 3")
    e(f"s_add_u32 s{S_T + 1}, s{S_T + 1}, s{S_T + 3}")
    e(f"s_add_u32 s{S_T + 1}, s{S_T + 1}, {FP_OFF}")
    e(f"s_cmp_eq_u32 s{S_T + 6}, 0")
    e(f"s_cselect_b32 s{S_T + 1}, s{S_T + 1}, 0x7ffffff0")
    e(f"v_writelane_b32 v0, s{S_T}, 2")
    e(f"v_writelane_b32 v0, s{S_T + 1}, 3")
    if typ == 0:
        e(f"s_or_b32 s{S_T}, s2, s{S_WAVE}")
        e(f"s_cmp_lg_u32 s{S_T}, 0")
        e(f"s_cbranch_scc1 L_notok")
        e(f"s_memrealtime s[{S_T + 8}:{S_T + 9}]")
        srd(a, S_T + 4, S_PTR + 18, S_PTR + 19, 256)
        e("s_waitcnt lgkmcnt(0)")
        e(f"s_or_b32 s{S_T + 9}, s{S_T + 9}, 0x40000000")
        e(f"s_lshl_b32 s{S_T + 9}, s{S_T + 9}, 1")
        e(f"s_and_b32 s{S_T}, s{S_T + 8}, 1")
        e(f"s_or_b32 s{S_T + 9}, s{S_T + 9}, s{S_T}")
        e(f"s_or_b32 s{S_T + 8}, s{S_T + 8}, 1")
        e(f"v_mov_b32 v{V_T + 28}, s{S_T + 8}")
        e(f"v_mov_b32 v{V_T + 29}, s{S_T + 9}")
        e(f"v_mov_b32 v{V_T + 27}, 0")
        e("s_mov_b64 exec, 1")
        e(f"buffer_store_dwordx2 v[{V_T + 28}:{V_T + 29}], v{V_T + 27}, s[{S_T + 4}:{S_T + 7}], 0 offen sc1")
        e("s_mov_b64 exec, -1")
        e("s_nop 1")
        a.label("L_notok")
    if OPT.get('cpf'):
        e(f"s_getpc_b64 s[{S_T + 4}:{S_T + 5}]")
        a.label(f"L_pc_{T}")
        e(f"s_sub_u32 s{S_T + 4}, s{S_T + 4}, L_pc_{T}-KNAME")
        e(f"s_subb_u32 s{S_T + 5}, s{S_T + 5}, 0")
        e(f"s_lshr_b32 s{S_T}, s2, 3")
        e(f"s_and_b32 s{S_T}, s{S_T}, 3")
        e(f"s_lshl_b32 s{S_T}, s{S_T}, 2")
        e(f"s_add_u32 s{S_T}, s{S_T}, s{S_WAVE}")
        e(f"s_lshl_b32 s{S_T}, s{S_T}, 13")
        e(f"v_lshlrev_b32 v{V_T + 29}, 7, v{V_LANE}")
        e(f"v_add_u32 v{V_T + 29}, s{S_T}, v{V_T + 29}")
        e(f"v_min_u32 v{V_T + 29}, L_code_end-KNAME-4, v{V_T + 29}")
        a.vmem(f"global_load_dword v{V_T + 29}, v{V_T + 29}, s[{S_T + 4}:{S_T + 5}]", "pf")
    if OPT.get('xpf') == 1:
        e(f"v_and_b32 v{V_T + 28}, 31, v{V_LANE}")
        e(f"v_lshlrev_b32 v{V_T + 28}, 7, v{V_T + 28}")
        e(f"s_lshl_b32 s{S_T}, s2, 2")
        e(f"s_add_u32 s{S_T}, s{S_T}, s{S_WAVE}")
        e(f"s_lshl_b32 s{S_T}, s{S_T}, 12")
        a.vmem(f"buffer_load_dword v{V_T + 28}, v{V_T + 28}, s[{S_X}:{S_X + 3}], s{S_T} offen", "pf")
    if OPT.get('xpf') == 2:
        e(f"v_lshlrev_b32 v{V_T + 27}, 7, v{V_LANE}")
        e(f"s_lshr_b32 s{S_T}, s2, 5")
        e(f"s_lshl_b32 s{S_T}, s{S_T}, 2")
        e(f"s_add_u32 s{S_T}, s{S_T}, s{S_WAVE}")
        e(f"s_lshl_b32 s{S_T}, s{S_T}, 14")
        e(f"s_lshl_b32 s{S_T + 1}, s{S_RB}, 19")
        e(f"s_add_u32 s{S_T}, s{S_T}, s{S_T + 1}")
        a.vmem(f"buffer_load_dword v{V_T + 28}, v{V_T + 27}, s[{S_X}:{S_X + 3}], s{S_T} offen", "pf")
        e(f"s_add_u32 s{S_T}, s{S_T}, 8192")
        a.vmem(f"buffer_load_dword v{V_T + 28}, v{V_T + 27}, s[{S_X}:{S_X + 3}], s{S_T} offen", "pf")

    e(f"v_lshrrev_b32 v{t0}, 3, v{vi}")
    e(f"v_lshlrev_b32 v{t0}, 6, v{t0}")
    e(f"v_and_b32 v{t1}, 7, v{vi}")
    e(f"v_lshlrev_b32 v{t1}, 3, v{t1}")
    e(f"v_add_u32 v{t0}, v{t0}, v{t1}")
    e(f"v_lshrrev_b32 v{t1}, 1, v{vi}")
    e(f"v_xor_b32 v{t1}, v{t1}, v{vG}")
    e(f"v_add_u32 v{t2}, v{t0}, v{t1}")
    e(f"v_lshlrev_b32 v{t2}, 4, v{t2}")
    e(f"v_add_u32 v{V_ARD}, s{S_M0A}, v{t2}")
    e(f"v_xor_b32 v{t1}, 4, v{t1}")
    e(f"v_add_u32 v{t2}, v{t0}, v{t1}")
    e(f"v_lshlrev_b32 v{t2}, 4, v{t2}")
    e(f"v_add_u32 v{V_ARD + 1}, s{S_M0A}, v{t2}")
    e(f"v_and_b32 v{t0}, 1, v{vG}")
    e(f"v_lshlrev_b32 v{t0}, 2, v{t0}")
    e(f"v_lshrrev_b32 v{t1}, 2, v{vi}")
    e(f"v_add_u32 v{t0}, v{t0}, v{t1}")
    e(f"v_lshrrev_b32 v{t1}, 1, v{vG}")
    e(f"v_mul_u32_u24 v{t1}, {2 * K1_AREA}, v{t1}")
    e(f"v_and_b32 v{t2}, 3, v{vi}")
    e(f"v_lshlrev_b32 v{t2}, 3, v{t2}")
    e(f"v_add_u32 v{t1}, v{t1}, v{t2}")
    e(f"v_mul_u32_u24 v{t3}, {16 * Ph}, v{t0}")
    e(f"v_add3_u32 v{V_HRD}, v{t1}, v{t3}, {0}")
    e(f"v_add_u32 v{V_HRD}, {HB}, v{V_HRD}")
    e(f"v_lshlrev_b32 v{t3}, 7, v{t0}")
    e(f"v_add_u32 v{t1}, v{t1}, v{t3}")
    e(f"v_lshrrev_b32 v{t2}, 1, v{t0}")
    e(f"v_and_b32 v{t2}, 3, v{t2}")
    for t in range(4):
        e(f"v_xor_b32 v{t3}, {t}, v{t2}")
        e(f"v_lshlrev_b32 v{t3}, 5, v{t3}")
        e(f"v_add_u32 v{V_QRD + t}, v{t1}, v{t3}")
    e(f"v_lshlrev_b32 v{V_L16}, 4, v{V_LANE}")

    gw, gx0, gx1 = V_T, V_T + 8, V_T + 16
    gt = V_T + 24
    e(f"v_lshlrev_b32 v{gt}, 5, v{V_LANE}")
    e(f"s_lshl_b32 s{S_GROW}, s{S_RB}, 8")
    e(f"s_lshl_b32 s{S_T + 1}, s{S_WAVE}, 6")
    e(f"s_add_u32 s{S_GROW}, s{S_GROW}, s{S_T + 1}")
    e(f"s_lshl_b32 s{S_T + 1}, s{S_P}, 2")
    e(f"s_add_u32 s{S_GROW}, s{S_GROW}, s{S_T + 1}")
    if typ:
        e(f"s_add_u32 s{S_GROW}, s{S_GROW}, 2")
    e(f"s_lshl_b32 s{S_T + 1}, s{S_GROW}, 11")
    srd(a, S_MISC, S_PTR + 14, S_PTR + 15, 2048)
    a.vmem(f"buffer_load_dwordx4 {vr(gw)}, v{gt}, s[{S_MISC}:{S_MISC + 3}], 0 offen", "g")
    a.vmem(f"buffer_load_dwordx4 {vr(gw + 4)}, v{gt}, s[{S_MISC}:{S_MISC + 3}], 0 offen offset:16", "g")
    a.vmem(f"buffer_load_dwordx4 {vr(gx0)}, v{gt}, s[{S_X}:{S_X + 3}], s{S_T + 1} offen", "g")
    a.vmem(f"buffer_load_dwordx4 {vr(gx0 + 4)}, v{gt}, s[{S_X}:{S_X + 3}], s{S_T + 1} offen offset:16", "g")
    a.vmem(f"buffer_load_dwordx4 {vr(gx1)}, v{gt}, s[{S_X}:{S_X + 3}], s{S_T + 1} offen offset:2048", "g")
    a.vmem(f"buffer_load_dwordx4 {vr(gx1 + 4)}, v{gt}, s[{S_X}:{S_X + 3}], s{S_T + 1} offen offset:2064", "g")

    if OPT['pf']:
        srd(a, S_PF1, S_PTR + 12, S_PTR + 13, 3584 * 1024 * 2)
        srd(a, S_PF2, S_PTR + 4, S_PTR + 5, 1024 * 1024 * 2)
        nb = {1: 7, 2: 1, 3: 2, 4: 3}[OPT['pf']]
        PL1, PL2 = -(-56 // nb), -(-16 // nb)
        e(f"v_min_u32 v{V_T + 26}, {PL1 - 1}, v{V_LANE}")
        e(f"v_lshlrev_b32 v{V_T + 26}, 7, v{V_T + 26}")
        e(f"v_min_u32 v{V_T + 27}, {PL2 - 1}, v{V_LANE}")
        e(f"v_lshlrev_b32 v{V_T + 27}, 7, v{V_T + 27}")
        e(f"s_lshl_b32 s{S_T}, s2, 2")
        e(f"s_add_u32 s{S_T}, s{S_T}, s{S_WAVE}")
        e(f"s_mul_i32 s{S_PO1}, s{S_T}, 7168")
        e(f"s_lshl_b32 s{S_PO2}, s{S_T}, 11")

    if OPT.get('pt'):
        e(f"s_lshl_b32 s{S_T}, s{S_RB}, 1")
        e(f"s_lshr_b32 s{S_T + 1}, s{S_WAVE}, 1")
        e(f"s_add_u32 s{S_T}, s{S_T}, s{S_T + 1}")
        e(f"s_mul_i32 s{S_AFB}, s{S_T}, {144 * 8192}")
        e(f"s_and_b32 s{S_T + 1}, s{S_WAVE}, 1")
        e(f"s_lshl_b32 s{S_T + 1}, s{S_T + 1}, 12")
        e(f"s_add_u32 s{S_AFB}, s{S_AFB}, s{S_T + 1}")
        e(f"s_mul_i32 s{S_PT}, s{S_P}, {7 * 8192}")
        e(f"s_add_u32 s{S_PT}, s{S_PT}, s{S_AFB}")
        if typ:
            e(f"s_add_u32 s{S_PT}, s{S_PT}, {2 * 8192}")
        e(f"s_add_u32 s{S_PTE}, s{S_PT}, {(4 if typ else 2) * 8192}")
        e(f"v_and_b32 v{V_T + 25}, 31, v{V_LANE}")
        e(f"v_lshlrev_b32 v{V_T + 25}, 7, v{V_T + 25}")
        if typ:
            e(f"v_lshrrev_b32 v{V_T + 29}, 5, v{V_LANE}")
            e(f"v_lshlrev_b32 v{V_T + 29}, 13, v{V_T + 29}")
            e(f"v_add_u32 v{V_T + 29}, v{V_T + 29}, v{V_T + 25}")
            e(f"s_mul_i32 s{S_T}, s{S_P}, {2 * 8192}")
            e(f"s_add_u32 s{S_T}, s{S_T}, {112 * 8192}")
            e(f"s_add_u32 s{S_T}, s{S_T}, s{S_AFB}")
            a.vmem(f"buffer_load_dword v{V_T + 28}, v{V_T + 29}, s[{S_WS}:{S_WS + 3}], s{S_T} offen", "pf")

    def pt_items():
        return [lambda: a.vmem(f"buffer_load_dword v{V_T + 28}, v{V_T + 25}, s[{S_WS}:{S_WS + 3}], s{S_PT} offen", "pf"),
                lambda: e(f"s_add_u32 s{S_PT}, s{S_PT}, 8192"),
                lambda: e(f"s_min_u32 s{S_PT}, s{S_PT}, s{S_PTE}")]

    def pf_items(cond=None):
        if cond is None:
            return [lambda: a.vmem(f"buffer_load_dword v{V_T + 28}, v{V_T + 26}, s[{S_PF1}:{S_PF1 + 3}], s{S_PO1} offen", "pf"),
                    lambda: a.vmem(f"buffer_load_dword v{V_T + 28}, v{V_T + 27}, s[{S_PF2}:{S_PF2 + 3}], s{S_PO2} offen", "pf"),
                    lambda: e(f"s_add_u32 s{S_PO1}, s{S_PO1}, {128 * PL1}"),
                    lambda: e(f"s_add_u32 s{S_PO2}, s{S_PO2}, {128 * PL2}")]

        def blk():
            e(f"s_lshl_b32 s{S_T}, 1, s{S_CNT}")
            e(f"s_and_b32 s{S_T}, s{S_T}, {cond}")
            e(f"s_cbranch_scc0 L_k1{T}_nopf")
            e(f"buffer_load_dword v{V_T + 28}, v{V_T + 26}, s[{S_PF1}:{S_PF1 + 3}], s{S_PO1} offen")
            e(f"buffer_load_dword v{V_T + 28}, v{V_T + 27}, s[{S_PF2}:{S_PF2 + 3}], s{S_PO2} offen")
            e(f"s_add_u32 s{S_PO1}, s{S_PO1}, {128 * PL1}")
            e(f"s_add_u32 s{S_PO2}, s{S_PO2}, {128 * PL2}")
            a.label(f"L_k1{T}_nopf")
        return [blk]

    def g_items():
        d0, d1 = V_T + 24, V_T + 25
        L = []
        L.append(f"v_dot2_f32_bf16 v{d0}, v{gx0}, v{gw}, 0")
        L.append(f"v_dot2_f32_bf16 v{d1}, v{gx1}, v{gw}, 0")
        for j in range(1, 8):
            L.append(f"v_dot2_f32_bf16 v{d0}, v{gx0 + j}, v{gw + j}, v{d0}")
            L.append(f"v_dot2_f32_bf16 v{d1}, v{gx1 + j}, v{gw + j}, v{d1}")
        L.append("s_nop 3")
        for sh_ in (1, 2, 4, 8):
            L.append(f"s_nop 0\nv_add_f32_dpp v{d0}, v{d0}, v{d0} row_shr:{sh_} row_mask:0xf bank_mask:0xf bound_ctrl:0")
            L.append(f"s_nop 0\nv_add_f32_dpp v{d1}, v{d1}, v{d1} row_shr:{sh_} row_mask:0xf bank_mask:0xf bound_ctrl:0")
        L.append(f"s_nop 0\nv_add_f32_dpp v{d0}, v{d0}, v{d0} row_bcast:15 row_mask:0xa bank_mask:0xf")
        L.append(f"s_nop 0\nv_add_f32_dpp v{d1}, v{d1}, v{d1} row_bcast:15 row_mask:0xa bank_mask:0xf")
        L.append(f"s_nop 0\nv_add_f32_dpp v{d0}, v{d0}, v{d0} row_bcast:31 row_mask:0xc bank_mask:0xf")
        L.append(f"s_nop 0\nv_add_f32_dpp v{d1}, v{d1}, v{d1} row_bcast:31 row_mask:0xc bank_mask:0xf")
        L.append(f"v_mul_f32 v{d0}, 0xbfb8aa3b, v{d0}")
        L.append(f"v_mul_f32 v{d1}, 0xbfb8aa3b, v{d1}")
        L.append(f"v_exp_f32 v{d0}, v{d0}")
        L.append(f"v_exp_f32 v{d1}, v{d1}\ns_nop 0")
        L.append(f"v_add_f32 v{d0}, 1.0, v{d0}")
        L.append(f"v_add_f32 v{d1}, 1.0, v{d1}")
        L.append(f"v_rcp_f32 v{d0}, v{d0}")
        L.append(f"v_rcp_f32 v{d1}, v{d1}")
        L.append(f"v_mov_b32 v{gw}, 0")
        L.append(f"s_lshl_b32 s{S_T + 1}, s{S_GROW}, 2\ns_add_u32 s{S_T + 1}, s{S_T + 1}, {G_OFF}")
        L.append(f"s_lshl_b32 s{S_T + 3}, s2, 8\ns_add_u32 s{S_T + 3}, s{S_T + 3}, {FLG_OFF}")
        L.append(f"s_mov_b32 s{S_T + 8}, 0\ns_mov_b32 s{S_T + 9}, 0x80000000")
        F = [(lambda x=x: e(x)) for x in L]

        def st():
            e(f"s_mov_b64 exec, s[{S_T + 8}:{S_T + 9}]")
            a.vmem(f"buffer_store_dwordx2 v[{d0}:{d1}], v{gw}, s[{S_WS}:{S_WS + 3}], s{S_T + 1} offen sc1", "sq")
            e("s_mov_b64 exec, -1")
        F.append(st)
        return F

    a.wait(["bias"])
    for j in range(nh):
        src = acc(nq + j, 3)
        d = acc(nq + j, 0)
        e(f"v_lshlrev_b32 v{d}, 16, v{src}")
        e(f"v_and_b32 v{d + 1}, 0xffff0000, v{src}")
        e(f"v_lshlrev_b32 v{d + 2}, 16, v{src + 1}")
        e(f"v_and_b32 v{d + 3}, 0xffff0000, v{src + 1}")
    for t in range(4):
        for r in range(4):
            e(f"v_mov_b32 v{acc(t, 0) + r}, {EPS_HEX}")

    def rdB(tt):
        slot = tt % 4
        s = tt % 2
        f = []
        for t in range(13):
            for ins in range(2):
                if t < nq:
                    addr = V_QRD + (t & 3)
                    off = slot * K1_BSLOT + ins * K1_AREA + 1024 * (t >> 2)
                else:
                    addr = V_HRD
                    off = slot * K1_BSLOT + ins * K1_AREA + 32 * (t - nq)
                d = bset(s, t) + 2 * ins
                f.append(lambda d=d, addr=addr, off=off: e(f"ds_read_b64_tr_b16 {ar(d, 2)}, v{addr} offset:{off}"))
        return f

    def aset_of(tt):
        if tt % 2 == 0:
            return ASET["X"]
        return ASET["Y"] if tt % 4 == 1 else ASET["Z"]

    def rdA(aa):
        slot = aa % 2
        f = []
        for hh in range(2):
            base = aset_of(2 * aa + hh)
            for mt in range(4):
                f.append(lambda hh=hh, mt=mt, base=base: e(
                    f"ds_read_b128 {ar(base + 4 * mt)}, v{V_ARD + hh} offset:{slot * 8192 + mt * 2048}"))
        return f

    stamp(a, 1)
    a.wait(["B0", "A0"])
    e("s_barrier")
    stamp(a, 2)
    for fn in rdA(0) + rdB(0):
        fn()
    a.wait(["B1"], lgkm=True)
    e("s_barrier")

    NSTEP = 32

    def step(tt):
        if DIAG and OPT.get('ts'):
            e("s_memrealtime s[76:77]")
            e("s_waitcnt lgkmcnt(0)")
            e("s_mov_b32 m0, s78")
            e("s_nop 0")
            e(f"v_writelane_b32 v{V_T + 29}, s76, m0")
            e("s_add_u32 s78, s78, 1")
        s = tt % 2
        ab = aset_of(tt)
        mf = []
        for t in range(13):
            order = [1, 2, 3, 0] if tt == 0 else [0, 1, 2, 3]
            for mt in order:
                D = vr(acc(t, mt))
                if tt == 0:
                    C = "0" if (typ == 0 and 4 <= t < 8) else vr(acc(t, 0))
                else:
                    C = D
                W = ar(bset(s, t))
                X = ar(ab + 4 * mt)
                if typ == 0 and t < 8:
                    mf.append(f"v_mfma_f32_16x16x32_bf16 {D}, {X}, {W}, {C}")
                else:
                    mf.append(f"v_mfma_f32_16x16x32_bf16 {D}, {W}, {X}, {C}")
        rd = []
        if tt + 1 < NSTEP:
            rd = rdB(tt + 1)
            if tt % 2 == 1:
                rd = rdA((tt + 1) // 2) + rd
        dm = []
        if OPT.get('afirst', 1) and tt % 2 == 0 and tt // 2 + 2 < NSTEP // 2:
            dm += dmaA(tt // 2 + 2)
        if tt + 4 < NSTEP:
            dm += dmaB(tt + 4)
        if not OPT.get('afirst', 1) and tt % 2 == 0 and tt // 2 + 2 < NSTEP // 2:
            dm += dmaA(tt // 2 + 2)
        if OPT['pf'] == 1 and tt % 4 == 1 and tt < 28:
            dm += pf_items()
        if OPT['pf'] in (2, 3, 4) and tt == 28:
            dm += pf_items()
        if OPT['pf'] in (3, 4) and tt % 4 == 1 and 4 <= tt < 28:
            dm += pf_items({3: 1 << 4, 4: (1 << 5) | (1 << 3)}[OPT['pf']])
        if OPT.get('pt') and tt % 4 == 3 and tt < 28:
            dm += pt_items()
        fl = []
        i1 = i2 = 0
        n1, n2 = len(rd), len(dm)
        while i1 < n1 or i2 < n2:
            if i2 < n2 and (i1 >= n1 or i2 * n1 <= i1 * n2):
                fl.append(dm[i2]); i2 += 1
            else:
                fl.append(rd[i1]); i1 += 1
        if tt == NSTEP - 1:
            assert "g" not in a.vm
            fl = g_items()
        interleave(a, mf, fl, 0, 48)
        if tt + 1 < NSTEP:
            tags = []
            if tt + 2 < NSTEP:
                tags.append(f"B{tt + 2}")
            if tt % 2 == 0:
                tags.append(f"A{tt // 2 + 1}")
            a.wait(tags, lgkm=True)
            if tt + 2 < NSTEP:
                e("s_barrier")

    iters = []
    for it in range(8):
        n0 = len(a.lines)
        for tt in range(4 * it, 4 * it + 4):
            step(tt)
        iters.append(a.lines[n0:])
        del a.lines[n0:]
    for it in range(2, 7):
        assert iters[it] == iters[1], f"iteration {it} differs"
    stamp(a, 3)
    if DIAG and OPT.get('ts'):
        e("s_mov_b32 s78, 0")
    a.lines += iters[0]
    if not OPT.get('ts'):
        stamp(a, 4)
    e(f"s_mov_b32 s{S_CNT}, 6")
    a.label(f"L_k1{T}_loop")
    a.lines += iters[1]
    e(f"s_sub_u32 s{S_CNT}, s{S_CNT}, 1")
    e(f"s_cmp_lg_u32 s{S_CNT}, 0")
    e(f"s_cbranch_scc1 L_k1{T}_loop")
    a.lines += iters[7]
    assert all(not t.startswith(("A", "B")) for t in a.vm), a.vm

    stamp(a, 5)

    def fin():
        stamp(a, 6)
        stamp(a, 7)
        stamp_dump(a, 0, 8, S_WAVE, S_PTR + 20, S_PTR + 21, V_T)
        e("s_branch L_phase2")

    def setflag(lane):
        a.label(f"L_k1{T}_tw")
        e(f"v_readfirstlane_b32 s{S_T}, v{V_TOK + 1}")
        e(f"v_readfirstlane_b32 s{S_T + 1}, v{V_TOK}")
        e("s_nop 3")
        e(f"s_min_u32 s{S_T}, s{S_T}, s{S_T + 1}")
        e(f"s_cmp_lg_u32 s{S_T}, 0")
        e(f"s_cbranch_scc1 L_k1{T}_tok")
        e("s_sleep 4")
        e(f"buffer_load_dwordx2 v[{V_TOK}:{V_TOK + 1}], v12, s[{S_T + 4}:{S_T + 7}], 0 offen sc1")
        e("s_waitcnt vmcnt(0)")
        e(f"s_branch L_k1{T}_tw")
        a.label(f"L_k1{T}_tok")
        e(f"s_mov_b64 exec, {1 << lane}")
        a.vmem(f"buffer_store_dwordx2 v[{V_TOK}:{V_TOK + 1}], v0, s[{S_WS}:{S_WS + 3}], 0 offen sc1", "fl")
        e("s_mov_b64 exec, -1")
    e("s_barrier")
    p2_early(a)
    e(f"s_mov_b32 s{S_L2E}, {L2E_HEX}")
    e(f"s_mov_b32 s{S_L2E + 1}, {L2E_HEX}")
    e(f"s_lshl_b32 s{S_T}, s{S_RB}, 1")
    e(f"s_lshr_b32 s{S_T + 1}, s{S_WAVE}, 1")
    e(f"s_add_u32 s{S_T}, s{S_T}, s{S_T + 1}")
    e(f"s_mul_i32 s{S_AFB}, s{S_T}, {144 * 8192}")
    e(f"s_and_b32 s{S_T + 1}, s{S_WAVE}, 1")
    e(f"s_lshl_b32 s{S_T + 1}, s{S_T + 1}, 12")
    e(f"s_add_u32 s{S_AFB}, s{S_AFB}, s{S_T + 1}")
    e("s_nop 7")
    TT, UU = V_T, V_T + 8

    def phi_group(ra, rb_):
        prs = [ra, ra + 2, rb_, rb_ + 2]
        for j, p in enumerate(prs):
            e(f"v_pk_mul_f32 {vr(TT + 2 * j, 2)}, {vr(p, 2)}, s[{S_L2E}:{S_L2E + 1}]")
        for j in range(8):
            e(f"v_exp_f32_e64 v{TT + j}, v{TT + j} clamp")
        for p in prs:
            e(f"v_max_f32 v{p}, {EPS_HEX}, v{p}")
            e(f"v_max_f32 v{p + 1}, {EPS_HEX}, v{p + 1}")
        for j, p in enumerate(prs):
            e(f"v_pk_add_f32 {vr(p, 2)}, {vr(p, 2)}, {vr(TT + 2 * j, 2)}")
        for j, p in enumerate(prs):
            e(f"v_cvt_pk_bf16_f32 v{ra + j}, v{p}, v{p + 1}")

    def cvt_group(ra, rb_):
        prs = [ra, ra + 2, rb_, rb_ + 2]
        for j, p in enumerate(prs):
            e(f"v_cvt_pk_bf16_f32 v{ra + j}, v{p}, v{p + 1}")

    def mish_group(ra, rb_, split=False):
        prs = [ra, ra + 2, rb_, rb_ + 2]
        for j, p in enumerate(prs):
            e(f"v_pk_mul_f32 {vr(TT + 2 * j, 2)}, {vr(p, 2)}, s[{S_L2E}:{S_L2E + 1}]")
        for j in range(8):
            e(f"v_exp_f32 v{TT + j}, v{TT + j}")
        for j in range(4):
            e(f"v_pk_fma_f32 {vr(UU + 2 * j, 2)}, {vr(TT + 2 * j, 2)}, 0.5, 1.0 op_sel_hi:[1,0,0]")
        for j in range(4):
            e(f"v_pk_fma_f32 {vr(UU + 2 * j, 2)}, {vr(TT + 2 * j, 2)}, {vr(UU + 2 * j, 2)}, 1.0 op_sel_hi:[1,1,0]")
        for j in range(8):
            e(f"v_rcp_f32 v{UU + j}, v{UU + j}")
        for j, p in enumerate(prs):
            e(f"v_pk_fma_f32 {vr(p, 2)}, {vr(UU + 2 * j, 2)}, {vr(p, 2)}, {vr(p, 2)} neg_lo:[1,0,0] neg_hi:[1,0,0]")
        if split:
            e(f"v_cvt_pk_bf16_f32 v{ra}, v{ra}, v{ra + 1}")
            e(f"v_cvt_pk_bf16_f32 v{ra + 1}, v{ra + 2}, v{ra + 3}")
            e(f"v_cvt_pk_bf16_f32 v{rb_}, v{rb_}, v{rb_ + 1}")
            e(f"v_cvt_pk_bf16_f32 v{rb_ + 1}, v{rb_ + 2}, v{rb_ + 3}")
        else:
            for j, p in enumerate(prs):
                e(f"v_cvt_pk_bf16_f32 v{ra + j}, v{p}, v{p + 1}")

    WS = f"s[{S_WS}:{S_WS + 3}]"

    def set_kb(sreg, mul, add):
        e(f"s_mul_i32 s{sreg}, s{S_P}, {mul * 8192}")
        e(f"s_add_u32 s{sreg}, s{sreg}, {add * 8192}")
        e(f"s_add_u32 s{sreg}, s{sreg}, s{S_AFB}")

    def h_full(tA, kbl):
        set_kb(S_T + 2, 7, kbl)
        for mt in range(4):
            mish_group(acc(tA, mt), acc(tA + 1, mt))
            a.vmem(f"buffer_store_dwordx4 {vr(acc(tA, mt))}, v{V_L16}, {WS}, s{S_T + 2} offen offset:{1024 * mt} {OPT['st']}", "st")

    def h_half(tA, kbl, half):
        set_kb(S_T + 2, 7, kbl)
        for mp in range(2):
            mish_group(acc(tA, 2 * mp), acc(tA, 2 * mp + 1), split=True)
            for mt in (2 * mp, 2 * mp + 1):
                a.vmem(f"buffer_store_dwordx2 {vr(acc(tA, mt), 2)}, v{V_L16}, {WS}, s{S_T + 2} offen offset:{1024 * mt + 8 * half} {OPT['st']}", "st")

    if typ == 1:
        for hd in range(2):
            set_kb(S_T + 2, 2, 112 + hd)
            for mt in range(4):
                phi_group(acc(2 * hd, mt), acc(2 * hd + 1, mt))
                a.vmem(f"buffer_store_dwordx4 {vr(acc(2 * hd, mt))}, v{V_L16}, {WS}, s{S_T + 2} offen offset:{1024 * mt} {OPT['st']}", "sq")
        h_half(4, 2, 1)
        for j in range(4):
            h_full(5 + 2 * j, 3 + j)
            if j == 0:
                a.wait(["sq"])
                setflag(1)
        fin()
        return

    ONES = V_T + 16
    for r in range(4):
        e(f"v_mov_b32 v{ONES + r}, 0x3f803f80")
    for t in range(4):
        for pr in range(2):
            phi_group(acc(t, 2 * pr), acc(t, 2 * pr + 1))
    for t in range(4, 8):
        for pr in range(2):
            cvt_group(acc(t, 2 * pr), acc(t, 2 * pr + 1))
    e("s_nop 1")
    free = [acc(t, m) for t in range(8) for m in (1, 3)]

    def Dt(tau):
        return free[tau]
    for pr in range(2):
        for hd in range(2):
            for dt in range(2):
                for et in range(3):
                    tau = hd * 6 + dt * 3 + et
                    Aop = vr(acc(2 * hd + dt, 2 * pr))
                    Bop = vr(acc(4 + 2 * hd + et, 2 * pr)) if et < 2 else vr(ONES)
                    C = "0" if pr == 0 else vr(Dt(tau))
                    e(f"v_mfma_f32_16x16x32_bf16 {vr(Dt(tau))}, {Aop}, {Bop}, {C}")
    vw, vrd = V_T + 20, V_T + 21
    e(f"s_lshl_b32 s{S_T}, s{S_WAVE}, 15")
    e(f"v_add_u32 v{vw}, s{S_T}, v{V_L16}")
    e(f"s_mul_i32 s{S_T}, s{S_WAVE}, 3072")
    e(f"v_add_u32 v{vrd}, s{S_T}, v{V_L16}")
    e(f"v_add_u32 v{vrd + 2}, 65536, v{vrd}")
    e("s_nop 7")
    for tau in range(12):
        e(f"ds_write_b128 v{vw}, {vr(Dt(tau))} offset:{1024 * tau}")
    e(f"s_lshl_b32 s{S_T}, s{S_P}, 3")
    e(f"s_add_u32 s{S_T}, s{S_T}, s{S_RB}")
    e(f"s_mul_i32 s{S_T}, s{S_T}, 12288")
    e(f"s_mul_i32 s{S_T + 1}, s{S_WAVE}, 3072")
    e(f"s_add_u32 s{S_T}, s{S_T}, s{S_T + 1}")
    e(f"s_add_u32 s{S_T + 10}, s{S_T}, {KVP_OFF}")
    h_half(12, 2, 0)
    e("s_waitcnt lgkmcnt(0)")
    e("s_barrier")
    R = [acc(t, m) for t in range(8) for m in (0, 2)]
    for w2 in range(4):
        for j in range(3):
            e(f"ds_read_b128 {vr(R[3 * w2 + j])}, v{vrd + (w2 & 2)} offset:{32768 * (w2 & 1) + 1024 * j}")
    e("s_waitcnt lgkmcnt(0)")
    for j in range(3):
        for h2 in range(2):
            b0 = R[j] + 2 * h2
            e(f"v_pk_add_f32 {vr(b0, 2)}, {vr(b0, 2)}, {vr(R[3 + j] + 2 * h2, 2)}")
            e(f"v_pk_add_f32 {vr(R[6 + j] + 2 * h2, 2)}, {vr(R[6 + j] + 2 * h2, 2)}, {vr(R[9 + j] + 2 * h2, 2)}")
        for h2 in range(2):
            b0 = R[j] + 2 * h2
            e(f"v_pk_add_f32 {vr(b0, 2)}, {vr(b0, 2)}, {vr(R[6 + j] + 2 * h2, 2)}")
        a.vmem(f"buffer_store_dwordx4 {vr(R[j])}, v{V_L16}, {WS}, s{S_T + 10} offen offset:{1024 * j} sc1", "sq")
    h_full(8, 0)
    a.wait(["sq"])
    setflag(1)
    h_full(10, 1)
    fin()


def gen_k1():
    a = Asm()
    e = a.e
    a.lines.append(".globl KNAME\n.p2align 8\n.type KNAME,@function\nKNAME:")
    if OPT.get('spin'):
        stamp(a, 0)
    e("s_cmp_ge_u32 s2, 256")
    e("s_cbranch_scc1 L_k1_exit")
    e(f"s_load_dwordx16 s[{S_PTR}:{S_PTR + 15}], s[0:1], 0")
    e(f"s_load_dwordx4 s[{S_PTR + 16}:{S_PTR + 19}], s[0:1], 64")
    e(f"s_load_dwordx2 s[{S_PTR + 20}:{S_PTR + 21}], s[0:1], 80")
    e(f"v_and_b32 v{V_LANE}, 63, v0")
    e(f"v_lshrrev_b32 v{V_T}, 6, v0")
    e(f"s_and_b32 s{S_T}, s2, 7")
    e(f"v_readfirstlane_b32 s{S_WAVE}, v{V_T}")
    e(f"s_lshr_b32 s{S_T + 1}, s2, 3")
    if OPT.get('map1', 0) == 0:
        e(f"s_and_b32 s{S_RB}, s{S_T}, 1")
        e(f"s_lshl_b32 s{S_RB}, s{S_RB}, 2")
        e(f"s_and_b32 s{S_T + 2}, s{S_T + 1}, 3")
        e(f"s_add_u32 s{S_RB}, s{S_RB}, s{S_T + 2}")
        e(f"s_lshr_b32 s{S_T}, s{S_T}, 1")
        e(f"s_lshl_b32 s{S_T}, s{S_T}, 3")
        e(f"s_lshr_b32 s{S_T + 1}, s{S_T + 1}, 2")
        e(f"s_add_u32 s{S_T}, s{S_T}, s{S_T + 1}")
    elif OPT['map1'] == 1:
        e(f"s_and_b32 s{S_RB}, s{S_T + 1}, 7")
        e(f"s_lshl_b32 s{S_T}, s{S_T}, 2")
        e(f"s_lshr_b32 s{S_T + 1}, s{S_T + 1}, 3")
        e(f"s_add_u32 s{S_T}, s{S_T}, s{S_T + 1}")
    else:
        e(f"s_and_b32 s{S_RB}, s{S_T}, 3")
        e(f"s_lshl_b32 s{S_RB}, s{S_RB}, 1")
        e(f"s_and_b32 s{S_T + 2}, s{S_T + 1}, 1")
        e(f"s_add_u32 s{S_RB}, s{S_RB}, s{S_T + 2}")
        e(f"s_lshr_b32 s{S_T}, s{S_T}, 2")
        e(f"s_lshl_b32 s{S_T}, s{S_T}, 4")
        e(f"s_lshr_b32 s{S_T + 1}, s{S_T + 1}, 1")
        e(f"s_add_u32 s{S_T}, s{S_T}, s{S_T + 1}")
    e(f"s_lshr_b32 s{S_P}, s{S_T}, 1")
    e(f"s_and_b32 s{S_T + 3}, s{S_T}, 1")
    e(f"s_cmp_lg_u32 s{S_T + 3}, 0")
    e("s_cbranch_scc1 L_k1_typeB")
    k1_body(a, 0)
    a.label("L_k1_typeB")
    a.vm = []
    k1_body(a, 1)
    a.vm = []
    phase2(a)
    a.label("L_k1_exit")
    e("s_endpgm")
    a.label("L_code_end")
    return a.lines


def K2_LDS():
    return OPT['S'] * 32768 + 24576


def fold_loops(a, iters, period, scnt, name):
    n = len(iters)
    i = 0
    lab = 0
    while i < n:
        reps = 1
        while i + (reps + 1) * period <= n and all(
                iters[i + k] == iters[i + reps * period + k] for k in range(period)):
            reps += 1
        if reps >= 2:
            a.e(f"s_mov_b32 s{scnt}, {reps}")
            a.label(f"L_{name}_{lab}")
            for k in range(period):
                a.lines += iters[i + k]
            a.e(f"s_sub_u32 s{scnt}, s{scnt}, 1")
            a.e(f"s_cmp_lg_u32 s{scnt}, 0")
            a.e(f"s_cbranch_scc1 L_{name}_{lab}")
            lab += 1
            i += reps * period
        else:
            a.lines += iters[i]
            i += 1


def schedule(a, mf, streams):
    n = len(mf)
    placed = []
    for si, (items, start, end) in enumerate(streams):
        m = len(items)
        prev = 0
        for j, it in enumerate(items):
            fn, early = it if isinstance(it, tuple) else (it, 0)
            pos = start + (j * (end - start)) / max(m, 1)
            pos = max(pos, early, prev)
            prev = pos
            placed.append((pos, si, j, fn))
    placed.sort(key=lambda x: (x[0], x[1], x[2]))
    k = 0
    if n == 0:
        for p in placed:
            p[3]()
        return
    for i in range(n):
        a.e(mf[i])
        while k < len(placed) and placed[k][0] < i + 1:
            placed[k][3]()
            k += 1
    while k < len(placed):
        placed[k][3]()
        k += 1


P_SW2, P_SWO, P_SWS, P_SOUT = 96, 20, 16, 4
P_SMT, P_SNT, P_SROLE, P_STILE = 8, 9, 10, 11
P_SOA, P_SOB, P_SOP, P_SM0A, P_SM0B = 12, 13, 14, 15, 27
P_SHD, P_SM2, P_SEARLY = 28, 29, 30
P_VBD = 2
P_SLOT = 32768


def tile_decode(a, smt, snt, srole, stile, st):
    e = a.e
    e(f"s_and_b32 s{st}, s2, 7")
    e(f"s_lshr_b32 s{st + 1}, s2, 3")
    e(f"s_and_b32 s{srole}, s{st}, 1")
    e(f"s_lshr_b32 s{st}, s{st}, 1")
    if OPT['map'] == 0:
        e(f"s_and_b32 s{smt}, s{st}, 1")
        e(f"s_lshl_b32 s{smt}, s{smt}, 3")
        e(f"s_and_b32 s{stile}, s{st + 1}, 7")
        e(f"s_add_u32 s{smt}, s{smt}, s{stile}")
        e(f"s_lshr_b32 s{snt}, s{st}, 1")
        e(f"s_lshl_b32 s{snt}, s{snt}, 2")
        e(f"s_lshr_b32 s{st + 1}, s{st + 1}, 3")
        e(f"s_add_u32 s{snt}, s{snt}, s{st + 1}")
    else:
        e(f"s_lshl_b32 s{smt}, s{st}, 2")
        e(f"s_and_b32 s{stile}, s{st + 1}, 3")
        e(f"s_add_u32 s{smt}, s{smt}, s{stile}")
        e(f"s_lshr_b32 s{snt}, s{st + 1}, 2")
    e(f"s_lshl_b32 s{stile}, s{smt}, 3")
    e(f"s_add_u32 s{stile}, s{stile}, s{snt}")


def p2_early(a):
    e = a.e
    S = OPT['S']
    n0 = OPT['n0']
    ST = S_T
    tile_decode(a, P_SMT, P_SNT, P_SROLE, P_STILE, ST)
    vi, vG, t0, t1, t2 = 6, 7, 8, 9, 10
    e(f"v_and_b32 v{vi}, 15, v{V_LANE}")
    e(f"v_lshrrev_b32 v{vG}, 4, v{V_LANE}")
    e(f"s_lshl_b32 s{P_SM0A}, s{S_WAVE}, 12")
    e(f"s_add_u32 s{P_SM0B}, s{P_SM0A}, 16384")
    e(f"s_lshl_b32 s{ST + 2}, s{P_SNT}, 8")
    e(f"s_lshl_b32 s{ST + 3}, s{S_WAVE}, 15")
    e(f"s_add_u32 s{ST + 2}, s{ST + 2}, s{ST + 3}")
    e(f"v_lshlrev_b32 v{t0}, 11, v{vG}")
    e(f"v_add_u32 v{t0}, s{ST + 2}, v{t0}")
    e(f"v_lshlrev_b32 v{t1}, 1, v{vG}")
    e(f"v_xor_b32 v{t1}, v{t1}, v{vi}")
    for j in range(4):
        if j & 1:
            e(f"v_xor_b32 v{t2}, 8, v{t1}")
            e(f"v_lshlrev_b32 v{t2}, 4, v{t2}")
        else:
            e(f"v_lshlrev_b32 v{t2}, 4, v{t1}")
        e(f"v_add_u32 v{t2}, v{t2}, v{t0}")
        e(f"v_add_u32 v{P_VBD + j}, {j * (8192 - 1024)}, v{t2}")
    e(f"s_mul_i32 s{P_SOB}, s{P_SROLE}, {n0 * 131072}")
    e(f"s_mul_i32 s{P_SOA}, s{P_SMT}, {144 * 8192}")
    e(f"s_mul_i32 s{ST}, s{P_SROLE}, {n0 * 16384}")
    e(f"s_add_u32 s{P_SOA}, s{P_SOA}, s{ST}")
    for j in range(S - 1):
        e(f"s_add_u32 m0, s{P_SM0B}, {j * P_SLOT}")
        e("s_nop 0")
        for i in range(4):
            a.vmem(f"buffer_load_dwordx4 v{P_VBD + i}, s[{P_SW2}:{P_SW2 + 3}], s{P_SOB} offen offset:{1024 * i} lds", "eB")
        e(f"s_add_u32 s{P_SOB}, s{P_SOB}, 131072")
    srd(a, ST + 4, S_PTR + 18, S_PTR + 19, 256)
    e(f"v_mov_b32 v12, 0")
    a.vmem(f"buffer_load_dwordx2 v[{V_TOK}:{V_TOK + 1}], v12, s[{ST + 4}:{ST + 7}], 0 offen sc1", "zc")


def phase2(a):
    e = a.e
    S = OPT['S']
    n0 = OPT['n0']
    SLOT = P_SLOT
    SCR = S * SLOT
    SWAVE = S_WAVE
    ST = S_T
    SCNT = S_CNT
    SMT, SNT, SROLE, STILE = P_SMT, P_SNT, P_SROLE, P_STILE
    SOA, SOB, SOP, SM0A, SM0B = P_SOA, P_SOB, P_SOP, P_SM0A, P_SM0B
    SW2, SWO, SOUT = P_SW2, P_SWO, P_SOUT
    WS = f"s[{P_SWS}:{P_SWS + 3}]"
    NBASE = (S + 1) // 2
    VL, VL16, VBD = V_LANE, V_L16, P_VBD
    vi, vG = 6, 7
    VZ = 11
    VAD = 8
    VFL = 10
    VFA = 9
    VAR = 12
    VBR = 18
    VT = 30
    VG = 38
    VOMG = 42
    VEPS = 46
    VEPS = 48
    CG = 52
    CR = 60
    CKV = 68
    CW = 80
    VX = 192
    VY = 84
    AC = 128
    t0, t1, t2, t3 = VT, VT + 1, VT + 2, VT + 3

    def acc2(mt, nt):
        return AC + 16 * mt + 4 * nt

    def FA(j, b, mt):
        return 64 * (j % 2) + 32 * b + 4 * mt

    def FB(j, b, nt):
        return 64 * (j % 2) + 32 * b + 16 + 4 * nt

    def setflag(lane):
        e(f"s_mov_b64 exec, {1 << lane}")
        a.vmem(f"buffer_store_dwordx2 v[{V_TOK}:{V_TOK + 1}], v0, {WS}, 0 offen sc1", "fl")
        e("s_mov_b64 exec, -1")

    VQ = VY

    def fq_load():
        e(f"buffer_load_dwordx2 v[{VQ}:{VQ + 1}], v{VQ + 2}, {WS}, 0 offen sc1")

    a.label("L_phase2")
    stamp(a, 0)
    e(f"s_and_b32 s{ST}, s2, 31")
    e(f"s_lshr_b32 s{ST}, s{ST}, 1")
    e(f"s_lshl_b32 s{ST}, s{ST}, 9")
    e(f"s_add_u32 s{ST}, s{ST}, {FQ_OFF}")
    e(f"v_lshlrev_b32 v{VQ + 2}, 3, v{VL}")
    e(f"v_add_u32 v{VQ + 2}, s{ST}, v{VQ + 2}")
    fq_load()
    e(f"v_add_u32 v{VAD}, s{SM0A}, v{VL16}")
    e(f"s_and_b32 s{ST}, s{SWAVE}, 1")
    e(f"s_lshl_b32 s{ST}, s{ST}, 12")
    e(f"v_add_u32 v{VAR}, s{ST}, v{VL16}")
    for k in range(1, NBASE):
        e(f"v_add_u32 v{VAR + k}, {65536 * k}, v{VAR}")
    e(f"v_lshlrev_b32 v{t0}, 2, v{vG}")
    e(f"v_lshrrev_b32 v{t1}, 2, v{vi}")
    e(f"v_add_u32 v{t0}, v{t0}, v{t1}")
    e(f"v_and_b32 v{t1}, 7, v{t0}")
    e(f"s_lshr_b32 s{ST}, s{SWAVE}, 1")
    e(f"s_lshl_b32 s{ST}, s{ST}, 2")
    e(f"v_xor_b32 v{t1}, s{ST}, v{t1}")
    e(f"v_lshlrev_b32 v{t0}, 8, v{t0}")
    e(f"v_and_b32 v{t2}, 3, v{vi}")
    e(f"v_lshlrev_b32 v{t2}, 3, v{t2}")
    e(f"v_add_u32 v{t0}, v{t0}, v{t2}")
    e(f"v_add_u32 v{t0}, 16384, v{t0}")
    for nt in range(4):
        e(f"v_xor_b32 v{t3}, {nt}, v{t1}")
        e(f"v_lshlrev_b32 v{t3}, 5, v{t3}")
        e(f"v_add_u32 v{VBR + nt}, v{t0}, v{t3}")
        for k in range(1, NBASE):
            e(f"v_add_u32 v{VBR + 4 * k + nt}, {65536 * k}, v{VBR + nt}")
    srd(a, SOUT, S_PTR + 16, S_PTR + 17, 2048 * 1024 * 2)
    srd(a, ST + 4, S_PTR + 18, S_PTR + 19, 256)
    e(f"s_lshl_b32 s{ST}, s{SMT}, 9")
    e(f"s_add_u32 s{ST}, s{ST}, {FA_OFF}")
    e(f"v_lshlrev_b32 v{VFA}, 3, v{VL}")
    e(f"v_add_u32 v{VFA}, s{ST}, v{VFA}")
    e("s_waitcnt vmcnt(0)")
    setflag(0)
    a.label("L_p2_qw")
    e(f"v_cmp_eq_u64 vcc, v[{VQ}:{VQ + 1}], v[{V_TOK}:{V_TOK + 1}]")
    e("s_nop 1")
    e("s_cmp_eq_u64 vcc, -1")
    e("s_cbranch_scc1 L_p2_qok")
    e(f"s_sleep {OPT.get('slp', 6)}")
    fq_load()
    e("s_waitcnt vmcnt(0)")
    e("s_branch L_p2_qw")
    a.label("L_p2_qok")
    stamp(a, 1)
    a.vm = []
    a.vmem(f"buffer_load_dwordx2 v[{VFL}:{VFL + 1}], v{VFA}, {WS}, 0 offen sc1", "fa")
    e(f"s_and_b32 s{P_SHD}, s2, 31")
    e(f"s_lshr_b32 s{P_SM2}, s2, 5")
    e(f"s_lshl_b32 s{P_SM2}, s{P_SM2}, 1")
    e(f"s_lshr_b32 s{ST}, s{SWAVE}, 1")
    e(f"s_add_u32 s{P_SM2}, s{P_SM2}, s{ST}")
    e(f"s_lshr_b32 s{ST}, s{P_SHD}, 1")
    e(f"s_lshl_b32 s{ST}, s{ST}, 3")
    e(f"s_lshl_b32 s{ST + 1}, s{SWAVE}, 1")
    e(f"s_add_u32 s{ST}, s{ST}, s{ST + 1}")
    e(f"s_mul_i32 s{ST}, s{ST}, 12")
    e(f"s_and_b32 s{ST + 1}, s{P_SHD}, 1")
    e(f"s_mul_i32 s{ST + 1}, s{ST + 1}, 6")
    e(f"s_add_u32 s{ST}, s{ST}, s{ST + 1}")
    e(f"s_lshl_b32 s{ST}, s{ST}, 10")
    e(f"s_add_u32 s{ST}, s{ST}, {KVP_OFF}")
    for r2 in range(2):
        for t6 in range(6):
            if t6 == 3:
                e(f"s_add_u32 s{ST}, s{ST}, 3072")
            a.vmem(f"buffer_load_dwordx4 {vr(VX + 24 * r2 + 4 * t6)}, v{VL16}, {WS}, s{ST} offen offset:{1024 * (t6 % 3)}", "kvp")
        if r2 == 0:
            e(f"s_add_u32 s{ST}, s{ST}, {12288 - 3072}")
    e(f"s_mul_i32 s{ST}, s{P_SM2}, 144")
    e(f"s_add_u32 s{ST}, s{ST}, s{P_SHD}")
    e(f"s_add_u32 s{ST}, s{ST}, 112")
    e(f"s_lshl_b32 s{ST}, s{ST}, 13")
    e(f"s_and_b32 s{ST + 1}, s{SWAVE}, 1")
    e(f"s_lshl_b32 s{ST + 1}, s{ST + 1}, 12")
    e(f"s_add_u32 s{ST}, s{ST}, s{ST + 1}")
    for i in range(4):
        a.vmem(f"buffer_load_dwordx4 {ar(128 + 4 * i)}, v{VL16}, {WS}, s{ST} offen offset:{1024 * i}", "pq")
    e(f"s_lshl_b32 s{SOP}, s{P_SM2}, 5")
    e(f"s_add_u32 s{SOP}, s{SOP}, s{P_SHD}")
    e(f"s_lshl_b32 s{SOP}, s{SOP}, 13")
    e(f"s_add_u32 s{SOP}, s{SOP}, s{ST + 1}")
    e(f"s_add_u32 s{SOP}, s{SOP}, {OF_OFF}")
    for r in range(4):
        e(f"v_mov_b32 v{VEPS + r}, {EPS_HEX}")
    e(f"s_mul_i32 s{ST}, s{SWAVE}, 6144")
    e(f"s_add_u32 s{ST}, s{ST}, {SCR}")
    e(f"v_add_u32 v{CW}, s{ST}, v{VL16}")
    e(f"v_add_u32 v{CW + 1}, {SCR}, v{VL16}")

    def issueA(track):
        for j in range(S - 1):
            e(f"s_add_u32 m0, s{SM0A}, {j * SLOT}")
            e("s_nop 0")
            for i in range(4):
                ins = f"buffer_load_dwordx4 v{VAD}, {WS}, s{SOA} offen offset:{1024 * i} {OPT['k2a']} lds"
                if track:
                    a.vmem(ins, f"D{j}")
                else:
                    e(ins)
            e(f"s_add_u32 s{SOA}, s{SOA}, 16384")

    a.wait(["kvp"])
    for q in range(12):
        e(f"v_pk_add_f32 {vr(VX + 2 * q, 2)}, {vr(VX + 2 * q, 2)}, {vr(VX + 24 + 2 * q, 2)}")
    for t6 in range(6):
        e(f"ds_write_b128 v{CW}, {vr(VX + 4 * t6)} offset:{1024 * t6}")
    a.wait(["pq"], lgkm=True)
    e("s_barrier")
    e(f"v_cmp_eq_u64 vcc, v[{VFL}:{VFL + 1}], v[{V_TOK}:{V_TOK + 1}]")
    e(f"s_mov_b32 s{P_SEARLY}, 0")
    e("s_nop 0")
    e("s_cmp_eq_u64 vcc, -1")
    e("s_cbranch_scc0 L_p2_noearly")
    issueA(False)
    e(f"s_mov_b32 s{P_SEARLY}, 1")
    a.label("L_p2_noearly")
    for dt in range(2):
        for w2 in range(4):
            for et in range(3):
                e(f"ds_read_b128 {vr((VX if dt == 0 else AC) + 12 * w2 + 4 * et)}, v{CW + 1} offset:{6144 * w2 + 1024 * (3 * dt + et)}")
    for dt in range(2):
        B_ = VX if dt == 0 else AC
        e(f"s_waitcnt lgkmcnt({12 if dt == 0 else 0})")
        for q in range(6):
            e(f"v_pk_add_f32 {vr(B_ + 2 * q, 2)}, {vr(B_ + 2 * q, 2)}, {vr(B_ + 12 + 2 * q, 2)}")
            e(f"v_pk_add_f32 {vr(B_ + 24 + 2 * q, 2)}, {vr(B_ + 24 + 2 * q, 2)}, {vr(B_ + 36 + 2 * q, 2)}")
        for q in range(6):
            e(f"v_pk_add_f32 {vr(B_ + 2 * q, 2)}, {vr(B_ + 2 * q, 2)}, {vr(B_ + 24 + 2 * q, 2)}")
        for et in range(3):
            for h2 in range(2):
                e(f"v_cvt_pk_bf16_f32 v{CKV + 4 * et + 2 * dt + h2}, v{B_ + 4 * et + 2 * h2}, v{B_ + 4 * et + 2 * h2 + 1}")
    e("s_nop 1")
    for i in range(4):
        d = VX + 12 * i
        pq = ar(128 + 4 * i)
        e(f"v_mfma_f32_16x16x32_bf16 {vr(d + 8)}, {vr(CKV + 8)}, {pq}, {vr(VEPS)}")
        e(f"v_mfma_f32_16x16x32_bf16 {vr(d)}, {vr(CKV)}, {pq}, 0")
        e(f"v_mfma_f32_16x16x32_bf16 {vr(d + 4)}, {vr(CKV + 4)}, {pq}, 0")
    e("s_nop 7")
    for i in range(4):
        e(f"v_rcp_f32 v{CR + i}, v{VX + 12 * i + 8}")
    e("s_nop 0")
    for i in range(4):
        d = VX + 12 * i
        sel = "op_sel:[0,1] op_sel_hi:[1,1]" if i & 1 else "op_sel_hi:[1,0]"
        for q in range(4):
            e(f"v_pk_mul_f32 {vr(d + 2 * q, 2)}, {vr(d + 2 * q, 2)}, {vr(CR + (i & 2), 2)} {sel}")
        o = VY + 4 * i
        for q in range(4):
            e(f"v_cvt_pk_bf16_f32 v{o + q}, v{d + 2 * q}, v{d + 2 * q + 1}")
        a.vmem(f"buffer_store_dwordx4 {vr(o)}, v{VL16}, {WS}, s{SOP} offen offset:{1024 * i} sc1", "ost")
    e(f"s_cmp_lg_u32 s{P_SEARLY}, 0")
    e("s_cbranch_scc1 L_p2_wasearly")
    a.label("L_p2_fw")
    e(f"buffer_load_dwordx2 v[{VFL}:{VFL + 1}], v{VFA}, {WS}, 0 offen sc1")
    e("s_waitcnt vmcnt(0)")
    e(f"v_cmp_eq_u64 vcc, v[{VFL}:{VFL + 1}], v[{V_TOK}:{V_TOK + 1}]")
    e("s_nop 1")
    e("s_cmp_eq_u64 vcc, -1")
    e("s_cbranch_scc1 L_p2_fok")
    e(f"s_sleep {OPT.get('slp', 6)}")
    e("s_branch L_p2_fw")
    a.label("L_p2_fok")
    issueA(True)
    e("s_branch L_p2_go")
    a.label("L_p2_wasearly")
    e("s_waitcnt vmcnt(4)")
    a.label("L_p2_go")
    e(f"s_cmp_eq_u32 s{SROLE}, 0")
    e(f"s_cbranch_scc1 L_p2_r0")
    vm_save = list(a.vm)

    import math
    PERIOD = S * 4 // math.gcd(S, 4)

    def body(role):
        R = f"r{role}"
        nact = n0 if role == 0 else 56 - n0
        N = nact if role == 0 else nact + 16
        JO = nact - (S - 1)
        JP = N - OPT['pj']

        def dmaA(j):
            f = []
            if j == nact:
                def sw():
                    e(f"s_lshl_b32 s{SOA}, s{SMT}, 18")
                    e(f"s_add_u32 s{SOA}, s{SOA}, {OF_OFF}")
                f.append(sw)
            f.append(lambda: e(f"s_add_u32 m0, s{SM0A}, {(j % S) * SLOT}"))
            for i in range(4):
                f.append(lambda i=i: a.vmem(
                    f"buffer_load_dwordx4 v{VAD}, {WS}, s{SOA} offen offset:{1024 * i} {OPT['k2a']} lds", f"D{j}"))
            f.append(lambda: e(f"s_add_u32 s{SOA}, s{SOA}, 16384"))
            return f

        def dmaB(j):
            sr = SW2 if j < nact else SWO
            f = []
            if j == nact:
                f.append(lambda: e(f"s_mov_b32 s{SOB}, 0"))
            f.append(lambda: e(f"s_add_u32 m0, s{SM0B}, {(j % S) * SLOT}"))
            for i in range(4):
                f.append(lambda i=i: a.vmem(
                    f"buffer_load_dwordx4 v{VBD + i}, s[{sr}:{sr + 3}], s{SOB} offen offset:{1024 * i} lds", f"D{j}"))
            f.append(lambda: e(f"s_add_u32 s{SOB}, s{SOB}, 131072"))
            return f

        def reads(j):
            sl = j % S
            k, so = sl // 2, (sl % 2) * SLOT
            f = []
            for q in range(4):
                for b in range(2):
                    f.append(lambda b=b, q=q: e(
                        f"ds_read_b128 {ar(FA(j, b, q))}, v{VAR + k} offset:{so + 8192 * b + 1024 * q}"))
                    for ins in range(2):
                        f.append(lambda b=b, q=q, ins=ins: e(
                            f"ds_read_b64_tr_b16 {ar(FB(j, b, q) + 2 * ins, 2)}, v{VBR + 4 * k + q} offset:{so + 8192 * b + 4096 * ins}"))
            return f

        a.wait(["D0"])
        e("s_barrier")
        stamp(a, 2)

        def post(j):
            if j == 4:
                assert "ost" not in a.vm and "D4" not in a.vm
                setflag(2)
            if role == 1 and j == 2:
                e(f"v_lshlrev_b32 v{t0}, 2, v{vi}")
                e(f"s_lshl_b32 s{ST}, s{SMT}, 9")
                e(f"s_and_b32 s{ST + 1}, s{SWAVE}, 1")
                e(f"s_lshl_b32 s{ST + 1}, s{ST + 1}, 8")
                e(f"s_add_u32 s{ST}, s{ST}, s{ST + 1}")
                e(f"s_add_u32 s{ST}, s{ST}, {G_OFF}")
                for i in range(4):
                    a.vmem(f"buffer_load_dword v{VG + i}, v{t0}, {WS}, s{ST} offen offset:{64 * i}", "g")
            if role == 1 and j == JO - 3:
                e(f"s_lshl_b32 s{ST}, s{SMT}, 9")
                e(f"s_add_u32 s{ST}, s{ST}, {FO_OFF}")
                e(f"v_lshlrev_b32 v{VFA}, 3, v{VL}")
                e(f"v_add_u32 v{VFA}, s{ST}, v{VFA}")
                a.vmem(f"buffer_load_dwordx2 v[{VFL}:{VFL + 1}], v{VFA}, {WS}, 0 offen sc1", "F")
            if role == 1 and j == JO - 1:
                a.wait(["F"])
                a.label("L_p2_ow")
                e(f"v_cmp_eq_u64 vcc, v[{VFL}:{VFL + 1}], v[{V_TOK}:{V_TOK + 1}]")
                e("s_nop 1")
                e("s_cmp_eq_u64 vcc, -1")
                e("s_cbranch_scc1 L_p2_ook")
                e("s_sleep 4")
                e(f"buffer_load_dwordx2 v[{VFL}:{VFL + 1}], v{VFA}, {WS}, 0 offen sc1")
                e("s_waitcnt vmcnt(0)")
                e("s_branch L_p2_ow")
                a.label("L_p2_ook")
            if role == 1 and j == JP - 1:
                e(f"s_lshl_b32 s{ST}, s{STILE}, 8")
                e(f"s_lshl_b32 s{ST + 1}, s{SWAVE}, 3")
                e(f"s_add_u32 s{ST}, s{ST}, s{ST + 1}")
                e(f"s_add_u32 s{ST}, s{ST}, {FP_OFF}")
                e(f"v_mov_b32 v{VFA}, s{ST}")
                a.vmem(f"buffer_load_dwordx2 v[{VFL}:{VFL + 1}], v{VFA}, {WS}, 0 offen sc1", "F2")
            if role == 1 and j == JP:
                a.wait(["F2"])
                a.label("L_p2_pw")
                e(f"v_cmp_eq_u64 vcc, v[{VFL}:{VFL + 1}], v[{V_TOK}:{V_TOK + 1}]")
                e("s_nop 1")
                e("s_cmp_eq_u64 vcc, -1")
                e("s_cbranch_scc1 L_p2_pok")
                e("s_sleep 2")
                e(f"buffer_load_dwordx2 v[{VFL}:{VFL + 1}], v{VFA}, {WS}, 0 offen sc1")
                e("s_waitcnt vmcnt(0)")
                e("s_branch L_p2_pw")
                a.label("L_p2_pok")
                e(f"s_lshl_b32 s{ST}, s{STILE}, 16")
                e(f"s_lshl_b32 s{ST + 1}, s{SWAVE}, 13")
                e(f"s_add_u32 s{ST}, s{ST}, s{ST + 1}")
                e(f"s_add_u32 s{ST}, s{ST}, {PART_OFF}")
                for q in range(8):
                    if q == 4:
                        e(f"s_add_u32 s{ST}, s{ST}, 4096")
                    a.vmem(f"buffer_load_dwordx4 {vr(VY + 4 * q)}, v{VL16}, {WS}, s{ST} offen offset:{1024 * (q & 3)} sc1", "PT")

        def interval(j):
            if DIAG and OPT.get('ts2'):
                if j == 0:
                    e("s_mov_b32 s71, 0")
                e("s_memrealtime s[76:77]")
                e("s_waitcnt lgkmcnt(0)")
                e("s_mov_b32 m0, s71")
                e("s_nop 0")
                e(f"v_writelane_b32 v{VT + 7}, s76, m0")
                e("s_add_u32 s71, s71, 1")
            main = []
            if j >= 1:
                for mt in range(4):
                    for nt in range(4):
                        D = vr(acc2(mt, nt) + (64 if j - 1 >= nact else 0))
                        for b in range(2):
                            C = "0" if (j in (1, nact + 1) and b == 0) else D
                            main.append(f"v_mfma_f32_16x16x32_bf16 {D}, {ar(FB(j - 1, b, nt))}, {ar(FA(j - 1, b, mt))}, {C}")
            rd = reads(j) if j < N else []
            dm = (dmaA(j + S - 1) + dmaB(j + S - 1)) if j + S - 1 < N else []
            n = max(len(main), 1)
            schedule(a, main, [(rd, 0, n * 0.85), (dm, 0.5, n * 0.95)])
            post(j)
            if j < N:
                a.wait([f"D{j + 1}"] if j + 1 < N else [], lgkm=True)
                if j + 1 < N:
                    e("s_barrier")

        iters = []
        for j in range(N + 1):
            n_ = len(a.lines)
            if j == 4:
                stamp(a, 3)
            if role == 1 and j == nact:
                stamp(a, 4)
            interval(j)
            iters.append(a.lines[n_:])
            del a.lines[n_:]
        fold_loops(a, iters, PERIOD, SCNT, f"p2{R}")
        if role == 0:
            stamp(a, 4)
        stamp(a, 5)
        if role == 0:
            e(f"s_lshl_b32 s{ST}, s{STILE}, 16")
            e(f"s_lshl_b32 s{ST + 1}, s{SWAVE}, 13")
            e(f"s_add_u32 s{ST}, s{ST}, s{ST + 1}")
            e(f"s_add_u32 s{ST}, s{ST}, {PART_OFF}")
            e("s_nop 7")
            for q in range(8):
                b0 = AC + 8 * q
                for r in range(4):
                    e(f"v_cvt_pk_bf16_f32 v{b0 + r}, v{b0 + 2 * r}, v{b0 + 2 * r + 1}")
                e(f"buffer_store_dwordx4 {vr(b0)}, v{VL16}, {WS}, s{ST} offen offset:{1024 * (q & 3)} sc1")
                if q == 3:
                    e(f"s_add_u32 s{ST}, s{ST}, 4096")
            e("s_waitcnt vmcnt(0)")
            setflag(3)
            stamp(a, 6)
        else:
            vo = VT + 4
            e(f"v_lshlrev_b32 v{t2}, 11, v{vi}")
            e(f"v_bfe_u32 v{t3}, v{VL}, 4, 1")
            e(f"v_lshlrev_b32 v{t3}, 5, v{t3}")
            e(f"v_add_u32 v{t2}, v{t2}, v{t3}")
            e(f"v_lshrrev_b32 v{t3}, 5, v{VL}")
            e(f"v_lshlrev_b32 v{t3}, 4, v{t3}")
            e(f"v_add_u32 v{vo}, v{t2}, v{t3}")
            e(f"s_lshl_b32 s{ST}, s{SMT}, 7")
            e(f"s_and_b32 s{ST + 1}, s{SWAVE}, 1")
            e(f"s_lshl_b32 s{ST + 1}, s{ST + 1}, 6")
            e(f"s_add_u32 s{ST}, s{ST}, s{ST + 1}")
            e(f"s_lshl_b32 s{ST}, s{ST}, 11")
            e(f"s_lshl_b32 s{ST + 1}, s{SNT}, 8")
            e(f"s_add_u32 s{ST}, s{ST}, s{ST + 1}")
            e(f"s_lshr_b32 s{ST + 1}, s{SWAVE}, 1")
            e(f"s_lshl_b32 s{ST + 1}, s{ST + 1}, 7")
            e(f"s_add_u32 s{ST}, s{ST}, s{ST + 1}")
            for i in range(4):
                e(f"v_sub_f32 v{VOMG + i}, 1.0, v{VG + i}")
            for mt in range(4):
                sel2 = "op_sel:[0,1] op_sel_hi:[1,1]" if mt & 1 else "op_sel_hi:[1,0]"
                sel = "op_sel:[1,0,0] op_sel_hi:[1,1,1]" if mt & 1 else "op_sel_hi:[0,1,1]"
                for q in range(8):
                    b0 = acc2(mt, 0) + 2 * q
                    e(f"v_pk_mul_f32 {vr(b0, 2)}, {vr(b0, 2)}, {vr(VOMG + (mt & 2), 2)} {sel2}")
                for q in range(8):
                    b0 = acc2(mt, 0) + 2 * q
                    e(f"v_pk_fma_f32 {vr(b0, 2)}, {vr(VG + (mt & 2), 2)}, {vr(b0 + 64, 2)}, {vr(b0, 2)} {sel}")
            a.wait(["PT"])
            for mt in range(4):
                sel = "op_sel:[1,0,0] op_sel_hi:[1,1,1]" if mt & 1 else "op_sel_hi:[0,1,1]"
                for q in range(8):
                    p0 = VY + 8 * mt + q
                    u = VX + 2 * q
                    e(f"v_lshlrev_b32 v{u}, 16, v{p0}")
                    e(f"v_and_b32 v{u + 1}, 0xffff0000, v{p0}")
                for q in range(8):
                    b0 = acc2(mt, 0) + 2 * q
                    u = VX + 2 * q
                    e(f"v_pk_fma_f32 {vr(b0, 2)}, {vr(VOMG + (mt & 2), 2)}, {vr(u, 2)}, {vr(b0, 2)} {sel}")
                for pr in range(2):
                    b0 = acc2(mt, 2 * pr)
                    for q in range(4):
                        e(f"v_cvt_pk_bf16_f32 v{b0 + q}, v{b0 + 2 * q}, v{b0 + 2 * q + 1}")
                e("s_nop 1")
                for pr in range(2):
                    b0 = acc2(mt, 2 * pr)
                    e(f"v_permlane16_swap_b32 v{b0}, v{b0 + 2}")
                    e(f"v_permlane16_swap_b32 v{b0 + 1}, v{b0 + 3}")
                for pr in range(2):
                    b0 = acc2(mt, 2 * pr)
                    e(f"buffer_store_dwordx4 {vr(b0)}, v{vo}, s[{SOUT}:{SOUT + 3}], s{ST} offen offset:{64 * pr}")
                if mt < 3:
                    e(f"s_add_u32 s{ST}, s{ST}, 32768")
            stamp(a, 6)
        if DIAG and OPT.get('ts2'):
            e(f"s_mov_b32 s76, s{S_PTR + 20}")
            e(f"s_and_b32 s77, s{S_PTR + 21}, 0xffff")
            e(f"s_mov_b32 s78, 0x4000000")
            e(f"s_mov_b32 s79, 0x20000")
            e(f"s_lshl_b32 s75, s2, 2")
            e(f"s_add_u32 s75, s75, s{S_WAVE}")
            e(f"s_lshl_b32 s75, s75, 8")
            e(f"s_add_u32 s75, s75, {DIAG_OFF + 0x200000}")
            e(f"v_lshlrev_b32 v{VT}, 2, v{VL}")
            e(f"buffer_store_dword v{VT + 7}, v{VT}, s[76:79], s75 offen")
        if DIAG:
            e("s_waitcnt vmcnt(0)")
        stamp(a, 7)
        stamp_dump(a, 1, 8, SWAVE, S_PTR + 20, S_PTR + 21, VT + 5)
        e("s_endpgm")

    body(1)
    a.label("L_p2_r0")
    a.vm = vm_save
    body(0)


def fix_hazards(lines):
    out = []
    for i, ln in enumerate(lines):
        out.append(ln)
        if " m0," in ln and i + 1 < len(lines) and lines[i + 1].rstrip().endswith("lds"):
            out.append("  s_nop 0")
    return out


def gen_spin():
    a = Asm()
    e = a.e
    spec = OPT['spin']
    A_, B_, M = spec.split(",")
    a.lines.append(".globl spin_kernel\n.p2align 8\n.type spin_kernel,@function\nspin_kernel:")
    e("s_cmp_lg_u32 s2, 0")
    e("s_cbranch_scc1 L_spin_end")
    e("s_load_dwordx2 s[4:5], s[0:1], 80")
    e("v_lshlrev_b32 v1, 7, v0")
    e("s_waitcnt lgkmcnt(0)")
    e("s_mov_b32 s8, s4\ns_and_b32 s9, s5, 0xffff\ns_mov_b32 s10, 0x4000000\ns_mov_b32 s11, 0x20000")

    def red(sp, sdst):
        k, st, op = sp.split(".")
        base = DIAG_OFF + int(k) * 0x100000 + 8 * int(st) + 4
        for i in range(16):
            e(f"s_mov_b32 s12, {base + i * 8192}")
            e(f"buffer_load_dword v{8 + i}, v1, s[8:11], s12 offen")
        e("s_waitcnt vmcnt(0)")
        for i in range(1, 16):
            e(f"v_{op}_u32 v8, v8, v{8 + i}")
        e("s_nop 1")
        e(f"v_readlane_b32 s{sdst}, v8, 0")
        for l in range(1, 64):
            e(f"v_readlane_b32 s13, v8, {l}")
            e("s_nop 0")
            e(f"s_{op}_u32 s{sdst}, s{sdst}, s13")
    red("0.0.min", 20)
    red(A_, 21)
    red(B_, 22)
    e("s_sub_u32 s22, s22, s21")
    e(f"s_mul_i32 s22, s22, {M}")
    e("s_add_u32 s22, s22, 12000")
    e("s_min_u32 s22, s22, 60000")
    a.label("L_spin")
    e("s_memrealtime s[14:15]")
    e("s_waitcnt lgkmcnt(0)")
    e("s_sub_u32 s16, s14, s20")
    e("s_cmp_lt_u32 s16, s22")
    e("s_cbranch_scc1 L_spin")
    a.label("L_spin_end")
    e("s_endpgm")
    return a.lines


def kd(name, nfv, accum):
    return f""".amdhsa_kernel {name}
  .amdhsa_next_free_vgpr {nfv}
  .amdhsa_next_free_sgpr 102
  .amdhsa_accum_offset {accum}
  .amdhsa_group_segment_fixed_size 0
  .amdhsa_kernarg_size 88
  .amdhsa_user_sgpr_count 2
  .amdhsa_user_sgpr_kernarg_segment_ptr 1
  .amdhsa_system_sgpr_workgroup_id_x 1
.end_amdhsa_kernel"""


def main(path):
    hdr = open(f"cdna_kernels/{NAME}.s.ref").read().split("; Override launch")[0]
    out = [hdr.rstrip("\n")]
    kn = NAME + "_kernel"
    if OPT.get('spin'):
        out.append(f"; @launch kernel={kn} grid=(256,1,1) block=(256,1,1) lds={K2_LDS()}")
        out.append("; @launch kernel=spin_kernel grid=(1,1,1) block=(64,1,1) lds=0")
    else:
        out.append(f"; @launch grid=(256,1,1) block=(256,1,1) lds={K2_LDS()}")
    out.append('.amdgcn_target "amdgcn-amd-amdhsa--gfx950"')
    out.append(".text")
    out += [ln.replace("KNAME", kn) for ln in fix_hazards(gen_k1())]
    if OPT.get('spin'):
        out += gen_spin()
    out.append('.section .rodata,"a"')
    if OPT.get('spin'):
        out.append(".p2align 6")
        out.append(kd("spin_kernel", 32, 32))
    out.append(".p2align 6")
    out.append(kd(kn, 256 + 160, 256))
    open(path, "w").write("\n".join(out) + "\n")


if __name__ == "__main__":
    if "--dbgout" in sys.argv:
        DBGOUT = True
        sys.argv.remove("--dbgout")
    if "--diag" in sys.argv:
        DIAG = True
        sys.argv.remove("--diag")
    for arg in list(sys.argv):
        if "=" in arg:
            k_, v_ = arg.split("=")
            OPT[k_] = int(v_) if v_.isdigit() else v_.replace("+", " ")
            sys.argv.remove(arg)
    main(sys.argv[1] if len(sys.argv) > 1 else f"cdna_kernels/{NAME}.s")
```

```python
import sys

NAME = "gated_mix__linear_attn_block__dense_activation_mish__prompt"

AF_OFF = 0
AF_BYTES = 16 * 144 * 8 * 1024
KVP_OFF = AF_BYTES
KVP_BYTES = 16 * 8 * 12 * 1024
KVF_OFF = KVP_OFF + KVP_BYTES
KVF_BYTES = 32 * 3 * 1024
G_OFF = KVF_OFF + KVF_BYTES
PART_OFF = G_OFF + 8192
OF_OFF = PART_OFF + 128 * 65536
FLG_OFF = OF_OFF + 16 * 32 * 8192
FA_OFF = FLG_OFF
FQ_OFF = FA_OFF + 8192
FO_OFF = FQ_OFF + 8192
FP_OFF = FO_OFF + 8192
WS_USED = FP_OFF + 128 * 256
V_TOK = 14

DIAG = False
DBGOUT = False
OPT = dict(k1a="", k1b="", k2a="", k2b="", st="sc1", pf=3, xpf=1, n0=34, cpf=1, map=2, S=4, pbf=1, pj=2, pprio=0, cprio=0, rdend=26)
DIAG_OFF = 0x2000000
EPS_HEX = "0x358637bd"
L2E_HEX = "0x3fb8aa3b"


class Asm:
    def __init__(self):
        self.lines = []
        self.vm = []

    def e(self, s):
        for ln in s.split("\n"):
            self.lines.append("  " + ln.strip())

    def label(self, s):
        self.lines.append(s + ":")

    def vmem(self, s, tag):
        self.e(s)
        self.vm.append(tag)

    def mark(self, tag):
        self.vm.append("#" + tag)

    def vm_count(self, tags, drop=True):
        idx = -1
        for i, t in enumerate(self.vm):
            if t in tags:
                idx = i
        if idx < 0:
            return None
        n = sum(1 for t in self.vm[idx + 1:] if not t.startswith("#"))
        if drop:
            self.vm = self.vm[idx + 1:]
        assert n <= 63, n
        return n

    def wait(self, tags=(), lgkm=False):
        n = self.vm_count(tags) if tags else None
        parts = []
        if n is not None:
            parts.append(f"vmcnt({n})")
        if lgkm:
            parts.append("lgkmcnt(0)")
        if parts:
            self.e("s_waitcnt " + " ".join(parts))


def stamp(a, idx, sbase=80):
    if not DIAG:
        return
    a.e(f"s_memtime s[{sbase - 4}:{sbase - 3}]")
    a.e(f"s_memrealtime s[{sbase - 2}:{sbase - 1}]")
    a.e("s_waitcnt lgkmcnt(0)")
    a.e(f"s_mov_b32 s{sbase + 2 * idx}, s{sbase - 4}")
    a.e(f"s_mov_b32 s{sbase + 2 * idx + 1}, s{sbase - 2}")


def stamp_dump(a, kidx, n, swave, sptr_lo, sptr_hi, vtmp, sbase=80):
    if not DIAG:
        return
    e = a.e
    e(f"s_mov_b32 s{sbase - 4}, s{sptr_lo}")
    e(f"s_and_b32 s{sbase - 3}, s{sptr_hi}, 0xffff")
    e(f"s_mov_b32 s{sbase - 2}, 0x4000000")
    e(f"s_mov_b32 s{sbase - 1}, 0x20000")
    e(f"s_lshl_b32 s75, s2, 2")
    e(f"s_add_u32 s75, s75, s{swave}")
    e(f"s_lshl_b32 s75, s75, 7")
    e(f"s_add_u32 s75, s75, {DIAG_OFF + kidx * 0x100000}")
    e(f"v_mov_b32 v{vtmp}, 0")
    e("s_mov_b64 exec, 1")
    for i in range(2 * n):
        e(f"v_mov_b32 v{vtmp + 1}, s{sbase + i}")
        e(f"buffer_store_dword v{vtmp + 1}, v{vtmp}, s[{sbase - 4}:{sbase - 1}], s75 offen offset:{4 * i}")
        e("s_nop 1")
    e("s_mov_b64 exec, -1")
    if DBGOUT:
        lab = f"L_dbg_{len(a.lines)}"
        e(f"s_cmp_lg_u32 s2, 1")
        e(f"s_cbranch_scc1 {lab}")
        e(f"s_cmp_lg_u32 s{swave}, 0")
        e(f"s_cbranch_scc1 {lab}")
        e(f"s_mov_b32 s{sbase - 4}, s{sptr_lo - 2}")
        e(f"s_and_b32 s{sbase - 3}, s{sptr_hi - 2}, 0xffff")
        e(f"s_mov_b32 s{sbase - 2}, 256")
        e("s_mov_b64 exec, 1")
        for i in range(n):
            e(f"v_mov_b32 v{vtmp + 1}, s{sbase + 2 * i + 1}")
            e(f"buffer_store_dword v{vtmp + 1}, v{vtmp}, s[{sbase - 4}:{sbase - 1}], 0 offen offset:{4 * i + 32 * kidx}")
            e("s_nop 1")
        e("s_mov_b64 exec, -1")
        a.label(lab)


def vr(b, n=4):
    return f"v[{b}:{b + n - 1}]"


def ar(b, n=4):
    return f"a[{b}:{b + n - 1}]"


def interleave(a, mf, fillers, start=0, end=None):
    n = len(mf)
    if end is None:
        end = n
    nf = len(fillers)
    pos = [start + (j * (end - start)) // max(nf, 1) for j in range(nf)]
    j = 0
    for m in range(n):
        a.e(mf[m])
        while j < nf and pos[j] <= m:
            f = fillers[j]
            f()
            j += 1
    while j < nf:
        fillers[j]()
        j += 1


def srd(a, d, lo, hi, nbytes, bias=0):
    if bias:
        a.e(f"s_sub_u32 s{d}, s{lo}, {bias}")
        a.e(f"s_subb_u32 s{d + 1}, s{hi}, 0")
        a.e(f"s_and_b32 s{d + 1}, s{d + 1}, 0xffff")
    else:
        a.e(f"s_mov_b32 s{d}, s{lo}")
        a.e(f"s_and_b32 s{d + 1}, s{hi}, 0xffff")
    a.e(f"s_mov_b32 s{d + 2}, {nbytes + bias}")
    a.e(f"s_mov_b32 s{d + 3}, 0x20000")


K1_BSLOT = 13312
K1_AREA = 3328
K1_ABASE = 4 * K1_BSLOT
K1_LDS = K1_ABASE + 4 * 16384
ACC0 = 48


def acc(t, mt):
    return ACC0 + 16 * t + 4 * mt


V_LANE = 1
V_ARD = 2
V_QRD = 4
V_HRD = 8
V_ADMA = 9
V_BDMA = 13
V_L16 = 17
V_T = 18
S_X, S_Q, S_W1, S_WS, S_MISC = 4, 8, 12, 16, 20
S_WAVE, S_RB, S_P = 24, 25, 26
S_OFFA, S_OFFA2, S_OFFQ, S_OFFH = 27, 28, 29, 30
S_M0B, S_M0A = 31, 32
S_CNT = 33
S_QM = 34
S_PTR = 36
S_L2E = 58
S_T = 60
S_AFB = 72
S_GROW = 73
S_PO1, S_PO2 = 74, 3
S_PT, S_PTE = 100, 101
S_PF1, S_PF2 = 96, 20


def bset(s, t):
    return 52 * s + 4 * t


ASET = {"X": 104, "Y": 120, "Z": 136}


def k1_body(a, typ):
    T = "A" if typ == 0 else "B"
    nq = 8 if typ == 0 else 4
    nh = 13 - nq
    Ph = 2 * nh
    HB = 256 * nq
    e = a.e
    vi, vG, t0, t1, t2, t3 = V_T, V_T + 1, V_T + 2, V_T + 3, V_T + 4, V_T + 5
    e(f"v_and_b32 v{vi}, 15, v{V_LANE}")
    e(f"v_lshrrev_b32 v{vG}, 4, v{V_LANE}")
    e(f"s_mul_i32 s{S_T + 2}, s{S_P}, 448")
    if typ:
        e(f"s_add_u32 s{S_T + 2}, s{S_T + 2}, 160")

    e(f"s_lshr_b32 s{S_T + 8}, s{S_WAVE}, 1")
    e(f"s_lshl_b32 s{S_T + 8}, s{S_T + 8}, 4")
    e(f"s_and_b32 s{S_T + 9}, s{S_WAVE}, 1")
    e(f"s_lshl_b32 s{S_T + 9}, s{S_T + 9}, 2")
    e(f"s_add_u32 s{S_T + 8}, s{S_T + 8}, s{S_T + 9}")

    def krow(dst, kp, tmp):
        e(f"v_lshrrev_b32 v{tmp}, 2, v{kp}")
        e(f"v_lshlrev_b32 v{tmp}, 3, v{tmp}")
        e(f"v_and_b32 v{dst}, 3, v{kp}")
        e(f"v_add3_u32 v{dst}, v{dst}, v{tmp}, s{S_T + 8}")

    e(f"v_lshrrev_b32 v{t0}, 3, v{V_LANE}")
    krow(t1, t0, t2)
    e(f"v_mul_u32_u24 v{t1}, 6144, v{t1}")
    e(f"v_lshrrev_b32 v{t2}, 1, v{t0}")
    e(f"v_and_b32 v{t2}, 3, v{t2}")
    e(f"v_lshlrev_b32 v{t2}, 1, v{t2}")
    e(f"v_and_b32 v{t3}, 7, v{V_LANE}")
    e(f"v_xor_b32 v{t3}, v{t3}, v{t2}")
    e(f"v_lshlrev_b32 v{t3}, 4, v{t3}")
    e(f"v_add_u32 v{t1}, v{t1}, v{t3}")
    e(f"s_lshl_b32 s{S_T + 9}, s{S_P}, 7")
    e(f"s_add_u32 s{S_T + 9}, s{S_T + 9}, {4096 + (2048 if typ == 0 else 0)}")
    e(f"v_add_u32 v{V_BDMA}, s{S_T + 9}, v{t1}")
    if typ == 0:
        e(f"v_add_u32 v{V_BDMA + 1}, {2048 - 1024}, v{V_BDMA}")
    hins = [(2, 0), (3, 64)] if typ == 0 else [(1, 0), (2, 64), (3, 128)]
    magic, sh = (205, 11) if Ph == 10 else (57, 10)
    for s_ in range(8 * Ph + 64):
        if s_ < 8 * Ph:
            assert (s_ * magic) >> sh == s_ // Ph
    for slot, s0 in hins:
        e(f"v_add_u32 v{t0}, {s0}, v{V_LANE}")
        e(f"v_mul_u32_u24 v{t1}, {magic}, v{t0}")
        e(f"v_lshrrev_b32 v{t1}, {sh}, v{t1}")
        e(f"v_mul_u32_u24 v{t2}, {Ph}, v{t1}")
        e(f"v_sub_u32 v{t0}, v{t0}, v{t2}")
        e(f"v_and_b32 v{t1}, 7, v{t1}")
        krow(t2, t1, t3)
        e(f"v_mul_u32_u24 v{t2}, 7168, v{t2}")
        e(f"v_lshlrev_b32 v{t0}, 4, v{t0}")
        e(f"v_add3_u32 v{t0}, v{t0}, v{t2}, s{S_T + 2}")
        e(f"v_add_u32 v{V_BDMA + slot}, {4096 - 1024 * slot}, v{t0}")
    e(f"s_lshl_b32 s{S_T + 9}, s{S_RB}, 8")
    e(f"s_lshl_b32 s{S_T + 10}, s{S_WAVE}, 6")
    e(f"s_add_u32 s{S_T + 9}, s{S_T + 9}, s{S_T + 10}")
    e(f"s_lshl_b32 s{S_T + 9}, s{S_T + 9}, 11")
    e(f"v_lshrrev_b32 v{t0}, 3, v{V_LANE}")
    e(f"v_lshrrev_b32 v{t1}, 1, v{t0}")
    e(f"v_and_b32 v{t2}, 7, v{V_LANE}")
    e(f"v_xor_b32 v{t2}, v{t2}, v{t1}")
    e(f"v_lshlrev_b32 v{t0}, 11, v{t0}")
    e(f"v_add_u32 v{t0}, s{S_T + 9}, v{t0}")
    for j in range(4):
        if j & 1:
            e(f"v_xor_b32 v{t3}, 4, v{t2}")
            e(f"v_lshlrev_b32 v{t3}, 4, v{t3}")
        else:
            e(f"v_lshlrev_b32 v{t3}, 4, v{t2}")
        e(f"v_add_u32 v{t3}, v{t3}, v{t0}")
        e(f"v_add_u32 v{V_ADMA + j}, {j * (16384 - 1024)}, v{t3}")
    e(f"s_mul_i32 s{S_M0B}, s{S_WAVE}, {K1_AREA}")
    e(f"s_lshl_b32 s{S_M0A}, s{S_WAVE}, 14")
    e(f"s_add_u32 s{S_M0A}, s{S_M0A}, {K1_ABASE}")
    e(f"s_mov_b32 s{S_OFFA}, 0")
    e(f"s_mov_b32 s{S_OFFA2}, 65536")
    e(f"s_mov_b32 s{S_OFFQ}, 0")
    e(f"s_mov_b32 s{S_OFFH}, 0")
    e(f"s_mov_b32 s{S_QM}, 0xffff")
    e(f"s_mov_b32 s{S_QM + 1}, 0")

    def dmaB(tt):
        slot = tt % 4
        tag = f"B{tt}"
        f = []
        srcs = [(S_Q, S_OFFQ), (S_Q, S_OFFQ) if typ == 0 else (S_W1, S_OFFH), (S_W1, S_OFFH)]
        f.append(lambda: e(f"s_add_u32 m0, s{S_M0B}, {slot * K1_BSLOT}"))
        for j in range(3):
            sr, so = srcs[j]
            f.append(lambda j=j, sr=sr, so=so: a.vmem(
                f"buffer_load_dwordx4 v{V_BDMA + j}, s[{sr}:{sr + 3}], s{so} offen offset:{1024 * j} {OPT['k1b']} lds", tag))

        def q():
            e(f"s_mov_b64 exec, s[{S_QM}:{S_QM + 1}]")
            a.vmem(f"buffer_load_dwordx4 v{V_BDMA + 3}, s[{S_W1}:{S_W1 + 3}], s{S_OFFH} offen offset:3072 {OPT['k1b']} lds", tag)
            e("s_mov_b64 exec, -1")
        f.append(q)
        f.append(lambda: e(f"s_add_u32 s{S_OFFQ}, s{S_OFFQ}, {32 * 6144}"))
        f.append(lambda: e(f"s_add_u32 s{S_OFFH}, s{S_OFFH}, {32 * 7168}"))
        return f

    def dmaA(aa):
        slot = aa % 2
        tag = f"A{aa}"
        f = []
        for half in range(2):
            so = S_OFFA if half == 0 else S_OFFA2
            f.append(lambda half=half: e(f"s_add_u32 m0, s{S_M0A}, {slot * 8192 + half * 4096}"))
            for j in range(4):
                f.append(lambda j=j, so=so: a.vmem(
                    f"buffer_load_dwordx4 v{V_ADMA + j}, s[{S_X}:{S_X + 3}], s{so} offen offset:{1024 * j} {OPT['k1a']} lds", tag))
        f.append(lambda: e(f"s_add_u32 s{S_OFFA}, s{S_OFFA}, 128"))
        f.append(lambda: e(f"s_add_u32 s{S_OFFA2}, s{S_OFFA2}, 128"))
        return f

    def run_seq(fl):
        for fn in fl:
            n0 = len(a.lines)
            fn()
            if " m0," in a.lines[-1] and len(a.lines) == n0 + 1:
                e("s_nop 0")

    e("s_waitcnt lgkmcnt(0)")
    srd(a, S_Q, S_PTR + 2, S_PTR + 3, 1024 * 3072 * 2, bias=4096)
    srd(a, S_W1, S_PTR + 8, S_PTR + 9, 1024 * 3584 * 2, bias=4096)
    srd(a, S_X, S_PTR + 0, S_PTR + 1, 2048 * 1024 * 2)
    if not OPT.get('spin'):
        stamp(a, 0)
    run_seq(dmaB(0))
    run_seq(dmaA(0))
    srd(a, S_T + 4, S_PTR + 10, S_PTR + 11, 7168)
    e(f"v_lshlrev_b32 v{t1}, 3, v{vG}")
    for j in range(nh):
        a.vmem(f"buffer_load_dwordx2 {vr(acc(nq + j, 3), 2)}, v{t1}, s[{S_T + 4}:{S_T + 7}], s{S_T + 2} offen offset:{32 * j}", "bias")
    run_seq(dmaB(1))
    run_seq(dmaB(2))
    run_seq(dmaA(1))
    run_seq(dmaB(3))
    srd(a, S_WS, S_PTR + 20, S_PTR + 21, WS_USED)
    tile_decode(a, S_T + 4, S_T + 5, S_T + 6, S_T + 7, S_T)
    e(f"s_lshl_b32 s{S_T}, s{S_RB}, 1")
    e(f"s_lshr_b32 s{S_T + 1}, s{S_WAVE}, 1")
    e(f"s_add_u32 s{S_T}, s{S_T}, s{S_T + 1}")
    e(f"s_lshl_b32 s{S_T}, s{S_T}, 5")
    e(f"s_lshl_b32 s{S_T + 1}, s{S_P}, 1")
    e(f"s_add_u32 s{S_T}, s{S_T}, s{S_T + 1}")
    if typ:
        e(f"s_add_u32 s{S_T}, s{S_T}, 1")
    e(f"s_lshl_b32 s{S_T}, s{S_T}, 1")
    e(f"s_and_b32 s{S_T + 1}, s{S_WAVE}, 1")
    e(f"s_add_u32 s{S_T}, s{S_T}, s{S_T + 1}")
    e(f"s_lshl_b32 s{S_T}, s{S_T}, 3")
    e(f"s_add_u32 s{S_T}, s{S_T}, {FA_OFF}")
    e(f"v_writelane_b32 v0, s{S_T}, 0")
    e(f"s_lshl_b32 s{S_T}, s{S_P}, 4")
    e(f"s_add_u32 s{S_T}, s{S_T}, s{S_RB}")
    e(f"s_lshl_b32 s{S_T}, s{S_T}, 2")
    e(f"s_add_u32 s{S_T}, s{S_T}, s{S_WAVE}")
    e(f"s_lshl_b32 s{S_T}, s{S_T}, 3")
    e(f"s_add_u32 s{S_T}, s{S_T}, {FQ_OFF + 256 * typ}")
    e(f"v_writelane_b32 v0, s{S_T}, 1")
    e(f"s_lshr_b32 s{S_T}, s2, 5")
    e(f"s_lshl_b32 s{S_T}, s{S_T}, 1")
    e(f"s_lshr_b32 s{S_T + 1}, s{S_WAVE}, 1")
    e(f"s_add_u32 s{S_T}, s{S_T}, s{S_T + 1}")
    e(f"s_lshl_b32 s{S_T}, s{S_T}, 9")
    e(f"s_and_b32 s{S_T + 1}, s2, 31")
    e(f"s_lshl_b32 s{S_T + 1}, s{S_T + 1}, 4")
    e(f"s_add_u32 s{S_T}, s{S_T}, s{S_T + 1}")
    e(f"s_and_b32 s{S_T + 1}, s{S_WAVE}, 1")
    e(f"s_lshl_b32 s{S_T + 1}, s{S_T + 1}, 3")
    e(f"s_add_u32 s{S_T}, s{S_T}, s{S_T + 1}")
    e(f"s_add_u32 s{S_T}, s{S_T}, {FO_OFF}")
    e(f"s_lshl_b32 s{S_T + 1}, s{S_T + 7}, 8")
    e(f"s_lshl_b32 s{S_T + 3}, s{S_WAVE}, 3")
    e(f"s_add_u32 s{S_T + 1}, s{S_T + 1}, s{S_T + 3}")
    e(f"s_add_u32 s{S_T + 1}, s{S_T + 1}, {FP_OFF}")
    e(f"s_cmp_eq_u32 s{S_T + 6}, 0")
    e(f"s_cselect_b32 s{S_T + 1}, s{S_T + 1}, 0x7ffffff0")
    e(f"v_writelane_b32 v0, s{S_T}, 2")
    e(f"v_writelane_b32 v0, s{S_T + 1}, 3")
    if typ == 0:
        e(f"s_or_b32 s{S_T}, s2, s{S_WAVE}")
        e(f"s_cmp_lg_u32 s{S_T}, 0")
        e(f"s_cbranch_scc1 L_notok")
        e(f"s_memrealtime s[{S_T + 8}:{S_T + 9}]")
        srd(a, S_T + 4, S_PTR + 18, S_PTR + 19, 256)
        e("s_waitcnt lgkmcnt(0)")
        e(f"s_or_b32 s{S_T + 9}, s{S_T + 9}, 0x40000000")
        e(f"s_lshl_b32 s{S_T + 9}, s{S_T + 9}, 1")
        e(f"s_and_b32 s{S_T}, s{S_T + 8}, 1")
        e(f"s_or_b32 s{S_T + 9}, s{S_T + 9}, s{S_T}")
        e(f"s_or_b32 s{S_T + 8}, s{S_T + 8}, 1")
        e(f"v_mov_b32 v{V_T + 28}, s{S_T + 8}")
        e(f"v_mov_b32 v{V_T + 29}, s{S_T + 9}")
        e(f"v_mov_b32 v{V_T + 27}, 0")
        e("s_mov_b64 exec, 1")
        e(f"buffer_store_dwordx2 v[{V_T + 28}:{V_T + 29}], v{V_T + 27}, s[{S_T + 4}:{S_T + 7}], 0 offen sc1")
        e("s_mov_b64 exec, -1")
        e("s_nop 1")
        a.label("L_notok")
    if OPT.get('cpf'):
        e(f"s_getpc_b64 s[{S_T + 4}:{S_T + 5}]")
        a.label(f"L_pc_{T}")
        e(f"s_sub_u32 s{S_T + 4}, s{S_T + 4}, L_pc_{T}-KNAME")
        e(f"s_subb_u32 s{S_T + 5}, s{S_T + 5}, 0")
        e(f"s_lshr_b32 s{S_T}, s2, 3")
        e(f"s_and_b32 s{S_T}, s{S_T}, 3")
        e(f"s_lshl_b32 s{S_T}, s{S_T}, 2")
        e(f"s_add_u32 s{S_T}, s{S_T}, s{S_WAVE}")
        e(f"s_lshl_b32 s{S_T}, s{S_T}, 13")
        e(f"v_lshlrev_b32 v{V_T + 29}, 7, v{V_LANE}")
        e(f"v_add_u32 v{V_T + 29}, s{S_T}, v{V_T + 29}")
        e(f"v_min_u32 v{V_T + 29}, L_code_end-KNAME-4, v{V_T + 29}")
        a.vmem(f"global_load_dword v{V_T + 29}, v{V_T + 29}, s[{S_T + 4}:{S_T + 5}]", "pf")
    if OPT.get('xpf') == 1:
        e(f"v_and_b32 v{V_T + 28}, 31, v{V_LANE}")
        e(f"v_lshlrev_b32 v{V_T + 28}, 7, v{V_T + 28}")
        e(f"s_lshl_b32 s{S_T}, s2, 2")
        e(f"s_add_u32 s{S_T}, s{S_T}, s{S_WAVE}")
        e(f"s_lshl_b32 s{S_T}, s{S_T}, 12")
        a.vmem(f"buffer_load_dword v{V_T + 28}, v{V_T + 28}, s[{S_X}:{S_X + 3}], s{S_T} offen", "pf")
    if OPT.get('xpf') == 2:
        e(f"v_lshlrev_b32 v{V_T + 27}, 7, v{V_LANE}")
        e(f"s_lshr_b32 s{S_T}, s2, 5")
        e(f"s_lshl_b32 s{S_T}, s{S_T}, 2")
        e(f"s_add_u32 s{S_T}, s{S_T}, s{S_WAVE}")
        e(f"s_lshl_b32 s{S_T}, s{S_T}, 14")
        e(f"s_lshl_b32 s{S_T + 1}, s{S_RB}, 19")
        e(f"s_add_u32 s{S_T}, s{S_T}, s{S_T + 1}")
        a.vmem(f"buffer_load_dword v{V_T + 28}, v{V_T + 27}, s[{S_X}:{S_X + 3}], s{S_T} offen", "pf")
        e(f"s_add_u32 s{S_T}, s{S_T}, 8192")
        a.vmem(f"buffer_load_dword v{V_T + 28}, v{V_T + 27}, s[{S_X}:{S_X + 3}], s{S_T} offen", "pf")

    e(f"v_lshrrev_b32 v{t0}, 3, v{vi}")
    e(f"v_lshlrev_b32 v{t0}, 6, v{t0}")
    e(f"v_and_b32 v{t1}, 7, v{vi}")
    e(f"v_lshlrev_b32 v{t1}, 3, v{t1}")
    e(f"v_add_u32 v{t0}, v{t0}, v{t1}")
    e(f"v_lshrrev_b32 v{t1}, 1, v{vi}")
    e(f"v_xor_b32 v{t1}, v{t1}, v{vG}")
    e(f"v_add_u32 v{t2}, v{t0}, v{t1}")
    e(f"v_lshlrev_b32 v{t2}, 4, v{t2}")
    e(f"v_add_u32 v{V_ARD}, s{S_M0A}, v{t2}")
    e(f"v_xor_b32 v{t1}, 4, v{t1}")
    e(f"v_add_u32 v{t2}, v{t0}, v{t1}")
    e(f"v_lshlrev_b32 v{t2}, 4, v{t2}")
    e(f"v_add_u32 v{V_ARD + 1}, s{S_M0A}, v{t2}")
    e(f"v_and_b32 v{t0}, 1, v{vG}")
    e(f"v_lshlrev_b32 v{t0}, 2, v{t0}")
    e(f"v_lshrrev_b32 v{t1}, 2, v{vi}")
    e(f"v_add_u32 v{t0}, v{t0}, v{t1}")
    e(f"v_lshrrev_b32 v{t1}, 1, v{vG}")
    e(f"v_mul_u32_u24 v{t1}, {2 * K1_AREA}, v{t1}")
    e(f"v_and_b32 v{t2}, 3, v{vi}")
    e(f"v_lshlrev_b32 v{t2}, 3, v{t2}")
    e(f"v_add_u32 v{t1}, v{t1}, v{t2}")
    e(f"v_mul_u32_u24 v{t3}, {16 * Ph}, v{t0}")
    e(f"v_add3_u32 v{V_HRD}, v{t1}, v{t3}, {0}")
    e(f"v_add_u32 v{V_HRD}, {HB}, v{V_HRD}")
    e(f"v_lshlrev_b32 v{t3}, 7, v{t0}")
    e(f"v_add_u32 v{t1}, v{t1}, v{t3}")
    e(f"v_lshrrev_b32 v{t2}, 1, v{t0}")
    e(f"v_and_b32 v{t2}, 3, v{t2}")
    for t in range(4):
        e(f"v_xor_b32 v{t3}, {t}, v{t2}")
        e(f"v_lshlrev_b32 v{t3}, 5, v{t3}")
        e(f"v_add_u32 v{V_QRD + t}, v{t1}, v{t3}")
    e(f"v_lshlrev_b32 v{V_L16}, 4, v{V_LANE}")

    gw, gx0, gx1 = V_T, V_T + 8, V_T + 16
    gt = V_T + 24
    e(f"v_lshlrev_b32 v{gt}, 5, v{V_LANE}")
    e(f"s_lshl_b32 s{S_GROW}, s{S_RB}, 8")
    e(f"s_lshl_b32 s{S_T + 1}, s{S_WAVE}, 6")
    e(f"s_add_u32 s{S_GROW}, s{S_GROW}, s{S_T + 1}")
    e(f"s_lshl_b32 s{S_T + 1}, s{S_P}, 2")
    e(f"s_add_u32 s{S_GROW}, s{S_GROW}, s{S_T + 1}")
    if typ:
        e(f"s_add_u32 s{S_GROW}, s{S_GROW}, 2")
    e(f"s_lshl_b32 s{S_T + 1}, s{S_GROW}, 11")
    srd(a, S_MISC, S_PTR + 14, S_PTR + 15, 2048)
    a.vmem(f"buffer_load_dwordx4 {vr(gw)}, v{gt}, s[{S_MISC}:{S_MISC + 3}], 0 offen", "g")
    a.vmem(f"buffer_load_dwordx4 {vr(gw + 4)}, v{gt}, s[{S_MISC}:{S_MISC + 3}], 0 offen offset:16", "g")
    a.vmem(f"buffer_load_dwordx4 {vr(gx0)}, v{gt}, s[{S_X}:{S_X + 3}], s{S_T + 1} offen", "g")
    a.vmem(f"buffer_load_dwordx4 {vr(gx0 + 4)}, v{gt}, s[{S_X}:{S_X + 3}], s{S_T + 1} offen offset:16", "g")
    a.vmem(f"buffer_load_dwordx4 {vr(gx1)}, v{gt}, s[{S_X}:{S_X + 3}], s{S_T + 1} offen offset:2048", "g")
    a.vmem(f"buffer_load_dwordx4 {vr(gx1 + 4)}, v{gt}, s[{S_X}:{S_X + 3}], s{S_T + 1} offen offset:2064", "g")

    if OPT['pf']:
        srd(a, S_PF1, S_PTR + 12, S_PTR + 13, 3584 * 1024 * 2)
        srd(a, S_PF2, S_PTR + 4, S_PTR + 5, 1024 * 1024 * 2)
        nb = {1: 7, 2: 1, 3: 2, 4: 3}[OPT['pf']]
        PL1, PL2 = -(-56 // nb), -(-16 // nb)
        e(f"v_min_u32 v{V_T + 26}, {PL1 - 1}, v{V_LANE}")
        e(f"v_lshlrev_b32 v{V_T + 26}, 7, v{V_T + 26}")
        e(f"v_min_u32 v{V_T + 27}, {PL2 - 1}, v{V_LANE}")
        e(f"v_lshlrev_b32 v{V_T + 27}, 7, v{V_T + 27}")
        e(f"s_lshl_b32 s{S_T}, s2, 2")
        e(f"s_add_u32 s{S_T}, s{S_T}, s{S_WAVE}")
        e(f"s_mul_i32 s{S_PO1}, s{S_T}, 7168")
        e(f"s_lshl_b32 s{S_PO2}, s{S_T}, 11")

    if OPT.get('pt'):
        e(f"s_lshl_b32 s{S_T}, s{S_RB}, 1")
        e(f"s_lshr_b32 s{S_T + 1}, s{S_WAVE}, 1")
        e(f"s_add_u32 s{S_T}, s{S_T}, s{S_T + 1}")
        e(f"s_mul_i32 s{S_AFB}, s{S_T}, {144 * 8192}")
        e(f"s_and_b32 s{S_T + 1}, s{S_WAVE}, 1")
        e(f"s_lshl_b32 s{S_T + 1}, s{S_T + 1}, 12")
        e(f"s_add_u32 s{S_AFB}, s{S_AFB}, s{S_T + 1}")
        e(f"s_mul_i32 s{S_PT}, s{S_P}, {7 * 8192}")
        e(f"s_add_u32 s{S_PT}, s{S_PT}, s{S_AFB}")
        if typ:
            e(f"s_add_u32 s{S_PT}, s{S_PT}, {2 * 8192}")
        e(f"s_add_u32 s{S_PTE}, s{S_PT}, {(4 if typ else 2) * 8192}")
        e(f"v_and_b32 v{V_T + 25}, 31, v{V_LANE}")
        e(f"v_lshlrev_b32 v{V_T + 25}, 7, v{V_T + 25}")
        if typ:
            e(f"v_lshrrev_b32 v{V_T + 29}, 5, v{V_LANE}")
            e(f"v_lshlrev_b32 v{V_T + 29}, 13, v{V_T + 29}")
            e(f"v_add_u32 v{V_T + 29}, v{V_T + 29}, v{V_T + 25}")
            e(f"s_mul_i32 s{S_T}, s{S_P}, {2 * 8192}")
            e(f"s_add_u32 s{S_T}, s{S_T}, {112 * 8192}")
            e(f"s_add_u32 s{S_T}, s{S_T}, s{S_AFB}")
            a.vmem(f"buffer_load_dword v{V_T + 28}, v{V_T + 29}, s[{S_WS}:{S_WS + 3}], s{S_T} offen", "pf")

    def pt_items():
        return [lambda: a.vmem(f"buffer_load_dword v{V_T + 28}, v{V_T + 25}, s[{S_WS}:{S_WS + 3}], s{S_PT} offen", "pf"),
                lambda: e(f"s_add_u32 s{S_PT}, s{S_PT}, 8192"),
                lambda: e(f"s_min_u32 s{S_PT}, s{S_PT}, s{S_PTE}")]

    def pf_items(cond=None):
        if cond is None:
            return [lambda: a.vmem(f"buffer_load_dword v{V_T + 28}, v{V_T + 26}, s[{S_PF1}:{S_PF1 + 3}], s{S_PO1} offen", "pf"),
                    lambda: a.vmem(f"buffer_load_dword v{V_T + 28}, v{V_T + 27}, s[{S_PF2}:{S_PF2 + 3}], s{S_PO2} offen", "pf"),
                    lambda: e(f"s_add_u32 s{S_PO1}, s{S_PO1}, {128 * PL1}"),
                    lambda: e(f"s_add_u32 s{S_PO2}, s{S_PO2}, {128 * PL2}")]

        def blk():
            e(f"s_lshl_b32 s{S_T}, 1, s{S_CNT}")
            e(f"s_and_b32 s{S_T}, s{S_T}, {cond}")
            e(f"s_cbranch_scc0 L_k1{T}_nopf")
            e(f"buffer_load_dword v{V_T + 28}, v{V_T + 26}, s[{S_PF1}:{S_PF1 + 3}], s{S_PO1} offen")
            e(f"buffer_load_dword v{V_T + 28}, v{V_T + 27}, s[{S_PF2}:{S_PF2 + 3}], s{S_PO2} offen")
            e(f"s_add_u32 s{S_PO1}, s{S_PO1}, {128 * PL1}")
            e(f"s_add_u32 s{S_PO2}, s{S_PO2}, {128 * PL2}")
            a.label(f"L_k1{T}_nopf")
        return [blk]

    def g_items():
        d0, d1 = V_T + 24, V_T + 25
        L = []
        L.append(f"v_dot2_f32_bf16 v{d0}, v{gx0}, v{gw}, 0")
        L.append(f"v_dot2_f32_bf16 v{d1}, v{gx1}, v{gw}, 0")
        for j in range(1, 8):
            L.append(f"v_dot2_f32_bf16 v{d0}, v{gx0 + j}, v{gw + j}, v{d0}")
            L.append(f"v_dot2_f32_bf16 v{d1}, v{gx1 + j}, v{gw + j}, v{d1}")
        L.append("s_nop 3")
        for sh_ in (1, 2, 4, 8):
            L.append(f"s_nop 0\nv_add_f32_dpp v{d0}, v{d0}, v{d0} row_shr:{sh_} row_mask:0xf bank_mask:0xf bound_ctrl:0")
            L.append(f"s_nop 0\nv_add_f32_dpp v{d1}, v{d1}, v{d1} row_shr:{sh_} row_mask:0xf bank_mask:0xf bound_ctrl:0")
        L.append(f"s_nop 0\nv_add_f32_dpp v{d0}, v{d0}, v{d0} row_bcast:15 row_mask:0xa bank_mask:0xf")
        L.append(f"s_nop 0\nv_add_f32_dpp v{d1}, v{d1}, v{d1} row_bcast:15 row_mask:0xa bank_mask:0xf")
        L.append(f"s_nop 0\nv_add_f32_dpp v{d0}, v{d0}, v{d0} row_bcast:31 row_mask:0xc bank_mask:0xf")
        L.append(f"s_nop 0\nv_add_f32_dpp v{d1}, v{d1}, v{d1} row_bcast:31 row_mask:0xc bank_mask:0xf")
        L.append(f"v_mul_f32 v{d0}, 0xbfb8aa3b, v{d0}")
        L.append(f"v_mul_f32 v{d1}, 0xbfb8aa3b, v{d1}")
        L.append(f"v_exp_f32 v{d0}, v{d0}")
        L.append(f"v_exp_f32 v{d1}, v{d1}\ns_nop 0")
        L.append(f"v_add_f32 v{d0}, 1.0, v{d0}")
        L.append(f"v_add_f32 v{d1}, 1.0, v{d1}")
        L.append(f"v_rcp_f32 v{d0}, v{d0}")
        L.append(f"v_rcp_f32 v{d1}, v{d1}")
        L.append(f"v_mov_b32 v{gw}, 0")
        L.append(f"s_lshl_b32 s{S_T + 1}, s{S_GROW}, 2\ns_add_u32 s{S_T + 1}, s{S_T + 1}, {G_OFF}")
        L.append(f"s_lshl_b32 s{S_T + 3}, s2, 8\ns_add_u32 s{S_T + 3}, s{S_T + 3}, {FLG_OFF}")
        L.append(f"s_mov_b32 s{S_T + 8}, 0\ns_mov_b32 s{S_T + 9}, 0x80000000")
        F = [(lambda x=x: e(x)) for x in L]

        def st():
            e(f"s_mov_b64 exec, s[{S_T + 8}:{S_T + 9}]")
            a.vmem(f"buffer_store_dwordx2 v[{d0}:{d1}], v{gw}, s[{S_WS}:{S_WS + 3}], s{S_T + 1} offen sc1", "sq")
            e("s_mov_b64 exec, -1")
        F.append(st)
        return F

    a.wait(["bias"])
    for j in range(nh):
        src = acc(nq + j, 3)
        d = acc(nq + j, 0)
        e(f"v_lshlrev_b32 v{d}, 16, v{src}")
        e(f"v_and_b32 v{d + 1}, 0xffff0000, v{src}")
        e(f"v_lshlrev_b32 v{d + 2}, 16, v{src + 1}")
        e(f"v_and_b32 v{d + 3}, 0xffff0000, v{src + 1}")
    for t in range(4):
        for r in range(4):
            e(f"v_mov_b32 v{acc(t, 0) + r}, {EPS_HEX}")

    def rdB(tt):
        slot = tt % 4
        s = tt % 2
        f = []
        for t in range(13):
            for ins in range(2):
                if t < nq:
                    addr = V_QRD + (t & 3)
                    off = slot * K1_BSLOT + ins * K1_AREA + 1024 * (t >> 2)
                else:
                    addr = V_HRD
                    off = slot * K1_BSLOT + ins * K1_AREA + 32 * (t - nq)
                d = bset(s, t) + 2 * ins
                f.append(lambda d=d, addr=addr, off=off: e(f"ds_read_b64_tr_b16 {ar(d, 2)}, v{addr} offset:{off}"))
        return f

    def aset_of(tt):
        if tt % 2 == 0:
            return ASET["X"]
        return ASET["Y"] if tt % 4 == 1 else ASET["Z"]

    def rdA(aa):
        slot = aa % 2
        f = []
        for hh in range(2):
            base = aset_of(2 * aa + hh)
            for mt in range(4):
                f.append(lambda hh=hh, mt=mt, base=base: e(
                    f"ds_read_b128 {ar(base + 4 * mt)}, v{V_ARD + hh} offset:{slot * 8192 + mt * 2048}"))
        return f

    stamp(a, 1)
    a.wait(["B0", "A0"])
    e("s_barrier")
    stamp(a, 2)
    for fn in rdA(0) + rdB(0):
        fn()
    a.wait(["B1"], lgkm=True)
    e("s_barrier")

    NSTEP = 32

    def step(tt):
        if DIAG and OPT.get('ts'):
            e("s_memrealtime s[76:77]")
            e("s_waitcnt lgkmcnt(0)")
            e("s_mov_b32 m0, s78")
            e("s_nop 0")
            e(f"v_writelane_b32 v{V_T + 29}, s76, m0")
            e("s_add_u32 s78, s78, 1")
        s = tt % 2
        ab = aset_of(tt)
        mf = []
        for t in range(13):
            order = [1, 2, 3, 0] if tt == 0 else [0, 1, 2, 3]
            for mt in order:
                D = vr(acc(t, mt))
                if tt == 0:
                    C = "0" if (typ == 0 and 4 <= t < 8) else vr(acc(t, 0))
                else:
                    C = D
                W = ar(bset(s, t))
                X = ar(ab + 4 * mt)
                if typ == 0 and t < 8:
                    mf.append(f"v_mfma_f32_16x16x32_bf16 {D}, {X}, {W}, {C}")
                else:
                    mf.append(f"v_mfma_f32_16x16x32_bf16 {D}, {W}, {X}, {C}")
        rd = []
        if tt + 1 < NSTEP:
            rd = rdB(tt + 1)
            if tt % 2 == 1:
                rd = rdA((tt + 1) // 2) + rd
        dm = []
        if OPT.get('afirst', 1) and tt % 2 == 0 and tt // 2 + 2 < NSTEP // 2:
            dm += dmaA(tt // 2 + 2)
        if tt + 4 < NSTEP:
            dm += dmaB(tt + 4)
        if not OPT.get('afirst', 1) and tt % 2 == 0 and tt // 2 + 2 < NSTEP // 2:
            dm += dmaA(tt // 2 + 2)
        if OPT['pf'] == 1 and tt % 4 == 1 and tt < 28:
            dm += pf_items()
        if OPT['pf'] in (2, 3, 4) and tt == 28:
            dm += pf_items()
        if OPT['pf'] in (3, 4) and tt % 4 == 1 and 4 <= tt < 28:
            dm += pf_items({3: 1 << 4, 4: (1 << 5) | (1 << 3)}[OPT['pf']])
        if OPT.get('pt') and tt % 4 == 3 and tt < 28:
            dm += pt_items()
        fl = []
        i1 = i2 = 0
        n1, n2 = len(rd), len(dm)
        while i1 < n1 or i2 < n2:
            if i2 < n2 and (i1 >= n1 or i2 * n1 <= i1 * n2):
                fl.append(dm[i2]); i2 += 1
            else:
                fl.append(rd[i1]); i1 += 1
        if tt == NSTEP - 1:
            assert "g" not in a.vm
            fl = g_items()
        interleave(a, mf, fl, 0, 48)
        if tt + 1 < NSTEP:
            tags = []
            if tt + 2 < NSTEP:
                tags.append(f"B{tt + 2}")
            if tt % 2 == 0:
                tags.append(f"A{tt // 2 + 1}")
            a.wait(tags, lgkm=True)
            if tt + 2 < NSTEP:
                e("s_barrier")

    iters = []
    for it in range(8):
        n0 = len(a.lines)
        for tt in range(4 * it, 4 * it + 4):
            step(tt)
        iters.append(a.lines[n0:])
        del a.lines[n0:]
    for it in range(2, 7):
        assert iters[it] == iters[1], f"iteration {it} differs"
    stamp(a, 3)
    if DIAG and OPT.get('ts'):
        e("s_mov_b32 s78, 0")
    a.lines += iters[0]
    if not OPT.get('ts'):
        stamp(a, 4)
    e(f"s_mov_b32 s{S_CNT}, 6")
    a.label(f"L_k1{T}_loop")
    a.lines += iters[1]
    e(f"s_sub_u32 s{S_CNT}, s{S_CNT}, 1")
    e(f"s_cmp_lg_u32 s{S_CNT}, 0")
    e(f"s_cbranch_scc1 L_k1{T}_loop")
    a.lines += iters[7]
    assert all(not t.startswith(("A", "B")) for t in a.vm), a.vm

    stamp(a, 5)

    def fin():
        stamp(a, 6)
        stamp(a, 7)
        stamp_dump(a, 0, 8, S_WAVE, S_PTR + 20, S_PTR + 21, V_T)
        e("s_branch L_phase2")

    def setflag(lane):
        a.label(f"L_k1{T}_tw")
        e(f"v_readfirstlane_b32 s{S_T}, v{V_TOK + 1}")
        e(f"v_readfirstlane_b32 s{S_T + 1}, v{V_TOK}")
        e("s_nop 3")
        e(f"s_min_u32 s{S_T}, s{S_T}, s{S_T + 1}")
        e(f"s_cmp_lg_u32 s{S_T}, 0")
        e(f"s_cbranch_scc1 L_k1{T}_tok")
        e("s_sleep 4")
        e(f"buffer_load_dwordx2 v[{V_TOK}:{V_TOK + 1}], v12, s[{S_T + 4}:{S_T + 7}], 0 offen sc1")
        e("s_waitcnt vmcnt(0)")
        e(f"s_branch L_k1{T}_tw")
        a.label(f"L_k1{T}_tok")
        e(f"s_mov_b64 exec, {1 << lane}")
        a.vmem(f"buffer_store_dwordx2 v[{V_TOK}:{V_TOK + 1}], v0, s[{S_WS}:{S_WS + 3}], 0 offen sc1", "fl")
        e("s_mov_b64 exec, -1")
    e("s_barrier")
    p2_early(a)
    e(f"s_mov_b32 s{S_L2E}, {L2E_HEX}")
    e(f"s_mov_b32 s{S_L2E + 1}, {L2E_HEX}")
    e(f"s_lshl_b32 s{S_T}, s{S_RB}, 1")
    e(f"s_lshr_b32 s{S_T + 1}, s{S_WAVE}, 1")
    e(f"s_add_u32 s{S_T}, s{S_T}, s{S_T + 1}")
    e(f"s_mul_i32 s{S_AFB}, s{S_T}, {144 * 8192}")
    e(f"s_and_b32 s{S_T + 1}, s{S_WAVE}, 1")
    e(f"s_lshl_b32 s{S_T + 1}, s{S_T + 1}, 12")
    e(f"s_add_u32 s{S_AFB}, s{S_AFB}, s{S_T + 1}")
    e("s_nop 7")
    TT, UU = V_T, V_T + 8

    def phi_group(ra, rb_):
        prs = [ra, ra + 2, rb_, rb_ + 2]
        for j, p in enumerate(prs):
            e(f"v_pk_mul_f32 {vr(TT + 2 * j, 2)}, {vr(p, 2)}, s[{S_L2E}:{S_L2E + 1}]")
        for j in range(8):
            e(f"v_exp_f32_e64 v{TT + j}, v{TT + j} clamp")
        for p in prs:
            e(f"v_max_f32 v{p}, {EPS_HEX}, v{p}")
            e(f"v_max_f32 v{p + 1}, {EPS_HEX}, v{p + 1}")
        for j, p in enumerate(prs):
            e(f"v_pk_add_f32 {vr(p, 2)}, {vr(p, 2)}, {vr(TT + 2 * j, 2)}")
        for j, p in enumerate(prs):
            e(f"v_cvt_pk_bf16_f32 v{ra + j}, v{p}, v{p + 1}")

    def cvt_group(ra, rb_):
        prs = [ra, ra + 2, rb_, rb_ + 2]
        for j, p in enumerate(prs):
            e(f"v_cvt_pk_bf16_f32 v{ra + j}, v{p}, v{p + 1}")

    def mish_group(ra, rb_, split=False):
        prs = [ra, ra + 2, rb_, rb_ + 2]
        for j, p in enumerate(prs):
            e(f"v_pk_mul_f32 {vr(TT + 2 * j, 2)}, {vr(p, 2)}, s[{S_L2E}:{S_L2E + 1}]")
        for j in range(8):
            e(f"v_exp_f32 v{TT + j}, v{TT + j}")
        for j in range(4):
            e(f"v_pk_fma_f32 {vr(UU + 2 * j, 2)}, {vr(TT + 2 * j, 2)}, 0.5, 1.0 op_sel_hi:[1,0,0]")
        for j in range(4):
            e(f"v_pk_fma_f32 {vr(UU + 2 * j, 2)}, {vr(TT + 2 * j, 2)}, {vr(UU + 2 * j, 2)}, 1.0 op_sel_hi:[1,1,0]")
        for j in range(8):
            e(f"v_rcp_f32 v{UU + j}, v{UU + j}")
        for j, p in enumerate(prs):
            e(f"v_pk_fma_f32 {vr(p, 2)}, {vr(UU + 2 * j, 2)}, {vr(p, 2)}, {vr(p, 2)} neg_lo:[1,0,0] neg_hi:[1,0,0]")
        if split:
            e(f"v_cvt_pk_bf16_f32 v{ra}, v{ra}, v{ra + 1}")
            e(f"v_cvt_pk_bf16_f32 v{ra + 1}, v{ra + 2}, v{ra + 3}")
            e(f"v_cvt_pk_bf16_f32 v{rb_}, v{rb_}, v{rb_ + 1}")
            e(f"v_cvt_pk_bf16_f32 v{rb_ + 1}, v{rb_ + 2}, v{rb_ + 3}")
        else:
            for j, p in enumerate(prs):
                e(f"v_cvt_pk_bf16_f32 v{ra + j}, v{p}, v{p + 1}")

    WS = f"s[{S_WS}:{S_WS + 3}]"

    def set_kb(sreg, mul, add):
        e(f"s_mul_i32 s{sreg}, s{S_P}, {mul * 8192}")
        e(f"s_add_u32 s{sreg}, s{sreg}, {add * 8192}")
        e(f"s_add_u32 s{sreg}, s{sreg}, s{S_AFB}")

    def h_full(tA, kbl):
        set_kb(S_T + 2, 7, kbl)
        for mt in range(4):
            mish_group(acc(tA, mt), acc(tA + 1, mt))
            a.vmem(f"buffer_store_dwordx4 {vr(acc(tA, mt))}, v{V_L16}, {WS}, s{S_T + 2} offen offset:{1024 * mt} {OPT['st']}", "st")

    def h_half(tA, kbl, half):
        set_kb(S_T + 2, 7, kbl)
        for mp in range(2):
            mish_group(acc(tA, 2 * mp), acc(tA, 2 * mp + 1), split=True)
            for mt in (2 * mp, 2 * mp + 1):
                a.vmem(f"buffer_store_dwordx2 {vr(acc(tA, mt), 2)}, v{V_L16}, {WS}, s{S_T + 2} offen offset:{1024 * mt + 8 * half} {OPT['st']}", "st")

    if typ == 1:
        for hd in range(2):
            set_kb(S_T + 2, 2, 112 + hd)
            for mt in range(4):
                phi_group(acc(2 * hd, mt), acc(2 * hd + 1, mt))
                a.vmem(f"buffer_store_dwordx4 {vr(acc(2 * hd, mt))}, v{V_L16}, {WS}, s{S_T + 2} offen offset:{1024 * mt} {OPT['st']}", "sq")
        h_half(4, 2, 1)
        for j in range(4):
            h_full(5 + 2 * j, 3 + j)
            if j == 0:
                a.wait(["sq"])
                setflag(1)
        fin()
        return

    ONES = V_T + 16
    for r in range(4):
        e(f"v_mov_b32 v{ONES + r}, 0x3f803f80")
    for t in range(4):
        for pr in range(2):
            phi_group(acc(t, 2 * pr), acc(t, 2 * pr + 1))
    for t in range(4, 8):
        for pr in range(2):
            cvt_group(acc(t, 2 * pr), acc(t, 2 * pr + 1))
    e("s_nop 1")
    free = [acc(t, m) for t in range(8) for m in (1, 3)]

    def Dt(tau):
        return free[tau]
    for pr in range(2):
        for hd in range(2):
            for dt in range(2):
                for et in range(3):
                    tau = hd * 6 + dt * 3 + et
                    Aop = vr(acc(2 * hd + dt, 2 * pr))
                    Bop = vr(acc(4 + 2 * hd + et, 2 * pr)) if et < 2 else vr(ONES)
                    C = "0" if pr == 0 else vr(Dt(tau))
                    e(f"v_mfma_f32_16x16x32_bf16 {vr(Dt(tau))}, {Aop}, {Bop}, {C}")
    vw, vrd = V_T + 20, V_T + 21
    e(f"s_lshl_b32 s{S_T}, s{S_WAVE}, 15")
    e(f"v_add_u32 v{vw}, s{S_T}, v{V_L16}")
    e(f"s_mul_i32 s{S_T}, s{S_WAVE}, 3072")
    e(f"v_add_u32 v{vrd}, s{S_T}, v{V_L16}")
    e(f"v_add_u32 v{vrd + 2}, 65536, v{vrd}")
    e("s_nop 7")
    for tau in range(12):
        e(f"ds_write_b128 v{vw}, {vr(Dt(tau))} offset:{1024 * tau}")
    e(f"s_lshl_b32 s{S_T}, s{S_P}, 3")
    e(f"s_add_u32 s{S_T}, s{S_T}, s{S_RB}")
    e(f"s_mul_i32 s{S_T}, s{S_T}, 12288")
    e(f"s_mul_i32 s{S_T + 1}, s{S_WAVE}, 3072")
    e(f"s_add_u32 s{S_T}, s{S_T}, s{S_T + 1}")
    e(f"s_add_u32 s{S_T + 10}, s{S_T}, {KVP_OFF}")
    h_half(12, 2, 0)
    e("s_waitcnt lgkmcnt(0)")
    e("s_barrier")
    R = [acc(t, m) for t in range(8) for m in (0, 2)]
    for w2 in range(4):
        for j in range(3):
            e(f"ds_read_b128 {vr(R[3 * w2 + j])}, v{vrd + (w2 & 2)} offset:{32768 * (w2 & 1) + 1024 * j}")
    e("s_waitcnt lgkmcnt(0)")
    for j in range(3):
        for h2 in range(2):
            b0 = R[j] + 2 * h2
            e(f"v_pk_add_f32 {vr(b0, 2)}, {vr(b0, 2)}, {vr(R[3 + j] + 2 * h2, 2)}")
            e(f"v_pk_add_f32 {vr(R[6 + j] + 2 * h2, 2)}, {vr(R[6 + j] + 2 * h2, 2)}, {vr(R[9 + j] + 2 * h2, 2)}")
        for h2 in range(2):
            b0 = R[j] + 2 * h2
            e(f"v_pk_add_f32 {vr(b0, 2)}, {vr(b0, 2)}, {vr(R[6 + j] + 2 * h2, 2)}")
        a.vmem(f"buffer_store_dwordx4 {vr(R[j])}, v{V_L16}, {WS}, s{S_T + 10} offen offset:{1024 * j} sc1", "sq")
    h_full(8, 0)
    a.wait(["sq"])
    setflag(1)
    h_full(10, 1)
    fin()


def gen_k1():
    a = Asm()
    e = a.e
    a.lines.append(".globl KNAME\n.p2align 8\n.type KNAME,@function\nKNAME:")
    if OPT.get('spin'):
        stamp(a, 0)
    e("s_cmp_ge_u32 s2, 256")
    e("s_cbranch_scc1 L_k1_exit")
    e(f"s_load_dwordx16 s[{S_PTR}:{S_PTR + 15}], s[0:1], 0")
    e(f"s_load_dwordx4 s[{S_PTR + 16}:{S_PTR + 19}], s[0:1], 64")
    e(f"s_load_dwordx2 s[{S_PTR + 20}:{S_PTR + 21}], s[0:1], 80")
    e(f"v_and_b32 v{V_LANE}, 63, v0")
    e(f"v_lshrrev_b32 v{V_T}, 6, v0")
    e(f"s_and_b32 s{S_T}, s2, 7")
    e(f"v_readfirstlane_b32 s{S_WAVE}, v{V_T}")
    e(f"s_lshr_b32 s{S_T + 1}, s2, 3")
    if OPT.get('map1', 0) == 0:
        e(f"s_and_b32 s{S_RB}, s{S_T}, 1")
        e(f"s_lshl_b32 s{S_RB}, s{S_RB}, 2")
        e(f"s_and_b32 s{S_T + 2}, s{S_T + 1}, 3")
        e(f"s_add_u32 s{S_RB}, s{S_RB}, s{S_T + 2}")
        e(f"s_lshr_b32 s{S_T}, s{S_T}, 1")
        e(f"s_lshl_b32 s{S_T}, s{S_T}, 3")
        e(f"s_lshr_b32 s{S_T + 1}, s{S_T + 1}, 2")
        e(f"s_add_u32 s{S_T}, s{S_T}, s{S_T + 1}")
    elif OPT['map1'] == 1:
        e(f"s_and_b32 s{S_RB}, s{S_T + 1}, 7")
        e(f"s_lshl_b32 s{S_T}, s{S_T}, 2")
        e(f"s_lshr_b32 s{S_T + 1}, s{S_T + 1}, 3")
        e(f"s_add_u32 s{S_T}, s{S_T}, s{S_T + 1}")
    else:
        e(f"s_and_b32 s{S_RB}, s{S_T}, 3")
        e(f"s_lshl_b32 s{S_RB}, s{S_RB}, 1")
        e(f"s_and_b32 s{S_T + 2}, s{S_T + 1}, 1")
        e(f"s_add_u32 s{S_RB}, s{S_RB}, s{S_T + 2}")
        e(f"s_lshr_b32 s{S_T}, s{S_T}, 2")
        e(f"s_lshl_b32 s{S_T}, s{S_T}, 4")
        e(f"s_lshr_b32 s{S_T + 1}, s{S_T + 1}, 1")
        e(f"s_add_u32 s{S_T}, s{S_T}, s{S_T + 1}")
    e(f"s_lshr_b32 s{S_P}, s{S_T}, 1")
    e(f"s_and_b32 s{S_T + 3}, s{S_T}, 1")
    e(f"s_cmp_lg_u32 s{S_T + 3}, 0")
    e("s_cbranch_scc1 L_k1_typeB")
    k1_body(a, 0)
    a.label("L_k1_typeB")
    a.vm = []
    k1_body(a, 1)
    a.vm = []
    phase2(a)
    a.label("L_k1_exit")
    e("s_endpgm")
    a.label("L_code_end")
    return a.lines


def K2_LDS():
    return OPT['S'] * 32768 + 24576


def fold_loops(a, iters, period, scnt, name):
    n = len(iters)
    i = 0
    lab = 0
    while i < n:
        reps = 1
        while i + (reps + 1) * period <= n and all(
                iters[i + k] == iters[i + reps * period + k] for k in range(period)):
            reps += 1
        if reps >= 2:
            a.e(f"s_mov_b32 s{scnt}, {reps}")
            a.label(f"L_{name}_{lab}")
            for k in range(period):
                a.lines += iters[i + k]
            a.e(f"s_sub_u32 s{scnt}, s{scnt}, 1")
            a.e(f"s_cmp_lg_u32 s{scnt}, 0")
            a.e(f"s_cbranch_scc1 L_{name}_{lab}")
            lab += 1
            i += reps * period
        else:
            a.lines += iters[i]
            i += 1


def schedule(a, mf, streams):
    n = len(mf)
    placed = []
    for si, (items, start, end) in enumerate(streams):
        m = len(items)
        prev = 0
        for j, it in enumerate(items):
            fn, early = it if isinstance(it, tuple) else (it, 0)
            pos = start + (j * (end - start)) / max(m, 1)
            pos = max(pos, early, prev)
            prev = pos
            placed.append((pos, si, j, fn))
    placed.sort(key=lambda x: (x[0], x[1], x[2]))
    k = 0
    if n == 0:
        for p in placed:
            p[3]()
        return
    for i in range(n):
        a.e(mf[i])
        while k < len(placed) and placed[k][0] < i + 1:
            placed[k][3]()
            k += 1
    while k < len(placed):
        placed[k][3]()
        k += 1


P_SW2, P_SWO, P_SWS, P_SOUT = 96, 20, 16, 4
P_SMT, P_SNT, P_SROLE, P_STILE = 8, 9, 10, 11
P_SOA, P_SOB, P_SOP, P_SM0A, P_SM0B = 12, 13, 14, 15, 27
P_SHD, P_SM2, P_SEARLY = 28, 29, 30
P_VBD = 2
P_SLOT = 32768


def tile_decode(a, smt, snt, srole, stile, st):
    e = a.e
    e(f"s_and_b32 s{st}, s2, 7")
    e(f"s_lshr_b32 s{st + 1}, s2, 3")
    e(f"s_and_b32 s{srole}, s{st}, 1")
    e(f"s_lshr_b32 s{st}, s{st}, 1")
    if OPT['map'] == 0:
        e(f"s_and_b32 s{smt}, s{st}, 1")
        e(f"s_lshl_b32 s{smt}, s{smt}, 3")
        e(f"s_and_b32 s{stile}, s{st + 1}, 7")
        e(f"s_add_u32 s{smt}, s{smt}, s{stile}")
        e(f"s_lshr_b32 s{snt}, s{st}, 1")
        e(f"s_lshl_b32 s{snt}, s{snt}, 2")
        e(f"s_lshr_b32 s{st + 1}, s{st + 1}, 3")
        e(f"s_add_u32 s{snt}, s{snt}, s{st + 1}")
    else:
        e(f"s_lshl_b32 s{smt}, s{st}, 2")
        e(f"s_and_b32 s{stile}, s{st + 1}, 3")
        e(f"s_add_u32 s{smt}, s{smt}, s{stile}")
        e(f"s_lshr_b32 s{snt}, s{st + 1}, 2")
    e(f"s_lshl_b32 s{stile}, s{smt}, 3")
    e(f"s_add_u32 s{stile}, s{stile}, s{snt}")


def p2_early(a):
    e = a.e
    S = OPT['S']
    n0 = OPT['n0']
    ST = S_T
    tile_decode(a, P_SMT, P_SNT, P_SROLE, P_STILE, ST)
    vi, vG, t0, t1, t2 = 6, 7, 8, 9, 10
    e(f"v_and_b32 v{vi}, 15, v{V_LANE}")
    e(f"v_lshrrev_b32 v{vG}, 4, v{V_LANE}")
    e(f"s_lshl_b32 s{P_SM0A}, s{S_WAVE}, 12")
    e(f"s_add_u32 s{P_SM0B}, s{P_SM0A}, 16384")
    e(f"s_lshl_b32 s{ST + 2}, s{P_SNT}, 8")
    e(f"s_lshl_b32 s{ST + 3}, s{S_WAVE}, 15")
    e(f"s_add_u32 s{ST + 2}, s{ST + 2}, s{ST + 3}")
    e(f"v_lshlrev_b32 v{t0}, 11, v{vG}")
    e(f"v_add_u32 v{t0}, s{ST + 2}, v{t0}")
    e(f"v_lshlrev_b32 v{t1}, 1, v{vG}")
    e(f"v_xor_b32 v{t1}, v{t1}, v{vi}")
    for j in range(4):
        if j & 1:
            e(f"v_xor_b32 v{t2}, 8, v{t1}")
            e(f"v_lshlrev_b32 v{t2}, 4, v{t2}")
        else:
            e(f"v_lshlrev_b32 v{t2}, 4, v{t1}")
        e(f"v_add_u32 v{t2}, v{t2}, v{t0}")
        e(f"v_add_u32 v{P_VBD + j}, {j * (8192 - 1024)}, v{t2}")
    e(f"s_mul_i32 s{P_SOB}, s{P_SROLE}, {n0 * 131072}")
    e(f"s_mul_i32 s{P_SOA}, s{P_SMT}, {144 * 8192}")
    e(f"s_mul_i32 s{ST}, s{P_SROLE}, {n0 * 16384}")
    e(f"s_add_u32 s{P_SOA}, s{P_SOA}, s{ST}")
    for j in range(S - 1):
        e(f"s_add_u32 m0, s{P_SM0B}, {j * P_SLOT}")
        e("s_nop 0")
        for i in range(4):
            a.vmem(f"buffer_load_dwordx4 v{P_VBD + i}, s[{P_SW2}:{P_SW2 + 3}], s{P_SOB} offen offset:{1024 * i} lds", "eB")
        e(f"s_add_u32 s{P_SOB}, s{P_SOB}, 131072")
    srd(a, ST + 4, S_PTR + 18, S_PTR + 19, 256)
    e(f"v_mov_b32 v12, 0")
    a.vmem(f"buffer_load_dwordx2 v[{V_TOK}:{V_TOK + 1}], v12, s[{ST + 4}:{ST + 7}], 0 offen sc1", "zc")


def phase2(a):
    e = a.e
    S = OPT['S']
    n0 = OPT['n0']
    SLOT = P_SLOT
    SCR = S * SLOT
    SWAVE = S_WAVE
    ST = S_T
    SCNT = S_CNT
    SMT, SNT, SROLE, STILE = P_SMT, P_SNT, P_SROLE, P_STILE
    SOA, SOB, SOP, SM0A, SM0B = P_SOA, P_SOB, P_SOP, P_SM0A, P_SM0B
    SW2, SWO, SOUT = P_SW2, P_SWO, P_SOUT
    WS = f"s[{P_SWS}:{P_SWS + 3}]"
    NBASE = (S + 1) // 2
    VL, VL16, VBD = V_LANE, V_L16, P_VBD
    vi, vG = 6, 7
    VZ = 11
    VAD = 8
    VFL = 10
    VFA = 9
    VAR = 12
    VBR = 18
    VT = 30
    VG = 38
    VOMG = 42
    VEPS = 46
    VEPS = 48
    CG = 52
    CR = 60
    CKV = 68
    CW = 80
    VX = 192
    VY = 84
    AC = 128
    t0, t1, t2, t3 = VT, VT + 1, VT + 2, VT + 3

    def acc2(mt, nt):
        return AC + 16 * mt + 4 * nt

    def FA(j, b, mt):
        return 64 * (j % 2) + 32 * b + 4 * mt

    def FB(j, b, nt):
        return 64 * (j % 2) + 32 * b + 16 + 4 * nt

    def setflag(lane):
        e(f"s_mov_b64 exec, {1 << lane}")
        a.vmem(f"buffer_store_dwordx2 v[{V_TOK}:{V_TOK + 1}], v0, {WS}, 0 offen sc1", "fl")
        e("s_mov_b64 exec, -1")

    VQ = VY

    def fq_load():
        e(f"buffer_load_dwordx2 v[{VQ}:{VQ + 1}], v{VQ + 2}, {WS}, 0 offen sc1")

    a.label("L_phase2")
    stamp(a, 0)
    e(f"s_and_b32 s{ST}, s2, 31")
    e(f"s_lshr_b32 s{ST}, s{ST}, 1")
    e(f"s_lshl_b32 s{ST}, s{ST}, 9")
    e(f"s_add_u32 s{ST}, s{ST}, {FQ_OFF}")
    e(f"v_lshlrev_b32 v{VQ + 2}, 3, v{VL}")
    e(f"v_add_u32 v{VQ + 2}, s{ST}, v{VQ + 2}")
    fq_load()
    e(f"v_add_u32 v{VAD}, s{SM0A}, v{VL16}")
    e(f"s_and_b32 s{ST}, s{SWAVE}, 1")
    e(f"s_lshl_b32 s{ST}, s{ST}, 12")
    e(f"v_add_u32 v{VAR}, s{ST}, v{VL16}")
    for k in range(1, NBASE):
        e(f"v_add_u32 v{VAR + k}, {65536 * k}, v{VAR}")
    e(f"v_lshlrev_b32 v{t0}, 2, v{vG}")
    e(f"v_lshrrev_b32 v{t1}, 2, v{vi}")
    e(f"v_add_u32 v{t0}, v{t0}, v{t1}")
    e(f"v_and_b32 v{t1}, 7, v{t0}")
    e(f"s_lshr_b32 s{ST}, s{SWAVE}, 1")
    e(f"s_lshl_b32 s{ST}, s{ST}, 2")
    e(f"v_xor_b32 v{t1}, s{ST}, v{t1}")
    e(f"v_lshlrev_b32 v{t0}, 8, v{t0}")
    e(f"v_and_b32 v{t2}, 3, v{vi}")
    e(f"v_lshlrev_b32 v{t2}, 3, v{t2}")
    e(f"v_add_u32 v{t0}, v{t0}, v{t2}")
    e(f"v_add_u32 v{t0}, 16384, v{t0}")
    for nt in range(4):
        e(f"v_xor_b32 v{t3}, {nt}, v{t1}")
        e(f"v_lshlrev_b32 v{t3}, 5, v{t3}")
        e(f"v_add_u32 v{VBR + nt}, v{t0}, v{t3}")
        for k in range(1, NBASE):
            e(f"v_add_u32 v{VBR + 4 * k + nt}, {65536 * k}, v{VBR + nt}")
    srd(a, SOUT, S_PTR + 16, S_PTR + 17, 2048 * 1024 * 2)
    srd(a, ST + 4, S_PTR + 18, S_PTR + 19, 256)
    e(f"s_lshl_b32 s{ST}, s{SMT}, 9")
    e(f"s_add_u32 s{ST}, s{ST}, {FA_OFF}")
    e(f"v_lshlrev_b32 v{VFA}, 3, v{VL}")
    e(f"v_add_u32 v{VFA}, s{ST}, v{VFA}")
    e("s_waitcnt vmcnt(0)")
    setflag(0)
    a.label("L_p2_qw")
    e(f"v_cmp_eq_u64 vcc, v[{VQ}:{VQ + 1}], v[{V_TOK}:{V_TOK + 1}]")
    e("s_nop 1")
    e("s_cmp_eq_u64 vcc, -1")
    e("s_cbranch_scc1 L_p2_qok")
    e(f"s_sleep {OPT.get('slp', 6)}")
    fq_load()
    e("s_waitcnt vmcnt(0)")
    e("s_branch L_p2_qw")
    a.label("L_p2_qok")
    stamp(a, 1)
    a.vm = []
    e(f"s_and_b32 s{P_SHD}, s2, 31")
    e(f"s_lshr_b32 s{P_SM2}, s2, 5")
    e(f"s_lshl_b32 s{P_SM2}, s{P_SM2}, 1")
    e(f"s_lshr_b32 s{ST}, s{SWAVE}, 1")
    e(f"s_add_u32 s{P_SM2}, s{P_SM2}, s{ST}")
    e(f"s_lshr_b32 s{ST}, s{P_SHD}, 1")
    e(f"s_lshl_b32 s{ST}, s{ST}, 3")
    e(f"s_lshl_b32 s{ST + 1}, s{SWAVE}, 1")
    e(f"s_add_u32 s{ST}, s{ST}, s{ST + 1}")
    e(f"s_mul_i32 s{ST}, s{ST}, 12")
    e(f"s_and_b32 s{ST + 1}, s{P_SHD}, 1")
    e(f"s_mul_i32 s{ST + 1}, s{ST + 1}, 6")
    e(f"s_add_u32 s{ST}, s{ST}, s{ST + 1}")
    e(f"s_lshl_b32 s{ST}, s{ST}, 10")
    e(f"s_add_u32 s{ST}, s{ST}, {KVP_OFF}")
    for r2 in range(2):
        for t6 in range(6):
            if t6 == 3:
                e(f"s_add_u32 s{ST}, s{ST}, 3072")
            a.vmem(f"buffer_load_dwordx4 {vr(VX + 24 * r2 + 4 * t6)}, v{VL16}, {WS}, s{ST} offen offset:{1024 * (t6 % 3)}", "kvp")
        if r2 == 0:
            e(f"s_add_u32 s{ST}, s{ST}, {12288 - 3072}")
    e(f"s_mul_i32 s{ST}, s{P_SM2}, 144")
    e(f"s_add_u32 s{ST}, s{ST}, s{P_SHD}")
    e(f"s_add_u32 s{ST}, s{ST}, 112")
    e(f"s_lshl_b32 s{ST}, s{ST}, 13")
    e(f"s_and_b32 s{ST + 1}, s{SWAVE}, 1")
    e(f"s_lshl_b32 s{ST + 1}, s{ST + 1}, 12")
    e(f"s_add_u32 s{ST}, s{ST}, s{ST + 1}")
    for i in range(4):
        a.vmem(f"buffer_load_dwordx4 {ar(128 + 4 * i)}, v{VL16}, {WS}, s{ST} offen offset:{1024 * i}", "pq")
    e(f"s_lshl_b32 s{SOP}, s{P_SM2}, 5")
    e(f"s_add_u32 s{SOP}, s{SOP}, s{P_SHD}")
    e(f"s_lshl_b32 s{SOP}, s{SOP}, 13")
    e(f"s_add_u32 s{SOP}, s{SOP}, s{ST + 1}")
    e(f"s_add_u32 s{SOP}, s{SOP}, {OF_OFF}")
    for r in range(4):
        e(f"v_mov_b32 v{VEPS + r}, {EPS_HEX}")
    e(f"s_mul_i32 s{ST}, s{SWAVE}, 6144")
    e(f"s_add_u32 s{ST}, s{ST}, {SCR}")
    e(f"v_add_u32 v{CW}, s{ST}, v{VL16}")
    e(f"v_add_u32 v{CW + 1}, {SCR}, v{VL16}")

    def issueA(track):
        for j in range(S - 1):
            e(f"s_add_u32 m0, s{SM0A}, {j * SLOT}")
            e("s_nop 0")
            for i in range(4):
                ins = f"buffer_load_dwordx4 v{VAD}, {WS}, s{SOA} offen offset:{1024 * i} {OPT['k2a']} lds"
                if track:
                    a.vmem(ins, f"D{j}")
                else:
                    e(ins)
            e(f"s_add_u32 s{SOA}, s{SOA}, 16384")

    a.wait(["kvp"])
    for q in range(12):
        e(f"v_pk_add_f32 {vr(VX + 2 * q, 2)}, {vr(VX + 2 * q, 2)}, {vr(VX + 24 + 2 * q, 2)}")
    for t6 in range(6):
        e(f"ds_write_b128 v{CW}, {vr(VX + 4 * t6)} offset:{1024 * t6}")
    a.wait(["pq"], lgkm=True)
    e("s_barrier")
    e(f"buffer_load_dwordx2 v[{VFL}:{VFL + 1}], v{VFA}, {WS}, 0 offen sc1")
    for dt in range(2):
        for w2 in range(4):
            for et in range(3):
                e(f"ds_read_b128 {vr((VX if dt == 0 else AC) + 12 * w2 + 4 * et)}, v{CW + 1} offset:{6144 * w2 + 1024 * (3 * dt + et)}")
    for dt in range(2):
        B_ = VX if dt == 0 else AC
        e(f"s_waitcnt lgkmcnt({12 if dt == 0 else 0})")
        for q in range(6):
            e(f"v_pk_add_f32 {vr(B_ + 2 * q, 2)}, {vr(B_ + 2 * q, 2)}, {vr(B_ + 12 + 2 * q, 2)}")
            e(f"v_pk_add_f32 {vr(B_ + 24 + 2 * q, 2)}, {vr(B_ + 24 + 2 * q, 2)}, {vr(B_ + 36 + 2 * q, 2)}")
        for q in range(6):
            e(f"v_pk_add_f32 {vr(B_ + 2 * q, 2)}, {vr(B_ + 2 * q, 2)}, {vr(B_ + 24 + 2 * q, 2)}")
        for et in range(3):
            for h2 in range(2):
                e(f"v_cvt_pk_bf16_f32 v{CKV + 4 * et + 2 * dt + h2}, v{B_ + 4 * et + 2 * h2}, v{B_ + 4 * et + 2 * h2 + 1}")
    e("s_waitcnt vmcnt(0)")
    e(f"v_cmp_eq_u64 vcc, v[{VFL}:{VFL + 1}], v[{V_TOK}:{V_TOK + 1}]")
    e(f"s_mov_b32 s{P_SEARLY}, 0")
    e("s_nop 0")
    e("s_cmp_eq_u64 vcc, -1")
    e("s_cbranch_scc0 L_p2_noearly")
    issueA(False)
    e(f"s_mov_b32 s{P_SEARLY}, 1")
    e("s_branch L_p2_early")
    a.label("L_p2_noearly")
    e(f"buffer_load_dwordx2 v[{VFL}:{VFL + 1}], v{VFA}, {WS}, 0 offen sc1")
    a.label("L_p2_early")
    for i in range(4):
        d = VX + 12 * i
        pq = ar(128 + 4 * i)
        e(f"v_mfma_f32_16x16x32_bf16 {vr(d + 8)}, {vr(CKV + 8)}, {pq}, {vr(VEPS)}")
        e(f"v_mfma_f32_16x16x32_bf16 {vr(d)}, {vr(CKV)}, {pq}, 0")
        e(f"v_mfma_f32_16x16x32_bf16 {vr(d + 4)}, {vr(CKV + 4)}, {pq}, 0")
    e("s_nop 7")
    for i in range(4):
        e(f"v_rcp_f32 v{CR + i}, v{VX + 12 * i + 8}")
    e("s_nop 0")
    for i in range(4):
        d = VX + 12 * i
        sel = "op_sel:[0,1] op_sel_hi:[1,1]" if i & 1 else "op_sel_hi:[1,0]"
        for q in range(4):
            e(f"v_pk_mul_f32 {vr(d + 2 * q, 2)}, {vr(d + 2 * q, 2)}, {vr(CR + (i & 2), 2)} {sel}")
        o = VY + 4 * i
        for q in range(4):
            e(f"v_cvt_pk_bf16_f32 v{o + q}, v{d + 2 * q}, v{d + 2 * q + 1}")
    e(f"s_cmp_lg_u32 s{P_SEARLY}, 0")
    e("s_cbranch_scc1 L_p2_go")
    a.label("L_p2_fw")
    e("s_waitcnt vmcnt(0)")
    e(f"v_cmp_eq_u64 vcc, v[{VFL}:{VFL + 1}], v[{V_TOK}:{V_TOK + 1}]")
    e("s_nop 1")
    e("s_cmp_eq_u64 vcc, -1")
    e("s_cbranch_scc1 L_p2_fok")
    e(f"s_sleep {OPT.get('slp', 6)}")
    e(f"buffer_load_dwordx2 v[{VFL}:{VFL + 1}], v{VFA}, {WS}, 0 offen sc1")
    e("s_branch L_p2_fw")
    a.label("L_p2_fok")
    issueA(False)
    a.label("L_p2_go")
    a.vm = [f"D{j}" for j in range(S - 1) for _ in range(4)]
    for i in range(4):
        a.vmem(f"buffer_store_dwordx4 {vr(VY + 4 * i)}, v{VL16}, {WS}, s{SOP} offen offset:{1024 * i} sc1", "ost")
    e(f"s_cmp_eq_u32 s{SROLE}, 0")
    e(f"s_cbranch_scc1 L_p2_r0")
    vm_save = list(a.vm)

    import math
    PERIOD = S * 4 // math.gcd(S, 4)

    def body(role):
        R = f"r{role}"
        nact = n0 if role == 0 else 56 - n0
        N = nact if role == 0 else nact + 16
        JO = nact - (S - 1)
        JP = N - OPT['pj']

        def dmaA(j):
            f = []
            if j == nact:
                def sw():
                    e(f"s_lshl_b32 s{SOA}, s{SMT}, 18")
                    e(f"s_add_u32 s{SOA}, s{SOA}, {OF_OFF}")
                f.append(sw)
            f.append(lambda: e(f"s_add_u32 m0, s{SM0A}, {(j % S) * SLOT}"))
            for i in range(4):
                f.append(lambda i=i: a.vmem(
                    f"buffer_load_dwordx4 v{VAD}, {WS}, s{SOA} offen offset:{1024 * i} {OPT['k2a']} lds", f"D{j}"))
            f.append(lambda: e(f"s_add_u32 s{SOA}, s{SOA}, 16384"))
            return f

        def dmaB(j):
            sr = SW2 if j < nact else SWO
            f = []
            if j == nact:
                f.append(lambda: e(f"s_mov_b32 s{SOB}, 0"))
            f.append(lambda: e(f"s_add_u32 m0, s{SM0B}, {(j % S) * SLOT}"))
            for i in range(4):
                f.append(lambda i=i: a.vmem(
                    f"buffer_load_dwordx4 v{VBD + i}, s[{sr}:{sr + 3}], s{SOB} offen offset:{1024 * i} lds", f"D{j}"))
            f.append(lambda: e(f"s_add_u32 s{SOB}, s{SOB}, 131072"))
            return f

        def reads(j):
            sl = j % S
            k, so = sl // 2, (sl % 2) * SLOT
            f = []
            for q in range(4):
                for b in range(2):
                    f.append(lambda b=b, q=q: e(
                        f"ds_read_b128 {ar(FA(j, b, q))}, v{VAR + k} offset:{so + 8192 * b + 1024 * q}"))
                    for ins in range(2):
                        f.append(lambda b=b, q=q, ins=ins: e(
                            f"ds_read_b64_tr_b16 {ar(FB(j, b, q) + 2 * ins, 2)}, v{VBR + 4 * k + q} offset:{so + 8192 * b + 4096 * ins}"))
            return f

        a.wait(["D0"])
        e("s_barrier")
        stamp(a, 2)

        def post(j):
            if j == 4:
                assert "ost" not in a.vm and "D4" not in a.vm
                setflag(2)
            if role == 1 and j == 2:
                e(f"v_lshlrev_b32 v{t0}, 2, v{vi}")
                e(f"s_lshl_b32 s{ST}, s{SMT}, 9")
                e(f"s_and_b32 s{ST + 1}, s{SWAVE}, 1")
                e(f"s_lshl_b32 s{ST + 1}, s{ST + 1}, 8")
                e(f"s_add_u32 s{ST}, s{ST}, s{ST + 1}")
                e(f"s_add_u32 s{ST}, s{ST}, {G_OFF}")
                for i in range(4):
                    a.vmem(f"buffer_load_dword v{VG + i}, v{t0}, {WS}, s{ST} offen offset:{64 * i}", "g")
            if role == 1 and j == JO - 3:
                e(f"s_lshl_b32 s{ST}, s{SMT}, 9")
                e(f"s_add_u32 s{ST}, s{ST}, {FO_OFF}")
                e(f"v_lshlrev_b32 v{VFA}, 3, v{VL}")
                e(f"v_add_u32 v{VFA}, s{ST}, v{VFA}")
                a.vmem(f"buffer_load_dwordx2 v[{VFL}:{VFL + 1}], v{VFA}, {WS}, 0 offen sc1", "F")
            if role == 1 and j == JO - 1:
                a.wait(["F"])
                a.label("L_p2_ow")
                e(f"v_cmp_eq_u64 vcc, v[{VFL}:{VFL + 1}], v[{V_TOK}:{V_TOK + 1}]")
                e("s_nop 1")
                e("s_cmp_eq_u64 vcc, -1")
                e("s_cbranch_scc1 L_p2_ook")
                e("s_sleep 4")
                e(f"buffer_load_dwordx2 v[{VFL}:{VFL + 1}], v{VFA}, {WS}, 0 offen sc1")
                e("s_waitcnt vmcnt(0)")
                e("s_branch L_p2_ow")
                a.label("L_p2_ook")
            if role == 1 and j == JP - 1:
                e(f"s_lshl_b32 s{ST}, s{STILE}, 8")
                e(f"s_lshl_b32 s{ST + 1}, s{SWAVE}, 3")
                e(f"s_add_u32 s{ST}, s{ST}, s{ST + 1}")
                e(f"s_add_u32 s{ST}, s{ST}, {FP_OFF}")
                e(f"v_mov_b32 v{VFA}, s{ST}")
                a.vmem(f"buffer_load_dwordx2 v[{VFL}:{VFL + 1}], v{VFA}, {WS}, 0 offen sc1", "F2")
            if role == 1 and j == JP:
                a.wait(["F2"])
                a.label("L_p2_pw")
                e(f"v_cmp_eq_u64 vcc, v[{VFL}:{VFL + 1}], v[{V_TOK}:{V_TOK + 1}]")
                e("s_nop 1")
                e("s_cmp_eq_u64 vcc, -1")
                e("s_cbranch_scc1 L_p2_pok")
                e("s_sleep 2")
                e(f"buffer_load_dwordx2 v[{VFL}:{VFL + 1}], v{VFA}, {WS}, 0 offen sc1")
                e("s_waitcnt vmcnt(0)")
                e("s_branch L_p2_pw")
                a.label("L_p2_pok")
                e(f"s_lshl_b32 s{ST}, s{STILE}, 16")
                e(f"s_lshl_b32 s{ST + 1}, s{SWAVE}, 13")
                e(f"s_add_u32 s{ST}, s{ST}, s{ST + 1}")
                e(f"s_add_u32 s{ST}, s{ST}, {PART_OFF}")
                for q in range(8):
                    if q == 4:
                        e(f"s_add_u32 s{ST}, s{ST}, 4096")
                    a.vmem(f"buffer_load_dwordx4 {vr(VY + 4 * q)}, v{VL16}, {WS}, s{ST} offen offset:{1024 * (q & 3)} sc1", "PT")

        def interval(j):
            if DIAG and OPT.get('ts2'):
                if j == 0:
                    e("s_mov_b32 s71, 0")
                e("s_memrealtime s[76:77]")
                e("s_waitcnt lgkmcnt(0)")
                e("s_mov_b32 m0, s71")
                e("s_nop 0")
                e(f"v_writelane_b32 v{VT + 7}, s76, m0")
                e("s_add_u32 s71, s71, 1")
            main = []
            if j >= 1:
                for mt in range(4):
                    for nt in range(4):
                        D = vr(acc2(mt, nt) + (64 if j - 1 >= nact else 0))
                        for b in range(2):
                            C = "0" if (j in (1, nact + 1) and b == 0) else D
                            main.append(f"v_mfma_f32_16x16x32_bf16 {D}, {ar(FB(j - 1, b, nt))}, {ar(FA(j - 1, b, mt))}, {C}")
            rd = reads(j) if j < N else []
            dm = (dmaA(j + S - 1) + dmaB(j + S - 1)) if j + S - 1 < N else []
            n = max(len(main), 1)
            schedule(a, main, [(rd, 0, n * 0.85), (dm, 0.5, n * 0.95)])
            post(j)
            if j < N:
                a.wait([f"D{j + 1}"] if j + 1 < N else [], lgkm=True)
                if j + 1 < N:
                    e("s_barrier")

        iters = []
        for j in range(N + 1):
            n_ = len(a.lines)
            if j == 4:
                stamp(a, 3)
            if role == 1 and j == nact:
                stamp(a, 4)
            interval(j)
            iters.append(a.lines[n_:])
            del a.lines[n_:]
        fold_loops(a, iters, PERIOD, SCNT, f"p2{R}")
        if role == 0:
            stamp(a, 4)
        stamp(a, 5)
        if role == 0:
            e(f"s_lshl_b32 s{ST}, s{STILE}, 16")
            e(f"s_lshl_b32 s{ST + 1}, s{SWAVE}, 13")
            e(f"s_add_u32 s{ST}, s{ST}, s{ST + 1}")
            e(f"s_add_u32 s{ST}, s{ST}, {PART_OFF}")
            e("s_nop 7")
            for q in range(8):
                b0 = AC + 8 * q
                for r in range(4):
                    e(f"v_cvt_pk_bf16_f32 v{b0 + r}, v{b0 + 2 * r}, v{b0 + 2 * r + 1}")
                e(f"buffer_store_dwordx4 {vr(b0)}, v{VL16}, {WS}, s{ST} offen offset:{1024 * (q & 3)} sc1")
                if q == 3:
                    e(f"s_add_u32 s{ST}, s{ST}, 4096")
            e("s_waitcnt vmcnt(0)")
            setflag(3)
            stamp(a, 6)
        else:
            vo = VT + 4
            e(f"v_lshlrev_b32 v{t2}, 11, v{vi}")
            e(f"v_bfe_u32 v{t3}, v{VL}, 4, 1")
            e(f"v_lshlrev_b32 v{t3}, 5, v{t3}")
            e(f"v_add_u32 v{t2}, v{t2}, v{t3}")
            e(f"v_lshrrev_b32 v{t3}, 5, v{VL}")
            e(f"v_lshlrev_b32 v{t3}, 4, v{t3}")
            e(f"v_add_u32 v{vo}, v{t2}, v{t3}")
            e(f"s_lshl_b32 s{ST}, s{SMT}, 7")
            e(f"s_and_b32 s{ST + 1}, s{SWAVE}, 1")
            e(f"s_lshl_b32 s{ST + 1}, s{ST + 1}, 6")
            e(f"s_add_u32 s{ST}, s{ST}, s{ST + 1}")
            e(f"s_lshl_b32 s{ST}, s{ST}, 11")
            e(f"s_lshl_b32 s{ST + 1}, s{SNT}, 8")
            e(f"s_add_u32 s{ST}, s{ST}, s{ST + 1}")
            e(f"s_lshr_b32 s{ST + 1}, s{SWAVE}, 1")
            e(f"s_lshl_b32 s{ST + 1}, s{ST + 1}, 7")
            e(f"s_add_u32 s{ST}, s{ST}, s{ST + 1}")
            for i in range(4):
                e(f"v_sub_f32 v{VOMG + i}, 1.0, v{VG + i}")
            for mt in range(4):
                sel2 = "op_sel:[0,1] op_sel_hi:[1,1]" if mt & 1 else "op_sel_hi:[1,0]"
                sel = "op_sel:[1,0,0] op_sel_hi:[1,1,1]" if mt & 1 else "op_sel_hi:[0,1,1]"
                for q in range(8):
                    b0 = acc2(mt, 0) + 2 * q
                    e(f"v_pk_mul_f32 {vr(b0, 2)}, {vr(b0, 2)}, {vr(VOMG + (mt & 2), 2)} {sel2}")
                for q in range(8):
                    b0 = acc2(mt, 0) + 2 * q
                    e(f"v_pk_fma_f32 {vr(b0, 2)}, {vr(VG + (mt & 2), 2)}, {vr(b0 + 64, 2)}, {vr(b0, 2)} {sel}")
            a.wait(["PT"])
            for mt in range(4):
                sel = "op_sel:[1,0,0] op_sel_hi:[1,1,1]" if mt & 1 else "op_sel_hi:[0,1,1]"
                for q in range(8):
                    p0 = VY + 8 * mt + q
                    u = VX + 2 * q
                    e(f"v_lshlrev_b32 v{u}, 16, v{p0}")
                    e(f"v_and_b32 v{u + 1}, 0xffff0000, v{p0}")
                for q in range(8):
                    b0 = acc2(mt, 0) + 2 * q
                    u = VX + 2 * q
                    e(f"v_pk_fma_f32 {vr(b0, 2)}, {vr(VOMG + (mt & 2), 2)}, {vr(u, 2)}, {vr(b0, 2)} {sel}")
                for pr in range(2):
                    b0 = acc2(mt, 2 * pr)
                    for q in range(4):
                        e(f"v_cvt_pk_bf16_f32 v{b0 + q}, v{b0 + 2 * q}, v{b0 + 2 * q + 1}")
                e("s_nop 1")
                for pr in range(2):
                    b0 = acc2(mt, 2 * pr)
                    e(f"v_permlane16_swap_b32 v{b0}, v{b0 + 2}")
                    e(f"v_permlane16_swap_b32 v{b0 + 1}, v{b0 + 3}")
                for pr in range(2):
                    b0 = acc2(mt, 2 * pr)
                    e(f"buffer_store_dwordx4 {vr(b0)}, v{vo}, s[{SOUT}:{SOUT + 3}], s{ST} offen offset:{64 * pr}")
                if mt < 3:
                    e(f"s_add_u32 s{ST}, s{ST}, 32768")
            stamp(a, 6)
        if DIAG and OPT.get('ts2'):
            e(f"s_mov_b32 s76, s{S_PTR + 20}")
            e(f"s_and_b32 s77, s{S_PTR + 21}, 0xffff")
            e(f"s_mov_b32 s78, 0x4000000")
            e(f"s_mov_b32 s79, 0x20000")
            e(f"s_lshl_b32 s75, s2, 2")
            e(f"s_add_u32 s75, s75, s{S_WAVE}")
            e(f"s_lshl_b32 s75, s75, 8")
            e(f"s_add_u32 s75, s75, {DIAG_OFF + 0x200000}")
            e(f"v_lshlrev_b32 v{VT}, 2, v{VL}")
            e(f"buffer_store_dword v{VT + 7}, v{VT}, s[76:79], s75 offen")
        if DIAG:
            e("s_waitcnt vmcnt(0)")
        stamp(a, 7)
        stamp_dump(a, 1, 8, SWAVE, S_PTR + 20, S_PTR + 21, VT + 5)
        e("s_endpgm")

    body(1)
    a.label("L_p2_r0")
    a.vm = vm_save
    body(0)


def fix_hazards(lines):
    out = []
    for i, ln in enumerate(lines):
        out.append(ln)
        if " m0," in ln and i + 1 < len(lines) and lines[i + 1].rstrip().endswith("lds"):
            out.append("  s_nop 0")
    return out


def gen_spin():
    a = Asm()
    e = a.e
    spec = OPT['spin']
    A_, B_, M = spec.split(",")
    a.lines.append(".globl spin_kernel\n.p2align 8\n.type spin_kernel,@function\nspin_kernel:")
    e("s_cmp_lg_u32 s2, 0")
    e("s_cbranch_scc1 L_spin_end")
    e("s_load_dwordx2 s[4:5], s[0:1], 80")
    e("v_lshlrev_b32 v1, 7, v0")
    e("s_waitcnt lgkmcnt(0)")
    e("s_mov_b32 s8, s4\ns_and_b32 s9, s5, 0xffff\ns_mov_b32 s10, 0x4000000\ns_mov_b32 s11, 0x20000")

    def red(sp, sdst):
        k, st, op = sp.split(".")
        base = DIAG_OFF + int(k) * 0x100000 + 8 * int(st) + 4
        for i in range(16):
            e(f"s_mov_b32 s12, {base + i * 8192}")
            e(f"buffer_load_dword v{8 + i}, v1, s[8:11], s12 offen")
        e("s_waitcnt vmcnt(0)")
        for i in range(1, 16):
            e(f"v_{op}_u32 v8, v8, v{8 + i}")
        e("s_nop 1")
        e(f"v_readlane_b32 s{sdst}, v8, 0")
        for l in range(1, 64):
            e(f"v_readlane_b32 s13, v8, {l}")
            e("s_nop 0")
            e(f"s_{op}_u32 s{sdst}, s{sdst}, s13")
    red("0.0.min", 20)
    red(A_, 21)
    red(B_, 22)
    e("s_sub_u32 s22, s22, s21")
    e(f"s_mul_i32 s22, s22, {M}")
    e("s_add_u32 s22, s22, 12000")
    e("s_min_u32 s22, s22, 60000")
    a.label("L_spin")
    e("s_memrealtime s[14:15]")
    e("s_waitcnt lgkmcnt(0)")
    e("s_sub_u32 s16, s14, s20")
    e("s_cmp_lt_u32 s16, s22")
    e("s_cbranch_scc1 L_spin")
    a.label("L_spin_end")
    e("s_endpgm")
    return a.lines


def kd(name, nfv, accum):
    return f""".amdhsa_kernel {name}
  .amdhsa_next_free_vgpr {nfv}
  .amdhsa_next_free_sgpr 102
  .amdhsa_accum_offset {accum}
  .amdhsa_group_segment_fixed_size 0
  .amdhsa_kernarg_size 88
  .amdhsa_user_sgpr_count 2
  .amdhsa_user_sgpr_kernarg_segment_ptr 1
  .amdhsa_system_sgpr_workgroup_id_x 1
.end_amdhsa_kernel"""


def main(path):
    hdr = open(f"cdna_kernels/{NAME}.s.ref").read().split("; Override launch")[0]
    out = [hdr.rstrip("\n")]
    kn = NAME + "_kernel"
    if OPT.get('spin'):
        out.append(f"; @launch kernel={kn} grid=(256,1,1) block=(256,1,1) lds={K2_LDS()}")
        out.append("; @launch kernel=spin_kernel grid=(1,1,1) block=(64,1,1) lds=0")
    else:
        out.append(f"; @launch grid=(256,1,1) block=(256,1,1) lds={K2_LDS()}")
    out.append('.amdgcn_target "amdgcn-amd-amdhsa--gfx950"')
    out.append(".text")
    out += [ln.replace("KNAME", kn) for ln in fix_hazards(gen_k1())]
    if OPT.get('spin'):
        out += gen_spin()
    out.append('.section .rodata,"a"')
    if OPT.get('spin'):
        out.append(".p2align 6")
        out.append(kd("spin_kernel", 32, 32))
    out.append(".p2align 6")
    out.append(kd(kn, 256 + 160, 256))
    open(path, "w").write("\n".join(out) + "\n")


if __name__ == "__main__":
    if "--dbgout" in sys.argv:
        DBGOUT = True
        sys.argv.remove("--dbgout")
    if "--diag" in sys.argv:
        DIAG = True
        sys.argv.remove("--diag")
    for arg in list(sys.argv):
        if "=" in arg:
            k_, v_ = arg.split("=")
            OPT[k_] = int(v_) if v_.isdigit() else v_.replace("+", " ")
            sys.argv.remove(arg)
    main(sys.argv[1] if len(sys.argv) > 1 else f"cdna_kernels/{NAME}.s")
```

```python
import sys

NAME = "gated_mix__linear_attn_block__dense_activation_mish__prompt"

AF_OFF = 0
AF_BYTES = 16 * 144 * 8 * 1024
KVP_OFF = AF_BYTES
KVP_BYTES = 16 * 8 * 12 * 1024
KVF_OFF = KVP_OFF + KVP_BYTES
KVF_BYTES = 32 * 3 * 1024
G_OFF = KVF_OFF + KVF_BYTES
PART_OFF = G_OFF + 8192
OF_OFF = PART_OFF + 128 * 65536
FLG_OFF = OF_OFF + 16 * 32 * 8192
FE_OFF = FLG_OFF - 0 + 32768 + 128 * 256
FA_OFF = FLG_OFF
FQ_OFF = FA_OFF + 8192
FO_OFF = FQ_OFF + 8192
FP_OFF = FO_OFF + 8192
FK_OFF = FE_OFF + 8192
WS_USED = FK_OFF + 2048
assert FP_OFF + 128 * 256 <= FE_OFF
V_TOK = 14

DIAG = False
DBGOUT = False
OPT = dict(k1a="", k1b="", k2a="", k2b="", st="sc1", pf=3, xpf=1, n0=33, cpf=1, map=2, S=4, pbf=1, pj=2, pprio=0, cprio=0, rdend=26)
DIAG_OFF = 0x2000000
EPS_HEX = "0x358637bd"
L2E_HEX = "0x3fb8aa3b"


class Asm:
    def __init__(self):
        self.lines = []
        self.vm = []

    def e(self, s):
        for ln in s.split("\n"):
            self.lines.append("  " + ln.strip())

    def label(self, s):
        self.lines.append(s + ":")

    def vmem(self, s, tag):
        self.e(s)
        self.vm.append(tag)

    def mark(self, tag):
        self.vm.append("#" + tag)

    def vm_count(self, tags, drop=True):
        idx = -1
        for i, t in enumerate(self.vm):
            if t in tags:
                idx = i
        if idx < 0:
            return None
        n = sum(1 for t in self.vm[idx + 1:] if not t.startswith("#"))
        if drop:
            self.vm = self.vm[idx + 1:]
        assert n <= 63, n
        return n

    def wait(self, tags=(), lgkm=False):
        n = self.vm_count(tags) if tags else None
        parts = []
        if n is not None:
            parts.append(f"vmcnt({n})")
        if lgkm:
            parts.append("lgkmcnt(0)")
        if parts:
            self.e("s_waitcnt " + " ".join(parts))


def stamp(a, idx, sbase=80):
    if not DIAG:
        return
    a.e(f"s_memtime s[{sbase - 4}:{sbase - 3}]")
    a.e(f"s_memrealtime s[{sbase - 2}:{sbase - 1}]")
    a.e("s_waitcnt lgkmcnt(0)")
    a.e(f"s_mov_b32 s{sbase + 2 * idx}, s{sbase - 4}")
    a.e(f"s_mov_b32 s{sbase + 2 * idx + 1}, s{sbase - 2}")


def stamp_dump(a, kidx, n, swave, sptr_lo, sptr_hi, vtmp, sbase=80):
    if not DIAG:
        return
    e = a.e
    e(f"s_mov_b32 s{sbase - 4}, s{sptr_lo}")
    e(f"s_and_b32 s{sbase - 3}, s{sptr_hi}, 0xffff")
    e(f"s_mov_b32 s{sbase - 2}, 0x4000000")
    e(f"s_mov_b32 s{sbase - 1}, 0x20000")
    e(f"s_lshl_b32 s75, s2, 2")
    e(f"s_add_u32 s75, s75, s{swave}")
    e(f"s_lshl_b32 s75, s75, 7")
    e(f"s_add_u32 s75, s75, {DIAG_OFF + kidx * 0x100000}")
    e(f"v_mov_b32 v{vtmp}, 0")
    e("s_mov_b64 exec, 1")
    for i in range(2 * n):
        e(f"v_mov_b32 v{vtmp + 1}, s{sbase + i}")
        e(f"buffer_store_dword v{vtmp + 1}, v{vtmp}, s[{sbase - 4}:{sbase - 1}], s75 offen offset:{4 * i}")
        e("s_nop 1")
    e("s_mov_b64 exec, -1")
    if DBGOUT:
        lab = f"L_dbg_{len(a.lines)}"
        e(f"s_cmp_lg_u32 s2, 1")
        e(f"s_cbranch_scc1 {lab}")
        e(f"s_cmp_lg_u32 s{swave}, 0")
        e(f"s_cbranch_scc1 {lab}")
        e(f"s_mov_b32 s{sbase - 4}, s{sptr_lo - 2}")
        e(f"s_and_b32 s{sbase - 3}, s{sptr_hi - 2}, 0xffff")
        e(f"s_mov_b32 s{sbase - 2}, 256")
        e("s_mov_b64 exec, 1")
        for i in range(n):
            e(f"v_mov_b32 v{vtmp + 1}, s{sbase + 2 * i + 1}")
            e(f"buffer_store_dword v{vtmp + 1}, v{vtmp}, s[{sbase - 4}:{sbase - 1}], 0 offen offset:{4 * i + 32 * kidx}")
            e("s_nop 1")
        e("s_mov_b64 exec, -1")
        a.label(lab)


def vr(b, n=4):
    return f"v[{b}:{b + n - 1}]"


def ar(b, n=4):
    return f"a[{b}:{b + n - 1}]"


def interleave(a, mf, fillers, start=0, end=None):
    n = len(mf)
    if end is None:
        end = n
    nf = len(fillers)
    pos = [start + (j * (end - start)) // max(nf, 1) for j in range(nf)]
    j = 0
    for m in range(n):
        a.e(mf[m])
        while j < nf and pos[j] <= m:
            f = fillers[j]
            f()
            j += 1
    while j < nf:
        fillers[j]()
        j += 1


def srd(a, d, lo, hi, nbytes, bias=0):
    if bias:
        a.e(f"s_sub_u32 s{d}, s{lo}, {bias}")
        a.e(f"s_subb_u32 s{d + 1}, s{hi}, 0")
        a.e(f"s_and_b32 s{d + 1}, s{d + 1}, 0xffff")
    else:
        a.e(f"s_mov_b32 s{d}, s{lo}")
        a.e(f"s_and_b32 s{d + 1}, s{hi}, 0xffff")
    a.e(f"s_mov_b32 s{d + 2}, {nbytes + bias}")
    a.e(f"s_mov_b32 s{d + 3}, 0x20000")


K1_BSLOT = 13312
K1_AREA = 3328
K1_ABASE = 4 * K1_BSLOT
K1_LDS = K1_ABASE + 4 * 16384
ACC0 = 48


def acc(t, mt):
    return ACC0 + 16 * t + 4 * mt


V_LANE = 1
V_ARD = 2
V_QRD = 4
V_HRD = 8
V_ADMA = 9
V_BDMA = 13
V_L16 = 17
V_T = 18
S_X, S_Q, S_W1, S_WS, S_MISC = 4, 8, 12, 16, 20
S_WAVE, S_RB, S_P = 24, 25, 26
S_OFFA, S_OFFA2, S_OFFQ, S_OFFH = 27, 28, 29, 30
S_M0B, S_M0A = 31, 32
S_CNT = 33
S_QM = 34
S_PTR = 36
S_L2E = 58
S_T = 60
S_AFB = 72
S_GROW = 73
S_PO1, S_PO2 = 74, 3
S_PT, S_PTE = 100, 101
S_PF1, S_PF2 = 96, 20


def bset(s, t):
    return 52 * s + 4 * t


ASET = {"X": 104, "Y": 120, "Z": 136}


def k1_body(a, typ):
    T = "A" if typ == 0 else "B"
    nq = 8 if typ == 0 else 4
    nh = 13 - nq
    Ph = 2 * nh
    HB = 256 * nq
    e = a.e
    vi, vG, t0, t1, t2, t3 = V_T, V_T + 1, V_T + 2, V_T + 3, V_T + 4, V_T + 5
    e(f"v_and_b32 v{vi}, 15, v{V_LANE}")
    e(f"v_lshrrev_b32 v{vG}, 4, v{V_LANE}")
    e(f"s_mul_i32 s{S_T + 2}, s{S_P}, 448")
    if typ:
        e(f"s_add_u32 s{S_T + 2}, s{S_T + 2}, 160")

    e(f"s_lshr_b32 s{S_T + 8}, s{S_WAVE}, 1")
    e(f"s_lshl_b32 s{S_T + 8}, s{S_T + 8}, 4")
    e(f"s_and_b32 s{S_T + 9}, s{S_WAVE}, 1")
    e(f"s_lshl_b32 s{S_T + 9}, s{S_T + 9}, 2")
    e(f"s_add_u32 s{S_T + 8}, s{S_T + 8}, s{S_T + 9}")

    def krow(dst, kp, tmp):
        e(f"v_lshrrev_b32 v{tmp}, 2, v{kp}")
        e(f"v_lshlrev_b32 v{tmp}, 3, v{tmp}")
        e(f"v_and_b32 v{dst}, 3, v{kp}")
        e(f"v_add3_u32 v{dst}, v{dst}, v{tmp}, s{S_T + 8}")

    e(f"v_lshrrev_b32 v{t0}, 3, v{V_LANE}")
    krow(t1, t0, t2)
    e(f"v_mul_u32_u24 v{t1}, 6144, v{t1}")
    e(f"v_lshrrev_b32 v{t2}, 1, v{t0}")
    e(f"v_and_b32 v{t2}, 3, v{t2}")
    e(f"v_lshlrev_b32 v{t2}, 1, v{t2}")
    e(f"v_and_b32 v{t3}, 7, v{V_LANE}")
    e(f"v_xor_b32 v{t3}, v{t3}, v{t2}")
    e(f"v_lshlrev_b32 v{t3}, 4, v{t3}")
    e(f"v_add_u32 v{t1}, v{t1}, v{t3}")
    e(f"s_lshl_b32 s{S_T + 9}, s{S_P}, 7")
    e(f"s_add_u32 s{S_T + 9}, s{S_T + 9}, {4096 + (2048 if typ == 0 else 0)}")
    e(f"v_add_u32 v{V_BDMA}, s{S_T + 9}, v{t1}")
    if typ == 0:
        e(f"v_add_u32 v{V_BDMA + 1}, {2048 - 1024}, v{V_BDMA}")
    hins = [(2, 0), (3, 64)] if typ == 0 else [(1, 0), (2, 64), (3, 128)]
    magic, sh = (205, 11) if Ph == 10 else (57, 10)
    for s_ in range(8 * Ph + 64):
        if s_ < 8 * Ph:
            assert (s_ * magic) >> sh == s_ // Ph
    for slot, s0 in hins:
        e(f"v_add_u32 v{t0}, {s0}, v{V_LANE}")
        e(f"v_mul_u32_u24 v{t1}, {magic}, v{t0}")
        e(f"v_lshrrev_b32 v{t1}, {sh}, v{t1}")
        e(f"v_mul_u32_u24 v{t2}, {Ph}, v{t1}")
        e(f"v_sub_u32 v{t0}, v{t0}, v{t2}")
        e(f"v_and_b32 v{t1}, 7, v{t1}")
        krow(t2, t1, t3)
        e(f"v_mul_u32_u24 v{t2}, 7168, v{t2}")
        e(f"v_lshlrev_b32 v{t0}, 4, v{t0}")
        e(f"v_add3_u32 v{t0}, v{t0}, v{t2}, s{S_T + 2}")
        e(f"v_add_u32 v{V_BDMA + slot}, {4096 - 1024 * slot}, v{t0}")
    e(f"s_lshl_b32 s{S_T + 9}, s{S_RB}, 8")
    e(f"s_lshl_b32 s{S_T + 10}, s{S_WAVE}, 6")
    e(f"s_add_u32 s{S_T + 9}, s{S_T + 9}, s{S_T + 10}")
    e(f"s_lshl_b32 s{S_T + 9}, s{S_T + 9}, 11")
    e(f"v_lshrrev_b32 v{t0}, 3, v{V_LANE}")
    e(f"v_lshrrev_b32 v{t1}, 1, v{t0}")
    e(f"v_and_b32 v{t2}, 7, v{V_LANE}")
    e(f"v_xor_b32 v{t2}, v{t2}, v{t1}")
    e(f"v_lshlrev_b32 v{t0}, 11, v{t0}")
    e(f"v_add_u32 v{t0}, s{S_T + 9}, v{t0}")
    for j in range(4):
        if j & 1:
            e(f"v_xor_b32 v{t3}, 4, v{t2}")
            e(f"v_lshlrev_b32 v{t3}, 4, v{t3}")
        else:
            e(f"v_lshlrev_b32 v{t3}, 4, v{t2}")
        e(f"v_add_u32 v{t3}, v{t3}, v{t0}")
        e(f"v_add_u32 v{V_ADMA + j}, {j * (16384 - 1024)}, v{t3}")
    e(f"s_mul_i32 s{S_M0B}, s{S_WAVE}, {K1_AREA}")
    e(f"s_lshl_b32 s{S_M0A}, s{S_WAVE}, 14")
    e(f"s_add_u32 s{S_M0A}, s{S_M0A}, {K1_ABASE}")
    e(f"s_mov_b32 s{S_OFFA}, 0")
    e(f"s_mov_b32 s{S_OFFA2}, 65536")
    e(f"s_mov_b32 s{S_OFFQ}, 0")
    e(f"s_mov_b32 s{S_OFFH}, 0")
    e(f"s_mov_b32 s{S_QM}, 0xffff")
    e(f"s_mov_b32 s{S_QM + 1}, 0")

    def dmaB(tt):
        slot = tt % 4
        tag = f"B{tt}"
        f = []
        srcs = [(S_Q, S_OFFQ), (S_Q, S_OFFQ) if typ == 0 else (S_W1, S_OFFH), (S_W1, S_OFFH)]
        f.append(lambda: e(f"s_add_u32 m0, s{S_M0B}, {slot * K1_BSLOT}"))
        for j in range(3):
            sr, so = srcs[j]
            f.append(lambda j=j, sr=sr, so=so: a.vmem(
                f"buffer_load_dwordx4 v{V_BDMA + j}, s[{sr}:{sr + 3}], s{so} offen offset:{1024 * j} {OPT['k1b']} lds", tag))

        def q():
            e(f"s_mov_b64 exec, s[{S_QM}:{S_QM + 1}]")
            a.vmem(f"buffer_load_dwordx4 v{V_BDMA + 3}, s[{S_W1}:{S_W1 + 3}], s{S_OFFH} offen offset:3072 {OPT['k1b']} lds", tag)
            e("s_mov_b64 exec, -1")
        f.append(q)
        f.append(lambda: e(f"s_add_u32 s{S_OFFQ}, s{S_OFFQ}, {32 * 6144}"))
        f.append(lambda: e(f"s_add_u32 s{S_OFFH}, s{S_OFFH}, {32 * 7168}"))
        return f

    def dmaA(aa):
        slot = aa % 2
        tag = f"A{aa}"
        f = []
        for half in range(2):
            so = S_OFFA if half == 0 else S_OFFA2
            f.append(lambda half=half: e(f"s_add_u32 m0, s{S_M0A}, {slot * 8192 + half * 4096}"))
            for j in range(4):
                f.append(lambda j=j, so=so: a.vmem(
                    f"buffer_load_dwordx4 v{V_ADMA + j}, s[{S_X}:{S_X + 3}], s{so} offen offset:{1024 * j} {OPT['k1a']} lds", tag))
        f.append(lambda: e(f"s_add_u32 s{S_OFFA}, s{S_OFFA}, 128"))
        f.append(lambda: e(f"s_add_u32 s{S_OFFA2}, s{S_OFFA2}, 128"))
        return f

    def run_seq(fl):
        for fn in fl:
            n0 = len(a.lines)
            fn()
            if " m0," in a.lines[-1] and len(a.lines) == n0 + 1:
                e("s_nop 0")

    e("s_waitcnt lgkmcnt(0)")
    srd(a, S_Q, S_PTR + 2, S_PTR + 3, 1024 * 3072 * 2, bias=4096)
    srd(a, S_W1, S_PTR + 8, S_PTR + 9, 1024 * 3584 * 2, bias=4096)
    srd(a, S_X, S_PTR + 0, S_PTR + 1, 2048 * 1024 * 2)
    if not OPT.get('spin'):
        stamp(a, 0)
    run_seq(dmaB(0))
    run_seq(dmaA(0))
    srd(a, S_T + 4, S_PTR + 10, S_PTR + 11, 7168)
    e(f"v_lshlrev_b32 v{t1}, 3, v{vG}")
    for j in range(nh):
        a.vmem(f"buffer_load_dwordx2 {vr(acc(nq + j, 3), 2)}, v{t1}, s[{S_T + 4}:{S_T + 7}], s{S_T + 2} offen offset:{32 * j}", "bias")
    run_seq(dmaB(1))
    run_seq(dmaB(2))
    run_seq(dmaA(1))
    run_seq(dmaB(3))
    srd(a, S_WS, S_PTR + 20, S_PTR + 21, WS_USED)
    tile_decode(a, S_T + 4, S_T + 5, S_T + 6, S_T + 7, S_T)
    e(f"s_lshl_b32 s{S_T}, s{S_RB}, 1")
    e(f"s_lshr_b32 s{S_T + 1}, s{S_WAVE}, 1")
    e(f"s_add_u32 s{S_T}, s{S_T}, s{S_T + 1}")
    e(f"s_lshl_b32 s{S_T}, s{S_T}, 5")
    e(f"s_lshl_b32 s{S_T + 1}, s{S_P}, 1")
    e(f"s_add_u32 s{S_T}, s{S_T}, s{S_T + 1}")
    if typ:
        e(f"s_add_u32 s{S_T}, s{S_T}, 1")
    e(f"s_lshl_b32 s{S_T}, s{S_T}, 1")
    e(f"s_and_b32 s{S_T + 1}, s{S_WAVE}, 1")
    e(f"s_add_u32 s{S_T}, s{S_T}, s{S_T + 1}")
    e(f"s_lshl_b32 s{S_T}, s{S_T}, 3")
    e(f"s_add_u32 s{S_T}, s{S_T}, {FA_OFF}")
    e(f"v_writelane_b32 v0, s{S_T}, 4")
    e(f"s_lshl_b32 s{S_T}, s{S_RB}, 1")
    e(f"s_lshr_b32 s{S_T + 3}, s{S_WAVE}, 1")
    e(f"s_add_u32 s{S_T}, s{S_T}, s{S_T + 3}")
    e(f"s_lshl_b32 s{S_T}, s{S_T}, 5")
    e(f"s_add_u32 s{S_T}, s{S_T}, s{S_P}")
    e(f"s_lshl_b32 s{S_T}, s{S_T}, 1")
    e(f"s_add_u32 s{S_T}, s{S_T}, s{S_T + 1}")
    e(f"s_lshl_b32 s{S_T}, s{S_T}, 3")
    e(f"s_add_u32 s{S_T}, s{S_T}, {FE_OFF + 256 * typ}")
    e(f"v_writelane_b32 v0, s{S_T}, 0")
    e(f"s_lshl_b32 s{S_T}, s{S_P}, 4")
    e(f"s_add_u32 s{S_T}, s{S_T}, s{S_RB}")
    e(f"s_lshl_b32 s{S_T}, s{S_T}, 2")
    e(f"s_add_u32 s{S_T}, s{S_T}, s{S_WAVE}")
    e(f"s_lshl_b32 s{S_T}, s{S_T}, 3")
    e(f"s_add_u32 s{S_T}, s{S_T}, {FQ_OFF + 256 * typ}")
    e(f"v_writelane_b32 v0, s{S_T}, 1")
    e(f"s_lshr_b32 s{S_T}, s2, 5")
    e(f"s_lshl_b32 s{S_T}, s{S_T}, 1")
    e(f"s_lshr_b32 s{S_T + 1}, s{S_WAVE}, 1")
    e(f"s_add_u32 s{S_T}, s{S_T}, s{S_T + 1}")
    e(f"s_lshl_b32 s{S_T}, s{S_T}, 9")
    e(f"s_and_b32 s{S_T + 1}, s2, 31")
    e(f"s_lshl_b32 s{S_T + 1}, s{S_T + 1}, 4")
    e(f"s_add_u32 s{S_T}, s{S_T}, s{S_T + 1}")
    e(f"s_and_b32 s{S_T + 1}, s{S_WAVE}, 1")
    e(f"s_lshl_b32 s{S_T + 1}, s{S_T + 1}, 3")
    e(f"s_add_u32 s{S_T}, s{S_T}, s{S_T + 1}")
    e(f"s_add_u32 s{S_T}, s{S_T}, {FO_OFF}")
    e(f"s_lshl_b32 s{S_T + 1}, s{S_T + 7}, 8")
    e(f"s_lshl_b32 s{S_T + 3}, s{S_WAVE}, 3")
    e(f"s_add_u32 s{S_T + 1}, s{S_T + 1}, s{S_T + 3}")
    e(f"s_add_u32 s{S_T + 1}, s{S_T + 1}, {FP_OFF}")
    e(f"s_cmp_eq_u32 s{S_T + 6}, 0")
    e(f"s_cselect_b32 s{S_T + 1}, s{S_T + 1}, 0x7ffffff0")
    e(f"v_writelane_b32 v0, s{S_T}, 2")
    e(f"v_writelane_b32 v0, s{S_T + 1}, 3")
    e(f"s_mul_i32 s{S_T}, s2, 171")
    e(f"s_lshr_b32 s{S_T}, s{S_T}, 10")
    e(f"s_lshl_b32 s{S_T}, s{S_T}, 1")
    e(f"s_add_u32 s{S_T}, s{S_T}, s2")
    e(f"s_lshl_b32 s{S_T}, s{S_T}, 3")
    e(f"s_add_u32 s{S_T}, s{S_T}, {FK_OFF}")
    e(f"v_writelane_b32 v0, s{S_T}, 5")
    if typ == 0:
        e(f"s_or_b32 s{S_T}, s2, s{S_WAVE}")
        e(f"s_cmp_lg_u32 s{S_T}, 0")
        e(f"s_cbranch_scc1 L_notok")
        e(f"s_memrealtime s[{S_T + 8}:{S_T + 9}]")
        srd(a, S_T + 4, S_PTR + 18, S_PTR + 19, 256)
        e("s_waitcnt lgkmcnt(0)")
        e(f"s_or_b32 s{S_T + 9}, s{S_T + 9}, 0x40000000")
        e(f"s_lshl_b32 s{S_T + 9}, s{S_T + 9}, 1")
        e(f"s_and_b32 s{S_T}, s{S_T + 8}, 1")
        e(f"s_or_b32 s{S_T + 9}, s{S_T + 9}, s{S_T}")
        e(f"s_or_b32 s{S_T + 8}, s{S_T + 8}, 1")
        e(f"v_mov_b32 v{V_T + 28}, s{S_T + 8}")
        e(f"v_mov_b32 v{V_T + 29}, s{S_T + 9}")
        e(f"v_mov_b32 v{V_T + 27}, 0")
        e("s_mov_b64 exec, 1")
        e(f"buffer_store_dwordx2 v[{V_T + 28}:{V_T + 29}], v{V_T + 27}, s[{S_T + 4}:{S_T + 7}], 0 offen sc1")
        e("s_mov_b64 exec, -1")
        e("s_nop 1")
        a.label("L_notok")
    if OPT.get('cpf'):
        e(f"s_getpc_b64 s[{S_T + 4}:{S_T + 5}]")
        a.label(f"L_pc_{T}")
        e(f"s_sub_u32 s{S_T + 4}, s{S_T + 4}, L_pc_{T}-KNAME")
        e(f"s_subb_u32 s{S_T + 5}, s{S_T + 5}, 0")
        e(f"s_lshr_b32 s{S_T}, s2, 3")
        e(f"s_and_b32 s{S_T}, s{S_T}, 3")
        e(f"s_lshl_b32 s{S_T}, s{S_T}, 2")
        e(f"s_add_u32 s{S_T}, s{S_T}, s{S_WAVE}")
        e(f"s_lshl_b32 s{S_T}, s{S_T}, 13")
        e(f"v_lshlrev_b32 v{V_T + 29}, 7, v{V_LANE}")
        e(f"v_add_u32 v{V_T + 29}, s{S_T}, v{V_T + 29}")
        e(f"v_min_u32 v{V_T + 29}, L_code_end-KNAME-4, v{V_T + 29}")
        a.vmem(f"global_load_dword v{V_T + 29}, v{V_T + 29}, s[{S_T + 4}:{S_T + 5}]", "pf")
    if OPT.get('xpf') == 1:
        e(f"v_and_b32 v{V_T + 28}, 31, v{V_LANE}")
        e(f"v_lshlrev_b32 v{V_T + 28}, 7, v{V_T + 28}")
        e(f"s_lshl_b32 s{S_T}, s2, 2")
        e(f"s_add_u32 s{S_T}, s{S_T}, s{S_WAVE}")
        e(f"s_lshl_b32 s{S_T}, s{S_T}, 12")
        a.vmem(f"buffer_load_dword v{V_T + 28}, v{V_T + 28}, s[{S_X}:{S_X + 3}], s{S_T} offen", "pf")
    if OPT.get('xpf') == 2:
        e(f"v_lshlrev_b32 v{V_T + 27}, 7, v{V_LANE}")
        e(f"s_lshr_b32 s{S_T}, s2, 5")
        e(f"s_lshl_b32 s{S_T}, s{S_T}, 2")
        e(f"s_add_u32 s{S_T}, s{S_T}, s{S_WAVE}")
        e(f"s_lshl_b32 s{S_T}, s{S_T}, 14")
        e(f"s_lshl_b32 s{S_T + 1}, s{S_RB}, 19")
        e(f"s_add_u32 s{S_T}, s{S_T}, s{S_T + 1}")
        a.vmem(f"buffer_load_dword v{V_T + 28}, v{V_T + 27}, s[{S_X}:{S_X + 3}], s{S_T} offen", "pf")
        e(f"s_add_u32 s{S_T}, s{S_T}, 8192")
        a.vmem(f"buffer_load_dword v{V_T + 28}, v{V_T + 27}, s[{S_X}:{S_X + 3}], s{S_T} offen", "pf")

    e(f"v_lshrrev_b32 v{t0}, 3, v{vi}")
    e(f"v_lshlrev_b32 v{t0}, 6, v{t0}")
    e(f"v_and_b32 v{t1}, 7, v{vi}")
    e(f"v_lshlrev_b32 v{t1}, 3, v{t1}")
    e(f"v_add_u32 v{t0}, v{t0}, v{t1}")
    e(f"v_lshrrev_b32 v{t1}, 1, v{vi}")
    e(f"v_xor_b32 v{t1}, v{t1}, v{vG}")
    e(f"v_add_u32 v{t2}, v{t0}, v{t1}")
    e(f"v_lshlrev_b32 v{t2}, 4, v{t2}")
    e(f"v_add_u32 v{V_ARD}, s{S_M0A}, v{t2}")
    e(f"v_xor_b32 v{t1}, 4, v{t1}")
    e(f"v_add_u32 v{t2}, v{t0}, v{t1}")
    e(f"v_lshlrev_b32 v{t2}, 4, v{t2}")
    e(f"v_add_u32 v{V_ARD + 1}, s{S_M0A}, v{t2}")
    e(f"v_and_b32 v{t0}, 1, v{vG}")
    e(f"v_lshlrev_b32 v{t0}, 2, v{t0}")
    e(f"v_lshrrev_b32 v{t1}, 2, v{vi}")
    e(f"v_add_u32 v{t0}, v{t0}, v{t1}")
    e(f"v_lshrrev_b32 v{t1}, 1, v{vG}")
    e(f"v_mul_u32_u24 v{t1}, {2 * K1_AREA}, v{t1}")
    e(f"v_and_b32 v{t2}, 3, v{vi}")
    e(f"v_lshlrev_b32 v{t2}, 3, v{t2}")
    e(f"v_add_u32 v{t1}, v{t1}, v{t2}")
    e(f"v_mul_u32_u24 v{t3}, {16 * Ph}, v{t0}")
    e(f"v_add3_u32 v{V_HRD}, v{t1}, v{t3}, {0}")
    e(f"v_add_u32 v{V_HRD}, {HB}, v{V_HRD}")
    e(f"v_lshlrev_b32 v{t3}, 7, v{t0}")
    e(f"v_add_u32 v{t1}, v{t1}, v{t3}")
    e(f"v_lshrrev_b32 v{t2}, 1, v{t0}")
    e(f"v_and_b32 v{t2}, 3, v{t2}")
    for t in range(4):
        e(f"v_xor_b32 v{t3}, {t}, v{t2}")
        e(f"v_lshlrev_b32 v{t3}, 5, v{t3}")
        e(f"v_add_u32 v{V_QRD + t}, v{t1}, v{t3}")
    e(f"v_lshlrev_b32 v{V_L16}, 4, v{V_LANE}")

    gw, gx0, gx1 = V_T, V_T + 8, V_T + 16
    gt = V_T + 24
    e(f"v_lshlrev_b32 v{gt}, 5, v{V_LANE}")
    e(f"s_lshl_b32 s{S_GROW}, s{S_RB}, 8")
    e(f"s_lshl_b32 s{S_T + 1}, s{S_WAVE}, 6")
    e(f"s_add_u32 s{S_GROW}, s{S_GROW}, s{S_T + 1}")
    e(f"s_lshl_b32 s{S_T + 1}, s{S_P}, 2")
    e(f"s_add_u32 s{S_GROW}, s{S_GROW}, s{S_T + 1}")
    if typ:
        e(f"s_add_u32 s{S_GROW}, s{S_GROW}, 2")
    e(f"s_lshl_b32 s{S_T + 1}, s{S_GROW}, 11")
    srd(a, S_MISC, S_PTR + 14, S_PTR + 15, 2048)
    a.vmem(f"buffer_load_dwordx4 {vr(gw)}, v{gt}, s[{S_MISC}:{S_MISC + 3}], 0 offen", "g")
    a.vmem(f"buffer_load_dwordx4 {vr(gw + 4)}, v{gt}, s[{S_MISC}:{S_MISC + 3}], 0 offen offset:16", "g")
    a.vmem(f"buffer_load_dwordx4 {vr(gx0)}, v{gt}, s[{S_X}:{S_X + 3}], s{S_T + 1} offen", "g")
    a.vmem(f"buffer_load_dwordx4 {vr(gx0 + 4)}, v{gt}, s[{S_X}:{S_X + 3}], s{S_T + 1} offen offset:16", "g")
    a.vmem(f"buffer_load_dwordx4 {vr(gx1)}, v{gt}, s[{S_X}:{S_X + 3}], s{S_T + 1} offen offset:2048", "g")
    a.vmem(f"buffer_load_dwordx4 {vr(gx1 + 4)}, v{gt}, s[{S_X}:{S_X + 3}], s{S_T + 1} offen offset:2064", "g")

    if OPT['pf']:
        srd(a, S_PF1, S_PTR + 12, S_PTR + 13, 3584 * 1024 * 2)
        srd(a, S_PF2, S_PTR + 4, S_PTR + 5, 1024 * 1024 * 2)
        nb = {1: 7, 2: 1, 3: 2, 4: 3}[OPT['pf']]
        PL1, PL2 = -(-56 // nb), -(-16 // nb)
        e(f"v_min_u32 v{V_T + 26}, {PL1 - 1}, v{V_LANE}")
        e(f"v_lshlrev_b32 v{V_T + 26}, 7, v{V_T + 26}")
        e(f"v_min_u32 v{V_T + 27}, {PL2 - 1}, v{V_LANE}")
        e(f"v_lshlrev_b32 v{V_T + 27}, 7, v{V_T + 27}")
        e(f"s_lshl_b32 s{S_T}, s2, 2")
        e(f"s_add_u32 s{S_T}, s{S_T}, s{S_WAVE}")
        e(f"s_mul_i32 s{S_PO1}, s{S_T}, 7168")
        e(f"s_lshl_b32 s{S_PO2}, s{S_T}, 11")

    if OPT.get('pt'):
        e(f"s_lshl_b32 s{S_T}, s{S_RB}, 1")
        e(f"s_lshr_b32 s{S_T + 1}, s{S_WAVE}, 1")
        e(f"s_add_u32 s{S_T}, s{S_T}, s{S_T + 1}")
        e(f"s_mul_i32 s{S_AFB}, s{S_T}, {144 * 8192}")
        e(f"s_and_b32 s{S_T + 1}, s{S_WAVE}, 1")
        e(f"s_lshl_b32 s{S_T + 1}, s{S_T + 1}, 12")
        e(f"s_add_u32 s{S_AFB}, s{S_AFB}, s{S_T + 1}")
        e(f"s_mul_i32 s{S_PT}, s{S_P}, {7 * 8192}")
        e(f"s_add_u32 s{S_PT}, s{S_PT}, s{S_AFB}")
        if typ:
            e(f"s_add_u32 s{S_PT}, s{S_PT}, {2 * 8192}")
        e(f"s_add_u32 s{S_PTE}, s{S_PT}, {(4 if typ else 2) * 8192}")
        e(f"v_and_b32 v{V_T + 25}, 31, v{V_LANE}")
        e(f"v_lshlrev_b32 v{V_T + 25}, 7, v{V_T + 25}")
        if typ:
            e(f"v_lshrrev_b32 v{V_T + 29}, 5, v{V_LANE}")
            e(f"v_lshlrev_b32 v{V_T + 29}, 13, v{V_T + 29}")
            e(f"v_add_u32 v{V_T + 29}, v{V_T + 29}, v{V_T + 25}")
            e(f"s_mul_i32 s{S_T}, s{S_P}, {2 * 8192}")
            e(f"s_add_u32 s{S_T}, s{S_T}, {112 * 8192}")
            e(f"s_add_u32 s{S_T}, s{S_T}, s{S_AFB}")
            a.vmem(f"buffer_load_dword v{V_T + 28}, v{V_T + 29}, s[{S_WS}:{S_WS + 3}], s{S_T} offen", "pf")

    def pt_items():
        return [lambda: a.vmem(f"buffer_load_dword v{V_T + 28}, v{V_T + 25}, s[{S_WS}:{S_WS + 3}], s{S_PT} offen", "pf"),
                lambda: e(f"s_add_u32 s{S_PT}, s{S_PT}, 8192"),
                lambda: e(f"s_min_u32 s{S_PT}, s{S_PT}, s{S_PTE}")]

    def pf_items(cond=None):
        if cond is None:
            return [lambda: a.vmem(f"buffer_load_dword v{V_T + 28}, v{V_T + 26}, s[{S_PF1}:{S_PF1 + 3}], s{S_PO1} offen", "pf"),
                    lambda: a.vmem(f"buffer_load_dword v{V_T + 28}, v{V_T + 27}, s[{S_PF2}:{S_PF2 + 3}], s{S_PO2} offen", "pf"),
                    lambda: e(f"s_add_u32 s{S_PO1}, s{S_PO1}, {128 * PL1}"),
                    lambda: e(f"s_add_u32 s{S_PO2}, s{S_PO2}, {128 * PL2}")]

        def blk():
            e(f"s_lshl_b32 s{S_T}, 1, s{S_CNT}")
            e(f"s_and_b32 s{S_T}, s{S_T}, {cond}")
            e(f"s_cbranch_scc0 L_k1{T}_nopf")
            e(f"buffer_load_dword v{V_T + 28}, v{V_T + 26}, s[{S_PF1}:{S_PF1 + 3}], s{S_PO1} offen")
            e(f"buffer_load_dword v{V_T + 28}, v{V_T + 27}, s[{S_PF2}:{S_PF2 + 3}], s{S_PO2} offen")
            e(f"s_add_u32 s{S_PO1}, s{S_PO1}, {128 * PL1}")
            e(f"s_add_u32 s{S_PO2}, s{S_PO2}, {128 * PL2}")
            a.label(f"L_k1{T}_nopf")
        return [blk]

    def g_items():
        d0, d1 = V_T + 24, V_T + 25
        L = []
        L.append(f"v_dot2_f32_bf16 v{d0}, v{gx0}, v{gw}, 0")
        L.append(f"v_dot2_f32_bf16 v{d1}, v{gx1}, v{gw}, 0")
        for j in range(1, 8):
            L.append(f"v_dot2_f32_bf16 v{d0}, v{gx0 + j}, v{gw + j}, v{d0}")
            L.append(f"v_dot2_f32_bf16 v{d1}, v{gx1 + j}, v{gw + j}, v{d1}")
        L.append("s_nop 3")
        for sh_ in (1, 2, 4, 8):
            L.append(f"s_nop 0\nv_add_f32_dpp v{d0}, v{d0}, v{d0} row_shr:{sh_} row_mask:0xf bank_mask:0xf bound_ctrl:0")
            L.append(f"s_nop 0\nv_add_f32_dpp v{d1}, v{d1}, v{d1} row_shr:{sh_} row_mask:0xf bank_mask:0xf bound_ctrl:0")
        L.append(f"s_nop 0\nv_add_f32_dpp v{d0}, v{d0}, v{d0} row_bcast:15 row_mask:0xa bank_mask:0xf")
        L.append(f"s_nop 0\nv_add_f32_dpp v{d1}, v{d1}, v{d1} row_bcast:15 row_mask:0xa bank_mask:0xf")
        L.append(f"s_nop 0\nv_add_f32_dpp v{d0}, v{d0}, v{d0} row_bcast:31 row_mask:0xc bank_mask:0xf")
        L.append(f"s_nop 0\nv_add_f32_dpp v{d1}, v{d1}, v{d1} row_bcast:31 row_mask:0xc bank_mask:0xf")
        L.append(f"v_mul_f32 v{d0}, 0xbfb8aa3b, v{d0}")
        L.append(f"v_mul_f32 v{d1}, 0xbfb8aa3b, v{d1}")
        L.append(f"v_exp_f32 v{d0}, v{d0}")
        L.append(f"v_exp_f32 v{d1}, v{d1}\ns_nop 0")
        L.append(f"v_add_f32 v{d0}, 1.0, v{d0}")
        L.append(f"v_add_f32 v{d1}, 1.0, v{d1}")
        L.append(f"v_rcp_f32 v{d0}, v{d0}")
        L.append(f"v_rcp_f32 v{d1}, v{d1}")
        L.append(f"v_mov_b32 v{gw}, 0")
        L.append(f"s_lshl_b32 s{S_T + 1}, s{S_GROW}, 2\ns_add_u32 s{S_T + 1}, s{S_T + 1}, {G_OFF}")
        L.append(f"s_lshl_b32 s{S_T + 3}, s2, 8\ns_add_u32 s{S_T + 3}, s{S_T + 3}, {FLG_OFF}")
        L.append(f"s_mov_b32 s{S_T + 8}, 0\ns_mov_b32 s{S_T + 9}, 0x80000000")
        F = [(lambda x=x: e(x)) for x in L]

        def st():
            e(f"s_mov_b64 exec, s[{S_T + 8}:{S_T + 9}]")
            a.vmem(f"buffer_store_dwordx2 v[{d0}:{d1}], v{gw}, s[{S_WS}:{S_WS + 3}], s{S_T + 1} offen sc1", "sq")
            e("s_mov_b64 exec, -1")
        F.append(st)
        return F

    a.wait(["bias"])
    for j in range(nh):
        src = acc(nq + j, 3)
        d = acc(nq + j, 0)
        e(f"v_lshlrev_b32 v{d}, 16, v{src}")
        e(f"v_and_b32 v{d + 1}, 0xffff0000, v{src}")
        e(f"v_lshlrev_b32 v{d + 2}, 16, v{src + 1}")
        e(f"v_and_b32 v{d + 3}, 0xffff0000, v{src + 1}")
    for t in range(4):
        for r in range(4):
            e(f"v_mov_b32 v{acc(t, 0) + r}, {EPS_HEX}")

    def rdB(tt):
        slot = tt % 4
        s = tt % 2
        f = []
        for t in range(13):
            for ins in range(2):
                if t < nq:
                    addr = V_QRD + (t & 3)
                    off = slot * K1_BSLOT + ins * K1_AREA + 1024 * (t >> 2)
                else:
                    addr = V_HRD
                    off = slot * K1_BSLOT + ins * K1_AREA + 32 * (t - nq)
                d = bset(s, t) + 2 * ins
                f.append(lambda d=d, addr=addr, off=off: e(f"ds_read_b64_tr_b16 {ar(d, 2)}, v{addr} offset:{off}"))
        return f

    def aset_of(tt):
        if tt % 2 == 0:
            return ASET["X"]
        return ASET["Y"] if tt % 4 == 1 else ASET["Z"]

    def rdA(aa):
        slot = aa % 2
        f = []
        for hh in range(2):
            base = aset_of(2 * aa + hh)
            for mt in range(4):
                f.append(lambda hh=hh, mt=mt, base=base: e(
                    f"ds_read_b128 {ar(base + 4 * mt)}, v{V_ARD + hh} offset:{slot * 8192 + mt * 2048}"))
        return f

    stamp(a, 1)
    a.wait(["B0", "A0"])
    e("s_barrier")
    stamp(a, 2)
    for fn in rdA(0) + rdB(0):
        fn()
    a.wait(["B1"], lgkm=True)
    e("s_barrier")

    NSTEP = 32

    def step(tt):
        if DIAG and OPT.get('ts'):
            e("s_memrealtime s[76:77]")
            e("s_waitcnt lgkmcnt(0)")
            e("s_mov_b32 m0, s78")
            e("s_nop 0")
            e(f"v_writelane_b32 v{V_T + 29}, s76, m0")
            e("s_add_u32 s78, s78, 1")
        s = tt % 2
        ab = aset_of(tt)
        mf = []
        for t in range(13):
            order = [1, 2, 3, 0] if tt == 0 else [0, 1, 2, 3]
            for mt in order:
                D = vr(acc(t, mt))
                if tt == 0:
                    C = "0" if (typ == 0 and 4 <= t < 8) else vr(acc(t, 0))
                else:
                    C = D
                W = ar(bset(s, t))
                X = ar(ab + 4 * mt)
                if typ == 0 and t < 8:
                    mf.append(f"v_mfma_f32_16x16x32_bf16 {D}, {X}, {W}, {C}")
                else:
                    mf.append(f"v_mfma_f32_16x16x32_bf16 {D}, {W}, {X}, {C}")
        rd = []
        if tt + 1 < NSTEP:
            rd = rdB(tt + 1)
            if tt % 2 == 1:
                rd = rdA((tt + 1) // 2) + rd
        dm = []
        if OPT.get('afirst', 1) and tt % 2 == 0 and tt // 2 + 2 < NSTEP // 2:
            dm += dmaA(tt // 2 + 2)
        if tt + 4 < NSTEP:
            dm += dmaB(tt + 4)
        if not OPT.get('afirst', 1) and tt % 2 == 0 and tt // 2 + 2 < NSTEP // 2:
            dm += dmaA(tt // 2 + 2)
        if OPT['pf'] == 1 and tt % 4 == 1 and tt < 28:
            dm += pf_items()
        if OPT['pf'] in (2, 3, 4) and tt == 28:
            dm += pf_items()
        if OPT['pf'] in (3, 4) and tt % 4 == 1 and 4 <= tt < 28:
            dm += pf_items({3: 1 << 4, 4: (1 << 5) | (1 << 3)}[OPT['pf']])
        if OPT.get('pt') and tt % 4 == 3 and tt < 28:
            dm += pt_items()
        fl = []
        i1 = i2 = 0
        n1, n2 = len(rd), len(dm)
        while i1 < n1 or i2 < n2:
            if i2 < n2 and (i1 >= n1 or i2 * n1 <= i1 * n2):
                fl.append(dm[i2]); i2 += 1
            else:
                fl.append(rd[i1]); i1 += 1
        if tt == NSTEP - 1:
            assert "g" not in a.vm
            fl = g_items()
        interleave(a, mf, fl, 0, 48)
        if tt + 1 < NSTEP:
            tags = []
            if tt + 2 < NSTEP:
                tags.append(f"B{tt + 2}")
            if tt % 2 == 0:
                tags.append(f"A{tt // 2 + 1}")
            a.wait(tags, lgkm=True)
            if tt + 2 < NSTEP:
                e("s_barrier")

    iters = []
    for it in range(8):
        n0 = len(a.lines)
        for tt in range(4 * it, 4 * it + 4):
            step(tt)
        iters.append(a.lines[n0:])
        del a.lines[n0:]
    for it in range(2, 7):
        assert iters[it] == iters[1], f"iteration {it} differs"
    stamp(a, 3)
    if DIAG and OPT.get('ts'):
        e("s_mov_b32 s78, 0")
    a.lines += iters[0]
    if not OPT.get('ts'):
        stamp(a, 4)
    e(f"s_mov_b32 s{S_CNT}, 6")
    a.label(f"L_k1{T}_loop")
    a.lines += iters[1]
    e(f"s_sub_u32 s{S_CNT}, s{S_CNT}, 1")
    e(f"s_cmp_lg_u32 s{S_CNT}, 0")
    e(f"s_cbranch_scc1 L_k1{T}_loop")
    a.lines += iters[7]
    assert all(not t.startswith(("A", "B")) for t in a.vm), a.vm

    stamp(a, 5)

    def fin():
        stamp(a, 6)
        stamp(a, 7)
        k = a.vm_count(["#eA"], drop=False)
        if DIAG:
            k += 16
        stamp_dump(a, 0, 8, S_WAVE, S_PTR + 20, S_PTR + 21, V_T)
        e(f"s_cmp_eq_u32 s{P_SEARLY}, 0")
        e("s_cbranch_scc1 L_p2_late")
        e(f"s_waitcnt vmcnt({k})")
        e("s_branch L_p2_go")

    def fe_load():
        a.vmem(f"buffer_load_dwordx2 v[{P_VFL}:{P_VFL + 1}], v{P_VFA}, s[{S_WS}:{S_WS + 3}], 0 offen sc1", "fe")

    def fe_check():
        a.wait(["fe"])
        e(f"v_cmp_eq_u64 vcc, v[{P_VFL}:{P_VFL + 1}], v[{V_TOK}:{V_TOK + 1}]")
        e(f"s_mov_b32 s{P_SEARLY}, 0")
        e("s_nop 0")
        e("s_cmp_eq_u64 vcc, -1")
        e(f"s_cbranch_scc0 L_k1{T}_noearly")
        p2_issueA(a)
        e(f"s_mov_b32 s{P_SEARLY}, 1")
        a.label(f"L_k1{T}_noearly")
        a.mark("eA")

    def setflag(lane):
        a.label(f"L_k1{T}_tw")
        e(f"v_readfirstlane_b32 s{S_T}, v{V_TOK + 1}")
        e(f"v_readfirstlane_b32 s{S_T + 1}, v{V_TOK}")
        e("s_nop 3")
        e(f"s_min_u32 s{S_T}, s{S_T}, s{S_T + 1}")
        e(f"s_cmp_lg_u32 s{S_T}, 0")
        e(f"s_cbranch_scc1 L_k1{T}_tok")
        e("s_sleep 4")
        e(f"buffer_load_dwordx2 v[{V_TOK}:{V_TOK + 1}], v12, s[{S_T + 4}:{S_T + 7}], 0 offen sc1")
        e("s_waitcnt vmcnt(0)")
        e(f"s_branch L_k1{T}_tw")
        a.label(f"L_k1{T}_tok")
        e(f"s_mov_b64 exec, {1 << lane}")
        a.vmem(f"buffer_store_dwordx2 v[{V_TOK}:{V_TOK + 1}], v0, s[{S_WS}:{S_WS + 3}], 0 offen sc1", "fl")
        e("s_mov_b64 exec, -1")
    e("s_barrier")
    e(f"s_mov_b32 s{S_L2E}, {L2E_HEX}")
    e(f"s_mov_b32 s{S_L2E + 1}, {L2E_HEX}")
    e(f"s_lshl_b32 s{S_T}, s{S_RB}, 1")
    e(f"s_lshr_b32 s{S_T + 1}, s{S_WAVE}, 1")
    e(f"s_add_u32 s{S_T}, s{S_T}, s{S_T + 1}")
    e(f"s_mul_i32 s{S_AFB}, s{S_T}, {144 * 8192}")
    e(f"s_and_b32 s{S_T + 1}, s{S_WAVE}, 1")
    e(f"s_lshl_b32 s{S_T + 1}, s{S_T + 1}, 12")
    e(f"s_add_u32 s{S_AFB}, s{S_AFB}, s{S_T + 1}")
    e("s_nop 7")
    TT, UU = V_T, V_T + 8

    def phi_group(ra, rb_):
        prs = [ra, ra + 2, rb_, rb_ + 2]
        for j, p in enumerate(prs):
            e(f"v_pk_mul_f32 {vr(TT + 2 * j, 2)}, {vr(p, 2)}, s[{S_L2E}:{S_L2E + 1}]")
        for j in range(8):
            e(f"v_exp_f32_e64 v{TT + j}, v{TT + j} clamp")
        for p in prs:
            e(f"v_max_f32 v{p}, {EPS_HEX}, v{p}")
            e(f"v_max_f32 v{p + 1}, {EPS_HEX}, v{p + 1}")
        for j, p in enumerate(prs):
            e(f"v_pk_add_f32 {vr(p, 2)}, {vr(p, 2)}, {vr(TT + 2 * j, 2)}")
        for j, p in enumerate(prs):
            e(f"v_cvt_pk_bf16_f32 v{ra + j}, v{p}, v{p + 1}")

    def cvt_group(ra, rb_):
        prs = [ra, ra + 2, rb_, rb_ + 2]
        for j, p in enumerate(prs):
            e(f"v_cvt_pk_bf16_f32 v{ra + j}, v{p}, v{p + 1}")

    def mish_group(ra, rb_, split=False, dst=None):
        prs = [ra, ra + 2, rb_, rb_ + 2]
        for j, p in enumerate(prs):
            e(f"v_pk_mul_f32 {vr(TT + 2 * j, 2)}, {vr(p, 2)}, s[{S_L2E}:{S_L2E + 1}]")
        for j in range(8):
            e(f"v_exp_f32 v{TT + j}, v{TT + j}")
        for j in range(4):
            e(f"v_pk_fma_f32 {vr(UU + 2 * j, 2)}, {vr(TT + 2 * j, 2)}, 0.5, 1.0 op_sel_hi:[1,0,0]")
        for j in range(4):
            e(f"v_pk_fma_f32 {vr(UU + 2 * j, 2)}, {vr(TT + 2 * j, 2)}, {vr(UU + 2 * j, 2)}, 1.0 op_sel_hi:[1,1,0]")
        for j in range(8):
            e(f"v_rcp_f32 v{UU + j}, v{UU + j}")
        for j, p in enumerate(prs):
            e(f"v_pk_fma_f32 {vr(p, 2)}, {vr(UU + 2 * j, 2)}, {vr(p, 2)}, {vr(p, 2)} neg_lo:[1,0,0] neg_hi:[1,0,0]")
        if split:
            e(f"v_cvt_pk_bf16_f32 v{ra}, v{ra}, v{ra + 1}")
            e(f"v_cvt_pk_bf16_f32 v{ra + 1}, v{ra + 2}, v{ra + 3}")
            e(f"v_cvt_pk_bf16_f32 v{rb_}, v{rb_}, v{rb_ + 1}")
            e(f"v_cvt_pk_bf16_f32 v{rb_ + 1}, v{rb_ + 2}, v{rb_ + 3}")
        else:
            dd = ra if dst is None else dst
            for j, p in enumerate(prs):
                e(f"v_cvt_pk_bf16_f32 v{dd + j}, v{p}, v{p + 1}")

    WS = f"s[{S_WS}:{S_WS + 3}]"

    def set_kb(sreg, mul, add):
        e(f"s_mul_i32 s{sreg}, s{S_P}, {mul * 8192}")
        e(f"s_add_u32 s{sreg}, s{sreg}, {add * 8192}")
        e(f"s_add_u32 s{sreg}, s{sreg}, s{S_AFB}")

    def h_late(tA, kbl, sreg, mid=None):
        set_kb(sreg, 7, kbl)
        for mt in range(4):
            mish_group(acc(tA, mt), acc(tA + 1, mt))
            if mt == 1 and mid:
                mid()

    def h_half_late(tA, half):
        set_kb(P_SL + 2, 7, 2)
        if half:
            e(f"s_add_u32 s{P_SL + 2}, s{P_SL + 2}, 512")
        for mp in range(2):
            mish_group(acc(tA, 2 * mp), acc(tA, 2 * mp + 1), dst=240 + 4 * mp)
        e("s_nop 1")
        for mp in range(2):
            e(f"v_permlane16_swap_b32 v{240 + 4 * mp}, v{242 + 4 * mp}")
            e(f"v_permlane16_swap_b32 v{241 + 4 * mp}, v{243 + 4 * mp}")

    def h_full(tA, kbl, tag='st'):
        set_kb(S_T + 2, 7, kbl)
        for mt in range(4):
            mish_group(acc(tA, mt), acc(tA + 1, mt))
            a.vmem(f"buffer_store_dwordx4 {vr(acc(tA, mt))}, v{V_L16}, {WS}, s{S_T + 2} offen offset:{1024 * mt} {OPT['st']}", tag)

    def h_half(tA, kbl, half):
        set_kb(S_T + 2, 7, kbl)
        for mp in range(2):
            mish_group(acc(tA, 2 * mp), acc(tA, 2 * mp + 1), split=True)
            for mt in (2 * mp, 2 * mp + 1):
                a.vmem(f"buffer_store_dwordx2 {vr(acc(tA, mt), 2)}, v{V_L16}, {WS}, s{S_T + 2} offen offset:{1024 * mt + 8 * half} {OPT['st']}", "st")

    if typ == 1:
        h_full(5, 3, "se")
        h_full(7, 4, "se")
        p2_early(a)
        for hd in range(2):
            set_kb(S_T + 2, 2, 112 + hd)
            for mt in range(4):
                phi_group(acc(2 * hd, mt), acc(2 * hd + 1, mt))
                a.vmem(f"buffer_store_dwordx4 {vr(acc(2 * hd, mt))}, v{V_L16}, {WS}, s{S_T + 2} offen offset:{1024 * mt} {OPT['st']}", "sq")
                if 4 * hd + mt == OPT.get('fepos', 4):
                    a.wait(["se", "zc"])
                    setflag(0)
        h_late(9, 5, P_SL, mid=fe_load)
        h_late(11, 6, P_SL + 1, mid=fe_check)
        h_half_late(4, 1)
        fin()
        return

    h_full(8, 0, "se")
    h_full(10, 1, "se")
    p2_early(a)
    ONES = V_T + 16
    for r in range(4):
        e(f"v_mov_b32 v{ONES + r}, 0x3f803f80")
    for t in range(4):
        for pr in range(2):
            phi_group(acc(t, 2 * pr), acc(t, 2 * pr + 1))
            if 2 * t + pr == OPT.get('fepos', 4):
                a.wait(["se", "zc"])
                setflag(0)
    for t in range(4, 8):
        for pr in range(2):
            cvt_group(acc(t, 2 * pr), acc(t, 2 * pr + 1))
    e("s_nop 1")
    free = [acc(t, m) for t in range(8) for m in (1, 3)]

    def Dt(tau):
        return free[tau]
    for pr in range(2):
        for hd in range(2):
            for dt in range(2):
                for et in range(3):
                    tau = hd * 6 + dt * 3 + et
                    Aop = vr(acc(2 * hd + dt, 2 * pr))
                    Bop = vr(acc(4 + 2 * hd + et, 2 * pr)) if et < 2 else vr(ONES)
                    C = "0" if pr == 0 else vr(Dt(tau))
                    e(f"v_mfma_f32_16x16x32_bf16 {vr(Dt(tau))}, {Aop}, {Bop}, {C}")
    vw, vrd = V_T + 20, V_T + 21
    e(f"s_mul_i32 s{S_T}, s{S_WAVE}, 12288")
    e(f"s_add_u32 s{S_T}, s{S_T}, 98304")
    e(f"v_add_u32 v{vw}, s{S_T}, v{V_L16}")
    e(f"s_mul_i32 s{S_T}, s{S_WAVE}, 3072")
    e(f"s_add_u32 s{S_T}, s{S_T}, 98304")
    e(f"v_add_u32 v{vrd}, s{S_T}, v{V_L16}")
    fe_load()
    e("s_nop 7")
    for tau in range(12):
        e(f"ds_write_b128 v{vw}, {vr(Dt(tau))} offset:{1024 * tau}")
    e(f"s_lshl_b32 s{S_T}, s{S_P}, 3")
    e(f"s_add_u32 s{S_T}, s{S_T}, s{S_RB}")
    e(f"s_mul_i32 s{S_T}, s{S_T}, 12288")
    e(f"s_mul_i32 s{S_T + 1}, s{S_WAVE}, 3072")
    e(f"s_add_u32 s{S_T}, s{S_T}, s{S_T + 1}")
    e(f"s_add_u32 s{S_T + 10}, s{S_T}, {KVP_OFF}")
    h_half_late(12, 0)
    e(f"s_mov_b32 s{P_SL}, 0x7ff00000")
    e(f"s_mov_b32 s{P_SL + 1}, 0x7ff00000")
    e("s_waitcnt lgkmcnt(0)")
    e("s_barrier")
    R = [acc(t, m) for t in range(8) for m in (0, 2)]
    for w2 in range(4):
        for j in range(3):
            e(f"ds_read_b128 {vr(R[3 * w2 + j])}, v{vrd} offset:{12288 * w2 + 1024 * j}")
    fe_check()
    e("s_waitcnt lgkmcnt(0)")
    for j in range(3):
        for h2 in range(2):
            b0 = R[j] + 2 * h2
            e(f"v_pk_add_f32 {vr(b0, 2)}, {vr(b0, 2)}, {vr(R[3 + j] + 2 * h2, 2)}")
            e(f"v_pk_add_f32 {vr(R[6 + j] + 2 * h2, 2)}, {vr(R[6 + j] + 2 * h2, 2)}, {vr(R[9 + j] + 2 * h2, 2)}")
        for h2 in range(2):
            b0 = R[j] + 2 * h2
            e(f"v_pk_add_f32 {vr(b0, 2)}, {vr(b0, 2)}, {vr(R[6 + j] + 2 * h2, 2)}")
        a.vmem(f"buffer_store_dwordx4 {vr(R[j])}, v{V_L16}, {WS}, s{S_T + 10} offen offset:{1024 * j} sc1", "sq")
    fin()


def gen_k1():
    a = Asm()
    e = a.e
    a.lines.append(".globl KNAME\n.p2align 8\n.type KNAME,@function\nKNAME:")
    if OPT.get('spin'):
        stamp(a, 0)
    e("s_cmp_ge_u32 s2, 256")
    e("s_cbranch_scc1 L_k1_exit")
    e(f"s_load_dwordx16 s[{S_PTR}:{S_PTR + 15}], s[0:1], 0")
    e(f"s_load_dwordx4 s[{S_PTR + 16}:{S_PTR + 19}], s[0:1], 64")
    e(f"s_load_dwordx2 s[{S_PTR + 20}:{S_PTR + 21}], s[0:1], 80")
    e(f"v_and_b32 v{V_LANE}, 63, v0")
    e(f"v_lshrrev_b32 v{V_T}, 6, v0")
    e(f"s_and_b32 s{S_T}, s2, 7")
    e(f"v_readfirstlane_b32 s{S_WAVE}, v{V_T}")
    e(f"s_lshr_b32 s{S_T + 1}, s2, 3")
    if OPT.get('map1', 0) == 0:
        e(f"s_and_b32 s{S_RB}, s{S_T}, 1")
        e(f"s_lshl_b32 s{S_RB}, s{S_RB}, 2")
        e(f"s_and_b32 s{S_T + 2}, s{S_T + 1}, 3")
        e(f"s_add_u32 s{S_RB}, s{S_RB}, s{S_T + 2}")
        e(f"s_lshr_b32 s{S_T}, s{S_T}, 1")
        e(f"s_lshl_b32 s{S_T}, s{S_T}, 3")
        e(f"s_lshr_b32 s{S_T + 1}, s{S_T + 1}, 2")
        e(f"s_add_u32 s{S_T}, s{S_T}, s{S_T + 1}")
    elif OPT['map1'] == 1:
        e(f"s_and_b32 s{S_RB}, s{S_T + 1}, 7")
        e(f"s_lshl_b32 s{S_T}, s{S_T}, 2")
        e(f"s_lshr_b32 s{S_T + 1}, s{S_T + 1}, 3")
        e(f"s_add_u32 s{S_T}, s{S_T}, s{S_T + 1}")
    else:
        e(f"s_and_b32 s{S_RB}, s{S_T}, 3")
        e(f"s_lshl_b32 s{S_RB}, s{S_RB}, 1")
        e(f"s_and_b32 s{S_T + 2}, s{S_T + 1}, 1")
        e(f"s_add_u32 s{S_RB}, s{S_RB}, s{S_T + 2}")
        e(f"s_lshr_b32 s{S_T}, s{S_T}, 2")
        e(f"s_lshl_b32 s{S_T}, s{S_T}, 4")
        e(f"s_lshr_b32 s{S_T + 1}, s{S_T + 1}, 1")
        e(f"s_add_u32 s{S_T}, s{S_T}, s{S_T + 1}")
    e(f"s_lshr_b32 s{S_P}, s{S_T}, 1")
    e(f"s_and_b32 s{S_T + 3}, s{S_T}, 1")
    e(f"s_cmp_lg_u32 s{S_T + 3}, 0")
    e("s_cbranch_scc1 L_k1_typeB")
    k1_body(a, 0)
    a.label("L_k1_typeB")
    a.vm = []
    k1_body(a, 1)
    a.vm = []
    phase2(a)
    a.label("L_k1_exit")
    e("s_endpgm")
    a.label("L_code_end")
    return a.lines


def K2_LDS():
    return OPT['S'] * 32768 + 24576


def fold_loops(a, iters, period, scnt, name):
    n = len(iters)
    i = 0
    lab = 0
    while i < n:
        reps = 1
        while i + (reps + 1) * period <= n and all(
                iters[i + k] == iters[i + reps * period + k] for k in range(period)):
            reps += 1
        if reps >= 2:
            a.e(f"s_mov_b32 s{scnt}, {reps}")
            a.label(f"L_{name}_{lab}")
            for k in range(period):
                a.lines += iters[i + k]
            a.e(f"s_sub_u32 s{scnt}, s{scnt}, 1")
            a.e(f"s_cmp_lg_u32 s{scnt}, 0")
            a.e(f"s_cbranch_scc1 L_{name}_{lab}")
            lab += 1
            i += reps * period
        else:
            a.lines += iters[i]
            i += 1


def schedule(a, mf, streams):
    n = len(mf)
    placed = []
    for si, (items, start, end) in enumerate(streams):
        m = len(items)
        prev = 0
        for j, it in enumerate(items):
            fn, early = it if isinstance(it, tuple) else (it, 0)
            pos = start + (j * (end - start)) / max(m, 1)
            pos = max(pos, early, prev)
            prev = pos
            placed.append((pos, si, j, fn))
    placed.sort(key=lambda x: (x[0], x[1], x[2]))
    k = 0
    if n == 0:
        for p in placed:
            p[3]()
        return
    for i in range(n):
        a.e(mf[i])
        while k < len(placed) and placed[k][0] < i + 1:
            placed[k][3]()
            k += 1
    while k < len(placed):
        placed[k][3]()
        k += 1


P_SW2, P_SWO, P_SWS, P_SOUT = 96, 20, 16, 4
P_SMT, P_SNT, P_SROLE, P_STILE = 8, 9, 10, 11
P_SOA, P_SOB, P_SOP, P_SM0A, P_SM0B = 12, 13, 14, 15, 27
P_SHD, P_SM2, P_SEARLY = 28, 29, 30
P_VBD = 2
P_SLOT = 32768


def tile_decode(a, smt, snt, srole, stile, st):
    e = a.e
    e(f"s_and_b32 s{st}, s2, 7")
    e(f"s_lshr_b32 s{st + 1}, s2, 3")
    e(f"s_and_b32 s{srole}, s{st}, 1")
    e(f"s_lshr_b32 s{st}, s{st}, 1")
    if OPT['map'] == 0:
        e(f"s_and_b32 s{smt}, s{st}, 1")
        e(f"s_lshl_b32 s{smt}, s{smt}, 3")
        e(f"s_and_b32 s{stile}, s{st + 1}, 7")
        e(f"s_add_u32 s{smt}, s{smt}, s{stile}")
        e(f"s_lshr_b32 s{snt}, s{st}, 1")
        e(f"s_lshl_b32 s{snt}, s{snt}, 2")
        e(f"s_lshr_b32 s{st + 1}, s{st + 1}, 3")
        e(f"s_add_u32 s{snt}, s{snt}, s{st + 1}")
    else:
        e(f"s_lshl_b32 s{smt}, s{st}, 2")
        e(f"s_and_b32 s{stile}, s{st + 1}, 3")
        e(f"s_add_u32 s{smt}, s{smt}, s{stile}")
        e(f"s_lshr_b32 s{snt}, s{st + 1}, 2")
    e(f"s_lshl_b32 s{stile}, s{smt}, 3")
    e(f"s_add_u32 s{stile}, s{stile}, s{snt}")


P_VAD, P_VFA, P_VFL = 8, 9, 10
P_SSA, P_SSB = 31, 32
P_SL = 4


def p2_setrun(a, first_expr, stride):
    e = a.e
    c0, c1 = first_expr
    e(f"s_lshr_b32 s{S_T + 11}, s{S_WAVE}, 1")
    e(f"s_mul_i32 s{S_T + 11}, s{S_T + 11}, {c1}")
    e(f"s_add_u32 s{S_T + 11}, s{S_T + 11}, {c0}")
    return S_T + 11


def p2_early(a):
    e = a.e
    S = OPT['S']
    ST = S_T
    tile_decode(a, P_SMT, P_SNT, P_SROLE, P_STILE, ST)
    vi, vG, t0, t1, t2 = 6, 7, 8, 9, 10
    e(f"v_and_b32 v{vi}, 15, v{V_LANE}")
    e(f"v_lshrrev_b32 v{vG}, 4, v{V_LANE}")
    e(f"s_lshl_b32 s{P_SM0A}, s{S_WAVE}, 12")
    e(f"s_add_u32 s{P_SM0B}, s{P_SM0A}, 16384")
    e(f"s_lshl_b32 s{ST}, s{P_SNT}, 8")
    e(f"s_and_b32 s{ST + 3}, s{S_WAVE}, 1")
    e(f"s_lshl_b32 s{ST + 1}, s{ST + 3}, 15")
    e(f"s_add_u32 s{ST}, s{ST}, s{ST + 1}")
    e(f"v_lshlrev_b32 v{t0}, 11, v{vG}")
    e(f"v_add_u32 v{t0}, s{ST}, v{t0}")
    e(f"v_lshlrev_b32 v{t1}, 1, v{vG}")
    e(f"v_xor_b32 v{t1}, v{t1}, v{vi}")
    for j in range(4):
        if j & 1:
            e(f"v_xor_b32 v{t2}, 8, v{t1}")
            e(f"v_lshlrev_b32 v{t2}, 4, v{t2}")
        else:
            e(f"v_lshlrev_b32 v{t2}, 4, v{t1}")
        e(f"v_add_u32 v{t2}, v{t2}, v{t0}")
        e(f"v_add_u32 v{P_VBD + j}, {j * (8192 - 1024)}, v{t2}")
    e(f"s_mul_i32 s{ST}, s{P_SROLE}, 3")
    e(f"s_lshr_b32 s{ST + 1}, s{S_WAVE}, 1")
    e(f"s_add_u32 s{ST}, s{ST}, s{ST + 1}")
    e(f"s_lshl_b32 s{P_SOB}, s{ST}, 16")
    e(f"s_mul_i32 s{P_SOA}, s{P_SMT}, 144")
    e(f"s_add_u32 s{P_SOA}, s{P_SOA}, s{ST}")
    e(f"s_lshl_b32 s{P_SOA}, s{P_SOA}, 13")
    e(f"s_mov_b32 s{P_SSA}, {7 * 8192}")
    e(f"s_mov_b32 s{P_SSB}, {7 * 65536}")
    srd(a, ST + 4, S_PTR + 18, S_PTR + 19, 256)
    e(f"v_mov_b32 v12, 0")
    a.vmem(f"buffer_load_dwordx2 v[{V_TOK}:{V_TOK + 1}], v12, s[{ST + 4}:{ST + 7}], 0 offen sc1", "zc")
    for j in range(S - 1):
        e(f"s_add_u32 m0, s{P_SM0B}, {j * P_SLOT}")
        e("s_nop 0")
        for i in range(4):
            a.vmem(f"buffer_load_dwordx4 v{P_VBD + i}, s[{P_SW2}:{P_SW2 + 3}], s{P_SOB} offen offset:{1024 * i} lds", "eB")
        e(f"s_add_u32 s{P_SOB}, s{P_SOB}, s{P_SSB}")
    e(f"s_lshl_b32 s{ST + 3}, s{ST + 3}, 12")
    e(f"v_add_u32 v{P_VAD}, s{ST + 3}, v{V_L16}")
    e(f"s_lshl_b32 s{ST}, s{P_SMT}, 1")
    e(f"s_add_u32 s{ST}, s{ST}, s{P_SROLE}")
    e(f"s_lshl_b32 s{ST}, s{ST}, 8")
    e(f"s_add_u32 s{ST}, s{ST}, {FE_OFF}")
    e(f"v_and_b32 v{P_VFA}, 31, v{V_LANE}")
    e(f"v_lshlrev_b32 v{P_VFA}, 3, v{P_VFA}")
    e(f"v_add_u32 v{P_VFA}, s{ST}, v{P_VFA}")


def p2_issueA(a):
    e = a.e
    for j in range(OPT['S'] - 1):
        e(f"s_add_u32 m0, s{P_SM0A}, {j * P_SLOT}")
        e("s_nop 0")
        for i in range(4):
            e(f"buffer_load_dwordx4 v{P_VAD}, s[{P_SWS}:{P_SWS + 3}], s{P_SOA} offen offset:{1024 * i} {OPT['k2a']} lds")
        e(f"s_add_u32 s{P_SOA}, s{P_SOA}, s{P_SSA}")


def phase2(a):
    e = a.e
    S = OPT['S']
    n0 = OPT['n0']
    SLOT = P_SLOT
    SCR = S * SLOT
    SWAVE = S_WAVE
    ST = S_T
    SCNT = S_CNT
    SMT, SNT, SROLE, STILE = P_SMT, P_SNT, P_SROLE, P_STILE
    SOA, SOB, SOP, SM0A, SM0B = P_SOA, P_SOB, P_SOP, P_SM0A, P_SM0B
    SW2, SWO, SOUT = P_SW2, P_SWO, P_SOUT
    WS = f"s[{P_SWS}:{P_SWS + 3}]"
    NBASE = (S + 1) // 2
    VL, VL16, VBD = V_LANE, V_L16, P_VBD
    vi, vG = 6, 7
    VZ = 11
    VAD = 8
    VFL = 10
    VFA = 9
    VAR = 12
    VBR = 18
    VT = 30
    VG = 38
    VOMG = 42
    VEPS = 46
    VEPS = 48
    CG = 52
    CR = 60
    CKV = 68
    CW = 80
    VX = 192
    VY = 84
    AC = 128
    t0, t1, t2, t3 = VT, VT + 1, VT + 2, VT + 3

    def acc2(mt, nt):
        return AC + 16 * mt + 4 * nt

    def FA(j, b, mt):
        return 64 * (j % 2) + 32 * b + 4 * mt

    def FB(j, b, nt):
        return 64 * (j % 2) + 32 * b + 16 + 4 * nt

    def setflag(*lanes):
        e(f"s_mov_b64 exec, {sum(1 << l for l in lanes)}")
        a.vmem(f"buffer_store_dwordx2 v[{V_TOK}:{V_TOK + 1}], v0, {WS}, 0 offen sc1", "fl")
        e("s_mov_b64 exec, -1")

    VQ = 120
    VH = 16

    def fq_load():
        a.vmem(f"buffer_load_dwordx2 v[{VQ}:{VQ + 1}], v{VQ + 2}, {WS}, 0 offen sc1", "fq")

    a.label("L_p2_late")
    e(f"buffer_load_dwordx2 v[{VFL}:{VFL + 1}], v{VFA}, {WS}, 0 offen sc1")
    e("s_waitcnt vmcnt(0)")
    e(f"v_cmp_eq_u64 vcc, v[{VFL}:{VFL + 1}], v[{V_TOK}:{V_TOK + 1}]")
    e("s_nop 1")
    e("s_cmp_eq_u64 vcc, -1")
    e("s_cbranch_scc1 L_p2_fok")
    e(f"s_sleep {OPT.get('slp', 4)}")
    e("s_branch L_p2_late")
    a.label("L_p2_fok")
    p2_issueA(a)
    e("s_waitcnt vmcnt(0)")
    a.label("L_p2_go")
    stamp(a, 0)
    a.vm = ["old"]
    e(f"s_and_b32 s{ST}, s{SWAVE}, 1")
    e(f"s_lshl_b32 s{ST}, s{ST}, 12")
    e(f"v_add_u32 v{VAR}, s{ST}, v{VL16}")
    for k in range(1, NBASE):
        e(f"v_add_u32 v{VAR + k}, {65536 * k}, v{VAR}")
    e(f"v_lshlrev_b32 v{t0}, 2, v{vG}")
    e(f"v_lshrrev_b32 v{t1}, 2, v{vi}")
    e(f"v_add_u32 v{t0}, v{t0}, v{t1}")
    e(f"v_and_b32 v{t1}, 7, v{t0}")
    e(f"s_lshr_b32 s{ST}, s{SWAVE}, 1")
    e(f"s_lshl_b32 s{ST}, s{ST}, 2")
    e(f"v_xor_b32 v{t1}, s{ST}, v{t1}")
    e(f"v_lshlrev_b32 v{t0}, 8, v{t0}")
    e(f"v_and_b32 v{t2}, 3, v{vi}")
    e(f"v_lshlrev_b32 v{t2}, 3, v{t2}")
    e(f"v_add_u32 v{t0}, v{t0}, v{t2}")
    e(f"v_add_u32 v{t0}, 16384, v{t0}")
    for nt in range(4):
        e(f"v_xor_b32 v{t3}, {nt}, v{t1}")
        e(f"v_lshlrev_b32 v{t3}, 5, v{t3}")
        e(f"v_add_u32 v{VBR + nt}, v{t0}, v{t3}")
        for k in range(1, NBASE):
            e(f"v_add_u32 v{VBR + 4 * k + nt}, {65536 * k}, v{VBR + nt}")
    e(f"v_and_b32 v{t0}, 1, v{vG}")
    e(f"v_lshlrev_b32 v{t0}, 10, v{t0}")
    e(f"v_lshrrev_b32 v{t1}, 1, v{vG}")
    e(f"v_lshlrev_b32 v{t1}, 8, v{t1}")
    e(f"v_lshlrev_b32 v{VH}, 4, v{vi}")
    e(f"v_add3_u32 v{VH}, v{VH}, v{t0}, v{t1}")
    stamp(a, 1)
    e(f"s_cmp_eq_u32 s{SROLE}, 0")
    e(f"s_cbranch_scc1 L_p2_r0")
    vm_save = list(a.vm)

    import math
    PERIOD = S * 4 // math.gcd(S, 4)

    def body(role):
        R = f"r{role}"
        o0 = OPT.get('o0', 6)
        na0 = n0 - o0
        assert 16 < na0 <= 32 and 5 <= o0 <= 11
        nact = na0 if role == 0 else 56 - na0
        N = nact + (o0 if role == 0 else 16 - o0)
        JO = nact - (S - 1)
        JP = N - OPT['pj']
        if role == 0:
            runs = {16: (5, 1, 7)}
        else:
            nl1 = 32 - na0
            runs = {16 + nl1: (2, 7, 14)}
            if nl1:
                runs[16] = (5 + 7 * (na0 - 16), 1, 7)

        def bperm(op):
            e(f"s_and_b32 s{ST + 9}, s{SWAVE}, 1")
            e(f"s_mul_i32 s{ST + 9}, s{ST + 9}, {-12 * 2048}")
            for j4 in range(4):
                e(f"{op} v{VBD + j4}, s{ST + 9}, v{VBD + j4}")
                if j4 < 3:
                    e(f"s_add_u32 s{ST + 9}, s{ST + 9}, {4 * 2048}")

        def newrun(j):
            if j == nact:
                def sw():
                    e(f"s_lshr_b32 s{ST + 11}, s{SWAVE}, 1")
                    if role:
                        e(f"s_add_u32 s{ST + 11}, s{ST + 11}, {2 * o0}")
                    e(f"s_lshl_b32 s{SOB}, s{ST + 11}, 16")
                    e(f"s_lshl_b32 s{SOA}, s{SMT}, 5")
                    e(f"s_add_u32 s{SOA}, s{SOA}, s{ST + 11}")
                    e(f"s_lshl_b32 s{SOA}, s{SOA}, 13")
                    e(f"s_add_u32 s{SOA}, s{SOA}, {OF_OFF}")
                    e(f"s_mov_b32 s{P_SSA}, 16384")
                    e(f"s_mov_b32 s{P_SSB}, 131072")
                    if role == 1:
                        bperm("v_subrev_u32")
                return [sw]
            if j in runs:
                c0, c1, st_ = runs[j]

                def sw():
                    r = p2_setrun(a, (c0, c1), st_)
                    e(f"s_lshl_b32 s{SOB}, s{r}, 16")
                    e(f"s_mul_i32 s{SOA}, s{SMT}, 144")
                    e(f"s_add_u32 s{SOA}, s{SOA}, s{r}")
                    e(f"s_lshl_b32 s{SOA}, s{SOA}, 13")
                    e(f"s_mov_b32 s{P_SSA}, {st_ * 8192}")
                    e(f"s_mov_b32 s{P_SSB}, {st_ * 65536}")
                    if st_ == 14:
                        bperm("v_add_u32")
                return [sw]
            return []

        def dmaA(j):
            f = newrun(j)
            f.append(lambda: e(f"s_add_u32 m0, s{SM0A}, {(j % S) * SLOT}"))
            for i in range(4):
                f.append(lambda i=i: a.vmem(
                    f"buffer_load_dwordx4 v{VAD}, {WS}, s{SOA} offen offset:{1024 * i} {OPT['k2a']} lds", f"D{j}"))
            f.append(lambda: e(f"s_add_u32 s{SOA}, s{SOA}, s{P_SSA}"))
            return f

        def dmaB(j):
            sr = SW2 if j < nact else SWO
            f = []
            f.append(lambda: e(f"s_add_u32 m0, s{SM0B}, {(j % S) * SLOT}"))
            for i in range(4):
                f.append(lambda i=i: a.vmem(
                    f"buffer_load_dwordx4 v{VBD + i}, s[{sr}:{sr + 3}], s{SOB} offen offset:{1024 * i} lds", f"D{j}"))
            f.append(lambda: e(f"s_add_u32 s{SOB}, s{SOB}, s{P_SSB}"))
            return f

        def reads(j):
            sl = j % S
            k, so = sl // 2, (sl % 2) * SLOT
            f = []
            for q in range(4):
                for b in range(2):
                    f.append(lambda b=b, q=q: e(
                        f"ds_read_b128 {ar(FA(j, b, q))}, v{VAR + k} offset:{so + 8192 * b + 1024 * q}"))
                    for ins in range(2):
                        f.append(lambda b=b, q=q, ins=ins: e(
                            f"ds_read_b64_tr_b16 {ar(FB(j, b, q) + 2 * ins, 2)}, v{VBR + 4 * k + q} offset:{so + 8192 * b + 4096 * ins}"))
            return f

        late = []
        for mp in range(2):
            late.append(f"buffer_store_dwordx4 {vr(240 + 4 * mp)}, v{VH}, {WS}, s{P_SL + 2} offen offset:{2048 * mp} sc1")
        for g_, base in enumerate((192, 224)):
            for mt in range(4):
                late.append(f"buffer_store_dwordx4 {vr(base + 4 * mt)}, v{VL16}, {WS}, s{P_SL + g_} offen offset:{1024 * mt} sc1")
        TR = OPT.get('tr', 3)
        NTR = -(-10 // TR)

        e("s_barrier")
        stamp(a, 2)
        VK = 48
        PD, PO, PEPS, PR = 48, 96, 112, 116

        def poll(lab, vv, reload):
            a.label(f"L_p2{R}_{lab}w")
            e(f"v_cmp_eq_u64 vcc, v[{vv}:{vv + 1}], v[{V_TOK}:{V_TOK + 1}]")
            e("s_nop 1")
            e("s_cmp_eq_u64 vcc, -1")
            e(f"s_cbranch_scc1 L_p2{R}_{lab}ok")
            e("s_sleep 4")
            sv = list(a.vm)
            reload()
            a.vm = sv
            e("s_waitcnt vmcnt(0)")
            e(f"s_branch L_p2{R}_{lab}w")
            a.label(f"L_p2{R}_{lab}ok")

        def fl_load(tag="F"):
            a.vmem(f"buffer_load_dwordx2 v[{VFL}:{VFL + 1}], v{VFA}, {WS}, 0 offen sc1", tag)

        def red_guard(lab):
            e(f"s_cmp_eq_u32 s{P_SEARLY}, 0")
            e(f"s_cbranch_scc1 L_p2{R}_{lab}")

        J1 = OPT.get('j1', 4)
        J2 = OPT.get('j2', 13)

        def post(j):
            if j == 1:
                a.wait(["old"])
                setflag(1)
            if j == J1:
                e(f"s_and_b32 s{ST}, s2, 3")
                e(f"s_cmp_eq_u32 s{ST}, s{SWAVE}")
                e(f"s_cselect_b32 s{P_SEARLY}, 1, 0")
                e(f"s_cmp_lt_u32 s2, 192")
                e(f"s_cselect_b32 s{P_SEARLY}, s{P_SEARLY}, 0")
                e(f"s_mul_i32 s{P_SHD}, s2, 171")
                e(f"s_lshr_b32 s{P_SHD}, s{P_SHD}, 10")
                e(f"s_min_u32 s{P_SHD}, s{P_SHD}, 31")
                e(f"s_lshr_b32 s{ST}, s{P_SHD}, 1")
                e(f"s_lshl_b32 s{ST}, s{ST}, 9")
                e(f"s_add_u32 s{ST}, s{ST}, {FQ_OFF}")
                e(f"v_and_b32 v{VQ + 2}, 31, v{VL}")
                e(f"v_lshlrev_b32 v{VQ + 2}, 3, v{VQ + 2}")
                e(f"v_add_u32 v{VQ + 2}, s{ST}, v{VQ + 2}")
                fq_load()
            if j == J1 + 2:
                a.wait(["fq"])
                red_guard("nr1")
                poll("q", VQ, fq_load)
                e(f"s_lshr_b32 s{ST}, s{P_SHD}, 1")
                e(f"s_mul_i32 s{ST}, s{ST}, 84")
                e(f"s_add_u32 s{ST}, s{ST}, s2")
                e(f"s_lshl_b32 s{ST}, s{ST}, 10")
                e(f"s_add_u32 s{ST}, s{ST}, {KVP_OFF}")
                for r8 in range(8):
                    e(f"buffer_load_dwordx4 {vr(VK + 4 * r8)}, v{VL16}, {WS}, s{ST} offen")
                    if r8 < 7:
                        e(f"s_add_u32 s{ST}, s{ST}, 12288")
                a.label(f"L_p2{R}_nr1")
                a.mark("r1")
            if j == J1 + 4:
                red_guard("nr2")
                n_ = a.vm_count(["#r1"], drop=False)
                if n_ is not None:
                    e(f"s_waitcnt vmcnt({n_})")
                for st_ in (1, 2, 4):
                    for r8 in range(0, 8, 2 * st_):
                        for q in range(2):
                            b0 = VK + 4 * r8 + 2 * q
                            e(f"v_pk_add_f32 {vr(b0, 2)}, {vr(b0, 2)}, {vr(b0 + 4 * st_, 2)}")
                e(f"v_cvt_pk_bf16_f32 v{VK}, v{VK}, v{VK + 1}")
                e(f"v_cvt_pk_bf16_f32 v{VK + 1}, v{VK + 2}, v{VK + 3}")
                e(f"s_mul_i32 s{ST}, s{P_SHD}, 6")
                e(f"s_sub_u32 s{ST}, s2, s{ST}")
                e(f"s_cmp_ge_u32 s{ST}, 3")
                e(f"s_cselect_b32 s{ST + 1}, 1, 0")
                e(f"s_mul_i32 s{ST + 2}, s{ST + 1}, 3")
                e(f"s_sub_u32 s{ST}, s{ST}, s{ST + 2}")
                e(f"s_mul_i32 s{ST + 2}, s{P_SHD}, 3")
                e(f"s_add_u32 s{ST}, s{ST}, s{ST + 2}")
                e(f"s_lshl_b32 s{ST}, s{ST}, 10")
                e(f"s_lshl_b32 s{ST + 1}, s{ST + 1}, 9")
                e(f"s_add_u32 s{ST}, s{ST}, s{ST + 1}")
                e(f"s_add_u32 s{ST}, s{ST}, {KVF_OFF}")
                e(f"v_lshlrev_b32 v{t0}, 3, v{VL}")
                e(f"buffer_store_dwordx2 {vr(VK, 2)}, v{t0}, {WS}, s{ST} offen sc1")
                a.label(f"L_p2{R}_nr2")
                a.mark("r2")
            if j == J1 + 6:
                red_guard("nr3")
                n_ = a.vm_count(["#r2"], drop=False)
                if n_ is not None:
                    e(f"s_waitcnt vmcnt({n_})")
                e(f"s_mov_b64 exec, {1 << 5}")
                e(f"buffer_store_dwordx2 v[{V_TOK}:{V_TOK + 1}], v0, {WS}, 0 offen sc1")
                e("s_mov_b64 exec, -1")
                a.label(f"L_p2{R}_nr3")
            if j == NTR + 3:
                a.wait(["sl"])
                setflag(4)
                srd(a, SOUT, S_PTR + 16, S_PTR + 17, 2048 * 1024 * 2)
            if j == 16 - S - 2:
                e(f"s_lshl_b32 s{ST}, s{SMT}, 9")
                e(f"s_add_u32 s{ST}, s{ST}, {FA_OFF}")
                e(f"v_lshlrev_b32 v{VFA}, 3, v{VL}")
                e(f"v_add_u32 v{VFA}, s{ST}, v{VFA}")
                fl_load("FL")
            if j == 16 - S:
                a.wait(["FL"])
                poll("l", VFL, fl_load)
                e(f"v_lshlrev_b32 v{t0}, 2, v{vi}")
                e(f"s_lshl_b32 s{ST}, s{SMT}, 9")
                e(f"s_and_b32 s{ST + 1}, s{SWAVE}, 1")
                e(f"s_lshl_b32 s{ST + 1}, s{ST + 1}, 8")
                e(f"s_add_u32 s{ST}, s{ST}, s{ST + 1}")
                e(f"s_add_u32 s{ST}, s{ST}, {G_OFF}")
                for i in range(4):
                    a.vmem(f"buffer_load_dword v{VG + i}, v{t0}, {WS}, s{ST} offen offset:{64 * i}", "g")
            if j == J2:
                e(f"s_and_b32 s{P_SHD}, s2, 31")
                e(f"s_lshr_b32 s{P_SM2}, s2, 5")
                e(f"s_lshr_b32 s{ST}, s{P_SHD}, 1")
                e(f"s_lshl_b32 s{ST}, s{ST}, 4")
                e(f"s_add_u32 s{ST}, s{ST}, s{P_SM2}")
                e(f"s_lshl_b32 s{ST}, s{ST}, 2")
                e(f"s_add_u32 s{ST}, s{ST}, s{SWAVE}")
                e(f"s_lshl_b32 s{ST}, s{ST}, 3")
                e(f"s_add_u32 s{ST}, s{ST}, {FQ_OFF + 256}")
                e(f"s_lshl_b32 s{ST + 1}, s{P_SHD}, 6")
                e(f"s_add_u32 s{ST + 1}, s{ST + 1}, {FK_OFF}")
                e(f"v_lshlrev_b32 v{VQ + 2}, 3, v{VL}")
                e(f"v_add_u32 v{VQ + 2}, s{ST + 1}, v{VQ + 2}")
                e(f"v_mov_b32 v{t0}, s{ST}")
                e(f"v_cmp_gt_u32 vcc, 6, v{VL}")
                e("s_nop 1")
                e(f"v_cndmask_b32 v{VQ + 2}, v{t0}, v{VQ + 2}, vcc")
                e(f"s_lshl_b32 s{P_SM2}, s{P_SM2}, 1")
                e(f"s_lshr_b32 s{ST}, s{SWAVE}, 1")
                e(f"s_add_u32 s{P_SM2}, s{P_SM2}, s{ST}")
                fq_load()
            if j == J2 + 2:
                a.wait(["fq"])
                poll("k", VQ, fq_load)
                e(f"s_mul_i32 s{ST}, s{P_SHD}, 3072")
                e(f"s_add_u32 s{ST}, s{ST}, {KVF_OFF}")
                e(f"v_lshlrev_b32 v{t0}, 3, v{VL}")
                for i in range(6):
                    a.vmem(f"buffer_load_dwordx2 {ar(144 + 2 * i, 2)}, v{t0}, {WS}, s{ST} offen offset:{512 * i}", "pq")
                e(f"s_mul_i32 s{ST}, s{P_SM2}, 144")
                e(f"s_add_u32 s{ST}, s{ST}, s{P_SHD}")
                e(f"s_add_u32 s{ST}, s{ST}, 112")
                e(f"s_lshl_b32 s{ST}, s{ST}, 13")
                for i in range(4):
                    a.vmem(f"buffer_load_dwordx4 {ar(128 + 4 * i)}, v{VAD}, {WS}, s{ST} offen offset:{1024 * i}", "pq")
                e(f"s_lshl_b32 s{SOP}, s{P_SM2}, 5")
                e(f"s_add_u32 s{SOP}, s{SOP}, s{P_SHD}")
                e(f"s_lshl_b32 s{SOP}, s{SOP}, 13")
                e(f"s_add_u32 s{SOP}, s{SOP}, {OF_OFF}")
                for r in range(4):
                    e(f"v_mov_b32 v{PEPS + r}, {EPS_HEX}")
            if j == J2 + 4:
                a.wait(["pq"])
                for i in range(4):
                    d = PD + 12 * i
                    pq = ar(128 + 4 * i)
                    e(f"v_mfma_f32_16x16x32_bf16 {vr(d + 8)}, {ar(152)}, {pq}, {vr(PEPS)}")
                    e(f"v_mfma_f32_16x16x32_bf16 {vr(d)}, {ar(144)}, {pq}, 0")
                    e(f"v_mfma_f32_16x16x32_bf16 {vr(d + 4)}, {ar(148)}, {pq}, 0")
                e("s_nop 7")
                for i in range(4):
                    e(f"v_rcp_f32 v{PR + i}, v{PD + 12 * i + 8}")
                e("s_nop 0")
                for i in range(4):
                    d = PD + 12 * i
                    sel = "op_sel:[0,1] op_sel_hi:[1,1]" if i & 1 else "op_sel_hi:[1,0]"
                    for q in range(4):
                        e(f"v_pk_mul_f32 {vr(d + 2 * q, 2)}, {vr(d + 2 * q, 2)}, {vr(PR + (i & 2), 2)} {sel}")
                    o = PO + 4 * i
                    for q in range(4):
                        e(f"v_cvt_pk_bf16_f32 v{o + q}, v{d + 2 * q}, v{d + 2 * q + 1}")
                    a.vmem(f"buffer_store_dwordx4 {vr(o)}, v{VAD}, {WS}, s{SOP} offen offset:{1024 * i} sc1", "ost")
            if j == J2 + 7:
                a.wait(["ost"])
                setflag(2)
            if j == JO - 2:
                assert j > J2 + 7
                e(f"s_lshl_b32 s{ST}, s{SMT}, 9")
                e(f"s_add_u32 s{ST}, s{ST}, {FO_OFF}")
                if role == 0:
                    e(f"v_min_u32 v{VFA}, {4 * o0 - 1}, v{VL}")
                else:
                    e(f"v_max_u32 v{VFA}, {4 * o0}, v{VL}")
                e(f"v_lshlrev_b32 v{VFA}, 3, v{VFA}")
                e(f"v_add_u32 v{VFA}, s{ST}, v{VFA}")
                fl_load("F")
            if j == JO - 1:
                a.wait(["F"])
                poll("o", VFL, fl_load)
            if role == 1 and j == JP - 1:
                e(f"s_lshl_b32 s{ST}, s{STILE}, 8")
                e(f"s_lshl_b32 s{ST + 1}, s{SWAVE}, 3")
                e(f"s_add_u32 s{ST}, s{ST}, s{ST + 1}")
                e(f"s_add_u32 s{ST}, s{ST}, {FP_OFF}")
                e(f"v_mov_b32 v{VFA}, s{ST}")
                fl_load("F2")
            if role == 1 and j == JP:
                a.wait(["F2"])
                poll("p", VFL, fl_load)
                e(f"s_lshl_b32 s{ST}, s{STILE}, 16")
                e(f"s_lshl_b32 s{ST + 1}, s{SWAVE}, 13")
                e(f"s_add_u32 s{ST}, s{ST}, s{ST + 1}")
                e(f"s_add_u32 s{ST}, s{ST}, {PART_OFF}")
                for q in range(8):
                    if q == 4:
                        e(f"s_add_u32 s{ST}, s{ST}, 4096")
                    a.vmem(f"buffer_load_dwordx4 {vr(VY + 4 * q)}, v{VL16}, {WS}, s{ST} offen offset:{1024 * (q & 3)} sc1", "PT")

        def interval(j):
            if DIAG and OPT.get('ts2'):
                if j == 0:
                    e("s_mov_b32 s74, 0")
                e("s_memrealtime s[76:77]")
                e("s_waitcnt lgkmcnt(0)")
                e("s_mov_b32 m0, s74")
                e("s_nop 0")
                e(f"v_writelane_b32 v{VT + 7}, s76, m0")
                e("s_add_u32 s74, s74, 1")
            main = []
            if j >= 1:
                for mt in range(4):
                    for nt in range(4):
                        D = vr(acc2(mt, nt) + (64 if j - 1 >= nact else 0))
                        for b in range(2):
                            C = "0" if (j in (1, nact + 1) and b == 0) else D
                            main.append(f"v_mfma_f32_16x16x32_bf16 {D}, {ar(FB(j - 1, b, nt))}, {ar(FA(j - 1, b, mt))}, {C}")
            rd = reads(j) if j < N else []
            dm = (dmaA(j + S - 1) + dmaB(j + S - 1)) if j + S - 1 < N else []
            for x in late[TR * j: TR * j + TR]:
                dm.append(lambda x=x: a.vmem(x, "sl"))
            streams = []
            if nact + 1 <= j <= nact + 4:
                mt = j - (nact + 1)
                it = []
                if mt == 0:
                    a.wait(["g"])
                it.append(lambda mt=mt: e(f"v_sub_f32 v{VOMG + mt}, 1.0, v{VG + mt}"))
                for q in range(16):
                    it.append(lambda mt=mt, q=q: e(f"v_mul_f32 v{acc2(mt, 0) + q}, v{VOMG + mt}, v{acc2(mt, 0) + q}"))
                streams.append((it, 10, 30))
            n = max(len(main), 1)
            schedule(a, main, [(rd, 0, n * 0.85), (dm, 0.5, n * 0.95)] + streams)
            post(j)
            if j < N:
                a.wait([f"D{j + 1}"] if j + 1 < N else [], lgkm=True)
                if j + 1 < N:
                    e("s_barrier")

        iters = []
        for j in range(N + 1):
            n_ = len(a.lines)
            if j == 4:
                stamp(a, 3)
            if j == nact:
                stamp(a, 4)
            interval(j)
            iters.append(a.lines[n_:])
            del a.lines[n_:]
        fold_loops(a, iters, PERIOD, SCNT, f"p2{R}")
        stamp(a, 5)
        if role == 0:
            e(f"s_lshl_b32 s{ST}, s{STILE}, 16")
            e(f"s_lshl_b32 s{ST + 1}, s{SWAVE}, 13")
            e(f"s_add_u32 s{ST}, s{ST}, s{ST + 1}")
            e(f"s_add_u32 s{ST}, s{ST}, {PART_OFF}")
            e("s_nop 7")
        else:
            vo = VT + 4
            e(f"v_lshlrev_b32 v{t2}, 11, v{vi}")
            e(f"v_bfe_u32 v{t3}, v{VL}, 4, 1")
            e(f"v_lshlrev_b32 v{t3}, 5, v{t3}")
            e(f"v_add_u32 v{t2}, v{t2}, v{t3}")
            e(f"v_lshrrev_b32 v{t3}, 5, v{VL}")
            e(f"v_lshlrev_b32 v{t3}, 4, v{t3}")
            e(f"v_add_u32 v{vo}, v{t2}, v{t3}")
            e(f"s_lshl_b32 s{ST}, s{SMT}, 7")
            e(f"s_and_b32 s{ST + 1}, s{SWAVE}, 1")
            e(f"s_lshl_b32 s{ST + 1}, s{ST + 1}, 6")
            e(f"s_add_u32 s{ST}, s{ST}, s{ST + 1}")
            e(f"s_lshl_b32 s{ST}, s{ST}, 11")
            e(f"s_lshl_b32 s{ST + 1}, s{SNT}, 8")
            e(f"s_add_u32 s{ST}, s{ST}, s{ST + 1}")
            e(f"s_lshr_b32 s{ST + 1}, s{SWAVE}, 1")
            e(f"s_lshl_b32 s{ST + 1}, s{ST + 1}, 7")
            e(f"s_add_u32 s{ST}, s{ST}, s{ST + 1}")
            a.wait(["PT"])
        for mt in range(4):
            sel = "op_sel:[1,0,0] op_sel_hi:[1,1,1]" if mt & 1 else "op_sel_hi:[0,1,1]"
            for q in range(8):
                b0 = acc2(mt, 0) + 2 * q
                e(f"v_pk_fma_f32 {vr(b0, 2)}, {vr(VG + (mt & 2), 2)}, {vr(b0 + 64, 2)}, {vr(b0, 2)} {sel}")
            if role == 0:
                for h2 in range(2):
                    q = 2 * mt + h2
                    b0 = AC + 8 * q
                    for r in range(4):
                        e(f"v_cvt_pk_bf16_f32 v{b0 + r}, v{b0 + 2 * r}, v{b0 + 2 * r + 1}")
                    e(f"buffer_store_dwordx4 {vr(b0)}, v{VL16}, {WS}, s{ST} offen offset:{1024 * (q & 3)} sc1")
                    if q == 3:
                        e(f"s_add_u32 s{ST}, s{ST}, 4096")
            else:
                for q in range(8):
                    p0 = VY + 8 * mt + q
                    u = 48 + 2 * q
                    e(f"v_lshlrev_b32 v{u}, 16, v{p0}")
                    e(f"v_and_b32 v{u + 1}, 0xffff0000, v{p0}")
                for q in range(8):
                    b0 = acc2(mt, 0) + 2 * q
                    e(f"v_pk_add_f32 {vr(b0, 2)}, {vr(b0, 2)}, {vr(48 + 2 * q, 2)}")
                for pr in range(2):
                    b0 = acc2(mt, 2 * pr)
                    for q in range(4):
                        e(f"v_cvt_pk_bf16_f32 v{b0 + q}, v{b0 + 2 * q}, v{b0 + 2 * q + 1}")
                e("s_nop 1")
                for pr in range(2):
                    b0 = acc2(mt, 2 * pr)
                    e(f"v_permlane16_swap_b32 v{b0}, v{b0 + 2}")
                    e(f"v_permlane16_swap_b32 v{b0 + 1}, v{b0 + 3}")
                for pr in range(2):
                    b0 = acc2(mt, 2 * pr)
                    e(f"buffer_store_dwordx4 {vr(b0)}, v{vo}, s[{SOUT}:{SOUT + 3}], s{ST} offen offset:{64 * pr}")
                if mt < 3:
                    e(f"s_add_u32 s{ST}, s{ST}, 32768")
        if role == 0:
            e("s_waitcnt vmcnt(0)")
            setflag(3)
        stamp(a, 6)
        if DIAG and OPT.get('ts2'):
            e(f"s_mov_b32 s76, s{S_PTR + 20}")
            e(f"s_and_b32 s77, s{S_PTR + 21}, 0xffff")
            e(f"s_mov_b32 s78, 0x4000000")
            e(f"s_mov_b32 s79, 0x20000")
            e(f"s_lshl_b32 s75, s2, 2")
            e(f"s_add_u32 s75, s75, s{S_WAVE}")
            e(f"s_lshl_b32 s75, s75, 8")
            e(f"s_add_u32 s75, s75, {DIAG_OFF + 0x200000}")
            e(f"v_lshlrev_b32 v{VT}, 2, v{VL}")
            e(f"buffer_store_dword v{VT + 7}, v{VT}, s[76:79], s75 offen")
        if DIAG:
            e("s_waitcnt vmcnt(0)")
        stamp(a, 7)
        stamp_dump(a, 1, 8, SWAVE, S_PTR + 20, S_PTR + 21, VT + 5)
        e("s_endpgm")

    body(1)
    a.label("L_p2_r0")
    a.vm = vm_save
    body(0)


def fix_hazards(lines):
    out = []
    for i, ln in enumerate(lines):
        out.append(ln)
        if " m0," in ln and i + 1 < len(lines) and lines[i + 1].rstrip().endswith("lds"):
            out.append("  s_nop 0")
    return out


def gen_spin():
    a = Asm()
    e = a.e
    spec = OPT['spin']
    A_, B_, M = spec.split(",")
    a.lines.append(".globl spin_kernel\n.p2align 8\n.type spin_kernel,@function\nspin_kernel:")
    e("s_cmp_lg_u32 s2, 0")
    e("s_cbranch_scc1 L_spin_end")
    e("s_load_dwordx2 s[4:5], s[0:1], 80")
    e("v_lshlrev_b32 v1, 7, v0")
    e("s_waitcnt lgkmcnt(0)")
    e("s_mov_b32 s8, s4\ns_and_b32 s9, s5, 0xffff\ns_mov_b32 s10, 0x4000000\ns_mov_b32 s11, 0x20000")

    def red(sp, sdst):
        k, st, op = sp.split(".")
        base = DIAG_OFF + int(k) * 0x100000 + 8 * int(st) + 4
        for i in range(16):
            e(f"s_mov_b32 s12, {base + i * 8192}")
            e(f"buffer_load_dword v{8 + i}, v1, s[8:11], s12 offen")
        e("s_waitcnt vmcnt(0)")
        for i in range(1, 16):
            e(f"v_{op}_u32 v8, v8, v{8 + i}")
        e("s_nop 1")
        e(f"v_readlane_b32 s{sdst}, v8, 0")
        for l in range(1, 64):
            e(f"v_readlane_b32 s13, v8, {l}")
            e("s_nop 0")
            e(f"s_{op}_u32 s{sdst}, s{sdst}, s13")
    red("0.0.min", 20)
    red(A_, 21)
    red(B_, 22)
    e("s_sub_u32 s22, s22, s21")
    e(f"s_mul_i32 s22, s22, {M}")
    e("s_add_u32 s22, s22, 12000")
    e("s_min_u32 s22, s22, 60000")
    a.label("L_spin")
    e("s_memrealtime s[14:15]")
    e("s_waitcnt lgkmcnt(0)")
    e("s_sub_u32 s16, s14, s20")
    e("s_cmp_lt_u32 s16, s22")
    e("s_cbranch_scc1 L_spin")
    a.label("L_spin_end")
    e("s_endpgm")
    return a.lines


def kd(name, nfv, accum):
    return f""".amdhsa_kernel {name}
  .amdhsa_next_free_vgpr {nfv}
  .amdhsa_next_free_sgpr 102
  .amdhsa_accum_offset {accum}
  .amdhsa_group_segment_fixed_size 0
  .amdhsa_kernarg_size 88
  .amdhsa_user_sgpr_count 2
  .amdhsa_user_sgpr_kernarg_segment_ptr 1
  .amdhsa_system_sgpr_workgroup_id_x 1
.end_amdhsa_kernel"""


def main(path):
    hdr = open(f"cdna_kernels/{NAME}.s.ref").read().split("; Override launch")[0]
    out = [hdr.rstrip("\n")]
    kn = NAME + "_kernel"
    if OPT.get('spin'):
        out.append(f"; @launch kernel={kn} grid=(256,1,1) block=(256,1,1) lds={K2_LDS()}")
        out.append("; @launch kernel=spin_kernel grid=(1,1,1) block=(64,1,1) lds=0")
    else:
        out.append(f"; @launch grid=(256,1,1) block=(256,1,1) lds={K2_LDS()}")
    out.append('.amdgcn_target "amdgcn-amd-amdhsa--gfx950"')
    out.append(".text")
    out += [ln.replace("KNAME", kn) for ln in fix_hazards(gen_k1())]
    if OPT.get('spin'):
        out += gen_spin()
    out.append('.section .rodata,"a"')
    if OPT.get('spin'):
        out.append(".p2align 6")
        out.append(kd("spin_kernel", 32, 32))
    out.append(".p2align 6")
    out.append(kd(kn, 256 + 160, 256))
    open(path, "w").write("\n".join(out) + "\n")


if __name__ == "__main__":
    if "--dbgout" in sys.argv:
        DBGOUT = True
        sys.argv.remove("--dbgout")
    if "--diag" in sys.argv:
        DIAG = True
        sys.argv.remove("--diag")
    for arg in list(sys.argv):
        if "=" in arg:
            k_, v_ = arg.split("=")
            OPT[k_] = int(v_) if v_.isdigit() else v_.replace("+", " ")
            sys.argv.remove(arg)
    main(sys.argv[1] if len(sys.argv) > 1 else f"cdna_kernels/{NAME}.s")
```

```python
import sys

NAME = "gated_mix__linear_attn_block__dense_activation_mish__prompt"

AF_OFF = 0
AF_BYTES = 16 * 144 * 8 * 1024
KVP_OFF = AF_BYTES
KVP_BYTES = 16 * 8 * 12 * 1024
KVF_OFF = KVP_OFF + KVP_BYTES
KVF_BYTES = 32 * 3 * 1024
G_OFF = KVF_OFF + KVF_BYTES
PART_OFF = G_OFF + 8192
OF_OFF = PART_OFF + 128 * 65536
FLG_OFF = OF_OFF + 16 * 32 * 8192
FE_OFF = FLG_OFF - 0 + 32768 + 128 * 256
FA_OFF = FLG_OFF
FQ_OFF = FA_OFF + 8192
FO_OFF = FQ_OFF + 8192
FP_OFF = FO_OFF + 8192
FK_OFF = FE_OFF + 8192
WS_USED = FK_OFF + 2048
assert FP_OFF + 128 * 256 <= FE_OFF
V_TOK = 14

DIAG = False
DBGOUT = False
OPT = dict(k1a="", k1b="", k2a="", k2b="", st="sc1", pf=3, xpf=1, n0=33, cpf=1, map=2, S=4, pbf=1, pj=2, pprio=0, cprio=0, rdend=26)
DIAG_OFF = 0x2000000
EPS_HEX = "0x358637bd"
L2E_HEX = "0x3fb8aa3b"


class Asm:
    def __init__(self):
        self.lines = []
        self.vm = []

    def e(self, s):
        for ln in s.split("\n"):
            self.lines.append("  " + ln.strip())

    def label(self, s):
        self.lines.append(s + ":")

    def vmem(self, s, tag):
        self.e(s)
        self.vm.append(tag)

    def mark(self, tag):
        self.vm.append("#" + tag)

    def vm_count(self, tags, drop=True):
        idx = -1
        for i, t in enumerate(self.vm):
            if t in tags:
                idx = i
        if idx < 0:
            return None
        n = sum(1 for t in self.vm[idx + 1:] if not t.startswith("#"))
        if drop:
            self.vm = self.vm[idx + 1:]
        assert n <= 63, n
        return n

    def wait(self, tags=(), lgkm=False):
        n = self.vm_count(tags) if tags else None
        parts = []
        if n is not None:
            parts.append(f"vmcnt({n})")
        if lgkm:
            parts.append("lgkmcnt(0)")
        if parts:
            self.e("s_waitcnt " + " ".join(parts))


def stamp(a, idx, sbase=80):
    if not DIAG:
        return
    a.e(f"s_memtime s[{sbase - 4}:{sbase - 3}]")
    a.e(f"s_memrealtime s[{sbase - 2}:{sbase - 1}]")
    a.e("s_waitcnt lgkmcnt(0)")
    a.e(f"s_mov_b32 s{sbase + 2 * idx}, s{sbase - 4}")
    a.e(f"s_mov_b32 s{sbase + 2 * idx + 1}, s{sbase - 2}")


def stamp_dump(a, kidx, n, swave, sptr_lo, sptr_hi, vtmp, sbase=80):
    if not DIAG:
        return
    e = a.e
    e(f"s_mov_b32 s{sbase - 4}, s{sptr_lo}")
    e(f"s_and_b32 s{sbase - 3}, s{sptr_hi}, 0xffff")
    e(f"s_mov_b32 s{sbase - 2}, 0x4000000")
    e(f"s_mov_b32 s{sbase - 1}, 0x20000")
    e(f"s_lshl_b32 s75, s2, 2")
    e(f"s_add_u32 s75, s75, s{swave}")
    e(f"s_lshl_b32 s75, s75, 7")
    e(f"s_add_u32 s75, s75, {DIAG_OFF + kidx * 0x100000}")
    e(f"v_mov_b32 v{vtmp}, 0")
    e("s_mov_b64 exec, 1")
    for i in range(2 * n):
        e(f"v_mov_b32 v{vtmp + 1}, s{sbase + i}")
        e(f"buffer_store_dword v{vtmp + 1}, v{vtmp}, s[{sbase - 4}:{sbase - 1}], s75 offen offset:{4 * i}")
        e("s_nop 1")
    e("s_mov_b64 exec, -1")
    if DBGOUT:
        lab = f"L_dbg_{len(a.lines)}"
        e(f"s_cmp_lg_u32 s2, 1")
        e(f"s_cbranch_scc1 {lab}")
        e(f"s_cmp_lg_u32 s{swave}, 0")
        e(f"s_cbranch_scc1 {lab}")
        e(f"s_mov_b32 s{sbase - 4}, s{sptr_lo - 2}")
        e(f"s_and_b32 s{sbase - 3}, s{sptr_hi - 2}, 0xffff")
        e(f"s_mov_b32 s{sbase - 2}, 256")
        e("s_mov_b64 exec, 1")
        for i in range(n):
            e(f"v_mov_b32 v{vtmp + 1}, s{sbase + 2 * i + 1}")
            e(f"buffer_store_dword v{vtmp + 1}, v{vtmp}, s[{sbase - 4}:{sbase - 1}], 0 offen offset:{4 * i + 32 * kidx}")
            e("s_nop 1")
        e("s_mov_b64 exec, -1")
        a.label(lab)


def vr(b, n=4):
    return f"v[{b}:{b + n - 1}]"


def ar(b, n=4):
    return f"a[{b}:{b + n - 1}]"


def interleave(a, mf, fillers, start=0, end=None):
    n = len(mf)
    if end is None:
        end = n
    nf = len(fillers)
    pos = [start + (j * (end - start)) // max(nf, 1) for j in range(nf)]
    j = 0
    for m in range(n):
        a.e(mf[m])
        while j < nf and pos[j] <= m:
            f = fillers[j]
            f()
            j += 1
    while j < nf:
        fillers[j]()
        j += 1


def capture(a, fn, chunk=2):
    n0_ = len(a.lines)
    vm0 = list(a.vm)
    fn()
    lines = a.lines[n0_:]
    tags = a.vm[len(vm0):]
    del a.lines[n0_:]
    a.vm = vm0
    items = []
    cur = []
    depth = 0
    ti = 0
    for ln in lines:
        cur.append(ln)
        if "s_cbranch" in ln or "s_mov_b64 exec, " in ln and "-1" not in ln or "s_cmp" in ln or "s_getpc" in ln or "s_sub_u32" in ln and "KNAME" in ln:
            depth = 1
        if ln.endswith(":") and not ln.startswith(" ") and "L_pc" not in ln or "s_mov_b64 exec, -1" in ln and not any("s_cbranch" in x for x in cur) or "s_cselect" in ln or "s_subb_u32" in ln:
            depth = 0
        if depth == 0 and len(cur) >= chunk:
            items.append(cur)
            cur = []
    if cur:
        items.append(cur)
    out = []
    for it in items:
        guarded = any("s_cbranch" in x for x in it)
        nv = 0 if guarded else sum(1 for x in it if x.strip().startswith(("buffer_", "global_")))
        tg = tags[ti:ti + nv]
        ti += nv

        def emit(it=it, tg=tg):
            a.lines.extend(it)
            a.vm.extend(tg)
        out.append(emit)
    rest = tags[ti:]
    assert all(t.startswith("#") for t in rest), (ti, tags)
    if rest:
        out.append(lambda rest=rest: a.vm.extend(rest))
    return out


def srd(a, d, lo, hi, nbytes, bias=0):
    if bias:
        a.e(f"s_sub_u32 s{d}, s{lo}, {bias}")
        a.e(f"s_subb_u32 s{d + 1}, s{hi}, 0")
        a.e(f"s_and_b32 s{d + 1}, s{d + 1}, 0xffff")
    else:
        a.e(f"s_mov_b32 s{d}, s{lo}")
        a.e(f"s_and_b32 s{d + 1}, s{hi}, 0xffff")
    a.e(f"s_mov_b32 s{d + 2}, {nbytes + bias}")
    a.e(f"s_mov_b32 s{d + 3}, 0x20000")


K1_BSLOT = 13312
K1_AREA = 3328
K1_ABASE = 4 * K1_BSLOT
K1_LDS = K1_ABASE + 4 * 16384
ACC0 = 48


def acc(t, mt):
    return ACC0 + 16 * t + 4 * mt


V_LANE = 1
V_ARD = 2
V_QRD = 4
V_HRD = 8
V_ADMA = 9
V_BDMA = 13
V_L16 = 17
V_T = 18
S_X, S_Q, S_W1, S_WS, S_MISC = 4, 8, 12, 16, 20
S_WAVE, S_RB, S_P = 24, 25, 26
S_OFFA, S_OFFA2, S_OFFQ, S_OFFH = 27, 28, 29, 30
S_M0B, S_M0A = 31, 32
S_CNT = 33
S_QM = 34
S_PTR = 36
S_L2E = 58
S_T = 60
S_AFB = 72
S_GROW = 73
S_PO1, S_PO2 = 74, 3
S_PT, S_PTE = 100, 101
S_PF1, S_PF2 = 96, 20


def bset(s, t):
    return 52 * s + 4 * t


ASET = {"X": 104, "Y": 120, "Z": 136}


def k1_body(a, typ):
    T = "A" if typ == 0 else "B"
    nq = 8 if typ == 0 else 4
    nh = 13 - nq
    Ph = 2 * nh
    HB = 256 * nq
    e = a.e
    vi, vG, t0, t1, t2, t3 = V_T, V_T + 1, V_T + 2, V_T + 3, V_T + 4, V_T + 5
    e(f"v_and_b32 v{vi}, 15, v{V_LANE}")
    e(f"v_lshrrev_b32 v{vG}, 4, v{V_LANE}")
    e(f"s_mul_i32 s{S_T + 2}, s{S_P}, 448")
    if typ:
        e(f"s_add_u32 s{S_T + 2}, s{S_T + 2}, 160")

    e(f"s_lshr_b32 s{S_T + 8}, s{S_WAVE}, 1")
    e(f"s_lshl_b32 s{S_T + 8}, s{S_T + 8}, 4")
    e(f"s_and_b32 s{S_T + 9}, s{S_WAVE}, 1")
    e(f"s_lshl_b32 s{S_T + 9}, s{S_T + 9}, 2")
    e(f"s_add_u32 s{S_T + 8}, s{S_T + 8}, s{S_T + 9}")

    def krow(dst, kp, tmp):
        e(f"v_lshrrev_b32 v{tmp}, 2, v{kp}")
        e(f"v_lshlrev_b32 v{tmp}, 3, v{tmp}")
        e(f"v_and_b32 v{dst}, 3, v{kp}")
        e(f"v_add3_u32 v{dst}, v{dst}, v{tmp}, s{S_T + 8}")

    e(f"v_lshrrev_b32 v{t0}, 3, v{V_LANE}")
    krow(t1, t0, t2)
    e(f"v_mul_u32_u24 v{t1}, 6144, v{t1}")
    e(f"v_lshrrev_b32 v{t2}, 1, v{t0}")
    e(f"v_and_b32 v{t2}, 3, v{t2}")
    e(f"v_lshlrev_b32 v{t2}, 1, v{t2}")
    e(f"v_and_b32 v{t3}, 7, v{V_LANE}")
    e(f"v_xor_b32 v{t3}, v{t3}, v{t2}")
    e(f"v_lshlrev_b32 v{t3}, 4, v{t3}")
    e(f"v_add_u32 v{t1}, v{t1}, v{t3}")
    e(f"s_lshl_b32 s{S_T + 9}, s{S_P}, 7")
    e(f"s_add_u32 s{S_T + 9}, s{S_T + 9}, {4096 + (2048 if typ == 0 else 0)}")
    e(f"v_add_u32 v{V_BDMA}, s{S_T + 9}, v{t1}")
    if typ == 0:
        e(f"v_add_u32 v{V_BDMA + 1}, {2048 - 1024}, v{V_BDMA}")
    hins = [(2, 0), (3, 64)] if typ == 0 else [(1, 0), (2, 64), (3, 128)]
    magic, sh = (205, 11) if Ph == 10 else (57, 10)
    for s_ in range(8 * Ph + 64):
        if s_ < 8 * Ph:
            assert (s_ * magic) >> sh == s_ // Ph
    for slot, s0 in hins:
        e(f"v_add_u32 v{t0}, {s0}, v{V_LANE}")
        e(f"v_mul_u32_u24 v{t1}, {magic}, v{t0}")
        e(f"v_lshrrev_b32 v{t1}, {sh}, v{t1}")
        e(f"v_mul_u32_u24 v{t2}, {Ph}, v{t1}")
        e(f"v_sub_u32 v{t0}, v{t0}, v{t2}")
        e(f"v_and_b32 v{t1}, 7, v{t1}")
        krow(t2, t1, t3)
        e(f"v_mul_u32_u24 v{t2}, 7168, v{t2}")
        e(f"v_lshlrev_b32 v{t0}, 4, v{t0}")
        e(f"v_add3_u32 v{t0}, v{t0}, v{t2}, s{S_T + 2}")
        e(f"v_add_u32 v{V_BDMA + slot}, {4096 - 1024 * slot}, v{t0}")
    e(f"s_lshl_b32 s{S_T + 9}, s{S_RB}, 8")
    e(f"s_lshl_b32 s{S_T + 10}, s{S_WAVE}, 6")
    e(f"s_add_u32 s{S_T + 9}, s{S_T + 9}, s{S_T + 10}")
    e(f"s_lshl_b32 s{S_T + 9}, s{S_T + 9}, 11")
    e(f"v_lshrrev_b32 v{t0}, 3, v{V_LANE}")
    e(f"v_lshrrev_b32 v{t1}, 1, v{t0}")
    e(f"v_and_b32 v{t2}, 7, v{V_LANE}")
    e(f"v_xor_b32 v{t2}, v{t2}, v{t1}")
    e(f"v_lshlrev_b32 v{t0}, 11, v{t0}")
    e(f"v_add_u32 v{t0}, s{S_T + 9}, v{t0}")
    for j in range(4):
        if j & 1:
            e(f"v_xor_b32 v{t3}, 4, v{t2}")
            e(f"v_lshlrev_b32 v{t3}, 4, v{t3}")
        else:
            e(f"v_lshlrev_b32 v{t3}, 4, v{t2}")
        e(f"v_add_u32 v{t3}, v{t3}, v{t0}")
        e(f"v_add_u32 v{V_ADMA + j}, {j * (16384 - 1024)}, v{t3}")
    e(f"s_mul_i32 s{S_M0B}, s{S_WAVE}, {K1_AREA}")
    e(f"s_lshl_b32 s{S_M0A}, s{S_WAVE}, 14")
    e(f"s_add_u32 s{S_M0A}, s{S_M0A}, {K1_ABASE}")
    e(f"s_mov_b32 s{S_OFFA}, 0")
    e(f"s_mov_b32 s{S_OFFA2}, 65536")
    e(f"s_mov_b32 s{S_OFFQ}, 0")
    e(f"s_mov_b32 s{S_OFFH}, 0")
    e(f"s_mov_b32 s{S_QM}, 0xffff")
    e(f"s_mov_b32 s{S_QM + 1}, 0")

    def dmaB(tt):
        slot = tt % 4
        tag = f"B{tt}"
        f = []
        srcs = [(S_Q, S_OFFQ), (S_Q, S_OFFQ) if typ == 0 else (S_W1, S_OFFH), (S_W1, S_OFFH)]
        f.append(lambda: e(f"s_add_u32 m0, s{S_M0B}, {slot * K1_BSLOT}"))
        for j in range(3):
            sr, so = srcs[j]
            f.append(lambda j=j, sr=sr, so=so: a.vmem(
                f"buffer_load_dwordx4 v{V_BDMA + j}, s[{sr}:{sr + 3}], s{so} offen offset:{1024 * j} {OPT['k1b']} lds", tag))

        def q():
            e(f"s_mov_b64 exec, s[{S_QM}:{S_QM + 1}]")
            a.vmem(f"buffer_load_dwordx4 v{V_BDMA + 3}, s[{S_W1}:{S_W1 + 3}], s{S_OFFH} offen offset:3072 {OPT['k1b']} lds", tag)
            e("s_mov_b64 exec, -1")
        f.append(q)
        f.append(lambda: e(f"s_add_u32 s{S_OFFQ}, s{S_OFFQ}, {32 * 6144}"))
        f.append(lambda: e(f"s_add_u32 s{S_OFFH}, s{S_OFFH}, {32 * 7168}"))
        return f

    def dmaA(aa):
        slot = aa % 2
        tag = f"A{aa}"
        f = []
        for half in range(2):
            so = S_OFFA if half == 0 else S_OFFA2
            f.append(lambda half=half: e(f"s_add_u32 m0, s{S_M0A}, {slot * 8192 + half * 4096}"))
            for j in range(4):
                f.append(lambda j=j, so=so: a.vmem(
                    f"buffer_load_dwordx4 v{V_ADMA + j}, s[{S_X}:{S_X + 3}], s{so} offen offset:{1024 * j} {OPT['k1a']} lds", tag))
        f.append(lambda: e(f"s_add_u32 s{S_OFFA}, s{S_OFFA}, 128"))
        f.append(lambda: e(f"s_add_u32 s{S_OFFA2}, s{S_OFFA2}, 128"))
        return f

    def run_seq(fl):
        for fn in fl:
            n0 = len(a.lines)
            fn()
            if " m0," in a.lines[-1] and len(a.lines) == n0 + 1:
                e("s_nop 0")

    e("s_waitcnt lgkmcnt(0)")
    srd(a, S_Q, S_PTR + 2, S_PTR + 3, 1024 * 3072 * 2, bias=4096)
    srd(a, S_W1, S_PTR + 8, S_PTR + 9, 1024 * 3584 * 2, bias=4096)
    srd(a, S_X, S_PTR + 0, S_PTR + 1, 2048 * 1024 * 2)
    if not OPT.get('spin'):
        stamp(a, 0)
    run_seq(dmaB(0))
    run_seq(dmaA(0))
    srd(a, S_T + 4, S_PTR + 10, S_PTR + 11, 7168)
    e(f"v_lshlrev_b32 v{t1}, 3, v{vG}")
    for j in range(nh):
        a.vmem(f"buffer_load_dwordx2 {vr(acc(nq + j, 3), 2)}, v{t1}, s[{S_T + 4}:{S_T + 7}], s{S_T + 2} offen offset:{32 * j}", "bias")
    run_seq(dmaB(1))
    if not OPT.get('ramp'):
        run_seq(dmaB(2))
        run_seq(dmaA(1))
        run_seq(dmaB(3))
    e(f"v_lshrrev_b32 v{t0}, 3, v{vi}")
    e(f"v_lshlrev_b32 v{t0}, 6, v{t0}")
    e(f"v_and_b32 v{t1}, 7, v{vi}")
    e(f"v_lshlrev_b32 v{t1}, 3, v{t1}")
    e(f"v_add_u32 v{t0}, v{t0}, v{t1}")
    e(f"v_lshrrev_b32 v{t1}, 1, v{vi}")
    e(f"v_xor_b32 v{t1}, v{t1}, v{vG}")
    e(f"v_add_u32 v{t2}, v{t0}, v{t1}")
    e(f"v_lshlrev_b32 v{t2}, 4, v{t2}")
    e(f"v_add_u32 v{V_ARD}, s{S_M0A}, v{t2}")
    e(f"v_xor_b32 v{t1}, 4, v{t1}")
    e(f"v_add_u32 v{t2}, v{t0}, v{t1}")
    e(f"v_lshlrev_b32 v{t2}, 4, v{t2}")
    e(f"v_add_u32 v{V_ARD + 1}, s{S_M0A}, v{t2}")
    e(f"v_and_b32 v{t0}, 1, v{vG}")
    e(f"v_lshlrev_b32 v{t0}, 2, v{t0}")
    e(f"v_lshrrev_b32 v{t1}, 2, v{vi}")
    e(f"v_add_u32 v{t0}, v{t0}, v{t1}")
    e(f"v_lshrrev_b32 v{t1}, 1, v{vG}")
    e(f"v_mul_u32_u24 v{t1}, {2 * K1_AREA}, v{t1}")
    e(f"v_and_b32 v{t2}, 3, v{vi}")
    e(f"v_lshlrev_b32 v{t2}, 3, v{t2}")
    e(f"v_add_u32 v{t1}, v{t1}, v{t2}")
    e(f"v_mul_u32_u24 v{t3}, {16 * Ph}, v{t0}")
    e(f"v_add3_u32 v{V_HRD}, v{t1}, v{t3}, {0}")
    e(f"v_add_u32 v{V_HRD}, {HB}, v{V_HRD}")
    e(f"v_lshlrev_b32 v{t3}, 7, v{t0}")
    e(f"v_add_u32 v{t1}, v{t1}, v{t3}")
    e(f"v_lshrrev_b32 v{t2}, 1, v{t0}")
    e(f"v_and_b32 v{t2}, 3, v{t2}")
    for t in range(4):
        e(f"v_xor_b32 v{t3}, {t}, v{t2}")
        e(f"v_lshlrev_b32 v{t3}, 5, v{t3}")
        e(f"v_add_u32 v{V_QRD + t}, v{t1}, v{t3}")
    e(f"v_lshlrev_b32 v{V_L16}, 4, v{V_LANE}")

    gw, gx0, gx1 = V_T, V_T + 8, V_T + 16
    gt = V_T + 24
    nb = {0: 1, 1: 7, 2: 1, 3: 2, 4: 3}[OPT['pf']]
    PL1, PL2 = -(-56 // nb), -(-16 // nb)

    def misc_setup():
        srd(a, S_WS, S_PTR + 20, S_PTR + 21, WS_USED)
        tile_decode(a, S_T + 4, S_T + 5, S_T + 6, S_T + 7, S_T)
        e(f"s_lshl_b32 s{S_T}, s{S_RB}, 1")
        e(f"s_lshr_b32 s{S_T + 1}, s{S_WAVE}, 1")
        e(f"s_add_u32 s{S_T}, s{S_T}, s{S_T + 1}")
        e(f"s_lshl_b32 s{S_T}, s{S_T}, 5")
        e(f"s_lshl_b32 s{S_T + 1}, s{S_P}, 1")
        e(f"s_add_u32 s{S_T}, s{S_T}, s{S_T + 1}")
        if typ:
            e(f"s_add_u32 s{S_T}, s{S_T}, 1")
        e(f"s_lshl_b32 s{S_T}, s{S_T}, 1")
        e(f"s_and_b32 s{S_T + 1}, s{S_WAVE}, 1")
        e(f"s_add_u32 s{S_T}, s{S_T}, s{S_T + 1}")
        e(f"s_lshl_b32 s{S_T}, s{S_T}, 3")
        e(f"s_add_u32 s{S_T}, s{S_T}, {FA_OFF}")
        e(f"v_writelane_b32 v0, s{S_T}, 4")
        e(f"s_lshl_b32 s{S_T}, s{S_RB}, 1")
        e(f"s_lshr_b32 s{S_T + 3}, s{S_WAVE}, 1")
        e(f"s_add_u32 s{S_T}, s{S_T}, s{S_T + 3}")
        e(f"s_lshl_b32 s{S_T}, s{S_T}, 5")
        e(f"s_add_u32 s{S_T}, s{S_T}, s{S_P}")
        e(f"s_lshl_b32 s{S_T}, s{S_T}, 1")
        e(f"s_add_u32 s{S_T}, s{S_T}, s{S_T + 1}")
        e(f"s_lshl_b32 s{S_T}, s{S_T}, 3")
        e(f"s_add_u32 s{S_T}, s{S_T}, {FE_OFF + 256 * typ}")
        e(f"v_writelane_b32 v0, s{S_T}, 0")
        e(f"s_lshl_b32 s{S_T}, s{S_P}, 4")
        e(f"s_add_u32 s{S_T}, s{S_T}, s{S_RB}")
        e(f"s_lshl_b32 s{S_T}, s{S_T}, 2")
        e(f"s_add_u32 s{S_T}, s{S_T}, s{S_WAVE}")
        e(f"s_lshl_b32 s{S_T}, s{S_T}, 3")
        e(f"s_add_u32 s{S_T}, s{S_T}, {FQ_OFF + 256 * typ}")
        e(f"v_writelane_b32 v0, s{S_T}, 1")
        e(f"s_lshr_b32 s{S_T}, s2, 5")
        e(f"s_lshl_b32 s{S_T}, s{S_T}, 1")
        e(f"s_lshr_b32 s{S_T + 1}, s{S_WAVE}, 1")
        e(f"s_add_u32 s{S_T}, s{S_T}, s{S_T + 1}")
        e(f"s_lshl_b32 s{S_T}, s{S_T}, 9")
        e(f"s_and_b32 s{S_T + 1}, s2, 31")
        e(f"s_lshl_b32 s{S_T + 1}, s{S_T + 1}, 4")
        e(f"s_add_u32 s{S_T}, s{S_T}, s{S_T + 1}")
        e(f"s_and_b32 s{S_T + 1}, s{S_WAVE}, 1")
        e(f"s_lshl_b32 s{S_T + 1}, s{S_T + 1}, 3")
        e(f"s_add_u32 s{S_T}, s{S_T}, s{S_T + 1}")
        e(f"s_add_u32 s{S_T}, s{S_T}, {FO_OFF}")
        e(f"s_lshl_b32 s{S_T + 1}, s{S_T + 7}, 8")
        e(f"s_lshl_b32 s{S_T + 3}, s{S_WAVE}, 3")
        e(f"s_add_u32 s{S_T + 1}, s{S_T + 1}, s{S_T + 3}")
        e(f"s_add_u32 s{S_T + 1}, s{S_T + 1}, {FP_OFF}")
        e(f"s_cmp_eq_u32 s{S_T + 6}, 0")
        e(f"s_cselect_b32 s{S_T + 1}, s{S_T + 1}, 0x7ffffff0")
        e(f"v_writelane_b32 v0, s{S_T}, 2")
        e(f"v_writelane_b32 v0, s{S_T + 1}, 3")
        e(f"s_mul_i32 s{S_T}, s2, 171")
        e(f"s_lshr_b32 s{S_T}, s{S_T}, 10")
        e(f"s_lshl_b32 s{S_T}, s{S_T}, 1")
        e(f"s_add_u32 s{S_T}, s{S_T}, s2")
        e(f"s_lshl_b32 s{S_T}, s{S_T}, 3")
        e(f"s_add_u32 s{S_T}, s{S_T}, {FK_OFF}")
        e(f"v_writelane_b32 v0, s{S_T}, 5")

    def misc_setup2():
        if typ == 0:
            e(f"s_or_b32 s{S_T}, s2, s{S_WAVE}")
            e(f"s_cmp_lg_u32 s{S_T}, 0")
            e(f"s_cbranch_scc1 L_notok")
            e(f"s_memrealtime s[{S_T + 8}:{S_T + 9}]")
            srd(a, S_T + 4, S_PTR + 18, S_PTR + 19, 256)
            e("s_waitcnt lgkmcnt(0)")
            e(f"s_or_b32 s{S_T + 9}, s{S_T + 9}, 0x40000000")
            e(f"s_lshl_b32 s{S_T + 9}, s{S_T + 9}, 1")
            e(f"s_and_b32 s{S_T}, s{S_T + 8}, 1")
            e(f"s_or_b32 s{S_T + 9}, s{S_T + 9}, s{S_T}")
            e(f"s_or_b32 s{S_T + 8}, s{S_T + 8}, 1")
            e(f"v_mov_b32 v{V_T + 28}, s{S_T + 8}")
            e(f"v_mov_b32 v{V_T + 29}, s{S_T + 9}")
            e(f"v_mov_b32 v{V_T + 27}, 0")
            e("s_mov_b64 exec, 1")
            e(f"buffer_store_dwordx2 v[{V_T + 28}:{V_T + 29}], v{V_T + 27}, s[{S_T + 4}:{S_T + 7}], 0 offen sc1")
            e("s_mov_b64 exec, -1")
            e("s_nop 1")
            a.label("L_notok")
        if OPT.get('cpf'):
            e(f"s_getpc_b64 s[{S_T + 4}:{S_T + 5}]")
            a.label(f"L_pc_{T}")
            e(f"s_sub_u32 s{S_T + 4}, s{S_T + 4}, L_pc_{T}-KNAME")
            e(f"s_subb_u32 s{S_T + 5}, s{S_T + 5}, 0")
            e(f"s_lshr_b32 s{S_T}, s2, 3")
            e(f"s_and_b32 s{S_T}, s{S_T}, 3")
            e(f"s_lshl_b32 s{S_T}, s{S_T}, 2")
            e(f"s_add_u32 s{S_T}, s{S_T}, s{S_WAVE}")
            e(f"s_lshl_b32 s{S_T}, s{S_T}, 13")
            e(f"v_lshlrev_b32 v{V_T + 29}, 7, v{V_LANE}")
            e(f"v_add_u32 v{V_T + 29}, s{S_T}, v{V_T + 29}")
            e(f"v_min_u32 v{V_T + 29}, L_code_end-KNAME-4, v{V_T + 29}")
            a.vmem(f"global_load_dword v{V_T + 29}, v{V_T + 29}, s[{S_T + 4}:{S_T + 5}]", "pf")
        if OPT.get('xpf') == 1:
            e(f"v_and_b32 v{V_T + 28}, 31, v{V_LANE}")
            e(f"v_lshlrev_b32 v{V_T + 28}, 7, v{V_T + 28}")
            e(f"s_lshl_b32 s{S_T}, s2, 2")
            e(f"s_add_u32 s{S_T}, s{S_T}, s{S_WAVE}")
            e(f"s_lshl_b32 s{S_T}, s{S_T}, 12")
            a.vmem(f"buffer_load_dword v{V_T + 28}, v{V_T + 28}, s[{S_X}:{S_X + 3}], s{S_T} offen", "pf")
        if OPT.get('xpf') == 2:
            e(f"v_lshlrev_b32 v{V_T + 27}, 7, v{V_LANE}")
            e(f"s_lshr_b32 s{S_T}, s2, 5")
            e(f"s_lshl_b32 s{S_T}, s{S_T}, 2")
            e(f"s_add_u32 s{S_T}, s{S_T}, s{S_WAVE}")
            e(f"s_lshl_b32 s{S_T}, s{S_T}, 14")
            e(f"s_lshl_b32 s{S_T + 1}, s{S_RB}, 19")
            e(f"s_add_u32 s{S_T}, s{S_T}, s{S_T + 1}")
            a.vmem(f"buffer_load_dword v{V_T + 28}, v{V_T + 27}, s[{S_X}:{S_X + 3}], s{S_T} offen", "pf")
            e(f"s_add_u32 s{S_T}, s{S_T}, 8192")
            a.vmem(f"buffer_load_dword v{V_T + 28}, v{V_T + 27}, s[{S_X}:{S_X + 3}], s{S_T} offen", "pf")

        e(f"v_lshlrev_b32 v{gt}, 5, v{V_LANE}")
        e(f"s_lshl_b32 s{S_GROW}, s{S_RB}, 8")
        e(f"s_lshl_b32 s{S_T + 1}, s{S_WAVE}, 6")
        e(f"s_add_u32 s{S_GROW}, s{S_GROW}, s{S_T + 1}")
        e(f"s_lshl_b32 s{S_T + 1}, s{S_P}, 2")
        e(f"s_add_u32 s{S_GROW}, s{S_GROW}, s{S_T + 1}")
        if typ:
            e(f"s_add_u32 s{S_GROW}, s{S_GROW}, 2")
        e(f"s_lshl_b32 s{S_T + 1}, s{S_GROW}, 11")
        srd(a, S_MISC, S_PTR + 14, S_PTR + 15, 2048)
        a.vmem(f"buffer_load_dwordx4 {vr(gw)}, v{gt}, s[{S_MISC}:{S_MISC + 3}], 0 offen", "g")
        a.vmem(f"buffer_load_dwordx4 {vr(gw + 4)}, v{gt}, s[{S_MISC}:{S_MISC + 3}], 0 offen offset:16", "g")
        a.vmem(f"buffer_load_dwordx4 {vr(gx0)}, v{gt}, s[{S_X}:{S_X + 3}], s{S_T + 1} offen", "g")
        a.vmem(f"buffer_load_dwordx4 {vr(gx0 + 4)}, v{gt}, s[{S_X}:{S_X + 3}], s{S_T + 1} offen offset:16", "g")
        a.vmem(f"buffer_load_dwordx4 {vr(gx1)}, v{gt}, s[{S_X}:{S_X + 3}], s{S_T + 1} offen offset:2048", "g")
        a.vmem(f"buffer_load_dwordx4 {vr(gx1 + 4)}, v{gt}, s[{S_X}:{S_X + 3}], s{S_T + 1} offen offset:2064", "g")

        if OPT['pf']:
            srd(a, S_PF1, S_PTR + 12, S_PTR + 13, 3584 * 1024 * 2)
            srd(a, S_PF2, S_PTR + 4, S_PTR + 5, 1024 * 1024 * 2)
            e(f"v_min_u32 v{V_T + 26}, {PL1 - 1}, v{V_LANE}")
            e(f"v_lshlrev_b32 v{V_T + 26}, 7, v{V_T + 26}")
            e(f"v_min_u32 v{V_T + 27}, {PL2 - 1}, v{V_LANE}")
            e(f"v_lshlrev_b32 v{V_T + 27}, 7, v{V_T + 27}")
            e(f"s_lshl_b32 s{S_T}, s2, 2")
            e(f"s_add_u32 s{S_T}, s{S_T}, s{S_WAVE}")
            e(f"s_mul_i32 s{S_PO1}, s{S_T}, 7168")
            e(f"s_lshl_b32 s{S_PO2}, s{S_T}, 11")


    if OPT.get('pt'):
        e(f"s_lshl_b32 s{S_T}, s{S_RB}, 1")
        e(f"s_lshr_b32 s{S_T + 1}, s{S_WAVE}, 1")
        e(f"s_add_u32 s{S_T}, s{S_T}, s{S_T + 1}")
        e(f"s_mul_i32 s{S_AFB}, s{S_T}, {144 * 8192}")
        e(f"s_and_b32 s{S_T + 1}, s{S_WAVE}, 1")
        e(f"s_lshl_b32 s{S_T + 1}, s{S_T + 1}, 12")
        e(f"s_add_u32 s{S_AFB}, s{S_AFB}, s{S_T + 1}")
        e(f"s_mul_i32 s{S_PT}, s{S_P}, {7 * 8192}")
        e(f"s_add_u32 s{S_PT}, s{S_PT}, s{S_AFB}")
        if typ:
            e(f"s_add_u32 s{S_PT}, s{S_PT}, {2 * 8192}")
        e(f"s_add_u32 s{S_PTE}, s{S_PT}, {(4 if typ else 2) * 8192}")
        e(f"v_and_b32 v{V_T + 25}, 31, v{V_LANE}")
        e(f"v_lshlrev_b32 v{V_T + 25}, 7, v{V_T + 25}")
        if typ:
            e(f"v_lshrrev_b32 v{V_T + 29}, 5, v{V_LANE}")
            e(f"v_lshlrev_b32 v{V_T + 29}, 13, v{V_T + 29}")
            e(f"v_add_u32 v{V_T + 29}, v{V_T + 29}, v{V_T + 25}")
            e(f"s_mul_i32 s{S_T}, s{S_P}, {2 * 8192}")
            e(f"s_add_u32 s{S_T}, s{S_T}, {112 * 8192}")
            e(f"s_add_u32 s{S_T}, s{S_T}, s{S_AFB}")
            a.vmem(f"buffer_load_dword v{V_T + 28}, v{V_T + 29}, s[{S_WS}:{S_WS + 3}], s{S_T} offen", "pf")

    def pt_items():
        return [lambda: a.vmem(f"buffer_load_dword v{V_T + 28}, v{V_T + 25}, s[{S_WS}:{S_WS + 3}], s{S_PT} offen", "pf"),
                lambda: e(f"s_add_u32 s{S_PT}, s{S_PT}, 8192"),
                lambda: e(f"s_min_u32 s{S_PT}, s{S_PT}, s{S_PTE}")]

    def pf_items(cond=None):
        if cond is None:
            return [lambda: a.vmem(f"buffer_load_dword v{V_T + 28}, v{V_T + 26}, s[{S_PF1}:{S_PF1 + 3}], s{S_PO1} offen", "pf"),
                    lambda: a.vmem(f"buffer_load_dword v{V_T + 28}, v{V_T + 27}, s[{S_PF2}:{S_PF2 + 3}], s{S_PO2} offen", "pf"),
                    lambda: e(f"s_add_u32 s{S_PO1}, s{S_PO1}, {128 * PL1}"),
                    lambda: e(f"s_add_u32 s{S_PO2}, s{S_PO2}, {128 * PL2}")]

        def blk():
            e(f"s_lshl_b32 s{S_T}, 1, s{S_CNT}")
            e(f"s_and_b32 s{S_T}, s{S_T}, {cond}")
            e(f"s_cbranch_scc0 L_k1{T}_nopf")
            e(f"buffer_load_dword v{V_T + 28}, v{V_T + 26}, s[{S_PF1}:{S_PF1 + 3}], s{S_PO1} offen")
            e(f"buffer_load_dword v{V_T + 28}, v{V_T + 27}, s[{S_PF2}:{S_PF2 + 3}], s{S_PO2} offen")
            e(f"s_add_u32 s{S_PO1}, s{S_PO1}, {128 * PL1}")
            e(f"s_add_u32 s{S_PO2}, s{S_PO2}, {128 * PL2}")
            a.label(f"L_k1{T}_nopf")
        return [blk]

    def g_items():
        d0, d1 = V_T + 24, V_T + 25
        L = []
        L.append(f"v_dot2_f32_bf16 v{d0}, v{gx0}, v{gw}, 0")
        L.append(f"v_dot2_f32_bf16 v{d1}, v{gx1}, v{gw}, 0")
        for j in range(1, 8):
            L.append(f"v_dot2_f32_bf16 v{d0}, v{gx0 + j}, v{gw + j}, v{d0}")
            L.append(f"v_dot2_f32_bf16 v{d1}, v{gx1 + j}, v{gw + j}, v{d1}")
        L.append("s_nop 3")
        for sh_ in (1, 2, 4, 8):
            L.append(f"s_nop 0\nv_add_f32_dpp v{d0}, v{d0}, v{d0} row_shr:{sh_} row_mask:0xf bank_mask:0xf bound_ctrl:0")
            L.append(f"s_nop 0\nv_add_f32_dpp v{d1}, v{d1}, v{d1} row_shr:{sh_} row_mask:0xf bank_mask:0xf bound_ctrl:0")
        L.append(f"s_nop 0\nv_add_f32_dpp v{d0}, v{d0}, v{d0} row_bcast:15 row_mask:0xa bank_mask:0xf")
        L.append(f"s_nop 0\nv_add_f32_dpp v{d1}, v{d1}, v{d1} row_bcast:15 row_mask:0xa bank_mask:0xf")
        L.append(f"s_nop 0\nv_add_f32_dpp v{d0}, v{d0}, v{d0} row_bcast:31 row_mask:0xc bank_mask:0xf")
        L.append(f"s_nop 0\nv_add_f32_dpp v{d1}, v{d1}, v{d1} row_bcast:31 row_mask:0xc bank_mask:0xf")
        L.append(f"v_mul_f32 v{d0}, 0xbfb8aa3b, v{d0}")
        L.append(f"v_mul_f32 v{d1}, 0xbfb8aa3b, v{d1}")
        L.append(f"v_exp_f32 v{d0}, v{d0}")
        L.append(f"v_exp_f32 v{d1}, v{d1}\ns_nop 0")
        L.append(f"v_add_f32 v{d0}, 1.0, v{d0}")
        L.append(f"v_add_f32 v{d1}, 1.0, v{d1}")
        L.append(f"v_rcp_f32 v{d0}, v{d0}")
        L.append(f"v_rcp_f32 v{d1}, v{d1}")
        L.append(f"v_mov_b32 v{gw}, 0")
        L.append(f"s_lshl_b32 s{S_T + 1}, s{S_GROW}, 2\ns_add_u32 s{S_T + 1}, s{S_T + 1}, {G_OFF}")
        L.append(f"s_lshl_b32 s{S_T + 3}, s2, 8\ns_add_u32 s{S_T + 3}, s{S_T + 3}, {FLG_OFF}")
        L.append(f"s_mov_b32 s{S_T + 8}, 0\ns_mov_b32 s{S_T + 9}, 0x80000000")
        F = [(lambda x=x: e(x)) for x in L]

        def st():
            e(f"s_mov_b64 exec, s[{S_T + 8}:{S_T + 9}]")
            a.vmem(f"buffer_store_dwordx2 v[{d0}:{d1}], v{gw}, s[{S_WS}:{S_WS + 3}], s{S_T + 1} offen sc1", "sq")
            e("s_mov_b64 exec, -1")
        F.append(st)
        return F

    if OPT.get('m2', 9) == 9:
        misc_setup2()
    a.wait(["bias"])
    for j in range(nh):
        src = acc(nq + j, 3)
        d = acc(nq + j, 0)
        e(f"v_lshlrev_b32 v{d}, 16, v{src}")
        e(f"v_and_b32 v{d + 1}, 0xffff0000, v{src}")
        e(f"v_lshlrev_b32 v{d + 2}, 16, v{src + 1}")
        e(f"v_and_b32 v{d + 3}, 0xffff0000, v{src + 1}")
    for t in range(4):
        for r in range(4):
            e(f"v_mov_b32 v{acc(t, 0) + r}, {EPS_HEX}")

    def rdB(tt):
        slot = tt % 4
        s = tt % 2
        f = []
        for t in range(13):
            for ins in range(2):
                if t < nq:
                    addr = V_QRD + (t & 3)
                    off = slot * K1_BSLOT + ins * K1_AREA + 1024 * (t >> 2)
                else:
                    addr = V_HRD
                    off = slot * K1_BSLOT + ins * K1_AREA + 32 * (t - nq)
                d = bset(s, t) + 2 * ins
                f.append(lambda d=d, addr=addr, off=off: e(f"ds_read_b64_tr_b16 {ar(d, 2)}, v{addr} offset:{off}"))
        return f

    def aset_of(tt):
        if tt % 2 == 0:
            return ASET["X"]
        return ASET["Y"] if tt % 4 == 1 else ASET["Z"]

    def rdA(aa):
        slot = aa % 2
        f = []
        for hh in range(2):
            base = aset_of(2 * aa + hh)
            for mt in range(4):
                f.append(lambda hh=hh, mt=mt, base=base: e(
                    f"ds_read_b128 {ar(base + 4 * mt)}, v{V_ARD + hh} offset:{slot * 8192 + mt * 2048}"))
        return f

    stamp(a, 1)
    a.wait(["B0", "A0"])
    e("s_barrier")
    stamp(a, 2)
    for fn in rdA(0) + rdB(0):
        fn()
    if OPT.get('ramp'):
        run_seq(dmaA(1))
        run_seq(dmaB(2))
    a.wait(["B1"], lgkm=True)
    e("s_barrier")

    misc_items = capture(a, misc_setup)
    misc_items2 = capture(a, misc_setup2) if OPT.get('m2', 9) != 9 else []

    NSTEP = 32

    def step(tt):
        if DIAG and OPT.get('ts'):
            e("s_memrealtime s[76:77]")
            e("s_waitcnt lgkmcnt(0)")
            e("s_mov_b32 m0, s78")
            e("s_nop 0")
            e(f"v_writelane_b32 v{V_T + 29}, s76, m0")
            e("s_add_u32 s78, s78, 1")
        s = tt % 2
        ab = aset_of(tt)
        mf = []
        for t in range(13):
            order = [1, 2, 3, 0] if tt == 0 else [0, 1, 2, 3]
            for mt in order:
                D = vr(acc(t, mt))
                if tt == 0:
                    C = "0" if (typ == 0 and 4 <= t < 8) else vr(acc(t, 0))
                else:
                    C = D
                W = ar(bset(s, t))
                X = ar(ab + 4 * mt)
                if typ == 0 and t < 8:
                    mf.append(f"v_mfma_f32_16x16x32_bf16 {D}, {X}, {W}, {C}")
                else:
                    mf.append(f"v_mfma_f32_16x16x32_bf16 {D}, {W}, {X}, {C}")
        rd = []
        if tt + 1 < NSTEP:
            rd = rdB(tt + 1)
            if tt % 2 == 1:
                rd = rdA((tt + 1) // 2) + rd
        dm = []
        if tt == 0 and OPT.get('ramp'):
            dm += dmaB(3)
        if OPT.get('afirst', 1) and tt % 2 == 0 and tt // 2 + 2 < NSTEP // 2:
            dm += dmaA(tt // 2 + 2)
        if tt + 4 < NSTEP:
            dm += dmaB(tt + 4)
        if not OPT.get('afirst', 1) and tt % 2 == 0 and tt // 2 + 2 < NSTEP // 2:
            dm += dmaA(tt // 2 + 2)
        if OPT['pf'] == 1 and tt % 4 == 1 and tt < 28:
            dm += pf_items()
        if OPT['pf'] in (2, 3, 4) and tt == 28:
            dm += pf_items()
        if OPT['pf'] in (3, 4) and tt % 4 == 1 and 4 <= tt < 28:
            dm += pf_items({3: 1 << 4, 4: (1 << 5) | (1 << 3)}[OPT['pf']])
        if OPT.get('pt') and tt % 4 == 3 and tt < 28:
            dm += pt_items()
        if tt == OPT.get('m2', 9):
            dm += misc_items2
        if tt == 3:
            dm += misc_items
        fl = []
        i1 = i2 = 0
        n1, n2 = len(rd), len(dm)
        while i1 < n1 or i2 < n2:
            if i2 < n2 and (i1 >= n1 or i2 * n1 <= i1 * n2):
                fl.append(dm[i2]); i2 += 1
            else:
                fl.append(rd[i1]); i1 += 1
        if tt == NSTEP - 1:
            assert "g" not in a.vm
            fl = g_items()
        interleave(a, mf, fl, 0, 48)
        if tt + 1 < NSTEP:
            tags = []
            if tt + 2 < NSTEP:
                tags.append(f"B{tt + 2}")
            if tt % 2 == 0:
                tags.append(f"A{tt // 2 + 1}")
            a.wait(tags, lgkm=True)
            if tt + 2 < NSTEP:
                e("s_barrier")

    iters = []
    for it in range(8):
        n0 = len(a.lines)
        for tt in range(4 * it, 4 * it + 4):
            step(tt)
        iters.append(a.lines[n0:])
        del a.lines[n0:]
    for it in range(2, 7):
        assert iters[it] == iters[1], f"iteration {it} differs"
    stamp(a, 3)
    if DIAG and OPT.get('ts'):
        e("s_mov_b32 s78, 0")
    a.lines += iters[0]
    if not OPT.get('ts'):
        stamp(a, 4)
    e(f"s_mov_b32 s{S_CNT}, 6")
    a.label(f"L_k1{T}_loop")
    a.lines += iters[1]
    e(f"s_sub_u32 s{S_CNT}, s{S_CNT}, 1")
    e(f"s_cmp_lg_u32 s{S_CNT}, 0")
    e(f"s_cbranch_scc1 L_k1{T}_loop")
    a.lines += iters[7]
    assert all(not t.startswith(("A", "B")) for t in a.vm), a.vm

    stamp(a, 5)

    def fin():
        stamp(a, 6)
        stamp(a, 7)
        k = a.vm_count(["#eA"], drop=False)
        if DIAG:
            k += 16
        stamp_dump(a, 0, 8, S_WAVE, S_PTR + 20, S_PTR + 21, V_T)
        e(f"s_cmp_eq_u32 s{P_SEARLY}, 0")
        e("s_cbranch_scc1 L_p2_late")
        e(f"s_waitcnt vmcnt({k})")
        e("s_branch L_p2_go")

    def fe_load():
        a.vmem(f"buffer_load_dwordx2 v[{P_VFL}:{P_VFL + 1}], v{P_VFA}, s[{S_WS}:{S_WS + 3}], 0 offen sc1", "fe")

    def fe_check():
        a.wait(["fe"])
        e(f"v_cmp_eq_u64 vcc, v[{P_VFL}:{P_VFL + 1}], v[{V_TOK}:{V_TOK + 1}]")
        e(f"s_mov_b32 s{P_SEARLY}, 0")
        e("s_nop 0")
        e("s_cmp_eq_u64 vcc, -1")
        e(f"s_cbranch_scc0 L_k1{T}_noearly")
        p2_issueA(a)
        e(f"s_mov_b32 s{P_SEARLY}, 1")
        a.label(f"L_k1{T}_noearly")
        a.mark("eA")

    def setflag(lane):
        a.label(f"L_k1{T}_tw")
        e(f"v_readfirstlane_b32 s{S_T}, v{V_TOK + 1}")
        e(f"v_readfirstlane_b32 s{S_T + 1}, v{V_TOK}")
        e("s_nop 3")
        e(f"s_min_u32 s{S_T}, s{S_T}, s{S_T + 1}")
        e(f"s_cmp_lg_u32 s{S_T}, 0")
        e(f"s_cbranch_scc1 L_k1{T}_tok")
        e("s_sleep 4")
        e(f"buffer_load_dwordx2 v[{V_TOK}:{V_TOK + 1}], v12, s[{S_T + 4}:{S_T + 7}], 0 offen sc1")
        e("s_waitcnt vmcnt(0)")
        e(f"s_branch L_k1{T}_tw")
        a.label(f"L_k1{T}_tok")
        e(f"s_mov_b64 exec, {1 << lane}")
        a.vmem(f"buffer_store_dwordx2 v[{V_TOK}:{V_TOK + 1}], v0, s[{S_WS}:{S_WS + 3}], 0 offen sc1", "fl")
        e("s_mov_b64 exec, -1")
    e("s_barrier")
    e(f"s_mov_b32 s{S_L2E}, {L2E_HEX}")
    e(f"s_mov_b32 s{S_L2E + 1}, {L2E_HEX}")
    e(f"s_lshl_b32 s{S_T}, s{S_RB}, 1")
    e(f"s_lshr_b32 s{S_T + 1}, s{S_WAVE}, 1")
    e(f"s_add_u32 s{S_T}, s{S_T}, s{S_T + 1}")
    e(f"s_mul_i32 s{S_AFB}, s{S_T}, {144 * 8192}")
    e(f"s_and_b32 s{S_T + 1}, s{S_WAVE}, 1")
    e(f"s_lshl_b32 s{S_T + 1}, s{S_T + 1}, 12")
    e(f"s_add_u32 s{S_AFB}, s{S_AFB}, s{S_T + 1}")
    e("s_nop 7")
    TT, UU = V_T, V_T + 8

    def phi_group(ra, rb_):
        prs = [ra, ra + 2, rb_, rb_ + 2]
        for j, p in enumerate(prs):
            e(f"v_pk_mul_f32 {vr(TT + 2 * j, 2)}, {vr(p, 2)}, s[{S_L2E}:{S_L2E + 1}]")
        for j in range(8):
            e(f"v_exp_f32_e64 v{TT + j}, v{TT + j} clamp")
        for p in prs:
            e(f"v_max_f32 v{p}, {EPS_HEX}, v{p}")
            e(f"v_max_f32 v{p + 1}, {EPS_HEX}, v{p + 1}")
        for j, p in enumerate(prs):
            e(f"v_pk_add_f32 {vr(p, 2)}, {vr(p, 2)}, {vr(TT + 2 * j, 2)}")
        for j, p in enumerate(prs):
            e(f"v_cvt_pk_bf16_f32 v{ra + j}, v{p}, v{p + 1}")

    def cvt_group(ra, rb_):
        prs = [ra, ra + 2, rb_, rb_ + 2]
        for j, p in enumerate(prs):
            e(f"v_cvt_pk_bf16_f32 v{ra + j}, v{p}, v{p + 1}")

    def mish_group(ra, rb_, split=False, dst=None):
        prs = [ra, ra + 2, rb_, rb_ + 2]
        for j, p in enumerate(prs):
            e(f"v_pk_mul_f32 {vr(TT + 2 * j, 2)}, {vr(p, 2)}, s[{S_L2E}:{S_L2E + 1}]")
        for j in range(8):
            e(f"v_exp_f32 v{TT + j}, v{TT + j}")
        for j in range(4):
            e(f"v_pk_fma_f32 {vr(UU + 2 * j, 2)}, {vr(TT + 2 * j, 2)}, 0.5, 1.0 op_sel_hi:[1,0,0]")
        for j in range(4):
            e(f"v_pk_fma_f32 {vr(UU + 2 * j, 2)}, {vr(TT + 2 * j, 2)}, {vr(UU + 2 * j, 2)}, 1.0 op_sel_hi:[1,1,0]")
        for j in range(8):
            e(f"v_rcp_f32 v{UU + j}, v{UU + j}")
        for j, p in enumerate(prs):
            e(f"v_pk_fma_f32 {vr(p, 2)}, {vr(UU + 2 * j, 2)}, {vr(p, 2)}, {vr(p, 2)} neg_lo:[1,0,0] neg_hi:[1,0,0]")
        if split:
            e(f"v_cvt_pk_bf16_f32 v{ra}, v{ra}, v{ra + 1}")
            e(f"v_cvt_pk_bf16_f32 v{ra + 1}, v{ra + 2}, v{ra + 3}")
            e(f"v_cvt_pk_bf16_f32 v{rb_}, v{rb_}, v{rb_ + 1}")
            e(f"v_cvt_pk_bf16_f32 v{rb_ + 1}, v{rb_ + 2}, v{rb_ + 3}")
        else:
            dd = ra if dst is None else dst
            for j, p in enumerate(prs):
                e(f"v_cvt_pk_bf16_f32 v{dd + j}, v{p}, v{p + 1}")

    WS = f"s[{S_WS}:{S_WS + 3}]"

    def set_kb(sreg, mul, add):
        e(f"s_mul_i32 s{sreg}, s{S_P}, {mul * 8192}")
        e(f"s_add_u32 s{sreg}, s{sreg}, {add * 8192}")
        e(f"s_add_u32 s{sreg}, s{sreg}, s{S_AFB}")

    def h_late(tA, kbl, sreg, mid=None):
        set_kb(sreg, 7, kbl)
        for mt in range(4):
            mish_group(acc(tA, mt), acc(tA + 1, mt))
            if mt == 1 and mid:
                mid()

    def h_half_late(tA, half):
        set_kb(P_SL + 2, 7, 2)
        if half:
            e(f"s_add_u32 s{P_SL + 2}, s{P_SL + 2}, 512")
        for mp in range(2):
            mish_group(acc(tA, 2 * mp), acc(tA, 2 * mp + 1), dst=240 + 4 * mp)
        e("s_nop 1")
        for mp in range(2):
            e(f"v_permlane16_swap_b32 v{240 + 4 * mp}, v{242 + 4 * mp}")
            e(f"v_permlane16_swap_b32 v{241 + 4 * mp}, v{243 + 4 * mp}")

    def h_full(tA, kbl, tag='st'):
        set_kb(S_T + 2, 7, kbl)
        for mt in range(4):
            mish_group(acc(tA, mt), acc(tA + 1, mt))
            a.vmem(f"buffer_store_dwordx4 {vr(acc(tA, mt))}, v{V_L16}, {WS}, s{S_T + 2} offen offset:{1024 * mt} {OPT['st']}", tag)

    def h_half(tA, kbl, half):
        set_kb(S_T + 2, 7, kbl)
        for mp in range(2):
            mish_group(acc(tA, 2 * mp), acc(tA, 2 * mp + 1), split=True)
            for mt in (2 * mp, 2 * mp + 1):
                a.vmem(f"buffer_store_dwordx2 {vr(acc(tA, mt), 2)}, v{V_L16}, {WS}, s{S_T + 2} offen offset:{1024 * mt + 8 * half} {OPT['st']}", "st")

    if typ == 1:
        h_full(5, 3, "se")
        h_full(7, 4, "se")
        p2_early(a)
        for hd in range(2):
            set_kb(S_T + 2, 2, 112 + hd)
            for mt in range(4):
                phi_group(acc(2 * hd, mt), acc(2 * hd + 1, mt))
                a.vmem(f"buffer_store_dwordx4 {vr(acc(2 * hd, mt))}, v{V_L16}, {WS}, s{S_T + 2} offen offset:{1024 * mt} {OPT['st']}", "sq")
                if 4 * hd + mt == OPT.get('fepos', 4):
                    a.wait(["se", "zc"])
                    setflag(0)
        h_late(9, 5, P_SL, mid=fe_load)
        h_late(11, 6, P_SL + 1, mid=fe_check)
        h_half_late(4, 1)
        fin()
        return

    h_full(8, 0, "se")
    h_full(10, 1, "se")
    p2_early(a)
    ONES = V_T + 16
    for r in range(4):
        e(f"v_mov_b32 v{ONES + r}, 0x3f803f80")
    for t in range(4):
        for pr in range(2):
            phi_group(acc(t, 2 * pr), acc(t, 2 * pr + 1))
            if 2 * t + pr == OPT.get('fepos', 4):
                a.wait(["se", "zc"])
                setflag(0)
    for t in range(4, 8):
        for pr in range(2):
            cvt_group(acc(t, 2 * pr), acc(t, 2 * pr + 1))
    e("s_nop 1")
    free = [acc(t, m) for t in range(8) for m in (1, 3)]

    def Dt(tau):
        return free[tau]
    for pr in range(2):
        for hd in range(2):
            for dt in range(2):
                for et in range(3):
                    tau = hd * 6 + dt * 3 + et
                    Aop = vr(acc(2 * hd + dt, 2 * pr))
                    Bop = vr(acc(4 + 2 * hd + et, 2 * pr)) if et < 2 else vr(ONES)
                    C = "0" if pr == 0 else vr(Dt(tau))
                    e(f"v_mfma_f32_16x16x32_bf16 {vr(Dt(tau))}, {Aop}, {Bop}, {C}")
    vw, vrd = V_T + 20, V_T + 21
    e(f"s_mul_i32 s{S_T}, s{S_WAVE}, 12288")
    e(f"s_add_u32 s{S_T}, s{S_T}, 98304")
    e(f"v_add_u32 v{vw}, s{S_T}, v{V_L16}")
    e(f"s_mul_i32 s{S_T}, s{S_WAVE}, 3072")
    e(f"s_add_u32 s{S_T}, s{S_T}, 98304")
    e(f"v_add_u32 v{vrd}, s{S_T}, v{V_L16}")
    fe_load()
    e("s_nop 7")
    for tau in range(12):
        e(f"ds_write_b128 v{vw}, {vr(Dt(tau))} offset:{1024 * tau}")
    e(f"s_lshl_b32 s{S_T}, s{S_P}, 3")
    e(f"s_add_u32 s{S_T}, s{S_T}, s{S_RB}")
    e(f"s_mul_i32 s{S_T}, s{S_T}, 12288")
    e(f"s_mul_i32 s{S_T + 1}, s{S_WAVE}, 3072")
    e(f"s_add_u32 s{S_T}, s{S_T}, s{S_T + 1}")
    e(f"s_add_u32 s{S_T + 10}, s{S_T}, {KVP_OFF}")
    h_half_late(12, 0)
    e(f"s_mov_b32 s{P_SL}, 0x7ff00000")
    e(f"s_mov_b32 s{P_SL + 1}, 0x7ff00000")
    e("s_waitcnt lgkmcnt(0)")
    e("s_barrier")
    R = [acc(t, m) for t in range(8) for m in (0, 2)]
    for w2 in range(4):
        for j in range(3):
            e(f"ds_read_b128 {vr(R[3 * w2 + j])}, v{vrd} offset:{12288 * w2 + 1024 * j}")
    fe_check()
    e("s_waitcnt lgkmcnt(0)")
    for j in range(3):
        for h2 in range(2):
            b0 = R[j] + 2 * h2
            e(f"v_pk_add_f32 {vr(b0, 2)}, {vr(b0, 2)}, {vr(R[3 + j] + 2 * h2, 2)}")
            e(f"v_pk_add_f32 {vr(R[6 + j] + 2 * h2, 2)}, {vr(R[6 + j] + 2 * h2, 2)}, {vr(R[9 + j] + 2 * h2, 2)}")
        for h2 in range(2):
            b0 = R[j] + 2 * h2
            e(f"v_pk_add_f32 {vr(b0, 2)}, {vr(b0, 2)}, {vr(R[6 + j] + 2 * h2, 2)}")
        a.vmem(f"buffer_store_dwordx4 {vr(R[j])}, v{V_L16}, {WS}, s{S_T + 10} offen offset:{1024 * j} sc1", "sq")
    fin()


def gen_k1():
    a = Asm()
    e = a.e
    a.lines.append(".globl KNAME\n.p2align 8\n.type KNAME,@function\nKNAME:")
    if OPT.get('spin'):
        stamp(a, 0)
    e("s_cmp_ge_u32 s2, 256")
    e("s_cbranch_scc1 L_k1_exit")
    e(f"s_load_dwordx16 s[{S_PTR}:{S_PTR + 15}], s[0:1], 0")
    e(f"s_load_dwordx4 s[{S_PTR + 16}:{S_PTR + 19}], s[0:1], 64")
    e(f"s_load_dwordx2 s[{S_PTR + 20}:{S_PTR + 21}], s[0:1], 80")
    e(f"v_and_b32 v{V_LANE}, 63, v0")
    e(f"v_lshrrev_b32 v{V_T}, 6, v0")
    e(f"s_and_b32 s{S_T}, s2, 7")
    e(f"v_readfirstlane_b32 s{S_WAVE}, v{V_T}")
    e(f"s_lshr_b32 s{S_T + 1}, s2, 3")
    if OPT.get('map1', 0) == 0:
        e(f"s_and_b32 s{S_RB}, s{S_T}, 1")
        e(f"s_lshl_b32 s{S_RB}, s{S_RB}, 2")
        e(f"s_and_b32 s{S_T + 2}, s{S_T + 1}, 3")
        e(f"s_add_u32 s{S_RB}, s{S_RB}, s{S_T + 2}")
        e(f"s_lshr_b32 s{S_T}, s{S_T}, 1")
        e(f"s_lshl_b32 s{S_T}, s{S_T}, 3")
        e(f"s_lshr_b32 s{S_T + 1}, s{S_T + 1}, 2")
        e(f"s_add_u32 s{S_T}, s{S_T}, s{S_T + 1}")
    elif OPT['map1'] == 1:
        e(f"s_and_b32 s{S_RB}, s{S_T + 1}, 7")
        e(f"s_lshl_b32 s{S_T}, s{S_T}, 2")
        e(f"s_lshr_b32 s{S_T + 1}, s{S_T + 1}, 3")
        e(f"s_add_u32 s{S_T}, s{S_T}, s{S_T + 1}")
    else:
        e(f"s_and_b32 s{S_RB}, s{S_T}, 3")
        e(f"s_lshl_b32 s{S_RB}, s{S_RB}, 1")
        e(f"s_and_b32 s{S_T + 2}, s{S_T + 1}, 1")
        e(f"s_add_u32 s{S_RB}, s{S_RB}, s{S_T + 2}")
        e(f"s_lshr_b32 s{S_T}, s{S_T}, 2")
        e(f"s_lshl_b32 s{S_T}, s{S_T}, 4")
        e(f"s_lshr_b32 s{S_T + 1}, s{S_T + 1}, 1")
        e(f"s_add_u32 s{S_T}, s{S_T}, s{S_T + 1}")
    e(f"s_lshr_b32 s{S_P}, s{S_T}, 1")
    e(f"s_and_b32 s{S_T + 3}, s{S_T}, 1")
    e(f"s_cmp_lg_u32 s{S_T + 3}, 0")
    e("s_cbranch_scc1 L_k1_typeB")
    k1_body(a, 0)
    a.label("L_k1_typeB")
    a.vm = []
    k1_body(a, 1)
    a.vm = []
    phase2(a)
    a.label("L_k1_exit")
    e("s_endpgm")
    a.label("L_code_end")
    return a.lines


def K2_LDS():
    return OPT['S'] * 32768 + 24576


def fold_loops(a, iters, period, scnt, name):
    n = len(iters)
    i = 0
    lab = 0
    while i < n:
        reps = 1
        while i + (reps + 1) * period <= n and all(
                iters[i + k] == iters[i + reps * period + k] for k in range(period)):
            reps += 1
        if reps >= 2:
            a.e(f"s_mov_b32 s{scnt}, {reps}")
            a.label(f"L_{name}_{lab}")
            for k in range(period):
                a.lines += iters[i + k]
            a.e(f"s_sub_u32 s{scnt}, s{scnt}, 1")
            a.e(f"s_cmp_lg_u32 s{scnt}, 0")
            a.e(f"s_cbranch_scc1 L_{name}_{lab}")
            lab += 1
            i += reps * period
        else:
            a.lines += iters[i]
            i += 1


def schedule(a, mf, streams):
    n = len(mf)
    placed = []
    for si, (items, start, end) in enumerate(streams):
        m = len(items)
        prev = 0
        for j, it in enumerate(items):
            fn, early = it if isinstance(it, tuple) else (it, 0)
            pos = start + (j * (end - start)) / max(m, 1)
            pos = max(pos, early, prev)
            prev = pos
            placed.append((pos, si, j, fn))
    placed.sort(key=lambda x: (x[0], x[1], x[2]))
    k = 0
    if n == 0:
        for p in placed:
            p[3]()
        return
    for i in range(n):
        a.e(mf[i])
        while k < len(placed) and placed[k][0] < i + 1:
            placed[k][3]()
            k += 1
    while k < len(placed):
        placed[k][3]()
        k += 1


P_SW2, P_SWO, P_SWS, P_SOUT = 96, 20, 16, 4
P_SMT, P_SNT, P_SROLE, P_STILE = 8, 9, 10, 11
P_SOA, P_SOB, P_SOP, P_SM0A, P_SM0B = 12, 13, 14, 15, 27
P_SHD, P_SM2, P_SEARLY = 28, 29, 30
P_VBD = 2
P_SLOT = 32768


def tile_decode(a, smt, snt, srole, stile, st):
    e = a.e
    e(f"s_and_b32 s{st}, s2, 7")
    e(f"s_lshr_b32 s{st + 1}, s2, 3")
    e(f"s_and_b32 s{srole}, s{st}, 1")
    e(f"s_lshr_b32 s{st}, s{st}, 1")
    if OPT['map'] == 0:
        e(f"s_and_b32 s{smt}, s{st}, 1")
        e(f"s_lshl_b32 s{smt}, s{smt}, 3")
        e(f"s_and_b32 s{stile}, s{st + 1}, 7")
        e(f"s_add_u32 s{smt}, s{smt}, s{stile}")
        e(f"s_lshr_b32 s{snt}, s{st}, 1")
        e(f"s_lshl_b32 s{snt}, s{snt}, 2")
        e(f"s_lshr_b32 s{st + 1}, s{st + 1}, 3")
        e(f"s_add_u32 s{snt}, s{snt}, s{st + 1}")
    else:
        e(f"s_lshl_b32 s{smt}, s{st}, 2")
        e(f"s_and_b32 s{stile}, s{st + 1}, 3")
        e(f"s_add_u32 s{smt}, s{smt}, s{stile}")
        e(f"s_lshr_b32 s{snt}, s{st + 1}, 2")
    e(f"s_lshl_b32 s{stile}, s{smt}, 3")
    e(f"s_add_u32 s{stile}, s{stile}, s{snt}")


P_VAD, P_VFA, P_VFL = 8, 9, 10
P_SSA, P_SSB = 31, 32
P_SL = 4


def p2_setrun(a, first_expr, stride):
    e = a.e
    c0, c1 = first_expr
    e(f"s_lshr_b32 s{S_T + 11}, s{S_WAVE}, 1")
    e(f"s_mul_i32 s{S_T + 11}, s{S_T + 11}, {c1}")
    e(f"s_add_u32 s{S_T + 11}, s{S_T + 11}, {c0}")
    return S_T + 11


def p2_early(a):
    e = a.e
    S = OPT['S']
    ST = S_T
    tile_decode(a, P_SMT, P_SNT, P_SROLE, P_STILE, ST)
    vi, vG, t0, t1, t2 = 6, 7, 8, 9, 10
    e(f"v_and_b32 v{vi}, 15, v{V_LANE}")
    e(f"v_lshrrev_b32 v{vG}, 4, v{V_LANE}")
    e(f"s_lshl_b32 s{P_SM0A}, s{S_WAVE}, 12")
    e(f"s_add_u32 s{P_SM0B}, s{P_SM0A}, 16384")
    e(f"s_lshl_b32 s{ST}, s{P_SNT}, 8")
    e(f"s_and_b32 s{ST + 3}, s{S_WAVE}, 1")
    e(f"s_lshl_b32 s{ST + 1}, s{ST + 3}, 15")
    e(f"s_add_u32 s{ST}, s{ST}, s{ST + 1}")
    e(f"v_lshlrev_b32 v{t0}, 11, v{vG}")
    e(f"v_add_u32 v{t0}, s{ST}, v{t0}")
    e(f"v_lshlrev_b32 v{t1}, 1, v{vG}")
    e(f"v_xor_b32 v{t1}, v{t1}, v{vi}")
    for j in range(4):
        if j & 1:
            e(f"v_xor_b32 v{t2}, 8, v{t1}")
            e(f"v_lshlrev_b32 v{t2}, 4, v{t2}")
        else:
            e(f"v_lshlrev_b32 v{t2}, 4, v{t1}")
        e(f"v_add_u32 v{t2}, v{t2}, v{t0}")
        e(f"v_add_u32 v{P_VBD + j}, {j * (8192 - 1024)}, v{t2}")
    e(f"s_mul_i32 s{ST}, s{P_SROLE}, 3")
    e(f"s_lshr_b32 s{ST + 1}, s{S_WAVE}, 1")
    e(f"s_add_u32 s{ST}, s{ST}, s{ST + 1}")
    e(f"s_lshl_b32 s{P_SOB}, s{ST}, 16")
    e(f"s_mul_i32 s{P_SOA}, s{P_SMT}, 144")
    e(f"s_add_u32 s{P_SOA}, s{P_SOA}, s{ST}")
    e(f"s_lshl_b32 s{P_SOA}, s{P_SOA}, 13")
    e(f"s_mov_b32 s{P_SSA}, {7 * 8192}")
    e(f"s_mov_b32 s{P_SSB}, {7 * 65536}")
    srd(a, ST + 4, S_PTR + 18, S_PTR + 19, 256)
    e(f"v_mov_b32 v12, 0")
    a.vmem(f"buffer_load_dwordx2 v[{V_TOK}:{V_TOK + 1}], v12, s[{ST + 4}:{ST + 7}], 0 offen sc1", "zc")
    for j in range(S - 1):
        e(f"s_add_u32 m0, s{P_SM0B}, {j * P_SLOT}")
        e("s_nop 0")
        for i in range(4):
            a.vmem(f"buffer_load_dwordx4 v{P_VBD + i}, s[{P_SW2}:{P_SW2 + 3}], s{P_SOB} offen offset:{1024 * i} lds", "eB")
        e(f"s_add_u32 s{P_SOB}, s{P_SOB}, s{P_SSB}")
    e(f"s_lshl_b32 s{ST + 3}, s{ST + 3}, 12")
    e(f"v_add_u32 v{P_VAD}, s{ST + 3}, v{V_L16}")
    e(f"s_lshl_b32 s{ST}, s{P_SMT}, 1")
    e(f"s_add_u32 s{ST}, s{ST}, s{P_SROLE}")
    e(f"s_lshl_b32 s{ST}, s{ST}, 8")
    e(f"s_add_u32 s{ST}, s{ST}, {FE_OFF}")
    e(f"v_and_b32 v{P_VFA}, 31, v{V_LANE}")
    e(f"v_lshlrev_b32 v{P_VFA}, 3, v{P_VFA}")
    e(f"v_add_u32 v{P_VFA}, s{ST}, v{P_VFA}")


def p2_issueA(a):
    e = a.e
    for j in range(OPT['S'] - 1):
        e(f"s_add_u32 m0, s{P_SM0A}, {j * P_SLOT}")
        e("s_nop 0")
        for i in range(4):
            e(f"buffer_load_dwordx4 v{P_VAD}, s[{P_SWS}:{P_SWS + 3}], s{P_SOA} offen offset:{1024 * i} {OPT['k2a']} lds")
        e(f"s_add_u32 s{P_SOA}, s{P_SOA}, s{P_SSA}")


def phase2(a):
    e = a.e
    S = OPT['S']
    n0 = OPT['n0']
    SLOT = P_SLOT
    SCR = S * SLOT
    SWAVE = S_WAVE
    ST = S_T
    SCNT = S_CNT
    SMT, SNT, SROLE, STILE = P_SMT, P_SNT, P_SROLE, P_STILE
    SOA, SOB, SOP, SM0A, SM0B = P_SOA, P_SOB, P_SOP, P_SM0A, P_SM0B
    SW2, SWO, SOUT = P_SW2, P_SWO, P_SOUT
    WS = f"s[{P_SWS}:{P_SWS + 3}]"
    NBASE = (S + 1) // 2
    VL, VL16, VBD = V_LANE, V_L16, P_VBD
    vi, vG = 6, 7
    VZ = 11
    VAD = 8
    VFL = 10
    VFA = 9
    VAR = 12
    VBR = 18
    VT = 30
    VG = 38
    VOMG = 42
    VEPS = 46
    VEPS = 48
    CG = 52
    CR = 60
    CKV = 68
    CW = 80
    VX = 192
    VY = 84
    AC = 128
    t0, t1, t2, t3 = VT, VT + 1, VT + 2, VT + 3

    def acc2(mt, nt):
        return AC + 16 * mt + 4 * nt

    def FA(j, b, mt):
        return 64 * (j % 2) + 32 * b + 4 * mt

    def FB(j, b, nt):
        return 64 * (j % 2) + 32 * b + 16 + 4 * nt

    def setflag(*lanes):
        e(f"s_mov_b64 exec, {sum(1 << l for l in lanes)}")
        a.vmem(f"buffer_store_dwordx2 v[{V_TOK}:{V_TOK + 1}], v0, {WS}, 0 offen sc1", "fl")
        e("s_mov_b64 exec, -1")

    VQ = 120
    VH = 16

    def fq_load():
        a.vmem(f"buffer_load_dwordx2 v[{VQ}:{VQ + 1}], v{VQ + 2}, {WS}, 0 offen sc1", "fq")

    a.label("L_p2_late")
    e(f"buffer_load_dwordx2 v[{VFL}:{VFL + 1}], v{VFA}, {WS}, 0 offen sc1")
    e("s_waitcnt vmcnt(0)")
    e(f"v_cmp_eq_u64 vcc, v[{VFL}:{VFL + 1}], v[{V_TOK}:{V_TOK + 1}]")
    e("s_nop 1")
    e("s_cmp_eq_u64 vcc, -1")
    e("s_cbranch_scc1 L_p2_fok")
    e(f"s_sleep {OPT.get('slp', 4)}")
    e("s_branch L_p2_late")
    a.label("L_p2_fok")
    p2_issueA(a)
    e("s_waitcnt vmcnt(0)")
    a.label("L_p2_go")
    stamp(a, 0)
    a.vm = ["old"]
    e(f"s_and_b32 s{ST}, s{SWAVE}, 1")
    e(f"s_lshl_b32 s{ST}, s{ST}, 12")
    e(f"v_add_u32 v{VAR}, s{ST}, v{VL16}")
    for k in range(1, NBASE):
        e(f"v_add_u32 v{VAR + k}, {65536 * k}, v{VAR}")
    e(f"v_lshlrev_b32 v{t0}, 2, v{vG}")
    e(f"v_lshrrev_b32 v{t1}, 2, v{vi}")
    e(f"v_add_u32 v{t0}, v{t0}, v{t1}")
    e(f"v_and_b32 v{t1}, 7, v{t0}")
    e(f"s_lshr_b32 s{ST}, s{SWAVE}, 1")
    e(f"s_lshl_b32 s{ST}, s{ST}, 2")
    e(f"v_xor_b32 v{t1}, s{ST}, v{t1}")
    e(f"v_lshlrev_b32 v{t0}, 8, v{t0}")
    e(f"v_and_b32 v{t2}, 3, v{vi}")
    e(f"v_lshlrev_b32 v{t2}, 3, v{t2}")
    e(f"v_add_u32 v{t0}, v{t0}, v{t2}")
    e(f"v_add_u32 v{t0}, 16384, v{t0}")
    for nt in range(4):
        e(f"v_xor_b32 v{t3}, {nt}, v{t1}")
        e(f"v_lshlrev_b32 v{t3}, 5, v{t3}")
        e(f"v_add_u32 v{VBR + nt}, v{t0}, v{t3}")
        for k in range(1, NBASE):
            e(f"v_add_u32 v{VBR + 4 * k + nt}, {65536 * k}, v{VBR + nt}")
    e(f"v_and_b32 v{t0}, 1, v{vG}")
    e(f"v_lshlrev_b32 v{t0}, 10, v{t0}")
    e(f"v_lshrrev_b32 v{t1}, 1, v{vG}")
    e(f"v_lshlrev_b32 v{t1}, 8, v{t1}")
    e(f"v_lshlrev_b32 v{VH}, 4, v{vi}")
    e(f"v_add3_u32 v{VH}, v{VH}, v{t0}, v{t1}")
    stamp(a, 1)
    e(f"s_cmp_eq_u32 s{SROLE}, 0")
    e(f"s_cbranch_scc1 L_p2_r0")
    vm_save = list(a.vm)

    import math
    PERIOD = S * 4 // math.gcd(S, 4)

    def body(role):
        R = f"r{role}"
        o0 = OPT.get('o0', 5)
        na0 = n0 - o0
        assert 16 < na0 <= 32 and 5 <= o0 <= 11
        nact = na0 if role == 0 else 56 - na0
        N = nact + (o0 if role == 0 else 16 - o0)
        JO = nact - (S - 1)
        JP = N - OPT['pj']
        if role == 0:
            runs = {16: (5, 1, 7)}
        else:
            nl1 = 32 - na0
            runs = {16 + nl1: (2, 7, 14)}
            if nl1:
                runs[16] = (5 + 7 * (na0 - 16), 1, 7)

        def bperm(op):
            e(f"s_and_b32 s{ST + 9}, s{SWAVE}, 1")
            e(f"s_mul_i32 s{ST + 9}, s{ST + 9}, {-12 * 2048}")
            for j4 in range(4):
                e(f"{op} v{VBD + j4}, s{ST + 9}, v{VBD + j4}")
                if j4 < 3:
                    e(f"s_add_u32 s{ST + 9}, s{ST + 9}, {4 * 2048}")

        def newrun(j):
            if j == nact:
                def sw():
                    e(f"s_lshr_b32 s{ST + 11}, s{SWAVE}, 1")
                    if role:
                        e(f"s_add_u32 s{ST + 11}, s{ST + 11}, {2 * o0}")
                    e(f"s_lshl_b32 s{SOB}, s{ST + 11}, 16")
                    e(f"s_lshl_b32 s{SOA}, s{SMT}, 5")
                    e(f"s_add_u32 s{SOA}, s{SOA}, s{ST + 11}")
                    e(f"s_lshl_b32 s{SOA}, s{SOA}, 13")
                    e(f"s_add_u32 s{SOA}, s{SOA}, {OF_OFF}")
                    e(f"s_mov_b32 s{P_SSA}, 16384")
                    e(f"s_mov_b32 s{P_SSB}, 131072")
                    if role == 1:
                        bperm("v_subrev_u32")
                return [sw]
            if j in runs:
                c0, c1, st_ = runs[j]

                def sw():
                    r = p2_setrun(a, (c0, c1), st_)
                    e(f"s_lshl_b32 s{SOB}, s{r}, 16")
                    e(f"s_mul_i32 s{SOA}, s{SMT}, 144")
                    e(f"s_add_u32 s{SOA}, s{SOA}, s{r}")
                    e(f"s_lshl_b32 s{SOA}, s{SOA}, 13")
                    e(f"s_mov_b32 s{P_SSA}, {st_ * 8192}")
                    e(f"s_mov_b32 s{P_SSB}, {st_ * 65536}")
                    if st_ == 14:
                        bperm("v_add_u32")
                return [sw]
            return []

        def dmaA(j):
            f = newrun(j)
            f.append(lambda: e(f"s_add_u32 m0, s{SM0A}, {(j % S) * SLOT}"))
            for i in range(4):
                f.append(lambda i=i: a.vmem(
                    f"buffer_load_dwordx4 v{VAD}, {WS}, s{SOA} offen offset:{1024 * i} {OPT['k2a']} lds", f"D{j}"))
            f.append(lambda: e(f"s_add_u32 s{SOA}, s{SOA}, s{P_SSA}"))
            return f

        def dmaB(j):
            sr = SW2 if j < nact else SWO
            f = []
            f.append(lambda: e(f"s_add_u32 m0, s{SM0B}, {(j % S) * SLOT}"))
            for i in range(4):
                f.append(lambda i=i: a.vmem(
                    f"buffer_load_dwordx4 v{VBD + i}, s[{sr}:{sr + 3}], s{SOB} offen offset:{1024 * i} lds", f"D{j}"))
            f.append(lambda: e(f"s_add_u32 s{SOB}, s{SOB}, s{P_SSB}"))
            return f

        def reads(j):
            sl = j % S
            k, so = sl // 2, (sl % 2) * SLOT
            f = []
            for q in range(4):
                for b in range(2):
                    f.append(lambda b=b, q=q: e(
                        f"ds_read_b128 {ar(FA(j, b, q))}, v{VAR + k} offset:{so + 8192 * b + 1024 * q}"))
                    for ins in range(2):
                        f.append(lambda b=b, q=q, ins=ins: e(
                            f"ds_read_b64_tr_b16 {ar(FB(j, b, q) + 2 * ins, 2)}, v{VBR + 4 * k + q} offset:{so + 8192 * b + 4096 * ins}"))
            return f

        late = []
        for mp in range(2):
            late.append(f"buffer_store_dwordx4 {vr(240 + 4 * mp)}, v{VH}, {WS}, s{P_SL + 2} offen offset:{2048 * mp} sc1")
        for g_, base in enumerate((192, 224)):
            for mt in range(4):
                late.append(f"buffer_store_dwordx4 {vr(base + 4 * mt)}, v{VL16}, {WS}, s{P_SL + g_} offen offset:{1024 * mt} sc1")
        TR = OPT.get('tr', 3)
        NTR = -(-10 // TR)

        e("s_barrier")
        stamp(a, 2)
        VK = 48
        PD, PO, PEPS, PR = 48, 96, 112, 116

        def poll(lab, vv, reload):
            a.label(f"L_p2{R}_{lab}w")
            e(f"v_cmp_eq_u64 vcc, v[{vv}:{vv + 1}], v[{V_TOK}:{V_TOK + 1}]")
            e("s_nop 1")
            e("s_cmp_eq_u64 vcc, -1")
            e(f"s_cbranch_scc1 L_p2{R}_{lab}ok")
            e("s_sleep 4")
            sv = list(a.vm)
            reload()
            a.vm = sv
            e("s_waitcnt vmcnt(0)")
            e(f"s_branch L_p2{R}_{lab}w")
            a.label(f"L_p2{R}_{lab}ok")

        def fl_load(tag="F"):
            a.vmem(f"buffer_load_dwordx2 v[{VFL}:{VFL + 1}], v{VFA}, {WS}, 0 offen sc1", tag)

        def red_guard(lab):
            e(f"s_cmp_eq_u32 s{P_SEARLY}, 0")
            e(f"s_cbranch_scc1 L_p2{R}_{lab}")

        J1 = OPT.get('j1', 4)
        J2 = OPT.get('j2', 12)

        def pre(j):
            if j == 2:
                a.wait(["old"])
            if j == NTR + 3:
                a.wait(["sl"])
            if j == 16 - S + 1:
                a.wait(["FL"])
                poll("l", VFL, fl_load)
            if j == J2 + 2:
                a.wait(["fq"])
                poll("k", VQ, fq_load)
            if j == J2 + 4:
                a.wait(["pq"])
            if j == J2 + 8:
                a.wait(["ost"])
            if j == JO:
                a.wait(["F"])
                poll("o", VFL, fl_load)
            if role == 1 and j == JP:
                a.wait(["F2"])
                poll("p", VFL, fl_load)

        def extra(j):
            if j == 2:
                setflag(1)
            if j == J1:
                e(f"s_and_b32 s{ST}, s2, 3")
                e(f"s_cmp_eq_u32 s{ST}, s{SWAVE}")
                e(f"s_cselect_b32 s{P_SEARLY}, 1, 0")
                e(f"s_cmp_lt_u32 s2, 192")
                e(f"s_cselect_b32 s{P_SEARLY}, s{P_SEARLY}, 0")
                e(f"s_mul_i32 s{P_SHD}, s2, 171")
                e(f"s_lshr_b32 s{P_SHD}, s{P_SHD}, 10")
                e(f"s_min_u32 s{P_SHD}, s{P_SHD}, 31")
                e(f"s_lshr_b32 s{ST}, s{P_SHD}, 1")
                e(f"s_lshl_b32 s{ST}, s{ST}, 9")
                e(f"s_add_u32 s{ST}, s{ST}, {FQ_OFF}")
                e(f"v_and_b32 v{VQ + 2}, 31, v{VL}")
                e(f"v_lshlrev_b32 v{VQ + 2}, 3, v{VQ + 2}")
                e(f"v_add_u32 v{VQ + 2}, s{ST}, v{VQ + 2}")
                fq_load()
            if j == NTR + 3:
                setflag(4)
                srd(a, SOUT, S_PTR + 16, S_PTR + 17, 2048 * 1024 * 2)
            if j == 16 - S - 1:
                e(f"s_lshl_b32 s{ST}, s{SMT}, 9")
                e(f"s_add_u32 s{ST}, s{ST}, {FA_OFF}")
                e(f"v_lshlrev_b32 v{VFA}, 3, v{VL}")
                e(f"v_add_u32 v{VFA}, s{ST}, v{VFA}")
                fl_load("FL")
            if j == 16 - S + 2:
                e(f"v_lshlrev_b32 v{t1}, 2, v{vi}")
                e(f"s_lshl_b32 s{ST}, s{SMT}, 9")
                e(f"s_and_b32 s{ST + 1}, s{SWAVE}, 1")
                e(f"s_lshl_b32 s{ST + 1}, s{ST + 1}, 8")
                e(f"s_add_u32 s{ST}, s{ST}, s{ST + 1}")
                e(f"s_add_u32 s{ST}, s{ST}, {G_OFF}")
                for i in range(4):
                    a.vmem(f"buffer_load_dword v{VG + i}, v{t1}, {WS}, s{ST} offen offset:{64 * i}", "g")
            if j == J2:
                e(f"s_and_b32 s{P_SHD}, s2, 31")
                e(f"s_lshr_b32 s{P_SM2}, s2, 5")
                e(f"s_lshr_b32 s{ST}, s{P_SHD}, 1")
                e(f"s_lshl_b32 s{ST}, s{ST}, 4")
                e(f"s_add_u32 s{ST}, s{ST}, s{P_SM2}")
                e(f"s_lshl_b32 s{ST}, s{ST}, 2")
                e(f"s_add_u32 s{ST}, s{ST}, s{SWAVE}")
                e(f"s_lshl_b32 s{ST}, s{ST}, 3")
                e(f"s_add_u32 s{ST}, s{ST}, {FQ_OFF + 256}")
                e(f"s_lshl_b32 s{ST + 1}, s{P_SHD}, 6")
                e(f"s_add_u32 s{ST + 1}, s{ST + 1}, {FK_OFF}")
                e(f"v_lshlrev_b32 v{VQ + 2}, 3, v{VL}")
                e(f"v_add_u32 v{VQ + 2}, s{ST + 1}, v{VQ + 2}")
                e(f"v_mov_b32 v{t0}, s{ST}")
                e(f"v_cmp_gt_u32 s[{ST + 2}:{ST + 3}], 6, v{VL}")
                e("s_nop 1")
                e(f"v_cndmask_b32 v{VQ + 2}, v{t0}, v{VQ + 2}, s[{ST + 2}:{ST + 3}]")
                e(f"s_lshl_b32 s{P_SM2}, s{P_SM2}, 1")
                e(f"s_lshr_b32 s{ST}, s{SWAVE}, 1")
                e(f"s_add_u32 s{P_SM2}, s{P_SM2}, s{ST}")
                fq_load()
            if j == J2 + 2:
                e(f"s_mul_i32 s{ST}, s{P_SHD}, 3072")
                e(f"s_add_u32 s{ST}, s{ST}, {KVF_OFF}")
                e(f"v_lshlrev_b32 v{t0}, 3, v{VL}")
                for i in range(6):
                    a.vmem(f"buffer_load_dwordx2 {ar(144 + 2 * i, 2)}, v{t0}, {WS}, s{ST} offen offset:{512 * i}", "pq")
                e(f"s_mul_i32 s{ST}, s{P_SM2}, 144")
                e(f"s_add_u32 s{ST}, s{ST}, s{P_SHD}")
                e(f"s_add_u32 s{ST}, s{ST}, 112")
                e(f"s_lshl_b32 s{ST}, s{ST}, 13")
                for i in range(4):
                    a.vmem(f"buffer_load_dwordx4 {ar(128 + 4 * i)}, v{VAD}, {WS}, s{ST} offen offset:{1024 * i}", "pq")
                e(f"s_lshl_b32 s{SOP}, s{P_SM2}, 5")
                e(f"s_add_u32 s{SOP}, s{SOP}, s{P_SHD}")
                e(f"s_lshl_b32 s{SOP}, s{SOP}, 13")
                e(f"s_add_u32 s{SOP}, s{SOP}, {OF_OFF}")
                for r in range(4):
                    e(f"v_mov_b32 v{PEPS + r}, {EPS_HEX}")
            if j == J2 + 5:
                for i in range(4):
                    e(f"v_rcp_f32 v{PR + i}, v{PD + 12 * i + 8}")
                e("s_nop 0")
                for i in range(4):
                    d = PD + 12 * i
                    for q in range(8):
                        e(f"v_mul_f32 v{d + q}, v{PR + i}, v{d + q}")
                    o = PO + 4 * i
                    for q in range(4):
                        e(f"v_cvt_pk_bf16_f32 v{o + q}, v{d + 2 * q}, v{d + 2 * q + 1}")
                    a.vmem(f"buffer_store_dwordx4 {vr(o)}, v{VAD}, {WS}, s{SOP} offen offset:{1024 * i} sc1", "ost")
            if j == J2 + 8:
                setflag(2)
            if j == JO - OPT.get('fod', 2):
                assert j > J2 + 8
                e(f"s_lshl_b32 s{ST}, s{SMT}, 9")
                e(f"s_add_u32 s{ST}, s{ST}, {FO_OFF}")
                if role == 0:
                    e(f"v_min_u32 v{VFA}, {4 * o0 - 1}, v{VL}")
                else:
                    e(f"v_max_u32 v{VFA}, {4 * o0}, v{VL}")
                e(f"v_lshlrev_b32 v{VFA}, 3, v{VFA}")
                e(f"v_add_u32 v{VFA}, s{ST}, v{VFA}")
                fl_load("F")
            if role == 1 and j == JP - 1:
                e(f"s_lshl_b32 s{ST}, s{STILE}, 8")
                e(f"s_lshl_b32 s{ST + 1}, s{SWAVE}, 3")
                e(f"s_add_u32 s{ST}, s{ST}, s{ST + 1}")
                e(f"s_add_u32 s{ST}, s{ST}, {FP_OFF}")
                e(f"v_mov_b32 v{VFA}, s{ST}")
                fl_load("F2")
            if role == 1 and j == JP:
                e(f"s_lshl_b32 s{ST}, s{STILE}, 16")
                e(f"s_lshl_b32 s{ST + 1}, s{SWAVE}, 13")
                e(f"s_add_u32 s{ST}, s{ST}, s{ST + 1}")
                e(f"s_add_u32 s{ST}, s{ST}, {PART_OFF}")
                for q in range(8):
                    if q == 4:
                        e(f"s_add_u32 s{ST}, s{ST}, 4096")
                    a.vmem(f"buffer_load_dwordx4 {vr(VY + 4 * q)}, v{VL16}, {WS}, s{ST} offen offset:{1024 * (q & 3)} sc1", "PT")

        def post(j):
            if j == J1 + 1:
                red_guard("nr1")
                n_ = a.vm_count(["fq"], drop=False)
                e(f"s_waitcnt vmcnt({n_})")
                poll("q", VQ, fq_load)
                e(f"s_lshr_b32 s{ST}, s{P_SHD}, 1")
                e(f"s_mul_i32 s{ST}, s{ST}, 84")
                e(f"s_add_u32 s{ST}, s{ST}, s2")
                e(f"s_lshl_b32 s{ST}, s{ST}, 10")
                e(f"s_add_u32 s{ST}, s{ST}, {KVP_OFF}")
                for r8 in range(8):
                    e(f"buffer_load_dwordx4 {vr(VK + 4 * r8)}, v{VL16}, {WS}, s{ST} offen")
                    if r8 < 7:
                        e(f"s_add_u32 s{ST}, s{ST}, 12288")
                a.label(f"L_p2{R}_nr1")
                a.mark("r1")
            if j == J1 + 3:
                red_guard("nr2")
                n_ = a.vm_count(["#r1"], drop=False)
                if n_ is not None:
                    e(f"s_waitcnt vmcnt({n_})")
                for st_ in (1, 2, 4):
                    for r8 in range(0, 8, 2 * st_):
                        for q in range(2):
                            b0 = VK + 4 * r8 + 2 * q
                            e(f"v_pk_add_f32 {vr(b0, 2)}, {vr(b0, 2)}, {vr(b0 + 4 * st_, 2)}")
                e(f"v_cvt_pk_bf16_f32 v{VK}, v{VK}, v{VK + 1}")
                e(f"v_cvt_pk_bf16_f32 v{VK + 1}, v{VK + 2}, v{VK + 3}")
                e(f"s_mul_i32 s{ST}, s{P_SHD}, 6")
                e(f"s_sub_u32 s{ST}, s2, s{ST}")
                e(f"s_cmp_ge_u32 s{ST}, 3")
                e(f"s_cselect_b32 s{ST + 1}, 1, 0")
                e(f"s_mul_i32 s{ST + 2}, s{ST + 1}, 3")
                e(f"s_sub_u32 s{ST}, s{ST}, s{ST + 2}")
                e(f"s_mul_i32 s{ST + 2}, s{P_SHD}, 3")
                e(f"s_add_u32 s{ST}, s{ST}, s{ST + 2}")
                e(f"s_lshl_b32 s{ST}, s{ST}, 10")
                e(f"s_lshl_b32 s{ST + 1}, s{ST + 1}, 9")
                e(f"s_add_u32 s{ST}, s{ST}, s{ST + 1}")
                e(f"s_add_u32 s{ST}, s{ST}, {KVF_OFF}")
                e(f"v_lshlrev_b32 v{t0}, 3, v{VL}")
                e(f"buffer_store_dwordx2 {vr(VK, 2)}, v{t0}, {WS}, s{ST} offen sc1")
                a.label(f"L_p2{R}_nr2")
                a.mark("r2")
            if j == J1 + 5:
                red_guard("nr3")
                n_ = a.vm_count(["#r2"], drop=False)
                if n_ is not None:
                    e(f"s_waitcnt vmcnt({n_})")
                e(f"s_mov_b64 exec, {1 << 5}")
                e(f"buffer_store_dwordx2 v[{V_TOK}:{V_TOK + 1}], v0, {WS}, 0 offen sc1")
                e("s_mov_b64 exec, -1")
                a.label(f"L_p2{R}_nr3")

        def interval(j):
            if DIAG and OPT.get('ts2'):
                if j == 0:
                    e("s_mov_b32 s74, 0")
                e("s_memrealtime s[76:77]")
                e("s_waitcnt lgkmcnt(0)")
                e("s_mov_b32 m0, s74")
                e("s_nop 0")
                e(f"v_writelane_b32 v{VT + 7}, s76, m0")
                e("s_add_u32 s74, s74, 1")
            main = []
            if j >= 1:
                for mt in range(4):
                    for nt in range(4):
                        D = vr(acc2(mt, nt) + (64 if j - 1 >= nact else 0))
                        for b in range(2):
                            C = "0" if (j in (1, nact + 1) and b == 0) else D
                            main.append(f"v_mfma_f32_16x16x32_bf16 {D}, {ar(FB(j - 1, b, nt))}, {ar(FA(j - 1, b, mt))}, {C}")
            pre(j)
            if j == J2 + 4:
                pm = []
                for i in range(4):
                    d = PD + 12 * i
                    pq = ar(128 + 4 * i)
                    pm += [f"v_mfma_f32_16x16x32_bf16 {vr(d + 8)}, {ar(152)}, {pq}, {vr(PEPS)}",
                           f"v_mfma_f32_16x16x32_bf16 {vr(d)}, {ar(144)}, {pq}, 0",
                           f"v_mfma_f32_16x16x32_bf16 {vr(d + 4)}, {ar(148)}, {pq}, 0"]
                main = pm + main
            rd = reads(j) if j < N else []
            dm = (dmaA(j + S - 1) + dmaB(j + S - 1)) if j + S - 1 < N else []
            for x in late[TR * j: TR * j + TR]:
                dm.append(lambda x=x: a.vmem(x, "sl"))
            streams = []
            if nact + 1 <= j <= nact + 4:
                mt = j - (nact + 1)
                it = []
                if mt == 0:
                    a.wait(["g"])
                it.append(lambda mt=mt: e(f"v_sub_f32 v{VOMG + mt}, 1.0, v{VG + mt}"))
                for q in range(16):
                    it.append(lambda mt=mt, q=q: e(f"v_mul_f32 v{acc2(mt, 0) + q}, v{VOMG + mt}, v{acc2(mt, 0) + q}"))
                streams.append((it, 10, 30))
            n = max(len(main), 1)
            ex = capture(a, lambda: extra(j), chunk=1)
            if ex:
                streams.append((ex, 1, min(n * 0.97, 1 + 1.2 * len(ex))))
            schedule(a, main, [(rd, 0, n * 0.85), (dm, 0.5, n * 0.95)] + streams)
            post(j)
            if j < N:
                a.wait([f"D{j + 1}"] if j + 1 < N else [], lgkm=True)
                if j + 1 < N:
                    e("s_barrier")

        iters = []
        for j in range(N + 1):
            n_ = len(a.lines)
            if j == 4:
                stamp(a, 3)
            if j == nact:
                stamp(a, 4)
            interval(j)
            iters.append(a.lines[n_:])
            del a.lines[n_:]
        fold_loops(a, iters, PERIOD, SCNT, f"p2{R}")
        stamp(a, 5)
        if role == 0:
            e(f"s_lshl_b32 s{ST}, s{STILE}, 16")
            e(f"s_lshl_b32 s{ST + 1}, s{SWAVE}, 13")
            e(f"s_add_u32 s{ST}, s{ST}, s{ST + 1}")
            e(f"s_add_u32 s{ST}, s{ST}, {PART_OFF}")
            e("s_nop 7")
        else:
            vo = VT + 4
            e(f"v_lshlrev_b32 v{t2}, 11, v{vi}")
            e(f"v_bfe_u32 v{t3}, v{VL}, 4, 1")
            e(f"v_lshlrev_b32 v{t3}, 5, v{t3}")
            e(f"v_add_u32 v{t2}, v{t2}, v{t3}")
            e(f"v_lshrrev_b32 v{t3}, 5, v{VL}")
            e(f"v_lshlrev_b32 v{t3}, 4, v{t3}")
            e(f"v_add_u32 v{vo}, v{t2}, v{t3}")
            e(f"s_lshl_b32 s{ST}, s{SMT}, 7")
            e(f"s_and_b32 s{ST + 1}, s{SWAVE}, 1")
            e(f"s_lshl_b32 s{ST + 1}, s{ST + 1}, 6")
            e(f"s_add_u32 s{ST}, s{ST}, s{ST + 1}")
            e(f"s_lshl_b32 s{ST}, s{ST}, 11")
            e(f"s_lshl_b32 s{ST + 1}, s{SNT}, 8")
            e(f"s_add_u32 s{ST}, s{ST}, s{ST + 1}")
            e(f"s_lshr_b32 s{ST + 1}, s{SWAVE}, 1")
            e(f"s_lshl_b32 s{ST + 1}, s{ST + 1}, 7")
            e(f"s_add_u32 s{ST}, s{ST}, s{ST + 1}")
            a.wait(["PT"])
        for mt in range(4):
            sel = "op_sel:[1,0,0] op_sel_hi:[1,1,1]" if mt & 1 else "op_sel_hi:[0,1,1]"
            for q in range(8):
                b0 = acc2(mt, 0) + 2 * q
                e(f"v_pk_fma_f32 {vr(b0, 2)}, {vr(VG + (mt & 2), 2)}, {vr(b0 + 64, 2)}, {vr(b0, 2)} {sel}")
            if role == 0:
                for h2 in range(2):
                    q = 2 * mt + h2
                    b0 = AC + 8 * q
                    for r in range(4):
                        e(f"v_cvt_pk_bf16_f32 v{b0 + r}, v{b0 + 2 * r}, v{b0 + 2 * r + 1}")
                    e(f"buffer_store_dwordx4 {vr(b0)}, v{VL16}, {WS}, s{ST} offen offset:{1024 * (q & 3)} sc1")
                    if q == 3:
                        e(f"s_add_u32 s{ST}, s{ST}, 4096")
            else:
                for q in range(8):
                    p0 = VY + 8 * mt + q
                    u = 48 + 2 * q
                    e(f"v_lshlrev_b32 v{u}, 16, v{p0}")
                    e(f"v_and_b32 v{u + 1}, 0xffff0000, v{p0}")
                for q in range(8):
                    b0 = acc2(mt, 0) + 2 * q
                    e(f"v_pk_add_f32 {vr(b0, 2)}, {vr(b0, 2)}, {vr(48 + 2 * q, 2)}")
                for pr in range(2):
                    b0 = acc2(mt, 2 * pr)
                    for q in range(4):
                        e(f"v_cvt_pk_bf16_f32 v{b0 + q}, v{b0 + 2 * q}, v{b0 + 2 * q + 1}")
                e("s_nop 1")
                for pr in range(2):
                    b0 = acc2(mt, 2 * pr)
                    e(f"v_permlane16_swap_b32 v{b0}, v{b0 + 2}")
                    e(f"v_permlane16_swap_b32 v{b0 + 1}, v{b0 + 3}")
                for pr in range(2):
                    b0 = acc2(mt, 2 * pr)
                    e(f"buffer_store_dwordx4 {vr(b0)}, v{vo}, s[{SOUT}:{SOUT + 3}], s{ST} offen offset:{64 * pr}")
                if mt < 3:
                    e(f"s_add_u32 s{ST}, s{ST}, 32768")
        if role == 0:
            e("s_waitcnt vmcnt(0)")
            setflag(3)
        stamp(a, 6)
        if DIAG and OPT.get('ts2'):
            e(f"s_mov_b32 s76, s{S_PTR + 20}")
            e(f"s_and_b32 s77, s{S_PTR + 21}, 0xffff")
            e(f"s_mov_b32 s78, 0x4000000")
            e(f"s_mov_b32 s79, 0x20000")
            e(f"s_lshl_b32 s75, s2, 2")
            e(f"s_add_u32 s75, s75, s{S_WAVE}")
            e(f"s_lshl_b32 s75, s75, 8")
            e(f"s_add_u32 s75, s75, {DIAG_OFF + 0x200000}")
            e(f"v_lshlrev_b32 v{VT}, 2, v{VL}")
            e(f"buffer_store_dword v{VT + 7}, v{VT}, s[76:79], s75 offen")
        if DIAG:
            e("s_waitcnt vmcnt(0)")
        stamp(a, 7)
        stamp_dump(a, 1, 8, SWAVE, S_PTR + 20, S_PTR + 21, VT + 5)
        e("s_endpgm")

    body(1)
    a.label("L_p2_r0")
    a.vm = vm_save
    body(0)


def fix_hazards(lines):
    out = []
    for i, ln in enumerate(lines):
        out.append(ln)
        if " m0," in ln and i + 1 < len(lines) and lines[i + 1].rstrip().endswith("lds"):
            out.append("  s_nop 0")
    return out


def gen_spin():
    a = Asm()
    e = a.e
    spec = OPT['spin']
    A_, B_, M = spec.split(",")
    a.lines.append(".globl spin_kernel\n.p2align 8\n.type spin_kernel,@function\nspin_kernel:")
    e("s_cmp_lg_u32 s2, 0")
    e("s_cbranch_scc1 L_spin_end")
    e("s_load_dwordx2 s[4:5], s[0:1], 80")
    e("v_lshlrev_b32 v1, 7, v0")
    e("s_waitcnt lgkmcnt(0)")
    e("s_mov_b32 s8, s4\ns_and_b32 s9, s5, 0xffff\ns_mov_b32 s10, 0x4000000\ns_mov_b32 s11, 0x20000")

    def red(sp, sdst):
        k, st, op = sp.split(".")
        base = DIAG_OFF + int(k) * 0x100000 + 8 * int(st) + 4
        for i in range(16):
            e(f"s_mov_b32 s12, {base + i * 8192}")
            e(f"buffer_load_dword v{8 + i}, v1, s[8:11], s12 offen")
        e("s_waitcnt vmcnt(0)")
        for i in range(1, 16):
            e(f"v_{op}_u32 v8, v8, v{8 + i}")
        e("s_nop 1")
        e(f"v_readlane_b32 s{sdst}, v8, 0")
        for l in range(1, 64):
            e(f"v_readlane_b32 s13, v8, {l}")
            e("s_nop 0")
            e(f"s_{op}_u32 s{sdst}, s{sdst}, s13")
    red("0.0.min", 20)
    red(A_, 21)
    red(B_, 22)
    e("s_sub_u32 s22, s22, s21")
    e(f"s_mul_i32 s22, s22, {M}")
    e("s_add_u32 s22, s22, 12000")
    e("s_min_u32 s22, s22, 60000")
    a.label("L_spin")
    e("s_memrealtime s[14:15]")
    e("s_waitcnt lgkmcnt(0)")
    e("s_sub_u32 s16, s14, s20")
    e("s_cmp_lt_u32 s16, s22")
    e("s_cbranch_scc1 L_spin")
    a.label("L_spin_end")
    e("s_endpgm")
    return a.lines


def kd(name, nfv, accum):
    return f""".amdhsa_kernel {name}
  .amdhsa_next_free_vgpr {nfv}
  .amdhsa_next_free_sgpr 102
  .amdhsa_accum_offset {accum}
  .amdhsa_group_segment_fixed_size 0
  .amdhsa_kernarg_size 88
  .amdhsa_user_sgpr_count 2
  .amdhsa_user_sgpr_kernarg_segment_ptr 1
  .amdhsa_system_sgpr_workgroup_id_x 1
.end_amdhsa_kernel"""


def main(path):
    hdr = open(f"cdna_kernels/{NAME}.s.ref").read().split("; Override launch")[0]
    out = [hdr.rstrip("\n")]
    kn = NAME + "_kernel"
    if OPT.get('spin'):
        out.append(f"; @launch kernel={kn} grid=(256,1,1) block=(256,1,1) lds={K2_LDS()}")
        out.append("; @launch kernel=spin_kernel grid=(1,1,1) block=(64,1,1) lds=0")
    else:
        out.append(f"; @launch grid=(256,1,1) block=(256,1,1) lds={K2_LDS()}")
    out.append('.amdgcn_target "amdgcn-amd-amdhsa--gfx950"')
    out.append(".text")
    out += [ln.replace("KNAME", kn) for ln in fix_hazards(gen_k1())]
    if OPT.get('spin'):
        out += gen_spin()
    out.append('.section .rodata,"a"')
    if OPT.get('spin'):
        out.append(".p2align 6")
        out.append(kd("spin_kernel", 32, 32))
    out.append(".p2align 6")
    out.append(kd(kn, 256 + 160, 256))
    open(path, "w").write("\n".join(out) + "\n")


if __name__ == "__main__":
    if "--dbgout" in sys.argv:
        DBGOUT = True
        sys.argv.remove("--dbgout")
    if "--diag" in sys.argv:
        DIAG = True
        sys.argv.remove("--diag")
    for arg in list(sys.argv):
        if "=" in arg:
            k_, v_ = arg.split("=")
            OPT[k_] = int(v_) if v_.isdigit() else v_.replace("+", " ")
            sys.argv.remove(arg)
    main(sys.argv[1] if len(sys.argv) > 1 else f"cdna_kernels/{NAME}.s")
```

```python
import sys

NAME = "gated_mix__linear_attn_block__dense_activation_mish__prompt"

AF_OFF = 0
AF_BYTES = 16 * 144 * 8 * 1024
KVP_OFF = AF_BYTES
KVP_BYTES = 16 * 8 * 12 * 1024
KVF_OFF = KVP_OFF + KVP_BYTES
KVF_BYTES = 32 * 3 * 1024
G_OFF = KVF_OFF + KVF_BYTES
PART_OFF = G_OFF + 8192
OF_OFF = PART_OFF + 128 * 65536
FLG_OFF = OF_OFF + 16 * 32 * 8192
FE_OFF = FLG_OFF - 0 + 32768 + 128 * 256
FA_OFF = FLG_OFF
FQ_OFF = FA_OFF + 8192
FO_OFF = FQ_OFF + 8192
FP_OFF = FO_OFF + 8192
FK_OFF = FE_OFF + 8192
WS_USED = FK_OFF + 2048
assert FP_OFF + 128 * 256 <= FE_OFF
V_TOK = 14

DIAG = False
DBGOUT = False
OPT = dict(k1a="", k1b="", k2a="", k2b="", st="sc1", pf=2, xpf=0, n0=34, o0=6, tr=2, cpf=1, map=2, S=4, pbf=1, pj=1, pprio=0, cprio=0, rdend=26)
DIAG_OFF = 0x2000000
EPS_HEX = "0x358637bd"
L2E_HEX = "0x3fb8aa3b"


class Asm:
    def __init__(self):
        self.lines = []
        self.vm = []

    def e(self, s):
        for ln in s.split("\n"):
            self.lines.append("  " + ln.strip())

    def label(self, s):
        self.lines.append(s + ":")

    def vmem(self, s, tag):
        self.e(s)
        self.vm.append(tag)

    def mark(self, tag):
        self.vm.append("#" + tag)

    def vm_count(self, tags, drop=True):
        idx = -1
        for i, t in enumerate(self.vm):
            if t in tags:
                idx = i
        if idx < 0:
            return None
        n = sum(1 for t in self.vm[idx + 1:] if not t.startswith("#"))
        if drop:
            self.vm = self.vm[idx + 1:]
        assert n <= 63, n
        return n

    def wait(self, tags=(), lgkm=False):
        n = self.vm_count(tags) if tags else None
        parts = []
        if n is not None:
            parts.append(f"vmcnt({n})")
        if lgkm:
            parts.append("lgkmcnt(0)")
        if parts:
            self.e("s_waitcnt " + " ".join(parts))


def stamp(a, idx, sbase=80):
    if not DIAG:
        return
    a.e(f"s_memtime s[{sbase - 4}:{sbase - 3}]")
    a.e(f"s_memrealtime s[{sbase - 2}:{sbase - 1}]")
    a.e("s_waitcnt lgkmcnt(0)")
    a.e(f"s_mov_b32 s{sbase + 2 * idx}, s{sbase - 4}")
    a.e(f"s_mov_b32 s{sbase + 2 * idx + 1}, s{sbase - 2}")


def stamp_dump(a, kidx, n, swave, sptr_lo, sptr_hi, vtmp, sbase=80):
    if not DIAG:
        return
    e = a.e
    e(f"s_mov_b32 s{sbase - 4}, s{sptr_lo}")
    e(f"s_and_b32 s{sbase - 3}, s{sptr_hi}, 0xffff")
    e(f"s_mov_b32 s{sbase - 2}, 0x4000000")
    e(f"s_mov_b32 s{sbase - 1}, 0x20000")
    e(f"s_lshl_b32 s75, s2, 2")
    e(f"s_add_u32 s75, s75, s{swave}")
    e(f"s_lshl_b32 s75, s75, 7")
    e(f"s_add_u32 s75, s75, {DIAG_OFF + kidx * 0x100000}")
    e(f"v_mov_b32 v{vtmp}, 0")
    e("s_mov_b64 exec, 1")
    for i in range(2 * n):
        e(f"v_mov_b32 v{vtmp + 1}, s{sbase + i}")
        e(f"buffer_store_dword v{vtmp + 1}, v{vtmp}, s[{sbase - 4}:{sbase - 1}], s75 offen offset:{4 * i}")
        e("s_nop 1")
    e("s_mov_b64 exec, -1")
    if DBGOUT:
        lab = f"L_dbg_{len(a.lines)}"
        e(f"s_cmp_lg_u32 s2, 1")
        e(f"s_cbranch_scc1 {lab}")
        e(f"s_cmp_lg_u32 s{swave}, 0")
        e(f"s_cbranch_scc1 {lab}")
        e(f"s_mov_b32 s{sbase - 4}, s{sptr_lo - 2}")
        e(f"s_and_b32 s{sbase - 3}, s{sptr_hi - 2}, 0xffff")
        e(f"s_mov_b32 s{sbase - 2}, 256")
        e("s_mov_b64 exec, 1")
        for i in range(n):
            e(f"v_mov_b32 v{vtmp + 1}, s{sbase + 2 * i + 1}")
            e(f"buffer_store_dword v{vtmp + 1}, v{vtmp}, s[{sbase - 4}:{sbase - 1}], 0 offen offset:{4 * i + 32 * kidx}")
            e("s_nop 1")
        e("s_mov_b64 exec, -1")
        a.label(lab)


def vr(b, n=4):
    return f"v[{b}:{b + n - 1}]"


def ar(b, n=4):
    return f"a[{b}:{b + n - 1}]"


def interleave(a, mf, fillers, start=0, end=None):
    n = len(mf)
    if end is None:
        end = n
    nf = len(fillers)
    pos = [start + (j * (end - start)) // max(nf, 1) for j in range(nf)]
    j = 0
    for m in range(n):
        a.e(mf[m])
        while j < nf and pos[j] <= m:
            f = fillers[j]
            f()
            j += 1
    while j < nf:
        fillers[j]()
        j += 1


def capture(a, fn, chunk=2):
    n0_ = len(a.lines)
    vm0 = list(a.vm)
    fn()
    lines = a.lines[n0_:]
    tags = a.vm[len(vm0):]
    del a.lines[n0_:]
    a.vm = vm0
    items = []
    cur = []
    depth = 0
    ti = 0
    for ln in lines:
        cur.append(ln)
        if "s_cbranch" in ln or "s_mov_b64 exec, " in ln and "-1" not in ln or "s_cmp" in ln or "s_getpc" in ln or "s_sub_u32" in ln and "KNAME" in ln:
            depth = 1
        if ln.endswith(":") and not ln.startswith(" ") and "L_pc" not in ln or "s_mov_b64 exec, -1" in ln and not any("s_cbranch" in x for x in cur) or "s_cselect" in ln or "s_subb_u32" in ln:
            depth = 0
        if depth == 0 and len(cur) >= chunk:
            items.append(cur)
            cur = []
    if cur:
        items.append(cur)
    out = []
    for it in items:
        guarded = any("s_cbranch" in x for x in it)
        nv = 0 if guarded else sum(1 for x in it if x.strip().startswith(("buffer_", "global_")))
        tg = tags[ti:ti + nv]
        ti += nv

        def emit(it=it, tg=tg):
            a.lines.extend(it)
            a.vm.extend(tg)
        out.append(emit)
    rest = tags[ti:]
    assert all(t.startswith("#") for t in rest), (ti, tags)
    if rest:
        out.append(lambda rest=rest: a.vm.extend(rest))
    return out


def srd(a, d, lo, hi, nbytes, bias=0):
    if bias:
        a.e(f"s_sub_u32 s{d}, s{lo}, {bias}")
        a.e(f"s_subb_u32 s{d + 1}, s{hi}, 0")
        a.e(f"s_and_b32 s{d + 1}, s{d + 1}, 0xffff")
    else:
        a.e(f"s_mov_b32 s{d}, s{lo}")
        a.e(f"s_and_b32 s{d + 1}, s{hi}, 0xffff")
    a.e(f"s_mov_b32 s{d + 2}, {nbytes + bias}")
    a.e(f"s_mov_b32 s{d + 3}, 0x20000")


K1_BSLOT = 13312
K1_AREA = 3328
K1_ABASE = 4 * K1_BSLOT
K1_LDS = K1_ABASE + 4 * 16384
ACC0 = 48


def acc(t, mt):
    return ACC0 + 16 * t + 4 * mt


V_LANE = 1
V_ARD = 2
V_QRD = 4
V_HRD = 8
V_ADMA = 9
V_BDMA = 13
V_L16 = 17
V_T = 18
S_X, S_Q, S_W1, S_WS, S_MISC = 4, 8, 12, 16, 20
S_WAVE, S_RB, S_P = 24, 25, 26
S_OFFA, S_OFFA2, S_OFFQ, S_OFFH = 27, 28, 29, 30
S_M0B, S_M0A = 31, 32
S_CNT = 33
S_QM = 34
S_PTR = 36
S_L2E = 58
S_T = 60
S_AFB = 72
S_GROW = 73
S_PO1, S_PO2 = 74, 3
S_PT, S_PTE = 100, 101
S_PF1, S_PF2 = 96, 20


def bset(s, t):
    return 52 * s + 4 * t


ASET = {"X": 104, "Y": 120, "Z": 136}


def k1_body(a, typ):
    T = "A" if typ == 0 else "B"
    nq = 8 if typ == 0 else 4
    nh = 13 - nq
    Ph = 2 * nh
    HB = 256 * nq
    e = a.e
    vi, vG, t0, t1, t2, t3 = V_T, V_T + 1, V_T + 2, V_T + 3, V_T + 4, V_T + 5
    e(f"v_and_b32 v{vi}, 15, v{V_LANE}")
    e(f"v_lshrrev_b32 v{vG}, 4, v{V_LANE}")
    e(f"s_mul_i32 s{S_T + 2}, s{S_P}, 448")
    if typ:
        e(f"s_add_u32 s{S_T + 2}, s{S_T + 2}, 160")

    e(f"s_lshr_b32 s{S_T + 8}, s{S_WAVE}, 1")
    e(f"s_lshl_b32 s{S_T + 8}, s{S_T + 8}, 4")
    e(f"s_and_b32 s{S_T + 9}, s{S_WAVE}, 1")
    e(f"s_lshl_b32 s{S_T + 9}, s{S_T + 9}, 2")
    e(f"s_add_u32 s{S_T + 8}, s{S_T + 8}, s{S_T + 9}")

    def krow(dst, kp, tmp):
        e(f"v_lshrrev_b32 v{tmp}, 2, v{kp}")
        e(f"v_lshlrev_b32 v{tmp}, 3, v{tmp}")
        e(f"v_and_b32 v{dst}, 3, v{kp}")
        e(f"v_add3_u32 v{dst}, v{dst}, v{tmp}, s{S_T + 8}")

    e(f"v_lshrrev_b32 v{t0}, 3, v{V_LANE}")
    krow(t1, t0, t2)
    e(f"v_mul_u32_u24 v{t1}, 6144, v{t1}")
    e(f"v_lshrrev_b32 v{t2}, 1, v{t0}")
    e(f"v_and_b32 v{t2}, 3, v{t2}")
    e(f"v_lshlrev_b32 v{t2}, 1, v{t2}")
    e(f"v_and_b32 v{t3}, 7, v{V_LANE}")
    e(f"v_xor_b32 v{t3}, v{t3}, v{t2}")
    e(f"v_lshlrev_b32 v{t3}, 4, v{t3}")
    e(f"v_add_u32 v{t1}, v{t1}, v{t3}")
    e(f"s_lshl_b32 s{S_T + 9}, s{S_P}, 7")
    e(f"s_add_u32 s{S_T + 9}, s{S_T + 9}, {4096 + (2048 if typ == 0 else 0)}")
    e(f"v_add_u32 v{V_BDMA}, s{S_T + 9}, v{t1}")
    if typ == 0:
        e(f"v_add_u32 v{V_BDMA + 1}, {2048 - 1024}, v{V_BDMA}")
    hins = [(2, 0), (3, 64)] if typ == 0 else [(1, 0), (2, 64), (3, 128)]
    magic, sh = (205, 11) if Ph == 10 else (57, 10)
    for s_ in range(8 * Ph + 64):
        if s_ < 8 * Ph:
            assert (s_ * magic) >> sh == s_ // Ph
    for slot, s0 in hins:
        e(f"v_add_u32 v{t0}, {s0}, v{V_LANE}")
        e(f"v_mul_u32_u24 v{t1}, {magic}, v{t0}")
        e(f"v_lshrrev_b32 v{t1}, {sh}, v{t1}")
        e(f"v_mul_u32_u24 v{t2}, {Ph}, v{t1}")
        e(f"v_sub_u32 v{t0}, v{t0}, v{t2}")
        e(f"v_and_b32 v{t1}, 7, v{t1}")
        krow(t2, t1, t3)
        e(f"v_mul_u32_u24 v{t2}, 7168, v{t2}")
        e(f"v_lshlrev_b32 v{t0}, 4, v{t0}")
        e(f"v_add3_u32 v{t0}, v{t0}, v{t2}, s{S_T + 2}")
        e(f"v_add_u32 v{V_BDMA + slot}, {4096 - 1024 * slot}, v{t0}")
    e(f"s_lshl_b32 s{S_T + 9}, s{S_RB}, 8")
    e(f"s_lshl_b32 s{S_T + 10}, s{S_WAVE}, 6")
    e(f"s_add_u32 s{S_T + 9}, s{S_T + 9}, s{S_T + 10}")
    e(f"s_lshl_b32 s{S_T + 9}, s{S_T + 9}, 11")
    e(f"v_lshrrev_b32 v{t0}, 3, v{V_LANE}")
    e(f"v_lshrrev_b32 v{t1}, 1, v{t0}")
    e(f"v_and_b32 v{t2}, 7, v{V_LANE}")
    e(f"v_xor_b32 v{t2}, v{t2}, v{t1}")
    e(f"v_lshlrev_b32 v{t0}, 11, v{t0}")
    e(f"v_add_u32 v{t0}, s{S_T + 9}, v{t0}")
    for j in range(4):
        if j & 1:
            e(f"v_xor_b32 v{t3}, 4, v{t2}")
            e(f"v_lshlrev_b32 v{t3}, 4, v{t3}")
        else:
            e(f"v_lshlrev_b32 v{t3}, 4, v{t2}")
        e(f"v_add_u32 v{t3}, v{t3}, v{t0}")
        e(f"v_add_u32 v{V_ADMA + j}, {j * (16384 - 1024)}, v{t3}")
    e(f"s_mul_i32 s{S_M0B}, s{S_WAVE}, {K1_AREA}")
    e(f"s_lshl_b32 s{S_M0A}, s{S_WAVE}, 14")
    e(f"s_add_u32 s{S_M0A}, s{S_M0A}, {K1_ABASE}")
    e(f"s_mov_b32 s{S_OFFA}, 0")
    e(f"s_mov_b32 s{S_OFFA2}, 65536")
    e(f"s_mov_b32 s{S_OFFQ}, 0")
    e(f"s_mov_b32 s{S_OFFH}, 0")
    e(f"s_mov_b32 s{S_QM}, 0xffff")
    e(f"s_mov_b32 s{S_QM + 1}, 0")

    def dmaB(tt):
        slot = tt % 4
        tag = f"B{tt}"
        f = []
        srcs = [(S_Q, S_OFFQ), (S_Q, S_OFFQ) if typ == 0 else (S_W1, S_OFFH), (S_W1, S_OFFH)]
        f.append(lambda: e(f"s_add_u32 m0, s{S_M0B}, {slot * K1_BSLOT}"))
        for j in range(3):
            sr, so = srcs[j]
            f.append(lambda j=j, sr=sr, so=so: a.vmem(
                f"buffer_load_dwordx4 v{V_BDMA + j}, s[{sr}:{sr + 3}], s{so} offen offset:{1024 * j} {OPT['k1b']} lds", tag))

        def q():
            e(f"s_mov_b64 exec, s[{S_QM}:{S_QM + 1}]")
            a.vmem(f"buffer_load_dwordx4 v{V_BDMA + 3}, s[{S_W1}:{S_W1 + 3}], s{S_OFFH} offen offset:3072 {OPT['k1b']} lds", tag)
            e("s_mov_b64 exec, -1")
        f.append(q)
        f.append(lambda: e(f"s_add_u32 s{S_OFFQ}, s{S_OFFQ}, {32 * 6144}"))
        f.append(lambda: e(f"s_add_u32 s{S_OFFH}, s{S_OFFH}, {32 * 7168}"))
        return f

    def dmaA(aa):
        slot = aa % 2
        tag = f"A{aa}"
        f = []
        for half in range(2):
            so = S_OFFA if half == 0 else S_OFFA2
            f.append(lambda half=half: e(f"s_add_u32 m0, s{S_M0A}, {slot * 8192 + half * 4096}"))
            for j in range(4):
                f.append(lambda j=j, so=so: a.vmem(
                    f"buffer_load_dwordx4 v{V_ADMA + j}, s[{S_X}:{S_X + 3}], s{so} offen offset:{1024 * j} {OPT['k1a']} lds", tag))
        f.append(lambda: e(f"s_add_u32 s{S_OFFA}, s{S_OFFA}, 128"))
        f.append(lambda: e(f"s_add_u32 s{S_OFFA2}, s{S_OFFA2}, 128"))
        return f

    def run_seq(fl):
        for fn in fl:
            n0 = len(a.lines)
            fn()
            if " m0," in a.lines[-1] and len(a.lines) == n0 + 1:
                e("s_nop 0")

    e("s_waitcnt lgkmcnt(0)")
    srd(a, S_Q, S_PTR + 2, S_PTR + 3, 1024 * 3072 * 2, bias=4096)
    srd(a, S_W1, S_PTR + 8, S_PTR + 9, 1024 * 3584 * 2, bias=4096)
    srd(a, S_X, S_PTR + 0, S_PTR + 1, 2048 * 1024 * 2)
    if not OPT.get('spin'):
        stamp(a, 0)
    run_seq(dmaB(0))
    run_seq(dmaA(0))
    srd(a, S_T + 4, S_PTR + 10, S_PTR + 11, 7168)
    e(f"v_lshlrev_b32 v{t1}, 3, v{vG}")
    for j in range(nh):
        a.vmem(f"buffer_load_dwordx2 {vr(acc(nq + j, 3), 2)}, v{t1}, s[{S_T + 4}:{S_T + 7}], s{S_T + 2} offen offset:{32 * j}", "bias")
    run_seq(dmaB(1))
    if not OPT.get('ramp'):
        run_seq(dmaB(2))
        run_seq(dmaA(1))
        run_seq(dmaB(3))
    e(f"v_lshrrev_b32 v{t0}, 3, v{vi}")
    e(f"v_lshlrev_b32 v{t0}, 6, v{t0}")
    e(f"v_and_b32 v{t1}, 7, v{vi}")
    e(f"v_lshlrev_b32 v{t1}, 3, v{t1}")
    e(f"v_add_u32 v{t0}, v{t0}, v{t1}")
    e(f"v_lshrrev_b32 v{t1}, 1, v{vi}")
    e(f"v_xor_b32 v{t1}, v{t1}, v{vG}")
    e(f"v_add_u32 v{t2}, v{t0}, v{t1}")
    e(f"v_lshlrev_b32 v{t2}, 4, v{t2}")
    e(f"v_add_u32 v{V_ARD}, s{S_M0A}, v{t2}")
    e(f"v_xor_b32 v{t1}, 4, v{t1}")
    e(f"v_add_u32 v{t2}, v{t0}, v{t1}")
    e(f"v_lshlrev_b32 v{t2}, 4, v{t2}")
    e(f"v_add_u32 v{V_ARD + 1}, s{S_M0A}, v{t2}")
    e(f"v_and_b32 v{t0}, 1, v{vG}")
    e(f"v_lshlrev_b32 v{t0}, 2, v{t0}")
    e(f"v_lshrrev_b32 v{t1}, 2, v{vi}")
    e(f"v_add_u32 v{t0}, v{t0}, v{t1}")
    e(f"v_lshrrev_b32 v{t1}, 1, v{vG}")
    e(f"v_mul_u32_u24 v{t1}, {2 * K1_AREA}, v{t1}")
    e(f"v_and_b32 v{t2}, 3, v{vi}")
    e(f"v_lshlrev_b32 v{t2}, 3, v{t2}")
    e(f"v_add_u32 v{t1}, v{t1}, v{t2}")
    e(f"v_mul_u32_u24 v{t3}, {16 * Ph}, v{t0}")
    e(f"v_add3_u32 v{V_HRD}, v{t1}, v{t3}, {0}")
    e(f"v_add_u32 v{V_HRD}, {HB}, v{V_HRD}")
    e(f"v_lshlrev_b32 v{t3}, 7, v{t0}")
    e(f"v_add_u32 v{t1}, v{t1}, v{t3}")
    e(f"v_lshrrev_b32 v{t2}, 1, v{t0}")
    e(f"v_and_b32 v{t2}, 3, v{t2}")
    for t in range(4):
        e(f"v_xor_b32 v{t3}, {t}, v{t2}")
        e(f"v_lshlrev_b32 v{t3}, 5, v{t3}")
        e(f"v_add_u32 v{V_QRD + t}, v{t1}, v{t3}")
    e(f"v_lshlrev_b32 v{V_L16}, 4, v{V_LANE}")

    gw, gx0, gx1 = V_T, V_T + 8, V_T + 16
    gt = V_T + 24
    nb = {0: 1, 1: 7, 2: 1, 3: 2, 4: 3}[OPT['pf']]
    PL1, PL2 = -(-56 // nb), -(-16 // nb)

    def misc_setup():
        srd(a, S_WS, S_PTR + 20, S_PTR + 21, WS_USED)
        tile_decode(a, S_T + 4, S_T + 5, S_T + 6, S_T + 7, S_T)
        e(f"s_lshl_b32 s{S_T}, s{S_RB}, 1")
        e(f"s_lshr_b32 s{S_T + 1}, s{S_WAVE}, 1")
        e(f"s_add_u32 s{S_T}, s{S_T}, s{S_T + 1}")
        e(f"s_lshl_b32 s{S_T}, s{S_T}, 5")
        e(f"s_lshl_b32 s{S_T + 1}, s{S_P}, 1")
        e(f"s_add_u32 s{S_T}, s{S_T}, s{S_T + 1}")
        if typ:
            e(f"s_add_u32 s{S_T}, s{S_T}, 1")
        e(f"s_lshl_b32 s{S_T}, s{S_T}, 1")
        e(f"s_and_b32 s{S_T + 1}, s{S_WAVE}, 1")
        e(f"s_add_u32 s{S_T}, s{S_T}, s{S_T + 1}")
        e(f"s_lshl_b32 s{S_T}, s{S_T}, 3")
        e(f"s_add_u32 s{S_T}, s{S_T}, {FA_OFF}")
        e(f"v_writelane_b32 v0, s{S_T}, 4")
        e(f"s_lshl_b32 s{S_T}, s{S_RB}, 1")
        e(f"s_lshr_b32 s{S_T + 3}, s{S_WAVE}, 1")
        e(f"s_add_u32 s{S_T}, s{S_T}, s{S_T + 3}")
        e(f"s_lshl_b32 s{S_T}, s{S_T}, 5")
        e(f"s_add_u32 s{S_T}, s{S_T}, s{S_P}")
        e(f"s_lshl_b32 s{S_T}, s{S_T}, 1")
        e(f"s_add_u32 s{S_T}, s{S_T}, s{S_T + 1}")
        e(f"s_lshl_b32 s{S_T}, s{S_T}, 3")
        e(f"s_add_u32 s{S_T}, s{S_T}, {FE_OFF + 256 * typ}")
        e(f"v_writelane_b32 v0, s{S_T}, 0")
        e(f"s_lshl_b32 s{S_T}, s{S_P}, 4")
        e(f"s_add_u32 s{S_T}, s{S_T}, s{S_RB}")
        e(f"s_lshl_b32 s{S_T}, s{S_T}, 2")
        e(f"s_add_u32 s{S_T}, s{S_T}, s{S_WAVE}")
        e(f"s_lshl_b32 s{S_T}, s{S_T}, 3")
        e(f"s_add_u32 s{S_T}, s{S_T}, {FQ_OFF + 256 * typ}")
        e(f"v_writelane_b32 v0, s{S_T}, 1")
        e(f"s_lshr_b32 s{S_T}, s2, 5")
        e(f"s_lshl_b32 s{S_T}, s{S_T}, 1")
        e(f"s_lshr_b32 s{S_T + 1}, s{S_WAVE}, 1")
        e(f"s_add_u32 s{S_T}, s{S_T}, s{S_T + 1}")
        e(f"s_lshl_b32 s{S_T}, s{S_T}, 9")
        e(f"s_and_b32 s{S_T + 1}, s2, 31")
        e(f"s_lshl_b32 s{S_T + 1}, s{S_T + 1}, 4")
        e(f"s_add_u32 s{S_T}, s{S_T}, s{S_T + 1}")
        e(f"s_and_b32 s{S_T + 1}, s{S_WAVE}, 1")
        e(f"s_lshl_b32 s{S_T + 1}, s{S_T + 1}, 3")
        e(f"s_add_u32 s{S_T}, s{S_T}, s{S_T + 1}")
        e(f"s_add_u32 s{S_T}, s{S_T}, {FO_OFF}")
        e(f"s_lshl_b32 s{S_T + 1}, s{S_T + 7}, 8")
        e(f"s_lshl_b32 s{S_T + 3}, s{S_WAVE}, 3")
        e(f"s_add_u32 s{S_T + 1}, s{S_T + 1}, s{S_T + 3}")
        e(f"s_add_u32 s{S_T + 1}, s{S_T + 1}, {FP_OFF}")
        e(f"s_cmp_eq_u32 s{S_T + 6}, 0")
        e(f"s_cselect_b32 s{S_T + 1}, s{S_T + 1}, 0x7ffffff0")
        e(f"v_writelane_b32 v0, s{S_T}, 2")
        e(f"v_writelane_b32 v0, s{S_T + 1}, 3")
        e(f"s_mul_i32 s{S_T}, s2, 171")
        e(f"s_lshr_b32 s{S_T}, s{S_T}, 10")
        e(f"s_lshl_b32 s{S_T}, s{S_T}, 1")
        e(f"s_add_u32 s{S_T}, s{S_T}, s2")
        e(f"s_lshl_b32 s{S_T}, s{S_T}, 3")
        e(f"s_add_u32 s{S_T}, s{S_T}, {FK_OFF}")
        e(f"v_writelane_b32 v0, s{S_T}, 5")

    def misc_setup2():
        if typ == 0:
            e(f"s_or_b32 s{S_T}, s2, s{S_WAVE}")
            e(f"s_cmp_lg_u32 s{S_T}, 0")
            e(f"s_cbranch_scc1 L_notok")
            e(f"s_memrealtime s[{S_T + 8}:{S_T + 9}]")
            srd(a, S_T + 4, S_PTR + 18, S_PTR + 19, 256)
            e("s_waitcnt lgkmcnt(0)")
            e(f"s_or_b32 s{S_T + 9}, s{S_T + 9}, 0x40000000")
            e(f"s_lshl_b32 s{S_T + 9}, s{S_T + 9}, 1")
            e(f"s_and_b32 s{S_T}, s{S_T + 8}, 1")
            e(f"s_or_b32 s{S_T + 9}, s{S_T + 9}, s{S_T}")
            e(f"s_or_b32 s{S_T + 8}, s{S_T + 8}, 1")
            e(f"v_mov_b32 v{V_T + 28}, s{S_T + 8}")
            e(f"v_mov_b32 v{V_T + 29}, s{S_T + 9}")
            e(f"v_mov_b32 v{V_T + 27}, 0")
            e("s_mov_b64 exec, 1")
            e(f"buffer_store_dwordx2 v[{V_T + 28}:{V_T + 29}], v{V_T + 27}, s[{S_T + 4}:{S_T + 7}], 0 offen sc1")
            e("s_mov_b64 exec, -1")
            e("s_nop 1")
            a.label("L_notok")
        if OPT.get('cpf'):
            e(f"s_getpc_b64 s[{S_T + 4}:{S_T + 5}]")
            a.label(f"L_pc_{T}")
            e(f"s_sub_u32 s{S_T + 4}, s{S_T + 4}, L_pc_{T}-KNAME")
            e(f"s_subb_u32 s{S_T + 5}, s{S_T + 5}, 0")
            e(f"s_lshr_b32 s{S_T}, s2, 3")
            e(f"s_and_b32 s{S_T}, s{S_T}, 3")
            e(f"s_lshl_b32 s{S_T}, s{S_T}, 2")
            e(f"s_add_u32 s{S_T}, s{S_T}, s{S_WAVE}")
            e(f"s_lshl_b32 s{S_T}, s{S_T}, 13")
            e(f"v_lshlrev_b32 v{V_T + 29}, 7, v{V_LANE}")
            e(f"v_add_u32 v{V_T + 29}, s{S_T}, v{V_T + 29}")
            e(f"v_min_u32 v{V_T + 29}, L_code_end-KNAME-4, v{V_T + 29}")
            a.vmem(f"global_load_dword v{V_T + 29}, v{V_T + 29}, s[{S_T + 4}:{S_T + 5}]", "pf")
        if OPT.get('xpf') == 1:
            e(f"v_and_b32 v{V_T + 28}, 31, v{V_LANE}")
            e(f"v_lshlrev_b32 v{V_T + 28}, 7, v{V_T + 28}")
            e(f"s_lshl_b32 s{S_T}, s2, 2")
            e(f"s_add_u32 s{S_T}, s{S_T}, s{S_WAVE}")
            e(f"s_lshl_b32 s{S_T}, s{S_T}, 12")
            a.vmem(f"buffer_load_dword v{V_T + 28}, v{V_T + 28}, s[{S_X}:{S_X + 3}], s{S_T} offen", "pf")
        if OPT.get('xpf') == 2:
            e(f"v_lshlrev_b32 v{V_T + 27}, 7, v{V_LANE}")
            e(f"s_lshr_b32 s{S_T}, s2, 5")
            e(f"s_lshl_b32 s{S_T}, s{S_T}, 2")
            e(f"s_add_u32 s{S_T}, s{S_T}, s{S_WAVE}")
            e(f"s_lshl_b32 s{S_T}, s{S_T}, 14")
            e(f"s_lshl_b32 s{S_T + 1}, s{S_RB}, 19")
            e(f"s_add_u32 s{S_T}, s{S_T}, s{S_T + 1}")
            a.vmem(f"buffer_load_dword v{V_T + 28}, v{V_T + 27}, s[{S_X}:{S_X + 3}], s{S_T} offen", "pf")
            e(f"s_add_u32 s{S_T}, s{S_T}, 8192")
            a.vmem(f"buffer_load_dword v{V_T + 28}, v{V_T + 27}, s[{S_X}:{S_X + 3}], s{S_T} offen", "pf")

        e(f"v_lshlrev_b32 v{gt}, 5, v{V_LANE}")
        e(f"s_lshl_b32 s{S_GROW}, s{S_RB}, 8")
        e(f"s_lshl_b32 s{S_T + 1}, s{S_WAVE}, 6")
        e(f"s_add_u32 s{S_GROW}, s{S_GROW}, s{S_T + 1}")
        e(f"s_lshl_b32 s{S_T + 1}, s{S_P}, 2")
        e(f"s_add_u32 s{S_GROW}, s{S_GROW}, s{S_T + 1}")
        if typ:
            e(f"s_add_u32 s{S_GROW}, s{S_GROW}, 2")
        e(f"s_lshl_b32 s{S_T + 1}, s{S_GROW}, 11")
        srd(a, S_MISC, S_PTR + 14, S_PTR + 15, 2048)
        a.vmem(f"buffer_load_dwordx4 {vr(gw)}, v{gt}, s[{S_MISC}:{S_MISC + 3}], 0 offen", "g")
        a.vmem(f"buffer_load_dwordx4 {vr(gw + 4)}, v{gt}, s[{S_MISC}:{S_MISC + 3}], 0 offen offset:16", "g")
        a.vmem(f"buffer_load_dwordx4 {vr(gx0)}, v{gt}, s[{S_X}:{S_X + 3}], s{S_T + 1} offen", "g")
        a.vmem(f"buffer_load_dwordx4 {vr(gx0 + 4)}, v{gt}, s[{S_X}:{S_X + 3}], s{S_T + 1} offen offset:16", "g")
        a.vmem(f"buffer_load_dwordx4 {vr(gx1)}, v{gt}, s[{S_X}:{S_X + 3}], s{S_T + 1} offen offset:2048", "g")
        a.vmem(f"buffer_load_dwordx4 {vr(gx1 + 4)}, v{gt}, s[{S_X}:{S_X + 3}], s{S_T + 1} offen offset:2064", "g")

        if OPT['pf']:
            srd(a, S_PF1, S_PTR + 12, S_PTR + 13, 3584 * 1024 * 2)
            srd(a, S_PF2, S_PTR + 4, S_PTR + 5, 1024 * 1024 * 2)
            e(f"v_min_u32 v{V_T + 26}, {PL1 - 1}, v{V_LANE}")
            e(f"v_lshlrev_b32 v{V_T + 26}, 7, v{V_T + 26}")
            e(f"v_min_u32 v{V_T + 27}, {PL2 - 1}, v{V_LANE}")
            e(f"v_lshlrev_b32 v{V_T + 27}, 7, v{V_T + 27}")
            e(f"s_lshl_b32 s{S_T}, s2, 2")
            e(f"s_add_u32 s{S_T}, s{S_T}, s{S_WAVE}")
            e(f"s_mul_i32 s{S_PO1}, s{S_T}, 7168")
            e(f"s_lshl_b32 s{S_PO2}, s{S_T}, 11")


    if OPT.get('pt'):
        e(f"s_lshl_b32 s{S_T}, s{S_RB}, 1")
        e(f"s_lshr_b32 s{S_T + 1}, s{S_WAVE}, 1")
        e(f"s_add_u32 s{S_T}, s{S_T}, s{S_T + 1}")
        e(f"s_mul_i32 s{S_AFB}, s{S_T}, {144 * 8192}")
        e(f"s_and_b32 s{S_T + 1}, s{S_WAVE}, 1")
        e(f"s_lshl_b32 s{S_T + 1}, s{S_T + 1}, 12")
        e(f"s_add_u32 s{S_AFB}, s{S_AFB}, s{S_T + 1}")
        e(f"s_mul_i32 s{S_PT}, s{S_P}, {7 * 8192}")
        e(f"s_add_u32 s{S_PT}, s{S_PT}, s{S_AFB}")
        if typ:
            e(f"s_add_u32 s{S_PT}, s{S_PT}, {2 * 8192}")
        e(f"s_add_u32 s{S_PTE}, s{S_PT}, {(4 if typ else 2) * 8192}")
        e(f"v_and_b32 v{V_T + 25}, 31, v{V_LANE}")
        e(f"v_lshlrev_b32 v{V_T + 25}, 7, v{V_T + 25}")
        if typ:
            e(f"v_lshrrev_b32 v{V_T + 29}, 5, v{V_LANE}")
            e(f"v_lshlrev_b32 v{V_T + 29}, 13, v{V_T + 29}")
            e(f"v_add_u32 v{V_T + 29}, v{V_T + 29}, v{V_T + 25}")
            e(f"s_mul_i32 s{S_T}, s{S_P}, {2 * 8192}")
            e(f"s_add_u32 s{S_T}, s{S_T}, {112 * 8192}")
            e(f"s_add_u32 s{S_T}, s{S_T}, s{S_AFB}")
            a.vmem(f"buffer_load_dword v{V_T + 28}, v{V_T + 29}, s[{S_WS}:{S_WS + 3}], s{S_T} offen", "pf")

    def pt_items():
        return [lambda: a.vmem(f"buffer_load_dword v{V_T + 28}, v{V_T + 25}, s[{S_WS}:{S_WS + 3}], s{S_PT} offen", "pf"),
                lambda: e(f"s_add_u32 s{S_PT}, s{S_PT}, 8192"),
                lambda: e(f"s_min_u32 s{S_PT}, s{S_PT}, s{S_PTE}")]

    def pf_items(cond=None):
        if cond is None:
            return [lambda: a.vmem(f"buffer_load_dword v{V_T + 28}, v{V_T + 26}, s[{S_PF1}:{S_PF1 + 3}], s{S_PO1} offen", "pf"),
                    lambda: a.vmem(f"buffer_load_dword v{V_T + 28}, v{V_T + 27}, s[{S_PF2}:{S_PF2 + 3}], s{S_PO2} offen", "pf"),
                    lambda: e(f"s_add_u32 s{S_PO1}, s{S_PO1}, {128 * PL1}"),
                    lambda: e(f"s_add_u32 s{S_PO2}, s{S_PO2}, {128 * PL2}")]

        def blk():
            e(f"s_lshl_b32 s{S_T}, 1, s{S_CNT}")
            e(f"s_and_b32 s{S_T}, s{S_T}, {cond}")
            e(f"s_cbranch_scc0 L_k1{T}_nopf")
            e(f"buffer_load_dword v{V_T + 28}, v{V_T + 26}, s[{S_PF1}:{S_PF1 + 3}], s{S_PO1} offen")
            e(f"buffer_load_dword v{V_T + 28}, v{V_T + 27}, s[{S_PF2}:{S_PF2 + 3}], s{S_PO2} offen")
            e(f"s_add_u32 s{S_PO1}, s{S_PO1}, {128 * PL1}")
            e(f"s_add_u32 s{S_PO2}, s{S_PO2}, {128 * PL2}")
            a.label(f"L_k1{T}_nopf")
        return [blk]

    def g_items():
        d0, d1 = V_T + 24, V_T + 25
        L = []
        L.append(f"v_dot2_f32_bf16 v{d0}, v{gx0}, v{gw}, 0")
        L.append(f"v_dot2_f32_bf16 v{d1}, v{gx1}, v{gw}, 0")
        for j in range(1, 8):
            L.append(f"v_dot2_f32_bf16 v{d0}, v{gx0 + j}, v{gw + j}, v{d0}")
            L.append(f"v_dot2_f32_bf16 v{d1}, v{gx1 + j}, v{gw + j}, v{d1}")
        L.append("s_nop 3")
        for sh_ in (1, 2, 4, 8):
            L.append(f"s_nop 0\nv_add_f32_dpp v{d0}, v{d0}, v{d0} row_shr:{sh_} row_mask:0xf bank_mask:0xf bound_ctrl:0")
            L.append(f"s_nop 0\nv_add_f32_dpp v{d1}, v{d1}, v{d1} row_shr:{sh_} row_mask:0xf bank_mask:0xf bound_ctrl:0")
        L.append(f"s_nop 0\nv_add_f32_dpp v{d0}, v{d0}, v{d0} row_bcast:15 row_mask:0xa bank_mask:0xf")
        L.append(f"s_nop 0\nv_add_f32_dpp v{d1}, v{d1}, v{d1} row_bcast:15 row_mask:0xa bank_mask:0xf")
        L.append(f"s_nop 0\nv_add_f32_dpp v{d0}, v{d0}, v{d0} row_bcast:31 row_mask:0xc bank_mask:0xf")
        L.append(f"s_nop 0\nv_add_f32_dpp v{d1}, v{d1}, v{d1} row_bcast:31 row_mask:0xc bank_mask:0xf")
        L.append(f"v_mul_f32 v{d0}, 0xbfb8aa3b, v{d0}")
        L.append(f"v_mul_f32 v{d1}, 0xbfb8aa3b, v{d1}")
        L.append(f"v_exp_f32 v{d0}, v{d0}")
        L.append(f"v_exp_f32 v{d1}, v{d1}\ns_nop 0")
        L.append(f"v_add_f32 v{d0}, 1.0, v{d0}")
        L.append(f"v_add_f32 v{d1}, 1.0, v{d1}")
        L.append(f"v_rcp_f32 v{d0}, v{d0}")
        L.append(f"v_rcp_f32 v{d1}, v{d1}")
        L.append(f"v_mov_b32 v{gw}, 0")
        L.append(f"s_lshl_b32 s{S_T + 1}, s{S_GROW}, 2\ns_add_u32 s{S_T + 1}, s{S_T + 1}, {G_OFF}")
        L.append(f"s_lshl_b32 s{S_T + 3}, s2, 8\ns_add_u32 s{S_T + 3}, s{S_T + 3}, {FLG_OFF}")
        L.append(f"s_mov_b32 s{S_T + 8}, 0\ns_mov_b32 s{S_T + 9}, 0x80000000")
        F = [(lambda x=x: e(x)) for x in L]

        def st():
            e(f"s_mov_b64 exec, s[{S_T + 8}:{S_T + 9}]")
            a.vmem(f"buffer_store_dwordx2 v[{d0}:{d1}], v{gw}, s[{S_WS}:{S_WS + 3}], s{S_T + 1} offen sc1", "sq")
            e("s_mov_b64 exec, -1")
        F.append(st)
        return F

    if OPT.get('m2', 9) == 9:
        misc_setup2()
    a.wait(["bias"])
    for j in range(nh):
        src = acc(nq + j, 3)
        d = acc(nq + j, 0)
        e(f"v_lshlrev_b32 v{d}, 16, v{src}")
        e(f"v_and_b32 v{d + 1}, 0xffff0000, v{src}")
        e(f"v_lshlrev_b32 v{d + 2}, 16, v{src + 1}")
        e(f"v_and_b32 v{d + 3}, 0xffff0000, v{src + 1}")
    for t in range(4):
        for r in range(4):
            e(f"v_mov_b32 v{acc(t, 0) + r}, {EPS_HEX}")

    def rdB(tt):
        slot = tt % 4
        s = tt % 2
        f = []
        for t in range(13):
            for ins in range(2):
                if t < nq:
                    addr = V_QRD + (t & 3)
                    off = slot * K1_BSLOT + ins * K1_AREA + 1024 * (t >> 2)
                else:
                    addr = V_HRD
                    off = slot * K1_BSLOT + ins * K1_AREA + 32 * (t - nq)
                d = bset(s, t) + 2 * ins
                f.append(lambda d=d, addr=addr, off=off: e(f"ds_read_b64_tr_b16 {ar(d, 2)}, v{addr} offset:{off}"))
        return f

    def aset_of(tt):
        if tt % 2 == 0:
            return ASET["X"]
        return ASET["Y"] if tt % 4 == 1 else ASET["Z"]

    def rdA(aa):
        slot = aa % 2
        f = []
        for hh in range(2):
            base = aset_of(2 * aa + hh)
            for mt in range(4):
                f.append(lambda hh=hh, mt=mt, base=base: e(
                    f"ds_read_b128 {ar(base + 4 * mt)}, v{V_ARD + hh} offset:{slot * 8192 + mt * 2048}"))
        return f

    stamp(a, 1)
    a.wait(["B0", "A0"])
    e("s_barrier")
    stamp(a, 2)
    for fn in rdA(0) + rdB(0):
        fn()
    if OPT.get('ramp'):
        run_seq(dmaA(1))
        run_seq(dmaB(2))
    a.wait(["B1"], lgkm=True)
    e("s_barrier")

    misc_items = capture(a, misc_setup)
    misc_items2 = capture(a, misc_setup2) if OPT.get('m2', 9) != 9 else []

    NSTEP = 32

    def step(tt):
        if DIAG and OPT.get('ts'):
            e("s_memrealtime s[76:77]")
            e("s_waitcnt lgkmcnt(0)")
            e("s_mov_b32 m0, s78")
            e("s_nop 0")
            e(f"v_writelane_b32 v{V_T + 29}, s76, m0")
            e("s_add_u32 s78, s78, 1")
        s = tt % 2
        ab = aset_of(tt)
        mf = []
        for t in range(13):
            order = [1, 2, 3, 0] if tt == 0 else [0, 1, 2, 3]
            for mt in order:
                D = vr(acc(t, mt))
                if tt == 0:
                    C = "0" if (typ == 0 and 4 <= t < 8) else vr(acc(t, 0))
                else:
                    C = D
                W = ar(bset(s, t))
                X = ar(ab + 4 * mt)
                if typ == 0 and t < 8:
                    mf.append(f"v_mfma_f32_16x16x32_bf16 {D}, {X}, {W}, {C}")
                else:
                    mf.append(f"v_mfma_f32_16x16x32_bf16 {D}, {W}, {X}, {C}")
        if OPT.get('fakechain') and tt > 0:
            import re
            m2 = []
            for i in range(0, 52, 2):
                x0, x1 = mf[i], mf[i + 1]
                pick = x0 if tt % 2 == 0 else x1
                D = re.match(r"v_mfma\S+ (v\[\d+:\d+\])", pick).group(1)
                for x in (x0, x1):
                    D0 = re.match(r"v_mfma\S+ (v\[\d+:\d+\])", x).group(1)
                    m2.append(x.replace(D0, D))
            mf = m2
        rd = []
        if tt + 1 < NSTEP:
            rd = rdB(tt + 1)
            if tt % 2 == 1:
                rd = rdA((tt + 1) // 2) + rd
        dm = []
        if tt == 0 and OPT.get('ramp'):
            dm += dmaB(3)
        if OPT.get('afirst', 1) and tt % 2 == 0 and tt // 2 + 2 < NSTEP // 2:
            dm += dmaA(tt // 2 + 2)
        if tt + 4 < NSTEP:
            dm += dmaB(tt + 4)
        if not OPT.get('afirst', 1) and tt % 2 == 0 and tt // 2 + 2 < NSTEP // 2:
            dm += dmaA(tt // 2 + 2)
        if OPT['pf'] == 1 and tt % 4 == 1 and tt < 28:
            dm += pf_items()
        if OPT['pf'] in (2, 3, 4) and tt == 28:
            dm += pf_items()
        if OPT['pf'] in (3, 4) and tt % 4 == 1 and 4 <= tt < 28:
            dm += pf_items({3: 1 << 4, 4: (1 << 5) | (1 << 3)}[OPT['pf']])
        if OPT.get('pt') and tt % 4 == 3 and tt < 28:
            dm += pt_items()
        if tt == OPT.get('m2', 9):
            dm += misc_items2
        if tt == 3:
            dm += misc_items
        fl = []
        i1 = i2 = 0
        n1, n2 = len(rd), len(dm)
        while i1 < n1 or i2 < n2:
            if i2 < n2 and (i1 >= n1 or i2 * n1 <= i1 * n2):
                fl.append(dm[i2]); i2 += 1
            else:
                fl.append(rd[i1]); i1 += 1
        if tt == NSTEP - 1:
            assert "g" not in a.vm
            fl = g_items()
        interleave(a, mf, fl, 0, 48)
        if tt + 1 < NSTEP:
            tags = []
            if tt + 2 < NSTEP:
                tags.append(f"B{tt + 2}")
            if tt % 2 == 0:
                tags.append(f"A{tt // 2 + 1}")
            a.wait(tags, lgkm=True)
            if tt + 2 < NSTEP:
                e("s_barrier")

    iters = []
    for it in range(8):
        n0 = len(a.lines)
        for tt in range(4 * it, 4 * it + 4):
            step(tt)
        iters.append(a.lines[n0:])
        del a.lines[n0:]
    for it in range(2, 7):
        assert iters[it] == iters[1], f"iteration {it} differs"
    stamp(a, 3)
    if DIAG and OPT.get('ts'):
        e("s_mov_b32 s78, 0")
    a.lines += iters[0]
    if not OPT.get('ts'):
        stamp(a, 4)
    e(f"s_mov_b32 s{S_CNT}, 6")
    a.label(f"L_k1{T}_loop")
    a.lines += iters[1]
    e(f"s_sub_u32 s{S_CNT}, s{S_CNT}, 1")
    e(f"s_cmp_lg_u32 s{S_CNT}, 0")
    e(f"s_cbranch_scc1 L_k1{T}_loop")
    a.lines += iters[7]
    assert all(not t.startswith(("A", "B")) for t in a.vm), a.vm

    stamp(a, 5)

    def fin():
        stamp(a, 6)
        stamp(a, 7)
        k = a.vm_count(["#eA"], drop=False)
        if DIAG:
            k += 16
        stamp_dump(a, 0, 8, S_WAVE, S_PTR + 20, S_PTR + 21, V_T)
        e(f"s_cmp_eq_u32 s{P_SEARLY}, 0")
        e("s_cbranch_scc1 L_p2_late")
        e(f"s_waitcnt vmcnt({k})")
        e("s_branch L_p2_go")

    def fe_load():
        a.vmem(f"buffer_load_dwordx2 v[{P_VFL}:{P_VFL + 1}], v{P_VFA}, s[{S_WS}:{S_WS + 3}], 0 offen sc1", "fe")

    def fe_check():
        a.wait(["fe"])
        e(f"v_cmp_eq_u64 vcc, v[{P_VFL}:{P_VFL + 1}], v[{V_TOK}:{V_TOK + 1}]")
        e(f"s_mov_b32 s{P_SEARLY}, 0")
        e("s_nop 0")
        e("s_cmp_eq_u64 vcc, -1")
        e(f"s_cbranch_scc0 L_k1{T}_noearly")
        p2_issueA(a)
        e(f"s_mov_b32 s{P_SEARLY}, 1")
        a.label(f"L_k1{T}_noearly")
        a.mark("eA")

    def setflag(lane):
        a.label(f"L_k1{T}_tw")
        e(f"v_readfirstlane_b32 s{S_T}, v{V_TOK + 1}")
        e(f"v_readfirstlane_b32 s{S_T + 1}, v{V_TOK}")
        e("s_nop 3")
        e(f"s_min_u32 s{S_T}, s{S_T}, s{S_T + 1}")
        e(f"s_cmp_lg_u32 s{S_T}, 0")
        e(f"s_cbranch_scc1 L_k1{T}_tok")
        e("s_sleep 4")
        e(f"buffer_load_dwordx2 v[{V_TOK}:{V_TOK + 1}], v12, s[{S_T + 4}:{S_T + 7}], 0 offen sc1")
        e("s_waitcnt vmcnt(0)")
        e(f"s_branch L_k1{T}_tw")
        a.label(f"L_k1{T}_tok")
        e(f"s_mov_b64 exec, {1 << lane}")
        a.vmem(f"buffer_store_dwordx2 v[{V_TOK}:{V_TOK + 1}], v0, s[{S_WS}:{S_WS + 3}], 0 offen sc1", "fl")
        e("s_mov_b64 exec, -1")
    e("s_barrier")
    e(f"s_mov_b32 s{S_L2E}, {L2E_HEX}")
    e(f"s_mov_b32 s{S_L2E + 1}, {L2E_HEX}")
    e(f"s_lshl_b32 s{S_T}, s{S_RB}, 1")
    e(f"s_lshr_b32 s{S_T + 1}, s{S_WAVE}, 1")
    e(f"s_add_u32 s{S_T}, s{S_T}, s{S_T + 1}")
    e(f"s_mul_i32 s{S_AFB}, s{S_T}, {144 * 8192}")
    e(f"s_and_b32 s{S_T + 1}, s{S_WAVE}, 1")
    e(f"s_lshl_b32 s{S_T + 1}, s{S_T + 1}, 12")
    e(f"s_add_u32 s{S_AFB}, s{S_AFB}, s{S_T + 1}")
    e("s_nop 7")
    TT, UU = V_T, V_T + 8

    def phi_group(ra, rb_):
        prs = [ra, ra + 2, rb_, rb_ + 2]
        for j, p in enumerate(prs):
            e(f"v_pk_mul_f32 {vr(TT + 2 * j, 2)}, {vr(p, 2)}, s[{S_L2E}:{S_L2E + 1}]")
        for j in range(8):
            e(f"v_exp_f32_e64 v{TT + j}, v{TT + j} clamp")
        for p in prs:
            e(f"v_max_f32 v{p}, {EPS_HEX}, v{p}")
            e(f"v_max_f32 v{p + 1}, {EPS_HEX}, v{p + 1}")
        for j, p in enumerate(prs):
            e(f"v_pk_add_f32 {vr(p, 2)}, {vr(p, 2)}, {vr(TT + 2 * j, 2)}")
        for j, p in enumerate(prs):
            e(f"v_cvt_pk_bf16_f32 v{ra + j}, v{p}, v{p + 1}")

    def cvt_group(ra, rb_):
        prs = [ra, ra + 2, rb_, rb_ + 2]
        for j, p in enumerate(prs):
            e(f"v_cvt_pk_bf16_f32 v{ra + j}, v{p}, v{p + 1}")

    def mish_group(ra, rb_, split=False, dst=None):
        prs = [ra, ra + 2, rb_, rb_ + 2]
        for j, p in enumerate(prs):
            e(f"v_pk_mul_f32 {vr(TT + 2 * j, 2)}, {vr(p, 2)}, s[{S_L2E}:{S_L2E + 1}]")
        for j in range(8):
            e(f"v_exp_f32 v{TT + j}, v{TT + j}")
        for j in range(4):
            e(f"v_pk_fma_f32 {vr(UU + 2 * j, 2)}, {vr(TT + 2 * j, 2)}, 0.5, 1.0 op_sel_hi:[1,0,0]")
        for j in range(4):
            e(f"v_pk_fma_f32 {vr(UU + 2 * j, 2)}, {vr(TT + 2 * j, 2)}, {vr(UU + 2 * j, 2)}, 1.0 op_sel_hi:[1,1,0]")
        for j in range(8):
            e(f"v_rcp_f32 v{UU + j}, v{UU + j}")
        for j, p in enumerate(prs):
            e(f"v_pk_fma_f32 {vr(p, 2)}, {vr(UU + 2 * j, 2)}, {vr(p, 2)}, {vr(p, 2)} neg_lo:[1,0,0] neg_hi:[1,0,0]")
        if split:
            e(f"v_cvt_pk_bf16_f32 v{ra}, v{ra}, v{ra + 1}")
            e(f"v_cvt_pk_bf16_f32 v{ra + 1}, v{ra + 2}, v{ra + 3}")
            e(f"v_cvt_pk_bf16_f32 v{rb_}, v{rb_}, v{rb_ + 1}")
            e(f"v_cvt_pk_bf16_f32 v{rb_ + 1}, v{rb_ + 2}, v{rb_ + 3}")
        else:
            dd = ra if dst is None else dst
            for j, p in enumerate(prs):
                e(f"v_cvt_pk_bf16_f32 v{dd + j}, v{p}, v{p + 1}")

    WS = f"s[{S_WS}:{S_WS + 3}]"

    def set_kb(sreg, mul, add):
        e(f"s_mul_i32 s{sreg}, s{S_P}, {mul * 8192}")
        e(f"s_add_u32 s{sreg}, s{sreg}, {add * 8192}")
        e(f"s_add_u32 s{sreg}, s{sreg}, s{S_AFB}")

    def h_late(tA, kbl, sreg, mid=None):
        set_kb(sreg, 7, kbl)
        for mt in range(4):
            mish_group(acc(tA, mt), acc(tA + 1, mt))
            if mt == 1 and mid:
                mid()

    def h_half_late(tA, half):
        set_kb(P_SL + 2, 7, 2)
        if half:
            e(f"s_add_u32 s{P_SL + 2}, s{P_SL + 2}, 512")
        for mp in range(2):
            mish_group(acc(tA, 2 * mp), acc(tA, 2 * mp + 1), dst=240 + 4 * mp)
        e("s_nop 1")
        for mp in range(2):
            e(f"v_permlane16_swap_b32 v{240 + 4 * mp}, v{242 + 4 * mp}")
            e(f"v_permlane16_swap_b32 v{241 + 4 * mp}, v{243 + 4 * mp}")

    def h_full(tA, kbl, tag='st'):
        set_kb(S_T + 2, 7, kbl)
        for mt in range(4):
            mish_group(acc(tA, mt), acc(tA + 1, mt))
            a.vmem(f"buffer_store_dwordx4 {vr(acc(tA, mt))}, v{V_L16}, {WS}, s{S_T + 2} offen offset:{1024 * mt} {OPT['st']}", tag)

    def h_half(tA, kbl, half):
        set_kb(S_T + 2, 7, kbl)
        for mp in range(2):
            mish_group(acc(tA, 2 * mp), acc(tA, 2 * mp + 1), split=True)
            for mt in (2 * mp, 2 * mp + 1):
                a.vmem(f"buffer_store_dwordx2 {vr(acc(tA, mt), 2)}, v{V_L16}, {WS}, s{S_T + 2} offen offset:{1024 * mt + 8 * half} {OPT['st']}", "st")

    if typ == 1:
        h_full(5, 3, "se")
        h_full(7, 4, "se")
        p2_early(a)
        for hd in range(2):
            set_kb(S_T + 2, 2, 112 + hd)
            for mt in range(4):
                phi_group(acc(2 * hd, mt), acc(2 * hd + 1, mt))
                a.vmem(f"buffer_store_dwordx4 {vr(acc(2 * hd, mt))}, v{V_L16}, {WS}, s{S_T + 2} offen offset:{1024 * mt} {OPT['st']}", "sq")
                if 4 * hd + mt == OPT.get('fepos', 4):
                    a.wait(["se", "zc"])
                    setflag(0)
        h_late(9, 5, P_SL, mid=fe_load)
        h_late(11, 6, P_SL + 1, mid=fe_check)
        h_half_late(4, 1)
        fin()
        return

    h_full(8, 0, "se")
    h_full(10, 1, "se")
    p2_early(a)
    ONES = V_T + 16
    for r in range(4):
        e(f"v_mov_b32 v{ONES + r}, 0x3f803f80")
    for t in range(4):
        for pr in range(2):
            phi_group(acc(t, 2 * pr), acc(t, 2 * pr + 1))
            if 2 * t + pr == OPT.get('fepos', 4):
                a.wait(["se", "zc"])
                setflag(0)
    for t in range(4, 8):
        for pr in range(2):
            cvt_group(acc(t, 2 * pr), acc(t, 2 * pr + 1))
    e("s_nop 1")
    free = [acc(t, m) for t in range(8) for m in (1, 3)]

    def Dt(tau):
        return free[tau]
    for pr in range(2):
        for hd in range(2):
            for dt in range(2):
                for et in range(3):
                    tau = hd * 6 + dt * 3 + et
                    Aop = vr(acc(2 * hd + dt, 2 * pr))
                    Bop = vr(acc(4 + 2 * hd + et, 2 * pr)) if et < 2 else vr(ONES)
                    C = "0" if pr == 0 else vr(Dt(tau))
                    e(f"v_mfma_f32_16x16x32_bf16 {vr(Dt(tau))}, {Aop}, {Bop}, {C}")
    vw, vrd = V_T + 20, V_T + 21
    e(f"s_mul_i32 s{S_T}, s{S_WAVE}, 12288")
    e(f"s_add_u32 s{S_T}, s{S_T}, 98304")
    e(f"v_add_u32 v{vw}, s{S_T}, v{V_L16}")
    e(f"s_mul_i32 s{S_T}, s{S_WAVE}, 3072")
    e(f"s_add_u32 s{S_T}, s{S_T}, 98304")
    e(f"v_add_u32 v{vrd}, s{S_T}, v{V_L16}")
    fe_load()
    e("s_nop 7")
    for tau in range(12):
        e(f"ds_write_b128 v{vw}, {vr(Dt(tau))} offset:{1024 * tau}")
    e(f"s_lshl_b32 s{S_T}, s{S_P}, 3")
    e(f"s_add_u32 s{S_T}, s{S_T}, s{S_RB}")
    e(f"s_mul_i32 s{S_T}, s{S_T}, 12288")
    e(f"s_mul_i32 s{S_T + 1}, s{S_WAVE}, 3072")
    e(f"s_add_u32 s{S_T}, s{S_T}, s{S_T + 1}")
    e(f"s_add_u32 s{S_T + 10}, s{S_T}, {KVP_OFF}")
    h_half_late(12, 0)
    e(f"s_mov_b32 s{P_SL}, 0x7ff00000")
    e(f"s_mov_b32 s{P_SL + 1}, 0x7ff00000")
    e("s_waitcnt lgkmcnt(0)")
    e("s_barrier")
    R = [acc(t, m) for t in range(8) for m in (0, 2)]
    for w2 in range(4):
        for j in range(3):
            e(f"ds_read_b128 {vr(R[3 * w2 + j])}, v{vrd} offset:{12288 * w2 + 1024 * j}")
    fe_check()
    e("s_waitcnt lgkmcnt(0)")
    for j in range(3):
        for h2 in range(2):
            b0 = R[j] + 2 * h2
            e(f"v_pk_add_f32 {vr(b0, 2)}, {vr(b0, 2)}, {vr(R[3 + j] + 2 * h2, 2)}")
            e(f"v_pk_add_f32 {vr(R[6 + j] + 2 * h2, 2)}, {vr(R[6 + j] + 2 * h2, 2)}, {vr(R[9 + j] + 2 * h2, 2)}")
        for h2 in range(2):
            b0 = R[j] + 2 * h2
            e(f"v_pk_add_f32 {vr(b0, 2)}, {vr(b0, 2)}, {vr(R[6 + j] + 2 * h2, 2)}")
        a.vmem(f"buffer_store_dwordx4 {vr(R[j])}, v{V_L16}, {WS}, s{S_T + 10} offen offset:{1024 * j} sc1", "sq")
    fin()


def gen_k1():
    a = Asm()
    e = a.e
    a.lines.append(".globl KNAME\n.p2align 8\n.type KNAME,@function\nKNAME:")
    if OPT.get('spin'):
        stamp(a, 0)
    e("s_cmp_ge_u32 s2, 256")
    e("s_cbranch_scc1 L_k1_exit")
    e(f"s_load_dwordx16 s[{S_PTR}:{S_PTR + 15}], s[0:1], 0")
    e(f"s_load_dwordx4 s[{S_PTR + 16}:{S_PTR + 19}], s[0:1], 64")
    e(f"s_load_dwordx2 s[{S_PTR + 20}:{S_PTR + 21}], s[0:1], 80")
    e(f"v_and_b32 v{V_LANE}, 63, v0")
    e(f"v_lshrrev_b32 v{V_T}, 6, v0")
    e(f"s_and_b32 s{S_T}, s2, 7")
    e(f"v_readfirstlane_b32 s{S_WAVE}, v{V_T}")
    e(f"s_lshr_b32 s{S_T + 1}, s2, 3")
    if OPT.get('map1', 0) == 0:
        e(f"s_and_b32 s{S_RB}, s{S_T}, 1")
        e(f"s_lshl_b32 s{S_RB}, s{S_RB}, 2")
        e(f"s_and_b32 s{S_T + 2}, s{S_T + 1}, 3")
        e(f"s_add_u32 s{S_RB}, s{S_RB}, s{S_T + 2}")
        e(f"s_lshr_b32 s{S_T}, s{S_T}, 1")
        e(f"s_lshl_b32 s{S_T}, s{S_T}, 3")
        e(f"s_lshr_b32 s{S_T + 1}, s{S_T + 1}, 2")
        e(f"s_add_u32 s{S_T}, s{S_T}, s{S_T + 1}")
    elif OPT['map1'] == 1:
        e(f"s_and_b32 s{S_RB}, s{S_T + 1}, 7")
        e(f"s_lshl_b32 s{S_T}, s{S_T}, 2")
        e(f"s_lshr_b32 s{S_T + 1}, s{S_T + 1}, 3")
        e(f"s_add_u32 s{S_T}, s{S_T}, s{S_T + 1}")
    else:
        e(f"s_and_b32 s{S_RB}, s{S_T}, 3")
        e(f"s_lshl_b32 s{S_RB}, s{S_RB}, 1")
        e(f"s_and_b32 s{S_T + 2}, s{S_T + 1}, 1")
        e(f"s_add_u32 s{S_RB}, s{S_RB}, s{S_T + 2}")
        e(f"s_lshr_b32 s{S_T}, s{S_T}, 2")
        e(f"s_lshl_b32 s{S_T}, s{S_T}, 4")
        e(f"s_lshr_b32 s{S_T + 1}, s{S_T + 1}, 1")
        e(f"s_add_u32 s{S_T}, s{S_T}, s{S_T + 1}")
    e(f"s_lshr_b32 s{S_P}, s{S_T}, 1")
    e(f"s_and_b32 s{S_T + 3}, s{S_T}, 1")
    e(f"s_cmp_lg_u32 s{S_T + 3}, 0")
    e("s_cbranch_scc1 L_k1_typeB")
    k1_body(a, 0)
    a.label("L_k1_typeB")
    a.vm = []
    k1_body(a, 1)
    a.vm = []
    phase2(a)
    a.label("L_k1_exit")
    e("s_endpgm")
    a.label("L_code_end")
    return a.lines


def K2_LDS():
    return OPT['S'] * 32768 + 24576


def fold_loops(a, iters, period, scnt, name):
    n = len(iters)
    i = 0
    lab = 0
    while i < n:
        reps = 1
        while i + (reps + 1) * period <= n and all(
                iters[i + k] == iters[i + reps * period + k] for k in range(period)):
            reps += 1
        if reps >= 2:
            a.e(f"s_mov_b32 s{scnt}, {reps}")
            a.label(f"L_{name}_{lab}")
            for k in range(period):
                a.lines += iters[i + k]
            a.e(f"s_sub_u32 s{scnt}, s{scnt}, 1")
            a.e(f"s_cmp_lg_u32 s{scnt}, 0")
            a.e(f"s_cbranch_scc1 L_{name}_{lab}")
            lab += 1
            i += reps * period
        else:
            a.lines += iters[i]
            i += 1


def schedule(a, mf, streams):
    n = len(mf)
    placed = []
    for si, (items, start, end) in enumerate(streams):
        m = len(items)
        prev = 0
        for j, it in enumerate(items):
            fn, early = it if isinstance(it, tuple) else (it, 0)
            pos = start + (j * (end - start)) / max(m, 1)
            pos = max(pos, early, prev)
            prev = pos
            placed.append((pos, si, j, fn))
    placed.sort(key=lambda x: (x[0], x[1], x[2]))
    k = 0
    if n == 0:
        for p in placed:
            p[3]()
        return
    for i in range(n):
        a.e(mf[i])
        while k < len(placed) and placed[k][0] < i + 1:
            placed[k][3]()
            k += 1
    while k < len(placed):
        placed[k][3]()
        k += 1


P_SW2, P_SWO, P_SWS, P_SOUT = 96, 20, 16, 4
P_SMT, P_SNT, P_SROLE, P_STILE = 8, 9, 10, 11
P_SOA, P_SOB, P_SOP, P_SM0A, P_SM0B = 12, 13, 14, 15, 27
P_SHD, P_SM2, P_SEARLY = 28, 29, 30
P_VBD = 2
P_SLOT = 32768


def tile_decode(a, smt, snt, srole, stile, st):
    e = a.e
    e(f"s_and_b32 s{st}, s2, 7")
    e(f"s_lshr_b32 s{st + 1}, s2, 3")
    e(f"s_and_b32 s{srole}, s{st}, 1")
    e(f"s_lshr_b32 s{st}, s{st}, 1")
    if OPT['map'] == 0:
        e(f"s_and_b32 s{smt}, s{st}, 1")
        e(f"s_lshl_b32 s{smt}, s{smt}, 3")
        e(f"s_and_b32 s{stile}, s{st + 1}, 7")
        e(f"s_add_u32 s{smt}, s{smt}, s{stile}")
        e(f"s_lshr_b32 s{snt}, s{st}, 1")
        e(f"s_lshl_b32 s{snt}, s{snt}, 2")
        e(f"s_lshr_b32 s{st + 1}, s{st + 1}, 3")
        e(f"s_add_u32 s{snt}, s{snt}, s{st + 1}")
    else:
        e(f"s_lshl_b32 s{smt}, s{st}, 2")
        e(f"s_and_b32 s{stile}, s{st + 1}, 3")
        e(f"s_add_u32 s{smt}, s{smt}, s{stile}")
        e(f"s_lshr_b32 s{snt}, s{st + 1}, 2")
    e(f"s_lshl_b32 s{stile}, s{smt}, 3")
    e(f"s_add_u32 s{stile}, s{stile}, s{snt}")


P_VAD, P_VFA, P_VFL = 8, 9, 10
P_SSA, P_SSB = 31, 32
P_SL = 4


def p2_setrun(a, first_expr, stride):
    e = a.e
    c0, c1 = first_expr
    e(f"s_lshr_b32 s{S_T + 11}, s{S_WAVE}, 1")
    e(f"s_mul_i32 s{S_T + 11}, s{S_T + 11}, {c1}")
    e(f"s_add_u32 s{S_T + 11}, s{S_T + 11}, {c0}")
    return S_T + 11


def p2_early(a):
    e = a.e
    S = OPT['S']
    ST = S_T
    tile_decode(a, P_SMT, P_SNT, P_SROLE, P_STILE, ST)
    vi, vG, t0, t1, t2 = 6, 7, 8, 9, 10
    e(f"v_and_b32 v{vi}, 15, v{V_LANE}")
    e(f"v_lshrrev_b32 v{vG}, 4, v{V_LANE}")
    e(f"s_lshl_b32 s{P_SM0A}, s{S_WAVE}, 12")
    e(f"s_add_u32 s{P_SM0B}, s{P_SM0A}, 16384")
    e(f"s_lshl_b32 s{ST}, s{P_SNT}, 8")
    e(f"s_and_b32 s{ST + 3}, s{S_WAVE}, 1")
    e(f"s_lshl_b32 s{ST + 1}, s{ST + 3}, 15")
    e(f"s_add_u32 s{ST}, s{ST}, s{ST + 1}")
    e(f"v_lshlrev_b32 v{t0}, 11, v{vG}")
    e(f"v_add_u32 v{t0}, s{ST}, v{t0}")
    e(f"v_lshlrev_b32 v{t1}, 1, v{vG}")
    e(f"v_xor_b32 v{t1}, v{t1}, v{vi}")
    for j in range(4):
        if j & 1:
            e(f"v_xor_b32 v{t2}, 8, v{t1}")
            e(f"v_lshlrev_b32 v{t2}, 4, v{t2}")
        else:
            e(f"v_lshlrev_b32 v{t2}, 4, v{t1}")
        e(f"v_add_u32 v{t2}, v{t2}, v{t0}")
        e(f"v_add_u32 v{P_VBD + j}, {j * (8192 - 1024)}, v{t2}")
    e(f"s_mul_i32 s{ST}, s{P_SROLE}, 3")
    e(f"s_lshr_b32 s{ST + 1}, s{S_WAVE}, 1")
    e(f"s_add_u32 s{ST}, s{ST}, s{ST + 1}")
    e(f"s_lshl_b32 s{P_SOB}, s{ST}, 16")
    e(f"s_mul_i32 s{P_SOA}, s{P_SMT}, 144")
    e(f"s_add_u32 s{P_SOA}, s{P_SOA}, s{ST}")
    e(f"s_lshl_b32 s{P_SOA}, s{P_SOA}, 13")
    e(f"s_mov_b32 s{P_SSA}, {7 * 8192}")
    e(f"s_mov_b32 s{P_SSB}, {7 * 65536}")
    srd(a, ST + 4, S_PTR + 18, S_PTR + 19, 256)
    e(f"v_mov_b32 v12, 0")
    a.vmem(f"buffer_load_dwordx2 v[{V_TOK}:{V_TOK + 1}], v12, s[{ST + 4}:{ST + 7}], 0 offen sc1", "zc")
    for j in range(S - 1):
        e(f"s_add_u32 m0, s{P_SM0B}, {j * P_SLOT}")
        e("s_nop 0")
        for i in range(4):
            a.vmem(f"buffer_load_dwordx4 v{P_VBD + i}, s[{P_SW2}:{P_SW2 + 3}], s{P_SOB} offen offset:{1024 * i} lds", "eB")
        e(f"s_add_u32 s{P_SOB}, s{P_SOB}, s{P_SSB}")
    e(f"s_lshl_b32 s{ST + 3}, s{ST + 3}, 12")
    e(f"v_add_u32 v{P_VAD}, s{ST + 3}, v{V_L16}")
    e(f"s_lshl_b32 s{ST}, s{P_SMT}, 1")
    e(f"s_add_u32 s{ST}, s{ST}, s{P_SROLE}")
    e(f"s_lshl_b32 s{ST}, s{ST}, 8")
    e(f"s_add_u32 s{ST}, s{ST}, {FE_OFF}")
    e(f"v_and_b32 v{P_VFA}, 31, v{V_LANE}")
    e(f"v_lshlrev_b32 v{P_VFA}, 3, v{P_VFA}")
    e(f"v_add_u32 v{P_VFA}, s{ST}, v{P_VFA}")


def p2_issueA(a):
    e = a.e
    for j in range(OPT['S'] - 1):
        e(f"s_add_u32 m0, s{P_SM0A}, {j * P_SLOT}")
        e("s_nop 0")
        for i in range(4):
            e(f"buffer_load_dwordx4 v{P_VAD}, s[{P_SWS}:{P_SWS + 3}], s{P_SOA} offen offset:{1024 * i} {OPT['k2a']} lds")
        e(f"s_add_u32 s{P_SOA}, s{P_SOA}, s{P_SSA}")


def phase2(a):
    e = a.e
    S = OPT['S']
    n0 = OPT['n0']
    SLOT = P_SLOT
    SCR = S * SLOT
    SWAVE = S_WAVE
    ST = S_T
    SCNT = S_CNT
    SMT, SNT, SROLE, STILE = P_SMT, P_SNT, P_SROLE, P_STILE
    SOA, SOB, SOP, SM0A, SM0B = P_SOA, P_SOB, P_SOP, P_SM0A, P_SM0B
    SW2, SWO, SOUT = P_SW2, P_SWO, P_SOUT
    WS = f"s[{P_SWS}:{P_SWS + 3}]"
    NBASE = (S + 1) // 2
    VL, VL16, VBD = V_LANE, V_L16, P_VBD
    vi, vG = 6, 7
    VZ = 11
    VAD = 8
    VFL = 10
    VFA = 9
    VAR = 12
    VBR = 18
    VT = 30
    VG = 38
    VOMG = 42
    VEPS = 46
    VEPS = 48
    CG = 52
    CR = 60
    CKV = 68
    CW = 80
    VX = 192
    VY = 84
    AC = 128
    t0, t1, t2, t3 = VT, VT + 1, VT + 2, VT + 3

    def acc2(mt, nt):
        return AC + 16 * mt + 4 * nt

    def FA(j, b, mt):
        return 64 * (j % 2) + 32 * b + 4 * mt

    def FB(j, b, nt):
        return 64 * (j % 2) + 32 * b + 16 + 4 * nt

    def setflag(*lanes):
        e(f"s_mov_b64 exec, {sum(1 << l for l in lanes)}")
        a.vmem(f"buffer_store_dwordx2 v[{V_TOK}:{V_TOK + 1}], v0, {WS}, 0 offen sc1", "fl")
        e("s_mov_b64 exec, -1")

    VQ = 120
    VH = 16

    def fq_load():
        a.vmem(f"buffer_load_dwordx2 v[{VQ}:{VQ + 1}], v{VQ + 2}, {WS}, 0 offen sc1", "fq")

    a.label("L_p2_late")
    e(f"buffer_load_dwordx2 v[{VFL}:{VFL + 1}], v{VFA}, {WS}, 0 offen sc1")
    e("s_waitcnt vmcnt(0)")
    e(f"v_cmp_eq_u64 vcc, v[{VFL}:{VFL + 1}], v[{V_TOK}:{V_TOK + 1}]")
    e("s_nop 1")
    e("s_cmp_eq_u64 vcc, -1")
    e("s_cbranch_scc1 L_p2_fok")
    e(f"s_sleep {OPT.get('slp', 4)}")
    e("s_branch L_p2_late")
    a.label("L_p2_fok")
    p2_issueA(a)
    e("s_waitcnt vmcnt(0)")
    a.label("L_p2_go")
    stamp(a, 0)
    a.vm = ["old"]
    e(f"s_and_b32 s{ST}, s{SWAVE}, 1")
    e(f"s_lshl_b32 s{ST}, s{ST}, 12")
    e(f"v_add_u32 v{VAR}, s{ST}, v{VL16}")
    for k in range(1, NBASE):
        e(f"v_add_u32 v{VAR + k}, {65536 * k}, v{VAR}")
    e(f"v_lshlrev_b32 v{t0}, 2, v{vG}")
    e(f"v_lshrrev_b32 v{t1}, 2, v{vi}")
    e(f"v_add_u32 v{t0}, v{t0}, v{t1}")
    e(f"v_and_b32 v{t1}, 7, v{t0}")
    e(f"s_lshr_b32 s{ST}, s{SWAVE}, 1")
    e(f"s_lshl_b32 s{ST}, s{ST}, 2")
    e(f"v_xor_b32 v{t1}, s{ST}, v{t1}")
    e(f"v_lshlrev_b32 v{t0}, 8, v{t0}")
    e(f"v_and_b32 v{t2}, 3, v{vi}")
    e(f"v_lshlrev_b32 v{t2}, 3, v{t2}")
    e(f"v_add_u32 v{t0}, v{t0}, v{t2}")
    e(f"v_add_u32 v{t0}, 16384, v{t0}")
    for nt in range(4):
        e(f"v_xor_b32 v{t3}, {nt}, v{t1}")
        e(f"v_lshlrev_b32 v{t3}, 5, v{t3}")
        e(f"v_add_u32 v{VBR + nt}, v{t0}, v{t3}")
        for k in range(1, NBASE):
            e(f"v_add_u32 v{VBR + 4 * k + nt}, {65536 * k}, v{VBR + nt}")
    e(f"v_and_b32 v{t0}, 1, v{vG}")
    e(f"v_lshlrev_b32 v{t0}, 10, v{t0}")
    e(f"v_lshrrev_b32 v{t1}, 1, v{vG}")
    e(f"v_lshlrev_b32 v{t1}, 8, v{t1}")
    e(f"v_lshlrev_b32 v{VH}, 4, v{vi}")
    e(f"v_add3_u32 v{VH}, v{VH}, v{t0}, v{t1}")
    stamp(a, 1)
    e(f"s_cmp_eq_u32 s{SROLE}, 0")
    e(f"s_cbranch_scc1 L_p2_r0")
    vm_save = list(a.vm)

    import math
    PERIOD = S * 4 // math.gcd(S, 4)

    def body(role):
        R = f"r{role}"
        o0 = OPT.get('o0', 5)
        na0 = n0 - o0
        assert 16 < na0 <= 32 and 5 <= o0 <= 11
        nact = na0 if role == 0 else 56 - na0
        N = nact + (o0 if role == 0 else 16 - o0)
        JO = nact - (S - 1)
        JP = N - OPT['pj']
        if role == 0:
            runs = {16: (5, 1, 7)}
        else:
            nl1 = 32 - na0
            runs = {16 + nl1: (2, 7, 14)}
            if nl1:
                runs[16] = (5 + 7 * (na0 - 16), 1, 7)

        def bperm(op):
            e(f"s_and_b32 s{ST + 9}, s{SWAVE}, 1")
            e(f"s_mul_i32 s{ST + 9}, s{ST + 9}, {-12 * 2048}")
            for j4 in range(4):
                e(f"{op} v{VBD + j4}, s{ST + 9}, v{VBD + j4}")
                if j4 < 3:
                    e(f"s_add_u32 s{ST + 9}, s{ST + 9}, {4 * 2048}")

        def newrun(j):
            if j == nact:
                def sw():
                    e(f"s_lshr_b32 s{ST + 11}, s{SWAVE}, 1")
                    if role:
                        e(f"s_add_u32 s{ST + 11}, s{ST + 11}, {2 * o0}")
                    e(f"s_lshl_b32 s{SOB}, s{ST + 11}, 16")
                    e(f"s_lshl_b32 s{SOA}, s{SMT}, 5")
                    e(f"s_add_u32 s{SOA}, s{SOA}, s{ST + 11}")
                    e(f"s_lshl_b32 s{SOA}, s{SOA}, 13")
                    e(f"s_add_u32 s{SOA}, s{SOA}, {OF_OFF}")
                    e(f"s_mov_b32 s{P_SSA}, 16384")
                    e(f"s_mov_b32 s{P_SSB}, 131072")
                    if role == 1:
                        bperm("v_subrev_u32")
                return [sw]
            if j in runs:
                c0, c1, st_ = runs[j]

                def sw():
                    r = p2_setrun(a, (c0, c1), st_)
                    e(f"s_lshl_b32 s{SOB}, s{r}, 16")
                    e(f"s_mul_i32 s{SOA}, s{SMT}, 144")
                    e(f"s_add_u32 s{SOA}, s{SOA}, s{r}")
                    e(f"s_lshl_b32 s{SOA}, s{SOA}, 13")
                    e(f"s_mov_b32 s{P_SSA}, {st_ * 8192}")
                    e(f"s_mov_b32 s{P_SSB}, {st_ * 65536}")
                    if st_ == 14:
                        bperm("v_add_u32")
                return [sw]
            return []

        def dmaA(j):
            f = newrun(j)
            f.append(lambda: e(f"s_add_u32 m0, s{SM0A}, {(j % S) * SLOT}"))
            for i in range(4):
                f.append(lambda i=i: a.vmem(
                    f"buffer_load_dwordx4 v{VAD}, {WS}, s{SOA} offen offset:{1024 * i} {OPT['k2a']} lds", f"D{j}"))
            f.append(lambda: e(f"s_add_u32 s{SOA}, s{SOA}, s{P_SSA}"))
            return f

        def dmaB(j):
            sr = SW2 if j < nact else SWO
            f = []
            f.append(lambda: e(f"s_add_u32 m0, s{SM0B}, {(j % S) * SLOT}"))
            for i in range(4):
                f.append(lambda i=i: a.vmem(
                    f"buffer_load_dwordx4 v{VBD + i}, s[{sr}:{sr + 3}], s{SOB} offen offset:{1024 * i} lds", f"D{j}"))
            f.append(lambda: e(f"s_add_u32 s{SOB}, s{SOB}, s{P_SSB}"))
            return f

        def reads(j):
            sl = j % S
            k, so = sl // 2, (sl % 2) * SLOT
            f = []
            for q in range(4):
                for b in range(2):
                    f.append(lambda b=b, q=q: e(
                        f"ds_read_b128 {ar(FA(j, b, q))}, v{VAR + k} offset:{so + 8192 * b + 1024 * q}"))
                    for ins in range(2):
                        f.append(lambda b=b, q=q, ins=ins: e(
                            f"ds_read_b64_tr_b16 {ar(FB(j, b, q) + 2 * ins, 2)}, v{VBR + 4 * k + q} offset:{so + 8192 * b + 4096 * ins}"))
            return f

        late = []
        for mp in range(2):
            late.append(f"buffer_store_dwordx4 {vr(240 + 4 * mp)}, v{VH}, {WS}, s{P_SL + 2} offen offset:{2048 * mp} sc1")
        for g_, base in enumerate((192, 224)):
            for mt in range(4):
                late.append(f"buffer_store_dwordx4 {vr(base + 4 * mt)}, v{VL16}, {WS}, s{P_SL + g_} offen offset:{1024 * mt} sc1")
        TR = OPT.get('tr', 3)
        NTR = -(-10 // TR)

        e("s_barrier")
        stamp(a, 2)
        VK = 48
        PD, PO, PEPS, PR = 48, 96, 112, 116

        def poll(lab, vv, reload):
            a.label(f"L_p2{R}_{lab}w")
            e(f"v_cmp_eq_u64 vcc, v[{vv}:{vv + 1}], v[{V_TOK}:{V_TOK + 1}]")
            e("s_nop 1")
            e("s_cmp_eq_u64 vcc, -1")
            e(f"s_cbranch_scc1 L_p2{R}_{lab}ok")
            e("s_sleep 4")
            sv = list(a.vm)
            reload()
            a.vm = sv
            e("s_waitcnt vmcnt(0)")
            e(f"s_branch L_p2{R}_{lab}w")
            a.label(f"L_p2{R}_{lab}ok")

        def fl_load(tag="F"):
            a.vmem(f"buffer_load_dwordx2 v[{VFL}:{VFL + 1}], v{VFA}, {WS}, 0 offen sc1", tag)

        def red_guard(lab):
            e(f"s_cmp_eq_u32 s{P_SEARLY}, 0")
            e(f"s_cbranch_scc1 L_p2{R}_{lab}")

        J1 = OPT.get('j1', 4)
        J2 = OPT.get('j2', 12)

        def pre(j):
            if j == 2:
                a.wait(["old"])
            if j == NTR + 3:
                a.wait(["sl"])
            if j == 16 - S + 1:
                a.wait(["FL"])
                poll("l", VFL, fl_load)
            if j == J2 + 2:
                a.wait(["fq"])
                poll("k", VQ, fq_load)
            if j == J2 + 4:
                a.wait(["pq"])
            if j == J2 + 8:
                a.wait(["ost"])
            if j == JO:
                a.wait(["F"])
                poll("o", VFL, fl_load)
            if role == 1 and j == JP:
                a.wait(["F2"])
                poll("p", VFL, fl_load)

        def extra(j):
            if j == 2:
                setflag(1)
            if j == J1:
                e(f"s_and_b32 s{ST}, s2, 3")
                e(f"s_cmp_eq_u32 s{ST}, s{SWAVE}")
                e(f"s_cselect_b32 s{P_SEARLY}, 1, 0")
                e(f"s_cmp_lt_u32 s2, 192")
                e(f"s_cselect_b32 s{P_SEARLY}, s{P_SEARLY}, 0")
                e(f"s_mul_i32 s{P_SHD}, s2, 171")
                e(f"s_lshr_b32 s{P_SHD}, s{P_SHD}, 10")
                e(f"s_min_u32 s{P_SHD}, s{P_SHD}, 31")
                e(f"s_lshr_b32 s{ST}, s{P_SHD}, 1")
                e(f"s_lshl_b32 s{ST}, s{ST}, 9")
                e(f"s_add_u32 s{ST}, s{ST}, {FQ_OFF}")
                e(f"v_and_b32 v{VQ + 2}, 31, v{VL}")
                e(f"v_lshlrev_b32 v{VQ + 2}, 3, v{VQ + 2}")
                e(f"v_add_u32 v{VQ + 2}, s{ST}, v{VQ + 2}")
                fq_load()
            if j == NTR + 3:
                setflag(4)
                srd(a, SOUT, S_PTR + 16, S_PTR + 17, 2048 * 1024 * 2)
            if j == 16 - S - 1:
                e(f"s_lshl_b32 s{ST}, s{SMT}, 9")
                e(f"s_add_u32 s{ST}, s{ST}, {FA_OFF}")
                e(f"v_lshlrev_b32 v{VFA}, 3, v{VL}")
                e(f"v_add_u32 v{VFA}, s{ST}, v{VFA}")
                fl_load("FL")
            if j == 16 - S + 2:
                e(f"v_lshlrev_b32 v{t1}, 2, v{vi}")
                e(f"s_lshl_b32 s{ST}, s{SMT}, 9")
                e(f"s_and_b32 s{ST + 1}, s{SWAVE}, 1")
                e(f"s_lshl_b32 s{ST + 1}, s{ST + 1}, 8")
                e(f"s_add_u32 s{ST}, s{ST}, s{ST + 1}")
                e(f"s_add_u32 s{ST}, s{ST}, {G_OFF}")
                for i in range(4):
                    a.vmem(f"buffer_load_dword v{VG + i}, v{t1}, {WS}, s{ST} offen offset:{64 * i}", "g")
            if j == J2:
                e(f"s_and_b32 s{P_SHD}, s2, 31")
                e(f"s_lshr_b32 s{P_SM2}, s2, 5")
                e(f"s_lshr_b32 s{ST}, s{P_SHD}, 1")
                e(f"s_lshl_b32 s{ST}, s{ST}, 4")
                e(f"s_add_u32 s{ST}, s{ST}, s{P_SM2}")
                e(f"s_lshl_b32 s{ST}, s{ST}, 2")
                e(f"s_add_u32 s{ST}, s{ST}, s{SWAVE}")
                e(f"s_lshl_b32 s{ST}, s{ST}, 3")
                e(f"s_add_u32 s{ST}, s{ST}, {FQ_OFF + 256}")
                e(f"s_lshl_b32 s{ST + 1}, s{P_SHD}, 6")
                e(f"s_add_u32 s{ST + 1}, s{ST + 1}, {FK_OFF}")
                e(f"v_lshlrev_b32 v{VQ + 2}, 3, v{VL}")
                e(f"v_add_u32 v{VQ + 2}, s{ST + 1}, v{VQ + 2}")
                e(f"v_mov_b32 v{t0}, s{ST}")
                e(f"v_cmp_gt_u32 s[{ST + 2}:{ST + 3}], 6, v{VL}")
                e("s_nop 1")
                e(f"v_cndmask_b32 v{VQ + 2}, v{t0}, v{VQ + 2}, s[{ST + 2}:{ST + 3}]")
                e(f"s_lshl_b32 s{P_SM2}, s{P_SM2}, 1")
                e(f"s_lshr_b32 s{ST}, s{SWAVE}, 1")
                e(f"s_add_u32 s{P_SM2}, s{P_SM2}, s{ST}")
                fq_load()
            if j == J2 + 2:
                e(f"s_mul_i32 s{ST}, s{P_SHD}, 3072")
                e(f"s_add_u32 s{ST}, s{ST}, {KVF_OFF}")
                e(f"v_lshlrev_b32 v{t0}, 3, v{VL}")
                for i in range(6):
                    a.vmem(f"buffer_load_dwordx2 {ar(144 + 2 * i, 2)}, v{t0}, {WS}, s{ST} offen offset:{512 * i}", "pq")
                e(f"s_mul_i32 s{ST}, s{P_SM2}, 144")
                e(f"s_add_u32 s{ST}, s{ST}, s{P_SHD}")
                e(f"s_add_u32 s{ST}, s{ST}, 112")
                e(f"s_lshl_b32 s{ST}, s{ST}, 13")
                for i in range(4):
                    a.vmem(f"buffer_load_dwordx4 {ar(128 + 4 * i)}, v{VAD}, {WS}, s{ST} offen offset:{1024 * i}", "pq")
                e(f"s_lshl_b32 s{SOP}, s{P_SM2}, 5")
                e(f"s_add_u32 s{SOP}, s{SOP}, s{P_SHD}")
                e(f"s_lshl_b32 s{SOP}, s{SOP}, 13")
                e(f"s_add_u32 s{SOP}, s{SOP}, {OF_OFF}")
                for r in range(4):
                    e(f"v_mov_b32 v{PEPS + r}, {EPS_HEX}")
            if j == J2 + 5:
                for i in range(4):
                    e(f"v_rcp_f32 v{PR + i}, v{PD + 12 * i + 8}")
                e("s_nop 0")
                for i in range(4):
                    d = PD + 12 * i
                    for q in range(8):
                        e(f"v_mul_f32 v{d + q}, v{PR + i}, v{d + q}")
                    o = PO + 4 * i
                    for q in range(4):
                        e(f"v_cvt_pk_bf16_f32 v{o + q}, v{d + 2 * q}, v{d + 2 * q + 1}")
                    a.vmem(f"buffer_store_dwordx4 {vr(o)}, v{VAD}, {WS}, s{SOP} offen offset:{1024 * i} sc1", "ost")
            if j == J2 + 8:
                setflag(2)
            if j == JO - OPT.get('fod', 2):
                assert j > J2 + 8
                e(f"s_lshl_b32 s{ST}, s{SMT}, 9")
                e(f"s_add_u32 s{ST}, s{ST}, {FO_OFF}")
                if role == 0:
                    e(f"v_min_u32 v{VFA}, {4 * o0 - 1}, v{VL}")
                else:
                    e(f"v_max_u32 v{VFA}, {4 * o0}, v{VL}")
                e(f"v_lshlrev_b32 v{VFA}, 3, v{VFA}")
                e(f"v_add_u32 v{VFA}, s{ST}, v{VFA}")
                fl_load("F")
            if role == 1 and j == JP - 1:
                e(f"s_lshl_b32 s{ST}, s{STILE}, 8")
                e(f"s_lshl_b32 s{ST + 1}, s{SWAVE}, 3")
                e(f"s_add_u32 s{ST}, s{ST}, s{ST + 1}")
                e(f"s_add_u32 s{ST}, s{ST}, {FP_OFF}")
                e(f"v_mov_b32 v{VFA}, s{ST}")
                fl_load("F2")
            if role == 1 and j == JP:
                e(f"s_lshl_b32 s{ST}, s{STILE}, 16")
                e(f"s_lshl_b32 s{ST + 1}, s{SWAVE}, 13")
                e(f"s_add_u32 s{ST}, s{ST}, s{ST + 1}")
                e(f"s_add_u32 s{ST}, s{ST}, {PART_OFF}")
                for q in range(8):
                    if q == 4:
                        e(f"s_add_u32 s{ST}, s{ST}, 4096")
                    a.vmem(f"buffer_load_dwordx4 {vr(VY + 4 * q)}, v{VL16}, {WS}, s{ST} offen offset:{1024 * (q & 3)} sc1", "PT")

        def post(j):
            if j == J1 + 1:
                red_guard("nr1")
                n_ = a.vm_count(["fq"], drop=False)
                e(f"s_waitcnt vmcnt({n_})")
                poll("q", VQ, fq_load)
                e(f"s_lshr_b32 s{ST}, s{P_SHD}, 1")
                e(f"s_mul_i32 s{ST}, s{ST}, 84")
                e(f"s_add_u32 s{ST}, s{ST}, s2")
                e(f"s_lshl_b32 s{ST}, s{ST}, 10")
                e(f"s_add_u32 s{ST}, s{ST}, {KVP_OFF}")
                for r8 in range(8):
                    e(f"buffer_load_dwordx4 {vr(VK + 4 * r8)}, v{VL16}, {WS}, s{ST} offen")
                    if r8 < 7:
                        e(f"s_add_u32 s{ST}, s{ST}, 12288")
                a.label(f"L_p2{R}_nr1")
                a.mark("r1")
            if j == J1 + 3:
                red_guard("nr2")
                n_ = a.vm_count(["#r1"], drop=False)
                if n_ is not None:
                    e(f"s_waitcnt vmcnt({n_})")
                for st_ in (1, 2, 4):
                    for r8 in range(0, 8, 2 * st_):
                        for q in range(2):
                            b0 = VK + 4 * r8 + 2 * q
                            e(f"v_pk_add_f32 {vr(b0, 2)}, {vr(b0, 2)}, {vr(b0 + 4 * st_, 2)}")
                e(f"v_cvt_pk_bf16_f32 v{VK}, v{VK}, v{VK + 1}")
                e(f"v_cvt_pk_bf16_f32 v{VK + 1}, v{VK + 2}, v{VK + 3}")
                e(f"s_mul_i32 s{ST}, s{P_SHD}, 6")
                e(f"s_sub_u32 s{ST}, s2, s{ST}")
                e(f"s_cmp_ge_u32 s{ST}, 3")
                e(f"s_cselect_b32 s{ST + 1}, 1, 0")
                e(f"s_mul_i32 s{ST + 2}, s{ST + 1}, 3")
                e(f"s_sub_u32 s{ST}, s{ST}, s{ST + 2}")
                e(f"s_mul_i32 s{ST + 2}, s{P_SHD}, 3")
                e(f"s_add_u32 s{ST}, s{ST}, s{ST + 2}")
                e(f"s_lshl_b32 s{ST}, s{ST}, 10")
                e(f"s_lshl_b32 s{ST + 1}, s{ST + 1}, 9")
                e(f"s_add_u32 s{ST}, s{ST}, s{ST + 1}")
                e(f"s_add_u32 s{ST}, s{ST}, {KVF_OFF}")
                e(f"v_lshlrev_b32 v{t0}, 3, v{VL}")
                e(f"buffer_store_dwordx2 {vr(VK, 2)}, v{t0}, {WS}, s{ST} offen sc1")
                a.label(f"L_p2{R}_nr2")
                a.mark("r2")
            if j == J1 + 5:
                red_guard("nr3")
                n_ = a.vm_count(["#r2"], drop=False)
                if n_ is not None:
                    e(f"s_waitcnt vmcnt({n_})")
                e(f"s_mov_b64 exec, {1 << 5}")
                e(f"buffer_store_dwordx2 v[{V_TOK}:{V_TOK + 1}], v0, {WS}, 0 offen sc1")
                e("s_mov_b64 exec, -1")
                a.label(f"L_p2{R}_nr3")

        def interval(j):
            if DIAG and OPT.get('ts2'):
                if j == 0:
                    e("s_mov_b32 s74, 0")
                e("s_memrealtime s[76:77]")
                e("s_waitcnt lgkmcnt(0)")
                e("s_mov_b32 m0, s74")
                e("s_nop 0")
                e(f"v_writelane_b32 v{VT + 7}, s76, m0")
                e("s_add_u32 s74, s74, 1")
            main = []
            if j >= 1:
                for mt in range(4):
                    for nt in range(4):
                        D = vr(acc2(mt, nt) + (64 if j - 1 >= nact else 0))
                        for b in range(2):
                            C = "0" if (j in (1, nact + 1) and b == 0) else D
                            main.append(f"v_mfma_f32_16x16x32_bf16 {D}, {ar(FB(j - 1, b, nt))}, {ar(FA(j - 1, b, mt))}, {C}")
            pre(j)
            if j == J2 + 4:
                pm = []
                for i in range(4):
                    d = PD + 12 * i
                    pq = ar(128 + 4 * i)
                    pm += [f"v_mfma_f32_16x16x32_bf16 {vr(d + 8)}, {ar(152)}, {pq}, {vr(PEPS)}",
                           f"v_mfma_f32_16x16x32_bf16 {vr(d)}, {ar(144)}, {pq}, 0",
                           f"v_mfma_f32_16x16x32_bf16 {vr(d + 4)}, {ar(148)}, {pq}, 0"]
                main = pm + main
            rd = reads(j) if j < N else []
            dm = (dmaA(j + S - 1) + dmaB(j + S - 1)) if j + S - 1 < N else []
            for x in late[TR * j: TR * j + TR]:
                dm.append(lambda x=x: a.vmem(x, "sl"))
            streams = []
            if nact + 1 <= j <= nact + 4:
                mt = j - (nact + 1)
                it = []
                if mt == 0:
                    a.wait(["g"])
                it.append(lambda mt=mt: e(f"v_sub_f32 v{VOMG + mt}, 1.0, v{VG + mt}"))
                for q in range(16):
                    it.append(lambda mt=mt, q=q: e(f"v_mul_f32 v{acc2(mt, 0) + q}, v{VOMG + mt}, v{acc2(mt, 0) + q}"))
                streams.append((it, 10, 30))
            n = max(len(main), 1)
            ex = capture(a, lambda: extra(j), chunk=1)
            if ex:
                streams.append((ex, 1, min(n * 0.97, 1 + 1.2 * len(ex))))
            schedule(a, main, [(rd, 0, n * 0.85), (dm, 0.5, n * 0.95)] + streams)
            post(j)
            if j < N:
                a.wait([f"D{j + 1}"] if j + 1 < N else [], lgkm=True)
                if j + 1 < N:
                    e("s_barrier")

        iters = []
        for j in range(N + 1):
            n_ = len(a.lines)
            if j == 4:
                stamp(a, 3)
            if j == nact:
                stamp(a, 4)
            interval(j)
            iters.append(a.lines[n_:])
            del a.lines[n_:]
        fold_loops(a, iters, PERIOD, SCNT, f"p2{R}")
        stamp(a, 5)
        if role == 0:
            e(f"s_lshl_b32 s{ST}, s{STILE}, 16")
            e(f"s_lshl_b32 s{ST + 1}, s{SWAVE}, 13")
            e(f"s_add_u32 s{ST}, s{ST}, s{ST + 1}")
            e(f"s_add_u32 s{ST}, s{ST}, {PART_OFF}")
            e("s_nop 7")
        else:
            vo = VT + 4
            e(f"v_lshlrev_b32 v{t2}, 11, v{vi}")
            e(f"v_bfe_u32 v{t3}, v{VL}, 4, 1")
            e(f"v_lshlrev_b32 v{t3}, 5, v{t3}")
            e(f"v_add_u32 v{t2}, v{t2}, v{t3}")
            e(f"v_lshrrev_b32 v{t3}, 5, v{VL}")
            e(f"v_lshlrev_b32 v{t3}, 4, v{t3}")
            e(f"v_add_u32 v{vo}, v{t2}, v{t3}")
            e(f"s_lshl_b32 s{ST}, s{SMT}, 7")
            e(f"s_and_b32 s{ST + 1}, s{SWAVE}, 1")
            e(f"s_lshl_b32 s{ST + 1}, s{ST + 1}, 6")
            e(f"s_add_u32 s{ST}, s{ST}, s{ST + 1}")
            e(f"s_lshl_b32 s{ST}, s{ST}, 11")
            e(f"s_lshl_b32 s{ST + 1}, s{SNT}, 8")
            e(f"s_add_u32 s{ST}, s{ST}, s{ST + 1}")
            e(f"s_lshr_b32 s{ST + 1}, s{SWAVE}, 1")
            e(f"s_lshl_b32 s{ST + 1}, s{ST + 1}, 7")
            e(f"s_add_u32 s{ST}, s{ST}, s{ST + 1}")
            a.wait(["PT"])
        for mt in range(4):
            sel = "op_sel:[1,0,0] op_sel_hi:[1,1,1]" if mt & 1 else "op_sel_hi:[0,1,1]"
            for q in range(8):
                b0 = acc2(mt, 0) + 2 * q
                e(f"v_pk_fma_f32 {vr(b0, 2)}, {vr(VG + (mt & 2), 2)}, {vr(b0 + 64, 2)}, {vr(b0, 2)} {sel}")
            if role == 0:
                for h2 in range(2):
                    q = 2 * mt + h2
                    b0 = AC + 8 * q
                    for r in range(4):
                        e(f"v_cvt_pk_bf16_f32 v{b0 + r}, v{b0 + 2 * r}, v{b0 + 2 * r + 1}")
                    e(f"buffer_store_dwordx4 {vr(b0)}, v{VL16}, {WS}, s{ST} offen offset:{1024 * (q & 3)} sc1")
                    if q == 3:
                        e(f"s_add_u32 s{ST}, s{ST}, 4096")
            else:
                for q in range(8):
                    p0 = VY + 8 * mt + q
                    u = 48 + 2 * q
                    e(f"v_lshlrev_b32 v{u}, 16, v{p0}")
                    e(f"v_and_b32 v{u + 1}, 0xffff0000, v{p0}")
                for q in range(8):
                    b0 = acc2(mt, 0) + 2 * q
                    e(f"v_pk_add_f32 {vr(b0, 2)}, {vr(b0, 2)}, {vr(48 + 2 * q, 2)}")
                for pr in range(2):
                    b0 = acc2(mt, 2 * pr)
                    for q in range(4):
                        e(f"v_cvt_pk_bf16_f32 v{b0 + q}, v{b0 + 2 * q}, v{b0 + 2 * q + 1}")
                e("s_nop 1")
                for pr in range(2):
                    b0 = acc2(mt, 2 * pr)
                    e(f"v_permlane16_swap_b32 v{b0}, v{b0 + 2}")
                    e(f"v_permlane16_swap_b32 v{b0 + 1}, v{b0 + 3}")
                for pr in range(2):
                    b0 = acc2(mt, 2 * pr)
                    e(f"buffer_store_dwordx4 {vr(b0)}, v{vo}, s[{SOUT}:{SOUT + 3}], s{ST} offen offset:{64 * pr}")
                if mt < 3:
                    e(f"s_add_u32 s{ST}, s{ST}, 32768")
        if role == 0:
            e("s_waitcnt vmcnt(0)")
            setflag(3)
        stamp(a, 6)
        if DIAG and OPT.get('ts2'):
            e(f"s_mov_b32 s76, s{S_PTR + 20}")
            e(f"s_and_b32 s77, s{S_PTR + 21}, 0xffff")
            e(f"s_mov_b32 s78, 0x4000000")
            e(f"s_mov_b32 s79, 0x20000")
            e(f"s_lshl_b32 s75, s2, 2")
            e(f"s_add_u32 s75, s75, s{S_WAVE}")
            e(f"s_lshl_b32 s75, s75, 8")
            e(f"s_add_u32 s75, s75, {DIAG_OFF + 0x200000}")
            e(f"v_lshlrev_b32 v{VT}, 2, v{VL}")
            e(f"buffer_store_dword v{VT + 7}, v{VT}, s[76:79], s75 offen")
        if DIAG:
            e("s_waitcnt vmcnt(0)")
        stamp(a, 7)
        stamp_dump(a, 1, 8, SWAVE, S_PTR + 20, S_PTR + 21, VT + 5)
        e("s_endpgm")

    body(1)
    a.label("L_p2_r0")
    a.vm = vm_save
    body(0)


def fix_hazards(lines):
    out = []
    for i, ln in enumerate(lines):
        out.append(ln)
        if " m0," in ln and i + 1 < len(lines) and lines[i + 1].rstrip().endswith("lds"):
            out.append("  s_nop 0")
    return out


def gen_spin():
    a = Asm()
    e = a.e
    spec = OPT['spin']
    A_, B_, M = spec.split(",")
    a.lines.append(".globl spin_kernel\n.p2align 8\n.type spin_kernel,@function\nspin_kernel:")
    e("s_cmp_lg_u32 s2, 0")
    e("s_cbranch_scc1 L_spin_end")
    e("s_load_dwordx2 s[4:5], s[0:1], 80")
    e("v_lshlrev_b32 v1, 7, v0")
    e("s_waitcnt lgkmcnt(0)")
    e("s_mov_b32 s8, s4\ns_and_b32 s9, s5, 0xffff\ns_mov_b32 s10, 0x4000000\ns_mov_b32 s11, 0x20000")

    def red(sp, sdst):
        k, st, op = sp.split(".")
        base = DIAG_OFF + int(k) * 0x100000 + 8 * int(st) + 4
        for i in range(16):
            e(f"s_mov_b32 s12, {base + i * 8192}")
            e(f"buffer_load_dword v{8 + i}, v1, s[8:11], s12 offen")
        e("s_waitcnt vmcnt(0)")
        for i in range(1, 16):
            e(f"v_{op}_u32 v8, v8, v{8 + i}")
        e("s_nop 1")
        e(f"v_readlane_b32 s{sdst}, v8, 0")
        for l in range(1, 64):
            e(f"v_readlane_b32 s13, v8, {l}")
            e("s_nop 0")
            e(f"s_{op}_u32 s{sdst}, s{sdst}, s13")
    red("0.0.min", 20)
    red(A_, 21)
    red(B_, 22)
    e("s_sub_u32 s22, s22, s21")
    e(f"s_mul_i32 s22, s22, {M}")
    e("s_add_u32 s22, s22, 12000")
    e("s_min_u32 s22, s22, 60000")
    a.label("L_spin")
    e("s_memrealtime s[14:15]")
    e("s_waitcnt lgkmcnt(0)")
    e("s_sub_u32 s16, s14, s20")
    e("s_cmp_lt_u32 s16, s22")
    e("s_cbranch_scc1 L_spin")
    a.label("L_spin_end")
    e("s_endpgm")
    return a.lines


def kd(name, nfv, accum):
    return f""".amdhsa_kernel {name}
  .amdhsa_next_free_vgpr {nfv}
  .amdhsa_next_free_sgpr 102
  .amdhsa_accum_offset {accum}
  .amdhsa_group_segment_fixed_size 0
  .amdhsa_kernarg_size 88
  .amdhsa_user_sgpr_count 2
  .amdhsa_user_sgpr_kernarg_segment_ptr 1
  .amdhsa_system_sgpr_workgroup_id_x 1
.end_amdhsa_kernel"""


def main(path):
    hdr = open(f"cdna_kernels/{NAME}.s.ref").read().split("; Override launch")[0]
    out = [hdr.rstrip("\n")]
    kn = NAME + "_kernel"
    if OPT.get('spin'):
        out.append(f"; @launch kernel={kn} grid=(256,1,1) block=(256,1,1) lds={K2_LDS()}")
        out.append("; @launch kernel=spin_kernel grid=(1,1,1) block=(64,1,1) lds=0")
    else:
        out.append(f"; @launch grid=(256,1,1) block=(256,1,1) lds={K2_LDS()}")
    out.append('.amdgcn_target "amdgcn-amd-amdhsa--gfx950"')
    out.append(".text")
    out += [ln.replace("KNAME", kn) for ln in fix_hazards(gen_k1())]
    if OPT.get('spin'):
        out += gen_spin()
    out.append('.section .rodata,"a"')
    if OPT.get('spin'):
        out.append(".p2align 6")
        out.append(kd("spin_kernel", 32, 32))
    out.append(".p2align 6")
    out.append(kd(kn, 256 + 160, 256))
    open(path, "w").write("\n".join(out) + "\n")


if __name__ == "__main__":
    if "--dbgout" in sys.argv:
        DBGOUT = True
        sys.argv.remove("--dbgout")
    if "--diag" in sys.argv:
        DIAG = True
        sys.argv.remove("--diag")
    for arg in list(sys.argv):
        if "=" in arg:
            k_, v_ = arg.split("=")
            OPT[k_] = int(v_) if v_.isdigit() else v_.replace("+", " ")
            sys.argv.remove(arg)
    main(sys.argv[1] if len(sys.argv) > 1 else f"cdna_kernels/{NAME}.s")
```

```python
import sys

NAME = "gated_mix__linear_attn_block__dense_activation_mish__prompt"

AF_OFF = 0
AF_BYTES = 16 * 144 * 8 * 1024
KVP_OFF = AF_BYTES
KVP_BYTES = 16 * 8 * 12 * 1024
KVF_OFF = KVP_OFF + KVP_BYTES
KVF_BYTES = 32 * 3 * 1024
G_OFF = KVF_OFF + KVF_BYTES
PART_OFF = G_OFF + 8192
OF_OFF = PART_OFF + 128 * 65536
FLG_OFF = OF_OFF + 16 * 32 * 8192
FE_OFF = FLG_OFF - 0 + 32768 + 128 * 256
FA_OFF = FLG_OFF
FQ_OFF = FA_OFF + 8192
FO_OFF = FQ_OFF + 8192
FP_OFF = FO_OFF + 8192
FK_OFF = FE_OFF + 8192
WS_USED = FK_OFF + 2048
assert FP_OFF + 128 * 256 <= FE_OFF
V_TOK = 14

DIAG = False
DBGOUT = False
OPT = dict(k1a="", k1b="", k2a="", k2b="", st="sc1", pf=2, xpf=0, n0=34, o0=6, tr=2, cpf=1, map=2, S=4, pbf=1, pj=1, pprio=0, cprio=0, rdend=26)
DIAG_OFF = 0x2000000
EPS_HEX = "0x358637bd"
L2E_HEX = "0x3fb8aa3b"


class Asm:
    def __init__(self):
        self.lines = []
        self.vm = []

    def e(self, s):
        for ln in s.split("\n"):
            self.lines.append("  " + ln.strip())

    def label(self, s):
        self.lines.append(s + ":")

    def vmem(self, s, tag):
        self.e(s)
        self.vm.append(tag)

    def mark(self, tag):
        self.vm.append("#" + tag)

    def vm_count(self, tags, drop=True):
        idx = -1
        for i, t in enumerate(self.vm):
            if t in tags:
                idx = i
        if idx < 0:
            return None
        n = sum(1 for t in self.vm[idx + 1:] if not t.startswith("#"))
        if drop:
            self.vm = self.vm[idx + 1:]
        assert n <= 63, n
        return n

    def wait(self, tags=(), lgkm=False):
        n = self.vm_count(tags) if tags else None
        parts = []
        if n is not None:
            parts.append(f"vmcnt({n})")
        if lgkm:
            parts.append("lgkmcnt(0)")
        if parts:
            self.e("s_waitcnt " + " ".join(parts))


def stamp(a, idx, sbase=80):
    if not DIAG:
        return
    a.e(f"s_memtime s[{sbase - 4}:{sbase - 3}]")
    a.e(f"s_memrealtime s[{sbase - 2}:{sbase - 1}]")
    a.e("s_waitcnt lgkmcnt(0)")
    a.e(f"s_mov_b32 s{sbase + 2 * idx}, s{sbase - 4}")
    a.e(f"s_mov_b32 s{sbase + 2 * idx + 1}, s{sbase - 2}")


def stamp_dump(a, kidx, n, swave, sptr_lo, sptr_hi, vtmp, sbase=80):
    if not DIAG:
        return
    e = a.e
    e(f"s_mov_b32 s{sbase - 4}, s{sptr_lo}")
    e(f"s_and_b32 s{sbase - 3}, s{sptr_hi}, 0xffff")
    e(f"s_mov_b32 s{sbase - 2}, 0x4000000")
    e(f"s_mov_b32 s{sbase - 1}, 0x20000")
    e(f"s_lshl_b32 s75, s2, 2")
    e(f"s_add_u32 s75, s75, s{swave}")
    e(f"s_lshl_b32 s75, s75, 7")
    e(f"s_add_u32 s75, s75, {DIAG_OFF + kidx * 0x100000}")
    e(f"v_mov_b32 v{vtmp}, 0")
    e("s_mov_b64 exec, 1")
    for i in range(2 * n):
        e(f"v_mov_b32 v{vtmp + 1}, s{sbase + i}")
        e(f"buffer_store_dword v{vtmp + 1}, v{vtmp}, s[{sbase - 4}:{sbase - 1}], s75 offen offset:{4 * i}")
        e("s_nop 1")
    e("s_mov_b64 exec, -1")
    if DBGOUT:
        lab = f"L_dbg_{len(a.lines)}"
        e(f"s_cmp_lg_u32 s2, 1")
        e(f"s_cbranch_scc1 {lab}")
        e(f"s_cmp_lg_u32 s{swave}, 0")
        e(f"s_cbranch_scc1 {lab}")
        e(f"s_mov_b32 s{sbase - 4}, s{sptr_lo - 2}")
        e(f"s_and_b32 s{sbase - 3}, s{sptr_hi - 2}, 0xffff")
        e(f"s_mov_b32 s{sbase - 2}, 256")
        e("s_mov_b64 exec, 1")
        for i in range(n):
            e(f"v_mov_b32 v{vtmp + 1}, s{sbase + 2 * i + 1}")
            e(f"buffer_store_dword v{vtmp + 1}, v{vtmp}, s[{sbase - 4}:{sbase - 1}], 0 offen offset:{4 * i + 32 * kidx}")
            e("s_nop 1")
        e("s_mov_b64 exec, -1")
        a.label(lab)


def vr(b, n=4):
    return f"v[{b}:{b + n - 1}]"


def ar(b, n=4):
    return f"a[{b}:{b + n - 1}]"


def interleave(a, mf, fillers, start=0, end=None):
    n = len(mf)
    if end is None:
        end = n
    nf = len(fillers)
    pos = [start + (j * (end - start)) // max(nf, 1) for j in range(nf)]
    j = 0
    for m in range(n):
        a.e(mf[m])
        while j < nf and pos[j] <= m:
            f = fillers[j]
            f()
            j += 1
    while j < nf:
        fillers[j]()
        j += 1


def capture(a, fn, chunk=2):
    n0_ = len(a.lines)
    vm0 = list(a.vm)
    fn()
    lines = a.lines[n0_:]
    tags = a.vm[len(vm0):]
    del a.lines[n0_:]
    a.vm = vm0
    items = []
    cur = []
    depth = 0
    ti = 0
    for ln in lines:
        cur.append(ln)
        if "s_cbranch" in ln or "s_mov_b64 exec, " in ln and "-1" not in ln or "s_cmp" in ln or "s_getpc" in ln or "s_sub_u32" in ln and "KNAME" in ln:
            depth = 1
        if ln.endswith(":") and not ln.startswith(" ") and "L_pc" not in ln or "s_mov_b64 exec, -1" in ln and not any("s_cbranch" in x for x in cur) or "s_cselect" in ln or "s_subb_u32" in ln:
            depth = 0
        if depth == 0 and len(cur) >= chunk:
            items.append(cur)
            cur = []
    if cur:
        items.append(cur)
    out = []
    for it in items:
        guarded = any("s_cbranch" in x for x in it)
        nv = 0 if guarded else sum(1 for x in it if x.strip().startswith(("buffer_", "global_")))
        tg = tags[ti:ti + nv]
        ti += nv

        def emit(it=it, tg=tg):
            a.lines.extend(it)
            a.vm.extend(tg)
        out.append(emit)
    rest = tags[ti:]
    assert all(t.startswith("#") for t in rest), (ti, tags)
    if rest:
        out.append(lambda rest=rest: a.vm.extend(rest))
    return out


def srd(a, d, lo, hi, nbytes, bias=0):
    if bias:
        a.e(f"s_sub_u32 s{d}, s{lo}, {bias}")
        a.e(f"s_subb_u32 s{d + 1}, s{hi}, 0")
        a.e(f"s_and_b32 s{d + 1}, s{d + 1}, 0xffff")
    else:
        a.e(f"s_mov_b32 s{d}, s{lo}")
        a.e(f"s_and_b32 s{d + 1}, s{hi}, 0xffff")
    a.e(f"s_mov_b32 s{d + 2}, {nbytes + bias}")
    a.e(f"s_mov_b32 s{d + 3}, 0x20000")


K1_BSLOT = 13312
K1_AREA = 3328
K1_ABASE = 4 * K1_BSLOT
K1_LDS = K1_ABASE + 4 * 16384
ACC0 = 48


def acc(t, mt):
    return ACC0 + 16 * t + 4 * mt


V_LANE = 1
V_ARD = 2
V_QRD = 4
V_HRD = 8
V_ADMA = 9
V_BDMA = 13
V_L16 = 17
V_T = 18
S_X, S_Q, S_W1, S_WS, S_MISC = 4, 8, 12, 16, 20
S_WAVE, S_RB, S_P = 24, 25, 26
S_OFFA, S_OFFA2, S_OFFQ, S_OFFH = 27, 28, 29, 30
S_M0B, S_M0A = 31, 32
S_CNT = 33
S_QM = 34
S_PTR = 36
S_L2E = 58
S_T = 60
S_AFB = 72
S_GROW = 73
S_PO1, S_PO2 = 74, 3
S_PT, S_PTE = 100, 101
S_CB = 100
S_PF1, S_PF2 = 96, 20


def bset(s, t):
    return 52 * s + 4 * t


ASET = {"X": 104, "Y": 120, "Z": 136}


def k1_body(a, typ):
    T = "A" if typ == 0 else "B"
    nq = 8 if typ == 0 else 4
    nh = 13 - nq
    Ph = 2 * nh
    HB = 256 * nq
    e = a.e
    vi, vG, t0, t1, t2, t3 = V_T, V_T + 1, V_T + 2, V_T + 3, V_T + 4, V_T + 5
    e(f"v_and_b32 v{vi}, 15, v{V_LANE}")
    e(f"v_lshrrev_b32 v{vG}, 4, v{V_LANE}")
    e(f"s_mul_i32 s{S_T + 2}, s{S_P}, 448")
    if typ:
        e(f"s_add_u32 s{S_T + 2}, s{S_T + 2}, 160")

    e(f"s_lshr_b32 s{S_T + 8}, s{S_WAVE}, 1")
    e(f"s_lshl_b32 s{S_T + 8}, s{S_T + 8}, 4")
    e(f"s_and_b32 s{S_T + 9}, s{S_WAVE}, 1")
    e(f"s_lshl_b32 s{S_T + 9}, s{S_T + 9}, 2")
    e(f"s_add_u32 s{S_T + 8}, s{S_T + 8}, s{S_T + 9}")

    def krow(dst, kp, tmp):
        e(f"v_lshrrev_b32 v{tmp}, 2, v{kp}")
        e(f"v_lshlrev_b32 v{tmp}, 3, v{tmp}")
        e(f"v_and_b32 v{dst}, 3, v{kp}")
        e(f"v_add3_u32 v{dst}, v{dst}, v{tmp}, s{S_T + 8}")

    e(f"v_lshrrev_b32 v{t0}, 3, v{V_LANE}")
    krow(t1, t0, t2)
    e(f"v_mul_u32_u24 v{t1}, 6144, v{t1}")
    e(f"v_lshrrev_b32 v{t2}, 1, v{t0}")
    e(f"v_and_b32 v{t2}, 3, v{t2}")
    e(f"v_lshlrev_b32 v{t2}, 1, v{t2}")
    e(f"v_and_b32 v{t3}, 7, v{V_LANE}")
    e(f"v_xor_b32 v{t3}, v{t3}, v{t2}")
    e(f"v_lshlrev_b32 v{t3}, 4, v{t3}")
    e(f"v_add_u32 v{t1}, v{t1}, v{t3}")
    e(f"s_lshl_b32 s{S_T + 9}, s{S_P}, 7")
    e(f"s_add_u32 s{S_T + 9}, s{S_T + 9}, {4096 + (2048 if typ == 0 else 0)}")
    e(f"v_add_u32 v{V_BDMA}, s{S_T + 9}, v{t1}")
    if typ == 0:
        e(f"v_add_u32 v{V_BDMA + 1}, {2048 - 1024}, v{V_BDMA}")
    hins = [(2, 0), (3, 64)] if typ == 0 else [(1, 0), (2, 64), (3, 128)]
    magic, sh = (205, 11) if Ph == 10 else (57, 10)
    for s_ in range(8 * Ph + 64):
        if s_ < 8 * Ph:
            assert (s_ * magic) >> sh == s_ // Ph
    for slot, s0 in hins:
        e(f"v_add_u32 v{t0}, {s0}, v{V_LANE}")
        e(f"v_mul_u32_u24 v{t1}, {magic}, v{t0}")
        e(f"v_lshrrev_b32 v{t1}, {sh}, v{t1}")
        e(f"v_mul_u32_u24 v{t2}, {Ph}, v{t1}")
        e(f"v_sub_u32 v{t0}, v{t0}, v{t2}")
        e(f"v_and_b32 v{t1}, 7, v{t1}")
        krow(t2, t1, t3)
        e(f"v_mul_u32_u24 v{t2}, 7168, v{t2}")
        e(f"v_lshlrev_b32 v{t0}, 4, v{t0}")
        e(f"v_add3_u32 v{t0}, v{t0}, v{t2}, s{S_T + 2}")
        e(f"v_add_u32 v{V_BDMA + slot}, {4096 - 1024 * slot}, v{t0}")
    e(f"s_lshl_b32 s{S_T + 9}, s{S_RB}, 8")
    e(f"s_lshl_b32 s{S_T + 10}, s{S_WAVE}, 6")
    e(f"s_add_u32 s{S_T + 9}, s{S_T + 9}, s{S_T + 10}")
    e(f"s_lshl_b32 s{S_T + 9}, s{S_T + 9}, 11")
    e(f"v_lshrrev_b32 v{t0}, 3, v{V_LANE}")
    e(f"v_lshrrev_b32 v{t1}, 1, v{t0}")
    e(f"v_and_b32 v{t2}, 7, v{V_LANE}")
    e(f"v_xor_b32 v{t2}, v{t2}, v{t1}")
    e(f"v_lshlrev_b32 v{t0}, 11, v{t0}")
    e(f"v_add_u32 v{t0}, s{S_T + 9}, v{t0}")
    for j in range(4):
        if j & 1:
            e(f"v_xor_b32 v{t3}, 4, v{t2}")
            e(f"v_lshlrev_b32 v{t3}, 4, v{t3}")
        else:
            e(f"v_lshlrev_b32 v{t3}, 4, v{t2}")
        e(f"v_add_u32 v{t3}, v{t3}, v{t0}")
        e(f"v_add_u32 v{V_ADMA + j}, {j * (16384 - 1024)}, v{t3}")
    e(f"s_mul_i32 s{S_M0B}, s{S_WAVE}, {K1_AREA}")
    e(f"s_lshl_b32 s{S_M0A}, s{S_WAVE}, 14")
    e(f"s_add_u32 s{S_M0A}, s{S_M0A}, {K1_ABASE}")
    e(f"s_mov_b32 s{S_OFFA}, 0")
    e(f"s_mov_b32 s{S_OFFA2}, 65536")
    e(f"s_mov_b32 s{S_OFFQ}, 0")
    e(f"s_mov_b32 s{S_OFFH}, 0")
    e(f"s_mov_b32 s{S_QM}, 0xffff")
    e(f"s_mov_b32 s{S_QM + 1}, 0")

    def dmaB(tt):
        slot = tt % 4
        tag = f"B{tt}"
        f = []
        srcs = [(S_Q, S_OFFQ), (S_Q, S_OFFQ) if typ == 0 else (S_W1, S_OFFH), (S_W1, S_OFFH)]
        f.append(lambda: e(f"s_add_u32 m0, s{S_M0B}, {slot * K1_BSLOT}"))
        for j in range(3):
            sr, so = srcs[j]
            f.append(lambda j=j, sr=sr, so=so: a.vmem(
                f"buffer_load_dwordx4 v{V_BDMA + j}, s[{sr}:{sr + 3}], s{so} offen offset:{1024 * j} {OPT['k1b']} lds", tag))

        def q():
            e(f"s_mov_b64 exec, s[{S_QM}:{S_QM + 1}]")
            a.vmem(f"buffer_load_dwordx4 v{V_BDMA + 3}, s[{S_W1}:{S_W1 + 3}], s{S_OFFH} offen offset:3072 {OPT['k1b']} lds", tag)
            e("s_mov_b64 exec, -1")
        f.append(q)
        f.append(lambda: e(f"s_add_u32 s{S_OFFQ}, s{S_OFFQ}, {32 * 6144}"))
        f.append(lambda: e(f"s_add_u32 s{S_OFFH}, s{S_OFFH}, {32 * 7168}"))
        return f

    def dmaA(aa):
        slot = aa % 2
        tag = f"A{aa}"
        f = []
        for half in range(2):
            so = S_OFFA if half == 0 else S_OFFA2
            f.append(lambda half=half: e(f"s_add_u32 m0, s{S_M0A}, {slot * 8192 + half * 4096}"))
            for j in range(4):
                f.append(lambda j=j, so=so: a.vmem(
                    f"buffer_load_dwordx4 v{V_ADMA + j}, s[{S_X}:{S_X + 3}], s{so} offen offset:{1024 * j} {OPT['k1a']} lds", tag))
        f.append(lambda: e(f"s_add_u32 s{S_OFFA}, s{S_OFFA}, 128"))
        f.append(lambda: e(f"s_add_u32 s{S_OFFA2}, s{S_OFFA2}, 128"))
        return f

    def run_seq(fl):
        for fn in fl:
            n0 = len(a.lines)
            fn()
            if " m0," in a.lines[-1] and len(a.lines) == n0 + 1:
                e("s_nop 0")

    e("s_waitcnt lgkmcnt(0)")
    srd(a, S_Q, S_PTR + 2, S_PTR + 3, 1024 * 3072 * 2, bias=4096)
    srd(a, S_W1, S_PTR + 8, S_PTR + 9, 1024 * 3584 * 2, bias=4096)
    srd(a, S_X, S_PTR + 0, S_PTR + 1, 2048 * 1024 * 2)
    if not OPT.get('spin'):
        stamp(a, 0)
    run_seq(dmaB(0))
    run_seq(dmaA(0))
    srd(a, S_T + 4, S_PTR + 10, S_PTR + 11, 7168)
    e(f"v_lshlrev_b32 v{t1}, 3, v{vG}")
    for j in range(nh):
        a.vmem(f"buffer_load_dwordx2 {vr(acc(nq + j, 3), 2)}, v{t1}, s[{S_T + 4}:{S_T + 7}], s{S_T + 2} offen offset:{32 * j}", "bias")
    run_seq(dmaB(1))
    if not OPT.get('ramp'):
        run_seq(dmaB(2))
        run_seq(dmaA(1))
        run_seq(dmaB(3))
    e(f"v_lshrrev_b32 v{t0}, 3, v{vi}")
    e(f"v_lshlrev_b32 v{t0}, 6, v{t0}")
    e(f"v_and_b32 v{t1}, 7, v{vi}")
    e(f"v_lshlrev_b32 v{t1}, 3, v{t1}")
    e(f"v_add_u32 v{t0}, v{t0}, v{t1}")
    e(f"v_lshrrev_b32 v{t1}, 1, v{vi}")
    e(f"v_xor_b32 v{t1}, v{t1}, v{vG}")
    e(f"v_add_u32 v{t2}, v{t0}, v{t1}")
    e(f"v_lshlrev_b32 v{t2}, 4, v{t2}")
    e(f"v_add_u32 v{V_ARD}, s{S_M0A}, v{t2}")
    e(f"v_xor_b32 v{t1}, 4, v{t1}")
    e(f"v_add_u32 v{t2}, v{t0}, v{t1}")
    e(f"v_lshlrev_b32 v{t2}, 4, v{t2}")
    e(f"v_add_u32 v{V_ARD + 1}, s{S_M0A}, v{t2}")
    e(f"v_and_b32 v{t0}, 1, v{vG}")
    e(f"v_lshlrev_b32 v{t0}, 2, v{t0}")
    e(f"v_lshrrev_b32 v{t1}, 2, v{vi}")
    e(f"v_add_u32 v{t0}, v{t0}, v{t1}")
    e(f"v_lshrrev_b32 v{t1}, 1, v{vG}")
    e(f"v_mul_u32_u24 v{t1}, {2 * K1_AREA}, v{t1}")
    e(f"v_and_b32 v{t2}, 3, v{vi}")
    e(f"v_lshlrev_b32 v{t2}, 3, v{t2}")
    e(f"v_add_u32 v{t1}, v{t1}, v{t2}")
    e(f"v_mul_u32_u24 v{t3}, {16 * Ph}, v{t0}")
    e(f"v_add3_u32 v{V_HRD}, v{t1}, v{t3}, {0}")
    e(f"v_add_u32 v{V_HRD}, {HB}, v{V_HRD}")
    e(f"v_lshlrev_b32 v{t3}, 7, v{t0}")
    e(f"v_add_u32 v{t1}, v{t1}, v{t3}")
    e(f"v_lshrrev_b32 v{t2}, 1, v{t0}")
    e(f"v_and_b32 v{t2}, 3, v{t2}")
    for t in range(4):
        e(f"v_xor_b32 v{t3}, {t}, v{t2}")
        e(f"v_lshlrev_b32 v{t3}, 5, v{t3}")
        e(f"v_add_u32 v{V_QRD + t}, v{t1}, v{t3}")
    e(f"v_lshlrev_b32 v{V_L16}, 4, v{V_LANE}")

    gw, gx0, gx1 = V_T, V_T + 8, V_T + 16
    gt = V_T + 24
    nb = {0: 1, 1: 7, 2: 1, 3: 2, 4: 3}[OPT['pf']]
    PL1, PL2 = -(-56 // nb), -(-16 // nb)

    def misc_setup():
        srd(a, S_WS, S_PTR + 20, S_PTR + 21, WS_USED)
        tile_decode(a, S_T + 4, S_T + 5, S_T + 6, S_T + 7, S_T)
        e(f"s_lshl_b32 s{S_T}, s{S_RB}, 1")
        e(f"s_lshr_b32 s{S_T + 1}, s{S_WAVE}, 1")
        e(f"s_add_u32 s{S_T}, s{S_T}, s{S_T + 1}")
        e(f"s_lshl_b32 s{S_T}, s{S_T}, 5")
        e(f"s_lshl_b32 s{S_T + 1}, s{S_P}, 1")
        e(f"s_add_u32 s{S_T}, s{S_T}, s{S_T + 1}")
        if typ:
            e(f"s_add_u32 s{S_T}, s{S_T}, 1")
        e(f"s_lshl_b32 s{S_T}, s{S_T}, 1")
        e(f"s_and_b32 s{S_T + 1}, s{S_WAVE}, 1")
        e(f"s_add_u32 s{S_T}, s{S_T}, s{S_T + 1}")
        e(f"s_lshl_b32 s{S_T}, s{S_T}, 3")
        e(f"s_add_u32 s{S_T}, s{S_T}, {FA_OFF}")
        e(f"v_writelane_b32 v0, s{S_T}, 4")
        e(f"s_lshl_b32 s{S_T}, s{S_RB}, 1")
        e(f"s_lshr_b32 s{S_T + 3}, s{S_WAVE}, 1")
        e(f"s_add_u32 s{S_T}, s{S_T}, s{S_T + 3}")
        e(f"s_lshl_b32 s{S_T}, s{S_T}, 5")
        e(f"s_add_u32 s{S_T}, s{S_T}, s{S_P}")
        e(f"s_lshl_b32 s{S_T}, s{S_T}, 1")
        e(f"s_add_u32 s{S_T}, s{S_T}, s{S_T + 1}")
        e(f"s_lshl_b32 s{S_T}, s{S_T}, 3")
        e(f"s_add_u32 s{S_T}, s{S_T}, {FE_OFF + 256 * typ}")
        e(f"v_writelane_b32 v0, s{S_T}, 0")
        e(f"s_lshl_b32 s{S_T}, s{S_P}, 4")
        e(f"s_add_u32 s{S_T}, s{S_T}, s{S_RB}")
        e(f"s_lshl_b32 s{S_T}, s{S_T}, 2")
        e(f"s_add_u32 s{S_T}, s{S_T}, s{S_WAVE}")
        e(f"s_lshl_b32 s{S_T}, s{S_T}, 3")
        e(f"s_add_u32 s{S_T}, s{S_T}, {FQ_OFF + 256 * typ}")
        e(f"v_writelane_b32 v0, s{S_T}, 1")
        e(f"s_lshr_b32 s{S_T}, s2, 5")
        e(f"s_lshl_b32 s{S_T}, s{S_T}, 1")
        e(f"s_lshr_b32 s{S_T + 1}, s{S_WAVE}, 1")
        e(f"s_add_u32 s{S_T}, s{S_T}, s{S_T + 1}")
        e(f"s_lshl_b32 s{S_T}, s{S_T}, 9")
        e(f"s_and_b32 s{S_T + 1}, s2, 31")
        e(f"s_lshl_b32 s{S_T + 1}, s{S_T + 1}, 4")
        e(f"s_add_u32 s{S_T}, s{S_T}, s{S_T + 1}")
        e(f"s_and_b32 s{S_T + 1}, s{S_WAVE}, 1")
        e(f"s_lshl_b32 s{S_T + 1}, s{S_T + 1}, 3")
        e(f"s_add_u32 s{S_T}, s{S_T}, s{S_T + 1}")
        e(f"s_add_u32 s{S_T}, s{S_T}, {FO_OFF}")
        e(f"s_lshl_b32 s{S_T + 1}, s{S_T + 7}, 8")
        e(f"s_lshl_b32 s{S_T + 3}, s{S_WAVE}, 3")
        e(f"s_add_u32 s{S_T + 1}, s{S_T + 1}, s{S_T + 3}")
        e(f"s_add_u32 s{S_T + 1}, s{S_T + 1}, {FP_OFF}")
        e(f"s_cmp_eq_u32 s{S_T + 6}, 0")
        e(f"s_cselect_b32 s{S_T + 1}, s{S_T + 1}, 0x7ffffff0")
        e(f"v_writelane_b32 v0, s{S_T}, 2")
        e(f"v_writelane_b32 v0, s{S_T + 1}, 3")
        e(f"s_mul_i32 s{S_T}, s2, 171")
        e(f"s_lshr_b32 s{S_T}, s{S_T}, 10")
        e(f"s_lshl_b32 s{S_T}, s{S_T}, 1")
        e(f"s_add_u32 s{S_T}, s{S_T}, s2")
        e(f"s_lshl_b32 s{S_T}, s{S_T}, 3")
        e(f"s_add_u32 s{S_T}, s{S_T}, {FK_OFF}")
        e(f"v_writelane_b32 v0, s{S_T}, 5")

    def misc_setup2():
        if typ == 0:
            e(f"s_or_b32 s{S_T}, s2, s{S_WAVE}")
            e(f"s_cmp_lg_u32 s{S_T}, 0")
            e(f"s_cbranch_scc1 L_notok")
            e(f"s_memrealtime s[{S_T + 8}:{S_T + 9}]")
            srd(a, S_T + 4, S_PTR + 18, S_PTR + 19, 256)
            e("s_waitcnt lgkmcnt(0)")
            e(f"s_or_b32 s{S_T + 9}, s{S_T + 9}, 0x40000000")
            e(f"s_lshl_b32 s{S_T + 9}, s{S_T + 9}, 1")
            e(f"s_and_b32 s{S_T}, s{S_T + 8}, 1")
            e(f"s_or_b32 s{S_T + 9}, s{S_T + 9}, s{S_T}")
            e(f"s_or_b32 s{S_T + 8}, s{S_T + 8}, 1")
            e(f"v_mov_b32 v{V_T + 24}, s{S_T + 8}")
            e(f"v_mov_b32 v{V_T + 25}, s{S_T + 9}")
            e(f"v_mov_b32 v{V_T + 27}, 0")
            e("s_mov_b64 exec, 1")
            e(f"buffer_store_dwordx2 v[{V_T + 24}:{V_T + 25}], v{V_T + 27}, s[{S_T + 4}:{S_T + 7}], 0 offen sc1")
            e("s_mov_b64 exec, -1")
            e("s_nop 1")
            a.label("L_notok")
        if OPT.get('cpf') == 1:
            e(f"s_getpc_b64 s[{S_T + 4}:{S_T + 5}]")
            a.label(f"L_pc_{T}")
            e(f"s_sub_u32 s{S_T + 4}, s{S_T + 4}, L_pc_{T}-KNAME")
            e(f"s_subb_u32 s{S_T + 5}, s{S_T + 5}, 0")
            e(f"s_lshr_b32 s{S_T}, s2, 3")
            e(f"s_and_b32 s{S_T}, s{S_T}, 3")
            e(f"s_lshl_b32 s{S_T}, s{S_T}, 2")
            e(f"s_add_u32 s{S_T}, s{S_T}, s{S_WAVE}")
            e(f"s_lshl_b32 s{S_T}, s{S_T}, 13")
            e(f"v_lshlrev_b32 v{V_T + 29}, 7, v{V_LANE}")
            e(f"v_add_u32 v{V_T + 29}, s{S_T}, v{V_T + 29}")
            e(f"v_min_u32 v{V_T + 29}, L_code_end-KNAME-4, v{V_T + 29}")
            a.vmem(f"global_load_dword v{V_T + 29}, v{V_T + 29}, s[{S_T + 4}:{S_T + 5}]", "pf")
        if OPT.get('xpf') == 1:
            e(f"v_and_b32 v{V_T + 28}, 31, v{V_LANE}")
            e(f"v_lshlrev_b32 v{V_T + 28}, 7, v{V_T + 28}")
            e(f"s_lshl_b32 s{S_T}, s2, 2")
            e(f"s_add_u32 s{S_T}, s{S_T}, s{S_WAVE}")
            e(f"s_lshl_b32 s{S_T}, s{S_T}, 12")
            a.vmem(f"buffer_load_dword v{V_T + 28}, v{V_T + 28}, s[{S_X}:{S_X + 3}], s{S_T} offen", "pf")
        if OPT.get('xpf') == 2:
            e(f"v_lshlrev_b32 v{V_T + 27}, 7, v{V_LANE}")
            e(f"s_lshr_b32 s{S_T}, s2, 5")
            e(f"s_lshl_b32 s{S_T}, s{S_T}, 2")
            e(f"s_add_u32 s{S_T}, s{S_T}, s{S_WAVE}")
            e(f"s_lshl_b32 s{S_T}, s{S_T}, 14")
            e(f"s_lshl_b32 s{S_T + 1}, s{S_RB}, 19")
            e(f"s_add_u32 s{S_T}, s{S_T}, s{S_T + 1}")
            a.vmem(f"buffer_load_dword v{V_T + 28}, v{V_T + 27}, s[{S_X}:{S_X + 3}], s{S_T} offen", "pf")
            e(f"s_add_u32 s{S_T}, s{S_T}, 8192")
            a.vmem(f"buffer_load_dword v{V_T + 28}, v{V_T + 27}, s[{S_X}:{S_X + 3}], s{S_T} offen", "pf")

        e(f"v_lshlrev_b32 v{gt}, 5, v{V_LANE}")
        e(f"s_lshl_b32 s{S_GROW}, s{S_RB}, 8")
        e(f"s_lshl_b32 s{S_T + 1}, s{S_WAVE}, 6")
        e(f"s_add_u32 s{S_GROW}, s{S_GROW}, s{S_T + 1}")
        e(f"s_lshl_b32 s{S_T + 1}, s{S_P}, 2")
        e(f"s_add_u32 s{S_GROW}, s{S_GROW}, s{S_T + 1}")
        if typ:
            e(f"s_add_u32 s{S_GROW}, s{S_GROW}, 2")
        e(f"s_lshl_b32 s{S_T + 1}, s{S_GROW}, 11")
        srd(a, S_MISC, S_PTR + 14, S_PTR + 15, 2048)
        a.vmem(f"buffer_load_dwordx4 {vr(gw)}, v{gt}, s[{S_MISC}:{S_MISC + 3}], 0 offen", "g")
        a.vmem(f"buffer_load_dwordx4 {vr(gw + 4)}, v{gt}, s[{S_MISC}:{S_MISC + 3}], 0 offen offset:16", "g")
        a.vmem(f"buffer_load_dwordx4 {vr(gx0)}, v{gt}, s[{S_X}:{S_X + 3}], s{S_T + 1} offen", "g")
        a.vmem(f"buffer_load_dwordx4 {vr(gx0 + 4)}, v{gt}, s[{S_X}:{S_X + 3}], s{S_T + 1} offen offset:16", "g")
        a.vmem(f"buffer_load_dwordx4 {vr(gx1)}, v{gt}, s[{S_X}:{S_X + 3}], s{S_T + 1} offen offset:2048", "g")
        a.vmem(f"buffer_load_dwordx4 {vr(gx1 + 4)}, v{gt}, s[{S_X}:{S_X + 3}], s{S_T + 1} offen offset:2064", "g")

        if OPT['pf']:
            srd(a, S_PF1, S_PTR + 12, S_PTR + 13, 3584 * 1024 * 2)
            srd(a, S_PF2, S_PTR + 4, S_PTR + 5, 1024 * 1024 * 2)
            e(f"v_min_u32 v{V_T + 26}, {PL1 - 1}, v{V_LANE}")
            e(f"v_lshlrev_b32 v{V_T + 26}, 7, v{V_T + 26}")
            e(f"v_min_u32 v{V_T + 27}, {PL2 - 1}, v{V_LANE}")
            e(f"v_lshlrev_b32 v{V_T + 27}, 7, v{V_T + 27}")
            e(f"s_lshl_b32 s{S_T}, s2, 2")
            e(f"s_add_u32 s{S_T}, s{S_T}, s{S_WAVE}")
            e(f"s_mul_i32 s{S_PO1}, s{S_T}, 7168")
            e(f"s_lshl_b32 s{S_PO2}, s{S_T}, 11")


    if OPT.get('pt'):
        e(f"s_lshl_b32 s{S_T}, s{S_RB}, 1")
        e(f"s_lshr_b32 s{S_T + 1}, s{S_WAVE}, 1")
        e(f"s_add_u32 s{S_T}, s{S_T}, s{S_T + 1}")
        e(f"s_mul_i32 s{S_AFB}, s{S_T}, {144 * 8192}")
        e(f"s_and_b32 s{S_T + 1}, s{S_WAVE}, 1")
        e(f"s_lshl_b32 s{S_T + 1}, s{S_T + 1}, 12")
        e(f"s_add_u32 s{S_AFB}, s{S_AFB}, s{S_T + 1}")
        e(f"s_mul_i32 s{S_PT}, s{S_P}, {7 * 8192}")
        e(f"s_add_u32 s{S_PT}, s{S_PT}, s{S_AFB}")
        if typ:
            e(f"s_add_u32 s{S_PT}, s{S_PT}, {2 * 8192}")
        e(f"s_add_u32 s{S_PTE}, s{S_PT}, {(4 if typ else 2) * 8192}")
        e(f"v_and_b32 v{V_T + 25}, 31, v{V_LANE}")
        e(f"v_lshlrev_b32 v{V_T + 25}, 7, v{V_T + 25}")
        if typ:
            e(f"v_lshrrev_b32 v{V_T + 29}, 5, v{V_LANE}")
            e(f"v_lshlrev_b32 v{V_T + 29}, 13, v{V_T + 29}")
            e(f"v_add_u32 v{V_T + 29}, v{V_T + 29}, v{V_T + 25}")
            e(f"s_mul_i32 s{S_T}, s{S_P}, {2 * 8192}")
            e(f"s_add_u32 s{S_T}, s{S_T}, {112 * 8192}")
            e(f"s_add_u32 s{S_T}, s{S_T}, s{S_AFB}")
            a.vmem(f"buffer_load_dword v{V_T + 28}, v{V_T + 29}, s[{S_WS}:{S_WS + 3}], s{S_T} offen", "pf")

    def pt_items():
        return [lambda: a.vmem(f"buffer_load_dword v{V_T + 28}, v{V_T + 25}, s[{S_WS}:{S_WS + 3}], s{S_PT} offen", "pf"),
                lambda: e(f"s_add_u32 s{S_PT}, s{S_PT}, 8192"),
                lambda: e(f"s_min_u32 s{S_PT}, s{S_PT}, s{S_PTE}")]

    def pf_items(cond=None):
        if cond is None:
            return [lambda: a.vmem(f"buffer_load_dword v{V_T + 28}, v{V_T + 26}, s[{S_PF1}:{S_PF1 + 3}], s{S_PO1} offen", "pf"),
                    lambda: a.vmem(f"buffer_load_dword v{V_T + 28}, v{V_T + 27}, s[{S_PF2}:{S_PF2 + 3}], s{S_PO2} offen", "pf"),
                    lambda: e(f"s_add_u32 s{S_PO1}, s{S_PO1}, {128 * PL1}"),
                    lambda: e(f"s_add_u32 s{S_PO2}, s{S_PO2}, {128 * PL2}")]

        def blk():
            e(f"s_lshl_b32 s{S_T}, 1, s{S_CNT}")
            e(f"s_and_b32 s{S_T}, s{S_T}, {cond}")
            e(f"s_cbranch_scc0 L_k1{T}_nopf")
            e(f"buffer_load_dword v{V_T + 28}, v{V_T + 26}, s[{S_PF1}:{S_PF1 + 3}], s{S_PO1} offen")
            e(f"buffer_load_dword v{V_T + 28}, v{V_T + 27}, s[{S_PF2}:{S_PF2 + 3}], s{S_PO2} offen")
            e(f"s_add_u32 s{S_PO1}, s{S_PO1}, {128 * PL1}")
            e(f"s_add_u32 s{S_PO2}, s{S_PO2}, {128 * PL2}")
            a.label(f"L_k1{T}_nopf")
        return [blk]

    def g_items():
        d0, d1 = V_T + 24, V_T + 25
        L = []
        L.append(f"v_dot2_f32_bf16 v{d0}, v{gx0}, v{gw}, 0")
        L.append(f"v_dot2_f32_bf16 v{d1}, v{gx1}, v{gw}, 0")
        for j in range(1, 8):
            L.append(f"v_dot2_f32_bf16 v{d0}, v{gx0 + j}, v{gw + j}, v{d0}")
            L.append(f"v_dot2_f32_bf16 v{d1}, v{gx1 + j}, v{gw + j}, v{d1}")
        L.append("s_nop 3")
        for sh_ in (1, 2, 4, 8):
            L.append(f"s_nop 0\nv_add_f32_dpp v{d0}, v{d0}, v{d0} row_shr:{sh_} row_mask:0xf bank_mask:0xf bound_ctrl:0")
            L.append(f"s_nop 0\nv_add_f32_dpp v{d1}, v{d1}, v{d1} row_shr:{sh_} row_mask:0xf bank_mask:0xf bound_ctrl:0")
        L.append(f"s_nop 0\nv_add_f32_dpp v{d0}, v{d0}, v{d0} row_bcast:15 row_mask:0xa bank_mask:0xf")
        L.append(f"s_nop 0\nv_add_f32_dpp v{d1}, v{d1}, v{d1} row_bcast:15 row_mask:0xa bank_mask:0xf")
        L.append(f"s_nop 0\nv_add_f32_dpp v{d0}, v{d0}, v{d0} row_bcast:31 row_mask:0xc bank_mask:0xf")
        L.append(f"s_nop 0\nv_add_f32_dpp v{d1}, v{d1}, v{d1} row_bcast:31 row_mask:0xc bank_mask:0xf")
        L.append(f"v_mul_f32 v{d0}, 0xbfb8aa3b, v{d0}")
        L.append(f"v_mul_f32 v{d1}, 0xbfb8aa3b, v{d1}")
        L.append(f"v_exp_f32 v{d0}, v{d0}")
        L.append(f"v_exp_f32 v{d1}, v{d1}\ns_nop 0")
        L.append(f"v_add_f32 v{d0}, 1.0, v{d0}")
        L.append(f"v_add_f32 v{d1}, 1.0, v{d1}")
        L.append(f"v_rcp_f32 v{d0}, v{d0}")
        L.append(f"v_rcp_f32 v{d1}, v{d1}")
        L.append(f"v_mov_b32 v{gw}, 0")
        L.append(f"s_lshl_b32 s{S_T + 1}, s{S_GROW}, 2\ns_add_u32 s{S_T + 1}, s{S_T + 1}, {G_OFF}")
        L.append(f"s_lshl_b32 s{S_T + 3}, s2, 8\ns_add_u32 s{S_T + 3}, s{S_T + 3}, {FLG_OFF}")
        L.append(f"s_mov_b32 s{S_T + 8}, 0\ns_mov_b32 s{S_T + 9}, 0x80000000")
        F = [(lambda x=x: e(x)) for x in L]

        def st():
            e(f"s_mov_b64 exec, s[{S_T + 8}:{S_T + 9}]")
            a.vmem(f"buffer_store_dwordx2 v[{d0}:{d1}], v{gw}, s[{S_WS}:{S_WS + 3}], s{S_T + 1} offen sc1", "sq")
            e("s_mov_b64 exec, -1")
        F.append(st)
        return F

    if OPT.get('m2', 9) == 9:
        misc_setup2()
    a.wait(["bias"])
    for j in range(nh):
        src = acc(nq + j, 3)
        d = acc(nq + j, 0)
        e(f"v_lshlrev_b32 v{d}, 16, v{src}")
        e(f"v_and_b32 v{d + 1}, 0xffff0000, v{src}")
        e(f"v_lshlrev_b32 v{d + 2}, 16, v{src + 1}")
        e(f"v_and_b32 v{d + 3}, 0xffff0000, v{src + 1}")
    for t in range(4):
        for r in range(4):
            e(f"v_mov_b32 v{acc(t, 0) + r}, {EPS_HEX}")

    def rdB(tt):
        slot = tt % 4
        s = tt % 2
        f = []
        for t in range(13):
            for ins in range(2):
                if t < nq:
                    addr = V_QRD + (t & 3)
                    off = slot * K1_BSLOT + ins * K1_AREA + 1024 * (t >> 2)
                else:
                    addr = V_HRD
                    off = slot * K1_BSLOT + ins * K1_AREA + 32 * (t - nq)
                d = bset(s, t) + 2 * ins
                f.append(lambda d=d, addr=addr, off=off: e(f"ds_read_b64_tr_b16 {ar(d, 2)}, v{addr} offset:{off}"))
        return f

    def aset_of(tt):
        if tt % 2 == 0:
            return ASET["X"]
        return ASET["Y"] if tt % 4 == 1 else ASET["Z"]

    def rdA(aa):
        slot = aa % 2
        f = []
        for hh in range(2):
            base = aset_of(2 * aa + hh)
            for mt in range(4):
                f.append(lambda hh=hh, mt=mt, base=base: e(
                    f"ds_read_b128 {ar(base + 4 * mt)}, v{V_ARD + hh} offset:{slot * 8192 + mt * 2048}"))
        return f

    stamp(a, 1)
    a.wait(["B0", "A0"])
    e("s_barrier")
    stamp(a, 2)
    for fn in rdA(0) + rdB(0):
        fn()
    if OPT.get('ramp'):
        run_seq(dmaA(1))
        run_seq(dmaB(2))
    a.wait(["B1"], lgkm=True)
    e("s_barrier")

    misc_items = capture(a, misc_setup)
    misc_items2 = capture(a, misc_setup2) if OPT.get('m2', 9) != 9 else []

    NSTEP = 32

    def step(tt):
        if DIAG and OPT.get('ts'):
            e("s_memrealtime s[76:77]")
            e("s_waitcnt lgkmcnt(0)")
            e("s_mov_b32 m0, s78")
            e("s_nop 0")
            e(f"v_writelane_b32 v{V_T + 29}, s76, m0")
            e("s_add_u32 s78, s78, 1")
        s = tt % 2
        ab = aset_of(tt)
        mf = []
        for t in range(13):
            order = [1, 2, 3, 0] if tt == 0 else [0, 1, 2, 3]
            for mt in order:
                D = vr(acc(t, mt))
                if tt == 0:
                    C = "0" if (typ == 0 and 4 <= t < 8) else vr(acc(t, 0))
                else:
                    C = D
                W = ar(bset(s, t))
                X = ar(ab + 4 * mt)
                if typ == 0 and t < 8:
                    mf.append(f"v_mfma_f32_16x16x32_bf16 {D}, {X}, {W}, {C}")
                else:
                    mf.append(f"v_mfma_f32_16x16x32_bf16 {D}, {W}, {X}, {C}")
        if OPT.get('fakechain') and tt > 0:
            import re
            m2 = []
            for i in range(0, 52, 2):
                x0, x1 = mf[i], mf[i + 1]
                pick = x0 if tt % 2 == 0 else x1
                D = re.match(r"v_mfma\S+ (v\[\d+:\d+\])", pick).group(1)
                for x in (x0, x1):
                    D0 = re.match(r"v_mfma\S+ (v\[\d+:\d+\])", x).group(1)
                    m2.append(x.replace(D0, D))
            mf = m2
        rd = []
        if tt + 1 < NSTEP:
            rd = rdB(tt + 1)
            if tt % 2 == 1:
                rd = rdA((tt + 1) // 2) + rd
        dm = []
        if tt == 0 and OPT.get('ramp'):
            dm += dmaB(3)
        if OPT.get('afirst', 1) and tt % 2 == 0 and tt // 2 + 2 < NSTEP // 2:
            dm += dmaA(tt // 2 + 2)
        if tt + 4 < NSTEP:
            dm += dmaB(tt + 4)
        if not OPT.get('afirst', 1) and tt % 2 == 0 and tt // 2 + 2 < NSTEP // 2:
            dm += dmaA(tt // 2 + 2)
        if OPT['pf'] == 1 and tt % 4 == 1 and tt < 28:
            dm += pf_items()
        if OPT.get('cpf') == 3 and tt == 28:
            dm.append(lambda: a.vmem(f"global_load_dword v{V_T + 28}, v{V_T + 29}, s[{S_CB}:{S_CB + 1}]", "pf"))
        if OPT['pf'] in (2, 3, 4) and tt == 28:
            dm += pf_items()
        if OPT['pf'] in (3, 4) and tt % 4 == 1 and 4 <= tt < 28:
            dm += pf_items({3: 1 << 4, 4: (1 << 5) | (1 << 3)}[OPT['pf']])
        if OPT.get('pt') and tt % 4 == 3 and tt < 28:
            dm += pt_items()
        if tt == OPT.get('m2', 9):
            dm += misc_items2
        if tt == 3:
            dm += misc_items
        fl = []
        i1 = i2 = 0
        n1, n2 = len(rd), len(dm)
        while i1 < n1 or i2 < n2:
            if i2 < n2 and (i1 >= n1 or i2 * n1 <= i1 * n2):
                fl.append(dm[i2]); i2 += 1
            else:
                fl.append(rd[i1]); i1 += 1
        if tt == NSTEP - 1:
            assert "g" not in a.vm
            fl = g_items()
        interleave(a, mf, fl, 0, 48)
        if tt + 1 < NSTEP:
            tags = []
            if tt + 2 < NSTEP:
                tags.append(f"B{tt + 2}")
            if tt % 2 == 0:
                tags.append(f"A{tt // 2 + 1}")
            a.wait(tags, lgkm=True)
            if tt + 2 < NSTEP:
                e("s_barrier")

    iters = []
    for it in range(8):
        n0 = len(a.lines)
        for tt in range(4 * it, 4 * it + 4):
            step(tt)
        iters.append(a.lines[n0:])
        del a.lines[n0:]
    for it in range(2, 7):
        assert iters[it] == iters[1], f"iteration {it} differs"
    stamp(a, 3)
    if DIAG and OPT.get('ts'):
        e("s_mov_b32 s78, 0")
    a.lines += iters[0]
    if not OPT.get('ts'):
        stamp(a, 4)
    e(f"s_mov_b32 s{S_CNT}, 6")
    a.label(f"L_k1{T}_loop")
    a.lines += iters[1]
    e(f"s_sub_u32 s{S_CNT}, s{S_CNT}, 1")
    e(f"s_cmp_lg_u32 s{S_CNT}, 0")
    e(f"s_cbranch_scc1 L_k1{T}_loop")
    a.lines += iters[7]
    assert all(not t.startswith(("A", "B")) for t in a.vm), a.vm

    stamp(a, 5)

    def fin():
        stamp(a, 6)
        stamp(a, 7)
        k = a.vm_count(["#eA"], drop=False)
        if DIAG:
            k += 16
        stamp_dump(a, 0, 8, S_WAVE, S_PTR + 20, S_PTR + 21, V_T)
        e(f"s_cmp_eq_u32 s{P_SEARLY}, 0")
        e("s_cbranch_scc1 L_p2_late")
        e(f"s_waitcnt vmcnt({k})")
        e("s_branch L_p2_go")

    def fe_load():
        a.vmem(f"buffer_load_dwordx2 v[{P_VFL}:{P_VFL + 1}], v{P_VFA}, s[{S_WS}:{S_WS + 3}], 0 offen sc1", "fe")

    def fe_check():
        a.wait(["fe"])
        e(f"v_cmp_eq_u64 vcc, v[{P_VFL}:{P_VFL + 1}], v[{V_TOK}:{V_TOK + 1}]")
        e(f"s_mov_b32 s{P_SEARLY}, 0")
        e("s_nop 0")
        e("s_cmp_eq_u64 vcc, -1")
        e(f"s_cbranch_scc0 L_k1{T}_noearly")
        p2_issueA(a)
        e(f"s_mov_b32 s{P_SEARLY}, 1")
        a.label(f"L_k1{T}_noearly")
        a.mark("eA")

    def setflag(lane):
        a.label(f"L_k1{T}_tw")
        e(f"v_readfirstlane_b32 s{S_T}, v{V_TOK + 1}")
        e(f"v_readfirstlane_b32 s{S_T + 1}, v{V_TOK}")
        e("s_nop 3")
        e(f"s_min_u32 s{S_T}, s{S_T}, s{S_T + 1}")
        e(f"s_cmp_lg_u32 s{S_T}, 0")
        e(f"s_cbranch_scc1 L_k1{T}_tok")
        e("s_sleep 4")
        e(f"buffer_load_dwordx2 v[{V_TOK}:{V_TOK + 1}], v12, s[{S_T + 4}:{S_T + 7}], 0 offen sc1")
        e("s_waitcnt vmcnt(0)")
        e(f"s_branch L_k1{T}_tw")
        a.label(f"L_k1{T}_tok")
        e(f"s_mov_b64 exec, {1 << lane}")
        a.vmem(f"buffer_store_dwordx2 v[{V_TOK}:{V_TOK + 1}], v0, s[{S_WS}:{S_WS + 3}], 0 offen sc1", "fl")
        e("s_mov_b64 exec, -1")
    e("s_barrier")
    e(f"s_mov_b32 s{S_L2E}, {L2E_HEX}")
    e(f"s_mov_b32 s{S_L2E + 1}, {L2E_HEX}")
    e(f"s_lshl_b32 s{S_T}, s{S_RB}, 1")
    e(f"s_lshr_b32 s{S_T + 1}, s{S_WAVE}, 1")
    e(f"s_add_u32 s{S_T}, s{S_T}, s{S_T + 1}")
    e(f"s_mul_i32 s{S_AFB}, s{S_T}, {144 * 8192}")
    e(f"s_and_b32 s{S_T + 1}, s{S_WAVE}, 1")
    e(f"s_lshl_b32 s{S_T + 1}, s{S_T + 1}, 12")
    e(f"s_add_u32 s{S_AFB}, s{S_AFB}, s{S_T + 1}")
    e("s_nop 7")
    TT, UU = V_T, V_T + 8

    def phi_group(ra, rb_):
        prs = [ra, ra + 2, rb_, rb_ + 2]
        for j, p in enumerate(prs):
            e(f"v_pk_mul_f32 {vr(TT + 2 * j, 2)}, {vr(p, 2)}, s[{S_L2E}:{S_L2E + 1}]")
        for j in range(8):
            e(f"v_exp_f32_e64 v{TT + j}, v{TT + j} clamp")
        for p in prs:
            e(f"v_max_f32 v{p}, {EPS_HEX}, v{p}")
            e(f"v_max_f32 v{p + 1}, {EPS_HEX}, v{p + 1}")
        for j, p in enumerate(prs):
            e(f"v_pk_add_f32 {vr(p, 2)}, {vr(p, 2)}, {vr(TT + 2 * j, 2)}")
        for j, p in enumerate(prs):
            e(f"v_cvt_pk_bf16_f32 v{ra + j}, v{p}, v{p + 1}")

    def cvt_group(ra, rb_):
        prs = [ra, ra + 2, rb_, rb_ + 2]
        for j, p in enumerate(prs):
            e(f"v_cvt_pk_bf16_f32 v{ra + j}, v{p}, v{p + 1}")

    def mish_group(ra, rb_, split=False, dst=None):
        prs = [ra, ra + 2, rb_, rb_ + 2]
        for j, p in enumerate(prs):
            e(f"v_pk_mul_f32 {vr(TT + 2 * j, 2)}, {vr(p, 2)}, s[{S_L2E}:{S_L2E + 1}]")
        for j in range(8):
            e(f"v_exp_f32 v{TT + j}, v{TT + j}")
        for j in range(4):
            e(f"v_pk_fma_f32 {vr(UU + 2 * j, 2)}, {vr(TT + 2 * j, 2)}, 0.5, 1.0 op_sel_hi:[1,0,0]")
        for j in range(4):
            e(f"v_pk_fma_f32 {vr(UU + 2 * j, 2)}, {vr(TT + 2 * j, 2)}, {vr(UU + 2 * j, 2)}, 1.0 op_sel_hi:[1,1,0]")
        for j in range(8):
            e(f"v_rcp_f32 v{UU + j}, v{UU + j}")
        for j, p in enumerate(prs):
            e(f"v_pk_fma_f32 {vr(p, 2)}, {vr(UU + 2 * j, 2)}, {vr(p, 2)}, {vr(p, 2)} neg_lo:[1,0,0] neg_hi:[1,0,0]")
        if split:
            e(f"v_cvt_pk_bf16_f32 v{ra}, v{ra}, v{ra + 1}")
            e(f"v_cvt_pk_bf16_f32 v{ra + 1}, v{ra + 2}, v{ra + 3}")
            e(f"v_cvt_pk_bf16_f32 v{rb_}, v{rb_}, v{rb_ + 1}")
            e(f"v_cvt_pk_bf16_f32 v{rb_ + 1}, v{rb_ + 2}, v{rb_ + 3}")
        else:
            dd = ra if dst is None else dst
            for j, p in enumerate(prs):
                e(f"v_cvt_pk_bf16_f32 v{dd + j}, v{p}, v{p + 1}")

    WS = f"s[{S_WS}:{S_WS + 3}]"

    def set_kb(sreg, mul, add):
        e(f"s_mul_i32 s{sreg}, s{S_P}, {mul * 8192}")
        e(f"s_add_u32 s{sreg}, s{sreg}, {add * 8192}")
        e(f"s_add_u32 s{sreg}, s{sreg}, s{S_AFB}")

    def h_late(tA, kbl, sreg, mid=None):
        set_kb(sreg, 7, kbl)
        for mt in range(4):
            mish_group(acc(tA, mt), acc(tA + 1, mt))
            if mt == 1 and mid:
                mid()

    def h_half_late(tA, half):
        set_kb(P_SL + 2, 7, 2)
        if half:
            e(f"s_add_u32 s{P_SL + 2}, s{P_SL + 2}, 512")
        for mp in range(2):
            mish_group(acc(tA, 2 * mp), acc(tA, 2 * mp + 1), dst=240 + 4 * mp)
        e("s_nop 1")
        for mp in range(2):
            e(f"v_permlane16_swap_b32 v{240 + 4 * mp}, v{242 + 4 * mp}")
            e(f"v_permlane16_swap_b32 v{241 + 4 * mp}, v{243 + 4 * mp}")

    def h_full(tA, kbl, tag='st'):
        set_kb(S_T + 2, 7, kbl)
        for mt in range(4):
            mish_group(acc(tA, mt), acc(tA + 1, mt))
            a.vmem(f"buffer_store_dwordx4 {vr(acc(tA, mt))}, v{V_L16}, {WS}, s{S_T + 2} offen offset:{1024 * mt} {OPT['st']}", tag)

    def h_half(tA, kbl, half):
        set_kb(S_T + 2, 7, kbl)
        for mp in range(2):
            mish_group(acc(tA, 2 * mp), acc(tA, 2 * mp + 1), split=True)
            for mt in (2 * mp, 2 * mp + 1):
                a.vmem(f"buffer_store_dwordx2 {vr(acc(tA, mt), 2)}, v{V_L16}, {WS}, s{S_T + 2} offen offset:{1024 * mt + 8 * half} {OPT['st']}", "st")

    if typ == 1:
        h_full(5, 3, "se")
        h_full(7, 4, "se")
        p2_early(a)
        for hd in range(2):
            set_kb(S_T + 2, 2, 112 + hd)
            for mt in range(4):
                phi_group(acc(2 * hd, mt), acc(2 * hd + 1, mt))
                a.vmem(f"buffer_store_dwordx4 {vr(acc(2 * hd, mt))}, v{V_L16}, {WS}, s{S_T + 2} offen offset:{1024 * mt} {OPT['st']}", "sq")
                if 4 * hd + mt == OPT.get('fepos', 4):
                    a.wait(["se", "zc"])
                    setflag(0)
        h_late(9, 5, P_SL, mid=fe_load)
        h_late(11, 6, P_SL + 1, mid=fe_check)
        h_half_late(4, 1)
        fin()
        return

    h_full(8, 0, "se")
    h_full(10, 1, "se")
    p2_early(a)
    ONES = V_T + 16
    for r in range(4):
        e(f"v_mov_b32 v{ONES + r}, 0x3f803f80")
    for t in range(4):
        for pr in range(2):
            phi_group(acc(t, 2 * pr), acc(t, 2 * pr + 1))
            if 2 * t + pr == OPT.get('fepos', 4):
                a.wait(["se", "zc"])
                setflag(0)
    for t in range(4, 8):
        for pr in range(2):
            cvt_group(acc(t, 2 * pr), acc(t, 2 * pr + 1))
    e("s_nop 1")
    free = [acc(t, m) for t in range(8) for m in (1, 3)]

    def Dt(tau):
        return free[tau]
    for pr in range(2):
        for hd in range(2):
            for dt in range(2):
                for et in range(3):
                    tau = hd * 6 + dt * 3 + et
                    Aop = vr(acc(2 * hd + dt, 2 * pr))
                    Bop = vr(acc(4 + 2 * hd + et, 2 * pr)) if et < 2 else vr(ONES)
                    C = "0" if pr == 0 else vr(Dt(tau))
                    e(f"v_mfma_f32_16x16x32_bf16 {vr(Dt(tau))}, {Aop}, {Bop}, {C}")
    vw, vrd = V_T + 20, V_T + 21
    e(f"s_mul_i32 s{S_T}, s{S_WAVE}, 12288")
    e(f"s_add_u32 s{S_T}, s{S_T}, 98304")
    e(f"v_add_u32 v{vw}, s{S_T}, v{V_L16}")
    e(f"s_mul_i32 s{S_T}, s{S_WAVE}, 3072")
    e(f"s_add_u32 s{S_T}, s{S_T}, 98304")
    e(f"v_add_u32 v{vrd}, s{S_T}, v{V_L16}")
    fe_load()
    e("s_nop 7")
    for tau in range(12):
        e(f"ds_write_b128 v{vw}, {vr(Dt(tau))} offset:{1024 * tau}")
    e(f"s_lshl_b32 s{S_T}, s{S_P}, 3")
    e(f"s_add_u32 s{S_T}, s{S_T}, s{S_RB}")
    e(f"s_mul_i32 s{S_T}, s{S_T}, 12288")
    e(f"s_mul_i32 s{S_T + 1}, s{S_WAVE}, 3072")
    e(f"s_add_u32 s{S_T}, s{S_T}, s{S_T + 1}")
    e(f"s_add_u32 s{S_T + 10}, s{S_T}, {KVP_OFF}")
    h_half_late(12, 0)
    e(f"s_mov_b32 s{P_SL}, 0x7ff00000")
    e(f"s_mov_b32 s{P_SL + 1}, 0x7ff00000")
    e("s_waitcnt lgkmcnt(0)")
    e("s_barrier")
    R = [acc(t, m) for t in range(8) for m in (0, 2)]
    for w2 in range(4):
        for j in range(3):
            e(f"ds_read_b128 {vr(R[3 * w2 + j])}, v{vrd} offset:{12288 * w2 + 1024 * j}")
    fe_check()
    e("s_waitcnt lgkmcnt(0)")
    for j in range(3):
        for h2 in range(2):
            b0 = R[j] + 2 * h2
            e(f"v_pk_add_f32 {vr(b0, 2)}, {vr(b0, 2)}, {vr(R[3 + j] + 2 * h2, 2)}")
            e(f"v_pk_add_f32 {vr(R[6 + j] + 2 * h2, 2)}, {vr(R[6 + j] + 2 * h2, 2)}, {vr(R[9 + j] + 2 * h2, 2)}")
        for h2 in range(2):
            b0 = R[j] + 2 * h2
            e(f"v_pk_add_f32 {vr(b0, 2)}, {vr(b0, 2)}, {vr(R[6 + j] + 2 * h2, 2)}")
        a.vmem(f"buffer_store_dwordx4 {vr(R[j])}, v{V_L16}, {WS}, s{S_T + 10} offen offset:{1024 * j} sc1", "sq")
    fin()


def gen_k1():
    a = Asm()
    e = a.e
    a.lines.append(".globl KNAME\n.p2align 8\n.type KNAME,@function\nKNAME:")
    if OPT.get('spin'):
        stamp(a, 0)
    e("s_cmp_ge_u32 s2, 256")
    e("s_cbranch_scc1 L_k1_exit")
    e(f"s_load_dwordx16 s[{S_PTR}:{S_PTR + 15}], s[0:1], 0")
    if OPT.get('cpf') >= 2:
        e(f"s_getpc_b64 s[{S_CB}:{S_CB + 1}]")
        a.label("L_pc_0")
        e(f"s_sub_u32 s{S_CB}, s{S_CB}, L_pc_0-KNAME")
        e(f"s_subb_u32 s{S_CB + 1}, s{S_CB + 1}, 0")
        e(f"s_lshl_b32 s{S_T}, s2, 12")
        e(f"s_and_b32 s{S_T}, s{S_T}, 0x18000")
        e(f"v_lshlrev_b32 v{V_T + 29}, 7, v0")
        e(f"v_add_u32 v{V_T + 29}, s{S_T}, v{V_T + 29}")
        e(f"v_min_u32 v{V_T + 29}, L_code_end-KNAME-4, v{V_T + 29}")
        e(f"global_load_dword v{V_T + 28}, v{V_T + 29}, s[{S_CB}:{S_CB + 1}]")
    e(f"s_load_dwordx4 s[{S_PTR + 16}:{S_PTR + 19}], s[0:1], 64")
    e(f"s_load_dwordx2 s[{S_PTR + 20}:{S_PTR + 21}], s[0:1], 80")
    e(f"v_and_b32 v{V_LANE}, 63, v0")
    e(f"v_lshrrev_b32 v{V_T}, 6, v0")
    e(f"s_and_b32 s{S_T}, s2, 7")
    e(f"v_readfirstlane_b32 s{S_WAVE}, v{V_T}")
    e(f"s_lshr_b32 s{S_T + 1}, s2, 3")
    if OPT.get('map1', 0) == 0:
        e(f"s_and_b32 s{S_RB}, s{S_T}, 1")
        e(f"s_lshl_b32 s{S_RB}, s{S_RB}, 2")
        e(f"s_and_b32 s{S_T + 2}, s{S_T + 1}, 3")
        e(f"s_add_u32 s{S_RB}, s{S_RB}, s{S_T + 2}")
        e(f"s_lshr_b32 s{S_T}, s{S_T}, 1")
        e(f"s_lshl_b32 s{S_T}, s{S_T}, 3")
        e(f"s_lshr_b32 s{S_T + 1}, s{S_T + 1}, 2")
        e(f"s_add_u32 s{S_T}, s{S_T}, s{S_T + 1}")
    elif OPT['map1'] == 1:
        e(f"s_and_b32 s{S_RB}, s{S_T + 1}, 7")
        e(f"s_lshl_b32 s{S_T}, s{S_T}, 2")
        e(f"s_lshr_b32 s{S_T + 1}, s{S_T + 1}, 3")
        e(f"s_add_u32 s{S_T}, s{S_T}, s{S_T + 1}")
    else:
        e(f"s_and_b32 s{S_RB}, s{S_T}, 3")
        e(f"s_lshl_b32 s{S_RB}, s{S_RB}, 1")
        e(f"s_and_b32 s{S_T + 2}, s{S_T + 1}, 1")
        e(f"s_add_u32 s{S_RB}, s{S_RB}, s{S_T + 2}")
        e(f"s_lshr_b32 s{S_T}, s{S_T}, 2")
        e(f"s_lshl_b32 s{S_T}, s{S_T}, 4")
        e(f"s_lshr_b32 s{S_T + 1}, s{S_T + 1}, 1")
        e(f"s_add_u32 s{S_T}, s{S_T}, s{S_T + 1}")
    e(f"s_lshr_b32 s{S_P}, s{S_T}, 1")
    e(f"s_and_b32 s{S_T + 3}, s{S_T}, 1")
    e(f"s_cmp_lg_u32 s{S_T + 3}, 0")
    e("s_cbranch_scc1 L_k1_typeB")
    k1_body(a, 0)
    a.label("L_k1_typeB")
    a.vm = []
    k1_body(a, 1)
    a.vm = []
    phase2(a)
    a.label("L_k1_exit")
    e("s_endpgm")
    a.label("L_code_end")
    return a.lines


def K2_LDS():
    return OPT['S'] * 32768 + 24576


def fold_loops(a, iters, period, scnt, name):
    n = len(iters)
    i = 0
    lab = 0
    while i < n:
        reps = 1
        while i + (reps + 1) * period <= n and all(
                iters[i + k] == iters[i + reps * period + k] for k in range(period)):
            reps += 1
        if reps >= 2:
            a.e(f"s_mov_b32 s{scnt}, {reps}")
            a.label(f"L_{name}_{lab}")
            for k in range(period):
                a.lines += iters[i + k]
            a.e(f"s_sub_u32 s{scnt}, s{scnt}, 1")
            a.e(f"s_cmp_lg_u32 s{scnt}, 0")
            a.e(f"s_cbranch_scc1 L_{name}_{lab}")
            lab += 1
            i += reps * period
        else:
            a.lines += iters[i]
            i += 1


def schedule(a, mf, streams):
    n = len(mf)
    placed = []
    for si, (items, start, end) in enumerate(streams):
        m = len(items)
        prev = 0
        for j, it in enumerate(items):
            fn, early = it if isinstance(it, tuple) else (it, 0)
            pos = start + (j * (end - start)) / max(m, 1)
            pos = max(pos, early, prev)
            prev = pos
            placed.append((pos, si, j, fn))
    placed.sort(key=lambda x: (x[0], x[1], x[2]))
    k = 0
    if n == 0:
        for p in placed:
            p[3]()
        return
    for i in range(n):
        a.e(mf[i])
        while k < len(placed) and placed[k][0] < i + 1:
            placed[k][3]()
            k += 1
    while k < len(placed):
        placed[k][3]()
        k += 1


P_SW2, P_SWO, P_SWS, P_SOUT = 96, 20, 16, 4
P_SMT, P_SNT, P_SROLE, P_STILE = 8, 9, 10, 11
P_SOA, P_SOB, P_SOP, P_SM0A, P_SM0B = 12, 13, 14, 15, 27
P_SHD, P_SM2, P_SEARLY = 28, 29, 30
P_VBD = 2
P_SLOT = 32768


def tile_decode(a, smt, snt, srole, stile, st):
    e = a.e
    e(f"s_and_b32 s{st}, s2, 7")
    e(f"s_lshr_b32 s{st + 1}, s2, 3")
    e(f"s_and_b32 s{srole}, s{st}, 1")
    e(f"s_lshr_b32 s{st}, s{st}, 1")
    if OPT['map'] == 0:
        e(f"s_and_b32 s{smt}, s{st}, 1")
        e(f"s_lshl_b32 s{smt}, s{smt}, 3")
        e(f"s_and_b32 s{stile}, s{st + 1}, 7")
        e(f"s_add_u32 s{smt}, s{smt}, s{stile}")
        e(f"s_lshr_b32 s{snt}, s{st}, 1")
        e(f"s_lshl_b32 s{snt}, s{snt}, 2")
        e(f"s_lshr_b32 s{st + 1}, s{st + 1}, 3")
        e(f"s_add_u32 s{snt}, s{snt}, s{st + 1}")
    else:
        e(f"s_lshl_b32 s{smt}, s{st}, 2")
        e(f"s_and_b32 s{stile}, s{st + 1}, 3")
        e(f"s_add_u32 s{smt}, s{smt}, s{stile}")
        e(f"s_lshr_b32 s{snt}, s{st + 1}, 2")
    e(f"s_lshl_b32 s{stile}, s{smt}, 3")
    e(f"s_add_u32 s{stile}, s{stile}, s{snt}")


P_VAD, P_VFA, P_VFL = 8, 9, 10
P_SSA, P_SSB = 31, 32
P_SL = 4


def p2_setrun(a, first_expr, stride):
    e = a.e
    c0, c1 = first_expr
    e(f"s_lshr_b32 s{S_T + 11}, s{S_WAVE}, 1")
    e(f"s_mul_i32 s{S_T + 11}, s{S_T + 11}, {c1}")
    e(f"s_add_u32 s{S_T + 11}, s{S_T + 11}, {c0}")
    return S_T + 11


def p2_early(a):
    e = a.e
    S = OPT['S']
    ST = S_T
    tile_decode(a, P_SMT, P_SNT, P_SROLE, P_STILE, ST)
    vi, vG, t0, t1, t2 = 6, 7, 8, 9, 10
    e(f"v_and_b32 v{vi}, 15, v{V_LANE}")
    e(f"v_lshrrev_b32 v{vG}, 4, v{V_LANE}")
    e(f"s_lshl_b32 s{P_SM0A}, s{S_WAVE}, 12")
    e(f"s_add_u32 s{P_SM0B}, s{P_SM0A}, 16384")
    e(f"s_lshl_b32 s{ST}, s{P_SNT}, 8")
    e(f"s_and_b32 s{ST + 3}, s{S_WAVE}, 1")
    e(f"s_lshl_b32 s{ST + 1}, s{ST + 3}, 15")
    e(f"s_add_u32 s{ST}, s{ST}, s{ST + 1}")
    e(f"v_lshlrev_b32 v{t0}, 11, v{vG}")
    e(f"v_add_u32 v{t0}, s{ST}, v{t0}")
    e(f"v_lshlrev_b32 v{t1}, 1, v{vG}")
    e(f"v_xor_b32 v{t1}, v{t1}, v{vi}")
    for j in range(4):
        if j & 1:
            e(f"v_xor_b32 v{t2}, 8, v{t1}")
            e(f"v_lshlrev_b32 v{t2}, 4, v{t2}")
        else:
            e(f"v_lshlrev_b32 v{t2}, 4, v{t1}")
        e(f"v_add_u32 v{t2}, v{t2}, v{t0}")
        e(f"v_add_u32 v{P_VBD + j}, {j * (8192 - 1024)}, v{t2}")
    e(f"s_mul_i32 s{ST}, s{P_SROLE}, 3")
    e(f"s_lshr_b32 s{ST + 1}, s{S_WAVE}, 1")
    e(f"s_add_u32 s{ST}, s{ST}, s{ST + 1}")
    e(f"s_lshl_b32 s{P_SOB}, s{ST}, 16")
    e(f"s_mul_i32 s{P_SOA}, s{P_SMT}, 144")
    e(f"s_add_u32 s{P_SOA}, s{P_SOA}, s{ST}")
    e(f"s_lshl_b32 s{P_SOA}, s{P_SOA}, 13")
    e(f"s_mov_b32 s{P_SSA}, {7 * 8192}")
    e(f"s_mov_b32 s{P_SSB}, {7 * 65536}")
    srd(a, ST + 4, S_PTR + 18, S_PTR + 19, 256)
    e(f"v_mov_b32 v12, 0")
    a.vmem(f"buffer_load_dwordx2 v[{V_TOK}:{V_TOK + 1}], v12, s[{ST + 4}:{ST + 7}], 0 offen sc1", "zc")
    for j in range(S - 1):
        e(f"s_add_u32 m0, s{P_SM0B}, {j * P_SLOT}")
        e("s_nop 0")
        for i in range(4):
            a.vmem(f"buffer_load_dwordx4 v{P_VBD + i}, s[{P_SW2}:{P_SW2 + 3}], s{P_SOB} offen offset:{1024 * i} lds", "eB")
        e(f"s_add_u32 s{P_SOB}, s{P_SOB}, s{P_SSB}")
    e(f"s_lshl_b32 s{ST + 3}, s{ST + 3}, 12")
    e(f"v_add_u32 v{P_VAD}, s{ST + 3}, v{V_L16}")
    e(f"s_lshl_b32 s{ST}, s{P_SMT}, 1")
    e(f"s_add_u32 s{ST}, s{ST}, s{P_SROLE}")
    e(f"s_lshl_b32 s{ST}, s{ST}, 8")
    e(f"s_add_u32 s{ST}, s{ST}, {FE_OFF}")
    e(f"v_and_b32 v{P_VFA}, 31, v{V_LANE}")
    e(f"v_lshlrev_b32 v{P_VFA}, 3, v{P_VFA}")
    e(f"v_add_u32 v{P_VFA}, s{ST}, v{P_VFA}")


def p2_issueA(a):
    e = a.e
    for j in range(OPT['S'] - 1):
        e(f"s_add_u32 m0, s{P_SM0A}, {j * P_SLOT}")
        e("s_nop 0")
        for i in range(4):
            e(f"buffer_load_dwordx4 v{P_VAD}, s[{P_SWS}:{P_SWS + 3}], s{P_SOA} offen offset:{1024 * i} {OPT['k2a']} lds")
        e(f"s_add_u32 s{P_SOA}, s{P_SOA}, s{P_SSA}")


def phase2(a):
    e = a.e
    S = OPT['S']
    n0 = OPT['n0']
    SLOT = P_SLOT
    SCR = S * SLOT
    SWAVE = S_WAVE
    ST = S_T
    SCNT = S_CNT
    SMT, SNT, SROLE, STILE = P_SMT, P_SNT, P_SROLE, P_STILE
    SOA, SOB, SOP, SM0A, SM0B = P_SOA, P_SOB, P_SOP, P_SM0A, P_SM0B
    SW2, SWO, SOUT = P_SW2, P_SWO, P_SOUT
    WS = f"s[{P_SWS}:{P_SWS + 3}]"
    NBASE = (S + 1) // 2
    VL, VL16, VBD = V_LANE, V_L16, P_VBD
    vi, vG = 6, 7
    VZ = 11
    VAD = 8
    VFL = 10
    VFA = 9
    VAR = 12
    VBR = 18
    VT = 30
    VG = 38
    VOMG = 42
    VEPS = 46
    VEPS = 48
    CG = 52
    CR = 60
    CKV = 68
    CW = 80
    VX = 192
    VY = 84
    AC = 128
    t0, t1, t2, t3 = VT, VT + 1, VT + 2, VT + 3

    def acc2(mt, nt):
        return AC + 16 * mt + 4 * nt

    def FA(j, b, mt):
        return 64 * (j % 2) + 32 * b + 4 * mt

    def FB(j, b, nt):
        return 64 * (j % 2) + 32 * b + 16 + 4 * nt

    def setflag(*lanes):
        e(f"s_mov_b64 exec, {sum(1 << l for l in lanes)}")
        a.vmem(f"buffer_store_dwordx2 v[{V_TOK}:{V_TOK + 1}], v0, {WS}, 0 offen sc1", "fl")
        e("s_mov_b64 exec, -1")

    VQ = 120
    VH = 16

    def fq_load():
        a.vmem(f"buffer_load_dwordx2 v[{VQ}:{VQ + 1}], v{VQ + 2}, {WS}, 0 offen sc1", "fq")

    a.label("L_p2_late")
    e(f"buffer_load_dwordx2 v[{VFL}:{VFL + 1}], v{VFA}, {WS}, 0 offen sc1")
    e("s_waitcnt vmcnt(0)")
    e(f"v_cmp_eq_u64 vcc, v[{VFL}:{VFL + 1}], v[{V_TOK}:{V_TOK + 1}]")
    e("s_nop 1")
    e("s_cmp_eq_u64 vcc, -1")
    e("s_cbranch_scc1 L_p2_fok")
    e(f"s_sleep {OPT.get('slp', 4)}")
    e("s_branch L_p2_late")
    a.label("L_p2_fok")
    p2_issueA(a)
    e("s_waitcnt vmcnt(0)")
    a.label("L_p2_go")
    stamp(a, 0)
    a.vm = ["old"]
    e(f"s_and_b32 s{ST}, s{SWAVE}, 1")
    e(f"s_lshl_b32 s{ST}, s{ST}, 12")
    e(f"v_add_u32 v{VAR}, s{ST}, v{VL16}")
    for k in range(1, NBASE):
        e(f"v_add_u32 v{VAR + k}, {65536 * k}, v{VAR}")
    e(f"v_lshlrev_b32 v{t0}, 2, v{vG}")
    e(f"v_lshrrev_b32 v{t1}, 2, v{vi}")
    e(f"v_add_u32 v{t0}, v{t0}, v{t1}")
    e(f"v_and_b32 v{t1}, 7, v{t0}")
    e(f"s_lshr_b32 s{ST}, s{SWAVE}, 1")
    e(f"s_lshl_b32 s{ST}, s{ST}, 2")
    e(f"v_xor_b32 v{t1}, s{ST}, v{t1}")
    e(f"v_lshlrev_b32 v{t0}, 8, v{t0}")
    e(f"v_and_b32 v{t2}, 3, v{vi}")
    e(f"v_lshlrev_b32 v{t2}, 3, v{t2}")
    e(f"v_add_u32 v{t0}, v{t0}, v{t2}")
    e(f"v_add_u32 v{t0}, 16384, v{t0}")
    for nt in range(4):
        e(f"v_xor_b32 v{t3}, {nt}, v{t1}")
        e(f"v_lshlrev_b32 v{t3}, 5, v{t3}")
        e(f"v_add_u32 v{VBR + nt}, v{t0}, v{t3}")
        for k in range(1, NBASE):
            e(f"v_add_u32 v{VBR + 4 * k + nt}, {65536 * k}, v{VBR + nt}")
    e(f"v_and_b32 v{t0}, 1, v{vG}")
    e(f"v_lshlrev_b32 v{t0}, 10, v{t0}")
    e(f"v_lshrrev_b32 v{t1}, 1, v{vG}")
    e(f"v_lshlrev_b32 v{t1}, 8, v{t1}")
    e(f"v_lshlrev_b32 v{VH}, 4, v{vi}")
    e(f"v_add3_u32 v{VH}, v{VH}, v{t0}, v{t1}")
    stamp(a, 1)
    e(f"s_cmp_eq_u32 s{SROLE}, 0")
    e(f"s_cbranch_scc1 L_p2_r0")
    vm_save = list(a.vm)

    import math
    PERIOD = S * 4 // math.gcd(S, 4)

    def body(role):
        R = f"r{role}"
        o0 = OPT.get('o0', 5)
        na0 = n0 - o0
        assert 16 < na0 <= 32 and 5 <= o0 <= 11
        nact = na0 if role == 0 else 56 - na0
        N = nact + (o0 if role == 0 else 16 - o0)
        JO = nact - (S - 1)
        JP = N - OPT['pj']
        if role == 0:
            runs = {16: (5, 1, 7)}
        else:
            nl1 = 32 - na0
            runs = {16 + nl1: (2, 7, 14)}
            if nl1:
                runs[16] = (5 + 7 * (na0 - 16), 1, 7)

        def bperm(op):
            e(f"s_and_b32 s{ST + 9}, s{SWAVE}, 1")
            e(f"s_mul_i32 s{ST + 9}, s{ST + 9}, {-12 * 2048}")
            for j4 in range(4):
                e(f"{op} v{VBD + j4}, s{ST + 9}, v{VBD + j4}")
                if j4 < 3:
                    e(f"s_add_u32 s{ST + 9}, s{ST + 9}, {4 * 2048}")

        def newrun(j):
            if j == nact:
                def sw():
                    e(f"s_lshr_b32 s{ST + 11}, s{SWAVE}, 1")
                    if role:
                        e(f"s_add_u32 s{ST + 11}, s{ST + 11}, {2 * o0}")
                    e(f"s_lshl_b32 s{SOB}, s{ST + 11}, 16")
                    e(f"s_lshl_b32 s{SOA}, s{SMT}, 5")
                    e(f"s_add_u32 s{SOA}, s{SOA}, s{ST + 11}")
                    e(f"s_lshl_b32 s{SOA}, s{SOA}, 13")
                    e(f"s_add_u32 s{SOA}, s{SOA}, {OF_OFF}")
                    e(f"s_mov_b32 s{P_SSA}, 16384")
                    e(f"s_mov_b32 s{P_SSB}, 131072")
                    if role == 1:
                        bperm("v_subrev_u32")
                return [sw]
            if j in runs:
                c0, c1, st_ = runs[j]

                def sw():
                    r = p2_setrun(a, (c0, c1), st_)
                    e(f"s_lshl_b32 s{SOB}, s{r}, 16")
                    e(f"s_mul_i32 s{SOA}, s{SMT}, 144")
                    e(f"s_add_u32 s{SOA}, s{SOA}, s{r}")
                    e(f"s_lshl_b32 s{SOA}, s{SOA}, 13")
                    e(f"s_mov_b32 s{P_SSA}, {st_ * 8192}")
                    e(f"s_mov_b32 s{P_SSB}, {st_ * 65536}")
                    if st_ == 14:
                        bperm("v_add_u32")
                return [sw]
            return []

        def dmaA(j):
            f = newrun(j)
            f.append(lambda: e(f"s_add_u32 m0, s{SM0A}, {(j % S) * SLOT}"))
            for i in range(4):
                f.append(lambda i=i: a.vmem(
                    f"buffer_load_dwordx4 v{VAD}, {WS}, s{SOA} offen offset:{1024 * i} {OPT['k2a']} lds", f"D{j}"))
            f.append(lambda: e(f"s_add_u32 s{SOA}, s{SOA}, s{P_SSA}"))
            return f

        def dmaB(j):
            sr = SW2 if j < nact else SWO
            f = []
            f.append(lambda: e(f"s_add_u32 m0, s{SM0B}, {(j % S) * SLOT}"))
            for i in range(4):
                f.append(lambda i=i: a.vmem(
                    f"buffer_load_dwordx4 v{VBD + i}, s[{sr}:{sr + 3}], s{SOB} offen offset:{1024 * i} lds", f"D{j}"))
            f.append(lambda: e(f"s_add_u32 s{SOB}, s{SOB}, s{P_SSB}"))
            return f

        def reads(j):
            sl = j % S
            k, so = sl // 2, (sl % 2) * SLOT
            f = []
            for q in range(4):
                for b in range(2):
                    f.append(lambda b=b, q=q: e(
                        f"ds_read_b128 {ar(FA(j, b, q))}, v{VAR + k} offset:{so + 8192 * b + 1024 * q}"))
                    for ins in range(2):
                        f.append(lambda b=b, q=q, ins=ins: e(
                            f"ds_read_b64_tr_b16 {ar(FB(j, b, q) + 2 * ins, 2)}, v{VBR + 4 * k + q} offset:{so + 8192 * b + 4096 * ins}"))
            return f

        late = []
        for mp in range(2):
            late.append(f"buffer_store_dwordx4 {vr(240 + 4 * mp)}, v{VH}, {WS}, s{P_SL + 2} offen offset:{2048 * mp} sc1")
        for g_, base in enumerate((192, 224)):
            for mt in range(4):
                late.append(f"buffer_store_dwordx4 {vr(base + 4 * mt)}, v{VL16}, {WS}, s{P_SL + g_} offen offset:{1024 * mt} sc1")
        TR = OPT.get('tr', 3)
        NTR = -(-10 // TR)

        e("s_barrier")
        stamp(a, 2)
        VK = 48
        PD, PO, PEPS, PR = 48, 96, 112, 116

        def poll(lab, vv, reload):
            a.label(f"L_p2{R}_{lab}w")
            e(f"v_cmp_eq_u64 vcc, v[{vv}:{vv + 1}], v[{V_TOK}:{V_TOK + 1}]")
            e("s_nop 1")
            e("s_cmp_eq_u64 vcc, -1")
            e(f"s_cbranch_scc1 L_p2{R}_{lab}ok")
            e("s_sleep 4")
            sv = list(a.vm)
            reload()
            a.vm = sv
            e("s_waitcnt vmcnt(0)")
            e(f"s_branch L_p2{R}_{lab}w")
            a.label(f"L_p2{R}_{lab}ok")

        def fl_load(tag="F"):
            a.vmem(f"buffer_load_dwordx2 v[{VFL}:{VFL + 1}], v{VFA}, {WS}, 0 offen sc1", tag)

        def red_guard(lab):
            e(f"s_cmp_eq_u32 s{P_SEARLY}, 0")
            e(f"s_cbranch_scc1 L_p2{R}_{lab}")

        J1 = OPT.get('j1', 4)
        J2 = OPT.get('j2', 12)

        def pre(j):
            if j == 2:
                a.wait(["old"])
            if j == NTR + 3:
                a.wait(["sl"])
            if j == 16 - S + 1:
                a.wait(["FL"])
                poll("l", VFL, fl_load)
            if j == J2 + 2:
                a.wait(["fq"])
                poll("k", VQ, fq_load)
            if j == J2 + 4:
                a.wait(["pq"])
            if j == J2 + 8:
                a.wait(["ost"])
            if j == JO:
                a.wait(["F"])
                poll("o", VFL, fl_load)
            if role == 1 and j == JP:
                a.wait(["F2"])
                poll("p", VFL, fl_load)

        def extra(j):
            if j == 2:
                setflag(1)
            if j == J1:
                e(f"s_and_b32 s{ST}, s2, 3")
                e(f"s_cmp_eq_u32 s{ST}, s{SWAVE}")
                e(f"s_cselect_b32 s{P_SEARLY}, 1, 0")
                e(f"s_cmp_lt_u32 s2, 192")
                e(f"s_cselect_b32 s{P_SEARLY}, s{P_SEARLY}, 0")
                e(f"s_mul_i32 s{P_SHD}, s2, 171")
                e(f"s_lshr_b32 s{P_SHD}, s{P_SHD}, 10")
                e(f"s_min_u32 s{P_SHD}, s{P_SHD}, 31")
                e(f"s_lshr_b32 s{ST}, s{P_SHD}, 1")
                e(f"s_lshl_b32 s{ST}, s{ST}, 9")
                e(f"s_add_u32 s{ST}, s{ST}, {FQ_OFF}")
                e(f"v_and_b32 v{VQ + 2}, 31, v{VL}")
                e(f"v_lshlrev_b32 v{VQ + 2}, 3, v{VQ + 2}")
                e(f"v_add_u32 v{VQ + 2}, s{ST}, v{VQ + 2}")
                fq_load()
            if j == NTR + 3:
                setflag(4)
                srd(a, SOUT, S_PTR + 16, S_PTR + 17, 2048 * 1024 * 2)
            if j == 16 - S - 1:
                e(f"s_lshl_b32 s{ST}, s{SMT}, 9")
                e(f"s_add_u32 s{ST}, s{ST}, {FA_OFF}")
                e(f"v_lshlrev_b32 v{VFA}, 3, v{VL}")
                e(f"v_add_u32 v{VFA}, s{ST}, v{VFA}")
                fl_load("FL")
            if j == 16 - S + 2:
                e(f"v_lshlrev_b32 v{t1}, 2, v{vi}")
                e(f"s_lshl_b32 s{ST}, s{SMT}, 9")
                e(f"s_and_b32 s{ST + 1}, s{SWAVE}, 1")
                e(f"s_lshl_b32 s{ST + 1}, s{ST + 1}, 8")
                e(f"s_add_u32 s{ST}, s{ST}, s{ST + 1}")
                e(f"s_add_u32 s{ST}, s{ST}, {G_OFF}")
                for i in range(4):
                    a.vmem(f"buffer_load_dword v{VG + i}, v{t1}, {WS}, s{ST} offen offset:{64 * i}", "g")
            if j == J2:
                e(f"s_and_b32 s{P_SHD}, s2, 31")
                e(f"s_lshr_b32 s{P_SM2}, s2, 5")
                e(f"s_lshr_b32 s{ST}, s{P_SHD}, 1")
                e(f"s_lshl_b32 s{ST}, s{ST}, 4")
                e(f"s_add_u32 s{ST}, s{ST}, s{P_SM2}")
                e(f"s_lshl_b32 s{ST}, s{ST}, 2")
                e(f"s_add_u32 s{ST}, s{ST}, s{SWAVE}")
                e(f"s_lshl_b32 s{ST}, s{ST}, 3")
                e(f"s_add_u32 s{ST}, s{ST}, {FQ_OFF + 256}")
                e(f"s_lshl_b32 s{ST + 1}, s{P_SHD}, 6")
                e(f"s_add_u32 s{ST + 1}, s{ST + 1}, {FK_OFF}")
                e(f"v_lshlrev_b32 v{VQ + 2}, 3, v{VL}")
                e(f"v_add_u32 v{VQ + 2}, s{ST + 1}, v{VQ + 2}")
                e(f"v_mov_b32 v{t0}, s{ST}")
                e(f"v_cmp_gt_u32 s[{ST + 2}:{ST + 3}], 6, v{VL}")
                e("s_nop 1")
                e(f"v_cndmask_b32 v{VQ + 2}, v{t0}, v{VQ + 2}, s[{ST + 2}:{ST + 3}]")
                e(f"s_lshl_b32 s{P_SM2}, s{P_SM2}, 1")
                e(f"s_lshr_b32 s{ST}, s{SWAVE}, 1")
                e(f"s_add_u32 s{P_SM2}, s{P_SM2}, s{ST}")
                fq_load()
            if j == J2 + 2:
                e(f"s_mul_i32 s{ST}, s{P_SHD}, 3072")
                e(f"s_add_u32 s{ST}, s{ST}, {KVF_OFF}")
                e(f"v_lshlrev_b32 v{t0}, 3, v{VL}")
                for i in range(6):
                    a.vmem(f"buffer_load_dwordx2 {ar(144 + 2 * i, 2)}, v{t0}, {WS}, s{ST} offen offset:{512 * i}", "pq")
                e(f"s_mul_i32 s{ST}, s{P_SM2}, 144")
                e(f"s_add_u32 s{ST}, s{ST}, s{P_SHD}")
                e(f"s_add_u32 s{ST}, s{ST}, 112")
                e(f"s_lshl_b32 s{ST}, s{ST}, 13")
                for i in range(4):
                    a.vmem(f"buffer_load_dwordx4 {ar(128 + 4 * i)}, v{VAD}, {WS}, s{ST} offen offset:{1024 * i}", "pq")
                e(f"s_lshl_b32 s{SOP}, s{P_SM2}, 5")
                e(f"s_add_u32 s{SOP}, s{SOP}, s{P_SHD}")
                e(f"s_lshl_b32 s{SOP}, s{SOP}, 13")
                e(f"s_add_u32 s{SOP}, s{SOP}, {OF_OFF}")
                for r in range(4):
                    e(f"v_mov_b32 v{PEPS + r}, {EPS_HEX}")
            if j == J2 + 5:
                for i in range(4):
                    e(f"v_rcp_f32 v{PR + i}, v{PD + 12 * i + 8}")
                e("s_nop 0")
                for i in range(4):
                    d = PD + 12 * i
                    for q in range(8):
                        e(f"v_mul_f32 v{d + q}, v{PR + i}, v{d + q}")
                    o = PO + 4 * i
                    for q in range(4):
                        e(f"v_cvt_pk_bf16_f32 v{o + q}, v{d + 2 * q}, v{d + 2 * q + 1}")
                    a.vmem(f"buffer_store_dwordx4 {vr(o)}, v{VAD}, {WS}, s{SOP} offen offset:{1024 * i} sc1", "ost")
            if j == J2 + 8:
                setflag(2)
            if j == JO - OPT.get('fod', 2):
                assert j > J2 + 8
                e(f"s_lshl_b32 s{ST}, s{SMT}, 9")
                e(f"s_add_u32 s{ST}, s{ST}, {FO_OFF}")
                if role == 0:
                    e(f"v_min_u32 v{VFA}, {4 * o0 - 1}, v{VL}")
                else:
                    e(f"v_max_u32 v{VFA}, {4 * o0}, v{VL}")
                e(f"v_lshlrev_b32 v{VFA}, 3, v{VFA}")
                e(f"v_add_u32 v{VFA}, s{ST}, v{VFA}")
                fl_load("F")
            if role == 1 and j == JP - 1:
                e(f"s_lshl_b32 s{ST}, s{STILE}, 8")
                e(f"s_lshl_b32 s{ST + 1}, s{SWAVE}, 3")
                e(f"s_add_u32 s{ST}, s{ST}, s{ST + 1}")
                e(f"s_add_u32 s{ST}, s{ST}, {FP_OFF}")
                e(f"v_mov_b32 v{VFA}, s{ST}")
                fl_load("F2")
            if role == 1 and j == JP:
                e(f"s_lshl_b32 s{ST}, s{STILE}, 16")
                e(f"s_lshl_b32 s{ST + 1}, s{SWAVE}, 13")
                e(f"s_add_u32 s{ST}, s{ST}, s{ST + 1}")
                e(f"s_add_u32 s{ST}, s{ST}, {PART_OFF}")
                for q in range(8):
                    if q == 4:
                        e(f"s_add_u32 s{ST}, s{ST}, 4096")
                    a.vmem(f"buffer_load_dwordx4 {vr(VY + 4 * q)}, v{VL16}, {WS}, s{ST} offen offset:{1024 * (q & 3)} sc1", "PT")

        def post(j):
            if j == J1 + 1:
                red_guard("nr1")
                n_ = a.vm_count(["fq"], drop=False)
                e(f"s_waitcnt vmcnt({n_})")
                poll("q", VQ, fq_load)
                e(f"s_lshr_b32 s{ST}, s{P_SHD}, 1")
                e(f"s_mul_i32 s{ST}, s{ST}, 84")
                e(f"s_add_u32 s{ST}, s{ST}, s2")
                e(f"s_lshl_b32 s{ST}, s{ST}, 10")
                e(f"s_add_u32 s{ST}, s{ST}, {KVP_OFF}")
                for r8 in range(8):
                    e(f"buffer_load_dwordx4 {vr(VK + 4 * r8)}, v{VL16}, {WS}, s{ST} offen")
                    if r8 < 7:
                        e(f"s_add_u32 s{ST}, s{ST}, 12288")
                a.label(f"L_p2{R}_nr1")
                a.mark("r1")
            if j == J1 + 3:
                red_guard("nr2")
                n_ = a.vm_count(["#r1"], drop=False)
                if n_ is not None:
                    e(f"s_waitcnt vmcnt({n_})")
                for st_ in (1, 2, 4):
                    for r8 in range(0, 8, 2 * st_):
                        for q in range(2):
                            b0 = VK + 4 * r8 + 2 * q
                            e(f"v_pk_add_f32 {vr(b0, 2)}, {vr(b0, 2)}, {vr(b0 + 4 * st_, 2)}")
                e(f"v_cvt_pk_bf16_f32 v{VK}, v{VK}, v{VK + 1}")
                e(f"v_cvt_pk_bf16_f32 v{VK + 1}, v{VK + 2}, v{VK + 3}")
                e(f"s_mul_i32 s{ST}, s{P_SHD}, 6")
                e(f"s_sub_u32 s{ST}, s2, s{ST}")
                e(f"s_cmp_ge_u32 s{ST}, 3")
                e(f"s_cselect_b32 s{ST + 1}, 1, 0")
                e(f"s_mul_i32 s{ST + 2}, s{ST + 1}, 3")
                e(f"s_sub_u32 s{ST}, s{ST}, s{ST + 2}")
                e(f"s_mul_i32 s{ST + 2}, s{P_SHD}, 3")
                e(f"s_add_u32 s{ST}, s{ST}, s{ST + 2}")
                e(f"s_lshl_b32 s{ST}, s{ST}, 10")
                e(f"s_lshl_b32 s{ST + 1}, s{ST + 1}, 9")
                e(f"s_add_u32 s{ST}, s{ST}, s{ST + 1}")
                e(f"s_add_u32 s{ST}, s{ST}, {KVF_OFF}")
                e(f"v_lshlrev_b32 v{t0}, 3, v{VL}")
                e(f"buffer_store_dwordx2 {vr(VK, 2)}, v{t0}, {WS}, s{ST} offen sc1")
                a.label(f"L_p2{R}_nr2")
                a.mark("r2")
            if j == J1 + 5:
                red_guard("nr3")
                n_ = a.vm_count(["#r2"], drop=False)
                if n_ is not None:
                    e(f"s_waitcnt vmcnt({n_})")
                e(f"s_mov_b64 exec, {1 << 5}")
                e(f"buffer_store_dwordx2 v[{V_TOK}:{V_TOK + 1}], v0, {WS}, 0 offen sc1")
                e("s_mov_b64 exec, -1")
                a.label(f"L_p2{R}_nr3")

        def interval(j):
            if DIAG and OPT.get('ts2'):
                if j == 0:
                    e("s_mov_b32 s74, 0")
                e("s_memrealtime s[76:77]")
                e("s_waitcnt lgkmcnt(0)")
                e("s_mov_b32 m0, s74")
                e("s_nop 0")
                e(f"v_writelane_b32 v{VT + 7}, s76, m0")
                e("s_add_u32 s74, s74, 1")
            main = []
            if j >= 1:
                for mt in range(4):
                    for nt in range(4):
                        D = vr(acc2(mt, nt) + (64 if j - 1 >= nact else 0))
                        for b in range(2):
                            C = "0" if (j in (1, nact + 1) and b == 0) else D
                            main.append(f"v_mfma_f32_16x16x32_bf16 {D}, {ar(FB(j - 1, b, nt))}, {ar(FA(j - 1, b, mt))}, {C}")
            pre(j)
            if j == J2 + 4:
                pm = []
                for i in range(4):
                    d = PD + 12 * i
                    pq = ar(128 + 4 * i)
                    pm += [f"v_mfma_f32_16x16x32_bf16 {vr(d + 8)}, {ar(152)}, {pq}, {vr(PEPS)}",
                           f"v_mfma_f32_16x16x32_bf16 {vr(d)}, {ar(144)}, {pq}, 0",
                           f"v_mfma_f32_16x16x32_bf16 {vr(d + 4)}, {ar(148)}, {pq}, 0"]
                main = pm + main
            rd = reads(j) if j < N else []
            dm = (dmaA(j + S - 1) + dmaB(j + S - 1)) if j + S - 1 < N else []
            for x in late[TR * j: TR * j + TR]:
                dm.append(lambda x=x: a.vmem(x, "sl"))
            streams = []
            if nact + 1 <= j <= nact + 4:
                mt = j - (nact + 1)
                it = []
                if mt == 0:
                    a.wait(["g"])
                it.append(lambda mt=mt: e(f"v_sub_f32 v{VOMG + mt}, 1.0, v{VG + mt}"))
                for q in range(16):
                    it.append(lambda mt=mt, q=q: e(f"v_mul_f32 v{acc2(mt, 0) + q}, v{VOMG + mt}, v{acc2(mt, 0) + q}"))
                streams.append((it, 10, 30))
            n = max(len(main), 1)
            ex = capture(a, lambda: extra(j), chunk=1)
            if ex:
                streams.append((ex, 1, min(n * 0.97, 1 + 1.2 * len(ex))))
            schedule(a, main, [(rd, 0, n * 0.85), (dm, 0.5, n * 0.95)] + streams)
            post(j)
            if j < N:
                a.wait([f"D{j + 1}"] if j + 1 < N else [], lgkm=True)
                if j + 1 < N:
                    e("s_barrier")

        iters = []
        for j in range(N + 1):
            n_ = len(a.lines)
            if j == 4:
                stamp(a, 3)
            if j == nact:
                stamp(a, 4)
            interval(j)
            iters.append(a.lines[n_:])
            del a.lines[n_:]
        fold_loops(a, iters, PERIOD, SCNT, f"p2{R}")
        stamp(a, 5)
        if role == 0:
            e(f"s_lshl_b32 s{ST}, s{STILE}, 16")
            e(f"s_lshl_b32 s{ST + 1}, s{SWAVE}, 13")
            e(f"s_add_u32 s{ST}, s{ST}, s{ST + 1}")
            e(f"s_add_u32 s{ST}, s{ST}, {PART_OFF}")
            e("s_nop 7")
        else:
            vo = VT + 4
            e(f"v_lshlrev_b32 v{t2}, 11, v{vi}")
            e(f"v_bfe_u32 v{t3}, v{VL}, 4, 1")
            e(f"v_lshlrev_b32 v{t3}, 5, v{t3}")
            e(f"v_add_u32 v{t2}, v{t2}, v{t3}")
            e(f"v_lshrrev_b32 v{t3}, 5, v{VL}")
            e(f"v_lshlrev_b32 v{t3}, 4, v{t3}")
            e(f"v_add_u32 v{vo}, v{t2}, v{t3}")
            e(f"s_lshl_b32 s{ST}, s{SMT}, 7")
            e(f"s_and_b32 s{ST + 1}, s{SWAVE}, 1")
            e(f"s_lshl_b32 s{ST + 1}, s{ST + 1}, 6")
            e(f"s_add_u32 s{ST}, s{ST}, s{ST + 1}")
            e(f"s_lshl_b32 s{ST}, s{ST}, 11")
            e(f"s_lshl_b32 s{ST + 1}, s{SNT}, 8")
            e(f"s_add_u32 s{ST}, s{ST}, s{ST + 1}")
            e(f"s_lshr_b32 s{ST + 1}, s{SWAVE}, 1")
            e(f"s_lshl_b32 s{ST + 1}, s{ST + 1}, 7")
            e(f"s_add_u32 s{ST}, s{ST}, s{ST + 1}")
            a.wait(["PT"])
        for mt in range(4):
            sel = "op_sel:[1,0,0] op_sel_hi:[1,1,1]" if mt & 1 else "op_sel_hi:[0,1,1]"
            for q in range(8):
                b0 = acc2(mt, 0) + 2 * q
                e(f"v_pk_fma_f32 {vr(b0, 2)}, {vr(VG + (mt & 2), 2)}, {vr(b0 + 64, 2)}, {vr(b0, 2)} {sel}")
            if role == 0:
                for h2 in range(2):
                    q = 2 * mt + h2
                    b0 = AC + 8 * q
                    for r in range(4):
                        e(f"v_cvt_pk_bf16_f32 v{b0 + r}, v{b0 + 2 * r}, v{b0 + 2 * r + 1}")
                    e(f"buffer_store_dwordx4 {vr(b0)}, v{VL16}, {WS}, s{ST} offen offset:{1024 * (q & 3)} sc1")
                    if q == 3:
                        e(f"s_add_u32 s{ST}, s{ST}, 4096")
            else:
                for q in range(8):
                    p0 = VY + 8 * mt + q
                    u = 48 + 2 * q
                    e(f"v_lshlrev_b32 v{u}, 16, v{p0}")
                    e(f"v_and_b32 v{u + 1}, 0xffff0000, v{p0}")
                for q in range(8):
                    b0 = acc2(mt, 0) + 2 * q
                    e(f"v_pk_add_f32 {vr(b0, 2)}, {vr(b0, 2)}, {vr(48 + 2 * q, 2)}")
                for pr in range(2):
                    b0 = acc2(mt, 2 * pr)
                    for q in range(4):
                        e(f"v_cvt_pk_bf16_f32 v{b0 + q}, v{b0 + 2 * q}, v{b0 + 2 * q + 1}")
                e("s_nop 1")
                for pr in range(2):
                    b0 = acc2(mt, 2 * pr)
                    e(f"v_permlane16_swap_b32 v{b0}, v{b0 + 2}")
                    e(f"v_permlane16_swap_b32 v{b0 + 1}, v{b0 + 3}")
                for pr in range(2):
                    b0 = acc2(mt, 2 * pr)
                    e(f"buffer_store_dwordx4 {vr(b0)}, v{vo}, s[{SOUT}:{SOUT + 3}], s{ST} offen offset:{64 * pr}")
                if mt < 3:
                    e(f"s_add_u32 s{ST}, s{ST}, 32768")
        if role == 0:
            e("s_waitcnt vmcnt(0)")
            setflag(3)
        stamp(a, 6)
        if DIAG and OPT.get('ts2'):
            e(f"s_mov_b32 s76, s{S_PTR + 20}")
            e(f"s_and_b32 s77, s{S_PTR + 21}, 0xffff")
            e(f"s_mov_b32 s78, 0x4000000")
            e(f"s_mov_b32 s79, 0x20000")
            e(f"s_lshl_b32 s75, s2, 2")
            e(f"s_add_u32 s75, s75, s{S_WAVE}")
            e(f"s_lshl_b32 s75, s75, 8")
            e(f"s_add_u32 s75, s75, {DIAG_OFF + 0x200000}")
            e(f"v_lshlrev_b32 v{VT}, 2, v{VL}")
            e(f"buffer_store_dword v{VT + 7}, v{VT}, s[76:79], s75 offen")
        if DIAG:
            e("s_waitcnt vmcnt(0)")
        stamp(a, 7)
        stamp_dump(a, 1, 8, SWAVE, S_PTR + 20, S_PTR + 21, VT + 5)
        e("s_endpgm")

    body(1)
    a.label("L_p2_r0")
    a.vm = vm_save
    body(0)


def fix_hazards(lines):
    out = []
    for i, ln in enumerate(lines):
        out.append(ln)
        if " m0," in ln and i + 1 < len(lines) and lines[i + 1].rstrip().endswith("lds"):
            out.append("  s_nop 0")
    return out


def gen_spin():
    a = Asm()
    e = a.e
    spec = OPT['spin']
    A_, B_, M = spec.split(",")
    a.lines.append(".globl spin_kernel\n.p2align 8\n.type spin_kernel,@function\nspin_kernel:")
    e("s_cmp_lg_u32 s2, 0")
    e("s_cbranch_scc1 L_spin_end")
    e("s_load_dwordx2 s[4:5], s[0:1], 80")
    e("v_lshlrev_b32 v1, 7, v0")
    e("s_waitcnt lgkmcnt(0)")
    e("s_mov_b32 s8, s4\ns_and_b32 s9, s5, 0xffff\ns_mov_b32 s10, 0x4000000\ns_mov_b32 s11, 0x20000")

    def red(sp, sdst):
        k, st, op = sp.split(".")
        base = DIAG_OFF + int(k) * 0x100000 + 8 * int(st) + 4
        for i in range(16):
            e(f"s_mov_b32 s12, {base + i * 8192}")
            e(f"buffer_load_dword v{8 + i}, v1, s[8:11], s12 offen")
        e("s_waitcnt vmcnt(0)")
        for i in range(1, 16):
            e(f"v_{op}_u32 v8, v8, v{8 + i}")
        e("s_nop 1")
        e(f"v_readlane_b32 s{sdst}, v8, 0")
        for l in range(1, 64):
            e(f"v_readlane_b32 s13, v8, {l}")
            e("s_nop 0")
            e(f"s_{op}_u32 s{sdst}, s{sdst}, s13")
    red("0.0.min", 20)
    red(A_, 21)
    red(B_, 22)
    e("s_sub_u32 s22, s22, s21")
    e(f"s_mul_i32 s22, s22, {M}")
    e("s_add_u32 s22, s22, 12000")
    e("s_min_u32 s22, s22, 90000")
    a.label("L_spin")
    e("s_memrealtime s[14:15]")
    e("s_waitcnt lgkmcnt(0)")
    e("s_sub_u32 s16, s14, s20")
    e("s_cmp_lt_u32 s16, s22")
    e("s_cbranch_scc1 L_spin")
    a.label("L_spin_end")
    e("s_endpgm")
    return a.lines


def kd(name, nfv, accum):
    return f""".amdhsa_kernel {name}
  .amdhsa_next_free_vgpr {nfv}
  .amdhsa_next_free_sgpr 102
  .amdhsa_accum_offset {accum}
  .amdhsa_group_segment_fixed_size 0
  .amdhsa_kernarg_size 88
  .amdhsa_user_sgpr_count 2
  .amdhsa_user_sgpr_kernarg_segment_ptr 1
  .amdhsa_system_sgpr_workgroup_id_x 1
.end_amdhsa_kernel"""


def main(path):
    hdr = open(f"cdna_kernels/{NAME}.s.ref").read().split("; Override launch")[0]
    out = [hdr.rstrip("\n")]
    kn = NAME + "_kernel"
    if OPT.get('spin'):
        out.append(f"; @launch kernel={kn} grid=(256,1,1) block=(256,1,1) lds={K2_LDS()}")
        out.append("; @launch kernel=spin_kernel grid=(1,1,1) block=(64,1,1) lds=0")
    else:
        out.append(f"; @launch grid=(256,1,1) block=(256,1,1) lds={K2_LDS()}")
    out.append('.amdgcn_target "amdgcn-amd-amdhsa--gfx950"')
    out.append(".text")
    out += [ln.replace("KNAME", kn) for ln in fix_hazards(gen_k1())]
    if OPT.get('spin'):
        out += gen_spin()
    out.append('.section .rodata,"a"')
    if OPT.get('spin'):
        out.append(".p2align 6")
        out.append(kd("spin_kernel", 32, 32))
    out.append(".p2align 6")
    out.append(kd(kn, 256 + 160, 256))
    open(path, "w").write("\n".join(out) + "\n")


if __name__ == "__main__":
    if "--dbgout" in sys.argv:
        DBGOUT = True
        sys.argv.remove("--dbgout")
    if "--diag" in sys.argv:
        DIAG = True
        sys.argv.remove("--diag")
    for arg in list(sys.argv):
        if "=" in arg:
            k_, v_ = arg.split("=")
            OPT[k_] = int(v_) if v_.isdigit() else v_.replace("+", " ")
            sys.argv.remove(arg)
    main(sys.argv[1] if len(sys.argv) > 1 else f"cdna_kernels/{NAME}.s")
```

```python
import sys

NAME = "gated_mix__linear_attn_block__dense_activation_mish__prompt"

AF_OFF = 0
AF_BYTES = 16 * 144 * 8 * 1024
KVP_OFF = AF_BYTES
KVP_BYTES = 16 * 8 * 12 * 1024
KVF_OFF = KVP_OFF + KVP_BYTES
KVF_BYTES = 32 * 3 * 1024
G_OFF = KVF_OFF + KVF_BYTES
PART_OFF = G_OFF + 8192
OF_OFF = PART_OFF + 128 * 65536
FLG_OFF = OF_OFF + 16 * 32 * 8192
FE_OFF = FLG_OFF - 0 + 32768 + 128 * 256
FA_OFF = FLG_OFF
FQ_OFF = FA_OFF + 8192
FO_OFF = FQ_OFF + 8192
FP_OFF = FO_OFF + 8192
FK_OFF = FE_OFF + 8192
WS_USED = FK_OFF + 2048
assert FP_OFF + 128 * 256 <= FE_OFF
V_TOK = 14

DIAG = False
DBGOUT = False
OPT = dict(k1a="", k1b="", k2a="", k2b="", st="sc1", pf=2, xpf=0, n0=34, o0=6, tr=5, cpf=2, map=0, fepos=2, S=4, pbf=1, pj=1, pprio=0, cprio=0, rdend=26)
DIAG_OFF = 0x2000000
EPS_HEX = "0x358637bd"
L2E_HEX = "0x3fb8aa3b"


class Asm:
    def __init__(self):
        self.lines = []
        self.vm = []

    def e(self, s):
        for ln in s.split("\n"):
            self.lines.append("  " + ln.strip())

    def label(self, s):
        self.lines.append(s + ":")

    def vmem(self, s, tag):
        self.e(s)
        self.vm.append(tag)

    def mark(self, tag):
        self.vm.append("#" + tag)

    def vm_count(self, tags, drop=True):
        idx = -1
        for i, t in enumerate(self.vm):
            if t in tags:
                idx = i
        if idx < 0:
            return None
        n = sum(1 for t in self.vm[idx + 1:] if not t.startswith("#"))
        if drop:
            self.vm = self.vm[idx + 1:]
        assert n <= 63, n
        return n

    def wait(self, tags=(), lgkm=False):
        n = self.vm_count(tags) if tags else None
        parts = []
        if n is not None:
            parts.append(f"vmcnt({n})")
        if lgkm:
            parts.append("lgkmcnt(0)")
        if parts:
            self.e("s_waitcnt " + " ".join(parts))


def stamp(a, idx, sbase=80):
    if not DIAG:
        return
    a.e(f"s_memtime s[{sbase - 4}:{sbase - 3}]")
    a.e(f"s_memrealtime s[{sbase - 2}:{sbase - 1}]")
    a.e("s_waitcnt lgkmcnt(0)")
    a.e(f"s_mov_b32 s{sbase + 2 * idx}, s{sbase - 4}")
    a.e(f"s_mov_b32 s{sbase + 2 * idx + 1}, s{sbase - 2}")


def stamp_dump(a, kidx, n, swave, sptr_lo, sptr_hi, vtmp, sbase=80):
    if not DIAG:
        return
    e = a.e
    e(f"s_mov_b32 s{sbase - 4}, s{sptr_lo}")
    e(f"s_and_b32 s{sbase - 3}, s{sptr_hi}, 0xffff")
    e(f"s_mov_b32 s{sbase - 2}, 0x4000000")
    e(f"s_mov_b32 s{sbase - 1}, 0x20000")
    e(f"s_lshl_b32 s75, s2, 2")
    e(f"s_add_u32 s75, s75, s{swave}")
    e(f"s_lshl_b32 s75, s75, 7")
    e(f"s_add_u32 s75, s75, {DIAG_OFF + kidx * 0x100000}")
    e(f"v_mov_b32 v{vtmp}, 0")
    e("s_mov_b64 exec, 1")
    for i in range(2 * n):
        e(f"v_mov_b32 v{vtmp + 1}, s{sbase + i}")
        e(f"buffer_store_dword v{vtmp + 1}, v{vtmp}, s[{sbase - 4}:{sbase - 1}], s75 offen offset:{4 * i}")
        e("s_nop 1")
    e("s_mov_b64 exec, -1")
    if DBGOUT:
        lab = f"L_dbg_{len(a.lines)}"
        e(f"s_cmp_lg_u32 s2, 1")
        e(f"s_cbranch_scc1 {lab}")
        e(f"s_cmp_lg_u32 s{swave}, 0")
        e(f"s_cbranch_scc1 {lab}")
        e(f"s_mov_b32 s{sbase - 4}, s{sptr_lo - 2}")
        e(f"s_and_b32 s{sbase - 3}, s{sptr_hi - 2}, 0xffff")
        e(f"s_mov_b32 s{sbase - 2}, 256")
        e("s_mov_b64 exec, 1")
        for i in range(n):
            e(f"v_mov_b32 v{vtmp + 1}, s{sbase + 2 * i + 1}")
            e(f"buffer_store_dword v{vtmp + 1}, v{vtmp}, s[{sbase - 4}:{sbase - 1}], 0 offen offset:{4 * i + 32 * kidx}")
            e("s_nop 1")
        e("s_mov_b64 exec, -1")
        a.label(lab)


def vr(b, n=4):
    return f"v[{b}:{b + n - 1}]"


def ar(b, n=4):
    return f"a[{b}:{b + n - 1}]"


def interleave(a, mf, fillers, start=0, end=None):
    n = len(mf)
    if end is None:
        end = n
    nf = len(fillers)
    pos = [start + (j * (end - start)) // max(nf, 1) for j in range(nf)]
    j = 0
    for m in range(n):
        a.e(mf[m])
        while j < nf and pos[j] <= m:
            f = fillers[j]
            f()
            j += 1
    while j < nf:
        fillers[j]()
        j += 1


def capture(a, fn, chunk=2):
    n0_ = len(a.lines)
    vm0 = list(a.vm)
    fn()
    lines = a.lines[n0_:]
    tags = a.vm[len(vm0):]
    del a.lines[n0_:]
    a.vm = vm0
    items = []
    cur = []
    depth = 0
    ti = 0
    for ln in lines:
        cur.append(ln)
        if "s_cbranch" in ln or "s_mov_b64 exec, " in ln and "-1" not in ln or "s_cmp" in ln or "s_getpc" in ln or "s_sub_u32" in ln and "KNAME" in ln:
            depth = 1
        if ln.endswith(":") and not ln.startswith(" ") and "L_pc" not in ln or "s_mov_b64 exec, -1" in ln and not any("s_cbranch" in x for x in cur) or "s_cselect" in ln or "s_subb_u32" in ln:
            depth = 0
        if depth == 0 and len(cur) >= chunk:
            items.append(cur)
            cur = []
    if cur:
        items.append(cur)
    out = []
    for it in items:
        guarded = any("s_cbranch" in x for x in it)
        nv = 0 if guarded else sum(1 for x in it if x.strip().startswith(("buffer_", "global_")))
        tg = tags[ti:ti + nv]
        ti += nv

        def emit(it=it, tg=tg):
            a.lines.extend(it)
            a.vm.extend(tg)
        out.append(emit)
    rest = tags[ti:]
    assert all(t.startswith("#") for t in rest), (ti, tags)
    if rest:
        out.append(lambda rest=rest: a.vm.extend(rest))
    return out


def srd(a, d, lo, hi, nbytes, bias=0):
    if bias:
        a.e(f"s_sub_u32 s{d}, s{lo}, {bias}")
        a.e(f"s_subb_u32 s{d + 1}, s{hi}, 0")
        a.e(f"s_and_b32 s{d + 1}, s{d + 1}, 0xffff")
    else:
        a.e(f"s_mov_b32 s{d}, s{lo}")
        a.e(f"s_and_b32 s{d + 1}, s{hi}, 0xffff")
    a.e(f"s_mov_b32 s{d + 2}, {nbytes + bias}")
    a.e(f"s_mov_b32 s{d + 3}, 0x20000")


K1_BSLOT = 13312
K1_AREA = 3328
K1_ABASE = 4 * K1_BSLOT
K1_LDS = K1_ABASE + 4 * 16384
ACC0 = 48


def acc(t, mt):
    return ACC0 + 16 * t + 4 * mt


V_LANE = 1
V_ARD = 2
V_QRD = 4
V_HRD = 8
V_ADMA = 9
V_BDMA = 13
V_L16 = 17
V_T = 18
S_X, S_Q, S_W1, S_WS, S_MISC = 4, 8, 12, 16, 20
S_WAVE, S_RB, S_P = 24, 25, 26
S_OFFA, S_OFFA2, S_OFFQ, S_OFFH = 27, 28, 29, 30
S_M0B, S_M0A = 31, 32
S_CNT = 33
S_QM = 34
S_PTR = 36
S_L2E = 58
S_T = 60
S_AFB = 72
S_GROW = 73
S_PO1, S_PO2 = 74, 3
S_PT, S_PTE = 100, 101
S_CB = 100
S_PF1, S_PF2 = 96, 20


def bset(s, t):
    return 52 * s + 4 * t


ASET = {"X": 104, "Y": 120, "Z": 136}


def k1_body(a, typ):
    T = "A" if typ == 0 else "B"
    nq = 8 if typ == 0 else 4
    nh = 13 - nq
    Ph = 2 * nh
    HB = 256 * nq
    e = a.e
    vi, vG, t0, t1, t2, t3 = V_T, V_T + 1, V_T + 2, V_T + 3, V_T + 4, V_T + 5
    e(f"v_and_b32 v{vi}, 15, v{V_LANE}")
    e(f"v_lshrrev_b32 v{vG}, 4, v{V_LANE}")
    e(f"s_mul_i32 s{S_T + 2}, s{S_P}, 448")
    if typ:
        e(f"s_add_u32 s{S_T + 2}, s{S_T + 2}, 160")

    e(f"s_lshr_b32 s{S_T + 8}, s{S_WAVE}, 1")
    e(f"s_lshl_b32 s{S_T + 8}, s{S_T + 8}, 4")
    e(f"s_and_b32 s{S_T + 9}, s{S_WAVE}, 1")
    e(f"s_lshl_b32 s{S_T + 9}, s{S_T + 9}, 2")
    e(f"s_add_u32 s{S_T + 8}, s{S_T + 8}, s{S_T + 9}")

    def krow(dst, kp, tmp):
        e(f"v_lshrrev_b32 v{tmp}, 2, v{kp}")
        e(f"v_lshlrev_b32 v{tmp}, 3, v{tmp}")
        e(f"v_and_b32 v{dst}, 3, v{kp}")
        e(f"v_add3_u32 v{dst}, v{dst}, v{tmp}, s{S_T + 8}")

    e(f"v_lshrrev_b32 v{t0}, 3, v{V_LANE}")
    krow(t1, t0, t2)
    e(f"v_mul_u32_u24 v{t1}, 6144, v{t1}")
    e(f"v_lshrrev_b32 v{t2}, 1, v{t0}")
    e(f"v_and_b32 v{t2}, 3, v{t2}")
    e(f"v_lshlrev_b32 v{t2}, 1, v{t2}")
    e(f"v_and_b32 v{t3}, 7, v{V_LANE}")
    e(f"v_xor_b32 v{t3}, v{t3}, v{t2}")
    e(f"v_lshlrev_b32 v{t3}, 4, v{t3}")
    e(f"v_add_u32 v{t1}, v{t1}, v{t3}")
    e(f"s_lshl_b32 s{S_T + 9}, s{S_P}, 7")
    e(f"s_add_u32 s{S_T + 9}, s{S_T + 9}, {4096 + (2048 if typ == 0 else 0)}")
    e(f"v_add_u32 v{V_BDMA}, s{S_T + 9}, v{t1}")
    if typ == 0:
        e(f"v_add_u32 v{V_BDMA + 1}, {2048 - 1024}, v{V_BDMA}")
    hins = [(2, 0), (3, 64)] if typ == 0 else [(1, 0), (2, 64), (3, 128)]
    magic, sh = (205, 11) if Ph == 10 else (57, 10)
    for s_ in range(8 * Ph + 64):
        if s_ < 8 * Ph:
            assert (s_ * magic) >> sh == s_ // Ph
    for slot, s0 in hins:
        e(f"v_add_u32 v{t0}, {s0}, v{V_LANE}")
        e(f"v_mul_u32_u24 v{t1}, {magic}, v{t0}")
        e(f"v_lshrrev_b32 v{t1}, {sh}, v{t1}")
        e(f"v_mul_u32_u24 v{t2}, {Ph}, v{t1}")
        e(f"v_sub_u32 v{t0}, v{t0}, v{t2}")
        e(f"v_and_b32 v{t1}, 7, v{t1}")
        krow(t2, t1, t3)
        e(f"v_mul_u32_u24 v{t2}, 7168, v{t2}")
        e(f"v_lshlrev_b32 v{t0}, 4, v{t0}")
        e(f"v_add3_u32 v{t0}, v{t0}, v{t2}, s{S_T + 2}")
        e(f"v_add_u32 v{V_BDMA + slot}, {4096 - 1024 * slot}, v{t0}")
    e(f"s_lshl_b32 s{S_T + 9}, s{S_RB}, 8")
    e(f"s_lshl_b32 s{S_T + 10}, s{S_WAVE}, 6")
    e(f"s_add_u32 s{S_T + 9}, s{S_T + 9}, s{S_T + 10}")
    e(f"s_lshl_b32 s{S_T + 9}, s{S_T + 9}, 11")
    e(f"v_lshrrev_b32 v{t0}, 3, v{V_LANE}")
    e(f"v_lshrrev_b32 v{t1}, 1, v{t0}")
    e(f"v_and_b32 v{t2}, 7, v{V_LANE}")
    e(f"v_xor_b32 v{t2}, v{t2}, v{t1}")
    e(f"v_lshlrev_b32 v{t0}, 11, v{t0}")
    e(f"v_add_u32 v{t0}, s{S_T + 9}, v{t0}")
    for j in range(4):
        if j & 1:
            e(f"v_xor_b32 v{t3}, 4, v{t2}")
            e(f"v_lshlrev_b32 v{t3}, 4, v{t3}")
        else:
            e(f"v_lshlrev_b32 v{t3}, 4, v{t2}")
        e(f"v_add_u32 v{t3}, v{t3}, v{t0}")
        e(f"v_add_u32 v{V_ADMA + j}, {j * (16384 - 1024)}, v{t3}")
    e(f"s_mul_i32 s{S_M0B}, s{S_WAVE}, {K1_AREA}")
    e(f"s_lshl_b32 s{S_M0A}, s{S_WAVE}, 14")
    e(f"s_add_u32 s{S_M0A}, s{S_M0A}, {K1_ABASE}")
    e(f"s_mov_b32 s{S_OFFA}, 0")
    e(f"s_mov_b32 s{S_OFFA2}, 65536")
    e(f"s_mov_b32 s{S_OFFQ}, 0")
    e(f"s_mov_b32 s{S_OFFH}, 0")
    e(f"s_mov_b32 s{S_QM}, 0xffff")
    e(f"s_mov_b32 s{S_QM + 1}, 0")

    def dmaB(tt):
        slot = tt % 4
        tag = f"B{tt}"
        f = []
        srcs = [(S_Q, S_OFFQ), (S_Q, S_OFFQ) if typ == 0 else (S_W1, S_OFFH), (S_W1, S_OFFH)]
        f.append(lambda: e(f"s_add_u32 m0, s{S_M0B}, {slot * K1_BSLOT}"))
        for j in range(3):
            sr, so = srcs[j]
            f.append(lambda j=j, sr=sr, so=so: a.vmem(
                f"buffer_load_dwordx4 v{V_BDMA + j}, s[{sr}:{sr + 3}], s{so} offen offset:{1024 * j} {OPT['k1b']} lds", tag))

        def q():
            e(f"s_mov_b64 exec, s[{S_QM}:{S_QM + 1}]")
            a.vmem(f"buffer_load_dwordx4 v{V_BDMA + 3}, s[{S_W1}:{S_W1 + 3}], s{S_OFFH} offen offset:3072 {OPT['k1b']} lds", tag)
            e("s_mov_b64 exec, -1")
        f.append(q)
        f.append(lambda: e(f"s_add_u32 s{S_OFFQ}, s{S_OFFQ}, {32 * 6144}"))
        f.append(lambda: e(f"s_add_u32 s{S_OFFH}, s{S_OFFH}, {32 * 7168}"))
        return f

    def dmaA(aa):
        slot = aa % 2
        tag = f"A{aa}"
        f = []
        for half in range(2):
            so = S_OFFA if half == 0 else S_OFFA2
            f.append(lambda half=half: e(f"s_add_u32 m0, s{S_M0A}, {slot * 8192 + half * 4096}"))
            for j in range(4):
                f.append(lambda j=j, so=so: a.vmem(
                    f"buffer_load_dwordx4 v{V_ADMA + j}, s[{S_X}:{S_X + 3}], s{so} offen offset:{1024 * j} {OPT['k1a']} lds", tag))
        f.append(lambda: e(f"s_add_u32 s{S_OFFA}, s{S_OFFA}, 128"))
        f.append(lambda: e(f"s_add_u32 s{S_OFFA2}, s{S_OFFA2}, 128"))
        return f

    def run_seq(fl):
        for fn in fl:
            n0 = len(a.lines)
            fn()
            if " m0," in a.lines[-1] and len(a.lines) == n0 + 1:
                e("s_nop 0")

    e("s_waitcnt lgkmcnt(0)")
    srd(a, S_Q, S_PTR + 2, S_PTR + 3, 1024 * 3072 * 2, bias=4096)
    srd(a, S_W1, S_PTR + 8, S_PTR + 9, 1024 * 3584 * 2, bias=4096)
    srd(a, S_X, S_PTR + 0, S_PTR + 1, 2048 * 1024 * 2)
    if not OPT.get('spin'):
        stamp(a, 0)
    run_seq(dmaB(0))
    run_seq(dmaA(0))
    srd(a, S_T + 4, S_PTR + 10, S_PTR + 11, 7168)
    e(f"v_lshlrev_b32 v{t1}, 3, v{vG}")
    for j in range(nh):
        a.vmem(f"buffer_load_dwordx2 {vr(acc(nq + j, 3), 2)}, v{t1}, s[{S_T + 4}:{S_T + 7}], s{S_T + 2} offen offset:{32 * j}", "bias")
    run_seq(dmaB(1))
    if not OPT.get('ramp'):
        run_seq(dmaB(2))
        run_seq(dmaA(1))
        run_seq(dmaB(3))
    e(f"v_lshrrev_b32 v{t0}, 3, v{vi}")
    e(f"v_lshlrev_b32 v{t0}, 6, v{t0}")
    e(f"v_and_b32 v{t1}, 7, v{vi}")
    e(f"v_lshlrev_b32 v{t1}, 3, v{t1}")
    e(f"v_add_u32 v{t0}, v{t0}, v{t1}")
    e(f"v_lshrrev_b32 v{t1}, 1, v{vi}")
    e(f"v_xor_b32 v{t1}, v{t1}, v{vG}")
    e(f"v_add_u32 v{t2}, v{t0}, v{t1}")
    e(f"v_lshlrev_b32 v{t2}, 4, v{t2}")
    e(f"v_add_u32 v{V_ARD}, s{S_M0A}, v{t2}")
    e(f"v_xor_b32 v{t1}, 4, v{t1}")
    e(f"v_add_u32 v{t2}, v{t0}, v{t1}")
    e(f"v_lshlrev_b32 v{t2}, 4, v{t2}")
    e(f"v_add_u32 v{V_ARD + 1}, s{S_M0A}, v{t2}")
    e(f"v_and_b32 v{t0}, 1, v{vG}")
    e(f"v_lshlrev_b32 v{t0}, 2, v{t0}")
    e(f"v_lshrrev_b32 v{t1}, 2, v{vi}")
    e(f"v_add_u32 v{t0}, v{t0}, v{t1}")
    e(f"v_lshrrev_b32 v{t1}, 1, v{vG}")
    e(f"v_mul_u32_u24 v{t1}, {2 * K1_AREA}, v{t1}")
    e(f"v_and_b32 v{t2}, 3, v{vi}")
    e(f"v_lshlrev_b32 v{t2}, 3, v{t2}")
    e(f"v_add_u32 v{t1}, v{t1}, v{t2}")
    e(f"v_mul_u32_u24 v{t3}, {16 * Ph}, v{t0}")
    e(f"v_add3_u32 v{V_HRD}, v{t1}, v{t3}, {0}")
    e(f"v_add_u32 v{V_HRD}, {HB}, v{V_HRD}")
    e(f"v_lshlrev_b32 v{t3}, 7, v{t0}")
    e(f"v_add_u32 v{t1}, v{t1}, v{t3}")
    e(f"v_lshrrev_b32 v{t2}, 1, v{t0}")
    e(f"v_and_b32 v{t2}, 3, v{t2}")
    for t in range(4):
        e(f"v_xor_b32 v{t3}, {t}, v{t2}")
        e(f"v_lshlrev_b32 v{t3}, 5, v{t3}")
        e(f"v_add_u32 v{V_QRD + t}, v{t1}, v{t3}")
    e(f"v_lshlrev_b32 v{V_L16}, 4, v{V_LANE}")

    gw, gx0, gx1 = V_T, V_T + 8, V_T + 16
    gt = V_T + 24
    nb = {0: 1, 1: 7, 2: 1, 3: 2, 4: 3}[OPT['pf']]
    PL1, PL2 = -(-56 // nb), -(-16 // nb)

    def misc_setup():
        srd(a, S_WS, S_PTR + 20, S_PTR + 21, WS_USED)
        tile_decode(a, S_T + 4, S_T + 5, S_T + 6, S_T + 7, S_T)
        e(f"s_lshl_b32 s{S_T}, s{S_RB}, 1")
        e(f"s_lshr_b32 s{S_T + 1}, s{S_WAVE}, 1")
        e(f"s_add_u32 s{S_T}, s{S_T}, s{S_T + 1}")
        e(f"s_lshl_b32 s{S_T}, s{S_T}, 5")
        e(f"s_lshl_b32 s{S_T + 1}, s{S_P}, 1")
        e(f"s_add_u32 s{S_T}, s{S_T}, s{S_T + 1}")
        if typ:
            e(f"s_add_u32 s{S_T}, s{S_T}, 1")
        e(f"s_lshl_b32 s{S_T}, s{S_T}, 1")
        e(f"s_and_b32 s{S_T + 1}, s{S_WAVE}, 1")
        e(f"s_add_u32 s{S_T}, s{S_T}, s{S_T + 1}")
        e(f"s_lshl_b32 s{S_T}, s{S_T}, 3")
        e(f"s_add_u32 s{S_T}, s{S_T}, {FA_OFF}")
        e(f"v_writelane_b32 v0, s{S_T}, 4")
        e(f"s_lshl_b32 s{S_T}, s{S_RB}, 1")
        e(f"s_lshr_b32 s{S_T + 3}, s{S_WAVE}, 1")
        e(f"s_add_u32 s{S_T}, s{S_T}, s{S_T + 3}")
        e(f"s_lshl_b32 s{S_T}, s{S_T}, 5")
        e(f"s_add_u32 s{S_T}, s{S_T}, s{S_P}")
        e(f"s_lshl_b32 s{S_T}, s{S_T}, 1")
        e(f"s_add_u32 s{S_T}, s{S_T}, s{S_T + 1}")
        e(f"s_lshl_b32 s{S_T}, s{S_T}, 3")
        e(f"s_add_u32 s{S_T}, s{S_T}, {FE_OFF + 256 * typ}")
        e(f"v_writelane_b32 v0, s{S_T}, 0")
        e(f"s_lshl_b32 s{S_T}, s{S_P}, 4")
        e(f"s_add_u32 s{S_T}, s{S_T}, s{S_RB}")
        e(f"s_lshl_b32 s{S_T}, s{S_T}, 2")
        e(f"s_add_u32 s{S_T}, s{S_T}, s{S_WAVE}")
        e(f"s_lshl_b32 s{S_T}, s{S_T}, 3")
        e(f"s_add_u32 s{S_T}, s{S_T}, {FQ_OFF + 256 * typ}")
        e(f"v_writelane_b32 v0, s{S_T}, 1")
        e(f"s_lshr_b32 s{S_T}, s2, 5")
        e(f"s_lshl_b32 s{S_T}, s{S_T}, 1")
        e(f"s_lshr_b32 s{S_T + 1}, s{S_WAVE}, 1")
        e(f"s_add_u32 s{S_T}, s{S_T}, s{S_T + 1}")
        e(f"s_lshl_b32 s{S_T}, s{S_T}, 9")
        e(f"s_and_b32 s{S_T + 1}, s2, 31")
        e(f"s_lshl_b32 s{S_T + 1}, s{S_T + 1}, 4")
        e(f"s_add_u32 s{S_T}, s{S_T}, s{S_T + 1}")
        e(f"s_and_b32 s{S_T + 1}, s{S_WAVE}, 1")
        e(f"s_lshl_b32 s{S_T + 1}, s{S_T + 1}, 3")
        e(f"s_add_u32 s{S_T}, s{S_T}, s{S_T + 1}")
        e(f"s_add_u32 s{S_T}, s{S_T}, {FO_OFF}")
        e(f"s_lshl_b32 s{S_T + 1}, s{S_T + 7}, 8")
        e(f"s_lshl_b32 s{S_T + 3}, s{S_WAVE}, 3")
        e(f"s_add_u32 s{S_T + 1}, s{S_T + 1}, s{S_T + 3}")
        e(f"s_add_u32 s{S_T + 1}, s{S_T + 1}, {FP_OFF}")
        e(f"s_cmp_eq_u32 s{S_T + 6}, 0")
        e(f"s_cselect_b32 s{S_T + 1}, s{S_T + 1}, 0x7ffffff0")
        e(f"v_writelane_b32 v0, s{S_T}, 2")
        e(f"v_writelane_b32 v0, s{S_T + 1}, 3")
        e(f"s_mul_i32 s{S_T}, s2, 171")
        e(f"s_lshr_b32 s{S_T}, s{S_T}, 10")
        e(f"s_lshl_b32 s{S_T}, s{S_T}, 1")
        e(f"s_add_u32 s{S_T}, s{S_T}, s2")
        e(f"s_lshl_b32 s{S_T}, s{S_T}, 3")
        e(f"s_add_u32 s{S_T}, s{S_T}, {FK_OFF}")
        e(f"v_writelane_b32 v0, s{S_T}, 5")

    def misc_setup2():
        if typ == 0:
            e(f"s_or_b32 s{S_T}, s2, s{S_WAVE}")
            e(f"s_cmp_lg_u32 s{S_T}, 0")
            e(f"s_cbranch_scc1 L_notok")
            e(f"s_memrealtime s[{S_T + 8}:{S_T + 9}]")
            srd(a, S_T + 4, S_PTR + 18, S_PTR + 19, 256)
            e("s_waitcnt lgkmcnt(0)")
            e(f"s_or_b32 s{S_T + 9}, s{S_T + 9}, 0x40000000")
            e(f"s_lshl_b32 s{S_T + 9}, s{S_T + 9}, 1")
            e(f"s_and_b32 s{S_T}, s{S_T + 8}, 1")
            e(f"s_or_b32 s{S_T + 9}, s{S_T + 9}, s{S_T}")
            e(f"s_or_b32 s{S_T + 8}, s{S_T + 8}, 1")
            e(f"v_mov_b32 v{V_T + 24}, s{S_T + 8}")
            e(f"v_mov_b32 v{V_T + 25}, s{S_T + 9}")
            e(f"v_mov_b32 v{V_T + 27}, 0")
            e("s_mov_b64 exec, 1")
            e(f"buffer_store_dwordx2 v[{V_T + 24}:{V_T + 25}], v{V_T + 27}, s[{S_T + 4}:{S_T + 7}], 0 offen sc1")
            e("s_mov_b64 exec, -1")
            e("s_nop 1")
            a.label("L_notok")
        if OPT.get('cpf') == 1:
            e(f"s_getpc_b64 s[{S_T + 4}:{S_T + 5}]")
            a.label(f"L_pc_{T}")
            e(f"s_sub_u32 s{S_T + 4}, s{S_T + 4}, L_pc_{T}-KNAME")
            e(f"s_subb_u32 s{S_T + 5}, s{S_T + 5}, 0")
            e(f"s_lshr_b32 s{S_T}, s2, 3")
            e(f"s_and_b32 s{S_T}, s{S_T}, 3")
            e(f"s_lshl_b32 s{S_T}, s{S_T}, 2")
            e(f"s_add_u32 s{S_T}, s{S_T}, s{S_WAVE}")
            e(f"s_lshl_b32 s{S_T}, s{S_T}, 13")
            e(f"v_lshlrev_b32 v{V_T + 29}, 7, v{V_LANE}")
            e(f"v_add_u32 v{V_T + 29}, s{S_T}, v{V_T + 29}")
            e(f"v_min_u32 v{V_T + 29}, L_code_end-KNAME-4, v{V_T + 29}")
            a.vmem(f"global_load_dword v{V_T + 29}, v{V_T + 29}, s[{S_T + 4}:{S_T + 5}]", "pf")
        if OPT.get('xpf') == 1:
            e(f"v_and_b32 v{V_T + 28}, 31, v{V_LANE}")
            e(f"v_lshlrev_b32 v{V_T + 28}, 7, v{V_T + 28}")
            e(f"s_lshl_b32 s{S_T}, s2, 2")
            e(f"s_add_u32 s{S_T}, s{S_T}, s{S_WAVE}")
            e(f"s_lshl_b32 s{S_T}, s{S_T}, 12")
            a.vmem(f"buffer_load_dword v{V_T + 28}, v{V_T + 28}, s[{S_X}:{S_X + 3}], s{S_T} offen", "pf")
        if OPT.get('xpf') == 2:
            e(f"v_lshlrev_b32 v{V_T + 27}, 7, v{V_LANE}")
            e(f"s_lshr_b32 s{S_T}, s2, 5")
            e(f"s_lshl_b32 s{S_T}, s{S_T}, 2")
            e(f"s_add_u32 s{S_T}, s{S_T}, s{S_WAVE}")
            e(f"s_lshl_b32 s{S_T}, s{S_T}, 14")
            e(f"s_lshl_b32 s{S_T + 1}, s{S_RB}, 19")
            e(f"s_add_u32 s{S_T}, s{S_T}, s{S_T + 1}")
            a.vmem(f"buffer_load_dword v{V_T + 28}, v{V_T + 27}, s[{S_X}:{S_X + 3}], s{S_T} offen", "pf")
            e(f"s_add_u32 s{S_T}, s{S_T}, 8192")
            a.vmem(f"buffer_load_dword v{V_T + 28}, v{V_T + 27}, s[{S_X}:{S_X + 3}], s{S_T} offen", "pf")

        e(f"v_lshlrev_b32 v{gt}, 5, v{V_LANE}")
        e(f"s_lshl_b32 s{S_GROW}, s{S_RB}, 8")
        e(f"s_lshl_b32 s{S_T + 1}, s{S_WAVE}, 6")
        e(f"s_add_u32 s{S_GROW}, s{S_GROW}, s{S_T + 1}")
        e(f"s_lshl_b32 s{S_T + 1}, s{S_P}, 2")
        e(f"s_add_u32 s{S_GROW}, s{S_GROW}, s{S_T + 1}")
        if typ:
            e(f"s_add_u32 s{S_GROW}, s{S_GROW}, 2")
        e(f"s_lshl_b32 s{S_T + 1}, s{S_GROW}, 11")
        srd(a, S_MISC, S_PTR + 14, S_PTR + 15, 2048)
        a.vmem(f"buffer_load_dwordx4 {vr(gw)}, v{gt}, s[{S_MISC}:{S_MISC + 3}], 0 offen", "g")
        a.vmem(f"buffer_load_dwordx4 {vr(gw + 4)}, v{gt}, s[{S_MISC}:{S_MISC + 3}], 0 offen offset:16", "g")
        a.vmem(f"buffer_load_dwordx4 {vr(gx0)}, v{gt}, s[{S_X}:{S_X + 3}], s{S_T + 1} offen", "g")
        a.vmem(f"buffer_load_dwordx4 {vr(gx0 + 4)}, v{gt}, s[{S_X}:{S_X + 3}], s{S_T + 1} offen offset:16", "g")
        a.vmem(f"buffer_load_dwordx4 {vr(gx1)}, v{gt}, s[{S_X}:{S_X + 3}], s{S_T + 1} offen offset:2048", "g")
        a.vmem(f"buffer_load_dwordx4 {vr(gx1 + 4)}, v{gt}, s[{S_X}:{S_X + 3}], s{S_T + 1} offen offset:2064", "g")

        if OPT['pf']:
            srd(a, S_PF1, S_PTR + 12, S_PTR + 13, 3584 * 1024 * 2)
            srd(a, S_PF2, S_PTR + 4, S_PTR + 5, 1024 * 1024 * 2)
            e(f"v_min_u32 v{V_T + 26}, {PL1 - 1}, v{V_LANE}")
            e(f"v_lshlrev_b32 v{V_T + 26}, 7, v{V_T + 26}")
            e(f"v_min_u32 v{V_T + 27}, {PL2 - 1}, v{V_LANE}")
            e(f"v_lshlrev_b32 v{V_T + 27}, 7, v{V_T + 27}")
            e(f"s_lshl_b32 s{S_T}, s2, 2")
            e(f"s_add_u32 s{S_T}, s{S_T}, s{S_WAVE}")
            e(f"s_mul_i32 s{S_PO1}, s{S_T}, 7168")
            e(f"s_lshl_b32 s{S_PO2}, s{S_T}, 11")


    if OPT.get('pt'):
        e(f"s_lshl_b32 s{S_T}, s{S_RB}, 1")
        e(f"s_lshr_b32 s{S_T + 1}, s{S_WAVE}, 1")
        e(f"s_add_u32 s{S_T}, s{S_T}, s{S_T + 1}")
        e(f"s_mul_i32 s{S_AFB}, s{S_T}, {144 * 8192}")
        e(f"s_and_b32 s{S_T + 1}, s{S_WAVE}, 1")
        e(f"s_lshl_b32 s{S_T + 1}, s{S_T + 1}, 12")
        e(f"s_add_u32 s{S_AFB}, s{S_AFB}, s{S_T + 1}")
        e(f"s_mul_i32 s{S_PT}, s{S_P}, {7 * 8192}")
        e(f"s_add_u32 s{S_PT}, s{S_PT}, s{S_AFB}")
        if typ:
            e(f"s_add_u32 s{S_PT}, s{S_PT}, {2 * 8192}")
        e(f"s_add_u32 s{S_PTE}, s{S_PT}, {(4 if typ else 2) * 8192}")
        e(f"v_and_b32 v{V_T + 25}, 31, v{V_LANE}")
        e(f"v_lshlrev_b32 v{V_T + 25}, 7, v{V_T + 25}")
        if typ:
            e(f"v_lshrrev_b32 v{V_T + 29}, 5, v{V_LANE}")
            e(f"v_lshlrev_b32 v{V_T + 29}, 13, v{V_T + 29}")
            e(f"v_add_u32 v{V_T + 29}, v{V_T + 29}, v{V_T + 25}")
            e(f"s_mul_i32 s{S_T}, s{S_P}, {2 * 8192}")
            e(f"s_add_u32 s{S_T}, s{S_T}, {112 * 8192}")
            e(f"s_add_u32 s{S_T}, s{S_T}, s{S_AFB}")
            a.vmem(f"buffer_load_dword v{V_T + 28}, v{V_T + 29}, s[{S_WS}:{S_WS + 3}], s{S_T} offen", "pf")

    def pt_items():
        return [lambda: a.vmem(f"buffer_load_dword v{V_T + 28}, v{V_T + 25}, s[{S_WS}:{S_WS + 3}], s{S_PT} offen", "pf"),
                lambda: e(f"s_add_u32 s{S_PT}, s{S_PT}, 8192"),
                lambda: e(f"s_min_u32 s{S_PT}, s{S_PT}, s{S_PTE}")]

    def pf_items(cond=None):
        if cond is None:
            return [lambda: a.vmem(f"buffer_load_dword v{V_T + 28}, v{V_T + 26}, s[{S_PF1}:{S_PF1 + 3}], s{S_PO1} offen", "pf"),
                    lambda: a.vmem(f"buffer_load_dword v{V_T + 28}, v{V_T + 27}, s[{S_PF2}:{S_PF2 + 3}], s{S_PO2} offen", "pf"),
                    lambda: e(f"s_add_u32 s{S_PO1}, s{S_PO1}, {128 * PL1}"),
                    lambda: e(f"s_add_u32 s{S_PO2}, s{S_PO2}, {128 * PL2}")]

        def blk():
            e(f"s_lshl_b32 s{S_T}, 1, s{S_CNT}")
            e(f"s_and_b32 s{S_T}, s{S_T}, {cond}")
            e(f"s_cbranch_scc0 L_k1{T}_nopf")
            e(f"buffer_load_dword v{V_T + 28}, v{V_T + 26}, s[{S_PF1}:{S_PF1 + 3}], s{S_PO1} offen")
            e(f"buffer_load_dword v{V_T + 28}, v{V_T + 27}, s[{S_PF2}:{S_PF2 + 3}], s{S_PO2} offen")
            e(f"s_add_u32 s{S_PO1}, s{S_PO1}, {128 * PL1}")
            e(f"s_add_u32 s{S_PO2}, s{S_PO2}, {128 * PL2}")
            a.label(f"L_k1{T}_nopf")
        return [blk]

    def g_items():
        d0, d1 = V_T + 24, V_T + 25
        L = []
        L.append(f"v_dot2_f32_bf16 v{d0}, v{gx0}, v{gw}, 0")
        L.append(f"v_dot2_f32_bf16 v{d1}, v{gx1}, v{gw}, 0")
        for j in range(1, 8):
            L.append(f"v_dot2_f32_bf16 v{d0}, v{gx0 + j}, v{gw + j}, v{d0}")
            L.append(f"v_dot2_f32_bf16 v{d1}, v{gx1 + j}, v{gw + j}, v{d1}")
        L.append("s_nop 3")
        for sh_ in (1, 2, 4, 8):
            L.append(f"s_nop 0\nv_add_f32_dpp v{d0}, v{d0}, v{d0} row_shr:{sh_} row_mask:0xf bank_mask:0xf bound_ctrl:0")
            L.append(f"s_nop 0\nv_add_f32_dpp v{d1}, v{d1}, v{d1} row_shr:{sh_} row_mask:0xf bank_mask:0xf bound_ctrl:0")
        L.append(f"s_nop 0\nv_add_f32_dpp v{d0}, v{d0}, v{d0} row_bcast:15 row_mask:0xa bank_mask:0xf")
        L.append(f"s_nop 0\nv_add_f32_dpp v{d1}, v{d1}, v{d1} row_bcast:15 row_mask:0xa bank_mask:0xf")
        L.append(f"s_nop 0\nv_add_f32_dpp v{d0}, v{d0}, v{d0} row_bcast:31 row_mask:0xc bank_mask:0xf")
        L.append(f"s_nop 0\nv_add_f32_dpp v{d1}, v{d1}, v{d1} row_bcast:31 row_mask:0xc bank_mask:0xf")
        L.append(f"v_mul_f32 v{d0}, 0xbfb8aa3b, v{d0}")
        L.append(f"v_mul_f32 v{d1}, 0xbfb8aa3b, v{d1}")
        L.append(f"v_exp_f32 v{d0}, v{d0}")
        L.append(f"v_exp_f32 v{d1}, v{d1}\ns_nop 0")
        L.append(f"v_add_f32 v{d0}, 1.0, v{d0}")
        L.append(f"v_add_f32 v{d1}, 1.0, v{d1}")
        L.append(f"v_rcp_f32 v{d0}, v{d0}")
        L.append(f"v_rcp_f32 v{d1}, v{d1}")
        L.append(f"v_mov_b32 v{gw}, 0")
        L.append(f"s_lshl_b32 s{S_T + 1}, s{S_GROW}, 2\ns_add_u32 s{S_T + 1}, s{S_T + 1}, {G_OFF}")
        L.append(f"s_lshl_b32 s{S_T + 3}, s2, 8\ns_add_u32 s{S_T + 3}, s{S_T + 3}, {FLG_OFF}")
        L.append(f"s_mov_b32 s{S_T + 8}, 0\ns_mov_b32 s{S_T + 9}, 0x80000000")
        F = [(lambda x=x: e(x)) for x in L]

        def st():
            e(f"s_mov_b64 exec, s[{S_T + 8}:{S_T + 9}]")
            a.vmem(f"buffer_store_dwordx2 v[{d0}:{d1}], v{gw}, s[{S_WS}:{S_WS + 3}], s{S_T + 1} offen sc1", "sq")
            e("s_mov_b64 exec, -1")
        F.append(st)
        return F

    if OPT.get('m2', 9) == 9:
        misc_setup2()
    a.wait(["bias"])
    for j in range(nh):
        src = acc(nq + j, 3)
        d = acc(nq + j, 0)
        e(f"v_lshlrev_b32 v{d}, 16, v{src}")
        e(f"v_and_b32 v{d + 1}, 0xffff0000, v{src}")
        e(f"v_lshlrev_b32 v{d + 2}, 16, v{src + 1}")
        e(f"v_and_b32 v{d + 3}, 0xffff0000, v{src + 1}")
    for t in range(4):
        for r in range(4):
            e(f"v_mov_b32 v{acc(t, 0) + r}, {EPS_HEX}")

    def rdB(tt):
        slot = tt % 4
        s = tt % 2
        f = []
        for t in range(13):
            for ins in range(2):
                if t < nq:
                    addr = V_QRD + (t & 3)
                    off = slot * K1_BSLOT + ins * K1_AREA + 1024 * (t >> 2)
                else:
                    addr = V_HRD
                    off = slot * K1_BSLOT + ins * K1_AREA + 32 * (t - nq)
                d = bset(s, t) + 2 * ins
                f.append(lambda d=d, addr=addr, off=off: e(f"ds_read_b64_tr_b16 {ar(d, 2)}, v{addr} offset:{off}"))
        return f

    def aset_of(tt):
        if tt % 2 == 0:
            return ASET["X"]
        return ASET["Y"] if tt % 4 == 1 else ASET["Z"]

    def rdA(aa):
        slot = aa % 2
        f = []
        for hh in range(2):
            base = aset_of(2 * aa + hh)
            for mt in range(4):
                f.append(lambda hh=hh, mt=mt, base=base: e(
                    f"ds_read_b128 {ar(base + 4 * mt)}, v{V_ARD + hh} offset:{slot * 8192 + mt * 2048}"))
        return f

    stamp(a, 1)
    a.wait(["B0", "A0"])
    e("s_barrier")
    stamp(a, 2)
    for fn in rdA(0) + rdB(0):
        fn()
    if OPT.get('ramp'):
        run_seq(dmaA(1))
        run_seq(dmaB(2))
    a.wait(["B1"], lgkm=True)
    e("s_barrier")

    misc_items = capture(a, misc_setup)
    misc_items2 = capture(a, misc_setup2) if OPT.get('m2', 9) != 9 else []

    NSTEP = 32

    def step(tt):
        if DIAG and OPT.get('ts'):
            e("s_memrealtime s[76:77]")
            e("s_waitcnt lgkmcnt(0)")
            e("s_mov_b32 m0, s78")
            e("s_nop 0")
            e(f"v_writelane_b32 v{V_T + 29}, s76, m0")
            e("s_add_u32 s78, s78, 1")
        s = tt % 2
        ab = aset_of(tt)
        mf = []
        for t in range(13):
            order = [1, 2, 3, 0] if tt == 0 else [0, 1, 2, 3]
            for mt in order:
                D = vr(acc(t, mt))
                if tt == 0:
                    C = "0" if (typ == 0 and 4 <= t < 8) else vr(acc(t, 0))
                else:
                    C = D
                W = ar(bset(s, t))
                X = ar(ab + 4 * mt)
                if typ == 0 and t < 8:
                    mf.append(f"v_mfma_f32_16x16x32_bf16 {D}, {X}, {W}, {C}")
                else:
                    mf.append(f"v_mfma_f32_16x16x32_bf16 {D}, {W}, {X}, {C}")
        if OPT.get('fakechain') and tt > 0:
            import re
            m2 = []
            for i in range(0, 52, 2):
                x0, x1 = mf[i], mf[i + 1]
                pick = x0 if tt % 2 == 0 else x1
                D = re.match(r"v_mfma\S+ (v\[\d+:\d+\])", pick).group(1)
                for x in (x0, x1):
                    D0 = re.match(r"v_mfma\S+ (v\[\d+:\d+\])", x).group(1)
                    m2.append(x.replace(D0, D))
            mf = m2
        rd = []
        if tt + 1 < NSTEP:
            rd = rdB(tt + 1)
            if tt % 2 == 1:
                rd = rdA((tt + 1) // 2) + rd
        dm = []
        if tt == 0 and OPT.get('ramp'):
            dm += dmaB(3)
        if OPT.get('afirst', 1) and tt % 2 == 0 and tt // 2 + 2 < NSTEP // 2:
            dm += dmaA(tt // 2 + 2)
        if tt + 4 < NSTEP:
            dm += dmaB(tt + 4)
        if not OPT.get('afirst', 1) and tt % 2 == 0 and tt // 2 + 2 < NSTEP // 2:
            dm += dmaA(tt // 2 + 2)
        if OPT['pf'] == 1 and tt % 4 == 1 and tt < 28:
            dm += pf_items()
        if OPT.get('cpf') == 3 and tt == 28:
            dm.append(lambda: a.vmem(f"global_load_dword v{V_T + 28}, v{V_T + 29}, s[{S_CB}:{S_CB + 1}]", "pf"))
        if OPT['pf'] in (2, 3, 4) and tt == 28:
            dm += pf_items()
        if OPT['pf'] in (3, 4) and tt % 4 == 1 and 4 <= tt < 28:
            dm += pf_items({3: 1 << 4, 4: (1 << 5) | (1 << 3)}[OPT['pf']])
        if OPT.get('pt') and tt % 4 == 3 and tt < 28:
            dm += pt_items()
        if tt == OPT.get('m2', 9):
            dm += misc_items2
        if tt == 3:
            dm += misc_items
        fl = []
        i1 = i2 = 0
        n1, n2 = len(rd), len(dm)
        while i1 < n1 or i2 < n2:
            if i2 < n2 and (i1 >= n1 or i2 * n1 <= i1 * n2):
                fl.append(dm[i2]); i2 += 1
            else:
                fl.append(rd[i1]); i1 += 1
        if tt == NSTEP - 1:
            assert "g" not in a.vm
            fl = g_items()
        interleave(a, mf, fl, 0, 48)
        if tt + 1 < NSTEP:
            tags = []
            if tt + 2 < NSTEP:
                tags.append(f"B{tt + 2}")
            if tt % 2 == 0:
                tags.append(f"A{tt // 2 + 1}")
            a.wait(tags, lgkm=True)
            if tt + 2 < NSTEP:
                e("s_barrier")

    iters = []
    for it in range(8):
        n0 = len(a.lines)
        for tt in range(4 * it, 4 * it + 4):
            step(tt)
        iters.append(a.lines[n0:])
        del a.lines[n0:]
    for it in range(2, 7):
        assert iters[it] == iters[1], f"iteration {it} differs"
    stamp(a, 3)
    if DIAG and OPT.get('ts'):
        e("s_mov_b32 s78, 0")
    a.lines += iters[0]
    if not OPT.get('ts'):
        stamp(a, 4)
    e(f"s_mov_b32 s{S_CNT}, 6")
    a.label(f"L_k1{T}_loop")
    a.lines += iters[1]
    e(f"s_sub_u32 s{S_CNT}, s{S_CNT}, 1")
    e(f"s_cmp_lg_u32 s{S_CNT}, 0")
    e(f"s_cbranch_scc1 L_k1{T}_loop")
    a.lines += iters[7]
    assert all(not t.startswith(("A", "B")) for t in a.vm), a.vm

    stamp(a, 5)

    def fin():
        stamp(a, 6)
        stamp(a, 7)
        k = a.vm_count(["#eA"], drop=False)
        if DIAG:
            k += 16
        stamp_dump(a, 0, 8, S_WAVE, S_PTR + 20, S_PTR + 21, V_T)
        e(f"s_cmp_eq_u32 s{P_SEARLY}, 0")
        e("s_cbranch_scc1 L_p2_late")
        e(f"s_waitcnt vmcnt({k})")
        e("s_branch L_p2_go")

    def fe_load():
        a.vmem(f"buffer_load_dwordx2 v[{P_VFL}:{P_VFL + 1}], v{P_VFA}, s[{S_WS}:{S_WS + 3}], 0 offen sc1", "fe")

    def fe_check():
        a.wait(["fe"])
        e(f"v_cmp_eq_u64 vcc, v[{P_VFL}:{P_VFL + 1}], v[{V_TOK}:{V_TOK + 1}]")
        e(f"s_mov_b32 s{P_SEARLY}, 0")
        e("s_nop 0")
        e("s_cmp_eq_u64 vcc, -1")
        e(f"s_cbranch_scc0 L_k1{T}_noearly")
        p2_issueA(a)
        e(f"s_mov_b32 s{P_SEARLY}, 1")
        a.label(f"L_k1{T}_noearly")
        a.mark("eA")

    def setflag(lane):
        a.label(f"L_k1{T}_tw")
        e(f"v_readfirstlane_b32 s{S_T}, v{V_TOK + 1}")
        e(f"v_readfirstlane_b32 s{S_T + 1}, v{V_TOK}")
        e("s_nop 3")
        e(f"s_min_u32 s{S_T}, s{S_T}, s{S_T + 1}")
        e(f"s_cmp_lg_u32 s{S_T}, 0")
        e(f"s_cbranch_scc1 L_k1{T}_tok")
        e("s_sleep 4")
        e(f"buffer_load_dwordx2 v[{V_TOK}:{V_TOK + 1}], v12, s[{S_T + 4}:{S_T + 7}], 0 offen sc1")
        e("s_waitcnt vmcnt(0)")
        e(f"s_branch L_k1{T}_tw")
        a.label(f"L_k1{T}_tok")
        e(f"s_mov_b64 exec, {1 << lane}")
        a.vmem(f"buffer_store_dwordx2 v[{V_TOK}:{V_TOK + 1}], v0, s[{S_WS}:{S_WS + 3}], 0 offen sc1", "fl")
        e("s_mov_b64 exec, -1")
    e("s_barrier")
    e(f"s_mov_b32 s{S_L2E}, {L2E_HEX}")
    e(f"s_mov_b32 s{S_L2E + 1}, {L2E_HEX}")
    e(f"s_lshl_b32 s{S_T}, s{S_RB}, 1")
    e(f"s_lshr_b32 s{S_T + 1}, s{S_WAVE}, 1")
    e(f"s_add_u32 s{S_T}, s{S_T}, s{S_T + 1}")
    e(f"s_mul_i32 s{S_AFB}, s{S_T}, {144 * 8192}")
    e(f"s_and_b32 s{S_T + 1}, s{S_WAVE}, 1")
    e(f"s_lshl_b32 s{S_T + 1}, s{S_T + 1}, 12")
    e(f"s_add_u32 s{S_AFB}, s{S_AFB}, s{S_T + 1}")
    e("s_nop 7")
    TT, UU = V_T, V_T + 8

    def phi_group(ra, rb_):
        prs = [ra, ra + 2, rb_, rb_ + 2]
        for j, p in enumerate(prs):
            e(f"v_pk_mul_f32 {vr(TT + 2 * j, 2)}, {vr(p, 2)}, s[{S_L2E}:{S_L2E + 1}]")
        for j in range(8):
            e(f"v_exp_f32_e64 v{TT + j}, v{TT + j} clamp")
        for p in prs:
            e(f"v_max_f32 v{p}, {EPS_HEX}, v{p}")
            e(f"v_max_f32 v{p + 1}, {EPS_HEX}, v{p + 1}")
        for j, p in enumerate(prs):
            e(f"v_pk_add_f32 {vr(p, 2)}, {vr(p, 2)}, {vr(TT + 2 * j, 2)}")
        for j, p in enumerate(prs):
            e(f"v_cvt_pk_bf16_f32 v{ra + j}, v{p}, v{p + 1}")

    def cvt_group(ra, rb_):
        prs = [ra, ra + 2, rb_, rb_ + 2]
        for j, p in enumerate(prs):
            e(f"v_cvt_pk_bf16_f32 v{ra + j}, v{p}, v{p + 1}")

    def mish_group(ra, rb_, split=False, dst=None):
        prs = [ra, ra + 2, rb_, rb_ + 2]
        for j, p in enumerate(prs):
            e(f"v_pk_mul_f32 {vr(TT + 2 * j, 2)}, {vr(p, 2)}, s[{S_L2E}:{S_L2E + 1}]")
        for j in range(8):
            e(f"v_exp_f32 v{TT + j}, v{TT + j}")
        for j in range(4):
            e(f"v_pk_fma_f32 {vr(UU + 2 * j, 2)}, {vr(TT + 2 * j, 2)}, 0.5, 1.0 op_sel_hi:[1,0,0]")
        for j in range(4):
            e(f"v_pk_fma_f32 {vr(UU + 2 * j, 2)}, {vr(TT + 2 * j, 2)}, {vr(UU + 2 * j, 2)}, 1.0 op_sel_hi:[1,1,0]")
        for j in range(8):
            e(f"v_rcp_f32 v{UU + j}, v{UU + j}")
        for j, p in enumerate(prs):
            e(f"v_pk_fma_f32 {vr(p, 2)}, {vr(UU + 2 * j, 2)}, {vr(p, 2)}, {vr(p, 2)} neg_lo:[1,0,0] neg_hi:[1,0,0]")
        if split:
            e(f"v_cvt_pk_bf16_f32 v{ra}, v{ra}, v{ra + 1}")
            e(f"v_cvt_pk_bf16_f32 v{ra + 1}, v{ra + 2}, v{ra + 3}")
            e(f"v_cvt_pk_bf16_f32 v{rb_}, v{rb_}, v{rb_ + 1}")
            e(f"v_cvt_pk_bf16_f32 v{rb_ + 1}, v{rb_ + 2}, v{rb_ + 3}")
        else:
            dd = ra if dst is None else dst
            for j, p in enumerate(prs):
                e(f"v_cvt_pk_bf16_f32 v{dd + j}, v{p}, v{p + 1}")

    WS = f"s[{S_WS}:{S_WS + 3}]"

    def set_kb(sreg, mul, add):
        e(f"s_mul_i32 s{sreg}, s{S_P}, {mul * 8192}")
        e(f"s_add_u32 s{sreg}, s{sreg}, {add * 8192}")
        e(f"s_add_u32 s{sreg}, s{sreg}, s{S_AFB}")

    def h_late(tA, kbl, sreg, mid=None):
        set_kb(sreg, 7, kbl)
        for mt in range(4):
            mish_group(acc(tA, mt), acc(tA + 1, mt))
            if mt == 1 and mid:
                mid()

    def h_half_late(tA, half):
        set_kb(P_SL + 2, 7, 2)
        if half:
            e(f"s_add_u32 s{P_SL + 2}, s{P_SL + 2}, 512")
        for mp in range(2):
            mish_group(acc(tA, 2 * mp), acc(tA, 2 * mp + 1), dst=240 + 4 * mp)
        e("s_nop 1")
        for mp in range(2):
            e(f"v_permlane16_swap_b32 v{240 + 4 * mp}, v{242 + 4 * mp}")
            e(f"v_permlane16_swap_b32 v{241 + 4 * mp}, v{243 + 4 * mp}")

    def h_full(tA, kbl, tag='st'):
        set_kb(S_T + 2, 7, kbl)
        for mt in range(4):
            mish_group(acc(tA, mt), acc(tA + 1, mt))
            a.vmem(f"buffer_store_dwordx4 {vr(acc(tA, mt))}, v{V_L16}, {WS}, s{S_T + 2} offen offset:{1024 * mt} {OPT['st']}", tag)

    def h_half(tA, kbl, half):
        set_kb(S_T + 2, 7, kbl)
        for mp in range(2):
            mish_group(acc(tA, 2 * mp), acc(tA, 2 * mp + 1), split=True)
            for mt in (2 * mp, 2 * mp + 1):
                a.vmem(f"buffer_store_dwordx2 {vr(acc(tA, mt), 2)}, v{V_L16}, {WS}, s{S_T + 2} offen offset:{1024 * mt + 8 * half} {OPT['st']}", "st")

    if typ == 1:
        h_full(5, 3, "se")
        h_full(7, 4, "se")
        p2_early(a)
        for hd in range(2):
            set_kb(S_T + 2, 2, 112 + hd)
            for mt in range(4):
                phi_group(acc(2 * hd, mt), acc(2 * hd + 1, mt))
                a.vmem(f"buffer_store_dwordx4 {vr(acc(2 * hd, mt))}, v{V_L16}, {WS}, s{S_T + 2} offen offset:{1024 * mt} {OPT['st']}", "sq")
                if 4 * hd + mt == OPT.get('fepos', 4):
                    a.wait(["se", "zc"])
                    setflag(0)
        h_late(9, 5, P_SL, mid=fe_load)
        h_late(11, 6, P_SL + 1, mid=fe_check)
        h_half_late(4, 1)
        fin()
        return

    h_full(8, 0, "se")
    h_full(10, 1, "se")
    p2_early(a)
    ONES = V_T + 16
    for r in range(4):
        e(f"v_mov_b32 v{ONES + r}, 0x3f803f80")
    for t in range(4):
        for pr in range(2):
            phi_group(acc(t, 2 * pr), acc(t, 2 * pr + 1))
            if 2 * t + pr == OPT.get('fepos', 4):
                a.wait(["se", "zc"])
                setflag(0)
    for t in range(4, 8):
        for pr in range(2):
            cvt_group(acc(t, 2 * pr), acc(t, 2 * pr + 1))
    e("s_nop 1")
    free = [acc(t, m) for t in range(8) for m in (1, 3)]

    def Dt(tau):
        return free[tau]
    for pr in range(2):
        for hd in range(2):
            for dt in range(2):
                for et in range(3):
                    tau = hd * 6 + dt * 3 + et
                    Aop = vr(acc(2 * hd + dt, 2 * pr))
                    Bop = vr(acc(4 + 2 * hd + et, 2 * pr)) if et < 2 else vr(ONES)
                    C = "0" if pr == 0 else vr(Dt(tau))
                    e(f"v_mfma_f32_16x16x32_bf16 {vr(Dt(tau))}, {Aop}, {Bop}, {C}")
    vw, vrd = V_T + 20, V_T + 21
    e(f"s_mul_i32 s{S_T}, s{S_WAVE}, 12288")
    e(f"s_add_u32 s{S_T}, s{S_T}, 98304")
    e(f"v_add_u32 v{vw}, s{S_T}, v{V_L16}")
    e(f"s_mul_i32 s{S_T}, s{S_WAVE}, 3072")
    e(f"s_add_u32 s{S_T}, s{S_T}, 98304")
    e(f"v_add_u32 v{vrd}, s{S_T}, v{V_L16}")
    fe_load()
    e("s_nop 7")
    for tau in range(12):
        e(f"ds_write_b128 v{vw}, {vr(Dt(tau))} offset:{1024 * tau}")
    e(f"s_lshl_b32 s{S_T}, s{S_P}, 3")
    e(f"s_add_u32 s{S_T}, s{S_T}, s{S_RB}")
    e(f"s_mul_i32 s{S_T}, s{S_T}, 12288")
    e(f"s_mul_i32 s{S_T + 1}, s{S_WAVE}, 3072")
    e(f"s_add_u32 s{S_T}, s{S_T}, s{S_T + 1}")
    e(f"s_add_u32 s{S_T + 10}, s{S_T}, {KVP_OFF}")
    h_half_late(12, 0)
    e(f"s_mov_b32 s{P_SL}, 0x7ff00000")
    e(f"s_mov_b32 s{P_SL + 1}, 0x7ff00000")
    e("s_waitcnt lgkmcnt(0)")
    e("s_barrier")
    R = [acc(t, m) for t in range(8) for m in (0, 2)]
    for w2 in range(4):
        for j in range(3):
            e(f"ds_read_b128 {vr(R[3 * w2 + j])}, v{vrd} offset:{12288 * w2 + 1024 * j}")
    fe_check()
    e("s_waitcnt lgkmcnt(0)")
    for j in range(3):
        for h2 in range(2):
            b0 = R[j] + 2 * h2
            e(f"v_pk_add_f32 {vr(b0, 2)}, {vr(b0, 2)}, {vr(R[3 + j] + 2 * h2, 2)}")
            e(f"v_pk_add_f32 {vr(R[6 + j] + 2 * h2, 2)}, {vr(R[6 + j] + 2 * h2, 2)}, {vr(R[9 + j] + 2 * h2, 2)}")
        for h2 in range(2):
            b0 = R[j] + 2 * h2
            e(f"v_pk_add_f32 {vr(b0, 2)}, {vr(b0, 2)}, {vr(R[6 + j] + 2 * h2, 2)}")
        a.vmem(f"buffer_store_dwordx4 {vr(R[j])}, v{V_L16}, {WS}, s{S_T + 10} offen offset:{1024 * j} sc1", "sq")
    fin()


def gen_k1():
    a = Asm()
    e = a.e
    a.lines.append(".globl KNAME\n.p2align 8\n.type KNAME,@function\nKNAME:")
    if OPT.get('spin'):
        stamp(a, 0)
    e("s_cmp_ge_u32 s2, 256")
    e("s_cbranch_scc1 L_k1_exit")
    e(f"s_load_dwordx16 s[{S_PTR}:{S_PTR + 15}], s[0:1], 0")
    if OPT.get('cpf') >= 2:
        e(f"s_getpc_b64 s[{S_CB}:{S_CB + 1}]")
        a.label("L_pc_0")
        e(f"s_sub_u32 s{S_CB}, s{S_CB}, L_pc_0-KNAME")
        e(f"s_subb_u32 s{S_CB + 1}, s{S_CB + 1}, 0")
        e(f"s_lshl_b32 s{S_T}, s2, 12")
        e(f"s_and_b32 s{S_T}, s{S_T}, 0x18000")
        e(f"v_lshlrev_b32 v{V_T + 29}, 7, v0")
        e(f"v_add_u32 v{V_T + 29}, s{S_T}, v{V_T + 29}")
        e(f"v_min_u32 v{V_T + 29}, L_code_end-KNAME-4, v{V_T + 29}")
        e(f"global_load_dword v{V_T + 28}, v{V_T + 29}, s[{S_CB}:{S_CB + 1}]")
    e(f"s_load_dwordx4 s[{S_PTR + 16}:{S_PTR + 19}], s[0:1], 64")
    e(f"s_load_dwordx2 s[{S_PTR + 20}:{S_PTR + 21}], s[0:1], 80")
    e(f"v_and_b32 v{V_LANE}, 63, v0")
    e(f"v_lshrrev_b32 v{V_T}, 6, v0")
    e(f"s_and_b32 s{S_T}, s2, 7")
    e(f"v_readfirstlane_b32 s{S_WAVE}, v{V_T}")
    e(f"s_lshr_b32 s{S_T + 1}, s2, 3")
    if OPT.get('map1', 0) == 0:
        e(f"s_and_b32 s{S_RB}, s{S_T}, 1")
        e(f"s_lshl_b32 s{S_RB}, s{S_RB}, 2")
        e(f"s_and_b32 s{S_T + 2}, s{S_T + 1}, 3")
        e(f"s_add_u32 s{S_RB}, s{S_RB}, s{S_T + 2}")
        e(f"s_lshr_b32 s{S_T}, s{S_T}, 1")
        e(f"s_lshl_b32 s{S_T}, s{S_T}, 3")
        e(f"s_lshr_b32 s{S_T + 1}, s{S_T + 1}, 2")
        e(f"s_add_u32 s{S_T}, s{S_T}, s{S_T + 1}")
    elif OPT['map1'] == 1:
        e(f"s_and_b32 s{S_RB}, s{S_T + 1}, 7")
        e(f"s_lshl_b32 s{S_T}, s{S_T}, 2")
        e(f"s_lshr_b32 s{S_T + 1}, s{S_T + 1}, 3")
        e(f"s_add_u32 s{S_T}, s{S_T}, s{S_T + 1}")
    else:
        e(f"s_and_b32 s{S_RB}, s{S_T}, 3")
        e(f"s_lshl_b32 s{S_RB}, s{S_RB}, 1")
        e(f"s_and_b32 s{S_T + 2}, s{S_T + 1}, 1")
        e(f"s_add_u32 s{S_RB}, s{S_RB}, s{S_T + 2}")
        e(f"s_lshr_b32 s{S_T}, s{S_T}, 2")
        e(f"s_lshl_b32 s{S_T}, s{S_T}, 4")
        e(f"s_lshr_b32 s{S_T + 1}, s{S_T + 1}, 1")
        e(f"s_add_u32 s{S_T}, s{S_T}, s{S_T + 1}")
    e(f"s_lshr_b32 s{S_P}, s{S_T}, 1")
    e(f"s_and_b32 s{S_T + 3}, s{S_T}, 1")
    e(f"s_cmp_lg_u32 s{S_T + 3}, 0")
    e("s_cbranch_scc1 L_k1_typeB")
    k1_body(a, 0)
    a.label("L_k1_typeB")
    a.vm = []
    k1_body(a, 1)
    a.vm = []
    phase2(a)
    a.label("L_k1_exit")
    e("s_endpgm")
    a.label("L_code_end")
    return a.lines


def K2_LDS():
    return OPT['S'] * 32768 + 24576


def fold_loops(a, iters, period, scnt, name):
    n = len(iters)
    i = 0
    lab = 0
    while i < n:
        reps = 1
        while i + (reps + 1) * period <= n and all(
                iters[i + k] == iters[i + reps * period + k] for k in range(period)):
            reps += 1
        if reps >= 2:
            a.e(f"s_mov_b32 s{scnt}, {reps}")
            a.label(f"L_{name}_{lab}")
            for k in range(period):
                a.lines += iters[i + k]
            a.e(f"s_sub_u32 s{scnt}, s{scnt}, 1")
            a.e(f"s_cmp_lg_u32 s{scnt}, 0")
            a.e(f"s_cbranch_scc1 L_{name}_{lab}")
            lab += 1
            i += reps * period
        else:
            a.lines += iters[i]
            i += 1


def schedule(a, mf, streams):
    n = len(mf)
    placed = []
    for si, (items, start, end) in enumerate(streams):
        m = len(items)
        prev = 0
        for j, it in enumerate(items):
            fn, early = it if isinstance(it, tuple) else (it, 0)
            pos = start + (j * (end - start)) / max(m, 1)
            pos = max(pos, early, prev)
            prev = pos
            placed.append((pos, si, j, fn))
    placed.sort(key=lambda x: (x[0], x[1], x[2]))
    k = 0
    if n == 0:
        for p in placed:
            p[3]()
        return
    for i in range(n):
        a.e(mf[i])
        while k < len(placed) and placed[k][0] < i + 1:
            placed[k][3]()
            k += 1
    while k < len(placed):
        placed[k][3]()
        k += 1


P_SW2, P_SWO, P_SWS, P_SOUT = 96, 20, 16, 4
P_SMT, P_SNT, P_SROLE, P_STILE = 8, 9, 10, 11
P_SOA, P_SOB, P_SOP, P_SM0A, P_SM0B = 12, 13, 14, 15, 27
P_SHD, P_SM2, P_SEARLY = 28, 29, 30
P_VBD = 2
P_SLOT = 32768


def tile_decode(a, smt, snt, srole, stile, st):
    e = a.e
    e(f"s_and_b32 s{st}, s2, 7")
    e(f"s_lshr_b32 s{st + 1}, s2, 3")
    e(f"s_and_b32 s{srole}, s{st}, 1")
    if OPT.get('rsw'):
        e(f"s_xor_b32 s{srole}, s{srole}, 1")
    e(f"s_lshr_b32 s{st}, s{st}, 1")
    if OPT['map'] == 0:
        e(f"s_and_b32 s{smt}, s{st}, 1")
        e(f"s_lshl_b32 s{smt}, s{smt}, 3")
        e(f"s_and_b32 s{stile}, s{st + 1}, 7")
        e(f"s_add_u32 s{smt}, s{smt}, s{stile}")
        e(f"s_lshr_b32 s{snt}, s{st}, 1")
        e(f"s_lshl_b32 s{snt}, s{snt}, 2")
        e(f"s_lshr_b32 s{st + 1}, s{st + 1}, 3")
        e(f"s_add_u32 s{snt}, s{snt}, s{st + 1}")
    else:
        e(f"s_lshl_b32 s{smt}, s{st}, 2")
        e(f"s_and_b32 s{stile}, s{st + 1}, 3")
        e(f"s_add_u32 s{smt}, s{smt}, s{stile}")
        e(f"s_lshr_b32 s{snt}, s{st + 1}, 2")
    e(f"s_lshl_b32 s{stile}, s{smt}, 3")
    e(f"s_add_u32 s{stile}, s{stile}, s{snt}")


P_VAD, P_VFA, P_VFL = 8, 9, 10
P_SSA, P_SSB = 31, 32
P_SL = 4


def p2_setrun(a, first_expr, stride):
    e = a.e
    c0, c1 = first_expr
    e(f"s_lshr_b32 s{S_T + 11}, s{S_WAVE}, 1")
    e(f"s_mul_i32 s{S_T + 11}, s{S_T + 11}, {c1}")
    e(f"s_add_u32 s{S_T + 11}, s{S_T + 11}, {c0}")
    return S_T + 11


def p2_early(a):
    e = a.e
    S = OPT['S']
    ST = S_T
    tile_decode(a, P_SMT, P_SNT, P_SROLE, P_STILE, ST)
    vi, vG, t0, t1, t2 = 6, 7, 8, 9, 10
    e(f"v_and_b32 v{vi}, 15, v{V_LANE}")
    e(f"v_lshrrev_b32 v{vG}, 4, v{V_LANE}")
    e(f"s_lshl_b32 s{P_SM0A}, s{S_WAVE}, 12")
    e(f"s_add_u32 s{P_SM0B}, s{P_SM0A}, 16384")
    e(f"s_lshl_b32 s{ST}, s{P_SNT}, 8")
    e(f"s_and_b32 s{ST + 3}, s{S_WAVE}, 1")
    e(f"s_lshl_b32 s{ST + 1}, s{ST + 3}, 15")
    e(f"s_add_u32 s{ST}, s{ST}, s{ST + 1}")
    e(f"v_lshlrev_b32 v{t0}, 11, v{vG}")
    e(f"v_add_u32 v{t0}, s{ST}, v{t0}")
    e(f"v_lshlrev_b32 v{t1}, 1, v{vG}")
    e(f"v_xor_b32 v{t1}, v{t1}, v{vi}")
    for j in range(4):
        if j & 1:
            e(f"v_xor_b32 v{t2}, 8, v{t1}")
            e(f"v_lshlrev_b32 v{t2}, 4, v{t2}")
        else:
            e(f"v_lshlrev_b32 v{t2}, 4, v{t1}")
        e(f"v_add_u32 v{t2}, v{t2}, v{t0}")
        e(f"v_add_u32 v{P_VBD + j}, {j * (8192 - 1024)}, v{t2}")
    e(f"s_mul_i32 s{ST}, s{P_SROLE}, 3")
    e(f"s_lshr_b32 s{ST + 1}, s{S_WAVE}, 1")
    e(f"s_add_u32 s{ST}, s{ST}, s{ST + 1}")
    e(f"s_lshl_b32 s{P_SOB}, s{ST}, 16")
    e(f"s_mul_i32 s{P_SOA}, s{P_SMT}, 144")
    e(f"s_add_u32 s{P_SOA}, s{P_SOA}, s{ST}")
    e(f"s_lshl_b32 s{P_SOA}, s{P_SOA}, 13")
    e(f"s_mov_b32 s{P_SSA}, {7 * 8192}")
    e(f"s_mov_b32 s{P_SSB}, {7 * 65536}")
    srd(a, ST + 4, S_PTR + 18, S_PTR + 19, 256)
    e(f"v_mov_b32 v12, 0")
    a.vmem(f"buffer_load_dwordx2 v[{V_TOK}:{V_TOK + 1}], v12, s[{ST + 4}:{ST + 7}], 0 offen sc1", "zc")
    for j in range(S - 1):
        e(f"s_add_u32 m0, s{P_SM0B}, {j * P_SLOT}")
        e("s_nop 0")
        for i in range(4):
            a.vmem(f"buffer_load_dwordx4 v{P_VBD + i}, s[{P_SW2}:{P_SW2 + 3}], s{P_SOB} offen offset:{1024 * i} lds", "eB")
        e(f"s_add_u32 s{P_SOB}, s{P_SOB}, s{P_SSB}")
    e(f"s_lshl_b32 s{ST + 3}, s{ST + 3}, 12")
    e(f"v_add_u32 v{P_VAD}, s{ST + 3}, v{V_L16}")
    e(f"s_lshl_b32 s{ST}, s{P_SMT}, 1")
    e(f"s_add_u32 s{ST}, s{ST}, s{P_SROLE}")
    e(f"s_lshl_b32 s{ST}, s{ST}, 8")
    e(f"s_add_u32 s{ST}, s{ST}, {FE_OFF}")
    e(f"v_and_b32 v{P_VFA}, 31, v{V_LANE}")
    e(f"v_lshlrev_b32 v{P_VFA}, 3, v{P_VFA}")
    e(f"v_add_u32 v{P_VFA}, s{ST}, v{P_VFA}")


def p2_issueA(a):
    e = a.e
    for j in range(OPT['S'] - 1):
        e(f"s_add_u32 m0, s{P_SM0A}, {j * P_SLOT}")
        e("s_nop 0")
        for i in range(4):
            e(f"buffer_load_dwordx4 v{P_VAD}, s[{P_SWS}:{P_SWS + 3}], s{P_SOA} offen offset:{1024 * i} {OPT['k2a']} lds")
        e(f"s_add_u32 s{P_SOA}, s{P_SOA}, s{P_SSA}")


def phase2(a):
    e = a.e
    S = OPT['S']
    n0 = OPT['n0']
    SLOT = P_SLOT
    SCR = S * SLOT
    SWAVE = S_WAVE
    ST = S_T
    SCNT = S_CNT
    SMT, SNT, SROLE, STILE = P_SMT, P_SNT, P_SROLE, P_STILE
    SOA, SOB, SOP, SM0A, SM0B = P_SOA, P_SOB, P_SOP, P_SM0A, P_SM0B
    SW2, SWO, SOUT = P_SW2, P_SWO, P_SOUT
    WS = f"s[{P_SWS}:{P_SWS + 3}]"
    NBASE = (S + 1) // 2
    VL, VL16, VBD = V_LANE, V_L16, P_VBD
    vi, vG = 6, 7
    VZ = 11
    VAD = 8
    VFL = 10
    VFA = 9
    VAR = 12
    VBR = 18
    VT = 30
    VG = 38
    VOMG = 42
    VEPS = 46
    VEPS = 48
    CG = 52
    CR = 60
    CKV = 68
    CW = 80
    VX = 192
    VY = 84
    AC = 128
    t0, t1, t2, t3 = VT, VT + 1, VT + 2, VT + 3

    def acc2(mt, nt):
        return AC + 16 * mt + 4 * nt

    def FA(j, b, mt):
        return 64 * (j % 2) + 32 * b + 4 * mt

    def FB(j, b, nt):
        return 64 * (j % 2) + 32 * b + 16 + 4 * nt

    def setflag(*lanes):
        e(f"s_mov_b64 exec, {sum(1 << l for l in lanes)}")
        a.vmem(f"buffer_store_dwordx2 v[{V_TOK}:{V_TOK + 1}], v0, {WS}, 0 offen sc1", "fl")
        e("s_mov_b64 exec, -1")

    VQ = 120
    VH = 16

    def fq_load():
        a.vmem(f"buffer_load_dwordx2 v[{VQ}:{VQ + 1}], v{VQ + 2}, {WS}, 0 offen sc1", "fq")

    a.label("L_p2_late")
    e(f"buffer_load_dwordx2 v[{VFL}:{VFL + 1}], v{VFA}, {WS}, 0 offen sc1")
    e("s_waitcnt vmcnt(0)")
    e(f"v_cmp_eq_u64 vcc, v[{VFL}:{VFL + 1}], v[{V_TOK}:{V_TOK + 1}]")
    e("s_nop 1")
    e("s_cmp_eq_u64 vcc, -1")
    e("s_cbranch_scc1 L_p2_fok")
    e(f"s_sleep {OPT.get('slp', 4)}")
    e("s_branch L_p2_late")
    a.label("L_p2_fok")
    p2_issueA(a)
    e("s_waitcnt vmcnt(0)")
    a.label("L_p2_go")
    stamp(a, 0)
    a.vm = ["old"]
    e(f"s_and_b32 s{ST}, s{SWAVE}, 1")
    e(f"s_lshl_b32 s{ST}, s{ST}, 12")
    e(f"v_add_u32 v{VAR}, s{ST}, v{VL16}")
    for k in range(1, NBASE):
        e(f"v_add_u32 v{VAR + k}, {65536 * k}, v{VAR}")
    e(f"v_lshlrev_b32 v{t0}, 2, v{vG}")
    e(f"v_lshrrev_b32 v{t1}, 2, v{vi}")
    e(f"v_add_u32 v{t0}, v{t0}, v{t1}")
    e(f"v_and_b32 v{t1}, 7, v{t0}")
    e(f"s_lshr_b32 s{ST}, s{SWAVE}, 1")
    e(f"s_lshl_b32 s{ST}, s{ST}, 2")
    e(f"v_xor_b32 v{t1}, s{ST}, v{t1}")
    e(f"v_lshlrev_b32 v{t0}, 8, v{t0}")
    e(f"v_and_b32 v{t2}, 3, v{vi}")
    e(f"v_lshlrev_b32 v{t2}, 3, v{t2}")
    e(f"v_add_u32 v{t0}, v{t0}, v{t2}")
    e(f"v_add_u32 v{t0}, 16384, v{t0}")
    for nt in range(4):
        e(f"v_xor_b32 v{t3}, {nt}, v{t1}")
        e(f"v_lshlrev_b32 v{t3}, 5, v{t3}")
        e(f"v_add_u32 v{VBR + nt}, v{t0}, v{t3}")
        for k in range(1, NBASE):
            e(f"v_add_u32 v{VBR + 4 * k + nt}, {65536 * k}, v{VBR + nt}")
    e(f"v_and_b32 v{t0}, 1, v{vG}")
    e(f"v_lshlrev_b32 v{t0}, 10, v{t0}")
    e(f"v_lshrrev_b32 v{t1}, 1, v{vG}")
    e(f"v_lshlrev_b32 v{t1}, 8, v{t1}")
    e(f"v_lshlrev_b32 v{VH}, 4, v{vi}")
    e(f"v_add3_u32 v{VH}, v{VH}, v{t0}, v{t1}")
    stamp(a, 1)
    e(f"s_cmp_eq_u32 s{SROLE}, 0")
    e(f"s_cbranch_scc1 L_p2_r0")
    vm_save = list(a.vm)

    import math
    PERIOD = S * 4 // math.gcd(S, 4)

    def body(role):
        R = f"r{role}"
        o0 = OPT.get('o0', 5)
        na0 = n0 - o0
        assert 16 < na0 <= 32 and 5 <= o0 <= 11
        nact = na0 if role == 0 else 56 - na0
        N = nact + (o0 if role == 0 else 16 - o0)
        JO = nact - (S - 1)
        JP = N - OPT['pj']
        if role == 0:
            runs = {16: (5, 1, 7)}
        else:
            nl1 = 32 - na0
            runs = {16 + nl1: (2, 7, 14)}
            if nl1:
                runs[16] = (5 + 7 * (na0 - 16), 1, 7)

        def bperm(op):
            e(f"s_and_b32 s{ST + 9}, s{SWAVE}, 1")
            e(f"s_mul_i32 s{ST + 9}, s{ST + 9}, {-12 * 2048}")
            for j4 in range(4):
                e(f"{op} v{VBD + j4}, s{ST + 9}, v{VBD + j4}")
                if j4 < 3:
                    e(f"s_add_u32 s{ST + 9}, s{ST + 9}, {4 * 2048}")

        def newrun(j):
            if j == nact:
                def sw():
                    e(f"s_lshr_b32 s{ST + 11}, s{SWAVE}, 1")
                    if role:
                        e(f"s_add_u32 s{ST + 11}, s{ST + 11}, {2 * o0}")
                    e(f"s_lshl_b32 s{SOB}, s{ST + 11}, 16")
                    e(f"s_lshl_b32 s{SOA}, s{SMT}, 5")
                    e(f"s_add_u32 s{SOA}, s{SOA}, s{ST + 11}")
                    e(f"s_lshl_b32 s{SOA}, s{SOA}, 13")
                    e(f"s_add_u32 s{SOA}, s{SOA}, {OF_OFF}")
                    e(f"s_mov_b32 s{P_SSA}, 16384")
                    e(f"s_mov_b32 s{P_SSB}, 131072")
                    if role == 1:
                        bperm("v_subrev_u32")
                return [sw]
            if j in runs:
                c0, c1, st_ = runs[j]

                def sw():
                    r = p2_setrun(a, (c0, c1), st_)
                    e(f"s_lshl_b32 s{SOB}, s{r}, 16")
                    e(f"s_mul_i32 s{SOA}, s{SMT}, 144")
                    e(f"s_add_u32 s{SOA}, s{SOA}, s{r}")
                    e(f"s_lshl_b32 s{SOA}, s{SOA}, 13")
                    e(f"s_mov_b32 s{P_SSA}, {st_ * 8192}")
                    e(f"s_mov_b32 s{P_SSB}, {st_ * 65536}")
                    if st_ == 14:
                        bperm("v_add_u32")
                return [sw]
            return []

        def dmaA(j):
            f = newrun(j)
            f.append(lambda: e(f"s_add_u32 m0, s{SM0A}, {(j % S) * SLOT}"))
            for i in range(4):
                f.append(lambda i=i: a.vmem(
                    f"buffer_load_dwordx4 v{VAD}, {WS}, s{SOA} offen offset:{1024 * i} {OPT['k2a']} lds", f"D{j}"))
            f.append(lambda: e(f"s_add_u32 s{SOA}, s{SOA}, s{P_SSA}"))
            return f

        def dmaB(j):
            sr = SW2 if j < nact else SWO
            f = []
            f.append(lambda: e(f"s_add_u32 m0, s{SM0B}, {(j % S) * SLOT}"))
            for i in range(4):
                f.append(lambda i=i: a.vmem(
                    f"buffer_load_dwordx4 v{VBD + i}, s[{sr}:{sr + 3}], s{SOB} offen offset:{1024 * i} lds", f"D{j}"))
            f.append(lambda: e(f"s_add_u32 s{SOB}, s{SOB}, s{P_SSB}"))
            return f

        def reads(j):
            sl = j % S
            k, so = sl // 2, (sl % 2) * SLOT
            f = []
            for q in range(4):
                for b in range(2):
                    f.append(lambda b=b, q=q: e(
                        f"ds_read_b128 {ar(FA(j, b, q))}, v{VAR + k} offset:{so + 8192 * b + 1024 * q}"))
                    for ins in range(2):
                        f.append(lambda b=b, q=q, ins=ins: e(
                            f"ds_read_b64_tr_b16 {ar(FB(j, b, q) + 2 * ins, 2)}, v{VBR + 4 * k + q} offset:{so + 8192 * b + 4096 * ins}"))
            return f

        late = []
        for mp in range(2):
            late.append(f"buffer_store_dwordx4 {vr(240 + 4 * mp)}, v{VH}, {WS}, s{P_SL + 2} offen offset:{2048 * mp} sc1")
        for g_, base in enumerate((192, 224)):
            for mt in range(4):
                late.append(f"buffer_store_dwordx4 {vr(base + 4 * mt)}, v{VL16}, {WS}, s{P_SL + g_} offen offset:{1024 * mt} sc1")
        TR = OPT.get('tr', 3)
        TRS = OPT.get('trs', 0)
        NTR = -(-10 // TR) + TRS
        JFQ = OPT.get('jfq', 2)

        e("s_barrier")
        stamp(a, 2)
        VK = 48
        PD, PO, PEPS, PR = 48, 96, 112, 116

        def poll(lab, vv, reload):
            a.label(f"L_p2{R}_{lab}w")
            e(f"v_cmp_eq_u64 vcc, v[{vv}:{vv + 1}], v[{V_TOK}:{V_TOK + 1}]")
            e("s_nop 1")
            e("s_cmp_eq_u64 vcc, -1")
            e(f"s_cbranch_scc1 L_p2{R}_{lab}ok")
            e("s_sleep 4")
            sv = list(a.vm)
            reload()
            a.vm = sv
            e("s_waitcnt vmcnt(0)")
            e(f"s_branch L_p2{R}_{lab}w")
            a.label(f"L_p2{R}_{lab}ok")

        def fl_load(tag="F"):
            a.vmem(f"buffer_load_dwordx2 v[{VFL}:{VFL + 1}], v{VFA}, {WS}, 0 offen sc1", tag)

        def red_guard(lab):
            e(f"s_cmp_eq_u32 s{P_SEARLY}, 0")
            e(f"s_cbranch_scc1 L_p2{R}_{lab}")

        J1 = OPT.get('j1', 4)
        J2 = OPT.get('j2', 12)

        def pre(j):
            if j == JFQ:
                a.wait(["old"])
            if j == NTR + 2:
                a.wait(["sl"])
            if j == 16 - S + 1:
                a.wait(["FL"])
                poll("l", VFL, fl_load)
            if j == J2 + 2:
                a.wait(["fq"])
                poll("k", VQ, fq_load)
            if j == J2 + 4:
                a.wait(["pq"])
            if j == J2 + 8:
                a.wait(["ost"])
            if j == JO:
                a.wait(["F"])
                poll("o", VFL, fl_load)
            if role == 1 and j == JP:
                a.wait(["F2"])
                poll("p", VFL, fl_load)

        def extra(j):
            if j == JFQ:
                setflag(1)
            if j == J1:
                e(f"s_and_b32 s{ST}, s2, 3")
                e(f"s_cmp_eq_u32 s{ST}, s{SWAVE}")
                e(f"s_cselect_b32 s{P_SEARLY}, 1, 0")
                e(f"s_cmp_lt_u32 s2, 192")
                e(f"s_cselect_b32 s{P_SEARLY}, s{P_SEARLY}, 0")
                e(f"s_mul_i32 s{P_SHD}, s2, 171")
                e(f"s_lshr_b32 s{P_SHD}, s{P_SHD}, 10")
                e(f"s_min_u32 s{P_SHD}, s{P_SHD}, 31")
                e(f"s_lshr_b32 s{ST}, s{P_SHD}, 1")
                e(f"s_lshl_b32 s{ST}, s{ST}, 9")
                e(f"s_add_u32 s{ST}, s{ST}, {FQ_OFF}")
                e(f"v_and_b32 v{VQ + 2}, 31, v{VL}")
                e(f"v_lshlrev_b32 v{VQ + 2}, 3, v{VQ + 2}")
                e(f"v_add_u32 v{VQ + 2}, s{ST}, v{VQ + 2}")
                fq_load()
            if j == NTR + 2:
                setflag(4)
                srd(a, SOUT, S_PTR + 16, S_PTR + 17, 2048 * 1024 * 2)
            if j == 16 - S - 1:
                e(f"s_lshl_b32 s{ST}, s{SMT}, 9")
                e(f"s_add_u32 s{ST}, s{ST}, {FA_OFF}")
                e(f"v_lshlrev_b32 v{VFA}, 3, v{VL}")
                e(f"v_add_u32 v{VFA}, s{ST}, v{VFA}")
                fl_load("FL")
            if j == 16 - S + 2:
                e(f"v_lshlrev_b32 v{t1}, 2, v{vi}")
                e(f"s_lshl_b32 s{ST}, s{SMT}, 9")
                e(f"s_and_b32 s{ST + 1}, s{SWAVE}, 1")
                e(f"s_lshl_b32 s{ST + 1}, s{ST + 1}, 8")
                e(f"s_add_u32 s{ST}, s{ST}, s{ST + 1}")
                e(f"s_add_u32 s{ST}, s{ST}, {G_OFF}")
                for i in range(4):
                    a.vmem(f"buffer_load_dword v{VG + i}, v{t1}, {WS}, s{ST} offen offset:{64 * i}", "g")
            if j == J2:
                e(f"s_and_b32 s{P_SHD}, s2, 31")
                e(f"s_lshr_b32 s{P_SM2}, s2, 5")
                e(f"s_lshr_b32 s{ST}, s{P_SHD}, 1")
                e(f"s_lshl_b32 s{ST}, s{ST}, 4")
                e(f"s_add_u32 s{ST}, s{ST}, s{P_SM2}")
                e(f"s_lshl_b32 s{ST}, s{ST}, 2")
                e(f"s_add_u32 s{ST}, s{ST}, s{SWAVE}")
                e(f"s_lshl_b32 s{ST}, s{ST}, 3")
                e(f"s_add_u32 s{ST}, s{ST}, {FQ_OFF + 256}")
                e(f"s_lshl_b32 s{ST + 1}, s{P_SHD}, 6")
                e(f"s_add_u32 s{ST + 1}, s{ST + 1}, {FK_OFF}")
                e(f"v_lshlrev_b32 v{VQ + 2}, 3, v{VL}")
                e(f"v_add_u32 v{VQ + 2}, s{ST + 1}, v{VQ + 2}")
                e(f"v_mov_b32 v{t0}, s{ST}")
                e(f"v_cmp_gt_u32 s[{ST + 2}:{ST + 3}], 6, v{VL}")
                e("s_nop 1")
                e(f"v_cndmask_b32 v{VQ + 2}, v{t0}, v{VQ + 2}, s[{ST + 2}:{ST + 3}]")
                e(f"s_lshl_b32 s{P_SM2}, s{P_SM2}, 1")
                e(f"s_lshr_b32 s{ST}, s{SWAVE}, 1")
                e(f"s_add_u32 s{P_SM2}, s{P_SM2}, s{ST}")
                fq_load()
            if j == J2 + 2:
                e(f"s_mul_i32 s{ST}, s{P_SHD}, 3072")
                e(f"s_add_u32 s{ST}, s{ST}, {KVF_OFF}")
                e(f"v_lshlrev_b32 v{t0}, 3, v{VL}")
                for i in range(6):
                    a.vmem(f"buffer_load_dwordx2 {ar(144 + 2 * i, 2)}, v{t0}, {WS}, s{ST} offen offset:{512 * i}", "pq")
                e(f"s_mul_i32 s{ST}, s{P_SM2}, 144")
                e(f"s_add_u32 s{ST}, s{ST}, s{P_SHD}")
                e(f"s_add_u32 s{ST}, s{ST}, 112")
                e(f"s_lshl_b32 s{ST}, s{ST}, 13")
                for i in range(4):
                    a.vmem(f"buffer_load_dwordx4 {ar(128 + 4 * i)}, v{VAD}, {WS}, s{ST} offen offset:{1024 * i}", "pq")
                e(f"s_lshl_b32 s{SOP}, s{P_SM2}, 5")
                e(f"s_add_u32 s{SOP}, s{SOP}, s{P_SHD}")
                e(f"s_lshl_b32 s{SOP}, s{SOP}, 13")
                e(f"s_add_u32 s{SOP}, s{SOP}, {OF_OFF}")
                for r in range(4):
                    e(f"v_mov_b32 v{PEPS + r}, {EPS_HEX}")
            if j == J2 + 5:
                for i in range(4):
                    e(f"v_rcp_f32 v{PR + i}, v{PD + 12 * i + 8}")
                e("s_nop 0")
                for i in range(4):
                    d = PD + 12 * i
                    for q in range(8):
                        e(f"v_mul_f32 v{d + q}, v{PR + i}, v{d + q}")
                    o = PO + 4 * i
                    for q in range(4):
                        e(f"v_cvt_pk_bf16_f32 v{o + q}, v{d + 2 * q}, v{d + 2 * q + 1}")
                    a.vmem(f"buffer_store_dwordx4 {vr(o)}, v{VAD}, {WS}, s{SOP} offen offset:{1024 * i} sc1", "ost")
            if j == J2 + 8:
                setflag(2)
            if j == JO - OPT.get('fod', 2):
                assert j > J2 + 8
                e(f"s_lshl_b32 s{ST}, s{SMT}, 9")
                e(f"s_add_u32 s{ST}, s{ST}, {FO_OFF}")
                if role == 0:
                    e(f"v_min_u32 v{VFA}, {4 * o0 - 1}, v{VL}")
                else:
                    e(f"v_max_u32 v{VFA}, {4 * o0}, v{VL}")
                e(f"v_lshlrev_b32 v{VFA}, 3, v{VFA}")
                e(f"v_add_u32 v{VFA}, s{ST}, v{VFA}")
                fl_load("F")
            if role == 1 and j == JP - 1:
                e(f"s_lshl_b32 s{ST}, s{STILE}, 8")
                e(f"s_lshl_b32 s{ST + 1}, s{SWAVE}, 3")
                e(f"s_add_u32 s{ST}, s{ST}, s{ST + 1}")
                e(f"s_add_u32 s{ST}, s{ST}, {FP_OFF}")
                e(f"v_mov_b32 v{VFA}, s{ST}")
                fl_load("F2")
            if role == 1 and j == JP:
                e(f"s_lshl_b32 s{ST}, s{STILE}, 16")
                e(f"s_lshl_b32 s{ST + 1}, s{SWAVE}, 13")
                e(f"s_add_u32 s{ST}, s{ST}, s{ST + 1}")
                e(f"s_add_u32 s{ST}, s{ST}, {PART_OFF}")
                for q in range(8):
                    if q == 4:
                        e(f"s_add_u32 s{ST}, s{ST}, 4096")
                    a.vmem(f"buffer_load_dwordx4 {vr(VY + 4 * q)}, v{VL16}, {WS}, s{ST} offen offset:{1024 * (q & 3)} sc1", "PT")

        def post(j):
            if j == J1 + 1:
                red_guard("nr1")
                n_ = a.vm_count(["fq"], drop=False)
                e(f"s_waitcnt vmcnt({n_})")
                poll("q", VQ, fq_load)
                e(f"s_lshr_b32 s{ST}, s{P_SHD}, 1")
                e(f"s_mul_i32 s{ST}, s{ST}, 84")
                e(f"s_add_u32 s{ST}, s{ST}, s2")
                e(f"s_lshl_b32 s{ST}, s{ST}, 10")
                e(f"s_add_u32 s{ST}, s{ST}, {KVP_OFF}")
                for r8 in range(8):
                    e(f"buffer_load_dwordx4 {vr(VK + 4 * r8)}, v{VL16}, {WS}, s{ST} offen")
                    if r8 < 7:
                        e(f"s_add_u32 s{ST}, s{ST}, 12288")
                a.label(f"L_p2{R}_nr1")
                a.mark("r1")
            if j == J1 + 3:
                red_guard("nr2")
                n_ = a.vm_count(["#r1"], drop=False)
                if n_ is not None:
                    e(f"s_waitcnt vmcnt({n_})")
                for st_ in (1, 2, 4):
                    for r8 in range(0, 8, 2 * st_):
                        for q in range(2):
                            b0 = VK + 4 * r8 + 2 * q
                            e(f"v_pk_add_f32 {vr(b0, 2)}, {vr(b0, 2)}, {vr(b0 + 4 * st_, 2)}")
                e(f"v_cvt_pk_bf16_f32 v{VK}, v{VK}, v{VK + 1}")
                e(f"v_cvt_pk_bf16_f32 v{VK + 1}, v{VK + 2}, v{VK + 3}")
                e(f"s_mul_i32 s{ST}, s{P_SHD}, 6")
                e(f"s_sub_u32 s{ST}, s2, s{ST}")
                e(f"s_cmp_ge_u32 s{ST}, 3")
                e(f"s_cselect_b32 s{ST + 1}, 1, 0")
                e(f"s_mul_i32 s{ST + 2}, s{ST + 1}, 3")
                e(f"s_sub_u32 s{ST}, s{ST}, s{ST + 2}")
                e(f"s_mul_i32 s{ST + 2}, s{P_SHD}, 3")
                e(f"s_add_u32 s{ST}, s{ST}, s{ST + 2}")
                e(f"s_lshl_b32 s{ST}, s{ST}, 10")
                e(f"s_lshl_b32 s{ST + 1}, s{ST + 1}, 9")
                e(f"s_add_u32 s{ST}, s{ST}, s{ST + 1}")
                e(f"s_add_u32 s{ST}, s{ST}, {KVF_OFF}")
                e(f"v_lshlrev_b32 v{t0}, 3, v{VL}")
                e(f"buffer_store_dwordx2 {vr(VK, 2)}, v{t0}, {WS}, s{ST} offen sc1")
                a.label(f"L_p2{R}_nr2")
                a.mark("r2")
            if j == J1 + 5:
                red_guard("nr3")
                n_ = a.vm_count(["#r2"], drop=False)
                if n_ is not None:
                    e(f"s_waitcnt vmcnt({n_})")
                e(f"s_mov_b64 exec, {1 << 5}")
                e(f"buffer_store_dwordx2 v[{V_TOK}:{V_TOK + 1}], v0, {WS}, 0 offen sc1")
                e("s_mov_b64 exec, -1")
                a.label(f"L_p2{R}_nr3")

        def interval(j):
            if DIAG and OPT.get('ts2'):
                if j == 0:
                    e("s_mov_b32 s74, 0")
                e("s_memrealtime s[76:77]")
                e("s_waitcnt lgkmcnt(0)")
                e("s_mov_b32 m0, s74")
                e("s_nop 0")
                e(f"v_writelane_b32 v{VT + 7}, s76, m0")
                e("s_add_u32 s74, s74, 1")
            main = []
            if j >= 1:
                for mt in range(4):
                    for nt in range(4):
                        D = vr(acc2(mt, nt) + (64 if j - 1 >= nact else 0))
                        for b in range(2):
                            C = "0" if (j in (1, nact + 1) and b == 0) else D
                            main.append(f"v_mfma_f32_16x16x32_bf16 {D}, {ar(FB(j - 1, b, nt))}, {ar(FA(j - 1, b, mt))}, {C}")
            pre(j)
            if j == J2 + 4:
                pm = []
                for i in range(4):
                    d = PD + 12 * i
                    pq = ar(128 + 4 * i)
                    pm += [f"v_mfma_f32_16x16x32_bf16 {vr(d + 8)}, {ar(152)}, {pq}, {vr(PEPS)}",
                           f"v_mfma_f32_16x16x32_bf16 {vr(d)}, {ar(144)}, {pq}, 0",
                           f"v_mfma_f32_16x16x32_bf16 {vr(d + 4)}, {ar(148)}, {pq}, 0"]
                main = pm + main
            rd = reads(j) if j < N else []
            dm = (dmaA(j + S - 1) + dmaB(j + S - 1)) if j + S - 1 < N else []
            for x in (late[TR * (j - TRS): TR * (j - TRS) + TR] if j >= TRS else []):
                dm.append(lambda x=x: a.vmem(x, "sl"))
            streams = []
            if nact + 1 <= j <= nact + 4:
                mt = j - (nact + 1)
                it = []
                if mt == 0:
                    a.wait(["g"])
                it.append(lambda mt=mt: e(f"v_sub_f32 v{VOMG + mt}, 1.0, v{VG + mt}"))
                for q in range(16):
                    it.append(lambda mt=mt, q=q: e(f"v_mul_f32 v{acc2(mt, 0) + q}, v{VOMG + mt}, v{acc2(mt, 0) + q}"))
                streams.append((it, 10, 30))
            n = max(len(main), 1)
            ex = capture(a, lambda: extra(j), chunk=1)
            if ex:
                streams.append((ex, 1, min(n * 0.97, 1 + 1.2 * len(ex))))
            schedule(a, main, [(rd, 0, n * 0.85), (dm, 0.5, n * 0.95)] + streams)
            post(j)
            if j < N:
                a.wait([f"D{j + 1}"] if j + 1 < N else [], lgkm=True)
                if j + 1 < N:
                    e("s_barrier")

        iters = []
        for j in range(N + 1):
            n_ = len(a.lines)
            if j == 4:
                stamp(a, 3)
            if j == nact:
                stamp(a, 4)
            interval(j)
            iters.append(a.lines[n_:])
            del a.lines[n_:]
        fold_loops(a, iters, PERIOD, SCNT, f"p2{R}")
        stamp(a, 5)
        if role == 0:
            e(f"s_lshl_b32 s{ST}, s{STILE}, 16")
            e(f"s_lshl_b32 s{ST + 1}, s{SWAVE}, 13")
            e(f"s_add_u32 s{ST}, s{ST}, s{ST + 1}")
            e(f"s_add_u32 s{ST}, s{ST}, {PART_OFF}")
            e("s_nop 7")
        else:
            vo = VT + 4
            e(f"v_lshlrev_b32 v{t2}, 11, v{vi}")
            e(f"v_bfe_u32 v{t3}, v{VL}, 4, 1")
            e(f"v_lshlrev_b32 v{t3}, 5, v{t3}")
            e(f"v_add_u32 v{t2}, v{t2}, v{t3}")
            e(f"v_lshrrev_b32 v{t3}, 5, v{VL}")
            e(f"v_lshlrev_b32 v{t3}, 4, v{t3}")
            e(f"v_add_u32 v{vo}, v{t2}, v{t3}")
            e(f"s_lshl_b32 s{ST}, s{SMT}, 7")
            e(f"s_and_b32 s{ST + 1}, s{SWAVE}, 1")
            e(f"s_lshl_b32 s{ST + 1}, s{ST + 1}, 6")
            e(f"s_add_u32 s{ST}, s{ST}, s{ST + 1}")
            e(f"s_lshl_b32 s{ST}, s{ST}, 11")
            e(f"s_lshl_b32 s{ST + 1}, s{SNT}, 8")
            e(f"s_add_u32 s{ST}, s{ST}, s{ST + 1}")
            e(f"s_lshr_b32 s{ST + 1}, s{SWAVE}, 1")
            e(f"s_lshl_b32 s{ST + 1}, s{ST + 1}, 7")
            e(f"s_add_u32 s{ST}, s{ST}, s{ST + 1}")
            a.wait(["PT"])
        for mt in range(4):
            sel = "op_sel:[1,0,0] op_sel_hi:[1,1,1]" if mt & 1 else "op_sel_hi:[0,1,1]"
            for q in range(8):
                b0 = acc2(mt, 0) + 2 * q
                e(f"v_pk_fma_f32 {vr(b0, 2)}, {vr(VG + (mt & 2), 2)}, {vr(b0 + 64, 2)}, {vr(b0, 2)} {sel}")
            if role == 0:
                for h2 in range(2):
                    q = 2 * mt + h2
                    b0 = AC + 8 * q
                    for r in range(4):
                        e(f"v_cvt_pk_bf16_f32 v{b0 + r}, v{b0 + 2 * r}, v{b0 + 2 * r + 1}")
                    e(f"buffer_store_dwordx4 {vr(b0)}, v{VL16}, {WS}, s{ST} offen offset:{1024 * (q & 3)} sc1")
                    if q == 3:
                        e(f"s_add_u32 s{ST}, s{ST}, 4096")
            else:
                for q in range(8):
                    p0 = VY + 8 * mt + q
                    u = 48 + 2 * q
                    e(f"v_lshlrev_b32 v{u}, 16, v{p0}")
                    e(f"v_and_b32 v{u + 1}, 0xffff0000, v{p0}")
                for q in range(8):
                    b0 = acc2(mt, 0) + 2 * q
                    e(f"v_pk_add_f32 {vr(b0, 2)}, {vr(b0, 2)}, {vr(48 + 2 * q, 2)}")
                for pr in range(2):
                    b0 = acc2(mt, 2 * pr)
                    for q in range(4):
                        e(f"v_cvt_pk_bf16_f32 v{b0 + q}, v{b0 + 2 * q}, v{b0 + 2 * q + 1}")
                e("s_nop 1")
                for pr in range(2):
                    b0 = acc2(mt, 2 * pr)
                    e(f"v_permlane16_swap_b32 v{b0}, v{b0 + 2}")
                    e(f"v_permlane16_swap_b32 v{b0 + 1}, v{b0 + 3}")
                for pr in range(2):
                    b0 = acc2(mt, 2 * pr)
                    e(f"buffer_store_dwordx4 {vr(b0)}, v{vo}, s[{SOUT}:{SOUT + 3}], s{ST} offen offset:{64 * pr}")
                if mt < 3:
                    e(f"s_add_u32 s{ST}, s{ST}, 32768")
        if role == 0:
            e("s_waitcnt vmcnt(0)")
            setflag(3)
        stamp(a, 6)
        if DIAG and OPT.get('ts2'):
            e(f"s_mov_b32 s76, s{S_PTR + 20}")
            e(f"s_and_b32 s77, s{S_PTR + 21}, 0xffff")
            e(f"s_mov_b32 s78, 0x4000000")
            e(f"s_mov_b32 s79, 0x20000")
            e(f"s_lshl_b32 s75, s2, 2")
            e(f"s_add_u32 s75, s75, s{S_WAVE}")
            e(f"s_lshl_b32 s75, s75, 8")
            e(f"s_add_u32 s75, s75, {DIAG_OFF + 0x200000}")
            e(f"v_lshlrev_b32 v{VT}, 2, v{VL}")
            e(f"buffer_store_dword v{VT + 7}, v{VT}, s[76:79], s75 offen")
        if DIAG:
            e("s_waitcnt vmcnt(0)")
        stamp(a, 7)
        stamp_dump(a, 1, 8, SWAVE, S_PTR + 20, S_PTR + 21, VT + 5)
        e("s_endpgm")

    body(1)
    a.label("L_p2_r0")
    a.vm = vm_save
    body(0)


def fix_hazards(lines):
    out = []
    for i, ln in enumerate(lines):
        out.append(ln)
        if " m0," in ln and i + 1 < len(lines) and lines[i + 1].rstrip().endswith("lds"):
            out.append("  s_nop 0")
    return out


def gen_spin():
    a = Asm()
    e = a.e
    spec = OPT['spin']
    A_, B_, M = spec.split(",")
    a.lines.append(".globl spin_kernel\n.p2align 8\n.type spin_kernel,@function\nspin_kernel:")
    e("s_cmp_lg_u32 s2, 0")
    e("s_cbranch_scc1 L_spin_end")
    e("s_load_dwordx2 s[4:5], s[0:1], 80")
    e("v_lshlrev_b32 v1, 7, v0")
    e("s_waitcnt lgkmcnt(0)")
    e("s_mov_b32 s8, s4\ns_and_b32 s9, s5, 0xffff\ns_mov_b32 s10, 0x4000000\ns_mov_b32 s11, 0x20000")

    def red(sp, sdst):
        k, st, op = sp.split(".")
        base = DIAG_OFF + int(k) * 0x100000 + 8 * int(st) + 4
        for i in range(16):
            e(f"s_mov_b32 s12, {base + i * 8192}")
            e(f"buffer_load_dword v{8 + i}, v1, s[8:11], s12 offen")
        e("s_waitcnt vmcnt(0)")
        for i in range(1, 16):
            e(f"v_{op}_u32 v8, v8, v{8 + i}")
        e("s_nop 1")
        e(f"v_readlane_b32 s{sdst}, v8, 0")
        for l in range(1, 64):
            e(f"v_readlane_b32 s13, v8, {l}")
            e("s_nop 0")
            e(f"s_{op}_u32 s{sdst}, s{sdst}, s13")
    red("0.0.min", 20)
    red(A_, 21)
    red(B_, 22)
    e("s_sub_u32 s22, s22, s21")
    e(f"s_mul_i32 s22, s22, {M}")
    e("s_add_u32 s22, s22, 12000")
    e("s_min_u32 s22, s22, 90000")
    a.label("L_spin")
    e("s_memrealtime s[14:15]")
    e("s_waitcnt lgkmcnt(0)")
    e("s_sub_u32 s16, s14, s20")
    e("s_cmp_lt_u32 s16, s22")
    e("s_cbranch_scc1 L_spin")
    a.label("L_spin_end")
    e("s_endpgm")
    return a.lines


def kd(name, nfv, accum):
    return f""".amdhsa_kernel {name}
  .amdhsa_next_free_vgpr {nfv}
  .amdhsa_next_free_sgpr 102
  .amdhsa_accum_offset {accum}
  .amdhsa_group_segment_fixed_size 0
  .amdhsa_kernarg_size 88
  .amdhsa_user_sgpr_count 2
  .amdhsa_user_sgpr_kernarg_segment_ptr 1
  .amdhsa_system_sgpr_workgroup_id_x 1
.end_amdhsa_kernel"""


def main(path):
    hdr = open(f"cdna_kernels/{NAME}.s.ref").read().split("; Override launch")[0]
    out = [hdr.rstrip("\n")]
    kn = NAME + "_kernel"
    if OPT.get('spin'):
        out.append(f"; @launch kernel={kn} grid=(256,1,1) block=(256,1,1) lds={K2_LDS()}")
        out.append("; @launch kernel=spin_kernel grid=(1,1,1) block=(64,1,1) lds=0")
    else:
        out.append(f"; @launch grid=(256,1,1) block=(256,1,1) lds={K2_LDS()}")
    out.append('.amdgcn_target "amdgcn-amd-amdhsa--gfx950"')
    out.append(".text")
    out += [ln.replace("KNAME", kn) for ln in fix_hazards(gen_k1())]
    if OPT.get('spin'):
        out += gen_spin()
    out.append('.section .rodata,"a"')
    if OPT.get('spin'):
        out.append(".p2align 6")
        out.append(kd("spin_kernel", 32, 32))
    out.append(".p2align 6")
    out.append(kd(kn, 256 + 160, 256))
    open(path, "w").write("\n".join(out) + "\n")


if __name__ == "__main__":
    if "--dbgout" in sys.argv:
        DBGOUT = True
        sys.argv.remove("--dbgout")
    if "--diag" in sys.argv:
        DIAG = True
        sys.argv.remove("--diag")
    for arg in list(sys.argv):
        if "=" in arg:
            k_, v_ = arg.split("=")
            OPT[k_] = int(v_) if v_.isdigit() else v_.replace("+", " ")
            sys.argv.remove(arg)
    main(sys.argv[1] if len(sys.argv) > 1 else f"cdna_kernels/{NAME}.s")
```

```python
import sys

NAME = "gated_mix__linear_attn_block__dense_activation_mish__prompt"

AF_OFF = 0
AF_BYTES = 16 * 144 * 8 * 1024
KVP_OFF = AF_BYTES
KVP_BYTES = 16 * 8 * 12 * 1024
KVF_OFF = KVP_OFF + KVP_BYTES
KVF_BYTES = 32 * 3 * 1024
G_OFF = KVF_OFF + KVF_BYTES
PART_OFF = G_OFF + 8192
OF_OFF = PART_OFF + 128 * 65536
FLG_OFF = OF_OFF + 16 * 32 * 8192
FE_OFF = FLG_OFF - 0 + 32768 + 128 * 256
FA_OFF = FLG_OFF
FQ_OFF = FA_OFF + 8192
FO_OFF = FQ_OFF + 8192
FP_OFF = FO_OFF + 8192
FK_OFF = FE_OFF + 8192
WS_USED = FK_OFF + 2048
assert FP_OFF + 128 * 256 <= FE_OFF
V_TOK = 14

DIAG = False
DBGOUT = False
OPT = dict(k1a="", k1b="", k2a="", k2b="", st="sc1", pf=2, xpf=0, n0=34, o0=6, tr=5, cpf=2, map=0, fepos=1, S=4, pbf=1, pj=1, pprio=0, cprio=0, rdend=26)
DIAG_OFF = 0x2000000
EPS_HEX = "0x358637bd"
L2E_HEX = "0x3fb8aa3b"


class Asm:
    def __init__(self):
        self.lines = []
        self.vm = []

    def e(self, s):
        for ln in s.split("\n"):
            self.lines.append("  " + ln.strip())

    def label(self, s):
        self.lines.append(s + ":")

    def vmem(self, s, tag):
        self.e(s)
        self.vm.append(tag)

    def mark(self, tag):
        self.vm.append("#" + tag)

    def vm_count(self, tags, drop=True):
        idx = -1
        for i, t in enumerate(self.vm):
            if t in tags:
                idx = i
        if idx < 0:
            return None
        n = sum(1 for t in self.vm[idx + 1:] if not t.startswith("#"))
        if drop:
            self.vm = self.vm[idx + 1:]
        assert n <= 63, n
        return n

    def wait(self, tags=(), lgkm=False):
        n = self.vm_count(tags) if tags else None
        parts = []
        if n is not None:
            parts.append(f"vmcnt({n})")
        if lgkm:
            parts.append("lgkmcnt(0)")
        if parts:
            self.e("s_waitcnt " + " ".join(parts))


def stamp(a, idx, sbase=80):
    if not DIAG:
        return
    a.e(f"s_memtime s[{sbase - 4}:{sbase - 3}]")
    a.e(f"s_memrealtime s[{sbase - 2}:{sbase - 1}]")
    a.e("s_waitcnt lgkmcnt(0)")
    a.e(f"s_mov_b32 s{sbase + 2 * idx}, s{sbase - 4}")
    a.e(f"s_mov_b32 s{sbase + 2 * idx + 1}, s{sbase - 2}")


def stamp_dump(a, kidx, n, swave, sptr_lo, sptr_hi, vtmp, sbase=80):
    if not DIAG:
        return
    e = a.e
    e(f"s_mov_b32 s{sbase - 4}, s{sptr_lo}")
    e(f"s_and_b32 s{sbase - 3}, s{sptr_hi}, 0xffff")
    e(f"s_mov_b32 s{sbase - 2}, 0x4000000")
    e(f"s_mov_b32 s{sbase - 1}, 0x20000")
    e(f"s_lshl_b32 s75, s2, 2")
    e(f"s_add_u32 s75, s75, s{swave}")
    e(f"s_lshl_b32 s75, s75, 7")
    e(f"s_add_u32 s75, s75, {DIAG_OFF + kidx * 0x100000}")
    e(f"v_mov_b32 v{vtmp}, 0")
    e("s_mov_b64 exec, 1")
    for i in range(2 * n):
        e(f"v_mov_b32 v{vtmp + 1}, s{sbase + i}")
        e(f"buffer_store_dword v{vtmp + 1}, v{vtmp}, s[{sbase - 4}:{sbase - 1}], s75 offen offset:{4 * i}")
        e("s_nop 1")
    e("s_mov_b64 exec, -1")
    if DBGOUT:
        lab = f"L_dbg_{len(a.lines)}"
        e(f"s_cmp_lg_u32 s2, 1")
        e(f"s_cbranch_scc1 {lab}")
        e(f"s_cmp_lg_u32 s{swave}, 0")
        e(f"s_cbranch_scc1 {lab}")
        e(f"s_mov_b32 s{sbase - 4}, s{sptr_lo - 2}")
        e(f"s_and_b32 s{sbase - 3}, s{sptr_hi - 2}, 0xffff")
        e(f"s_mov_b32 s{sbase - 2}, 256")
        e("s_mov_b64 exec, 1")
        for i in range(n):
            e(f"v_mov_b32 v{vtmp + 1}, s{sbase + 2 * i + 1}")
            e(f"buffer_store_dword v{vtmp + 1}, v{vtmp}, s[{sbase - 4}:{sbase - 1}], 0 offen offset:{4 * i + 32 * kidx}")
            e("s_nop 1")
        e("s_mov_b64 exec, -1")
        a.label(lab)


def vr(b, n=4):
    return f"v[{b}:{b + n - 1}]"


def ar(b, n=4):
    return f"a[{b}:{b + n - 1}]"


def interleave(a, mf, fillers, start=0, end=None):
    n = len(mf)
    if end is None:
        end = n
    nf = len(fillers)
    pos = [start + (j * (end - start)) // max(nf, 1) for j in range(nf)]
    j = 0
    for m in range(n):
        a.e(mf[m])
        while j < nf and pos[j] <= m:
            f = fillers[j]
            f()
            j += 1
    while j < nf:
        fillers[j]()
        j += 1


def capture(a, fn, chunk=2):
    n0_ = len(a.lines)
    vm0 = list(a.vm)
    fn()
    lines = a.lines[n0_:]
    tags = a.vm[len(vm0):]
    del a.lines[n0_:]
    a.vm = vm0
    items = []
    cur = []
    depth = 0
    ti = 0
    for ln in lines:
        cur.append(ln)
        if "s_cbranch" in ln or "s_mov_b64 exec, " in ln and "-1" not in ln or "s_cmp" in ln or "s_getpc" in ln or "s_sub_u32" in ln and "KNAME" in ln:
            depth = 1
        if ln.endswith(":") and not ln.startswith(" ") and "L_pc" not in ln or "s_mov_b64 exec, -1" in ln and not any("s_cbranch" in x for x in cur) or "s_cselect" in ln or "s_subb_u32" in ln:
            depth = 0
        if depth == 0 and len(cur) >= chunk:
            items.append(cur)
            cur = []
    if cur:
        items.append(cur)
    out = []
    for it in items:
        guarded = any("s_cbranch" in x for x in it)
        nv = 0 if guarded else sum(1 for x in it if x.strip().startswith(("buffer_", "global_")))
        tg = tags[ti:ti + nv]
        ti += nv

        def emit(it=it, tg=tg):
            a.lines.extend(it)
            a.vm.extend(tg)
        out.append(emit)
    rest = tags[ti:]
    assert all(t.startswith("#") for t in rest), (ti, tags)
    if rest:
        out.append(lambda rest=rest: a.vm.extend(rest))
    return out


def srd(a, d, lo, hi, nbytes, bias=0):
    if bias:
        a.e(f"s_sub_u32 s{d}, s{lo}, {bias}")
        a.e(f"s_subb_u32 s{d + 1}, s{hi}, 0")
        a.e(f"s_and_b32 s{d + 1}, s{d + 1}, 0xffff")
    else:
        a.e(f"s_mov_b32 s{d}, s{lo}")
        a.e(f"s_and_b32 s{d + 1}, s{hi}, 0xffff")
    a.e(f"s_mov_b32 s{d + 2}, {nbytes + bias}")
    a.e(f"s_mov_b32 s{d + 3}, 0x20000")


K1_BSLOT = 13312
K1_AREA = 3328
K1_ABASE = 4 * K1_BSLOT
K1_LDS = K1_ABASE + 4 * 16384
ACC0 = 48


def acc(t, mt):
    return ACC0 + 16 * t + 4 * mt


V_LANE = 1
V_ARD = 2
V_QRD = 4
V_HRD = 8
V_ADMA = 9
V_BDMA = 13
V_L16 = 17
V_T = 18
S_X, S_Q, S_W1, S_WS, S_MISC = 4, 8, 12, 16, 20
S_WAVE, S_RB, S_P = 24, 25, 26
S_OFFA, S_OFFA2, S_OFFQ, S_OFFH = 27, 28, 29, 30
S_M0B, S_M0A = 31, 32
S_CNT = 33
S_QM = 34
S_PTR = 36
S_L2E = 58
S_T = 60
S_AFB = 72
S_GROW = 73
S_PO1, S_PO2 = 74, 3
S_PT, S_PTE = 100, 101
S_CB = 100
S_PF1, S_PF2 = 96, 20


def bset(s, t):
    return 52 * s + 4 * t


ASET = {"X": 104, "Y": 120, "Z": 136}


def k1_body(a, typ):
    T = "A" if typ == 0 else "B"
    nq = 8 if typ == 0 else 4
    nh = 13 - nq
    Ph = 2 * nh
    HB = 256 * nq
    e = a.e
    vi, vG, t0, t1, t2, t3 = V_T, V_T + 1, V_T + 2, V_T + 3, V_T + 4, V_T + 5
    e(f"v_and_b32 v{vi}, 15, v{V_LANE}")
    e(f"v_lshrrev_b32 v{vG}, 4, v{V_LANE}")
    e(f"s_mul_i32 s{S_T + 2}, s{S_P}, 448")
    if typ:
        e(f"s_add_u32 s{S_T + 2}, s{S_T + 2}, 160")

    e(f"s_lshr_b32 s{S_T + 8}, s{S_WAVE}, 1")
    e(f"s_lshl_b32 s{S_T + 8}, s{S_T + 8}, 4")
    e(f"s_and_b32 s{S_T + 9}, s{S_WAVE}, 1")
    e(f"s_lshl_b32 s{S_T + 9}, s{S_T + 9}, 2")
    e(f"s_add_u32 s{S_T + 8}, s{S_T + 8}, s{S_T + 9}")

    def krow(dst, kp, tmp):
        e(f"v_lshrrev_b32 v{tmp}, 2, v{kp}")
        e(f"v_lshlrev_b32 v{tmp}, 3, v{tmp}")
        e(f"v_and_b32 v{dst}, 3, v{kp}")
        e(f"v_add3_u32 v{dst}, v{dst}, v{tmp}, s{S_T + 8}")

    e(f"v_lshrrev_b32 v{t0}, 3, v{V_LANE}")
    krow(t1, t0, t2)
    e(f"v_mul_u32_u24 v{t1}, 6144, v{t1}")
    e(f"v_lshrrev_b32 v{t2}, 1, v{t0}")
    e(f"v_and_b32 v{t2}, 3, v{t2}")
    e(f"v_lshlrev_b32 v{t2}, 1, v{t2}")
    e(f"v_and_b32 v{t3}, 7, v{V_LANE}")
    e(f"v_xor_b32 v{t3}, v{t3}, v{t2}")
    e(f"v_lshlrev_b32 v{t3}, 4, v{t3}")
    e(f"v_add_u32 v{t1}, v{t1}, v{t3}")
    e(f"s_lshl_b32 s{S_T + 9}, s{S_P}, 7")
    e(f"s_add_u32 s{S_T + 9}, s{S_T + 9}, {4096 + (2048 if typ == 0 else 0)}")
    e(f"v_add_u32 v{V_BDMA}, s{S_T + 9}, v{t1}")
    if typ == 0:
        e(f"v_add_u32 v{V_BDMA + 1}, {2048 - 1024}, v{V_BDMA}")
    hins = [(2, 0), (3, 64)] if typ == 0 else [(1, 0), (2, 64), (3, 128)]
    magic, sh = (205, 11) if Ph == 10 else (57, 10)
    for s_ in range(8 * Ph + 64):
        if s_ < 8 * Ph:
            assert (s_ * magic) >> sh == s_ // Ph
    for slot, s0 in hins:
        e(f"v_add_u32 v{t0}, {s0}, v{V_LANE}")
        e(f"v_mul_u32_u24 v{t1}, {magic}, v{t0}")
        e(f"v_lshrrev_b32 v{t1}, {sh}, v{t1}")
        e(f"v_mul_u32_u24 v{t2}, {Ph}, v{t1}")
        e(f"v_sub_u32 v{t0}, v{t0}, v{t2}")
        e(f"v_and_b32 v{t1}, 7, v{t1}")
        krow(t2, t1, t3)
        e(f"v_mul_u32_u24 v{t2}, 7168, v{t2}")
        e(f"v_lshlrev_b32 v{t0}, 4, v{t0}")
        e(f"v_add3_u32 v{t0}, v{t0}, v{t2}, s{S_T + 2}")
        e(f"v_add_u32 v{V_BDMA + slot}, {4096 - 1024 * slot}, v{t0}")
    e(f"s_lshl_b32 s{S_T + 9}, s{S_RB}, 8")
    e(f"s_lshl_b32 s{S_T + 10}, s{S_WAVE}, 6")
    e(f"s_add_u32 s{S_T + 9}, s{S_T + 9}, s{S_T + 10}")
    e(f"s_lshl_b32 s{S_T + 9}, s{S_T + 9}, 11")
    e(f"v_lshrrev_b32 v{t0}, 3, v{V_LANE}")
    e(f"v_lshrrev_b32 v{t1}, 1, v{t0}")
    e(f"v_and_b32 v{t2}, 7, v{V_LANE}")
    e(f"v_xor_b32 v{t2}, v{t2}, v{t1}")
    e(f"v_lshlrev_b32 v{t0}, 11, v{t0}")
    e(f"v_add_u32 v{t0}, s{S_T + 9}, v{t0}")
    for j in range(4):
        if j & 1:
            e(f"v_xor_b32 v{t3}, 4, v{t2}")
            e(f"v_lshlrev_b32 v{t3}, 4, v{t3}")
        else:
            e(f"v_lshlrev_b32 v{t3}, 4, v{t2}")
        e(f"v_add_u32 v{t3}, v{t3}, v{t0}")
        e(f"v_add_u32 v{V_ADMA + j}, {j * (16384 - 1024)}, v{t3}")
    e(f"s_mul_i32 s{S_M0B}, s{S_WAVE}, {K1_AREA}")
    e(f"s_lshl_b32 s{S_M0A}, s{S_WAVE}, 14")
    e(f"s_add_u32 s{S_M0A}, s{S_M0A}, {K1_ABASE}")
    e(f"s_mov_b32 s{S_OFFA}, 0")
    e(f"s_mov_b32 s{S_OFFA2}, 65536")
    e(f"s_mov_b32 s{S_OFFQ}, 0")
    e(f"s_mov_b32 s{S_OFFH}, 0")
    e(f"s_mov_b32 s{S_QM}, 0xffff")
    e(f"s_mov_b32 s{S_QM + 1}, 0")

    def dmaB(tt):
        slot = tt % 4
        tag = f"B{tt}"
        f = []
        srcs = [(S_Q, S_OFFQ), (S_Q, S_OFFQ) if typ == 0 else (S_W1, S_OFFH), (S_W1, S_OFFH)]
        f.append(lambda: e(f"s_add_u32 m0, s{S_M0B}, {slot * K1_BSLOT}"))
        for j in range(3):
            sr, so = srcs[j]
            f.append(lambda j=j, sr=sr, so=so: a.vmem(
                f"buffer_load_dwordx4 v{V_BDMA + j}, s[{sr}:{sr + 3}], s{so} offen offset:{1024 * j} {OPT['k1b']} lds", tag))

        def q():
            e(f"s_mov_b64 exec, s[{S_QM}:{S_QM + 1}]")
            a.vmem(f"buffer_load_dwordx4 v{V_BDMA + 3}, s[{S_W1}:{S_W1 + 3}], s{S_OFFH} offen offset:3072 {OPT['k1b']} lds", tag)
            e("s_mov_b64 exec, -1")
        f.append(q)
        f.append(lambda: e(f"s_add_u32 s{S_OFFQ}, s{S_OFFQ}, {32 * 6144}"))
        f.append(lambda: e(f"s_add_u32 s{S_OFFH}, s{S_OFFH}, {32 * 7168}"))
        return f

    def dmaA(aa):
        slot = aa % 2
        tag = f"A{aa}"
        f = []
        for half in range(2):
            so = S_OFFA if half == 0 else S_OFFA2
            f.append(lambda half=half: e(f"s_add_u32 m0, s{S_M0A}, {slot * 8192 + half * 4096}"))
            for j in range(4):
                f.append(lambda j=j, so=so: a.vmem(
                    f"buffer_load_dwordx4 v{V_ADMA + j}, s[{S_X}:{S_X + 3}], s{so} offen offset:{1024 * j} {OPT['k1a']} lds", tag))
        f.append(lambda: e(f"s_add_u32 s{S_OFFA}, s{S_OFFA}, 128"))
        f.append(lambda: e(f"s_add_u32 s{S_OFFA2}, s{S_OFFA2}, 128"))
        return f

    def run_seq(fl):
        for fn in fl:
            n0 = len(a.lines)
            fn()
            if " m0," in a.lines[-1] and len(a.lines) == n0 + 1:
                e("s_nop 0")

    e("s_waitcnt lgkmcnt(0)")
    srd(a, S_Q, S_PTR + 2, S_PTR + 3, 1024 * 3072 * 2, bias=4096)
    srd(a, S_W1, S_PTR + 8, S_PTR + 9, 1024 * 3584 * 2, bias=4096)
    srd(a, S_X, S_PTR + 0, S_PTR + 1, 2048 * 1024 * 2)
    if not OPT.get('spin'):
        stamp(a, 0)
    if OPT.get('kst'):
        stamp(a, 4)
    run_seq(dmaB(0))
    run_seq(dmaA(0))
    srd(a, S_T + 4, S_PTR + 10, S_PTR + 11, 7168)
    e(f"v_lshlrev_b32 v{t1}, 3, v{vG}")
    for j in range(nh):
        a.vmem(f"buffer_load_dwordx2 {vr(acc(nq + j, 3), 2)}, v{t1}, s[{S_T + 4}:{S_T + 7}], s{S_T + 2} offen offset:{32 * j}", "bias")
    run_seq(dmaB(1))
    if not OPT.get('ramp'):
        run_seq(dmaB(2))
        run_seq(dmaA(1))
        run_seq(dmaB(3))
    e(f"v_lshrrev_b32 v{t0}, 3, v{vi}")
    e(f"v_lshlrev_b32 v{t0}, 6, v{t0}")
    e(f"v_and_b32 v{t1}, 7, v{vi}")
    e(f"v_lshlrev_b32 v{t1}, 3, v{t1}")
    e(f"v_add_u32 v{t0}, v{t0}, v{t1}")
    e(f"v_lshrrev_b32 v{t1}, 1, v{vi}")
    e(f"v_xor_b32 v{t1}, v{t1}, v{vG}")
    e(f"v_add_u32 v{t2}, v{t0}, v{t1}")
    e(f"v_lshlrev_b32 v{t2}, 4, v{t2}")
    e(f"v_add_u32 v{V_ARD}, s{S_M0A}, v{t2}")
    e(f"v_xor_b32 v{t1}, 4, v{t1}")
    e(f"v_add_u32 v{t2}, v{t0}, v{t1}")
    e(f"v_lshlrev_b32 v{t2}, 4, v{t2}")
    e(f"v_add_u32 v{V_ARD + 1}, s{S_M0A}, v{t2}")
    e(f"v_and_b32 v{t0}, 1, v{vG}")
    e(f"v_lshlrev_b32 v{t0}, 2, v{t0}")
    e(f"v_lshrrev_b32 v{t1}, 2, v{vi}")
    e(f"v_add_u32 v{t0}, v{t0}, v{t1}")
    e(f"v_lshrrev_b32 v{t1}, 1, v{vG}")
    e(f"v_mul_u32_u24 v{t1}, {2 * K1_AREA}, v{t1}")
    e(f"v_and_b32 v{t2}, 3, v{vi}")
    e(f"v_lshlrev_b32 v{t2}, 3, v{t2}")
    e(f"v_add_u32 v{t1}, v{t1}, v{t2}")
    e(f"v_mul_u32_u24 v{t3}, {16 * Ph}, v{t0}")
    e(f"v_add3_u32 v{V_HRD}, v{t1}, v{t3}, {0}")
    e(f"v_add_u32 v{V_HRD}, {HB}, v{V_HRD}")
    e(f"v_lshlrev_b32 v{t3}, 7, v{t0}")
    e(f"v_add_u32 v{t1}, v{t1}, v{t3}")
    e(f"v_lshrrev_b32 v{t2}, 1, v{t0}")
    e(f"v_and_b32 v{t2}, 3, v{t2}")
    for t in range(4):
        e(f"v_xor_b32 v{t3}, {t}, v{t2}")
        e(f"v_lshlrev_b32 v{t3}, 5, v{t3}")
        e(f"v_add_u32 v{V_QRD + t}, v{t1}, v{t3}")
    e(f"v_lshlrev_b32 v{V_L16}, 4, v{V_LANE}")

    gw, gx0, gx1 = V_T, V_T + 8, V_T + 16
    gt = V_T + 24
    nb = {0: 1, 1: 7, 2: 1, 3: 2, 4: 3}[OPT['pf']]
    PL1, PL2 = -(-56 // nb), -(-16 // nb)

    def misc_setup():
        srd(a, S_WS, S_PTR + 20, S_PTR + 21, WS_USED)
        tile_decode(a, S_T + 4, S_T + 5, S_T + 6, S_T + 7, S_T)
        e(f"s_lshl_b32 s{S_T}, s{S_RB}, 1")
        e(f"s_lshr_b32 s{S_T + 1}, s{S_WAVE}, 1")
        e(f"s_add_u32 s{S_T}, s{S_T}, s{S_T + 1}")
        e(f"s_lshl_b32 s{S_T}, s{S_T}, 5")
        e(f"s_lshl_b32 s{S_T + 1}, s{S_P}, 1")
        e(f"s_add_u32 s{S_T}, s{S_T}, s{S_T + 1}")
        if typ:
            e(f"s_add_u32 s{S_T}, s{S_T}, 1")
        e(f"s_lshl_b32 s{S_T}, s{S_T}, 1")
        e(f"s_and_b32 s{S_T + 1}, s{S_WAVE}, 1")
        e(f"s_add_u32 s{S_T}, s{S_T}, s{S_T + 1}")
        e(f"s_lshl_b32 s{S_T}, s{S_T}, 3")
        e(f"s_add_u32 s{S_T}, s{S_T}, {FA_OFF}")
        e(f"v_writelane_b32 v0, s{S_T}, 4")
        e(f"s_lshl_b32 s{S_T}, s{S_RB}, 1")
        e(f"s_lshr_b32 s{S_T + 3}, s{S_WAVE}, 1")
        e(f"s_add_u32 s{S_T}, s{S_T}, s{S_T + 3}")
        e(f"s_lshl_b32 s{S_T}, s{S_T}, 5")
        e(f"s_add_u32 s{S_T}, s{S_T}, s{S_P}")
        e(f"s_lshl_b32 s{S_T}, s{S_T}, 1")
        e(f"s_add_u32 s{S_T}, s{S_T}, s{S_T + 1}")
        e(f"s_lshl_b32 s{S_T}, s{S_T}, 3")
        e(f"s_add_u32 s{S_T}, s{S_T}, {FE_OFF + 256 * typ}")
        e(f"v_writelane_b32 v0, s{S_T}, 0")
        e(f"s_lshl_b32 s{S_T}, s{S_P}, 4")
        e(f"s_add_u32 s{S_T}, s{S_T}, s{S_RB}")
        e(f"s_lshl_b32 s{S_T}, s{S_T}, 2")
        e(f"s_add_u32 s{S_T}, s{S_T}, s{S_WAVE}")
        e(f"s_lshl_b32 s{S_T}, s{S_T}, 3")
        e(f"s_add_u32 s{S_T}, s{S_T}, {FQ_OFF + 256 * typ}")
        e(f"v_writelane_b32 v0, s{S_T}, 1")
        e(f"s_lshr_b32 s{S_T}, s2, 5")
        e(f"s_lshl_b32 s{S_T}, s{S_T}, 1")
        e(f"s_lshr_b32 s{S_T + 1}, s{S_WAVE}, 1")
        e(f"s_add_u32 s{S_T}, s{S_T}, s{S_T + 1}")
        e(f"s_lshl_b32 s{S_T}, s{S_T}, 9")
        e(f"s_and_b32 s{S_T + 1}, s2, 31")
        e(f"s_lshl_b32 s{S_T + 1}, s{S_T + 1}, 4")
        e(f"s_add_u32 s{S_T}, s{S_T}, s{S_T + 1}")
        e(f"s_and_b32 s{S_T + 1}, s{S_WAVE}, 1")
        e(f"s_lshl_b32 s{S_T + 1}, s{S_T + 1}, 3")
        e(f"s_add_u32 s{S_T}, s{S_T}, s{S_T + 1}")
        e(f"s_add_u32 s{S_T}, s{S_T}, {FO_OFF}")
        e(f"s_lshl_b32 s{S_T + 1}, s{S_T + 7}, 8")
        e(f"s_lshl_b32 s{S_T + 3}, s{S_WAVE}, 3")
        e(f"s_add_u32 s{S_T + 1}, s{S_T + 1}, s{S_T + 3}")
        e(f"s_add_u32 s{S_T + 1}, s{S_T + 1}, {FP_OFF}")
        e(f"s_cmp_eq_u32 s{S_T + 6}, 0")
        e(f"s_cselect_b32 s{S_T + 1}, s{S_T + 1}, 0x7ffffff0")
        e(f"v_writelane_b32 v0, s{S_T}, 2")
        e(f"v_writelane_b32 v0, s{S_T + 1}, 3")
        e(f"s_mul_i32 s{S_T}, s2, 171")
        e(f"s_lshr_b32 s{S_T}, s{S_T}, 10")
        e(f"s_lshl_b32 s{S_T}, s{S_T}, 1")
        e(f"s_add_u32 s{S_T}, s{S_T}, s2")
        e(f"s_lshl_b32 s{S_T}, s{S_T}, 3")
        e(f"s_add_u32 s{S_T}, s{S_T}, {FK_OFF}")
        e(f"v_writelane_b32 v0, s{S_T}, 5")

    def misc_setup2():
        if typ == 0:
            e(f"s_or_b32 s{S_T}, s2, s{S_WAVE}")
            e(f"s_cmp_lg_u32 s{S_T}, 0")
            e(f"s_cbranch_scc1 L_notok")
            e(f"s_memrealtime s[{S_T + 8}:{S_T + 9}]")
            srd(a, S_T + 4, S_PTR + 18, S_PTR + 19, 256)
            e("s_waitcnt lgkmcnt(0)")
            e(f"s_or_b32 s{S_T + 9}, s{S_T + 9}, 0x40000000")
            e(f"s_lshl_b32 s{S_T + 9}, s{S_T + 9}, 1")
            e(f"s_and_b32 s{S_T}, s{S_T + 8}, 1")
            e(f"s_or_b32 s{S_T + 9}, s{S_T + 9}, s{S_T}")
            e(f"s_or_b32 s{S_T + 8}, s{S_T + 8}, 1")
            e(f"v_mov_b32 v{V_T + 24}, s{S_T + 8}")
            e(f"v_mov_b32 v{V_T + 25}, s{S_T + 9}")
            e(f"v_mov_b32 v{V_T + 27}, 0")
            e("s_mov_b64 exec, 1")
            e(f"buffer_store_dwordx2 v[{V_T + 24}:{V_T + 25}], v{V_T + 27}, s[{S_T + 4}:{S_T + 7}], 0 offen sc1")
            e("s_mov_b64 exec, -1")
            e("s_nop 1")
            a.label("L_notok")
        if OPT.get('cpf') == 1:
            e(f"s_getpc_b64 s[{S_T + 4}:{S_T + 5}]")
            a.label(f"L_pc_{T}")
            e(f"s_sub_u32 s{S_T + 4}, s{S_T + 4}, L_pc_{T}-KNAME")
            e(f"s_subb_u32 s{S_T + 5}, s{S_T + 5}, 0")
            e(f"s_lshr_b32 s{S_T}, s2, 3")
            e(f"s_and_b32 s{S_T}, s{S_T}, 3")
            e(f"s_lshl_b32 s{S_T}, s{S_T}, 2")
            e(f"s_add_u32 s{S_T}, s{S_T}, s{S_WAVE}")
            e(f"s_lshl_b32 s{S_T}, s{S_T}, 13")
            e(f"v_lshlrev_b32 v{V_T + 29}, 7, v{V_LANE}")
            e(f"v_add_u32 v{V_T + 29}, s{S_T}, v{V_T + 29}")
            e(f"v_min_u32 v{V_T + 29}, L_code_end-KNAME-4, v{V_T + 29}")
            a.vmem(f"global_load_dword v{V_T + 29}, v{V_T + 29}, s[{S_T + 4}:{S_T + 5}]", "pf")
        if OPT.get('xpf') == 1:
            e(f"v_and_b32 v{V_T + 28}, 31, v{V_LANE}")
            e(f"v_lshlrev_b32 v{V_T + 28}, 7, v{V_T + 28}")
            e(f"s_lshl_b32 s{S_T}, s2, 2")
            e(f"s_add_u32 s{S_T}, s{S_T}, s{S_WAVE}")
            e(f"s_lshl_b32 s{S_T}, s{S_T}, 12")
            a.vmem(f"buffer_load_dword v{V_T + 28}, v{V_T + 28}, s[{S_X}:{S_X + 3}], s{S_T} offen", "pf")
        if OPT.get('xpf') == 2:
            e(f"v_lshlrev_b32 v{V_T + 27}, 7, v{V_LANE}")
            e(f"s_lshr_b32 s{S_T}, s2, 5")
            e(f"s_lshl_b32 s{S_T}, s{S_T}, 2")
            e(f"s_add_u32 s{S_T}, s{S_T}, s{S_WAVE}")
            e(f"s_lshl_b32 s{S_T}, s{S_T}, 14")
            e(f"s_lshl_b32 s{S_T + 1}, s{S_RB}, 19")
            e(f"s_add_u32 s{S_T}, s{S_T}, s{S_T + 1}")
            a.vmem(f"buffer_load_dword v{V_T + 28}, v{V_T + 27}, s[{S_X}:{S_X + 3}], s{S_T} offen", "pf")
            e(f"s_add_u32 s{S_T}, s{S_T}, 8192")
            a.vmem(f"buffer_load_dword v{V_T + 28}, v{V_T + 27}, s[{S_X}:{S_X + 3}], s{S_T} offen", "pf")

        e(f"v_lshlrev_b32 v{gt}, 5, v{V_LANE}")
        e(f"s_lshl_b32 s{S_GROW}, s{S_RB}, 8")
        e(f"s_lshl_b32 s{S_T + 1}, s{S_WAVE}, 6")
        e(f"s_add_u32 s{S_GROW}, s{S_GROW}, s{S_T + 1}")
        e(f"s_lshl_b32 s{S_T + 1}, s{S_P}, 2")
        e(f"s_add_u32 s{S_GROW}, s{S_GROW}, s{S_T + 1}")
        if typ:
            e(f"s_add_u32 s{S_GROW}, s{S_GROW}, 2")
        e(f"s_lshl_b32 s{S_T + 1}, s{S_GROW}, 11")
        srd(a, S_MISC, S_PTR + 14, S_PTR + 15, 2048)
        a.vmem(f"buffer_load_dwordx4 {vr(gw)}, v{gt}, s[{S_MISC}:{S_MISC + 3}], 0 offen", "g")
        a.vmem(f"buffer_load_dwordx4 {vr(gw + 4)}, v{gt}, s[{S_MISC}:{S_MISC + 3}], 0 offen offset:16", "g")
        a.vmem(f"buffer_load_dwordx4 {vr(gx0)}, v{gt}, s[{S_X}:{S_X + 3}], s{S_T + 1} offen", "g")
        a.vmem(f"buffer_load_dwordx4 {vr(gx0 + 4)}, v{gt}, s[{S_X}:{S_X + 3}], s{S_T + 1} offen offset:16", "g")
        a.vmem(f"buffer_load_dwordx4 {vr(gx1)}, v{gt}, s[{S_X}:{S_X + 3}], s{S_T + 1} offen offset:2048", "g")
        a.vmem(f"buffer_load_dwordx4 {vr(gx1 + 4)}, v{gt}, s[{S_X}:{S_X + 3}], s{S_T + 1} offen offset:2064", "g")

        if OPT['pf']:
            srd(a, S_PF1, S_PTR + 12, S_PTR + 13, 3584 * 1024 * 2)
            srd(a, S_PF2, S_PTR + 4, S_PTR + 5, 1024 * 1024 * 2)
            e(f"v_min_u32 v{V_T + 26}, {PL1 - 1}, v{V_LANE}")
            e(f"v_lshlrev_b32 v{V_T + 26}, 7, v{V_T + 26}")
            e(f"v_min_u32 v{V_T + 27}, {PL2 - 1}, v{V_LANE}")
            e(f"v_lshlrev_b32 v{V_T + 27}, 7, v{V_T + 27}")
            e(f"s_lshl_b32 s{S_T}, s2, 2")
            e(f"s_add_u32 s{S_T}, s{S_T}, s{S_WAVE}")
            e(f"s_mul_i32 s{S_PO1}, s{S_T}, 7168")
            e(f"s_lshl_b32 s{S_PO2}, s{S_T}, 11")


    if OPT.get('pt'):
        e(f"s_lshl_b32 s{S_T}, s{S_RB}, 1")
        e(f"s_lshr_b32 s{S_T + 1}, s{S_WAVE}, 1")
        e(f"s_add_u32 s{S_T}, s{S_T}, s{S_T + 1}")
        e(f"s_mul_i32 s{S_AFB}, s{S_T}, {144 * 8192}")
        e(f"s_and_b32 s{S_T + 1}, s{S_WAVE}, 1")
        e(f"s_lshl_b32 s{S_T + 1}, s{S_T + 1}, 12")
        e(f"s_add_u32 s{S_AFB}, s{S_AFB}, s{S_T + 1}")
        e(f"s_mul_i32 s{S_PT}, s{S_P}, {7 * 8192}")
        e(f"s_add_u32 s{S_PT}, s{S_PT}, s{S_AFB}")
        if typ:
            e(f"s_add_u32 s{S_PT}, s{S_PT}, {2 * 8192}")
        e(f"s_add_u32 s{S_PTE}, s{S_PT}, {(4 if typ else 2) * 8192}")
        e(f"v_and_b32 v{V_T + 25}, 31, v{V_LANE}")
        e(f"v_lshlrev_b32 v{V_T + 25}, 7, v{V_T + 25}")
        if typ:
            e(f"v_lshrrev_b32 v{V_T + 29}, 5, v{V_LANE}")
            e(f"v_lshlrev_b32 v{V_T + 29}, 13, v{V_T + 29}")
            e(f"v_add_u32 v{V_T + 29}, v{V_T + 29}, v{V_T + 25}")
            e(f"s_mul_i32 s{S_T}, s{S_P}, {2 * 8192}")
            e(f"s_add_u32 s{S_T}, s{S_T}, {112 * 8192}")
            e(f"s_add_u32 s{S_T}, s{S_T}, s{S_AFB}")
            a.vmem(f"buffer_load_dword v{V_T + 28}, v{V_T + 29}, s[{S_WS}:{S_WS + 3}], s{S_T} offen", "pf")

    def pt_items():
        return [lambda: a.vmem(f"buffer_load_dword v{V_T + 28}, v{V_T + 25}, s[{S_WS}:{S_WS + 3}], s{S_PT} offen", "pf"),
                lambda: e(f"s_add_u32 s{S_PT}, s{S_PT}, 8192"),
                lambda: e(f"s_min_u32 s{S_PT}, s{S_PT}, s{S_PTE}")]

    def pf_items(cond=None):
        if cond is None:
            return [lambda: a.vmem(f"buffer_load_dword v{V_T + 28}, v{V_T + 26}, s[{S_PF1}:{S_PF1 + 3}], s{S_PO1} offen", "pf"),
                    lambda: a.vmem(f"buffer_load_dword v{V_T + 28}, v{V_T + 27}, s[{S_PF2}:{S_PF2 + 3}], s{S_PO2} offen", "pf"),
                    lambda: e(f"s_add_u32 s{S_PO1}, s{S_PO1}, {128 * PL1}"),
                    lambda: e(f"s_add_u32 s{S_PO2}, s{S_PO2}, {128 * PL2}")]

        def blk():
            e(f"s_lshl_b32 s{S_T}, 1, s{S_CNT}")
            e(f"s_and_b32 s{S_T}, s{S_T}, {cond}")
            e(f"s_cbranch_scc0 L_k1{T}_nopf")
            e(f"buffer_load_dword v{V_T + 28}, v{V_T + 26}, s[{S_PF1}:{S_PF1 + 3}], s{S_PO1} offen")
            e(f"buffer_load_dword v{V_T + 28}, v{V_T + 27}, s[{S_PF2}:{S_PF2 + 3}], s{S_PO2} offen")
            e(f"s_add_u32 s{S_PO1}, s{S_PO1}, {128 * PL1}")
            e(f"s_add_u32 s{S_PO2}, s{S_PO2}, {128 * PL2}")
            a.label(f"L_k1{T}_nopf")
        return [blk]

    def g_items():
        d0, d1 = V_T + 24, V_T + 25
        L = []
        L.append(f"v_dot2_f32_bf16 v{d0}, v{gx0}, v{gw}, 0")
        L.append(f"v_dot2_f32_bf16 v{d1}, v{gx1}, v{gw}, 0")
        for j in range(1, 8):
            L.append(f"v_dot2_f32_bf16 v{d0}, v{gx0 + j}, v{gw + j}, v{d0}")
            L.append(f"v_dot2_f32_bf16 v{d1}, v{gx1 + j}, v{gw + j}, v{d1}")
        L.append("s_nop 3")
        for sh_ in (1, 2, 4, 8):
            L.append(f"s_nop 0\nv_add_f32_dpp v{d0}, v{d0}, v{d0} row_shr:{sh_} row_mask:0xf bank_mask:0xf bound_ctrl:0")
            L.append(f"s_nop 0\nv_add_f32_dpp v{d1}, v{d1}, v{d1} row_shr:{sh_} row_mask:0xf bank_mask:0xf bound_ctrl:0")
        L.append(f"s_nop 0\nv_add_f32_dpp v{d0}, v{d0}, v{d0} row_bcast:15 row_mask:0xa bank_mask:0xf")
        L.append(f"s_nop 0\nv_add_f32_dpp v{d1}, v{d1}, v{d1} row_bcast:15 row_mask:0xa bank_mask:0xf")
        L.append(f"s_nop 0\nv_add_f32_dpp v{d0}, v{d0}, v{d0} row_bcast:31 row_mask:0xc bank_mask:0xf")
        L.append(f"s_nop 0\nv_add_f32_dpp v{d1}, v{d1}, v{d1} row_bcast:31 row_mask:0xc bank_mask:0xf")
        L.append(f"v_mul_f32 v{d0}, 0xbfb8aa3b, v{d0}")
        L.append(f"v_mul_f32 v{d1}, 0xbfb8aa3b, v{d1}")
        L.append(f"v_exp_f32 v{d0}, v{d0}")
        L.append(f"v_exp_f32 v{d1}, v{d1}\ns_nop 0")
        L.append(f"v_add_f32 v{d0}, 1.0, v{d0}")
        L.append(f"v_add_f32 v{d1}, 1.0, v{d1}")
        L.append(f"v_rcp_f32 v{d0}, v{d0}")
        L.append(f"v_rcp_f32 v{d1}, v{d1}")
        L.append(f"v_mov_b32 v{gw}, 0")
        L.append(f"s_lshl_b32 s{S_T + 1}, s{S_GROW}, 2\ns_add_u32 s{S_T + 1}, s{S_T + 1}, {G_OFF}")
        L.append(f"s_lshl_b32 s{S_T + 3}, s2, 8\ns_add_u32 s{S_T + 3}, s{S_T + 3}, {FLG_OFF}")
        L.append(f"s_mov_b32 s{S_T + 8}, 0\ns_mov_b32 s{S_T + 9}, 0x80000000")
        F = [(lambda x=x: e(x)) for x in L]

        def st():
            e(f"s_mov_b64 exec, s[{S_T + 8}:{S_T + 9}]")
            a.vmem(f"buffer_store_dwordx2 v[{d0}:{d1}], v{gw}, s[{S_WS}:{S_WS + 3}], s{S_T + 1} offen sc1", "sq")
            e("s_mov_b64 exec, -1")
        F.append(st)
        return F

    if OPT.get('m2', 9) == 9:
        misc_setup2()
    a.wait(["bias"])
    for j in range(nh):
        src = acc(nq + j, 3)
        d = acc(nq + j, 0)
        e(f"v_lshlrev_b32 v{d}, 16, v{src}")
        e(f"v_and_b32 v{d + 1}, 0xffff0000, v{src}")
        e(f"v_lshlrev_b32 v{d + 2}, 16, v{src + 1}")
        e(f"v_and_b32 v{d + 3}, 0xffff0000, v{src + 1}")
    for t in range(4):
        for r in range(4):
            e(f"v_mov_b32 v{acc(t, 0) + r}, {EPS_HEX}")

    def rdB(tt):
        slot = tt % 4
        s = tt % 2
        f = []
        for t in range(13):
            for ins in range(2):
                if t < nq:
                    addr = V_QRD + (t & 3)
                    off = slot * K1_BSLOT + ins * K1_AREA + 1024 * (t >> 2)
                else:
                    addr = V_HRD
                    off = slot * K1_BSLOT + ins * K1_AREA + 32 * (t - nq)
                d = bset(s, t) + 2 * ins
                f.append(lambda d=d, addr=addr, off=off: e(f"ds_read_b64_tr_b16 {ar(d, 2)}, v{addr} offset:{off}"))
        return f

    def aset_of(tt):
        if tt % 2 == 0:
            return ASET["X"]
        return ASET["Y"] if tt % 4 == 1 else ASET["Z"]

    def rdA(aa):
        slot = aa % 2
        f = []
        for hh in range(2):
            base = aset_of(2 * aa + hh)
            for mt in range(4):
                f.append(lambda hh=hh, mt=mt, base=base: e(
                    f"ds_read_b128 {ar(base + 4 * mt)}, v{V_ARD + hh} offset:{slot * 8192 + mt * 2048}"))
        return f

    stamp(a, 1)
    a.wait(["B0", "A0"])
    e("s_barrier")
    stamp(a, 2)
    for fn in rdA(0) + rdB(0):
        fn()
    if OPT.get('ramp'):
        run_seq(dmaA(1))
        run_seq(dmaB(2))
    a.wait(["B1"], lgkm=True)
    e("s_barrier")

    misc_items = capture(a, misc_setup)
    misc_items2 = capture(a, misc_setup2) if OPT.get('m2', 9) != 9 else []

    NSTEP = 32

    def step(tt):
        if DIAG and OPT.get('ts'):
            e("s_memrealtime s[76:77]")
            e("s_waitcnt lgkmcnt(0)")
            e("s_mov_b32 m0, s78")
            e("s_nop 0")
            e(f"v_writelane_b32 v{V_T + 29}, s76, m0")
            e("s_add_u32 s78, s78, 1")
        s = tt % 2
        ab = aset_of(tt)
        mf = []
        for t in range(13):
            order = [1, 2, 3, 0] if tt == 0 else [0, 1, 2, 3]
            for mt in order:
                D = vr(acc(t, mt))
                if tt == 0:
                    C = "0" if (typ == 0 and 4 <= t < 8) else vr(acc(t, 0))
                else:
                    C = D
                W = ar(bset(s, t))
                X = ar(ab + 4 * mt)
                if typ == 0 and t < 8:
                    mf.append(f"v_mfma_f32_16x16x32_bf16 {D}, {X}, {W}, {C}")
                else:
                    mf.append(f"v_mfma_f32_16x16x32_bf16 {D}, {W}, {X}, {C}")
        if OPT.get('fakechain') and tt > 0:
            import re
            m2 = []
            for i in range(0, 52, 2):
                x0, x1 = mf[i], mf[i + 1]
                pick = x0 if tt % 2 == 0 else x1
                D = re.match(r"v_mfma\S+ (v\[\d+:\d+\])", pick).group(1)
                for x in (x0, x1):
                    D0 = re.match(r"v_mfma\S+ (v\[\d+:\d+\])", x).group(1)
                    m2.append(x.replace(D0, D))
            mf = m2
        rd = []
        if tt + 1 < NSTEP:
            rd = rdB(tt + 1)
            if tt % 2 == 1:
                rd = rdA((tt + 1) // 2) + rd
        dm = []
        if tt == 0 and OPT.get('ramp'):
            dm += dmaB(3)
        if OPT.get('afirst', 1) and tt % 2 == 0 and tt // 2 + 2 < NSTEP // 2:
            dm += dmaA(tt // 2 + 2)
        if tt + 4 < NSTEP:
            dm += dmaB(tt + 4)
        if not OPT.get('afirst', 1) and tt % 2 == 0 and tt // 2 + 2 < NSTEP // 2:
            dm += dmaA(tt // 2 + 2)
        if OPT['pf'] == 1 and tt % 4 == 1 and tt < 28:
            dm += pf_items()
        if OPT.get('cpf') == 3 and tt == 28:
            dm.append(lambda: a.vmem(f"global_load_dword v{V_T + 28}, v{V_T + 29}, s[{S_CB}:{S_CB + 1}]", "pf"))
        if OPT['pf'] in (2, 3, 4) and tt == 28:
            dm += pf_items()
        if OPT['pf'] in (3, 4) and tt % 4 == 1 and 4 <= tt < 28:
            dm += pf_items({3: 1 << 4, 4: (1 << 5) | (1 << 3)}[OPT['pf']])
        if OPT.get('pt') and tt % 4 == 3 and tt < 28:
            dm += pt_items()
        if tt == OPT.get('m2', 9):
            dm += misc_items2
        if tt == 3:
            dm += misc_items
        fl = []
        i1 = i2 = 0
        n1, n2 = len(rd), len(dm)
        while i1 < n1 or i2 < n2:
            if i2 < n2 and (i1 >= n1 or i2 * n1 <= i1 * n2):
                fl.append(dm[i2]); i2 += 1
            else:
                fl.append(rd[i1]); i1 += 1
        if tt == NSTEP - 1:
            assert "g" not in a.vm
            fl = g_items()
        interleave(a, mf, fl, 0, 48)
        if tt + 1 < NSTEP:
            tags = []
            if tt + 2 < NSTEP:
                tags.append(f"B{tt + 2}")
            if tt % 2 == 0:
                tags.append(f"A{tt // 2 + 1}")
            a.wait(tags, lgkm=True)
            if tt + 2 < NSTEP:
                e("s_barrier")

    iters = []
    for it in range(8):
        n0 = len(a.lines)
        for tt in range(4 * it, 4 * it + 4):
            step(tt)
        iters.append(a.lines[n0:])
        del a.lines[n0:]
    for it in range(2, 7):
        assert iters[it] == iters[1], f"iteration {it} differs"
    stamp(a, 3)
    if DIAG and OPT.get('ts'):
        e("s_mov_b32 s78, 0")
    a.lines += iters[0]
    if not OPT.get('ts') and not OPT.get('kst'):
        stamp(a, 4)
    e(f"s_mov_b32 s{S_CNT}, 6")
    a.label(f"L_k1{T}_loop")
    a.lines += iters[1]
    e(f"s_sub_u32 s{S_CNT}, s{S_CNT}, 1")
    e(f"s_cmp_lg_u32 s{S_CNT}, 0")
    e(f"s_cbranch_scc1 L_k1{T}_loop")
    a.lines += iters[7]
    assert all(not t.startswith(("A", "B")) for t in a.vm), a.vm

    stamp(a, 5)

    def fin():
        stamp(a, 6)
        stamp(a, 7)
        k = a.vm_count(["#eA"], drop=False)
        if DIAG:
            k += 16
        stamp_dump(a, 0, 8, S_WAVE, S_PTR + 20, S_PTR + 21, V_T)
        e(f"s_cmp_eq_u32 s{P_SEARLY}, 0")
        e("s_cbranch_scc1 L_p2_late")
        e(f"s_waitcnt vmcnt({k})")
        e("s_branch L_p2_go")

    def fe_load():
        a.vmem(f"buffer_load_dwordx2 v[{P_VFL}:{P_VFL + 1}], v{P_VFA}, s[{S_WS}:{S_WS + 3}], 0 offen sc1", "fe")

    def fe_check():
        a.wait(["fe"])
        e(f"v_cmp_eq_u64 vcc, v[{P_VFL}:{P_VFL + 1}], v[{V_TOK}:{V_TOK + 1}]")
        e(f"s_mov_b32 s{P_SEARLY}, 0")
        e("s_nop 0")
        e("s_cmp_eq_u64 vcc, -1")
        e(f"s_cbranch_scc0 L_k1{T}_noearly")
        p2_issueA(a)
        e(f"s_mov_b32 s{P_SEARLY}, 1")
        a.label(f"L_k1{T}_noearly")
        a.mark("eA")

    def setflag(lane):
        a.label(f"L_k1{T}_tw")
        e(f"v_readfirstlane_b32 s{S_T}, v{V_TOK + 1}")
        e(f"v_readfirstlane_b32 s{S_T + 1}, v{V_TOK}")
        e("s_nop 3")
        e(f"s_min_u32 s{S_T}, s{S_T}, s{S_T + 1}")
        e(f"s_cmp_lg_u32 s{S_T}, 0")
        e(f"s_cbranch_scc1 L_k1{T}_tok")
        e("s_sleep 4")
        e(f"buffer_load_dwordx2 v[{V_TOK}:{V_TOK + 1}], v12, s[{S_T + 4}:{S_T + 7}], 0 offen sc1")
        e("s_waitcnt vmcnt(0)")
        e(f"s_branch L_k1{T}_tw")
        a.label(f"L_k1{T}_tok")
        e(f"s_mov_b64 exec, {1 << lane}")
        a.vmem(f"buffer_store_dwordx2 v[{V_TOK}:{V_TOK + 1}], v0, s[{S_WS}:{S_WS + 3}], 0 offen sc1", "fl")
        e("s_mov_b64 exec, -1")
    e("s_barrier")
    e(f"s_mov_b32 s{S_L2E}, {L2E_HEX}")
    e(f"s_mov_b32 s{S_L2E + 1}, {L2E_HEX}")
    e(f"s_lshl_b32 s{S_T}, s{S_RB}, 1")
    e(f"s_lshr_b32 s{S_T + 1}, s{S_WAVE}, 1")
    e(f"s_add_u32 s{S_T}, s{S_T}, s{S_T + 1}")
    e(f"s_mul_i32 s{S_AFB}, s{S_T}, {144 * 8192}")
    e(f"s_and_b32 s{S_T + 1}, s{S_WAVE}, 1")
    e(f"s_lshl_b32 s{S_T + 1}, s{S_T + 1}, 12")
    e(f"s_add_u32 s{S_AFB}, s{S_AFB}, s{S_T + 1}")
    e("s_nop 7")
    TT, UU = V_T, V_T + 8

    def phi_group(ra, rb_):
        prs = [ra, ra + 2, rb_, rb_ + 2]
        for j, p in enumerate(prs):
            e(f"v_pk_mul_f32 {vr(TT + 2 * j, 2)}, {vr(p, 2)}, s[{S_L2E}:{S_L2E + 1}]")
        for j in range(8):
            e(f"v_exp_f32_e64 v{TT + j}, v{TT + j} clamp")
        for p in prs:
            e(f"v_max_f32 v{p}, {EPS_HEX}, v{p}")
            e(f"v_max_f32 v{p + 1}, {EPS_HEX}, v{p + 1}")
        for j, p in enumerate(prs):
            e(f"v_pk_add_f32 {vr(p, 2)}, {vr(p, 2)}, {vr(TT + 2 * j, 2)}")
        for j, p in enumerate(prs):
            e(f"v_cvt_pk_bf16_f32 v{ra + j}, v{p}, v{p + 1}")

    def cvt_group(ra, rb_):
        prs = [ra, ra + 2, rb_, rb_ + 2]
        for j, p in enumerate(prs):
            e(f"v_cvt_pk_bf16_f32 v{ra + j}, v{p}, v{p + 1}")

    def mish_group(ra, rb_, split=False, dst=None):
        prs = [ra, ra + 2, rb_, rb_ + 2]
        for j, p in enumerate(prs):
            e(f"v_pk_mul_f32 {vr(TT + 2 * j, 2)}, {vr(p, 2)}, s[{S_L2E}:{S_L2E + 1}]")
        for j in range(8):
            e(f"v_exp_f32 v{TT + j}, v{TT + j}")
        for j in range(4):
            e(f"v_pk_fma_f32 {vr(UU + 2 * j, 2)}, {vr(TT + 2 * j, 2)}, 0.5, 1.0 op_sel_hi:[1,0,0]")
        for j in range(4):
            e(f"v_pk_fma_f32 {vr(UU + 2 * j, 2)}, {vr(TT + 2 * j, 2)}, {vr(UU + 2 * j, 2)}, 1.0 op_sel_hi:[1,1,0]")
        for j in range(8):
            e(f"v_rcp_f32 v{UU + j}, v{UU + j}")
        for j, p in enumerate(prs):
            e(f"v_pk_fma_f32 {vr(p, 2)}, {vr(UU + 2 * j, 2)}, {vr(p, 2)}, {vr(p, 2)} neg_lo:[1,0,0] neg_hi:[1,0,0]")
        if split:
            e(f"v_cvt_pk_bf16_f32 v{ra}, v{ra}, v{ra + 1}")
            e(f"v_cvt_pk_bf16_f32 v{ra + 1}, v{ra + 2}, v{ra + 3}")
            e(f"v_cvt_pk_bf16_f32 v{rb_}, v{rb_}, v{rb_ + 1}")
            e(f"v_cvt_pk_bf16_f32 v{rb_ + 1}, v{rb_ + 2}, v{rb_ + 3}")
        else:
            dd = ra if dst is None else dst
            for j, p in enumerate(prs):
                e(f"v_cvt_pk_bf16_f32 v{dd + j}, v{p}, v{p + 1}")

    WS = f"s[{S_WS}:{S_WS + 3}]"

    def set_kb(sreg, mul, add):
        e(f"s_mul_i32 s{sreg}, s{S_P}, {mul * 8192}")
        e(f"s_add_u32 s{sreg}, s{sreg}, {add * 8192}")
        e(f"s_add_u32 s{sreg}, s{sreg}, s{S_AFB}")

    def h_late(tA, kbl, sreg, mid=None):
        set_kb(sreg, 7, kbl)
        for mt in range(4):
            mish_group(acc(tA, mt), acc(tA + 1, mt))
            if mt == 1 and mid:
                mid()

    def h_half_late(tA, half):
        set_kb(P_SL + 2, 7, 2)
        if half:
            e(f"s_add_u32 s{P_SL + 2}, s{P_SL + 2}, 512")
        for mp in range(2):
            mish_group(acc(tA, 2 * mp), acc(tA, 2 * mp + 1), dst=240 + 4 * mp)
        e("s_nop 1")
        for mp in range(2):
            e(f"v_permlane16_swap_b32 v{240 + 4 * mp}, v{242 + 4 * mp}")
            e(f"v_permlane16_swap_b32 v{241 + 4 * mp}, v{243 + 4 * mp}")

    def h_full(tA, kbl, tag='st'):
        set_kb(S_T + 2, 7, kbl)
        for mt in range(4):
            mish_group(acc(tA, mt), acc(tA + 1, mt))
            a.vmem(f"buffer_store_dwordx4 {vr(acc(tA, mt))}, v{V_L16}, {WS}, s{S_T + 2} offen offset:{1024 * mt} {OPT['st']}", tag)

    def h_half(tA, kbl, half):
        set_kb(S_T + 2, 7, kbl)
        for mp in range(2):
            mish_group(acc(tA, 2 * mp), acc(tA, 2 * mp + 1), split=True)
            for mt in (2 * mp, 2 * mp + 1):
                a.vmem(f"buffer_store_dwordx2 {vr(acc(tA, mt), 2)}, v{V_L16}, {WS}, s{S_T + 2} offen offset:{1024 * mt + 8 * half} {OPT['st']}", "st")

    if typ == 1:
        h_full(5, 3, "se")
        h_full(7, 4, "se")
        p2_early(a)
        for hd in range(2):
            set_kb(S_T + 2, 2, 112 + hd)
            for mt in range(4):
                phi_group(acc(2 * hd, mt), acc(2 * hd + 1, mt))
                a.vmem(f"buffer_store_dwordx4 {vr(acc(2 * hd, mt))}, v{V_L16}, {WS}, s{S_T + 2} offen offset:{1024 * mt} {OPT['st']}", "sq")
                if 4 * hd + mt == OPT.get('fepos', 4):
                    a.wait(["se", "zc"])
                    setflag(0)
        h_late(9, 5, P_SL, mid=fe_load)
        h_late(11, 6, P_SL + 1, mid=fe_check)
        h_half_late(4, 1)
        fin()
        return

    h_full(8, 0, "se")
    h_full(10, 1, "se")
    p2_early(a)
    ONES = V_T + 16
    for r in range(4):
        e(f"v_mov_b32 v{ONES + r}, 0x3f803f80")
    for t in range(4):
        for pr in range(2):
            phi_group(acc(t, 2 * pr), acc(t, 2 * pr + 1))
            if 2 * t + pr == OPT.get('fepos', 4):
                a.wait(["se", "zc"])
                setflag(0)
    for t in range(4, 8):
        for pr in range(2):
            cvt_group(acc(t, 2 * pr), acc(t, 2 * pr + 1))
    e("s_nop 1")
    free = [acc(t, m) for t in range(8) for m in (1, 3)]

    def Dt(tau):
        return free[tau]
    for pr in range(2):
        for hd in range(2):
            for dt in range(2):
                for et in range(3):
                    tau = hd * 6 + dt * 3 + et
                    Aop = vr(acc(2 * hd + dt, 2 * pr))
                    Bop = vr(acc(4 + 2 * hd + et, 2 * pr)) if et < 2 else vr(ONES)
                    C = "0" if pr == 0 else vr(Dt(tau))
                    e(f"v_mfma_f32_16x16x32_bf16 {vr(Dt(tau))}, {Aop}, {Bop}, {C}")
    vw, vrd = V_T + 20, V_T + 21
    e(f"s_mul_i32 s{S_T}, s{S_WAVE}, 12288")
    e(f"s_add_u32 s{S_T}, s{S_T}, 98304")
    e(f"v_add_u32 v{vw}, s{S_T}, v{V_L16}")
    e(f"s_mul_i32 s{S_T}, s{S_WAVE}, 3072")
    e(f"s_add_u32 s{S_T}, s{S_T}, 98304")
    e(f"v_add_u32 v{vrd}, s{S_T}, v{V_L16}")
    fe_load()
    e("s_nop 7")
    for tau in range(12):
        e(f"ds_write_b128 v{vw}, {vr(Dt(tau))} offset:{1024 * tau}")
    e(f"s_lshl_b32 s{S_T}, s{S_P}, 3")
    e(f"s_add_u32 s{S_T}, s{S_T}, s{S_RB}")
    e(f"s_mul_i32 s{S_T}, s{S_T}, 12288")
    e(f"s_mul_i32 s{S_T + 1}, s{S_WAVE}, 3072")
    e(f"s_add_u32 s{S_T}, s{S_T}, s{S_T + 1}")
    e(f"s_add_u32 s{S_T + 10}, s{S_T}, {KVP_OFF}")
    h_half_late(12, 0)
    e(f"s_mov_b32 s{P_SL}, 0x7ff00000")
    e(f"s_mov_b32 s{P_SL + 1}, 0x7ff00000")
    e("s_waitcnt lgkmcnt(0)")
    e("s_barrier")
    R = [acc(t, m) for t in range(8) for m in (0, 2)]
    for w2 in range(4):
        for j in range(3):
            e(f"ds_read_b128 {vr(R[3 * w2 + j])}, v{vrd} offset:{12288 * w2 + 1024 * j}")
    fe_check()
    e("s_waitcnt lgkmcnt(0)")
    for j in range(3):
        for h2 in range(2):
            b0 = R[j] + 2 * h2
            e(f"v_pk_add_f32 {vr(b0, 2)}, {vr(b0, 2)}, {vr(R[3 + j] + 2 * h2, 2)}")
            e(f"v_pk_add_f32 {vr(R[6 + j] + 2 * h2, 2)}, {vr(R[6 + j] + 2 * h2, 2)}, {vr(R[9 + j] + 2 * h2, 2)}")
        for h2 in range(2):
            b0 = R[j] + 2 * h2
            e(f"v_pk_add_f32 {vr(b0, 2)}, {vr(b0, 2)}, {vr(R[6 + j] + 2 * h2, 2)}")
        a.vmem(f"buffer_store_dwordx4 {vr(R[j])}, v{V_L16}, {WS}, s{S_T + 10} offen offset:{1024 * j} sc1", "sq")
    fin()


def gen_k1():
    a = Asm()
    e = a.e
    a.lines.append(".globl KNAME\n.p2align 8\n.type KNAME,@function\nKNAME:")
    if OPT.get('spin'):
        stamp(a, 0)
    e("s_cmp_ge_u32 s2, 256")
    e("s_cbranch_scc1 L_k1_exit")
    e(f"s_load_dwordx16 s[{S_PTR}:{S_PTR + 15}], s[0:1], 0")
    if OPT.get('cpf') >= 2:
        e(f"s_getpc_b64 s[{S_CB}:{S_CB + 1}]")
        a.label("L_pc_0")
        e(f"s_sub_u32 s{S_CB}, s{S_CB}, L_pc_0-KNAME")
        e(f"s_subb_u32 s{S_CB + 1}, s{S_CB + 1}, 0")
        e(f"s_lshl_b32 s{S_T}, s2, 12")
        e(f"s_and_b32 s{S_T}, s{S_T}, 0x18000")
        e(f"v_lshlrev_b32 v{V_T + 29}, 7, v0")
        e(f"v_add_u32 v{V_T + 29}, s{S_T}, v{V_T + 29}")
        e(f"v_min_u32 v{V_T + 29}, L_code_end-KNAME-4, v{V_T + 29}")
        e(f"global_load_dword v{V_T + 28}, v{V_T + 29}, s[{S_CB}:{S_CB + 1}]")
    e(f"s_load_dwordx4 s[{S_PTR + 16}:{S_PTR + 19}], s[0:1], 64")
    e(f"s_load_dwordx2 s[{S_PTR + 20}:{S_PTR + 21}], s[0:1], 80")
    e(f"v_and_b32 v{V_LANE}, 63, v0")
    e(f"v_lshrrev_b32 v{V_T}, 6, v0")
    e(f"s_and_b32 s{S_T}, s2, 7")
    e(f"v_readfirstlane_b32 s{S_WAVE}, v{V_T}")
    e(f"s_lshr_b32 s{S_T + 1}, s2, 3")
    if OPT.get('map1', 0) == 0:
        e(f"s_and_b32 s{S_RB}, s{S_T}, 1")
        e(f"s_lshl_b32 s{S_RB}, s{S_RB}, 2")
        e(f"s_and_b32 s{S_T + 2}, s{S_T + 1}, 3")
        e(f"s_add_u32 s{S_RB}, s{S_RB}, s{S_T + 2}")
        e(f"s_lshr_b32 s{S_T}, s{S_T}, 1")
        e(f"s_lshl_b32 s{S_T}, s{S_T}, 3")
        e(f"s_lshr_b32 s{S_T + 1}, s{S_T + 1}, 2")
        e(f"s_add_u32 s{S_T}, s{S_T}, s{S_T + 1}")
    elif OPT['map1'] == 1:
        e(f"s_and_b32 s{S_RB}, s{S_T + 1}, 7")
        e(f"s_lshl_b32 s{S_T}, s{S_T}, 2")
        e(f"s_lshr_b32 s{S_T + 1}, s{S_T + 1}, 3")
        e(f"s_add_u32 s{S_T}, s{S_T}, s{S_T + 1}")
    else:
        e(f"s_and_b32 s{S_RB}, s{S_T}, 3")
        e(f"s_lshl_b32 s{S_RB}, s{S_RB}, 1")
        e(f"s_and_b32 s{S_T + 2}, s{S_T + 1}, 1")
        e(f"s_add_u32 s{S_RB}, s{S_RB}, s{S_T + 2}")
        e(f"s_lshr_b32 s{S_T}, s{S_T}, 2")
        e(f"s_lshl_b32 s{S_T}, s{S_T}, 4")
        e(f"s_lshr_b32 s{S_T + 1}, s{S_T + 1}, 1")
        e(f"s_add_u32 s{S_T}, s{S_T}, s{S_T + 1}")
    e(f"s_lshr_b32 s{S_P}, s{S_T}, 1")
    e(f"s_and_b32 s{S_T + 3}, s{S_T}, 1")
    e(f"s_cmp_lg_u32 s{S_T + 3}, 0")
    e("s_cbranch_scc1 L_k1_typeB")
    k1_body(a, 0)
    a.label("L_k1_typeB")
    a.vm = []
    k1_body(a, 1)
    a.vm = []
    phase2(a)
    a.label("L_k1_exit")
    e("s_endpgm")
    a.label("L_code_end")
    return a.lines


def K2_LDS():
    return OPT['S'] * 32768 + 24576


def fold_loops(a, iters, period, scnt, name):
    n = len(iters)
    i = 0
    lab = 0
    while i < n:
        reps = 1
        while i + (reps + 1) * period <= n and all(
                iters[i + k] == iters[i + reps * period + k] for k in range(period)):
            reps += 1
        if reps >= 2:
            a.e(f"s_mov_b32 s{scnt}, {reps}")
            a.label(f"L_{name}_{lab}")
            for k in range(period):
                a.lines += iters[i + k]
            a.e(f"s_sub_u32 s{scnt}, s{scnt}, 1")
            a.e(f"s_cmp_lg_u32 s{scnt}, 0")
            a.e(f"s_cbranch_scc1 L_{name}_{lab}")
            lab += 1
            i += reps * period
        else:
            a.lines += iters[i]
            i += 1


def schedule(a, mf, streams):
    n = len(mf)
    placed = []
    for si, (items, start, end) in enumerate(streams):
        m = len(items)
        prev = 0
        for j, it in enumerate(items):
            fn, early = it if isinstance(it, tuple) else (it, 0)
            pos = start + (j * (end - start)) / max(m, 1)
            pos = max(pos, early, prev)
            prev = pos
            placed.append((pos, si, j, fn))
    placed.sort(key=lambda x: (x[0], x[1], x[2]))
    k = 0
    if n == 0:
        for p in placed:
            p[3]()
        return
    for i in range(n):
        a.e(mf[i])
        while k < len(placed) and placed[k][0] < i + 1:
            placed[k][3]()
            k += 1
    while k < len(placed):
        placed[k][3]()
        k += 1


P_SW2, P_SWO, P_SWS, P_SOUT = 96, 20, 16, 4
P_SMT, P_SNT, P_SROLE, P_STILE = 8, 9, 10, 11
P_SOA, P_SOB, P_SOP, P_SM0A, P_SM0B = 12, 13, 14, 15, 27
P_SHD, P_SM2, P_SEARLY = 28, 29, 30
P_VBD = 2
P_SLOT = 32768


def tile_decode(a, smt, snt, srole, stile, st):
    e = a.e
    e(f"s_and_b32 s{st}, s2, 7")
    e(f"s_lshr_b32 s{st + 1}, s2, 3")
    e(f"s_and_b32 s{srole}, s{st}, 1")
    if OPT.get('rsw'):
        e(f"s_xor_b32 s{srole}, s{srole}, 1")
    e(f"s_lshr_b32 s{st}, s{st}, 1")
    if OPT['map'] == 0:
        e(f"s_and_b32 s{smt}, s{st}, 1")
        e(f"s_lshl_b32 s{smt}, s{smt}, 3")
        e(f"s_and_b32 s{stile}, s{st + 1}, 7")
        e(f"s_add_u32 s{smt}, s{smt}, s{stile}")
        e(f"s_lshr_b32 s{snt}, s{st}, 1")
        e(f"s_lshl_b32 s{snt}, s{snt}, 2")
        e(f"s_lshr_b32 s{st + 1}, s{st + 1}, 3")
        e(f"s_add_u32 s{snt}, s{snt}, s{st + 1}")
    else:
        e(f"s_lshl_b32 s{smt}, s{st}, 2")
        e(f"s_and_b32 s{stile}, s{st + 1}, 3")
        e(f"s_add_u32 s{smt}, s{smt}, s{stile}")
        e(f"s_lshr_b32 s{snt}, s{st + 1}, 2")
    e(f"s_lshl_b32 s{stile}, s{smt}, 3")
    e(f"s_add_u32 s{stile}, s{stile}, s{snt}")


P_VAD, P_VFA, P_VFL = 8, 9, 10
P_SSA, P_SSB = 31, 32
P_SL = 4


def p2_setrun(a, first_expr, stride):
    e = a.e
    c0, c1 = first_expr
    e(f"s_lshr_b32 s{S_T + 11}, s{S_WAVE}, 1")
    e(f"s_mul_i32 s{S_T + 11}, s{S_T + 11}, {c1}")
    e(f"s_add_u32 s{S_T + 11}, s{S_T + 11}, {c0}")
    return S_T + 11


def p2_early(a):
    e = a.e
    S = OPT['S']
    ST = S_T
    tile_decode(a, P_SMT, P_SNT, P_SROLE, P_STILE, ST)
    vi, vG, t0, t1, t2 = 6, 7, 8, 9, 10
    e(f"v_and_b32 v{vi}, 15, v{V_LANE}")
    e(f"v_lshrrev_b32 v{vG}, 4, v{V_LANE}")
    e(f"s_lshl_b32 s{P_SM0A}, s{S_WAVE}, 12")
    e(f"s_add_u32 s{P_SM0B}, s{P_SM0A}, 16384")
    e(f"s_lshl_b32 s{ST}, s{P_SNT}, 8")
    e(f"s_and_b32 s{ST + 3}, s{S_WAVE}, 1")
    e(f"s_lshl_b32 s{ST + 1}, s{ST + 3}, 15")
    e(f"s_add_u32 s{ST}, s{ST}, s{ST + 1}")
    e(f"v_lshlrev_b32 v{t0}, 11, v{vG}")
    e(f"v_add_u32 v{t0}, s{ST}, v{t0}")
    e(f"v_lshlrev_b32 v{t1}, 1, v{vG}")
    e(f"v_xor_b32 v{t1}, v{t1}, v{vi}")
    for j in range(4):
        if j & 1:
            e(f"v_xor_b32 v{t2}, 8, v{t1}")
            e(f"v_lshlrev_b32 v{t2}, 4, v{t2}")
        else:
            e(f"v_lshlrev_b32 v{t2}, 4, v{t1}")
        e(f"v_add_u32 v{t2}, v{t2}, v{t0}")
        e(f"v_add_u32 v{P_VBD + j}, {j * (8192 - 1024)}, v{t2}")
    e(f"s_mul_i32 s{ST}, s{P_SROLE}, 3")
    e(f"s_lshr_b32 s{ST + 1}, s{S_WAVE}, 1")
    e(f"s_add_u32 s{ST}, s{ST}, s{ST + 1}")
    e(f"s_lshl_b32 s{P_SOB}, s{ST}, 16")
    e(f"s_mul_i32 s{P_SOA}, s{P_SMT}, 144")
    e(f"s_add_u32 s{P_SOA}, s{P_SOA}, s{ST}")
    e(f"s_lshl_b32 s{P_SOA}, s{P_SOA}, 13")
    e(f"s_mov_b32 s{P_SSA}, {7 * 8192}")
    e(f"s_mov_b32 s{P_SSB}, {7 * 65536}")
    srd(a, ST + 4, S_PTR + 18, S_PTR + 19, 256)
    e(f"v_mov_b32 v12, 0")
    a.vmem(f"buffer_load_dwordx2 v[{V_TOK}:{V_TOK + 1}], v12, s[{ST + 4}:{ST + 7}], 0 offen sc1", "zc")
    for j in range(S - 1):
        e(f"s_add_u32 m0, s{P_SM0B}, {j * P_SLOT}")
        e("s_nop 0")
        for i in range(4):
            a.vmem(f"buffer_load_dwordx4 v{P_VBD + i}, s[{P_SW2}:{P_SW2 + 3}], s{P_SOB} offen offset:{1024 * i} lds", "eB")
        e(f"s_add_u32 s{P_SOB}, s{P_SOB}, s{P_SSB}")
    e(f"s_lshl_b32 s{ST + 3}, s{ST + 3}, 12")
    e(f"v_add_u32 v{P_VAD}, s{ST + 3}, v{V_L16}")
    e(f"s_lshl_b32 s{ST}, s{P_SMT}, 1")
    e(f"s_add_u32 s{ST}, s{ST}, s{P_SROLE}")
    e(f"s_lshl_b32 s{ST}, s{ST}, 8")
    e(f"s_add_u32 s{ST}, s{ST}, {FE_OFF}")
    e(f"v_and_b32 v{P_VFA}, 31, v{V_LANE}")
    e(f"v_lshlrev_b32 v{P_VFA}, 3, v{P_VFA}")
    e(f"v_add_u32 v{P_VFA}, s{ST}, v{P_VFA}")


def p2_issueA(a):
    e = a.e
    for j in range(OPT['S'] - 1):
        e(f"s_add_u32 m0, s{P_SM0A}, {j * P_SLOT}")
        e("s_nop 0")
        for i in range(4):
            e(f"buffer_load_dwordx4 v{P_VAD}, s[{P_SWS}:{P_SWS + 3}], s{P_SOA} offen offset:{1024 * i} {OPT['k2a']} lds")
        e(f"s_add_u32 s{P_SOA}, s{P_SOA}, s{P_SSA}")


def phase2(a):
    e = a.e
    S = OPT['S']
    n0 = OPT['n0']
    SLOT = P_SLOT
    SCR = S * SLOT
    SWAVE = S_WAVE
    ST = S_T
    SCNT = S_CNT
    SMT, SNT, SROLE, STILE = P_SMT, P_SNT, P_SROLE, P_STILE
    SOA, SOB, SOP, SM0A, SM0B = P_SOA, P_SOB, P_SOP, P_SM0A, P_SM0B
    SW2, SWO, SOUT = P_SW2, P_SWO, P_SOUT
    WS = f"s[{P_SWS}:{P_SWS + 3}]"
    NBASE = (S + 1) // 2
    VL, VL16, VBD = V_LANE, V_L16, P_VBD
    vi, vG = 6, 7
    VZ = 11
    VAD = 8
    VFL = 10
    VFA = 9
    VAR = 12
    VBR = 18
    VT = 30
    VG = 38
    VOMG = 42
    VEPS = 46
    VEPS = 48
    CG = 52
    CR = 60
    CKV = 68
    CW = 80
    VX = 192
    VY = 84
    AC = 128
    t0, t1, t2, t3 = VT, VT + 1, VT + 2, VT + 3

    def acc2(mt, nt):
        return AC + 16 * mt + 4 * nt

    def FA(j, b, mt):
        return 64 * (j % 2) + 32 * b + 4 * mt

    def FB(j, b, nt):
        return 64 * (j % 2) + 32 * b + 16 + 4 * nt

    def setflag(*lanes):
        e(f"s_mov_b64 exec, {sum(1 << l for l in lanes)}")
        a.vmem(f"buffer_store_dwordx2 v[{V_TOK}:{V_TOK + 1}], v0, {WS}, 0 offen sc1", "fl")
        e("s_mov_b64 exec, -1")

    VQ = 120
    VH = 16

    def fq_load():
        a.vmem(f"buffer_load_dwordx2 v[{VQ}:{VQ + 1}], v{VQ + 2}, {WS}, 0 offen sc1", "fq")

    a.label("L_p2_late")
    e(f"buffer_load_dwordx2 v[{VFL}:{VFL + 1}], v{VFA}, {WS}, 0 offen sc1")
    e("s_waitcnt vmcnt(0)")
    e(f"v_cmp_eq_u64 vcc, v[{VFL}:{VFL + 1}], v[{V_TOK}:{V_TOK + 1}]")
    e("s_nop 1")
    e("s_cmp_eq_u64 vcc, -1")
    e("s_cbranch_scc1 L_p2_fok")
    e(f"s_sleep {OPT.get('slp', 4)}")
    e("s_branch L_p2_late")
    a.label("L_p2_fok")
    p2_issueA(a)
    e("s_waitcnt vmcnt(0)")
    a.label("L_p2_go")
    stamp(a, 0)
    a.vm = ["old"]
    e(f"s_and_b32 s{ST}, s{SWAVE}, 1")
    e(f"s_lshl_b32 s{ST}, s{ST}, 12")
    e(f"v_add_u32 v{VAR}, s{ST}, v{VL16}")
    for k in range(1, NBASE):
        e(f"v_add_u32 v{VAR + k}, {65536 * k}, v{VAR}")
    e(f"v_lshlrev_b32 v{t0}, 2, v{vG}")
    e(f"v_lshrrev_b32 v{t1}, 2, v{vi}")
    e(f"v_add_u32 v{t0}, v{t0}, v{t1}")
    e(f"v_and_b32 v{t1}, 7, v{t0}")
    e(f"s_lshr_b32 s{ST}, s{SWAVE}, 1")
    e(f"s_lshl_b32 s{ST}, s{ST}, 2")
    e(f"v_xor_b32 v{t1}, s{ST}, v{t1}")
    e(f"v_lshlrev_b32 v{t0}, 8, v{t0}")
    e(f"v_and_b32 v{t2}, 3, v{vi}")
    e(f"v_lshlrev_b32 v{t2}, 3, v{t2}")
    e(f"v_add_u32 v{t0}, v{t0}, v{t2}")
    e(f"v_add_u32 v{t0}, 16384, v{t0}")
    for nt in range(4):
        e(f"v_xor_b32 v{t3}, {nt}, v{t1}")
        e(f"v_lshlrev_b32 v{t3}, 5, v{t3}")
        e(f"v_add_u32 v{VBR + nt}, v{t0}, v{t3}")
        for k in range(1, NBASE):
            e(f"v_add_u32 v{VBR + 4 * k + nt}, {65536 * k}, v{VBR + nt}")
    e(f"v_and_b32 v{t0}, 1, v{vG}")
    e(f"v_lshlrev_b32 v{t0}, 10, v{t0}")
    e(f"v_lshrrev_b32 v{t1}, 1, v{vG}")
    e(f"v_lshlrev_b32 v{t1}, 8, v{t1}")
    e(f"v_lshlrev_b32 v{VH}, 4, v{vi}")
    e(f"v_add3_u32 v{VH}, v{VH}, v{t0}, v{t1}")
    stamp(a, 1)
    e(f"s_cmp_eq_u32 s{SROLE}, 0")
    e(f"s_cbranch_scc1 L_p2_r0")
    vm_save = list(a.vm)

    import math
    PERIOD = S * 4 // math.gcd(S, 4)

    def body(role):
        R = f"r{role}"
        o0 = OPT.get('o0', 5)
        na0 = n0 - o0
        assert 16 < na0 <= 32 and 5 <= o0 <= 11
        nact = na0 if role == 0 else 56 - na0
        N = nact + (o0 if role == 0 else 16 - o0)
        JO = nact - (S - 1)
        JP = N - OPT['pj']
        if role == 0:
            runs = {16: (5, 1, 7)}
        else:
            nl1 = 32 - na0
            runs = {16 + nl1: (2, 7, 14)}
            if nl1:
                runs[16] = (5 + 7 * (na0 - 16), 1, 7)

        def bperm(op):
            e(f"s_and_b32 s{ST + 9}, s{SWAVE}, 1")
            e(f"s_mul_i32 s{ST + 9}, s{ST + 9}, {-12 * 2048}")
            for j4 in range(4):
                e(f"{op} v{VBD + j4}, s{ST + 9}, v{VBD + j4}")
                if j4 < 3:
                    e(f"s_add_u32 s{ST + 9}, s{ST + 9}, {4 * 2048}")

        def newrun(j):
            if j == nact:
                def sw():
                    e(f"s_lshr_b32 s{ST + 11}, s{SWAVE}, 1")
                    if role:
                        e(f"s_add_u32 s{ST + 11}, s{ST + 11}, {2 * o0}")
                    e(f"s_lshl_b32 s{SOB}, s{ST + 11}, 16")
                    e(f"s_lshl_b32 s{SOA}, s{SMT}, 5")
                    e(f"s_add_u32 s{SOA}, s{SOA}, s{ST + 11}")
                    e(f"s_lshl_b32 s{SOA}, s{SOA}, 13")
                    e(f"s_add_u32 s{SOA}, s{SOA}, {OF_OFF}")
                    e(f"s_mov_b32 s{P_SSA}, 16384")
                    e(f"s_mov_b32 s{P_SSB}, 131072")
                    if role == 1:
                        bperm("v_subrev_u32")
                return [sw]
            if j in runs:
                c0, c1, st_ = runs[j]

                def sw():
                    r = p2_setrun(a, (c0, c1), st_)
                    e(f"s_lshl_b32 s{SOB}, s{r}, 16")
                    e(f"s_mul_i32 s{SOA}, s{SMT}, 144")
                    e(f"s_add_u32 s{SOA}, s{SOA}, s{r}")
                    e(f"s_lshl_b32 s{SOA}, s{SOA}, 13")
                    e(f"s_mov_b32 s{P_SSA}, {st_ * 8192}")
                    e(f"s_mov_b32 s{P_SSB}, {st_ * 65536}")
                    if st_ == 14:
                        bperm("v_add_u32")
                return [sw]
            return []

        def dmaA(j):
            f = newrun(j)
            f.append(lambda: e(f"s_add_u32 m0, s{SM0A}, {(j % S) * SLOT}"))
            for i in range(4):
                f.append(lambda i=i: a.vmem(
                    f"buffer_load_dwordx4 v{VAD}, {WS}, s{SOA} offen offset:{1024 * i} {OPT['k2a']} lds", f"D{j}"))
            f.append(lambda: e(f"s_add_u32 s{SOA}, s{SOA}, s{P_SSA}"))
            return f

        def dmaB(j):
            sr = SW2 if j < nact else SWO
            f = []
            f.append(lambda: e(f"s_add_u32 m0, s{SM0B}, {(j % S) * SLOT}"))
            for i in range(4):
                f.append(lambda i=i: a.vmem(
                    f"buffer_load_dwordx4 v{VBD + i}, s[{sr}:{sr + 3}], s{SOB} offen offset:{1024 * i} lds", f"D{j}"))
            f.append(lambda: e(f"s_add_u32 s{SOB}, s{SOB}, s{P_SSB}"))
            return f

        def reads(j):
            sl = j % S
            k, so = sl // 2, (sl % 2) * SLOT
            f = []
            for q in range(4):
                for b in range(2):
                    f.append(lambda b=b, q=q: e(
                        f"ds_read_b128 {ar(FA(j, b, q))}, v{VAR + k} offset:{so + 8192 * b + 1024 * q}"))
                    for ins in range(2):
                        f.append(lambda b=b, q=q, ins=ins: e(
                            f"ds_read_b64_tr_b16 {ar(FB(j, b, q) + 2 * ins, 2)}, v{VBR + 4 * k + q} offset:{so + 8192 * b + 4096 * ins}"))
            return f

        late = []
        for mp in range(2):
            late.append(f"buffer_store_dwordx4 {vr(240 + 4 * mp)}, v{VH}, {WS}, s{P_SL + 2} offen offset:{2048 * mp} sc1")
        for g_, base in enumerate((192, 224)):
            for mt in range(4):
                late.append(f"buffer_store_dwordx4 {vr(base + 4 * mt)}, v{VL16}, {WS}, s{P_SL + g_} offen offset:{1024 * mt} sc1")
        TR = OPT.get('tr', 3)
        TRS = OPT.get('trs', 0)
        NTR = -(-10 // TR) + TRS
        JFQ = OPT.get('jfq', 2)

        e("s_barrier")
        stamp(a, 2)
        VK = 48
        PD, PO, PEPS, PR = 48, 96, 112, 116

        def poll(lab, vv, reload):
            a.label(f"L_p2{R}_{lab}w")
            e(f"v_cmp_eq_u64 vcc, v[{vv}:{vv + 1}], v[{V_TOK}:{V_TOK + 1}]")
            e("s_nop 1")
            e("s_cmp_eq_u64 vcc, -1")
            e(f"s_cbranch_scc1 L_p2{R}_{lab}ok")
            e("s_sleep 4")
            sv = list(a.vm)
            reload()
            a.vm = sv
            e("s_waitcnt vmcnt(0)")
            e(f"s_branch L_p2{R}_{lab}w")
            a.label(f"L_p2{R}_{lab}ok")

        def fl_load(tag="F"):
            a.vmem(f"buffer_load_dwordx2 v[{VFL}:{VFL + 1}], v{VFA}, {WS}, 0 offen sc1", tag)

        def red_guard(lab):
            e(f"s_cmp_eq_u32 s{P_SEARLY}, 0")
            e(f"s_cbranch_scc1 L_p2{R}_{lab}")

        J1 = OPT.get('j1', 4)
        J2 = OPT.get('j2', 12)

        def pre(j):
            if j == JFQ:
                a.wait(["old"])
            if j == NTR + 2:
                a.wait(["sl"])
            if j == 16 - S + 1:
                a.wait(["FL"])
                poll("l", VFL, fl_load)
            if j == J2 + 2:
                a.wait(["fq"])
                poll("k", VQ, fq_load)
            if j == J2 + 4:
                a.wait(["pq"])
            if j == J2 + 8:
                a.wait(["ost"])
            if j == JO:
                a.wait(["F"])
                poll("o", VFL, fl_load)
            if role == 1 and j == JP:
                a.wait(["F2"])
                poll("p", VFL, fl_load)

        def extra(j):
            if j == JFQ:
                setflag(1)
            if j == J1:
                e(f"s_and_b32 s{ST}, s2, 3")
                e(f"s_cmp_eq_u32 s{ST}, s{SWAVE}")
                e(f"s_cselect_b32 s{P_SEARLY}, 1, 0")
                e(f"s_cmp_lt_u32 s2, 192")
                e(f"s_cselect_b32 s{P_SEARLY}, s{P_SEARLY}, 0")
                e(f"s_mul_i32 s{P_SHD}, s2, 171")
                e(f"s_lshr_b32 s{P_SHD}, s{P_SHD}, 10")
                e(f"s_min_u32 s{P_SHD}, s{P_SHD}, 31")
                e(f"s_lshr_b32 s{ST}, s{P_SHD}, 1")
                e(f"s_lshl_b32 s{ST}, s{ST}, 9")
                e(f"s_add_u32 s{ST}, s{ST}, {FQ_OFF}")
                e(f"v_and_b32 v{VQ + 2}, 31, v{VL}")
                e(f"v_lshlrev_b32 v{VQ + 2}, 3, v{VQ + 2}")
                e(f"v_add_u32 v{VQ + 2}, s{ST}, v{VQ + 2}")
                fq_load()
            if j == NTR + 2:
                setflag(4)
                srd(a, SOUT, S_PTR + 16, S_PTR + 17, 2048 * 1024 * 2)
            if j == 16 - S - 1:
                e(f"s_lshl_b32 s{ST}, s{SMT}, 9")
                e(f"s_add_u32 s{ST}, s{ST}, {FA_OFF}")
                e(f"v_lshlrev_b32 v{VFA}, 3, v{VL}")
                e(f"v_add_u32 v{VFA}, s{ST}, v{VFA}")
                fl_load("FL")
            if j == 16 - S + 2:
                e(f"v_lshlrev_b32 v{t1}, 2, v{vi}")
                e(f"s_lshl_b32 s{ST}, s{SMT}, 9")
                e(f"s_and_b32 s{ST + 1}, s{SWAVE}, 1")
                e(f"s_lshl_b32 s{ST + 1}, s{ST + 1}, 8")
                e(f"s_add_u32 s{ST}, s{ST}, s{ST + 1}")
                e(f"s_add_u32 s{ST}, s{ST}, {G_OFF}")
                for i in range(4):
                    a.vmem(f"buffer_load_dword v{VG + i}, v{t1}, {WS}, s{ST} offen offset:{64 * i}", "g")
            if j == J2:
                e(f"s_and_b32 s{P_SHD}, s2, 31")
                e(f"s_lshr_b32 s{P_SM2}, s2, 5")
                e(f"s_lshr_b32 s{ST}, s{P_SHD}, 1")
                e(f"s_lshl_b32 s{ST}, s{ST}, 4")
                e(f"s_add_u32 s{ST}, s{ST}, s{P_SM2}")
                e(f"s_lshl_b32 s{ST}, s{ST}, 2")
                e(f"s_add_u32 s{ST}, s{ST}, s{SWAVE}")
                e(f"s_lshl_b32 s{ST}, s{ST}, 3")
                e(f"s_add_u32 s{ST}, s{ST}, {FQ_OFF + 256}")
                e(f"s_lshl_b32 s{ST + 1}, s{P_SHD}, 6")
                e(f"s_add_u32 s{ST + 1}, s{ST + 1}, {FK_OFF}")
                e(f"v_lshlrev_b32 v{VQ + 2}, 3, v{VL}")
                e(f"v_add_u32 v{VQ + 2}, s{ST + 1}, v{VQ + 2}")
                e(f"v_mov_b32 v{t0}, s{ST}")
                e(f"v_cmp_gt_u32 s[{ST + 2}:{ST + 3}], 6, v{VL}")
                e("s_nop 1")
                e(f"v_cndmask_b32 v{VQ + 2}, v{t0}, v{VQ + 2}, s[{ST + 2}:{ST + 3}]")
                e(f"s_lshl_b32 s{P_SM2}, s{P_SM2}, 1")
                e(f"s_lshr_b32 s{ST}, s{SWAVE}, 1")
                e(f"s_add_u32 s{P_SM2}, s{P_SM2}, s{ST}")
                fq_load()
            if j == J2 + 2:
                e(f"s_mul_i32 s{ST}, s{P_SHD}, 3072")
                e(f"s_add_u32 s{ST}, s{ST}, {KVF_OFF}")
                e(f"v_lshlrev_b32 v{t0}, 3, v{VL}")
                for i in range(6):
                    a.vmem(f"buffer_load_dwordx2 {ar(144 + 2 * i, 2)}, v{t0}, {WS}, s{ST} offen offset:{512 * i}", "pq")
                e(f"s_mul_i32 s{ST}, s{P_SM2}, 144")
                e(f"s_add_u32 s{ST}, s{ST}, s{P_SHD}")
                e(f"s_add_u32 s{ST}, s{ST}, 112")
                e(f"s_lshl_b32 s{ST}, s{ST}, 13")
                for i in range(4):
                    a.vmem(f"buffer_load_dwordx4 {ar(128 + 4 * i)}, v{VAD}, {WS}, s{ST} offen offset:{1024 * i}", "pq")
                e(f"s_lshl_b32 s{SOP}, s{P_SM2}, 5")
                e(f"s_add_u32 s{SOP}, s{SOP}, s{P_SHD}")
                e(f"s_lshl_b32 s{SOP}, s{SOP}, 13")
                e(f"s_add_u32 s{SOP}, s{SOP}, {OF_OFF}")
                for r in range(4):
                    e(f"v_mov_b32 v{PEPS + r}, {EPS_HEX}")
            if j == J2 + 5:
                for i in range(4):
                    e(f"v_rcp_f32 v{PR + i}, v{PD + 12 * i + 8}")
                e("s_nop 0")
                for i in range(4):
                    d = PD + 12 * i
                    for q in range(8):
                        e(f"v_mul_f32 v{d + q}, v{PR + i}, v{d + q}")
                    o = PO + 4 * i
                    for q in range(4):
                        e(f"v_cvt_pk_bf16_f32 v{o + q}, v{d + 2 * q}, v{d + 2 * q + 1}")
                    a.vmem(f"buffer_store_dwordx4 {vr(o)}, v{VAD}, {WS}, s{SOP} offen offset:{1024 * i} sc1", "ost")
            if j == J2 + 8:
                setflag(2)
            if j == JO - OPT.get('fod', 2):
                assert j > J2 + 8
                e(f"s_lshl_b32 s{ST}, s{SMT}, 9")
                e(f"s_add_u32 s{ST}, s{ST}, {FO_OFF}")
                if role == 0:
                    e(f"v_min_u32 v{VFA}, {4 * o0 - 1}, v{VL}")
                else:
                    e(f"v_max_u32 v{VFA}, {4 * o0}, v{VL}")
                e(f"v_lshlrev_b32 v{VFA}, 3, v{VFA}")
                e(f"v_add_u32 v{VFA}, s{ST}, v{VFA}")
                fl_load("F")
            if role == 1 and j == JP - 1:
                e(f"s_lshl_b32 s{ST}, s{STILE}, 8")
                e(f"s_lshl_b32 s{ST + 1}, s{SWAVE}, 3")
                e(f"s_add_u32 s{ST}, s{ST}, s{ST + 1}")
                e(f"s_add_u32 s{ST}, s{ST}, {FP_OFF}")
                e(f"v_mov_b32 v{VFA}, s{ST}")
                fl_load("F2")
            if role == 1 and j == JP:
                e(f"s_lshl_b32 s{ST}, s{STILE}, 16")
                e(f"s_lshl_b32 s{ST + 1}, s{SWAVE}, 13")
                e(f"s_add_u32 s{ST}, s{ST}, s{ST + 1}")
                e(f"s_add_u32 s{ST}, s{ST}, {PART_OFF}")
                for q in range(8):
                    if q == 4:
                        e(f"s_add_u32 s{ST}, s{ST}, 4096")
                    a.vmem(f"buffer_load_dwordx4 {vr(VY + 4 * q)}, v{VL16}, {WS}, s{ST} offen offset:{1024 * (q & 3)} sc1", "PT")

        def post(j):
            if j == J1 + 1:
                red_guard("nr1")
                n_ = a.vm_count(["fq"], drop=False)
                e(f"s_waitcnt vmcnt({n_})")
                poll("q", VQ, fq_load)
                e(f"s_lshr_b32 s{ST}, s{P_SHD}, 1")
                e(f"s_mul_i32 s{ST}, s{ST}, 84")
                e(f"s_add_u32 s{ST}, s{ST}, s2")
                e(f"s_lshl_b32 s{ST}, s{ST}, 10")
                e(f"s_add_u32 s{ST}, s{ST}, {KVP_OFF}")
                for r8 in range(8):
                    e(f"buffer_load_dwordx4 {vr(VK + 4 * r8)}, v{VL16}, {WS}, s{ST} offen")
                    if r8 < 7:
                        e(f"s_add_u32 s{ST}, s{ST}, 12288")
                a.label(f"L_p2{R}_nr1")
                a.mark("r1")
            if j == J1 + 3:
                red_guard("nr2")
                n_ = a.vm_count(["#r1"], drop=False)
                if n_ is not None:
                    e(f"s_waitcnt vmcnt({n_})")
                for st_ in (1, 2, 4):
                    for r8 in range(0, 8, 2 * st_):
                        for q in range(2):
                            b0 = VK + 4 * r8 + 2 * q
                            e(f"v_pk_add_f32 {vr(b0, 2)}, {vr(b0, 2)}, {vr(b0 + 4 * st_, 2)}")
                e(f"v_cvt_pk_bf16_f32 v{VK}, v{VK}, v{VK + 1}")
                e(f"v_cvt_pk_bf16_f32 v{VK + 1}, v{VK + 2}, v{VK + 3}")
                e(f"s_mul_i32 s{ST}, s{P_SHD}, 6")
                e(f"s_sub_u32 s{ST}, s2, s{ST}")
                e(f"s_cmp_ge_u32 s{ST}, 3")
                e(f"s_cselect_b32 s{ST + 1}, 1, 0")
                e(f"s_mul_i32 s{ST + 2}, s{ST + 1}, 3")
                e(f"s_sub_u32 s{ST}, s{ST}, s{ST + 2}")
                e(f"s_mul_i32 s{ST + 2}, s{P_SHD}, 3")
                e(f"s_add_u32 s{ST}, s{ST}, s{ST + 2}")
                e(f"s_lshl_b32 s{ST}, s{ST}, 10")
                e(f"s_lshl_b32 s{ST + 1}, s{ST + 1}, 9")
                e(f"s_add_u32 s{ST}, s{ST}, s{ST + 1}")
                e(f"s_add_u32 s{ST}, s{ST}, {KVF_OFF}")
                e(f"v_lshlrev_b32 v{t0}, 3, v{VL}")
                e(f"buffer_store_dwordx2 {vr(VK, 2)}, v{t0}, {WS}, s{ST} offen sc1")
                a.label(f"L_p2{R}_nr2")
                a.mark("r2")
            if j == J1 + 5:
                red_guard("nr3")
                n_ = a.vm_count(["#r2"], drop=False)
                if n_ is not None:
                    e(f"s_waitcnt vmcnt({n_})")
                e(f"s_mov_b64 exec, {1 << 5}")
                e(f"buffer_store_dwordx2 v[{V_TOK}:{V_TOK + 1}], v0, {WS}, 0 offen sc1")
                e("s_mov_b64 exec, -1")
                a.label(f"L_p2{R}_nr3")

        def interval(j):
            if DIAG and OPT.get('ts2'):
                if j == 0:
                    e("s_mov_b32 s74, 0")
                e("s_memrealtime s[76:77]")
                e("s_waitcnt lgkmcnt(0)")
                e("s_mov_b32 m0, s74")
                e("s_nop 0")
                e(f"v_writelane_b32 v{VT + 7}, s76, m0")
                e("s_add_u32 s74, s74, 1")
            main = []
            if j >= 1:
                for mt in range(4):
                    for nt in range(4):
                        D = vr(acc2(mt, nt) + (64 if j - 1 >= nact else 0))
                        for b in range(2):
                            C = "0" if (j in (1, nact + 1) and b == 0) else D
                            main.append(f"v_mfma_f32_16x16x32_bf16 {D}, {ar(FB(j - 1, b, nt))}, {ar(FA(j - 1, b, mt))}, {C}")
            pre(j)
            if j == J2 + 4:
                pm = []
                for i in range(4):
                    d = PD + 12 * i
                    pq = ar(128 + 4 * i)
                    pm += [f"v_mfma_f32_16x16x32_bf16 {vr(d + 8)}, {ar(152)}, {pq}, {vr(PEPS)}",
                           f"v_mfma_f32_16x16x32_bf16 {vr(d)}, {ar(144)}, {pq}, 0",
                           f"v_mfma_f32_16x16x32_bf16 {vr(d + 4)}, {ar(148)}, {pq}, 0"]
                main = pm + main
            rd = reads(j) if j < N else []
            dm = (dmaA(j + S - 1) + dmaB(j + S - 1)) if j + S - 1 < N else []
            for x in (late[TR * (j - TRS): TR * (j - TRS) + TR] if j >= TRS else []):
                dm.append(lambda x=x: a.vmem(x, "sl"))
            streams = []
            if nact + 1 <= j <= nact + 4:
                mt = j - (nact + 1)
                it = []
                if mt == 0:
                    a.wait(["g"])
                it.append(lambda mt=mt: e(f"v_sub_f32 v{VOMG + mt}, 1.0, v{VG + mt}"))
                for q in range(16):
                    it.append(lambda mt=mt, q=q: e(f"v_mul_f32 v{acc2(mt, 0) + q}, v{VOMG + mt}, v{acc2(mt, 0) + q}"))
                streams.append((it, 10, 30))
            n = max(len(main), 1)
            ex = capture(a, lambda: extra(j), chunk=1)
            if ex:
                streams.append((ex, 1, min(n * 0.97, 1 + 1.2 * len(ex))))
            schedule(a, main, [(rd, 0, n * 0.85), (dm, 0.5, n * 0.95)] + streams)
            post(j)
            if j < N:
                a.wait([f"D{j + 1}"] if j + 1 < N else [], lgkm=True)
                if j + 1 < N:
                    e("s_barrier")

        iters = []
        for j in range(N + 1):
            n_ = len(a.lines)
            if j == 4:
                stamp(a, 3)
            if j == nact:
                stamp(a, 4)
            interval(j)
            iters.append(a.lines[n_:])
            del a.lines[n_:]
        fold_loops(a, iters, PERIOD, SCNT, f"p2{R}")
        stamp(a, 5)
        if role == 0:
            e(f"s_lshl_b32 s{ST}, s{STILE}, 16")
            e(f"s_lshl_b32 s{ST + 1}, s{SWAVE}, 13")
            e(f"s_add_u32 s{ST}, s{ST}, s{ST + 1}")
            e(f"s_add_u32 s{ST}, s{ST}, {PART_OFF}")
            e("s_nop 7")
        else:
            vo = VT + 4
            e(f"v_lshlrev_b32 v{t2}, 11, v{vi}")
            e(f"v_bfe_u32 v{t3}, v{VL}, 4, 1")
            e(f"v_lshlrev_b32 v{t3}, 5, v{t3}")
            e(f"v_add_u32 v{t2}, v{t2}, v{t3}")
            e(f"v_lshrrev_b32 v{t3}, 5, v{VL}")
            e(f"v_lshlrev_b32 v{t3}, 4, v{t3}")
            e(f"v_add_u32 v{vo}, v{t2}, v{t3}")
            e(f"s_lshl_b32 s{ST}, s{SMT}, 7")
            e(f"s_and_b32 s{ST + 1}, s{SWAVE}, 1")
            e(f"s_lshl_b32 s{ST + 1}, s{ST + 1}, 6")
            e(f"s_add_u32 s{ST}, s{ST}, s{ST + 1}")
            e(f"s_lshl_b32 s{ST}, s{ST}, 11")
            e(f"s_lshl_b32 s{ST + 1}, s{SNT}, 8")
            e(f"s_add_u32 s{ST}, s{ST}, s{ST + 1}")
            e(f"s_lshr_b32 s{ST + 1}, s{SWAVE}, 1")
            e(f"s_lshl_b32 s{ST + 1}, s{ST + 1}, 7")
            e(f"s_add_u32 s{ST}, s{ST}, s{ST + 1}")
            a.wait(["PT"])
        for mt in range(4):
            sel = "op_sel:[1,0,0] op_sel_hi:[1,1,1]" if mt & 1 else "op_sel_hi:[0,1,1]"
            for q in range(8):
                b0 = acc2(mt, 0) + 2 * q
                e(f"v_pk_fma_f32 {vr(b0, 2)}, {vr(VG + (mt & 2), 2)}, {vr(b0 + 64, 2)}, {vr(b0, 2)} {sel}")
            if role == 0:
                for h2 in range(2):
                    q = 2 * mt + h2
                    b0 = AC + 8 * q
                    for r in range(4):
                        e(f"v_cvt_pk_bf16_f32 v{b0 + r}, v{b0 + 2 * r}, v{b0 + 2 * r + 1}")
                    e(f"buffer_store_dwordx4 {vr(b0)}, v{VL16}, {WS}, s{ST} offen offset:{1024 * (q & 3)} sc1")
                    if q == 3:
                        e(f"s_add_u32 s{ST}, s{ST}, 4096")
            else:
                for q in range(8):
                    p0 = VY + 8 * mt + q
                    u = 48 + 2 * q
                    e(f"v_lshlrev_b32 v{u}, 16, v{p0}")
                    e(f"v_and_b32 v{u + 1}, 0xffff0000, v{p0}")
                for q in range(8):
                    b0 = acc2(mt, 0) + 2 * q
                    e(f"v_pk_add_f32 {vr(b0, 2)}, {vr(b0, 2)}, {vr(48 + 2 * q, 2)}")
                for pr in range(2):
                    b0 = acc2(mt, 2 * pr)
                    for q in range(4):
                        e(f"v_cvt_pk_bf16_f32 v{b0 + q}, v{b0 + 2 * q}, v{b0 + 2 * q + 1}")
                e("s_nop 1")
                for pr in range(2):
                    b0 = acc2(mt, 2 * pr)
                    e(f"v_permlane16_swap_b32 v{b0}, v{b0 + 2}")
                    e(f"v_permlane16_swap_b32 v{b0 + 1}, v{b0 + 3}")
                for pr in range(2):
                    b0 = acc2(mt, 2 * pr)
                    e(f"buffer_store_dwordx4 {vr(b0)}, v{vo}, s[{SOUT}:{SOUT + 3}], s{ST} offen offset:{64 * pr}")
                if mt < 3:
                    e(f"s_add_u32 s{ST}, s{ST}, 32768")
        if role == 0:
            e("s_waitcnt vmcnt(0)")
            setflag(3)
        stamp(a, 6)
        if DIAG and OPT.get('ts2'):
            e(f"s_mov_b32 s76, s{S_PTR + 20}")
            e(f"s_and_b32 s77, s{S_PTR + 21}, 0xffff")
            e(f"s_mov_b32 s78, 0x4000000")
            e(f"s_mov_b32 s79, 0x20000")
            e(f"s_lshl_b32 s75, s2, 2")
            e(f"s_add_u32 s75, s75, s{S_WAVE}")
            e(f"s_lshl_b32 s75, s75, 8")
            e(f"s_add_u32 s75, s75, {DIAG_OFF + 0x200000}")
            e(f"v_lshlrev_b32 v{VT}, 2, v{VL}")
            e(f"buffer_store_dword v{VT + 7}, v{VT}, s[76:79], s75 offen")
        if DIAG:
            e("s_waitcnt vmcnt(0)")
        stamp(a, 7)
        stamp_dump(a, 1, 8, SWAVE, S_PTR + 20, S_PTR + 21, VT + 5)
        e("s_endpgm")

    body(1)
    a.label("L_p2_r0")
    a.vm = vm_save
    body(0)


def fix_hazards(lines):
    out = []
    for i, ln in enumerate(lines):
        out.append(ln)
        if " m0," in ln and i + 1 < len(lines) and lines[i + 1].rstrip().endswith("lds"):
            out.append("  s_nop 0")
    return out


def gen_spin():
    a = Asm()
    e = a.e
    spec = OPT['spin']
    A_, B_, M = spec.split(",")
    a.lines.append(".globl spin_kernel\n.p2align 8\n.type spin_kernel,@function\nspin_kernel:")
    e("s_cmp_lg_u32 s2, 0")
    e("s_cbranch_scc1 L_spin_end")
    e("s_load_dwordx2 s[4:5], s[0:1], 80")
    e("v_lshlrev_b32 v1, 7, v0")
    e("s_waitcnt lgkmcnt(0)")
    e("s_mov_b32 s8, s4\ns_and_b32 s9, s5, 0xffff\ns_mov_b32 s10, 0x4000000\ns_mov_b32 s11, 0x20000")

    def red(sp, sdst):
        k, st, op = sp.split(".")
        base = DIAG_OFF + int(k) * 0x100000 + 8 * int(st) + 4
        for i in range(16):
            e(f"s_mov_b32 s12, {base + i * 8192}")
            e(f"buffer_load_dword v{8 + i}, v1, s[8:11], s12 offen")
        e("s_waitcnt vmcnt(0)")
        for i in range(1, 16):
            e(f"v_{op}_u32 v8, v8, v{8 + i}")
        e("s_nop 1")
        e(f"v_readlane_b32 s{sdst}, v8, 0")
        for l in range(1, 64):
            e(f"v_readlane_b32 s13, v8, {l}")
            e("s_nop 0")
            e(f"s_{op}_u32 s{sdst}, s{sdst}, s13")
    red("0.0.min", 20)
    red(A_, 21)
    red(B_, 22)
    e("s_sub_u32 s22, s22, s21")
    e(f"s_mul_i32 s22, s22, {M}")
    e("s_add_u32 s22, s22, 12000")
    e("s_min_u32 s22, s22, 90000")
    a.label("L_spin")
    e("s_memrealtime s[14:15]")
    e("s_waitcnt lgkmcnt(0)")
    e("s_sub_u32 s16, s14, s20")
    e("s_cmp_lt_u32 s16, s22")
    e("s_cbranch_scc1 L_spin")
    a.label("L_spin_end")
    e("s_endpgm")
    return a.lines


def kd(name, nfv, accum):
    return f""".amdhsa_kernel {name}
  .amdhsa_next_free_vgpr {nfv}
  .amdhsa_next_free_sgpr 102
  .amdhsa_accum_offset {accum}
  .amdhsa_group_segment_fixed_size 0
  .amdhsa_kernarg_size 88
  .amdhsa_user_sgpr_count 2
  .amdhsa_user_sgpr_kernarg_segment_ptr 1
  .amdhsa_system_sgpr_workgroup_id_x 1
.end_amdhsa_kernel"""


def main(path):
    hdr = open(f"cdna_kernels/{NAME}.s.ref").read().split("; Override launch")[0]
    out = [hdr.rstrip("\n")]
    kn = NAME + "_kernel"
    if OPT.get('spin'):
        out.append(f"; @launch kernel={kn} grid=(256,1,1) block=(256,1,1) lds={K2_LDS()}")
        out.append("; @launch kernel=spin_kernel grid=(1,1,1) block=(64,1,1) lds=0")
    else:
        out.append(f"; @launch grid=(256,1,1) block=(256,1,1) lds={K2_LDS()}")
    out.append('.amdgcn_target "amdgcn-amd-amdhsa--gfx950"')
    out.append(".text")
    out += [ln.replace("KNAME", kn) for ln in fix_hazards(gen_k1())]
    if OPT.get('spin'):
        out += gen_spin()
    out.append('.section .rodata,"a"')
    if OPT.get('spin'):
        out.append(".p2align 6")
        out.append(kd("spin_kernel", 32, 32))
    out.append(".p2align 6")
    out.append(kd(kn, 256 + 160, 256))
    open(path, "w").write("\n".join(out) + "\n")


if __name__ == "__main__":
    if "--dbgout" in sys.argv:
        DBGOUT = True
        sys.argv.remove("--dbgout")
    if "--diag" in sys.argv:
        DIAG = True
        sys.argv.remove("--diag")
    for arg in list(sys.argv):
        if "=" in arg:
            k_, v_ = arg.split("=")
            OPT[k_] = int(v_) if v_.isdigit() else v_.replace("+", " ")
            sys.argv.remove(arg)
    main(sys.argv[1] if len(sys.argv) > 1 else f"cdna_kernels/{NAME}.s")
```

```python
import sys

NAME = "gated_mix__linear_attn_block__dense_activation_mish__prompt"

AF_OFF = 0
AF_BYTES = 16 * 144 * 8 * 1024
KVP_OFF = AF_BYTES
KVP_BYTES = 16 * 8 * 12 * 1024
KVF_OFF = KVP_OFF + KVP_BYTES
KVF_BYTES = 32 * 3 * 1024
G_OFF = KVF_OFF + KVF_BYTES
PART_OFF = G_OFF + 8192
OF_OFF = PART_OFF + 128 * 65536
FLG_OFF = OF_OFF + 16 * 32 * 8192
FE_OFF = FLG_OFF - 0 + 32768 + 128 * 256
FA_OFF = FLG_OFF
FQ_OFF = FA_OFF + 8192
FO_OFF = FQ_OFF + 8192
FP_OFF = FO_OFF + 8192
FK_OFF = FE_OFF + 8192
WS_USED = FK_OFF + 2048
assert FP_OFF + 128 * 256 <= FE_OFF
V_TOK = 14

DIAG = False
DBGOUT = False
OPT = dict(k1a="", k1b="", k2a="", k2b="", st="sc1", pf=2, xpf=0, n0=34, o0=6, tr=5, cpf=2, map=0, fepos=1, S=4, pbf=1, pj=1, pprio=0, cprio=0, rdend=26)
DIAG_OFF = 0x2000000
EPS_HEX = "0x358637bd"
L2E_HEX = "0x3fb8aa3b"


class Asm:
    def __init__(self):
        self.lines = []
        self.vm = []

    def e(self, s):
        for ln in s.split("\n"):
            self.lines.append("  " + ln.strip())

    def label(self, s):
        self.lines.append(s + ":")

    def vmem(self, s, tag):
        self.e(s)
        self.vm.append(tag)

    def mark(self, tag):
        self.vm.append("#" + tag)

    def vm_count(self, tags, drop=True):
        idx = -1
        for i, t in enumerate(self.vm):
            if t in tags:
                idx = i
        if idx < 0:
            return None
        n = sum(1 for t in self.vm[idx + 1:] if not t.startswith("#"))
        if drop:
            self.vm = self.vm[idx + 1:]
        assert n <= 63, n
        return n

    def wait(self, tags=(), lgkm=False):
        n = self.vm_count(tags) if tags else None
        parts = []
        if n is not None:
            parts.append(f"vmcnt({n})")
        if lgkm:
            parts.append("lgkmcnt(0)")
        if parts:
            self.e("s_waitcnt " + " ".join(parts))


def stamp(a, idx, sbase=80):
    if not DIAG:
        return
    a.e(f"s_memtime s[{sbase - 4}:{sbase - 3}]")
    a.e(f"s_memrealtime s[{sbase - 2}:{sbase - 1}]")
    a.e("s_waitcnt lgkmcnt(0)")
    a.e(f"s_mov_b32 s{sbase + 2 * idx}, s{sbase - 4}")
    a.e(f"s_mov_b32 s{sbase + 2 * idx + 1}, s{sbase - 2}")


def stamp_dump(a, kidx, n, swave, sptr_lo, sptr_hi, vtmp, sbase=80):
    if not DIAG:
        return
    e = a.e
    e(f"s_mov_b32 s{sbase - 4}, s{sptr_lo}")
    e(f"s_and_b32 s{sbase - 3}, s{sptr_hi}, 0xffff")
    e(f"s_mov_b32 s{sbase - 2}, 0x4000000")
    e(f"s_mov_b32 s{sbase - 1}, 0x20000")
    e(f"s_lshl_b32 s75, s2, 2")
    e(f"s_add_u32 s75, s75, s{swave}")
    e(f"s_lshl_b32 s75, s75, 7")
    e(f"s_add_u32 s75, s75, {DIAG_OFF + kidx * 0x100000}")
    e(f"v_mov_b32 v{vtmp}, 0")
    e("s_mov_b64 exec, 1")
    for i in range(2 * n):
        e(f"v_mov_b32 v{vtmp + 1}, s{sbase + i}")
        e(f"buffer_store_dword v{vtmp + 1}, v{vtmp}, s[{sbase - 4}:{sbase - 1}], s75 offen offset:{4 * i}")
        e("s_nop 1")
    e("s_mov_b64 exec, -1")
    if DBGOUT:
        lab = f"L_dbg_{len(a.lines)}"
        e(f"s_cmp_lg_u32 s2, 1")
        e(f"s_cbranch_scc1 {lab}")
        e(f"s_cmp_lg_u32 s{swave}, 0")
        e(f"s_cbranch_scc1 {lab}")
        e(f"s_mov_b32 s{sbase - 4}, s{sptr_lo - 2}")
        e(f"s_and_b32 s{sbase - 3}, s{sptr_hi - 2}, 0xffff")
        e(f"s_mov_b32 s{sbase - 2}, 256")
        e("s_mov_b64 exec, 1")
        for i in range(n):
            e(f"v_mov_b32 v{vtmp + 1}, s{sbase + 2 * i + 1}")
            e(f"buffer_store_dword v{vtmp + 1}, v{vtmp}, s[{sbase - 4}:{sbase - 1}], 0 offen offset:{4 * i + 32 * kidx}")
            e("s_nop 1")
        e("s_mov_b64 exec, -1")
        a.label(lab)


def vr(b, n=4):
    return f"v[{b}:{b + n - 1}]"


def ar(b, n=4):
    return f"a[{b}:{b + n - 1}]"


def interleave(a, mf, fillers, start=0, end=None):
    n = len(mf)
    if end is None:
        end = n
    nf = len(fillers)
    pos = [start + (j * (end - start)) // max(nf, 1) for j in range(nf)]
    j = 0
    for m in range(n):
        a.e(mf[m])
        while j < nf and pos[j] <= m:
            f = fillers[j]
            f()
            j += 1
    while j < nf:
        fillers[j]()
        j += 1


def capture(a, fn, chunk=2):
    n0_ = len(a.lines)
    vm0 = list(a.vm)
    fn()
    lines = a.lines[n0_:]
    tags = a.vm[len(vm0):]
    del a.lines[n0_:]
    a.vm = vm0
    items = []
    cur = []
    depth = 0
    ti = 0
    for ln in lines:
        cur.append(ln)
        if "s_cbranch" in ln or "s_mov_b64 exec, " in ln and "-1" not in ln or "s_cmp" in ln or "s_getpc" in ln or "s_sub_u32" in ln and "KNAME" in ln:
            depth = 1
        if ln.endswith(":") and not ln.startswith(" ") and "L_pc" not in ln or "s_mov_b64 exec, -1" in ln and not any("s_cbranch" in x for x in cur) or "s_cselect" in ln or "s_subb_u32" in ln:
            depth = 0
        if depth == 0 and len(cur) >= chunk:
            items.append(cur)
            cur = []
    if cur:
        items.append(cur)
    out = []
    for it in items:
        guarded = any("s_cbranch" in x for x in it)
        nv = 0 if guarded else sum(1 for x in it if x.strip().startswith(("buffer_", "global_")))
        tg = tags[ti:ti + nv]
        ti += nv

        def emit(it=it, tg=tg):
            a.lines.extend(it)
            a.vm.extend(tg)
        out.append(emit)
    rest = tags[ti:]
    assert all(t.startswith("#") for t in rest), (ti, tags)
    if rest:
        out.append(lambda rest=rest: a.vm.extend(rest))
    return out


def srd(a, d, lo, hi, nbytes, bias=0):
    if bias:
        a.e(f"s_sub_u32 s{d}, s{lo}, {bias}")
        a.e(f"s_subb_u32 s{d + 1}, s{hi}, 0")
        a.e(f"s_and_b32 s{d + 1}, s{d + 1}, 0xffff")
    else:
        a.e(f"s_mov_b32 s{d}, s{lo}")
        a.e(f"s_and_b32 s{d + 1}, s{hi}, 0xffff")
    a.e(f"s_mov_b32 s{d + 2}, {nbytes + bias}")
    a.e(f"s_mov_b32 s{d + 3}, 0x20000")


K1_BSLOT = 13312
K1_AREA = 3328
K1_ABASE = 4 * K1_BSLOT
K1_LDS = K1_ABASE + 4 * 16384
ACC0 = 48


def acc(t, mt):
    return ACC0 + 16 * t + 4 * mt


V_LANE = 1
V_ARD = 2
V_QRD = 4
V_HRD = 8
V_ADMA = 9
V_BDMA = 13
V_L16 = 17
V_T = 18
S_X, S_Q, S_W1, S_WS, S_MISC = 4, 8, 12, 16, 20
S_WAVE, S_RB, S_P = 24, 25, 26
S_OFFA, S_OFFA2, S_OFFQ, S_OFFH = 27, 28, 29, 30
S_M0B, S_M0A = 31, 32
S_CNT = 33
S_QM = 34
S_PTR = 36
S_L2E = 58
S_T = 60
S_AFB = 72
S_GROW = 73
S_PO1, S_PO2 = 74, 3
S_PT, S_PTE = 100, 101
S_CB = 100
S_PF1, S_PF2 = 96, 20


def bset(s, t):
    return 52 * s + 4 * t


ASET = {"X": 104, "Y": 120, "Z": 136}


def k1_body(a, typ):
    T = "A" if typ == 0 else "B"
    nq = 8 if typ == 0 else 4
    nh = 13 - nq
    Ph = 2 * nh
    HB = 256 * nq
    e = a.e
    vi, vG, t0, t1, t2, t3 = V_T, V_T + 1, V_T + 2, V_T + 3, V_T + 4, V_T + 5
    e(f"v_and_b32 v{vi}, 15, v{V_LANE}")
    e(f"v_lshrrev_b32 v{vG}, 4, v{V_LANE}")
    e(f"s_mul_i32 s{S_T + 2}, s{S_P}, 448")
    if typ:
        e(f"s_add_u32 s{S_T + 2}, s{S_T + 2}, 160")

    e(f"s_lshr_b32 s{S_T + 8}, s{S_WAVE}, 1")
    e(f"s_lshl_b32 s{S_T + 8}, s{S_T + 8}, 4")
    e(f"s_and_b32 s{S_T + 9}, s{S_WAVE}, 1")
    e(f"s_lshl_b32 s{S_T + 9}, s{S_T + 9}, 2")
    e(f"s_add_u32 s{S_T + 8}, s{S_T + 8}, s{S_T + 9}")

    def krow(dst, kp, tmp):
        e(f"v_lshrrev_b32 v{tmp}, 2, v{kp}")
        e(f"v_lshlrev_b32 v{tmp}, 3, v{tmp}")
        e(f"v_and_b32 v{dst}, 3, v{kp}")
        e(f"v_add3_u32 v{dst}, v{dst}, v{tmp}, s{S_T + 8}")

    e(f"v_lshrrev_b32 v{t0}, 3, v{V_LANE}")
    krow(t1, t0, t2)
    e(f"v_mul_u32_u24 v{t1}, 6144, v{t1}")
    e(f"v_lshrrev_b32 v{t2}, 1, v{t0}")
    e(f"v_and_b32 v{t2}, 3, v{t2}")
    e(f"v_lshlrev_b32 v{t2}, 1, v{t2}")
    e(f"v_and_b32 v{t3}, 7, v{V_LANE}")
    e(f"v_xor_b32 v{t3}, v{t3}, v{t2}")
    e(f"v_lshlrev_b32 v{t3}, 4, v{t3}")
    e(f"v_add_u32 v{t1}, v{t1}, v{t3}")
    e(f"s_lshl_b32 s{S_T + 9}, s{S_P}, 7")
    e(f"s_add_u32 s{S_T + 9}, s{S_T + 9}, {4096 + (2048 if typ == 0 else 0)}")
    e(f"v_add_u32 v{V_BDMA}, s{S_T + 9}, v{t1}")
    if typ == 0:
        e(f"v_add_u32 v{V_BDMA + 1}, {2048 - 1024}, v{V_BDMA}")
    hins = [(2, 0), (3, 64)] if typ == 0 else [(1, 0), (2, 64), (3, 128)]
    magic, sh = (205, 11) if Ph == 10 else (57, 10)
    for s_ in range(8 * Ph + 64):
        if s_ < 8 * Ph:
            assert (s_ * magic) >> sh == s_ // Ph
    for slot, s0 in hins:
        e(f"v_add_u32 v{t0}, {s0}, v{V_LANE}")
        e(f"v_mul_u32_u24 v{t1}, {magic}, v{t0}")
        e(f"v_lshrrev_b32 v{t1}, {sh}, v{t1}")
        e(f"v_mul_u32_u24 v{t2}, {Ph}, v{t1}")
        e(f"v_sub_u32 v{t0}, v{t0}, v{t2}")
        e(f"v_and_b32 v{t1}, 7, v{t1}")
        krow(t2, t1, t3)
        e(f"v_mul_u32_u24 v{t2}, 7168, v{t2}")
        e(f"v_lshlrev_b32 v{t0}, 4, v{t0}")
        e(f"v_add3_u32 v{t0}, v{t0}, v{t2}, s{S_T + 2}")
        e(f"v_add_u32 v{V_BDMA + slot}, {4096 - 1024 * slot}, v{t0}")
    e(f"s_lshl_b32 s{S_T + 9}, s{S_RB}, 8")
    e(f"s_lshl_b32 s{S_T + 10}, s{S_WAVE}, 6")
    e(f"s_add_u32 s{S_T + 9}, s{S_T + 9}, s{S_T + 10}")
    e(f"s_lshl_b32 s{S_T + 9}, s{S_T + 9}, 11")
    e(f"v_lshrrev_b32 v{t0}, 3, v{V_LANE}")
    e(f"v_lshrrev_b32 v{t1}, 1, v{t0}")
    e(f"v_and_b32 v{t2}, 7, v{V_LANE}")
    e(f"v_xor_b32 v{t2}, v{t2}, v{t1}")
    e(f"v_lshlrev_b32 v{t0}, 11, v{t0}")
    e(f"v_add_u32 v{t0}, s{S_T + 9}, v{t0}")
    for j in range(4):
        if j & 1:
            e(f"v_xor_b32 v{t3}, 4, v{t2}")
            e(f"v_lshlrev_b32 v{t3}, 4, v{t3}")
        else:
            e(f"v_lshlrev_b32 v{t3}, 4, v{t2}")
        e(f"v_add_u32 v{t3}, v{t3}, v{t0}")
        e(f"v_add_u32 v{V_ADMA + j}, {j * (16384 - 1024)}, v{t3}")
    e(f"s_mul_i32 s{S_M0B}, s{S_WAVE}, {K1_AREA}")
    e(f"s_lshl_b32 s{S_M0A}, s{S_WAVE}, 14")
    e(f"s_add_u32 s{S_M0A}, s{S_M0A}, {K1_ABASE}")
    e(f"s_mov_b32 s{S_OFFA}, 0")
    e(f"s_mov_b32 s{S_OFFA2}, 65536")
    e(f"s_mov_b32 s{S_OFFQ}, 0")
    e(f"s_mov_b32 s{S_OFFH}, 0")
    e(f"s_mov_b32 s{S_QM}, 0xffff")
    e(f"s_mov_b32 s{S_QM + 1}, 0")

    def dmaB(tt):
        slot = tt % 4
        tag = f"B{tt}"
        f = []
        srcs = [(S_Q, S_OFFQ), (S_Q, S_OFFQ) if typ == 0 else (S_W1, S_OFFH), (S_W1, S_OFFH)]
        f.append(lambda: e(f"s_add_u32 m0, s{S_M0B}, {slot * K1_BSLOT}"))
        for j in range(3):
            sr, so = srcs[j]
            f.append(lambda j=j, sr=sr, so=so: a.vmem(
                f"buffer_load_dwordx4 v{V_BDMA + j}, s[{sr}:{sr + 3}], s{so} offen offset:{1024 * j} {OPT['k1b']} lds", tag))

        def q():
            e(f"s_mov_b64 exec, s[{S_QM}:{S_QM + 1}]")
            a.vmem(f"buffer_load_dwordx4 v{V_BDMA + 3}, s[{S_W1}:{S_W1 + 3}], s{S_OFFH} offen offset:3072 {OPT['k1b']} lds", tag)
            e("s_mov_b64 exec, -1")
        f.append(q)
        f.append(lambda: e(f"s_add_u32 s{S_OFFQ}, s{S_OFFQ}, {32 * 6144}"))
        f.append(lambda: e(f"s_add_u32 s{S_OFFH}, s{S_OFFH}, {32 * 7168}"))
        return f

    def dmaA(aa):
        slot = aa % 2
        tag = f"A{aa}"
        f = []
        for half in range(2):
            so = S_OFFA if half == 0 else S_OFFA2
            f.append(lambda half=half: e(f"s_add_u32 m0, s{S_M0A}, {slot * 8192 + half * 4096}"))
            for j in range(4):
                f.append(lambda j=j, so=so: a.vmem(
                    f"buffer_load_dwordx4 v{V_ADMA + j}, s[{S_X}:{S_X + 3}], s{so} offen offset:{1024 * j} {OPT['k1a']} lds", tag))
        f.append(lambda: e(f"s_add_u32 s{S_OFFA}, s{S_OFFA}, 128"))
        f.append(lambda: e(f"s_add_u32 s{S_OFFA2}, s{S_OFFA2}, 128"))
        return f

    def run_seq(fl):
        for fn in fl:
            n0 = len(a.lines)
            fn()
            if " m0," in a.lines[-1] and len(a.lines) == n0 + 1:
                e("s_nop 0")

    e("s_waitcnt lgkmcnt(0)")
    srd(a, S_Q, S_PTR + 2, S_PTR + 3, 1024 * 3072 * 2, bias=4096)
    srd(a, S_W1, S_PTR + 8, S_PTR + 9, 1024 * 3584 * 2, bias=4096)
    srd(a, S_X, S_PTR + 0, S_PTR + 1, 2048 * 1024 * 2)
    if not OPT.get('spin'):
        stamp(a, 0)
    if OPT.get('kst'):
        stamp(a, 4)
    run_seq(dmaB(0))
    run_seq(dmaA(0))
    srd(a, S_T + 4, S_PTR + 10, S_PTR + 11, 7168)
    e(f"v_lshlrev_b32 v{t1}, 3, v{vG}")
    for j in range(nh):
        a.vmem(f"buffer_load_dwordx2 {vr(acc(nq + j, 3), 2)}, v{t1}, s[{S_T + 4}:{S_T + 7}], s{S_T + 2} offen offset:{32 * j}", "bias")
    run_seq(dmaB(1))
    if not OPT.get('ramp'):
        run_seq(dmaB(2))
        run_seq(dmaA(1))
        run_seq(dmaB(3))
    if OPT.get('ramp') == 2:
        run_seq(dmaA(1))
    if OPT.get('ramp') == 3:
        run_seq(dmaB(2))
        run_seq(dmaA(1))
    e(f"v_lshrrev_b32 v{t0}, 3, v{vi}")
    e(f"v_lshlrev_b32 v{t0}, 6, v{t0}")
    e(f"v_and_b32 v{t1}, 7, v{vi}")
    e(f"v_lshlrev_b32 v{t1}, 3, v{t1}")
    e(f"v_add_u32 v{t0}, v{t0}, v{t1}")
    e(f"v_lshrrev_b32 v{t1}, 1, v{vi}")
    e(f"v_xor_b32 v{t1}, v{t1}, v{vG}")
    e(f"v_add_u32 v{t2}, v{t0}, v{t1}")
    e(f"v_lshlrev_b32 v{t2}, 4, v{t2}")
    e(f"v_add_u32 v{V_ARD}, s{S_M0A}, v{t2}")
    e(f"v_xor_b32 v{t1}, 4, v{t1}")
    e(f"v_add_u32 v{t2}, v{t0}, v{t1}")
    e(f"v_lshlrev_b32 v{t2}, 4, v{t2}")
    e(f"v_add_u32 v{V_ARD + 1}, s{S_M0A}, v{t2}")
    e(f"v_and_b32 v{t0}, 1, v{vG}")
    e(f"v_lshlrev_b32 v{t0}, 2, v{t0}")
    e(f"v_lshrrev_b32 v{t1}, 2, v{vi}")
    e(f"v_add_u32 v{t0}, v{t0}, v{t1}")
    e(f"v_lshrrev_b32 v{t1}, 1, v{vG}")
    e(f"v_mul_u32_u24 v{t1}, {2 * K1_AREA}, v{t1}")
    e(f"v_and_b32 v{t2}, 3, v{vi}")
    e(f"v_lshlrev_b32 v{t2}, 3, v{t2}")
    e(f"v_add_u32 v{t1}, v{t1}, v{t2}")
    e(f"v_mul_u32_u24 v{t3}, {16 * Ph}, v{t0}")
    e(f"v_add3_u32 v{V_HRD}, v{t1}, v{t3}, {0}")
    e(f"v_add_u32 v{V_HRD}, {HB}, v{V_HRD}")
    e(f"v_lshlrev_b32 v{t3}, 7, v{t0}")
    e(f"v_add_u32 v{t1}, v{t1}, v{t3}")
    e(f"v_lshrrev_b32 v{t2}, 1, v{t0}")
    e(f"v_and_b32 v{t2}, 3, v{t2}")
    for t in range(4):
        e(f"v_xor_b32 v{t3}, {t}, v{t2}")
        e(f"v_lshlrev_b32 v{t3}, 5, v{t3}")
        e(f"v_add_u32 v{V_QRD + t}, v{t1}, v{t3}")
    e(f"v_lshlrev_b32 v{V_L16}, 4, v{V_LANE}")

    gw, gx0, gx1 = V_T, V_T + 8, V_T + 16
    gt = V_T + 24
    nb = {0: 1, 1: 7, 2: 1, 3: 2, 4: 3}[OPT['pf']]
    PL1, PL2 = -(-56 // nb), -(-16 // nb)

    def misc_setup():
        srd(a, S_WS, S_PTR + 20, S_PTR + 21, WS_USED)
        tile_decode(a, S_T + 4, S_T + 5, S_T + 6, S_T + 7, S_T)
        e(f"s_lshl_b32 s{S_T}, s{S_RB}, 1")
        e(f"s_lshr_b32 s{S_T + 1}, s{S_WAVE}, 1")
        e(f"s_add_u32 s{S_T}, s{S_T}, s{S_T + 1}")
        e(f"s_lshl_b32 s{S_T}, s{S_T}, 5")
        e(f"s_lshl_b32 s{S_T + 1}, s{S_P}, 1")
        e(f"s_add_u32 s{S_T}, s{S_T}, s{S_T + 1}")
        if typ:
            e(f"s_add_u32 s{S_T}, s{S_T}, 1")
        e(f"s_lshl_b32 s{S_T}, s{S_T}, 1")
        e(f"s_and_b32 s{S_T + 1}, s{S_WAVE}, 1")
        e(f"s_add_u32 s{S_T}, s{S_T}, s{S_T + 1}")
        e(f"s_lshl_b32 s{S_T}, s{S_T}, 3")
        e(f"s_add_u32 s{S_T}, s{S_T}, {FA_OFF}")
        e(f"v_writelane_b32 v0, s{S_T}, 4")
        e(f"s_lshl_b32 s{S_T}, s{S_RB}, 1")
        e(f"s_lshr_b32 s{S_T + 3}, s{S_WAVE}, 1")
        e(f"s_add_u32 s{S_T}, s{S_T}, s{S_T + 3}")
        e(f"s_lshl_b32 s{S_T}, s{S_T}, 5")
        e(f"s_add_u32 s{S_T}, s{S_T}, s{S_P}")
        e(f"s_lshl_b32 s{S_T}, s{S_T}, 1")
        e(f"s_add_u32 s{S_T}, s{S_T}, s{S_T + 1}")
        e(f"s_lshl_b32 s{S_T}, s{S_T}, 3")
        e(f"s_add_u32 s{S_T}, s{S_T}, {FE_OFF + 256 * typ}")
        e(f"v_writelane_b32 v0, s{S_T}, 0")
        e(f"s_lshl_b32 s{S_T}, s{S_P}, 4")
        e(f"s_add_u32 s{S_T}, s{S_T}, s{S_RB}")
        e(f"s_lshl_b32 s{S_T}, s{S_T}, 2")
        e(f"s_add_u32 s{S_T}, s{S_T}, s{S_WAVE}")
        e(f"s_lshl_b32 s{S_T}, s{S_T}, 3")
        e(f"s_add_u32 s{S_T}, s{S_T}, {FQ_OFF + 256 * typ}")
        e(f"v_writelane_b32 v0, s{S_T}, 1")
        e(f"s_lshr_b32 s{S_T}, s2, 5")
        e(f"s_lshl_b32 s{S_T}, s{S_T}, 1")
        e(f"s_lshr_b32 s{S_T + 1}, s{S_WAVE}, 1")
        e(f"s_add_u32 s{S_T}, s{S_T}, s{S_T + 1}")
        e(f"s_lshl_b32 s{S_T}, s{S_T}, 9")
        e(f"s_and_b32 s{S_T + 1}, s2, 31")
        e(f"s_lshl_b32 s{S_T + 1}, s{S_T + 1}, 4")
        e(f"s_add_u32 s{S_T}, s{S_T}, s{S_T + 1}")
        e(f"s_and_b32 s{S_T + 1}, s{S_WAVE}, 1")
        e(f"s_lshl_b32 s{S_T + 1}, s{S_T + 1}, 3")
        e(f"s_add_u32 s{S_T}, s{S_T}, s{S_T + 1}")
        e(f"s_add_u32 s{S_T}, s{S_T}, {FO_OFF}")
        e(f"s_lshl_b32 s{S_T + 1}, s{S_T + 7}, 8")
        e(f"s_lshl_b32 s{S_T + 3}, s{S_WAVE}, 3")
        e(f"s_add_u32 s{S_T + 1}, s{S_T + 1}, s{S_T + 3}")
        e(f"s_add_u32 s{S_T + 1}, s{S_T + 1}, {FP_OFF}")
        e(f"s_cmp_eq_u32 s{S_T + 6}, 0")
        e(f"s_cselect_b32 s{S_T + 1}, s{S_T + 1}, 0x7ffffff0")
        e(f"v_writelane_b32 v0, s{S_T}, 2")
        e(f"v_writelane_b32 v0, s{S_T + 1}, 3")
        e(f"s_mul_i32 s{S_T}, s2, 171")
        e(f"s_lshr_b32 s{S_T}, s{S_T}, 10")
        e(f"s_lshl_b32 s{S_T}, s{S_T}, 1")
        e(f"s_add_u32 s{S_T}, s{S_T}, s2")
        e(f"s_lshl_b32 s{S_T}, s{S_T}, 3")
        e(f"s_add_u32 s{S_T}, s{S_T}, {FK_OFF}")
        e(f"v_writelane_b32 v0, s{S_T}, 5")

    def misc_setup2():
        if typ == 0:
            e(f"s_or_b32 s{S_T}, s2, s{S_WAVE}")
            e(f"s_cmp_lg_u32 s{S_T}, 0")
            e(f"s_cbranch_scc1 L_notok")
            e(f"s_memrealtime s[{S_T + 8}:{S_T + 9}]")
            srd(a, S_T + 4, S_PTR + 18, S_PTR + 19, 256)
            e("s_waitcnt lgkmcnt(0)")
            e(f"s_or_b32 s{S_T + 9}, s{S_T + 9}, 0x40000000")
            e(f"s_lshl_b32 s{S_T + 9}, s{S_T + 9}, 1")
            e(f"s_and_b32 s{S_T}, s{S_T + 8}, 1")
            e(f"s_or_b32 s{S_T + 9}, s{S_T + 9}, s{S_T}")
            e(f"s_or_b32 s{S_T + 8}, s{S_T + 8}, 1")
            e(f"v_mov_b32 v{V_T + 24}, s{S_T + 8}")
            e(f"v_mov_b32 v{V_T + 25}, s{S_T + 9}")
            e(f"v_mov_b32 v{V_T + 27}, 0")
            e("s_mov_b64 exec, 1")
            e(f"buffer_store_dwordx2 v[{V_T + 24}:{V_T + 25}], v{V_T + 27}, s[{S_T + 4}:{S_T + 7}], 0 offen sc1")
            e("s_mov_b64 exec, -1")
            e("s_nop 1")
            a.label("L_notok")
        if OPT.get('cpf') == 1:
            e(f"s_getpc_b64 s[{S_T + 4}:{S_T + 5}]")
            a.label(f"L_pc_{T}")
            e(f"s_sub_u32 s{S_T + 4}, s{S_T + 4}, L_pc_{T}-KNAME")
            e(f"s_subb_u32 s{S_T + 5}, s{S_T + 5}, 0")
            e(f"s_lshr_b32 s{S_T}, s2, 3")
            e(f"s_and_b32 s{S_T}, s{S_T}, 3")
            e(f"s_lshl_b32 s{S_T}, s{S_T}, 2")
            e(f"s_add_u32 s{S_T}, s{S_T}, s{S_WAVE}")
            e(f"s_lshl_b32 s{S_T}, s{S_T}, 13")
            e(f"v_lshlrev_b32 v{V_T + 29}, 7, v{V_LANE}")
            e(f"v_add_u32 v{V_T + 29}, s{S_T}, v{V_T + 29}")
            e(f"v_min_u32 v{V_T + 29}, L_code_end-KNAME-4, v{V_T + 29}")
            a.vmem(f"global_load_dword v{V_T + 29}, v{V_T + 29}, s[{S_T + 4}:{S_T + 5}]", "pf")
        if OPT.get('xpf') == 1:
            e(f"v_and_b32 v{V_T + 28}, 31, v{V_LANE}")
            e(f"v_lshlrev_b32 v{V_T + 28}, 7, v{V_T + 28}")
            e(f"s_lshl_b32 s{S_T}, s2, 2")
            e(f"s_add_u32 s{S_T}, s{S_T}, s{S_WAVE}")
            e(f"s_lshl_b32 s{S_T}, s{S_T}, 12")
            a.vmem(f"buffer_load_dword v{V_T + 28}, v{V_T + 28}, s[{S_X}:{S_X + 3}], s{S_T} offen", "pf")
        if OPT.get('xpf') == 2:
            e(f"v_lshlrev_b32 v{V_T + 27}, 7, v{V_LANE}")
            e(f"s_lshr_b32 s{S_T}, s2, 5")
            e(f"s_lshl_b32 s{S_T}, s{S_T}, 2")
            e(f"s_add_u32 s{S_T}, s{S_T}, s{S_WAVE}")
            e(f"s_lshl_b32 s{S_T}, s{S_T}, 14")
            e(f"s_lshl_b32 s{S_T + 1}, s{S_RB}, 19")
            e(f"s_add_u32 s{S_T}, s{S_T}, s{S_T + 1}")
            a.vmem(f"buffer_load_dword v{V_T + 28}, v{V_T + 27}, s[{S_X}:{S_X + 3}], s{S_T} offen", "pf")
            e(f"s_add_u32 s{S_T}, s{S_T}, 8192")
            a.vmem(f"buffer_load_dword v{V_T + 28}, v{V_T + 27}, s[{S_X}:{S_X + 3}], s{S_T} offen", "pf")

        e(f"v_lshlrev_b32 v{gt}, 5, v{V_LANE}")
        e(f"s_lshl_b32 s{S_GROW}, s{S_RB}, 8")
        e(f"s_lshl_b32 s{S_T + 1}, s{S_WAVE}, 6")
        e(f"s_add_u32 s{S_GROW}, s{S_GROW}, s{S_T + 1}")
        e(f"s_lshl_b32 s{S_T + 1}, s{S_P}, 2")
        e(f"s_add_u32 s{S_GROW}, s{S_GROW}, s{S_T + 1}")
        if typ:
            e(f"s_add_u32 s{S_GROW}, s{S_GROW}, 2")
        e(f"s_lshl_b32 s{S_T + 1}, s{S_GROW}, 11")
        srd(a, S_MISC, S_PTR + 14, S_PTR + 15, 2048)
        a.vmem(f"buffer_load_dwordx4 {vr(gw)}, v{gt}, s[{S_MISC}:{S_MISC + 3}], 0 offen", "g")
        a.vmem(f"buffer_load_dwordx4 {vr(gw + 4)}, v{gt}, s[{S_MISC}:{S_MISC + 3}], 0 offen offset:16", "g")
        a.vmem(f"buffer_load_dwordx4 {vr(gx0)}, v{gt}, s[{S_X}:{S_X + 3}], s{S_T + 1} offen", "g")
        a.vmem(f"buffer_load_dwordx4 {vr(gx0 + 4)}, v{gt}, s[{S_X}:{S_X + 3}], s{S_T + 1} offen offset:16", "g")
        a.vmem(f"buffer_load_dwordx4 {vr(gx1)}, v{gt}, s[{S_X}:{S_X + 3}], s{S_T + 1} offen offset:2048", "g")
        a.vmem(f"buffer_load_dwordx4 {vr(gx1 + 4)}, v{gt}, s[{S_X}:{S_X + 3}], s{S_T + 1} offen offset:2064", "g")

        if OPT['pf']:
            srd(a, S_PF1, S_PTR + 12, S_PTR + 13, 3584 * 1024 * 2)
            srd(a, S_PF2, S_PTR + 4, S_PTR + 5, 1024 * 1024 * 2)
            e(f"v_min_u32 v{V_T + 26}, {PL1 - 1}, v{V_LANE}")
            e(f"v_lshlrev_b32 v{V_T + 26}, 7, v{V_T + 26}")
            e(f"v_min_u32 v{V_T + 27}, {PL2 - 1}, v{V_LANE}")
            e(f"v_lshlrev_b32 v{V_T + 27}, 7, v{V_T + 27}")
            e(f"s_lshl_b32 s{S_T}, s2, 2")
            e(f"s_add_u32 s{S_T}, s{S_T}, s{S_WAVE}")
            e(f"s_mul_i32 s{S_PO1}, s{S_T}, 7168")
            e(f"s_lshl_b32 s{S_PO2}, s{S_T}, 11")


    if OPT.get('pt'):
        e(f"s_lshl_b32 s{S_T}, s{S_RB}, 1")
        e(f"s_lshr_b32 s{S_T + 1}, s{S_WAVE}, 1")
        e(f"s_add_u32 s{S_T}, s{S_T}, s{S_T + 1}")
        e(f"s_mul_i32 s{S_AFB}, s{S_T}, {144 * 8192}")
        e(f"s_and_b32 s{S_T + 1}, s{S_WAVE}, 1")
        e(f"s_lshl_b32 s{S_T + 1}, s{S_T + 1}, 12")
        e(f"s_add_u32 s{S_AFB}, s{S_AFB}, s{S_T + 1}")
        e(f"s_mul_i32 s{S_PT}, s{S_P}, {7 * 8192}")
        e(f"s_add_u32 s{S_PT}, s{S_PT}, s{S_AFB}")
        if typ:
            e(f"s_add_u32 s{S_PT}, s{S_PT}, {2 * 8192}")
        e(f"s_add_u32 s{S_PTE}, s{S_PT}, {(4 if typ else 2) * 8192}")
        e(f"v_and_b32 v{V_T + 25}, 31, v{V_LANE}")
        e(f"v_lshlrev_b32 v{V_T + 25}, 7, v{V_T + 25}")
        if typ:
            e(f"v_lshrrev_b32 v{V_T + 29}, 5, v{V_LANE}")
            e(f"v_lshlrev_b32 v{V_T + 29}, 13, v{V_T + 29}")
            e(f"v_add_u32 v{V_T + 29}, v{V_T + 29}, v{V_T + 25}")
            e(f"s_mul_i32 s{S_T}, s{S_P}, {2 * 8192}")
            e(f"s_add_u32 s{S_T}, s{S_T}, {112 * 8192}")
            e(f"s_add_u32 s{S_T}, s{S_T}, s{S_AFB}")
            a.vmem(f"buffer_load_dword v{V_T + 28}, v{V_T + 29}, s[{S_WS}:{S_WS + 3}], s{S_T} offen", "pf")

    def pt_items():
        return [lambda: a.vmem(f"buffer_load_dword v{V_T + 28}, v{V_T + 25}, s[{S_WS}:{S_WS + 3}], s{S_PT} offen", "pf"),
                lambda: e(f"s_add_u32 s{S_PT}, s{S_PT}, 8192"),
                lambda: e(f"s_min_u32 s{S_PT}, s{S_PT}, s{S_PTE}")]

    def pf_items(cond=None):
        if cond is None:
            return [lambda: a.vmem(f"buffer_load_dword v{V_T + 28}, v{V_T + 26}, s[{S_PF1}:{S_PF1 + 3}], s{S_PO1} offen", "pf"),
                    lambda: a.vmem(f"buffer_load_dword v{V_T + 28}, v{V_T + 27}, s[{S_PF2}:{S_PF2 + 3}], s{S_PO2} offen", "pf"),
                    lambda: e(f"s_add_u32 s{S_PO1}, s{S_PO1}, {128 * PL1}"),
                    lambda: e(f"s_add_u32 s{S_PO2}, s{S_PO2}, {128 * PL2}")]

        def blk():
            e(f"s_lshl_b32 s{S_T}, 1, s{S_CNT}")
            e(f"s_and_b32 s{S_T}, s{S_T}, {cond}")
            e(f"s_cbranch_scc0 L_k1{T}_nopf")
            e(f"buffer_load_dword v{V_T + 28}, v{V_T + 26}, s[{S_PF1}:{S_PF1 + 3}], s{S_PO1} offen")
            e(f"buffer_load_dword v{V_T + 28}, v{V_T + 27}, s[{S_PF2}:{S_PF2 + 3}], s{S_PO2} offen")
            e(f"s_add_u32 s{S_PO1}, s{S_PO1}, {128 * PL1}")
            e(f"s_add_u32 s{S_PO2}, s{S_PO2}, {128 * PL2}")
            a.label(f"L_k1{T}_nopf")
        return [blk]

    def g_items():
        d0, d1 = V_T + 24, V_T + 25
        L = []
        L.append(f"v_dot2_f32_bf16 v{d0}, v{gx0}, v{gw}, 0")
        L.append(f"v_dot2_f32_bf16 v{d1}, v{gx1}, v{gw}, 0")
        for j in range(1, 8):
            L.append(f"v_dot2_f32_bf16 v{d0}, v{gx0 + j}, v{gw + j}, v{d0}")
            L.append(f"v_dot2_f32_bf16 v{d1}, v{gx1 + j}, v{gw + j}, v{d1}")
        L.append("s_nop 3")
        for sh_ in (1, 2, 4, 8):
            L.append(f"s_nop 0\nv_add_f32_dpp v{d0}, v{d0}, v{d0} row_shr:{sh_} row_mask:0xf bank_mask:0xf bound_ctrl:0")
            L.append(f"s_nop 0\nv_add_f32_dpp v{d1}, v{d1}, v{d1} row_shr:{sh_} row_mask:0xf bank_mask:0xf bound_ctrl:0")
        L.append(f"s_nop 0\nv_add_f32_dpp v{d0}, v{d0}, v{d0} row_bcast:15 row_mask:0xa bank_mask:0xf")
        L.append(f"s_nop 0\nv_add_f32_dpp v{d1}, v{d1}, v{d1} row_bcast:15 row_mask:0xa bank_mask:0xf")
        L.append(f"s_nop 0\nv_add_f32_dpp v{d0}, v{d0}, v{d0} row_bcast:31 row_mask:0xc bank_mask:0xf")
        L.append(f"s_nop 0\nv_add_f32_dpp v{d1}, v{d1}, v{d1} row_bcast:31 row_mask:0xc bank_mask:0xf")
        L.append(f"v_mul_f32 v{d0}, 0xbfb8aa3b, v{d0}")
        L.append(f"v_mul_f32 v{d1}, 0xbfb8aa3b, v{d1}")
        L.append(f"v_exp_f32 v{d0}, v{d0}")
        L.append(f"v_exp_f32 v{d1}, v{d1}\ns_nop 0")
        L.append(f"v_add_f32 v{d0}, 1.0, v{d0}")
        L.append(f"v_add_f32 v{d1}, 1.0, v{d1}")
        L.append(f"v_rcp_f32 v{d0}, v{d0}")
        L.append(f"v_rcp_f32 v{d1}, v{d1}")
        L.append(f"v_mov_b32 v{gw}, 0")
        L.append(f"s_lshl_b32 s{S_T + 1}, s{S_GROW}, 2\ns_add_u32 s{S_T + 1}, s{S_T + 1}, {G_OFF}")
        L.append(f"s_lshl_b32 s{S_T + 3}, s2, 8\ns_add_u32 s{S_T + 3}, s{S_T + 3}, {FLG_OFF}")
        L.append(f"s_mov_b32 s{S_T + 8}, 0\ns_mov_b32 s{S_T + 9}, 0x80000000")
        F = [(lambda x=x: e(x)) for x in L]

        def st():
            e(f"s_mov_b64 exec, s[{S_T + 8}:{S_T + 9}]")
            a.vmem(f"buffer_store_dwordx2 v[{d0}:{d1}], v{gw}, s[{S_WS}:{S_WS + 3}], s{S_T + 1} offen sc1", "sq")
            e("s_mov_b64 exec, -1")
        F.append(st)
        return F

    if OPT.get('m2', 9) == 9:
        misc_setup2()
    a.wait(["bias"])
    for j in range(nh):
        src = acc(nq + j, 3)
        d = acc(nq + j, 0)
        e(f"v_lshlrev_b32 v{d}, 16, v{src}")
        e(f"v_and_b32 v{d + 1}, 0xffff0000, v{src}")
        e(f"v_lshlrev_b32 v{d + 2}, 16, v{src + 1}")
        e(f"v_and_b32 v{d + 3}, 0xffff0000, v{src + 1}")
    for t in range(4):
        for r in range(4):
            e(f"v_mov_b32 v{acc(t, 0) + r}, {EPS_HEX}")

    def rdB(tt):
        slot = tt % 4
        s = tt % 2
        f = []
        for t in range(13):
            for ins in range(2):
                if t < nq:
                    addr = V_QRD + (t & 3)
                    off = slot * K1_BSLOT + ins * K1_AREA + 1024 * (t >> 2)
                else:
                    addr = V_HRD
                    off = slot * K1_BSLOT + ins * K1_AREA + 32 * (t - nq)
                d = bset(s, t) + 2 * ins
                f.append(lambda d=d, addr=addr, off=off: e(f"ds_read_b64_tr_b16 {ar(d, 2)}, v{addr} offset:{off}"))
        return f

    def aset_of(tt):
        if tt % 2 == 0:
            return ASET["X"]
        return ASET["Y"] if tt % 4 == 1 else ASET["Z"]

    def rdA(aa):
        slot = aa % 2
        f = []
        for hh in range(2):
            base = aset_of(2 * aa + hh)
            for mt in range(4):
                f.append(lambda hh=hh, mt=mt, base=base: e(
                    f"ds_read_b128 {ar(base + 4 * mt)}, v{V_ARD + hh} offset:{slot * 8192 + mt * 2048}"))
        return f

    stamp(a, 1)
    a.wait(["B0", "A0"])
    e("s_barrier")
    stamp(a, 2)
    for fn in rdA(0) + rdB(0):
        fn()
    if OPT.get('ramp') == 1:
        run_seq(dmaA(1))
    if OPT.get('ramp') in (1, 2):
        run_seq(dmaB(2))
    a.wait(["B1"], lgkm=True)
    e("s_barrier")

    misc_items = capture(a, misc_setup)
    misc_items2 = capture(a, misc_setup2) if OPT.get('m2', 9) != 9 else []

    NSTEP = 32

    def step(tt):
        if DIAG and OPT.get('ts'):
            e("s_memrealtime s[76:77]")
            e("s_waitcnt lgkmcnt(0)")
            e("s_mov_b32 m0, s78")
            e("s_nop 0")
            e(f"v_writelane_b32 v{V_T + 29}, s76, m0")
            e("s_add_u32 s78, s78, 1")
        s = tt % 2
        ab = aset_of(tt)
        mf = []
        for t in range(13):
            order = [1, 2, 3, 0] if tt == 0 else [0, 1, 2, 3]
            for mt in order:
                D = vr(acc(t, mt))
                if tt == 0:
                    C = "0" if (typ == 0 and 4 <= t < 8) else vr(acc(t, 0))
                else:
                    C = D
                W = ar(bset(s, t))
                X = ar(ab + 4 * mt)
                if typ == 0 and t < 8:
                    mf.append(f"v_mfma_f32_16x16x32_bf16 {D}, {X}, {W}, {C}")
                else:
                    mf.append(f"v_mfma_f32_16x16x32_bf16 {D}, {W}, {X}, {C}")
        if OPT.get('fakechain') and tt > 0:
            import re
            m2 = []
            for i in range(0, 52, 2):
                x0, x1 = mf[i], mf[i + 1]
                pick = x0 if tt % 2 == 0 else x1
                D = re.match(r"v_mfma\S+ (v\[\d+:\d+\])", pick).group(1)
                for x in (x0, x1):
                    D0 = re.match(r"v_mfma\S+ (v\[\d+:\d+\])", x).group(1)
                    m2.append(x.replace(D0, D))
            mf = m2
        rd = []
        if tt + 1 < NSTEP:
            rd = rdB(tt + 1)
            if tt % 2 == 1:
                rd = rdA((tt + 1) // 2) + rd
        dm = []
        if tt == 0 and OPT.get('ramp'):
            dm += dmaB(3)
        if OPT.get('afirst', 1) and tt % 2 == 0 and tt // 2 + 2 < NSTEP // 2:
            dm += dmaA(tt // 2 + 2)
        if tt + 4 < NSTEP:
            dm += dmaB(tt + 4)
        if not OPT.get('afirst', 1) and tt % 2 == 0 and tt // 2 + 2 < NSTEP // 2:
            dm += dmaA(tt // 2 + 2)
        if OPT['pf'] == 1 and tt % 4 == 1 and tt < 28:
            dm += pf_items()
        if OPT.get('cpf') == 3 and tt == 28:
            dm.append(lambda: a.vmem(f"global_load_dword v{V_T + 28}, v{V_T + 29}, s[{S_CB}:{S_CB + 1}]", "pf"))
        if OPT['pf'] in (2, 3, 4) and tt == 28:
            dm += pf_items()
        if OPT['pf'] in (3, 4) and tt % 4 == 1 and 4 <= tt < 28:
            dm += pf_items({3: 1 << 4, 4: (1 << 5) | (1 << 3)}[OPT['pf']])
        if OPT.get('pt') and tt % 4 == 3 and tt < 28:
            dm += pt_items()
        if tt == OPT.get('m2', 9):
            dm += misc_items2
        if tt == 3:
            dm += misc_items
        fl = []
        i1 = i2 = 0
        n1, n2 = len(rd), len(dm)
        while i1 < n1 or i2 < n2:
            if i2 < n2 and (i1 >= n1 or i2 * n1 <= i1 * n2):
                fl.append(dm[i2]); i2 += 1
            else:
                fl.append(rd[i1]); i1 += 1
        if tt == NSTEP - 1:
            assert "g" not in a.vm
            fl = g_items()
        interleave(a, mf, fl, 0, 48)
        if tt + 1 < NSTEP:
            tags = []
            if tt + 2 < NSTEP:
                tags.append(f"B{tt + 2}")
            if tt % 2 == 0:
                tags.append(f"A{tt // 2 + 1}")
            a.wait(tags, lgkm=True)
            if tt + 2 < NSTEP:
                e("s_barrier")

    iters = []
    for it in range(8):
        n0 = len(a.lines)
        for tt in range(4 * it, 4 * it + 4):
            step(tt)
        iters.append(a.lines[n0:])
        del a.lines[n0:]
    for it in range(2, 7):
        assert iters[it] == iters[1], f"iteration {it} differs"
    stamp(a, 3)
    if DIAG and OPT.get('ts'):
        e("s_mov_b32 s78, 0")
    a.lines += iters[0]
    if not OPT.get('ts') and not OPT.get('kst'):
        stamp(a, 4)
    e(f"s_mov_b32 s{S_CNT}, 6")
    a.label(f"L_k1{T}_loop")
    a.lines += iters[1]
    e(f"s_sub_u32 s{S_CNT}, s{S_CNT}, 1")
    e(f"s_cmp_lg_u32 s{S_CNT}, 0")
    e(f"s_cbranch_scc1 L_k1{T}_loop")
    a.lines += iters[7]
    assert all(not t.startswith(("A", "B")) for t in a.vm), a.vm

    stamp(a, 5)

    def fin():
        stamp(a, 6)
        stamp(a, 7)
        k = a.vm_count(["#eA"], drop=False)
        if DIAG:
            k += 16
        stamp_dump(a, 0, 8, S_WAVE, S_PTR + 20, S_PTR + 21, V_T)
        e(f"s_cmp_eq_u32 s{P_SEARLY}, 0")
        e("s_cbranch_scc1 L_p2_late")
        e(f"s_waitcnt vmcnt({k})")
        e("s_branch L_p2_go")

    def fe_load():
        a.vmem(f"buffer_load_dwordx2 v[{P_VFL}:{P_VFL + 1}], v{P_VFA}, s[{S_WS}:{S_WS + 3}], 0 offen sc1", "fe")

    def fe_check():
        a.wait(["fe"])
        e(f"v_cmp_eq_u64 vcc, v[{P_VFL}:{P_VFL + 1}], v[{V_TOK}:{V_TOK + 1}]")
        e(f"s_mov_b32 s{P_SEARLY}, 0")
        e("s_nop 0")
        e("s_cmp_eq_u64 vcc, -1")
        e(f"s_cbranch_scc0 L_k1{T}_noearly")
        p2_issueA(a)
        e(f"s_mov_b32 s{P_SEARLY}, 1")
        a.label(f"L_k1{T}_noearly")
        a.mark("eA")

    def setflag(lane):
        a.label(f"L_k1{T}_tw")
        e(f"v_readfirstlane_b32 s{S_T}, v{V_TOK + 1}")
        e(f"v_readfirstlane_b32 s{S_T + 1}, v{V_TOK}")
        e("s_nop 3")
        e(f"s_min_u32 s{S_T}, s{S_T}, s{S_T + 1}")
        e(f"s_cmp_lg_u32 s{S_T}, 0")
        e(f"s_cbranch_scc1 L_k1{T}_tok")
        e("s_sleep 4")
        e(f"buffer_load_dwordx2 v[{V_TOK}:{V_TOK + 1}], v12, s[{S_T + 4}:{S_T + 7}], 0 offen sc1")
        e("s_waitcnt vmcnt(0)")
        e(f"s_branch L_k1{T}_tw")
        a.label(f"L_k1{T}_tok")
        e(f"s_mov_b64 exec, {1 << lane}")
        a.vmem(f"buffer_store_dwordx2 v[{V_TOK}:{V_TOK + 1}], v0, s[{S_WS}:{S_WS + 3}], 0 offen sc1", "fl")
        e("s_mov_b64 exec, -1")
    e("s_barrier")
    e(f"s_mov_b32 s{S_L2E}, {L2E_HEX}")
    e(f"s_mov_b32 s{S_L2E + 1}, {L2E_HEX}")
    e(f"s_lshl_b32 s{S_T}, s{S_RB}, 1")
    e(f"s_lshr_b32 s{S_T + 1}, s{S_WAVE}, 1")
    e(f"s_add_u32 s{S_T}, s{S_T}, s{S_T + 1}")
    e(f"s_mul_i32 s{S_AFB}, s{S_T}, {144 * 8192}")
    e(f"s_and_b32 s{S_T + 1}, s{S_WAVE}, 1")
    e(f"s_lshl_b32 s{S_T + 1}, s{S_T + 1}, 12")
    e(f"s_add_u32 s{S_AFB}, s{S_AFB}, s{S_T + 1}")
    e("s_nop 7")
    TT, UU = V_T, V_T + 8

    def phi_group(ra, rb_):
        prs = [ra, ra + 2, rb_, rb_ + 2]
        for j, p in enumerate(prs):
            e(f"v_pk_mul_f32 {vr(TT + 2 * j, 2)}, {vr(p, 2)}, s[{S_L2E}:{S_L2E + 1}]")
        for j in range(8):
            e(f"v_exp_f32_e64 v{TT + j}, v{TT + j} clamp")
        for p in prs:
            e(f"v_max_f32 v{p}, {EPS_HEX}, v{p}")
            e(f"v_max_f32 v{p + 1}, {EPS_HEX}, v{p + 1}")
        for j, p in enumerate(prs):
            e(f"v_pk_add_f32 {vr(p, 2)}, {vr(p, 2)}, {vr(TT + 2 * j, 2)}")
        for j, p in enumerate(prs):
            e(f"v_cvt_pk_bf16_f32 v{ra + j}, v{p}, v{p + 1}")

    def cvt_group(ra, rb_):
        prs = [ra, ra + 2, rb_, rb_ + 2]
        for j, p in enumerate(prs):
            e(f"v_cvt_pk_bf16_f32 v{ra + j}, v{p}, v{p + 1}")

    def mish_group(ra, rb_, split=False, dst=None):
        prs = [ra, ra + 2, rb_, rb_ + 2]
        for j, p in enumerate(prs):
            e(f"v_pk_mul_f32 {vr(TT + 2 * j, 2)}, {vr(p, 2)}, s[{S_L2E}:{S_L2E + 1}]")
        for j in range(8):
            e(f"v_exp_f32 v{TT + j}, v{TT + j}")
        for j in range(4):
            e(f"v_pk_fma_f32 {vr(UU + 2 * j, 2)}, {vr(TT + 2 * j, 2)}, 0.5, 1.0 op_sel_hi:[1,0,0]")
        for j in range(4):
            e(f"v_pk_fma_f32 {vr(UU + 2 * j, 2)}, {vr(TT + 2 * j, 2)}, {vr(UU + 2 * j, 2)}, 1.0 op_sel_hi:[1,1,0]")
        for j in range(8):
            e(f"v_rcp_f32 v{UU + j}, v{UU + j}")
        for j, p in enumerate(prs):
            e(f"v_pk_fma_f32 {vr(p, 2)}, {vr(UU + 2 * j, 2)}, {vr(p, 2)}, {vr(p, 2)} neg_lo:[1,0,0] neg_hi:[1,0,0]")
        if split:
            e(f"v_cvt_pk_bf16_f32 v{ra}, v{ra}, v{ra + 1}")
            e(f"v_cvt_pk_bf16_f32 v{ra + 1}, v{ra + 2}, v{ra + 3}")
            e(f"v_cvt_pk_bf16_f32 v{rb_}, v{rb_}, v{rb_ + 1}")
            e(f"v_cvt_pk_bf16_f32 v{rb_ + 1}, v{rb_ + 2}, v{rb_ + 3}")
        else:
            dd = ra if dst is None else dst
            for j, p in enumerate(prs):
                e(f"v_cvt_pk_bf16_f32 v{dd + j}, v{p}, v{p + 1}")

    WS = f"s[{S_WS}:{S_WS + 3}]"

    def set_kb(sreg, mul, add):
        e(f"s_mul_i32 s{sreg}, s{S_P}, {mul * 8192}")
        e(f"s_add_u32 s{sreg}, s{sreg}, {add * 8192}")
        e(f"s_add_u32 s{sreg}, s{sreg}, s{S_AFB}")

    def h_late(tA, kbl, sreg, mid=None):
        set_kb(sreg, 7, kbl)
        for mt in range(4):
            mish_group(acc(tA, mt), acc(tA + 1, mt))
            if mt == 1 and mid:
                mid()

    def h_half_late(tA, half):
        set_kb(P_SL + 2, 7, 2)
        if half:
            e(f"s_add_u32 s{P_SL + 2}, s{P_SL + 2}, 512")
        for mp in range(2):
            mish_group(acc(tA, 2 * mp), acc(tA, 2 * mp + 1), dst=240 + 4 * mp)
        e("s_nop 1")
        for mp in range(2):
            e(f"v_permlane16_swap_b32 v{240 + 4 * mp}, v{242 + 4 * mp}")
            e(f"v_permlane16_swap_b32 v{241 + 4 * mp}, v{243 + 4 * mp}")

    def h_full(tA, kbl, tag='st'):
        set_kb(S_T + 2, 7, kbl)
        for mt in range(4):
            mish_group(acc(tA, mt), acc(tA + 1, mt))
            a.vmem(f"buffer_store_dwordx4 {vr(acc(tA, mt))}, v{V_L16}, {WS}, s{S_T + 2} offen offset:{1024 * mt} {OPT['st']}", tag)

    def h_half(tA, kbl, half):
        set_kb(S_T + 2, 7, kbl)
        for mp in range(2):
            mish_group(acc(tA, 2 * mp), acc(tA, 2 * mp + 1), split=True)
            for mt in (2 * mp, 2 * mp + 1):
                a.vmem(f"buffer_store_dwordx2 {vr(acc(tA, mt), 2)}, v{V_L16}, {WS}, s{S_T + 2} offen offset:{1024 * mt + 8 * half} {OPT['st']}", "st")

    if typ == 1:
        h_full(5, 3, "se")
        h_full(7, 4, "se")
        p2_early(a)
        for hd in range(2):
            set_kb(S_T + 2, 2, 112 + hd)
            for mt in range(4):
                phi_group(acc(2 * hd, mt), acc(2 * hd + 1, mt))
                a.vmem(f"buffer_store_dwordx4 {vr(acc(2 * hd, mt))}, v{V_L16}, {WS}, s{S_T + 2} offen offset:{1024 * mt} {OPT['st']}", "sq")
                if 4 * hd + mt == OPT.get('fepos', 4):
                    a.wait(["se", "zc"])
                    setflag(0)
        h_late(9, 5, P_SL, mid=fe_load)
        h_late(11, 6, P_SL + 1, mid=fe_check)
        h_half_late(4, 1)
        fin()
        return

    h_full(8, 0, "se")
    h_full(10, 1, "se")
    p2_early(a)
    ONES = V_T + 16
    for r in range(4):
        e(f"v_mov_b32 v{ONES + r}, 0x3f803f80")
    for t in range(4):
        for pr in range(2):
            phi_group(acc(t, 2 * pr), acc(t, 2 * pr + 1))
            if 2 * t + pr == OPT.get('fepos', 4):
                a.wait(["se", "zc"])
                setflag(0)
    for t in range(4, 8):
        for pr in range(2):
            cvt_group(acc(t, 2 * pr), acc(t, 2 * pr + 1))
    e("s_nop 1")
    free = [acc(t, m) for t in range(8) for m in (1, 3)]

    def Dt(tau):
        return free[tau]
    for pr in range(2):
        for hd in range(2):
            for dt in range(2):
                for et in range(3):
                    tau = hd * 6 + dt * 3 + et
                    Aop = vr(acc(2 * hd + dt, 2 * pr))
                    Bop = vr(acc(4 + 2 * hd + et, 2 * pr)) if et < 2 else vr(ONES)
                    C = "0" if pr == 0 else vr(Dt(tau))
                    e(f"v_mfma_f32_16x16x32_bf16 {vr(Dt(tau))}, {Aop}, {Bop}, {C}")
    vw, vrd = V_T + 20, V_T + 21
    e(f"s_mul_i32 s{S_T}, s{S_WAVE}, 12288")
    e(f"s_add_u32 s{S_T}, s{S_T}, 98304")
    e(f"v_add_u32 v{vw}, s{S_T}, v{V_L16}")
    e(f"s_mul_i32 s{S_T}, s{S_WAVE}, 3072")
    e(f"s_add_u32 s{S_T}, s{S_T}, 98304")
    e(f"v_add_u32 v{vrd}, s{S_T}, v{V_L16}")
    fe_load()
    e("s_nop 7")
    for tau in range(12):
        e(f"ds_write_b128 v{vw}, {vr(Dt(tau))} offset:{1024 * tau}")
    e(f"s_lshl_b32 s{S_T}, s{S_P}, 3")
    e(f"s_add_u32 s{S_T}, s{S_T}, s{S_RB}")
    e(f"s_mul_i32 s{S_T}, s{S_T}, 12288")
    e(f"s_mul_i32 s{S_T + 1}, s{S_WAVE}, 3072")
    e(f"s_add_u32 s{S_T}, s{S_T}, s{S_T + 1}")
    e(f"s_add_u32 s{S_T + 10}, s{S_T}, {KVP_OFF}")
    h_half_late(12, 0)
    e(f"s_mov_b32 s{P_SL}, 0x7ff00000")
    e(f"s_mov_b32 s{P_SL + 1}, 0x7ff00000")
    e("s_waitcnt lgkmcnt(0)")
    e("s_barrier")
    R = [acc(t, m) for t in range(8) for m in (0, 2)]
    for w2 in range(4):
        for j in range(3):
            e(f"ds_read_b128 {vr(R[3 * w2 + j])}, v{vrd} offset:{12288 * w2 + 1024 * j}")
    fe_check()
    e("s_waitcnt lgkmcnt(0)")
    for j in range(3):
        for h2 in range(2):
            b0 = R[j] + 2 * h2
            e(f"v_pk_add_f32 {vr(b0, 2)}, {vr(b0, 2)}, {vr(R[3 + j] + 2 * h2, 2)}")
            e(f"v_pk_add_f32 {vr(R[6 + j] + 2 * h2, 2)}, {vr(R[6 + j] + 2 * h2, 2)}, {vr(R[9 + j] + 2 * h2, 2)}")
        for h2 in range(2):
            b0 = R[j] + 2 * h2
            e(f"v_pk_add_f32 {vr(b0, 2)}, {vr(b0, 2)}, {vr(R[6 + j] + 2 * h2, 2)}")
        a.vmem(f"buffer_store_dwordx4 {vr(R[j])}, v{V_L16}, {WS}, s{S_T + 10} offen offset:{1024 * j} sc1", "sq")
    fin()


def gen_k1():
    a = Asm()
    e = a.e
    a.lines.append(".globl KNAME\n.p2align 8\n.type KNAME,@function\nKNAME:")
    if OPT.get('spin'):
        stamp(a, 0)
    e("s_cmp_ge_u32 s2, 256")
    e("s_cbranch_scc1 L_k1_exit")
    e(f"s_load_dwordx16 s[{S_PTR}:{S_PTR + 15}], s[0:1], 0")
    if OPT.get('cpf') >= 2:
        e(f"s_getpc_b64 s[{S_CB}:{S_CB + 1}]")
        a.label("L_pc_0")
        e(f"s_sub_u32 s{S_CB}, s{S_CB}, L_pc_0-KNAME")
        e(f"s_subb_u32 s{S_CB + 1}, s{S_CB + 1}, 0")
        e(f"s_lshl_b32 s{S_T}, s2, 12")
        e(f"s_and_b32 s{S_T}, s{S_T}, 0x18000")
        e(f"v_lshlrev_b32 v{V_T + 29}, 7, v0")
        e(f"v_add_u32 v{V_T + 29}, s{S_T}, v{V_T + 29}")
        e(f"v_min_u32 v{V_T + 29}, L_code_end-KNAME-4, v{V_T + 29}")
        e(f"global_load_dword v{V_T + 28}, v{V_T + 29}, s[{S_CB}:{S_CB + 1}]")
    e(f"s_load_dwordx4 s[{S_PTR + 16}:{S_PTR + 19}], s[0:1], 64")
    e(f"s_load_dwordx2 s[{S_PTR + 20}:{S_PTR + 21}], s[0:1], 80")
    e(f"v_and_b32 v{V_LANE}, 63, v0")
    e(f"v_lshrrev_b32 v{V_T}, 6, v0")
    e(f"s_and_b32 s{S_T}, s2, 7")
    e(f"v_readfirstlane_b32 s{S_WAVE}, v{V_T}")
    e(f"s_lshr_b32 s{S_T + 1}, s2, 3")
    if OPT.get('map1', 0) == 0:
        e(f"s_and_b32 s{S_RB}, s{S_T}, 1")
        e(f"s_lshl_b32 s{S_RB}, s{S_RB}, 2")
        e(f"s_and_b32 s{S_T + 2}, s{S_T + 1}, 3")
        e(f"s_add_u32 s{S_RB}, s{S_RB}, s{S_T + 2}")
        e(f"s_lshr_b32 s{S_T}, s{S_T}, 1")
        e(f"s_lshl_b32 s{S_T}, s{S_T}, 3")
        e(f"s_lshr_b32 s{S_T + 1}, s{S_T + 1}, 2")
        e(f"s_add_u32 s{S_T}, s{S_T}, s{S_T + 1}")
    elif OPT['map1'] == 1:
        e(f"s_and_b32 s{S_RB}, s{S_T + 1}, 7")
        e(f"s_lshl_b32 s{S_T}, s{S_T}, 2")
        e(f"s_lshr_b32 s{S_T + 1}, s{S_T + 1}, 3")
        e(f"s_add_u32 s{S_T}, s{S_T}, s{S_T + 1}")
    else:
        e(f"s_and_b32 s{S_RB}, s{S_T}, 3")
        e(f"s_lshl_b32 s{S_RB}, s{S_RB}, 1")
        e(f"s_and_b32 s{S_T + 2}, s{S_T + 1}, 1")
        e(f"s_add_u32 s{S_RB}, s{S_RB}, s{S_T + 2}")
        e(f"s_lshr_b32 s{S_T}, s{S_T}, 2")
        e(f"s_lshl_b32 s{S_T}, s{S_T}, 4")
        e(f"s_lshr_b32 s{S_T + 1}, s{S_T + 1}, 1")
        e(f"s_add_u32 s{S_T}, s{S_T}, s{S_T + 1}")
    e(f"s_lshr_b32 s{S_P}, s{S_T}, 1")
    e(f"s_and_b32 s{S_T + 3}, s{S_T}, 1")
    e(f"s_cmp_lg_u32 s{S_T + 3}, 0")
    e("s_cbranch_scc1 L_k1_typeB")
    k1_body(a, 0)
    a.label("L_k1_typeB")
    a.vm = []
    k1_body(a, 1)
    a.vm = []
    phase2(a)
    a.label("L_k1_exit")
    e("s_endpgm")
    a.label("L_code_end")
    return a.lines


def K2_LDS():
    return OPT['S'] * 32768 + 24576


def fold_loops(a, iters, period, scnt, name):
    n = len(iters)
    i = 0
    lab = 0
    while i < n:
        reps = 1
        while i + (reps + 1) * period <= n and all(
                iters[i + k] == iters[i + reps * period + k] for k in range(period)):
            reps += 1
        if reps >= 2:
            a.e(f"s_mov_b32 s{scnt}, {reps}")
            a.label(f"L_{name}_{lab}")
            for k in range(period):
                a.lines += iters[i + k]
            a.e(f"s_sub_u32 s{scnt}, s{scnt}, 1")
            a.e(f"s_cmp_lg_u32 s{scnt}, 0")
            a.e(f"s_cbranch_scc1 L_{name}_{lab}")
            lab += 1
            i += reps * period
        else:
            a.lines += iters[i]
            i += 1


def schedule(a, mf, streams):
    n = len(mf)
    placed = []
    for si, (items, start, end) in enumerate(streams):
        m = len(items)
        prev = 0
        for j, it in enumerate(items):
            fn, early = it if isinstance(it, tuple) else (it, 0)
            pos = start + (j * (end - start)) / max(m, 1)
            pos = max(pos, early, prev)
            prev = pos
            placed.append((pos, si, j, fn))
    placed.sort(key=lambda x: (x[0], x[1], x[2]))
    k = 0
    if n == 0:
        for p in placed:
            p[3]()
        return
    for i in range(n):
        a.e(mf[i])
        while k < len(placed) and placed[k][0] < i + 1:
            placed[k][3]()
            k += 1
    while k < len(placed):
        placed[k][3]()
        k += 1


P_SW2, P_SWO, P_SWS, P_SOUT = 96, 20, 16, 4
P_SMT, P_SNT, P_SROLE, P_STILE = 8, 9, 10, 11
P_SOA, P_SOB, P_SOP, P_SM0A, P_SM0B = 12, 13, 14, 15, 27
P_SHD, P_SM2, P_SEARLY = 28, 29, 30
P_VBD = 2
P_SLOT = 32768


def tile_decode(a, smt, snt, srole, stile, st):
    e = a.e
    e(f"s_and_b32 s{st}, s2, 7")
    e(f"s_lshr_b32 s{st + 1}, s2, 3")
    e(f"s_and_b32 s{srole}, s{st}, 1")
    if OPT.get('rsw'):
        e(f"s_xor_b32 s{srole}, s{srole}, 1")
    e(f"s_lshr_b32 s{st}, s{st}, 1")
    if OPT['map'] == 0:
        e(f"s_and_b32 s{smt}, s{st}, 1")
        e(f"s_lshl_b32 s{smt}, s{smt}, 3")
        e(f"s_and_b32 s{stile}, s{st + 1}, 7")
        e(f"s_add_u32 s{smt}, s{smt}, s{stile}")
        e(f"s_lshr_b32 s{snt}, s{st}, 1")
        e(f"s_lshl_b32 s{snt}, s{snt}, 2")
        e(f"s_lshr_b32 s{st + 1}, s{st + 1}, 3")
        e(f"s_add_u32 s{snt}, s{snt}, s{st + 1}")
    else:
        e(f"s_lshl_b32 s{smt}, s{st}, 2")
        e(f"s_and_b32 s{stile}, s{st + 1}, 3")
        e(f"s_add_u32 s{smt}, s{smt}, s{stile}")
        e(f"s_lshr_b32 s{snt}, s{st + 1}, 2")
    e(f"s_lshl_b32 s{stile}, s{smt}, 3")
    e(f"s_add_u32 s{stile}, s{stile}, s{snt}")


P_VAD, P_VFA, P_VFL = 8, 9, 10
P_SSA, P_SSB = 31, 32
P_SL = 4


def p2_setrun(a, first_expr, stride):
    e = a.e
    c0, c1 = first_expr
    e(f"s_lshr_b32 s{S_T + 11}, s{S_WAVE}, 1")
    e(f"s_mul_i32 s{S_T + 11}, s{S_T + 11}, {c1}")
    e(f"s_add_u32 s{S_T + 11}, s{S_T + 11}, {c0}")
    return S_T + 11


def p2_early(a):
    e = a.e
    S = OPT['S']
    ST = S_T
    tile_decode(a, P_SMT, P_SNT, P_SROLE, P_STILE, ST)
    vi, vG, t0, t1, t2 = 6, 7, 8, 9, 10
    e(f"v_and_b32 v{vi}, 15, v{V_LANE}")
    e(f"v_lshrrev_b32 v{vG}, 4, v{V_LANE}")
    e(f"s_lshl_b32 s{P_SM0A}, s{S_WAVE}, 12")
    e(f"s_add_u32 s{P_SM0B}, s{P_SM0A}, 16384")
    e(f"s_lshl_b32 s{ST}, s{P_SNT}, 8")
    e(f"s_and_b32 s{ST + 3}, s{S_WAVE}, 1")
    e(f"s_lshl_b32 s{ST + 1}, s{ST + 3}, 15")
    e(f"s_add_u32 s{ST}, s{ST}, s{ST + 1}")
    e(f"v_lshlrev_b32 v{t0}, 11, v{vG}")
    e(f"v_add_u32 v{t0}, s{ST}, v{t0}")
    e(f"v_lshlrev_b32 v{t1}, 1, v{vG}")
    e(f"v_xor_b32 v{t1}, v{t1}, v{vi}")
    for j in range(4):
        if j & 1:
            e(f"v_xor_b32 v{t2}, 8, v{t1}")
            e(f"v_lshlrev_b32 v{t2}, 4, v{t2}")
        else:
            e(f"v_lshlrev_b32 v{t2}, 4, v{t1}")
        e(f"v_add_u32 v{t2}, v{t2}, v{t0}")
        e(f"v_add_u32 v{P_VBD + j}, {j * (8192 - 1024)}, v{t2}")
    e(f"s_mul_i32 s{ST}, s{P_SROLE}, 3")
    e(f"s_lshr_b32 s{ST + 1}, s{S_WAVE}, 1")
    e(f"s_add_u32 s{ST}, s{ST}, s{ST + 1}")
    e(f"s_lshl_b32 s{P_SOB}, s{ST}, 16")
    e(f"s_mul_i32 s{P_SOA}, s{P_SMT}, 144")
    e(f"s_add_u32 s{P_SOA}, s{P_SOA}, s{ST}")
    e(f"s_lshl_b32 s{P_SOA}, s{P_SOA}, 13")
    e(f"s_mov_b32 s{P_SSA}, {7 * 8192}")
    e(f"s_mov_b32 s{P_SSB}, {7 * 65536}")
    srd(a, ST + 4, S_PTR + 18, S_PTR + 19, 256)
    e(f"v_mov_b32 v12, 0")
    a.vmem(f"buffer_load_dwordx2 v[{V_TOK}:{V_TOK + 1}], v12, s[{ST + 4}:{ST + 7}], 0 offen sc1", "zc")
    for j in range(S - 1):
        e(f"s_add_u32 m0, s{P_SM0B}, {j * P_SLOT}")
        e("s_nop 0")
        for i in range(4):
            a.vmem(f"buffer_load_dwordx4 v{P_VBD + i}, s[{P_SW2}:{P_SW2 + 3}], s{P_SOB} offen offset:{1024 * i} lds", "eB")
        e(f"s_add_u32 s{P_SOB}, s{P_SOB}, s{P_SSB}")
    e(f"s_lshl_b32 s{ST + 3}, s{ST + 3}, 12")
    e(f"v_add_u32 v{P_VAD}, s{ST + 3}, v{V_L16}")
    e(f"s_lshl_b32 s{ST}, s{P_SMT}, 1")
    e(f"s_add_u32 s{ST}, s{ST}, s{P_SROLE}")
    e(f"s_lshl_b32 s{ST}, s{ST}, 8")
    e(f"s_add_u32 s{ST}, s{ST}, {FE_OFF}")
    e(f"v_and_b32 v{P_VFA}, 31, v{V_LANE}")
    e(f"v_lshlrev_b32 v{P_VFA}, 3, v{P_VFA}")
    e(f"v_add_u32 v{P_VFA}, s{ST}, v{P_VFA}")


def p2_issueA(a):
    e = a.e
    for j in range(OPT['S'] - 1):
        e(f"s_add_u32 m0, s{P_SM0A}, {j * P_SLOT}")
        e("s_nop 0")
        for i in range(4):
            e(f"buffer_load_dwordx4 v{P_VAD}, s[{P_SWS}:{P_SWS + 3}], s{P_SOA} offen offset:{1024 * i} {OPT['k2a']} lds")
        e(f"s_add_u32 s{P_SOA}, s{P_SOA}, s{P_SSA}")


def phase2(a):
    e = a.e
    S = OPT['S']
    n0 = OPT['n0']
    SLOT = P_SLOT
    SCR = S * SLOT
    SWAVE = S_WAVE
    ST = S_T
    SCNT = S_CNT
    SMT, SNT, SROLE, STILE = P_SMT, P_SNT, P_SROLE, P_STILE
    SOA, SOB, SOP, SM0A, SM0B = P_SOA, P_SOB, P_SOP, P_SM0A, P_SM0B
    SW2, SWO, SOUT = P_SW2, P_SWO, P_SOUT
    WS = f"s[{P_SWS}:{P_SWS + 3}]"
    NBASE = (S + 1) // 2
    VL, VL16, VBD = V_LANE, V_L16, P_VBD
    vi, vG = 6, 7
    VZ = 11
    VAD = 8
    VFL = 10
    VFA = 9
    VAR = 12
    VBR = 18
    VT = 30
    VG = 38
    VOMG = 42
    VEPS = 46
    VEPS = 48
    CG = 52
    CR = 60
    CKV = 68
    CW = 80
    VX = 192
    VY = 84
    AC = 128
    t0, t1, t2, t3 = VT, VT + 1, VT + 2, VT + 3

    def acc2(mt, nt):
        return AC + 16 * mt + 4 * nt

    def FA(j, b, mt):
        return 64 * (j % 2) + 32 * b + 4 * mt

    def FB(j, b, nt):
        return 64 * (j % 2) + 32 * b + 16 + 4 * nt

    def setflag(*lanes):
        e(f"s_mov_b64 exec, {sum(1 << l for l in lanes)}")
        a.vmem(f"buffer_store_dwordx2 v[{V_TOK}:{V_TOK + 1}], v0, {WS}, 0 offen sc1", "fl")
        e("s_mov_b64 exec, -1")

    VQ = 120
    VH = 16

    def fq_load():
        a.vmem(f"buffer_load_dwordx2 v[{VQ}:{VQ + 1}], v{VQ + 2}, {WS}, 0 offen sc1", "fq")

    a.label("L_p2_late")
    e(f"buffer_load_dwordx2 v[{VFL}:{VFL + 1}], v{VFA}, {WS}, 0 offen sc1")
    e("s_waitcnt vmcnt(0)")
    e(f"v_cmp_eq_u64 vcc, v[{VFL}:{VFL + 1}], v[{V_TOK}:{V_TOK + 1}]")
    e("s_nop 1")
    e("s_cmp_eq_u64 vcc, -1")
    e("s_cbranch_scc1 L_p2_fok")
    e(f"s_sleep {OPT.get('slp', 4)}")
    e("s_branch L_p2_late")
    a.label("L_p2_fok")
    p2_issueA(a)
    e("s_waitcnt vmcnt(0)")
    a.label("L_p2_go")
    stamp(a, 0)
    a.vm = ["old"]
    e(f"s_and_b32 s{ST}, s{SWAVE}, 1")
    e(f"s_lshl_b32 s{ST}, s{ST}, 12")
    e(f"v_add_u32 v{VAR}, s{ST}, v{VL16}")
    for k in range(1, NBASE):
        e(f"v_add_u32 v{VAR + k}, {65536 * k}, v{VAR}")
    e(f"v_lshlrev_b32 v{t0}, 2, v{vG}")
    e(f"v_lshrrev_b32 v{t1}, 2, v{vi}")
    e(f"v_add_u32 v{t0}, v{t0}, v{t1}")
    e(f"v_and_b32 v{t1}, 7, v{t0}")
    e(f"s_lshr_b32 s{ST}, s{SWAVE}, 1")
    e(f"s_lshl_b32 s{ST}, s{ST}, 2")
    e(f"v_xor_b32 v{t1}, s{ST}, v{t1}")
    e(f"v_lshlrev_b32 v{t0}, 8, v{t0}")
    e(f"v_and_b32 v{t2}, 3, v{vi}")
    e(f"v_lshlrev_b32 v{t2}, 3, v{t2}")
    e(f"v_add_u32 v{t0}, v{t0}, v{t2}")
    e(f"v_add_u32 v{t0}, 16384, v{t0}")
    for nt in range(4):
        e(f"v_xor_b32 v{t3}, {nt}, v{t1}")
        e(f"v_lshlrev_b32 v{t3}, 5, v{t3}")
        e(f"v_add_u32 v{VBR + nt}, v{t0}, v{t3}")
        for k in range(1, NBASE):
            e(f"v_add_u32 v{VBR + 4 * k + nt}, {65536 * k}, v{VBR + nt}")
    e(f"v_and_b32 v{t0}, 1, v{vG}")
    e(f"v_lshlrev_b32 v{t0}, 10, v{t0}")
    e(f"v_lshrrev_b32 v{t1}, 1, v{vG}")
    e(f"v_lshlrev_b32 v{t1}, 8, v{t1}")
    e(f"v_lshlrev_b32 v{VH}, 4, v{vi}")
    e(f"v_add3_u32 v{VH}, v{VH}, v{t0}, v{t1}")
    stamp(a, 1)
    e(f"s_cmp_eq_u32 s{SROLE}, 0")
    e(f"s_cbranch_scc1 L_p2_r0")
    vm_save = list(a.vm)

    import math
    PERIOD = S * 4 // math.gcd(S, 4)

    def body(role):
        R = f"r{role}"
        o0 = OPT.get('o0', 5)
        na0 = n0 - o0
        assert 16 < na0 <= 32 and 5 <= o0 <= 11
        nact = na0 if role == 0 else 56 - na0
        N = nact + (o0 if role == 0 else 16 - o0)
        JO = nact - (S - 1)
        JP = N - OPT['pj']
        if role == 0:
            runs = {16: (5, 1, 7)}
        else:
            nl1 = 32 - na0
            runs = {16 + nl1: (2, 7, 14)}
            if nl1:
                runs[16] = (5 + 7 * (na0 - 16), 1, 7)

        def bperm(op):
            e(f"s_and_b32 s{ST + 9}, s{SWAVE}, 1")
            e(f"s_mul_i32 s{ST + 9}, s{ST + 9}, {-12 * 2048}")
            for j4 in range(4):
                e(f"{op} v{VBD + j4}, s{ST + 9}, v{VBD + j4}")
                if j4 < 3:
                    e(f"s_add_u32 s{ST + 9}, s{ST + 9}, {4 * 2048}")

        def newrun(j):
            if j == nact:
                def sw():
                    e(f"s_lshr_b32 s{ST + 11}, s{SWAVE}, 1")
                    if role:
                        e(f"s_add_u32 s{ST + 11}, s{ST + 11}, {2 * o0}")
                    e(f"s_lshl_b32 s{SOB}, s{ST + 11}, 16")
                    e(f"s_lshl_b32 s{SOA}, s{SMT}, 5")
                    e(f"s_add_u32 s{SOA}, s{SOA}, s{ST + 11}")
                    e(f"s_lshl_b32 s{SOA}, s{SOA}, 13")
                    e(f"s_add_u32 s{SOA}, s{SOA}, {OF_OFF}")
                    e(f"s_mov_b32 s{P_SSA}, 16384")
                    e(f"s_mov_b32 s{P_SSB}, 131072")
                    if role == 1:
                        bperm("v_subrev_u32")
                return [sw]
            if j in runs:
                c0, c1, st_ = runs[j]

                def sw():
                    r = p2_setrun(a, (c0, c1), st_)
                    e(f"s_lshl_b32 s{SOB}, s{r}, 16")
                    e(f"s_mul_i32 s{SOA}, s{SMT}, 144")
                    e(f"s_add_u32 s{SOA}, s{SOA}, s{r}")
                    e(f"s_lshl_b32 s{SOA}, s{SOA}, 13")
                    e(f"s_mov_b32 s{P_SSA}, {st_ * 8192}")
                    e(f"s_mov_b32 s{P_SSB}, {st_ * 65536}")
                    if st_ == 14:
                        bperm("v_add_u32")
                return [sw]
            return []

        def dmaA(j):
            f = newrun(j)
            f.append(lambda: e(f"s_add_u32 m0, s{SM0A}, {(j % S) * SLOT}"))
            for i in range(4):
                f.append(lambda i=i: a.vmem(
                    f"buffer_load_dwordx4 v{VAD}, {WS}, s{SOA} offen offset:{1024 * i} {OPT['k2a']} lds", f"D{j}"))
            f.append(lambda: e(f"s_add_u32 s{SOA}, s{SOA}, s{P_SSA}"))
            return f

        def dmaB(j):
            sr = SW2 if j < nact else SWO
            f = []
            f.append(lambda: e(f"s_add_u32 m0, s{SM0B}, {(j % S) * SLOT}"))
            for i in range(4):
                f.append(lambda i=i: a.vmem(
                    f"buffer_load_dwordx4 v{VBD + i}, s[{sr}:{sr + 3}], s{SOB} offen offset:{1024 * i} lds", f"D{j}"))
            f.append(lambda: e(f"s_add_u32 s{SOB}, s{SOB}, s{P_SSB}"))
            return f

        def reads(j):
            sl = j % S
            k, so = sl // 2, (sl % 2) * SLOT
            f = []
            for q in range(4):
                for b in range(2):
                    f.append(lambda b=b, q=q: e(
                        f"ds_read_b128 {ar(FA(j, b, q))}, v{VAR + k} offset:{so + 8192 * b + 1024 * q}"))
                    for ins in range(2):
                        f.append(lambda b=b, q=q, ins=ins: e(
                            f"ds_read_b64_tr_b16 {ar(FB(j, b, q) + 2 * ins, 2)}, v{VBR + 4 * k + q} offset:{so + 8192 * b + 4096 * ins}"))
            return f

        late = []
        for mp in range(2):
            late.append(f"buffer_store_dwordx4 {vr(240 + 4 * mp)}, v{VH}, {WS}, s{P_SL + 2} offen offset:{2048 * mp} sc1")
        for g_, base in enumerate((192, 224)):
            for mt in range(4):
                late.append(f"buffer_store_dwordx4 {vr(base + 4 * mt)}, v{VL16}, {WS}, s{P_SL + g_} offen offset:{1024 * mt} sc1")
        TR = OPT.get('tr', 3)
        TRS = OPT.get('trs', 0)
        NTR = -(-10 // TR) + TRS
        JFQ = OPT.get('jfq', 2)

        e("s_barrier")
        stamp(a, 2)
        VK = 48
        PD, PO, PEPS, PR = 48, 96, 112, 116

        def poll(lab, vv, reload):
            a.label(f"L_p2{R}_{lab}w")
            e(f"v_cmp_eq_u64 vcc, v[{vv}:{vv + 1}], v[{V_TOK}:{V_TOK + 1}]")
            e("s_nop 1")
            e("s_cmp_eq_u64 vcc, -1")
            e(f"s_cbranch_scc1 L_p2{R}_{lab}ok")
            e("s_sleep 4")
            sv = list(a.vm)
            reload()
            a.vm = sv
            e("s_waitcnt vmcnt(0)")
            e(f"s_branch L_p2{R}_{lab}w")
            a.label(f"L_p2{R}_{lab}ok")

        def fl_load(tag="F"):
            a.vmem(f"buffer_load_dwordx2 v[{VFL}:{VFL + 1}], v{VFA}, {WS}, 0 offen sc1", tag)

        def red_guard(lab):
            e(f"s_cmp_eq_u32 s{P_SEARLY}, 0")
            e(f"s_cbranch_scc1 L_p2{R}_{lab}")

        J1 = OPT.get('j1', 4)
        J2 = OPT.get('j2', 12)

        def pre(j):
            if j == JFQ:
                a.wait(["old"])
            if j == NTR + 2:
                a.wait(["sl"])
            if j == 16 - S + 1:
                a.wait(["FL"])
                poll("l", VFL, fl_load)
            if j == J2 + 2:
                a.wait(["fq"])
                poll("k", VQ, fq_load)
            if j == J2 + 4:
                a.wait(["pq"])
            if j == J2 + 8:
                a.wait(["ost"])
            if j == JO:
                a.wait(["F"])
                poll("o", VFL, fl_load)
            if role == 1 and j == JP:
                a.wait(["F2"])
                poll("p", VFL, fl_load)

        def extra(j):
            if j == JFQ:
                setflag(1)
            if j == J1:
                e(f"s_and_b32 s{ST}, s2, 3")
                e(f"s_cmp_eq_u32 s{ST}, s{SWAVE}")
                e(f"s_cselect_b32 s{P_SEARLY}, 1, 0")
                e(f"s_cmp_lt_u32 s2, 192")
                e(f"s_cselect_b32 s{P_SEARLY}, s{P_SEARLY}, 0")
                e(f"s_mul_i32 s{P_SHD}, s2, 171")
                e(f"s_lshr_b32 s{P_SHD}, s{P_SHD}, 10")
                e(f"s_min_u32 s{P_SHD}, s{P_SHD}, 31")
                e(f"s_lshr_b32 s{ST}, s{P_SHD}, 1")
                e(f"s_lshl_b32 s{ST}, s{ST}, 9")
                e(f"s_add_u32 s{ST}, s{ST}, {FQ_OFF}")
                e(f"v_and_b32 v{VQ + 2}, 31, v{VL}")
                e(f"v_lshlrev_b32 v{VQ + 2}, 3, v{VQ + 2}")
                e(f"v_add_u32 v{VQ + 2}, s{ST}, v{VQ + 2}")
                fq_load()
            if j == NTR + 2:
                setflag(4)
                srd(a, SOUT, S_PTR + 16, S_PTR + 17, 2048 * 1024 * 2)
            if j == 16 - S - 1:
                e(f"s_lshl_b32 s{ST}, s{SMT}, 9")
                e(f"s_add_u32 s{ST}, s{ST}, {FA_OFF}")
                e(f"v_lshlrev_b32 v{VFA}, 3, v{VL}")
                e(f"v_add_u32 v{VFA}, s{ST}, v{VFA}")
                fl_load("FL")
            if j == 16 - S + 2:
                e(f"v_lshlrev_b32 v{t1}, 2, v{vi}")
                e(f"s_lshl_b32 s{ST}, s{SMT}, 9")
                e(f"s_and_b32 s{ST + 1}, s{SWAVE}, 1")
                e(f"s_lshl_b32 s{ST + 1}, s{ST + 1}, 8")
                e(f"s_add_u32 s{ST}, s{ST}, s{ST + 1}")
                e(f"s_add_u32 s{ST}, s{ST}, {G_OFF}")
                for i in range(4):
                    a.vmem(f"buffer_load_dword v{VG + i}, v{t1}, {WS}, s{ST} offen offset:{64 * i}", "g")
            if j == J2:
                e(f"s_and_b32 s{P_SHD}, s2, 31")
                e(f"s_lshr_b32 s{P_SM2}, s2, 5")
                e(f"s_lshr_b32 s{ST}, s{P_SHD}, 1")
                e(f"s_lshl_b32 s{ST}, s{ST}, 4")
                e(f"s_add_u32 s{ST}, s{ST}, s{P_SM2}")
                e(f"s_lshl_b32 s{ST}, s{ST}, 2")
                e(f"s_add_u32 s{ST}, s{ST}, s{SWAVE}")
                e(f"s_lshl_b32 s{ST}, s{ST}, 3")
                e(f"s_add_u32 s{ST}, s{ST}, {FQ_OFF + 256}")
                e(f"s_lshl_b32 s{ST + 1}, s{P_SHD}, 6")
                e(f"s_add_u32 s{ST + 1}, s{ST + 1}, {FK_OFF}")
                e(f"v_lshlrev_b32 v{VQ + 2}, 3, v{VL}")
                e(f"v_add_u32 v{VQ + 2}, s{ST + 1}, v{VQ + 2}")
                e(f"v_mov_b32 v{t0}, s{ST}")
                e(f"v_cmp_gt_u32 s[{ST + 2}:{ST + 3}], 6, v{VL}")
                e("s_nop 1")
                e(f"v_cndmask_b32 v{VQ + 2}, v{t0}, v{VQ + 2}, s[{ST + 2}:{ST + 3}]")
                e(f"s_lshl_b32 s{P_SM2}, s{P_SM2}, 1")
                e(f"s_lshr_b32 s{ST}, s{SWAVE}, 1")
                e(f"s_add_u32 s{P_SM2}, s{P_SM2}, s{ST}")
                fq_load()
            if j == J2 + 2:
                e(f"s_mul_i32 s{ST}, s{P_SHD}, 3072")
                e(f"s_add_u32 s{ST}, s{ST}, {KVF_OFF}")
                e(f"v_lshlrev_b32 v{t0}, 3, v{VL}")
                for i in range(6):
                    a.vmem(f"buffer_load_dwordx2 {ar(144 + 2 * i, 2)}, v{t0}, {WS}, s{ST} offen offset:{512 * i}", "pq")
                e(f"s_mul_i32 s{ST}, s{P_SM2}, 144")
                e(f"s_add_u32 s{ST}, s{ST}, s{P_SHD}")
                e(f"s_add_u32 s{ST}, s{ST}, 112")
                e(f"s_lshl_b32 s{ST}, s{ST}, 13")
                for i in range(4):
                    a.vmem(f"buffer_load_dwordx4 {ar(128 + 4 * i)}, v{VAD}, {WS}, s{ST} offen offset:{1024 * i}", "pq")
                e(f"s_lshl_b32 s{SOP}, s{P_SM2}, 5")
                e(f"s_add_u32 s{SOP}, s{SOP}, s{P_SHD}")
                e(f"s_lshl_b32 s{SOP}, s{SOP}, 13")
                e(f"s_add_u32 s{SOP}, s{SOP}, {OF_OFF}")
                for r in range(4):
                    e(f"v_mov_b32 v{PEPS + r}, {EPS_HEX}")
            if j == J2 + 5:
                for i in range(4):
                    e(f"v_rcp_f32 v{PR + i}, v{PD + 12 * i + 8}")
                e("s_nop 0")
                for i in range(4):
                    d = PD + 12 * i
                    for q in range(8):
                        e(f"v_mul_f32 v{d + q}, v{PR + i}, v{d + q}")
                    o = PO + 4 * i
                    for q in range(4):
                        e(f"v_cvt_pk_bf16_f32 v{o + q}, v{d + 2 * q}, v{d + 2 * q + 1}")
                    a.vmem(f"buffer_store_dwordx4 {vr(o)}, v{VAD}, {WS}, s{SOP} offen offset:{1024 * i} sc1", "ost")
            if j == J2 + 8:
                setflag(2)
            if j == JO - OPT.get('fod', 2):
                assert j > J2 + 8
                e(f"s_lshl_b32 s{ST}, s{SMT}, 9")
                e(f"s_add_u32 s{ST}, s{ST}, {FO_OFF}")
                if role == 0:
                    e(f"v_min_u32 v{VFA}, {4 * o0 - 1}, v{VL}")
                else:
                    e(f"v_max_u32 v{VFA}, {4 * o0}, v{VL}")
                e(f"v_lshlrev_b32 v{VFA}, 3, v{VFA}")
                e(f"v_add_u32 v{VFA}, s{ST}, v{VFA}")
                fl_load("F")
            if role == 1 and j == JP - 1:
                e(f"s_lshl_b32 s{ST}, s{STILE}, 8")
                e(f"s_lshl_b32 s{ST + 1}, s{SWAVE}, 3")
                e(f"s_add_u32 s{ST}, s{ST}, s{ST + 1}")
                e(f"s_add_u32 s{ST}, s{ST}, {FP_OFF}")
                e(f"v_mov_b32 v{VFA}, s{ST}")
                fl_load("F2")
            if role == 1 and j == JP:
                e(f"s_lshl_b32 s{ST}, s{STILE}, 16")
                e(f"s_lshl_b32 s{ST + 1}, s{SWAVE}, 13")
                e(f"s_add_u32 s{ST}, s{ST}, s{ST + 1}")
                e(f"s_add_u32 s{ST}, s{ST}, {PART_OFF}")
                for q in range(8):
                    if q == 4:
                        e(f"s_add_u32 s{ST}, s{ST}, 4096")
                    a.vmem(f"buffer_load_dwordx4 {vr(VY + 4 * q)}, v{VL16}, {WS}, s{ST} offen offset:{1024 * (q & 3)} sc1", "PT")

        def post(j):
            if j == J1 + 1:
                red_guard("nr1")
                n_ = a.vm_count(["fq"], drop=False)
                e(f"s_waitcnt vmcnt({n_})")
                poll("q", VQ, fq_load)
                e(f"s_lshr_b32 s{ST}, s{P_SHD}, 1")
                e(f"s_mul_i32 s{ST}, s{ST}, 84")
                e(f"s_add_u32 s{ST}, s{ST}, s2")
                e(f"s_lshl_b32 s{ST}, s{ST}, 10")
                e(f"s_add_u32 s{ST}, s{ST}, {KVP_OFF}")
                for r8 in range(8):
                    e(f"buffer_load_dwordx4 {vr(VK + 4 * r8)}, v{VL16}, {WS}, s{ST} offen")
                    if r8 < 7:
                        e(f"s_add_u32 s{ST}, s{ST}, 12288")
                a.label(f"L_p2{R}_nr1")
                a.mark("r1")
            if j == J1 + 3:
                red_guard("nr2")
                n_ = a.vm_count(["#r1"], drop=False)
                if n_ is not None:
                    e(f"s_waitcnt vmcnt({n_})")
                for st_ in (1, 2, 4):
                    for r8 in range(0, 8, 2 * st_):
                        for q in range(2):
                            b0 = VK + 4 * r8 + 2 * q
                            e(f"v_pk_add_f32 {vr(b0, 2)}, {vr(b0, 2)}, {vr(b0 + 4 * st_, 2)}")
                e(f"v_cvt_pk_bf16_f32 v{VK}, v{VK}, v{VK + 1}")
                e(f"v_cvt_pk_bf16_f32 v{VK + 1}, v{VK + 2}, v{VK + 3}")
                e(f"s_mul_i32 s{ST}, s{P_SHD}, 6")
                e(f"s_sub_u32 s{ST}, s2, s{ST}")
                e(f"s_cmp_ge_u32 s{ST}, 3")
                e(f"s_cselect_b32 s{ST + 1}, 1, 0")
                e(f"s_mul_i32 s{ST + 2}, s{ST + 1}, 3")
                e(f"s_sub_u32 s{ST}, s{ST}, s{ST + 2}")
                e(f"s_mul_i32 s{ST + 2}, s{P_SHD}, 3")
                e(f"s_add_u32 s{ST}, s{ST}, s{ST + 2}")
                e(f"s_lshl_b32 s{ST}, s{ST}, 10")
                e(f"s_lshl_b32 s{ST + 1}, s{ST + 1}, 9")
                e(f"s_add_u32 s{ST}, s{ST}, s{ST + 1}")
                e(f"s_add_u32 s{ST}, s{ST}, {KVF_OFF}")
                e(f"v_lshlrev_b32 v{t0}, 3, v{VL}")
                e(f"buffer_store_dwordx2 {vr(VK, 2)}, v{t0}, {WS}, s{ST} offen sc1")
                a.label(f"L_p2{R}_nr2")
                a.mark("r2")
            if j == J1 + 5:
                red_guard("nr3")
                n_ = a.vm_count(["#r2"], drop=False)
                if n_ is not None:
                    e(f"s_waitcnt vmcnt({n_})")
                e(f"s_mov_b64 exec, {1 << 5}")
                e(f"buffer_store_dwordx2 v[{V_TOK}:{V_TOK + 1}], v0, {WS}, 0 offen sc1")
                e("s_mov_b64 exec, -1")
                a.label(f"L_p2{R}_nr3")

        def interval(j):
            if DIAG and OPT.get('ts2'):
                if j == 0:
                    e("s_mov_b32 s74, 0")
                e("s_memrealtime s[76:77]")
                e("s_waitcnt lgkmcnt(0)")
                e("s_mov_b32 m0, s74")
                e("s_nop 0")
                e(f"v_writelane_b32 v{VT + 7}, s76, m0")
                e("s_add_u32 s74, s74, 1")
            main = []
            if j >= 1:
                for mt in range(4):
                    for nt in range(4):
                        D = vr(acc2(mt, nt) + (64 if j - 1 >= nact else 0))
                        for b in range(2):
                            C = "0" if (j in (1, nact + 1) and b == 0) else D
                            main.append(f"v_mfma_f32_16x16x32_bf16 {D}, {ar(FB(j - 1, b, nt))}, {ar(FA(j - 1, b, mt))}, {C}")
            pre(j)
            if j == J2 + 4:
                pm = []
                for i in range(4):
                    d = PD + 12 * i
                    pq = ar(128 + 4 * i)
                    pm += [f"v_mfma_f32_16x16x32_bf16 {vr(d + 8)}, {ar(152)}, {pq}, {vr(PEPS)}",
                           f"v_mfma_f32_16x16x32_bf16 {vr(d)}, {ar(144)}, {pq}, 0",
                           f"v_mfma_f32_16x16x32_bf16 {vr(d + 4)}, {ar(148)}, {pq}, 0"]
                main = pm + main
            rd = reads(j) if j < N else []
            dm = (dmaA(j + S - 1) + dmaB(j + S - 1)) if j + S - 1 < N else []
            for x in (late[TR * (j - TRS): TR * (j - TRS) + TR] if j >= TRS else []):
                dm.append(lambda x=x: a.vmem(x, "sl"))
            streams = []
            if nact + 1 <= j <= nact + 4:
                mt = j - (nact + 1)
                it = []
                if mt == 0:
                    a.wait(["g"])
                it.append(lambda mt=mt: e(f"v_sub_f32 v{VOMG + mt}, 1.0, v{VG + mt}"))
                for q in range(16):
                    it.append(lambda mt=mt, q=q: e(f"v_mul_f32 v{acc2(mt, 0) + q}, v{VOMG + mt}, v{acc2(mt, 0) + q}"))
                streams.append((it, 10, 30))
            n = max(len(main), 1)
            ex = capture(a, lambda: extra(j), chunk=1)
            if ex:
                streams.append((ex, 1, min(n * 0.97, 1 + 1.2 * len(ex))))
            schedule(a, main, [(rd, 0, n * 0.85), (dm, 0.5, n * 0.95)] + streams)
            post(j)
            if j < N:
                a.wait([f"D{j + 1}"] if j + 1 < N else [], lgkm=True)
                if j + 1 < N:
                    e("s_barrier")

        iters = []
        for j in range(N + 1):
            n_ = len(a.lines)
            if j == 4:
                stamp(a, 3)
            if j == nact:
                stamp(a, 4)
            interval(j)
            iters.append(a.lines[n_:])
            del a.lines[n_:]
        fold_loops(a, iters, PERIOD, SCNT, f"p2{R}")
        stamp(a, 5)
        if role == 0:
            e(f"s_lshl_b32 s{ST}, s{STILE}, 16")
            e(f"s_lshl_b32 s{ST + 1}, s{SWAVE}, 13")
            e(f"s_add_u32 s{ST}, s{ST}, s{ST + 1}")
            e(f"s_add_u32 s{ST}, s{ST}, {PART_OFF}")
            e("s_nop 7")
        else:
            vo = VT + 4
            e(f"v_lshlrev_b32 v{t2}, 11, v{vi}")
            e(f"v_bfe_u32 v{t3}, v{VL}, 4, 1")
            e(f"v_lshlrev_b32 v{t3}, 5, v{t3}")
            e(f"v_add_u32 v{t2}, v{t2}, v{t3}")
            e(f"v_lshrrev_b32 v{t3}, 5, v{VL}")
            e(f"v_lshlrev_b32 v{t3}, 4, v{t3}")
            e(f"v_add_u32 v{vo}, v{t2}, v{t3}")
            e(f"s_lshl_b32 s{ST}, s{SMT}, 7")
            e(f"s_and_b32 s{ST + 1}, s{SWAVE}, 1")
            e(f"s_lshl_b32 s{ST + 1}, s{ST + 1}, 6")
            e(f"s_add_u32 s{ST}, s{ST}, s{ST + 1}")
            e(f"s_lshl_b32 s{ST}, s{ST}, 11")
            e(f"s_lshl_b32 s{ST + 1}, s{SNT}, 8")
            e(f"s_add_u32 s{ST}, s{ST}, s{ST + 1}")
            e(f"s_lshr_b32 s{ST + 1}, s{SWAVE}, 1")
            e(f"s_lshl_b32 s{ST + 1}, s{ST + 1}, 7")
            e(f"s_add_u32 s{ST}, s{ST}, s{ST + 1}")
            a.wait(["PT"])
        for mt in range(4):
            sel = "op_sel:[1,0,0] op_sel_hi:[1,1,1]" if mt & 1 else "op_sel_hi:[0,1,1]"
            for q in range(8):
                b0 = acc2(mt, 0) + 2 * q
                e(f"v_pk_fma_f32 {vr(b0, 2)}, {vr(VG + (mt & 2), 2)}, {vr(b0 + 64, 2)}, {vr(b0, 2)} {sel}")
            if role == 0:
                for h2 in range(2):
                    q = 2 * mt + h2
                    b0 = AC + 8 * q
                    for r in range(4):
                        e(f"v_cvt_pk_bf16_f32 v{b0 + r}, v{b0 + 2 * r}, v{b0 + 2 * r + 1}")
                    e(f"buffer_store_dwordx4 {vr(b0)}, v{VL16}, {WS}, s{ST} offen offset:{1024 * (q & 3)} sc1")
                    if q == 3:
                        e(f"s_add_u32 s{ST}, s{ST}, 4096")
            else:
                for q in range(8):
                    p0 = VY + 8 * mt + q
                    u = 48 + 2 * q
                    e(f"v_lshlrev_b32 v{u}, 16, v{p0}")
                    e(f"v_and_b32 v{u + 1}, 0xffff0000, v{p0}")
                for q in range(8):
                    b0 = acc2(mt, 0) + 2 * q
                    e(f"v_pk_add_f32 {vr(b0, 2)}, {vr(b0, 2)}, {vr(48 + 2 * q, 2)}")
                for pr in range(2):
                    b0 = acc2(mt, 2 * pr)
                    for q in range(4):
                        e(f"v_cvt_pk_bf16_f32 v{b0 + q}, v{b0 + 2 * q}, v{b0 + 2 * q + 1}")
                e("s_nop 1")
                for pr in range(2):
                    b0 = acc2(mt, 2 * pr)
                    e(f"v_permlane16_swap_b32 v{b0}, v{b0 + 2}")
                    e(f"v_permlane16_swap_b32 v{b0 + 1}, v{b0 + 3}")
                for pr in range(2):
                    b0 = acc2(mt, 2 * pr)
                    e(f"buffer_store_dwordx4 {vr(b0)}, v{vo}, s[{SOUT}:{SOUT + 3}], s{ST} offen offset:{64 * pr}")
                if mt < 3:
                    e(f"s_add_u32 s{ST}, s{ST}, 32768")
        if role == 0:
            e("s_waitcnt vmcnt(0)")
            setflag(3)
        stamp(a, 6)
        if DIAG and OPT.get('ts2'):
            e(f"s_mov_b32 s76, s{S_PTR + 20}")
            e(f"s_and_b32 s77, s{S_PTR + 21}, 0xffff")
            e(f"s_mov_b32 s78, 0x4000000")
            e(f"s_mov_b32 s79, 0x20000")
            e(f"s_lshl_b32 s75, s2, 2")
            e(f"s_add_u32 s75, s75, s{S_WAVE}")
            e(f"s_lshl_b32 s75, s75, 8")
            e(f"s_add_u32 s75, s75, {DIAG_OFF + 0x200000}")
            e(f"v_lshlrev_b32 v{VT}, 2, v{VL}")
            e(f"buffer_store_dword v{VT + 7}, v{VT}, s[76:79], s75 offen")
        if DIAG:
            e("s_waitcnt vmcnt(0)")
        stamp(a, 7)
        stamp_dump(a, 1, 8, SWAVE, S_PTR + 20, S_PTR + 21, VT + 5)
        e("s_endpgm")

    body(1)
    a.label("L_p2_r0")
    a.vm = vm_save
    body(0)


def fix_hazards(lines):
    out = []
    for i, ln in enumerate(lines):
        out.append(ln)
        if " m0," in ln and i + 1 < len(lines) and lines[i + 1].rstrip().endswith("lds"):
            out.append("  s_nop 0")
    return out


def gen_spin():
    a = Asm()
    e = a.e
    spec = OPT['spin']
    A_, B_, M = spec.split(",")
    a.lines.append(".globl spin_kernel\n.p2align 8\n.type spin_kernel,@function\nspin_kernel:")
    e("s_cmp_lg_u32 s2, 0")
    e("s_cbranch_scc1 L_spin_end")
    e("s_load_dwordx2 s[4:5], s[0:1], 80")
    e("v_lshlrev_b32 v1, 7, v0")
    e("s_waitcnt lgkmcnt(0)")
    e("s_mov_b32 s8, s4\ns_and_b32 s9, s5, 0xffff\ns_mov_b32 s10, 0x4000000\ns_mov_b32 s11, 0x20000")

    def red(sp, sdst):
        k, st, op = sp.split(".")
        base = DIAG_OFF + int(k) * 0x100000 + 8 * int(st) + 4
        for i in range(16):
            e(f"s_mov_b32 s12, {base + i * 8192}")
            e(f"buffer_load_dword v{8 + i}, v1, s[8:11], s12 offen")
        e("s_waitcnt vmcnt(0)")
        for i in range(1, 16):
            e(f"v_{op}_u32 v8, v8, v{8 + i}")
        e("s_nop 1")
        e(f"v_readlane_b32 s{sdst}, v8, 0")
        for l in range(1, 64):
            e(f"v_readlane_b32 s13, v8, {l}")
            e("s_nop 0")
            e(f"s_{op}_u32 s{sdst}, s{sdst}, s13")
    red("0.0.min", 20)
    red(A_, 21)
    red(B_, 22)
    e("s_sub_u32 s22, s22, s21")
    e(f"s_mul_i32 s22, s22, {M}")
    e("s_add_u32 s22, s22, 12000")
    e("s_min_u32 s22, s22, 90000")
    a.label("L_spin")
    e("s_memrealtime s[14:15]")
    e("s_waitcnt lgkmcnt(0)")
    e("s_sub_u32 s16, s14, s20")
    e("s_cmp_lt_u32 s16, s22")
    e("s_cbranch_scc1 L_spin")
    a.label("L_spin_end")
    e("s_endpgm")
    return a.lines


def kd(name, nfv, accum):
    return f""".amdhsa_kernel {name}
  .amdhsa_next_free_vgpr {nfv}
  .amdhsa_next_free_sgpr 102
  .amdhsa_accum_offset {accum}
  .amdhsa_group_segment_fixed_size 0
  .amdhsa_kernarg_size 88
  .amdhsa_user_sgpr_count 2
  .amdhsa_user_sgpr_kernarg_segment_ptr 1
  .amdhsa_system_sgpr_workgroup_id_x 1
.end_amdhsa_kernel"""


def main(path):
    hdr = open(f"cdna_kernels/{NAME}.s.ref").read().split("; Override launch")[0]
    out = [hdr.rstrip("\n")]
    kn = NAME + "_kernel"
    if OPT.get('spin'):
        out.append(f"; @launch kernel={kn} grid=(256,1,1) block=(256,1,1) lds={K2_LDS()}")
        out.append("; @launch kernel=spin_kernel grid=(1,1,1) block=(64,1,1) lds=0")
    else:
        out.append(f"; @launch grid=(256,1,1) block=(256,1,1) lds={K2_LDS()}")
    out.append('.amdgcn_target "amdgcn-amd-amdhsa--gfx950"')
    out.append(".text")
    out += [ln.replace("KNAME", kn) for ln in fix_hazards(gen_k1())]
    if OPT.get('spin'):
        out += gen_spin()
    out.append('.section .rodata,"a"')
    if OPT.get('spin'):
        out.append(".p2align 6")
        out.append(kd("spin_kernel", 32, 32))
    out.append(".p2align 6")
    out.append(kd(kn, 256 + 160, 256))
    open(path, "w").write("\n".join(out) + "\n")


if __name__ == "__main__":
    if "--dbgout" in sys.argv:
        DBGOUT = True
        sys.argv.remove("--dbgout")
    if "--diag" in sys.argv:
        DIAG = True
        sys.argv.remove("--diag")
    for arg in list(sys.argv):
        if "=" in arg:
            k_, v_ = arg.split("=")
            OPT[k_] = int(v_) if v_.isdigit() else v_.replace("+", " ")
            sys.argv.remove(arg)
    main(sys.argv[1] if len(sys.argv) > 1 else f"cdna_kernels/{NAME}.s")
```

```python
import sys

NAME = "gated_mix__linear_attn_block__dense_activation_mish__prompt"

AF_OFF = 0
AF_BYTES = 16 * 144 * 8 * 1024
KVP_OFF = AF_BYTES
KVP_BYTES = 16 * 8 * 12 * 1024
KVF_OFF = KVP_OFF + KVP_BYTES
KVF_BYTES = 32 * 3 * 1024
G_OFF = KVF_OFF + KVF_BYTES
PART_OFF = G_OFF + 8192
OF_OFF = PART_OFF + 128 * 65536
FLG_OFF = OF_OFF + 16 * 32 * 8192
FE_OFF = FLG_OFF - 0 + 32768 + 128 * 256
FA_OFF = FLG_OFF
FQ_OFF = FA_OFF + 8192
FO_OFF = FQ_OFF + 8192
FP_OFF = FO_OFF + 8192
FK_OFF = FE_OFF + 8192
WS_USED = FK_OFF + 2048
assert FP_OFF + 128 * 256 <= FE_OFF
V_TOK = 14

DIAG = False
DBGOUT = False
OPT = dict(k1a="", k1b="", k2a="", k2b="", st="sc1", pf=2, xpf=0, n0=34, o0=6, tr=5, cpf=2, map=0, fepos=1, S=4, pbf=1, pj=1, pprio=0, cprio=0, rdend=26)
DIAG_OFF = 0x2000000
EPS_HEX = "0x358637bd"
L2E_HEX = "0x3fb8aa3b"


class Asm:
    def __init__(self):
        self.lines = []
        self.vm = []

    def e(self, s):
        for ln in s.split("\n"):
            self.lines.append("  " + ln.strip())

    def label(self, s):
        self.lines.append(s + ":")

    def vmem(self, s, tag):
        self.e(s)
        self.vm.append(tag)

    def mark(self, tag):
        self.vm.append("#" + tag)

    def vm_count(self, tags, drop=True):
        idx = -1
        for i, t in enumerate(self.vm):
            if t in tags:
                idx = i
        if idx < 0:
            return None
        n = sum(1 for t in self.vm[idx + 1:] if not t.startswith("#"))
        if drop:
            self.vm = self.vm[idx + 1:]
        assert n <= 63, n
        return n

    def wait(self, tags=(), lgkm=False):
        n = self.vm_count(tags) if tags else None
        parts = []
        if n is not None:
            parts.append(f"vmcnt({n})")
        if lgkm:
            parts.append("lgkmcnt(0)")
        if parts:
            self.e("s_waitcnt " + " ".join(parts))


def stamp(a, idx, sbase=80):
    if not DIAG:
        return
    a.e(f"s_memtime s[{sbase - 4}:{sbase - 3}]")
    a.e(f"s_memrealtime s[{sbase - 2}:{sbase - 1}]")
    a.e("s_waitcnt lgkmcnt(0)")
    a.e(f"s_mov_b32 s{sbase + 2 * idx}, s{sbase - 4}")
    a.e(f"s_mov_b32 s{sbase + 2 * idx + 1}, s{sbase - 2}")


def stamp_dump(a, kidx, n, swave, sptr_lo, sptr_hi, vtmp, sbase=80):
    if not DIAG:
        return
    e = a.e
    e(f"s_mov_b32 s{sbase - 4}, s{sptr_lo}")
    e(f"s_and_b32 s{sbase - 3}, s{sptr_hi}, 0xffff")
    e(f"s_mov_b32 s{sbase - 2}, 0x4000000")
    e(f"s_mov_b32 s{sbase - 1}, 0x20000")
    e(f"s_lshl_b32 s75, s2, 2")
    e(f"s_add_u32 s75, s75, s{swave}")
    e(f"s_lshl_b32 s75, s75, 7")
    e(f"s_add_u32 s75, s75, {DIAG_OFF + kidx * 0x100000}")
    e(f"v_mov_b32 v{vtmp}, 0")
    e("s_mov_b64 exec, 1")
    for i in range(2 * n):
        e(f"v_mov_b32 v{vtmp + 1}, s{sbase + i}")
        e(f"buffer_store_dword v{vtmp + 1}, v{vtmp}, s[{sbase - 4}:{sbase - 1}], s75 offen offset:{4 * i}")
        e("s_nop 1")
    e("s_mov_b64 exec, -1")
    if DBGOUT:
        lab = f"L_dbg_{len(a.lines)}"
        e(f"s_cmp_lg_u32 s2, 1")
        e(f"s_cbranch_scc1 {lab}")
        e(f"s_cmp_lg_u32 s{swave}, 0")
        e(f"s_cbranch_scc1 {lab}")
        e(f"s_mov_b32 s{sbase - 4}, s{sptr_lo - 2}")
        e(f"s_and_b32 s{sbase - 3}, s{sptr_hi - 2}, 0xffff")
        e(f"s_mov_b32 s{sbase - 2}, 256")
        e("s_mov_b64 exec, 1")
        for i in range(n):
            e(f"v_mov_b32 v{vtmp + 1}, s{sbase + 2 * i + 1}")
            e(f"buffer_store_dword v{vtmp + 1}, v{vtmp}, s[{sbase - 4}:{sbase - 1}], 0 offen offset:{4 * i + 32 * kidx}")
            e("s_nop 1")
        e("s_mov_b64 exec, -1")
        a.label(lab)


def vr(b, n=4):
    return f"v[{b}:{b + n - 1}]"


def ar(b, n=4):
    return f"a[{b}:{b + n - 1}]"


def interleave(a, mf, fillers, start=0, end=None):
    n = len(mf)
    if end is None:
        end = n
    nf = len(fillers)
    pos = [start + (j * (end - start)) // max(nf, 1) for j in range(nf)]
    j = 0
    for m in range(n):
        a.e(mf[m])
        while j < nf and pos[j] <= m:
            f = fillers[j]
            f()
            j += 1
    while j < nf:
        fillers[j]()
        j += 1


def capture(a, fn, chunk=2):
    n0_ = len(a.lines)
    vm0 = list(a.vm)
    fn()
    lines = a.lines[n0_:]
    tags = a.vm[len(vm0):]
    del a.lines[n0_:]
    a.vm = vm0
    items = []
    cur = []
    depth = 0
    ti = 0
    for ln in lines:
        cur.append(ln)
        if "s_cbranch" in ln or "s_mov_b64 exec, " in ln and "-1" not in ln or "s_cmp" in ln or "s_getpc" in ln or "s_sub_u32" in ln and "KNAME" in ln:
            depth = 1
        if ln.endswith(":") and not ln.startswith(" ") and "L_pc" not in ln or "s_mov_b64 exec, -1" in ln and not any("s_cbranch" in x for x in cur) or "s_cselect" in ln or "s_subb_u32" in ln:
            depth = 0
        if depth == 0 and len(cur) >= chunk:
            items.append(cur)
            cur = []
    if cur:
        items.append(cur)
    out = []
    for it in items:
        guarded = any("s_cbranch" in x for x in it)
        nv = 0 if guarded else sum(1 for x in it if x.strip().startswith(("buffer_", "global_")))
        tg = tags[ti:ti + nv]
        ti += nv

        def emit(it=it, tg=tg):
            a.lines.extend(it)
            a.vm.extend(tg)
        out.append(emit)
    rest = tags[ti:]
    assert all(t.startswith("#") for t in rest), (ti, tags)
    if rest:
        out.append(lambda rest=rest: a.vm.extend(rest))
    return out


def srd(a, d, lo, hi, nbytes, bias=0):
    if bias:
        a.e(f"s_sub_u32 s{d}, s{lo}, {bias}")
        a.e(f"s_subb_u32 s{d + 1}, s{hi}, 0")
        a.e(f"s_and_b32 s{d + 1}, s{d + 1}, 0xffff")
    else:
        a.e(f"s_mov_b32 s{d}, s{lo}")
        a.e(f"s_and_b32 s{d + 1}, s{hi}, 0xffff")
    a.e(f"s_mov_b32 s{d + 2}, {nbytes + bias}")
    a.e(f"s_mov_b32 s{d + 3}, 0x20000")


K1_BSLOT = 13312
K1_AREA = 3328
K1_ABASE = 4 * K1_BSLOT
K1_LDS = K1_ABASE + 4 * 16384
ACC0 = 48


def acc(t, mt):
    return ACC0 + 16 * t + 4 * mt


V_LANE = 1
V_ARD = 2
V_QRD = 4
V_HRD = 8
V_ADMA = 9
V_BDMA = 13
V_L16 = 17
V_T = 18
S_X, S_Q, S_W1, S_WS, S_MISC = 4, 8, 12, 16, 20
S_WAVE, S_RB, S_P = 24, 25, 26
S_OFFA, S_OFFA2, S_OFFQ, S_OFFH = 27, 28, 29, 30
S_M0B, S_M0A = 31, 32
S_CNT = 33
S_QM = 34
S_PTR = 36
S_L2E = 58
S_T = 60
S_AFB = 72
S_GROW = 73
S_PO1, S_PO2 = 74, 3
S_PT, S_PTE = 100, 101
S_CB = 100
S_PF1, S_PF2 = 96, 20


def bset(s, t):
    return 52 * s + 4 * t


ASET = {"X": 104, "Y": 120, "Z": 136}


def k1_body(a, typ):
    T = "A" if typ == 0 else "B"
    nq = 8 if typ == 0 else 4
    nh = 13 - nq
    Ph = 2 * nh
    HB = 256 * nq
    e = a.e
    vi, vG, t0, t1, t2, t3 = V_T, V_T + 1, V_T + 2, V_T + 3, V_T + 4, V_T + 5
    e(f"v_and_b32 v{vi}, 15, v{V_LANE}")
    e(f"v_lshrrev_b32 v{vG}, 4, v{V_LANE}")
    e(f"s_mul_i32 s{S_T + 2}, s{S_P}, 448")
    if typ:
        e(f"s_add_u32 s{S_T + 2}, s{S_T + 2}, 160")

    e(f"s_lshr_b32 s{S_T + 8}, s{S_WAVE}, 1")
    e(f"s_lshl_b32 s{S_T + 8}, s{S_T + 8}, 4")
    e(f"s_and_b32 s{S_T + 9}, s{S_WAVE}, 1")
    e(f"s_lshl_b32 s{S_T + 9}, s{S_T + 9}, 2")
    e(f"s_add_u32 s{S_T + 8}, s{S_T + 8}, s{S_T + 9}")

    def krow(dst, kp, tmp):
        e(f"v_lshrrev_b32 v{tmp}, 2, v{kp}")
        e(f"v_lshlrev_b32 v{tmp}, 3, v{tmp}")
        e(f"v_and_b32 v{dst}, 3, v{kp}")
        e(f"v_add3_u32 v{dst}, v{dst}, v{tmp}, s{S_T + 8}")

    e(f"v_lshrrev_b32 v{t0}, 3, v{V_LANE}")
    krow(t1, t0, t2)
    e(f"v_mul_u32_u24 v{t1}, 6144, v{t1}")
    e(f"v_lshrrev_b32 v{t2}, 1, v{t0}")
    e(f"v_and_b32 v{t2}, 3, v{t2}")
    e(f"v_lshlrev_b32 v{t2}, 1, v{t2}")
    e(f"v_and_b32 v{t3}, 7, v{V_LANE}")
    e(f"v_xor_b32 v{t3}, v{t3}, v{t2}")
    e(f"v_lshlrev_b32 v{t3}, 4, v{t3}")
    e(f"v_add_u32 v{t1}, v{t1}, v{t3}")
    e(f"s_lshl_b32 s{S_T + 9}, s{S_P}, 7")
    e(f"s_add_u32 s{S_T + 9}, s{S_T + 9}, {4096 + (2048 if typ == 0 else 0)}")
    e(f"v_add_u32 v{V_BDMA}, s{S_T + 9}, v{t1}")
    if typ == 0:
        e(f"v_add_u32 v{V_BDMA + 1}, {2048 - 1024}, v{V_BDMA}")
    hins = [(2, 0), (3, 64)] if typ == 0 else [(1, 0), (2, 64), (3, 128)]
    magic, sh = (205, 11) if Ph == 10 else (57, 10)
    for s_ in range(8 * Ph + 64):
        if s_ < 8 * Ph:
            assert (s_ * magic) >> sh == s_ // Ph
    for slot, s0 in hins:
        e(f"v_add_u32 v{t0}, {s0}, v{V_LANE}")
        e(f"v_mul_u32_u24 v{t1}, {magic}, v{t0}")
        e(f"v_lshrrev_b32 v{t1}, {sh}, v{t1}")
        e(f"v_mul_u32_u24 v{t2}, {Ph}, v{t1}")
        e(f"v_sub_u32 v{t0}, v{t0}, v{t2}")
        e(f"v_and_b32 v{t1}, 7, v{t1}")
        krow(t2, t1, t3)
        e(f"v_mul_u32_u24 v{t2}, 7168, v{t2}")
        e(f"v_lshlrev_b32 v{t0}, 4, v{t0}")
        e(f"v_add3_u32 v{t0}, v{t0}, v{t2}, s{S_T + 2}")
        e(f"v_add_u32 v{V_BDMA + slot}, {4096 - 1024 * slot}, v{t0}")
    e(f"s_lshl_b32 s{S_T + 9}, s{S_RB}, 8")
    e(f"s_lshl_b32 s{S_T + 10}, s{S_WAVE}, 6")
    e(f"s_add_u32 s{S_T + 9}, s{S_T + 9}, s{S_T + 10}")
    e(f"s_lshl_b32 s{S_T + 9}, s{S_T + 9}, 11")
    e(f"v_lshrrev_b32 v{t0}, 3, v{V_LANE}")
    e(f"v_lshrrev_b32 v{t1}, 1, v{t0}")
    e(f"v_and_b32 v{t2}, 7, v{V_LANE}")
    e(f"v_xor_b32 v{t2}, v{t2}, v{t1}")
    e(f"v_lshlrev_b32 v{t0}, 11, v{t0}")
    e(f"v_add_u32 v{t0}, s{S_T + 9}, v{t0}")
    for j in range(4):
        if j & 1:
            e(f"v_xor_b32 v{t3}, 4, v{t2}")
            e(f"v_lshlrev_b32 v{t3}, 4, v{t3}")
        else:
            e(f"v_lshlrev_b32 v{t3}, 4, v{t2}")
        e(f"v_add_u32 v{t3}, v{t3}, v{t0}")
        e(f"v_add_u32 v{V_ADMA + j}, {j * (16384 - 1024)}, v{t3}")
    e(f"s_mul_i32 s{S_M0B}, s{S_WAVE}, {K1_AREA}")
    e(f"s_lshl_b32 s{S_M0A}, s{S_WAVE}, 14")
    e(f"s_add_u32 s{S_M0A}, s{S_M0A}, {K1_ABASE}")
    e(f"s_mov_b32 s{S_OFFA}, 0")
    e(f"s_mov_b32 s{S_OFFA2}, 65536")
    e(f"s_mov_b32 s{S_OFFQ}, 0")
    e(f"s_mov_b32 s{S_OFFH}, 0")
    e(f"s_mov_b32 s{S_QM}, 0xffff")
    e(f"s_mov_b32 s{S_QM + 1}, 0")

    def dmaB(tt):
        slot = tt % 4
        tag = f"B{tt}"
        f = []
        srcs = [(S_Q, S_OFFQ), (S_Q, S_OFFQ) if typ == 0 else (S_W1, S_OFFH), (S_W1, S_OFFH)]
        f.append(lambda: e(f"s_add_u32 m0, s{S_M0B}, {slot * K1_BSLOT}"))
        for j in range(3):
            sr, so = srcs[j]
            f.append(lambda j=j, sr=sr, so=so: a.vmem(
                f"buffer_load_dwordx4 v{V_BDMA + j}, s[{sr}:{sr + 3}], s{so} offen offset:{1024 * j} {OPT['k1b']} lds", tag))

        def q():
            e(f"s_mov_b64 exec, s[{S_QM}:{S_QM + 1}]")
            a.vmem(f"buffer_load_dwordx4 v{V_BDMA + 3}, s[{S_W1}:{S_W1 + 3}], s{S_OFFH} offen offset:3072 {OPT['k1b']} lds", tag)
            e("s_mov_b64 exec, -1")
        f.append(q)
        f.append(lambda: e(f"s_add_u32 s{S_OFFQ}, s{S_OFFQ}, {32 * 6144}"))
        f.append(lambda: e(f"s_add_u32 s{S_OFFH}, s{S_OFFH}, {32 * 7168}"))
        return f

    def dmaA(aa):
        slot = aa % 2
        tag = f"A{aa}"
        f = []
        for half in range(2):
            so = S_OFFA if half == 0 else S_OFFA2
            f.append(lambda half=half: e(f"s_add_u32 m0, s{S_M0A}, {slot * 8192 + half * 4096}"))
            for j in range(4):
                f.append(lambda j=j, so=so: a.vmem(
                    f"buffer_load_dwordx4 v{V_ADMA + j}, s[{S_X}:{S_X + 3}], s{so} offen offset:{1024 * j} {OPT['k1a']} lds", tag))
        f.append(lambda: e(f"s_add_u32 s{S_OFFA}, s{S_OFFA}, 128"))
        f.append(lambda: e(f"s_add_u32 s{S_OFFA2}, s{S_OFFA2}, 128"))
        return f

    def run_seq(fl):
        for fn in fl:
            n0 = len(a.lines)
            fn()
            if " m0," in a.lines[-1] and len(a.lines) == n0 + 1:
                e("s_nop 0")

    e("s_waitcnt lgkmcnt(0)")
    srd(a, S_Q, S_PTR + 2, S_PTR + 3, 1024 * 3072 * 2, bias=4096)
    srd(a, S_W1, S_PTR + 8, S_PTR + 9, 1024 * 3584 * 2, bias=4096)
    srd(a, S_X, S_PTR + 0, S_PTR + 1, 2048 * 1024 * 2)
    if not OPT.get('spin'):
        stamp(a, 0)
    if OPT.get('kst'):
        stamp(a, 4)
    run_seq(dmaB(0))
    run_seq(dmaA(0))
    srd(a, S_T + 4, S_PTR + 10, S_PTR + 11, 7168)
    e(f"v_lshlrev_b32 v{t1}, 3, v{vG}")
    for j in range(nh):
        a.vmem(f"buffer_load_dwordx2 {vr(acc(nq + j, 3), 2)}, v{t1}, s[{S_T + 4}:{S_T + 7}], s{S_T + 2} offen offset:{32 * j}", "bias")
    run_seq(dmaB(1))
    if not OPT.get('ramp'):
        run_seq(dmaB(2))
        run_seq(dmaA(1))
        run_seq(dmaB(3))
    if OPT.get('ramp') == 2:
        run_seq(dmaA(1))
    if OPT.get('ramp') == 3:
        run_seq(dmaB(2))
        run_seq(dmaA(1))
    e(f"v_lshrrev_b32 v{t0}, 3, v{vi}")
    e(f"v_lshlrev_b32 v{t0}, 6, v{t0}")
    e(f"v_and_b32 v{t1}, 7, v{vi}")
    e(f"v_lshlrev_b32 v{t1}, 3, v{t1}")
    e(f"v_add_u32 v{t0}, v{t0}, v{t1}")
    e(f"v_lshrrev_b32 v{t1}, 1, v{vi}")
    e(f"v_xor_b32 v{t1}, v{t1}, v{vG}")
    e(f"v_add_u32 v{t2}, v{t0}, v{t1}")
    e(f"v_lshlrev_b32 v{t2}, 4, v{t2}")
    e(f"v_add_u32 v{V_ARD}, s{S_M0A}, v{t2}")
    e(f"v_xor_b32 v{t1}, 4, v{t1}")
    e(f"v_add_u32 v{t2}, v{t0}, v{t1}")
    e(f"v_lshlrev_b32 v{t2}, 4, v{t2}")
    e(f"v_add_u32 v{V_ARD + 1}, s{S_M0A}, v{t2}")
    e(f"v_and_b32 v{t0}, 1, v{vG}")
    e(f"v_lshlrev_b32 v{t0}, 2, v{t0}")
    e(f"v_lshrrev_b32 v{t1}, 2, v{vi}")
    e(f"v_add_u32 v{t0}, v{t0}, v{t1}")
    e(f"v_lshrrev_b32 v{t1}, 1, v{vG}")
    e(f"v_mul_u32_u24 v{t1}, {2 * K1_AREA}, v{t1}")
    e(f"v_and_b32 v{t2}, 3, v{vi}")
    e(f"v_lshlrev_b32 v{t2}, 3, v{t2}")
    e(f"v_add_u32 v{t1}, v{t1}, v{t2}")
    e(f"v_mul_u32_u24 v{t3}, {16 * Ph}, v{t0}")
    e(f"v_add3_u32 v{V_HRD}, v{t1}, v{t3}, {0}")
    e(f"v_add_u32 v{V_HRD}, {HB}, v{V_HRD}")
    e(f"v_lshlrev_b32 v{t3}, 7, v{t0}")
    e(f"v_add_u32 v{t1}, v{t1}, v{t3}")
    e(f"v_lshrrev_b32 v{t2}, 1, v{t0}")
    e(f"v_and_b32 v{t2}, 3, v{t2}")
    for t in range(4):
        e(f"v_xor_b32 v{t3}, {t}, v{t2}")
        e(f"v_lshlrev_b32 v{t3}, 5, v{t3}")
        e(f"v_add_u32 v{V_QRD + t}, v{t1}, v{t3}")
    e(f"v_lshlrev_b32 v{V_L16}, 4, v{V_LANE}")

    gw, gx0, gx1 = V_T, V_T + 8, V_T + 16
    gt = V_T + 24
    nb = {0: 1, 1: 7, 2: 1, 3: 2, 4: 3}[OPT['pf']]
    PL1, PL2 = -(-56 // nb), -(-16 // nb)

    def misc_setup():
        srd(a, S_WS, S_PTR + 20, S_PTR + 21, WS_USED)
        tile_decode(a, S_T + 4, S_T + 5, S_T + 6, S_T + 7, S_T)
        e(f"s_lshl_b32 s{S_T}, s{S_RB}, 1")
        e(f"s_lshr_b32 s{S_T + 1}, s{S_WAVE}, 1")
        e(f"s_add_u32 s{S_T}, s{S_T}, s{S_T + 1}")
        e(f"s_lshl_b32 s{S_T}, s{S_T}, 5")
        e(f"s_lshl_b32 s{S_T + 1}, s{S_P}, 1")
        e(f"s_add_u32 s{S_T}, s{S_T}, s{S_T + 1}")
        if typ:
            e(f"s_add_u32 s{S_T}, s{S_T}, 1")
        e(f"s_lshl_b32 s{S_T}, s{S_T}, 1")
        e(f"s_and_b32 s{S_T + 1}, s{S_WAVE}, 1")
        e(f"s_add_u32 s{S_T}, s{S_T}, s{S_T + 1}")
        e(f"s_lshl_b32 s{S_T}, s{S_T}, 3")
        e(f"s_add_u32 s{S_T}, s{S_T}, {FA_OFF}")
        e(f"v_writelane_b32 v0, s{S_T}, 4")
        e(f"s_lshl_b32 s{S_T}, s{S_RB}, 1")
        e(f"s_lshr_b32 s{S_T + 3}, s{S_WAVE}, 1")
        e(f"s_add_u32 s{S_T}, s{S_T}, s{S_T + 3}")
        e(f"s_lshl_b32 s{S_T}, s{S_T}, 5")
        e(f"s_add_u32 s{S_T}, s{S_T}, s{S_P}")
        e(f"s_lshl_b32 s{S_T}, s{S_T}, 1")
        e(f"s_add_u32 s{S_T}, s{S_T}, s{S_T + 1}")
        e(f"s_lshl_b32 s{S_T}, s{S_T}, 3")
        e(f"s_add_u32 s{S_T}, s{S_T}, {FE_OFF + 256 * typ}")
        e(f"v_writelane_b32 v0, s{S_T}, 0")
        e(f"s_lshl_b32 s{S_T}, s{S_P}, 4")
        e(f"s_add_u32 s{S_T}, s{S_T}, s{S_RB}")
        e(f"s_lshl_b32 s{S_T}, s{S_T}, 2")
        e(f"s_add_u32 s{S_T}, s{S_T}, s{S_WAVE}")
        e(f"s_lshl_b32 s{S_T}, s{S_T}, 3")
        e(f"s_add_u32 s{S_T}, s{S_T}, {FQ_OFF + 256 * typ}")
        e(f"v_writelane_b32 v0, s{S_T}, 1")
        e(f"s_lshr_b32 s{S_T}, s2, 5")
        e(f"s_lshl_b32 s{S_T}, s{S_T}, 1")
        e(f"s_lshr_b32 s{S_T + 1}, s{S_WAVE}, 1")
        e(f"s_add_u32 s{S_T}, s{S_T}, s{S_T + 1}")
        e(f"s_lshl_b32 s{S_T}, s{S_T}, 9")
        e(f"s_and_b32 s{S_T + 1}, s2, 31")
        e(f"s_lshl_b32 s{S_T + 1}, s{S_T + 1}, 4")
        e(f"s_add_u32 s{S_T}, s{S_T}, s{S_T + 1}")
        e(f"s_and_b32 s{S_T + 1}, s{S_WAVE}, 1")
        e(f"s_lshl_b32 s{S_T + 1}, s{S_T + 1}, 3")
        e(f"s_add_u32 s{S_T}, s{S_T}, s{S_T + 1}")
        e(f"s_add_u32 s{S_T}, s{S_T}, {FO_OFF}")
        e(f"s_lshl_b32 s{S_T + 1}, s{S_T + 7}, 8")
        e(f"s_lshl_b32 s{S_T + 3}, s{S_WAVE}, 3")
        e(f"s_add_u32 s{S_T + 1}, s{S_T + 1}, s{S_T + 3}")
        e(f"s_add_u32 s{S_T + 1}, s{S_T + 1}, {FP_OFF}")
        e(f"s_cmp_eq_u32 s{S_T + 6}, 0")
        e(f"s_cselect_b32 s{S_T + 1}, s{S_T + 1}, 0x7ffffff0")
        e(f"v_writelane_b32 v0, s{S_T}, 2")
        e(f"v_writelane_b32 v0, s{S_T + 1}, 3")
        e(f"s_mul_i32 s{S_T}, s2, 171")
        e(f"s_lshr_b32 s{S_T}, s{S_T}, 10")
        e(f"s_lshl_b32 s{S_T}, s{S_T}, 1")
        e(f"s_add_u32 s{S_T}, s{S_T}, s2")
        e(f"s_lshl_b32 s{S_T}, s{S_T}, 3")
        e(f"s_add_u32 s{S_T}, s{S_T}, {FK_OFF}")
        e(f"v_writelane_b32 v0, s{S_T}, 5")

    def misc_setup2():
        if typ == 0:
            e(f"s_or_b32 s{S_T}, s2, s{S_WAVE}")
            e(f"s_cmp_lg_u32 s{S_T}, 0")
            e(f"s_cbranch_scc1 L_notok")
            e(f"s_memrealtime s[{S_T + 8}:{S_T + 9}]")
            srd(a, S_T + 4, S_PTR + 18, S_PTR + 19, 256)
            e("s_waitcnt lgkmcnt(0)")
            e(f"s_or_b32 s{S_T + 9}, s{S_T + 9}, 0x40000000")
            e(f"s_lshl_b32 s{S_T + 9}, s{S_T + 9}, 1")
            e(f"s_and_b32 s{S_T}, s{S_T + 8}, 1")
            e(f"s_or_b32 s{S_T + 9}, s{S_T + 9}, s{S_T}")
            e(f"s_or_b32 s{S_T + 8}, s{S_T + 8}, 1")
            e(f"v_mov_b32 v{V_T + 24}, s{S_T + 8}")
            e(f"v_mov_b32 v{V_T + 25}, s{S_T + 9}")
            e(f"v_mov_b32 v{V_T + 27}, 0")
            e("s_mov_b64 exec, 1")
            e(f"buffer_store_dwordx2 v[{V_T + 24}:{V_T + 25}], v{V_T + 27}, s[{S_T + 4}:{S_T + 7}], 0 offen sc1")
            e("s_mov_b64 exec, -1")
            e("s_nop 1")
            a.label("L_notok")
        if OPT.get('cpf') == 1:
            e(f"s_getpc_b64 s[{S_T + 4}:{S_T + 5}]")
            a.label(f"L_pc_{T}")
            e(f"s_sub_u32 s{S_T + 4}, s{S_T + 4}, L_pc_{T}-KNAME")
            e(f"s_subb_u32 s{S_T + 5}, s{S_T + 5}, 0")
            e(f"s_lshr_b32 s{S_T}, s2, 3")
            e(f"s_and_b32 s{S_T}, s{S_T}, 3")
            e(f"s_lshl_b32 s{S_T}, s{S_T}, 2")
            e(f"s_add_u32 s{S_T}, s{S_T}, s{S_WAVE}")
            e(f"s_lshl_b32 s{S_T}, s{S_T}, 13")
            e(f"v_lshlrev_b32 v{V_T + 29}, 7, v{V_LANE}")
            e(f"v_add_u32 v{V_T + 29}, s{S_T}, v{V_T + 29}")
            e(f"v_min_u32 v{V_T + 29}, L_code_end-KNAME-4, v{V_T + 29}")
            a.vmem(f"global_load_dword v{V_T + 29}, v{V_T + 29}, s[{S_T + 4}:{S_T + 5}]", "pf")
        if OPT.get('xpf') == 1:
            e(f"v_and_b32 v{V_T + 28}, 31, v{V_LANE}")
            e(f"v_lshlrev_b32 v{V_T + 28}, 7, v{V_T + 28}")
            e(f"s_lshl_b32 s{S_T}, s2, 2")
            e(f"s_add_u32 s{S_T}, s{S_T}, s{S_WAVE}")
            e(f"s_lshl_b32 s{S_T}, s{S_T}, 12")
            a.vmem(f"buffer_load_dword v{V_T + 28}, v{V_T + 28}, s[{S_X}:{S_X + 3}], s{S_T} offen", "pf")
        if OPT.get('xpf') == 2:
            e(f"v_lshlrev_b32 v{V_T + 27}, 7, v{V_LANE}")
            e(f"s_lshr_b32 s{S_T}, s2, 5")
            e(f"s_lshl_b32 s{S_T}, s{S_T}, 2")
            e(f"s_add_u32 s{S_T}, s{S_T}, s{S_WAVE}")
            e(f"s_lshl_b32 s{S_T}, s{S_T}, 14")
            e(f"s_lshl_b32 s{S_T + 1}, s{S_RB}, 19")
            e(f"s_add_u32 s{S_T}, s{S_T}, s{S_T + 1}")
            a.vmem(f"buffer_load_dword v{V_T + 28}, v{V_T + 27}, s[{S_X}:{S_X + 3}], s{S_T} offen", "pf")
            e(f"s_add_u32 s{S_T}, s{S_T}, 8192")
            a.vmem(f"buffer_load_dword v{V_T + 28}, v{V_T + 27}, s[{S_X}:{S_X + 3}], s{S_T} offen", "pf")

        e(f"v_lshlrev_b32 v{gt}, 5, v{V_LANE}")
        e(f"s_lshl_b32 s{S_GROW}, s{S_RB}, 8")
        e(f"s_lshl_b32 s{S_T + 1}, s{S_WAVE}, 6")
        e(f"s_add_u32 s{S_GROW}, s{S_GROW}, s{S_T + 1}")
        e(f"s_lshl_b32 s{S_T + 1}, s{S_P}, 2")
        e(f"s_add_u32 s{S_GROW}, s{S_GROW}, s{S_T + 1}")
        if typ:
            e(f"s_add_u32 s{S_GROW}, s{S_GROW}, 2")
        e(f"s_lshl_b32 s{S_T + 1}, s{S_GROW}, 11")
        srd(a, S_MISC, S_PTR + 14, S_PTR + 15, 2048)
        a.vmem(f"buffer_load_dwordx4 {vr(gw)}, v{gt}, s[{S_MISC}:{S_MISC + 3}], 0 offen", "g")
        a.vmem(f"buffer_load_dwordx4 {vr(gw + 4)}, v{gt}, s[{S_MISC}:{S_MISC + 3}], 0 offen offset:16", "g")
        a.vmem(f"buffer_load_dwordx4 {vr(gx0)}, v{gt}, s[{S_X}:{S_X + 3}], s{S_T + 1} offen", "g")
        a.vmem(f"buffer_load_dwordx4 {vr(gx0 + 4)}, v{gt}, s[{S_X}:{S_X + 3}], s{S_T + 1} offen offset:16", "g")
        a.vmem(f"buffer_load_dwordx4 {vr(gx1)}, v{gt}, s[{S_X}:{S_X + 3}], s{S_T + 1} offen offset:2048", "g")
        a.vmem(f"buffer_load_dwordx4 {vr(gx1 + 4)}, v{gt}, s[{S_X}:{S_X + 3}], s{S_T + 1} offen offset:2064", "g")

        if OPT['pf']:
            srd(a, S_PF1, S_PTR + 12, S_PTR + 13, 3584 * 1024 * 2)
            srd(a, S_PF2, S_PTR + 4, S_PTR + 5, 1024 * 1024 * 2)
            e(f"v_min_u32 v{V_T + 26}, {PL1 - 1}, v{V_LANE}")
            e(f"v_lshlrev_b32 v{V_T + 26}, 7, v{V_T + 26}")
            e(f"v_min_u32 v{V_T + 27}, {PL2 - 1}, v{V_LANE}")
            e(f"v_lshlrev_b32 v{V_T + 27}, 7, v{V_T + 27}")
            e(f"s_lshl_b32 s{S_T}, s2, 2")
            e(f"s_add_u32 s{S_T}, s{S_T}, s{S_WAVE}")
            e(f"s_mul_i32 s{S_PO1}, s{S_T}, 7168")
            e(f"s_lshl_b32 s{S_PO2}, s{S_T}, 11")


    if OPT.get('pt'):
        e(f"s_lshl_b32 s{S_T}, s{S_RB}, 1")
        e(f"s_lshr_b32 s{S_T + 1}, s{S_WAVE}, 1")
        e(f"s_add_u32 s{S_T}, s{S_T}, s{S_T + 1}")
        e(f"s_mul_i32 s{S_AFB}, s{S_T}, {144 * 8192}")
        e(f"s_and_b32 s{S_T + 1}, s{S_WAVE}, 1")
        e(f"s_lshl_b32 s{S_T + 1}, s{S_T + 1}, 12")
        e(f"s_add_u32 s{S_AFB}, s{S_AFB}, s{S_T + 1}")
        e(f"s_mul_i32 s{S_PT}, s{S_P}, {7 * 8192}")
        e(f"s_add_u32 s{S_PT}, s{S_PT}, s{S_AFB}")
        if typ:
            e(f"s_add_u32 s{S_PT}, s{S_PT}, {2 * 8192}")
        e(f"s_add_u32 s{S_PTE}, s{S_PT}, {(4 if typ else 2) * 8192}")
        e(f"v_and_b32 v{V_T + 25}, 31, v{V_LANE}")
        e(f"v_lshlrev_b32 v{V_T + 25}, 7, v{V_T + 25}")
        if typ:
            e(f"v_lshrrev_b32 v{V_T + 29}, 5, v{V_LANE}")
            e(f"v_lshlrev_b32 v{V_T + 29}, 13, v{V_T + 29}")
            e(f"v_add_u32 v{V_T + 29}, v{V_T + 29}, v{V_T + 25}")
            e(f"s_mul_i32 s{S_T}, s{S_P}, {2 * 8192}")
            e(f"s_add_u32 s{S_T}, s{S_T}, {112 * 8192}")
            e(f"s_add_u32 s{S_T}, s{S_T}, s{S_AFB}")
            a.vmem(f"buffer_load_dword v{V_T + 28}, v{V_T + 29}, s[{S_WS}:{S_WS + 3}], s{S_T} offen", "pf")

    def pt_items():
        return [lambda: a.vmem(f"buffer_load_dword v{V_T + 28}, v{V_T + 25}, s[{S_WS}:{S_WS + 3}], s{S_PT} offen", "pf"),
                lambda: e(f"s_add_u32 s{S_PT}, s{S_PT}, 8192"),
                lambda: e(f"s_min_u32 s{S_PT}, s{S_PT}, s{S_PTE}")]

    def pf_items(cond=None):
        if cond is None:
            return [lambda: a.vmem(f"buffer_load_dword v{V_T + 28}, v{V_T + 26}, s[{S_PF1}:{S_PF1 + 3}], s{S_PO1} offen", "pf"),
                    lambda: a.vmem(f"buffer_load_dword v{V_T + 28}, v{V_T + 27}, s[{S_PF2}:{S_PF2 + 3}], s{S_PO2} offen", "pf"),
                    lambda: e(f"s_add_u32 s{S_PO1}, s{S_PO1}, {128 * PL1}"),
                    lambda: e(f"s_add_u32 s{S_PO2}, s{S_PO2}, {128 * PL2}")]

        def blk():
            e(f"s_lshl_b32 s{S_T}, 1, s{S_CNT}")
            e(f"s_and_b32 s{S_T}, s{S_T}, {cond}")
            e(f"s_cbranch_scc0 L_k1{T}_nopf")
            e(f"buffer_load_dword v{V_T + 28}, v{V_T + 26}, s[{S_PF1}:{S_PF1 + 3}], s{S_PO1} offen")
            e(f"buffer_load_dword v{V_T + 28}, v{V_T + 27}, s[{S_PF2}:{S_PF2 + 3}], s{S_PO2} offen")
            e(f"s_add_u32 s{S_PO1}, s{S_PO1}, {128 * PL1}")
            e(f"s_add_u32 s{S_PO2}, s{S_PO2}, {128 * PL2}")
            a.label(f"L_k1{T}_nopf")
        return [blk]

    def g_items():
        d0, d1 = V_T + 24, V_T + 25
        L = []
        L.append(f"v_dot2_f32_bf16 v{d0}, v{gx0}, v{gw}, 0")
        L.append(f"v_dot2_f32_bf16 v{d1}, v{gx1}, v{gw}, 0")
        for j in range(1, 8):
            L.append(f"v_dot2_f32_bf16 v{d0}, v{gx0 + j}, v{gw + j}, v{d0}")
            L.append(f"v_dot2_f32_bf16 v{d1}, v{gx1 + j}, v{gw + j}, v{d1}")
        L.append("s_nop 3")
        for sh_ in (1, 2, 4, 8):
            L.append(f"s_nop 0\nv_add_f32_dpp v{d0}, v{d0}, v{d0} row_shr:{sh_} row_mask:0xf bank_mask:0xf bound_ctrl:0")
            L.append(f"s_nop 0\nv_add_f32_dpp v{d1}, v{d1}, v{d1} row_shr:{sh_} row_mask:0xf bank_mask:0xf bound_ctrl:0")
        L.append(f"s_nop 0\nv_add_f32_dpp v{d0}, v{d0}, v{d0} row_bcast:15 row_mask:0xa bank_mask:0xf")
        L.append(f"s_nop 0\nv_add_f32_dpp v{d1}, v{d1}, v{d1} row_bcast:15 row_mask:0xa bank_mask:0xf")
        L.append(f"s_nop 0\nv_add_f32_dpp v{d0}, v{d0}, v{d0} row_bcast:31 row_mask:0xc bank_mask:0xf")
        L.append(f"s_nop 0\nv_add_f32_dpp v{d1}, v{d1}, v{d1} row_bcast:31 row_mask:0xc bank_mask:0xf")
        L.append(f"v_mul_f32 v{d0}, 0xbfb8aa3b, v{d0}")
        L.append(f"v_mul_f32 v{d1}, 0xbfb8aa3b, v{d1}")
        L.append(f"v_exp_f32 v{d0}, v{d0}")
        L.append(f"v_exp_f32 v{d1}, v{d1}\ns_nop 0")
        L.append(f"v_add_f32 v{d0}, 1.0, v{d0}")
        L.append(f"v_add_f32 v{d1}, 1.0, v{d1}")
        L.append(f"v_rcp_f32 v{d0}, v{d0}")
        L.append(f"v_rcp_f32 v{d1}, v{d1}")
        L.append(f"v_mov_b32 v{gw}, 0")
        L.append(f"s_lshl_b32 s{S_T + 1}, s{S_GROW}, 2\ns_add_u32 s{S_T + 1}, s{S_T + 1}, {G_OFF}")
        L.append(f"s_lshl_b32 s{S_T + 3}, s2, 8\ns_add_u32 s{S_T + 3}, s{S_T + 3}, {FLG_OFF}")
        L.append(f"s_mov_b32 s{S_T + 8}, 0\ns_mov_b32 s{S_T + 9}, 0x80000000")
        F = [(lambda x=x: e(x)) for x in L]

        def st():
            e(f"s_mov_b64 exec, s[{S_T + 8}:{S_T + 9}]")
            a.vmem(f"buffer_store_dwordx2 v[{d0}:{d1}], v{gw}, s[{S_WS}:{S_WS + 3}], s{S_T + 1} offen sc1", "sq")
            e("s_mov_b64 exec, -1")
        F.append(st)
        return F

    if OPT.get('m2', 9) == 9:
        misc_setup2()
    a.wait(["bias"])
    for j in range(nh):
        src = acc(nq + j, 3)
        d = acc(nq + j, 0)
        e(f"v_lshlrev_b32 v{d}, 16, v{src}")
        e(f"v_and_b32 v{d + 1}, 0xffff0000, v{src}")
        e(f"v_lshlrev_b32 v{d + 2}, 16, v{src + 1}")
        e(f"v_and_b32 v{d + 3}, 0xffff0000, v{src + 1}")
    for t in range(4):
        for r in range(4):
            e(f"v_mov_b32 v{acc(t, 0) + r}, {EPS_HEX}")

    def rdB(tt):
        slot = tt % 4
        s = tt % 2
        f = []
        for t in range(13):
            for ins in range(2):
                if t < nq:
                    addr = V_QRD + (t & 3)
                    off = slot * K1_BSLOT + ins * K1_AREA + 1024 * (t >> 2)
                else:
                    addr = V_HRD
                    off = slot * K1_BSLOT + ins * K1_AREA + 32 * (t - nq)
                d = bset(s, t) + 2 * ins
                f.append(lambda d=d, addr=addr, off=off: e(f"ds_read_b64_tr_b16 {ar(d, 2)}, v{addr} offset:{off}"))
        return f

    def aset_of(tt):
        if tt % 2 == 0:
            return ASET["X"]
        return ASET["Y"] if tt % 4 == 1 else ASET["Z"]

    def rdA(aa):
        slot = aa % 2
        f = []
        for hh in range(2):
            base = aset_of(2 * aa + hh)
            for mt in range(4):
                f.append(lambda hh=hh, mt=mt, base=base: e(
                    f"ds_read_b128 {ar(base + 4 * mt)}, v{V_ARD + hh} offset:{slot * 8192 + mt * 2048}"))
        return f

    stamp(a, 1)
    a.wait(["B0", "A0"])
    e("s_barrier")
    stamp(a, 2)
    for fn in rdA(0) + rdB(0):
        fn()
    if OPT.get('ramp') == 1:
        run_seq(dmaA(1))
    if OPT.get('ramp') in (1, 2):
        run_seq(dmaB(2))
    a.wait(["B1"], lgkm=True)
    e("s_barrier")

    misc_items = capture(a, misc_setup)
    misc_items2 = capture(a, misc_setup2) if OPT.get('m2', 9) != 9 else []

    NSTEP = 32

    def step(tt):
        if DIAG and OPT.get('ts'):
            e("s_memrealtime s[76:77]")
            e("s_waitcnt lgkmcnt(0)")
            e("s_mov_b32 m0, s78")
            e("s_nop 0")
            e(f"v_writelane_b32 v{V_T + 29}, s76, m0")
            e("s_add_u32 s78, s78, 1")
        s = tt % 2
        ab = aset_of(tt)
        mf = []
        for t in range(13):
            order = [1, 2, 3, 0] if tt == 0 else [0, 1, 2, 3]
            for mt in order:
                D = vr(acc(t, mt))
                if tt == 0:
                    C = "0" if (typ == 0 and 4 <= t < 8) else vr(acc(t, 0))
                else:
                    C = D
                W = ar(bset(s, t))
                X = ar(ab + 4 * mt)
                if typ == 0 and t < 8:
                    mf.append(f"v_mfma_f32_16x16x32_bf16 {D}, {X}, {W}, {C}")
                else:
                    mf.append(f"v_mfma_f32_16x16x32_bf16 {D}, {W}, {X}, {C}")
        if OPT.get('fakechain') and tt > 0:
            import re
            m2 = []
            for i in range(0, 52, 2):
                x0, x1 = mf[i], mf[i + 1]
                pick = x0 if tt % 2 == 0 else x1
                D = re.match(r"v_mfma\S+ (v\[\d+:\d+\])", pick).group(1)
                for x in (x0, x1):
                    D0 = re.match(r"v_mfma\S+ (v\[\d+:\d+\])", x).group(1)
                    m2.append(x.replace(D0, D))
            mf = m2
        rd = []
        if tt + 1 < NSTEP:
            rd = rdB(tt + 1)
            if tt % 2 == 1:
                rd = rdA((tt + 1) // 2) + rd
        dm = []
        if tt == 0 and OPT.get('ramp'):
            dm += dmaB(3)
        if OPT.get('afirst', 1) and tt % 2 == 0 and tt // 2 + 2 < NSTEP // 2:
            dm += dmaA(tt // 2 + 2)
        if tt + 4 < NSTEP:
            dm += dmaB(tt + 4)
        if not OPT.get('afirst', 1) and tt % 2 == 0 and tt // 2 + 2 < NSTEP // 2:
            dm += dmaA(tt // 2 + 2)
        if OPT['pf'] == 1 and tt % 4 == 1 and tt < 28:
            dm += pf_items()
        if OPT.get('cpf') == 3 and tt == 28:
            dm.append(lambda: a.vmem(f"global_load_dword v{V_T + 28}, v{V_T + 29}, s[{S_CB}:{S_CB + 1}]", "pf"))
        if OPT['pf'] in (2, 3, 4) and tt == 28:
            dm += pf_items()
        if OPT['pf'] in (3, 4) and tt % 4 == 1 and 4 <= tt < 28:
            dm += pf_items({3: 1 << 4, 4: (1 << 5) | (1 << 3)}[OPT['pf']])
        if OPT.get('pt') and tt % 4 == 3 and tt < 28:
            dm += pt_items()
        if tt == OPT.get('m2', 9):
            dm += misc_items2
        if tt == 3:
            dm += misc_items
        fl = []
        i1 = i2 = 0
        n1, n2 = len(rd), len(dm)
        while i1 < n1 or i2 < n2:
            if i2 < n2 and (i1 >= n1 or i2 * n1 <= i1 * n2):
                fl.append(dm[i2]); i2 += 1
            else:
                fl.append(rd[i1]); i1 += 1
        if tt == NSTEP - 1:
            assert "g" not in a.vm
            fl = g_items()
        interleave(a, mf, fl, 0, 48)
        if tt + 1 < NSTEP:
            tags = []
            if tt + 2 < NSTEP:
                tags.append(f"B{tt + 2}")
            if tt % 2 == 0:
                tags.append(f"A{tt // 2 + 1}")
            a.wait(tags, lgkm=True)
            if tt + 2 < NSTEP:
                e("s_barrier")

    iters = []
    for it in range(8):
        n0 = len(a.lines)
        for tt in range(4 * it, 4 * it + 4):
            step(tt)
        iters.append(a.lines[n0:])
        del a.lines[n0:]
    for it in range(2, 7):
        assert iters[it] == iters[1], f"iteration {it} differs"
    stamp(a, 3)
    if DIAG and OPT.get('ts'):
        e("s_mov_b32 s78, 0")
    a.lines += iters[0]
    if not OPT.get('ts') and not OPT.get('kst'):
        stamp(a, 4)
    e(f"s_mov_b32 s{S_CNT}, 6")
    a.label(f"L_k1{T}_loop")
    a.lines += iters[1]
    e(f"s_sub_u32 s{S_CNT}, s{S_CNT}, 1")
    e(f"s_cmp_lg_u32 s{S_CNT}, 0")
    e(f"s_cbranch_scc1 L_k1{T}_loop")
    a.lines += iters[7]
    assert all(not t.startswith(("A", "B")) for t in a.vm), a.vm

    stamp(a, 5)

    def fin():
        stamp(a, 6)
        stamp(a, 7)
        k = a.vm_count(["#eA"], drop=False)
        if DIAG:
            k += 16
        stamp_dump(a, 0, 8, S_WAVE, S_PTR + 20, S_PTR + 21, V_T)
        e(f"s_cmp_eq_u32 s{P_SEARLY}, 0")
        e("s_cbranch_scc1 L_p2_late")
        e(f"s_waitcnt vmcnt({k})")
        e("s_branch L_p2_go")

    pb_state = [0]

    def pb(n=1):
        for _ in range(n):
            k = pb_state[0]
            if k >= OPT.get('pb', 0):
                return
            for i in range(4):
                a.vmem(f"buffer_load_dwordx4 {ar(128 + 16 * k + 4 * i)}, v{P_VBD + i}, s[{P_SW2}:{P_SW2 + 3}], s{P_SOB} offen offset:{1024 * i}", "pb")
            e(f"s_add_u32 s{P_SOB}, s{P_SOB}, s{P_SSB}")
            pb_state[0] += 1

    def fe_load():
        a.vmem(f"buffer_load_dwordx2 v[{P_VFL}:{P_VFL + 1}], v{P_VFA}, s[{S_WS}:{S_WS + 3}], 0 offen sc1", "fe")

    def fe_check():
        a.wait(["fe"])
        e(f"v_cmp_eq_u64 vcc, v[{P_VFL}:{P_VFL + 1}], v[{V_TOK}:{V_TOK + 1}]")
        e(f"s_mov_b32 s{P_SEARLY}, 0")
        e("s_nop 0")
        e("s_cmp_eq_u64 vcc, -1")
        e(f"s_cbranch_scc0 L_k1{T}_noearly")
        p2_issueA(a)
        e(f"s_mov_b32 s{P_SEARLY}, 1")
        a.label(f"L_k1{T}_noearly")
        a.mark("eA")

    def setflag(lane):
        a.label(f"L_k1{T}_tw")
        e(f"v_readfirstlane_b32 s{S_T}, v{V_TOK + 1}")
        e(f"v_readfirstlane_b32 s{S_T + 1}, v{V_TOK}")
        e("s_nop 3")
        e(f"s_min_u32 s{S_T}, s{S_T}, s{S_T + 1}")
        e(f"s_cmp_lg_u32 s{S_T}, 0")
        e(f"s_cbranch_scc1 L_k1{T}_tok")
        e("s_sleep 4")
        e(f"buffer_load_dwordx2 v[{V_TOK}:{V_TOK + 1}], v12, s[{S_T + 4}:{S_T + 7}], 0 offen sc1")
        e("s_waitcnt vmcnt(0)")
        e(f"s_branch L_k1{T}_tw")
        a.label(f"L_k1{T}_tok")
        e(f"s_mov_b64 exec, {1 << lane}")
        a.vmem(f"buffer_store_dwordx2 v[{V_TOK}:{V_TOK + 1}], v0, s[{S_WS}:{S_WS + 3}], 0 offen sc1", "fl")
        e("s_mov_b64 exec, -1")
    e("s_barrier")
    e(f"s_mov_b32 s{S_L2E}, {L2E_HEX}")
    e(f"s_mov_b32 s{S_L2E + 1}, {L2E_HEX}")
    e(f"s_lshl_b32 s{S_T}, s{S_RB}, 1")
    e(f"s_lshr_b32 s{S_T + 1}, s{S_WAVE}, 1")
    e(f"s_add_u32 s{S_T}, s{S_T}, s{S_T + 1}")
    e(f"s_mul_i32 s{S_AFB}, s{S_T}, {144 * 8192}")
    e(f"s_and_b32 s{S_T + 1}, s{S_WAVE}, 1")
    e(f"s_lshl_b32 s{S_T + 1}, s{S_T + 1}, 12")
    e(f"s_add_u32 s{S_AFB}, s{S_AFB}, s{S_T + 1}")
    e("s_nop 7")
    TT, UU = V_T, V_T + 8

    def phi_group(ra, rb_):
        prs = [ra, ra + 2, rb_, rb_ + 2]
        for j, p in enumerate(prs):
            e(f"v_pk_mul_f32 {vr(TT + 2 * j, 2)}, {vr(p, 2)}, s[{S_L2E}:{S_L2E + 1}]")
        for j in range(8):
            e(f"v_exp_f32_e64 v{TT + j}, v{TT + j} clamp")
        for p in prs:
            e(f"v_max_f32 v{p}, {EPS_HEX}, v{p}")
            e(f"v_max_f32 v{p + 1}, {EPS_HEX}, v{p + 1}")
        for j, p in enumerate(prs):
            e(f"v_pk_add_f32 {vr(p, 2)}, {vr(p, 2)}, {vr(TT + 2 * j, 2)}")
        for j, p in enumerate(prs):
            e(f"v_cvt_pk_bf16_f32 v{ra + j}, v{p}, v{p + 1}")

    def cvt_group(ra, rb_):
        prs = [ra, ra + 2, rb_, rb_ + 2]
        for j, p in enumerate(prs):
            e(f"v_cvt_pk_bf16_f32 v{ra + j}, v{p}, v{p + 1}")

    def mish_group(ra, rb_, split=False, dst=None):
        prs = [ra, ra + 2, rb_, rb_ + 2]
        for j, p in enumerate(prs):
            e(f"v_pk_mul_f32 {vr(TT + 2 * j, 2)}, {vr(p, 2)}, s[{S_L2E}:{S_L2E + 1}]")
        for j in range(8):
            e(f"v_exp_f32 v{TT + j}, v{TT + j}")
        for j in range(4):
            e(f"v_pk_fma_f32 {vr(UU + 2 * j, 2)}, {vr(TT + 2 * j, 2)}, 0.5, 1.0 op_sel_hi:[1,0,0]")
        for j in range(4):
            e(f"v_pk_fma_f32 {vr(UU + 2 * j, 2)}, {vr(TT + 2 * j, 2)}, {vr(UU + 2 * j, 2)}, 1.0 op_sel_hi:[1,1,0]")
        for j in range(8):
            e(f"v_rcp_f32 v{UU + j}, v{UU + j}")
        for j, p in enumerate(prs):
            e(f"v_pk_fma_f32 {vr(p, 2)}, {vr(UU + 2 * j, 2)}, {vr(p, 2)}, {vr(p, 2)} neg_lo:[1,0,0] neg_hi:[1,0,0]")
        if split:
            e(f"v_cvt_pk_bf16_f32 v{ra}, v{ra}, v{ra + 1}")
            e(f"v_cvt_pk_bf16_f32 v{ra + 1}, v{ra + 2}, v{ra + 3}")
            e(f"v_cvt_pk_bf16_f32 v{rb_}, v{rb_}, v{rb_ + 1}")
            e(f"v_cvt_pk_bf16_f32 v{rb_ + 1}, v{rb_ + 2}, v{rb_ + 3}")
        else:
            dd = ra if dst is None else dst
            for j, p in enumerate(prs):
                e(f"v_cvt_pk_bf16_f32 v{dd + j}, v{p}, v{p + 1}")

    WS = f"s[{S_WS}:{S_WS + 3}]"

    def set_kb(sreg, mul, add):
        e(f"s_mul_i32 s{sreg}, s{S_P}, {mul * 8192}")
        e(f"s_add_u32 s{sreg}, s{sreg}, {add * 8192}")
        e(f"s_add_u32 s{sreg}, s{sreg}, s{S_AFB}")

    def h_late(tA, kbl, sreg, mid=None):
        set_kb(sreg, 7, kbl)
        for mt in range(4):
            mish_group(acc(tA, mt), acc(tA + 1, mt))
            if mt == 1 and mid:
                mid()

    def h_half_late(tA, half):
        set_kb(P_SL + 2, 7, 2)
        if half:
            e(f"s_add_u32 s{P_SL + 2}, s{P_SL + 2}, 512")
        for mp in range(2):
            mish_group(acc(tA, 2 * mp), acc(tA, 2 * mp + 1), dst=240 + 4 * mp)
        e("s_nop 1")
        for mp in range(2):
            e(f"v_permlane16_swap_b32 v{240 + 4 * mp}, v{242 + 4 * mp}")
            e(f"v_permlane16_swap_b32 v{241 + 4 * mp}, v{243 + 4 * mp}")

    def h_full(tA, kbl, tag='st'):
        set_kb(S_T + 2, 7, kbl)
        for mt in range(4):
            mish_group(acc(tA, mt), acc(tA + 1, mt))
            a.vmem(f"buffer_store_dwordx4 {vr(acc(tA, mt))}, v{V_L16}, {WS}, s{S_T + 2} offen offset:{1024 * mt} {OPT['st']}", tag)

    def h_half(tA, kbl, half):
        set_kb(S_T + 2, 7, kbl)
        for mp in range(2):
            mish_group(acc(tA, 2 * mp), acc(tA, 2 * mp + 1), split=True)
            for mt in (2 * mp, 2 * mp + 1):
                a.vmem(f"buffer_store_dwordx2 {vr(acc(tA, mt), 2)}, v{V_L16}, {WS}, s{S_T + 2} offen offset:{1024 * mt + 8 * half} {OPT['st']}", "st")

    if typ == 1:
        h_full(5, 3, "se")
        h_full(7, 4, "se")
        p2_early(a)
        for hd in range(2):
            set_kb(S_T + 2, 2, 112 + hd)
            for mt in range(4):
                phi_group(acc(2 * hd, mt), acc(2 * hd + 1, mt))
                a.vmem(f"buffer_store_dwordx4 {vr(acc(2 * hd, mt))}, v{V_L16}, {WS}, s{S_T + 2} offen offset:{1024 * mt} {OPT['st']}", "sq")
                if 4 * hd + mt == OPT.get('fepos', 4):
                    a.wait(["se", "zc"])
                    setflag(0)
                if 4 * hd + mt >= OPT.get('fepos', 4):
                    pb()
        pb(8)
        h_late(9, 5, P_SL, mid=fe_load)
        h_late(11, 6, P_SL + 1, mid=fe_check)
        h_half_late(4, 1)
        fin()
        return

    h_full(8, 0, "se")
    h_full(10, 1, "se")
    p2_early(a)
    ONES = V_T + 16
    for r in range(4):
        e(f"v_mov_b32 v{ONES + r}, 0x3f803f80")
    for t in range(4):
        for pr in range(2):
            phi_group(acc(t, 2 * pr), acc(t, 2 * pr + 1))
            if 2 * t + pr == OPT.get('fepos', 4):
                a.wait(["se", "zc"])
                setflag(0)
            if 2 * t + pr >= OPT.get('fepos', 4):
                pb()
    pb(8)
    for t in range(4, 8):
        for pr in range(2):
            cvt_group(acc(t, 2 * pr), acc(t, 2 * pr + 1))
    e("s_nop 1")
    free = [acc(t, m) for t in range(8) for m in (1, 3)]

    def Dt(tau):
        return free[tau]
    for pr in range(2):
        for hd in range(2):
            for dt in range(2):
                for et in range(3):
                    tau = hd * 6 + dt * 3 + et
                    Aop = vr(acc(2 * hd + dt, 2 * pr))
                    Bop = vr(acc(4 + 2 * hd + et, 2 * pr)) if et < 2 else vr(ONES)
                    C = "0" if pr == 0 else vr(Dt(tau))
                    e(f"v_mfma_f32_16x16x32_bf16 {vr(Dt(tau))}, {Aop}, {Bop}, {C}")
    vw, vrd = V_T + 20, V_T + 21
    e(f"s_mul_i32 s{S_T}, s{S_WAVE}, 12288")
    e(f"s_add_u32 s{S_T}, s{S_T}, 98304")
    e(f"v_add_u32 v{vw}, s{S_T}, v{V_L16}")
    e(f"s_mul_i32 s{S_T}, s{S_WAVE}, 3072")
    e(f"s_add_u32 s{S_T}, s{S_T}, 98304")
    e(f"v_add_u32 v{vrd}, s{S_T}, v{V_L16}")
    fe_load()
    e("s_nop 7")
    for tau in range(12):
        e(f"ds_write_b128 v{vw}, {vr(Dt(tau))} offset:{1024 * tau}")
    e(f"s_lshl_b32 s{S_T}, s{S_P}, 3")
    e(f"s_add_u32 s{S_T}, s{S_T}, s{S_RB}")
    e(f"s_mul_i32 s{S_T}, s{S_T}, 12288")
    e(f"s_mul_i32 s{S_T + 1}, s{S_WAVE}, 3072")
    e(f"s_add_u32 s{S_T}, s{S_T}, s{S_T + 1}")
    e(f"s_add_u32 s{S_T + 10}, s{S_T}, {KVP_OFF}")
    h_half_late(12, 0)
    e(f"s_mov_b32 s{P_SL}, 0x7ff00000")
    e(f"s_mov_b32 s{P_SL + 1}, 0x7ff00000")
    e("s_waitcnt lgkmcnt(0)")
    e("s_barrier")
    R = [acc(t, m) for t in range(8) for m in (0, 2)]
    for w2 in range(4):
        for j in range(3):
            e(f"ds_read_b128 {vr(R[3 * w2 + j])}, v{vrd} offset:{12288 * w2 + 1024 * j}")
    fe_check()
    e("s_waitcnt lgkmcnt(0)")
    for j in range(3):
        for h2 in range(2):
            b0 = R[j] + 2 * h2
            e(f"v_pk_add_f32 {vr(b0, 2)}, {vr(b0, 2)}, {vr(R[3 + j] + 2 * h2, 2)}")
            e(f"v_pk_add_f32 {vr(R[6 + j] + 2 * h2, 2)}, {vr(R[6 + j] + 2 * h2, 2)}, {vr(R[9 + j] + 2 * h2, 2)}")
        for h2 in range(2):
            b0 = R[j] + 2 * h2
            e(f"v_pk_add_f32 {vr(b0, 2)}, {vr(b0, 2)}, {vr(R[6 + j] + 2 * h2, 2)}")
        a.vmem(f"buffer_store_dwordx4 {vr(R[j])}, v{V_L16}, {WS}, s{S_T + 10} offen offset:{1024 * j} sc1", "sq")
    fin()


def gen_k1():
    a = Asm()
    e = a.e
    a.lines.append(".globl KNAME\n.p2align 8\n.type KNAME,@function\nKNAME:")
    if OPT.get('spin'):
        stamp(a, 0)
    e("s_cmp_ge_u32 s2, 256")
    e("s_cbranch_scc1 L_k1_exit")
    e(f"s_load_dwordx16 s[{S_PTR}:{S_PTR + 15}], s[0:1], 0")
    if OPT.get('cpf') >= 2:
        e(f"s_getpc_b64 s[{S_CB}:{S_CB + 1}]")
        a.label("L_pc_0")
        e(f"s_sub_u32 s{S_CB}, s{S_CB}, L_pc_0-KNAME")
        e(f"s_subb_u32 s{S_CB + 1}, s{S_CB + 1}, 0")
        e(f"s_lshl_b32 s{S_T}, s2, 12")
        e(f"s_and_b32 s{S_T}, s{S_T}, 0x18000")
        e(f"v_lshlrev_b32 v{V_T + 29}, 7, v0")
        e(f"v_add_u32 v{V_T + 29}, s{S_T}, v{V_T + 29}")
        e(f"v_min_u32 v{V_T + 29}, L_code_end-KNAME-4, v{V_T + 29}")
        e(f"global_load_dword v{V_T + 28}, v{V_T + 29}, s[{S_CB}:{S_CB + 1}]")
    e(f"s_load_dwordx4 s[{S_PTR + 16}:{S_PTR + 19}], s[0:1], 64")
    e(f"s_load_dwordx2 s[{S_PTR + 20}:{S_PTR + 21}], s[0:1], 80")
    e(f"v_and_b32 v{V_LANE}, 63, v0")
    e(f"v_lshrrev_b32 v{V_T}, 6, v0")
    e(f"s_and_b32 s{S_T}, s2, 7")
    e(f"v_readfirstlane_b32 s{S_WAVE}, v{V_T}")
    e(f"s_lshr_b32 s{S_T + 1}, s2, 3")
    if OPT.get('map1', 0) == 0:
        e(f"s_and_b32 s{S_RB}, s{S_T}, 1")
        e(f"s_lshl_b32 s{S_RB}, s{S_RB}, 2")
        e(f"s_and_b32 s{S_T + 2}, s{S_T + 1}, 3")
        e(f"s_add_u32 s{S_RB}, s{S_RB}, s{S_T + 2}")
        e(f"s_lshr_b32 s{S_T}, s{S_T}, 1")
        e(f"s_lshl_b32 s{S_T}, s{S_T}, 3")
        e(f"s_lshr_b32 s{S_T + 1}, s{S_T + 1}, 2")
        e(f"s_add_u32 s{S_T}, s{S_T}, s{S_T + 1}")
    elif OPT['map1'] == 1:
        e(f"s_and_b32 s{S_RB}, s{S_T + 1}, 7")
        e(f"s_lshl_b32 s{S_T}, s{S_T}, 2")
        e(f"s_lshr_b32 s{S_T + 1}, s{S_T + 1}, 3")
        e(f"s_add_u32 s{S_T}, s{S_T}, s{S_T + 1}")
    else:
        e(f"s_and_b32 s{S_RB}, s{S_T}, 3")
        e(f"s_lshl_b32 s{S_RB}, s{S_RB}, 1")
        e(f"s_and_b32 s{S_T + 2}, s{S_T + 1}, 1")
        e(f"s_add_u32 s{S_RB}, s{S_RB}, s{S_T + 2}")
        e(f"s_lshr_b32 s{S_T}, s{S_T}, 2")
        e(f"s_lshl_b32 s{S_T}, s{S_T}, 4")
        e(f"s_lshr_b32 s{S_T + 1}, s{S_T + 1}, 1")
        e(f"s_add_u32 s{S_T}, s{S_T}, s{S_T + 1}")
    e(f"s_lshr_b32 s{S_P}, s{S_T}, 1")
    e(f"s_and_b32 s{S_T + 3}, s{S_T}, 1")
    e(f"s_cmp_lg_u32 s{S_T + 3}, 0")
    e("s_cbranch_scc1 L_k1_typeB")
    k1_body(a, 0)
    a.label("L_k1_typeB")
    a.vm = []
    k1_body(a, 1)
    a.vm = []
    phase2(a)
    a.label("L_k1_exit")
    e("s_endpgm")
    a.label("L_code_end")
    return a.lines


def K2_LDS():
    return OPT['S'] * 32768 + 24576


def fold_loops(a, iters, period, scnt, name):
    n = len(iters)
    i = 0
    lab = 0
    while i < n:
        reps = 1
        while i + (reps + 1) * period <= n and all(
                iters[i + k] == iters[i + reps * period + k] for k in range(period)):
            reps += 1
        if reps >= 2:
            a.e(f"s_mov_b32 s{scnt}, {reps}")
            a.label(f"L_{name}_{lab}")
            for k in range(period):
                a.lines += iters[i + k]
            a.e(f"s_sub_u32 s{scnt}, s{scnt}, 1")
            a.e(f"s_cmp_lg_u32 s{scnt}, 0")
            a.e(f"s_cbranch_scc1 L_{name}_{lab}")
            lab += 1
            i += reps * period
        else:
            a.lines += iters[i]
            i += 1


def schedule(a, mf, streams):
    n = len(mf)
    placed = []
    for si, (items, start, end) in enumerate(streams):
        m = len(items)
        prev = 0
        for j, it in enumerate(items):
            fn, early = it if isinstance(it, tuple) else (it, 0)
            pos = start + (j * (end - start)) / max(m, 1)
            pos = max(pos, early, prev)
            prev = pos
            placed.append((pos, si, j, fn))
    placed.sort(key=lambda x: (x[0], x[1], x[2]))
    k = 0
    if n == 0:
        for p in placed:
            p[3]()
        return
    for i in range(n):
        a.e(mf[i])
        while k < len(placed) and placed[k][0] < i + 1:
            placed[k][3]()
            k += 1
    while k < len(placed):
        placed[k][3]()
        k += 1


P_SW2, P_SWO, P_SWS, P_SOUT = 96, 20, 16, 4
P_SMT, P_SNT, P_SROLE, P_STILE = 8, 9, 10, 11
P_SOA, P_SOB, P_SOP, P_SM0A, P_SM0B = 12, 13, 14, 15, 27
P_SHD, P_SM2, P_SEARLY = 28, 29, 30
P_VBD = 2
P_SLOT = 32768


def tile_decode(a, smt, snt, srole, stile, st):
    e = a.e
    e(f"s_and_b32 s{st}, s2, 7")
    e(f"s_lshr_b32 s{st + 1}, s2, 3")
    e(f"s_and_b32 s{srole}, s{st}, 1")
    if OPT.get('rsw'):
        e(f"s_xor_b32 s{srole}, s{srole}, 1")
    e(f"s_lshr_b32 s{st}, s{st}, 1")
    if OPT['map'] == 0:
        e(f"s_and_b32 s{smt}, s{st}, 1")
        e(f"s_lshl_b32 s{smt}, s{smt}, 3")
        e(f"s_and_b32 s{stile}, s{st + 1}, 7")
        e(f"s_add_u32 s{smt}, s{smt}, s{stile}")
        e(f"s_lshr_b32 s{snt}, s{st}, 1")
        e(f"s_lshl_b32 s{snt}, s{snt}, 2")
        e(f"s_lshr_b32 s{st + 1}, s{st + 1}, 3")
        e(f"s_add_u32 s{snt}, s{snt}, s{st + 1}")
    else:
        e(f"s_lshl_b32 s{smt}, s{st}, 2")
        e(f"s_and_b32 s{stile}, s{st + 1}, 3")
        e(f"s_add_u32 s{smt}, s{smt}, s{stile}")
        e(f"s_lshr_b32 s{snt}, s{st + 1}, 2")
    e(f"s_lshl_b32 s{stile}, s{smt}, 3")
    e(f"s_add_u32 s{stile}, s{stile}, s{snt}")


P_VAD, P_VFA, P_VFL = 8, 9, 10
P_SSA, P_SSB = 31, 32
P_SL = 4


def p2_setrun(a, first_expr, stride):
    e = a.e
    c0, c1 = first_expr
    e(f"s_lshr_b32 s{S_T + 11}, s{S_WAVE}, 1")
    e(f"s_mul_i32 s{S_T + 11}, s{S_T + 11}, {c1}")
    e(f"s_add_u32 s{S_T + 11}, s{S_T + 11}, {c0}")
    return S_T + 11


def p2_early(a):
    e = a.e
    S = OPT['S']
    ST = S_T
    tile_decode(a, P_SMT, P_SNT, P_SROLE, P_STILE, ST)
    vi, vG, t0, t1, t2 = 6, 7, 8, 9, 10
    e(f"v_and_b32 v{vi}, 15, v{V_LANE}")
    e(f"v_lshrrev_b32 v{vG}, 4, v{V_LANE}")
    e(f"s_lshl_b32 s{P_SM0A}, s{S_WAVE}, 12")
    e(f"s_add_u32 s{P_SM0B}, s{P_SM0A}, 16384")
    e(f"s_lshl_b32 s{ST}, s{P_SNT}, 8")
    e(f"s_and_b32 s{ST + 3}, s{S_WAVE}, 1")
    e(f"s_lshl_b32 s{ST + 1}, s{ST + 3}, 15")
    e(f"s_add_u32 s{ST}, s{ST}, s{ST + 1}")
    e(f"v_lshlrev_b32 v{t0}, 11, v{vG}")
    e(f"v_add_u32 v{t0}, s{ST}, v{t0}")
    e(f"v_lshlrev_b32 v{t1}, 1, v{vG}")
    e(f"v_xor_b32 v{t1}, v{t1}, v{vi}")
    for j in range(4):
        if j & 1:
            e(f"v_xor_b32 v{t2}, 8, v{t1}")
            e(f"v_lshlrev_b32 v{t2}, 4, v{t2}")
        else:
            e(f"v_lshlrev_b32 v{t2}, 4, v{t1}")
        e(f"v_add_u32 v{t2}, v{t2}, v{t0}")
        e(f"v_add_u32 v{P_VBD + j}, {j * (8192 - 1024)}, v{t2}")
    e(f"s_mul_i32 s{ST}, s{P_SROLE}, 3")
    e(f"s_lshr_b32 s{ST + 1}, s{S_WAVE}, 1")
    e(f"s_add_u32 s{ST}, s{ST}, s{ST + 1}")
    e(f"s_lshl_b32 s{P_SOB}, s{ST}, 16")
    e(f"s_mul_i32 s{P_SOA}, s{P_SMT}, 144")
    e(f"s_add_u32 s{P_SOA}, s{P_SOA}, s{ST}")
    e(f"s_lshl_b32 s{P_SOA}, s{P_SOA}, 13")
    e(f"s_mov_b32 s{P_SSA}, {7 * 8192}")
    e(f"s_mov_b32 s{P_SSB}, {7 * 65536}")
    srd(a, ST + 4, S_PTR + 18, S_PTR + 19, 256)
    e(f"v_mov_b32 v12, 0")
    a.vmem(f"buffer_load_dwordx2 v[{V_TOK}:{V_TOK + 1}], v12, s[{ST + 4}:{ST + 7}], 0 offen sc1", "zc")
    for j in range(S - 1):
        e(f"s_add_u32 m0, s{P_SM0B}, {j * P_SLOT}")
        e("s_nop 0")
        for i in range(4):
            a.vmem(f"buffer_load_dwordx4 v{P_VBD + i}, s[{P_SW2}:{P_SW2 + 3}], s{P_SOB} offen offset:{1024 * i} lds", "eB")
        e(f"s_add_u32 s{P_SOB}, s{P_SOB}, s{P_SSB}")
    e(f"s_lshl_b32 s{ST + 3}, s{ST + 3}, 12")
    e(f"v_add_u32 v{P_VAD}, s{ST + 3}, v{V_L16}")
    e(f"s_lshl_b32 s{ST}, s{P_SMT}, 1")
    e(f"s_add_u32 s{ST}, s{ST}, s{P_SROLE}")
    e(f"s_lshl_b32 s{ST}, s{ST}, 8")
    e(f"s_add_u32 s{ST}, s{ST}, {FE_OFF}")
    e(f"v_and_b32 v{P_VFA}, 31, v{V_LANE}")
    e(f"v_lshlrev_b32 v{P_VFA}, 3, v{P_VFA}")
    e(f"v_add_u32 v{P_VFA}, s{ST}, v{P_VFA}")


def p2_issueA(a):
    e = a.e
    for j in range(OPT['S'] - 1):
        e(f"s_add_u32 m0, s{P_SM0A}, {j * P_SLOT}")
        e("s_nop 0")
        for i in range(4):
            e(f"buffer_load_dwordx4 v{P_VAD}, s[{P_SWS}:{P_SWS + 3}], s{P_SOA} offen offset:{1024 * i} {OPT['k2a']} lds")
        e(f"s_add_u32 s{P_SOA}, s{P_SOA}, s{P_SSA}")


def phase2(a):
    e = a.e
    S = OPT['S']
    n0 = OPT['n0']
    SLOT = P_SLOT
    SCR = S * SLOT
    SWAVE = S_WAVE
    ST = S_T
    SCNT = S_CNT
    SMT, SNT, SROLE, STILE = P_SMT, P_SNT, P_SROLE, P_STILE
    SOA, SOB, SOP, SM0A, SM0B = P_SOA, P_SOB, P_SOP, P_SM0A, P_SM0B
    SW2, SWO, SOUT = P_SW2, P_SWO, P_SOUT
    WS = f"s[{P_SWS}:{P_SWS + 3}]"
    NBASE = (S + 1) // 2
    VL, VL16, VBD = V_LANE, V_L16, P_VBD
    vi, vG = 6, 7
    VZ = 11
    VAD = 8
    VFL = 10
    VFA = 9
    VAR = 12
    VBR = 18
    VT = 30
    VG = 38
    VOMG = 42
    VEPS = 46
    VEPS = 48
    CG = 52
    CR = 60
    CKV = 68
    CW = 80
    VX = 192
    VY = 84
    AC = 128
    t0, t1, t2, t3 = VT, VT + 1, VT + 2, VT + 3

    def acc2(mt, nt):
        return AC + 16 * mt + 4 * nt

    def FA(j, b, mt):
        return 64 * (j % 2) + 32 * b + 4 * mt

    def FB(j, b, nt):
        return 64 * (j % 2) + 32 * b + 16 + 4 * nt

    def setflag(*lanes):
        e(f"s_mov_b64 exec, {sum(1 << l for l in lanes)}")
        a.vmem(f"buffer_store_dwordx2 v[{V_TOK}:{V_TOK + 1}], v0, {WS}, 0 offen sc1", "fl")
        e("s_mov_b64 exec, -1")

    VQ = 120
    VH = 16

    def fq_load():
        a.vmem(f"buffer_load_dwordx2 v[{VQ}:{VQ + 1}], v{VQ + 2}, {WS}, 0 offen sc1", "fq")

    a.label("L_p2_late")
    e(f"buffer_load_dwordx2 v[{VFL}:{VFL + 1}], v{VFA}, {WS}, 0 offen sc1")
    e("s_waitcnt vmcnt(0)")
    e(f"v_cmp_eq_u64 vcc, v[{VFL}:{VFL + 1}], v[{V_TOK}:{V_TOK + 1}]")
    e("s_nop 1")
    e("s_cmp_eq_u64 vcc, -1")
    e("s_cbranch_scc1 L_p2_fok")
    e(f"s_sleep {OPT.get('slp', 4)}")
    e("s_branch L_p2_late")
    a.label("L_p2_fok")
    p2_issueA(a)
    e("s_waitcnt vmcnt(0)")
    a.label("L_p2_go")
    stamp(a, 0)
    a.vm = ["old"]
    e(f"s_and_b32 s{ST}, s{SWAVE}, 1")
    e(f"s_lshl_b32 s{ST}, s{ST}, 12")
    e(f"v_add_u32 v{VAR}, s{ST}, v{VL16}")
    for k in range(1, NBASE):
        e(f"v_add_u32 v{VAR + k}, {65536 * k}, v{VAR}")
    e(f"v_lshlrev_b32 v{t0}, 2, v{vG}")
    e(f"v_lshrrev_b32 v{t1}, 2, v{vi}")
    e(f"v_add_u32 v{t0}, v{t0}, v{t1}")
    e(f"v_and_b32 v{t1}, 7, v{t0}")
    e(f"s_lshr_b32 s{ST}, s{SWAVE}, 1")
    e(f"s_lshl_b32 s{ST}, s{ST}, 2")
    e(f"v_xor_b32 v{t1}, s{ST}, v{t1}")
    e(f"v_lshlrev_b32 v{t0}, 8, v{t0}")
    e(f"v_and_b32 v{t2}, 3, v{vi}")
    e(f"v_lshlrev_b32 v{t2}, 3, v{t2}")
    e(f"v_add_u32 v{t0}, v{t0}, v{t2}")
    e(f"v_add_u32 v{t0}, 16384, v{t0}")
    for nt in range(4):
        e(f"v_xor_b32 v{t3}, {nt}, v{t1}")
        e(f"v_lshlrev_b32 v{t3}, 5, v{t3}")
        e(f"v_add_u32 v{VBR + nt}, v{t0}, v{t3}")
        for k in range(1, NBASE):
            e(f"v_add_u32 v{VBR + 4 * k + nt}, {65536 * k}, v{VBR + nt}")
    VBW = 26
    e(f"v_add_u32 v{VBW}, s{SM0B}, v{VL16}")
    e(f"v_add_u32 v{VBW + 1}, 65536, v{VBW}")
    e(f"v_and_b32 v{t0}, 1, v{vG}")
    e(f"v_lshlrev_b32 v{t0}, 10, v{t0}")
    e(f"v_lshrrev_b32 v{t1}, 1, v{vG}")
    e(f"v_lshlrev_b32 v{t1}, 8, v{t1}")
    e(f"v_lshlrev_b32 v{VH}, 4, v{vi}")
    e(f"v_add3_u32 v{VH}, v{VH}, v{t0}, v{t1}")
    stamp(a, 1)
    e(f"s_cmp_eq_u32 s{SROLE}, 0")
    e(f"s_cbranch_scc1 L_p2_r0")
    vm_save = list(a.vm)

    import math
    PERIOD = S * 4 // math.gcd(S, 4)

    def body(role):
        R = f"r{role}"
        o0 = OPT.get('o0', 5)
        na0 = n0 - o0
        assert 16 < na0 <= 32 and 5 <= o0 <= 11
        nact = na0 if role == 0 else 56 - na0
        N = nact + (o0 if role == 0 else 16 - o0)
        JO = nact - (S - 1)
        JP = N - OPT['pj']
        if role == 0:
            runs = {16: (5, 1, 7)}
        else:
            nl1 = 32 - na0
            runs = {16 + nl1: (2, 7, 14)}
            if nl1:
                runs[16] = (5 + 7 * (na0 - 16), 1, 7)

        def bperm(op):
            e(f"s_and_b32 s{ST + 9}, s{SWAVE}, 1")
            e(f"s_mul_i32 s{ST + 9}, s{ST + 9}, {-12 * 2048}")
            for j4 in range(4):
                e(f"{op} v{VBD + j4}, s{ST + 9}, v{VBD + j4}")
                if j4 < 3:
                    e(f"s_add_u32 s{ST + 9}, s{ST + 9}, {4 * 2048}")

        def newrun(j):
            if j == nact:
                def sw():
                    e(f"s_lshr_b32 s{ST + 11}, s{SWAVE}, 1")
                    if role:
                        e(f"s_add_u32 s{ST + 11}, s{ST + 11}, {2 * o0}")
                    e(f"s_lshl_b32 s{SOB}, s{ST + 11}, 16")
                    e(f"s_lshl_b32 s{SOA}, s{SMT}, 5")
                    e(f"s_add_u32 s{SOA}, s{SOA}, s{ST + 11}")
                    e(f"s_lshl_b32 s{SOA}, s{SOA}, 13")
                    e(f"s_add_u32 s{SOA}, s{SOA}, {OF_OFF}")
                    e(f"s_mov_b32 s{P_SSA}, 16384")
                    e(f"s_mov_b32 s{P_SSB}, 131072")
                    if role == 1:
                        bperm("v_subrev_u32")
                return [sw]
            if j in runs:
                c0, c1, st_ = runs[j]

                def sw():
                    r = p2_setrun(a, (c0, c1), st_)
                    e(f"s_lshl_b32 s{SOB}, s{r}, 16")
                    e(f"s_mul_i32 s{SOA}, s{SMT}, 144")
                    e(f"s_add_u32 s{SOA}, s{SOA}, s{r}")
                    e(f"s_lshl_b32 s{SOA}, s{SOA}, 13")
                    e(f"s_mov_b32 s{P_SSA}, {st_ * 8192}")
                    e(f"s_mov_b32 s{P_SSB}, {st_ * 65536}")
                    if st_ == 14:
                        bperm("v_add_u32")
                return [sw]
            return []

        def dmaA(j):
            f = newrun(j)
            f.append(lambda: e(f"s_add_u32 m0, s{SM0A}, {(j % S) * SLOT}"))
            for i in range(4):
                f.append(lambda i=i: a.vmem(
                    f"buffer_load_dwordx4 v{VAD}, {WS}, s{SOA} offen offset:{1024 * i} {OPT['k2a']} lds", f"D{j}"))
            f.append(lambda: e(f"s_add_u32 s{SOA}, s{SOA}, s{P_SSA}"))
            return f

        def dmaB(j):
            sr = SW2 if j < nact else SWO
            f = []
            k = j - (S - 1)
            if 0 <= k < OPT.get('pb', 0):
                sl = j % S
                for i in range(4):
                    f.append(lambda i=i: e(
                        f"ds_write_b128 v{VBW + sl // 2}, {ar(128 + 16 * k + 4 * i)} offset:{(sl % 2) * SLOT + 1024 * i}"))
                return f
            f.append(lambda: e(f"s_add_u32 m0, s{SM0B}, {(j % S) * SLOT}"))
            for i in range(4):
                f.append(lambda i=i: a.vmem(
                    f"buffer_load_dwordx4 v{VBD + i}, s[{sr}:{sr + 3}], s{SOB} offen offset:{1024 * i} lds", f"D{j}"))
            f.append(lambda: e(f"s_add_u32 s{SOB}, s{SOB}, s{P_SSB}"))
            return f

        def reads(j):
            sl = j % S
            k, so = sl // 2, (sl % 2) * SLOT
            f = []
            for q in range(4):
                for b in range(2):
                    f.append(lambda b=b, q=q: e(
                        f"ds_read_b128 {ar(FA(j, b, q))}, v{VAR + k} offset:{so + 8192 * b + 1024 * q}"))
                    for ins in range(2):
                        f.append(lambda b=b, q=q, ins=ins: e(
                            f"ds_read_b64_tr_b16 {ar(FB(j, b, q) + 2 * ins, 2)}, v{VBR + 4 * k + q} offset:{so + 8192 * b + 4096 * ins}"))
            return f

        late = []
        for mp in range(2):
            late.append(f"buffer_store_dwordx4 {vr(240 + 4 * mp)}, v{VH}, {WS}, s{P_SL + 2} offen offset:{2048 * mp} sc1")
        for g_, base in enumerate((192, 224)):
            for mt in range(4):
                late.append(f"buffer_store_dwordx4 {vr(base + 4 * mt)}, v{VL16}, {WS}, s{P_SL + g_} offen offset:{1024 * mt} sc1")
        TR = OPT.get('tr', 3)
        TRS = OPT.get('trs', 0)
        NTR = -(-10 // TR) + TRS
        JFQ = OPT.get('jfq', 2)

        e("s_barrier")
        stamp(a, 2)
        VK = 48
        PD, PO, PEPS, PR = 48, 96, 112, 116

        def poll(lab, vv, reload):
            a.label(f"L_p2{R}_{lab}w")
            e(f"v_cmp_eq_u64 vcc, v[{vv}:{vv + 1}], v[{V_TOK}:{V_TOK + 1}]")
            e("s_nop 1")
            e("s_cmp_eq_u64 vcc, -1")
            e(f"s_cbranch_scc1 L_p2{R}_{lab}ok")
            e("s_sleep 4")
            sv = list(a.vm)
            reload()
            a.vm = sv
            e("s_waitcnt vmcnt(0)")
            e(f"s_branch L_p2{R}_{lab}w")
            a.label(f"L_p2{R}_{lab}ok")

        def fl_load(tag="F"):
            a.vmem(f"buffer_load_dwordx2 v[{VFL}:{VFL + 1}], v{VFA}, {WS}, 0 offen sc1", tag)

        def red_guard(lab):
            e(f"s_cmp_eq_u32 s{P_SEARLY}, 0")
            e(f"s_cbranch_scc1 L_p2{R}_{lab}")

        J1 = OPT.get('j1', 4)
        J2 = OPT.get('j2', 12)

        def pre(j):
            if j == JFQ:
                a.wait(["old"])
            if j == NTR + 2:
                a.wait(["sl"])
            if j == 16 - S + 1:
                a.wait(["FL"])
                poll("l", VFL, fl_load)
            if j == J2 + 2:
                a.wait(["fq"])
                poll("k", VQ, fq_load)
            if j == J2 + 4:
                a.wait(["pq"])
            if j == J2 + 8:
                a.wait(["ost"])
            if j == JO:
                a.wait(["F"])
                poll("o", VFL, fl_load)
            if role == 1 and j == JP:
                a.wait(["F2"])
                poll("p", VFL, fl_load)

        def extra(j):
            if j == JFQ:
                setflag(1)
            if j == J1:
                e(f"s_and_b32 s{ST}, s2, 3")
                e(f"s_cmp_eq_u32 s{ST}, s{SWAVE}")
                e(f"s_cselect_b32 s{P_SEARLY}, 1, 0")
                e(f"s_cmp_lt_u32 s2, 192")
                e(f"s_cselect_b32 s{P_SEARLY}, s{P_SEARLY}, 0")
                e(f"s_mul_i32 s{P_SHD}, s2, 171")
                e(f"s_lshr_b32 s{P_SHD}, s{P_SHD}, 10")
                e(f"s_min_u32 s{P_SHD}, s{P_SHD}, 31")
                e(f"s_lshr_b32 s{ST}, s{P_SHD}, 1")
                e(f"s_lshl_b32 s{ST}, s{ST}, 9")
                e(f"s_add_u32 s{ST}, s{ST}, {FQ_OFF}")
                e(f"v_and_b32 v{VQ + 2}, 31, v{VL}")
                e(f"v_lshlrev_b32 v{VQ + 2}, 3, v{VQ + 2}")
                e(f"v_add_u32 v{VQ + 2}, s{ST}, v{VQ + 2}")
                fq_load()
            if j == NTR + 2:
                setflag(4)
                srd(a, SOUT, S_PTR + 16, S_PTR + 17, 2048 * 1024 * 2)
            if j == 16 - S - 1:
                e(f"s_lshl_b32 s{ST}, s{SMT}, 9")
                e(f"s_add_u32 s{ST}, s{ST}, {FA_OFF}")
                e(f"v_lshlrev_b32 v{VFA}, 3, v{VL}")
                e(f"v_add_u32 v{VFA}, s{ST}, v{VFA}")
                fl_load("FL")
            if j == 16 - S + 2:
                e(f"v_lshlrev_b32 v{t1}, 2, v{vi}")
                e(f"s_lshl_b32 s{ST}, s{SMT}, 9")
                e(f"s_and_b32 s{ST + 1}, s{SWAVE}, 1")
                e(f"s_lshl_b32 s{ST + 1}, s{ST + 1}, 8")
                e(f"s_add_u32 s{ST}, s{ST}, s{ST + 1}")
                e(f"s_add_u32 s{ST}, s{ST}, {G_OFF}")
                for i in range(4):
                    a.vmem(f"buffer_load_dword v{VG + i}, v{t1}, {WS}, s{ST} offen offset:{64 * i}", "g")
            if j == J2:
                e(f"s_and_b32 s{P_SHD}, s2, 31")
                e(f"s_lshr_b32 s{P_SM2}, s2, 5")
                e(f"s_lshr_b32 s{ST}, s{P_SHD}, 1")
                e(f"s_lshl_b32 s{ST}, s{ST}, 4")
                e(f"s_add_u32 s{ST}, s{ST}, s{P_SM2}")
                e(f"s_lshl_b32 s{ST}, s{ST}, 2")
                e(f"s_add_u32 s{ST}, s{ST}, s{SWAVE}")
                e(f"s_lshl_b32 s{ST}, s{ST}, 3")
                e(f"s_add_u32 s{ST}, s{ST}, {FQ_OFF + 256}")
                e(f"s_lshl_b32 s{ST + 1}, s{P_SHD}, 6")
                e(f"s_add_u32 s{ST + 1}, s{ST + 1}, {FK_OFF}")
                e(f"v_lshlrev_b32 v{VQ + 2}, 3, v{VL}")
                e(f"v_add_u32 v{VQ + 2}, s{ST + 1}, v{VQ + 2}")
                e(f"v_mov_b32 v{t0}, s{ST}")
                e(f"v_cmp_gt_u32 s[{ST + 2}:{ST + 3}], 6, v{VL}")
                e("s_nop 1")
                e(f"v_cndmask_b32 v{VQ + 2}, v{t0}, v{VQ + 2}, s[{ST + 2}:{ST + 3}]")
                e(f"s_lshl_b32 s{P_SM2}, s{P_SM2}, 1")
                e(f"s_lshr_b32 s{ST}, s{SWAVE}, 1")
                e(f"s_add_u32 s{P_SM2}, s{P_SM2}, s{ST}")
                fq_load()
            if j == J2 + 2:
                e(f"s_mul_i32 s{ST}, s{P_SHD}, 3072")
                e(f"s_add_u32 s{ST}, s{ST}, {KVF_OFF}")
                e(f"v_lshlrev_b32 v{t0}, 3, v{VL}")
                for i in range(6):
                    a.vmem(f"buffer_load_dwordx2 {ar(144 + 2 * i, 2)}, v{t0}, {WS}, s{ST} offen offset:{512 * i}", "pq")
                e(f"s_mul_i32 s{ST}, s{P_SM2}, 144")
                e(f"s_add_u32 s{ST}, s{ST}, s{P_SHD}")
                e(f"s_add_u32 s{ST}, s{ST}, 112")
                e(f"s_lshl_b32 s{ST}, s{ST}, 13")
                for i in range(4):
                    a.vmem(f"buffer_load_dwordx4 {ar(128 + 4 * i)}, v{VAD}, {WS}, s{ST} offen offset:{1024 * i}", "pq")
                e(f"s_lshl_b32 s{SOP}, s{P_SM2}, 5")
                e(f"s_add_u32 s{SOP}, s{SOP}, s{P_SHD}")
                e(f"s_lshl_b32 s{SOP}, s{SOP}, 13")
                e(f"s_add_u32 s{SOP}, s{SOP}, {OF_OFF}")
                for r in range(4):
                    e(f"v_mov_b32 v{PEPS + r}, {EPS_HEX}")
            if j == J2 + 5:
                for i in range(4):
                    e(f"v_rcp_f32 v{PR + i}, v{PD + 12 * i + 8}")
                e("s_nop 0")
                for i in range(4):
                    d = PD + 12 * i
                    for q in range(8):
                        e(f"v_mul_f32 v{d + q}, v{PR + i}, v{d + q}")
                    o = PO + 4 * i
                    for q in range(4):
                        e(f"v_cvt_pk_bf16_f32 v{o + q}, v{d + 2 * q}, v{d + 2 * q + 1}")
                    a.vmem(f"buffer_store_dwordx4 {vr(o)}, v{VAD}, {WS}, s{SOP} offen offset:{1024 * i} sc1", "ost")
            if j == J2 + 8:
                setflag(2)
            if j == JO - OPT.get('fod', 2):
                assert j > J2 + 8
                e(f"s_lshl_b32 s{ST}, s{SMT}, 9")
                e(f"s_add_u32 s{ST}, s{ST}, {FO_OFF}")
                if role == 0:
                    e(f"v_min_u32 v{VFA}, {4 * o0 - 1}, v{VL}")
                else:
                    e(f"v_max_u32 v{VFA}, {4 * o0}, v{VL}")
                e(f"v_lshlrev_b32 v{VFA}, 3, v{VFA}")
                e(f"v_add_u32 v{VFA}, s{ST}, v{VFA}")
                fl_load("F")
            if role == 1 and j == JP - 1:
                e(f"s_lshl_b32 s{ST}, s{STILE}, 8")
                e(f"s_lshl_b32 s{ST + 1}, s{SWAVE}, 3")
                e(f"s_add_u32 s{ST}, s{ST}, s{ST + 1}")
                e(f"s_add_u32 s{ST}, s{ST}, {FP_OFF}")
                e(f"v_mov_b32 v{VFA}, s{ST}")
                fl_load("F2")
            if role == 1 and j == JP:
                e(f"s_lshl_b32 s{ST}, s{STILE}, 16")
                e(f"s_lshl_b32 s{ST + 1}, s{SWAVE}, 13")
                e(f"s_add_u32 s{ST}, s{ST}, s{ST + 1}")
                e(f"s_add_u32 s{ST}, s{ST}, {PART_OFF}")
                for q in range(8):
                    if q == 4:
                        e(f"s_add_u32 s{ST}, s{ST}, 4096")
                    a.vmem(f"buffer_load_dwordx4 {vr(VY + 4 * q)}, v{VL16}, {WS}, s{ST} offen offset:{1024 * (q & 3)} sc1", "PT")

        def post(j):
            if j == J1 + 1:
                red_guard("nr1")
                n_ = a.vm_count(["fq"], drop=False)
                e(f"s_waitcnt vmcnt({n_})")
                poll("q", VQ, fq_load)
                e(f"s_lshr_b32 s{ST}, s{P_SHD}, 1")
                e(f"s_mul_i32 s{ST}, s{ST}, 84")
                e(f"s_add_u32 s{ST}, s{ST}, s2")
                e(f"s_lshl_b32 s{ST}, s{ST}, 10")
                e(f"s_add_u32 s{ST}, s{ST}, {KVP_OFF}")
                for r8 in range(8):
                    e(f"buffer_load_dwordx4 {vr(VK + 4 * r8)}, v{VL16}, {WS}, s{ST} offen")
                    if r8 < 7:
                        e(f"s_add_u32 s{ST}, s{ST}, 12288")
                a.label(f"L_p2{R}_nr1")
                a.mark("r1")
            if j == J1 + 3:
                red_guard("nr2")
                n_ = a.vm_count(["#r1"], drop=False)
                if n_ is not None:
                    e(f"s_waitcnt vmcnt({n_})")
                for st_ in (1, 2, 4):
                    for r8 in range(0, 8, 2 * st_):
                        for q in range(2):
                            b0 = VK + 4 * r8 + 2 * q
                            e(f"v_pk_add_f32 {vr(b0, 2)}, {vr(b0, 2)}, {vr(b0 + 4 * st_, 2)}")
                e(f"v_cvt_pk_bf16_f32 v{VK}, v{VK}, v{VK + 1}")
                e(f"v_cvt_pk_bf16_f32 v{VK + 1}, v{VK + 2}, v{VK + 3}")
                e(f"s_mul_i32 s{ST}, s{P_SHD}, 6")
                e(f"s_sub_u32 s{ST}, s2, s{ST}")
                e(f"s_cmp_ge_u32 s{ST}, 3")
                e(f"s_cselect_b32 s{ST + 1}, 1, 0")
                e(f"s_mul_i32 s{ST + 2}, s{ST + 1}, 3")
                e(f"s_sub_u32 s{ST}, s{ST}, s{ST + 2}")
                e(f"s_mul_i32 s{ST + 2}, s{P_SHD}, 3")
                e(f"s_add_u32 s{ST}, s{ST}, s{ST + 2}")
                e(f"s_lshl_b32 s{ST}, s{ST}, 10")
                e(f"s_lshl_b32 s{ST + 1}, s{ST + 1}, 9")
                e(f"s_add_u32 s{ST}, s{ST}, s{ST + 1}")
                e(f"s_add_u32 s{ST}, s{ST}, {KVF_OFF}")
                e(f"v_lshlrev_b32 v{t0}, 3, v{VL}")
                e(f"buffer_store_dwordx2 {vr(VK, 2)}, v{t0}, {WS}, s{ST} offen sc1")
                a.label(f"L_p2{R}_nr2")
                a.mark("r2")
            if j == J1 + 5:
                red_guard("nr3")
                n_ = a.vm_count(["#r2"], drop=False)
                if n_ is not None:
                    e(f"s_waitcnt vmcnt({n_})")
                e(f"s_mov_b64 exec, {1 << 5}")
                e(f"buffer_store_dwordx2 v[{V_TOK}:{V_TOK + 1}], v0, {WS}, 0 offen sc1")
                e("s_mov_b64 exec, -1")
                a.label(f"L_p2{R}_nr3")

        def interval(j):
            if DIAG and OPT.get('ts2'):
                if j == 0:
                    e("s_mov_b32 s74, 0")
                e("s_memrealtime s[76:77]")
                e("s_waitcnt lgkmcnt(0)")
                e("s_mov_b32 m0, s74")
                e("s_nop 0")
                e(f"v_writelane_b32 v{VT + 7}, s76, m0")
                e("s_add_u32 s74, s74, 1")
            main = []
            if j >= 1:
                for mt in range(4):
                    for nt in range(4):
                        D = vr(acc2(mt, nt) + (64 if j - 1 >= nact else 0))
                        for b in range(2):
                            C = "0" if (j in (1, nact + 1) and b == 0) else D
                            main.append(f"v_mfma_f32_16x16x32_bf16 {D}, {ar(FB(j - 1, b, nt))}, {ar(FA(j - 1, b, mt))}, {C}")
            pre(j)
            if j == J2 + 4:
                pm = []
                for i in range(4):
                    d = PD + 12 * i
                    pq = ar(128 + 4 * i)
                    pm += [f"v_mfma_f32_16x16x32_bf16 {vr(d + 8)}, {ar(152)}, {pq}, {vr(PEPS)}",
                           f"v_mfma_f32_16x16x32_bf16 {vr(d)}, {ar(144)}, {pq}, 0",
                           f"v_mfma_f32_16x16x32_bf16 {vr(d + 4)}, {ar(148)}, {pq}, 0"]
                main = pm + main
            rd = reads(j) if j < N else []
            dm = (dmaA(j + S - 1) + dmaB(j + S - 1)) if j + S - 1 < N else []
            for x in (late[TR * (j - TRS): TR * (j - TRS) + TR] if j >= TRS else []):
                dm.append(lambda x=x: a.vmem(x, "sl"))
            streams = []
            if nact + 1 <= j <= nact + 4:
                mt = j - (nact + 1)
                it = []
                if mt == 0:
                    a.wait(["g"])
                it.append(lambda mt=mt: e(f"v_sub_f32 v{VOMG + mt}, 1.0, v{VG + mt}"))
                for q in range(16):
                    it.append(lambda mt=mt, q=q: e(f"v_mul_f32 v{acc2(mt, 0) + q}, v{VOMG + mt}, v{acc2(mt, 0) + q}"))
                streams.append((it, 10, 30))
            n = max(len(main), 1)
            ex = capture(a, lambda: extra(j), chunk=1)
            if ex:
                streams.append((ex, 1, min(n * 0.97, 1 + 1.2 * len(ex))))
            schedule(a, main, [(rd, 0, n * 0.85), (dm, 0.5, n * 0.95)] + streams)
            post(j)
            if j < N:
                a.wait([f"D{j + 1}"] if j + 1 < N else [], lgkm=True)
                if j + 1 < N:
                    e("s_barrier")

        iters = []
        for j in range(N + 1):
            n_ = len(a.lines)
            if j == 4:
                stamp(a, 3)
            if j == nact:
                stamp(a, 4)
            interval(j)
            iters.append(a.lines[n_:])
            del a.lines[n_:]
        fold_loops(a, iters, PERIOD, SCNT, f"p2{R}")
        stamp(a, 5)
        if role == 0:
            e(f"s_lshl_b32 s{ST}, s{STILE}, 16")
            e(f"s_lshl_b32 s{ST + 1}, s{SWAVE}, 13")
            e(f"s_add_u32 s{ST}, s{ST}, s{ST + 1}")
            e(f"s_add_u32 s{ST}, s{ST}, {PART_OFF}")
            e("s_nop 7")
        else:
            vo = VT + 4
            e(f"v_lshlrev_b32 v{t2}, 11, v{vi}")
            e(f"v_bfe_u32 v{t3}, v{VL}, 4, 1")
            e(f"v_lshlrev_b32 v{t3}, 5, v{t3}")
            e(f"v_add_u32 v{t2}, v{t2}, v{t3}")
            e(f"v_lshrrev_b32 v{t3}, 5, v{VL}")
            e(f"v_lshlrev_b32 v{t3}, 4, v{t3}")
            e(f"v_add_u32 v{vo}, v{t2}, v{t3}")
            e(f"s_lshl_b32 s{ST}, s{SMT}, 7")
            e(f"s_and_b32 s{ST + 1}, s{SWAVE}, 1")
            e(f"s_lshl_b32 s{ST + 1}, s{ST + 1}, 6")
            e(f"s_add_u32 s{ST}, s{ST}, s{ST + 1}")
            e(f"s_lshl_b32 s{ST}, s{ST}, 11")
            e(f"s_lshl_b32 s{ST + 1}, s{SNT}, 8")
            e(f"s_add_u32 s{ST}, s{ST}, s{ST + 1}")
            e(f"s_lshr_b32 s{ST + 1}, s{SWAVE}, 1")
            e(f"s_lshl_b32 s{ST + 1}, s{ST + 1}, 7")
            e(f"s_add_u32 s{ST}, s{ST}, s{ST + 1}")
            a.wait(["PT"])
        for mt in range(4):
            sel = "op_sel:[1,0,0] op_sel_hi:[1,1,1]" if mt & 1 else "op_sel_hi:[0,1,1]"
            for q in range(8):
                b0 = acc2(mt, 0) + 2 * q
                e(f"v_pk_fma_f32 {vr(b0, 2)}, {vr(VG + (mt & 2), 2)}, {vr(b0 + 64, 2)}, {vr(b0, 2)} {sel}")
            if role == 0:
                for h2 in range(2):
                    q = 2 * mt + h2
                    b0 = AC + 8 * q
                    for r in range(4):
                        e(f"v_cvt_pk_bf16_f32 v{b0 + r}, v{b0 + 2 * r}, v{b0 + 2 * r + 1}")
                    e(f"buffer_store_dwordx4 {vr(b0)}, v{VL16}, {WS}, s{ST} offen offset:{1024 * (q & 3)} sc1")
                    if q == 3:
                        e(f"s_add_u32 s{ST}, s{ST}, 4096")
            else:
                for q in range(8):
                    p0 = VY + 8 * mt + q
                    u = 48 + 2 * q
                    e(f"v_lshlrev_b32 v{u}, 16, v{p0}")
                    e(f"v_and_b32 v{u + 1}, 0xffff0000, v{p0}")
                for q in range(8):
                    b0 = acc2(mt, 0) + 2 * q
                    e(f"v_pk_add_f32 {vr(b0, 2)}, {vr(b0, 2)}, {vr(48 + 2 * q, 2)}")
                for pr in range(2):
                    b0 = acc2(mt, 2 * pr)
                    for q in range(4):
                        e(f"v_cvt_pk_bf16_f32 v{b0 + q}, v{b0 + 2 * q}, v{b0 + 2 * q + 1}")
                e("s_nop 1")
                for pr in range(2):
                    b0 = acc2(mt, 2 * pr)
                    e(f"v_permlane16_swap_b32 v{b0}, v{b0 + 2}")
                    e(f"v_permlane16_swap_b32 v{b0 + 1}, v{b0 + 3}")
                for pr in range(2):
                    b0 = acc2(mt, 2 * pr)
                    e(f"buffer_store_dwordx4 {vr(b0)}, v{vo}, s[{SOUT}:{SOUT + 3}], s{ST} offen offset:{64 * pr} {OPT.get('ost', '')}")
                if mt < 3:
                    e(f"s_add_u32 s{ST}, s{ST}, 32768")
        if role == 0:
            e("s_waitcnt vmcnt(0)")
            setflag(3)
        stamp(a, 6)
        if DIAG and OPT.get('ts2'):
            e(f"s_mov_b32 s76, s{S_PTR + 20}")
            e(f"s_and_b32 s77, s{S_PTR + 21}, 0xffff")
            e(f"s_mov_b32 s78, 0x4000000")
            e(f"s_mov_b32 s79, 0x20000")
            e(f"s_lshl_b32 s75, s2, 2")
            e(f"s_add_u32 s75, s75, s{S_WAVE}")
            e(f"s_lshl_b32 s75, s75, 8")
            e(f"s_add_u32 s75, s75, {DIAG_OFF + 0x200000}")
            e(f"v_lshlrev_b32 v{VT}, 2, v{VL}")
            e(f"buffer_store_dword v{VT + 7}, v{VT}, s[76:79], s75 offen")
        if DIAG:
            e("s_waitcnt vmcnt(0)")
        stamp(a, 7)
        stamp_dump(a, 1, 8, SWAVE, S_PTR + 20, S_PTR + 21, VT + 5)
        e("s_endpgm")

    body(1)
    a.label("L_p2_r0")
    a.vm = vm_save
    body(0)


def fix_hazards(lines):
    out = []
    for i, ln in enumerate(lines):
        out.append(ln)
        if " m0," in ln and i + 1 < len(lines) and lines[i + 1].rstrip().endswith("lds"):
            out.append("  s_nop 0")
    return out


def gen_spin():
    a = Asm()
    e = a.e
    spec = OPT['spin']
    A_, B_, M = spec.split(",")
    a.lines.append(".globl spin_kernel\n.p2align 8\n.type spin_kernel,@function\nspin_kernel:")
    e("s_cmp_lg_u32 s2, 0")
    e("s_cbranch_scc1 L_spin_end")
    e("s_load_dwordx2 s[4:5], s[0:1], 80")
    e("v_lshlrev_b32 v1, 7, v0")
    e("s_waitcnt lgkmcnt(0)")
    e("s_mov_b32 s8, s4\ns_and_b32 s9, s5, 0xffff\ns_mov_b32 s10, 0x4000000\ns_mov_b32 s11, 0x20000")

    def red(sp, sdst):
        k, st, op = sp.split(".")
        base = DIAG_OFF + int(k) * 0x100000 + 8 * int(st) + 4
        for i in range(16):
            e(f"s_mov_b32 s12, {base + i * 8192}")
            e(f"buffer_load_dword v{8 + i}, v1, s[8:11], s12 offen")
        e("s_waitcnt vmcnt(0)")
        for i in range(1, 16):
            e(f"v_{op}_u32 v8, v8, v{8 + i}")
        e("s_nop 1")
        e(f"v_readlane_b32 s{sdst}, v8, 0")
        for l in range(1, 64):
            e(f"v_readlane_b32 s13, v8, {l}")
            e("s_nop 0")
            e(f"s_{op}_u32 s{sdst}, s{sdst}, s13")
    red("0.0.min", 20)
    red(A_, 21)
    red(B_, 22)
    e("s_sub_u32 s22, s22, s21")
    e(f"s_mul_i32 s22, s22, {M}")
    e("s_add_u32 s22, s22, 12000")
    e("s_min_u32 s22, s22, 90000")
    a.label("L_spin")
    e("s_memrealtime s[14:15]")
    e("s_waitcnt lgkmcnt(0)")
    e("s_sub_u32 s16, s14, s20")
    e("s_cmp_lt_u32 s16, s22")
    e("s_cbranch_scc1 L_spin")
    a.label("L_spin_end")
    e("s_endpgm")
    return a.lines


def kd(name, nfv, accum):
    return f""".amdhsa_kernel {name}
  .amdhsa_next_free_vgpr {nfv}
  .amdhsa_next_free_sgpr 102
  .amdhsa_accum_offset {accum}
  .amdhsa_group_segment_fixed_size 0
  .amdhsa_kernarg_size 88
  .amdhsa_user_sgpr_count 2
  .amdhsa_user_sgpr_kernarg_segment_ptr 1
  .amdhsa_system_sgpr_workgroup_id_x 1
.end_amdhsa_kernel"""


def main(path):
    hdr = open(f"cdna_kernels/{NAME}.s.ref").read().split("; Override launch")[0]
    out = [hdr.rstrip("\n")]
    kn = NAME + "_kernel"
    if OPT.get('spin'):
        out.append(f"; @launch kernel={kn} grid=(256,1,1) block=(256,1,1) lds={K2_LDS()}")
        out.append("; @launch kernel=spin_kernel grid=(1,1,1) block=(64,1,1) lds=0")
    else:
        out.append(f"; @launch grid=(256,1,1) block=(256,1,1) lds={K2_LDS()}")
    out.append('.amdgcn_target "amdgcn-amd-amdhsa--gfx950"')
    out.append(".text")
    out += [ln.replace("KNAME", kn) for ln in fix_hazards(gen_k1())]
    if OPT.get('spin'):
        out += gen_spin()
    out.append('.section .rodata,"a"')
    if OPT.get('spin'):
        out.append(".p2align 6")
        out.append(kd("spin_kernel", 32, 32))
    out.append(".p2align 6")
    out.append(kd(kn, 512, 256))
    open(path, "w").write("\n".join(out) + "\n")


if __name__ == "__main__":
    if "--dbgout" in sys.argv:
        DBGOUT = True
        sys.argv.remove("--dbgout")
    if "--diag" in sys.argv:
        DIAG = True
        sys.argv.remove("--diag")
    for arg in list(sys.argv):
        if "=" in arg:
            k_, v_ = arg.split("=")
            OPT[k_] = int(v_) if v_.isdigit() else v_.replace("+", " ")
            sys.argv.remove(arg)
    main(sys.argv[1] if len(sys.argv) > 1 else f"cdna_kernels/{NAME}.s")
```

```python
import sys

NAME = "gated_mix__linear_attn_block__dense_activation_mish__prompt"

AF_OFF = 0
AF_BYTES = 16 * 144 * 8 * 1024
KVP_OFF = AF_BYTES
KVP_BYTES = 16 * 8 * 12 * 1024
KVF_OFF = KVP_OFF + KVP_BYTES
KVF_BYTES = 32 * 3 * 1024
G_OFF = KVF_OFF + KVF_BYTES
PART_OFF = G_OFF + 8192
OF_OFF = PART_OFF + 128 * 65536
FLG_OFF = OF_OFF + 16 * 32 * 8192
FE_OFF = FLG_OFF - 0 + 32768 + 128 * 256
FA_OFF = FLG_OFF
FQ_OFF = FA_OFF + 8192
FO_OFF = FQ_OFF + 8192
FP_OFF = FO_OFF + 8192
FK_OFF = FE_OFF + 8192
WS_USED = FK_OFF + 2048
assert FP_OFF + 128 * 256 <= FE_OFF
V_TOK = 14

DIAG = False
DBGOUT = False
OPT = dict(k1a="", k1b="", k2a="", k2b="", st="sc1", ost="sc1", pf=2, xpf=0, n0=34, o0=6, tr=5, cpf=2, map=0, fepos=1, S=4, pbf=1, pj=1, pprio=0, cprio=0, rdend=26)
DIAG_OFF = 0x2000000
EPS_HEX = "0x358637bd"
L2E_HEX = "0x3fb8aa3b"


class Asm:
    def __init__(self):
        self.lines = []
        self.vm = []

    def e(self, s):
        for ln in s.split("\n"):
            self.lines.append("  " + ln.strip())

    def label(self, s):
        self.lines.append(s + ":")

    def vmem(self, s, tag):
        self.e(s)
        self.vm.append(tag)

    def mark(self, tag):
        self.vm.append("#" + tag)

    def vm_count(self, tags, drop=True):
        idx = -1
        for i, t in enumerate(self.vm):
            if t in tags:
                idx = i
        if idx < 0:
            return None
        n = sum(1 for t in self.vm[idx + 1:] if not t.startswith("#"))
        if drop:
            self.vm = self.vm[idx + 1:]
        assert n <= 63, n
        return n

    def wait(self, tags=(), lgkm=False):
        n = self.vm_count(tags) if tags else None
        parts = []
        if n is not None:
            parts.append(f"vmcnt({n})")
        if lgkm:
            parts.append("lgkmcnt(0)")
        if parts:
            self.e("s_waitcnt " + " ".join(parts))


def stamp(a, idx, sbase=80):
    if not DIAG:
        return
    a.e(f"s_memtime s[{sbase - 4}:{sbase - 3}]")
    a.e(f"s_memrealtime s[{sbase - 2}:{sbase - 1}]")
    a.e("s_waitcnt lgkmcnt(0)")
    a.e(f"s_mov_b32 s{sbase + 2 * idx}, s{sbase - 4}")
    a.e(f"s_mov_b32 s{sbase + 2 * idx + 1}, s{sbase - 2}")


def stamp_dump(a, kidx, n, swave, sptr_lo, sptr_hi, vtmp, sbase=80):
    if not DIAG:
        return
    e = a.e
    e(f"s_mov_b32 s{sbase - 4}, s{sptr_lo}")
    e(f"s_and_b32 s{sbase - 3}, s{sptr_hi}, 0xffff")
    e(f"s_mov_b32 s{sbase - 2}, 0x4000000")
    e(f"s_mov_b32 s{sbase - 1}, 0x20000")
    e(f"s_lshl_b32 s75, s2, 2")
    e(f"s_add_u32 s75, s75, s{swave}")
    e(f"s_lshl_b32 s75, s75, 7")
    e(f"s_add_u32 s75, s75, {DIAG_OFF + kidx * 0x100000}")
    e(f"v_mov_b32 v{vtmp}, 0")
    e("s_mov_b64 exec, 1")
    for i in range(2 * n):
        e(f"v_mov_b32 v{vtmp + 1}, s{sbase + i}")
        e(f"buffer_store_dword v{vtmp + 1}, v{vtmp}, s[{sbase - 4}:{sbase - 1}], s75 offen offset:{4 * i}")
        e("s_nop 1")
    e("s_mov_b64 exec, -1")
    if DBGOUT:
        lab = f"L_dbg_{len(a.lines)}"
        e(f"s_cmp_lg_u32 s2, 1")
        e(f"s_cbranch_scc1 {lab}")
        e(f"s_cmp_lg_u32 s{swave}, 0")
        e(f"s_cbranch_scc1 {lab}")
        e(f"s_mov_b32 s{sbase - 4}, s{sptr_lo - 2}")
        e(f"s_and_b32 s{sbase - 3}, s{sptr_hi - 2}, 0xffff")
        e(f"s_mov_b32 s{sbase - 2}, 256")
        e("s_mov_b64 exec, 1")
        for i in range(n):
            e(f"v_mov_b32 v{vtmp + 1}, s{sbase + 2 * i + 1}")
            e(f"buffer_store_dword v{vtmp + 1}, v{vtmp}, s[{sbase - 4}:{sbase - 1}], 0 offen offset:{4 * i + 32 * kidx}")
            e("s_nop 1")
        e("s_mov_b64 exec, -1")
        a.label(lab)


def vr(b, n=4):
    return f"v[{b}:{b + n - 1}]"


def ar(b, n=4):
    return f"a[{b}:{b + n - 1}]"


def interleave(a, mf, fillers, start=0, end=None):
    n = len(mf)
    if end is None:
        end = n
    nf = len(fillers)
    pos = [start + (j * (end - start)) // max(nf, 1) for j in range(nf)]
    j = 0
    for m in range(n):
        a.e(mf[m])
        while j < nf and pos[j] <= m:
            f = fillers[j]
            f()
            j += 1
    while j < nf:
        fillers[j]()
        j += 1


def capture(a, fn, chunk=2):
    n0_ = len(a.lines)
    vm0 = list(a.vm)
    fn()
    lines = a.lines[n0_:]
    tags = a.vm[len(vm0):]
    del a.lines[n0_:]
    a.vm = vm0
    items = []
    cur = []
    depth = 0
    ti = 0
    for ln in lines:
        cur.append(ln)
        if "s_cbranch" in ln or "s_mov_b64 exec, " in ln and "-1" not in ln or "s_cmp" in ln or "s_getpc" in ln or "s_sub_u32" in ln and "KNAME" in ln:
            depth = 1
        if ln.endswith(":") and not ln.startswith(" ") and "L_pc" not in ln or "s_mov_b64 exec, -1" in ln and not any("s_cbranch" in x for x in cur) or "s_cselect" in ln or "s_subb_u32" in ln:
            depth = 0
        if depth == 0 and len(cur) >= chunk:
            items.append(cur)
            cur = []
    if cur:
        items.append(cur)
    out = []
    for it in items:
        guarded = any("s_cbranch" in x for x in it)
        nv = 0 if guarded else sum(1 for x in it if x.strip().startswith(("buffer_", "global_")))
        tg = tags[ti:ti + nv]
        ti += nv

        def emit(it=it, tg=tg):
            a.lines.extend(it)
            a.vm.extend(tg)
        out.append(emit)
    rest = tags[ti:]
    assert all(t.startswith("#") for t in rest), (ti, tags)
    if rest:
        out.append(lambda rest=rest: a.vm.extend(rest))
    return out


def srd(a, d, lo, hi, nbytes, bias=0):
    if bias:
        a.e(f"s_sub_u32 s{d}, s{lo}, {bias}")
        a.e(f"s_subb_u32 s{d + 1}, s{hi}, 0")
        a.e(f"s_and_b32 s{d + 1}, s{d + 1}, 0xffff")
    else:
        a.e(f"s_mov_b32 s{d}, s{lo}")
        a.e(f"s_and_b32 s{d + 1}, s{hi}, 0xffff")
    a.e(f"s_mov_b32 s{d + 2}, {nbytes + bias}")
    a.e(f"s_mov_b32 s{d + 3}, 0x20000")


K1_BSLOT = 13312
K1_AREA = 3328
K1_ABASE = 4 * K1_BSLOT
K1_LDS = K1_ABASE + 4 * 16384
ACC0 = 48


def acc(t, mt):
    return ACC0 + 16 * t + 4 * mt


V_LANE = 1
V_ARD = 2
V_QRD = 4
V_HRD = 8
V_ADMA = 9
V_BDMA = 13
V_L16 = 17
V_T = 18
S_X, S_Q, S_W1, S_WS, S_MISC = 4, 8, 12, 16, 20
S_WAVE, S_RB, S_P = 24, 25, 26
S_OFFA, S_OFFA2, S_OFFQ, S_OFFH = 27, 28, 29, 30
S_M0B, S_M0A = 31, 32
S_CNT = 33
S_QM = 34
S_PTR = 36
S_L2E = 58
S_T = 60
S_AFB = 72
S_GROW = 73
S_PO1, S_PO2 = 74, 3
S_PT, S_PTE = 100, 101
S_CB = 100
S_PF1, S_PF2 = 96, 20


def bset(s, t):
    return 52 * s + 4 * t


ASET = {"X": 104, "Y": 120, "Z": 136}


def k1_body(a, typ):
    T = "A" if typ == 0 else "B"
    nq = 8 if typ == 0 else 4
    nh = 13 - nq
    Ph = 2 * nh
    HB = 256 * nq
    e = a.e
    vi, vG, t0, t1, t2, t3 = V_T, V_T + 1, V_T + 2, V_T + 3, V_T + 4, V_T + 5
    e(f"v_and_b32 v{vi}, 15, v{V_LANE}")
    e(f"v_lshrrev_b32 v{vG}, 4, v{V_LANE}")
    e(f"s_mul_i32 s{S_T + 2}, s{S_P}, 448")
    if typ:
        e(f"s_add_u32 s{S_T + 2}, s{S_T + 2}, 160")

    e(f"s_lshr_b32 s{S_T + 8}, s{S_WAVE}, 1")
    e(f"s_lshl_b32 s{S_T + 8}, s{S_T + 8}, 4")
    e(f"s_and_b32 s{S_T + 9}, s{S_WAVE}, 1")
    e(f"s_lshl_b32 s{S_T + 9}, s{S_T + 9}, 2")
    e(f"s_add_u32 s{S_T + 8}, s{S_T + 8}, s{S_T + 9}")

    def krow(dst, kp, tmp):
        e(f"v_lshrrev_b32 v{tmp}, 2, v{kp}")
        e(f"v_lshlrev_b32 v{tmp}, 3, v{tmp}")
        e(f"v_and_b32 v{dst}, 3, v{kp}")
        e(f"v_add3_u32 v{dst}, v{dst}, v{tmp}, s{S_T + 8}")

    e(f"v_lshrrev_b32 v{t0}, 3, v{V_LANE}")
    krow(t1, t0, t2)
    e(f"v_mul_u32_u24 v{t1}, 6144, v{t1}")
    e(f"v_lshrrev_b32 v{t2}, 1, v{t0}")
    e(f"v_and_b32 v{t2}, 3, v{t2}")
    e(f"v_lshlrev_b32 v{t2}, 1, v{t2}")
    e(f"v_and_b32 v{t3}, 7, v{V_LANE}")
    e(f"v_xor_b32 v{t3}, v{t3}, v{t2}")
    e(f"v_lshlrev_b32 v{t3}, 4, v{t3}")
    e(f"v_add_u32 v{t1}, v{t1}, v{t3}")
    e(f"s_lshl_b32 s{S_T + 9}, s{S_P}, 7")
    e(f"s_add_u32 s{S_T + 9}, s{S_T + 9}, {4096 + (2048 if typ == 0 else 0)}")
    e(f"v_add_u32 v{V_BDMA}, s{S_T + 9}, v{t1}")
    if typ == 0:
        e(f"v_add_u32 v{V_BDMA + 1}, {2048 - 1024}, v{V_BDMA}")
    hins = [(2, 0), (3, 64)] if typ == 0 else [(1, 0), (2, 64), (3, 128)]
    magic, sh = (205, 11) if Ph == 10 else (57, 10)
    for s_ in range(8 * Ph + 64):
        if s_ < 8 * Ph:
            assert (s_ * magic) >> sh == s_ // Ph
    for slot, s0 in hins:
        e(f"v_add_u32 v{t0}, {s0}, v{V_LANE}")
        e(f"v_mul_u32_u24 v{t1}, {magic}, v{t0}")
        e(f"v_lshrrev_b32 v{t1}, {sh}, v{t1}")
        e(f"v_mul_u32_u24 v{t2}, {Ph}, v{t1}")
        e(f"v_sub_u32 v{t0}, v{t0}, v{t2}")
        e(f"v_and_b32 v{t1}, 7, v{t1}")
        krow(t2, t1, t3)
        e(f"v_mul_u32_u24 v{t2}, 7168, v{t2}")
        e(f"v_lshlrev_b32 v{t0}, 4, v{t0}")
        e(f"v_add3_u32 v{t0}, v{t0}, v{t2}, s{S_T + 2}")
        e(f"v_add_u32 v{V_BDMA + slot}, {4096 - 1024 * slot}, v{t0}")
    e(f"s_lshl_b32 s{S_T + 9}, s{S_RB}, 8")
    e(f"s_lshl_b32 s{S_T + 10}, s{S_WAVE}, 6")
    e(f"s_add_u32 s{S_T + 9}, s{S_T + 9}, s{S_T + 10}")
    e(f"s_lshl_b32 s{S_T + 9}, s{S_T + 9}, 11")
    e(f"v_lshrrev_b32 v{t0}, 3, v{V_LANE}")
    e(f"v_lshrrev_b32 v{t1}, 1, v{t0}")
    e(f"v_and_b32 v{t2}, 7, v{V_LANE}")
    e(f"v_xor_b32 v{t2}, v{t2}, v{t1}")
    e(f"v_lshlrev_b32 v{t0}, 11, v{t0}")
    e(f"v_add_u32 v{t0}, s{S_T + 9}, v{t0}")
    for j in range(4):
        if j & 1:
            e(f"v_xor_b32 v{t3}, 4, v{t2}")
            e(f"v_lshlrev_b32 v{t3}, 4, v{t3}")
        else:
            e(f"v_lshlrev_b32 v{t3}, 4, v{t2}")
        e(f"v_add_u32 v{t3}, v{t3}, v{t0}")
        e(f"v_add_u32 v{V_ADMA + j}, {j * (16384 - 1024)}, v{t3}")
    e(f"s_mul_i32 s{S_M0B}, s{S_WAVE}, {K1_AREA}")
    e(f"s_lshl_b32 s{S_M0A}, s{S_WAVE}, 14")
    e(f"s_add_u32 s{S_M0A}, s{S_M0A}, {K1_ABASE}")
    e(f"s_mov_b32 s{S_OFFA}, 0")
    e(f"s_mov_b32 s{S_OFFA2}, 65536")
    e(f"s_mov_b32 s{S_OFFQ}, 0")
    e(f"s_mov_b32 s{S_OFFH}, 0")
    e(f"s_mov_b32 s{S_QM}, 0xffff")
    e(f"s_mov_b32 s{S_QM + 1}, 0")

    def dmaB(tt):
        slot = tt % 4
        tag = f"B{tt}"
        f = []
        srcs = [(S_Q, S_OFFQ), (S_Q, S_OFFQ) if typ == 0 else (S_W1, S_OFFH), (S_W1, S_OFFH)]
        f.append(lambda: e(f"s_add_u32 m0, s{S_M0B}, {slot * K1_BSLOT}"))
        for j in range(3):
            sr, so = srcs[j]
            f.append(lambda j=j, sr=sr, so=so: a.vmem(
                f"buffer_load_dwordx4 v{V_BDMA + j}, s[{sr}:{sr + 3}], s{so} offen offset:{1024 * j} {OPT['k1b']} lds", tag))

        def q():
            e(f"s_mov_b64 exec, s[{S_QM}:{S_QM + 1}]")
            a.vmem(f"buffer_load_dwordx4 v{V_BDMA + 3}, s[{S_W1}:{S_W1 + 3}], s{S_OFFH} offen offset:3072 {OPT['k1b']} lds", tag)
            e("s_mov_b64 exec, -1")
        f.append(q)
        f.append(lambda: e(f"s_add_u32 s{S_OFFQ}, s{S_OFFQ}, {32 * 6144}"))
        f.append(lambda: e(f"s_add_u32 s{S_OFFH}, s{S_OFFH}, {32 * 7168}"))
        return f

    def dmaA(aa):
        slot = aa % 2
        tag = f"A{aa}"
        f = []
        for half in range(2):
            so = S_OFFA if half == 0 else S_OFFA2
            f.append(lambda half=half: e(f"s_add_u32 m0, s{S_M0A}, {slot * 8192 + half * 4096}"))
            for j in range(4):
                f.append(lambda j=j, so=so: a.vmem(
                    f"buffer_load_dwordx4 v{V_ADMA + j}, s[{S_X}:{S_X + 3}], s{so} offen offset:{1024 * j} {OPT['k1a']} lds", tag))
        f.append(lambda: e(f"s_add_u32 s{S_OFFA}, s{S_OFFA}, 128"))
        f.append(lambda: e(f"s_add_u32 s{S_OFFA2}, s{S_OFFA2}, 128"))
        return f

    def run_seq(fl):
        for fn in fl:
            n0 = len(a.lines)
            fn()
            if " m0," in a.lines[-1] and len(a.lines) == n0 + 1:
                e("s_nop 0")

    e("s_waitcnt lgkmcnt(0)")
    srd(a, S_Q, S_PTR + 2, S_PTR + 3, 1024 * 3072 * 2, bias=4096)
    srd(a, S_W1, S_PTR + 8, S_PTR + 9, 1024 * 3584 * 2, bias=4096)
    srd(a, S_X, S_PTR + 0, S_PTR + 1, 2048 * 1024 * 2)
    if not OPT.get('spin'):
        stamp(a, 0)
    if OPT.get('kst'):
        stamp(a, 4)
    run_seq(dmaB(0))
    run_seq(dmaA(0))
    srd(a, S_T + 4, S_PTR + 10, S_PTR + 11, 7168)
    e(f"v_lshlrev_b32 v{t1}, 3, v{vG}")
    for j in range(nh):
        a.vmem(f"buffer_load_dwordx2 {vr(acc(nq + j, 3), 2)}, v{t1}, s[{S_T + 4}:{S_T + 7}], s{S_T + 2} offen offset:{32 * j}", "bias")
    run_seq(dmaB(1))
    if not OPT.get('ramp'):
        run_seq(dmaB(2))
        run_seq(dmaA(1))
        run_seq(dmaB(3))
    if OPT.get('ramp') == 2:
        run_seq(dmaA(1))
    if OPT.get('ramp') == 3:
        run_seq(dmaB(2))
        run_seq(dmaA(1))
    e(f"v_lshrrev_b32 v{t0}, 3, v{vi}")
    e(f"v_lshlrev_b32 v{t0}, 6, v{t0}")
    e(f"v_and_b32 v{t1}, 7, v{vi}")
    e(f"v_lshlrev_b32 v{t1}, 3, v{t1}")
    e(f"v_add_u32 v{t0}, v{t0}, v{t1}")
    e(f"v_lshrrev_b32 v{t1}, 1, v{vi}")
    e(f"v_xor_b32 v{t1}, v{t1}, v{vG}")
    e(f"v_add_u32 v{t2}, v{t0}, v{t1}")
    e(f"v_lshlrev_b32 v{t2}, 4, v{t2}")
    e(f"v_add_u32 v{V_ARD}, s{S_M0A}, v{t2}")
    e(f"v_xor_b32 v{t1}, 4, v{t1}")
    e(f"v_add_u32 v{t2}, v{t0}, v{t1}")
    e(f"v_lshlrev_b32 v{t2}, 4, v{t2}")
    e(f"v_add_u32 v{V_ARD + 1}, s{S_M0A}, v{t2}")
    e(f"v_and_b32 v{t0}, 1, v{vG}")
    e(f"v_lshlrev_b32 v{t0}, 2, v{t0}")
    e(f"v_lshrrev_b32 v{t1}, 2, v{vi}")
    e(f"v_add_u32 v{t0}, v{t0}, v{t1}")
    e(f"v_lshrrev_b32 v{t1}, 1, v{vG}")
    e(f"v_mul_u32_u24 v{t1}, {2 * K1_AREA}, v{t1}")
    e(f"v_and_b32 v{t2}, 3, v{vi}")
    e(f"v_lshlrev_b32 v{t2}, 3, v{t2}")
    e(f"v_add_u32 v{t1}, v{t1}, v{t2}")
    e(f"v_mul_u32_u24 v{t3}, {16 * Ph}, v{t0}")
    e(f"v_add3_u32 v{V_HRD}, v{t1}, v{t3}, {0}")
    e(f"v_add_u32 v{V_HRD}, {HB}, v{V_HRD}")
    e(f"v_lshlrev_b32 v{t3}, 7, v{t0}")
    e(f"v_add_u32 v{t1}, v{t1}, v{t3}")
    e(f"v_lshrrev_b32 v{t2}, 1, v{t0}")
    e(f"v_and_b32 v{t2}, 3, v{t2}")
    for t in range(4):
        e(f"v_xor_b32 v{t3}, {t}, v{t2}")
        e(f"v_lshlrev_b32 v{t3}, 5, v{t3}")
        e(f"v_add_u32 v{V_QRD + t}, v{t1}, v{t3}")
    e(f"v_lshlrev_b32 v{V_L16}, 4, v{V_LANE}")

    gw, gx0, gx1 = V_T, V_T + 8, V_T + 16
    gt = V_T + 24
    nb = {0: 1, 1: 7, 2: 1, 3: 2, 4: 3}[OPT['pf']]
    PL1, PL2 = -(-56 // nb), -(-16 // nb)

    def misc_setup():
        srd(a, S_WS, S_PTR + 20, S_PTR + 21, WS_USED)
        tile_decode(a, S_T + 4, S_T + 5, S_T + 6, S_T + 7, S_T)
        e(f"s_lshl_b32 s{S_T}, s{S_RB}, 1")
        e(f"s_lshr_b32 s{S_T + 1}, s{S_WAVE}, 1")
        e(f"s_add_u32 s{S_T}, s{S_T}, s{S_T + 1}")
        e(f"s_lshl_b32 s{S_T}, s{S_T}, 5")
        e(f"s_lshl_b32 s{S_T + 1}, s{S_P}, 1")
        e(f"s_add_u32 s{S_T}, s{S_T}, s{S_T + 1}")
        if typ:
            e(f"s_add_u32 s{S_T}, s{S_T}, 1")
        e(f"s_lshl_b32 s{S_T}, s{S_T}, 1")
        e(f"s_and_b32 s{S_T + 1}, s{S_WAVE}, 1")
        e(f"s_add_u32 s{S_T}, s{S_T}, s{S_T + 1}")
        e(f"s_lshl_b32 s{S_T}, s{S_T}, 3")
        e(f"s_add_u32 s{S_T}, s{S_T}, {FA_OFF}")
        e(f"v_writelane_b32 v0, s{S_T}, 4")
        e(f"s_lshl_b32 s{S_T}, s{S_RB}, 1")
        e(f"s_lshr_b32 s{S_T + 3}, s{S_WAVE}, 1")
        e(f"s_add_u32 s{S_T}, s{S_T}, s{S_T + 3}")
        e(f"s_lshl_b32 s{S_T}, s{S_T}, 5")
        e(f"s_add_u32 s{S_T}, s{S_T}, s{S_P}")
        e(f"s_lshl_b32 s{S_T}, s{S_T}, 1")
        e(f"s_add_u32 s{S_T}, s{S_T}, s{S_T + 1}")
        e(f"s_lshl_b32 s{S_T}, s{S_T}, 3")
        e(f"s_add_u32 s{S_T}, s{S_T}, {FE_OFF + 256 * typ}")
        e(f"v_writelane_b32 v0, s{S_T}, 0")
        e(f"s_lshl_b32 s{S_T}, s{S_P}, 4")
        e(f"s_add_u32 s{S_T}, s{S_T}, s{S_RB}")
        e(f"s_lshl_b32 s{S_T}, s{S_T}, 2")
        e(f"s_add_u32 s{S_T}, s{S_T}, s{S_WAVE}")
        e(f"s_lshl_b32 s{S_T}, s{S_T}, 3")
        e(f"s_add_u32 s{S_T}, s{S_T}, {FQ_OFF + 256 * typ}")
        e(f"v_writelane_b32 v0, s{S_T}, 1")
        e(f"s_lshr_b32 s{S_T}, s2, 5")
        e(f"s_lshl_b32 s{S_T}, s{S_T}, 1")
        e(f"s_lshr_b32 s{S_T + 1}, s{S_WAVE}, 1")
        e(f"s_add_u32 s{S_T}, s{S_T}, s{S_T + 1}")
        e(f"s_lshl_b32 s{S_T}, s{S_T}, 9")
        e(f"s_and_b32 s{S_T + 1}, s2, 31")
        e(f"s_lshl_b32 s{S_T + 1}, s{S_T + 1}, 4")
        e(f"s_add_u32 s{S_T}, s{S_T}, s{S_T + 1}")
        e(f"s_and_b32 s{S_T + 1}, s{S_WAVE}, 1")
        e(f"s_lshl_b32 s{S_T + 1}, s{S_T + 1}, 3")
        e(f"s_add_u32 s{S_T}, s{S_T}, s{S_T + 1}")
        e(f"s_add_u32 s{S_T}, s{S_T}, {FO_OFF}")
        e(f"s_lshl_b32 s{S_T + 1}, s{S_T + 7}, 8")
        e(f"s_lshl_b32 s{S_T + 3}, s{S_WAVE}, 3")
        e(f"s_add_u32 s{S_T + 1}, s{S_T + 1}, s{S_T + 3}")
        e(f"s_add_u32 s{S_T + 1}, s{S_T + 1}, {FP_OFF}")
        e(f"s_cmp_eq_u32 s{S_T + 6}, 0")
        e(f"s_cselect_b32 s{S_T + 1}, s{S_T + 1}, 0x7ffffff0")
        e(f"v_writelane_b32 v0, s{S_T}, 2")
        e(f"v_writelane_b32 v0, s{S_T + 1}, 3")
        e(f"s_mul_i32 s{S_T}, s2, 171")
        e(f"s_lshr_b32 s{S_T}, s{S_T}, 10")
        e(f"s_lshl_b32 s{S_T}, s{S_T}, 1")
        e(f"s_add_u32 s{S_T}, s{S_T}, s2")
        e(f"s_lshl_b32 s{S_T}, s{S_T}, 3")
        e(f"s_add_u32 s{S_T}, s{S_T}, {FK_OFF}")
        e(f"v_writelane_b32 v0, s{S_T}, 5")

    def misc_setup2():
        if typ == 0:
            e(f"s_or_b32 s{S_T}, s2, s{S_WAVE}")
            e(f"s_cmp_lg_u32 s{S_T}, 0")
            e(f"s_cbranch_scc1 L_notok")
            e(f"s_memrealtime s[{S_T + 8}:{S_T + 9}]")
            srd(a, S_T + 4, S_PTR + 18, S_PTR + 19, 256)
            e("s_waitcnt lgkmcnt(0)")
            e(f"s_or_b32 s{S_T + 9}, s{S_T + 9}, 0x40000000")
            e(f"s_lshl_b32 s{S_T + 9}, s{S_T + 9}, 1")
            e(f"s_and_b32 s{S_T}, s{S_T + 8}, 1")
            e(f"s_or_b32 s{S_T + 9}, s{S_T + 9}, s{S_T}")
            e(f"s_or_b32 s{S_T + 8}, s{S_T + 8}, 1")
            e(f"v_mov_b32 v{V_T + 24}, s{S_T + 8}")
            e(f"v_mov_b32 v{V_T + 25}, s{S_T + 9}")
            e(f"v_mov_b32 v{V_T + 27}, 0")
            e("s_mov_b64 exec, 1")
            e(f"buffer_store_dwordx2 v[{V_T + 24}:{V_T + 25}], v{V_T + 27}, s[{S_T + 4}:{S_T + 7}], 0 offen sc1")
            e("s_mov_b64 exec, -1")
            e("s_nop 1")
            a.label("L_notok")
        if OPT.get('cpf') == 1:
            e(f"s_getpc_b64 s[{S_T + 4}:{S_T + 5}]")
            a.label(f"L_pc_{T}")
            e(f"s_sub_u32 s{S_T + 4}, s{S_T + 4}, L_pc_{T}-KNAME")
            e(f"s_subb_u32 s{S_T + 5}, s{S_T + 5}, 0")
            e(f"s_lshr_b32 s{S_T}, s2, 3")
            e(f"s_and_b32 s{S_T}, s{S_T}, 3")
            e(f"s_lshl_b32 s{S_T}, s{S_T}, 2")
            e(f"s_add_u32 s{S_T}, s{S_T}, s{S_WAVE}")
            e(f"s_lshl_b32 s{S_T}, s{S_T}, 13")
            e(f"v_lshlrev_b32 v{V_T + 29}, 7, v{V_LANE}")
            e(f"v_add_u32 v{V_T + 29}, s{S_T}, v{V_T + 29}")
            e(f"v_min_u32 v{V_T + 29}, L_code_end-KNAME-4, v{V_T + 29}")
            a.vmem(f"global_load_dword v{V_T + 29}, v{V_T + 29}, s[{S_T + 4}:{S_T + 5}]", "pf")
        if OPT.get('xpf') == 1:
            e(f"v_and_b32 v{V_T + 28}, 31, v{V_LANE}")
            e(f"v_lshlrev_b32 v{V_T + 28}, 7, v{V_T + 28}")
            e(f"s_lshl_b32 s{S_T}, s2, 2")
            e(f"s_add_u32 s{S_T}, s{S_T}, s{S_WAVE}")
            e(f"s_lshl_b32 s{S_T}, s{S_T}, 12")
            a.vmem(f"buffer_load_dword v{V_T + 28}, v{V_T + 28}, s[{S_X}:{S_X + 3}], s{S_T} offen", "pf")
        if OPT.get('xpf') == 2:
            e(f"v_lshlrev_b32 v{V_T + 27}, 7, v{V_LANE}")
            e(f"s_lshr_b32 s{S_T}, s2, 5")
            e(f"s_lshl_b32 s{S_T}, s{S_T}, 2")
            e(f"s_add_u32 s{S_T}, s{S_T}, s{S_WAVE}")
            e(f"s_lshl_b32 s{S_T}, s{S_T}, 14")
            e(f"s_lshl_b32 s{S_T + 1}, s{S_RB}, 19")
            e(f"s_add_u32 s{S_T}, s{S_T}, s{S_T + 1}")
            a.vmem(f"buffer_load_dword v{V_T + 28}, v{V_T + 27}, s[{S_X}:{S_X + 3}], s{S_T} offen", "pf")
            e(f"s_add_u32 s{S_T}, s{S_T}, 8192")
            a.vmem(f"buffer_load_dword v{V_T + 28}, v{V_T + 27}, s[{S_X}:{S_X + 3}], s{S_T} offen", "pf")

        e(f"v_lshlrev_b32 v{gt}, 5, v{V_LANE}")
        e(f"s_lshl_b32 s{S_GROW}, s{S_RB}, 8")
        e(f"s_lshl_b32 s{S_T + 1}, s{S_WAVE}, 6")
        e(f"s_add_u32 s{S_GROW}, s{S_GROW}, s{S_T + 1}")
        e(f"s_lshl_b32 s{S_T + 1}, s{S_P}, 2")
        e(f"s_add_u32 s{S_GROW}, s{S_GROW}, s{S_T + 1}")
        if typ:
            e(f"s_add_u32 s{S_GROW}, s{S_GROW}, 2")
        e(f"s_lshl_b32 s{S_T + 1}, s{S_GROW}, 11")
        srd(a, S_MISC, S_PTR + 14, S_PTR + 15, 2048)
        a.vmem(f"buffer_load_dwordx4 {vr(gw)}, v{gt}, s[{S_MISC}:{S_MISC + 3}], 0 offen", "g")
        a.vmem(f"buffer_load_dwordx4 {vr(gw + 4)}, v{gt}, s[{S_MISC}:{S_MISC + 3}], 0 offen offset:16", "g")
        a.vmem(f"buffer_load_dwordx4 {vr(gx0)}, v{gt}, s[{S_X}:{S_X + 3}], s{S_T + 1} offen", "g")
        a.vmem(f"buffer_load_dwordx4 {vr(gx0 + 4)}, v{gt}, s[{S_X}:{S_X + 3}], s{S_T + 1} offen offset:16", "g")
        a.vmem(f"buffer_load_dwordx4 {vr(gx1)}, v{gt}, s[{S_X}:{S_X + 3}], s{S_T + 1} offen offset:2048", "g")
        a.vmem(f"buffer_load_dwordx4 {vr(gx1 + 4)}, v{gt}, s[{S_X}:{S_X + 3}], s{S_T + 1} offen offset:2064", "g")

        if OPT['pf']:
            srd(a, S_PF1, S_PTR + 12, S_PTR + 13, 3584 * 1024 * 2)
            srd(a, S_PF2, S_PTR + 4, S_PTR + 5, 1024 * 1024 * 2)
            e(f"v_min_u32 v{V_T + 26}, {PL1 - 1}, v{V_LANE}")
            e(f"v_lshlrev_b32 v{V_T + 26}, 7, v{V_T + 26}")
            e(f"v_min_u32 v{V_T + 27}, {PL2 - 1}, v{V_LANE}")
            e(f"v_lshlrev_b32 v{V_T + 27}, 7, v{V_T + 27}")
            e(f"s_lshl_b32 s{S_T}, s2, 2")
            e(f"s_add_u32 s{S_T}, s{S_T}, s{S_WAVE}")
            e(f"s_mul_i32 s{S_PO1}, s{S_T}, 7168")
            e(f"s_lshl_b32 s{S_PO2}, s{S_T}, 11")


    if OPT.get('pt'):
        e(f"s_lshl_b32 s{S_T}, s{S_RB}, 1")
        e(f"s_lshr_b32 s{S_T + 1}, s{S_WAVE}, 1")
        e(f"s_add_u32 s{S_T}, s{S_T}, s{S_T + 1}")
        e(f"s_mul_i32 s{S_AFB}, s{S_T}, {144 * 8192}")
        e(f"s_and_b32 s{S_T + 1}, s{S_WAVE}, 1")
        e(f"s_lshl_b32 s{S_T + 1}, s{S_T + 1}, 12")
        e(f"s_add_u32 s{S_AFB}, s{S_AFB}, s{S_T + 1}")
        e(f"s_mul_i32 s{S_PT}, s{S_P}, {7 * 8192}")
        e(f"s_add_u32 s{S_PT}, s{S_PT}, s{S_AFB}")
        if typ:
            e(f"s_add_u32 s{S_PT}, s{S_PT}, {2 * 8192}")
        e(f"s_add_u32 s{S_PTE}, s{S_PT}, {(4 if typ else 2) * 8192}")
        e(f"v_and_b32 v{V_T + 25}, 31, v{V_LANE}")
        e(f"v_lshlrev_b32 v{V_T + 25}, 7, v{V_T + 25}")
        if typ:
            e(f"v_lshrrev_b32 v{V_T + 29}, 5, v{V_LANE}")
            e(f"v_lshlrev_b32 v{V_T + 29}, 13, v{V_T + 29}")
            e(f"v_add_u32 v{V_T + 29}, v{V_T + 29}, v{V_T + 25}")
            e(f"s_mul_i32 s{S_T}, s{S_P}, {2 * 8192}")
            e(f"s_add_u32 s{S_T}, s{S_T}, {112 * 8192}")
            e(f"s_add_u32 s{S_T}, s{S_T}, s{S_AFB}")
            a.vmem(f"buffer_load_dword v{V_T + 28}, v{V_T + 29}, s[{S_WS}:{S_WS + 3}], s{S_T} offen", "pf")

    def pt_items():
        return [lambda: a.vmem(f"buffer_load_dword v{V_T + 28}, v{V_T + 25}, s[{S_WS}:{S_WS + 3}], s{S_PT} offen", "pf"),
                lambda: e(f"s_add_u32 s{S_PT}, s{S_PT}, 8192"),
                lambda: e(f"s_min_u32 s{S_PT}, s{S_PT}, s{S_PTE}")]

    def pf_items(cond=None):
        if cond is None:
            return [lambda: a.vmem(f"buffer_load_dword v{V_T + 28}, v{V_T + 26}, s[{S_PF1}:{S_PF1 + 3}], s{S_PO1} offen", "pf"),
                    lambda: a.vmem(f"buffer_load_dword v{V_T + 28}, v{V_T + 27}, s[{S_PF2}:{S_PF2 + 3}], s{S_PO2} offen", "pf"),
                    lambda: e(f"s_add_u32 s{S_PO1}, s{S_PO1}, {128 * PL1}"),
                    lambda: e(f"s_add_u32 s{S_PO2}, s{S_PO2}, {128 * PL2}")]

        def blk():
            e(f"s_lshl_b32 s{S_T}, 1, s{S_CNT}")
            e(f"s_and_b32 s{S_T}, s{S_T}, {cond}")
            e(f"s_cbranch_scc0 L_k1{T}_nopf")
            e(f"buffer_load_dword v{V_T + 28}, v{V_T + 26}, s[{S_PF1}:{S_PF1 + 3}], s{S_PO1} offen")
            e(f"buffer_load_dword v{V_T + 28}, v{V_T + 27}, s[{S_PF2}:{S_PF2 + 3}], s{S_PO2} offen")
            e(f"s_add_u32 s{S_PO1}, s{S_PO1}, {128 * PL1}")
            e(f"s_add_u32 s{S_PO2}, s{S_PO2}, {128 * PL2}")
            a.label(f"L_k1{T}_nopf")
        return [blk]

    def g_items():
        d0, d1 = V_T + 24, V_T + 25
        L = []
        L.append(f"v_dot2_f32_bf16 v{d0}, v{gx0}, v{gw}, 0")
        L.append(f"v_dot2_f32_bf16 v{d1}, v{gx1}, v{gw}, 0")
        for j in range(1, 8):
            L.append(f"v_dot2_f32_bf16 v{d0}, v{gx0 + j}, v{gw + j}, v{d0}")
            L.append(f"v_dot2_f32_bf16 v{d1}, v{gx1 + j}, v{gw + j}, v{d1}")
        L.append("s_nop 3")
        for sh_ in (1, 2, 4, 8):
            L.append(f"s_nop 0\nv_add_f32_dpp v{d0}, v{d0}, v{d0} row_shr:{sh_} row_mask:0xf bank_mask:0xf bound_ctrl:0")
            L.append(f"s_nop 0\nv_add_f32_dpp v{d1}, v{d1}, v{d1} row_shr:{sh_} row_mask:0xf bank_mask:0xf bound_ctrl:0")
        L.append(f"s_nop 0\nv_add_f32_dpp v{d0}, v{d0}, v{d0} row_bcast:15 row_mask:0xa bank_mask:0xf")
        L.append(f"s_nop 0\nv_add_f32_dpp v{d1}, v{d1}, v{d1} row_bcast:15 row_mask:0xa bank_mask:0xf")
        L.append(f"s_nop 0\nv_add_f32_dpp v{d0}, v{d0}, v{d0} row_bcast:31 row_mask:0xc bank_mask:0xf")
        L.append(f"s_nop 0\nv_add_f32_dpp v{d1}, v{d1}, v{d1} row_bcast:31 row_mask:0xc bank_mask:0xf")
        L.append(f"v_mul_f32 v{d0}, 0xbfb8aa3b, v{d0}")
        L.append(f"v_mul_f32 v{d1}, 0xbfb8aa3b, v{d1}")
        L.append(f"v_exp_f32 v{d0}, v{d0}")
        L.append(f"v_exp_f32 v{d1}, v{d1}\ns_nop 0")
        L.append(f"v_add_f32 v{d0}, 1.0, v{d0}")
        L.append(f"v_add_f32 v{d1}, 1.0, v{d1}")
        L.append(f"v_rcp_f32 v{d0}, v{d0}")
        L.append(f"v_rcp_f32 v{d1}, v{d1}")
        L.append(f"v_mov_b32 v{gw}, 0")
        L.append(f"s_lshl_b32 s{S_T + 1}, s{S_GROW}, 2\ns_add_u32 s{S_T + 1}, s{S_T + 1}, {G_OFF}")
        L.append(f"s_lshl_b32 s{S_T + 3}, s2, 8\ns_add_u32 s{S_T + 3}, s{S_T + 3}, {FLG_OFF}")
        L.append(f"s_mov_b32 s{S_T + 8}, 0\ns_mov_b32 s{S_T + 9}, 0x80000000")
        F = [(lambda x=x: e(x)) for x in L]

        def st():
            e(f"s_mov_b64 exec, s[{S_T + 8}:{S_T + 9}]")
            a.vmem(f"buffer_store_dwordx2 v[{d0}:{d1}], v{gw}, s[{S_WS}:{S_WS + 3}], s{S_T + 1} offen sc1", "sq")
            e("s_mov_b64 exec, -1")
        F.append(st)
        return F

    if OPT.get('m2', 9) == 9:
        misc_setup2()
    a.wait(["bias"])
    for j in range(nh):
        src = acc(nq + j, 3)
        d = acc(nq + j, 0)
        e(f"v_lshlrev_b32 v{d}, 16, v{src}")
        e(f"v_and_b32 v{d + 1}, 0xffff0000, v{src}")
        e(f"v_lshlrev_b32 v{d + 2}, 16, v{src + 1}")
        e(f"v_and_b32 v{d + 3}, 0xffff0000, v{src + 1}")
    for t in range(4):
        for r in range(4):
            e(f"v_mov_b32 v{acc(t, 0) + r}, {EPS_HEX}")

    def rdB(tt):
        slot = tt % 4
        s = tt % 2
        f = []
        for t in range(13):
            for ins in range(2):
                if t < nq:
                    addr = V_QRD + (t & 3)
                    off = slot * K1_BSLOT + ins * K1_AREA + 1024 * (t >> 2)
                else:
                    addr = V_HRD
                    off = slot * K1_BSLOT + ins * K1_AREA + 32 * (t - nq)
                d = bset(s, t) + 2 * ins
                f.append(lambda d=d, addr=addr, off=off: e(f"ds_read_b64_tr_b16 {ar(d, 2)}, v{addr} offset:{off}"))
        return f

    def aset_of(tt):
        if tt % 2 == 0:
            return ASET["X"]
        return ASET["Y"] if tt % 4 == 1 else ASET["Z"]

    def rdA(aa):
        slot = aa % 2
        f = []
        for hh in range(2):
            base = aset_of(2 * aa + hh)
            for mt in range(4):
                f.append(lambda hh=hh, mt=mt, base=base: e(
                    f"ds_read_b128 {ar(base + 4 * mt)}, v{V_ARD + hh} offset:{slot * 8192 + mt * 2048}"))
        return f

    stamp(a, 1)
    a.wait(["B0", "A0"])
    e("s_barrier")
    stamp(a, 2)
    for fn in rdA(0) + rdB(0):
        fn()
    if OPT.get('ramp') == 1:
        run_seq(dmaA(1))
    if OPT.get('ramp') in (1, 2):
        run_seq(dmaB(2))
    a.wait(["B1"], lgkm=True)
    e("s_barrier")

    misc_items = capture(a, misc_setup)
    misc_items2 = capture(a, misc_setup2) if OPT.get('m2', 9) != 9 else []

    NSTEP = 32

    def step(tt):
        if DIAG and OPT.get('ts'):
            e("s_memrealtime s[76:77]")
            e("s_waitcnt lgkmcnt(0)")
            e("s_mov_b32 m0, s78")
            e("s_nop 0")
            e(f"v_writelane_b32 v{V_T + 29}, s76, m0")
            e("s_add_u32 s78, s78, 1")
        s = tt % 2
        ab = aset_of(tt)
        mf = []
        for t in range(13):
            order = [1, 2, 3, 0] if tt == 0 else [0, 1, 2, 3]
            for mt in order:
                D = vr(acc(t, mt))
                if tt == 0:
                    C = "0" if (typ == 0 and 4 <= t < 8) else vr(acc(t, 0))
                else:
                    C = D
                W = ar(bset(s, t))
                X = ar(ab + 4 * mt)
                if typ == 0 and t < 8:
                    mf.append(f"v_mfma_f32_16x16x32_bf16 {D}, {X}, {W}, {C}")
                else:
                    mf.append(f"v_mfma_f32_16x16x32_bf16 {D}, {W}, {X}, {C}")
        if OPT.get('fakechain') and tt > 0:
            import re
            m2 = []
            for i in range(0, 52, 2):
                x0, x1 = mf[i], mf[i + 1]
                pick = x0 if tt % 2 == 0 else x1
                D = re.match(r"v_mfma\S+ (v\[\d+:\d+\])", pick).group(1)
                for x in (x0, x1):
                    D0 = re.match(r"v_mfma\S+ (v\[\d+:\d+\])", x).group(1)
                    m2.append(x.replace(D0, D))
            mf = m2
        rd = []
        if tt + 1 < NSTEP:
            rd = rdB(tt + 1)
            if tt % 2 == 1:
                rd = rdA((tt + 1) // 2) + rd
        dm = []
        if tt == 0 and OPT.get('ramp'):
            dm += dmaB(3)
        if OPT.get('afirst', 1) and tt % 2 == 0 and tt // 2 + 2 < NSTEP // 2:
            dm += dmaA(tt // 2 + 2)
        if tt + 4 < NSTEP:
            dm += dmaB(tt + 4)
        if not OPT.get('afirst', 1) and tt % 2 == 0 and tt // 2 + 2 < NSTEP // 2:
            dm += dmaA(tt // 2 + 2)
        if OPT['pf'] == 1 and tt % 4 == 1 and tt < 28:
            dm += pf_items()
        if OPT.get('cpf') == 3 and tt == 28:
            dm.append(lambda: a.vmem(f"global_load_dword v{V_T + 28}, v{V_T + 29}, s[{S_CB}:{S_CB + 1}]", "pf"))
        if OPT['pf'] in (2, 3, 4) and tt == 28:
            dm += pf_items()
        if OPT['pf'] in (3, 4) and tt % 4 == 1 and 4 <= tt < 28:
            dm += pf_items({3: 1 << 4, 4: (1 << 5) | (1 << 3)}[OPT['pf']])
        if OPT.get('pt') and tt % 4 == 3 and tt < 28:
            dm += pt_items()
        if tt == OPT.get('m2', 9):
            dm += misc_items2
        if tt == 3:
            dm += misc_items
        fl = []
        i1 = i2 = 0
        n1, n2 = len(rd), len(dm)
        while i1 < n1 or i2 < n2:
            if i2 < n2 and (i1 >= n1 or i2 * n1 <= i1 * n2):
                fl.append(dm[i2]); i2 += 1
            else:
                fl.append(rd[i1]); i1 += 1
        if tt == NSTEP - 1:
            assert "g" not in a.vm
            fl = g_items()
        interleave(a, mf, fl, 0, 48)
        if tt + 1 < NSTEP:
            tags = []
            if tt + 2 < NSTEP:
                tags.append(f"B{tt + 2}")
            if tt % 2 == 0:
                tags.append(f"A{tt // 2 + 1}")
            a.wait(tags, lgkm=True)
            if tt + 2 < NSTEP:
                e("s_barrier")

    iters = []
    for it in range(8):
        n0 = len(a.lines)
        for tt in range(4 * it, 4 * it + 4):
            step(tt)
        iters.append(a.lines[n0:])
        del a.lines[n0:]
    for it in range(2, 7):
        assert iters[it] == iters[1], f"iteration {it} differs"
    stamp(a, 3)
    if DIAG and OPT.get('ts'):
        e("s_mov_b32 s78, 0")
    a.lines += iters[0]
    if not OPT.get('ts') and not OPT.get('kst'):
        stamp(a, 4)
    e(f"s_mov_b32 s{S_CNT}, 6")
    a.label(f"L_k1{T}_loop")
    a.lines += iters[1]
    e(f"s_sub_u32 s{S_CNT}, s{S_CNT}, 1")
    e(f"s_cmp_lg_u32 s{S_CNT}, 0")
    e(f"s_cbranch_scc1 L_k1{T}_loop")
    a.lines += iters[7]
    assert all(not t.startswith(("A", "B")) for t in a.vm), a.vm

    stamp(a, 5)

    def fin():
        stamp(a, 6)
        stamp(a, 7)
        k = a.vm_count(["#eA"], drop=False)
        if DIAG:
            k += 16
        stamp_dump(a, 0, 8, S_WAVE, S_PTR + 20, S_PTR + 21, V_T)
        e(f"s_cmp_eq_u32 s{P_SEARLY}, 0")
        e("s_cbranch_scc1 L_p2_late")
        e(f"s_waitcnt vmcnt({k})")
        e("s_branch L_p2_go")

    pb_state = [0]

    def pb(n=1):
        for _ in range(n):
            k = pb_state[0]
            if k >= OPT.get('pb', 0):
                return
            for i in range(4):
                a.vmem(f"buffer_load_dwordx4 {ar(128 + 16 * k + 4 * i)}, v{P_VBD + i}, s[{P_SW2}:{P_SW2 + 3}], s{P_SOB} offen offset:{1024 * i}", "pb")
            e(f"s_add_u32 s{P_SOB}, s{P_SOB}, s{P_SSB}")
            pb_state[0] += 1

    def fe_load():
        a.vmem(f"buffer_load_dwordx2 v[{P_VFL}:{P_VFL + 1}], v{P_VFA}, s[{S_WS}:{S_WS + 3}], 0 offen sc1", "fe")

    def fe_check():
        a.wait(["fe"])
        e(f"v_cmp_eq_u64 vcc, v[{P_VFL}:{P_VFL + 1}], v[{V_TOK}:{V_TOK + 1}]")
        e(f"s_mov_b32 s{P_SEARLY}, 0")
        e("s_nop 0")
        e("s_cmp_eq_u64 vcc, -1")
        e(f"s_cbranch_scc0 L_k1{T}_noearly")
        p2_issueA(a)
        e(f"s_mov_b32 s{P_SEARLY}, 1")
        a.label(f"L_k1{T}_noearly")
        a.mark("eA")

    def setflag(lane):
        a.label(f"L_k1{T}_tw")
        e(f"v_readfirstlane_b32 s{S_T}, v{V_TOK + 1}")
        e(f"v_readfirstlane_b32 s{S_T + 1}, v{V_TOK}")
        e("s_nop 3")
        e(f"s_min_u32 s{S_T}, s{S_T}, s{S_T + 1}")
        e(f"s_cmp_lg_u32 s{S_T}, 0")
        e(f"s_cbranch_scc1 L_k1{T}_tok")
        e("s_sleep 4")
        e(f"buffer_load_dwordx2 v[{V_TOK}:{V_TOK + 1}], v12, s[{S_T + 4}:{S_T + 7}], 0 offen sc1")
        e("s_waitcnt vmcnt(0)")
        e(f"s_branch L_k1{T}_tw")
        a.label(f"L_k1{T}_tok")
        e(f"s_mov_b64 exec, {1 << lane}")
        a.vmem(f"buffer_store_dwordx2 v[{V_TOK}:{V_TOK + 1}], v0, s[{S_WS}:{S_WS + 3}], 0 offen sc1", "fl")
        e("s_mov_b64 exec, -1")
    e("s_barrier")
    e(f"s_mov_b32 s{S_L2E}, {L2E_HEX}")
    e(f"s_mov_b32 s{S_L2E + 1}, {L2E_HEX}")
    e(f"s_lshl_b32 s{S_T}, s{S_RB}, 1")
    e(f"s_lshr_b32 s{S_T + 1}, s{S_WAVE}, 1")
    e(f"s_add_u32 s{S_T}, s{S_T}, s{S_T + 1}")
    e(f"s_mul_i32 s{S_AFB}, s{S_T}, {144 * 8192}")
    e(f"s_and_b32 s{S_T + 1}, s{S_WAVE}, 1")
    e(f"s_lshl_b32 s{S_T + 1}, s{S_T + 1}, 12")
    e(f"s_add_u32 s{S_AFB}, s{S_AFB}, s{S_T + 1}")
    e("s_nop 7")
    TT, UU = V_T, V_T + 8

    def phi_group(ra, rb_):
        prs = [ra, ra + 2, rb_, rb_ + 2]
        for j, p in enumerate(prs):
            e(f"v_pk_mul_f32 {vr(TT + 2 * j, 2)}, {vr(p, 2)}, s[{S_L2E}:{S_L2E + 1}]")
        for j in range(8):
            e(f"v_exp_f32_e64 v{TT + j}, v{TT + j} clamp")
        for p in prs:
            e(f"v_max_f32 v{p}, {EPS_HEX}, v{p}")
            e(f"v_max_f32 v{p + 1}, {EPS_HEX}, v{p + 1}")
        for j, p in enumerate(prs):
            e(f"v_pk_add_f32 {vr(p, 2)}, {vr(p, 2)}, {vr(TT + 2 * j, 2)}")
        for j, p in enumerate(prs):
            e(f"v_cvt_pk_bf16_f32 v{ra + j}, v{p}, v{p + 1}")

    def cvt_group(ra, rb_):
        prs = [ra, ra + 2, rb_, rb_ + 2]
        for j, p in enumerate(prs):
            e(f"v_cvt_pk_bf16_f32 v{ra + j}, v{p}, v{p + 1}")

    def mish_group(ra, rb_, split=False, dst=None):
        prs = [ra, ra + 2, rb_, rb_ + 2]
        for j, p in enumerate(prs):
            e(f"v_pk_mul_f32 {vr(TT + 2 * j, 2)}, {vr(p, 2)}, s[{S_L2E}:{S_L2E + 1}]")
        for j in range(8):
            e(f"v_exp_f32 v{TT + j}, v{TT + j}")
        for j in range(4):
            e(f"v_pk_fma_f32 {vr(UU + 2 * j, 2)}, {vr(TT + 2 * j, 2)}, 0.5, 1.0 op_sel_hi:[1,0,0]")
        for j in range(4):
            e(f"v_pk_fma_f32 {vr(UU + 2 * j, 2)}, {vr(TT + 2 * j, 2)}, {vr(UU + 2 * j, 2)}, 1.0 op_sel_hi:[1,1,0]")
        for j in range(8):
            e(f"v_rcp_f32 v{UU + j}, v{UU + j}")
        for j, p in enumerate(prs):
            e(f"v_pk_fma_f32 {vr(p, 2)}, {vr(UU + 2 * j, 2)}, {vr(p, 2)}, {vr(p, 2)} neg_lo:[1,0,0] neg_hi:[1,0,0]")
        if split:
            e(f"v_cvt_pk_bf16_f32 v{ra}, v{ra}, v{ra + 1}")
            e(f"v_cvt_pk_bf16_f32 v{ra + 1}, v{ra + 2}, v{ra + 3}")
            e(f"v_cvt_pk_bf16_f32 v{rb_}, v{rb_}, v{rb_ + 1}")
            e(f"v_cvt_pk_bf16_f32 v{rb_ + 1}, v{rb_ + 2}, v{rb_ + 3}")
        else:
            dd = ra if dst is None else dst
            for j, p in enumerate(prs):
                e(f"v_cvt_pk_bf16_f32 v{dd + j}, v{p}, v{p + 1}")

    WS = f"s[{S_WS}:{S_WS + 3}]"

    def set_kb(sreg, mul, add):
        e(f"s_mul_i32 s{sreg}, s{S_P}, {mul * 8192}")
        e(f"s_add_u32 s{sreg}, s{sreg}, {add * 8192}")
        e(f"s_add_u32 s{sreg}, s{sreg}, s{S_AFB}")

    def h_late(tA, kbl, sreg, mid=None):
        set_kb(sreg, 7, kbl)
        for mt in range(4):
            mish_group(acc(tA, mt), acc(tA + 1, mt))
            if mt == 1 and mid:
                mid()

    def h_half_late(tA, half):
        set_kb(P_SL + 2, 7, 2)
        if half:
            e(f"s_add_u32 s{P_SL + 2}, s{P_SL + 2}, 512")
        for mp in range(2):
            mish_group(acc(tA, 2 * mp), acc(tA, 2 * mp + 1), dst=240 + 4 * mp)
        e("s_nop 1")
        for mp in range(2):
            e(f"v_permlane16_swap_b32 v{240 + 4 * mp}, v{242 + 4 * mp}")
            e(f"v_permlane16_swap_b32 v{241 + 4 * mp}, v{243 + 4 * mp}")

    def h_full(tA, kbl, tag='st'):
        set_kb(S_T + 2, 7, kbl)
        for mt in range(4):
            mish_group(acc(tA, mt), acc(tA + 1, mt))
            a.vmem(f"buffer_store_dwordx4 {vr(acc(tA, mt))}, v{V_L16}, {WS}, s{S_T + 2} offen offset:{1024 * mt} {OPT['st']}", tag)

    def h_half(tA, kbl, half):
        set_kb(S_T + 2, 7, kbl)
        for mp in range(2):
            mish_group(acc(tA, 2 * mp), acc(tA, 2 * mp + 1), split=True)
            for mt in (2 * mp, 2 * mp + 1):
                a.vmem(f"buffer_store_dwordx2 {vr(acc(tA, mt), 2)}, v{V_L16}, {WS}, s{S_T + 2} offen offset:{1024 * mt + 8 * half} {OPT['st']}", "st")

    if typ == 1:
        h_full(5, 3, "se")
        h_full(7, 4, "se")
        p2_early(a)
        for hd in range(2):
            set_kb(S_T + 2, 2, 112 + hd)
            for mt in range(4):
                phi_group(acc(2 * hd, mt), acc(2 * hd + 1, mt))
                a.vmem(f"buffer_store_dwordx4 {vr(acc(2 * hd, mt))}, v{V_L16}, {WS}, s{S_T + 2} offen offset:{1024 * mt} {OPT['st']}", "sq")
                if 4 * hd + mt == OPT.get('fepos', 4):
                    a.wait(["se", "zc"])
                    setflag(0)
                if 4 * hd + mt >= OPT.get('fepos', 4):
                    pb()
        pb(8)
        h_late(9, 5, P_SL, mid=fe_load)
        h_late(11, 6, P_SL + 1, mid=fe_check)
        h_half_late(4, 1)
        fin()
        return

    h_full(8, 0, "se")
    h_full(10, 1, "se")
    p2_early(a)
    ONES = V_T + 16
    for r in range(4):
        e(f"v_mov_b32 v{ONES + r}, 0x3f803f80")
    for t in range(4):
        for pr in range(2):
            phi_group(acc(t, 2 * pr), acc(t, 2 * pr + 1))
            if 2 * t + pr == OPT.get('fepos', 4):
                a.wait(["se", "zc"])
                setflag(0)
            if 2 * t + pr >= OPT.get('fepos', 4):
                pb()
    pb(8)
    for t in range(4, 8):
        for pr in range(2):
            cvt_group(acc(t, 2 * pr), acc(t, 2 * pr + 1))
    e("s_nop 1")
    free = [acc(t, m) for t in range(8) for m in (1, 3)]

    def Dt(tau):
        return free[tau]
    for pr in range(2):
        for hd in range(2):
            for dt in range(2):
                for et in range(3):
                    tau = hd * 6 + dt * 3 + et
                    Aop = vr(acc(2 * hd + dt, 2 * pr))
                    Bop = vr(acc(4 + 2 * hd + et, 2 * pr)) if et < 2 else vr(ONES)
                    C = "0" if pr == 0 else vr(Dt(tau))
                    e(f"v_mfma_f32_16x16x32_bf16 {vr(Dt(tau))}, {Aop}, {Bop}, {C}")
    vw, vrd = V_T + 20, V_T + 21
    e(f"s_mul_i32 s{S_T}, s{S_WAVE}, 12288")
    e(f"s_add_u32 s{S_T}, s{S_T}, 98304")
    e(f"v_add_u32 v{vw}, s{S_T}, v{V_L16}")
    e(f"s_mul_i32 s{S_T}, s{S_WAVE}, 3072")
    e(f"s_add_u32 s{S_T}, s{S_T}, 98304")
    e(f"v_add_u32 v{vrd}, s{S_T}, v{V_L16}")
    fe_load()
    e("s_nop 7")
    for tau in range(12):
        e(f"ds_write_b128 v{vw}, {vr(Dt(tau))} offset:{1024 * tau}")
    e(f"s_lshl_b32 s{S_T}, s{S_P}, 3")
    e(f"s_add_u32 s{S_T}, s{S_T}, s{S_RB}")
    e(f"s_mul_i32 s{S_T}, s{S_T}, 12288")
    e(f"s_mul_i32 s{S_T + 1}, s{S_WAVE}, 3072")
    e(f"s_add_u32 s{S_T}, s{S_T}, s{S_T + 1}")
    e(f"s_add_u32 s{S_T + 10}, s{S_T}, {KVP_OFF}")
    h_half_late(12, 0)
    e(f"s_mov_b32 s{P_SL}, 0x7ff00000")
    e(f"s_mov_b32 s{P_SL + 1}, 0x7ff00000")
    e("s_waitcnt lgkmcnt(0)")
    e("s_barrier")
    R = [acc(t, m) for t in range(8) for m in (0, 2)]
    for w2 in range(4):
        for j in range(3):
            e(f"ds_read_b128 {vr(R[3 * w2 + j])}, v{vrd} offset:{12288 * w2 + 1024 * j}")
    fe_check()
    e("s_waitcnt lgkmcnt(0)")
    for j in range(3):
        for h2 in range(2):
            b0 = R[j] + 2 * h2
            e(f"v_pk_add_f32 {vr(b0, 2)}, {vr(b0, 2)}, {vr(R[3 + j] + 2 * h2, 2)}")
            e(f"v_pk_add_f32 {vr(R[6 + j] + 2 * h2, 2)}, {vr(R[6 + j] + 2 * h2, 2)}, {vr(R[9 + j] + 2 * h2, 2)}")
        for h2 in range(2):
            b0 = R[j] + 2 * h2
            e(f"v_pk_add_f32 {vr(b0, 2)}, {vr(b0, 2)}, {vr(R[6 + j] + 2 * h2, 2)}")
        a.vmem(f"buffer_store_dwordx4 {vr(R[j])}, v{V_L16}, {WS}, s{S_T + 10} offen offset:{1024 * j} sc1", "sq")
    fin()


def gen_k1():
    a = Asm()
    e = a.e
    a.lines.append(".globl KNAME\n.p2align 8\n.type KNAME,@function\nKNAME:")
    if OPT.get('spin'):
        stamp(a, 0)
    e("s_cmp_ge_u32 s2, 256")
    e("s_cbranch_scc1 L_k1_exit")
    e(f"s_load_dwordx16 s[{S_PTR}:{S_PTR + 15}], s[0:1], 0")
    if OPT.get('cpf') >= 2:
        e(f"s_getpc_b64 s[{S_CB}:{S_CB + 1}]")
        a.label("L_pc_0")
        e(f"s_sub_u32 s{S_CB}, s{S_CB}, L_pc_0-KNAME")
        e(f"s_subb_u32 s{S_CB + 1}, s{S_CB + 1}, 0")
        e(f"s_lshl_b32 s{S_T}, s2, 12")
        e(f"s_and_b32 s{S_T}, s{S_T}, 0x18000")
        e(f"v_lshlrev_b32 v{V_T + 29}, 7, v0")
        e(f"v_add_u32 v{V_T + 29}, s{S_T}, v{V_T + 29}")
        e(f"v_min_u32 v{V_T + 29}, L_code_end-KNAME-4, v{V_T + 29}")
        e(f"global_load_dword v{V_T + 28}, v{V_T + 29}, s[{S_CB}:{S_CB + 1}]")
    e(f"s_load_dwordx4 s[{S_PTR + 16}:{S_PTR + 19}], s[0:1], 64")
    e(f"s_load_dwordx2 s[{S_PTR + 20}:{S_PTR + 21}], s[0:1], 80")
    e(f"v_and_b32 v{V_LANE}, 63, v0")
    e(f"v_lshrrev_b32 v{V_T}, 6, v0")
    e(f"s_and_b32 s{S_T}, s2, 7")
    e(f"v_readfirstlane_b32 s{S_WAVE}, v{V_T}")
    e(f"s_lshr_b32 s{S_T + 1}, s2, 3")
    if OPT.get('map1', 0) == 0:
        e(f"s_and_b32 s{S_RB}, s{S_T}, 1")
        e(f"s_lshl_b32 s{S_RB}, s{S_RB}, 2")
        e(f"s_and_b32 s{S_T + 2}, s{S_T + 1}, 3")
        e(f"s_add_u32 s{S_RB}, s{S_RB}, s{S_T + 2}")
        e(f"s_lshr_b32 s{S_T}, s{S_T}, 1")
        e(f"s_lshl_b32 s{S_T}, s{S_T}, 3")
        e(f"s_lshr_b32 s{S_T + 1}, s{S_T + 1}, 2")
        e(f"s_add_u32 s{S_T}, s{S_T}, s{S_T + 1}")
    elif OPT['map1'] == 1:
        e(f"s_and_b32 s{S_RB}, s{S_T + 1}, 7")
        e(f"s_lshl_b32 s{S_T}, s{S_T}, 2")
        e(f"s_lshr_b32 s{S_T + 1}, s{S_T + 1}, 3")
        e(f"s_add_u32 s{S_T}, s{S_T}, s{S_T + 1}")
    else:
        e(f"s_and_b32 s{S_RB}, s{S_T}, 3")
        e(f"s_lshl_b32 s{S_RB}, s{S_RB}, 1")
        e(f"s_and_b32 s{S_T + 2}, s{S_T + 1}, 1")
        e(f"s_add_u32 s{S_RB}, s{S_RB}, s{S_T + 2}")
        e(f"s_lshr_b32 s{S_T}, s{S_T}, 2")
        e(f"s_lshl_b32 s{S_T}, s{S_T}, 4")
        e(f"s_lshr_b32 s{S_T + 1}, s{S_T + 1}, 1")
        e(f"s_add_u32 s{S_T}, s{S_T}, s{S_T + 1}")
    e(f"s_lshr_b32 s{S_P}, s{S_T}, 1")
    e(f"s_and_b32 s{S_T + 3}, s{S_T}, 1")
    e(f"s_cmp_lg_u32 s{S_T + 3}, 0")
    e("s_cbranch_scc1 L_k1_typeB")
    k1_body(a, 0)
    a.label("L_k1_typeB")
    a.vm = []
    k1_body(a, 1)
    a.vm = []
    phase2(a)
    a.label("L_k1_exit")
    e("s_endpgm")
    a.label("L_code_end")
    return a.lines


def K2_LDS():
    return OPT['S'] * 32768 + 24576


def fold_loops(a, iters, period, scnt, name):
    n = len(iters)
    i = 0
    lab = 0
    while i < n:
        reps = 1
        while i + (reps + 1) * period <= n and all(
                iters[i + k] == iters[i + reps * period + k] for k in range(period)):
            reps += 1
        if reps >= 2:
            a.e(f"s_mov_b32 s{scnt}, {reps}")
            a.label(f"L_{name}_{lab}")
            for k in range(period):
                a.lines += iters[i + k]
            a.e(f"s_sub_u32 s{scnt}, s{scnt}, 1")
            a.e(f"s_cmp_lg_u32 s{scnt}, 0")
            a.e(f"s_cbranch_scc1 L_{name}_{lab}")
            lab += 1
            i += reps * period
        else:
            a.lines += iters[i]
            i += 1


def schedule(a, mf, streams):
    n = len(mf)
    placed = []
    for si, (items, start, end) in enumerate(streams):
        m = len(items)
        prev = 0
        for j, it in enumerate(items):
            fn, early = it if isinstance(it, tuple) else (it, 0)
            pos = start + (j * (end - start)) / max(m, 1)
            pos = max(pos, early, prev)
            prev = pos
            placed.append((pos, si, j, fn))
    placed.sort(key=lambda x: (x[0], x[1], x[2]))
    k = 0
    if n == 0:
        for p in placed:
            p[3]()
        return
    for i in range(n):
        a.e(mf[i])
        while k < len(placed) and placed[k][0] < i + 1:
            placed[k][3]()
            k += 1
    while k < len(placed):
        placed[k][3]()
        k += 1


P_SW2, P_SWO, P_SWS, P_SOUT = 96, 20, 16, 4
P_SMT, P_SNT, P_SROLE, P_STILE = 8, 9, 10, 11
P_SOA, P_SOB, P_SOP, P_SM0A, P_SM0B = 12, 13, 14, 15, 27
P_SHD, P_SM2, P_SEARLY = 28, 29, 30
P_VBD = 2
P_SLOT = 32768


def tile_decode(a, smt, snt, srole, stile, st):
    e = a.e
    e(f"s_and_b32 s{st}, s2, 7")
    e(f"s_lshr_b32 s{st + 1}, s2, 3")
    e(f"s_and_b32 s{srole}, s{st}, 1")
    if OPT.get('rsw'):
        e(f"s_xor_b32 s{srole}, s{srole}, 1")
    e(f"s_lshr_b32 s{st}, s{st}, 1")
    if OPT['map'] == 0:
        e(f"s_and_b32 s{smt}, s{st}, 1")
        e(f"s_lshl_b32 s{smt}, s{smt}, 3")
        e(f"s_and_b32 s{stile}, s{st + 1}, 7")
        e(f"s_add_u32 s{smt}, s{smt}, s{stile}")
        e(f"s_lshr_b32 s{snt}, s{st}, 1")
        e(f"s_lshl_b32 s{snt}, s{snt}, 2")
        e(f"s_lshr_b32 s{st + 1}, s{st + 1}, 3")
        e(f"s_add_u32 s{snt}, s{snt}, s{st + 1}")
    else:
        e(f"s_lshl_b32 s{smt}, s{st}, 2")
        e(f"s_and_b32 s{stile}, s{st + 1}, 3")
        e(f"s_add_u32 s{smt}, s{smt}, s{stile}")
        e(f"s_lshr_b32 s{snt}, s{st + 1}, 2")
    e(f"s_lshl_b32 s{stile}, s{smt}, 3")
    e(f"s_add_u32 s{stile}, s{stile}, s{snt}")


P_VAD, P_VFA, P_VFL = 8, 9, 10
P_SSA, P_SSB = 31, 32
P_SL = 4


def p2_setrun(a, first_expr, stride):
    e = a.e
    c0, c1 = first_expr
    e(f"s_lshr_b32 s{S_T + 11}, s{S_WAVE}, 1")
    e(f"s_mul_i32 s{S_T + 11}, s{S_T + 11}, {c1}")
    e(f"s_add_u32 s{S_T + 11}, s{S_T + 11}, {c0}")
    return S_T + 11


def p2_early(a):
    e = a.e
    S = OPT['S']
    ST = S_T
    tile_decode(a, P_SMT, P_SNT, P_SROLE, P_STILE, ST)
    vi, vG, t0, t1, t2 = 6, 7, 8, 9, 10
    e(f"v_and_b32 v{vi}, 15, v{V_LANE}")
    e(f"v_lshrrev_b32 v{vG}, 4, v{V_LANE}")
    e(f"s_lshl_b32 s{P_SM0A}, s{S_WAVE}, 12")
    e(f"s_add_u32 s{P_SM0B}, s{P_SM0A}, 16384")
    e(f"s_lshl_b32 s{ST}, s{P_SNT}, 8")
    e(f"s_and_b32 s{ST + 3}, s{S_WAVE}, 1")
    e(f"s_lshl_b32 s{ST + 1}, s{ST + 3}, 15")
    e(f"s_add_u32 s{ST}, s{ST}, s{ST + 1}")
    e(f"v_lshlrev_b32 v{t0}, 11, v{vG}")
    e(f"v_add_u32 v{t0}, s{ST}, v{t0}")
    e(f"v_lshlrev_b32 v{t1}, 1, v{vG}")
    e(f"v_xor_b32 v{t1}, v{t1}, v{vi}")
    for j in range(4):
        if j & 1:
            e(f"v_xor_b32 v{t2}, 8, v{t1}")
            e(f"v_lshlrev_b32 v{t2}, 4, v{t2}")
        else:
            e(f"v_lshlrev_b32 v{t2}, 4, v{t1}")
        e(f"v_add_u32 v{t2}, v{t2}, v{t0}")
        e(f"v_add_u32 v{P_VBD + j}, {j * (8192 - 1024)}, v{t2}")
    e(f"s_mul_i32 s{ST}, s{P_SROLE}, 3")
    e(f"s_lshr_b32 s{ST + 1}, s{S_WAVE}, 1")
    e(f"s_add_u32 s{ST}, s{ST}, s{ST + 1}")
    e(f"s_lshl_b32 s{P_SOB}, s{ST}, 16")
    e(f"s_mul_i32 s{P_SOA}, s{P_SMT}, 144")
    e(f"s_add_u32 s{P_SOA}, s{P_SOA}, s{ST}")
    e(f"s_lshl_b32 s{P_SOA}, s{P_SOA}, 13")
    e(f"s_mov_b32 s{P_SSA}, {7 * 8192}")
    e(f"s_mov_b32 s{P_SSB}, {7 * 65536}")
    srd(a, ST + 4, S_PTR + 18, S_PTR + 19, 256)
    e(f"v_mov_b32 v12, 0")
    a.vmem(f"buffer_load_dwordx2 v[{V_TOK}:{V_TOK + 1}], v12, s[{ST + 4}:{ST + 7}], 0 offen sc1", "zc")
    for j in range(S - 1):
        e(f"s_add_u32 m0, s{P_SM0B}, {j * P_SLOT}")
        e("s_nop 0")
        for i in range(4):
            a.vmem(f"buffer_load_dwordx4 v{P_VBD + i}, s[{P_SW2}:{P_SW2 + 3}], s{P_SOB} offen offset:{1024 * i} lds", "eB")
        e(f"s_add_u32 s{P_SOB}, s{P_SOB}, s{P_SSB}")
    e(f"s_lshl_b32 s{ST + 3}, s{ST + 3}, 12")
    e(f"v_add_u32 v{P_VAD}, s{ST + 3}, v{V_L16}")
    e(f"s_lshl_b32 s{ST}, s{P_SMT}, 1")
    e(f"s_add_u32 s{ST}, s{ST}, s{P_SROLE}")
    e(f"s_lshl_b32 s{ST}, s{ST}, 8")
    e(f"s_add_u32 s{ST}, s{ST}, {FE_OFF}")
    e(f"v_and_b32 v{P_VFA}, 31, v{V_LANE}")
    e(f"v_lshlrev_b32 v{P_VFA}, 3, v{P_VFA}")
    e(f"v_add_u32 v{P_VFA}, s{ST}, v{P_VFA}")


def p2_issueA(a):
    e = a.e
    for j in range(OPT['S'] - 1):
        e(f"s_add_u32 m0, s{P_SM0A}, {j * P_SLOT}")
        e("s_nop 0")
        for i in range(4):
            e(f"buffer_load_dwordx4 v{P_VAD}, s[{P_SWS}:{P_SWS + 3}], s{P_SOA} offen offset:{1024 * i} {OPT['k2a']} lds")
        e(f"s_add_u32 s{P_SOA}, s{P_SOA}, s{P_SSA}")


def phase2(a):
    e = a.e
    S = OPT['S']
    n0 = OPT['n0']
    SLOT = P_SLOT
    SCR = S * SLOT
    SWAVE = S_WAVE
    ST = S_T
    SCNT = S_CNT
    SMT, SNT, SROLE, STILE = P_SMT, P_SNT, P_SROLE, P_STILE
    SOA, SOB, SOP, SM0A, SM0B = P_SOA, P_SOB, P_SOP, P_SM0A, P_SM0B
    SW2, SWO, SOUT = P_SW2, P_SWO, P_SOUT
    WS = f"s[{P_SWS}:{P_SWS + 3}]"
    NBASE = (S + 1) // 2
    VL, VL16, VBD = V_LANE, V_L16, P_VBD
    vi, vG = 6, 7
    VZ = 11
    VAD = 8
    VFL = 10
    VFA = 9
    VAR = 12
    VBR = 18
    VT = 30
    VG = 38
    VOMG = 42
    VEPS = 46
    VEPS = 48
    CG = 52
    CR = 60
    CKV = 68
    CW = 80
    VX = 192
    VY = 84
    AC = 128
    t0, t1, t2, t3 = VT, VT + 1, VT + 2, VT + 3

    def acc2(mt, nt):
        return AC + 16 * mt + 4 * nt

    def FA(j, b, mt):
        return 64 * (j % 2) + 32 * b + 4 * mt

    def FB(j, b, nt):
        return 64 * (j % 2) + 32 * b + 16 + 4 * nt

    def setflag(*lanes):
        e(f"s_mov_b64 exec, {sum(1 << l for l in lanes)}")
        a.vmem(f"buffer_store_dwordx2 v[{V_TOK}:{V_TOK + 1}], v0, {WS}, 0 offen sc1", "fl")
        e("s_mov_b64 exec, -1")

    VQ = 120
    VH = 16

    def fq_load():
        a.vmem(f"buffer_load_dwordx2 v[{VQ}:{VQ + 1}], v{VQ + 2}, {WS}, 0 offen sc1", "fq")

    a.label("L_p2_late")
    e(f"buffer_load_dwordx2 v[{VFL}:{VFL + 1}], v{VFA}, {WS}, 0 offen sc1")
    e("s_waitcnt vmcnt(0)")
    e(f"v_cmp_eq_u64 vcc, v[{VFL}:{VFL + 1}], v[{V_TOK}:{V_TOK + 1}]")
    e("s_nop 1")
    e("s_cmp_eq_u64 vcc, -1")
    e("s_cbranch_scc1 L_p2_fok")
    e(f"s_sleep {OPT.get('slp', 4)}")
    e("s_branch L_p2_late")
    a.label("L_p2_fok")
    p2_issueA(a)
    e("s_waitcnt vmcnt(0)")
    a.label("L_p2_go")
    stamp(a, 0)
    a.vm = ["old"]
    e(f"s_and_b32 s{ST}, s{SWAVE}, 1")
    e(f"s_lshl_b32 s{ST}, s{ST}, 12")
    e(f"v_add_u32 v{VAR}, s{ST}, v{VL16}")
    for k in range(1, NBASE):
        e(f"v_add_u32 v{VAR + k}, {65536 * k}, v{VAR}")
    e(f"v_lshlrev_b32 v{t0}, 2, v{vG}")
    e(f"v_lshrrev_b32 v{t1}, 2, v{vi}")
    e(f"v_add_u32 v{t0}, v{t0}, v{t1}")
    e(f"v_and_b32 v{t1}, 7, v{t0}")
    e(f"s_lshr_b32 s{ST}, s{SWAVE}, 1")
    e(f"s_lshl_b32 s{ST}, s{ST}, 2")
    e(f"v_xor_b32 v{t1}, s{ST}, v{t1}")
    e(f"v_lshlrev_b32 v{t0}, 8, v{t0}")
    e(f"v_and_b32 v{t2}, 3, v{vi}")
    e(f"v_lshlrev_b32 v{t2}, 3, v{t2}")
    e(f"v_add_u32 v{t0}, v{t0}, v{t2}")
    e(f"v_add_u32 v{t0}, 16384, v{t0}")
    for nt in range(4):
        e(f"v_xor_b32 v{t3}, {nt}, v{t1}")
        e(f"v_lshlrev_b32 v{t3}, 5, v{t3}")
        e(f"v_add_u32 v{VBR + nt}, v{t0}, v{t3}")
        for k in range(1, NBASE):
            e(f"v_add_u32 v{VBR + 4 * k + nt}, {65536 * k}, v{VBR + nt}")
    VBW = 26
    e(f"v_add_u32 v{VBW}, s{SM0B}, v{VL16}")
    e(f"v_add_u32 v{VBW + 1}, 65536, v{VBW}")
    e(f"v_and_b32 v{t0}, 1, v{vG}")
    e(f"v_lshlrev_b32 v{t0}, 10, v{t0}")
    e(f"v_lshrrev_b32 v{t1}, 1, v{vG}")
    e(f"v_lshlrev_b32 v{t1}, 8, v{t1}")
    e(f"v_lshlrev_b32 v{VH}, 4, v{vi}")
    e(f"v_add3_u32 v{VH}, v{VH}, v{t0}, v{t1}")
    stamp(a, 1)
    e(f"s_cmp_eq_u32 s{SROLE}, 0")
    e(f"s_cbranch_scc1 L_p2_r0")
    vm_save = list(a.vm)

    import math
    PERIOD = S * 4 // math.gcd(S, 4)

    def body(role):
        R = f"r{role}"
        o0 = OPT.get('o0', 5)
        na0 = n0 - o0
        assert 16 < na0 <= 32 and 5 <= o0 <= 11
        nact = na0 if role == 0 else 56 - na0
        N = nact + (o0 if role == 0 else 16 - o0)
        JO = nact - (S - 1)
        JP = N - OPT['pj']
        if role == 0:
            runs = {16: (5, 1, 7)}
        else:
            nl1 = 32 - na0
            runs = {16 + nl1: (2, 7, 14)}
            if nl1:
                runs[16] = (5 + 7 * (na0 - 16), 1, 7)

        def bperm(op):
            e(f"s_and_b32 s{ST + 9}, s{SWAVE}, 1")
            e(f"s_mul_i32 s{ST + 9}, s{ST + 9}, {-12 * 2048}")
            for j4 in range(4):
                e(f"{op} v{VBD + j4}, s{ST + 9}, v{VBD + j4}")
                if j4 < 3:
                    e(f"s_add_u32 s{ST + 9}, s{ST + 9}, {4 * 2048}")

        def newrun(j):
            if j == nact:
                def sw():
                    e(f"s_lshr_b32 s{ST + 11}, s{SWAVE}, 1")
                    if role:
                        e(f"s_add_u32 s{ST + 11}, s{ST + 11}, {2 * o0}")
                    e(f"s_lshl_b32 s{SOB}, s{ST + 11}, 16")
                    e(f"s_lshl_b32 s{SOA}, s{SMT}, 5")
                    e(f"s_add_u32 s{SOA}, s{SOA}, s{ST + 11}")
                    e(f"s_lshl_b32 s{SOA}, s{SOA}, 13")
                    e(f"s_add_u32 s{SOA}, s{SOA}, {OF_OFF}")
                    e(f"s_mov_b32 s{P_SSA}, 16384")
                    e(f"s_mov_b32 s{P_SSB}, 131072")
                    if role == 1:
                        bperm("v_subrev_u32")
                return [sw]
            if j in runs:
                c0, c1, st_ = runs[j]

                def sw():
                    r = p2_setrun(a, (c0, c1), st_)
                    e(f"s_lshl_b32 s{SOB}, s{r}, 16")
                    e(f"s_mul_i32 s{SOA}, s{SMT}, 144")
                    e(f"s_add_u32 s{SOA}, s{SOA}, s{r}")
                    e(f"s_lshl_b32 s{SOA}, s{SOA}, 13")
                    e(f"s_mov_b32 s{P_SSA}, {st_ * 8192}")
                    e(f"s_mov_b32 s{P_SSB}, {st_ * 65536}")
                    if st_ == 14:
                        bperm("v_add_u32")
                return [sw]
            return []

        def dmaA(j):
            f = newrun(j)
            f.append(lambda: e(f"s_add_u32 m0, s{SM0A}, {(j % S) * SLOT}"))
            for i in range(4):
                f.append(lambda i=i: a.vmem(
                    f"buffer_load_dwordx4 v{VAD}, {WS}, s{SOA} offen offset:{1024 * i} {OPT['k2a']} lds", f"D{j}"))
            f.append(lambda: e(f"s_add_u32 s{SOA}, s{SOA}, s{P_SSA}"))
            return f

        def dmaB(j):
            sr = SW2 if j < nact else SWO
            f = []
            k = j - (S - 1)
            if 0 <= k < OPT.get('pb', 0):
                sl = j % S
                for i in range(4):
                    f.append(lambda i=i: e(
                        f"ds_write_b128 v{VBW + sl // 2}, {ar(128 + 16 * k + 4 * i)} offset:{(sl % 2) * SLOT + 1024 * i}"))
                return f
            f.append(lambda: e(f"s_add_u32 m0, s{SM0B}, {(j % S) * SLOT}"))
            for i in range(4):
                f.append(lambda i=i: a.vmem(
                    f"buffer_load_dwordx4 v{VBD + i}, s[{sr}:{sr + 3}], s{SOB} offen offset:{1024 * i} lds", f"D{j}"))
            f.append(lambda: e(f"s_add_u32 s{SOB}, s{SOB}, s{P_SSB}"))
            return f

        def reads(j):
            sl = j % S
            k, so = sl // 2, (sl % 2) * SLOT
            f = []
            for q in range(4):
                for b in range(2):
                    f.append(lambda b=b, q=q: e(
                        f"ds_read_b128 {ar(FA(j, b, q))}, v{VAR + k} offset:{so + 8192 * b + 1024 * q}"))
                    for ins in range(2):
                        f.append(lambda b=b, q=q, ins=ins: e(
                            f"ds_read_b64_tr_b16 {ar(FB(j, b, q) + 2 * ins, 2)}, v{VBR + 4 * k + q} offset:{so + 8192 * b + 4096 * ins}"))
            return f

        late = []
        for mp in range(2):
            late.append(f"buffer_store_dwordx4 {vr(240 + 4 * mp)}, v{VH}, {WS}, s{P_SL + 2} offen offset:{2048 * mp} sc1")
        for g_, base in enumerate((192, 224)):
            for mt in range(4):
                late.append(f"buffer_store_dwordx4 {vr(base + 4 * mt)}, v{VL16}, {WS}, s{P_SL + g_} offen offset:{1024 * mt} sc1")
        TR = OPT.get('tr', 3)
        TRS = OPT.get('trs', 0)
        NTR = -(-10 // TR) + TRS
        JFQ = OPT.get('jfq', 2)

        e("s_barrier")
        stamp(a, 2)
        VK = 48
        PD, PO, PEPS, PR = 48, 96, 112, 116

        def poll(lab, vv, reload):
            a.label(f"L_p2{R}_{lab}w")
            e(f"v_cmp_eq_u64 vcc, v[{vv}:{vv + 1}], v[{V_TOK}:{V_TOK + 1}]")
            e("s_nop 1")
            e("s_cmp_eq_u64 vcc, -1")
            e(f"s_cbranch_scc1 L_p2{R}_{lab}ok")
            e("s_sleep 4")
            sv = list(a.vm)
            reload()
            a.vm = sv
            e("s_waitcnt vmcnt(0)")
            e(f"s_branch L_p2{R}_{lab}w")
            a.label(f"L_p2{R}_{lab}ok")

        def fl_load(tag="F"):
            a.vmem(f"buffer_load_dwordx2 v[{VFL}:{VFL + 1}], v{VFA}, {WS}, 0 offen sc1", tag)

        def red_guard(lab):
            e(f"s_cmp_eq_u32 s{P_SEARLY}, 0")
            e(f"s_cbranch_scc1 L_p2{R}_{lab}")

        J1 = OPT.get('j1', 4)
        J2 = OPT.get('j2', 12)

        def pre(j):
            if j == JFQ:
                a.wait(["old"])
            if j == NTR + 2:
                a.wait(["sl"])
            if j == 16 - S + 1:
                a.wait(["FL"])
                poll("l", VFL, fl_load)
            if j == J2 + 2:
                a.wait(["fq"])
                poll("k", VQ, fq_load)
            if j == J2 + 4:
                a.wait(["pq"])
            if j == J2 + 8:
                a.wait(["ost"])
            if j == JO:
                a.wait(["F"])
                poll("o", VFL, fl_load)
            if role == 1 and j == JP:
                a.wait(["F2"])
                poll("p", VFL, fl_load)

        def extra(j):
            if j == JFQ:
                setflag(1)
            if j == J1:
                e(f"s_and_b32 s{ST}, s2, 3")
                e(f"s_cmp_eq_u32 s{ST}, s{SWAVE}")
                e(f"s_cselect_b32 s{P_SEARLY}, 1, 0")
                e(f"s_cmp_lt_u32 s2, 192")
                e(f"s_cselect_b32 s{P_SEARLY}, s{P_SEARLY}, 0")
                e(f"s_mul_i32 s{P_SHD}, s2, 171")
                e(f"s_lshr_b32 s{P_SHD}, s{P_SHD}, 10")
                e(f"s_min_u32 s{P_SHD}, s{P_SHD}, 31")
                e(f"s_lshr_b32 s{ST}, s{P_SHD}, 1")
                e(f"s_lshl_b32 s{ST}, s{ST}, 9")
                e(f"s_add_u32 s{ST}, s{ST}, {FQ_OFF}")
                e(f"v_and_b32 v{VQ + 2}, 31, v{VL}")
                e(f"v_lshlrev_b32 v{VQ + 2}, 3, v{VQ + 2}")
                e(f"v_add_u32 v{VQ + 2}, s{ST}, v{VQ + 2}")
                fq_load()
            if j == NTR + 2:
                setflag(4)
                srd(a, SOUT, S_PTR + 16, S_PTR + 17, 2048 * 1024 * 2)
            if j == 16 - S - 1:
                e(f"s_lshl_b32 s{ST}, s{SMT}, 9")
                e(f"s_add_u32 s{ST}, s{ST}, {FA_OFF}")
                e(f"v_lshlrev_b32 v{VFA}, 3, v{VL}")
                e(f"v_add_u32 v{VFA}, s{ST}, v{VFA}")
                fl_load("FL")
            if j == 16 - S + 2:
                e(f"v_lshlrev_b32 v{t1}, 2, v{vi}")
                e(f"s_lshl_b32 s{ST}, s{SMT}, 9")
                e(f"s_and_b32 s{ST + 1}, s{SWAVE}, 1")
                e(f"s_lshl_b32 s{ST + 1}, s{ST + 1}, 8")
                e(f"s_add_u32 s{ST}, s{ST}, s{ST + 1}")
                e(f"s_add_u32 s{ST}, s{ST}, {G_OFF}")
                for i in range(4):
                    a.vmem(f"buffer_load_dword v{VG + i}, v{t1}, {WS}, s{ST} offen offset:{64 * i}", "g")
            if j == J2:
                e(f"s_and_b32 s{P_SHD}, s2, 31")
                e(f"s_lshr_b32 s{P_SM2}, s2, 5")
                e(f"s_lshr_b32 s{ST}, s{P_SHD}, 1")
                e(f"s_lshl_b32 s{ST}, s{ST}, 4")
                e(f"s_add_u32 s{ST}, s{ST}, s{P_SM2}")
                e(f"s_lshl_b32 s{ST}, s{ST}, 2")
                e(f"s_add_u32 s{ST}, s{ST}, s{SWAVE}")
                e(f"s_lshl_b32 s{ST}, s{ST}, 3")
                e(f"s_add_u32 s{ST}, s{ST}, {FQ_OFF + 256}")
                e(f"s_lshl_b32 s{ST + 1}, s{P_SHD}, 6")
                e(f"s_add_u32 s{ST + 1}, s{ST + 1}, {FK_OFF}")
                e(f"v_lshlrev_b32 v{VQ + 2}, 3, v{VL}")
                e(f"v_add_u32 v{VQ + 2}, s{ST + 1}, v{VQ + 2}")
                e(f"v_mov_b32 v{t0}, s{ST}")
                e(f"v_cmp_gt_u32 s[{ST + 2}:{ST + 3}], 6, v{VL}")
                e("s_nop 1")
                e(f"v_cndmask_b32 v{VQ + 2}, v{t0}, v{VQ + 2}, s[{ST + 2}:{ST + 3}]")
                e(f"s_lshl_b32 s{P_SM2}, s{P_SM2}, 1")
                e(f"s_lshr_b32 s{ST}, s{SWAVE}, 1")
                e(f"s_add_u32 s{P_SM2}, s{P_SM2}, s{ST}")
                fq_load()
            if j == J2 + 2:
                e(f"s_mul_i32 s{ST}, s{P_SHD}, 3072")
                e(f"s_add_u32 s{ST}, s{ST}, {KVF_OFF}")
                e(f"v_lshlrev_b32 v{t0}, 3, v{VL}")
                for i in range(6):
                    a.vmem(f"buffer_load_dwordx2 {ar(144 + 2 * i, 2)}, v{t0}, {WS}, s{ST} offen offset:{512 * i}", "pq")
                e(f"s_mul_i32 s{ST}, s{P_SM2}, 144")
                e(f"s_add_u32 s{ST}, s{ST}, s{P_SHD}")
                e(f"s_add_u32 s{ST}, s{ST}, 112")
                e(f"s_lshl_b32 s{ST}, s{ST}, 13")
                for i in range(4):
                    a.vmem(f"buffer_load_dwordx4 {ar(128 + 4 * i)}, v{VAD}, {WS}, s{ST} offen offset:{1024 * i}", "pq")
                e(f"s_lshl_b32 s{SOP}, s{P_SM2}, 5")
                e(f"s_add_u32 s{SOP}, s{SOP}, s{P_SHD}")
                e(f"s_lshl_b32 s{SOP}, s{SOP}, 13")
                e(f"s_add_u32 s{SOP}, s{SOP}, {OF_OFF}")
                for r in range(4):
                    e(f"v_mov_b32 v{PEPS + r}, {EPS_HEX}")
            if j == J2 + 5:
                for i in range(4):
                    e(f"v_rcp_f32 v{PR + i}, v{PD + 12 * i + 8}")
                e("s_nop 0")
                for i in range(4):
                    d = PD + 12 * i
                    for q in range(8):
                        e(f"v_mul_f32 v{d + q}, v{PR + i}, v{d + q}")
                    o = PO + 4 * i
                    for q in range(4):
                        e(f"v_cvt_pk_bf16_f32 v{o + q}, v{d + 2 * q}, v{d + 2 * q + 1}")
                    a.vmem(f"buffer_store_dwordx4 {vr(o)}, v{VAD}, {WS}, s{SOP} offen offset:{1024 * i} sc1", "ost")
            if j == J2 + 8:
                setflag(2)
            if j == JO - OPT.get('fod', 2):
                assert j > J2 + 8
                e(f"s_lshl_b32 s{ST}, s{SMT}, 9")
                e(f"s_add_u32 s{ST}, s{ST}, {FO_OFF}")
                if role == 0:
                    e(f"v_min_u32 v{VFA}, {4 * o0 - 1}, v{VL}")
                else:
                    e(f"v_max_u32 v{VFA}, {4 * o0}, v{VL}")
                e(f"v_lshlrev_b32 v{VFA}, 3, v{VFA}")
                e(f"v_add_u32 v{VFA}, s{ST}, v{VFA}")
                fl_load("F")
            if role == 1 and j == JP - 1:
                e(f"s_lshl_b32 s{ST}, s{STILE}, 8")
                e(f"s_lshl_b32 s{ST + 1}, s{SWAVE}, 3")
                e(f"s_add_u32 s{ST}, s{ST}, s{ST + 1}")
                e(f"s_add_u32 s{ST}, s{ST}, {FP_OFF}")
                e(f"v_mov_b32 v{VFA}, s{ST}")
                fl_load("F2")
            if role == 1 and j == JP:
                e(f"s_lshl_b32 s{ST}, s{STILE}, 16")
                e(f"s_lshl_b32 s{ST + 1}, s{SWAVE}, 13")
                e(f"s_add_u32 s{ST}, s{ST}, s{ST + 1}")
                e(f"s_add_u32 s{ST}, s{ST}, {PART_OFF}")
                for q in range(8):
                    if q == 4:
                        e(f"s_add_u32 s{ST}, s{ST}, 4096")
                    a.vmem(f"buffer_load_dwordx4 {vr(VY + 4 * q)}, v{VL16}, {WS}, s{ST} offen offset:{1024 * (q & 3)} sc1", "PT")

        def post(j):
            if j == J1 + 1:
                red_guard("nr1")
                n_ = a.vm_count(["fq"], drop=False)
                e(f"s_waitcnt vmcnt({n_})")
                poll("q", VQ, fq_load)
                e(f"s_lshr_b32 s{ST}, s{P_SHD}, 1")
                e(f"s_mul_i32 s{ST}, s{ST}, 84")
                e(f"s_add_u32 s{ST}, s{ST}, s2")
                e(f"s_lshl_b32 s{ST}, s{ST}, 10")
                e(f"s_add_u32 s{ST}, s{ST}, {KVP_OFF}")
                for r8 in range(8):
                    e(f"buffer_load_dwordx4 {vr(VK + 4 * r8)}, v{VL16}, {WS}, s{ST} offen")
                    if r8 < 7:
                        e(f"s_add_u32 s{ST}, s{ST}, 12288")
                a.label(f"L_p2{R}_nr1")
                a.mark("r1")
            if j == J1 + 3:
                red_guard("nr2")
                n_ = a.vm_count(["#r1"], drop=False)
                if n_ is not None:
                    e(f"s_waitcnt vmcnt({n_})")
                for st_ in (1, 2, 4):
                    for r8 in range(0, 8, 2 * st_):
                        for q in range(2):
                            b0 = VK + 4 * r8 + 2 * q
                            e(f"v_pk_add_f32 {vr(b0, 2)}, {vr(b0, 2)}, {vr(b0 + 4 * st_, 2)}")
                e(f"v_cvt_pk_bf16_f32 v{VK}, v{VK}, v{VK + 1}")
                e(f"v_cvt_pk_bf16_f32 v{VK + 1}, v{VK + 2}, v{VK + 3}")
                e(f"s_mul_i32 s{ST}, s{P_SHD}, 6")
                e(f"s_sub_u32 s{ST}, s2, s{ST}")
                e(f"s_cmp_ge_u32 s{ST}, 3")
                e(f"s_cselect_b32 s{ST + 1}, 1, 0")
                e(f"s_mul_i32 s{ST + 2}, s{ST + 1}, 3")
                e(f"s_sub_u32 s{ST}, s{ST}, s{ST + 2}")
                e(f"s_mul_i32 s{ST + 2}, s{P_SHD}, 3")
                e(f"s_add_u32 s{ST}, s{ST}, s{ST + 2}")
                e(f"s_lshl_b32 s{ST}, s{ST}, 10")
                e(f"s_lshl_b32 s{ST + 1}, s{ST + 1}, 9")
                e(f"s_add_u32 s{ST}, s{ST}, s{ST + 1}")
                e(f"s_add_u32 s{ST}, s{ST}, {KVF_OFF}")
                e(f"v_lshlrev_b32 v{t0}, 3, v{VL}")
                e(f"buffer_store_dwordx2 {vr(VK, 2)}, v{t0}, {WS}, s{ST} offen sc1")
                a.label(f"L_p2{R}_nr2")
                a.mark("r2")
            if j == J1 + 5:
                red_guard("nr3")
                n_ = a.vm_count(["#r2"], drop=False)
                if n_ is not None:
                    e(f"s_waitcnt vmcnt({n_})")
                e(f"s_mov_b64 exec, {1 << 5}")
                e(f"buffer_store_dwordx2 v[{V_TOK}:{V_TOK + 1}], v0, {WS}, 0 offen sc1")
                e("s_mov_b64 exec, -1")
                a.label(f"L_p2{R}_nr3")

        def interval(j):
            if DIAG and OPT.get('ts2'):
                if j == 0:
                    e("s_mov_b32 s74, 0")
                e("s_memrealtime s[76:77]")
                e("s_waitcnt lgkmcnt(0)")
                e("s_mov_b32 m0, s74")
                e("s_nop 0")
                e(f"v_writelane_b32 v{VT + 7}, s76, m0")
                e("s_add_u32 s74, s74, 1")
            main = []
            if j >= 1:
                for mt in range(4):
                    for nt in range(4):
                        D = vr(acc2(mt, nt) + (64 if j - 1 >= nact else 0))
                        for b in range(2):
                            C = "0" if (j in (1, nact + 1) and b == 0) else D
                            main.append(f"v_mfma_f32_16x16x32_bf16 {D}, {ar(FB(j - 1, b, nt))}, {ar(FA(j - 1, b, mt))}, {C}")
            pre(j)
            if j == J2 + 4:
                pm = []
                for i in range(4):
                    d = PD + 12 * i
                    pq = ar(128 + 4 * i)
                    pm += [f"v_mfma_f32_16x16x32_bf16 {vr(d + 8)}, {ar(152)}, {pq}, {vr(PEPS)}",
                           f"v_mfma_f32_16x16x32_bf16 {vr(d)}, {ar(144)}, {pq}, 0",
                           f"v_mfma_f32_16x16x32_bf16 {vr(d + 4)}, {ar(148)}, {pq}, 0"]
                main = pm + main
            rd = reads(j) if j < N else []
            dm = (dmaA(j + S - 1) + dmaB(j + S - 1)) if j + S - 1 < N else []
            for x in (late[TR * (j - TRS): TR * (j - TRS) + TR] if j >= TRS else []):
                dm.append(lambda x=x: a.vmem(x, "sl"))
            streams = []
            if nact + 1 <= j <= nact + 4:
                mt = j - (nact + 1)
                it = []
                if mt == 0:
                    a.wait(["g"])
                it.append(lambda mt=mt: e(f"v_sub_f32 v{VOMG + mt}, 1.0, v{VG + mt}"))
                for q in range(16):
                    it.append(lambda mt=mt, q=q: e(f"v_mul_f32 v{acc2(mt, 0) + q}, v{VOMG + mt}, v{acc2(mt, 0) + q}"))
                streams.append((it, 10, 30))
            n = max(len(main), 1)
            ex = capture(a, lambda: extra(j), chunk=1)
            if ex:
                streams.append((ex, 1, min(n * 0.97, 1 + 1.2 * len(ex))))
            schedule(a, main, [(rd, 0, n * 0.85), (dm, 0.5, n * 0.95)] + streams)
            post(j)
            if j < N:
                a.wait([f"D{j + 1}"] if j + 1 < N else [], lgkm=True)
                if j + 1 < N:
                    e("s_barrier")

        iters = []
        for j in range(N + 1):
            n_ = len(a.lines)
            if j == 4:
                stamp(a, 3)
            if j == nact:
                stamp(a, 4)
            interval(j)
            iters.append(a.lines[n_:])
            del a.lines[n_:]
        fold_loops(a, iters, PERIOD, SCNT, f"p2{R}")
        stamp(a, 5)
        if role == 0:
            e(f"s_lshl_b32 s{ST}, s{STILE}, 16")
            e(f"s_lshl_b32 s{ST + 1}, s{SWAVE}, 13")
            e(f"s_add_u32 s{ST}, s{ST}, s{ST + 1}")
            e(f"s_add_u32 s{ST}, s{ST}, {PART_OFF}")
            e("s_nop 7")
        else:
            vo = VT + 4
            if OPT.get('fl'):
                e(f"v_and_b32 v{t2}, 7, v{vi}")
                e(f"v_lshlrev_b32 v{t2}, 11, v{t2}")
                e(f"v_lshrrev_b32 v{t3}, 3, v{vi}")
                e(f"v_lshlrev_b32 v{t3}, 6, v{t3}")
                e(f"v_add_u32 v{t2}, v{t2}, v{t3}")
            else:
                e(f"v_lshlrev_b32 v{t2}, 11, v{vi}")
            e(f"v_bfe_u32 v{t3}, v{VL}, 4, 1")
            e(f"v_lshlrev_b32 v{t3}, 5, v{t3}")
            e(f"v_add_u32 v{t2}, v{t2}, v{t3}")
            e(f"v_lshrrev_b32 v{t3}, 5, v{VL}")
            e(f"v_lshlrev_b32 v{t3}, 4, v{t3}")
            e(f"v_add_u32 v{vo}, v{t2}, v{t3}")
            e(f"v_add_u32 v{vo + 1}, 16384, v{vo}")
            e(f"s_lshl_b32 s{ST}, s{SMT}, 7")
            e(f"s_and_b32 s{ST + 1}, s{SWAVE}, 1")
            e(f"s_lshl_b32 s{ST + 1}, s{ST + 1}, 6")
            e(f"s_add_u32 s{ST}, s{ST}, s{ST + 1}")
            e(f"s_lshl_b32 s{ST}, s{ST}, 11")
            e(f"s_lshl_b32 s{ST + 1}, s{SNT}, 8")
            e(f"s_add_u32 s{ST}, s{ST}, s{ST + 1}")
            e(f"s_lshr_b32 s{ST + 1}, s{SWAVE}, 1")
            e(f"s_lshl_b32 s{ST + 1}, s{ST + 1}, 7")
            e(f"s_add_u32 s{ST}, s{ST}, s{ST + 1}")
            a.wait(["PT"])
        for mt in range(4):
            sel = "op_sel:[1,0,0] op_sel_hi:[1,1,1]" if mt & 1 else "op_sel_hi:[0,1,1]"
            for q in range(8):
                b0 = acc2(mt, 0) + 2 * q
                e(f"v_pk_fma_f32 {vr(b0, 2)}, {vr(VG + (mt & 2), 2)}, {vr(b0 + 64, 2)}, {vr(b0, 2)} {sel}")
            if role == 0:
                for h2 in range(2):
                    q = 2 * mt + h2
                    b0 = AC + 8 * q
                    for r in range(4):
                        e(f"v_cvt_pk_bf16_f32 v{b0 + r}, v{b0 + 2 * r}, v{b0 + 2 * r + 1}")
                    e(f"buffer_store_dwordx4 {vr(b0)}, v{VL16}, {WS}, s{ST} offen offset:{1024 * (q & 3)} sc1")
                    if q == 3:
                        e(f"s_add_u32 s{ST}, s{ST}, 4096")
            else:
                for q in range(8):
                    p0 = VY + 8 * mt + q
                    u = 48 + 2 * q
                    e(f"v_lshlrev_b32 v{u}, 16, v{p0}")
                    e(f"v_and_b32 v{u + 1}, 0xffff0000, v{p0}")
                for q in range(8):
                    b0 = acc2(mt, 0) + 2 * q
                    e(f"v_pk_add_f32 {vr(b0, 2)}, {vr(b0, 2)}, {vr(48 + 2 * q, 2)}")
                for pr in range(2):
                    b0 = acc2(mt, 2 * pr)
                    for q in range(4):
                        e(f"v_cvt_pk_bf16_f32 v{b0 + q}, v{b0 + 2 * q}, v{b0 + 2 * q + 1}")
                e("s_nop 1")
                for pr in range(2):
                    b0 = acc2(mt, 2 * pr)
                    e(f"v_permlane16_swap_b32 v{b0}, v{b0 + 2}")
                    e(f"v_permlane16_swap_b32 v{b0 + 1}, v{b0 + 3}")
                if OPT.get('fl'):
                    q0, q1 = acc2(mt, 0), acc2(mt, 2)
                    tq = q0 + 4
                    for r in range(4):
                        e(f"v_mov_b32 v{tq + r}, v{q0 + r}")
                    for r in range(4):
                        e(f"v_mov_b32_dpp v{q0 + r}, v{q1 + r} row_ror:8 row_mask:0xf bank_mask:0xc")
                    for r in range(4):
                        e(f"v_mov_b32_dpp v{q1 + r}, v{tq + r} row_ror:8 row_mask:0xf bank_mask:0x3")
                    e(f"buffer_store_dwordx4 {vr(q0)}, v{vo}, s[{SOUT}:{SOUT + 3}], s{ST} offen {OPT.get('ost', '')}")
                    e(f"buffer_store_dwordx4 {vr(q1)}, v{vo + 1}, s[{SOUT}:{SOUT + 3}], s{ST} offen {OPT.get('ost', '')}")
                else:
                    for pr in range(2):
                        b0 = acc2(mt, 2 * pr)
                        e(f"buffer_store_dwordx4 {vr(b0)}, v{vo}, s[{SOUT}:{SOUT + 3}], s{ST} offen offset:{64 * pr} {OPT.get('ost', '')}")
                if mt < 3:
                    e(f"s_add_u32 s{ST}, s{ST}, 32768")
        if role == 0:
            e("s_waitcnt vmcnt(0)")
            setflag(3)
        stamp(a, 6)
        if DIAG and OPT.get('ts2'):
            e(f"s_mov_b32 s76, s{S_PTR + 20}")
            e(f"s_and_b32 s77, s{S_PTR + 21}, 0xffff")
            e(f"s_mov_b32 s78, 0x4000000")
            e(f"s_mov_b32 s79, 0x20000")
            e(f"s_lshl_b32 s75, s2, 2")
            e(f"s_add_u32 s75, s75, s{S_WAVE}")
            e(f"s_lshl_b32 s75, s75, 8")
            e(f"s_add_u32 s75, s75, {DIAG_OFF + 0x200000}")
            e(f"v_lshlrev_b32 v{VT}, 2, v{VL}")
            e(f"buffer_store_dword v{VT + 7}, v{VT}, s[76:79], s75 offen")
        if DIAG:
            e("s_waitcnt vmcnt(0)")
        stamp(a, 7)
        stamp_dump(a, 1, 8, SWAVE, S_PTR + 20, S_PTR + 21, VT + 5)
        e("s_endpgm")

    body(1)
    a.label("L_p2_r0")
    a.vm = vm_save
    body(0)


def fix_hazards(lines):
    out = []
    for i, ln in enumerate(lines):
        out.append(ln)
        if " m0," in ln and i + 1 < len(lines) and lines[i + 1].rstrip().endswith("lds"):
            out.append("  s_nop 0")
    return out


def gen_spin():
    a = Asm()
    e = a.e
    spec = OPT['spin']
    A_, B_, M = spec.split(",")
    a.lines.append(".globl spin_kernel\n.p2align 8\n.type spin_kernel,@function\nspin_kernel:")
    e("s_cmp_lg_u32 s2, 0")
    e("s_cbranch_scc1 L_spin_end")
    e("s_load_dwordx2 s[4:5], s[0:1], 80")
    e("v_lshlrev_b32 v1, 7, v0")
    e("s_waitcnt lgkmcnt(0)")
    e("s_mov_b32 s8, s4\ns_and_b32 s9, s5, 0xffff\ns_mov_b32 s10, 0x4000000\ns_mov_b32 s11, 0x20000")

    def red(sp, sdst):
        k, st, op = sp.split(".")
        base = DIAG_OFF + int(k) * 0x100000 + 8 * int(st) + 4
        for i in range(16):
            e(f"s_mov_b32 s12, {base + i * 8192}")
            e(f"buffer_load_dword v{8 + i}, v1, s[8:11], s12 offen")
        e("s_waitcnt vmcnt(0)")
        for i in range(1, 16):
            e(f"v_{op}_u32 v8, v8, v{8 + i}")
        e("s_nop 1")
        e(f"v_readlane_b32 s{sdst}, v8, 0")
        for l in range(1, 64):
            e(f"v_readlane_b32 s13, v8, {l}")
            e("s_nop 0")
            e(f"s_{op}_u32 s{sdst}, s{sdst}, s13")
    red("0.0.min", 20)
    red(A_, 21)
    red(B_, 22)
    e("s_sub_u32 s22, s22, s21")
    e(f"s_mul_i32 s22, s22, {M}")
    e("s_add_u32 s22, s22, 12000")
    e("s_min_u32 s22, s22, 90000")
    a.label("L_spin")
    e("s_memrealtime s[14:15]")
    e("s_waitcnt lgkmcnt(0)")
    e("s_sub_u32 s16, s14, s20")
    e("s_cmp_lt_u32 s16, s22")
    e("s_cbranch_scc1 L_spin")
    a.label("L_spin_end")
    e("s_endpgm")
    return a.lines


def kd(name, nfv, accum):
    return f""".amdhsa_kernel {name}
  .amdhsa_next_free_vgpr {nfv}
  .amdhsa_next_free_sgpr 102
  .amdhsa_accum_offset {accum}
  .amdhsa_group_segment_fixed_size 0
  .amdhsa_kernarg_size 88
  .amdhsa_user_sgpr_count 2
  .amdhsa_user_sgpr_kernarg_segment_ptr 1
  .amdhsa_system_sgpr_workgroup_id_x 1
.end_amdhsa_kernel"""


def main(path):
    hdr = open(f"cdna_kernels/{NAME}.s.ref").read().split("; Override launch")[0]
    out = [hdr.rstrip("\n")]
    kn = NAME + "_kernel"
    if OPT.get('spin'):
        out.append(f"; @launch kernel={kn} grid=(256,1,1) block=(256,1,1) lds={K2_LDS()}")
        out.append("; @launch kernel=spin_kernel grid=(1,1,1) block=(64,1,1) lds=0")
    else:
        out.append(f"; @launch grid=(256,1,1) block=(256,1,1) lds={K2_LDS()}")
    out.append('.amdgcn_target "amdgcn-amd-amdhsa--gfx950"')
    out.append(".text")
    out += [ln.replace("KNAME", kn) for ln in fix_hazards(gen_k1())]
    if OPT.get('spin'):
        out += gen_spin()
    out.append('.section .rodata,"a"')
    if OPT.get('spin'):
        out.append(".p2align 6")
        out.append(kd("spin_kernel", 32, 32))
    out.append(".p2align 6")
    out.append(kd(kn, 512, 256))
    open(path, "w").write("\n".join(out) + "\n")


if __name__ == "__main__":
    if "--dbgout" in sys.argv:
        DBGOUT = True
        sys.argv.remove("--dbgout")
    if "--diag" in sys.argv:
        DIAG = True
        sys.argv.remove("--diag")
    for arg in list(sys.argv):
        if "=" in arg:
            k_, v_ = arg.split("=")
            OPT[k_] = int(v_) if v_.isdigit() else v_.replace("+", " ")
            sys.argv.remove(arg)
    main(sys.argv[1] if len(sys.argv) > 1 else f"cdna_kernels/{NAME}.s")
```

```python
import sys

NAME = "gated_mix__linear_attn_block__dense_activation_mish__prompt"

AF_OFF = 0
AF_BYTES = 16 * 144 * 8 * 1024
KVP_OFF = AF_BYTES
KVP_BYTES = 16 * 8 * 12 * 1024
KVF_OFF = KVP_OFF + KVP_BYTES
KVF_BYTES = 32 * 3 * 1024
G_OFF = KVF_OFF + KVF_BYTES
PART_OFF = G_OFF + 8192
OF_OFF = PART_OFF + 128 * 65536
FLG_OFF = OF_OFF + 16 * 32 * 8192
FE_OFF = FLG_OFF - 0 + 32768 + 128 * 256
FA_OFF = FLG_OFF
FQ_OFF = FA_OFF + 8192
FO_OFF = FQ_OFF + 8192
FP_OFF = FO_OFF + 8192
FK_OFF = FE_OFF + 8192
WS_USED = FK_OFF + 2048
assert FP_OFF + 128 * 256 <= FE_OFF
V_TOK = 14

DIAG = False
DBGOUT = False
OPT = dict(k1a="", k1b="", k2a="", k2b="", st="sc1", ost="sc1", fl=1, pf=2, xpf=0, n0=34, o0=6, tr=5, cpf=2, map=0, fepos=1, S=4, pbf=1, pj=1, pprio=0, cprio=0, rdend=26)
DIAG_OFF = 0x2000000
EPS_HEX = "0x358637bd"
L2E_HEX = "0x3fb8aa3b"


class Asm:
    def __init__(self):
        self.lines = []
        self.vm = []

    def e(self, s):
        for ln in s.split("\n"):
            self.lines.append("  " + ln.strip())

    def label(self, s):
        self.lines.append(s + ":")

    def vmem(self, s, tag):
        self.e(s)
        self.vm.append(tag)

    def mark(self, tag):
        self.vm.append("#" + tag)

    def vm_count(self, tags, drop=True):
        idx = -1
        for i, t in enumerate(self.vm):
            if t in tags:
                idx = i
        if idx < 0:
            return None
        n = sum(1 for t in self.vm[idx + 1:] if not t.startswith("#"))
        if drop:
            self.vm = self.vm[idx + 1:]
        assert n <= 63, n
        return n

    def wait(self, tags=(), lgkm=False):
        n = self.vm_count(tags) if tags else None
        parts = []
        if n is not None:
            parts.append(f"vmcnt({n})")
        if lgkm:
            parts.append("lgkmcnt(0)")
        if parts:
            self.e("s_waitcnt " + " ".join(parts))


def stamp(a, idx, sbase=80):
    if not DIAG:
        return
    a.e(f"s_memtime s[{sbase - 4}:{sbase - 3}]")
    a.e(f"s_memrealtime s[{sbase - 2}:{sbase - 1}]")
    a.e("s_waitcnt lgkmcnt(0)")
    a.e(f"s_mov_b32 s{sbase + 2 * idx}, s{sbase - 4}")
    a.e(f"s_mov_b32 s{sbase + 2 * idx + 1}, s{sbase - 2}")


def stamp_dump(a, kidx, n, swave, sptr_lo, sptr_hi, vtmp, sbase=80):
    if not DIAG:
        return
    e = a.e
    e(f"s_mov_b32 s{sbase - 4}, s{sptr_lo}")
    e(f"s_and_b32 s{sbase - 3}, s{sptr_hi}, 0xffff")
    e(f"s_mov_b32 s{sbase - 2}, 0x4000000")
    e(f"s_mov_b32 s{sbase - 1}, 0x20000")
    e(f"s_lshl_b32 s75, s2, 2")
    e(f"s_add_u32 s75, s75, s{swave}")
    e(f"s_lshl_b32 s75, s75, 7")
    e(f"s_add_u32 s75, s75, {DIAG_OFF + kidx * 0x100000}")
    e(f"v_mov_b32 v{vtmp}, 0")
    e("s_mov_b64 exec, 1")
    for i in range(2 * n):
        e(f"v_mov_b32 v{vtmp + 1}, s{sbase + i}")
        e(f"buffer_store_dword v{vtmp + 1}, v{vtmp}, s[{sbase - 4}:{sbase - 1}], s75 offen offset:{4 * i}")
        e("s_nop 1")
    e("s_mov_b64 exec, -1")
    if DBGOUT:
        lab = f"L_dbg_{len(a.lines)}"
        e(f"s_cmp_lg_u32 s2, 1")
        e(f"s_cbranch_scc1 {lab}")
        e(f"s_cmp_lg_u32 s{swave}, 0")
        e(f"s_cbranch_scc1 {lab}")
        e(f"s_mov_b32 s{sbase - 4}, s{sptr_lo - 2}")
        e(f"s_and_b32 s{sbase - 3}, s{sptr_hi - 2}, 0xffff")
        e(f"s_mov_b32 s{sbase - 2}, 256")
        e("s_mov_b64 exec, 1")
        for i in range(n):
            e(f"v_mov_b32 v{vtmp + 1}, s{sbase + 2 * i + 1}")
            e(f"buffer_store_dword v{vtmp + 1}, v{vtmp}, s[{sbase - 4}:{sbase - 1}], 0 offen offset:{4 * i + 32 * kidx}")
            e("s_nop 1")
        e("s_mov_b64 exec, -1")
        a.label(lab)


def vr(b, n=4):
    return f"v[{b}:{b + n - 1}]"


def ar(b, n=4):
    return f"a[{b}:{b + n - 1}]"


def interleave(a, mf, fillers, start=0, end=None):
    n = len(mf)
    if end is None:
        end = n
    nf = len(fillers)
    pos = [start + (j * (end - start)) // max(nf, 1) for j in range(nf)]
    j = 0
    for m in range(n):
        a.e(mf[m])
        while j < nf and pos[j] <= m:
            f = fillers[j]
            f()
            j += 1
    while j < nf:
        fillers[j]()
        j += 1


def capture(a, fn, chunk=2):
    n0_ = len(a.lines)
    vm0 = list(a.vm)
    fn()
    lines = a.lines[n0_:]
    tags = a.vm[len(vm0):]
    del a.lines[n0_:]
    a.vm = vm0
    items = []
    cur = []
    depth = 0
    ti = 0
    for ln in lines:
        cur.append(ln)
        if "s_cbranch" in ln or "s_mov_b64 exec, " in ln and "-1" not in ln or "s_cmp" in ln or "s_getpc" in ln or "s_sub_u32" in ln and "KNAME" in ln:
            depth = 1
        if ln.endswith(":") and not ln.startswith(" ") and "L_pc" not in ln or "s_mov_b64 exec, -1" in ln and not any("s_cbranch" in x for x in cur) or "s_cselect" in ln or "s_subb_u32" in ln:
            depth = 0
        if depth == 0 and len(cur) >= chunk:
            items.append(cur)
            cur = []
    if cur:
        items.append(cur)
    out = []
    for it in items:
        guarded = any("s_cbranch" in x for x in it)
        nv = 0 if guarded else sum(1 for x in it if x.strip().startswith(("buffer_", "global_")))
        tg = tags[ti:ti + nv]
        ti += nv

        def emit(it=it, tg=tg):
            a.lines.extend(it)
            a.vm.extend(tg)
        out.append(emit)
    rest = tags[ti:]
    assert all(t.startswith("#") for t in rest), (ti, tags)
    if rest:
        out.append(lambda rest=rest: a.vm.extend(rest))
    return out


def srd(a, d, lo, hi, nbytes, bias=0):
    if bias:
        a.e(f"s_sub_u32 s{d}, s{lo}, {bias}")
        a.e(f"s_subb_u32 s{d + 1}, s{hi}, 0")
        a.e(f"s_and_b32 s{d + 1}, s{d + 1}, 0xffff")
    else:
        a.e(f"s_mov_b32 s{d}, s{lo}")
        a.e(f"s_and_b32 s{d + 1}, s{hi}, 0xffff")
    a.e(f"s_mov_b32 s{d + 2}, {nbytes + bias}")
    a.e(f"s_mov_b32 s{d + 3}, 0x20000")


K1_BSLOT = 13312
K1_AREA = 3328
K1_ABASE = 4 * K1_BSLOT
K1_LDS = K1_ABASE + 4 * 16384
ACC0 = 48


def acc(t, mt):
    return ACC0 + 16 * t + 4 * mt


V_LANE = 1
V_ARD = 2
V_QRD = 4
V_HRD = 8
V_ADMA = 9
V_BDMA = 13
V_L16 = 17
V_T = 18
S_X, S_Q, S_W1, S_WS, S_MISC = 4, 8, 12, 16, 20
S_WAVE, S_RB, S_P = 24, 25, 26
S_OFFA, S_OFFA2, S_OFFQ, S_OFFH = 27, 28, 29, 30
S_M0B, S_M0A = 31, 32
S_CNT = 33
S_QM = 34
S_PTR = 36
S_L2E = 58
S_T = 60
S_AFB = 72
S_GROW = 73
S_PO1, S_PO2 = 74, 3
S_PT, S_PTE = 100, 101
S_CB = 100
S_PF1, S_PF2 = 96, 20


def bset(s, t):
    return 52 * s + 4 * t


ASET = {"X": 104, "Y": 120, "Z": 136}


def k1_body(a, typ):
    T = "A" if typ == 0 else "B"
    nq = 8 if typ == 0 else 4
    nh = 13 - nq
    Ph = 2 * nh
    HB = 256 * nq
    e = a.e
    vi, vG, t0, t1, t2, t3 = V_T, V_T + 1, V_T + 2, V_T + 3, V_T + 4, V_T + 5
    e(f"v_and_b32 v{vi}, 15, v{V_LANE}")
    e(f"v_lshrrev_b32 v{vG}, 4, v{V_LANE}")
    e(f"s_mul_i32 s{S_T + 2}, s{S_P}, 448")
    if typ:
        e(f"s_add_u32 s{S_T + 2}, s{S_T + 2}, 160")

    e(f"s_lshr_b32 s{S_T + 8}, s{S_WAVE}, 1")
    e(f"s_lshl_b32 s{S_T + 8}, s{S_T + 8}, 4")
    e(f"s_and_b32 s{S_T + 9}, s{S_WAVE}, 1")
    e(f"s_lshl_b32 s{S_T + 9}, s{S_T + 9}, 2")
    e(f"s_add_u32 s{S_T + 8}, s{S_T + 8}, s{S_T + 9}")

    def krow(dst, kp, tmp):
        e(f"v_lshrrev_b32 v{tmp}, 2, v{kp}")
        e(f"v_lshlrev_b32 v{tmp}, 3, v{tmp}")
        e(f"v_and_b32 v{dst}, 3, v{kp}")
        e(f"v_add3_u32 v{dst}, v{dst}, v{tmp}, s{S_T + 8}")

    e(f"v_lshrrev_b32 v{t0}, 3, v{V_LANE}")
    krow(t1, t0, t2)
    e(f"v_mul_u32_u24 v{t1}, 6144, v{t1}")
    e(f"v_lshrrev_b32 v{t2}, 1, v{t0}")
    e(f"v_and_b32 v{t2}, 3, v{t2}")
    e(f"v_lshlrev_b32 v{t2}, 1, v{t2}")
    e(f"v_and_b32 v{t3}, 7, v{V_LANE}")
    e(f"v_xor_b32 v{t3}, v{t3}, v{t2}")
    e(f"v_lshlrev_b32 v{t3}, 4, v{t3}")
    e(f"v_add_u32 v{t1}, v{t1}, v{t3}")
    e(f"s_lshl_b32 s{S_T + 9}, s{S_P}, 7")
    e(f"s_add_u32 s{S_T + 9}, s{S_T + 9}, {4096 + (2048 if typ == 0 else 0)}")
    e(f"v_add_u32 v{V_BDMA}, s{S_T + 9}, v{t1}")
    if typ == 0:
        e(f"v_add_u32 v{V_BDMA + 1}, {2048 - 1024}, v{V_BDMA}")
    hins = [(2, 0), (3, 64)] if typ == 0 else [(1, 0), (2, 64), (3, 128)]
    magic, sh = (205, 11) if Ph == 10 else (57, 10)
    for s_ in range(8 * Ph + 64):
        if s_ < 8 * Ph:
            assert (s_ * magic) >> sh == s_ // Ph
    for slot, s0 in hins:
        e(f"v_add_u32 v{t0}, {s0}, v{V_LANE}")
        e(f"v_mul_u32_u24 v{t1}, {magic}, v{t0}")
        e(f"v_lshrrev_b32 v{t1}, {sh}, v{t1}")
        e(f"v_mul_u32_u24 v{t2}, {Ph}, v{t1}")
        e(f"v_sub_u32 v{t0}, v{t0}, v{t2}")
        e(f"v_and_b32 v{t1}, 7, v{t1}")
        krow(t2, t1, t3)
        e(f"v_mul_u32_u24 v{t2}, 7168, v{t2}")
        e(f"v_lshlrev_b32 v{t0}, 4, v{t0}")
        e(f"v_add3_u32 v{t0}, v{t0}, v{t2}, s{S_T + 2}")
        e(f"v_add_u32 v{V_BDMA + slot}, {4096 - 1024 * slot}, v{t0}")
    e(f"s_lshl_b32 s{S_T + 9}, s{S_RB}, 8")
    e(f"s_lshl_b32 s{S_T + 10}, s{S_WAVE}, 6")
    e(f"s_add_u32 s{S_T + 9}, s{S_T + 9}, s{S_T + 10}")
    e(f"s_lshl_b32 s{S_T + 9}, s{S_T + 9}, 11")
    e(f"v_lshrrev_b32 v{t0}, 3, v{V_LANE}")
    e(f"v_lshrrev_b32 v{t1}, 1, v{t0}")
    e(f"v_and_b32 v{t2}, 7, v{V_LANE}")
    e(f"v_xor_b32 v{t2}, v{t2}, v{t1}")
    e(f"v_lshlrev_b32 v{t0}, 11, v{t0}")
    e(f"v_add_u32 v{t0}, s{S_T + 9}, v{t0}")
    for j in range(4):
        if j & 1:
            e(f"v_xor_b32 v{t3}, 4, v{t2}")
            e(f"v_lshlrev_b32 v{t3}, 4, v{t3}")
        else:
            e(f"v_lshlrev_b32 v{t3}, 4, v{t2}")
        e(f"v_add_u32 v{t3}, v{t3}, v{t0}")
        e(f"v_add_u32 v{V_ADMA + j}, {j * (16384 - 1024)}, v{t3}")
    e(f"s_mul_i32 s{S_M0B}, s{S_WAVE}, {K1_AREA}")
    e(f"s_lshl_b32 s{S_M0A}, s{S_WAVE}, 14")
    e(f"s_add_u32 s{S_M0A}, s{S_M0A}, {K1_ABASE}")
    e(f"s_mov_b32 s{S_OFFA}, 0")
    e(f"s_mov_b32 s{S_OFFA2}, 65536")
    e(f"s_mov_b32 s{S_OFFQ}, 0")
    e(f"s_mov_b32 s{S_OFFH}, 0")
    e(f"s_mov_b32 s{S_QM}, 0xffff")
    e(f"s_mov_b32 s{S_QM + 1}, 0")

    def dmaB(tt):
        slot = tt % 4
        tag = f"B{tt}"
        f = []
        srcs = [(S_Q, S_OFFQ), (S_Q, S_OFFQ) if typ == 0 else (S_W1, S_OFFH), (S_W1, S_OFFH)]
        f.append(lambda: e(f"s_add_u32 m0, s{S_M0B}, {slot * K1_BSLOT}"))
        for j in range(3):
            sr, so = srcs[j]
            f.append(lambda j=j, sr=sr, so=so: a.vmem(
                f"buffer_load_dwordx4 v{V_BDMA + j}, s[{sr}:{sr + 3}], s{so} offen offset:{1024 * j} {OPT['k1b']} lds", tag))

        def q():
            e(f"s_mov_b64 exec, s[{S_QM}:{S_QM + 1}]")
            a.vmem(f"buffer_load_dwordx4 v{V_BDMA + 3}, s[{S_W1}:{S_W1 + 3}], s{S_OFFH} offen offset:3072 {OPT['k1b']} lds", tag)
            e("s_mov_b64 exec, -1")
        f.append(q)
        f.append(lambda: e(f"s_add_u32 s{S_OFFQ}, s{S_OFFQ}, {32 * 6144}"))
        f.append(lambda: e(f"s_add_u32 s{S_OFFH}, s{S_OFFH}, {32 * 7168}"))
        return f

    def dmaA(aa):
        slot = aa % 2
        tag = f"A{aa}"
        f = []
        for half in range(2):
            so = S_OFFA if half == 0 else S_OFFA2
            f.append(lambda half=half: e(f"s_add_u32 m0, s{S_M0A}, {slot * 8192 + half * 4096}"))
            for j in range(4):
                f.append(lambda j=j, so=so: a.vmem(
                    f"buffer_load_dwordx4 v{V_ADMA + j}, s[{S_X}:{S_X + 3}], s{so} offen offset:{1024 * j} {OPT['k1a']} lds", tag))
        f.append(lambda: e(f"s_add_u32 s{S_OFFA}, s{S_OFFA}, 128"))
        f.append(lambda: e(f"s_add_u32 s{S_OFFA2}, s{S_OFFA2}, 128"))
        return f

    def run_seq(fl):
        for fn in fl:
            n0 = len(a.lines)
            fn()
            if " m0," in a.lines[-1] and len(a.lines) == n0 + 1:
                e("s_nop 0")

    e("s_waitcnt lgkmcnt(0)")
    srd(a, S_Q, S_PTR + 2, S_PTR + 3, 1024 * 3072 * 2, bias=4096)
    srd(a, S_W1, S_PTR + 8, S_PTR + 9, 1024 * 3584 * 2, bias=4096)
    srd(a, S_X, S_PTR + 0, S_PTR + 1, 2048 * 1024 * 2)
    if not OPT.get('spin'):
        stamp(a, 0)
    if OPT.get('kst'):
        stamp(a, 4)
    run_seq(dmaB(0))
    run_seq(dmaA(0))
    srd(a, S_T + 4, S_PTR + 10, S_PTR + 11, 7168)
    e(f"v_lshlrev_b32 v{t1}, 3, v{vG}")
    for j in range(nh):
        a.vmem(f"buffer_load_dwordx2 {vr(acc(nq + j, 3), 2)}, v{t1}, s[{S_T + 4}:{S_T + 7}], s{S_T + 2} offen offset:{32 * j}", "bias")
    run_seq(dmaB(1))
    if not OPT.get('ramp'):
        run_seq(dmaB(2))
        run_seq(dmaA(1))
        run_seq(dmaB(3))
    if OPT.get('ramp') == 2:
        run_seq(dmaA(1))
    if OPT.get('ramp') == 3:
        run_seq(dmaB(2))
        run_seq(dmaA(1))
    e(f"v_lshrrev_b32 v{t0}, 3, v{vi}")
    e(f"v_lshlrev_b32 v{t0}, 6, v{t0}")
    e(f"v_and_b32 v{t1}, 7, v{vi}")
    e(f"v_lshlrev_b32 v{t1}, 3, v{t1}")
    e(f"v_add_u32 v{t0}, v{t0}, v{t1}")
    e(f"v_lshrrev_b32 v{t1}, 1, v{vi}")
    e(f"v_xor_b32 v{t1}, v{t1}, v{vG}")
    e(f"v_add_u32 v{t2}, v{t0}, v{t1}")
    e(f"v_lshlrev_b32 v{t2}, 4, v{t2}")
    e(f"v_add_u32 v{V_ARD}, s{S_M0A}, v{t2}")
    e(f"v_xor_b32 v{t1}, 4, v{t1}")
    e(f"v_add_u32 v{t2}, v{t0}, v{t1}")
    e(f"v_lshlrev_b32 v{t2}, 4, v{t2}")
    e(f"v_add_u32 v{V_ARD + 1}, s{S_M0A}, v{t2}")
    e(f"v_and_b32 v{t0}, 1, v{vG}")
    e(f"v_lshlrev_b32 v{t0}, 2, v{t0}")
    e(f"v_lshrrev_b32 v{t1}, 2, v{vi}")
    e(f"v_add_u32 v{t0}, v{t0}, v{t1}")
    e(f"v_lshrrev_b32 v{t1}, 1, v{vG}")
    e(f"v_mul_u32_u24 v{t1}, {2 * K1_AREA}, v{t1}")
    e(f"v_and_b32 v{t2}, 3, v{vi}")
    e(f"v_lshlrev_b32 v{t2}, 3, v{t2}")
    e(f"v_add_u32 v{t1}, v{t1}, v{t2}")
    e(f"v_mul_u32_u24 v{t3}, {16 * Ph}, v{t0}")
    e(f"v_add3_u32 v{V_HRD}, v{t1}, v{t3}, {0}")
    e(f"v_add_u32 v{V_HRD}, {HB}, v{V_HRD}")
    e(f"v_lshlrev_b32 v{t3}, 7, v{t0}")
    e(f"v_add_u32 v{t1}, v{t1}, v{t3}")
    e(f"v_lshrrev_b32 v{t2}, 1, v{t0}")
    e(f"v_and_b32 v{t2}, 3, v{t2}")
    for t in range(4):
        e(f"v_xor_b32 v{t3}, {t}, v{t2}")
        e(f"v_lshlrev_b32 v{t3}, 5, v{t3}")
        e(f"v_add_u32 v{V_QRD + t}, v{t1}, v{t3}")
    e(f"v_lshlrev_b32 v{V_L16}, 4, v{V_LANE}")

    gw, gx0, gx1 = V_T, V_T + 8, V_T + 16
    gt = V_T + 24
    nb = {0: 1, 1: 7, 2: 1, 3: 2, 4: 3}[OPT['pf']]
    PL1, PL2 = -(-56 // nb), -(-16 // nb)

    def misc_setup():
        srd(a, S_WS, S_PTR + 20, S_PTR + 21, WS_USED)
        tile_decode(a, S_T + 4, S_T + 5, S_T + 6, S_T + 7, S_T)
        e(f"s_lshl_b32 s{S_T}, s{S_RB}, 1")
        e(f"s_lshr_b32 s{S_T + 1}, s{S_WAVE}, 1")
        e(f"s_add_u32 s{S_T}, s{S_T}, s{S_T + 1}")
        e(f"s_lshl_b32 s{S_T}, s{S_T}, 5")
        e(f"s_lshl_b32 s{S_T + 1}, s{S_P}, 1")
        e(f"s_add_u32 s{S_T}, s{S_T}, s{S_T + 1}")
        if typ:
            e(f"s_add_u32 s{S_T}, s{S_T}, 1")
        e(f"s_lshl_b32 s{S_T}, s{S_T}, 1")
        e(f"s_and_b32 s{S_T + 1}, s{S_WAVE}, 1")
        e(f"s_add_u32 s{S_T}, s{S_T}, s{S_T + 1}")
        e(f"s_lshl_b32 s{S_T}, s{S_T}, 3")
        e(f"s_add_u32 s{S_T}, s{S_T}, {FA_OFF}")
        e(f"v_writelane_b32 v0, s{S_T}, 4")
        e(f"s_lshl_b32 s{S_T}, s{S_RB}, 1")
        e(f"s_lshr_b32 s{S_T + 3}, s{S_WAVE}, 1")
        e(f"s_add_u32 s{S_T}, s{S_T}, s{S_T + 3}")
        e(f"s_lshl_b32 s{S_T}, s{S_T}, 5")
        e(f"s_add_u32 s{S_T}, s{S_T}, s{S_P}")
        e(f"s_lshl_b32 s{S_T}, s{S_T}, 1")
        e(f"s_add_u32 s{S_T}, s{S_T}, s{S_T + 1}")
        e(f"s_lshl_b32 s{S_T}, s{S_T}, 3")
        e(f"s_add_u32 s{S_T}, s{S_T}, {FE_OFF + 256 * typ}")
        e(f"v_writelane_b32 v0, s{S_T}, 0")
        e(f"s_lshl_b32 s{S_T}, s{S_P}, 4")
        e(f"s_add_u32 s{S_T}, s{S_T}, s{S_RB}")
        e(f"s_lshl_b32 s{S_T}, s{S_T}, 2")
        e(f"s_add_u32 s{S_T}, s{S_T}, s{S_WAVE}")
        e(f"s_lshl_b32 s{S_T}, s{S_T}, 3")
        e(f"s_add_u32 s{S_T}, s{S_T}, {FQ_OFF + 256 * typ}")
        e(f"v_writelane_b32 v0, s{S_T}, 1")
        e(f"s_lshr_b32 s{S_T}, s2, 5")
        e(f"s_lshl_b32 s{S_T}, s{S_T}, 1")
        e(f"s_lshr_b32 s{S_T + 1}, s{S_WAVE}, 1")
        e(f"s_add_u32 s{S_T}, s{S_T}, s{S_T + 1}")
        e(f"s_lshl_b32 s{S_T}, s{S_T}, 9")
        e(f"s_and_b32 s{S_T + 1}, s2, 31")
        e(f"s_lshl_b32 s{S_T + 1}, s{S_T + 1}, 4")
        e(f"s_add_u32 s{S_T}, s{S_T}, s{S_T + 1}")
        e(f"s_and_b32 s{S_T + 1}, s{S_WAVE}, 1")
        e(f"s_lshl_b32 s{S_T + 1}, s{S_T + 1}, 3")
        e(f"s_add_u32 s{S_T}, s{S_T}, s{S_T + 1}")
        e(f"s_add_u32 s{S_T}, s{S_T}, {FO_OFF}")
        e(f"s_lshl_b32 s{S_T + 1}, s{S_T + 7}, 8")
        e(f"s_lshl_b32 s{S_T + 3}, s{S_WAVE}, 3")
        e(f"s_add_u32 s{S_T + 1}, s{S_T + 1}, s{S_T + 3}")
        e(f"s_add_u32 s{S_T + 1}, s{S_T + 1}, {FP_OFF}")
        e(f"s_cmp_eq_u32 s{S_T + 6}, 0")
        e(f"s_cselect_b32 s{S_T + 1}, s{S_T + 1}, 0x7ffffff0")
        e(f"v_writelane_b32 v0, s{S_T}, 2")
        e(f"v_writelane_b32 v0, s{S_T + 1}, 3")
        e(f"s_mul_i32 s{S_T}, s2, 171")
        e(f"s_lshr_b32 s{S_T}, s{S_T}, 10")
        e(f"s_lshl_b32 s{S_T}, s{S_T}, 1")
        e(f"s_add_u32 s{S_T}, s{S_T}, s2")
        e(f"s_lshl_b32 s{S_T}, s{S_T}, 3")
        e(f"s_add_u32 s{S_T}, s{S_T}, {FK_OFF}")
        e(f"v_writelane_b32 v0, s{S_T}, 5")

    def misc_setup2():
        if typ == 0:
            e(f"s_or_b32 s{S_T}, s2, s{S_WAVE}")
            e(f"s_cmp_lg_u32 s{S_T}, 0")
            e(f"s_cbranch_scc1 L_notok")
            e(f"s_memrealtime s[{S_T + 8}:{S_T + 9}]")
            srd(a, S_T + 4, S_PTR + 18, S_PTR + 19, 256)
            e("s_waitcnt lgkmcnt(0)")
            e(f"s_or_b32 s{S_T + 9}, s{S_T + 9}, 0x40000000")
            e(f"s_lshl_b32 s{S_T + 9}, s{S_T + 9}, 1")
            e(f"s_and_b32 s{S_T}, s{S_T + 8}, 1")
            e(f"s_or_b32 s{S_T + 9}, s{S_T + 9}, s{S_T}")
            e(f"s_or_b32 s{S_T + 8}, s{S_T + 8}, 1")
            e(f"v_mov_b32 v{V_T + 24}, s{S_T + 8}")
            e(f"v_mov_b32 v{V_T + 25}, s{S_T + 9}")
            e(f"v_mov_b32 v{V_T + 27}, 0")
            e("s_mov_b64 exec, 1")
            e(f"buffer_store_dwordx2 v[{V_T + 24}:{V_T + 25}], v{V_T + 27}, s[{S_T + 4}:{S_T + 7}], 0 offen sc1")
            e("s_mov_b64 exec, -1")
            e("s_nop 1")
            a.label("L_notok")
        if OPT.get('cpf') == 1:
            e(f"s_getpc_b64 s[{S_T + 4}:{S_T + 5}]")
            a.label(f"L_pc_{T}")
            e(f"s_sub_u32 s{S_T + 4}, s{S_T + 4}, L_pc_{T}-KNAME")
            e(f"s_subb_u32 s{S_T + 5}, s{S_T + 5}, 0")
            e(f"s_lshr_b32 s{S_T}, s2, 3")
            e(f"s_and_b32 s{S_T}, s{S_T}, 3")
            e(f"s_lshl_b32 s{S_T}, s{S_T}, 2")
            e(f"s_add_u32 s{S_T}, s{S_T}, s{S_WAVE}")
            e(f"s_lshl_b32 s{S_T}, s{S_T}, 13")
            e(f"v_lshlrev_b32 v{V_T + 29}, 7, v{V_LANE}")
            e(f"v_add_u32 v{V_T + 29}, s{S_T}, v{V_T + 29}")
            e(f"v_min_u32 v{V_T + 29}, L_code_end-KNAME-4, v{V_T + 29}")
            a.vmem(f"global_load_dword v{V_T + 29}, v{V_T + 29}, s[{S_T + 4}:{S_T + 5}]", "pf")
        if OPT.get('xpf') == 1:
            e(f"v_and_b32 v{V_T + 28}, 31, v{V_LANE}")
            e(f"v_lshlrev_b32 v{V_T + 28}, 7, v{V_T + 28}")
            e(f"s_lshl_b32 s{S_T}, s2, 2")
            e(f"s_add_u32 s{S_T}, s{S_T}, s{S_WAVE}")
            e(f"s_lshl_b32 s{S_T}, s{S_T}, 12")
            a.vmem(f"buffer_load_dword v{V_T + 28}, v{V_T + 28}, s[{S_X}:{S_X + 3}], s{S_T} offen", "pf")
        if OPT.get('xpf') == 2:
            e(f"v_lshlrev_b32 v{V_T + 27}, 7, v{V_LANE}")
            e(f"s_lshr_b32 s{S_T}, s2, 5")
            e(f"s_lshl_b32 s{S_T}, s{S_T}, 2")
            e(f"s_add_u32 s{S_T}, s{S_T}, s{S_WAVE}")
            e(f"s_lshl_b32 s{S_T}, s{S_T}, 14")
            e(f"s_lshl_b32 s{S_T + 1}, s{S_RB}, 19")
            e(f"s_add_u32 s{S_T}, s{S_T}, s{S_T + 1}")
            a.vmem(f"buffer_load_dword v{V_T + 28}, v{V_T + 27}, s[{S_X}:{S_X + 3}], s{S_T} offen", "pf")
            e(f"s_add_u32 s{S_T}, s{S_T}, 8192")
            a.vmem(f"buffer_load_dword v{V_T + 28}, v{V_T + 27}, s[{S_X}:{S_X + 3}], s{S_T} offen", "pf")

        e(f"v_lshlrev_b32 v{gt}, 5, v{V_LANE}")
        e(f"s_lshl_b32 s{S_GROW}, s{S_RB}, 8")
        e(f"s_lshl_b32 s{S_T + 1}, s{S_WAVE}, 6")
        e(f"s_add_u32 s{S_GROW}, s{S_GROW}, s{S_T + 1}")
        e(f"s_lshl_b32 s{S_T + 1}, s{S_P}, 2")
        e(f"s_add_u32 s{S_GROW}, s{S_GROW}, s{S_T + 1}")
        if typ:
            e(f"s_add_u32 s{S_GROW}, s{S_GROW}, 2")
        e(f"s_lshl_b32 s{S_T + 1}, s{S_GROW}, 11")
        srd(a, S_MISC, S_PTR + 14, S_PTR + 15, 2048)
        a.vmem(f"buffer_load_dwordx4 {vr(gw)}, v{gt}, s[{S_MISC}:{S_MISC + 3}], 0 offen", "g")
        a.vmem(f"buffer_load_dwordx4 {vr(gw + 4)}, v{gt}, s[{S_MISC}:{S_MISC + 3}], 0 offen offset:16", "g")
        a.vmem(f"buffer_load_dwordx4 {vr(gx0)}, v{gt}, s[{S_X}:{S_X + 3}], s{S_T + 1} offen", "g")
        a.vmem(f"buffer_load_dwordx4 {vr(gx0 + 4)}, v{gt}, s[{S_X}:{S_X + 3}], s{S_T + 1} offen offset:16", "g")
        a.vmem(f"buffer_load_dwordx4 {vr(gx1)}, v{gt}, s[{S_X}:{S_X + 3}], s{S_T + 1} offen offset:2048", "g")
        a.vmem(f"buffer_load_dwordx4 {vr(gx1 + 4)}, v{gt}, s[{S_X}:{S_X + 3}], s{S_T + 1} offen offset:2064", "g")

        if OPT['pf']:
            srd(a, S_PF1, S_PTR + 12, S_PTR + 13, 3584 * 1024 * 2)
            srd(a, S_PF2, S_PTR + 4, S_PTR + 5, 1024 * 1024 * 2)
            e(f"v_min_u32 v{V_T + 26}, {PL1 - 1}, v{V_LANE}")
            e(f"v_lshlrev_b32 v{V_T + 26}, 7, v{V_T + 26}")
            e(f"v_min_u32 v{V_T + 27}, {PL2 - 1}, v{V_LANE}")
            e(f"v_lshlrev_b32 v{V_T + 27}, 7, v{V_T + 27}")
            e(f"s_lshl_b32 s{S_T}, s2, 2")
            e(f"s_add_u32 s{S_T}, s{S_T}, s{S_WAVE}")
            e(f"s_mul_i32 s{S_PO1}, s{S_T}, 7168")
            e(f"s_lshl_b32 s{S_PO2}, s{S_T}, 11")


    if OPT.get('pt'):
        e(f"s_lshl_b32 s{S_T}, s{S_RB}, 1")
        e(f"s_lshr_b32 s{S_T + 1}, s{S_WAVE}, 1")
        e(f"s_add_u32 s{S_T}, s{S_T}, s{S_T + 1}")
        e(f"s_mul_i32 s{S_AFB}, s{S_T}, {144 * 8192}")
        e(f"s_and_b32 s{S_T + 1}, s{S_WAVE}, 1")
        e(f"s_lshl_b32 s{S_T + 1}, s{S_T + 1}, 12")
        e(f"s_add_u32 s{S_AFB}, s{S_AFB}, s{S_T + 1}")
        e(f"s_mul_i32 s{S_PT}, s{S_P}, {7 * 8192}")
        e(f"s_add_u32 s{S_PT}, s{S_PT}, s{S_AFB}")
        if typ:
            e(f"s_add_u32 s{S_PT}, s{S_PT}, {2 * 8192}")
        e(f"s_add_u32 s{S_PTE}, s{S_PT}, {(4 if typ else 2) * 8192}")
        e(f"v_and_b32 v{V_T + 25}, 31, v{V_LANE}")
        e(f"v_lshlrev_b32 v{V_T + 25}, 7, v{V_T + 25}")
        if typ:
            e(f"v_lshrrev_b32 v{V_T + 29}, 5, v{V_LANE}")
            e(f"v_lshlrev_b32 v{V_T + 29}, 13, v{V_T + 29}")
            e(f"v_add_u32 v{V_T + 29}, v{V_T + 29}, v{V_T + 25}")
            e(f"s_mul_i32 s{S_T}, s{S_P}, {2 * 8192}")
            e(f"s_add_u32 s{S_T}, s{S_T}, {112 * 8192}")
            e(f"s_add_u32 s{S_T}, s{S_T}, s{S_AFB}")
            a.vmem(f"buffer_load_dword v{V_T + 28}, v{V_T + 29}, s[{S_WS}:{S_WS + 3}], s{S_T} offen", "pf")

    def pt_items():
        return [lambda: a.vmem(f"buffer_load_dword v{V_T + 28}, v{V_T + 25}, s[{S_WS}:{S_WS + 3}], s{S_PT} offen", "pf"),
                lambda: e(f"s_add_u32 s{S_PT}, s{S_PT}, 8192"),
                lambda: e(f"s_min_u32 s{S_PT}, s{S_PT}, s{S_PTE}")]

    def pf_items(cond=None):
        if cond is None:
            return [lambda: a.vmem(f"buffer_load_dword v{V_T + 28}, v{V_T + 26}, s[{S_PF1}:{S_PF1 + 3}], s{S_PO1} offen", "pf"),
                    lambda: a.vmem(f"buffer_load_dword v{V_T + 28}, v{V_T + 27}, s[{S_PF2}:{S_PF2 + 3}], s{S_PO2} offen", "pf"),
                    lambda: e(f"s_add_u32 s{S_PO1}, s{S_PO1}, {128 * PL1}"),
                    lambda: e(f"s_add_u32 s{S_PO2}, s{S_PO2}, {128 * PL2}")]

        def blk():
            e(f"s_lshl_b32 s{S_T}, 1, s{S_CNT}")
            e(f"s_and_b32 s{S_T}, s{S_T}, {cond}")
            e(f"s_cbranch_scc0 L_k1{T}_nopf")
            e(f"buffer_load_dword v{V_T + 28}, v{V_T + 26}, s[{S_PF1}:{S_PF1 + 3}], s{S_PO1} offen")
            e(f"buffer_load_dword v{V_T + 28}, v{V_T + 27}, s[{S_PF2}:{S_PF2 + 3}], s{S_PO2} offen")
            e(f"s_add_u32 s{S_PO1}, s{S_PO1}, {128 * PL1}")
            e(f"s_add_u32 s{S_PO2}, s{S_PO2}, {128 * PL2}")
            a.label(f"L_k1{T}_nopf")
        return [blk]

    def g_items():
        d0, d1 = V_T + 24, V_T + 25
        L = []
        L.append(f"v_dot2_f32_bf16 v{d0}, v{gx0}, v{gw}, 0")
        L.append(f"v_dot2_f32_bf16 v{d1}, v{gx1}, v{gw}, 0")
        for j in range(1, 8):
            L.append(f"v_dot2_f32_bf16 v{d0}, v{gx0 + j}, v{gw + j}, v{d0}")
            L.append(f"v_dot2_f32_bf16 v{d1}, v{gx1 + j}, v{gw + j}, v{d1}")
        L.append("s_nop 3")
        for sh_ in (1, 2, 4, 8):
            L.append(f"s_nop 0\nv_add_f32_dpp v{d0}, v{d0}, v{d0} row_shr:{sh_} row_mask:0xf bank_mask:0xf bound_ctrl:0")
            L.append(f"s_nop 0\nv_add_f32_dpp v{d1}, v{d1}, v{d1} row_shr:{sh_} row_mask:0xf bank_mask:0xf bound_ctrl:0")
        L.append(f"s_nop 0\nv_add_f32_dpp v{d0}, v{d0}, v{d0} row_bcast:15 row_mask:0xa bank_mask:0xf")
        L.append(f"s_nop 0\nv_add_f32_dpp v{d1}, v{d1}, v{d1} row_bcast:15 row_mask:0xa bank_mask:0xf")
        L.append(f"s_nop 0\nv_add_f32_dpp v{d0}, v{d0}, v{d0} row_bcast:31 row_mask:0xc bank_mask:0xf")
        L.append(f"s_nop 0\nv_add_f32_dpp v{d1}, v{d1}, v{d1} row_bcast:31 row_mask:0xc bank_mask:0xf")
        L.append(f"v_mul_f32 v{d0}, 0xbfb8aa3b, v{d0}")
        L.append(f"v_mul_f32 v{d1}, 0xbfb8aa3b, v{d1}")
        L.append(f"v_exp_f32 v{d0}, v{d0}")
        L.append(f"v_exp_f32 v{d1}, v{d1}\ns_nop 0")
        L.append(f"v_add_f32 v{d0}, 1.0, v{d0}")
        L.append(f"v_add_f32 v{d1}, 1.0, v{d1}")
        L.append(f"v_rcp_f32 v{d0}, v{d0}")
        L.append(f"v_rcp_f32 v{d1}, v{d1}")
        L.append(f"v_mov_b32 v{gw}, 0")
        L.append(f"s_lshl_b32 s{S_T + 1}, s{S_GROW}, 2\ns_add_u32 s{S_T + 1}, s{S_T + 1}, {G_OFF}")
        L.append(f"s_lshl_b32 s{S_T + 3}, s2, 8\ns_add_u32 s{S_T + 3}, s{S_T + 3}, {FLG_OFF}")
        L.append(f"s_mov_b32 s{S_T + 8}, 0\ns_mov_b32 s{S_T + 9}, 0x80000000")
        F = [(lambda x=x: e(x)) for x in L]

        def st():
            e(f"s_mov_b64 exec, s[{S_T + 8}:{S_T + 9}]")
            a.vmem(f"buffer_store_dwordx2 v[{d0}:{d1}], v{gw}, s[{S_WS}:{S_WS + 3}], s{S_T + 1} offen sc1", "sq")
            e("s_mov_b64 exec, -1")
        F.append(st)
        return F

    if OPT.get('m2', 9) == 9:
        misc_setup2()
    a.wait(["bias"])
    for j in range(nh):
        src = acc(nq + j, 3)
        d = acc(nq + j, 0)
        e(f"v_lshlrev_b32 v{d}, 16, v{src}")
        e(f"v_and_b32 v{d + 1}, 0xffff0000, v{src}")
        e(f"v_lshlrev_b32 v{d + 2}, 16, v{src + 1}")
        e(f"v_and_b32 v{d + 3}, 0xffff0000, v{src + 1}")
    for t in range(4):
        for r in range(4):
            e(f"v_mov_b32 v{acc(t, 0) + r}, {EPS_HEX}")

    def rdB(tt):
        slot = tt % 4
        s = tt % 2
        f = []
        for t in range(13):
            for ins in range(2):
                if t < nq:
                    addr = V_QRD + (t & 3)
                    off = slot * K1_BSLOT + ins * K1_AREA + 1024 * (t >> 2)
                else:
                    addr = V_HRD
                    off = slot * K1_BSLOT + ins * K1_AREA + 32 * (t - nq)
                d = bset(s, t) + 2 * ins
                f.append(lambda d=d, addr=addr, off=off: e(f"ds_read_b64_tr_b16 {ar(d, 2)}, v{addr} offset:{off}"))
        return f

    def aset_of(tt):
        if tt % 2 == 0:
            return ASET["X"]
        return ASET["Y"] if tt % 4 == 1 else ASET["Z"]

    def rdA(aa):
        slot = aa % 2
        f = []
        for hh in range(2):
            base = aset_of(2 * aa + hh)
            for mt in range(4):
                f.append(lambda hh=hh, mt=mt, base=base: e(
                    f"ds_read_b128 {ar(base + 4 * mt)}, v{V_ARD + hh} offset:{slot * 8192 + mt * 2048}"))
        return f

    stamp(a, 1)
    a.wait(["B0", "A0"])
    e("s_barrier")
    stamp(a, 2)
    for fn in rdA(0) + rdB(0):
        fn()
    if OPT.get('ramp') == 1:
        run_seq(dmaA(1))
    if OPT.get('ramp') in (1, 2):
        run_seq(dmaB(2))
    a.wait(["B1"], lgkm=True)
    e("s_barrier")

    misc_items = capture(a, misc_setup)
    misc_items2 = capture(a, misc_setup2) if OPT.get('m2', 9) != 9 else []

    NSTEP = 32

    def step(tt):
        if DIAG and OPT.get('ts'):
            e("s_memrealtime s[76:77]")
            e("s_waitcnt lgkmcnt(0)")
            e("s_mov_b32 m0, s78")
            e("s_nop 0")
            e(f"v_writelane_b32 v{V_T + 29}, s76, m0")
            e("s_add_u32 s78, s78, 1")
        s = tt % 2
        ab = aset_of(tt)
        mf = []
        for t in range(13):
            order = [1, 2, 3, 0] if tt == 0 else [0, 1, 2, 3]
            for mt in order:
                D = vr(acc(t, mt))
                if tt == 0:
                    C = "0" if (typ == 0 and 4 <= t < 8) else vr(acc(t, 0))
                else:
                    C = D
                W = ar(bset(s, t))
                X = ar(ab + 4 * mt)
                if typ == 0 and t < 8:
                    mf.append(f"v_mfma_f32_16x16x32_bf16 {D}, {X}, {W}, {C}")
                else:
                    mf.append(f"v_mfma_f32_16x16x32_bf16 {D}, {W}, {X}, {C}")
        if OPT.get('fakechain') and tt > 0:
            import re
            m2 = []
            for i in range(0, 52, 2):
                x0, x1 = mf[i], mf[i + 1]
                pick = x0 if tt % 2 == 0 else x1
                D = re.match(r"v_mfma\S+ (v\[\d+:\d+\])", pick).group(1)
                for x in (x0, x1):
                    D0 = re.match(r"v_mfma\S+ (v\[\d+:\d+\])", x).group(1)
                    m2.append(x.replace(D0, D))
            mf = m2
        rd = []
        if tt + 1 < NSTEP:
            rd = rdB(tt + 1)
            if tt % 2 == 1:
                rd = rdA((tt + 1) // 2) + rd
        dm = []
        if tt == 0 and OPT.get('ramp'):
            dm += dmaB(3)
        if OPT.get('afirst', 1) and tt % 2 == 0 and tt // 2 + 2 < NSTEP // 2:
            dm += dmaA(tt // 2 + 2)
        if tt + 4 < NSTEP:
            dm += dmaB(tt + 4)
        if not OPT.get('afirst', 1) and tt % 2 == 0 and tt // 2 + 2 < NSTEP // 2:
            dm += dmaA(tt // 2 + 2)
        if OPT['pf'] == 1 and tt % 4 == 1 and tt < 28:
            dm += pf_items()
        if OPT.get('cpf') == 3 and tt == 28:
            dm.append(lambda: a.vmem(f"global_load_dword v{V_T + 28}, v{V_T + 29}, s[{S_CB}:{S_CB + 1}]", "pf"))
        if OPT['pf'] in (2, 3, 4) and tt == 28:
            dm += pf_items()
        if OPT['pf'] in (3, 4) and tt % 4 == 1 and 4 <= tt < 28:
            dm += pf_items({3: 1 << 4, 4: (1 << 5) | (1 << 3)}[OPT['pf']])
        if OPT.get('pt') and tt % 4 == 3 and tt < 28:
            dm += pt_items()
        if tt == OPT.get('m2', 9):
            dm += misc_items2
        if tt == 3:
            dm += misc_items
        fl = []
        i1 = i2 = 0
        n1, n2 = len(rd), len(dm)
        while i1 < n1 or i2 < n2:
            if i2 < n2 and (i1 >= n1 or i2 * n1 <= i1 * n2):
                fl.append(dm[i2]); i2 += 1
            else:
                fl.append(rd[i1]); i1 += 1
        if OPT.get('p2m'):
            if tt == NSTEP - 2:
                gi = g_items()
                fl2 = []
                for k_ in range(max(len(fl), len(gi))):
                    fl2 += fl[k_:k_ + 1] + gi[k_:k_ + 1]
                fl = fl2
            if tt == NSTEP - 1:
                fl = capture(a, lambda: p2_math(a), chunk=2)
        elif tt == NSTEP - 1:
            assert "g" not in a.vm
            fl = g_items()
        interleave(a, mf, fl, 0, 48)
        if tt + 1 < NSTEP:
            tags = []
            if tt + 2 < NSTEP:
                tags.append(f"B{tt + 2}")
            if tt % 2 == 0:
                tags.append(f"A{tt // 2 + 1}")
            a.wait(tags, lgkm=True)
            if tt + 2 < NSTEP:
                e("s_barrier")

    iters = []
    for it in range(8):
        n0 = len(a.lines)
        for tt in range(4 * it, 4 * it + 4):
            step(tt)
        iters.append(a.lines[n0:])
        del a.lines[n0:]
    for it in range(2, 7):
        assert iters[it] == iters[1], f"iteration {it} differs"
    stamp(a, 3)
    if DIAG and OPT.get('ts'):
        e("s_mov_b32 s78, 0")
    a.lines += iters[0]
    if not OPT.get('ts') and not OPT.get('kst'):
        stamp(a, 4)
    e(f"s_mov_b32 s{S_CNT}, 6")
    a.label(f"L_k1{T}_loop")
    a.lines += iters[1]
    e(f"s_sub_u32 s{S_CNT}, s{S_CNT}, 1")
    e(f"s_cmp_lg_u32 s{S_CNT}, 0")
    e(f"s_cbranch_scc1 L_k1{T}_loop")
    a.lines += iters[7]
    assert all(not t.startswith(("A", "B")) for t in a.vm), a.vm

    stamp(a, 5)

    def fin():
        stamp(a, 6)
        stamp(a, 7)
        k = a.vm_count(["#eA"], drop=False)
        if DIAG:
            k += 16
        stamp_dump(a, 0, 8, S_WAVE, S_PTR + 20, S_PTR + 21, V_T)
        e(f"s_cmp_eq_u32 s{P_SEARLY}, 0")
        e("s_cbranch_scc1 L_p2_late")
        e(f"s_waitcnt vmcnt({k})")
        e("s_branch L_p2_go")

    pb_state = [0]

    def pb(n=1):
        for _ in range(n):
            k = pb_state[0]
            if k >= OPT.get('pb', 0):
                return
            for i in range(4):
                a.vmem(f"buffer_load_dwordx4 {ar(128 + 16 * k + 4 * i)}, v{P_VBD + i}, s[{P_SW2}:{P_SW2 + 3}], s{P_SOB} offen offset:{1024 * i}", "pb")
            e(f"s_add_u32 s{P_SOB}, s{P_SOB}, s{P_SSB}")
            pb_state[0] += 1

    def fe_load():
        a.vmem(f"buffer_load_dwordx2 v[{P_VFL}:{P_VFL + 1}], v{P_VFA}, s[{S_WS}:{S_WS + 3}], 0 offen sc1", "fe")

    def fe_check():
        a.wait(["fe"])
        e(f"v_cmp_eq_u64 vcc, v[{P_VFL}:{P_VFL + 1}], v[{V_TOK}:{V_TOK + 1}]")
        e(f"s_mov_b32 s{P_SEARLY}, 0")
        e("s_nop 0")
        e("s_cmp_eq_u64 vcc, -1")
        e(f"s_cbranch_scc0 L_k1{T}_noearly")
        p2_issueA(a)
        e(f"s_mov_b32 s{P_SEARLY}, 1")
        a.label(f"L_k1{T}_noearly")
        a.mark("eA")

    def setflag(lane):
        a.label(f"L_k1{T}_tw")
        e(f"v_readfirstlane_b32 s{S_T}, v{V_TOK + 1}")
        e(f"v_readfirstlane_b32 s{S_T + 1}, v{V_TOK}")
        e("s_nop 3")
        e(f"s_min_u32 s{S_T}, s{S_T}, s{S_T + 1}")
        e(f"s_cmp_lg_u32 s{S_T}, 0")
        e(f"s_cbranch_scc1 L_k1{T}_tok")
        e("s_sleep 4")
        e(f"buffer_load_dwordx2 v[{V_TOK}:{V_TOK + 1}], v12, s[{S_T + 4}:{S_T + 7}], 0 offen sc1")
        e("s_waitcnt vmcnt(0)")
        e(f"s_branch L_k1{T}_tw")
        a.label(f"L_k1{T}_tok")
        e(f"s_mov_b64 exec, {1 << lane}")
        a.vmem(f"buffer_store_dwordx2 v[{V_TOK}:{V_TOK + 1}], v0, s[{S_WS}:{S_WS + 3}], 0 offen sc1", "fl")
        e("s_mov_b64 exec, -1")
    e("s_barrier")
    e(f"s_mov_b32 s{S_L2E}, {L2E_HEX}")
    e(f"s_mov_b32 s{S_L2E + 1}, {L2E_HEX}")
    e(f"s_lshl_b32 s{S_T}, s{S_RB}, 1")
    e(f"s_lshr_b32 s{S_T + 1}, s{S_WAVE}, 1")
    e(f"s_add_u32 s{S_T}, s{S_T}, s{S_T + 1}")
    e(f"s_mul_i32 s{S_AFB}, s{S_T}, {144 * 8192}")
    e(f"s_and_b32 s{S_T + 1}, s{S_WAVE}, 1")
    e(f"s_lshl_b32 s{S_T + 1}, s{S_T + 1}, 12")
    e(f"s_add_u32 s{S_AFB}, s{S_AFB}, s{S_T + 1}")
    e("s_nop 7")
    TT, UU = V_T, V_T + 8

    def phi_group(ra, rb_):
        prs = [ra, ra + 2, rb_, rb_ + 2]
        for j, p in enumerate(prs):
            e(f"v_pk_mul_f32 {vr(TT + 2 * j, 2)}, {vr(p, 2)}, s[{S_L2E}:{S_L2E + 1}]")
        for j in range(8):
            e(f"v_exp_f32_e64 v{TT + j}, v{TT + j} clamp")
        for p in prs:
            e(f"v_max_f32 v{p}, {EPS_HEX}, v{p}")
            e(f"v_max_f32 v{p + 1}, {EPS_HEX}, v{p + 1}")
        for j, p in enumerate(prs):
            e(f"v_pk_add_f32 {vr(p, 2)}, {vr(p, 2)}, {vr(TT + 2 * j, 2)}")
        for j, p in enumerate(prs):
            e(f"v_cvt_pk_bf16_f32 v{ra + j}, v{p}, v{p + 1}")

    def cvt_group(ra, rb_):
        prs = [ra, ra + 2, rb_, rb_ + 2]
        for j, p in enumerate(prs):
            e(f"v_cvt_pk_bf16_f32 v{ra + j}, v{p}, v{p + 1}")

    def mish_group(ra, rb_, split=False, dst=None):
        prs = [ra, ra + 2, rb_, rb_ + 2]
        for j, p in enumerate(prs):
            e(f"v_pk_mul_f32 {vr(TT + 2 * j, 2)}, {vr(p, 2)}, s[{S_L2E}:{S_L2E + 1}]")
        for j in range(8):
            e(f"v_exp_f32 v{TT + j}, v{TT + j}")
        for j in range(4):
            e(f"v_pk_fma_f32 {vr(UU + 2 * j, 2)}, {vr(TT + 2 * j, 2)}, 0.5, 1.0 op_sel_hi:[1,0,0]")
        for j in range(4):
            e(f"v_pk_fma_f32 {vr(UU + 2 * j, 2)}, {vr(TT + 2 * j, 2)}, {vr(UU + 2 * j, 2)}, 1.0 op_sel_hi:[1,1,0]")
        for j in range(8):
            e(f"v_rcp_f32 v{UU + j}, v{UU + j}")
        for j, p in enumerate(prs):
            e(f"v_pk_fma_f32 {vr(p, 2)}, {vr(UU + 2 * j, 2)}, {vr(p, 2)}, {vr(p, 2)} neg_lo:[1,0,0] neg_hi:[1,0,0]")
        if split:
            e(f"v_cvt_pk_bf16_f32 v{ra}, v{ra}, v{ra + 1}")
            e(f"v_cvt_pk_bf16_f32 v{ra + 1}, v{ra + 2}, v{ra + 3}")
            e(f"v_cvt_pk_bf16_f32 v{rb_}, v{rb_}, v{rb_ + 1}")
            e(f"v_cvt_pk_bf16_f32 v{rb_ + 1}, v{rb_ + 2}, v{rb_ + 3}")
        else:
            dd = ra if dst is None else dst
            for j, p in enumerate(prs):
                e(f"v_cvt_pk_bf16_f32 v{dd + j}, v{p}, v{p + 1}")

    WS = f"s[{S_WS}:{S_WS + 3}]"

    def set_kb(sreg, mul, add):
        e(f"s_mul_i32 s{sreg}, s{S_P}, {mul * 8192}")
        e(f"s_add_u32 s{sreg}, s{sreg}, {add * 8192}")
        e(f"s_add_u32 s{sreg}, s{sreg}, s{S_AFB}")

    def h_late(tA, kbl, sreg, mid=None):
        set_kb(sreg, 7, kbl)
        for mt in range(4):
            mish_group(acc(tA, mt), acc(tA + 1, mt))
            if mt == 1 and mid:
                mid()

    def h_half_late(tA, half):
        set_kb(P_SL + 2, 7, 2)
        if half:
            e(f"s_add_u32 s{P_SL + 2}, s{P_SL + 2}, 512")
        for mp in range(2):
            mish_group(acc(tA, 2 * mp), acc(tA, 2 * mp + 1), dst=240 + 4 * mp)
        e("s_nop 1")
        for mp in range(2):
            e(f"v_permlane16_swap_b32 v{240 + 4 * mp}, v{242 + 4 * mp}")
            e(f"v_permlane16_swap_b32 v{241 + 4 * mp}, v{243 + 4 * mp}")

    def h_full(tA, kbl, tag='st'):
        set_kb(S_T + 2, 7, kbl)
        for mt in range(4):
            mish_group(acc(tA, mt), acc(tA + 1, mt))
            a.vmem(f"buffer_store_dwordx4 {vr(acc(tA, mt))}, v{V_L16}, {WS}, s{S_T + 2} offen offset:{1024 * mt} {OPT['st']}", tag)

    def h_half(tA, kbl, half):
        set_kb(S_T + 2, 7, kbl)
        for mp in range(2):
            mish_group(acc(tA, 2 * mp), acc(tA, 2 * mp + 1), split=True)
            for mt in (2 * mp, 2 * mp + 1):
                a.vmem(f"buffer_store_dwordx2 {vr(acc(tA, mt), 2)}, v{V_L16}, {WS}, s{S_T + 2} offen offset:{1024 * mt + 8 * half} {OPT['st']}", "st")

    if typ == 1:
        h_full(5, 3, "se")
        h_full(7, 4, "se")
        p2_early(a)
        for hd in range(2):
            set_kb(S_T + 2, 2, 112 + hd)
            for mt in range(4):
                phi_group(acc(2 * hd, mt), acc(2 * hd + 1, mt))
                a.vmem(f"buffer_store_dwordx4 {vr(acc(2 * hd, mt))}, v{V_L16}, {WS}, s{S_T + 2} offen offset:{1024 * mt} {OPT['st']}", "sq")
                if 4 * hd + mt == OPT.get('fepos', 4):
                    a.wait(["se", "zc"])
                    setflag(0)
                if 4 * hd + mt >= OPT.get('fepos', 4):
                    pb()
        pb(8)
        h_late(9, 5, P_SL, mid=fe_load)
        h_late(11, 6, P_SL + 1, mid=fe_check)
        h_half_late(4, 1)
        fin()
        return

    h_full(8, 0, "se")
    h_full(10, 1, "se")
    p2_early(a)
    ONES = V_T + 16
    for r in range(4):
        e(f"v_mov_b32 v{ONES + r}, 0x3f803f80")
    for t in range(4):
        for pr in range(2):
            phi_group(acc(t, 2 * pr), acc(t, 2 * pr + 1))
            if 2 * t + pr == OPT.get('fepos', 4):
                a.wait(["se", "zc"])
                setflag(0)
            if 2 * t + pr >= OPT.get('fepos', 4):
                pb()
    pb(8)
    for t in range(4, 8):
        for pr in range(2):
            cvt_group(acc(t, 2 * pr), acc(t, 2 * pr + 1))
    e("s_nop 1")
    free = [acc(t, m) for t in range(8) for m in (1, 3)]

    def Dt(tau):
        return free[tau]
    for pr in range(2):
        for hd in range(2):
            for dt in range(2):
                for et in range(3):
                    tau = hd * 6 + dt * 3 + et
                    Aop = vr(acc(2 * hd + dt, 2 * pr))
                    Bop = vr(acc(4 + 2 * hd + et, 2 * pr)) if et < 2 else vr(ONES)
                    C = "0" if pr == 0 else vr(Dt(tau))
                    e(f"v_mfma_f32_16x16x32_bf16 {vr(Dt(tau))}, {Aop}, {Bop}, {C}")
    vw, vrd = V_T + 20, V_T + 21
    e(f"s_mul_i32 s{S_T}, s{S_WAVE}, 12288")
    e(f"s_add_u32 s{S_T}, s{S_T}, 98304")
    e(f"v_add_u32 v{vw}, s{S_T}, v{V_L16}")
    e(f"s_mul_i32 s{S_T}, s{S_WAVE}, 3072")
    e(f"s_add_u32 s{S_T}, s{S_T}, 98304")
    e(f"v_add_u32 v{vrd}, s{S_T}, v{V_L16}")
    fe_load()
    e("s_nop 7")
    for tau in range(12):
        e(f"ds_write_b128 v{vw}, {vr(Dt(tau))} offset:{1024 * tau}")
    e(f"s_lshl_b32 s{S_T}, s{S_P}, 3")
    e(f"s_add_u32 s{S_T}, s{S_T}, s{S_RB}")
    e(f"s_mul_i32 s{S_T}, s{S_T}, 12288")
    e(f"s_mul_i32 s{S_T + 1}, s{S_WAVE}, 3072")
    e(f"s_add_u32 s{S_T}, s{S_T}, s{S_T + 1}")
    e(f"s_add_u32 s{S_T + 10}, s{S_T}, {KVP_OFF}")
    h_half_late(12, 0)
    e(f"s_mov_b32 s{P_SL}, 0x7ff00000")
    e(f"s_mov_b32 s{P_SL + 1}, 0x7ff00000")
    e("s_waitcnt lgkmcnt(0)")
    e("s_barrier")
    R = [acc(t, m) for t in range(8) for m in (0, 2)]
    for w2 in range(4):
        for j in range(3):
            e(f"ds_read_b128 {vr(R[3 * w2 + j])}, v{vrd} offset:{12288 * w2 + 1024 * j}")
    fe_check()
    e("s_waitcnt lgkmcnt(0)")
    for j in range(3):
        for h2 in range(2):
            b0 = R[j] + 2 * h2
            e(f"v_pk_add_f32 {vr(b0, 2)}, {vr(b0, 2)}, {vr(R[3 + j] + 2 * h2, 2)}")
            e(f"v_pk_add_f32 {vr(R[6 + j] + 2 * h2, 2)}, {vr(R[6 + j] + 2 * h2, 2)}, {vr(R[9 + j] + 2 * h2, 2)}")
        for h2 in range(2):
            b0 = R[j] + 2 * h2
            e(f"v_pk_add_f32 {vr(b0, 2)}, {vr(b0, 2)}, {vr(R[6 + j] + 2 * h2, 2)}")
        a.vmem(f"buffer_store_dwordx4 {vr(R[j])}, v{V_L16}, {WS}, s{S_T + 10} offen offset:{1024 * j} sc1", "sq")
    fin()


def gen_k1():
    a = Asm()
    e = a.e
    a.lines.append(".globl KNAME\n.p2align 8\n.type KNAME,@function\nKNAME:")
    if OPT.get('spin'):
        stamp(a, 0)
    e("s_cmp_ge_u32 s2, 256")
    e("s_cbranch_scc1 L_k1_exit")
    e(f"s_load_dwordx16 s[{S_PTR}:{S_PTR + 15}], s[0:1], 0")
    if OPT.get('cpf') >= 2:
        e(f"s_getpc_b64 s[{S_CB}:{S_CB + 1}]")
        a.label("L_pc_0")
        e(f"s_sub_u32 s{S_CB}, s{S_CB}, L_pc_0-KNAME")
        e(f"s_subb_u32 s{S_CB + 1}, s{S_CB + 1}, 0")
        e(f"s_lshl_b32 s{S_T}, s2, 12")
        e(f"s_and_b32 s{S_T}, s{S_T}, 0x18000")
        e(f"v_lshlrev_b32 v{V_T + 29}, 7, v0")
        e(f"v_add_u32 v{V_T + 29}, s{S_T}, v{V_T + 29}")
        e(f"v_min_u32 v{V_T + 29}, L_code_end-KNAME-4, v{V_T + 29}")
        e(f"global_load_dword v{V_T + 28}, v{V_T + 29}, s[{S_CB}:{S_CB + 1}]")
    e(f"s_load_dwordx4 s[{S_PTR + 16}:{S_PTR + 19}], s[0:1], 64")
    e(f"s_load_dwordx2 s[{S_PTR + 20}:{S_PTR + 21}], s[0:1], 80")
    e(f"v_and_b32 v{V_LANE}, 63, v0")
    e(f"v_lshrrev_b32 v{V_T}, 6, v0")
    e(f"s_and_b32 s{S_T}, s2, 7")
    e(f"v_readfirstlane_b32 s{S_WAVE}, v{V_T}")
    e(f"s_lshr_b32 s{S_T + 1}, s2, 3")
    if OPT.get('map1', 0) == 0:
        e(f"s_and_b32 s{S_RB}, s{S_T}, 1")
        e(f"s_lshl_b32 s{S_RB}, s{S_RB}, 2")
        e(f"s_and_b32 s{S_T + 2}, s{S_T + 1}, 3")
        e(f"s_add_u32 s{S_RB}, s{S_RB}, s{S_T + 2}")
        e(f"s_lshr_b32 s{S_T}, s{S_T}, 1")
        e(f"s_lshl_b32 s{S_T}, s{S_T}, 3")
        e(f"s_lshr_b32 s{S_T + 1}, s{S_T + 1}, 2")
        e(f"s_add_u32 s{S_T}, s{S_T}, s{S_T + 1}")
    elif OPT['map1'] == 1:
        e(f"s_and_b32 s{S_RB}, s{S_T + 1}, 7")
        e(f"s_lshl_b32 s{S_T}, s{S_T}, 2")
        e(f"s_lshr_b32 s{S_T + 1}, s{S_T + 1}, 3")
        e(f"s_add_u32 s{S_T}, s{S_T}, s{S_T + 1}")
    else:
        e(f"s_and_b32 s{S_RB}, s{S_T}, 3")
        e(f"s_lshl_b32 s{S_RB}, s{S_RB}, 1")
        e(f"s_and_b32 s{S_T + 2}, s{S_T + 1}, 1")
        e(f"s_add_u32 s{S_RB}, s{S_RB}, s{S_T + 2}")
        e(f"s_lshr_b32 s{S_T}, s{S_T}, 2")
        e(f"s_lshl_b32 s{S_T}, s{S_T}, 4")
        e(f"s_lshr_b32 s{S_T + 1}, s{S_T + 1}, 1")
        e(f"s_add_u32 s{S_T}, s{S_T}, s{S_T + 1}")
    e(f"s_lshr_b32 s{S_P}, s{S_T}, 1")
    e(f"s_and_b32 s{S_T + 3}, s{S_T}, 1")
    e(f"s_cmp_lg_u32 s{S_T + 3}, 0")
    e("s_cbranch_scc1 L_k1_typeB")
    k1_body(a, 0)
    a.label("L_k1_typeB")
    a.vm = []
    k1_body(a, 1)
    a.vm = []
    phase2(a)
    a.label("L_k1_exit")
    e("s_endpgm")
    a.label("L_code_end")
    return a.lines


def K2_LDS():
    return OPT['S'] * 32768 + 24576


def fold_loops(a, iters, period, scnt, name):
    n = len(iters)
    i = 0
    lab = 0
    while i < n:
        reps = 1
        while i + (reps + 1) * period <= n and all(
                iters[i + k] == iters[i + reps * period + k] for k in range(period)):
            reps += 1
        if reps >= 2:
            a.e(f"s_mov_b32 s{scnt}, {reps}")
            a.label(f"L_{name}_{lab}")
            for k in range(period):
                a.lines += iters[i + k]
            a.e(f"s_sub_u32 s{scnt}, s{scnt}, 1")
            a.e(f"s_cmp_lg_u32 s{scnt}, 0")
            a.e(f"s_cbranch_scc1 L_{name}_{lab}")
            lab += 1
            i += reps * period
        else:
            a.lines += iters[i]
            i += 1


def schedule(a, mf, streams):
    n = len(mf)
    placed = []
    for si, (items, start, end) in enumerate(streams):
        m = len(items)
        prev = 0
        for j, it in enumerate(items):
            fn, early = it if isinstance(it, tuple) else (it, 0)
            pos = start + (j * (end - start)) / max(m, 1)
            pos = max(pos, early, prev)
            prev = pos
            placed.append((pos, si, j, fn))
    placed.sort(key=lambda x: (x[0], x[1], x[2]))
    k = 0
    if n == 0:
        for p in placed:
            p[3]()
        return
    for i in range(n):
        a.e(mf[i])
        while k < len(placed) and placed[k][0] < i + 1:
            placed[k][3]()
            k += 1
    while k < len(placed):
        placed[k][3]()
        k += 1


P_SW2, P_SWO, P_SWS, P_SOUT = 96, 20, 16, 4
P_SMT, P_SNT, P_SROLE, P_STILE = 8, 9, 10, 11
P_SOA, P_SOB, P_SOP, P_SM0A, P_SM0B = 12, 13, 14, 15, 27
P_SHD, P_SM2, P_SEARLY = 28, 29, 30
P_VBD = 2
P_SLOT = 32768


def tile_decode(a, smt, snt, srole, stile, st):
    e = a.e
    e(f"s_and_b32 s{st}, s2, 7")
    e(f"s_lshr_b32 s{st + 1}, s2, 3")
    e(f"s_and_b32 s{srole}, s{st}, 1")
    if OPT.get('rsw'):
        e(f"s_xor_b32 s{srole}, s{srole}, 1")
    e(f"s_lshr_b32 s{st}, s{st}, 1")
    if OPT['map'] == 0:
        e(f"s_and_b32 s{smt}, s{st}, 1")
        e(f"s_lshl_b32 s{smt}, s{smt}, 3")
        e(f"s_and_b32 s{stile}, s{st + 1}, 7")
        e(f"s_add_u32 s{smt}, s{smt}, s{stile}")
        e(f"s_lshr_b32 s{snt}, s{st}, 1")
        e(f"s_lshl_b32 s{snt}, s{snt}, 2")
        e(f"s_lshr_b32 s{st + 1}, s{st + 1}, 3")
        e(f"s_add_u32 s{snt}, s{snt}, s{st + 1}")
    else:
        e(f"s_lshl_b32 s{smt}, s{st}, 2")
        e(f"s_and_b32 s{stile}, s{st + 1}, 3")
        e(f"s_add_u32 s{smt}, s{smt}, s{stile}")
        e(f"s_lshr_b32 s{snt}, s{st + 1}, 2")
    e(f"s_lshl_b32 s{stile}, s{smt}, 3")
    e(f"s_add_u32 s{stile}, s{stile}, s{snt}")


P_VAD, P_VFA, P_VFL = 8, 9, 10
P_SSA, P_SSB = 31, 32
P_SL = 4


def p2_setrun(a, first_expr, stride):
    e = a.e
    c0, c1 = first_expr
    e(f"s_lshr_b32 s{S_T + 11}, s{S_WAVE}, 1")
    e(f"s_mul_i32 s{S_T + 11}, s{S_T + 11}, {c1}")
    e(f"s_add_u32 s{S_T + 11}, s{S_T + 11}, {c0}")
    return S_T + 11


def p2_math(a):
    e = a.e
    S = OPT['S']
    ST = S_T
    tile_decode(a, P_SMT, P_SNT, P_SROLE, P_STILE, ST)
    vi, vG, t0, t1, t2 = 6, 7, 8, 9, 10
    e(f"v_and_b32 v{vi}, 15, v{V_LANE}")
    e(f"v_lshrrev_b32 v{vG}, 4, v{V_LANE}")
    e(f"s_lshl_b32 s{P_SM0A}, s{S_WAVE}, 12")
    e(f"s_add_u32 s{P_SM0B}, s{P_SM0A}, 16384")
    e(f"s_lshl_b32 s{ST}, s{P_SNT}, 8")
    e(f"s_and_b32 s{ST + 3}, s{S_WAVE}, 1")
    e(f"s_lshl_b32 s{ST + 1}, s{ST + 3}, 15")
    e(f"s_add_u32 s{ST}, s{ST}, s{ST + 1}")
    e(f"v_lshlrev_b32 v{t0}, 11, v{vG}")
    e(f"v_add_u32 v{t0}, s{ST}, v{t0}")
    e(f"v_lshlrev_b32 v{t1}, 1, v{vG}")
    e(f"v_xor_b32 v{t1}, v{t1}, v{vi}")
    for j in range(4):
        if j & 1:
            e(f"v_xor_b32 v{t2}, 8, v{t1}")
            e(f"v_lshlrev_b32 v{t2}, 4, v{t2}")
        else:
            e(f"v_lshlrev_b32 v{t2}, 4, v{t1}")
        e(f"v_add_u32 v{t2}, v{t2}, v{t0}")
        e(f"v_add_u32 v{P_VBD + j}, {j * (8192 - 1024)}, v{t2}")
    e(f"s_mul_i32 s{ST}, s{P_SROLE}, 3")
    e(f"s_lshr_b32 s{ST + 1}, s{S_WAVE}, 1")
    e(f"s_add_u32 s{ST}, s{ST}, s{ST + 1}")
    e(f"s_lshl_b32 s{P_SOB}, s{ST}, 16")
    e(f"s_mul_i32 s{P_SOA}, s{P_SMT}, 144")
    e(f"s_add_u32 s{P_SOA}, s{P_SOA}, s{ST}")
    e(f"s_lshl_b32 s{P_SOA}, s{P_SOA}, 13")
    e(f"s_mov_b32 s{P_SSA}, {7 * 8192}")
    e(f"s_mov_b32 s{P_SSB}, {7 * 65536}")
    e(f"s_lshl_b32 s{ST + 3}, s{ST + 3}, 12")
    e(f"v_add_u32 v{P_VAD}, s{ST + 3}, v{V_L16}")
    e(f"s_lshl_b32 s{ST}, s{P_SMT}, 1")
    e(f"s_add_u32 s{ST}, s{ST}, s{P_SROLE}")
    e(f"s_lshl_b32 s{ST}, s{ST}, 8")
    e(f"s_add_u32 s{ST}, s{ST}, {FE_OFF}")
    e(f"v_and_b32 v{P_VFA}, 31, v{V_LANE}")
    e(f"v_lshlrev_b32 v{P_VFA}, 3, v{P_VFA}")
    e(f"v_add_u32 v{P_VFA}, s{ST}, v{P_VFA}")


def p2_early(a):
    e = a.e
    S = OPT['S']
    ST = S_T
    if not OPT.get('p2m'):
        p2_math(a)
    srd(a, ST + 4, S_PTR + 18, S_PTR + 19, 256)
    e(f"v_mov_b32 v12, 0")
    a.vmem(f"buffer_load_dwordx2 v[{V_TOK}:{V_TOK + 1}], v12, s[{ST + 4}:{ST + 7}], 0 offen sc1", "zc")
    for j in range(S - 1):
        e(f"s_add_u32 m0, s{P_SM0B}, {j * P_SLOT}")
        e("s_nop 0")
        for i in range(4):
            a.vmem(f"buffer_load_dwordx4 v{P_VBD + i}, s[{P_SW2}:{P_SW2 + 3}], s{P_SOB} offen offset:{1024 * i} lds", "eB")
        e(f"s_add_u32 s{P_SOB}, s{P_SOB}, s{P_SSB}")


def p2_issueA(a):
    e = a.e
    for j in range(OPT['S'] - 1):
        e(f"s_add_u32 m0, s{P_SM0A}, {j * P_SLOT}")
        e("s_nop 0")
        for i in range(4):
            e(f"buffer_load_dwordx4 v{P_VAD}, s[{P_SWS}:{P_SWS + 3}], s{P_SOA} offen offset:{1024 * i} {OPT['k2a']} lds")
        e(f"s_add_u32 s{P_SOA}, s{P_SOA}, s{P_SSA}")


def phase2(a):
    e = a.e
    S = OPT['S']
    n0 = OPT['n0']
    SLOT = P_SLOT
    SCR = S * SLOT
    SWAVE = S_WAVE
    ST = S_T
    SCNT = S_CNT
    SMT, SNT, SROLE, STILE = P_SMT, P_SNT, P_SROLE, P_STILE
    SOA, SOB, SOP, SM0A, SM0B = P_SOA, P_SOB, P_SOP, P_SM0A, P_SM0B
    SW2, SWO, SOUT = P_SW2, P_SWO, P_SOUT
    WS = f"s[{P_SWS}:{P_SWS + 3}]"
    NBASE = (S + 1) // 2
    VL, VL16, VBD = V_LANE, V_L16, P_VBD
    vi, vG = 6, 7
    VZ = 11
    VAD = 8
    VFL = 10
    VFA = 9
    VAR = 12
    VBR = 18
    VT = 30
    VG = 38
    VOMG = 42
    VEPS = 46
    VEPS = 48
    CG = 52
    CR = 60
    CKV = 68
    CW = 80
    VX = 192
    VY = 84
    AC = 128
    t0, t1, t2, t3 = VT, VT + 1, VT + 2, VT + 3

    def acc2(mt, nt):
        return AC + 16 * mt + 4 * nt

    def FA(j, b, mt):
        return 64 * (j % 2) + 32 * b + 4 * mt

    def FB(j, b, nt):
        return 64 * (j % 2) + 32 * b + 16 + 4 * nt

    def setflag(*lanes):
        e(f"s_mov_b64 exec, {sum(1 << l for l in lanes)}")
        a.vmem(f"buffer_store_dwordx2 v[{V_TOK}:{V_TOK + 1}], v0, {WS}, 0 offen sc1", "fl")
        e("s_mov_b64 exec, -1")

    VQ = 120
    VH = 16

    def fq_load():
        a.vmem(f"buffer_load_dwordx2 v[{VQ}:{VQ + 1}], v{VQ + 2}, {WS}, 0 offen sc1", "fq")

    a.label("L_p2_late")
    e(f"buffer_load_dwordx2 v[{VFL}:{VFL + 1}], v{VFA}, {WS}, 0 offen sc1")
    e("s_waitcnt vmcnt(0)")
    e(f"v_cmp_eq_u64 vcc, v[{VFL}:{VFL + 1}], v[{V_TOK}:{V_TOK + 1}]")
    e("s_nop 1")
    e("s_cmp_eq_u64 vcc, -1")
    e("s_cbranch_scc1 L_p2_fok")
    e(f"s_sleep {OPT.get('slp', 4)}")
    e("s_branch L_p2_late")
    a.label("L_p2_fok")
    p2_issueA(a)
    e("s_waitcnt vmcnt(0)")
    a.label("L_p2_go")
    stamp(a, 0)
    a.vm = ["old"]
    e(f"s_and_b32 s{ST}, s{SWAVE}, 1")
    e(f"s_lshl_b32 s{ST}, s{ST}, 12")
    e(f"v_add_u32 v{VAR}, s{ST}, v{VL16}")
    for k in range(1, NBASE):
        e(f"v_add_u32 v{VAR + k}, {65536 * k}, v{VAR}")
    e(f"v_lshlrev_b32 v{t0}, 2, v{vG}")
    e(f"v_lshrrev_b32 v{t1}, 2, v{vi}")
    e(f"v_add_u32 v{t0}, v{t0}, v{t1}")
    e(f"v_and_b32 v{t1}, 7, v{t0}")
    e(f"s_lshr_b32 s{ST}, s{SWAVE}, 1")
    e(f"s_lshl_b32 s{ST}, s{ST}, 2")
    e(f"v_xor_b32 v{t1}, s{ST}, v{t1}")
    e(f"v_lshlrev_b32 v{t0}, 8, v{t0}")
    e(f"v_and_b32 v{t2}, 3, v{vi}")
    e(f"v_lshlrev_b32 v{t2}, 3, v{t2}")
    e(f"v_add_u32 v{t0}, v{t0}, v{t2}")
    e(f"v_add_u32 v{t0}, 16384, v{t0}")
    for nt in range(4):
        e(f"v_xor_b32 v{t3}, {nt}, v{t1}")
        e(f"v_lshlrev_b32 v{t3}, 5, v{t3}")
        e(f"v_add_u32 v{VBR + nt}, v{t0}, v{t3}")
        for k in range(1, NBASE):
            e(f"v_add_u32 v{VBR + 4 * k + nt}, {65536 * k}, v{VBR + nt}")
    VBW = 26
    e(f"v_add_u32 v{VBW}, s{SM0B}, v{VL16}")
    e(f"v_add_u32 v{VBW + 1}, 65536, v{VBW}")
    e(f"v_and_b32 v{t0}, 1, v{vG}")
    e(f"v_lshlrev_b32 v{t0}, 10, v{t0}")
    e(f"v_lshrrev_b32 v{t1}, 1, v{vG}")
    e(f"v_lshlrev_b32 v{t1}, 8, v{t1}")
    e(f"v_lshlrev_b32 v{VH}, 4, v{vi}")
    e(f"v_add3_u32 v{VH}, v{VH}, v{t0}, v{t1}")
    stamp(a, 1)
    e(f"s_cmp_eq_u32 s{SROLE}, 0")
    e(f"s_cbranch_scc1 L_p2_r0")
    vm_save = list(a.vm)

    import math
    PERIOD = S * 4 // math.gcd(S, 4)

    def body(role):
        R = f"r{role}"
        o0 = OPT.get('o0', 5)
        na0 = n0 - o0
        assert 16 < na0 <= 32 and 5 <= o0 <= 11
        nact = na0 if role == 0 else 56 - na0
        N = nact + (o0 if role == 0 else 16 - o0)
        JO = nact - (S - 1)
        JP = N - OPT['pj']
        if role == 0:
            runs = {16: (5, 1, 7)}
        else:
            nl1 = 32 - na0
            runs = {16 + nl1: (2, 7, 14)}
            if nl1:
                runs[16] = (5 + 7 * (na0 - 16), 1, 7)

        def bperm(op):
            e(f"s_and_b32 s{ST + 9}, s{SWAVE}, 1")
            e(f"s_mul_i32 s{ST + 9}, s{ST + 9}, {-12 * 2048}")
            for j4 in range(4):
                e(f"{op} v{VBD + j4}, s{ST + 9}, v{VBD + j4}")
                if j4 < 3:
                    e(f"s_add_u32 s{ST + 9}, s{ST + 9}, {4 * 2048}")

        def newrun(j):
            if j == nact:
                def sw():
                    e(f"s_lshr_b32 s{ST + 11}, s{SWAVE}, 1")
                    if role:
                        e(f"s_add_u32 s{ST + 11}, s{ST + 11}, {2 * o0}")
                    e(f"s_lshl_b32 s{SOB}, s{ST + 11}, 16")
                    e(f"s_lshl_b32 s{SOA}, s{SMT}, 5")
                    e(f"s_add_u32 s{SOA}, s{SOA}, s{ST + 11}")
                    e(f"s_lshl_b32 s{SOA}, s{SOA}, 13")
                    e(f"s_add_u32 s{SOA}, s{SOA}, {OF_OFF}")
                    e(f"s_mov_b32 s{P_SSA}, 16384")
                    e(f"s_mov_b32 s{P_SSB}, 131072")
                    if role == 1:
                        bperm("v_subrev_u32")
                return [sw]
            if j in runs:
                c0, c1, st_ = runs[j]

                def sw():
                    r = p2_setrun(a, (c0, c1), st_)
                    e(f"s_lshl_b32 s{SOB}, s{r}, 16")
                    e(f"s_mul_i32 s{SOA}, s{SMT}, 144")
                    e(f"s_add_u32 s{SOA}, s{SOA}, s{r}")
                    e(f"s_lshl_b32 s{SOA}, s{SOA}, 13")
                    e(f"s_mov_b32 s{P_SSA}, {st_ * 8192}")
                    e(f"s_mov_b32 s{P_SSB}, {st_ * 65536}")
                    if st_ == 14:
                        bperm("v_add_u32")
                return [sw]
            return []

        def dmaA(j):
            f = newrun(j)
            f.append(lambda: e(f"s_add_u32 m0, s{SM0A}, {(j % S) * SLOT}"))
            for i in range(4):
                f.append(lambda i=i: a.vmem(
                    f"buffer_load_dwordx4 v{VAD}, {WS}, s{SOA} offen offset:{1024 * i} {OPT['k2a']} lds", f"D{j}"))
            f.append(lambda: e(f"s_add_u32 s{SOA}, s{SOA}, s{P_SSA}"))
            return f

        def dmaB(j):
            sr = SW2 if j < nact else SWO
            f = []
            k = j - (S - 1)
            if 0 <= k < OPT.get('pb', 0):
                sl = j % S
                for i in range(4):
                    f.append(lambda i=i: e(
                        f"ds_write_b128 v{VBW + sl // 2}, {ar(128 + 16 * k + 4 * i)} offset:{(sl % 2) * SLOT + 1024 * i}"))
                return f
            f.append(lambda: e(f"s_add_u32 m0, s{SM0B}, {(j % S) * SLOT}"))
            for i in range(4):
                f.append(lambda i=i: a.vmem(
                    f"buffer_load_dwordx4 v{VBD + i}, s[{sr}:{sr + 3}], s{SOB} offen offset:{1024 * i} lds", f"D{j}"))
            f.append(lambda: e(f"s_add_u32 s{SOB}, s{SOB}, s{P_SSB}"))
            return f

        def reads(j):
            sl = j % S
            k, so = sl // 2, (sl % 2) * SLOT
            f = []
            for q in range(4):
                for b in range(2):
                    f.append(lambda b=b, q=q: e(
                        f"ds_read_b128 {ar(FA(j, b, q))}, v{VAR + k} offset:{so + 8192 * b + 1024 * q}"))
                    for ins in range(2):
                        f.append(lambda b=b, q=q, ins=ins: e(
                            f"ds_read_b64_tr_b16 {ar(FB(j, b, q) + 2 * ins, 2)}, v{VBR + 4 * k + q} offset:{so + 8192 * b + 4096 * ins}"))
            return f

        late = []
        for mp in range(2):
            late.append(f"buffer_store_dwordx4 {vr(240 + 4 * mp)}, v{VH}, {WS}, s{P_SL + 2} offen offset:{2048 * mp} sc1")
        for g_, base in enumerate((192, 224)):
            for mt in range(4):
                late.append(f"buffer_store_dwordx4 {vr(base + 4 * mt)}, v{VL16}, {WS}, s{P_SL + g_} offen offset:{1024 * mt} sc1")
        TR = OPT.get('tr', 3)
        TRS = OPT.get('trs', 0)
        NTR = -(-10 // TR) + TRS
        JFQ = OPT.get('jfq', 2)

        e("s_barrier")
        stamp(a, 2)
        VK = 48
        PD, PO, PEPS, PR = 48, 96, 112, 116

        def poll(lab, vv, reload):
            a.label(f"L_p2{R}_{lab}w")
            e(f"v_cmp_eq_u64 vcc, v[{vv}:{vv + 1}], v[{V_TOK}:{V_TOK + 1}]")
            e("s_nop 1")
            e("s_cmp_eq_u64 vcc, -1")
            e(f"s_cbranch_scc1 L_p2{R}_{lab}ok")
            e("s_sleep 4")
            sv = list(a.vm)
            reload()
            a.vm = sv
            e("s_waitcnt vmcnt(0)")
            e(f"s_branch L_p2{R}_{lab}w")
            a.label(f"L_p2{R}_{lab}ok")

        def fl_load(tag="F"):
            a.vmem(f"buffer_load_dwordx2 v[{VFL}:{VFL + 1}], v{VFA}, {WS}, 0 offen sc1", tag)

        def red_guard(lab):
            e(f"s_cmp_eq_u32 s{P_SEARLY}, 0")
            e(f"s_cbranch_scc1 L_p2{R}_{lab}")

        J1 = OPT.get('j1', 4)
        J2 = OPT.get('j2', 12)

        def pre(j):
            if j == JFQ:
                a.wait(["old"])
            if j == NTR + 2:
                a.wait(["sl"])
            if j == 16 - S + 1:
                a.wait(["FL"])
                poll("l", VFL, fl_load)
            if j == J2 + 2:
                a.wait(["fq"])
                poll("k", VQ, fq_load)
            if j == J2 + 4:
                a.wait(["pq"])
            if j == J2 + 8:
                a.wait(["ost"])
            if j == JO:
                a.wait(["F"])
                poll("o", VFL, fl_load)
            if role == 1 and j == JP:
                a.wait(["F2"])
                poll("p", VFL, fl_load)

        def extra(j):
            if j == JFQ:
                setflag(1)
            if j == J1:
                e(f"s_and_b32 s{ST}, s2, 3")
                e(f"s_cmp_eq_u32 s{ST}, s{SWAVE}")
                e(f"s_cselect_b32 s{P_SEARLY}, 1, 0")
                e(f"s_cmp_lt_u32 s2, 192")
                e(f"s_cselect_b32 s{P_SEARLY}, s{P_SEARLY}, 0")
                e(f"s_mul_i32 s{P_SHD}, s2, 171")
                e(f"s_lshr_b32 s{P_SHD}, s{P_SHD}, 10")
                e(f"s_min_u32 s{P_SHD}, s{P_SHD}, 31")
                e(f"s_lshr_b32 s{ST}, s{P_SHD}, 1")
                e(f"s_lshl_b32 s{ST}, s{ST}, 9")
                e(f"s_add_u32 s{ST}, s{ST}, {FQ_OFF}")
                e(f"v_and_b32 v{VQ + 2}, 31, v{VL}")
                e(f"v_lshlrev_b32 v{VQ + 2}, 3, v{VQ + 2}")
                e(f"v_add_u32 v{VQ + 2}, s{ST}, v{VQ + 2}")
                fq_load()
            if j == NTR + 2:
                setflag(4)
                srd(a, SOUT, S_PTR + 16, S_PTR + 17, 2048 * 1024 * 2)
            if j == 16 - S - 1:
                e(f"s_lshl_b32 s{ST}, s{SMT}, 9")
                e(f"s_add_u32 s{ST}, s{ST}, {FA_OFF}")
                e(f"v_lshlrev_b32 v{VFA}, 3, v{VL}")
                e(f"v_add_u32 v{VFA}, s{ST}, v{VFA}")
                fl_load("FL")
            if j == 16 - S + 2:
                e(f"v_lshlrev_b32 v{t1}, 2, v{vi}")
                e(f"s_lshl_b32 s{ST}, s{SMT}, 9")
                e(f"s_and_b32 s{ST + 1}, s{SWAVE}, 1")
                e(f"s_lshl_b32 s{ST + 1}, s{ST + 1}, 8")
                e(f"s_add_u32 s{ST}, s{ST}, s{ST + 1}")
                e(f"s_add_u32 s{ST}, s{ST}, {G_OFF}")
                for i in range(4):
                    a.vmem(f"buffer_load_dword v{VG + i}, v{t1}, {WS}, s{ST} offen offset:{64 * i}", "g")
            if j == J2:
                e(f"s_and_b32 s{P_SHD}, s2, 31")
                e(f"s_lshr_b32 s{P_SM2}, s2, 5")
                e(f"s_lshr_b32 s{ST}, s{P_SHD}, 1")
                e(f"s_lshl_b32 s{ST}, s{ST}, 4")
                e(f"s_add_u32 s{ST}, s{ST}, s{P_SM2}")
                e(f"s_lshl_b32 s{ST}, s{ST}, 2")
                e(f"s_add_u32 s{ST}, s{ST}, s{SWAVE}")
                e(f"s_lshl_b32 s{ST}, s{ST}, 3")
                e(f"s_add_u32 s{ST}, s{ST}, {FQ_OFF + 256}")
                e(f"s_lshl_b32 s{ST + 1}, s{P_SHD}, 6")
                e(f"s_add_u32 s{ST + 1}, s{ST + 1}, {FK_OFF}")
                e(f"v_lshlrev_b32 v{VQ + 2}, 3, v{VL}")
                e(f"v_add_u32 v{VQ + 2}, s{ST + 1}, v{VQ + 2}")
                e(f"v_mov_b32 v{t0}, s{ST}")
                e(f"v_cmp_gt_u32 s[{ST + 2}:{ST + 3}], 6, v{VL}")
                e("s_nop 1")
                e(f"v_cndmask_b32 v{VQ + 2}, v{t0}, v{VQ + 2}, s[{ST + 2}:{ST + 3}]")
                e(f"s_lshl_b32 s{P_SM2}, s{P_SM2}, 1")
                e(f"s_lshr_b32 s{ST}, s{SWAVE}, 1")
                e(f"s_add_u32 s{P_SM2}, s{P_SM2}, s{ST}")
                fq_load()
            if j == J2 + 2:
                e(f"s_mul_i32 s{ST}, s{P_SHD}, 3072")
                e(f"s_add_u32 s{ST}, s{ST}, {KVF_OFF}")
                e(f"v_lshlrev_b32 v{t0}, 3, v{VL}")
                for i in range(6):
                    a.vmem(f"buffer_load_dwordx2 {ar(144 + 2 * i, 2)}, v{t0}, {WS}, s{ST} offen offset:{512 * i}", "pq")
                e(f"s_mul_i32 s{ST}, s{P_SM2}, 144")
                e(f"s_add_u32 s{ST}, s{ST}, s{P_SHD}")
                e(f"s_add_u32 s{ST}, s{ST}, 112")
                e(f"s_lshl_b32 s{ST}, s{ST}, 13")
                for i in range(4):
                    a.vmem(f"buffer_load_dwordx4 {ar(128 + 4 * i)}, v{VAD}, {WS}, s{ST} offen offset:{1024 * i}", "pq")
                e(f"s_lshl_b32 s{SOP}, s{P_SM2}, 5")
                e(f"s_add_u32 s{SOP}, s{SOP}, s{P_SHD}")
                e(f"s_lshl_b32 s{SOP}, s{SOP}, 13")
                e(f"s_add_u32 s{SOP}, s{SOP}, {OF_OFF}")
                for r in range(4):
                    e(f"v_mov_b32 v{PEPS + r}, {EPS_HEX}")
            if j == J2 + 5:
                for i in range(4):
                    e(f"v_rcp_f32 v{PR + i}, v{PD + 12 * i + 8}")
                e("s_nop 0")
                for i in range(4):
                    d = PD + 12 * i
                    for q in range(8):
                        e(f"v_mul_f32 v{d + q}, v{PR + i}, v{d + q}")
                    o = PO + 4 * i
                    for q in range(4):
                        e(f"v_cvt_pk_bf16_f32 v{o + q}, v{d + 2 * q}, v{d + 2 * q + 1}")
                    a.vmem(f"buffer_store_dwordx4 {vr(o)}, v{VAD}, {WS}, s{SOP} offen offset:{1024 * i} sc1", "ost")
            if j == J2 + 8:
                setflag(2)
            if j == JO - OPT.get('fod', 2):
                assert j > J2 + 8
                e(f"s_lshl_b32 s{ST}, s{SMT}, 9")
                e(f"s_add_u32 s{ST}, s{ST}, {FO_OFF}")
                if role == 0:
                    e(f"v_min_u32 v{VFA}, {4 * o0 - 1}, v{VL}")
                else:
                    e(f"v_max_u32 v{VFA}, {4 * o0}, v{VL}")
                e(f"v_lshlrev_b32 v{VFA}, 3, v{VFA}")
                e(f"v_add_u32 v{VFA}, s{ST}, v{VFA}")
                fl_load("F")
            if role == 1 and j == JP - 1:
                e(f"s_lshl_b32 s{ST}, s{STILE}, 8")
                e(f"s_lshl_b32 s{ST + 1}, s{SWAVE}, 3")
                e(f"s_add_u32 s{ST}, s{ST}, s{ST + 1}")
                e(f"s_add_u32 s{ST}, s{ST}, {FP_OFF}")
                e(f"v_mov_b32 v{VFA}, s{ST}")
                fl_load("F2")
            if role == 1 and j == JP:
                e(f"s_lshl_b32 s{ST}, s{STILE}, 16")
                e(f"s_lshl_b32 s{ST + 1}, s{SWAVE}, 13")
                e(f"s_add_u32 s{ST}, s{ST}, s{ST + 1}")
                e(f"s_add_u32 s{ST}, s{ST}, {PART_OFF}")
                for q in range(8):
                    if q == 4:
                        e(f"s_add_u32 s{ST}, s{ST}, 4096")
                    a.vmem(f"buffer_load_dwordx4 {vr(VY + 4 * q)}, v{VL16}, {WS}, s{ST} offen offset:{1024 * (q & 3)} sc1", "PT")

        def post(j):
            if j == J1 + 1:
                red_guard("nr1")
                n_ = a.vm_count(["fq"], drop=False)
                e(f"s_waitcnt vmcnt({n_})")
                poll("q", VQ, fq_load)
                e(f"s_lshr_b32 s{ST}, s{P_SHD}, 1")
                e(f"s_mul_i32 s{ST}, s{ST}, 84")
                e(f"s_add_u32 s{ST}, s{ST}, s2")
                e(f"s_lshl_b32 s{ST}, s{ST}, 10")
                e(f"s_add_u32 s{ST}, s{ST}, {KVP_OFF}")
                for r8 in range(8):
                    e(f"buffer_load_dwordx4 {vr(VK + 4 * r8)}, v{VL16}, {WS}, s{ST} offen")
                    if r8 < 7:
                        e(f"s_add_u32 s{ST}, s{ST}, 12288")
                a.label(f"L_p2{R}_nr1")
                a.mark("r1")
            if j == J1 + 3:
                red_guard("nr2")
                n_ = a.vm_count(["#r1"], drop=False)
                if n_ is not None:
                    e(f"s_waitcnt vmcnt({n_})")
                for st_ in (1, 2, 4):
                    for r8 in range(0, 8, 2 * st_):
                        for q in range(2):
                            b0 = VK + 4 * r8 + 2 * q
                            e(f"v_pk_add_f32 {vr(b0, 2)}, {vr(b0, 2)}, {vr(b0 + 4 * st_, 2)}")
                e(f"v_cvt_pk_bf16_f32 v{VK}, v{VK}, v{VK + 1}")
                e(f"v_cvt_pk_bf16_f32 v{VK + 1}, v{VK + 2}, v{VK + 3}")
                e(f"s_mul_i32 s{ST}, s{P_SHD}, 6")
                e(f"s_sub_u32 s{ST}, s2, s{ST}")
                e(f"s_cmp_ge_u32 s{ST}, 3")
                e(f"s_cselect_b32 s{ST + 1}, 1, 0")
                e(f"s_mul_i32 s{ST + 2}, s{ST + 1}, 3")
                e(f"s_sub_u32 s{ST}, s{ST}, s{ST + 2}")
                e(f"s_mul_i32 s{ST + 2}, s{P_SHD}, 3")
                e(f"s_add_u32 s{ST}, s{ST}, s{ST + 2}")
                e(f"s_lshl_b32 s{ST}, s{ST}, 10")
                e(f"s_lshl_b32 s{ST + 1}, s{ST + 1}, 9")
                e(f"s_add_u32 s{ST}, s{ST}, s{ST + 1}")
                e(f"s_add_u32 s{ST}, s{ST}, {KVF_OFF}")
                e(f"v_lshlrev_b32 v{t0}, 3, v{VL}")
                e(f"buffer_store_dwordx2 {vr(VK, 2)}, v{t0}, {WS}, s{ST} offen sc1")
                a.label(f"L_p2{R}_nr2")
                a.mark("r2")
            if j == J1 + 5:
                red_guard("nr3")
                n_ = a.vm_count(["#r2"], drop=False)
                if n_ is not None:
                    e(f"s_waitcnt vmcnt({n_})")
                e(f"s_mov_b64 exec, {1 << 5}")
                e(f"buffer_store_dwordx2 v[{V_TOK}:{V_TOK + 1}], v0, {WS}, 0 offen sc1")
                e("s_mov_b64 exec, -1")
                a.label(f"L_p2{R}_nr3")

        def interval(j):
            if DIAG and OPT.get('ts2'):
                if j == 0:
                    e("s_mov_b32 s74, 0")
                e("s_memrealtime s[76:77]")
                e("s_waitcnt lgkmcnt(0)")
                e("s_mov_b32 m0, s74")
                e("s_nop 0")
                e(f"v_writelane_b32 v{VT + 7}, s76, m0")
                e("s_add_u32 s74, s74, 1")
            main = []
            if j >= 1:
                for mt in range(4):
                    for nt in range(4):
                        D = vr(acc2(mt, nt) + (64 if j - 1 >= nact else 0))
                        for b in range(2):
                            C = "0" if (j in (1, nact + 1) and b == 0) else D
                            main.append(f"v_mfma_f32_16x16x32_bf16 {D}, {ar(FB(j - 1, b, nt))}, {ar(FA(j - 1, b, mt))}, {C}")
            pre(j)
            if j == J2 + 4:
                pm = []
                for i in range(4):
                    d = PD + 12 * i
                    pq = ar(128 + 4 * i)
                    pm += [f"v_mfma_f32_16x16x32_bf16 {vr(d + 8)}, {ar(152)}, {pq}, {vr(PEPS)}",
                           f"v_mfma_f32_16x16x32_bf16 {vr(d)}, {ar(144)}, {pq}, 0",
                           f"v_mfma_f32_16x16x32_bf16 {vr(d + 4)}, {ar(148)}, {pq}, 0"]
                main = pm + main
            rd = reads(j) if j < N else []
            dm = (dmaA(j + S - 1) + dmaB(j + S - 1)) if j + S - 1 < N else []
            for x in (late[TR * (j - TRS): TR * (j - TRS) + TR] if j >= TRS else []):
                dm.append(lambda x=x: a.vmem(x, "sl"))
            streams = []
            if nact + 1 <= j <= nact + 4:
                mt = j - (nact + 1)
                it = []
                if mt == 0:
                    a.wait(["g"])
                it.append(lambda mt=mt: e(f"v_sub_f32 v{VOMG + mt}, 1.0, v{VG + mt}"))
                for q in range(16):
                    it.append(lambda mt=mt, q=q: e(f"v_mul_f32 v{acc2(mt, 0) + q}, v{VOMG + mt}, v{acc2(mt, 0) + q}"))
                streams.append((it, 10, 30))
            n = max(len(main), 1)
            ex = capture(a, lambda: extra(j), chunk=1)
            if ex:
                streams.append((ex, 1, min(n * 0.97, 1 + 1.2 * len(ex))))
            schedule(a, main, [(rd, 0, n * 0.85), (dm, 0.5, n * 0.95)] + streams)
            post(j)
            if j < N:
                a.wait([f"D{j + 1}"] if j + 1 < N else [], lgkm=True)
                if j + 1 < N:
                    e("s_barrier")

        iters = []
        for j in range(N + 1):
            n_ = len(a.lines)
            if j == 4:
                stamp(a, 3)
            if j == nact:
                stamp(a, 4)
            interval(j)
            iters.append(a.lines[n_:])
            del a.lines[n_:]
        fold_loops(a, iters, PERIOD, SCNT, f"p2{R}")
        stamp(a, 5)
        if role == 0:
            e(f"s_lshl_b32 s{ST}, s{STILE}, 16")
            e(f"s_lshl_b32 s{ST + 1}, s{SWAVE}, 13")
            e(f"s_add_u32 s{ST}, s{ST}, s{ST + 1}")
            e(f"s_add_u32 s{ST}, s{ST}, {PART_OFF}")
            e("s_nop 7")
        else:
            vo = VT + 4
            if OPT.get('fl'):
                e(f"v_and_b32 v{t2}, 7, v{vi}")
                e(f"v_lshlrev_b32 v{t2}, 11, v{t2}")
                e(f"v_lshrrev_b32 v{t3}, 3, v{vi}")
                e(f"v_lshlrev_b32 v{t3}, 6, v{t3}")
                e(f"v_add_u32 v{t2}, v{t2}, v{t3}")
            else:
                e(f"v_lshlrev_b32 v{t2}, 11, v{vi}")
            e(f"v_bfe_u32 v{t3}, v{VL}, 4, 1")
            e(f"v_lshlrev_b32 v{t3}, 5, v{t3}")
            e(f"v_add_u32 v{t2}, v{t2}, v{t3}")
            e(f"v_lshrrev_b32 v{t3}, 5, v{VL}")
            e(f"v_lshlrev_b32 v{t3}, 4, v{t3}")
            e(f"v_add_u32 v{vo}, v{t2}, v{t3}")
            e(f"v_add_u32 v{vo + 1}, 16384, v{vo}")
            e(f"s_lshl_b32 s{ST}, s{SMT}, 7")
            e(f"s_and_b32 s{ST + 1}, s{SWAVE}, 1")
            e(f"s_lshl_b32 s{ST + 1}, s{ST + 1}, 6")
            e(f"s_add_u32 s{ST}, s{ST}, s{ST + 1}")
            e(f"s_lshl_b32 s{ST}, s{ST}, 11")
            e(f"s_lshl_b32 s{ST + 1}, s{SNT}, 8")
            e(f"s_add_u32 s{ST}, s{ST}, s{ST + 1}")
            e(f"s_lshr_b32 s{ST + 1}, s{SWAVE}, 1")
            e(f"s_lshl_b32 s{ST + 1}, s{ST + 1}, 7")
            e(f"s_add_u32 s{ST}, s{ST}, s{ST + 1}")
            if OPT.get('fl') == 2:
                vw_, vr_ = 116, 118
                e(f"s_lshl_b32 s{ST + 1}, s{SWAVE}, 13")
                e(f"s_add_u32 s{ST + 1}, s{ST + 1}, {((N - 2) % S) * SLOT}")
                e(f"v_and_b32 v{t0}, 1, v{vG}")
                e(f"v_lshlrev_b32 v{t0}, 1, v{t0}")
                e(f"v_lshrrev_b32 v{t1}, 1, v{vG}")
                e(f"v_add_u32 v{t0}, v{t0}, v{t1}")
                e(f"v_and_b32 v{t1}, 7, v{vi}")
                e(f"v_xor_b32 v{t0}, v{t0}, v{t1}")
                e(f"v_lshlrev_b32 v{t1}, 7, v{vi}")
                e(f"v_add_u32 v{t1}, s{ST + 1}, v{t1}")
                e(f"v_lshlrev_b32 v{t2}, 4, v{t0}")
                e(f"v_add_u32 v{vw_}, v{t1}, v{t2}")
                e(f"v_xor_b32 v{t2}, 64, v{t2}")
                e(f"v_add_u32 v{vw_ + 1}, v{t1}, v{t2}")
                e(f"v_lshrrev_b32 v{t0}, 3, v{VL}")
                e(f"v_and_b32 v{t1}, 7, v{VL}")
                e(f"v_xor_b32 v{t2}, v{t0}, v{t1}")
                e(f"v_lshlrev_b32 v{t2}, 4, v{t2}")
                e(f"v_lshlrev_b32 v{t3}, 7, v{t0}")
                e(f"v_add3_u32 v{vr_}, v{t2}, v{t3}, s{ST + 1}")
                e(f"v_lshlrev_b32 v{t0}, 11, v{t0}")
                e(f"v_lshlrev_b32 v{t1}, 4, v{t1}")
                e(f"v_add_u32 v{vo}, v{t0}, v{t1}")
            a.wait(["PT"])
        for mt in range(4):
            sel = "op_sel:[1,0,0] op_sel_hi:[1,1,1]" if mt & 1 else "op_sel_hi:[0,1,1]"
            for q in range(8):
                b0 = acc2(mt, 0) + 2 * q
                e(f"v_pk_fma_f32 {vr(b0, 2)}, {vr(VG + (mt & 2), 2)}, {vr(b0 + 64, 2)}, {vr(b0, 2)} {sel}")
            if role == 0:
                for h2 in range(2):
                    q = 2 * mt + h2
                    b0 = AC + 8 * q
                    for r in range(4):
                        e(f"v_cvt_pk_bf16_f32 v{b0 + r}, v{b0 + 2 * r}, v{b0 + 2 * r + 1}")
                    e(f"buffer_store_dwordx4 {vr(b0)}, v{VL16}, {WS}, s{ST} offen offset:{1024 * (q & 3)} sc1")
                    if q == 3:
                        e(f"s_add_u32 s{ST}, s{ST}, 4096")
            else:
                for q in range(8):
                    p0 = VY + 8 * mt + q
                    u = 48 + 2 * q
                    e(f"v_lshlrev_b32 v{u}, 16, v{p0}")
                    e(f"v_and_b32 v{u + 1}, 0xffff0000, v{p0}")
                for q in range(8):
                    b0 = acc2(mt, 0) + 2 * q
                    e(f"v_pk_add_f32 {vr(b0, 2)}, {vr(b0, 2)}, {vr(48 + 2 * q, 2)}")
                for pr in range(2):
                    b0 = acc2(mt, 2 * pr)
                    for q in range(4):
                        e(f"v_cvt_pk_bf16_f32 v{b0 + q}, v{b0 + 2 * q}, v{b0 + 2 * q + 1}")
                e("s_nop 1")
                for pr in range(2):
                    b0 = acc2(mt, 2 * pr)
                    e(f"v_permlane16_swap_b32 v{b0}, v{b0 + 2}")
                    e(f"v_permlane16_swap_b32 v{b0 + 1}, v{b0 + 3}")
                if OPT.get('fl') == 2:
                    for pr in range(2):
                        e(f"ds_write_b128 v{vw_ + pr}, {vr(acc2(mt, 2 * pr))} offset:{2048 * mt}")
                    continue
                elif OPT.get('fl'):
                    q0, q1 = acc2(mt, 0), acc2(mt, 2)
                    tq = q0 + 4
                    for r in range(4):
                        e(f"v_mov_b32 v{tq + r}, v{q0 + r}")
                    for r in range(4):
                        e(f"v_mov_b32_dpp v{q0 + r}, v{q1 + r} row_ror:8 row_mask:0xf bank_mask:0xc")
                    for r in range(4):
                        e(f"v_mov_b32_dpp v{q1 + r}, v{tq + r} row_ror:8 row_mask:0xf bank_mask:0x3")
                    e(f"buffer_store_dwordx4 {vr(q0)}, v{vo}, s[{SOUT}:{SOUT + 3}], s{ST} offen {OPT.get('ost', '')}")
                    e(f"buffer_store_dwordx4 {vr(q1)}, v{vo + 1}, s[{SOUT}:{SOUT + 3}], s{ST} offen {OPT.get('ost', '')}")
                else:
                    for pr in range(2):
                        b0 = acc2(mt, 2 * pr)
                        e(f"buffer_store_dwordx4 {vr(b0)}, v{vo}, s[{SOUT}:{SOUT + 3}], s{ST} offen offset:{64 * pr} {OPT.get('ost', '')}")
                if mt < 3:
                    e(f"s_add_u32 s{ST}, s{ST}, 32768")
        if role == 1 and OPT.get('fl') == 2:
            e("s_waitcnt lgkmcnt(0)")
            for q in range(8):
                e(f"ds_read_b128 {vr(AC + 64 + 4 * q)}, v{vr_} offset:{1024 * q}")
            for q in range(8):
                e(f"s_waitcnt lgkmcnt({7 - q})")
                e(f"buffer_store_dwordx4 {vr(AC + 64 + 4 * q)}, v{vo}, s[{SOUT}:{SOUT + 3}], s{ST} offen {OPT.get('ost', '')}")
                if q < 7:
                    e(f"s_add_u32 s{ST}, s{ST}, 16384")
        if role == 0:
            e("s_waitcnt vmcnt(0)")
            setflag(3)
        stamp(a, 6)
        if DIAG and OPT.get('ts2'):
            e(f"s_mov_b32 s76, s{S_PTR + 20}")
            e(f"s_and_b32 s77, s{S_PTR + 21}, 0xffff")
            e(f"s_mov_b32 s78, 0x4000000")
            e(f"s_mov_b32 s79, 0x20000")
            e(f"s_lshl_b32 s75, s2, 2")
            e(f"s_add_u32 s75, s75, s{S_WAVE}")
            e(f"s_lshl_b32 s75, s75, 8")
            e(f"s_add_u32 s75, s75, {DIAG_OFF + 0x200000}")
            e(f"v_lshlrev_b32 v{VT}, 2, v{VL}")
            e(f"buffer_store_dword v{VT + 7}, v{VT}, s[76:79], s75 offen")
        if DIAG:
            e("s_waitcnt vmcnt(0)")
        stamp(a, 7)
        stamp_dump(a, 1, 8, SWAVE, S_PTR + 20, S_PTR + 21, VT + 5)
        e("s_endpgm")

    body(1)
    a.label("L_p2_r0")
    a.vm = vm_save
    body(0)


def fix_hazards(lines):
    out = []
    for i, ln in enumerate(lines):
        out.append(ln)
        if " m0," in ln and i + 1 < len(lines) and lines[i + 1].rstrip().endswith("lds"):
            out.append("  s_nop 0")
    return out


def gen_spin():
    a = Asm()
    e = a.e
    spec = OPT['spin']
    A_, B_, M = spec.split(",")
    a.lines.append(".globl spin_kernel\n.p2align 8\n.type spin_kernel,@function\nspin_kernel:")
    e("s_cmp_lg_u32 s2, 0")
    e("s_cbranch_scc1 L_spin_end")
    e("s_load_dwordx2 s[4:5], s[0:1], 80")
    e("v_lshlrev_b32 v1, 7, v0")
    e("s_waitcnt lgkmcnt(0)")
    e("s_mov_b32 s8, s4\ns_and_b32 s9, s5, 0xffff\ns_mov_b32 s10, 0x4000000\ns_mov_b32 s11, 0x20000")

    def red(sp, sdst):
        k, st, op = sp.split(".")
        base = DIAG_OFF + int(k) * 0x100000 + 8 * int(st) + 4
        for i in range(16):
            e(f"s_mov_b32 s12, {base + i * 8192}")
            e(f"buffer_load_dword v{8 + i}, v1, s[8:11], s12 offen")
        e("s_waitcnt vmcnt(0)")
        for i in range(1, 16):
            e(f"v_{op}_u32 v8, v8, v{8 + i}")
        e("s_nop 1")
        e(f"v_readlane_b32 s{sdst}, v8, 0")
        for l in range(1, 64):
            e(f"v_readlane_b32 s13, v8, {l}")
            e("s_nop 0")
            e(f"s_{op}_u32 s{sdst}, s{sdst}, s13")
    red("0.0.min", 20)
    red(A_, 21)
    red(B_, 22)
    e("s_sub_u32 s22, s22, s21")
    e(f"s_mul_i32 s22, s22, {M}")
    e("s_add_u32 s22, s22, 12000")
    e("s_min_u32 s22, s22, 90000")
    a.label("L_spin")
    e("s_memrealtime s[14:15]")
    e("s_waitcnt lgkmcnt(0)")
    e("s_sub_u32 s16, s14, s20")
    e("s_cmp_lt_u32 s16, s22")
    e("s_cbranch_scc1 L_spin")
    a.label("L_spin_end")
    e("s_endpgm")
    return a.lines


def kd(name, nfv, accum):
    return f""".amdhsa_kernel {name}
  .amdhsa_next_free_vgpr {nfv}
  .amdhsa_next_free_sgpr 102
  .amdhsa_accum_offset {accum}
  .amdhsa_group_segment_fixed_size 0
  .amdhsa_kernarg_size 88
  .amdhsa_user_sgpr_count 2
  .amdhsa_user_sgpr_kernarg_segment_ptr 1
  .amdhsa_system_sgpr_workgroup_id_x 1
.end_amdhsa_kernel"""


def main(path):
    hdr = open(f"cdna_kernels/{NAME}.s.ref").read().split("; Override launch")[0]
    out = [hdr.rstrip("\n")]
    kn = NAME + "_kernel"
    if OPT.get('spin'):
        out.append(f"; @launch kernel={kn} grid=(256,1,1) block=(256,1,1) lds={K2_LDS()}")
        out.append("; @launch kernel=spin_kernel grid=(1,1,1) block=(64,1,1) lds=0")
    else:
        out.append(f"; @launch grid=(256,1,1) block=(256,1,1) lds={K2_LDS()}")
    out.append('.amdgcn_target "amdgcn-amd-amdhsa--gfx950"')
    out.append(".text")
    out += [ln.replace("KNAME", kn) for ln in fix_hazards(gen_k1())]
    if OPT.get('spin'):
        out += gen_spin()
    out.append('.section .rodata,"a"')
    if OPT.get('spin'):
        out.append(".p2align 6")
        out.append(kd("spin_kernel", 32, 32))
    out.append(".p2align 6")
    out.append(kd(kn, 512 if OPT.get("pb") else 416, 256))
    open(path, "w").write("\n".join(out) + "\n")


if __name__ == "__main__":
    if "--dbgout" in sys.argv:
        DBGOUT = True
        sys.argv.remove("--dbgout")
    if "--diag" in sys.argv:
        DIAG = True
        sys.argv.remove("--diag")
    for arg in list(sys.argv):
        if "=" in arg:
            k_, v_ = arg.split("=")
            OPT[k_] = int(v_) if v_.isdigit() else v_.replace("+", " ")
            sys.argv.remove(arg)
    main(sys.argv[1] if len(sys.argv) > 1 else f"cdna_kernels/{NAME}.s")
```

```python
import sys

NAME = "gated_mix__linear_attn_block__dense_activation_mish__prompt"

AF_OFF = 0
AF_BYTES = 16 * 144 * 8 * 1024
KVP_OFF = AF_BYTES
KVP_BYTES = 16 * 8 * 12 * 1024
KVF_OFF = KVP_OFF + KVP_BYTES
KVF_BYTES = 32 * 3 * 1024
G_OFF = KVF_OFF + KVF_BYTES
PART_OFF = G_OFF + 8192
OF_OFF = PART_OFF + 128 * 65536
FLG_OFF = OF_OFF + 16 * 32 * 8192
FE_OFF = FLG_OFF - 0 + 32768 + 128 * 256
FA_OFF = FLG_OFF
FQ_OFF = FA_OFF + 8192
FO_OFF = FQ_OFF + 8192
FP_OFF = FO_OFF + 8192
FK_OFF = FE_OFF + 8192
WS_USED = FK_OFF + 2048
assert FP_OFF + 128 * 256 <= FE_OFF
V_TOK = 14

DIAG = False
DBGOUT = False
OPT = dict(k1a="", k1b="", k2a="", k2b="", st="sc1", ost="sc1", fl=1, pf=2, xpf=0, n0=34, o0=6, tr=5, cpf=2, map=0, fepos=1, S=4, pbf=1, pj=1, pprio=0, cprio=0, rdend=26)
DIAG_OFF = 0x2000000
EPS_HEX = "0x358637bd"
L2E_HEX = "0x3fb8aa3b"


class Asm:
    def __init__(self):
        self.lines = []
        self.vm = []

    def e(self, s):
        for ln in s.split("\n"):
            self.lines.append("  " + ln.strip())

    def label(self, s):
        self.lines.append(s + ":")

    def vmem(self, s, tag):
        self.e(s)
        self.vm.append(tag)

    def mark(self, tag):
        self.vm.append("#" + tag)

    def vm_count(self, tags, drop=True):
        idx = -1
        for i, t in enumerate(self.vm):
            if t in tags:
                idx = i
        if idx < 0:
            return None
        n = sum(1 for t in self.vm[idx + 1:] if not t.startswith("#"))
        if drop:
            self.vm = self.vm[idx + 1:]
        assert n <= 63, n
        return n

    def wait(self, tags=(), lgkm=False):
        n = self.vm_count(tags) if tags else None
        parts = []
        if n is not None:
            parts.append(f"vmcnt({n})")
        if lgkm:
            parts.append("lgkmcnt(0)")
        if parts:
            self.e("s_waitcnt " + " ".join(parts))


def stamp(a, idx, sbase=80):
    if not DIAG:
        return
    a.e(f"s_memtime s[{sbase - 4}:{sbase - 3}]")
    a.e(f"s_memrealtime s[{sbase - 2}:{sbase - 1}]")
    a.e("s_waitcnt lgkmcnt(0)")
    a.e(f"s_mov_b32 s{sbase + 2 * idx}, s{sbase - 4}")
    a.e(f"s_mov_b32 s{sbase + 2 * idx + 1}, s{sbase - 2}")


def stamp_dump(a, kidx, n, swave, sptr_lo, sptr_hi, vtmp, sbase=80):
    if not DIAG:
        return
    e = a.e
    e(f"s_mov_b32 s{sbase - 4}, s{sptr_lo}")
    e(f"s_and_b32 s{sbase - 3}, s{sptr_hi}, 0xffff")
    e(f"s_mov_b32 s{sbase - 2}, 0x4000000")
    e(f"s_mov_b32 s{sbase - 1}, 0x20000")
    e(f"s_lshl_b32 s75, s2, 2")
    e(f"s_add_u32 s75, s75, s{swave}")
    e(f"s_lshl_b32 s75, s75, 7")
    e(f"s_add_u32 s75, s75, {DIAG_OFF + kidx * 0x100000}")
    e(f"v_mov_b32 v{vtmp}, 0")
    e("s_mov_b64 exec, 1")
    for i in range(2 * n):
        e(f"v_mov_b32 v{vtmp + 1}, s{sbase + i}")
        e(f"buffer_store_dword v{vtmp + 1}, v{vtmp}, s[{sbase - 4}:{sbase - 1}], s75 offen offset:{4 * i}")
        e("s_nop 1")
    e("s_mov_b64 exec, -1")
    if DBGOUT:
        lab = f"L_dbg_{len(a.lines)}"
        e(f"s_cmp_lg_u32 s2, 1")
        e(f"s_cbranch_scc1 {lab}")
        e(f"s_cmp_lg_u32 s{swave}, 0")
        e(f"s_cbranch_scc1 {lab}")
        e(f"s_mov_b32 s{sbase - 4}, s{sptr_lo - 2}")
        e(f"s_and_b32 s{sbase - 3}, s{sptr_hi - 2}, 0xffff")
        e(f"s_mov_b32 s{sbase - 2}, 256")
        e("s_mov_b64 exec, 1")
        for i in range(n):
            e(f"v_mov_b32 v{vtmp + 1}, s{sbase + 2 * i + 1}")
            e(f"buffer_store_dword v{vtmp + 1}, v{vtmp}, s[{sbase - 4}:{sbase - 1}], 0 offen offset:{4 * i + 32 * kidx}")
            e("s_nop 1")
        e("s_mov_b64 exec, -1")
        a.label(lab)


def vr(b, n=4):
    return f"v[{b}:{b + n - 1}]"


def ar(b, n=4):
    return f"a[{b}:{b + n - 1}]"


def interleave(a, mf, fillers, start=0, end=None):
    n = len(mf)
    if end is None:
        end = n
    nf = len(fillers)
    pos = [start + (j * (end - start)) // max(nf, 1) for j in range(nf)]
    j = 0
    for m in range(n):
        a.e(mf[m])
        while j < nf and pos[j] <= m:
            f = fillers[j]
            f()
            j += 1
    while j < nf:
        fillers[j]()
        j += 1


def capture(a, fn, chunk=2):
    n0_ = len(a.lines)
    vm0 = list(a.vm)
    fn()
    lines = a.lines[n0_:]
    tags = a.vm[len(vm0):]
    del a.lines[n0_:]
    a.vm = vm0
    items = []
    cur = []
    depth = 0
    ti = 0
    for ln in lines:
        cur.append(ln)
        if "s_cbranch" in ln or "s_mov_b64 exec, " in ln and "-1" not in ln or "s_cmp" in ln or "s_getpc" in ln or "s_sub_u32" in ln and "KNAME" in ln:
            depth = 1
        if ln.endswith(":") and not ln.startswith(" ") and "L_pc" not in ln or "s_mov_b64 exec, -1" in ln and not any("s_cbranch" in x for x in cur) or "s_cselect" in ln or "s_subb_u32" in ln:
            depth = 0
        if depth == 0 and len(cur) >= chunk:
            items.append(cur)
            cur = []
    if cur:
        items.append(cur)
    out = []
    for it in items:
        guarded = any("s_cbranch" in x for x in it)
        nv = 0 if guarded else sum(1 for x in it if x.strip().startswith(("buffer_", "global_")))
        tg = tags[ti:ti + nv]
        ti += nv

        def emit(it=it, tg=tg):
            a.lines.extend(it)
            a.vm.extend(tg)
        out.append(emit)
    rest = tags[ti:]
    assert all(t.startswith("#") for t in rest), (ti, tags)
    if rest:
        out.append(lambda rest=rest: a.vm.extend(rest))
    return out


def srd(a, d, lo, hi, nbytes, bias=0):
    if bias:
        a.e(f"s_sub_u32 s{d}, s{lo}, {bias}")
        a.e(f"s_subb_u32 s{d + 1}, s{hi}, 0")
        a.e(f"s_and_b32 s{d + 1}, s{d + 1}, 0xffff")
    else:
        a.e(f"s_mov_b32 s{d}, s{lo}")
        a.e(f"s_and_b32 s{d + 1}, s{hi}, 0xffff")
    a.e(f"s_mov_b32 s{d + 2}, {nbytes + bias}")
    a.e(f"s_mov_b32 s{d + 3}, 0x20000")


K1_BSLOT = 13312
K1_AREA = 3328
K1_ABASE = 4 * K1_BSLOT
K1_LDS = K1_ABASE + 4 * 16384
ACC0 = 48


def acc(t, mt):
    return ACC0 + 16 * t + 4 * mt


V_LANE = 1
V_ARD = 2
V_QRD = 4
V_HRD = 8
V_ADMA = 9
V_BDMA = 13
V_L16 = 17
V_T = 18
S_X, S_Q, S_W1, S_WS, S_MISC = 4, 8, 12, 16, 20
S_WAVE, S_RB, S_P = 24, 25, 26
S_OFFA, S_OFFA2, S_OFFQ, S_OFFH = 27, 28, 29, 30
S_M0B, S_M0A = 31, 32
S_CNT = 33
S_QM = 34
S_PTR = 36
S_L2E = 58
S_T = 60
S_AFB = 72
S_GROW = 73
S_PO1, S_PO2 = 74, 3
S_PT, S_PTE = 100, 101
S_CB = 100
S_PF1, S_PF2 = 96, 20


def bset(s, t):
    return 52 * s + 4 * t


ASET = {"X": 104, "Y": 120, "Z": 136}


def k1_body(a, typ):
    T = "A" if typ == 0 else "B"
    nq = 8 if typ == 0 else 4
    nh = 13 - nq
    Ph = 2 * nh
    HB = 256 * nq
    e = a.e
    vi, vG, t0, t1, t2, t3 = V_T, V_T + 1, V_T + 2, V_T + 3, V_T + 4, V_T + 5
    e(f"v_and_b32 v{vi}, 15, v{V_LANE}")
    e(f"v_lshrrev_b32 v{vG}, 4, v{V_LANE}")
    e(f"s_mul_i32 s{S_T + 2}, s{S_P}, 448")
    if typ:
        e(f"s_add_u32 s{S_T + 2}, s{S_T + 2}, 160")

    e(f"s_lshr_b32 s{S_T + 8}, s{S_WAVE}, 1")
    e(f"s_lshl_b32 s{S_T + 8}, s{S_T + 8}, 4")
    e(f"s_and_b32 s{S_T + 9}, s{S_WAVE}, 1")
    e(f"s_lshl_b32 s{S_T + 9}, s{S_T + 9}, 2")
    e(f"s_add_u32 s{S_T + 8}, s{S_T + 8}, s{S_T + 9}")

    def krow(dst, kp, tmp):
        e(f"v_lshrrev_b32 v{tmp}, 2, v{kp}")
        e(f"v_lshlrev_b32 v{tmp}, 3, v{tmp}")
        e(f"v_and_b32 v{dst}, 3, v{kp}")
        e(f"v_add3_u32 v{dst}, v{dst}, v{tmp}, s{S_T + 8}")

    e(f"v_lshrrev_b32 v{t0}, 3, v{V_LANE}")
    krow(t1, t0, t2)
    e(f"v_mul_u32_u24 v{t1}, 6144, v{t1}")
    e(f"v_lshrrev_b32 v{t2}, 1, v{t0}")
    e(f"v_and_b32 v{t2}, 3, v{t2}")
    e(f"v_lshlrev_b32 v{t2}, 1, v{t2}")
    e(f"v_and_b32 v{t3}, 7, v{V_LANE}")
    e(f"v_xor_b32 v{t3}, v{t3}, v{t2}")
    e(f"v_lshlrev_b32 v{t3}, 4, v{t3}")
    e(f"v_add_u32 v{t1}, v{t1}, v{t3}")
    e(f"s_lshl_b32 s{S_T + 9}, s{S_P}, 7")
    e(f"s_add_u32 s{S_T + 9}, s{S_T + 9}, {4096 + (2048 if typ == 0 else 0)}")
    e(f"v_add_u32 v{V_BDMA}, s{S_T + 9}, v{t1}")
    if typ == 0:
        e(f"v_add_u32 v{V_BDMA + 1}, {2048 - 1024}, v{V_BDMA}")
    hins = [(2, 0), (3, 64)] if typ == 0 else [(1, 0), (2, 64), (3, 128)]
    magic, sh = (205, 11) if Ph == 10 else (57, 10)
    for s_ in range(8 * Ph + 64):
        if s_ < 8 * Ph:
            assert (s_ * magic) >> sh == s_ // Ph
    for slot, s0 in hins:
        e(f"v_add_u32 v{t0}, {s0}, v{V_LANE}")
        e(f"v_mul_u32_u24 v{t1}, {magic}, v{t0}")
        e(f"v_lshrrev_b32 v{t1}, {sh}, v{t1}")
        e(f"v_mul_u32_u24 v{t2}, {Ph}, v{t1}")
        e(f"v_sub_u32 v{t0}, v{t0}, v{t2}")
        e(f"v_and_b32 v{t1}, 7, v{t1}")
        krow(t2, t1, t3)
        e(f"v_mul_u32_u24 v{t2}, 7168, v{t2}")
        e(f"v_lshlrev_b32 v{t0}, 4, v{t0}")
        e(f"v_add3_u32 v{t0}, v{t0}, v{t2}, s{S_T + 2}")
        e(f"v_add_u32 v{V_BDMA + slot}, {4096 - 1024 * slot}, v{t0}")
    e(f"s_lshl_b32 s{S_T + 9}, s{S_RB}, 8")
    e(f"s_lshl_b32 s{S_T + 10}, s{S_WAVE}, 6")
    e(f"s_add_u32 s{S_T + 9}, s{S_T + 9}, s{S_T + 10}")
    e(f"s_lshl_b32 s{S_T + 9}, s{S_T + 9}, 11")
    e(f"v_lshrrev_b32 v{t0}, 3, v{V_LANE}")
    e(f"v_lshrrev_b32 v{t1}, 1, v{t0}")
    e(f"v_and_b32 v{t2}, 7, v{V_LANE}")
    e(f"v_xor_b32 v{t2}, v{t2}, v{t1}")
    e(f"v_lshlrev_b32 v{t0}, 11, v{t0}")
    e(f"v_add_u32 v{t0}, s{S_T + 9}, v{t0}")
    for j in range(4):
        if j & 1:
            e(f"v_xor_b32 v{t3}, 4, v{t2}")
            e(f"v_lshlrev_b32 v{t3}, 4, v{t3}")
        else:
            e(f"v_lshlrev_b32 v{t3}, 4, v{t2}")
        e(f"v_add_u32 v{t3}, v{t3}, v{t0}")
        e(f"v_add_u32 v{V_ADMA + j}, {j * (16384 - 1024)}, v{t3}")
    e(f"s_mul_i32 s{S_M0B}, s{S_WAVE}, {K1_AREA}")
    e(f"s_lshl_b32 s{S_M0A}, s{S_WAVE}, 14")
    e(f"s_add_u32 s{S_M0A}, s{S_M0A}, {K1_ABASE}")
    e(f"s_mov_b32 s{S_OFFA}, 0")
    e(f"s_mov_b32 s{S_OFFA2}, 65536")
    e(f"s_mov_b32 s{S_OFFQ}, 0")
    e(f"s_mov_b32 s{S_OFFH}, 0")
    e(f"s_mov_b32 s{S_QM}, 0xffff")
    e(f"s_mov_b32 s{S_QM + 1}, 0")

    def dmaB(tt):
        slot = tt % 4
        tag = f"B{tt}"
        f = []
        srcs = [(S_Q, S_OFFQ), (S_Q, S_OFFQ) if typ == 0 else (S_W1, S_OFFH), (S_W1, S_OFFH)]
        f.append(lambda: e(f"s_add_u32 m0, s{S_M0B}, {slot * K1_BSLOT}"))
        for j in range(3):
            sr, so = srcs[j]
            f.append(lambda j=j, sr=sr, so=so: a.vmem(
                f"buffer_load_dwordx4 v{V_BDMA + j}, s[{sr}:{sr + 3}], s{so} offen offset:{1024 * j} {OPT['k1b']} lds", tag))

        def q():
            e(f"s_mov_b64 exec, s[{S_QM}:{S_QM + 1}]")
            a.vmem(f"buffer_load_dwordx4 v{V_BDMA + 3}, s[{S_W1}:{S_W1 + 3}], s{S_OFFH} offen offset:3072 {OPT['k1b']} lds", tag)
            e("s_mov_b64 exec, -1")
        f.append(q)
        f.append(lambda: e(f"s_add_u32 s{S_OFFQ}, s{S_OFFQ}, {32 * 6144}"))
        f.append(lambda: e(f"s_add_u32 s{S_OFFH}, s{S_OFFH}, {32 * 7168}"))
        return f

    def dmaA(aa):
        slot = aa % 2
        tag = f"A{aa}"
        f = []
        for half in range(2):
            so = S_OFFA if half == 0 else S_OFFA2
            f.append(lambda half=half: e(f"s_add_u32 m0, s{S_M0A}, {slot * 8192 + half * 4096}"))
            for j in range(4):
                f.append(lambda j=j, so=so: a.vmem(
                    f"buffer_load_dwordx4 v{V_ADMA + j}, s[{S_X}:{S_X + 3}], s{so} offen offset:{1024 * j} {OPT['k1a']} lds", tag))
        f.append(lambda: e(f"s_add_u32 s{S_OFFA}, s{S_OFFA}, 128"))
        f.append(lambda: e(f"s_add_u32 s{S_OFFA2}, s{S_OFFA2}, 128"))
        return f

    def run_seq(fl):
        for fn in fl:
            n0 = len(a.lines)
            fn()
            if " m0," in a.lines[-1] and len(a.lines) == n0 + 1:
                e("s_nop 0")

    e("s_waitcnt lgkmcnt(0)")
    srd(a, S_Q, S_PTR + 2, S_PTR + 3, 1024 * 3072 * 2, bias=4096)
    srd(a, S_W1, S_PTR + 8, S_PTR + 9, 1024 * 3584 * 2, bias=4096)
    srd(a, S_X, S_PTR + 0, S_PTR + 1, 2048 * 1024 * 2)
    if not OPT.get('spin'):
        stamp(a, 0)
    if OPT.get('kst'):
        stamp(a, 4)
    run_seq(dmaB(0))
    run_seq(dmaA(0))
    srd(a, S_T + 4, S_PTR + 10, S_PTR + 11, 7168)
    e(f"v_lshlrev_b32 v{t1}, 3, v{vG}")
    for j in range(nh):
        a.vmem(f"buffer_load_dwordx2 {vr(acc(nq + j, 3), 2)}, v{t1}, s[{S_T + 4}:{S_T + 7}], s{S_T + 2} offen offset:{32 * j}", "bias")
    run_seq(dmaB(1))
    if not OPT.get('ramp'):
        run_seq(dmaB(2))
        run_seq(dmaA(1))
        run_seq(dmaB(3))
    if OPT.get('ramp') == 2:
        run_seq(dmaA(1))
    if OPT.get('ramp') == 3:
        run_seq(dmaB(2))
        run_seq(dmaA(1))
    e(f"v_lshrrev_b32 v{t0}, 3, v{vi}")
    e(f"v_lshlrev_b32 v{t0}, 6, v{t0}")
    e(f"v_and_b32 v{t1}, 7, v{vi}")
    e(f"v_lshlrev_b32 v{t1}, 3, v{t1}")
    e(f"v_add_u32 v{t0}, v{t0}, v{t1}")
    e(f"v_lshrrev_b32 v{t1}, 1, v{vi}")
    e(f"v_xor_b32 v{t1}, v{t1}, v{vG}")
    e(f"v_add_u32 v{t2}, v{t0}, v{t1}")
    e(f"v_lshlrev_b32 v{t2}, 4, v{t2}")
    e(f"v_add_u32 v{V_ARD}, s{S_M0A}, v{t2}")
    e(f"v_xor_b32 v{t1}, 4, v{t1}")
    e(f"v_add_u32 v{t2}, v{t0}, v{t1}")
    e(f"v_lshlrev_b32 v{t2}, 4, v{t2}")
    e(f"v_add_u32 v{V_ARD + 1}, s{S_M0A}, v{t2}")
    e(f"v_and_b32 v{t0}, 1, v{vG}")
    e(f"v_lshlrev_b32 v{t0}, 2, v{t0}")
    e(f"v_lshrrev_b32 v{t1}, 2, v{vi}")
    e(f"v_add_u32 v{t0}, v{t0}, v{t1}")
    e(f"v_lshrrev_b32 v{t1}, 1, v{vG}")
    e(f"v_mul_u32_u24 v{t1}, {2 * K1_AREA}, v{t1}")
    e(f"v_and_b32 v{t2}, 3, v{vi}")
    e(f"v_lshlrev_b32 v{t2}, 3, v{t2}")
    e(f"v_add_u32 v{t1}, v{t1}, v{t2}")
    e(f"v_mul_u32_u24 v{t3}, {16 * Ph}, v{t0}")
    e(f"v_add3_u32 v{V_HRD}, v{t1}, v{t3}, {0}")
    e(f"v_add_u32 v{V_HRD}, {HB}, v{V_HRD}")
    e(f"v_lshlrev_b32 v{t3}, 7, v{t0}")
    e(f"v_add_u32 v{t1}, v{t1}, v{t3}")
    e(f"v_lshrrev_b32 v{t2}, 1, v{t0}")
    e(f"v_and_b32 v{t2}, 3, v{t2}")
    for t in range(4):
        e(f"v_xor_b32 v{t3}, {t}, v{t2}")
        e(f"v_lshlrev_b32 v{t3}, 5, v{t3}")
        e(f"v_add_u32 v{V_QRD + t}, v{t1}, v{t3}")
    e(f"v_lshlrev_b32 v{V_L16}, 4, v{V_LANE}")

    gw, gx0, gx1 = V_T, V_T + 8, V_T + 16
    gt = V_T + 24
    nb = {0: 1, 1: 7, 2: 1, 3: 2, 4: 3}[OPT['pf']]
    PL1, PL2 = -(-56 // nb), -(-16 // nb)

    def misc_setup():
        srd(a, S_WS, S_PTR + 20, S_PTR + 21, WS_USED)
        tile_decode(a, S_T + 4, S_T + 5, S_T + 6, S_T + 7, S_T)
        e(f"s_lshl_b32 s{S_T}, s{S_RB}, 1")
        e(f"s_lshr_b32 s{S_T + 1}, s{S_WAVE}, 1")
        e(f"s_add_u32 s{S_T}, s{S_T}, s{S_T + 1}")
        e(f"s_lshl_b32 s{S_T}, s{S_T}, 5")
        e(f"s_lshl_b32 s{S_T + 1}, s{S_P}, 1")
        e(f"s_add_u32 s{S_T}, s{S_T}, s{S_T + 1}")
        if typ:
            e(f"s_add_u32 s{S_T}, s{S_T}, 1")
        e(f"s_lshl_b32 s{S_T}, s{S_T}, 1")
        e(f"s_and_b32 s{S_T + 1}, s{S_WAVE}, 1")
        e(f"s_add_u32 s{S_T}, s{S_T}, s{S_T + 1}")
        e(f"s_lshl_b32 s{S_T}, s{S_T}, 3")
        e(f"s_add_u32 s{S_T}, s{S_T}, {FA_OFF}")
        e(f"v_writelane_b32 v0, s{S_T}, 4")
        e(f"s_lshl_b32 s{S_T}, s{S_RB}, 1")
        e(f"s_lshr_b32 s{S_T + 3}, s{S_WAVE}, 1")
        e(f"s_add_u32 s{S_T}, s{S_T}, s{S_T + 3}")
        e(f"s_lshl_b32 s{S_T}, s{S_T}, 5")
        e(f"s_add_u32 s{S_T}, s{S_T}, s{S_P}")
        e(f"s_lshl_b32 s{S_T}, s{S_T}, 1")
        e(f"s_add_u32 s{S_T}, s{S_T}, s{S_T + 1}")
        e(f"s_lshl_b32 s{S_T}, s{S_T}, 3")
        e(f"s_add_u32 s{S_T}, s{S_T}, {FE_OFF + 256 * typ}")
        e(f"v_writelane_b32 v0, s{S_T}, 0")
        e(f"s_lshl_b32 s{S_T}, s{S_P}, 4")
        e(f"s_add_u32 s{S_T}, s{S_T}, s{S_RB}")
        e(f"s_lshl_b32 s{S_T}, s{S_T}, 2")
        e(f"s_add_u32 s{S_T}, s{S_T}, s{S_WAVE}")
        e(f"s_lshl_b32 s{S_T}, s{S_T}, 3")
        e(f"s_add_u32 s{S_T}, s{S_T}, {FQ_OFF + 256 * typ}")
        e(f"v_writelane_b32 v0, s{S_T}, 1")
        e(f"s_lshr_b32 s{S_T}, s2, 5")
        e(f"s_lshl_b32 s{S_T}, s{S_T}, 1")
        e(f"s_lshr_b32 s{S_T + 1}, s{S_WAVE}, 1")
        e(f"s_add_u32 s{S_T}, s{S_T}, s{S_T + 1}")
        e(f"s_lshl_b32 s{S_T}, s{S_T}, 9")
        e(f"s_and_b32 s{S_T + 1}, s2, 31")
        e(f"s_lshl_b32 s{S_T + 1}, s{S_T + 1}, 4")
        e(f"s_add_u32 s{S_T}, s{S_T}, s{S_T + 1}")
        e(f"s_and_b32 s{S_T + 1}, s{S_WAVE}, 1")
        e(f"s_lshl_b32 s{S_T + 1}, s{S_T + 1}, 3")
        e(f"s_add_u32 s{S_T}, s{S_T}, s{S_T + 1}")
        e(f"s_add_u32 s{S_T}, s{S_T}, {FO_OFF}")
        e(f"s_lshl_b32 s{S_T + 1}, s{S_T + 7}, 8")
        e(f"s_lshl_b32 s{S_T + 3}, s{S_WAVE}, 3")
        e(f"s_add_u32 s{S_T + 1}, s{S_T + 1}, s{S_T + 3}")
        e(f"s_add_u32 s{S_T + 1}, s{S_T + 1}, {FP_OFF}")
        e(f"s_cmp_eq_u32 s{S_T + 6}, 0")
        e(f"s_cselect_b32 s{S_T + 1}, s{S_T + 1}, 0x7ffffff0")
        e(f"v_writelane_b32 v0, s{S_T}, 2")
        e(f"v_writelane_b32 v0, s{S_T + 1}, 3")
        e(f"s_mul_i32 s{S_T}, s2, 171")
        e(f"s_lshr_b32 s{S_T}, s{S_T}, 10")
        e(f"s_lshl_b32 s{S_T}, s{S_T}, 1")
        e(f"s_add_u32 s{S_T}, s{S_T}, s2")
        e(f"s_lshl_b32 s{S_T}, s{S_T}, 3")
        e(f"s_add_u32 s{S_T}, s{S_T}, {FK_OFF}")
        e(f"v_writelane_b32 v0, s{S_T}, 5")

    def misc_setup2():
        if typ == 0:
            e(f"s_or_b32 s{S_T}, s2, s{S_WAVE}")
            e(f"s_cmp_lg_u32 s{S_T}, 0")
            e(f"s_cbranch_scc1 L_notok")
            e(f"s_memrealtime s[{S_T + 8}:{S_T + 9}]")
            srd(a, S_T + 4, S_PTR + 18, S_PTR + 19, 256)
            e("s_waitcnt lgkmcnt(0)")
            e(f"s_or_b32 s{S_T + 9}, s{S_T + 9}, 0x40000000")
            e(f"s_lshl_b32 s{S_T + 9}, s{S_T + 9}, 1")
            e(f"s_and_b32 s{S_T}, s{S_T + 8}, 1")
            e(f"s_or_b32 s{S_T + 9}, s{S_T + 9}, s{S_T}")
            e(f"s_or_b32 s{S_T + 8}, s{S_T + 8}, 1")
            e(f"v_mov_b32 v{V_T + 24}, s{S_T + 8}")
            e(f"v_mov_b32 v{V_T + 25}, s{S_T + 9}")
            e(f"v_mov_b32 v{V_T + 27}, 0")
            e("s_mov_b64 exec, 1")
            e(f"buffer_store_dwordx2 v[{V_T + 24}:{V_T + 25}], v{V_T + 27}, s[{S_T + 4}:{S_T + 7}], 0 offen sc1")
            e("s_mov_b64 exec, -1")
            e("s_nop 1")
            a.label("L_notok")
        if OPT.get('cpf') == 1:
            e(f"s_getpc_b64 s[{S_T + 4}:{S_T + 5}]")
            a.label(f"L_pc_{T}")
            e(f"s_sub_u32 s{S_T + 4}, s{S_T + 4}, L_pc_{T}-KNAME")
            e(f"s_subb_u32 s{S_T + 5}, s{S_T + 5}, 0")
            e(f"s_lshr_b32 s{S_T}, s2, 3")
            e(f"s_and_b32 s{S_T}, s{S_T}, 3")
            e(f"s_lshl_b32 s{S_T}, s{S_T}, 2")
            e(f"s_add_u32 s{S_T}, s{S_T}, s{S_WAVE}")
            e(f"s_lshl_b32 s{S_T}, s{S_T}, 13")
            e(f"v_lshlrev_b32 v{V_T + 29}, 7, v{V_LANE}")
            e(f"v_add_u32 v{V_T + 29}, s{S_T}, v{V_T + 29}")
            e(f"v_min_u32 v{V_T + 29}, L_code_end-KNAME-4, v{V_T + 29}")
            a.vmem(f"global_load_dword v{V_T + 29}, v{V_T + 29}, s[{S_T + 4}:{S_T + 5}]", "pf")
        if OPT.get('xpf') == 1:
            e(f"v_and_b32 v{V_T + 28}, 31, v{V_LANE}")
            e(f"v_lshlrev_b32 v{V_T + 28}, 7, v{V_T + 28}")
            e(f"s_lshl_b32 s{S_T}, s2, 2")
            e(f"s_add_u32 s{S_T}, s{S_T}, s{S_WAVE}")
            e(f"s_lshl_b32 s{S_T}, s{S_T}, 12")
            a.vmem(f"buffer_load_dword v{V_T + 28}, v{V_T + 28}, s[{S_X}:{S_X + 3}], s{S_T} offen", "pf")
        if OPT.get('xpf') == 2:
            e(f"v_lshlrev_b32 v{V_T + 27}, 7, v{V_LANE}")
            e(f"s_lshr_b32 s{S_T}, s2, 5")
            e(f"s_lshl_b32 s{S_T}, s{S_T}, 2")
            e(f"s_add_u32 s{S_T}, s{S_T}, s{S_WAVE}")
            e(f"s_lshl_b32 s{S_T}, s{S_T}, 14")
            e(f"s_lshl_b32 s{S_T + 1}, s{S_RB}, 19")
            e(f"s_add_u32 s{S_T}, s{S_T}, s{S_T + 1}")
            a.vmem(f"buffer_load_dword v{V_T + 28}, v{V_T + 27}, s[{S_X}:{S_X + 3}], s{S_T} offen", "pf")
            e(f"s_add_u32 s{S_T}, s{S_T}, 8192")
            a.vmem(f"buffer_load_dword v{V_T + 28}, v{V_T + 27}, s[{S_X}:{S_X + 3}], s{S_T} offen", "pf")

        e(f"v_lshlrev_b32 v{gt}, 5, v{V_LANE}")
        e(f"s_lshl_b32 s{S_GROW}, s{S_RB}, 8")
        e(f"s_lshl_b32 s{S_T + 1}, s{S_WAVE}, 6")
        e(f"s_add_u32 s{S_GROW}, s{S_GROW}, s{S_T + 1}")
        e(f"s_lshl_b32 s{S_T + 1}, s{S_P}, 2")
        e(f"s_add_u32 s{S_GROW}, s{S_GROW}, s{S_T + 1}")
        if typ:
            e(f"s_add_u32 s{S_GROW}, s{S_GROW}, 2")
        e(f"s_lshl_b32 s{S_T + 1}, s{S_GROW}, 11")
        srd(a, S_MISC, S_PTR + 14, S_PTR + 15, 2048)
        a.vmem(f"buffer_load_dwordx4 {vr(gw)}, v{gt}, s[{S_MISC}:{S_MISC + 3}], 0 offen", "g")
        a.vmem(f"buffer_load_dwordx4 {vr(gw + 4)}, v{gt}, s[{S_MISC}:{S_MISC + 3}], 0 offen offset:16", "g")
        a.vmem(f"buffer_load_dwordx4 {vr(gx0)}, v{gt}, s[{S_X}:{S_X + 3}], s{S_T + 1} offen", "g")
        a.vmem(f"buffer_load_dwordx4 {vr(gx0 + 4)}, v{gt}, s[{S_X}:{S_X + 3}], s{S_T + 1} offen offset:16", "g")
        a.vmem(f"buffer_load_dwordx4 {vr(gx1)}, v{gt}, s[{S_X}:{S_X + 3}], s{S_T + 1} offen offset:2048", "g")
        a.vmem(f"buffer_load_dwordx4 {vr(gx1 + 4)}, v{gt}, s[{S_X}:{S_X + 3}], s{S_T + 1} offen offset:2064", "g")

        if OPT['pf']:
            srd(a, S_PF1, S_PTR + 12, S_PTR + 13, 3584 * 1024 * 2)
            srd(a, S_PF2, S_PTR + 4, S_PTR + 5, 1024 * 1024 * 2)
            e(f"v_min_u32 v{V_T + 26}, {PL1 - 1}, v{V_LANE}")
            e(f"v_lshlrev_b32 v{V_T + 26}, 7, v{V_T + 26}")
            e(f"v_min_u32 v{V_T + 27}, {PL2 - 1}, v{V_LANE}")
            e(f"v_lshlrev_b32 v{V_T + 27}, 7, v{V_T + 27}")
            e(f"s_lshl_b32 s{S_T}, s2, 2")
            e(f"s_add_u32 s{S_T}, s{S_T}, s{S_WAVE}")
            e(f"s_mul_i32 s{S_PO1}, s{S_T}, 7168")
            e(f"s_lshl_b32 s{S_PO2}, s{S_T}, 11")


    if OPT.get('pt'):
        e(f"s_lshl_b32 s{S_T}, s{S_RB}, 1")
        e(f"s_lshr_b32 s{S_T + 1}, s{S_WAVE}, 1")
        e(f"s_add_u32 s{S_T}, s{S_T}, s{S_T + 1}")
        e(f"s_mul_i32 s{S_AFB}, s{S_T}, {144 * 8192}")
        e(f"s_and_b32 s{S_T + 1}, s{S_WAVE}, 1")
        e(f"s_lshl_b32 s{S_T + 1}, s{S_T + 1}, 12")
        e(f"s_add_u32 s{S_AFB}, s{S_AFB}, s{S_T + 1}")
        e(f"s_mul_i32 s{S_PT}, s{S_P}, {7 * 8192}")
        e(f"s_add_u32 s{S_PT}, s{S_PT}, s{S_AFB}")
        if typ:
            e(f"s_add_u32 s{S_PT}, s{S_PT}, {2 * 8192}")
        e(f"s_add_u32 s{S_PTE}, s{S_PT}, {(4 if typ else 2) * 8192}")
        e(f"v_and_b32 v{V_T + 25}, 31, v{V_LANE}")
        e(f"v_lshlrev_b32 v{V_T + 25}, 7, v{V_T + 25}")
        if typ:
            e(f"v_lshrrev_b32 v{V_T + 29}, 5, v{V_LANE}")
            e(f"v_lshlrev_b32 v{V_T + 29}, 13, v{V_T + 29}")
            e(f"v_add_u32 v{V_T + 29}, v{V_T + 29}, v{V_T + 25}")
            e(f"s_mul_i32 s{S_T}, s{S_P}, {2 * 8192}")
            e(f"s_add_u32 s{S_T}, s{S_T}, {112 * 8192}")
            e(f"s_add_u32 s{S_T}, s{S_T}, s{S_AFB}")
            a.vmem(f"buffer_load_dword v{V_T + 28}, v{V_T + 29}, s[{S_WS}:{S_WS + 3}], s{S_T} offen", "pf")

    def pt_items():
        return [lambda: a.vmem(f"buffer_load_dword v{V_T + 28}, v{V_T + 25}, s[{S_WS}:{S_WS + 3}], s{S_PT} offen", "pf"),
                lambda: e(f"s_add_u32 s{S_PT}, s{S_PT}, 8192"),
                lambda: e(f"s_min_u32 s{S_PT}, s{S_PT}, s{S_PTE}")]

    def pf_items(cond=None):
        if cond is None:
            return [lambda: a.vmem(f"buffer_load_dword v{V_T + 28}, v{V_T + 26}, s[{S_PF1}:{S_PF1 + 3}], s{S_PO1} offen", "pf"),
                    lambda: a.vmem(f"buffer_load_dword v{V_T + 28}, v{V_T + 27}, s[{S_PF2}:{S_PF2 + 3}], s{S_PO2} offen", "pf"),
                    lambda: e(f"s_add_u32 s{S_PO1}, s{S_PO1}, {128 * PL1}"),
                    lambda: e(f"s_add_u32 s{S_PO2}, s{S_PO2}, {128 * PL2}")]

        def blk():
            e(f"s_lshl_b32 s{S_T}, 1, s{S_CNT}")
            e(f"s_and_b32 s{S_T}, s{S_T}, {cond}")
            e(f"s_cbranch_scc0 L_k1{T}_nopf")
            e(f"buffer_load_dword v{V_T + 28}, v{V_T + 26}, s[{S_PF1}:{S_PF1 + 3}], s{S_PO1} offen")
            e(f"buffer_load_dword v{V_T + 28}, v{V_T + 27}, s[{S_PF2}:{S_PF2 + 3}], s{S_PO2} offen")
            e(f"s_add_u32 s{S_PO1}, s{S_PO1}, {128 * PL1}")
            e(f"s_add_u32 s{S_PO2}, s{S_PO2}, {128 * PL2}")
            a.label(f"L_k1{T}_nopf")
        return [blk]

    def g_items():
        d0, d1 = V_T + 24, V_T + 25
        L = []
        L.append(f"v_dot2_f32_bf16 v{d0}, v{gx0}, v{gw}, 0")
        L.append(f"v_dot2_f32_bf16 v{d1}, v{gx1}, v{gw}, 0")
        for j in range(1, 8):
            L.append(f"v_dot2_f32_bf16 v{d0}, v{gx0 + j}, v{gw + j}, v{d0}")
            L.append(f"v_dot2_f32_bf16 v{d1}, v{gx1 + j}, v{gw + j}, v{d1}")
        L.append("s_nop 3")
        for sh_ in (1, 2, 4, 8):
            L.append(f"s_nop 0\nv_add_f32_dpp v{d0}, v{d0}, v{d0} row_shr:{sh_} row_mask:0xf bank_mask:0xf bound_ctrl:0")
            L.append(f"s_nop 0\nv_add_f32_dpp v{d1}, v{d1}, v{d1} row_shr:{sh_} row_mask:0xf bank_mask:0xf bound_ctrl:0")
        L.append(f"s_nop 0\nv_add_f32_dpp v{d0}, v{d0}, v{d0} row_bcast:15 row_mask:0xa bank_mask:0xf")
        L.append(f"s_nop 0\nv_add_f32_dpp v{d1}, v{d1}, v{d1} row_bcast:15 row_mask:0xa bank_mask:0xf")
        L.append(f"s_nop 0\nv_add_f32_dpp v{d0}, v{d0}, v{d0} row_bcast:31 row_mask:0xc bank_mask:0xf")
        L.append(f"s_nop 0\nv_add_f32_dpp v{d1}, v{d1}, v{d1} row_bcast:31 row_mask:0xc bank_mask:0xf")
        L.append(f"v_mul_f32 v{d0}, 0xbfb8aa3b, v{d0}")
        L.append(f"v_mul_f32 v{d1}, 0xbfb8aa3b, v{d1}")
        L.append(f"v_exp_f32 v{d0}, v{d0}")
        L.append(f"v_exp_f32 v{d1}, v{d1}\ns_nop 0")
        L.append(f"v_add_f32 v{d0}, 1.0, v{d0}")
        L.append(f"v_add_f32 v{d1}, 1.0, v{d1}")
        L.append(f"v_rcp_f32 v{d0}, v{d0}")
        L.append(f"v_rcp_f32 v{d1}, v{d1}")
        L.append(f"v_mov_b32 v{gw}, 0")
        L.append(f"s_lshl_b32 s{S_T + 1}, s{S_GROW}, 2\ns_add_u32 s{S_T + 1}, s{S_T + 1}, {G_OFF}")
        L.append(f"s_lshl_b32 s{S_T + 3}, s2, 8\ns_add_u32 s{S_T + 3}, s{S_T + 3}, {FLG_OFF}")
        L.append(f"s_mov_b32 s{S_T + 8}, 0\ns_mov_b32 s{S_T + 9}, 0x80000000")
        F = [(lambda x=x: e(x)) for x in L]

        def st():
            e(f"s_mov_b64 exec, s[{S_T + 8}:{S_T + 9}]")
            a.vmem(f"buffer_store_dwordx2 v[{d0}:{d1}], v{gw}, s[{S_WS}:{S_WS + 3}], s{S_T + 1} offen sc1", "sq")
            e("s_mov_b64 exec, -1")
        F.append(st)
        return F

    if OPT.get('m2', 9) == 9:
        misc_setup2()
    a.wait(["bias"])
    for j in range(nh):
        src = acc(nq + j, 3)
        d = acc(nq + j, 0)
        e(f"v_lshlrev_b32 v{d}, 16, v{src}")
        e(f"v_and_b32 v{d + 1}, 0xffff0000, v{src}")
        e(f"v_lshlrev_b32 v{d + 2}, 16, v{src + 1}")
        e(f"v_and_b32 v{d + 3}, 0xffff0000, v{src + 1}")
    for t in range(4):
        for r in range(4):
            e(f"v_mov_b32 v{acc(t, 0) + r}, {EPS_HEX}")

    def rdB(tt):
        slot = tt % 4
        s = tt % 2
        f = []
        for t in range(13):
            for ins in range(2):
                if t < nq:
                    addr = V_QRD + (t & 3)
                    off = slot * K1_BSLOT + ins * K1_AREA + 1024 * (t >> 2)
                else:
                    addr = V_HRD
                    off = slot * K1_BSLOT + ins * K1_AREA + 32 * (t - nq)
                d = bset(s, t) + 2 * ins
                f.append(lambda d=d, addr=addr, off=off: e(f"ds_read_b64_tr_b16 {ar(d, 2)}, v{addr} offset:{off}"))
        return f

    def aset_of(tt):
        if tt % 2 == 0:
            return ASET["X"]
        return ASET["Y"] if tt % 4 == 1 else ASET["Z"]

    def rdA(aa):
        slot = aa % 2
        f = []
        for hh in range(2):
            base = aset_of(2 * aa + hh)
            for mt in range(4):
                f.append(lambda hh=hh, mt=mt, base=base: e(
                    f"ds_read_b128 {ar(base + 4 * mt)}, v{V_ARD + hh} offset:{slot * 8192 + mt * 2048}"))
        return f

    stamp(a, 1)
    a.wait(["B0", "A0"])
    e("s_barrier")
    stamp(a, 2)
    for fn in rdA(0) + rdB(0):
        fn()
    if OPT.get('ramp') == 1:
        run_seq(dmaA(1))
    if OPT.get('ramp') in (1, 2):
        run_seq(dmaB(2))
    a.wait(["B1"], lgkm=True)
    e("s_barrier")

    misc_items = capture(a, misc_setup)
    misc_items2 = capture(a, misc_setup2) if OPT.get('m2', 9) != 9 else []

    NSTEP = 32

    def step(tt):
        if DIAG and OPT.get('ts'):
            e("s_memrealtime s[76:77]")
            e("s_waitcnt lgkmcnt(0)")
            e("s_mov_b32 m0, s78")
            e("s_nop 0")
            e(f"v_writelane_b32 v{V_T + 29}, s76, m0")
            e("s_add_u32 s78, s78, 1")
        s = tt % 2
        ab = aset_of(tt)
        mf = []
        for t in range(13):
            order = [1, 2, 3, 0] if tt == 0 else [0, 1, 2, 3]
            for mt in order:
                D = vr(acc(t, mt))
                if tt == 0:
                    C = "0" if (typ == 0 and 4 <= t < 8) else vr(acc(t, 0))
                else:
                    C = D
                W = ar(bset(s, t))
                X = ar(ab + 4 * mt)
                if typ == 0 and t < 8:
                    mf.append(f"v_mfma_f32_16x16x32_bf16 {D}, {X}, {W}, {C}")
                else:
                    mf.append(f"v_mfma_f32_16x16x32_bf16 {D}, {W}, {X}, {C}")
        if OPT.get('fakechain') and tt > 0:
            import re
            m2 = []
            for i in range(0, 52, 2):
                x0, x1 = mf[i], mf[i + 1]
                pick = x0 if tt % 2 == 0 else x1
                D = re.match(r"v_mfma\S+ (v\[\d+:\d+\])", pick).group(1)
                for x in (x0, x1):
                    D0 = re.match(r"v_mfma\S+ (v\[\d+:\d+\])", x).group(1)
                    m2.append(x.replace(D0, D))
            mf = m2
        rd = []
        if tt + 1 < NSTEP:
            rd = rdB(tt + 1)
            if tt % 2 == 1:
                rd = rdA((tt + 1) // 2) + rd
        dm = []
        if tt == 0 and OPT.get('ramp'):
            dm += dmaB(3)
        if OPT.get('afirst', 1) and tt % 2 == 0 and tt // 2 + 2 < NSTEP // 2:
            dm += dmaA(tt // 2 + 2)
        if tt + 4 < NSTEP:
            dm += dmaB(tt + 4)
        if not OPT.get('afirst', 1) and tt % 2 == 0 and tt // 2 + 2 < NSTEP // 2:
            dm += dmaA(tt // 2 + 2)
        if OPT['pf'] == 1 and tt % 4 == 1 and tt < 28:
            dm += pf_items()
        if OPT.get('cpf') == 3 and tt == 28:
            dm.append(lambda: a.vmem(f"global_load_dword v{V_T + 28}, v{V_T + 29}, s[{S_CB}:{S_CB + 1}]", "pf"))
        if OPT['pf'] in (2, 3, 4) and tt == 28:
            dm += pf_items()
        if OPT['pf'] in (3, 4) and tt % 4 == 1 and 4 <= tt < 28:
            dm += pf_items({3: 1 << 4, 4: (1 << 5) | (1 << 3)}[OPT['pf']])
        if OPT.get('pt') and tt % 4 == 3 and tt < 28:
            dm += pt_items()
        if tt == OPT.get('m2', 9):
            dm += misc_items2
        if tt == 3:
            dm += misc_items
        fl = []
        i1 = i2 = 0
        n1, n2 = len(rd), len(dm)
        while i1 < n1 or i2 < n2:
            if i2 < n2 and (i1 >= n1 or i2 * n1 <= i1 * n2):
                fl.append(dm[i2]); i2 += 1
            else:
                fl.append(rd[i1]); i1 += 1
        if OPT.get('p2m'):
            if tt == NSTEP - 2:
                gi = g_items()
                fl2 = []
                for k_ in range(max(len(fl), len(gi))):
                    fl2 += fl[k_:k_ + 1] + gi[k_:k_ + 1]
                fl = fl2
            if tt == NSTEP - 1:
                fl = capture(a, lambda: p2_math(a), chunk=2)
        elif tt == NSTEP - 1:
            assert "g" not in a.vm
            fl = g_items()
        nb_ = OPT.get('bt', 0)
        fe_ = OPT.get('fe', 48)
        if OPT.get('rdf') and rd and dm:
            schedule(a, mf[:52 - nb_], [(rd, 0, OPT['rdf']), (dm, OPT.get('dm0', 1), fe_)])
        else:
            interleave(a, mf[:52 - nb_], fl, 0, fe_)
        if tt + 1 < NSTEP:
            tags = []
            if tt + 2 < NSTEP:
                tags.append(f"B{tt + 2}")
            if tt % 2 == 0:
                tags.append(f"A{tt // 2 + 1}")
            a.wait(tags, lgkm=True)
            if tt + 2 < NSTEP:
                e("s_barrier")
        for x in mf[52 - nb_:]:
            e(x)

    iters = []
    for it in range(8):
        n0 = len(a.lines)
        for tt in range(4 * it, 4 * it + 4):
            step(tt)
        iters.append(a.lines[n0:])
        del a.lines[n0:]
    for it in range(2, 7):
        assert iters[it] == iters[1], f"iteration {it} differs"
    stamp(a, 3)
    if DIAG and OPT.get('ts'):
        e("s_mov_b32 s78, 0")
    a.lines += iters[0]
    if not OPT.get('ts') and not OPT.get('kst'):
        stamp(a, 4)
    e(f"s_mov_b32 s{S_CNT}, 6")
    a.label(f"L_k1{T}_loop")
    a.lines += iters[1]
    e(f"s_sub_u32 s{S_CNT}, s{S_CNT}, 1")
    e(f"s_cmp_lg_u32 s{S_CNT}, 0")
    e(f"s_cbranch_scc1 L_k1{T}_loop")
    a.lines += iters[7]
    assert all(not t.startswith(("A", "B")) for t in a.vm), a.vm

    stamp(a, 5)

    def fin():
        stamp(a, 6)
        stamp(a, 7)
        k = a.vm_count(["#eA"], drop=False)
        if DIAG:
            k += 16
        stamp_dump(a, 0, 8, S_WAVE, S_PTR + 20, S_PTR + 21, V_T)
        e(f"s_cmp_eq_u32 s{P_SEARLY}, 0")
        e("s_cbranch_scc1 L_p2_late")
        e(f"s_waitcnt vmcnt({k})")
        e("s_branch L_p2_go")

    pb_state = [0]

    def pb(n=1):
        for _ in range(n):
            k = pb_state[0]
            if k >= OPT.get('pb', 0):
                return
            for i in range(4):
                a.vmem(f"buffer_load_dwordx4 {ar(128 + 16 * k + 4 * i)}, v{P_VBD + i}, s[{P_SW2}:{P_SW2 + 3}], s{P_SOB} offen offset:{1024 * i}", "pb")
            e(f"s_add_u32 s{P_SOB}, s{P_SOB}, s{P_SSB}")
            pb_state[0] += 1

    def fe_load():
        a.vmem(f"buffer_load_dwordx2 v[{P_VFL}:{P_VFL + 1}], v{P_VFA}, s[{S_WS}:{S_WS + 3}], 0 offen sc1", "fe")

    def fe_check():
        a.wait(["fe"])
        e(f"v_cmp_eq_u64 vcc, v[{P_VFL}:{P_VFL + 1}], v[{V_TOK}:{V_TOK + 1}]")
        e(f"s_mov_b32 s{P_SEARLY}, 0")
        e("s_nop 0")
        e("s_cmp_eq_u64 vcc, -1")
        e(f"s_cbranch_scc0 L_k1{T}_noearly")
        p2_issueA(a)
        e(f"s_mov_b32 s{P_SEARLY}, 1")
        a.label(f"L_k1{T}_noearly")
        a.mark("eA")

    def setflag(lane):
        a.label(f"L_k1{T}_tw")
        e(f"v_readfirstlane_b32 s{S_T}, v{V_TOK + 1}")
        e(f"v_readfirstlane_b32 s{S_T + 1}, v{V_TOK}")
        e("s_nop 3")
        e(f"s_min_u32 s{S_T}, s{S_T}, s{S_T + 1}")
        e(f"s_cmp_lg_u32 s{S_T}, 0")
        e(f"s_cbranch_scc1 L_k1{T}_tok")
        e("s_add_u32 s3, s3, 1")
        e("s_cmp_gt_u32 s3, 0x40000")
        e(f"s_cbranch_scc1 L_k1{T}_tok")
        e("s_sleep 4")
        e(f"buffer_load_dwordx2 v[{V_TOK}:{V_TOK + 1}], v12, s[{S_T + 4}:{S_T + 7}], 0 offen sc1")
        e("s_waitcnt vmcnt(0)")
        e(f"s_branch L_k1{T}_tw")
        a.label(f"L_k1{T}_tok")
        e(f"s_mov_b64 exec, {1 << lane}")
        a.vmem(f"buffer_store_dwordx2 v[{V_TOK}:{V_TOK + 1}], v0, s[{S_WS}:{S_WS + 3}], 0 offen sc1", "fl")
        e("s_mov_b64 exec, -1")
    e("s_barrier")
    e("s_mov_b32 s3, 0")
    e(f"s_mov_b32 s{S_L2E}, {L2E_HEX}")
    e(f"s_mov_b32 s{S_L2E + 1}, {L2E_HEX}")
    e(f"s_lshl_b32 s{S_T}, s{S_RB}, 1")
    e(f"s_lshr_b32 s{S_T + 1}, s{S_WAVE}, 1")
    e(f"s_add_u32 s{S_T}, s{S_T}, s{S_T + 1}")
    e(f"s_mul_i32 s{S_AFB}, s{S_T}, {144 * 8192}")
    e(f"s_and_b32 s{S_T + 1}, s{S_WAVE}, 1")
    e(f"s_lshl_b32 s{S_T + 1}, s{S_T + 1}, 12")
    e(f"s_add_u32 s{S_AFB}, s{S_AFB}, s{S_T + 1}")
    e("s_nop 7")
    TT, UU = V_T, V_T + 8

    def phi_group(ra, rb_):
        prs = [ra, ra + 2, rb_, rb_ + 2]
        for j, p in enumerate(prs):
            e(f"v_pk_mul_f32 {vr(TT + 2 * j, 2)}, {vr(p, 2)}, s[{S_L2E}:{S_L2E + 1}]")
        for j in range(8):
            e(f"v_exp_f32_e64 v{TT + j}, v{TT + j} clamp")
        for p in prs:
            e(f"v_max_f32 v{p}, {EPS_HEX}, v{p}")
            e(f"v_max_f32 v{p + 1}, {EPS_HEX}, v{p + 1}")
        for j, p in enumerate(prs):
            e(f"v_pk_add_f32 {vr(p, 2)}, {vr(p, 2)}, {vr(TT + 2 * j, 2)}")
        for j, p in enumerate(prs):
            e(f"v_cvt_pk_bf16_f32 v{ra + j}, v{p}, v{p + 1}")

    def cvt_group(ra, rb_):
        prs = [ra, ra + 2, rb_, rb_ + 2]
        for j, p in enumerate(prs):
            e(f"v_cvt_pk_bf16_f32 v{ra + j}, v{p}, v{p + 1}")

    def mish_group(ra, rb_, split=False, dst=None):
        prs = [ra, ra + 2, rb_, rb_ + 2]
        for j, p in enumerate(prs):
            e(f"v_pk_mul_f32 {vr(TT + 2 * j, 2)}, {vr(p, 2)}, s[{S_L2E}:{S_L2E + 1}]")
        for j in range(8):
            e(f"v_exp_f32 v{TT + j}, v{TT + j}")
        for j in range(4):
            e(f"v_pk_fma_f32 {vr(UU + 2 * j, 2)}, {vr(TT + 2 * j, 2)}, 0.5, 1.0 op_sel_hi:[1,0,0]")
        for j in range(4):
            e(f"v_pk_fma_f32 {vr(UU + 2 * j, 2)}, {vr(TT + 2 * j, 2)}, {vr(UU + 2 * j, 2)}, 1.0 op_sel_hi:[1,1,0]")
        for j in range(8):
            e(f"v_rcp_f32 v{UU + j}, v{UU + j}")
        for j, p in enumerate(prs):
            e(f"v_pk_fma_f32 {vr(p, 2)}, {vr(UU + 2 * j, 2)}, {vr(p, 2)}, {vr(p, 2)} neg_lo:[1,0,0] neg_hi:[1,0,0]")
        if split:
            e(f"v_cvt_pk_bf16_f32 v{ra}, v{ra}, v{ra + 1}")
            e(f"v_cvt_pk_bf16_f32 v{ra + 1}, v{ra + 2}, v{ra + 3}")
            e(f"v_cvt_pk_bf16_f32 v{rb_}, v{rb_}, v{rb_ + 1}")
            e(f"v_cvt_pk_bf16_f32 v{rb_ + 1}, v{rb_ + 2}, v{rb_ + 3}")
        else:
            dd = ra if dst is None else dst
            for j, p in enumerate(prs):
                e(f"v_cvt_pk_bf16_f32 v{dd + j}, v{p}, v{p + 1}")

    WS = f"s[{S_WS}:{S_WS + 3}]"

    def set_kb(sreg, mul, add):
        e(f"s_mul_i32 s{sreg}, s{S_P}, {mul * 8192}")
        e(f"s_add_u32 s{sreg}, s{sreg}, {add * 8192}")
        e(f"s_add_u32 s{sreg}, s{sreg}, s{S_AFB}")

    def h_late(tA, kbl, sreg, mid=None):
        set_kb(sreg, 7, kbl)
        for mt in range(4):
            mish_group(acc(tA, mt), acc(tA + 1, mt))
            if mt == 1 and mid:
                mid()

    def h_half_late(tA, half):
        set_kb(P_SL + 2, 7, 2)
        if half:
            e(f"s_add_u32 s{P_SL + 2}, s{P_SL + 2}, 512")
        for mp in range(2):
            mish_group(acc(tA, 2 * mp), acc(tA, 2 * mp + 1), dst=240 + 4 * mp)
        e("s_nop 1")
        for mp in range(2):
            e(f"v_permlane16_swap_b32 v{240 + 4 * mp}, v{242 + 4 * mp}")
            e(f"v_permlane16_swap_b32 v{241 + 4 * mp}, v{243 + 4 * mp}")

    def h_full(tA, kbl, tag='st'):
        set_kb(S_T + 2, 7, kbl)
        for mt in range(4):
            mish_group(acc(tA, mt), acc(tA + 1, mt))
            a.vmem(f"buffer_store_dwordx4 {vr(acc(tA, mt))}, v{V_L16}, {WS}, s{S_T + 2} offen offset:{1024 * mt} {OPT['st']}", tag)

    def h_half(tA, kbl, half):
        set_kb(S_T + 2, 7, kbl)
        for mp in range(2):
            mish_group(acc(tA, 2 * mp), acc(tA, 2 * mp + 1), split=True)
            for mt in (2 * mp, 2 * mp + 1):
                a.vmem(f"buffer_store_dwordx2 {vr(acc(tA, mt), 2)}, v{V_L16}, {WS}, s{S_T + 2} offen offset:{1024 * mt + 8 * half} {OPT['st']}", "st")

    if typ == 1:
        h_full(5, 3, "se")
        h_full(7, 4, "se")
        p2_early(a)
        for hd in range(2):
            set_kb(S_T + 2, 2, 112 + hd)
            for mt in range(4):
                phi_group(acc(2 * hd, mt), acc(2 * hd + 1, mt))
                a.vmem(f"buffer_store_dwordx4 {vr(acc(2 * hd, mt))}, v{V_L16}, {WS}, s{S_T + 2} offen offset:{1024 * mt} {OPT['st']}", "sq")
                if 4 * hd + mt == OPT.get('fepos', 4):
                    a.wait(["se", "zc"])
                    setflag(0)
                if 4 * hd + mt >= OPT.get('fepos', 4):
                    pb()
        pb(8)
        h_late(9, 5, P_SL, mid=fe_load)
        h_late(11, 6, P_SL + 1, mid=fe_check)
        h_half_late(4, 1)
        fin()
        return

    h_full(8, 0, "se")
    h_full(10, 1, "se")
    p2_early(a)
    ONES = V_T + 16
    for r in range(4):
        e(f"v_mov_b32 v{ONES + r}, 0x3f803f80")
    for t in range(4):
        for pr in range(2):
            phi_group(acc(t, 2 * pr), acc(t, 2 * pr + 1))
            if 2 * t + pr == OPT.get('fepos', 4):
                a.wait(["se", "zc"])
                setflag(0)
            if 2 * t + pr >= OPT.get('fepos', 4):
                pb()
    pb(8)
    for t in range(4, 8):
        for pr in range(2):
            cvt_group(acc(t, 2 * pr), acc(t, 2 * pr + 1))
    e("s_nop 1")
    free = [acc(t, m) for t in range(8) for m in (1, 3)]

    def Dt(tau):
        return free[tau]
    for pr in range(2):
        for hd in range(2):
            for dt in range(2):
                for et in range(3):
                    tau = hd * 6 + dt * 3 + et
                    Aop = vr(acc(2 * hd + dt, 2 * pr))
                    Bop = vr(acc(4 + 2 * hd + et, 2 * pr)) if et < 2 else vr(ONES)
                    C = "0" if pr == 0 else vr(Dt(tau))
                    e(f"v_mfma_f32_16x16x32_bf16 {vr(Dt(tau))}, {Aop}, {Bop}, {C}")
    vw, vrd = V_T + 20, V_T + 21
    e(f"s_mul_i32 s{S_T}, s{S_WAVE}, 12288")
    e(f"s_add_u32 s{S_T}, s{S_T}, 98304")
    e(f"v_add_u32 v{vw}, s{S_T}, v{V_L16}")
    e(f"s_mul_i32 s{S_T}, s{S_WAVE}, 3072")
    e(f"s_add_u32 s{S_T}, s{S_T}, 98304")
    e(f"v_add_u32 v{vrd}, s{S_T}, v{V_L16}")
    fe_load()
    e("s_nop 7")
    for tau in range(12):
        e(f"ds_write_b128 v{vw}, {vr(Dt(tau))} offset:{1024 * tau}")
    e(f"s_lshl_b32 s{S_T}, s{S_P}, 3")
    e(f"s_add_u32 s{S_T}, s{S_T}, s{S_RB}")
    e(f"s_mul_i32 s{S_T}, s{S_T}, 12288")
    e(f"s_mul_i32 s{S_T + 1}, s{S_WAVE}, 3072")
    e(f"s_add_u32 s{S_T}, s{S_T}, s{S_T + 1}")
    e(f"s_add_u32 s{S_T + 10}, s{S_T}, {KVP_OFF}")
    h_half_late(12, 0)
    e(f"s_mov_b32 s{P_SL}, 0x7ff00000")
    e(f"s_mov_b32 s{P_SL + 1}, 0x7ff00000")
    e("s_waitcnt lgkmcnt(0)")
    e("s_barrier")
    R = [acc(t, m) for t in range(8) for m in (0, 2)]
    for w2 in range(4):
        for j in range(3):
            e(f"ds_read_b128 {vr(R[3 * w2 + j])}, v{vrd} offset:{12288 * w2 + 1024 * j}")
    fe_check()
    e("s_waitcnt lgkmcnt(0)")
    for j in range(3):
        for h2 in range(2):
            b0 = R[j] + 2 * h2
            e(f"v_pk_add_f32 {vr(b0, 2)}, {vr(b0, 2)}, {vr(R[3 + j] + 2 * h2, 2)}")
            e(f"v_pk_add_f32 {vr(R[6 + j] + 2 * h2, 2)}, {vr(R[6 + j] + 2 * h2, 2)}, {vr(R[9 + j] + 2 * h2, 2)}")
        for h2 in range(2):
            b0 = R[j] + 2 * h2
            e(f"v_pk_add_f32 {vr(b0, 2)}, {vr(b0, 2)}, {vr(R[6 + j] + 2 * h2, 2)}")
        a.vmem(f"buffer_store_dwordx4 {vr(R[j])}, v{V_L16}, {WS}, s{S_T + 10} offen offset:{1024 * j} sc1", "sq")
    fin()


def gen_k1():
    a = Asm()
    e = a.e
    a.lines.append(".globl KNAME\n.p2align 8\n.type KNAME,@function\nKNAME:")
    if OPT.get('spin'):
        stamp(a, 0)
    e("s_cmp_ge_u32 s2, 256")
    e("s_cbranch_scc1 L_k1_exit")
    e(f"s_load_dwordx16 s[{S_PTR}:{S_PTR + 15}], s[0:1], 0")
    if OPT.get('cpf') >= 2:
        e(f"s_getpc_b64 s[{S_CB}:{S_CB + 1}]")
        a.label("L_pc_0")
        e(f"s_sub_u32 s{S_CB}, s{S_CB}, L_pc_0-KNAME")
        e(f"s_subb_u32 s{S_CB + 1}, s{S_CB + 1}, 0")
        e(f"s_lshl_b32 s{S_T}, s2, 12")
        e(f"s_and_b32 s{S_T}, s{S_T}, 0x18000")
        e(f"v_lshlrev_b32 v{V_T + 29}, 7, v0")
        e(f"v_add_u32 v{V_T + 29}, s{S_T}, v{V_T + 29}")
        e(f"v_min_u32 v{V_T + 29}, L_code_end-KNAME-4, v{V_T + 29}")
        e(f"global_load_dword v{V_T + 28}, v{V_T + 29}, s[{S_CB}:{S_CB + 1}]")
    e(f"s_load_dwordx4 s[{S_PTR + 16}:{S_PTR + 19}], s[0:1], 64")
    e(f"s_load_dwordx2 s[{S_PTR + 20}:{S_PTR + 21}], s[0:1], 80")
    e(f"v_and_b32 v{V_LANE}, 63, v0")
    e(f"v_lshrrev_b32 v{V_T}, 6, v0")
    e(f"s_and_b32 s{S_T}, s2, 7")
    e(f"v_readfirstlane_b32 s{S_WAVE}, v{V_T}")
    e(f"s_lshr_b32 s{S_T + 1}, s2, 3")
    if OPT.get('map1', 0) == 0:
        e(f"s_and_b32 s{S_RB}, s{S_T}, 1")
        e(f"s_lshl_b32 s{S_RB}, s{S_RB}, 2")
        e(f"s_and_b32 s{S_T + 2}, s{S_T + 1}, 3")
        e(f"s_add_u32 s{S_RB}, s{S_RB}, s{S_T + 2}")
        e(f"s_lshr_b32 s{S_T}, s{S_T}, 1")
        e(f"s_lshl_b32 s{S_T}, s{S_T}, 3")
        e(f"s_lshr_b32 s{S_T + 1}, s{S_T + 1}, 2")
        e(f"s_add_u32 s{S_T}, s{S_T}, s{S_T + 1}")
    elif OPT['map1'] == 1:
        e(f"s_and_b32 s{S_RB}, s{S_T + 1}, 7")
        e(f"s_lshl_b32 s{S_T}, s{S_T}, 2")
        e(f"s_lshr_b32 s{S_T + 1}, s{S_T + 1}, 3")
        e(f"s_add_u32 s{S_T}, s{S_T}, s{S_T + 1}")
    else:
        e(f"s_and_b32 s{S_RB}, s{S_T}, 3")
        e(f"s_lshl_b32 s{S_RB}, s{S_RB}, 1")
        e(f"s_and_b32 s{S_T + 2}, s{S_T + 1}, 1")
        e(f"s_add_u32 s{S_RB}, s{S_RB}, s{S_T + 2}")
        e(f"s_lshr_b32 s{S_T}, s{S_T}, 2")
        e(f"s_lshl_b32 s{S_T}, s{S_T}, 4")
        e(f"s_lshr_b32 s{S_T + 1}, s{S_T + 1}, 1")
        e(f"s_add_u32 s{S_T}, s{S_T}, s{S_T + 1}")
    e(f"s_lshr_b32 s{S_P}, s{S_T}, 1")
    e(f"s_and_b32 s{S_T + 3}, s{S_T}, 1")
    e(f"s_cmp_lg_u32 s{S_T + 3}, 0")
    e("s_cbranch_scc1 L_k1_typeB")
    k1_body(a, 0)
    a.label("L_k1_typeB")
    a.vm = []
    k1_body(a, 1)
    a.vm = []
    phase2(a)
    a.label("L_k1_exit")
    e("s_endpgm")
    a.label("L_code_end")
    return a.lines


def K2_LDS():
    return OPT['S'] * 32768 + 24576


def fold_loops(a, iters, period, scnt, name):
    n = len(iters)
    i = 0
    lab = 0
    while i < n:
        reps = 1
        while i + (reps + 1) * period <= n and all(
                iters[i + k] == iters[i + reps * period + k] for k in range(period)):
            reps += 1
        if reps >= 2:
            a.e(f"s_mov_b32 s{scnt}, {reps}")
            a.label(f"L_{name}_{lab}")
            for k in range(period):
                a.lines += iters[i + k]
            a.e(f"s_sub_u32 s{scnt}, s{scnt}, 1")
            a.e(f"s_cmp_lg_u32 s{scnt}, 0")
            a.e(f"s_cbranch_scc1 L_{name}_{lab}")
            lab += 1
            i += reps * period
        else:
            a.lines += iters[i]
            i += 1


def schedule(a, mf, streams):
    n = len(mf)
    placed = []
    for si, (items, start, end) in enumerate(streams):
        m = len(items)
        prev = 0
        for j, it in enumerate(items):
            fn, early = it if isinstance(it, tuple) else (it, 0)
            pos = start + (j * (end - start)) / max(m, 1)
            pos = max(pos, early, prev)
            prev = pos
            placed.append((pos, si, j, fn))
    placed.sort(key=lambda x: (x[0], x[1], x[2]))
    k = 0
    if n == 0:
        for p in placed:
            p[3]()
        return
    for i in range(n):
        a.e(mf[i])
        while k < len(placed) and placed[k][0] < i + 1:
            placed[k][3]()
            k += 1
    while k < len(placed):
        placed[k][3]()
        k += 1


P_SW2, P_SWO, P_SWS, P_SOUT = 96, 20, 16, 4
P_SMT, P_SNT, P_SROLE, P_STILE = 8, 9, 10, 11
P_SOA, P_SOB, P_SOP, P_SM0A, P_SM0B = 12, 13, 14, 15, 27
P_SHD, P_SM2, P_SEARLY = 28, 29, 30
P_VBD = 2
P_SLOT = 32768


def tile_decode(a, smt, snt, srole, stile, st):
    e = a.e
    e(f"s_and_b32 s{st}, s2, 7")
    e(f"s_lshr_b32 s{st + 1}, s2, 3")
    e(f"s_and_b32 s{srole}, s{st}, 1")
    if OPT.get('rsw'):
        e(f"s_xor_b32 s{srole}, s{srole}, 1")
    e(f"s_lshr_b32 s{st}, s{st}, 1")
    if OPT['map'] == 0:
        e(f"s_and_b32 s{smt}, s{st}, 1")
        e(f"s_lshl_b32 s{smt}, s{smt}, 3")
        e(f"s_and_b32 s{stile}, s{st + 1}, 7")
        e(f"s_add_u32 s{smt}, s{smt}, s{stile}")
        e(f"s_lshr_b32 s{snt}, s{st}, 1")
        e(f"s_lshl_b32 s{snt}, s{snt}, 2")
        e(f"s_lshr_b32 s{st + 1}, s{st + 1}, 3")
        e(f"s_add_u32 s{snt}, s{snt}, s{st + 1}")
    else:
        e(f"s_lshl_b32 s{smt}, s{st}, 2")
        e(f"s_and_b32 s{stile}, s{st + 1}, 3")
        e(f"s_add_u32 s{smt}, s{smt}, s{stile}")
        e(f"s_lshr_b32 s{snt}, s{st + 1}, 2")
    e(f"s_lshl_b32 s{stile}, s{smt}, 3")
    e(f"s_add_u32 s{stile}, s{stile}, s{snt}")


P_VAD, P_VFA, P_VFL = 8, 9, 10
P_SSA, P_SSB = 31, 32
P_SL = 4


def p2_setrun(a, first_expr, stride):
    e = a.e
    c0, c1 = first_expr
    e(f"s_lshr_b32 s{S_T + 11}, s{S_WAVE}, 1")
    e(f"s_mul_i32 s{S_T + 11}, s{S_T + 11}, {c1}")
    e(f"s_add_u32 s{S_T + 11}, s{S_T + 11}, {c0}")
    return S_T + 11


def p2_math(a):
    e = a.e
    S = OPT['S']
    ST = S_T
    tile_decode(a, P_SMT, P_SNT, P_SROLE, P_STILE, ST)
    vi, vG, t0, t1, t2 = 6, 7, 8, 9, 10
    e(f"v_and_b32 v{vi}, 15, v{V_LANE}")
    e(f"v_lshrrev_b32 v{vG}, 4, v{V_LANE}")
    e(f"s_lshl_b32 s{P_SM0A}, s{S_WAVE}, 12")
    e(f"s_add_u32 s{P_SM0B}, s{P_SM0A}, 16384")
    e(f"s_lshl_b32 s{ST}, s{P_SNT}, 8")
    e(f"s_and_b32 s{ST + 3}, s{S_WAVE}, 1")
    e(f"s_lshl_b32 s{ST + 1}, s{ST + 3}, 15")
    e(f"s_add_u32 s{ST}, s{ST}, s{ST + 1}")
    e(f"v_lshlrev_b32 v{t0}, 11, v{vG}")
    e(f"v_add_u32 v{t0}, s{ST}, v{t0}")
    e(f"v_lshlrev_b32 v{t1}, 1, v{vG}")
    e(f"v_xor_b32 v{t1}, v{t1}, v{vi}")
    for j in range(4):
        if j & 1:
            e(f"v_xor_b32 v{t2}, 8, v{t1}")
            e(f"v_lshlrev_b32 v{t2}, 4, v{t2}")
        else:
            e(f"v_lshlrev_b32 v{t2}, 4, v{t1}")
        e(f"v_add_u32 v{t2}, v{t2}, v{t0}")
        e(f"v_add_u32 v{P_VBD + j}, {j * (8192 - 1024)}, v{t2}")
    e(f"s_mul_i32 s{ST}, s{P_SROLE}, 3")
    e(f"s_lshr_b32 s{ST + 1}, s{S_WAVE}, 1")
    e(f"s_add_u32 s{ST}, s{ST}, s{ST + 1}")
    e(f"s_lshl_b32 s{P_SOB}, s{ST}, 16")
    e(f"s_mul_i32 s{P_SOA}, s{P_SMT}, 144")
    e(f"s_add_u32 s{P_SOA}, s{P_SOA}, s{ST}")
    e(f"s_lshl_b32 s{P_SOA}, s{P_SOA}, 13")
    e(f"s_mov_b32 s{P_SSA}, {7 * 8192}")
    e(f"s_mov_b32 s{P_SSB}, {7 * 65536}")
    e(f"s_lshl_b32 s{ST + 3}, s{ST + 3}, 12")
    e(f"v_add_u32 v{P_VAD}, s{ST + 3}, v{V_L16}")
    e(f"s_lshl_b32 s{ST}, s{P_SMT}, 1")
    e(f"s_add_u32 s{ST}, s{ST}, s{P_SROLE}")
    e(f"s_lshl_b32 s{ST}, s{ST}, 8")
    e(f"s_add_u32 s{ST}, s{ST}, {FE_OFF}")
    e(f"v_and_b32 v{P_VFA}, 31, v{V_LANE}")
    e(f"v_lshlrev_b32 v{P_VFA}, 3, v{P_VFA}")
    e(f"v_add_u32 v{P_VFA}, s{ST}, v{P_VFA}")


def p2_early(a):
    e = a.e
    S = OPT['S']
    ST = S_T
    if not OPT.get('p2m'):
        p2_math(a)
    srd(a, ST + 4, S_PTR + 18, S_PTR + 19, 256)
    e(f"v_mov_b32 v12, 0")
    a.vmem(f"buffer_load_dwordx2 v[{V_TOK}:{V_TOK + 1}], v12, s[{ST + 4}:{ST + 7}], 0 offen sc1", "zc")
    for j in range(S - 1):
        e(f"s_add_u32 m0, s{P_SM0B}, {j * P_SLOT}")
        e("s_nop 0")
        for i in range(4):
            a.vmem(f"buffer_load_dwordx4 v{P_VBD + i}, s[{P_SW2}:{P_SW2 + 3}], s{P_SOB} offen offset:{1024 * i} lds", "eB")
        e(f"s_add_u32 s{P_SOB}, s{P_SOB}, s{P_SSB}")


def p2_issueA(a):
    e = a.e
    for j in range(OPT['S'] - 1):
        e(f"s_add_u32 m0, s{P_SM0A}, {j * P_SLOT}")
        e("s_nop 0")
        for i in range(4):
            e(f"buffer_load_dwordx4 v{P_VAD}, s[{P_SWS}:{P_SWS + 3}], s{P_SOA} offen offset:{1024 * i} {OPT['k2a']} lds")
        e(f"s_add_u32 s{P_SOA}, s{P_SOA}, s{P_SSA}")


def phase2(a):
    e = a.e
    S = OPT['S']
    n0 = OPT['n0']
    SLOT = P_SLOT
    SCR = S * SLOT
    SWAVE = S_WAVE
    ST = S_T
    SCNT = S_CNT
    SMT, SNT, SROLE, STILE = P_SMT, P_SNT, P_SROLE, P_STILE
    SOA, SOB, SOP, SM0A, SM0B = P_SOA, P_SOB, P_SOP, P_SM0A, P_SM0B
    SW2, SWO, SOUT = P_SW2, P_SWO, P_SOUT
    WS = f"s[{P_SWS}:{P_SWS + 3}]"
    NBASE = (S + 1) // 2
    VL, VL16, VBD = V_LANE, V_L16, P_VBD
    vi, vG = 6, 7
    VZ = 11
    VAD = 8
    VFL = 10
    VFA = 9
    VAR = 12
    VBR = 18
    VT = 30
    VG = 38
    VOMG = 42
    VEPS = 46
    VEPS = 48
    CG = 52
    CR = 60
    CKV = 68
    CW = 80
    VX = 192
    VY = 84
    AC = 128
    t0, t1, t2, t3 = VT, VT + 1, VT + 2, VT + 3

    def acc2(mt, nt):
        return AC + 16 * mt + 4 * nt

    def FA(j, b, mt):
        return 64 * (j % 2) + 32 * b + 4 * mt

    def FB(j, b, nt):
        return 64 * (j % 2) + 32 * b + 16 + 4 * nt

    def setflag(*lanes):
        e(f"s_mov_b64 exec, {sum(1 << l for l in lanes)}")
        a.vmem(f"buffer_store_dwordx2 v[{V_TOK}:{V_TOK + 1}], v0, {WS}, 0 offen sc1", "fl")
        e("s_mov_b64 exec, -1")

    VQ = 120
    VH = 16

    def fq_load():
        a.vmem(f"buffer_load_dwordx2 v[{VQ}:{VQ + 1}], v{VQ + 2}, {WS}, 0 offen sc1", "fq")

    a.label("L_p2_late")
    e(f"buffer_load_dwordx2 v[{VFL}:{VFL + 1}], v{VFA}, {WS}, 0 offen sc1")
    e("s_waitcnt vmcnt(0)")
    e(f"v_cmp_eq_u64 vcc, v[{VFL}:{VFL + 1}], v[{V_TOK}:{V_TOK + 1}]")
    e("s_nop 1")
    e("s_cmp_eq_u64 vcc, -1")
    e("s_cbranch_scc1 L_p2_fok")
    e("s_add_u32 s3, s3, 1")
    e("s_cmp_gt_u32 s3, 0x40000")
    e("s_cbranch_scc1 L_p2_fok")
    e(f"s_sleep {OPT.get('slp', 4)}")
    e("s_branch L_p2_late")
    a.label("L_p2_fok")
    p2_issueA(a)
    e("s_waitcnt vmcnt(0)")
    a.label("L_p2_go")
    stamp(a, 0)
    a.vm = ["old"]
    e(f"s_and_b32 s{ST}, s{SWAVE}, 1")
    e(f"s_lshl_b32 s{ST}, s{ST}, 12")
    e(f"v_add_u32 v{VAR}, s{ST}, v{VL16}")
    for k in range(1, NBASE):
        e(f"v_add_u32 v{VAR + k}, {65536 * k}, v{VAR}")
    e(f"v_lshlrev_b32 v{t0}, 2, v{vG}")
    e(f"v_lshrrev_b32 v{t1}, 2, v{vi}")
    e(f"v_add_u32 v{t0}, v{t0}, v{t1}")
    e(f"v_and_b32 v{t1}, 7, v{t0}")
    e(f"s_lshr_b32 s{ST}, s{SWAVE}, 1")
    e(f"s_lshl_b32 s{ST}, s{ST}, 2")
    e(f"v_xor_b32 v{t1}, s{ST}, v{t1}")
    e(f"v_lshlrev_b32 v{t0}, 8, v{t0}")
    e(f"v_and_b32 v{t2}, 3, v{vi}")
    e(f"v_lshlrev_b32 v{t2}, 3, v{t2}")
    e(f"v_add_u32 v{t0}, v{t0}, v{t2}")
    e(f"v_add_u32 v{t0}, 16384, v{t0}")
    for nt in range(4):
        e(f"v_xor_b32 v{t3}, {nt}, v{t1}")
        e(f"v_lshlrev_b32 v{t3}, 5, v{t3}")
        e(f"v_add_u32 v{VBR + nt}, v{t0}, v{t3}")
        for k in range(1, NBASE):
            e(f"v_add_u32 v{VBR + 4 * k + nt}, {65536 * k}, v{VBR + nt}")
    VBW = 26
    e(f"v_add_u32 v{VBW}, s{SM0B}, v{VL16}")
    e(f"v_add_u32 v{VBW + 1}, 65536, v{VBW}")
    e(f"v_and_b32 v{t0}, 1, v{vG}")
    e(f"v_lshlrev_b32 v{t0}, 10, v{t0}")
    e(f"v_lshrrev_b32 v{t1}, 1, v{vG}")
    e(f"v_lshlrev_b32 v{t1}, 8, v{t1}")
    e(f"v_lshlrev_b32 v{VH}, 4, v{vi}")
    e(f"v_add3_u32 v{VH}, v{VH}, v{t0}, v{t1}")
    stamp(a, 1)
    e(f"s_cmp_eq_u32 s{SROLE}, 0")
    e(f"s_cbranch_scc1 L_p2_r0")
    vm_save = list(a.vm)

    import math
    PERIOD = S * 4 // math.gcd(S, 4)

    def body(role):
        R = f"r{role}"
        o0 = OPT.get('o0', 5)
        na0 = n0 - o0
        assert 16 < na0 <= 32 and 5 <= o0 <= 11
        nact = na0 if role == 0 else 56 - na0
        N = nact + (o0 if role == 0 else 16 - o0)
        JO = nact - (S - 1)
        JP = N - OPT['pj']
        if role == 0:
            runs = {16: (5, 1, 7)}
        else:
            nl1 = 32 - na0
            runs = {16 + nl1: (2, 7, 14)}
            if nl1:
                runs[16] = (5 + 7 * (na0 - 16), 1, 7)

        def bperm(op):
            e(f"s_and_b32 s{ST + 9}, s{SWAVE}, 1")
            e(f"s_mul_i32 s{ST + 9}, s{ST + 9}, {-12 * 2048}")
            for j4 in range(4):
                e(f"{op} v{VBD + j4}, s{ST + 9}, v{VBD + j4}")
                if j4 < 3:
                    e(f"s_add_u32 s{ST + 9}, s{ST + 9}, {4 * 2048}")

        def newrun(j):
            if j == nact:
                def sw():
                    e(f"s_lshr_b32 s{ST + 11}, s{SWAVE}, 1")
                    if role:
                        e(f"s_add_u32 s{ST + 11}, s{ST + 11}, {2 * o0}")
                    e(f"s_lshl_b32 s{SOB}, s{ST + 11}, 16")
                    e(f"s_lshl_b32 s{SOA}, s{SMT}, 5")
                    e(f"s_add_u32 s{SOA}, s{SOA}, s{ST + 11}")
                    e(f"s_lshl_b32 s{SOA}, s{SOA}, 13")
                    e(f"s_add_u32 s{SOA}, s{SOA}, {OF_OFF}")
                    e(f"s_mov_b32 s{P_SSA}, 16384")
                    e(f"s_mov_b32 s{P_SSB}, 131072")
                    if role == 1:
                        bperm("v_subrev_u32")
                return [sw]
            if j in runs:
                c0, c1, st_ = runs[j]

                def sw():
                    r = p2_setrun(a, (c0, c1), st_)
                    e(f"s_lshl_b32 s{SOB}, s{r}, 16")
                    e(f"s_mul_i32 s{SOA}, s{SMT}, 144")
                    e(f"s_add_u32 s{SOA}, s{SOA}, s{r}")
                    e(f"s_lshl_b32 s{SOA}, s{SOA}, 13")
                    e(f"s_mov_b32 s{P_SSA}, {st_ * 8192}")
                    e(f"s_mov_b32 s{P_SSB}, {st_ * 65536}")
                    if st_ == 14:
                        bperm("v_add_u32")
                return [sw]
            return []

        def dmaA(j):
            f = newrun(j)
            f.append(lambda: e(f"s_add_u32 m0, s{SM0A}, {(j % S) * SLOT}"))
            for i in range(4):
                f.append(lambda i=i: a.vmem(
                    f"buffer_load_dwordx4 v{VAD}, {WS}, s{SOA} offen offset:{1024 * i} {OPT['k2a']} lds", f"D{j}"))
            f.append(lambda: e(f"s_add_u32 s{SOA}, s{SOA}, s{P_SSA}"))
            return f

        def dmaB(j):
            sr = SW2 if j < nact else SWO
            f = []
            k = j - (S - 1)
            if 0 <= k < OPT.get('pb', 0):
                sl = j % S
                for i in range(4):
                    f.append(lambda i=i: e(
                        f"ds_write_b128 v{VBW + sl // 2}, {ar(128 + 16 * k + 4 * i)} offset:{(sl % 2) * SLOT + 1024 * i}"))
                return f
            f.append(lambda: e(f"s_add_u32 m0, s{SM0B}, {(j % S) * SLOT}"))
            for i in range(4):
                f.append(lambda i=i: a.vmem(
                    f"buffer_load_dwordx4 v{VBD + i}, s[{sr}:{sr + 3}], s{SOB} offen offset:{1024 * i} lds", f"D{j}"))
            f.append(lambda: e(f"s_add_u32 s{SOB}, s{SOB}, s{P_SSB}"))
            return f

        def reads(j):
            sl = j % S
            k, so = sl // 2, (sl % 2) * SLOT
            f = []
            for q in range(4):
                for b in range(2):
                    f.append(lambda b=b, q=q: e(
                        f"ds_read_b128 {ar(FA(j, b, q))}, v{VAR + k} offset:{so + 8192 * b + 1024 * q}"))
                    for ins in range(2):
                        f.append(lambda b=b, q=q, ins=ins: e(
                            f"ds_read_b64_tr_b16 {ar(FB(j, b, q) + 2 * ins, 2)}, v{VBR + 4 * k + q} offset:{so + 8192 * b + 4096 * ins}"))
            return f

        late = []
        for mp in range(2):
            late.append(f"buffer_store_dwordx4 {vr(240 + 4 * mp)}, v{VH}, {WS}, s{P_SL + 2} offen offset:{2048 * mp} sc1")
        for g_, base in enumerate((192, 224)):
            for mt in range(4):
                late.append(f"buffer_store_dwordx4 {vr(base + 4 * mt)}, v{VL16}, {WS}, s{P_SL + g_} offen offset:{1024 * mt} sc1")
        TR = OPT.get('tr', 3)
        TRS = OPT.get('trs', 0)
        NTR = -(-10 // TR) + TRS
        JFQ = OPT.get('jfq', 2)

        e("s_barrier")
        stamp(a, 2)
        VK = 48
        PD, PO, PEPS, PR = 48, 96, 112, 116

        def poll(lab, vv, reload):
            a.label(f"L_p2{R}_{lab}w")
            e(f"v_cmp_eq_u64 vcc, v[{vv}:{vv + 1}], v[{V_TOK}:{V_TOK + 1}]")
            e("s_nop 1")
            e("s_cmp_eq_u64 vcc, -1")
            e(f"s_cbranch_scc1 L_p2{R}_{lab}ok")
            e("s_add_u32 s3, s3, 1")
            e("s_cmp_gt_u32 s3, 0x40000")
            e(f"s_cbranch_scc1 L_p2{R}_{lab}ok")
            e("s_sleep 4")
            sv = list(a.vm)
            reload()
            a.vm = sv
            e("s_waitcnt vmcnt(0)")
            e(f"s_branch L_p2{R}_{lab}w")
            a.label(f"L_p2{R}_{lab}ok")

        def fl_load(tag="F"):
            a.vmem(f"buffer_load_dwordx2 v[{VFL}:{VFL + 1}], v{VFA}, {WS}, 0 offen sc1", tag)

        def red_guard(lab):
            e(f"s_cmp_eq_u32 s{P_SEARLY}, 0")
            e(f"s_cbranch_scc1 L_p2{R}_{lab}")

        J1 = OPT.get('j1', 4)
        J2 = OPT.get('j2', 12)

        def pre(j):
            if j == JFQ:
                a.wait(["old"])
            if j == NTR + 2:
                a.wait(["sl"])
            if j == 16 - S + 1:
                a.wait(["FL"])
                poll("l", VFL, fl_load)
            if j == J2 + 2:
                a.wait(["fq"])
                poll("k", VQ, fq_load)
            if j == J2 + 4:
                a.wait(["pq"])
            if j == J2 + 8:
                a.wait(["ost"])
            if j == JO:
                a.wait(["F"])
                poll("o", VFL, fl_load)
            if role == 1 and j == JP:
                a.wait(["F2"])
                poll("p", VFL, fl_load)

        def extra(j):
            if j == JFQ:
                setflag(1)
            if j == J1:
                e(f"s_and_b32 s{ST}, s2, 3")
                e(f"s_cmp_eq_u32 s{ST}, s{SWAVE}")
                e(f"s_cselect_b32 s{P_SEARLY}, 1, 0")
                e(f"s_cmp_lt_u32 s2, 192")
                e(f"s_cselect_b32 s{P_SEARLY}, s{P_SEARLY}, 0")
                e(f"s_mul_i32 s{P_SHD}, s2, 171")
                e(f"s_lshr_b32 s{P_SHD}, s{P_SHD}, 10")
                e(f"s_min_u32 s{P_SHD}, s{P_SHD}, 31")
                e(f"s_lshr_b32 s{ST}, s{P_SHD}, 1")
                e(f"s_lshl_b32 s{ST}, s{ST}, 9")
                e(f"s_add_u32 s{ST}, s{ST}, {FQ_OFF}")
                e(f"v_and_b32 v{VQ + 2}, 31, v{VL}")
                e(f"v_lshlrev_b32 v{VQ + 2}, 3, v{VQ + 2}")
                e(f"v_add_u32 v{VQ + 2}, s{ST}, v{VQ + 2}")
                fq_load()
            if j == NTR + 2:
                setflag(4)
                srd(a, SOUT, S_PTR + 16, S_PTR + 17, 2048 * 1024 * 2)
            if j == 16 - S - 1:
                e(f"s_lshl_b32 s{ST}, s{SMT}, 9")
                e(f"s_add_u32 s{ST}, s{ST}, {FA_OFF}")
                e(f"v_lshlrev_b32 v{VFA}, 3, v{VL}")
                e(f"v_add_u32 v{VFA}, s{ST}, v{VFA}")
                fl_load("FL")
            if j == 16 - S + 2:
                e(f"v_lshlrev_b32 v{t1}, 2, v{vi}")
                e(f"s_lshl_b32 s{ST}, s{SMT}, 9")
                e(f"s_and_b32 s{ST + 1}, s{SWAVE}, 1")
                e(f"s_lshl_b32 s{ST + 1}, s{ST + 1}, 8")
                e(f"s_add_u32 s{ST}, s{ST}, s{ST + 1}")
                e(f"s_add_u32 s{ST}, s{ST}, {G_OFF}")
                for i in range(4):
                    a.vmem(f"buffer_load_dword v{VG + i}, v{t1}, {WS}, s{ST} offen offset:{64 * i}", "g")
            if j == J2:
                e(f"s_and_b32 s{P_SHD}, s2, 31")
                e(f"s_lshr_b32 s{P_SM2}, s2, 5")
                e(f"s_lshr_b32 s{ST}, s{P_SHD}, 1")
                e(f"s_lshl_b32 s{ST}, s{ST}, 4")
                e(f"s_add_u32 s{ST}, s{ST}, s{P_SM2}")
                e(f"s_lshl_b32 s{ST}, s{ST}, 2")
                e(f"s_add_u32 s{ST}, s{ST}, s{SWAVE}")
                e(f"s_lshl_b32 s{ST}, s{ST}, 3")
                e(f"s_add_u32 s{ST}, s{ST}, {FQ_OFF + 256}")
                e(f"s_lshl_b32 s{ST + 1}, s{P_SHD}, 6")
                e(f"s_add_u32 s{ST + 1}, s{ST + 1}, {FK_OFF}")
                e(f"v_lshlrev_b32 v{VQ + 2}, 3, v{VL}")
                e(f"v_add_u32 v{VQ + 2}, s{ST + 1}, v{VQ + 2}")
                e(f"v_mov_b32 v{t0}, s{ST}")
                e(f"v_cmp_gt_u32 s[{ST + 2}:{ST + 3}], 6, v{VL}")
                e("s_nop 1")
                e(f"v_cndmask_b32 v{VQ + 2}, v{t0}, v{VQ + 2}, s[{ST + 2}:{ST + 3}]")
                e(f"s_lshl_b32 s{P_SM2}, s{P_SM2}, 1")
                e(f"s_lshr_b32 s{ST}, s{SWAVE}, 1")
                e(f"s_add_u32 s{P_SM2}, s{P_SM2}, s{ST}")
                fq_load()
            if j == J2 + 2:
                e(f"s_mul_i32 s{ST}, s{P_SHD}, 3072")
                e(f"s_add_u32 s{ST}, s{ST}, {KVF_OFF}")
                e(f"v_lshlrev_b32 v{t0}, 3, v{VL}")
                for i in range(6):
                    a.vmem(f"buffer_load_dwordx2 {ar(144 + 2 * i, 2)}, v{t0}, {WS}, s{ST} offen offset:{512 * i}", "pq")
                e(f"s_mul_i32 s{ST}, s{P_SM2}, 144")
                e(f"s_add_u32 s{ST}, s{ST}, s{P_SHD}")
                e(f"s_add_u32 s{ST}, s{ST}, 112")
                e(f"s_lshl_b32 s{ST}, s{ST}, 13")
                for i in range(4):
                    a.vmem(f"buffer_load_dwordx4 {ar(128 + 4 * i)}, v{VAD}, {WS}, s{ST} offen offset:{1024 * i}", "pq")
                e(f"s_lshl_b32 s{SOP}, s{P_SM2}, 5")
                e(f"s_add_u32 s{SOP}, s{SOP}, s{P_SHD}")
                e(f"s_lshl_b32 s{SOP}, s{SOP}, 13")
                e(f"s_add_u32 s{SOP}, s{SOP}, {OF_OFF}")
                for r in range(4):
                    e(f"v_mov_b32 v{PEPS + r}, {EPS_HEX}")
            if j == J2 + 5:
                for i in range(4):
                    e(f"v_rcp_f32 v{PR + i}, v{PD + 12 * i + 8}")
                e("s_nop 0")
                for i in range(4):
                    d = PD + 12 * i
                    for q in range(8):
                        e(f"v_mul_f32 v{d + q}, v{PR + i}, v{d + q}")
                    o = PO + 4 * i
                    for q in range(4):
                        e(f"v_cvt_pk_bf16_f32 v{o + q}, v{d + 2 * q}, v{d + 2 * q + 1}")
                    a.vmem(f"buffer_store_dwordx4 {vr(o)}, v{VAD}, {WS}, s{SOP} offen offset:{1024 * i} sc1", "ost")
            if j == J2 + 8:
                setflag(2)
            if j == JO - OPT.get('fod', 2):
                assert j > J2 + 8
                e(f"s_lshl_b32 s{ST}, s{SMT}, 9")
                e(f"s_add_u32 s{ST}, s{ST}, {FO_OFF}")
                if role == 0:
                    e(f"v_min_u32 v{VFA}, {4 * o0 - 1}, v{VL}")
                else:
                    e(f"v_max_u32 v{VFA}, {4 * o0}, v{VL}")
                e(f"v_lshlrev_b32 v{VFA}, 3, v{VFA}")
                e(f"v_add_u32 v{VFA}, s{ST}, v{VFA}")
                fl_load("F")
            if role == 1 and j == JP - 1:
                e(f"s_lshl_b32 s{ST}, s{STILE}, 8")
                e(f"s_lshl_b32 s{ST + 1}, s{SWAVE}, 3")
                e(f"s_add_u32 s{ST}, s{ST}, s{ST + 1}")
                e(f"s_add_u32 s{ST}, s{ST}, {FP_OFF}")
                e(f"v_mov_b32 v{VFA}, s{ST}")
                fl_load("F2")
            if role == 1 and j == JP:
                e(f"s_lshl_b32 s{ST}, s{STILE}, 16")
                e(f"s_lshl_b32 s{ST + 1}, s{SWAVE}, 13")
                e(f"s_add_u32 s{ST}, s{ST}, s{ST + 1}")
                e(f"s_add_u32 s{ST}, s{ST}, {PART_OFF}")
                for q in range(8):
                    if q == 4:
                        e(f"s_add_u32 s{ST}, s{ST}, 4096")
                    a.vmem(f"buffer_load_dwordx4 {vr(VY + 4 * q)}, v{VL16}, {WS}, s{ST} offen offset:{1024 * (q & 3)} sc1", "PT")

        def post(j):
            if j == J1 + 1:
                red_guard("nr1")
                n_ = a.vm_count(["fq"], drop=False)
                e(f"s_waitcnt vmcnt({n_})")
                poll("q", VQ, fq_load)
                e(f"s_lshr_b32 s{ST}, s{P_SHD}, 1")
                e(f"s_mul_i32 s{ST}, s{ST}, 84")
                e(f"s_add_u32 s{ST}, s{ST}, s2")
                e(f"s_lshl_b32 s{ST}, s{ST}, 10")
                e(f"s_add_u32 s{ST}, s{ST}, {KVP_OFF}")
                for r8 in range(8):
                    e(f"buffer_load_dwordx4 {vr(VK + 4 * r8)}, v{VL16}, {WS}, s{ST} offen")
                    if r8 < 7:
                        e(f"s_add_u32 s{ST}, s{ST}, 12288")
                a.label(f"L_p2{R}_nr1")
                a.mark("r1")
            if j == J1 + 3:
                red_guard("nr2")
                n_ = a.vm_count(["#r1"], drop=False)
                if n_ is not None:
                    e(f"s_waitcnt vmcnt({n_})")
                for st_ in (1, 2, 4):
                    for r8 in range(0, 8, 2 * st_):
                        for q in range(2):
                            b0 = VK + 4 * r8 + 2 * q
                            e(f"v_pk_add_f32 {vr(b0, 2)}, {vr(b0, 2)}, {vr(b0 + 4 * st_, 2)}")
                e(f"v_cvt_pk_bf16_f32 v{VK}, v{VK}, v{VK + 1}")
                e(f"v_cvt_pk_bf16_f32 v{VK + 1}, v{VK + 2}, v{VK + 3}")
                e(f"s_mul_i32 s{ST}, s{P_SHD}, 6")
                e(f"s_sub_u32 s{ST}, s2, s{ST}")
                e(f"s_cmp_ge_u32 s{ST}, 3")
                e(f"s_cselect_b32 s{ST + 1}, 1, 0")
                e(f"s_mul_i32 s{ST + 2}, s{ST + 1}, 3")
                e(f"s_sub_u32 s{ST}, s{ST}, s{ST + 2}")
                e(f"s_mul_i32 s{ST + 2}, s{P_SHD}, 3")
                e(f"s_add_u32 s{ST}, s{ST}, s{ST + 2}")
                e(f"s_lshl_b32 s{ST}, s{ST}, 10")
                e(f"s_lshl_b32 s{ST + 1}, s{ST + 1}, 9")
                e(f"s_add_u32 s{ST}, s{ST}, s{ST + 1}")
                e(f"s_add_u32 s{ST}, s{ST}, {KVF_OFF}")
                e(f"v_lshlrev_b32 v{t0}, 3, v{VL}")
                e(f"buffer_store_dwordx2 {vr(VK, 2)}, v{t0}, {WS}, s{ST} offen sc1")
                a.label(f"L_p2{R}_nr2")
                a.mark("r2")
            if j == J1 + 5:
                red_guard("nr3")
                n_ = a.vm_count(["#r2"], drop=False)
                if n_ is not None:
                    e(f"s_waitcnt vmcnt({n_})")
                e(f"s_mov_b64 exec, {1 << 5}")
                e(f"buffer_store_dwordx2 v[{V_TOK}:{V_TOK + 1}], v0, {WS}, 0 offen sc1")
                e("s_mov_b64 exec, -1")
                a.label(f"L_p2{R}_nr3")

        def interval(j):
            if DIAG and OPT.get('ts2'):
                if j == 0:
                    e("s_mov_b32 s74, 0")
                e("s_memrealtime s[76:77]")
                e("s_waitcnt lgkmcnt(0)")
                e("s_mov_b32 m0, s74")
                e("s_nop 0")
                e(f"v_writelane_b32 v{VT + 7}, s76, m0")
                e("s_add_u32 s74, s74, 1")
            main = []
            if j >= 1:
                for mt in range(4):
                    for nt in range(4):
                        D = vr(acc2(mt, nt) + (64 if j - 1 >= nact else 0))
                        for b in range(2):
                            C = "0" if (j in (1, nact + 1) and b == 0) else D
                            main.append(f"v_mfma_f32_16x16x32_bf16 {D}, {ar(FB(j - 1, b, nt))}, {ar(FA(j - 1, b, mt))}, {C}")
            pre(j)
            if j == J2 + 4:
                pm = []
                for i in range(4):
                    d = PD + 12 * i
                    pq = ar(128 + 4 * i)
                    pm += [f"v_mfma_f32_16x16x32_bf16 {vr(d + 8)}, {ar(152)}, {pq}, {vr(PEPS)}",
                           f"v_mfma_f32_16x16x32_bf16 {vr(d)}, {ar(144)}, {pq}, 0",
                           f"v_mfma_f32_16x16x32_bf16 {vr(d + 4)}, {ar(148)}, {pq}, 0"]
                main = pm + main
            rd = reads(j) if j < N else []
            dm = (dmaA(j + S - 1) + dmaB(j + S - 1)) if j + S - 1 < N else []
            for x in (late[TR * (j - TRS): TR * (j - TRS) + TR] if j >= TRS else []):
                dm.append(lambda x=x: a.vmem(x, "sl"))
            streams = []
            if nact + 1 <= j <= nact + 4:
                mt = j - (nact + 1)
                it = []
                if mt == 0:
                    a.wait(["g"])
                it.append(lambda mt=mt: e(f"v_sub_f32 v{VOMG + mt}, 1.0, v{VG + mt}"))
                for q in range(16):
                    it.append(lambda mt=mt, q=q: e(f"v_mul_f32 v{acc2(mt, 0) + q}, v{VOMG + mt}, v{acc2(mt, 0) + q}"))
                streams.append((it, 10, 30))
            n = max(len(main), 1)
            ex = capture(a, lambda: extra(j), chunk=1)
            if ex:
                streams.append((ex, 1, min(n * 0.97, 1 + 1.2 * len(ex))))
            schedule(a, main, [(rd, 0, n * 0.85), (dm, 0.5, n * 0.95)] + streams)
            post(j)
            if j < N:
                a.wait([f"D{j + 1}"] if j + 1 < N else [], lgkm=True)
                if j + 1 < N:
                    e("s_barrier")

        iters = []
        for j in range(N + 1):
            n_ = len(a.lines)
            if j == 4:
                stamp(a, 3)
            if j == nact:
                stamp(a, 4)
            interval(j)
            iters.append(a.lines[n_:])
            del a.lines[n_:]
        fold_loops(a, iters, PERIOD, SCNT, f"p2{R}")
        stamp(a, 5)
        if role == 0:
            e(f"s_lshl_b32 s{ST}, s{STILE}, 16")
            e(f"s_lshl_b32 s{ST + 1}, s{SWAVE}, 13")
            e(f"s_add_u32 s{ST}, s{ST}, s{ST + 1}")
            e(f"s_add_u32 s{ST}, s{ST}, {PART_OFF}")
            e("s_nop 7")
        else:
            vo = VT + 4
            if OPT.get('fl'):
                e(f"v_and_b32 v{t2}, 7, v{vi}")
                e(f"v_lshlrev_b32 v{t2}, 11, v{t2}")
                e(f"v_lshrrev_b32 v{t3}, 3, v{vi}")
                e(f"v_lshlrev_b32 v{t3}, 6, v{t3}")
                e(f"v_add_u32 v{t2}, v{t2}, v{t3}")
            else:
                e(f"v_lshlrev_b32 v{t2}, 11, v{vi}")
            e(f"v_bfe_u32 v{t3}, v{VL}, 4, 1")
            e(f"v_lshlrev_b32 v{t3}, 5, v{t3}")
            e(f"v_add_u32 v{t2}, v{t2}, v{t3}")
            e(f"v_lshrrev_b32 v{t3}, 5, v{VL}")
            e(f"v_lshlrev_b32 v{t3}, 4, v{t3}")
            e(f"v_add_u32 v{vo}, v{t2}, v{t3}")
            e(f"v_add_u32 v{vo + 1}, 16384, v{vo}")
            e(f"s_lshl_b32 s{ST}, s{SMT}, 7")
            e(f"s_and_b32 s{ST + 1}, s{SWAVE}, 1")
            e(f"s_lshl_b32 s{ST + 1}, s{ST + 1}, 6")
            e(f"s_add_u32 s{ST}, s{ST}, s{ST + 1}")
            e(f"s_lshl_b32 s{ST}, s{ST}, 11")
            e(f"s_lshl_b32 s{ST + 1}, s{SNT}, 8")
            e(f"s_add_u32 s{ST}, s{ST}, s{ST + 1}")
            e(f"s_lshr_b32 s{ST + 1}, s{SWAVE}, 1")
            e(f"s_lshl_b32 s{ST + 1}, s{ST + 1}, 7")
            e(f"s_add_u32 s{ST}, s{ST}, s{ST + 1}")
            if OPT.get('fl') == 2:
                vw_, vr_ = 116, 118
                e(f"s_lshl_b32 s{ST + 1}, s{SWAVE}, 13")
                e(f"s_add_u32 s{ST + 1}, s{ST + 1}, {((N - 2) % S) * SLOT}")
                e(f"v_and_b32 v{t0}, 1, v{vG}")
                e(f"v_lshlrev_b32 v{t0}, 1, v{t0}")
                e(f"v_lshrrev_b32 v{t1}, 1, v{vG}")
                e(f"v_add_u32 v{t0}, v{t0}, v{t1}")
                e(f"v_and_b32 v{t1}, 7, v{vi}")
                e(f"v_xor_b32 v{t0}, v{t0}, v{t1}")
                e(f"v_lshlrev_b32 v{t1}, 7, v{vi}")
                e(f"v_add_u32 v{t1}, s{ST + 1}, v{t1}")
                e(f"v_lshlrev_b32 v{t2}, 4, v{t0}")
                e(f"v_add_u32 v{vw_}, v{t1}, v{t2}")
                e(f"v_xor_b32 v{t2}, 64, v{t2}")
                e(f"v_add_u32 v{vw_ + 1}, v{t1}, v{t2}")
                e(f"v_lshrrev_b32 v{t0}, 3, v{VL}")
                e(f"v_and_b32 v{t1}, 7, v{VL}")
                e(f"v_xor_b32 v{t2}, v{t0}, v{t1}")
                e(f"v_lshlrev_b32 v{t2}, 4, v{t2}")
                e(f"v_lshlrev_b32 v{t3}, 7, v{t0}")
                e(f"v_add3_u32 v{vr_}, v{t2}, v{t3}, s{ST + 1}")
                e(f"v_lshlrev_b32 v{t0}, 11, v{t0}")
                e(f"v_lshlrev_b32 v{t1}, 4, v{t1}")
                e(f"v_add_u32 v{vo}, v{t0}, v{t1}")
            a.wait(["PT"])
        for mt in range(4):
            sel = "op_sel:[1,0,0] op_sel_hi:[1,1,1]" if mt & 1 else "op_sel_hi:[0,1,1]"
            for q in range(8):
                b0 = acc2(mt, 0) + 2 * q
                e(f"v_pk_fma_f32 {vr(b0, 2)}, {vr(VG + (mt & 2), 2)}, {vr(b0 + 64, 2)}, {vr(b0, 2)} {sel}")
            if role == 0:
                for h2 in range(2):
                    q = 2 * mt + h2
                    b0 = AC + 8 * q
                    for r in range(4):
                        e(f"v_cvt_pk_bf16_f32 v{b0 + r}, v{b0 + 2 * r}, v{b0 + 2 * r + 1}")
                    e(f"buffer_store_dwordx4 {vr(b0)}, v{VL16}, {WS}, s{ST} offen offset:{1024 * (q & 3)} sc1")
                    if q == 3:
                        e(f"s_add_u32 s{ST}, s{ST}, 4096")
            else:
                for q in range(8):
                    p0 = VY + 8 * mt + q
                    u = 48 + 2 * q
                    e(f"v_lshlrev_b32 v{u}, 16, v{p0}")
                    e(f"v_and_b32 v{u + 1}, 0xffff0000, v{p0}")
                for q in range(8):
                    b0 = acc2(mt, 0) + 2 * q
                    e(f"v_pk_add_f32 {vr(b0, 2)}, {vr(b0, 2)}, {vr(48 + 2 * q, 2)}")
                for pr in range(2):
                    b0 = acc2(mt, 2 * pr)
                    for q in range(4):
                        e(f"v_cvt_pk_bf16_f32 v{b0 + q}, v{b0 + 2 * q}, v{b0 + 2 * q + 1}")
                e("s_nop 1")
                for pr in range(2):
                    b0 = acc2(mt, 2 * pr)
                    e(f"v_permlane16_swap_b32 v{b0}, v{b0 + 2}")
                    e(f"v_permlane16_swap_b32 v{b0 + 1}, v{b0 + 3}")
                if OPT.get('fl') == 2:
                    for pr in range(2):
                        e(f"ds_write_b128 v{vw_ + pr}, {vr(acc2(mt, 2 * pr))} offset:{2048 * mt}")
                    continue
                elif OPT.get('fl'):
                    q0, q1 = acc2(mt, 0), acc2(mt, 2)
                    tq = q0 + 4
                    for r in range(4):
                        e(f"v_mov_b32 v{tq + r}, v{q0 + r}")
                    for r in range(4):
                        e(f"v_mov_b32_dpp v{q0 + r}, v{q1 + r} row_ror:8 row_mask:0xf bank_mask:0xc")
                    for r in range(4):
                        e(f"v_mov_b32_dpp v{q1 + r}, v{tq + r} row_ror:8 row_mask:0xf bank_mask:0x3")
                    e(f"buffer_store_dwordx4 {vr(q0)}, v{vo}, s[{SOUT}:{SOUT + 3}], s{ST} offen {OPT.get('ost', '')}")
                    e(f"buffer_store_dwordx4 {vr(q1)}, v{vo + 1}, s[{SOUT}:{SOUT + 3}], s{ST} offen {OPT.get('ost', '')}")
                else:
                    for pr in range(2):
                        b0 = acc2(mt, 2 * pr)
                        e(f"buffer_store_dwordx4 {vr(b0)}, v{vo}, s[{SOUT}:{SOUT + 3}], s{ST} offen offset:{64 * pr} {OPT.get('ost', '')}")
                if mt < 3:
                    e(f"s_add_u32 s{ST}, s{ST}, 32768")
        if role == 1 and OPT.get('fl') == 2:
            e("s_waitcnt lgkmcnt(0)")
            for q in range(8):
                e(f"ds_read_b128 {vr(AC + 64 + 4 * q)}, v{vr_} offset:{1024 * q}")
            for q in range(8):
                e(f"s_waitcnt lgkmcnt({7 - q})")
                e(f"buffer_store_dwordx4 {vr(AC + 64 + 4 * q)}, v{vo}, s[{SOUT}:{SOUT + 3}], s{ST} offen {OPT.get('ost', '')}")
                if q < 7:
                    e(f"s_add_u32 s{ST}, s{ST}, 16384")
        if role == 0:
            e("s_waitcnt vmcnt(0)")
            setflag(3)
        stamp(a, 6)
        if DIAG and OPT.get('ts2'):
            e(f"s_mov_b32 s76, s{S_PTR + 20}")
            e(f"s_and_b32 s77, s{S_PTR + 21}, 0xffff")
            e(f"s_mov_b32 s78, 0x4000000")
            e(f"s_mov_b32 s79, 0x20000")
            e(f"s_lshl_b32 s75, s2, 2")
            e(f"s_add_u32 s75, s75, s{S_WAVE}")
            e(f"s_lshl_b32 s75, s75, 8")
            e(f"s_add_u32 s75, s75, {DIAG_OFF + 0x200000}")
            e(f"v_lshlrev_b32 v{VT}, 2, v{VL}")
            e(f"buffer_store_dword v{VT + 7}, v{VT}, s[76:79], s75 offen")
        if DIAG:
            e("s_waitcnt vmcnt(0)")
        stamp(a, 7)
        stamp_dump(a, 1, 8, SWAVE, S_PTR + 20, S_PTR + 21, VT + 5)
        e("s_endpgm")

    body(1)
    a.label("L_p2_r0")
    a.vm = vm_save
    body(0)


def fix_hazards(lines):
    out = []
    for i, ln in enumerate(lines):
        out.append(ln)
        if " m0," in ln and i + 1 < len(lines) and lines[i + 1].rstrip().endswith("lds"):
            out.append("  s_nop 0")
    return out


def gen_spin():
    a = Asm()
    e = a.e
    spec = OPT['spin']
    A_, B_, M = spec.split(",")
    a.lines.append(".globl spin_kernel\n.p2align 8\n.type spin_kernel,@function\nspin_kernel:")
    e("s_cmp_lg_u32 s2, 0")
    e("s_cbranch_scc1 L_spin_end")
    e("s_load_dwordx2 s[4:5], s[0:1], 80")
    e("v_lshlrev_b32 v1, 7, v0")
    e("s_waitcnt lgkmcnt(0)")
    e("s_mov_b32 s8, s4\ns_and_b32 s9, s5, 0xffff\ns_mov_b32 s10, 0x4000000\ns_mov_b32 s11, 0x20000")

    def red(sp, sdst):
        k, st, op = sp.split(".")
        base = DIAG_OFF + int(k) * 0x100000 + 8 * int(st) + 4
        for i in range(16):
            e(f"s_mov_b32 s12, {base + i * 8192}")
            e(f"buffer_load_dword v{8 + i}, v1, s[8:11], s12 offen")
        e("s_waitcnt vmcnt(0)")
        for i in range(1, 16):
            e(f"v_{op}_u32 v8, v8, v{8 + i}")
        e("s_nop 1")
        e(f"v_readlane_b32 s{sdst}, v8, 0")
        for l in range(1, 64):
            e(f"v_readlane_b32 s13, v8, {l}")
            e("s_nop 0")
            e(f"s_{op}_u32 s{sdst}, s{sdst}, s13")
    red("0.0.min", 20)
    red(A_, 21)
    red(B_, 22)
    e("s_sub_u32 s22, s22, s21")
    e(f"s_mul_i32 s22, s22, {M}")
    e("s_add_u32 s22, s22, 12000")
    e("s_min_u32 s22, s22, 90000")
    a.label("L_spin")
    e("s_memrealtime s[14:15]")
    e("s_waitcnt lgkmcnt(0)")
    e("s_sub_u32 s16, s14, s20")
    e("s_cmp_lt_u32 s16, s22")
    e("s_cbranch_scc1 L_spin")
    a.label("L_spin_end")
    e("s_endpgm")
    return a.lines


def kd(name, nfv, accum):
    return f""".amdhsa_kernel {name}
  .amdhsa_next_free_vgpr {nfv}
  .amdhsa_next_free_sgpr 102
  .amdhsa_accum_offset {accum}
  .amdhsa_group_segment_fixed_size 0
  .amdhsa_kernarg_size 88
  .amdhsa_user_sgpr_count 2
  .amdhsa_user_sgpr_kernarg_segment_ptr 1
  .amdhsa_system_sgpr_workgroup_id_x 1
.end_amdhsa_kernel"""


def main(path):
    hdr = open(f"cdna_kernels/{NAME}.s.ref").read().split("; Override launch")[0]
    out = [hdr.rstrip("\n")]
    kn = NAME + "_kernel"
    if OPT.get('spin'):
        out.append(f"; @launch kernel={kn} grid=(256,1,1) block=(256,1,1) lds={K2_LDS()}")
        out.append("; @launch kernel=spin_kernel grid=(1,1,1) block=(64,1,1) lds=0")
    else:
        out.append(f"; @launch grid=(256,1,1) block=(256,1,1) lds={K2_LDS()}")
    out.append('.amdgcn_target "amdgcn-amd-amdhsa--gfx950"')
    out.append(".text")
    out += [ln.replace("KNAME", kn) for ln in fix_hazards(gen_k1())]
    if OPT.get('spin'):
        out += gen_spin()
    out.append('.section .rodata,"a"')
    if OPT.get('spin'):
        out.append(".p2align 6")
        out.append(kd("spin_kernel", 32, 32))
    out.append(".p2align 6")
    out.append(kd(kn, 512 if OPT.get("pb") else 416, 256))
    open(path, "w").write("\n".join(out) + "\n")


if __name__ == "__main__":
    if "--dbgout" in sys.argv:
        DBGOUT = True
        sys.argv.remove("--dbgout")
    if "--diag" in sys.argv:
        DIAG = True
        sys.argv.remove("--diag")
    for arg in list(sys.argv):
        if "=" in arg:
            k_, v_ = arg.split("=")
            OPT[k_] = int(v_) if v_.isdigit() else v_.replace("+", " ")
            sys.argv.remove(arg)
    main(sys.argv[1] if len(sys.argv) > 1 else f"cdna_kernels/{NAME}.s")
```

```python
import sys

NAME = "gated_mix__linear_attn_block__dense_activation_mish__prompt"

AF_OFF = 0
AF_BYTES = 16 * 144 * 8 * 1024
KVP_OFF = AF_BYTES
KVP_BYTES = 16 * 8 * 12 * 1024
KVF_OFF = KVP_OFF + KVP_BYTES
KVF_BYTES = 32 * 3 * 1024
G_OFF = KVF_OFF + KVF_BYTES
PART_OFF = G_OFF + 8192
OF_OFF = PART_OFF + 128 * 65536
FLG_OFF = OF_OFF + 16 * 32 * 8192
FE_OFF = FLG_OFF - 0 + 32768 + 128 * 256
FA_OFF = FLG_OFF
FQ_OFF = FA_OFF + 8192
FO_OFF = FQ_OFF + 8192
FP_OFF = FO_OFF + 8192
FK_OFF = FE_OFF + 8192
WS_USED = FK_OFF + 2048
assert FP_OFF + 128 * 256 <= FE_OFF
V_TOK = 14

DIAG = False
DBGOUT = False
OPT = dict(k1a="", k1b="", k2a="", k2b="", st="sc1", ost="sc1", fl=1, pf=2, xpf=0, n0=34, o0=6, tr=5, cpf=2, map=0, fepos=1, S=4, pbf=1, pj=1, pprio=0, cprio=0, rdend=26)
DIAG_OFF = 0x2000000
EPS_HEX = "0x358637bd"
L2E_HEX = "0x3fb8aa3b"


class Asm:
    def __init__(self):
        self.lines = []
        self.vm = []

    def e(self, s):
        for ln in s.split("\n"):
            self.lines.append("  " + ln.strip())

    def label(self, s):
        self.lines.append(s + ":")

    def vmem(self, s, tag):
        self.e(s)
        self.vm.append(tag)

    def mark(self, tag):
        self.vm.append("#" + tag)

    def vm_count(self, tags, drop=True):
        idx = -1
        for i, t in enumerate(self.vm):
            if t in tags:
                idx = i
        if idx < 0:
            return None
        n = sum(1 for t in self.vm[idx + 1:] if not t.startswith("#"))
        if drop:
            self.vm = self.vm[idx + 1:]
        assert n <= 63, n
        return n

    def wait(self, tags=(), lgkm=False):
        n = self.vm_count(tags) if tags else None
        parts = []
        if n is not None:
            parts.append(f"vmcnt({n})")
        if lgkm:
            parts.append("lgkmcnt(0)")
        if parts:
            self.e("s_waitcnt " + " ".join(parts))


def stamp(a, idx, sbase=80):
    if not DIAG:
        return
    a.e(f"s_memtime s[{sbase - 4}:{sbase - 3}]")
    a.e(f"s_memrealtime s[{sbase - 2}:{sbase - 1}]")
    a.e("s_waitcnt lgkmcnt(0)")
    a.e(f"s_mov_b32 s{sbase + 2 * idx}, s{sbase - 4}")
    a.e(f"s_mov_b32 s{sbase + 2 * idx + 1}, s{sbase - 2}")


def stamp_dump(a, kidx, n, swave, sptr_lo, sptr_hi, vtmp, sbase=80):
    if not DIAG:
        return
    e = a.e
    e(f"s_mov_b32 s{sbase - 4}, s{sptr_lo}")
    e(f"s_and_b32 s{sbase - 3}, s{sptr_hi}, 0xffff")
    e(f"s_mov_b32 s{sbase - 2}, 0x4000000")
    e(f"s_mov_b32 s{sbase - 1}, 0x20000")
    e(f"s_lshl_b32 s75, s2, 2")
    e(f"s_add_u32 s75, s75, s{swave}")
    e(f"s_lshl_b32 s75, s75, 7")
    e(f"s_add_u32 s75, s75, {DIAG_OFF + kidx * 0x100000}")
    e(f"v_mov_b32 v{vtmp}, 0")
    e("s_mov_b64 exec, 1")
    for i in range(2 * n):
        e(f"v_mov_b32 v{vtmp + 1}, s{sbase + i}")
        e(f"buffer_store_dword v{vtmp + 1}, v{vtmp}, s[{sbase - 4}:{sbase - 1}], s75 offen offset:{4 * i}")
        e("s_nop 1")
    e("s_mov_b64 exec, -1")
    if DBGOUT:
        lab = f"L_dbg_{len(a.lines)}"
        e(f"s_cmp_lg_u32 s2, 1")
        e(f"s_cbranch_scc1 {lab}")
        e(f"s_cmp_lg_u32 s{swave}, 0")
        e(f"s_cbranch_scc1 {lab}")
        e(f"s_mov_b32 s{sbase - 4}, s{sptr_lo - 2}")
        e(f"s_and_b32 s{sbase - 3}, s{sptr_hi - 2}, 0xffff")
        e(f"s_mov_b32 s{sbase - 2}, 256")
        e("s_mov_b64 exec, 1")
        for i in range(n):
            e(f"v_mov_b32 v{vtmp + 1}, s{sbase + 2 * i + 1}")
            e(f"buffer_store_dword v{vtmp + 1}, v{vtmp}, s[{sbase - 4}:{sbase - 1}], 0 offen offset:{4 * i + 32 * kidx}")
            e("s_nop 1")
        e("s_mov_b64 exec, -1")
        a.label(lab)


def vr(b, n=4):
    return f"v[{b}:{b + n - 1}]"


def ar(b, n=4):
    return f"a[{b}:{b + n - 1}]"


def interleave(a, mf, fillers, start=0, end=None):
    n = len(mf)
    if end is None:
        end = n
    nf = len(fillers)
    pos = [start + (j * (end - start)) // max(nf, 1) for j in range(nf)]
    j = 0
    for m in range(n):
        a.e(mf[m])
        while j < nf and pos[j] <= m:
            f = fillers[j]
            f()
            j += 1
    while j < nf:
        fillers[j]()
        j += 1


def capture(a, fn, chunk=2):
    n0_ = len(a.lines)
    vm0 = list(a.vm)
    fn()
    lines = a.lines[n0_:]
    tags = a.vm[len(vm0):]
    del a.lines[n0_:]
    a.vm = vm0
    items = []
    cur = []
    depth = 0
    ti = 0
    for ln in lines:
        cur.append(ln)
        if "s_cbranch" in ln or "s_mov_b64 exec, " in ln and "-1" not in ln or "s_cmp" in ln or "s_getpc" in ln or "s_sub_u32" in ln and "KNAME" in ln:
            depth = 1
        if ln.endswith(":") and not ln.startswith(" ") and "L_pc" not in ln or "s_mov_b64 exec, -1" in ln and not any("s_cbranch" in x for x in cur) or "s_cselect" in ln or "s_subb_u32" in ln:
            depth = 0
        if depth == 0 and len(cur) >= chunk:
            items.append(cur)
            cur = []
    if cur:
        items.append(cur)
    out = []
    for it in items:
        guarded = any("s_cbranch" in x for x in it)
        nv = 0 if guarded else sum(1 for x in it if x.strip().startswith(("buffer_", "global_")))
        tg = tags[ti:ti + nv]
        ti += nv

        def emit(it=it, tg=tg):
            a.lines.extend(it)
            a.vm.extend(tg)
        out.append(emit)
    rest = tags[ti:]
    assert all(t.startswith("#") for t in rest), (ti, tags)
    if rest:
        out.append(lambda rest=rest: a.vm.extend(rest))
    return out


def srd(a, d, lo, hi, nbytes, bias=0):
    if bias:
        a.e(f"s_sub_u32 s{d}, s{lo}, {bias}")
        a.e(f"s_subb_u32 s{d + 1}, s{hi}, 0")
        a.e(f"s_and_b32 s{d + 1}, s{d + 1}, 0xffff")
    else:
        a.e(f"s_mov_b32 s{d}, s{lo}")
        a.e(f"s_and_b32 s{d + 1}, s{hi}, 0xffff")
    a.e(f"s_mov_b32 s{d + 2}, {nbytes + bias}")
    a.e(f"s_mov_b32 s{d + 3}, 0x20000")


K1_BSLOT = 13312
K1_AREA = 3328
K1_ABASE = 4 * K1_BSLOT
K1_LDS = K1_ABASE + 4 * 16384
ACC0 = 48


def acc(t, mt):
    return ACC0 + 16 * t + 4 * mt


V_LANE = 1
V_ARD = 2
V_QRD = 4
V_HRD = 8
V_ADMA = 9
V_BDMA = 13
V_L16 = 17
V_T = 18
S_X, S_Q, S_W1, S_WS, S_MISC = 4, 8, 12, 16, 20
S_WAVE, S_RB, S_P = 24, 25, 26
S_OFFA, S_OFFA2, S_OFFQ, S_OFFH = 27, 28, 29, 30
S_M0B, S_M0A = 31, 32
S_CNT = 33
S_QM = 34
S_PTR = 36
S_L2E = 58
S_T = 60
S_AFB = 72
S_GROW = 73
S_PO1, S_PO2 = 74, 3
S_PT, S_PTE = 100, 101
S_CB = 100
S_PF1, S_PF2 = 96, 20


def bset(s, t):
    return 52 * s + 4 * t


ASET = {"X": 104, "Y": 120, "Z": 136}


def k1_body(a, typ):
    T = "A" if typ == 0 else "B"
    nq = 8 if typ == 0 else 4
    nh = 13 - nq
    Ph = 2 * nh
    HB = 256 * nq
    e = a.e
    vi, vG, t0, t1, t2, t3 = V_T, V_T + 1, V_T + 2, V_T + 3, V_T + 4, V_T + 5
    e(f"v_and_b32 v{vi}, 15, v{V_LANE}")
    e(f"v_lshrrev_b32 v{vG}, 4, v{V_LANE}")
    e(f"s_mul_i32 s{S_T + 2}, s{S_P}, 448")
    if typ:
        e(f"s_add_u32 s{S_T + 2}, s{S_T + 2}, 160")

    e(f"s_lshr_b32 s{S_T + 8}, s{S_WAVE}, 1")
    e(f"s_lshl_b32 s{S_T + 8}, s{S_T + 8}, 4")
    e(f"s_and_b32 s{S_T + 9}, s{S_WAVE}, 1")
    e(f"s_lshl_b32 s{S_T + 9}, s{S_T + 9}, 2")
    e(f"s_add_u32 s{S_T + 8}, s{S_T + 8}, s{S_T + 9}")

    def krow(dst, kp, tmp):
        e(f"v_lshrrev_b32 v{tmp}, 2, v{kp}")
        e(f"v_lshlrev_b32 v{tmp}, 3, v{tmp}")
        e(f"v_and_b32 v{dst}, 3, v{kp}")
        e(f"v_add3_u32 v{dst}, v{dst}, v{tmp}, s{S_T + 8}")

    e(f"v_lshrrev_b32 v{t0}, 3, v{V_LANE}")
    krow(t1, t0, t2)
    e(f"v_mul_u32_u24 v{t1}, 6144, v{t1}")
    e(f"v_lshrrev_b32 v{t2}, 1, v{t0}")
    e(f"v_and_b32 v{t2}, 3, v{t2}")
    e(f"v_lshlrev_b32 v{t2}, 1, v{t2}")
    e(f"v_and_b32 v{t3}, 7, v{V_LANE}")
    e(f"v_xor_b32 v{t3}, v{t3}, v{t2}")
    e(f"v_lshlrev_b32 v{t3}, 4, v{t3}")
    e(f"v_add_u32 v{t1}, v{t1}, v{t3}")
    e(f"s_lshl_b32 s{S_T + 9}, s{S_P}, 7")
    e(f"s_add_u32 s{S_T + 9}, s{S_T + 9}, {4096 + (2048 if typ == 0 else 0)}")
    e(f"v_add_u32 v{V_BDMA}, s{S_T + 9}, v{t1}")
    if typ == 0:
        e(f"v_add_u32 v{V_BDMA + 1}, {2048 - 1024}, v{V_BDMA}")
    hins = [(2, 0), (3, 64)] if typ == 0 else [(1, 0), (2, 64), (3, 128)]
    magic, sh = (205, 11) if Ph == 10 else (57, 10)
    for s_ in range(8 * Ph + 64):
        if s_ < 8 * Ph:
            assert (s_ * magic) >> sh == s_ // Ph
    for slot, s0 in hins:
        e(f"v_add_u32 v{t0}, {s0}, v{V_LANE}")
        e(f"v_mul_u32_u24 v{t1}, {magic}, v{t0}")
        e(f"v_lshrrev_b32 v{t1}, {sh}, v{t1}")
        e(f"v_mul_u32_u24 v{t2}, {Ph}, v{t1}")
        e(f"v_sub_u32 v{t0}, v{t0}, v{t2}")
        e(f"v_and_b32 v{t1}, 7, v{t1}")
        krow(t2, t1, t3)
        e(f"v_mul_u32_u24 v{t2}, 7168, v{t2}")
        e(f"v_lshlrev_b32 v{t0}, 4, v{t0}")
        e(f"v_add3_u32 v{t0}, v{t0}, v{t2}, s{S_T + 2}")
        e(f"v_add_u32 v{V_BDMA + slot}, {4096 - 1024 * slot}, v{t0}")
    e(f"s_lshl_b32 s{S_T + 9}, s{S_RB}, 8")
    e(f"s_lshl_b32 s{S_T + 10}, s{S_WAVE}, 6")
    e(f"s_add_u32 s{S_T + 9}, s{S_T + 9}, s{S_T + 10}")
    e(f"s_lshl_b32 s{S_T + 9}, s{S_T + 9}, 11")
    e(f"v_lshrrev_b32 v{t0}, 3, v{V_LANE}")
    e(f"v_lshrrev_b32 v{t1}, 1, v{t0}")
    e(f"v_and_b32 v{t2}, 7, v{V_LANE}")
    e(f"v_xor_b32 v{t2}, v{t2}, v{t1}")
    e(f"v_lshlrev_b32 v{t0}, 11, v{t0}")
    e(f"v_add_u32 v{t0}, s{S_T + 9}, v{t0}")
    for j in range(4):
        if j & 1:
            e(f"v_xor_b32 v{t3}, 4, v{t2}")
            e(f"v_lshlrev_b32 v{t3}, 4, v{t3}")
        else:
            e(f"v_lshlrev_b32 v{t3}, 4, v{t2}")
        e(f"v_add_u32 v{t3}, v{t3}, v{t0}")
        e(f"v_add_u32 v{V_ADMA + j}, {j * (16384 - 1024)}, v{t3}")
    e(f"s_mul_i32 s{S_M0B}, s{S_WAVE}, {K1_AREA}")
    e(f"s_lshl_b32 s{S_M0A}, s{S_WAVE}, 14")
    e(f"s_add_u32 s{S_M0A}, s{S_M0A}, {K1_ABASE}")
    e(f"s_mov_b32 s{S_OFFA}, 0")
    e(f"s_mov_b32 s{S_OFFA2}, 65536")
    e(f"s_mov_b32 s{S_OFFQ}, 0")
    e(f"s_mov_b32 s{S_OFFH}, 0")
    e(f"s_mov_b32 s{S_QM}, 0xffff")
    e(f"s_mov_b32 s{S_QM + 1}, 0")

    def dmaB(tt):
        slot = tt % 4
        tag = f"B{tt}"
        f = []
        srcs = [(S_Q, S_OFFQ), (S_Q, S_OFFQ) if typ == 0 else (S_W1, S_OFFH), (S_W1, S_OFFH)]
        f.append(lambda: e(f"s_add_u32 m0, s{S_M0B}, {slot * K1_BSLOT}"))
        for j in range(3):
            sr, so = srcs[j]
            f.append(lambda j=j, sr=sr, so=so: a.vmem(
                f"buffer_load_dwordx4 v{V_BDMA + j}, s[{sr}:{sr + 3}], s{so} offen offset:{1024 * j} {OPT['k1b']} lds", tag))

        def q():
            e(f"s_mov_b64 exec, s[{S_QM}:{S_QM + 1}]")
            a.vmem(f"buffer_load_dwordx4 v{V_BDMA + 3}, s[{S_W1}:{S_W1 + 3}], s{S_OFFH} offen offset:3072 {OPT['k1b']} lds", tag)
            e("s_mov_b64 exec, -1")
        f.append(q)
        f.append(lambda: e(f"s_add_u32 s{S_OFFQ}, s{S_OFFQ}, {32 * 6144}"))
        f.append(lambda: e(f"s_add_u32 s{S_OFFH}, s{S_OFFH}, {32 * 7168}"))
        return f

    def dmaA(aa):
        slot = aa % 2
        tag = f"A{aa}"
        f = []
        for half in range(2):
            so = S_OFFA if half == 0 else S_OFFA2
            f.append(lambda half=half: e(f"s_add_u32 m0, s{S_M0A}, {slot * 8192 + half * 4096}"))
            for j in range(4):
                f.append(lambda j=j, so=so: a.vmem(
                    f"buffer_load_dwordx4 v{V_ADMA + j}, s[{S_X}:{S_X + 3}], s{so} offen offset:{1024 * j} {OPT['k1a']} lds", tag))
        f.append(lambda: e(f"s_add_u32 s{S_OFFA}, s{S_OFFA}, 128"))
        f.append(lambda: e(f"s_add_u32 s{S_OFFA2}, s{S_OFFA2}, 128"))
        return f

    def run_seq(fl):
        for fn in fl:
            n0 = len(a.lines)
            fn()
            if " m0," in a.lines[-1] and len(a.lines) == n0 + 1:
                e("s_nop 0")

    e("s_waitcnt lgkmcnt(0)")
    srd(a, S_Q, S_PTR + 2, S_PTR + 3, 1024 * 3072 * 2, bias=4096)
    srd(a, S_W1, S_PTR + 8, S_PTR + 9, 1024 * 3584 * 2, bias=4096)
    srd(a, S_X, S_PTR + 0, S_PTR + 1, 2048 * 1024 * 2)
    if not OPT.get('spin'):
        stamp(a, 0)
    if OPT.get('kst'):
        stamp(a, 4)
    run_seq(dmaB(0))
    run_seq(dmaA(0))
    srd(a, S_T + 4, S_PTR + 10, S_PTR + 11, 7168)
    e(f"v_lshlrev_b32 v{t1}, 3, v{vG}")
    for j in range(nh):
        a.vmem(f"buffer_load_dwordx2 {vr(acc(nq + j, 3), 2)}, v{t1}, s[{S_T + 4}:{S_T + 7}], s{S_T + 2} offen offset:{32 * j}", "bias")
    run_seq(dmaB(1))
    if not OPT.get('ramp'):
        run_seq(dmaB(2))
        run_seq(dmaA(1))
        run_seq(dmaB(3))
    if OPT.get('ramp') == 2:
        run_seq(dmaA(1))
    if OPT.get('ramp') == 3:
        run_seq(dmaB(2))
        run_seq(dmaA(1))
    e(f"v_lshrrev_b32 v{t0}, 3, v{vi}")
    e(f"v_lshlrev_b32 v{t0}, 6, v{t0}")
    e(f"v_and_b32 v{t1}, 7, v{vi}")
    e(f"v_lshlrev_b32 v{t1}, 3, v{t1}")
    e(f"v_add_u32 v{t0}, v{t0}, v{t1}")
    e(f"v_lshrrev_b32 v{t1}, 1, v{vi}")
    e(f"v_xor_b32 v{t1}, v{t1}, v{vG}")
    e(f"v_add_u32 v{t2}, v{t0}, v{t1}")
    e(f"v_lshlrev_b32 v{t2}, 4, v{t2}")
    e(f"v_add_u32 v{V_ARD}, s{S_M0A}, v{t2}")
    e(f"v_xor_b32 v{t1}, 4, v{t1}")
    e(f"v_add_u32 v{t2}, v{t0}, v{t1}")
    e(f"v_lshlrev_b32 v{t2}, 4, v{t2}")
    e(f"v_add_u32 v{V_ARD + 1}, s{S_M0A}, v{t2}")
    e(f"v_and_b32 v{t0}, 1, v{vG}")
    e(f"v_lshlrev_b32 v{t0}, 2, v{t0}")
    e(f"v_lshrrev_b32 v{t1}, 2, v{vi}")
    e(f"v_add_u32 v{t0}, v{t0}, v{t1}")
    e(f"v_lshrrev_b32 v{t1}, 1, v{vG}")
    e(f"v_mul_u32_u24 v{t1}, {2 * K1_AREA}, v{t1}")
    e(f"v_and_b32 v{t2}, 3, v{vi}")
    e(f"v_lshlrev_b32 v{t2}, 3, v{t2}")
    e(f"v_add_u32 v{t1}, v{t1}, v{t2}")
    e(f"v_mul_u32_u24 v{t3}, {16 * Ph}, v{t0}")
    e(f"v_add3_u32 v{V_HRD}, v{t1}, v{t3}, {0}")
    e(f"v_add_u32 v{V_HRD}, {HB}, v{V_HRD}")
    e(f"v_lshlrev_b32 v{t3}, 7, v{t0}")
    e(f"v_add_u32 v{t1}, v{t1}, v{t3}")
    e(f"v_lshrrev_b32 v{t2}, 1, v{t0}")
    e(f"v_and_b32 v{t2}, 3, v{t2}")
    for t in range(4):
        e(f"v_xor_b32 v{t3}, {t}, v{t2}")
        e(f"v_lshlrev_b32 v{t3}, 5, v{t3}")
        e(f"v_add_u32 v{V_QRD + t}, v{t1}, v{t3}")
    e(f"v_lshlrev_b32 v{V_L16}, 4, v{V_LANE}")

    gw, gx0, gx1 = V_T, V_T + 8, V_T + 16
    gt = V_T + 24
    nb = {0: 1, 1: 7, 2: 1, 3: 2, 4: 3, 5: 1, 6: 1, 7: 2, 8: 2}[OPT['pf']]
    PL1, PL2 = -(-56 // nb), -(-16 // nb)

    def misc_setup():
        srd(a, S_WS, S_PTR + 20, S_PTR + 21, WS_USED)
        tile_decode(a, S_T + 4, S_T + 5, S_T + 6, S_T + 7, S_T)
        e(f"s_lshl_b32 s{S_T}, s{S_RB}, 1")
        e(f"s_lshr_b32 s{S_T + 1}, s{S_WAVE}, 1")
        e(f"s_add_u32 s{S_T}, s{S_T}, s{S_T + 1}")
        e(f"s_lshl_b32 s{S_T}, s{S_T}, 5")
        e(f"s_lshl_b32 s{S_T + 1}, s{S_P}, 1")
        e(f"s_add_u32 s{S_T}, s{S_T}, s{S_T + 1}")
        if typ:
            e(f"s_add_u32 s{S_T}, s{S_T}, 1")
        e(f"s_lshl_b32 s{S_T}, s{S_T}, 1")
        e(f"s_and_b32 s{S_T + 1}, s{S_WAVE}, 1")
        e(f"s_add_u32 s{S_T}, s{S_T}, s{S_T + 1}")
        e(f"s_lshl_b32 s{S_T}, s{S_T}, 3")
        e(f"s_add_u32 s{S_T}, s{S_T}, {FA_OFF}")
        e(f"v_writelane_b32 v0, s{S_T}, 4")
        e(f"s_lshl_b32 s{S_T}, s{S_RB}, 1")
        e(f"s_lshr_b32 s{S_T + 3}, s{S_WAVE}, 1")
        e(f"s_add_u32 s{S_T}, s{S_T}, s{S_T + 3}")
        e(f"s_lshl_b32 s{S_T}, s{S_T}, 5")
        e(f"s_add_u32 s{S_T}, s{S_T}, s{S_P}")
        e(f"s_lshl_b32 s{S_T}, s{S_T}, 1")
        e(f"s_add_u32 s{S_T}, s{S_T}, s{S_T + 1}")
        e(f"s_lshl_b32 s{S_T}, s{S_T}, 3")
        e(f"s_add_u32 s{S_T}, s{S_T}, {FE_OFF + 256 * typ}")
        e(f"v_writelane_b32 v0, s{S_T}, 0")
        e(f"s_lshl_b32 s{S_T}, s{S_P}, 4")
        e(f"s_add_u32 s{S_T}, s{S_T}, s{S_RB}")
        e(f"s_lshl_b32 s{S_T}, s{S_T}, 2")
        e(f"s_add_u32 s{S_T}, s{S_T}, s{S_WAVE}")
        e(f"s_lshl_b32 s{S_T}, s{S_T}, 3")
        e(f"s_add_u32 s{S_T}, s{S_T}, {FQ_OFF + 256 * typ}")
        e(f"v_writelane_b32 v0, s{S_T}, 1")
        e(f"s_lshr_b32 s{S_T}, s2, 5")
        e(f"s_lshl_b32 s{S_T}, s{S_T}, 1")
        e(f"s_lshr_b32 s{S_T + 1}, s{S_WAVE}, 1")
        e(f"s_add_u32 s{S_T}, s{S_T}, s{S_T + 1}")
        e(f"s_lshl_b32 s{S_T}, s{S_T}, 9")
        e(f"s_and_b32 s{S_T + 1}, s2, 31")
        e(f"s_lshl_b32 s{S_T + 1}, s{S_T + 1}, 4")
        e(f"s_add_u32 s{S_T}, s{S_T}, s{S_T + 1}")
        e(f"s_and_b32 s{S_T + 1}, s{S_WAVE}, 1")
        e(f"s_lshl_b32 s{S_T + 1}, s{S_T + 1}, 3")
        e(f"s_add_u32 s{S_T}, s{S_T}, s{S_T + 1}")
        e(f"s_add_u32 s{S_T}, s{S_T}, {FO_OFF}")
        e(f"s_lshl_b32 s{S_T + 1}, s{S_T + 7}, 8")
        e(f"s_lshl_b32 s{S_T + 3}, s{S_WAVE}, 3")
        e(f"s_add_u32 s{S_T + 1}, s{S_T + 1}, s{S_T + 3}")
        e(f"s_add_u32 s{S_T + 1}, s{S_T + 1}, {FP_OFF}")
        e(f"s_cmp_eq_u32 s{S_T + 6}, 0")
        e(f"s_cselect_b32 s{S_T + 1}, s{S_T + 1}, 0x7ffffff0")
        e(f"v_writelane_b32 v0, s{S_T}, 2")
        e(f"v_writelane_b32 v0, s{S_T + 1}, 3")
        e(f"s_mul_i32 s{S_T}, s2, 171")
        e(f"s_lshr_b32 s{S_T}, s{S_T}, 10")
        e(f"s_lshl_b32 s{S_T}, s{S_T}, 1")
        e(f"s_add_u32 s{S_T}, s{S_T}, s2")
        e(f"s_lshl_b32 s{S_T}, s{S_T}, 3")
        e(f"s_add_u32 s{S_T}, s{S_T}, {FK_OFF}")
        e(f"v_writelane_b32 v0, s{S_T}, 5")

    def misc_setup2():
        if typ == 0:
            e(f"s_or_b32 s{S_T}, s2, s{S_WAVE}")
            e(f"s_cmp_lg_u32 s{S_T}, 0")
            e(f"s_cbranch_scc1 L_notok")
            e(f"s_memrealtime s[{S_T + 8}:{S_T + 9}]")
            srd(a, S_T + 4, S_PTR + 18, S_PTR + 19, 256)
            e("s_waitcnt lgkmcnt(0)")
            e(f"s_or_b32 s{S_T + 9}, s{S_T + 9}, 0x40000000")
            e(f"s_lshl_b32 s{S_T + 9}, s{S_T + 9}, 1")
            e(f"s_and_b32 s{S_T}, s{S_T + 8}, 1")
            e(f"s_or_b32 s{S_T + 9}, s{S_T + 9}, s{S_T}")
            e(f"s_or_b32 s{S_T + 8}, s{S_T + 8}, 1")
            e(f"v_mov_b32 v{V_T + 24}, s{S_T + 8}")
            e(f"v_mov_b32 v{V_T + 25}, s{S_T + 9}")
            e(f"v_mov_b32 v{V_T + 27}, 0")
            e("s_mov_b64 exec, 1")
            e(f"buffer_store_dwordx2 v[{V_T + 24}:{V_T + 25}], v{V_T + 27}, s[{S_T + 4}:{S_T + 7}], 0 offen sc1")
            e("s_mov_b64 exec, -1")
            e("s_nop 1")
            a.label("L_notok")
        if OPT.get('cpf') == 1:
            e(f"s_getpc_b64 s[{S_T + 4}:{S_T + 5}]")
            a.label(f"L_pc_{T}")
            e(f"s_sub_u32 s{S_T + 4}, s{S_T + 4}, L_pc_{T}-KNAME")
            e(f"s_subb_u32 s{S_T + 5}, s{S_T + 5}, 0")
            e(f"s_lshr_b32 s{S_T}, s2, 3")
            e(f"s_and_b32 s{S_T}, s{S_T}, 3")
            e(f"s_lshl_b32 s{S_T}, s{S_T}, 2")
            e(f"s_add_u32 s{S_T}, s{S_T}, s{S_WAVE}")
            e(f"s_lshl_b32 s{S_T}, s{S_T}, 13")
            e(f"v_lshlrev_b32 v{V_T + 29}, 7, v{V_LANE}")
            e(f"v_add_u32 v{V_T + 29}, s{S_T}, v{V_T + 29}")
            e(f"v_min_u32 v{V_T + 29}, L_code_end-KNAME-4, v{V_T + 29}")
            a.vmem(f"global_load_dword v{V_T + 29}, v{V_T + 29}, s[{S_T + 4}:{S_T + 5}]", "pf")
        if OPT.get('xpf') == 1:
            e(f"v_and_b32 v{V_T + 28}, 31, v{V_LANE}")
            e(f"v_lshlrev_b32 v{V_T + 28}, 7, v{V_T + 28}")
            e(f"s_lshl_b32 s{S_T}, s2, 2")
            e(f"s_add_u32 s{S_T}, s{S_T}, s{S_WAVE}")
            e(f"s_lshl_b32 s{S_T}, s{S_T}, 12")
            a.vmem(f"buffer_load_dword v{V_T + 28}, v{V_T + 28}, s[{S_X}:{S_X + 3}], s{S_T} offen", "pf")
        if OPT.get('xpf') == 2:
            e(f"v_lshlrev_b32 v{V_T + 27}, 7, v{V_LANE}")
            e(f"s_lshr_b32 s{S_T}, s2, 5")
            e(f"s_lshl_b32 s{S_T}, s{S_T}, 2")
            e(f"s_add_u32 s{S_T}, s{S_T}, s{S_WAVE}")
            e(f"s_lshl_b32 s{S_T}, s{S_T}, 14")
            e(f"s_lshl_b32 s{S_T + 1}, s{S_RB}, 19")
            e(f"s_add_u32 s{S_T}, s{S_T}, s{S_T + 1}")
            a.vmem(f"buffer_load_dword v{V_T + 28}, v{V_T + 27}, s[{S_X}:{S_X + 3}], s{S_T} offen", "pf")
            e(f"s_add_u32 s{S_T}, s{S_T}, 8192")
            a.vmem(f"buffer_load_dword v{V_T + 28}, v{V_T + 27}, s[{S_X}:{S_X + 3}], s{S_T} offen", "pf")

        e(f"v_lshlrev_b32 v{gt}, 5, v{V_LANE}")
        e(f"s_lshl_b32 s{S_GROW}, s{S_RB}, 8")
        e(f"s_lshl_b32 s{S_T + 1}, s{S_WAVE}, 6")
        e(f"s_add_u32 s{S_GROW}, s{S_GROW}, s{S_T + 1}")
        e(f"s_lshl_b32 s{S_T + 1}, s{S_P}, 2")
        e(f"s_add_u32 s{S_GROW}, s{S_GROW}, s{S_T + 1}")
        if typ:
            e(f"s_add_u32 s{S_GROW}, s{S_GROW}, 2")
        e(f"s_lshl_b32 s{S_T + 1}, s{S_GROW}, 11")
        srd(a, S_MISC, S_PTR + 14, S_PTR + 15, 2048)
        a.vmem(f"buffer_load_dwordx4 {vr(gw)}, v{gt}, s[{S_MISC}:{S_MISC + 3}], 0 offen", "g")
        a.vmem(f"buffer_load_dwordx4 {vr(gw + 4)}, v{gt}, s[{S_MISC}:{S_MISC + 3}], 0 offen offset:16", "g")
        a.vmem(f"buffer_load_dwordx4 {vr(gx0)}, v{gt}, s[{S_X}:{S_X + 3}], s{S_T + 1} offen", "g")
        a.vmem(f"buffer_load_dwordx4 {vr(gx0 + 4)}, v{gt}, s[{S_X}:{S_X + 3}], s{S_T + 1} offen offset:16", "g")
        a.vmem(f"buffer_load_dwordx4 {vr(gx1)}, v{gt}, s[{S_X}:{S_X + 3}], s{S_T + 1} offen offset:2048", "g")
        a.vmem(f"buffer_load_dwordx4 {vr(gx1 + 4)}, v{gt}, s[{S_X}:{S_X + 3}], s{S_T + 1} offen offset:2064", "g")

        if OPT['pf']:
            srd(a, S_PF1, S_PTR + 12, S_PTR + 13, 3584 * 1024 * 2)
            srd(a, S_PF2, S_PTR + 4, S_PTR + 5, 1024 * 1024 * 2)
            e(f"v_min_u32 v{V_T + 26}, {PL1 - 1}, v{V_LANE}")
            e(f"v_lshlrev_b32 v{V_T + 26}, 7, v{V_T + 26}")
            e(f"v_min_u32 v{V_T + 27}, {PL2 - 1}, v{V_LANE}")
            e(f"v_lshlrev_b32 v{V_T + 27}, 7, v{V_T + 27}")
            e(f"s_lshl_b32 s{S_T}, s2, 2")
            e(f"s_add_u32 s{S_T}, s{S_T}, s{S_WAVE}")
            e(f"s_mul_i32 s{S_PO1}, s{S_T}, 7168")
            e(f"s_lshl_b32 s{S_PO2}, s{S_T}, 11")


    if OPT.get('pt'):
        e(f"s_lshl_b32 s{S_T}, s{S_RB}, 1")
        e(f"s_lshr_b32 s{S_T + 1}, s{S_WAVE}, 1")
        e(f"s_add_u32 s{S_T}, s{S_T}, s{S_T + 1}")
        e(f"s_mul_i32 s{S_AFB}, s{S_T}, {144 * 8192}")
        e(f"s_and_b32 s{S_T + 1}, s{S_WAVE}, 1")
        e(f"s_lshl_b32 s{S_T + 1}, s{S_T + 1}, 12")
        e(f"s_add_u32 s{S_AFB}, s{S_AFB}, s{S_T + 1}")
        e(f"s_mul_i32 s{S_PT}, s{S_P}, {7 * 8192}")
        e(f"s_add_u32 s{S_PT}, s{S_PT}, s{S_AFB}")
        if typ:
            e(f"s_add_u32 s{S_PT}, s{S_PT}, {2 * 8192}")
        e(f"s_add_u32 s{S_PTE}, s{S_PT}, {(4 if typ else 2) * 8192}")
        e(f"v_and_b32 v{V_T + 25}, 31, v{V_LANE}")
        e(f"v_lshlrev_b32 v{V_T + 25}, 7, v{V_T + 25}")
        if typ:
            e(f"v_lshrrev_b32 v{V_T + 29}, 5, v{V_LANE}")
            e(f"v_lshlrev_b32 v{V_T + 29}, 13, v{V_T + 29}")
            e(f"v_add_u32 v{V_T + 29}, v{V_T + 29}, v{V_T + 25}")
            e(f"s_mul_i32 s{S_T}, s{S_P}, {2 * 8192}")
            e(f"s_add_u32 s{S_T}, s{S_T}, {112 * 8192}")
            e(f"s_add_u32 s{S_T}, s{S_T}, s{S_AFB}")
            a.vmem(f"buffer_load_dword v{V_T + 28}, v{V_T + 29}, s[{S_WS}:{S_WS + 3}], s{S_T} offen", "pf")

    def pt_items():
        return [lambda: a.vmem(f"buffer_load_dword v{V_T + 28}, v{V_T + 25}, s[{S_WS}:{S_WS + 3}], s{S_PT} offen", "pf"),
                lambda: e(f"s_add_u32 s{S_PT}, s{S_PT}, 8192"),
                lambda: e(f"s_min_u32 s{S_PT}, s{S_PT}, s{S_PTE}")]

    def pf_items(cond=None):
        if cond is None:
            return [lambda: a.vmem(f"buffer_load_dword v{V_T + 28}, v{V_T + 26}, s[{S_PF1}:{S_PF1 + 3}], s{S_PO1} offen", "pf"),
                    lambda: a.vmem(f"buffer_load_dword v{V_T + 28}, v{V_T + 27}, s[{S_PF2}:{S_PF2 + 3}], s{S_PO2} offen", "pf"),
                    lambda: e(f"s_add_u32 s{S_PO1}, s{S_PO1}, {128 * PL1}"),
                    lambda: e(f"s_add_u32 s{S_PO2}, s{S_PO2}, {128 * PL2}")]

        def blk():
            e(f"s_lshl_b32 s{S_T}, 1, s{S_CNT}")
            e(f"s_and_b32 s{S_T}, s{S_T}, {cond}")
            e(f"s_cbranch_scc0 L_k1{T}_nopf")
            e(f"buffer_load_dword v{V_T + 28}, v{V_T + 26}, s[{S_PF1}:{S_PF1 + 3}], s{S_PO1} offen")
            e(f"buffer_load_dword v{V_T + 28}, v{V_T + 27}, s[{S_PF2}:{S_PF2 + 3}], s{S_PO2} offen")
            e(f"s_add_u32 s{S_PO1}, s{S_PO1}, {128 * PL1}")
            e(f"s_add_u32 s{S_PO2}, s{S_PO2}, {128 * PL2}")
            a.label(f"L_k1{T}_nopf")
        return [blk]

    def g_items():
        d0, d1 = V_T + 24, V_T + 25
        L = []
        L.append(f"v_dot2_f32_bf16 v{d0}, v{gx0}, v{gw}, 0")
        L.append(f"v_dot2_f32_bf16 v{d1}, v{gx1}, v{gw}, 0")
        for j in range(1, 8):
            L.append(f"v_dot2_f32_bf16 v{d0}, v{gx0 + j}, v{gw + j}, v{d0}")
            L.append(f"v_dot2_f32_bf16 v{d1}, v{gx1 + j}, v{gw + j}, v{d1}")
        L.append("s_nop 3")
        for sh_ in (1, 2, 4, 8):
            L.append(f"s_nop 0\nv_add_f32_dpp v{d0}, v{d0}, v{d0} row_shr:{sh_} row_mask:0xf bank_mask:0xf bound_ctrl:0")
            L.append(f"s_nop 0\nv_add_f32_dpp v{d1}, v{d1}, v{d1} row_shr:{sh_} row_mask:0xf bank_mask:0xf bound_ctrl:0")
        L.append(f"s_nop 0\nv_add_f32_dpp v{d0}, v{d0}, v{d0} row_bcast:15 row_mask:0xa bank_mask:0xf")
        L.append(f"s_nop 0\nv_add_f32_dpp v{d1}, v{d1}, v{d1} row_bcast:15 row_mask:0xa bank_mask:0xf")
        L.append(f"s_nop 0\nv_add_f32_dpp v{d0}, v{d0}, v{d0} row_bcast:31 row_mask:0xc bank_mask:0xf")
        L.append(f"s_nop 0\nv_add_f32_dpp v{d1}, v{d1}, v{d1} row_bcast:31 row_mask:0xc bank_mask:0xf")
        L.append(f"v_mul_f32 v{d0}, 0xbfb8aa3b, v{d0}")
        L.append(f"v_mul_f32 v{d1}, 0xbfb8aa3b, v{d1}")
        L.append(f"v_exp_f32 v{d0}, v{d0}")
        L.append(f"v_exp_f32 v{d1}, v{d1}\ns_nop 0")
        L.append(f"v_add_f32 v{d0}, 1.0, v{d0}")
        L.append(f"v_add_f32 v{d1}, 1.0, v{d1}")
        L.append(f"v_rcp_f32 v{d0}, v{d0}")
        L.append(f"v_rcp_f32 v{d1}, v{d1}")
        L.append(f"v_mov_b32 v{gw}, 0")
        L.append(f"s_lshl_b32 s{S_T + 1}, s{S_GROW}, 2\ns_add_u32 s{S_T + 1}, s{S_T + 1}, {G_OFF}")
        L.append(f"s_lshl_b32 s{S_T + 3}, s2, 8\ns_add_u32 s{S_T + 3}, s{S_T + 3}, {FLG_OFF}")
        L.append(f"s_mov_b32 s{S_T + 8}, 0\ns_mov_b32 s{S_T + 9}, 0x80000000")
        F = [(lambda x=x: e(x)) for x in L]

        def st():
            e(f"s_mov_b64 exec, s[{S_T + 8}:{S_T + 9}]")
            a.vmem(f"buffer_store_dwordx2 v[{d0}:{d1}], v{gw}, s[{S_WS}:{S_WS + 3}], s{S_T + 1} offen sc1", "sq")
            e("s_mov_b64 exec, -1")
        F.append(st)
        return F

    if OPT.get('m2', 9) == 9:
        misc_setup2()
    a.wait(["bias"])
    for j in range(nh):
        src = acc(nq + j, 3)
        d = acc(nq + j, 0)
        e(f"v_lshlrev_b32 v{d}, 16, v{src}")
        e(f"v_and_b32 v{d + 1}, 0xffff0000, v{src}")
        e(f"v_lshlrev_b32 v{d + 2}, 16, v{src + 1}")
        e(f"v_and_b32 v{d + 3}, 0xffff0000, v{src + 1}")
    for t in range(4):
        for r in range(4):
            e(f"v_mov_b32 v{acc(t, 0) + r}, {EPS_HEX}")

    def rdB(tt):
        slot = tt % 4
        s = tt % 2
        f = []
        for t in range(13):
            for ins in range(2):
                if t < nq:
                    addr = V_QRD + (t & 3)
                    off = slot * K1_BSLOT + ins * K1_AREA + 1024 * (t >> 2)
                else:
                    addr = V_HRD
                    off = slot * K1_BSLOT + ins * K1_AREA + 32 * (t - nq)
                d = bset(s, t) + 2 * ins
                f.append(lambda d=d, addr=addr, off=off: e(f"ds_read_b64_tr_b16 {ar(d, 2)}, v{addr} offset:{off}"))
        return f

    def aset_of(tt):
        if tt % 2 == 0:
            return ASET["X"]
        return ASET["Y"] if tt % 4 == 1 else ASET["Z"]

    def rdA(aa):
        slot = aa % 2
        f = []
        for hh in range(2):
            base = aset_of(2 * aa + hh)
            for mt in range(4):
                f.append(lambda hh=hh, mt=mt, base=base: e(
                    f"ds_read_b128 {ar(base + 4 * mt)}, v{V_ARD + hh} offset:{slot * 8192 + mt * 2048}"))
        return f

    stamp(a, 1)
    a.wait(["B0", "A0"])
    e("s_barrier")
    stamp(a, 2)
    for fn in rdA(0) + rdB(0):
        fn()
    if OPT.get('ramp') == 1:
        run_seq(dmaA(1))
    if OPT.get('ramp') in (1, 2):
        run_seq(dmaB(2))
    a.wait(["B1"], lgkm=True)
    e("s_barrier")

    misc_items = capture(a, misc_setup)
    misc_items2 = capture(a, misc_setup2) if OPT.get('m2', 9) != 9 else []

    NSTEP = 32

    def step(tt):
        if DIAG and OPT.get('ts'):
            e("s_memrealtime s[76:77]")
            e("s_waitcnt lgkmcnt(0)")
            e("s_mov_b32 m0, s78")
            e("s_nop 0")
            e(f"v_writelane_b32 v{V_T + 29}, s76, m0")
            e("s_add_u32 s78, s78, 1")
        s = tt % 2
        ab = aset_of(tt)
        mf = []
        for t in range(13):
            order = [1, 2, 3, 0] if tt == 0 else [0, 1, 2, 3]
            for mt in order:
                D = vr(acc(t, mt))
                if tt == 0:
                    C = "0" if (typ == 0 and 4 <= t < 8) else vr(acc(t, 0))
                else:
                    C = D
                W = ar(bset(s, t))
                X = ar(ab + 4 * mt)
                if typ == 0 and t < 8:
                    mf.append(f"v_mfma_f32_16x16x32_bf16 {D}, {X}, {W}, {C}")
                else:
                    mf.append(f"v_mfma_f32_16x16x32_bf16 {D}, {W}, {X}, {C}")
        if OPT.get('fakechain') and tt > 0:
            import re
            m2 = []
            for i in range(0, 52, 2):
                x0, x1 = mf[i], mf[i + 1]
                pick = x0 if tt % 2 == 0 else x1
                D = re.match(r"v_mfma\S+ (v\[\d+:\d+\])", pick).group(1)
                for x in (x0, x1):
                    D0 = re.match(r"v_mfma\S+ (v\[\d+:\d+\])", x).group(1)
                    m2.append(x.replace(D0, D))
            mf = m2
        rd = []
        if tt + 1 < NSTEP:
            rd = rdB(tt + 1)
            if tt % 2 == 1:
                rd = rdA((tt + 1) // 2) + rd
        dm = []
        if tt == 0 and OPT.get('ramp'):
            dm += dmaB(3)
        if OPT.get('afirst', 1) and tt % 2 == 0 and tt // 2 + 2 < NSTEP // 2:
            dm += dmaA(tt // 2 + 2)
        if tt + 4 < NSTEP:
            dm += dmaB(tt + 4)
        if not OPT.get('afirst', 1) and tt % 2 == 0 and tt // 2 + 2 < NSTEP // 2:
            dm += dmaA(tt // 2 + 2)
        if OPT['pf'] == 1 and tt % 4 == 1 and tt < 28:
            dm += pf_items()
        if OPT.get('cpf') == 3 and tt == 28:
            dm.append(lambda: a.vmem(f"global_load_dword v{V_T + 28}, v{V_T + 29}, s[{S_CB}:{S_CB + 1}]", "pf"))
        if OPT['pf'] in (2, 3, 4, 7) and tt == 28:
            dm += pf_items()
        if OPT['pf'] in (3, 4, 5, 6, 7, 8) and tt % 4 == 1 and 4 <= tt < 28:
            dm += pf_items({3: 1 << 4, 4: (1 << 5) | (1 << 3), 5: 1 << 1, 6: 1 << 3, 7: 1 << 1, 8: (1 << 2) | (1 << 4)}[OPT['pf']])
        if OPT.get('pt') and tt % 4 == 3 and tt < 28:
            dm += pt_items()
        if tt == OPT.get('m2', 9):
            dm += misc_items2
        if tt == 3:
            dm += misc_items
        fl = []
        i1 = i2 = 0
        n1, n2 = len(rd), len(dm)
        while i1 < n1 or i2 < n2:
            if i2 < n2 and (i1 >= n1 or i2 * n1 <= i1 * n2):
                fl.append(dm[i2]); i2 += 1
            else:
                fl.append(rd[i1]); i1 += 1
        if OPT.get('p2m'):
            if tt == NSTEP - 2:
                gi = g_items()
                fl2 = []
                for k_ in range(max(len(fl), len(gi))):
                    fl2 += fl[k_:k_ + 1] + gi[k_:k_ + 1]
                fl = fl2
            if tt == NSTEP - 1:
                fl = capture(a, lambda: p2_math(a), chunk=2)
        elif tt == NSTEP - 1:
            assert "g" not in a.vm
            fl = g_items()
        nb_ = OPT.get('bt', 0)
        fe_ = OPT.get('fe', 48)
        if OPT.get('rdf') and rd and dm:
            schedule(a, mf[:52 - nb_], [(rd, 0, OPT['rdf']), (dm, OPT.get('dm0', 1), fe_)])
        else:
            interleave(a, mf[:52 - nb_], fl, 0, fe_)
        if tt + 1 < NSTEP:
            tags = []
            if tt + 2 < NSTEP:
                tags.append(f"B{tt + 2}")
            if tt % 2 == 0:
                tags.append(f"A{tt // 2 + 1}")
            a.wait(tags, lgkm=True)
            if tt + 2 < NSTEP:
                e("s_barrier")
        for x in mf[52 - nb_:]:
            e(x)

    iters = []
    for it in range(8):
        n0 = len(a.lines)
        for tt in range(4 * it, 4 * it + 4):
            step(tt)
        iters.append(a.lines[n0:])
        del a.lines[n0:]
    for it in range(2, 7):
        assert iters[it] == iters[1], f"iteration {it} differs"
    stamp(a, 3)
    if DIAG and OPT.get('ts'):
        e("s_mov_b32 s78, 0")
    a.lines += iters[0]
    if not OPT.get('ts') and not OPT.get('kst'):
        stamp(a, 4)
    e(f"s_mov_b32 s{S_CNT}, 6")
    a.label(f"L_k1{T}_loop")
    a.lines += iters[1]
    e(f"s_sub_u32 s{S_CNT}, s{S_CNT}, 1")
    e(f"s_cmp_lg_u32 s{S_CNT}, 0")
    e(f"s_cbranch_scc1 L_k1{T}_loop")
    a.lines += iters[7]
    assert all(not t.startswith(("A", "B")) for t in a.vm), a.vm

    stamp(a, 5)

    def fin():
        stamp(a, 6)
        stamp(a, 7)
        k = a.vm_count(["#eA"], drop=False)
        if DIAG:
            k += 16
        stamp_dump(a, 0, 8, S_WAVE, S_PTR + 20, S_PTR + 21, V_T)
        e(f"s_cmp_eq_u32 s{P_SEARLY}, 0")
        e("s_cbranch_scc1 L_p2_late")
        e(f"s_waitcnt vmcnt({k})")
        e("s_branch L_p2_go")

    pb_state = [0]

    def pb(n=1):
        for _ in range(n):
            k = pb_state[0]
            if k >= OPT.get('pb', 0):
                return
            for i in range(4):
                a.vmem(f"buffer_load_dwordx4 {ar(128 + 16 * k + 4 * i)}, v{P_VBD + i}, s[{P_SW2}:{P_SW2 + 3}], s{P_SOB} offen offset:{1024 * i}", "pb")
            e(f"s_add_u32 s{P_SOB}, s{P_SOB}, s{P_SSB}")
            pb_state[0] += 1

    def fe_load():
        a.vmem(f"buffer_load_dwordx2 v[{P_VFL}:{P_VFL + 1}], v{P_VFA}, s[{S_WS}:{S_WS + 3}], 0 offen sc1", "fe")

    def fe_check():
        a.wait(["fe"])
        e(f"v_cmp_eq_u64 vcc, v[{P_VFL}:{P_VFL + 1}], v[{V_TOK}:{V_TOK + 1}]")
        e(f"s_mov_b32 s{P_SEARLY}, 0")
        e("s_nop 0")
        e("s_cmp_eq_u64 vcc, -1")
        e(f"s_cbranch_scc0 L_k1{T}_noearly")
        p2_issueA(a)
        e(f"s_mov_b32 s{P_SEARLY}, 1")
        a.label(f"L_k1{T}_noearly")
        a.mark("eA")

    def setflag(lane):
        a.label(f"L_k1{T}_tw")
        e(f"v_readfirstlane_b32 s{S_T}, v{V_TOK + 1}")
        e(f"v_readfirstlane_b32 s{S_T + 1}, v{V_TOK}")
        e("s_nop 3")
        e(f"s_min_u32 s{S_T}, s{S_T}, s{S_T + 1}")
        e(f"s_cmp_lg_u32 s{S_T}, 0")
        e(f"s_cbranch_scc1 L_k1{T}_tok")
        e("s_add_u32 s3, s3, 1")
        e("s_cmp_gt_u32 s3, 0x40000")
        e(f"s_cbranch_scc1 L_k1{T}_tok")
        e("s_sleep 4")
        e(f"buffer_load_dwordx2 v[{V_TOK}:{V_TOK + 1}], v12, s[{S_T + 4}:{S_T + 7}], 0 offen sc1")
        e("s_waitcnt vmcnt(0)")
        e(f"s_branch L_k1{T}_tw")
        a.label(f"L_k1{T}_tok")
        e(f"s_mov_b64 exec, {1 << lane}")
        a.vmem(f"buffer_store_dwordx2 v[{V_TOK}:{V_TOK + 1}], v0, s[{S_WS}:{S_WS + 3}], 0 offen sc1", "fl")
        e("s_mov_b64 exec, -1")
    e("s_barrier")
    e("s_mov_b32 s3, 0")
    e(f"s_mov_b32 s{S_L2E}, {L2E_HEX}")
    e(f"s_mov_b32 s{S_L2E + 1}, {L2E_HEX}")
    e(f"s_lshl_b32 s{S_T}, s{S_RB}, 1")
    e(f"s_lshr_b32 s{S_T + 1}, s{S_WAVE}, 1")
    e(f"s_add_u32 s{S_T}, s{S_T}, s{S_T + 1}")
    e(f"s_mul_i32 s{S_AFB}, s{S_T}, {144 * 8192}")
    e(f"s_and_b32 s{S_T + 1}, s{S_WAVE}, 1")
    e(f"s_lshl_b32 s{S_T + 1}, s{S_T + 1}, 12")
    e(f"s_add_u32 s{S_AFB}, s{S_AFB}, s{S_T + 1}")
    e("s_nop 7")
    TT, UU = V_T, V_T + 8

    def phi_group(ra, rb_):
        prs = [ra, ra + 2, rb_, rb_ + 2]
        for j, p in enumerate(prs):
            e(f"v_pk_mul_f32 {vr(TT + 2 * j, 2)}, {vr(p, 2)}, s[{S_L2E}:{S_L2E + 1}]")
        for j in range(8):
            e(f"v_exp_f32_e64 v{TT + j}, v{TT + j} clamp")
        for p in prs:
            e(f"v_max_f32 v{p}, {EPS_HEX}, v{p}")
            e(f"v_max_f32 v{p + 1}, {EPS_HEX}, v{p + 1}")
        for j, p in enumerate(prs):
            e(f"v_pk_add_f32 {vr(p, 2)}, {vr(p, 2)}, {vr(TT + 2 * j, 2)}")
        for j, p in enumerate(prs):
            e(f"v_cvt_pk_bf16_f32 v{ra + j}, v{p}, v{p + 1}")

    def cvt_group(ra, rb_):
        prs = [ra, ra + 2, rb_, rb_ + 2]
        for j, p in enumerate(prs):
            e(f"v_cvt_pk_bf16_f32 v{ra + j}, v{p}, v{p + 1}")

    def mish_group(ra, rb_, split=False, dst=None):
        prs = [ra, ra + 2, rb_, rb_ + 2]
        for j, p in enumerate(prs):
            e(f"v_pk_mul_f32 {vr(TT + 2 * j, 2)}, {vr(p, 2)}, s[{S_L2E}:{S_L2E + 1}]")
        for j in range(8):
            e(f"v_exp_f32 v{TT + j}, v{TT + j}")
        for j in range(4):
            e(f"v_pk_fma_f32 {vr(UU + 2 * j, 2)}, {vr(TT + 2 * j, 2)}, 0.5, 1.0 op_sel_hi:[1,0,0]")
        for j in range(4):
            e(f"v_pk_fma_f32 {vr(UU + 2 * j, 2)}, {vr(TT + 2 * j, 2)}, {vr(UU + 2 * j, 2)}, 1.0 op_sel_hi:[1,1,0]")
        for j in range(8):
            e(f"v_rcp_f32 v{UU + j}, v{UU + j}")
        for j, p in enumerate(prs):
            e(f"v_pk_fma_f32 {vr(p, 2)}, {vr(UU + 2 * j, 2)}, {vr(p, 2)}, {vr(p, 2)} neg_lo:[1,0,0] neg_hi:[1,0,0]")
        if split:
            e(f"v_cvt_pk_bf16_f32 v{ra}, v{ra}, v{ra + 1}")
            e(f"v_cvt_pk_bf16_f32 v{ra + 1}, v{ra + 2}, v{ra + 3}")
            e(f"v_cvt_pk_bf16_f32 v{rb_}, v{rb_}, v{rb_ + 1}")
            e(f"v_cvt_pk_bf16_f32 v{rb_ + 1}, v{rb_ + 2}, v{rb_ + 3}")
        else:
            dd = ra if dst is None else dst
            for j, p in enumerate(prs):
                e(f"v_cvt_pk_bf16_f32 v{dd + j}, v{p}, v{p + 1}")

    WS = f"s[{S_WS}:{S_WS + 3}]"

    def set_kb(sreg, mul, add):
        e(f"s_mul_i32 s{sreg}, s{S_P}, {mul * 8192}")
        e(f"s_add_u32 s{sreg}, s{sreg}, {add * 8192}")
        e(f"s_add_u32 s{sreg}, s{sreg}, s{S_AFB}")

    def h_late(tA, kbl, sreg, mid=None):
        set_kb(sreg, 7, kbl)
        for mt in range(4):
            mish_group(acc(tA, mt), acc(tA + 1, mt))
            if mt == 1 and mid:
                mid()

    def h_half_late(tA, half):
        set_kb(P_SL + 2, 7, 2)
        if half:
            e(f"s_add_u32 s{P_SL + 2}, s{P_SL + 2}, 512")
        for mp in range(2):
            mish_group(acc(tA, 2 * mp), acc(tA, 2 * mp + 1), dst=240 + 4 * mp)
        e("s_nop 1")
        for mp in range(2):
            e(f"v_permlane16_swap_b32 v{240 + 4 * mp}, v{242 + 4 * mp}")
            e(f"v_permlane16_swap_b32 v{241 + 4 * mp}, v{243 + 4 * mp}")

    def h_full(tA, kbl, tag='st'):
        set_kb(S_T + 2, 7, kbl)
        for mt in range(4):
            mish_group(acc(tA, mt), acc(tA + 1, mt))
            a.vmem(f"buffer_store_dwordx4 {vr(acc(tA, mt))}, v{V_L16}, {WS}, s{S_T + 2} offen offset:{1024 * mt} {OPT['st']}", tag)

    def h_half(tA, kbl, half):
        set_kb(S_T + 2, 7, kbl)
        for mp in range(2):
            mish_group(acc(tA, 2 * mp), acc(tA, 2 * mp + 1), split=True)
            for mt in (2 * mp, 2 * mp + 1):
                a.vmem(f"buffer_store_dwordx2 {vr(acc(tA, mt), 2)}, v{V_L16}, {WS}, s{S_T + 2} offen offset:{1024 * mt + 8 * half} {OPT['st']}", "st")

    if typ == 1:
        h_full(5, 3, "se")
        h_full(7, 4, "se")
        p2_early(a)
        for hd in range(2):
            set_kb(S_T + 2, 2, 112 + hd)
            for mt in range(4):
                phi_group(acc(2 * hd, mt), acc(2 * hd + 1, mt))
                a.vmem(f"buffer_store_dwordx4 {vr(acc(2 * hd, mt))}, v{V_L16}, {WS}, s{S_T + 2} offen offset:{1024 * mt} {OPT['st']}", "sq")
                if 4 * hd + mt == OPT.get('fepos', 4):
                    a.wait(["se", "zc"])
                    setflag(0)
                if 4 * hd + mt >= OPT.get('fepos', 4):
                    pb()
        pb(8)
        h_late(9, 5, P_SL, mid=fe_load)
        h_late(11, 6, P_SL + 1, mid=fe_check)
        h_half_late(4, 1)
        fin()
        return

    h_full(8, 0, "se")
    h_full(10, 1, "se")
    p2_early(a)
    ONES = V_T + 16
    for r in range(4):
        e(f"v_mov_b32 v{ONES + r}, 0x3f803f80")
    for t in range(4):
        for pr in range(2):
            phi_group(acc(t, 2 * pr), acc(t, 2 * pr + 1))
            if 2 * t + pr == OPT.get('fepos', 4):
                a.wait(["se", "zc"])
                setflag(0)
            if 2 * t + pr >= OPT.get('fepos', 4):
                pb()
    pb(8)
    for t in range(4, 8):
        for pr in range(2):
            cvt_group(acc(t, 2 * pr), acc(t, 2 * pr + 1))
    e("s_nop 1")
    free = [acc(t, m) for t in range(8) for m in (1, 3)]

    def Dt(tau):
        return free[tau]
    for pr in range(2):
        for hd in range(2):
            for dt in range(2):
                for et in range(3):
                    tau = hd * 6 + dt * 3 + et
                    Aop = vr(acc(2 * hd + dt, 2 * pr))
                    Bop = vr(acc(4 + 2 * hd + et, 2 * pr)) if et < 2 else vr(ONES)
                    C = "0" if pr == 0 else vr(Dt(tau))
                    e(f"v_mfma_f32_16x16x32_bf16 {vr(Dt(tau))}, {Aop}, {Bop}, {C}")
    vw, vrd = V_T + 20, V_T + 21
    e(f"s_mul_i32 s{S_T}, s{S_WAVE}, 12288")
    e(f"s_add_u32 s{S_T}, s{S_T}, 98304")
    e(f"v_add_u32 v{vw}, s{S_T}, v{V_L16}")
    e(f"s_mul_i32 s{S_T}, s{S_WAVE}, 3072")
    e(f"s_add_u32 s{S_T}, s{S_T}, 98304")
    e(f"v_add_u32 v{vrd}, s{S_T}, v{V_L16}")
    fe_load()
    e("s_nop 7")
    for tau in range(12):
        e(f"ds_write_b128 v{vw}, {vr(Dt(tau))} offset:{1024 * tau}")
    e(f"s_lshl_b32 s{S_T}, s{S_P}, 3")
    e(f"s_add_u32 s{S_T}, s{S_T}, s{S_RB}")
    e(f"s_mul_i32 s{S_T}, s{S_T}, 12288")
    e(f"s_mul_i32 s{S_T + 1}, s{S_WAVE}, 3072")
    e(f"s_add_u32 s{S_T}, s{S_T}, s{S_T + 1}")
    e(f"s_add_u32 s{S_T + 10}, s{S_T}, {KVP_OFF}")
    h_half_late(12, 0)
    e(f"s_mov_b32 s{P_SL}, 0x7ff00000")
    e(f"s_mov_b32 s{P_SL + 1}, 0x7ff00000")
    e("s_waitcnt lgkmcnt(0)")
    e("s_barrier")
    R = [acc(t, m) for t in range(8) for m in (0, 2)]
    for w2 in range(4):
        for j in range(3):
            e(f"ds_read_b128 {vr(R[3 * w2 + j])}, v{vrd} offset:{12288 * w2 + 1024 * j}")
    fe_check()
    e("s_waitcnt lgkmcnt(0)")
    for j in range(3):
        for h2 in range(2):
            b0 = R[j] + 2 * h2
            e(f"v_pk_add_f32 {vr(b0, 2)}, {vr(b0, 2)}, {vr(R[3 + j] + 2 * h2, 2)}")
            e(f"v_pk_add_f32 {vr(R[6 + j] + 2 * h2, 2)}, {vr(R[6 + j] + 2 * h2, 2)}, {vr(R[9 + j] + 2 * h2, 2)}")
        for h2 in range(2):
            b0 = R[j] + 2 * h2
            e(f"v_pk_add_f32 {vr(b0, 2)}, {vr(b0, 2)}, {vr(R[6 + j] + 2 * h2, 2)}")
        a.vmem(f"buffer_store_dwordx4 {vr(R[j])}, v{V_L16}, {WS}, s{S_T + 10} offen offset:{1024 * j} sc1", "sq")
    fin()


def gen_k1():
    a = Asm()
    e = a.e
    a.lines.append(".globl KNAME\n.p2align 8\n.type KNAME,@function\nKNAME:")
    if OPT.get('spin'):
        stamp(a, 0)
    e("s_cmp_ge_u32 s2, 256")
    e("s_cbranch_scc1 L_k1_exit")
    e(f"s_load_dwordx16 s[{S_PTR}:{S_PTR + 15}], s[0:1], 0")
    if OPT.get('cpf') >= 2:
        e(f"s_getpc_b64 s[{S_CB}:{S_CB + 1}]")
        a.label("L_pc_0")
        e(f"s_sub_u32 s{S_CB}, s{S_CB}, L_pc_0-KNAME")
        e(f"s_subb_u32 s{S_CB + 1}, s{S_CB + 1}, 0")
        e(f"s_lshl_b32 s{S_T}, s2, 12")
        e(f"s_and_b32 s{S_T}, s{S_T}, 0x18000")
        e(f"v_lshlrev_b32 v{V_T + 29}, 7, v0")
        e(f"v_add_u32 v{V_T + 29}, s{S_T}, v{V_T + 29}")
        e(f"v_min_u32 v{V_T + 29}, L_code_end-KNAME-4, v{V_T + 29}")
        e(f"global_load_dword v{V_T + 28}, v{V_T + 29}, s[{S_CB}:{S_CB + 1}]")
    e(f"s_load_dwordx4 s[{S_PTR + 16}:{S_PTR + 19}], s[0:1], 64")
    e(f"s_load_dwordx2 s[{S_PTR + 20}:{S_PTR + 21}], s[0:1], 80")
    e(f"v_and_b32 v{V_LANE}, 63, v0")
    e(f"v_lshrrev_b32 v{V_T}, 6, v0")
    e(f"s_and_b32 s{S_T}, s2, 7")
    e(f"v_readfirstlane_b32 s{S_WAVE}, v{V_T}")
    e(f"s_lshr_b32 s{S_T + 1}, s2, 3")
    if OPT.get('map1', 0) == 0:
        e(f"s_and_b32 s{S_RB}, s{S_T}, 1")
        e(f"s_lshl_b32 s{S_RB}, s{S_RB}, 2")
        e(f"s_and_b32 s{S_T + 2}, s{S_T + 1}, 3")
        e(f"s_add_u32 s{S_RB}, s{S_RB}, s{S_T + 2}")
        e(f"s_lshr_b32 s{S_T}, s{S_T}, 1")
        e(f"s_lshl_b32 s{S_T}, s{S_T}, 3")
        e(f"s_lshr_b32 s{S_T + 1}, s{S_T + 1}, 2")
        e(f"s_add_u32 s{S_T}, s{S_T}, s{S_T + 1}")
    elif OPT['map1'] == 1:
        e(f"s_and_b32 s{S_RB}, s{S_T + 1}, 7")
        e(f"s_lshl_b32 s{S_T}, s{S_T}, 2")
        e(f"s_lshr_b32 s{S_T + 1}, s{S_T + 1}, 3")
        e(f"s_add_u32 s{S_T}, s{S_T}, s{S_T + 1}")
    else:
        e(f"s_and_b32 s{S_RB}, s{S_T}, 3")
        e(f"s_lshl_b32 s{S_RB}, s{S_RB}, 1")
        e(f"s_and_b32 s{S_T + 2}, s{S_T + 1}, 1")
        e(f"s_add_u32 s{S_RB}, s{S_RB}, s{S_T + 2}")
        e(f"s_lshr_b32 s{S_T}, s{S_T}, 2")
        e(f"s_lshl_b32 s{S_T}, s{S_T}, 4")
        e(f"s_lshr_b32 s{S_T + 1}, s{S_T + 1}, 1")
        e(f"s_add_u32 s{S_T}, s{S_T}, s{S_T + 1}")
    e(f"s_lshr_b32 s{S_P}, s{S_T}, 1")
    e(f"s_and_b32 s{S_T + 3}, s{S_T}, 1")
    e(f"s_cmp_lg_u32 s{S_T + 3}, 0")
    e("s_cbranch_scc1 L_k1_typeB")
    k1_body(a, 0)
    a.label("L_k1_typeB")
    a.vm = []
    k1_body(a, 1)
    a.vm = []
    phase2(a)
    a.label("L_k1_exit")
    e("s_endpgm")
    a.label("L_code_end")
    return a.lines


def K2_LDS():
    return OPT['S'] * 32768 + 24576


def fold_loops(a, iters, period, scnt, name):
    n = len(iters)
    i = 0
    lab = 0
    while i < n:
        reps = 1
        while i + (reps + 1) * period <= n and all(
                iters[i + k] == iters[i + reps * period + k] for k in range(period)):
            reps += 1
        if reps >= 2:
            a.e(f"s_mov_b32 s{scnt}, {reps}")
            a.label(f"L_{name}_{lab}")
            for k in range(period):
                a.lines += iters[i + k]
            a.e(f"s_sub_u32 s{scnt}, s{scnt}, 1")
            a.e(f"s_cmp_lg_u32 s{scnt}, 0")
            a.e(f"s_cbranch_scc1 L_{name}_{lab}")
            lab += 1
            i += reps * period
        else:
            a.lines += iters[i]
            i += 1


def schedule(a, mf, streams):
    n = len(mf)
    placed = []
    for si, (items, start, end) in enumerate(streams):
        m = len(items)
        prev = 0
        for j, it in enumerate(items):
            fn, early = it if isinstance(it, tuple) else (it, 0)
            pos = start + (j * (end - start)) / max(m, 1)
            pos = max(pos, early, prev)
            prev = pos
            placed.append((pos, si, j, fn))
    placed.sort(key=lambda x: (x[0], x[1], x[2]))
    k = 0
    if n == 0:
        for p in placed:
            p[3]()
        return
    for i in range(n):
        a.e(mf[i])
        while k < len(placed) and placed[k][0] < i + 1:
            placed[k][3]()
            k += 1
    while k < len(placed):
        placed[k][3]()
        k += 1


P_SW2, P_SWO, P_SWS, P_SOUT = 96, 20, 16, 4
P_SMT, P_SNT, P_SROLE, P_STILE = 8, 9, 10, 11
P_SOA, P_SOB, P_SOP, P_SM0A, P_SM0B = 12, 13, 14, 15, 27
P_SHD, P_SM2, P_SEARLY = 28, 29, 30
P_VBD = 2
P_SLOT = 32768


def tile_decode(a, smt, snt, srole, stile, st):
    e = a.e
    e(f"s_and_b32 s{st}, s2, 7")
    e(f"s_lshr_b32 s{st + 1}, s2, 3")
    e(f"s_and_b32 s{srole}, s{st}, 1")
    if OPT.get('rsw'):
        e(f"s_xor_b32 s{srole}, s{srole}, 1")
    e(f"s_lshr_b32 s{st}, s{st}, 1")
    if OPT['map'] == 0:
        e(f"s_and_b32 s{smt}, s{st}, 1")
        e(f"s_lshl_b32 s{smt}, s{smt}, 3")
        e(f"s_and_b32 s{stile}, s{st + 1}, 7")
        e(f"s_add_u32 s{smt}, s{smt}, s{stile}")
        e(f"s_lshr_b32 s{snt}, s{st}, 1")
        e(f"s_lshl_b32 s{snt}, s{snt}, 2")
        e(f"s_lshr_b32 s{st + 1}, s{st + 1}, 3")
        e(f"s_add_u32 s{snt}, s{snt}, s{st + 1}")
    else:
        e(f"s_lshl_b32 s{smt}, s{st}, 2")
        e(f"s_and_b32 s{stile}, s{st + 1}, 3")
        e(f"s_add_u32 s{smt}, s{smt}, s{stile}")
        e(f"s_lshr_b32 s{snt}, s{st + 1}, 2")
    e(f"s_lshl_b32 s{stile}, s{smt}, 3")
    e(f"s_add_u32 s{stile}, s{stile}, s{snt}")


P_VAD, P_VFA, P_VFL = 8, 9, 10
P_SSA, P_SSB = 31, 32
P_SL = 4


def p2_setrun(a, first_expr, stride):
    e = a.e
    c0, c1 = first_expr
    e(f"s_lshr_b32 s{S_T + 11}, s{S_WAVE}, 1")
    e(f"s_mul_i32 s{S_T + 11}, s{S_T + 11}, {c1}")
    e(f"s_add_u32 s{S_T + 11}, s{S_T + 11}, {c0}")
    return S_T + 11


def p2_math(a):
    e = a.e
    S = OPT['S']
    ST = S_T
    tile_decode(a, P_SMT, P_SNT, P_SROLE, P_STILE, ST)
    vi, vG, t0, t1, t2 = 6, 7, 8, 9, 10
    e(f"v_and_b32 v{vi}, 15, v{V_LANE}")
    e(f"v_lshrrev_b32 v{vG}, 4, v{V_LANE}")
    e(f"s_lshl_b32 s{P_SM0A}, s{S_WAVE}, 12")
    e(f"s_add_u32 s{P_SM0B}, s{P_SM0A}, 16384")
    e(f"s_lshl_b32 s{ST}, s{P_SNT}, 8")
    e(f"s_and_b32 s{ST + 3}, s{S_WAVE}, 1")
    e(f"s_lshl_b32 s{ST + 1}, s{ST + 3}, 15")
    e(f"s_add_u32 s{ST}, s{ST}, s{ST + 1}")
    e(f"v_lshlrev_b32 v{t0}, 11, v{vG}")
    e(f"v_add_u32 v{t0}, s{ST}, v{t0}")
    e(f"v_lshlrev_b32 v{t1}, 1, v{vG}")
    e(f"v_xor_b32 v{t1}, v{t1}, v{vi}")
    for j in range(4):
        if j & 1:
            e(f"v_xor_b32 v{t2}, 8, v{t1}")
            e(f"v_lshlrev_b32 v{t2}, 4, v{t2}")
        else:
            e(f"v_lshlrev_b32 v{t2}, 4, v{t1}")
        e(f"v_add_u32 v{t2}, v{t2}, v{t0}")
        e(f"v_add_u32 v{P_VBD + j}, {j * (8192 - 1024)}, v{t2}")
    e(f"s_mul_i32 s{ST}, s{P_SROLE}, 3")
    e(f"s_lshr_b32 s{ST + 1}, s{S_WAVE}, 1")
    e(f"s_add_u32 s{ST}, s{ST}, s{ST + 1}")
    e(f"s_lshl_b32 s{P_SOB}, s{ST}, 16")
    e(f"s_mul_i32 s{P_SOA}, s{P_SMT}, 144")
    e(f"s_add_u32 s{P_SOA}, s{P_SOA}, s{ST}")
    e(f"s_lshl_b32 s{P_SOA}, s{P_SOA}, 13")
    e(f"s_mov_b32 s{P_SSA}, {7 * 8192}")
    e(f"s_mov_b32 s{P_SSB}, {7 * 65536}")
    e(f"s_lshl_b32 s{ST + 3}, s{ST + 3}, 12")
    e(f"v_add_u32 v{P_VAD}, s{ST + 3}, v{V_L16}")
    e(f"s_lshl_b32 s{ST}, s{P_SMT}, 1")
    e(f"s_add_u32 s{ST}, s{ST}, s{P_SROLE}")
    e(f"s_lshl_b32 s{ST}, s{ST}, 8")
    e(f"s_add_u32 s{ST}, s{ST}, {FE_OFF}")
    e(f"v_and_b32 v{P_VFA}, 31, v{V_LANE}")
    e(f"v_lshlrev_b32 v{P_VFA}, 3, v{P_VFA}")
    e(f"v_add_u32 v{P_VFA}, s{ST}, v{P_VFA}")


def p2_early(a):
    e = a.e
    S = OPT['S']
    ST = S_T
    if not OPT.get('p2m'):
        p2_math(a)
    srd(a, ST + 4, S_PTR + 18, S_PTR + 19, 256)
    e(f"v_mov_b32 v12, 0")
    a.vmem(f"buffer_load_dwordx2 v[{V_TOK}:{V_TOK + 1}], v12, s[{ST + 4}:{ST + 7}], 0 offen sc1", "zc")
    for j in range(S - 1):
        e(f"s_add_u32 m0, s{P_SM0B}, {j * P_SLOT}")
        e("s_nop 0")
        for i in range(4):
            a.vmem(f"buffer_load_dwordx4 v{P_VBD + i}, s[{P_SW2}:{P_SW2 + 3}], s{P_SOB} offen offset:{1024 * i} lds", "eB")
        e(f"s_add_u32 s{P_SOB}, s{P_SOB}, s{P_SSB}")


def p2_issueA(a):
    e = a.e
    for j in range(OPT['S'] - 1):
        e(f"s_add_u32 m0, s{P_SM0A}, {j * P_SLOT}")
        e("s_nop 0")
        for i in range(4):
            e(f"buffer_load_dwordx4 v{P_VAD}, s[{P_SWS}:{P_SWS + 3}], s{P_SOA} offen offset:{1024 * i} {OPT['k2a']} lds")
        e(f"s_add_u32 s{P_SOA}, s{P_SOA}, s{P_SSA}")


def phase2(a):
    e = a.e
    S = OPT['S']
    n0 = OPT['n0']
    SLOT = P_SLOT
    SCR = S * SLOT
    SWAVE = S_WAVE
    ST = S_T
    SCNT = S_CNT
    SMT, SNT, SROLE, STILE = P_SMT, P_SNT, P_SROLE, P_STILE
    SOA, SOB, SOP, SM0A, SM0B = P_SOA, P_SOB, P_SOP, P_SM0A, P_SM0B
    SW2, SWO, SOUT = P_SW2, P_SWO, P_SOUT
    WS = f"s[{P_SWS}:{P_SWS + 3}]"
    NBASE = (S + 1) // 2
    VL, VL16, VBD = V_LANE, V_L16, P_VBD
    vi, vG = 6, 7
    VZ = 11
    VAD = 8
    VFL = 10
    VFA = 9
    VAR = 12
    VBR = 18
    VT = 30
    VG = 38
    VOMG = 42
    VEPS = 46
    VEPS = 48
    CG = 52
    CR = 60
    CKV = 68
    CW = 80
    VX = 192
    VY = 84
    AC = 128
    t0, t1, t2, t3 = VT, VT + 1, VT + 2, VT + 3

    def acc2(mt, nt):
        return AC + 16 * mt + 4 * nt

    def FA(j, b, mt):
        return 64 * (j % 2) + 32 * b + 4 * mt

    def FB(j, b, nt):
        return 64 * (j % 2) + 32 * b + 16 + 4 * nt

    def setflag(*lanes):
        e(f"s_mov_b64 exec, {sum(1 << l for l in lanes)}")
        a.vmem(f"buffer_store_dwordx2 v[{V_TOK}:{V_TOK + 1}], v0, {WS}, 0 offen sc1", "fl")
        e("s_mov_b64 exec, -1")

    VQ = 120
    VH = 16

    def fq_load():
        a.vmem(f"buffer_load_dwordx2 v[{VQ}:{VQ + 1}], v{VQ + 2}, {WS}, 0 offen sc1", "fq")

    a.label("L_p2_late")
    e(f"buffer_load_dwordx2 v[{VFL}:{VFL + 1}], v{VFA}, {WS}, 0 offen sc1")
    e("s_waitcnt vmcnt(0)")
    e(f"v_cmp_eq_u64 vcc, v[{VFL}:{VFL + 1}], v[{V_TOK}:{V_TOK + 1}]")
    e("s_nop 1")
    e("s_cmp_eq_u64 vcc, -1")
    e("s_cbranch_scc1 L_p2_fok")
    e("s_add_u32 s3, s3, 1")
    e("s_cmp_gt_u32 s3, 0x40000")
    e("s_cbranch_scc1 L_p2_fok")
    e(f"s_sleep {OPT.get('slp', 4)}")
    e("s_branch L_p2_late")
    a.label("L_p2_fok")
    p2_issueA(a)
    e("s_waitcnt vmcnt(0)")
    a.label("L_p2_go")
    stamp(a, 0)
    a.vm = ["old"]
    e(f"s_and_b32 s{ST}, s{SWAVE}, 1")
    e(f"s_lshl_b32 s{ST}, s{ST}, 12")
    e(f"v_add_u32 v{VAR}, s{ST}, v{VL16}")
    for k in range(1, NBASE):
        e(f"v_add_u32 v{VAR + k}, {65536 * k}, v{VAR}")
    e(f"v_lshlrev_b32 v{t0}, 2, v{vG}")
    e(f"v_lshrrev_b32 v{t1}, 2, v{vi}")
    e(f"v_add_u32 v{t0}, v{t0}, v{t1}")
    e(f"v_and_b32 v{t1}, 7, v{t0}")
    e(f"s_lshr_b32 s{ST}, s{SWAVE}, 1")
    e(f"s_lshl_b32 s{ST}, s{ST}, 2")
    e(f"v_xor_b32 v{t1}, s{ST}, v{t1}")
    e(f"v_lshlrev_b32 v{t0}, 8, v{t0}")
    e(f"v_and_b32 v{t2}, 3, v{vi}")
    e(f"v_lshlrev_b32 v{t2}, 3, v{t2}")
    e(f"v_add_u32 v{t0}, v{t0}, v{t2}")
    e(f"v_add_u32 v{t0}, 16384, v{t0}")
    for nt in range(4):
        e(f"v_xor_b32 v{t3}, {nt}, v{t1}")
        e(f"v_lshlrev_b32 v{t3}, 5, v{t3}")
        e(f"v_add_u32 v{VBR + nt}, v{t0}, v{t3}")
        for k in range(1, NBASE):
            e(f"v_add_u32 v{VBR + 4 * k + nt}, {65536 * k}, v{VBR + nt}")
    VBW = 26
    e(f"v_add_u32 v{VBW}, s{SM0B}, v{VL16}")
    e(f"v_add_u32 v{VBW + 1}, 65536, v{VBW}")
    e(f"v_and_b32 v{t0}, 1, v{vG}")
    e(f"v_lshlrev_b32 v{t0}, 10, v{t0}")
    e(f"v_lshrrev_b32 v{t1}, 1, v{vG}")
    e(f"v_lshlrev_b32 v{t1}, 8, v{t1}")
    e(f"v_lshlrev_b32 v{VH}, 4, v{vi}")
    e(f"v_add3_u32 v{VH}, v{VH}, v{t0}, v{t1}")
    stamp(a, 1)
    e(f"s_cmp_eq_u32 s{SROLE}, 0")
    e(f"s_cbranch_scc1 L_p2_r0")
    vm_save = list(a.vm)

    import math
    PERIOD = S * 4 // math.gcd(S, 4)

    def body(role):
        R = f"r{role}"
        o0 = OPT.get('o0', 5)
        na0 = n0 - o0
        assert 16 < na0 <= 32 and 5 <= o0 <= 11
        nact = na0 if role == 0 else 56 - na0
        N = nact + (o0 if role == 0 else 16 - o0)
        JO = nact - (S - 1)
        JP = N - OPT['pj']
        if role == 0:
            runs = {16: (5, 1, 7)}
        else:
            nl1 = 32 - na0
            runs = {16 + nl1: (2, 7, 14)}
            if nl1:
                runs[16] = (5 + 7 * (na0 - 16), 1, 7)

        def bperm(op):
            e(f"s_and_b32 s{ST + 9}, s{SWAVE}, 1")
            e(f"s_mul_i32 s{ST + 9}, s{ST + 9}, {-12 * 2048}")
            for j4 in range(4):
                e(f"{op} v{VBD + j4}, s{ST + 9}, v{VBD + j4}")
                if j4 < 3:
                    e(f"s_add_u32 s{ST + 9}, s{ST + 9}, {4 * 2048}")

        def newrun(j):
            if j == nact:
                def sw():
                    e(f"s_lshr_b32 s{ST + 11}, s{SWAVE}, 1")
                    if role:
                        e(f"s_add_u32 s{ST + 11}, s{ST + 11}, {2 * o0}")
                    e(f"s_lshl_b32 s{SOB}, s{ST + 11}, 16")
                    e(f"s_lshl_b32 s{SOA}, s{SMT}, 5")
                    e(f"s_add_u32 s{SOA}, s{SOA}, s{ST + 11}")
                    e(f"s_lshl_b32 s{SOA}, s{SOA}, 13")
                    e(f"s_add_u32 s{SOA}, s{SOA}, {OF_OFF}")
                    e(f"s_mov_b32 s{P_SSA}, 16384")
                    e(f"s_mov_b32 s{P_SSB}, 131072")
                    if role == 1:
                        bperm("v_subrev_u32")
                return [sw]
            if j in runs:
                c0, c1, st_ = runs[j]

                def sw():
                    r = p2_setrun(a, (c0, c1), st_)
                    e(f"s_lshl_b32 s{SOB}, s{r}, 16")
                    e(f"s_mul_i32 s{SOA}, s{SMT}, 144")
                    e(f"s_add_u32 s{SOA}, s{SOA}, s{r}")
                    e(f"s_lshl_b32 s{SOA}, s{SOA}, 13")
                    e(f"s_mov_b32 s{P_SSA}, {st_ * 8192}")
                    e(f"s_mov_b32 s{P_SSB}, {st_ * 65536}")
                    if st_ == 14:
                        bperm("v_add_u32")
                return [sw]
            return []

        def dmaA(j):
            f = newrun(j)
            f.append(lambda: e(f"s_add_u32 m0, s{SM0A}, {(j % S) * SLOT}"))
            for i in range(4):
                f.append(lambda i=i: a.vmem(
                    f"buffer_load_dwordx4 v{VAD}, {WS}, s{SOA} offen offset:{1024 * i} {OPT['k2a']} lds", f"D{j}"))
            f.append(lambda: e(f"s_add_u32 s{SOA}, s{SOA}, s{P_SSA}"))
            return f

        def dmaB(j):
            sr = SW2 if j < nact else SWO
            f = []
            k = j - (S - 1)
            if 0 <= k < OPT.get('pb', 0):
                sl = j % S
                for i in range(4):
                    f.append(lambda i=i: e(
                        f"ds_write_b128 v{VBW + sl // 2}, {ar(128 + 16 * k + 4 * i)} offset:{(sl % 2) * SLOT + 1024 * i}"))
                return f
            f.append(lambda: e(f"s_add_u32 m0, s{SM0B}, {(j % S) * SLOT}"))
            for i in range(4):
                f.append(lambda i=i: a.vmem(
                    f"buffer_load_dwordx4 v{VBD + i}, s[{sr}:{sr + 3}], s{SOB} offen offset:{1024 * i} lds", f"D{j}"))
            f.append(lambda: e(f"s_add_u32 s{SOB}, s{SOB}, s{P_SSB}"))
            return f

        def reads(j):
            sl = j % S
            k, so = sl // 2, (sl % 2) * SLOT
            f = []
            for q in range(4):
                for b in range(2):
                    f.append(lambda b=b, q=q: e(
                        f"ds_read_b128 {ar(FA(j, b, q))}, v{VAR + k} offset:{so + 8192 * b + 1024 * q}"))
                    for ins in range(2):
                        f.append(lambda b=b, q=q, ins=ins: e(
                            f"ds_read_b64_tr_b16 {ar(FB(j, b, q) + 2 * ins, 2)}, v{VBR + 4 * k + q} offset:{so + 8192 * b + 4096 * ins}"))
            return f

        late = []
        for mp in range(2):
            late.append(f"buffer_store_dwordx4 {vr(240 + 4 * mp)}, v{VH}, {WS}, s{P_SL + 2} offen offset:{2048 * mp} sc1")
        for g_, base in enumerate((192, 224)):
            for mt in range(4):
                late.append(f"buffer_store_dwordx4 {vr(base + 4 * mt)}, v{VL16}, {WS}, s{P_SL + g_} offen offset:{1024 * mt} sc1")
        TR = OPT.get('tr', 3)
        TRS = OPT.get('trs', 0)
        NTR = -(-10 // TR) + TRS
        JFQ = OPT.get('jfq', 2)

        e("s_barrier")
        stamp(a, 2)
        VK = 48
        PD, PO, PEPS, PR = 48, 96, 112, 116

        def poll(lab, vv, reload):
            a.label(f"L_p2{R}_{lab}w")
            e(f"v_cmp_eq_u64 vcc, v[{vv}:{vv + 1}], v[{V_TOK}:{V_TOK + 1}]")
            e("s_nop 1")
            e("s_cmp_eq_u64 vcc, -1")
            e(f"s_cbranch_scc1 L_p2{R}_{lab}ok")
            e("s_add_u32 s3, s3, 1")
            e("s_cmp_gt_u32 s3, 0x40000")
            e(f"s_cbranch_scc1 L_p2{R}_{lab}ok")
            e("s_sleep 4")
            sv = list(a.vm)
            reload()
            a.vm = sv
            e("s_waitcnt vmcnt(0)")
            e(f"s_branch L_p2{R}_{lab}w")
            a.label(f"L_p2{R}_{lab}ok")

        def fl_load(tag="F"):
            a.vmem(f"buffer_load_dwordx2 v[{VFL}:{VFL + 1}], v{VFA}, {WS}, 0 offen sc1", tag)

        def red_guard(lab):
            e(f"s_cmp_eq_u32 s{P_SEARLY}, 0")
            e(f"s_cbranch_scc1 L_p2{R}_{lab}")

        J1 = OPT.get('j1', 4)
        J2 = OPT.get('j2', 12)

        def pre(j):
            if j == JFQ:
                a.wait(["old"])
            if j == NTR + 2:
                a.wait(["sl"])
            if j == 16 - S + 1:
                a.wait(["FL"])
                poll("l", VFL, fl_load)
            if j == J2 + 2:
                a.wait(["fq"])
                poll("k", VQ, fq_load)
            if j == J2 + 4:
                a.wait(["pq"])
            if j == J2 + 8:
                a.wait(["ost"])
            if j == JO:
                a.wait(["F"])
                poll("o", VFL, fl_load)
            if role == 1 and j == JP:
                a.wait(["F2"])
                poll("p", VFL, fl_load)

        def extra(j):
            if j == JFQ:
                setflag(1)
            if j == J1:
                e(f"s_and_b32 s{ST}, s2, 3")
                e(f"s_cmp_eq_u32 s{ST}, s{SWAVE}")
                e(f"s_cselect_b32 s{P_SEARLY}, 1, 0")
                e(f"s_cmp_lt_u32 s2, 192")
                e(f"s_cselect_b32 s{P_SEARLY}, s{P_SEARLY}, 0")
                e(f"s_mul_i32 s{P_SHD}, s2, 171")
                e(f"s_lshr_b32 s{P_SHD}, s{P_SHD}, 10")
                e(f"s_min_u32 s{P_SHD}, s{P_SHD}, 31")
                e(f"s_lshr_b32 s{ST}, s{P_SHD}, 1")
                e(f"s_lshl_b32 s{ST}, s{ST}, 9")
                e(f"s_add_u32 s{ST}, s{ST}, {FQ_OFF}")
                e(f"v_and_b32 v{VQ + 2}, 31, v{VL}")
                e(f"v_lshlrev_b32 v{VQ + 2}, 3, v{VQ + 2}")
                e(f"v_add_u32 v{VQ + 2}, s{ST}, v{VQ + 2}")
                fq_load()
            if j == NTR + 2:
                setflag(4)
                srd(a, SOUT, S_PTR + 16, S_PTR + 17, 2048 * 1024 * 2)
            if j == 16 - S - 1:
                e(f"s_lshl_b32 s{ST}, s{SMT}, 9")
                e(f"s_add_u32 s{ST}, s{ST}, {FA_OFF}")
                e(f"v_lshlrev_b32 v{VFA}, 3, v{VL}")
                e(f"v_add_u32 v{VFA}, s{ST}, v{VFA}")
                fl_load("FL")
            if j == 16 - S + 2:
                e(f"v_lshlrev_b32 v{t1}, 2, v{vi}")
                e(f"s_lshl_b32 s{ST}, s{SMT}, 9")
                e(f"s_and_b32 s{ST + 1}, s{SWAVE}, 1")
                e(f"s_lshl_b32 s{ST + 1}, s{ST + 1}, 8")
                e(f"s_add_u32 s{ST}, s{ST}, s{ST + 1}")
                e(f"s_add_u32 s{ST}, s{ST}, {G_OFF}")
                for i in range(4):
                    a.vmem(f"buffer_load_dword v{VG + i}, v{t1}, {WS}, s{ST} offen offset:{64 * i}", "g")
            if j == J2:
                e(f"s_and_b32 s{P_SHD}, s2, 31")
                e(f"s_lshr_b32 s{P_SM2}, s2, 5")
                e(f"s_lshr_b32 s{ST}, s{P_SHD}, 1")
                e(f"s_lshl_b32 s{ST}, s{ST}, 4")
                e(f"s_add_u32 s{ST}, s{ST}, s{P_SM2}")
                e(f"s_lshl_b32 s{ST}, s{ST}, 2")
                e(f"s_add_u32 s{ST}, s{ST}, s{SWAVE}")
                e(f"s_lshl_b32 s{ST}, s{ST}, 3")
                e(f"s_add_u32 s{ST}, s{ST}, {FQ_OFF + 256}")
                e(f"s_lshl_b32 s{ST + 1}, s{P_SHD}, 6")
                e(f"s_add_u32 s{ST + 1}, s{ST + 1}, {FK_OFF}")
                e(f"v_lshlrev_b32 v{VQ + 2}, 3, v{VL}")
                e(f"v_add_u32 v{VQ + 2}, s{ST + 1}, v{VQ + 2}")
                e(f"v_mov_b32 v{t0}, s{ST}")
                e(f"v_cmp_gt_u32 s[{ST + 2}:{ST + 3}], 6, v{VL}")
                e("s_nop 1")
                e(f"v_cndmask_b32 v{VQ + 2}, v{t0}, v{VQ + 2}, s[{ST + 2}:{ST + 3}]")
                e(f"s_lshl_b32 s{P_SM2}, s{P_SM2}, 1")
                e(f"s_lshr_b32 s{ST}, s{SWAVE}, 1")
                e(f"s_add_u32 s{P_SM2}, s{P_SM2}, s{ST}")
                fq_load()
            if j == J2 + 2:
                e(f"s_mul_i32 s{ST}, s{P_SHD}, 3072")
                e(f"s_add_u32 s{ST}, s{ST}, {KVF_OFF}")
                e(f"v_lshlrev_b32 v{t0}, 3, v{VL}")
                for i in range(6):
                    a.vmem(f"buffer_load_dwordx2 {ar(144 + 2 * i, 2)}, v{t0}, {WS}, s{ST} offen offset:{512 * i}", "pq")
                e(f"s_mul_i32 s{ST}, s{P_SM2}, 144")
                e(f"s_add_u32 s{ST}, s{ST}, s{P_SHD}")
                e(f"s_add_u32 s{ST}, s{ST}, 112")
                e(f"s_lshl_b32 s{ST}, s{ST}, 13")
                for i in range(4):
                    a.vmem(f"buffer_load_dwordx4 {ar(128 + 4 * i)}, v{VAD}, {WS}, s{ST} offen offset:{1024 * i}", "pq")
                e(f"s_lshl_b32 s{SOP}, s{P_SM2}, 5")
                e(f"s_add_u32 s{SOP}, s{SOP}, s{P_SHD}")
                e(f"s_lshl_b32 s{SOP}, s{SOP}, 13")
                e(f"s_add_u32 s{SOP}, s{SOP}, {OF_OFF}")
                for r in range(4):
                    e(f"v_mov_b32 v{PEPS + r}, {EPS_HEX}")
            if j == J2 + 5:
                for i in range(4):
                    e(f"v_rcp_f32 v{PR + i}, v{PD + 12 * i + 8}")
                e("s_nop 0")
                for i in range(4):
                    d = PD + 12 * i
                    for q in range(8):
                        e(f"v_mul_f32 v{d + q}, v{PR + i}, v{d + q}")
                    o = PO + 4 * i
                    for q in range(4):
                        e(f"v_cvt_pk_bf16_f32 v{o + q}, v{d + 2 * q}, v{d + 2 * q + 1}")
                    a.vmem(f"buffer_store_dwordx4 {vr(o)}, v{VAD}, {WS}, s{SOP} offen offset:{1024 * i} sc1", "ost")
            if j == J2 + 8:
                setflag(2)
            if j == JO - OPT.get('fod', 2):
                assert j > J2 + 8
                e(f"s_lshl_b32 s{ST}, s{SMT}, 9")
                e(f"s_add_u32 s{ST}, s{ST}, {FO_OFF}")
                if role == 0:
                    e(f"v_min_u32 v{VFA}, {4 * o0 - 1}, v{VL}")
                else:
                    e(f"v_max_u32 v{VFA}, {4 * o0}, v{VL}")
                e(f"v_lshlrev_b32 v{VFA}, 3, v{VFA}")
                e(f"v_add_u32 v{VFA}, s{ST}, v{VFA}")
                fl_load("F")
            if role == 1 and j == JP - 1:
                e(f"s_lshl_b32 s{ST}, s{STILE}, 8")
                e(f"s_lshl_b32 s{ST + 1}, s{SWAVE}, 3")
                e(f"s_add_u32 s{ST}, s{ST}, s{ST + 1}")
                e(f"s_add_u32 s{ST}, s{ST}, {FP_OFF}")
                e(f"v_mov_b32 v{VFA}, s{ST}")
                fl_load("F2")
            if role == 1 and j == JP:
                e(f"s_lshl_b32 s{ST}, s{STILE}, 16")
                e(f"s_lshl_b32 s{ST + 1}, s{SWAVE}, 13")
                e(f"s_add_u32 s{ST}, s{ST}, s{ST + 1}")
                e(f"s_add_u32 s{ST}, s{ST}, {PART_OFF}")
                for q in range(8):
                    if q == 4:
                        e(f"s_add_u32 s{ST}, s{ST}, 4096")
                    a.vmem(f"buffer_load_dwordx4 {vr(VY + 4 * q)}, v{VL16}, {WS}, s{ST} offen offset:{1024 * (q & 3)} sc1", "PT")

        def post(j):
            if j == J1 + 1:
                red_guard("nr1")
                n_ = a.vm_count(["fq"], drop=False)
                e(f"s_waitcnt vmcnt({n_})")
                poll("q", VQ, fq_load)
                e(f"s_lshr_b32 s{ST}, s{P_SHD}, 1")
                e(f"s_mul_i32 s{ST}, s{ST}, 84")
                e(f"s_add_u32 s{ST}, s{ST}, s2")
                e(f"s_lshl_b32 s{ST}, s{ST}, 10")
                e(f"s_add_u32 s{ST}, s{ST}, {KVP_OFF}")
                for r8 in range(8):
                    e(f"buffer_load_dwordx4 {vr(VK + 4 * r8)}, v{VL16}, {WS}, s{ST} offen")
                    if r8 < 7:
                        e(f"s_add_u32 s{ST}, s{ST}, 12288")
                a.label(f"L_p2{R}_nr1")
                a.mark("r1")
            if j == J1 + 3:
                red_guard("nr2")
                n_ = a.vm_count(["#r1"], drop=False)
                if n_ is not None:
                    e(f"s_waitcnt vmcnt({n_})")
                for st_ in (1, 2, 4):
                    for r8 in range(0, 8, 2 * st_):
                        for q in range(2):
                            b0 = VK + 4 * r8 + 2 * q
                            e(f"v_pk_add_f32 {vr(b0, 2)}, {vr(b0, 2)}, {vr(b0 + 4 * st_, 2)}")
                e(f"v_cvt_pk_bf16_f32 v{VK}, v{VK}, v{VK + 1}")
                e(f"v_cvt_pk_bf16_f32 v{VK + 1}, v{VK + 2}, v{VK + 3}")
                e(f"s_mul_i32 s{ST}, s{P_SHD}, 6")
                e(f"s_sub_u32 s{ST}, s2, s{ST}")
                e(f"s_cmp_ge_u32 s{ST}, 3")
                e(f"s_cselect_b32 s{ST + 1}, 1, 0")
                e(f"s_mul_i32 s{ST + 2}, s{ST + 1}, 3")
                e(f"s_sub_u32 s{ST}, s{ST}, s{ST + 2}")
                e(f"s_mul_i32 s{ST + 2}, s{P_SHD}, 3")
                e(f"s_add_u32 s{ST}, s{ST}, s{ST + 2}")
                e(f"s_lshl_b32 s{ST}, s{ST}, 10")
                e(f"s_lshl_b32 s{ST + 1}, s{ST + 1}, 9")
                e(f"s_add_u32 s{ST}, s{ST}, s{ST + 1}")
                e(f"s_add_u32 s{ST}, s{ST}, {KVF_OFF}")
                e(f"v_lshlrev_b32 v{t0}, 3, v{VL}")
                e(f"buffer_store_dwordx2 {vr(VK, 2)}, v{t0}, {WS}, s{ST} offen sc1")
                a.label(f"L_p2{R}_nr2")
                a.mark("r2")
            if j == J1 + 5:
                red_guard("nr3")
                n_ = a.vm_count(["#r2"], drop=False)
                if n_ is not None:
                    e(f"s_waitcnt vmcnt({n_})")
                e(f"s_mov_b64 exec, {1 << 5}")
                e(f"buffer_store_dwordx2 v[{V_TOK}:{V_TOK + 1}], v0, {WS}, 0 offen sc1")
                e("s_mov_b64 exec, -1")
                a.label(f"L_p2{R}_nr3")

        def interval(j):
            if DIAG and OPT.get('ts2'):
                if j == 0:
                    e("s_mov_b32 s74, 0")
                e("s_memrealtime s[76:77]")
                e("s_waitcnt lgkmcnt(0)")
                e("s_mov_b32 m0, s74")
                e("s_nop 0")
                e(f"v_writelane_b32 v{VT + 7}, s76, m0")
                e("s_add_u32 s74, s74, 1")
            main = []
            if j >= 1:
                for mt in range(4):
                    for nt in range(4):
                        D = vr(acc2(mt, nt) + (64 if j - 1 >= nact else 0))
                        for b in range(2):
                            C = "0" if (j in (1, nact + 1) and b == 0) else D
                            main.append(f"v_mfma_f32_16x16x32_bf16 {D}, {ar(FB(j - 1, b, nt))}, {ar(FA(j - 1, b, mt))}, {C}")
            pre(j)
            if j == J2 + 4:
                pm = []
                for i in range(4):
                    d = PD + 12 * i
                    pq = ar(128 + 4 * i)
                    pm += [f"v_mfma_f32_16x16x32_bf16 {vr(d + 8)}, {ar(152)}, {pq}, {vr(PEPS)}",
                           f"v_mfma_f32_16x16x32_bf16 {vr(d)}, {ar(144)}, {pq}, 0",
                           f"v_mfma_f32_16x16x32_bf16 {vr(d + 4)}, {ar(148)}, {pq}, 0"]
                main = pm + main
            rd = reads(j) if j < N else []
            dm = (dmaA(j + S - 1) + dmaB(j + S - 1)) if j + S - 1 < N else []
            for x in (late[TR * (j - TRS): TR * (j - TRS) + TR] if j >= TRS else []):
                dm.append(lambda x=x: a.vmem(x, "sl"))
            streams = []
            if nact + 1 <= j <= nact + 4:
                mt = j - (nact + 1)
                it = []
                if mt == 0:
                    a.wait(["g"])
                it.append(lambda mt=mt: e(f"v_sub_f32 v{VOMG + mt}, 1.0, v{VG + mt}"))
                for q in range(16):
                    it.append(lambda mt=mt, q=q: e(f"v_mul_f32 v{acc2(mt, 0) + q}, v{VOMG + mt}, v{acc2(mt, 0) + q}"))
                streams.append((it, 10, 30))
            n = max(len(main), 1)
            ex = capture(a, lambda: extra(j), chunk=1)
            if ex:
                streams.append((ex, 1, min(n * 0.97, 1 + 1.2 * len(ex))))
            schedule(a, main, [(rd, 0, n * 0.85), (dm, 0.5, n * 0.95)] + streams)
            post(j)
            if j < N:
                a.wait([f"D{j + 1}"] if j + 1 < N else [], lgkm=True)
                if j + 1 < N:
                    e("s_barrier")

        iters = []
        for j in range(N + 1):
            n_ = len(a.lines)
            if j == 4:
                stamp(a, 3)
            if j == nact:
                stamp(a, 4)
            interval(j)
            iters.append(a.lines[n_:])
            del a.lines[n_:]
        fold_loops(a, iters, PERIOD, SCNT, f"p2{R}")
        stamp(a, 5)
        if role == 0:
            e(f"s_lshl_b32 s{ST}, s{STILE}, 16")
            e(f"s_lshl_b32 s{ST + 1}, s{SWAVE}, 13")
            e(f"s_add_u32 s{ST}, s{ST}, s{ST + 1}")
            e(f"s_add_u32 s{ST}, s{ST}, {PART_OFF}")
            e("s_nop 7")
        else:
            vo = VT + 4
            if OPT.get('fl'):
                e(f"v_and_b32 v{t2}, 7, v{vi}")
                e(f"v_lshlrev_b32 v{t2}, 11, v{t2}")
                e(f"v_lshrrev_b32 v{t3}, 3, v{vi}")
                e(f"v_lshlrev_b32 v{t3}, 6, v{t3}")
                e(f"v_add_u32 v{t2}, v{t2}, v{t3}")
            else:
                e(f"v_lshlrev_b32 v{t2}, 11, v{vi}")
            e(f"v_bfe_u32 v{t3}, v{VL}, 4, 1")
            e(f"v_lshlrev_b32 v{t3}, 5, v{t3}")
            e(f"v_add_u32 v{t2}, v{t2}, v{t3}")
            e(f"v_lshrrev_b32 v{t3}, 5, v{VL}")
            e(f"v_lshlrev_b32 v{t3}, 4, v{t3}")
            e(f"v_add_u32 v{vo}, v{t2}, v{t3}")
            e(f"v_add_u32 v{vo + 1}, 16384, v{vo}")
            e(f"s_lshl_b32 s{ST}, s{SMT}, 7")
            e(f"s_and_b32 s{ST + 1}, s{SWAVE}, 1")
            e(f"s_lshl_b32 s{ST + 1}, s{ST + 1}, 6")
            e(f"s_add_u32 s{ST}, s{ST}, s{ST + 1}")
            e(f"s_lshl_b32 s{ST}, s{ST}, 11")
            e(f"s_lshl_b32 s{ST + 1}, s{SNT}, 8")
            e(f"s_add_u32 s{ST}, s{ST}, s{ST + 1}")
            e(f"s_lshr_b32 s{ST + 1}, s{SWAVE}, 1")
            e(f"s_lshl_b32 s{ST + 1}, s{ST + 1}, 7")
            e(f"s_add_u32 s{ST}, s{ST}, s{ST + 1}")
            if OPT.get('fl') == 2:
                vw_, vr_ = 116, 118
                e(f"s_lshl_b32 s{ST + 1}, s{SWAVE}, 13")
                e(f"s_add_u32 s{ST + 1}, s{ST + 1}, {((N - 2) % S) * SLOT}")
                e(f"v_and_b32 v{t0}, 1, v{vG}")
                e(f"v_lshlrev_b32 v{t0}, 1, v{t0}")
                e(f"v_lshrrev_b32 v{t1}, 1, v{vG}")
                e(f"v_add_u32 v{t0}, v{t0}, v{t1}")
                e(f"v_and_b32 v{t1}, 7, v{vi}")
                e(f"v_xor_b32 v{t0}, v{t0}, v{t1}")
                e(f"v_lshlrev_b32 v{t1}, 7, v{vi}")
                e(f"v_add_u32 v{t1}, s{ST + 1}, v{t1}")
                e(f"v_lshlrev_b32 v{t2}, 4, v{t0}")
                e(f"v_add_u32 v{vw_}, v{t1}, v{t2}")
                e(f"v_xor_b32 v{t2}, 64, v{t2}")
                e(f"v_add_u32 v{vw_ + 1}, v{t1}, v{t2}")
                e(f"v_lshrrev_b32 v{t0}, 3, v{VL}")
                e(f"v_and_b32 v{t1}, 7, v{VL}")
                e(f"v_xor_b32 v{t2}, v{t0}, v{t1}")
                e(f"v_lshlrev_b32 v{t2}, 4, v{t2}")
                e(f"v_lshlrev_b32 v{t3}, 7, v{t0}")
                e(f"v_add3_u32 v{vr_}, v{t2}, v{t3}, s{ST + 1}")
                e(f"v_lshlrev_b32 v{t0}, 11, v{t0}")
                e(f"v_lshlrev_b32 v{t1}, 4, v{t1}")
                e(f"v_add_u32 v{vo}, v{t0}, v{t1}")
            a.wait(["PT"])
        for mt in range(4):
            sel = "op_sel:[1,0,0] op_sel_hi:[1,1,1]" if mt & 1 else "op_sel_hi:[0,1,1]"
            for q in range(8):
                b0 = acc2(mt, 0) + 2 * q
                e(f"v_pk_fma_f32 {vr(b0, 2)}, {vr(VG + (mt & 2), 2)}, {vr(b0 + 64, 2)}, {vr(b0, 2)} {sel}")
            if role == 0:
                for h2 in range(2):
                    q = 2 * mt + h2
                    b0 = AC + 8 * q
                    for r in range(4):
                        e(f"v_cvt_pk_bf16_f32 v{b0 + r}, v{b0 + 2 * r}, v{b0 + 2 * r + 1}")
                    e(f"buffer_store_dwordx4 {vr(b0)}, v{VL16}, {WS}, s{ST} offen offset:{1024 * (q & 3)} sc1")
                    if q == 3:
                        e(f"s_add_u32 s{ST}, s{ST}, 4096")
            else:
                for q in range(8):
                    p0 = VY + 8 * mt + q
                    u = 48 + 2 * q
                    e(f"v_lshlrev_b32 v{u}, 16, v{p0}")
                    e(f"v_and_b32 v{u + 1}, 0xffff0000, v{p0}")
                for q in range(8):
                    b0 = acc2(mt, 0) + 2 * q
                    e(f"v_pk_add_f32 {vr(b0, 2)}, {vr(b0, 2)}, {vr(48 + 2 * q, 2)}")
                for pr in range(2):
                    b0 = acc2(mt, 2 * pr)
                    for q in range(4):
                        e(f"v_cvt_pk_bf16_f32 v{b0 + q}, v{b0 + 2 * q}, v{b0 + 2 * q + 1}")
                e("s_nop 1")
                for pr in range(2):
                    b0 = acc2(mt, 2 * pr)
                    e(f"v_permlane16_swap_b32 v{b0}, v{b0 + 2}")
                    e(f"v_permlane16_swap_b32 v{b0 + 1}, v{b0 + 3}")
                if OPT.get('fl') == 2:
                    for pr in range(2):
                        e(f"ds_write_b128 v{vw_ + pr}, {vr(acc2(mt, 2 * pr))} offset:{2048 * mt}")
                    continue
                elif OPT.get('fl'):
                    q0, q1 = acc2(mt, 0), acc2(mt, 2)
                    tq = q0 + 4
                    for r in range(4):
                        e(f"v_mov_b32 v{tq + r}, v{q0 + r}")
                    for r in range(4):
                        e(f"v_mov_b32_dpp v{q0 + r}, v{q1 + r} row_ror:8 row_mask:0xf bank_mask:0xc")
                    for r in range(4):
                        e(f"v_mov_b32_dpp v{q1 + r}, v{tq + r} row_ror:8 row_mask:0xf bank_mask:0x3")
                    e(f"buffer_store_dwordx4 {vr(q0)}, v{vo}, s[{SOUT}:{SOUT + 3}], s{ST} offen {OPT.get('ost', '')}")
                    e(f"buffer_store_dwordx4 {vr(q1)}, v{vo + 1}, s[{SOUT}:{SOUT + 3}], s{ST} offen {OPT.get('ost', '')}")
                else:
                    for pr in range(2):
                        b0 = acc2(mt, 2 * pr)
                        e(f"buffer_store_dwordx4 {vr(b0)}, v{vo}, s[{SOUT}:{SOUT + 3}], s{ST} offen offset:{64 * pr} {OPT.get('ost', '')}")
                if mt < 3:
                    e(f"s_add_u32 s{ST}, s{ST}, 32768")
        if role == 1 and OPT.get('fl') == 2:
            e("s_waitcnt lgkmcnt(0)")
            for q in range(8):
                e(f"ds_read_b128 {vr(AC + 64 + 4 * q)}, v{vr_} offset:{1024 * q}")
            for q in range(8):
                e(f"s_waitcnt lgkmcnt({7 - q})")
                e(f"buffer_store_dwordx4 {vr(AC + 64 + 4 * q)}, v{vo}, s[{SOUT}:{SOUT + 3}], s{ST} offen {OPT.get('ost', '')}")
                if q < 7:
                    e(f"s_add_u32 s{ST}, s{ST}, 16384")
        if role == 0:
            e("s_waitcnt vmcnt(0)")
            setflag(3)
        stamp(a, 6)
        if DIAG and OPT.get('ts2'):
            e(f"s_mov_b32 s76, s{S_PTR + 20}")
            e(f"s_and_b32 s77, s{S_PTR + 21}, 0xffff")
            e(f"s_mov_b32 s78, 0x4000000")
            e(f"s_mov_b32 s79, 0x20000")
            e(f"s_lshl_b32 s75, s2, 2")
            e(f"s_add_u32 s75, s75, s{S_WAVE}")
            e(f"s_lshl_b32 s75, s75, 8")
            e(f"s_add_u32 s75, s75, {DIAG_OFF + 0x200000}")
            e(f"v_lshlrev_b32 v{VT}, 2, v{VL}")
            e(f"buffer_store_dword v{VT + 7}, v{VT}, s[76:79], s75 offen")
        if DIAG:
            e("s_waitcnt vmcnt(0)")
        stamp(a, 7)
        stamp_dump(a, 1, 8, SWAVE, S_PTR + 20, S_PTR + 21, VT + 5)
        e("s_endpgm")

    body(1)
    a.label("L_p2_r0")
    a.vm = vm_save
    body(0)


def fix_hazards(lines):
    out = []
    for i, ln in enumerate(lines):
        out.append(ln)
        if " m0," in ln and i + 1 < len(lines) and lines[i + 1].rstrip().endswith("lds"):
            out.append("  s_nop 0")
    return out


def gen_spin():
    a = Asm()
    e = a.e
    spec = OPT['spin']
    A_, B_, M = spec.split(",")
    a.lines.append(".globl spin_kernel\n.p2align 8\n.type spin_kernel,@function\nspin_kernel:")
    e("s_cmp_lg_u32 s2, 0")
    e("s_cbranch_scc1 L_spin_end")
    e("s_load_dwordx2 s[4:5], s[0:1], 80")
    e("v_lshlrev_b32 v1, 7, v0")
    e("s_waitcnt lgkmcnt(0)")
    e("s_mov_b32 s8, s4\ns_and_b32 s9, s5, 0xffff\ns_mov_b32 s10, 0x4000000\ns_mov_b32 s11, 0x20000")

    def red(sp, sdst):
        k, st, op = sp.split(".")
        base = DIAG_OFF + int(k) * 0x100000 + 8 * int(st) + 4
        for i in range(16):
            e(f"s_mov_b32 s12, {base + i * 8192}")
            e(f"buffer_load_dword v{8 + i}, v1, s[8:11], s12 offen")
        e("s_waitcnt vmcnt(0)")
        for i in range(1, 16):
            e(f"v_{op}_u32 v8, v8, v{8 + i}")
        e("s_nop 1")
        e(f"v_readlane_b32 s{sdst}, v8, 0")
        for l in range(1, 64):
            e(f"v_readlane_b32 s13, v8, {l}")
            e("s_nop 0")
            e(f"s_{op}_u32 s{sdst}, s{sdst}, s13")
    red("0.0.min", 20)
    red(A_, 21)
    red(B_, 22)
    e("s_sub_u32 s22, s22, s21")
    e(f"s_mul_i32 s22, s22, {M}")
    e("s_add_u32 s22, s22, 12000")
    e("s_min_u32 s22, s22, 90000")
    a.label("L_spin")
    e("s_memrealtime s[14:15]")
    e("s_waitcnt lgkmcnt(0)")
    e("s_sub_u32 s16, s14, s20")
    e("s_cmp_lt_u32 s16, s22")
    e("s_cbranch_scc1 L_spin")
    a.label("L_spin_end")
    e("s_endpgm")
    return a.lines


def kd(name, nfv, accum):
    return f""".amdhsa_kernel {name}
  .amdhsa_next_free_vgpr {nfv}
  .amdhsa_next_free_sgpr 102
  .amdhsa_accum_offset {accum}
  .amdhsa_group_segment_fixed_size 0
  .amdhsa_kernarg_size 88
  .amdhsa_user_sgpr_count 2
  .amdhsa_user_sgpr_kernarg_segment_ptr 1
  .amdhsa_system_sgpr_workgroup_id_x 1
.end_amdhsa_kernel"""


def main(path):
    hdr = open(f"cdna_kernels/{NAME}.s.ref").read().split("; Override launch")[0]
    out = [hdr.rstrip("\n")]
    kn = NAME + "_kernel"
    if OPT.get('spin'):
        out.append(f"; @launch kernel={kn} grid=(256,1,1) block=(256,1,1) lds={K2_LDS()}")
        out.append("; @launch kernel=spin_kernel grid=(1,1,1) block=(64,1,1) lds=0")
    else:
        out.append(f"; @launch grid=(256,1,1) block=(256,1,1) lds={K2_LDS()}")
    out.append('.amdgcn_target "amdgcn-amd-amdhsa--gfx950"')
    out.append(".text")
    out += [ln.replace("KNAME", kn) for ln in fix_hazards(gen_k1())]
    if OPT.get('spin'):
        out += gen_spin()
    out.append('.section .rodata,"a"')
    if OPT.get('spin'):
        out.append(".p2align 6")
        out.append(kd("spin_kernel", 32, 32))
    out.append(".p2align 6")
    out.append(kd(kn, 512 if OPT.get("pb") else 416, 256))
    open(path, "w").write("\n".join(out) + "\n")


if __name__ == "__main__":
    if "--dbgout" in sys.argv:
        DBGOUT = True
        sys.argv.remove("--dbgout")
    if "--diag" in sys.argv:
        DIAG = True
        sys.argv.remove("--diag")
    for arg in list(sys.argv):
        if "=" in arg:
            k_, v_ = arg.split("=")
            OPT[k_] = int(v_) if v_.isdigit() else v_.replace("+", " ")
            sys.argv.remove(arg)
    main(sys.argv[1] if len(sys.argv) > 1 else f"cdna_kernels/{NAME}.s")
```

```python
import sys

NAME = "gated_mix__linear_attn_block__dense_activation_mish__prompt"

AF_OFF = 0
AF_BYTES = 16 * 144 * 8 * 1024
KVP_OFF = AF_BYTES
KVP_BYTES = 16 * 8 * 12 * 1024
KVF_OFF = KVP_OFF + KVP_BYTES
KVF_BYTES = 32 * 3 * 1024
G_OFF = KVF_OFF + KVF_BYTES
PART_OFF = G_OFF + 8192
OF_OFF = PART_OFF + 128 * 65536
FLG_OFF = OF_OFF + 16 * 32 * 8192
FE_OFF = FLG_OFF - 0 + 32768 + 128 * 256
FA_OFF = FLG_OFF
FQ_OFF = FA_OFF + 8192
FO_OFF = FQ_OFF + 8192
FP_OFF = FO_OFF + 8192
FK_OFF = FE_OFF + 8192
WS_USED = FK_OFF + 2048
assert FP_OFF + 128 * 256 <= FE_OFF
V_TOK = 14

DIAG = False
DBGOUT = False
OPT = dict(k1a="", k1b="", k2a="", k2b="", st="sc1", ost="sc1", fl=1, pf=7, xpf=0, n0=34, o0=6, tr=5, cpf=2, map=0, fepos=0, S=4, pbf=1, pj=1, pprio=0, cprio=0, rdend=26)
DIAG_OFF = 0x2000000
EPS_HEX = "0x358637bd"
L2E_HEX = "0x3fb8aa3b"


class Asm:
    def __init__(self):
        self.lines = []
        self.vm = []

    def e(self, s):
        for ln in s.split("\n"):
            self.lines.append("  " + ln.strip())

    def label(self, s):
        self.lines.append(s + ":")

    def vmem(self, s, tag):
        self.e(s)
        self.vm.append(tag)

    def mark(self, tag):
        self.vm.append("#" + tag)

    def vm_count(self, tags, drop=True):
        idx = -1
        for i, t in enumerate(self.vm):
            if t in tags:
                idx = i
        if idx < 0:
            return None
        n = sum(1 for t in self.vm[idx + 1:] if not t.startswith("#"))
        if drop:
            self.vm = self.vm[idx + 1:]
        assert n <= 63, n
        return n

    def wait(self, tags=(), lgkm=False):
        n = self.vm_count(tags) if tags else None
        parts = []
        if n is not None:
            parts.append(f"vmcnt({n})")
        if lgkm:
            parts.append("lgkmcnt(0)")
        if parts:
            self.e("s_waitcnt " + " ".join(parts))


def stamp(a, idx, sbase=80):
    if not DIAG:
        return
    a.e(f"s_memtime s[{sbase - 4}:{sbase - 3}]")
    a.e(f"s_memrealtime s[{sbase - 2}:{sbase - 1}]")
    a.e("s_waitcnt lgkmcnt(0)")
    a.e(f"s_mov_b32 s{sbase + 2 * idx}, s{sbase - 4}")
    a.e(f"s_mov_b32 s{sbase + 2 * idx + 1}, s{sbase - 2}")


def stamp_dump(a, kidx, n, swave, sptr_lo, sptr_hi, vtmp, sbase=80):
    if not DIAG:
        return
    e = a.e
    e(f"s_mov_b32 s{sbase - 4}, s{sptr_lo}")
    e(f"s_and_b32 s{sbase - 3}, s{sptr_hi}, 0xffff")
    e(f"s_mov_b32 s{sbase - 2}, 0x4000000")
    e(f"s_mov_b32 s{sbase - 1}, 0x20000")
    e(f"s_lshl_b32 s75, s2, 2")
    e(f"s_add_u32 s75, s75, s{swave}")
    e(f"s_lshl_b32 s75, s75, 7")
    e(f"s_add_u32 s75, s75, {DIAG_OFF + kidx * 0x100000}")
    e(f"v_mov_b32 v{vtmp}, 0")
    e("s_mov_b64 exec, 1")
    for i in range(2 * n):
        e(f"v_mov_b32 v{vtmp + 1}, s{sbase + i}")
        e(f"buffer_store_dword v{vtmp + 1}, v{vtmp}, s[{sbase - 4}:{sbase - 1}], s75 offen offset:{4 * i}")
        e("s_nop 1")
    e("s_mov_b64 exec, -1")
    if DBGOUT:
        lab = f"L_dbg_{len(a.lines)}"
        e(f"s_cmp_lg_u32 s2, 1")
        e(f"s_cbranch_scc1 {lab}")
        e(f"s_cmp_lg_u32 s{swave}, 0")
        e(f"s_cbranch_scc1 {lab}")
        e(f"s_mov_b32 s{sbase - 4}, s{sptr_lo - 2}")
        e(f"s_and_b32 s{sbase - 3}, s{sptr_hi - 2}, 0xffff")
        e(f"s_mov_b32 s{sbase - 2}, 256")
        e("s_mov_b64 exec, 1")
        for i in range(n):
            e(f"v_mov_b32 v{vtmp + 1}, s{sbase + 2 * i + 1}")
            e(f"buffer_store_dword v{vtmp + 1}, v{vtmp}, s[{sbase - 4}:{sbase - 1}], 0 offen offset:{4 * i + 32 * kidx}")
            e("s_nop 1")
        e("s_mov_b64 exec, -1")
        a.label(lab)


def vr(b, n=4):
    return f"v[{b}:{b + n - 1}]"


def ar(b, n=4):
    return f"a[{b}:{b + n - 1}]"


def interleave(a, mf, fillers, start=0, end=None):
    n = len(mf)
    if end is None:
        end = n
    nf = len(fillers)
    pos = [start + (j * (end - start)) // max(nf, 1) for j in range(nf)]
    j = 0
    for m in range(n):
        a.e(mf[m])
        while j < nf and pos[j] <= m:
            f = fillers[j]
            f()
            j += 1
    while j < nf:
        fillers[j]()
        j += 1


def capture(a, fn, chunk=2):
    n0_ = len(a.lines)
    vm0 = list(a.vm)
    fn()
    lines = a.lines[n0_:]
    tags = a.vm[len(vm0):]
    del a.lines[n0_:]
    a.vm = vm0
    items = []
    cur = []
    depth = 0
    ti = 0
    for ln in lines:
        cur.append(ln)
        if "s_cbranch" in ln or "s_mov_b64 exec, " in ln and "-1" not in ln or "s_cmp" in ln or "s_getpc" in ln or "s_sub_u32" in ln and "KNAME" in ln:
            depth = 1
        if ln.endswith(":") and not ln.startswith(" ") and "L_pc" not in ln or "s_mov_b64 exec, -1" in ln and not any("s_cbranch" in x for x in cur) or "s_cselect" in ln or "s_subb_u32" in ln:
            depth = 0
        if depth == 0 and len(cur) >= chunk:
            items.append(cur)
            cur = []
    if cur:
        items.append(cur)
    out = []
    for it in items:
        guarded = any("s_cbranch" in x for x in it)
        nv = 0 if guarded else sum(1 for x in it if x.strip().startswith(("buffer_", "global_")))
        tg = tags[ti:ti + nv]
        ti += nv

        def emit(it=it, tg=tg):
            a.lines.extend(it)
            a.vm.extend(tg)
        out.append(emit)
    rest = tags[ti:]
    assert all(t.startswith("#") for t in rest), (ti, tags)
    if rest:
        out.append(lambda rest=rest: a.vm.extend(rest))
    return out


def srd(a, d, lo, hi, nbytes, bias=0):
    if bias:
        a.e(f"s_sub_u32 s{d}, s{lo}, {bias}")
        a.e(f"s_subb_u32 s{d + 1}, s{hi}, 0")
        a.e(f"s_and_b32 s{d + 1}, s{d + 1}, 0xffff")
    else:
        a.e(f"s_mov_b32 s{d}, s{lo}")
        a.e(f"s_and_b32 s{d + 1}, s{hi}, 0xffff")
    a.e(f"s_mov_b32 s{d + 2}, {nbytes + bias}")
    a.e(f"s_mov_b32 s{d + 3}, 0x20000")


K1_BSLOT = 13312
K1_AREA = 3328
K1_ABASE = 4 * K1_BSLOT
K1_LDS = K1_ABASE + 4 * 16384
ACC0 = 48


def acc(t, mt):
    return ACC0 + 16 * t + 4 * mt


V_LANE = 1
V_ARD = 2
V_QRD = 4
V_HRD = 8
V_ADMA = 9
V_BDMA = 13
V_L16 = 17
V_T = 18
S_X, S_Q, S_W1, S_WS, S_MISC = 4, 8, 12, 16, 20
S_WAVE, S_RB, S_P = 24, 25, 26
S_OFFA, S_OFFA2, S_OFFQ, S_OFFH = 27, 28, 29, 30
S_M0B, S_M0A = 31, 32
S_CNT = 33
S_QM = 34
S_PTR = 36
S_L2E = 58
S_T = 60
S_AFB = 72
S_GROW = 73
S_PO1, S_PO2 = 74, 3
S_PT, S_PTE = 100, 101
S_CB = 100
S_PF1, S_PF2 = 96, 20


def bset(s, t):
    return 52 * s + 4 * t


ASET = {"X": 104, "Y": 120, "Z": 136}


def k1_body(a, typ):
    T = "A" if typ == 0 else "B"
    nq = 8 if typ == 0 else 4
    nh = 13 - nq
    Ph = 2 * nh
    HB = 256 * nq
    e = a.e
    vi, vG, t0, t1, t2, t3 = V_T, V_T + 1, V_T + 2, V_T + 3, V_T + 4, V_T + 5
    e(f"v_and_b32 v{vi}, 15, v{V_LANE}")
    e(f"v_lshrrev_b32 v{vG}, 4, v{V_LANE}")
    e(f"s_mul_i32 s{S_T + 2}, s{S_P}, 448")
    if typ:
        e(f"s_add_u32 s{S_T + 2}, s{S_T + 2}, 160")

    e(f"s_lshr_b32 s{S_T + 8}, s{S_WAVE}, 1")
    e(f"s_lshl_b32 s{S_T + 8}, s{S_T + 8}, 4")
    e(f"s_and_b32 s{S_T + 9}, s{S_WAVE}, 1")
    e(f"s_lshl_b32 s{S_T + 9}, s{S_T + 9}, 2")
    e(f"s_add_u32 s{S_T + 8}, s{S_T + 8}, s{S_T + 9}")

    def krow(dst, kp, tmp):
        e(f"v_lshrrev_b32 v{tmp}, 2, v{kp}")
        e(f"v_lshlrev_b32 v{tmp}, 3, v{tmp}")
        e(f"v_and_b32 v{dst}, 3, v{kp}")
        e(f"v_add3_u32 v{dst}, v{dst}, v{tmp}, s{S_T + 8}")

    e(f"v_lshrrev_b32 v{t0}, 3, v{V_LANE}")
    krow(t1, t0, t2)
    e(f"v_mul_u32_u24 v{t1}, 6144, v{t1}")
    e(f"v_lshrrev_b32 v{t2}, 1, v{t0}")
    e(f"v_and_b32 v{t2}, 3, v{t2}")
    e(f"v_lshlrev_b32 v{t2}, 1, v{t2}")
    e(f"v_and_b32 v{t3}, 7, v{V_LANE}")
    e(f"v_xor_b32 v{t3}, v{t3}, v{t2}")
    e(f"v_lshlrev_b32 v{t3}, 4, v{t3}")
    e(f"v_add_u32 v{t1}, v{t1}, v{t3}")
    e(f"s_lshl_b32 s{S_T + 9}, s{S_P}, 7")
    e(f"s_add_u32 s{S_T + 9}, s{S_T + 9}, {4096 + (2048 if typ == 0 else 0)}")
    e(f"v_add_u32 v{V_BDMA}, s{S_T + 9}, v{t1}")
    if typ == 0:
        e(f"v_add_u32 v{V_BDMA + 1}, {2048 - 1024}, v{V_BDMA}")
    hins = [(2, 0), (3, 64)] if typ == 0 else [(1, 0), (2, 64), (3, 128)]
    magic, sh = (205, 11) if Ph == 10 else (57, 10)
    for s_ in range(8 * Ph + 64):
        if s_ < 8 * Ph:
            assert (s_ * magic) >> sh == s_ // Ph
    for slot, s0 in hins:
        e(f"v_add_u32 v{t0}, {s0}, v{V_LANE}")
        e(f"v_mul_u32_u24 v{t1}, {magic}, v{t0}")
        e(f"v_lshrrev_b32 v{t1}, {sh}, v{t1}")
        e(f"v_mul_u32_u24 v{t2}, {Ph}, v{t1}")
        e(f"v_sub_u32 v{t0}, v{t0}, v{t2}")
        e(f"v_and_b32 v{t1}, 7, v{t1}")
        krow(t2, t1, t3)
        e(f"v_mul_u32_u24 v{t2}, 7168, v{t2}")
        e(f"v_lshlrev_b32 v{t0}, 4, v{t0}")
        e(f"v_add3_u32 v{t0}, v{t0}, v{t2}, s{S_T + 2}")
        e(f"v_add_u32 v{V_BDMA + slot}, {4096 - 1024 * slot}, v{t0}")
    e(f"s_lshl_b32 s{S_T + 9}, s{S_RB}, 8")
    e(f"s_lshl_b32 s{S_T + 10}, s{S_WAVE}, 6")
    e(f"s_add_u32 s{S_T + 9}, s{S_T + 9}, s{S_T + 10}")
    e(f"s_lshl_b32 s{S_T + 9}, s{S_T + 9}, 11")
    e(f"v_lshrrev_b32 v{t0}, 3, v{V_LANE}")
    e(f"v_lshrrev_b32 v{t1}, 1, v{t0}")
    e(f"v_and_b32 v{t2}, 7, v{V_LANE}")
    e(f"v_xor_b32 v{t2}, v{t2}, v{t1}")
    e(f"v_lshlrev_b32 v{t0}, 11, v{t0}")
    e(f"v_add_u32 v{t0}, s{S_T + 9}, v{t0}")
    for j in range(4):
        if j & 1:
            e(f"v_xor_b32 v{t3}, 4, v{t2}")
            e(f"v_lshlrev_b32 v{t3}, 4, v{t3}")
        else:
            e(f"v_lshlrev_b32 v{t3}, 4, v{t2}")
        e(f"v_add_u32 v{t3}, v{t3}, v{t0}")
        e(f"v_add_u32 v{V_ADMA + j}, {j * (16384 - 1024)}, v{t3}")
    e(f"s_mul_i32 s{S_M0B}, s{S_WAVE}, {K1_AREA}")
    e(f"s_lshl_b32 s{S_M0A}, s{S_WAVE}, 14")
    e(f"s_add_u32 s{S_M0A}, s{S_M0A}, {K1_ABASE}")
    e(f"s_mov_b32 s{S_OFFA}, 0")
    e(f"s_mov_b32 s{S_OFFA2}, 65536")
    e(f"s_mov_b32 s{S_OFFQ}, 0")
    e(f"s_mov_b32 s{S_OFFH}, 0")
    e(f"s_mov_b32 s{S_QM}, 0xffff")
    e(f"s_mov_b32 s{S_QM + 1}, 0")

    def dmaB(tt):
        slot = tt % 4
        tag = f"B{tt}"
        f = []
        srcs = [(S_Q, S_OFFQ), (S_Q, S_OFFQ) if typ == 0 else (S_W1, S_OFFH), (S_W1, S_OFFH)]
        f.append(lambda: e(f"s_add_u32 m0, s{S_M0B}, {slot * K1_BSLOT}"))
        for j in range(3):
            sr, so = srcs[j]
            f.append(lambda j=j, sr=sr, so=so: a.vmem(
                f"buffer_load_dwordx4 v{V_BDMA + j}, s[{sr}:{sr + 3}], s{so} offen offset:{1024 * j} {OPT['k1b']} lds", tag))

        def q():
            e(f"s_mov_b64 exec, s[{S_QM}:{S_QM + 1}]")
            a.vmem(f"buffer_load_dwordx4 v{V_BDMA + 3}, s[{S_W1}:{S_W1 + 3}], s{S_OFFH} offen offset:3072 {OPT['k1b']} lds", tag)
            e("s_mov_b64 exec, -1")
        f.append(q)
        f.append(lambda: e(f"s_add_u32 s{S_OFFQ}, s{S_OFFQ}, {32 * 6144}"))
        f.append(lambda: e(f"s_add_u32 s{S_OFFH}, s{S_OFFH}, {32 * 7168}"))
        return f

    def dmaA(aa):
        slot = aa % 2
        tag = f"A{aa}"
        f = []
        for half in range(2):
            so = S_OFFA if half == 0 else S_OFFA2
            f.append(lambda half=half: e(f"s_add_u32 m0, s{S_M0A}, {slot * 8192 + half * 4096}"))
            for j in range(4):
                f.append(lambda j=j, so=so: a.vmem(
                    f"buffer_load_dwordx4 v{V_ADMA + j}, s[{S_X}:{S_X + 3}], s{so} offen offset:{1024 * j} {OPT['k1a']} lds", tag))
        f.append(lambda: e(f"s_add_u32 s{S_OFFA}, s{S_OFFA}, 128"))
        f.append(lambda: e(f"s_add_u32 s{S_OFFA2}, s{S_OFFA2}, 128"))
        return f

    def run_seq(fl):
        for fn in fl:
            n0 = len(a.lines)
            fn()
            if " m0," in a.lines[-1] and len(a.lines) == n0 + 1:
                e("s_nop 0")

    e("s_waitcnt lgkmcnt(0)")
    srd(a, S_Q, S_PTR + 2, S_PTR + 3, 1024 * 3072 * 2, bias=4096)
    srd(a, S_W1, S_PTR + 8, S_PTR + 9, 1024 * 3584 * 2, bias=4096)
    srd(a, S_X, S_PTR + 0, S_PTR + 1, 2048 * 1024 * 2)
    if not OPT.get('spin'):
        stamp(a, 0)
    if OPT.get('kst'):
        stamp(a, 4)
    run_seq(dmaB(0))
    run_seq(dmaA(0))
    srd(a, S_T + 4, S_PTR + 10, S_PTR + 11, 7168)
    e(f"v_lshlrev_b32 v{t1}, 3, v{vG}")
    for j in range(nh):
        a.vmem(f"buffer_load_dwordx2 {vr(acc(nq + j, 3), 2)}, v{t1}, s[{S_T + 4}:{S_T + 7}], s{S_T + 2} offen offset:{32 * j}", "bias")
    run_seq(dmaB(1))
    if not OPT.get('ramp'):
        run_seq(dmaB(2))
        run_seq(dmaA(1))
        run_seq(dmaB(3))
    if OPT.get('ramp') == 2:
        run_seq(dmaA(1))
    if OPT.get('ramp') == 3:
        run_seq(dmaB(2))
        run_seq(dmaA(1))
    e(f"v_lshrrev_b32 v{t0}, 3, v{vi}")
    e(f"v_lshlrev_b32 v{t0}, 6, v{t0}")
    e(f"v_and_b32 v{t1}, 7, v{vi}")
    e(f"v_lshlrev_b32 v{t1}, 3, v{t1}")
    e(f"v_add_u32 v{t0}, v{t0}, v{t1}")
    e(f"v_lshrrev_b32 v{t1}, 1, v{vi}")
    e(f"v_xor_b32 v{t1}, v{t1}, v{vG}")
    e(f"v_add_u32 v{t2}, v{t0}, v{t1}")
    e(f"v_lshlrev_b32 v{t2}, 4, v{t2}")
    e(f"v_add_u32 v{V_ARD}, s{S_M0A}, v{t2}")
    e(f"v_xor_b32 v{t1}, 4, v{t1}")
    e(f"v_add_u32 v{t2}, v{t0}, v{t1}")
    e(f"v_lshlrev_b32 v{t2}, 4, v{t2}")
    e(f"v_add_u32 v{V_ARD + 1}, s{S_M0A}, v{t2}")
    e(f"v_and_b32 v{t0}, 1, v{vG}")
    e(f"v_lshlrev_b32 v{t0}, 2, v{t0}")
    e(f"v_lshrrev_b32 v{t1}, 2, v{vi}")
    e(f"v_add_u32 v{t0}, v{t0}, v{t1}")
    e(f"v_lshrrev_b32 v{t1}, 1, v{vG}")
    e(f"v_mul_u32_u24 v{t1}, {2 * K1_AREA}, v{t1}")
    e(f"v_and_b32 v{t2}, 3, v{vi}")
    e(f"v_lshlrev_b32 v{t2}, 3, v{t2}")
    e(f"v_add_u32 v{t1}, v{t1}, v{t2}")
    e(f"v_mul_u32_u24 v{t3}, {16 * Ph}, v{t0}")
    e(f"v_add3_u32 v{V_HRD}, v{t1}, v{t3}, {0}")
    e(f"v_add_u32 v{V_HRD}, {HB}, v{V_HRD}")
    e(f"v_lshlrev_b32 v{t3}, 7, v{t0}")
    e(f"v_add_u32 v{t1}, v{t1}, v{t3}")
    e(f"v_lshrrev_b32 v{t2}, 1, v{t0}")
    e(f"v_and_b32 v{t2}, 3, v{t2}")
    for t in range(4):
        e(f"v_xor_b32 v{t3}, {t}, v{t2}")
        e(f"v_lshlrev_b32 v{t3}, 5, v{t3}")
        e(f"v_add_u32 v{V_QRD + t}, v{t1}, v{t3}")
    e(f"v_lshlrev_b32 v{V_L16}, 4, v{V_LANE}")

    gw, gx0, gx1 = V_T, V_T + 8, V_T + 16
    gt = V_T + 24
    nb = {0: 1, 1: 7, 2: 1, 3: 2, 4: 3, 5: 1, 6: 1, 7: 2, 8: 2}[OPT['pf']]
    PL1, PL2 = -(-56 // nb), -(-16 // nb)

    def misc_setup():
        srd(a, S_WS, S_PTR + 20, S_PTR + 21, WS_USED)
        tile_decode(a, S_T + 4, S_T + 5, S_T + 6, S_T + 7, S_T)
        e(f"s_lshl_b32 s{S_T}, s{S_RB}, 1")
        e(f"s_lshr_b32 s{S_T + 1}, s{S_WAVE}, 1")
        e(f"s_add_u32 s{S_T}, s{S_T}, s{S_T + 1}")
        e(f"s_lshl_b32 s{S_T}, s{S_T}, 5")
        e(f"s_lshl_b32 s{S_T + 1}, s{S_P}, 1")
        e(f"s_add_u32 s{S_T}, s{S_T}, s{S_T + 1}")
        if typ:
            e(f"s_add_u32 s{S_T}, s{S_T}, 1")
        e(f"s_lshl_b32 s{S_T}, s{S_T}, 1")
        e(f"s_and_b32 s{S_T + 1}, s{S_WAVE}, 1")
        e(f"s_add_u32 s{S_T}, s{S_T}, s{S_T + 1}")
        e(f"s_lshl_b32 s{S_T}, s{S_T}, 3")
        e(f"s_add_u32 s{S_T}, s{S_T}, {FA_OFF}")
        e(f"v_writelane_b32 v0, s{S_T}, 4")
        e(f"s_lshl_b32 s{S_T}, s{S_RB}, 1")
        e(f"s_lshr_b32 s{S_T + 3}, s{S_WAVE}, 1")
        e(f"s_add_u32 s{S_T}, s{S_T}, s{S_T + 3}")
        e(f"s_lshl_b32 s{S_T}, s{S_T}, 5")
        e(f"s_add_u32 s{S_T}, s{S_T}, s{S_P}")
        e(f"s_lshl_b32 s{S_T}, s{S_T}, 1")
        e(f"s_add_u32 s{S_T}, s{S_T}, s{S_T + 1}")
        e(f"s_lshl_b32 s{S_T}, s{S_T}, 3")
        e(f"s_add_u32 s{S_T}, s{S_T}, {FE_OFF + 256 * typ}")
        e(f"v_writelane_b32 v0, s{S_T}, 0")
        e(f"s_lshl_b32 s{S_T}, s{S_P}, 4")
        e(f"s_add_u32 s{S_T}, s{S_T}, s{S_RB}")
        e(f"s_lshl_b32 s{S_T}, s{S_T}, 2")
        e(f"s_add_u32 s{S_T}, s{S_T}, s{S_WAVE}")
        e(f"s_lshl_b32 s{S_T}, s{S_T}, 3")
        e(f"s_add_u32 s{S_T}, s{S_T}, {FQ_OFF + 256 * typ}")
        e(f"v_writelane_b32 v0, s{S_T}, 1")
        e(f"s_lshr_b32 s{S_T}, s2, 5")
        e(f"s_lshl_b32 s{S_T}, s{S_T}, 1")
        e(f"s_lshr_b32 s{S_T + 1}, s{S_WAVE}, 1")
        e(f"s_add_u32 s{S_T}, s{S_T}, s{S_T + 1}")
        e(f"s_lshl_b32 s{S_T}, s{S_T}, 9")
        e(f"s_and_b32 s{S_T + 1}, s2, 31")
        e(f"s_lshl_b32 s{S_T + 1}, s{S_T + 1}, 4")
        e(f"s_add_u32 s{S_T}, s{S_T}, s{S_T + 1}")
        e(f"s_and_b32 s{S_T + 1}, s{S_WAVE}, 1")
        e(f"s_lshl_b32 s{S_T + 1}, s{S_T + 1}, 3")
        e(f"s_add_u32 s{S_T}, s{S_T}, s{S_T + 1}")
        e(f"s_add_u32 s{S_T}, s{S_T}, {FO_OFF}")
        e(f"s_lshl_b32 s{S_T + 1}, s{S_T + 7}, 8")
        e(f"s_lshl_b32 s{S_T + 3}, s{S_WAVE}, 3")
        e(f"s_add_u32 s{S_T + 1}, s{S_T + 1}, s{S_T + 3}")
        e(f"s_add_u32 s{S_T + 1}, s{S_T + 1}, {FP_OFF}")
        e(f"s_cmp_eq_u32 s{S_T + 6}, 0")
        e(f"s_cselect_b32 s{S_T + 1}, s{S_T + 1}, 0x7ffffff0")
        e(f"v_writelane_b32 v0, s{S_T}, 2")
        e(f"v_writelane_b32 v0, s{S_T + 1}, 3")
        e(f"s_mul_i32 s{S_T}, s2, 171")
        e(f"s_lshr_b32 s{S_T}, s{S_T}, 10")
        e(f"s_lshl_b32 s{S_T}, s{S_T}, 1")
        e(f"s_add_u32 s{S_T}, s{S_T}, s2")
        e(f"s_lshl_b32 s{S_T}, s{S_T}, 3")
        e(f"s_add_u32 s{S_T}, s{S_T}, {FK_OFF}")
        e(f"v_writelane_b32 v0, s{S_T}, 5")

    def misc_setup2():
        if typ == 0:
            e(f"s_or_b32 s{S_T}, s2, s{S_WAVE}")
            e(f"s_cmp_lg_u32 s{S_T}, 0")
            e(f"s_cbranch_scc1 L_notok")
            e(f"s_memrealtime s[{S_T + 8}:{S_T + 9}]")
            srd(a, S_T + 4, S_PTR + 18, S_PTR + 19, 256)
            e("s_waitcnt lgkmcnt(0)")
            e(f"s_or_b32 s{S_T + 9}, s{S_T + 9}, 0x40000000")
            e(f"s_lshl_b32 s{S_T + 9}, s{S_T + 9}, 1")
            e(f"s_and_b32 s{S_T}, s{S_T + 8}, 1")
            e(f"s_or_b32 s{S_T + 9}, s{S_T + 9}, s{S_T}")
            e(f"s_or_b32 s{S_T + 8}, s{S_T + 8}, 1")
            e(f"v_mov_b32 v{V_T + 24}, s{S_T + 8}")
            e(f"v_mov_b32 v{V_T + 25}, s{S_T + 9}")
            e(f"v_mov_b32 v{V_T + 27}, 0")
            e("s_mov_b64 exec, 1")
            e(f"buffer_store_dwordx2 v[{V_T + 24}:{V_T + 25}], v{V_T + 27}, s[{S_T + 4}:{S_T + 7}], 0 offen sc1")
            e("s_mov_b64 exec, -1")
            e("s_nop 1")
            a.label("L_notok")
        if OPT.get('cpf') == 1:
            e(f"s_getpc_b64 s[{S_T + 4}:{S_T + 5}]")
            a.label(f"L_pc_{T}")
            e(f"s_sub_u32 s{S_T + 4}, s{S_T + 4}, L_pc_{T}-KNAME")
            e(f"s_subb_u32 s{S_T + 5}, s{S_T + 5}, 0")
            e(f"s_lshr_b32 s{S_T}, s2, 3")
            e(f"s_and_b32 s{S_T}, s{S_T}, 3")
            e(f"s_lshl_b32 s{S_T}, s{S_T}, 2")
            e(f"s_add_u32 s{S_T}, s{S_T}, s{S_WAVE}")
            e(f"s_lshl_b32 s{S_T}, s{S_T}, 13")
            e(f"v_lshlrev_b32 v{V_T + 29}, 7, v{V_LANE}")
            e(f"v_add_u32 v{V_T + 29}, s{S_T}, v{V_T + 29}")
            e(f"v_min_u32 v{V_T + 29}, L_code_end-KNAME-4, v{V_T + 29}")
            a.vmem(f"global_load_dword v{V_T + 29}, v{V_T + 29}, s[{S_T + 4}:{S_T + 5}]", "pf")
        if OPT.get('xpf') == 1:
            e(f"v_and_b32 v{V_T + 28}, 31, v{V_LANE}")
            e(f"v_lshlrev_b32 v{V_T + 28}, 7, v{V_T + 28}")
            e(f"s_lshl_b32 s{S_T}, s2, 2")
            e(f"s_add_u32 s{S_T}, s{S_T}, s{S_WAVE}")
            e(f"s_lshl_b32 s{S_T}, s{S_T}, 12")
            a.vmem(f"buffer_load_dword v{V_T + 28}, v{V_T + 28}, s[{S_X}:{S_X + 3}], s{S_T} offen", "pf")
        if OPT.get('xpf') == 2:
            e(f"v_lshlrev_b32 v{V_T + 27}, 7, v{V_LANE}")
            e(f"s_lshr_b32 s{S_T}, s2, 5")
            e(f"s_lshl_b32 s{S_T}, s{S_T}, 2")
            e(f"s_add_u32 s{S_T}, s{S_T}, s{S_WAVE}")
            e(f"s_lshl_b32 s{S_T}, s{S_T}, 14")
            e(f"s_lshl_b32 s{S_T + 1}, s{S_RB}, 19")
            e(f"s_add_u32 s{S_T}, s{S_T}, s{S_T + 1}")
            a.vmem(f"buffer_load_dword v{V_T + 28}, v{V_T + 27}, s[{S_X}:{S_X + 3}], s{S_T} offen", "pf")
            e(f"s_add_u32 s{S_T}, s{S_T}, 8192")
            a.vmem(f"buffer_load_dword v{V_T + 28}, v{V_T + 27}, s[{S_X}:{S_X + 3}], s{S_T} offen", "pf")

        e(f"v_lshlrev_b32 v{gt}, 5, v{V_LANE}")
        e(f"s_lshl_b32 s{S_GROW}, s{S_RB}, 8")
        e(f"s_lshl_b32 s{S_T + 1}, s{S_WAVE}, 6")
        e(f"s_add_u32 s{S_GROW}, s{S_GROW}, s{S_T + 1}")
        e(f"s_lshl_b32 s{S_T + 1}, s{S_P}, 2")
        e(f"s_add_u32 s{S_GROW}, s{S_GROW}, s{S_T + 1}")
        if typ:
            e(f"s_add_u32 s{S_GROW}, s{S_GROW}, 2")
        e(f"s_lshl_b32 s{S_T + 1}, s{S_GROW}, 11")
        srd(a, S_MISC, S_PTR + 14, S_PTR + 15, 2048)
        a.vmem(f"buffer_load_dwordx4 {vr(gw)}, v{gt}, s[{S_MISC}:{S_MISC + 3}], 0 offen", "g")
        a.vmem(f"buffer_load_dwordx4 {vr(gw + 4)}, v{gt}, s[{S_MISC}:{S_MISC + 3}], 0 offen offset:16", "g")
        a.vmem(f"buffer_load_dwordx4 {vr(gx0)}, v{gt}, s[{S_X}:{S_X + 3}], s{S_T + 1} offen", "g")
        a.vmem(f"buffer_load_dwordx4 {vr(gx0 + 4)}, v{gt}, s[{S_X}:{S_X + 3}], s{S_T + 1} offen offset:16", "g")
        a.vmem(f"buffer_load_dwordx4 {vr(gx1)}, v{gt}, s[{S_X}:{S_X + 3}], s{S_T + 1} offen offset:2048", "g")
        a.vmem(f"buffer_load_dwordx4 {vr(gx1 + 4)}, v{gt}, s[{S_X}:{S_X + 3}], s{S_T + 1} offen offset:2064", "g")

        if OPT['pf']:
            srd(a, S_PF1, S_PTR + 12, S_PTR + 13, 3584 * 1024 * 2)
            srd(a, S_PF2, S_PTR + 4, S_PTR + 5, 1024 * 1024 * 2)
            e(f"v_min_u32 v{V_T + 26}, {PL1 - 1}, v{V_LANE}")
            e(f"v_lshlrev_b32 v{V_T + 26}, 7, v{V_T + 26}")
            e(f"v_min_u32 v{V_T + 27}, {PL2 - 1}, v{V_LANE}")
            e(f"v_lshlrev_b32 v{V_T + 27}, 7, v{V_T + 27}")
            e(f"s_lshl_b32 s{S_T}, s2, 2")
            e(f"s_add_u32 s{S_T}, s{S_T}, s{S_WAVE}")
            e(f"s_mul_i32 s{S_PO1}, s{S_T}, 7168")
            e(f"s_lshl_b32 s{S_PO2}, s{S_T}, 11")


    if OPT.get('pt'):
        e(f"s_lshl_b32 s{S_T}, s{S_RB}, 1")
        e(f"s_lshr_b32 s{S_T + 1}, s{S_WAVE}, 1")
        e(f"s_add_u32 s{S_T}, s{S_T}, s{S_T + 1}")
        e(f"s_mul_i32 s{S_AFB}, s{S_T}, {144 * 8192}")
        e(f"s_and_b32 s{S_T + 1}, s{S_WAVE}, 1")
        e(f"s_lshl_b32 s{S_T + 1}, s{S_T + 1}, 12")
        e(f"s_add_u32 s{S_AFB}, s{S_AFB}, s{S_T + 1}")
        e(f"s_mul_i32 s{S_PT}, s{S_P}, {7 * 8192}")
        e(f"s_add_u32 s{S_PT}, s{S_PT}, s{S_AFB}")
        if typ:
            e(f"s_add_u32 s{S_PT}, s{S_PT}, {2 * 8192}")
        e(f"s_add_u32 s{S_PTE}, s{S_PT}, {(4 if typ else 2) * 8192}")
        e(f"v_and_b32 v{V_T + 25}, 31, v{V_LANE}")
        e(f"v_lshlrev_b32 v{V_T + 25}, 7, v{V_T + 25}")
        if typ:
            e(f"v_lshrrev_b32 v{V_T + 29}, 5, v{V_LANE}")
            e(f"v_lshlrev_b32 v{V_T + 29}, 13, v{V_T + 29}")
            e(f"v_add_u32 v{V_T + 29}, v{V_T + 29}, v{V_T + 25}")
            e(f"s_mul_i32 s{S_T}, s{S_P}, {2 * 8192}")
            e(f"s_add_u32 s{S_T}, s{S_T}, {112 * 8192}")
            e(f"s_add_u32 s{S_T}, s{S_T}, s{S_AFB}")
            a.vmem(f"buffer_load_dword v{V_T + 28}, v{V_T + 29}, s[{S_WS}:{S_WS + 3}], s{S_T} offen", "pf")

    def pt_items():
        return [lambda: a.vmem(f"buffer_load_dword v{V_T + 28}, v{V_T + 25}, s[{S_WS}:{S_WS + 3}], s{S_PT} offen", "pf"),
                lambda: e(f"s_add_u32 s{S_PT}, s{S_PT}, 8192"),
                lambda: e(f"s_min_u32 s{S_PT}, s{S_PT}, s{S_PTE}")]

    def pf_items(cond=None):
        if cond is None:
            return [lambda: a.vmem(f"buffer_load_dword v{V_T + 28}, v{V_T + 26}, s[{S_PF1}:{S_PF1 + 3}], s{S_PO1} offen", "pf"),
                    lambda: a.vmem(f"buffer_load_dword v{V_T + 28}, v{V_T + 27}, s[{S_PF2}:{S_PF2 + 3}], s{S_PO2} offen", "pf"),
                    lambda: e(f"s_add_u32 s{S_PO1}, s{S_PO1}, {128 * PL1}"),
                    lambda: e(f"s_add_u32 s{S_PO2}, s{S_PO2}, {128 * PL2}")]

        def blk():
            e(f"s_lshl_b32 s{S_T}, 1, s{S_CNT}")
            e(f"s_and_b32 s{S_T}, s{S_T}, {cond}")
            e(f"s_cbranch_scc0 L_k1{T}_nopf")
            e(f"buffer_load_dword v{V_T + 28}, v{V_T + 26}, s[{S_PF1}:{S_PF1 + 3}], s{S_PO1} offen")
            e(f"buffer_load_dword v{V_T + 28}, v{V_T + 27}, s[{S_PF2}:{S_PF2 + 3}], s{S_PO2} offen")
            e(f"s_add_u32 s{S_PO1}, s{S_PO1}, {128 * PL1}")
            e(f"s_add_u32 s{S_PO2}, s{S_PO2}, {128 * PL2}")
            a.label(f"L_k1{T}_nopf")
        return [blk]

    def g_items():
        d0, d1 = V_T + 24, V_T + 25
        L = []
        L.append(f"v_dot2_f32_bf16 v{d0}, v{gx0}, v{gw}, 0")
        L.append(f"v_dot2_f32_bf16 v{d1}, v{gx1}, v{gw}, 0")
        for j in range(1, 8):
            L.append(f"v_dot2_f32_bf16 v{d0}, v{gx0 + j}, v{gw + j}, v{d0}")
            L.append(f"v_dot2_f32_bf16 v{d1}, v{gx1 + j}, v{gw + j}, v{d1}")
        L.append("s_nop 3")
        for sh_ in (1, 2, 4, 8):
            L.append(f"s_nop 0\nv_add_f32_dpp v{d0}, v{d0}, v{d0} row_shr:{sh_} row_mask:0xf bank_mask:0xf bound_ctrl:0")
            L.append(f"s_nop 0\nv_add_f32_dpp v{d1}, v{d1}, v{d1} row_shr:{sh_} row_mask:0xf bank_mask:0xf bound_ctrl:0")
        L.append(f"s_nop 0\nv_add_f32_dpp v{d0}, v{d0}, v{d0} row_bcast:15 row_mask:0xa bank_mask:0xf")
        L.append(f"s_nop 0\nv_add_f32_dpp v{d1}, v{d1}, v{d1} row_bcast:15 row_mask:0xa bank_mask:0xf")
        L.append(f"s_nop 0\nv_add_f32_dpp v{d0}, v{d0}, v{d0} row_bcast:31 row_mask:0xc bank_mask:0xf")
        L.append(f"s_nop 0\nv_add_f32_dpp v{d1}, v{d1}, v{d1} row_bcast:31 row_mask:0xc bank_mask:0xf")
        L.append(f"v_mul_f32 v{d0}, 0xbfb8aa3b, v{d0}")
        L.append(f"v_mul_f32 v{d1}, 0xbfb8aa3b, v{d1}")
        L.append(f"v_exp_f32 v{d0}, v{d0}")
        L.append(f"v_exp_f32 v{d1}, v{d1}\ns_nop 0")
        L.append(f"v_add_f32 v{d0}, 1.0, v{d0}")
        L.append(f"v_add_f32 v{d1}, 1.0, v{d1}")
        L.append(f"v_rcp_f32 v{d0}, v{d0}")
        L.append(f"v_rcp_f32 v{d1}, v{d1}")
        L.append(f"v_mov_b32 v{gw}, 0")
        L.append(f"s_lshl_b32 s{S_T + 1}, s{S_GROW}, 2\ns_add_u32 s{S_T + 1}, s{S_T + 1}, {G_OFF}")
        L.append(f"s_lshl_b32 s{S_T + 3}, s2, 8\ns_add_u32 s{S_T + 3}, s{S_T + 3}, {FLG_OFF}")
        L.append(f"s_mov_b32 s{S_T + 8}, 0\ns_mov_b32 s{S_T + 9}, 0x80000000")
        F = [(lambda x=x: e(x)) for x in L]

        def st():
            e(f"s_mov_b64 exec, s[{S_T + 8}:{S_T + 9}]")
            a.vmem(f"buffer_store_dwordx2 v[{d0}:{d1}], v{gw}, s[{S_WS}:{S_WS + 3}], s{S_T + 1} offen sc1", "sq")
            e("s_mov_b64 exec, -1")
        F.append(st)
        return F

    if OPT.get('m2', 9) == 9:
        misc_setup2()
    a.wait(["bias"])
    for j in range(nh):
        src = acc(nq + j, 3)
        d = acc(nq + j, 0)
        e(f"v_lshlrev_b32 v{d}, 16, v{src}")
        e(f"v_and_b32 v{d + 1}, 0xffff0000, v{src}")
        e(f"v_lshlrev_b32 v{d + 2}, 16, v{src + 1}")
        e(f"v_and_b32 v{d + 3}, 0xffff0000, v{src + 1}")
    for t in range(4):
        for r in range(4):
            e(f"v_mov_b32 v{acc(t, 0) + r}, {EPS_HEX}")

    def rdB(tt):
        slot = tt % 4
        s = tt % 2
        f = []
        for t in range(13):
            for ins in range(2):
                if t < nq:
                    addr = V_QRD + (t & 3)
                    off = slot * K1_BSLOT + ins * K1_AREA + 1024 * (t >> 2)
                else:
                    addr = V_HRD
                    off = slot * K1_BSLOT + ins * K1_AREA + 32 * (t - nq)
                d = bset(s, t) + 2 * ins
                f.append(lambda d=d, addr=addr, off=off: e(f"ds_read_b64_tr_b16 {ar(d, 2)}, v{addr} offset:{off}"))
        return f

    def aset_of(tt):
        if tt % 2 == 0:
            return ASET["X"]
        return ASET["Y"] if tt % 4 == 1 else ASET["Z"]

    def rdA(aa):
        slot = aa % 2
        f = []
        for hh in range(2):
            base = aset_of(2 * aa + hh)
            for mt in range(4):
                f.append(lambda hh=hh, mt=mt, base=base: e(
                    f"ds_read_b128 {ar(base + 4 * mt)}, v{V_ARD + hh} offset:{slot * 8192 + mt * 2048}"))
        return f

    stamp(a, 1)
    a.wait(["B0", "A0"])
    e("s_barrier")
    stamp(a, 2)
    for fn in rdA(0) + rdB(0):
        fn()
    if OPT.get('ramp') == 1:
        run_seq(dmaA(1))
    if OPT.get('ramp') in (1, 2):
        run_seq(dmaB(2))
    a.wait(["B1"], lgkm=True)
    e("s_barrier")

    misc_items = capture(a, misc_setup)
    misc_items2 = capture(a, misc_setup2) if OPT.get('m2', 9) != 9 else []

    NSTEP = 32

    def step(tt):
        if DIAG and OPT.get('ts'):
            e("s_memrealtime s[76:77]")
            e("s_waitcnt lgkmcnt(0)")
            e("s_mov_b32 m0, s78")
            e("s_nop 0")
            e(f"v_writelane_b32 v{V_T + 29}, s76, m0")
            e("s_add_u32 s78, s78, 1")
        s = tt % 2
        ab = aset_of(tt)
        mf = []
        for t in range(13):
            order = [1, 2, 3, 0] if tt == 0 else [0, 1, 2, 3]
            for mt in order:
                D = vr(acc(t, mt))
                if tt == 0:
                    C = "0" if (typ == 0 and 4 <= t < 8) else vr(acc(t, 0))
                else:
                    C = D
                W = ar(bset(s, t))
                X = ar(ab + 4 * mt)
                if typ == 0 and t < 8:
                    mf.append(f"v_mfma_f32_16x16x32_bf16 {D}, {X}, {W}, {C}")
                else:
                    mf.append(f"v_mfma_f32_16x16x32_bf16 {D}, {W}, {X}, {C}")
        if OPT.get('fakechain') and tt > 0:
            import re
            m2 = []
            for i in range(0, 52, 2):
                x0, x1 = mf[i], mf[i + 1]
                pick = x0 if tt % 2 == 0 else x1
                D = re.match(r"v_mfma\S+ (v\[\d+:\d+\])", pick).group(1)
                for x in (x0, x1):
                    D0 = re.match(r"v_mfma\S+ (v\[\d+:\d+\])", x).group(1)
                    m2.append(x.replace(D0, D))
            mf = m2
        rd = []
        if tt + 1 < NSTEP:
            rd = rdB(tt + 1)
            if tt % 2 == 1:
                rd = rdA((tt + 1) // 2) + rd
        dm = []
        if tt == 0 and OPT.get('ramp'):
            dm += dmaB(3)
        if OPT.get('afirst', 1) and tt % 2 == 0 and tt // 2 + 2 < NSTEP // 2:
            dm += dmaA(tt // 2 + 2)
        if tt + 4 < NSTEP:
            dm += dmaB(tt + 4)
        if not OPT.get('afirst', 1) and tt % 2 == 0 and tt // 2 + 2 < NSTEP // 2:
            dm += dmaA(tt // 2 + 2)
        if OPT['pf'] == 1 and tt % 4 == 1 and tt < 28:
            dm += pf_items()
        if OPT.get('cpf') == 3 and tt == 28:
            dm.append(lambda: a.vmem(f"global_load_dword v{V_T + 28}, v{V_T + 29}, s[{S_CB}:{S_CB + 1}]", "pf"))
        if OPT['pf'] in (2, 3, 4, 7) and tt == 28:
            dm += pf_items()
        if OPT['pf'] in (3, 4, 5, 6, 7, 8) and tt % 4 == 1 and 4 <= tt < 28:
            dm += pf_items({3: 1 << 4, 4: (1 << 5) | (1 << 3), 5: 1 << 1, 6: 1 << 3, 7: 1 << 1, 8: (1 << 2) | (1 << 4)}[OPT['pf']])
        if OPT.get('pt') and tt % 4 == 3 and tt < 28:
            dm += pt_items()
        if tt == OPT.get('m2', 9):
            dm += misc_items2
        if tt == 3:
            dm += misc_items
        fl = []
        i1 = i2 = 0
        n1, n2 = len(rd), len(dm)
        while i1 < n1 or i2 < n2:
            if i2 < n2 and (i1 >= n1 or i2 * n1 <= i1 * n2):
                fl.append(dm[i2]); i2 += 1
            else:
                fl.append(rd[i1]); i1 += 1
        if OPT.get('p2m'):
            if tt == NSTEP - 2:
                gi = g_items()
                fl2 = []
                for k_ in range(max(len(fl), len(gi))):
                    fl2 += fl[k_:k_ + 1] + gi[k_:k_ + 1]
                fl = fl2
            if tt == NSTEP - 1:
                fl = capture(a, lambda: p2_math(a), chunk=2)
        elif tt == NSTEP - 1:
            assert "g" not in a.vm
            fl = g_items()
        nb_ = OPT.get('bt', 0)
        fe_ = OPT.get('fe', 48)
        if OPT.get('rdf') and rd and dm:
            schedule(a, mf[:52 - nb_], [(rd, 0, OPT['rdf']), (dm, OPT.get('dm0', 1), fe_)])
        else:
            interleave(a, mf[:52 - nb_], fl, 0, fe_)
        if tt + 1 < NSTEP:
            tags = []
            if tt + 2 < NSTEP:
                tags.append(f"B{tt + 2}")
            if tt % 2 == 0:
                tags.append(f"A{tt // 2 + 1}")
            a.wait(tags, lgkm=True)
            if tt + 2 < NSTEP:
                e("s_barrier")
        for x in mf[52 - nb_:]:
            e(x)

    iters = []
    for it in range(8):
        n0 = len(a.lines)
        for tt in range(4 * it, 4 * it + 4):
            step(tt)
        iters.append(a.lines[n0:])
        del a.lines[n0:]
    for it in range(2, 7):
        assert iters[it] == iters[1], f"iteration {it} differs"
    stamp(a, 3)
    if DIAG and OPT.get('ts'):
        e("s_mov_b32 s78, 0")
    a.lines += iters[0]
    if not OPT.get('ts') and not OPT.get('kst'):
        stamp(a, 4)
    e(f"s_mov_b32 s{S_CNT}, 6")
    a.label(f"L_k1{T}_loop")
    a.lines += iters[1]
    e(f"s_sub_u32 s{S_CNT}, s{S_CNT}, 1")
    e(f"s_cmp_lg_u32 s{S_CNT}, 0")
    e(f"s_cbranch_scc1 L_k1{T}_loop")
    a.lines += iters[7]
    assert all(not t.startswith(("A", "B")) for t in a.vm), a.vm

    stamp(a, 5)

    def fin():
        stamp(a, 6)
        stamp(a, 7)
        k = a.vm_count(["#eA"], drop=False)
        if DIAG:
            k += 16
        stamp_dump(a, 0, 8, S_WAVE, S_PTR + 20, S_PTR + 21, V_T)
        e(f"s_cmp_eq_u32 s{P_SEARLY}, 0")
        e("s_cbranch_scc1 L_p2_late")
        e(f"s_waitcnt vmcnt({k})")
        e("s_branch L_p2_go")

    pb_state = [0]

    def pb(n=1):
        for _ in range(n):
            k = pb_state[0]
            if k >= OPT.get('pb', 0):
                return
            for i in range(4):
                a.vmem(f"buffer_load_dwordx4 {ar(128 + 16 * k + 4 * i)}, v{P_VBD + i}, s[{P_SW2}:{P_SW2 + 3}], s{P_SOB} offen offset:{1024 * i}", "pb")
            e(f"s_add_u32 s{P_SOB}, s{P_SOB}, s{P_SSB}")
            pb_state[0] += 1

    def fe_load():
        a.vmem(f"buffer_load_dwordx2 v[{P_VFL}:{P_VFL + 1}], v{P_VFA}, s[{S_WS}:{S_WS + 3}], 0 offen sc1", "fe")

    def fe_check():
        a.wait(["fe"])
        e(f"v_cmp_eq_u64 vcc, v[{P_VFL}:{P_VFL + 1}], v[{V_TOK}:{V_TOK + 1}]")
        e(f"s_mov_b32 s{P_SEARLY}, 0")
        e("s_nop 0")
        e("s_cmp_eq_u64 vcc, -1")
        e(f"s_cbranch_scc0 L_k1{T}_noearly")
        p2_issueA(a)
        e(f"s_mov_b32 s{P_SEARLY}, 1")
        a.label(f"L_k1{T}_noearly")
        a.mark("eA")

    def setflag(lane):
        a.label(f"L_k1{T}_tw")
        e(f"v_readfirstlane_b32 s{S_T}, v{V_TOK + 1}")
        e(f"v_readfirstlane_b32 s{S_T + 1}, v{V_TOK}")
        e("s_nop 3")
        e(f"s_min_u32 s{S_T}, s{S_T}, s{S_T + 1}")
        e(f"s_cmp_lg_u32 s{S_T}, 0")
        e(f"s_cbranch_scc1 L_k1{T}_tok")
        e("s_add_u32 s3, s3, 1")
        e("s_cmp_gt_u32 s3, 0x40000")
        e(f"s_cbranch_scc1 L_k1{T}_tok")
        e("s_sleep 4")
        e(f"buffer_load_dwordx2 v[{V_TOK}:{V_TOK + 1}], v12, s[{S_T + 4}:{S_T + 7}], 0 offen sc1")
        e("s_waitcnt vmcnt(0)")
        e(f"s_branch L_k1{T}_tw")
        a.label(f"L_k1{T}_tok")
        e(f"s_mov_b64 exec, {1 << lane}")
        a.vmem(f"buffer_store_dwordx2 v[{V_TOK}:{V_TOK + 1}], v0, s[{S_WS}:{S_WS + 3}], 0 offen sc1", "fl")
        e("s_mov_b64 exec, -1")
    e("s_barrier")
    if OPT.get('tke'):
        tok_load(a)
    e("s_mov_b32 s3, 0")
    e(f"s_mov_b32 s{S_L2E}, {L2E_HEX}")
    e(f"s_mov_b32 s{S_L2E + 1}, {L2E_HEX}")
    e(f"s_lshl_b32 s{S_T}, s{S_RB}, 1")
    e(f"s_lshr_b32 s{S_T + 1}, s{S_WAVE}, 1")
    e(f"s_add_u32 s{S_T}, s{S_T}, s{S_T + 1}")
    e(f"s_mul_i32 s{S_AFB}, s{S_T}, {144 * 8192}")
    e(f"s_and_b32 s{S_T + 1}, s{S_WAVE}, 1")
    e(f"s_lshl_b32 s{S_T + 1}, s{S_T + 1}, 12")
    e(f"s_add_u32 s{S_AFB}, s{S_AFB}, s{S_T + 1}")
    e("s_nop 7")
    TT, UU = V_T, V_T + 8

    def phi_group(ra, rb_):
        prs = [ra, ra + 2, rb_, rb_ + 2]
        for j, p in enumerate(prs):
            e(f"v_pk_mul_f32 {vr(TT + 2 * j, 2)}, {vr(p, 2)}, s[{S_L2E}:{S_L2E + 1}]")
        for j in range(8):
            e(f"v_exp_f32_e64 v{TT + j}, v{TT + j} clamp")
        for p in prs:
            e(f"v_max_f32 v{p}, {EPS_HEX}, v{p}")
            e(f"v_max_f32 v{p + 1}, {EPS_HEX}, v{p + 1}")
        for j, p in enumerate(prs):
            e(f"v_pk_add_f32 {vr(p, 2)}, {vr(p, 2)}, {vr(TT + 2 * j, 2)}")
        for j, p in enumerate(prs):
            e(f"v_cvt_pk_bf16_f32 v{ra + j}, v{p}, v{p + 1}")

    def cvt_group(ra, rb_):
        prs = [ra, ra + 2, rb_, rb_ + 2]
        for j, p in enumerate(prs):
            e(f"v_cvt_pk_bf16_f32 v{ra + j}, v{p}, v{p + 1}")

    def mish_group(ra, rb_, split=False, dst=None):
        prs = [ra, ra + 2, rb_, rb_ + 2]
        for j, p in enumerate(prs):
            e(f"v_pk_mul_f32 {vr(TT + 2 * j, 2)}, {vr(p, 2)}, s[{S_L2E}:{S_L2E + 1}]")
        for j in range(8):
            e(f"v_exp_f32 v{TT + j}, v{TT + j}")
        for j in range(4):
            e(f"v_pk_fma_f32 {vr(UU + 2 * j, 2)}, {vr(TT + 2 * j, 2)}, 0.5, 1.0 op_sel_hi:[1,0,0]")
        for j in range(4):
            e(f"v_pk_fma_f32 {vr(UU + 2 * j, 2)}, {vr(TT + 2 * j, 2)}, {vr(UU + 2 * j, 2)}, 1.0 op_sel_hi:[1,1,0]")
        for j in range(8):
            e(f"v_rcp_f32 v{UU + j}, v{UU + j}")
        for j, p in enumerate(prs):
            e(f"v_pk_fma_f32 {vr(p, 2)}, {vr(UU + 2 * j, 2)}, {vr(p, 2)}, {vr(p, 2)} neg_lo:[1,0,0] neg_hi:[1,0,0]")
        if split:
            e(f"v_cvt_pk_bf16_f32 v{ra}, v{ra}, v{ra + 1}")
            e(f"v_cvt_pk_bf16_f32 v{ra + 1}, v{ra + 2}, v{ra + 3}")
            e(f"v_cvt_pk_bf16_f32 v{rb_}, v{rb_}, v{rb_ + 1}")
            e(f"v_cvt_pk_bf16_f32 v{rb_ + 1}, v{rb_ + 2}, v{rb_ + 3}")
        else:
            dd = ra if dst is None else dst
            for j, p in enumerate(prs):
                e(f"v_cvt_pk_bf16_f32 v{dd + j}, v{p}, v{p + 1}")

    WS = f"s[{S_WS}:{S_WS + 3}]"

    def set_kb(sreg, mul, add):
        e(f"s_mul_i32 s{sreg}, s{S_P}, {mul * 8192}")
        e(f"s_add_u32 s{sreg}, s{sreg}, {add * 8192}")
        e(f"s_add_u32 s{sreg}, s{sreg}, s{S_AFB}")

    def h_late(tA, kbl, sreg, mid=None):
        set_kb(sreg, 7, kbl)
        for mt in range(4):
            mish_group(acc(tA, mt), acc(tA + 1, mt))
            if mt == 1 and mid:
                mid()

    def h_half_late(tA, half):
        set_kb(P_SL + 2, 7, 2)
        if half:
            e(f"s_add_u32 s{P_SL + 2}, s{P_SL + 2}, 512")
        for mp in range(2):
            mish_group(acc(tA, 2 * mp), acc(tA, 2 * mp + 1), dst=240 + 4 * mp)
        e("s_nop 1")
        for mp in range(2):
            e(f"v_permlane16_swap_b32 v{240 + 4 * mp}, v{242 + 4 * mp}")
            e(f"v_permlane16_swap_b32 v{241 + 4 * mp}, v{243 + 4 * mp}")

    def h_full(tA, kbl, tag='st'):
        set_kb(S_T + 2, 7, kbl)
        for mt in range(4):
            mish_group(acc(tA, mt), acc(tA + 1, mt))
            a.vmem(f"buffer_store_dwordx4 {vr(acc(tA, mt))}, v{V_L16}, {WS}, s{S_T + 2} offen offset:{1024 * mt} {OPT['st']}", tag)

    def h_half(tA, kbl, half):
        set_kb(S_T + 2, 7, kbl)
        for mp in range(2):
            mish_group(acc(tA, 2 * mp), acc(tA, 2 * mp + 1), split=True)
            for mt in (2 * mp, 2 * mp + 1):
                a.vmem(f"buffer_store_dwordx2 {vr(acc(tA, mt), 2)}, v{V_L16}, {WS}, s{S_T + 2} offen offset:{1024 * mt + 8 * half} {OPT['st']}", "st")

    if typ == 1:
        h_full(5, 3, "se")
        h_full(7, 4, "se")
        if OPT.get('fepos') == 10:
            a.wait(["se", "zc"])
            setflag(0)
        p2_early(a)
        if OPT.get('fepos') == 9:
            a.wait(["se", "zc"])
            setflag(0)
        for hd in range(2):
            set_kb(S_T + 2, 2, 112 + hd)
            for mt in range(4):
                phi_group(acc(2 * hd, mt), acc(2 * hd + 1, mt))
                a.vmem(f"buffer_store_dwordx4 {vr(acc(2 * hd, mt))}, v{V_L16}, {WS}, s{S_T + 2} offen offset:{1024 * mt} {OPT['st']}", "sq")
                if 4 * hd + mt == OPT.get('fepos', 4):
                    a.wait(["se", "zc"])
                    setflag(0)
                if 4 * hd + mt >= OPT.get('fepos', 4):
                    pb()
        pb(8)
        h_late(9, 5, P_SL, mid=fe_load)
        h_late(11, 6, P_SL + 1, mid=fe_check)
        h_half_late(4, 1)
        fin()
        return

    h_full(8, 0, "se")
    h_full(10, 1, "se")
    if OPT.get('fepos') == 10:
        a.wait(["se", "zc"])
        setflag(0)
    p2_early(a)
    if OPT.get('fepos') == 9:
        a.wait(["se", "zc"])
        setflag(0)
    ONES = V_T + 16
    for r in range(4):
        e(f"v_mov_b32 v{ONES + r}, 0x3f803f80")
    for t in range(4):
        for pr in range(2):
            phi_group(acc(t, 2 * pr), acc(t, 2 * pr + 1))
            if 2 * t + pr == OPT.get('fepos', 4):
                a.wait(["se", "zc"])
                setflag(0)
            if 2 * t + pr >= OPT.get('fepos', 4):
                pb()
    pb(8)
    for t in range(4, 8):
        for pr in range(2):
            cvt_group(acc(t, 2 * pr), acc(t, 2 * pr + 1))
    e("s_nop 1")
    free = [acc(t, m) for t in range(8) for m in (1, 3)]

    def Dt(tau):
        return free[tau]
    for pr in range(2):
        for hd in range(2):
            for dt in range(2):
                for et in range(3):
                    tau = hd * 6 + dt * 3 + et
                    Aop = vr(acc(2 * hd + dt, 2 * pr))
                    Bop = vr(acc(4 + 2 * hd + et, 2 * pr)) if et < 2 else vr(ONES)
                    C = "0" if pr == 0 else vr(Dt(tau))
                    e(f"v_mfma_f32_16x16x32_bf16 {vr(Dt(tau))}, {Aop}, {Bop}, {C}")
    vw, vrd = V_T + 20, V_T + 21
    e(f"s_mul_i32 s{S_T}, s{S_WAVE}, 12288")
    e(f"s_add_u32 s{S_T}, s{S_T}, 98304")
    e(f"v_add_u32 v{vw}, s{S_T}, v{V_L16}")
    e(f"s_mul_i32 s{S_T}, s{S_WAVE}, 3072")
    e(f"s_add_u32 s{S_T}, s{S_T}, 98304")
    e(f"v_add_u32 v{vrd}, s{S_T}, v{V_L16}")
    fe_load()
    e("s_nop 7")
    for tau in range(12):
        e(f"ds_write_b128 v{vw}, {vr(Dt(tau))} offset:{1024 * tau}")
    e(f"s_lshl_b32 s{S_T}, s{S_P}, 3")
    e(f"s_add_u32 s{S_T}, s{S_T}, s{S_RB}")
    e(f"s_mul_i32 s{S_T}, s{S_T}, 12288")
    e(f"s_mul_i32 s{S_T + 1}, s{S_WAVE}, 3072")
    e(f"s_add_u32 s{S_T}, s{S_T}, s{S_T + 1}")
    e(f"s_add_u32 s{S_T + 10}, s{S_T}, {KVP_OFF}")
    h_half_late(12, 0)
    e(f"s_mov_b32 s{P_SL}, 0x7ff00000")
    e(f"s_mov_b32 s{P_SL + 1}, 0x7ff00000")
    e("s_waitcnt lgkmcnt(0)")
    e("s_barrier")
    R = [acc(t, m) for t in range(8) for m in (0, 2)]
    for w2 in range(4):
        for j in range(3):
            e(f"ds_read_b128 {vr(R[3 * w2 + j])}, v{vrd} offset:{12288 * w2 + 1024 * j}")
    fe_check()
    e("s_waitcnt lgkmcnt(0)")
    for j in range(3):
        for h2 in range(2):
            b0 = R[j] + 2 * h2
            e(f"v_pk_add_f32 {vr(b0, 2)}, {vr(b0, 2)}, {vr(R[3 + j] + 2 * h2, 2)}")
            e(f"v_pk_add_f32 {vr(R[6 + j] + 2 * h2, 2)}, {vr(R[6 + j] + 2 * h2, 2)}, {vr(R[9 + j] + 2 * h2, 2)}")
        for h2 in range(2):
            b0 = R[j] + 2 * h2
            e(f"v_pk_add_f32 {vr(b0, 2)}, {vr(b0, 2)}, {vr(R[6 + j] + 2 * h2, 2)}")
        a.vmem(f"buffer_store_dwordx4 {vr(R[j])}, v{V_L16}, {WS}, s{S_T + 10} offen offset:{1024 * j} sc1", "sq")
    fin()


def gen_k1():
    a = Asm()
    e = a.e
    a.lines.append(".globl KNAME\n.p2align 8\n.type KNAME,@function\nKNAME:")
    if OPT.get('spin'):
        stamp(a, 0)
    e("s_cmp_ge_u32 s2, 256")
    e("s_cbranch_scc1 L_k1_exit")
    e(f"s_load_dwordx16 s[{S_PTR}:{S_PTR + 15}], s[0:1], 0")
    if OPT.get('cpf') >= 2:
        e(f"s_getpc_b64 s[{S_CB}:{S_CB + 1}]")
        a.label("L_pc_0")
        e(f"s_sub_u32 s{S_CB}, s{S_CB}, L_pc_0-KNAME")
        e(f"s_subb_u32 s{S_CB + 1}, s{S_CB + 1}, 0")
        e(f"s_lshl_b32 s{S_T}, s2, 12")
        e(f"s_and_b32 s{S_T}, s{S_T}, 0x18000")
        e(f"v_lshlrev_b32 v{V_T + 29}, 7, v0")
        e(f"v_add_u32 v{V_T + 29}, s{S_T}, v{V_T + 29}")
        e(f"v_min_u32 v{V_T + 29}, L_code_end-KNAME-4, v{V_T + 29}")
        e(f"global_load_dword v{V_T + 28}, v{V_T + 29}, s[{S_CB}:{S_CB + 1}]")
    e(f"s_load_dwordx4 s[{S_PTR + 16}:{S_PTR + 19}], s[0:1], 64")
    e(f"s_load_dwordx2 s[{S_PTR + 20}:{S_PTR + 21}], s[0:1], 80")
    e(f"v_and_b32 v{V_LANE}, 63, v0")
    e(f"v_lshrrev_b32 v{V_T}, 6, v0")
    e(f"s_and_b32 s{S_T}, s2, 7")
    e(f"v_readfirstlane_b32 s{S_WAVE}, v{V_T}")
    e(f"s_lshr_b32 s{S_T + 1}, s2, 3")
    if OPT.get('map1', 0) == 0:
        e(f"s_and_b32 s{S_RB}, s{S_T}, 1")
        e(f"s_lshl_b32 s{S_RB}, s{S_RB}, 2")
        e(f"s_and_b32 s{S_T + 2}, s{S_T + 1}, 3")
        e(f"s_add_u32 s{S_RB}, s{S_RB}, s{S_T + 2}")
        e(f"s_lshr_b32 s{S_T}, s{S_T}, 1")
        e(f"s_lshl_b32 s{S_T}, s{S_T}, 3")
        e(f"s_lshr_b32 s{S_T + 1}, s{S_T + 1}, 2")
        e(f"s_add_u32 s{S_T}, s{S_T}, s{S_T + 1}")
    elif OPT['map1'] == 1:
        e(f"s_and_b32 s{S_RB}, s{S_T + 1}, 7")
        e(f"s_lshl_b32 s{S_T}, s{S_T}, 2")
        e(f"s_lshr_b32 s{S_T + 1}, s{S_T + 1}, 3")
        e(f"s_add_u32 s{S_T}, s{S_T}, s{S_T + 1}")
    else:
        e(f"s_and_b32 s{S_RB}, s{S_T}, 3")
        e(f"s_lshl_b32 s{S_RB}, s{S_RB}, 1")
        e(f"s_and_b32 s{S_T + 2}, s{S_T + 1}, 1")
        e(f"s_add_u32 s{S_RB}, s{S_RB}, s{S_T + 2}")
        e(f"s_lshr_b32 s{S_T}, s{S_T}, 2")
        e(f"s_lshl_b32 s{S_T}, s{S_T}, 4")
        e(f"s_lshr_b32 s{S_T + 1}, s{S_T + 1}, 1")
        e(f"s_add_u32 s{S_T}, s{S_T}, s{S_T + 1}")
    e(f"s_lshr_b32 s{S_P}, s{S_T}, 1")
    e(f"s_and_b32 s{S_T + 3}, s{S_T}, 1")
    e(f"s_cmp_lg_u32 s{S_T + 3}, 0")
    e("s_cbranch_scc1 L_k1_typeB")
    k1_body(a, 0)
    a.label("L_k1_typeB")
    a.vm = []
    k1_body(a, 1)
    a.vm = []
    phase2(a)
    a.label("L_k1_exit")
    e("s_endpgm")
    a.label("L_code_end")
    return a.lines


def K2_LDS():
    return OPT['S'] * 32768 + 24576


def fold_loops(a, iters, period, scnt, name):
    n = len(iters)
    i = 0
    lab = 0
    while i < n:
        reps = 1
        while i + (reps + 1) * period <= n and all(
                iters[i + k] == iters[i + reps * period + k] for k in range(period)):
            reps += 1
        if reps >= 2:
            a.e(f"s_mov_b32 s{scnt}, {reps}")
            a.label(f"L_{name}_{lab}")
            for k in range(period):
                a.lines += iters[i + k]
            a.e(f"s_sub_u32 s{scnt}, s{scnt}, 1")
            a.e(f"s_cmp_lg_u32 s{scnt}, 0")
            a.e(f"s_cbranch_scc1 L_{name}_{lab}")
            lab += 1
            i += reps * period
        else:
            a.lines += iters[i]
            i += 1


def schedule(a, mf, streams):
    n = len(mf)
    placed = []
    for si, (items, start, end) in enumerate(streams):
        m = len(items)
        prev = 0
        for j, it in enumerate(items):
            fn, early = it if isinstance(it, tuple) else (it, 0)
            pos = start + (j * (end - start)) / max(m, 1)
            pos = max(pos, early, prev)
            prev = pos
            placed.append((pos, si, j, fn))
    placed.sort(key=lambda x: (x[0], x[1], x[2]))
    k = 0
    if n == 0:
        for p in placed:
            p[3]()
        return
    for i in range(n):
        a.e(mf[i])
        while k < len(placed) and placed[k][0] < i + 1:
            placed[k][3]()
            k += 1
    while k < len(placed):
        placed[k][3]()
        k += 1


P_SW2, P_SWO, P_SWS, P_SOUT = 96, 20, 16, 4
P_SMT, P_SNT, P_SROLE, P_STILE = 8, 9, 10, 11
P_SOA, P_SOB, P_SOP, P_SM0A, P_SM0B = 12, 13, 14, 15, 27
P_SHD, P_SM2, P_SEARLY = 28, 29, 30
P_VBD = 2
P_SLOT = 32768


def tile_decode(a, smt, snt, srole, stile, st):
    e = a.e
    e(f"s_and_b32 s{st}, s2, 7")
    e(f"s_lshr_b32 s{st + 1}, s2, 3")
    e(f"s_and_b32 s{srole}, s{st}, 1")
    if OPT.get('rsw'):
        e(f"s_xor_b32 s{srole}, s{srole}, 1")
    e(f"s_lshr_b32 s{st}, s{st}, 1")
    if OPT['map'] == 0:
        e(f"s_and_b32 s{smt}, s{st}, 1")
        e(f"s_lshl_b32 s{smt}, s{smt}, 3")
        e(f"s_and_b32 s{stile}, s{st + 1}, 7")
        e(f"s_add_u32 s{smt}, s{smt}, s{stile}")
        e(f"s_lshr_b32 s{snt}, s{st}, 1")
        e(f"s_lshl_b32 s{snt}, s{snt}, 2")
        e(f"s_lshr_b32 s{st + 1}, s{st + 1}, 3")
        e(f"s_add_u32 s{snt}, s{snt}, s{st + 1}")
    else:
        e(f"s_lshl_b32 s{smt}, s{st}, 2")
        e(f"s_and_b32 s{stile}, s{st + 1}, 3")
        e(f"s_add_u32 s{smt}, s{smt}, s{stile}")
        e(f"s_lshr_b32 s{snt}, s{st + 1}, 2")
    e(f"s_lshl_b32 s{stile}, s{smt}, 3")
    e(f"s_add_u32 s{stile}, s{stile}, s{snt}")


P_VAD, P_VFA, P_VFL = 8, 9, 10
P_SSA, P_SSB = 31, 32
P_SL = 4


def p2_setrun(a, first_expr, stride):
    e = a.e
    c0, c1 = first_expr
    e(f"s_lshr_b32 s{S_T + 11}, s{S_WAVE}, 1")
    e(f"s_mul_i32 s{S_T + 11}, s{S_T + 11}, {c1}")
    e(f"s_add_u32 s{S_T + 11}, s{S_T + 11}, {c0}")
    return S_T + 11


def p2_math(a):
    e = a.e
    S = OPT['S']
    ST = S_T
    tile_decode(a, P_SMT, P_SNT, P_SROLE, P_STILE, ST)
    vi, vG, t0, t1, t2 = 6, 7, 8, 9, 10
    e(f"v_and_b32 v{vi}, 15, v{V_LANE}")
    e(f"v_lshrrev_b32 v{vG}, 4, v{V_LANE}")
    e(f"s_lshl_b32 s{P_SM0A}, s{S_WAVE}, 12")
    e(f"s_add_u32 s{P_SM0B}, s{P_SM0A}, 16384")
    e(f"s_lshl_b32 s{ST}, s{P_SNT}, 8")
    e(f"s_and_b32 s{ST + 3}, s{S_WAVE}, 1")
    e(f"s_lshl_b32 s{ST + 1}, s{ST + 3}, 15")
    e(f"s_add_u32 s{ST}, s{ST}, s{ST + 1}")
    e(f"v_lshlrev_b32 v{t0}, 11, v{vG}")
    e(f"v_add_u32 v{t0}, s{ST}, v{t0}")
    e(f"v_lshlrev_b32 v{t1}, 1, v{vG}")
    e(f"v_xor_b32 v{t1}, v{t1}, v{vi}")
    for j in range(4):
        if j & 1:
            e(f"v_xor_b32 v{t2}, 8, v{t1}")
            e(f"v_lshlrev_b32 v{t2}, 4, v{t2}")
        else:
            e(f"v_lshlrev_b32 v{t2}, 4, v{t1}")
        e(f"v_add_u32 v{t2}, v{t2}, v{t0}")
        e(f"v_add_u32 v{P_VBD + j}, {j * (8192 - 1024)}, v{t2}")
    e(f"s_mul_i32 s{ST}, s{P_SROLE}, 3")
    e(f"s_lshr_b32 s{ST + 1}, s{S_WAVE}, 1")
    e(f"s_add_u32 s{ST}, s{ST}, s{ST + 1}")
    e(f"s_lshl_b32 s{P_SOB}, s{ST}, 16")
    e(f"s_mul_i32 s{P_SOA}, s{P_SMT}, 144")
    e(f"s_add_u32 s{P_SOA}, s{P_SOA}, s{ST}")
    e(f"s_lshl_b32 s{P_SOA}, s{P_SOA}, 13")
    e(f"s_mov_b32 s{P_SSA}, {7 * 8192}")
    e(f"s_mov_b32 s{P_SSB}, {7 * 65536}")
    e(f"s_lshl_b32 s{ST + 3}, s{ST + 3}, 12")
    e(f"v_add_u32 v{P_VAD}, s{ST + 3}, v{V_L16}")
    e(f"s_lshl_b32 s{ST}, s{P_SMT}, 1")
    e(f"s_add_u32 s{ST}, s{ST}, s{P_SROLE}")
    e(f"s_lshl_b32 s{ST}, s{ST}, 8")
    e(f"s_add_u32 s{ST}, s{ST}, {FE_OFF}")
    e(f"v_and_b32 v{P_VFA}, 31, v{V_LANE}")
    e(f"v_lshlrev_b32 v{P_VFA}, 3, v{P_VFA}")
    e(f"v_add_u32 v{P_VFA}, s{ST}, v{P_VFA}")


def tok_load(a):
    srd(a, S_T + 4, S_PTR + 18, S_PTR + 19, 256)
    a.e(f"v_mov_b32 v12, 0")
    a.vmem(f"buffer_load_dwordx2 v[{V_TOK}:{V_TOK + 1}], v12, s[{S_T + 4}:{S_T + 7}], 0 offen sc1", "zc")


def p2_early(a):
    e = a.e
    S = OPT['S']
    ST = S_T
    if not OPT.get('p2m'):
        p2_math(a)
    if not OPT.get('tke'):
        tok_load(a)
    for j in range(S - 1):
        e(f"s_add_u32 m0, s{P_SM0B}, {j * P_SLOT}")
        e("s_nop 0")
        for i in range(4):
            a.vmem(f"buffer_load_dwordx4 v{P_VBD + i}, s[{P_SW2}:{P_SW2 + 3}], s{P_SOB} offen offset:{1024 * i} lds", "eB")
        e(f"s_add_u32 s{P_SOB}, s{P_SOB}, s{P_SSB}")


def p2_issueA(a):
    e = a.e
    for j in range(OPT['S'] - 1):
        e(f"s_add_u32 m0, s{P_SM0A}, {j * P_SLOT}")
        e("s_nop 0")
        for i in range(4):
            e(f"buffer_load_dwordx4 v{P_VAD}, s[{P_SWS}:{P_SWS + 3}], s{P_SOA} offen offset:{1024 * i} {OPT['k2a']} lds")
        e(f"s_add_u32 s{P_SOA}, s{P_SOA}, s{P_SSA}")


def phase2(a):
    e = a.e
    S = OPT['S']
    n0 = OPT['n0']
    SLOT = P_SLOT
    SCR = S * SLOT
    SWAVE = S_WAVE
    ST = S_T
    SCNT = S_CNT
    SMT, SNT, SROLE, STILE = P_SMT, P_SNT, P_SROLE, P_STILE
    SOA, SOB, SOP, SM0A, SM0B = P_SOA, P_SOB, P_SOP, P_SM0A, P_SM0B
    SW2, SWO, SOUT = P_SW2, P_SWO, P_SOUT
    WS = f"s[{P_SWS}:{P_SWS + 3}]"
    NBASE = (S + 1) // 2
    VL, VL16, VBD = V_LANE, V_L16, P_VBD
    vi, vG = 6, 7
    VZ = 11
    VAD = 8
    VFL = 10
    VFA = 9
    VAR = 12
    VBR = 18
    VT = 30
    VG = 38
    VOMG = 42
    VEPS = 46
    VEPS = 48
    CG = 52
    CR = 60
    CKV = 68
    CW = 80
    VX = 192
    VY = 84
    AC = 128
    t0, t1, t2, t3 = VT, VT + 1, VT + 2, VT + 3

    def acc2(mt, nt):
        return AC + 16 * mt + 4 * nt

    def FA(j, b, mt):
        return 64 * (j % 2) + 32 * b + 4 * mt

    def FB(j, b, nt):
        return 64 * (j % 2) + 32 * b + 16 + 4 * nt

    def setflag(*lanes):
        e(f"s_mov_b64 exec, {sum(1 << l for l in lanes)}")
        a.vmem(f"buffer_store_dwordx2 v[{V_TOK}:{V_TOK + 1}], v0, {WS}, 0 offen sc1", "fl")
        e("s_mov_b64 exec, -1")

    VQ = 120
    VH = 16

    def fq_load():
        a.vmem(f"buffer_load_dwordx2 v[{VQ}:{VQ + 1}], v{VQ + 2}, {WS}, 0 offen sc1", "fq")

    a.label("L_p2_late")
    e(f"buffer_load_dwordx2 v[{VFL}:{VFL + 1}], v{VFA}, {WS}, 0 offen sc1")
    e("s_waitcnt vmcnt(0)")
    e(f"v_cmp_eq_u64 vcc, v[{VFL}:{VFL + 1}], v[{V_TOK}:{V_TOK + 1}]")
    e("s_nop 1")
    e("s_cmp_eq_u64 vcc, -1")
    e("s_cbranch_scc1 L_p2_fok")
    e("s_add_u32 s3, s3, 1")
    e("s_cmp_gt_u32 s3, 0x40000")
    e("s_cbranch_scc1 L_p2_fok")
    e(f"s_sleep {OPT.get('slp', 4)}")
    e("s_branch L_p2_late")
    a.label("L_p2_fok")
    p2_issueA(a)
    e("s_waitcnt vmcnt(0)")
    a.label("L_p2_go")
    stamp(a, 0)
    a.vm = ["old"]
    e(f"s_and_b32 s{ST}, s{SWAVE}, 1")
    e(f"s_lshl_b32 s{ST}, s{ST}, 12")
    e(f"v_add_u32 v{VAR}, s{ST}, v{VL16}")
    for k in range(1, NBASE):
        e(f"v_add_u32 v{VAR + k}, {65536 * k}, v{VAR}")
    e(f"v_lshlrev_b32 v{t0}, 2, v{vG}")
    e(f"v_lshrrev_b32 v{t1}, 2, v{vi}")
    e(f"v_add_u32 v{t0}, v{t0}, v{t1}")
    e(f"v_and_b32 v{t1}, 7, v{t0}")
    e(f"s_lshr_b32 s{ST}, s{SWAVE}, 1")
    e(f"s_lshl_b32 s{ST}, s{ST}, 2")
    e(f"v_xor_b32 v{t1}, s{ST}, v{t1}")
    e(f"v_lshlrev_b32 v{t0}, 8, v{t0}")
    e(f"v_and_b32 v{t2}, 3, v{vi}")
    e(f"v_lshlrev_b32 v{t2}, 3, v{t2}")
    e(f"v_add_u32 v{t0}, v{t0}, v{t2}")
    e(f"v_add_u32 v{t0}, 16384, v{t0}")
    for nt in range(4):
        e(f"v_xor_b32 v{t3}, {nt}, v{t1}")
        e(f"v_lshlrev_b32 v{t3}, 5, v{t3}")
        e(f"v_add_u32 v{VBR + nt}, v{t0}, v{t3}")
        for k in range(1, NBASE):
            e(f"v_add_u32 v{VBR + 4 * k + nt}, {65536 * k}, v{VBR + nt}")
    VBW = 26
    e(f"v_add_u32 v{VBW}, s{SM0B}, v{VL16}")
    e(f"v_add_u32 v{VBW + 1}, 65536, v{VBW}")
    e(f"v_and_b32 v{t0}, 1, v{vG}")
    e(f"v_lshlrev_b32 v{t0}, 10, v{t0}")
    e(f"v_lshrrev_b32 v{t1}, 1, v{vG}")
    e(f"v_lshlrev_b32 v{t1}, 8, v{t1}")
    e(f"v_lshlrev_b32 v{VH}, 4, v{vi}")
    e(f"v_add3_u32 v{VH}, v{VH}, v{t0}, v{t1}")
    stamp(a, 1)
    e(f"s_cmp_eq_u32 s{SROLE}, 0")
    e(f"s_cbranch_scc1 L_p2_r0")
    vm_save = list(a.vm)

    import math
    PERIOD = S * 4 // math.gcd(S, 4)

    def body(role):
        R = f"r{role}"
        o0 = OPT.get('o0', 5)
        na0 = n0 - o0
        assert 16 < na0 <= 32 and 5 <= o0 <= 11
        nact = na0 if role == 0 else 56 - na0
        N = nact + (o0 if role == 0 else 16 - o0)
        JO = nact - (S - 1)
        JP = N - OPT['pj']
        if role == 0:
            runs = {16: (5, 1, 7)}
        else:
            nl1 = 32 - na0
            runs = {16 + nl1: (2, 7, 14)}
            if nl1:
                runs[16] = (5 + 7 * (na0 - 16), 1, 7)

        def bperm(op):
            e(f"s_and_b32 s{ST + 9}, s{SWAVE}, 1")
            e(f"s_mul_i32 s{ST + 9}, s{ST + 9}, {-12 * 2048}")
            for j4 in range(4):
                e(f"{op} v{VBD + j4}, s{ST + 9}, v{VBD + j4}")
                if j4 < 3:
                    e(f"s_add_u32 s{ST + 9}, s{ST + 9}, {4 * 2048}")

        def newrun(j):
            if j == nact:
                def sw():
                    e(f"s_lshr_b32 s{ST + 11}, s{SWAVE}, 1")
                    if role:
                        e(f"s_add_u32 s{ST + 11}, s{ST + 11}, {2 * o0}")
                    e(f"s_lshl_b32 s{SOB}, s{ST + 11}, 16")
                    e(f"s_lshl_b32 s{SOA}, s{SMT}, 5")
                    e(f"s_add_u32 s{SOA}, s{SOA}, s{ST + 11}")
                    e(f"s_lshl_b32 s{SOA}, s{SOA}, 13")
                    e(f"s_add_u32 s{SOA}, s{SOA}, {OF_OFF}")
                    e(f"s_mov_b32 s{P_SSA}, 16384")
                    e(f"s_mov_b32 s{P_SSB}, 131072")
                    if role == 1:
                        bperm("v_subrev_u32")
                return [sw]
            if j in runs:
                c0, c1, st_ = runs[j]

                def sw():
                    r = p2_setrun(a, (c0, c1), st_)
                    e(f"s_lshl_b32 s{SOB}, s{r}, 16")
                    e(f"s_mul_i32 s{SOA}, s{SMT}, 144")
                    e(f"s_add_u32 s{SOA}, s{SOA}, s{r}")
                    e(f"s_lshl_b32 s{SOA}, s{SOA}, 13")
                    e(f"s_mov_b32 s{P_SSA}, {st_ * 8192}")
                    e(f"s_mov_b32 s{P_SSB}, {st_ * 65536}")
                    if st_ == 14:
                        bperm("v_add_u32")
                return [sw]
            return []

        def dmaA(j):
            f = newrun(j)
            f.append(lambda: e(f"s_add_u32 m0, s{SM0A}, {(j % S) * SLOT}"))
            for i in range(4):
                f.append(lambda i=i: a.vmem(
                    f"buffer_load_dwordx4 v{VAD}, {WS}, s{SOA} offen offset:{1024 * i} {OPT['k2a']} lds", f"D{j}"))
            f.append(lambda: e(f"s_add_u32 s{SOA}, s{SOA}, s{P_SSA}"))
            return f

        def dmaB(j):
            sr = SW2 if j < nact else SWO
            f = []
            k = j - (S - 1)
            if 0 <= k < OPT.get('pb', 0):
                sl = j % S
                for i in range(4):
                    f.append(lambda i=i: e(
                        f"ds_write_b128 v{VBW + sl // 2}, {ar(128 + 16 * k + 4 * i)} offset:{(sl % 2) * SLOT + 1024 * i}"))
                return f
            f.append(lambda: e(f"s_add_u32 m0, s{SM0B}, {(j % S) * SLOT}"))
            for i in range(4):
                f.append(lambda i=i: a.vmem(
                    f"buffer_load_dwordx4 v{VBD + i}, s[{sr}:{sr + 3}], s{SOB} offen offset:{1024 * i} lds", f"D{j}"))
            f.append(lambda: e(f"s_add_u32 s{SOB}, s{SOB}, s{P_SSB}"))
            return f

        def reads(j):
            sl = j % S
            k, so = sl // 2, (sl % 2) * SLOT
            f = []
            for q in range(4):
                for b in range(2):
                    f.append(lambda b=b, q=q: e(
                        f"ds_read_b128 {ar(FA(j, b, q))}, v{VAR + k} offset:{so + 8192 * b + 1024 * q}"))
                    for ins in range(2):
                        f.append(lambda b=b, q=q, ins=ins: e(
                            f"ds_read_b64_tr_b16 {ar(FB(j, b, q) + 2 * ins, 2)}, v{VBR + 4 * k + q} offset:{so + 8192 * b + 4096 * ins}"))
            return f

        late = []
        for mp in range(2):
            late.append(f"buffer_store_dwordx4 {vr(240 + 4 * mp)}, v{VH}, {WS}, s{P_SL + 2} offen offset:{2048 * mp} sc1")
        for g_, base in enumerate((192, 224)):
            for mt in range(4):
                late.append(f"buffer_store_dwordx4 {vr(base + 4 * mt)}, v{VL16}, {WS}, s{P_SL + g_} offen offset:{1024 * mt} sc1")
        TR = OPT.get('tr', 3)
        TRS = OPT.get('trs', 0)
        NTR = -(-10 // TR) + TRS
        JFQ = OPT.get('jfq', 2)

        e("s_barrier")
        stamp(a, 2)
        VK = 48
        PD, PO, PEPS, PR = 48, 96, 112, 116

        def poll(lab, vv, reload):
            a.label(f"L_p2{R}_{lab}w")
            e(f"v_cmp_eq_u64 vcc, v[{vv}:{vv + 1}], v[{V_TOK}:{V_TOK + 1}]")
            e("s_nop 1")
            e("s_cmp_eq_u64 vcc, -1")
            e(f"s_cbranch_scc1 L_p2{R}_{lab}ok")
            e("s_add_u32 s3, s3, 1")
            e("s_cmp_gt_u32 s3, 0x40000")
            e(f"s_cbranch_scc1 L_p2{R}_{lab}ok")
            e("s_sleep 4")
            sv = list(a.vm)
            reload()
            a.vm = sv
            e("s_waitcnt vmcnt(0)")
            e(f"s_branch L_p2{R}_{lab}w")
            a.label(f"L_p2{R}_{lab}ok")

        def fl_load(tag="F"):
            a.vmem(f"buffer_load_dwordx2 v[{VFL}:{VFL + 1}], v{VFA}, {WS}, 0 offen sc1", tag)

        def red_guard(lab):
            e(f"s_cmp_eq_u32 s{P_SEARLY}, 0")
            e(f"s_cbranch_scc1 L_p2{R}_{lab}")

        J1 = OPT.get('j1', 4)
        J2 = OPT.get('j2', 12)

        def pre(j):
            if j == JFQ:
                a.wait(["old"])
            if j == NTR + 2:
                a.wait(["sl"])
            if j == 16 - S + 1:
                a.wait(["FL"])
                poll("l", VFL, fl_load)
            if j == J2 + 2:
                a.wait(["fq"])
                poll("k", VQ, fq_load)
            if j == J2 + 4:
                a.wait(["pq"])
            if j == J2 + 8:
                a.wait(["ost"])
            if j == JO:
                a.wait(["F"])
                poll("o", VFL, fl_load)
            if role == 1 and j == JP:
                a.wait(["F2"])
                poll("p", VFL, fl_load)

        def extra(j):
            if j == JFQ:
                setflag(1)
            if j == J1:
                e(f"s_and_b32 s{ST}, s2, 3")
                e(f"s_cmp_eq_u32 s{ST}, s{SWAVE}")
                e(f"s_cselect_b32 s{P_SEARLY}, 1, 0")
                e(f"s_cmp_lt_u32 s2, 192")
                e(f"s_cselect_b32 s{P_SEARLY}, s{P_SEARLY}, 0")
                e(f"s_mul_i32 s{P_SHD}, s2, 171")
                e(f"s_lshr_b32 s{P_SHD}, s{P_SHD}, 10")
                e(f"s_min_u32 s{P_SHD}, s{P_SHD}, 31")
                e(f"s_lshr_b32 s{ST}, s{P_SHD}, 1")
                e(f"s_lshl_b32 s{ST}, s{ST}, 9")
                e(f"s_add_u32 s{ST}, s{ST}, {FQ_OFF}")
                e(f"v_and_b32 v{VQ + 2}, 31, v{VL}")
                e(f"v_lshlrev_b32 v{VQ + 2}, 3, v{VQ + 2}")
                e(f"v_add_u32 v{VQ + 2}, s{ST}, v{VQ + 2}")
                fq_load()
            if j == NTR + 2:
                setflag(4)
                srd(a, SOUT, S_PTR + 16, S_PTR + 17, 2048 * 1024 * 2)
            if j == 16 - S - 1:
                e(f"s_lshl_b32 s{ST}, s{SMT}, 9")
                e(f"s_add_u32 s{ST}, s{ST}, {FA_OFF}")
                e(f"v_lshlrev_b32 v{VFA}, 3, v{VL}")
                e(f"v_add_u32 v{VFA}, s{ST}, v{VFA}")
                fl_load("FL")
            if j == 16 - S + 2:
                e(f"v_lshlrev_b32 v{t1}, 2, v{vi}")
                e(f"s_lshl_b32 s{ST}, s{SMT}, 9")
                e(f"s_and_b32 s{ST + 1}, s{SWAVE}, 1")
                e(f"s_lshl_b32 s{ST + 1}, s{ST + 1}, 8")
                e(f"s_add_u32 s{ST}, s{ST}, s{ST + 1}")
                e(f"s_add_u32 s{ST}, s{ST}, {G_OFF}")
                for i in range(4):
                    a.vmem(f"buffer_load_dword v{VG + i}, v{t1}, {WS}, s{ST} offen offset:{64 * i}", "g")
            if j == J2:
                e(f"s_and_b32 s{P_SHD}, s2, 31")
                e(f"s_lshr_b32 s{P_SM2}, s2, 5")
                e(f"s_lshr_b32 s{ST}, s{P_SHD}, 1")
                e(f"s_lshl_b32 s{ST}, s{ST}, 4")
                e(f"s_add_u32 s{ST}, s{ST}, s{P_SM2}")
                e(f"s_lshl_b32 s{ST}, s{ST}, 2")
                e(f"s_add_u32 s{ST}, s{ST}, s{SWAVE}")
                e(f"s_lshl_b32 s{ST}, s{ST}, 3")
                e(f"s_add_u32 s{ST}, s{ST}, {FQ_OFF + 256}")
                e(f"s_lshl_b32 s{ST + 1}, s{P_SHD}, 6")
                e(f"s_add_u32 s{ST + 1}, s{ST + 1}, {FK_OFF}")
                e(f"v_lshlrev_b32 v{VQ + 2}, 3, v{VL}")
                e(f"v_add_u32 v{VQ + 2}, s{ST + 1}, v{VQ + 2}")
                e(f"v_mov_b32 v{t0}, s{ST}")
                e(f"v_cmp_gt_u32 s[{ST + 2}:{ST + 3}], 6, v{VL}")
                e("s_nop 1")
                e(f"v_cndmask_b32 v{VQ + 2}, v{t0}, v{VQ + 2}, s[{ST + 2}:{ST + 3}]")
                e(f"s_lshl_b32 s{P_SM2}, s{P_SM2}, 1")
                e(f"s_lshr_b32 s{ST}, s{SWAVE}, 1")
                e(f"s_add_u32 s{P_SM2}, s{P_SM2}, s{ST}")
                fq_load()
            if j == J2 + 2:
                e(f"s_mul_i32 s{ST}, s{P_SHD}, 3072")
                e(f"s_add_u32 s{ST}, s{ST}, {KVF_OFF}")
                e(f"v_lshlrev_b32 v{t0}, 3, v{VL}")
                for i in range(6):
                    a.vmem(f"buffer_load_dwordx2 {ar(144 + 2 * i, 2)}, v{t0}, {WS}, s{ST} offen offset:{512 * i}", "pq")
                e(f"s_mul_i32 s{ST}, s{P_SM2}, 144")
                e(f"s_add_u32 s{ST}, s{ST}, s{P_SHD}")
                e(f"s_add_u32 s{ST}, s{ST}, 112")
                e(f"s_lshl_b32 s{ST}, s{ST}, 13")
                for i in range(4):
                    a.vmem(f"buffer_load_dwordx4 {ar(128 + 4 * i)}, v{VAD}, {WS}, s{ST} offen offset:{1024 * i}", "pq")
                e(f"s_lshl_b32 s{SOP}, s{P_SM2}, 5")
                e(f"s_add_u32 s{SOP}, s{SOP}, s{P_SHD}")
                e(f"s_lshl_b32 s{SOP}, s{SOP}, 13")
                e(f"s_add_u32 s{SOP}, s{SOP}, {OF_OFF}")
                for r in range(4):
                    e(f"v_mov_b32 v{PEPS + r}, {EPS_HEX}")
            if j == J2 + 5:
                for i in range(4):
                    e(f"v_rcp_f32 v{PR + i}, v{PD + 12 * i + 8}")
                e("s_nop 0")
                for i in range(4):
                    d = PD + 12 * i
                    for q in range(8):
                        e(f"v_mul_f32 v{d + q}, v{PR + i}, v{d + q}")
                    o = PO + 4 * i
                    for q in range(4):
                        e(f"v_cvt_pk_bf16_f32 v{o + q}, v{d + 2 * q}, v{d + 2 * q + 1}")
                    a.vmem(f"buffer_store_dwordx4 {vr(o)}, v{VAD}, {WS}, s{SOP} offen offset:{1024 * i} sc1", "ost")
            if j == J2 + 8:
                setflag(2)
            if j == JO - OPT.get('fod', 2):
                assert j > J2 + 8
                e(f"s_lshl_b32 s{ST}, s{SMT}, 9")
                e(f"s_add_u32 s{ST}, s{ST}, {FO_OFF}")
                if role == 0:
                    e(f"v_min_u32 v{VFA}, {4 * o0 - 1}, v{VL}")
                else:
                    e(f"v_max_u32 v{VFA}, {4 * o0}, v{VL}")
                e(f"v_lshlrev_b32 v{VFA}, 3, v{VFA}")
                e(f"v_add_u32 v{VFA}, s{ST}, v{VFA}")
                fl_load("F")
            if role == 1 and j == JP - 1:
                e(f"s_lshl_b32 s{ST}, s{STILE}, 8")
                e(f"s_lshl_b32 s{ST + 1}, s{SWAVE}, 3")
                e(f"s_add_u32 s{ST}, s{ST}, s{ST + 1}")
                e(f"s_add_u32 s{ST}, s{ST}, {FP_OFF}")
                e(f"v_mov_b32 v{VFA}, s{ST}")
                fl_load("F2")
            if role == 1 and j == JP:
                e(f"s_lshl_b32 s{ST}, s{STILE}, 16")
                e(f"s_lshl_b32 s{ST + 1}, s{SWAVE}, 13")
                e(f"s_add_u32 s{ST}, s{ST}, s{ST + 1}")
                e(f"s_add_u32 s{ST}, s{ST}, {PART_OFF}")
                for q in range(8):
                    if q == 4:
                        e(f"s_add_u32 s{ST}, s{ST}, 4096")
                    a.vmem(f"buffer_load_dwordx4 {vr(VY + 4 * q)}, v{VL16}, {WS}, s{ST} offen offset:{1024 * (q & 3)} sc1", "PT")

        def post(j):
            if j == J1 + 1:
                red_guard("nr1")
                n_ = a.vm_count(["fq"], drop=False)
                e(f"s_waitcnt vmcnt({n_})")
                poll("q", VQ, fq_load)
                e(f"s_lshr_b32 s{ST}, s{P_SHD}, 1")
                e(f"s_mul_i32 s{ST}, s{ST}, 84")
                e(f"s_add_u32 s{ST}, s{ST}, s2")
                e(f"s_lshl_b32 s{ST}, s{ST}, 10")
                e(f"s_add_u32 s{ST}, s{ST}, {KVP_OFF}")
                for r8 in range(8):
                    e(f"buffer_load_dwordx4 {vr(VK + 4 * r8)}, v{VL16}, {WS}, s{ST} offen")
                    if r8 < 7:
                        e(f"s_add_u32 s{ST}, s{ST}, 12288")
                a.label(f"L_p2{R}_nr1")
                a.mark("r1")
            if j == J1 + 3:
                red_guard("nr2")
                n_ = a.vm_count(["#r1"], drop=False)
                if n_ is not None:
                    e(f"s_waitcnt vmcnt({n_})")
                for st_ in (1, 2, 4):
                    for r8 in range(0, 8, 2 * st_):
                        for q in range(2):
                            b0 = VK + 4 * r8 + 2 * q
                            e(f"v_pk_add_f32 {vr(b0, 2)}, {vr(b0, 2)}, {vr(b0 + 4 * st_, 2)}")
                e(f"v_cvt_pk_bf16_f32 v{VK}, v{VK}, v{VK + 1}")
                e(f"v_cvt_pk_bf16_f32 v{VK + 1}, v{VK + 2}, v{VK + 3}")
                e(f"s_mul_i32 s{ST}, s{P_SHD}, 6")
                e(f"s_sub_u32 s{ST}, s2, s{ST}")
                e(f"s_cmp_ge_u32 s{ST}, 3")
                e(f"s_cselect_b32 s{ST + 1}, 1, 0")
                e(f"s_mul_i32 s{ST + 2}, s{ST + 1}, 3")
                e(f"s_sub_u32 s{ST}, s{ST}, s{ST + 2}")
                e(f"s_mul_i32 s{ST + 2}, s{P_SHD}, 3")
                e(f"s_add_u32 s{ST}, s{ST}, s{ST + 2}")
                e(f"s_lshl_b32 s{ST}, s{ST}, 10")
                e(f"s_lshl_b32 s{ST + 1}, s{ST + 1}, 9")
                e(f"s_add_u32 s{ST}, s{ST}, s{ST + 1}")
                e(f"s_add_u32 s{ST}, s{ST}, {KVF_OFF}")
                e(f"v_lshlrev_b32 v{t0}, 3, v{VL}")
                e(f"buffer_store_dwordx2 {vr(VK, 2)}, v{t0}, {WS}, s{ST} offen sc1")
                a.label(f"L_p2{R}_nr2")
                a.mark("r2")
            if j == J1 + 5:
                red_guard("nr3")
                n_ = a.vm_count(["#r2"], drop=False)
                if n_ is not None:
                    e(f"s_waitcnt vmcnt({n_})")
                e(f"s_mov_b64 exec, {1 << 5}")
                e(f"buffer_store_dwordx2 v[{V_TOK}:{V_TOK + 1}], v0, {WS}, 0 offen sc1")
                e("s_mov_b64 exec, -1")
                a.label(f"L_p2{R}_nr3")

        def interval(j):
            if DIAG and OPT.get('ts2'):
                if j == 0:
                    e("s_mov_b32 s74, 0")
                e("s_memrealtime s[76:77]")
                e("s_waitcnt lgkmcnt(0)")
                e("s_mov_b32 m0, s74")
                e("s_nop 0")
                e(f"v_writelane_b32 v{VT + 7}, s76, m0")
                e("s_add_u32 s74, s74, 1")
            main = []
            if j >= 1:
                for mt in range(4):
                    for nt in range(4):
                        D = vr(acc2(mt, nt) + (64 if j - 1 >= nact else 0))
                        for b in range(2):
                            C = "0" if (j in (1, nact + 1) and b == 0) else D
                            main.append(f"v_mfma_f32_16x16x32_bf16 {D}, {ar(FB(j - 1, b, nt))}, {ar(FA(j - 1, b, mt))}, {C}")
            pre(j)
            if j == J2 + 4:
                pm = []
                for i in range(4):
                    d = PD + 12 * i
                    pq = ar(128 + 4 * i)
                    pm += [f"v_mfma_f32_16x16x32_bf16 {vr(d + 8)}, {ar(152)}, {pq}, {vr(PEPS)}",
                           f"v_mfma_f32_16x16x32_bf16 {vr(d)}, {ar(144)}, {pq}, 0",
                           f"v_mfma_f32_16x16x32_bf16 {vr(d + 4)}, {ar(148)}, {pq}, 0"]
                main = pm + main
            rd = reads(j) if j < N else []
            dm = (dmaA(j + S - 1) + dmaB(j + S - 1)) if j + S - 1 < N else []
            for x in (late[TR * (j - TRS): TR * (j - TRS) + TR] if j >= TRS else []):
                dm.append(lambda x=x: a.vmem(x, "sl"))
            streams = []
            if nact + 1 <= j <= nact + 4:
                mt = j - (nact + 1)
                it = []
                if mt == 0:
                    a.wait(["g"])
                it.append(lambda mt=mt: e(f"v_sub_f32 v{VOMG + mt}, 1.0, v{VG + mt}"))
                for q in range(16):
                    it.append(lambda mt=mt, q=q: e(f"v_mul_f32 v{acc2(mt, 0) + q}, v{VOMG + mt}, v{acc2(mt, 0) + q}"))
                streams.append((it, 10, 30))
            n = max(len(main), 1)
            ex = capture(a, lambda: extra(j), chunk=1)
            if ex:
                streams.append((ex, 1, min(n * 0.97, 1 + 1.2 * len(ex))))
            schedule(a, main, [(rd, 0, n * 0.85), (dm, 0.5, n * 0.95)] + streams)
            post(j)
            if j < N:
                a.wait([f"D{j + 1}"] if j + 1 < N else [], lgkm=True)
                if j + 1 < N:
                    e("s_barrier")

        iters = []
        for j in range(N + 1):
            n_ = len(a.lines)
            if j == 4:
                stamp(a, 3)
            if j == nact:
                stamp(a, 4)
            interval(j)
            iters.append(a.lines[n_:])
            del a.lines[n_:]
        fold_loops(a, iters, PERIOD, SCNT, f"p2{R}")
        stamp(a, 5)
        if role == 0:
            e(f"s_lshl_b32 s{ST}, s{STILE}, 16")
            e(f"s_lshl_b32 s{ST + 1}, s{SWAVE}, 13")
            e(f"s_add_u32 s{ST}, s{ST}, s{ST + 1}")
            e(f"s_add_u32 s{ST}, s{ST}, {PART_OFF}")
            e("s_nop 7")
        else:
            vo = VT + 4
            if OPT.get('fl'):
                e(f"v_and_b32 v{t2}, 7, v{vi}")
                e(f"v_lshlrev_b32 v{t2}, 11, v{t2}")
                e(f"v_lshrrev_b32 v{t3}, 3, v{vi}")
                e(f"v_lshlrev_b32 v{t3}, 6, v{t3}")
                e(f"v_add_u32 v{t2}, v{t2}, v{t3}")
            else:
                e(f"v_lshlrev_b32 v{t2}, 11, v{vi}")
            e(f"v_bfe_u32 v{t3}, v{VL}, 4, 1")
            e(f"v_lshlrev_b32 v{t3}, 5, v{t3}")
            e(f"v_add_u32 v{t2}, v{t2}, v{t3}")
            e(f"v_lshrrev_b32 v{t3}, 5, v{VL}")
            e(f"v_lshlrev_b32 v{t3}, 4, v{t3}")
            e(f"v_add_u32 v{vo}, v{t2}, v{t3}")
            e(f"v_add_u32 v{vo + 1}, 16384, v{vo}")
            e(f"s_lshl_b32 s{ST}, s{SMT}, 7")
            e(f"s_and_b32 s{ST + 1}, s{SWAVE}, 1")
            e(f"s_lshl_b32 s{ST + 1}, s{ST + 1}, 6")
            e(f"s_add_u32 s{ST}, s{ST}, s{ST + 1}")
            e(f"s_lshl_b32 s{ST}, s{ST}, 11")
            e(f"s_lshl_b32 s{ST + 1}, s{SNT}, 8")
            e(f"s_add_u32 s{ST}, s{ST}, s{ST + 1}")
            e(f"s_lshr_b32 s{ST + 1}, s{SWAVE}, 1")
            e(f"s_lshl_b32 s{ST + 1}, s{ST + 1}, 7")
            e(f"s_add_u32 s{ST}, s{ST}, s{ST + 1}")
            if OPT.get('fl') == 2:
                vw_, vr_ = 116, 118
                e(f"s_lshl_b32 s{ST + 1}, s{SWAVE}, 13")
                e(f"s_add_u32 s{ST + 1}, s{ST + 1}, {((N - 2) % S) * SLOT}")
                e(f"v_and_b32 v{t0}, 1, v{vG}")
                e(f"v_lshlrev_b32 v{t0}, 1, v{t0}")
                e(f"v_lshrrev_b32 v{t1}, 1, v{vG}")
                e(f"v_add_u32 v{t0}, v{t0}, v{t1}")
                e(f"v_and_b32 v{t1}, 7, v{vi}")
                e(f"v_xor_b32 v{t0}, v{t0}, v{t1}")
                e(f"v_lshlrev_b32 v{t1}, 7, v{vi}")
                e(f"v_add_u32 v{t1}, s{ST + 1}, v{t1}")
                e(f"v_lshlrev_b32 v{t2}, 4, v{t0}")
                e(f"v_add_u32 v{vw_}, v{t1}, v{t2}")
                e(f"v_xor_b32 v{t2}, 64, v{t2}")
                e(f"v_add_u32 v{vw_ + 1}, v{t1}, v{t2}")
                e(f"v_lshrrev_b32 v{t0}, 3, v{VL}")
                e(f"v_and_b32 v{t1}, 7, v{VL}")
                e(f"v_xor_b32 v{t2}, v{t0}, v{t1}")
                e(f"v_lshlrev_b32 v{t2}, 4, v{t2}")
                e(f"v_lshlrev_b32 v{t3}, 7, v{t0}")
                e(f"v_add3_u32 v{vr_}, v{t2}, v{t3}, s{ST + 1}")
                e(f"v_lshlrev_b32 v{t0}, 11, v{t0}")
                e(f"v_lshlrev_b32 v{t1}, 4, v{t1}")
                e(f"v_add_u32 v{vo}, v{t0}, v{t1}")
            a.wait(["PT"])
        for mt in range(4):
            sel = "op_sel:[1,0,0] op_sel_hi:[1,1,1]" if mt & 1 else "op_sel_hi:[0,1,1]"
            for q in range(8):
                b0 = acc2(mt, 0) + 2 * q
                e(f"v_pk_fma_f32 {vr(b0, 2)}, {vr(VG + (mt & 2), 2)}, {vr(b0 + 64, 2)}, {vr(b0, 2)} {sel}")
            if role == 0:
                for h2 in range(2):
                    q = 2 * mt + h2
                    b0 = AC + 8 * q
                    for r in range(4):
                        e(f"v_cvt_pk_bf16_f32 v{b0 + r}, v{b0 + 2 * r}, v{b0 + 2 * r + 1}")
                    e(f"buffer_store_dwordx4 {vr(b0)}, v{VL16}, {WS}, s{ST} offen offset:{1024 * (q & 3)} sc1")
                    if q == 3:
                        e(f"s_add_u32 s{ST}, s{ST}, 4096")
            else:
                for q in range(8):
                    p0 = VY + 8 * mt + q
                    u = 48 + 2 * q
                    e(f"v_lshlrev_b32 v{u}, 16, v{p0}")
                    e(f"v_and_b32 v{u + 1}, 0xffff0000, v{p0}")
                for q in range(8):
                    b0 = acc2(mt, 0) + 2 * q
                    e(f"v_pk_add_f32 {vr(b0, 2)}, {vr(b0, 2)}, {vr(48 + 2 * q, 2)}")
                for pr in range(2):
                    b0 = acc2(mt, 2 * pr)
                    for q in range(4):
                        e(f"v_cvt_pk_bf16_f32 v{b0 + q}, v{b0 + 2 * q}, v{b0 + 2 * q + 1}")
                e("s_nop 1")
                for pr in range(2):
                    b0 = acc2(mt, 2 * pr)
                    e(f"v_permlane16_swap_b32 v{b0}, v{b0 + 2}")
                    e(f"v_permlane16_swap_b32 v{b0 + 1}, v{b0 + 3}")
                if OPT.get('fl') == 2:
                    for pr in range(2):
                        e(f"ds_write_b128 v{vw_ + pr}, {vr(acc2(mt, 2 * pr))} offset:{2048 * mt}")
                    continue
                elif OPT.get('fl'):
                    q0, q1 = acc2(mt, 0), acc2(mt, 2)
                    tq = q0 + 4
                    for r in range(4):
                        e(f"v_mov_b32 v{tq + r}, v{q0 + r}")
                    for r in range(4):
                        e(f"v_mov_b32_dpp v{q0 + r}, v{q1 + r} row_ror:8 row_mask:0xf bank_mask:0xc")
                    for r in range(4):
                        e(f"v_mov_b32_dpp v{q1 + r}, v{tq + r} row_ror:8 row_mask:0xf bank_mask:0x3")
                    e(f"buffer_store_dwordx4 {vr(q0)}, v{vo}, s[{SOUT}:{SOUT + 3}], s{ST} offen {OPT.get('ost', '')}")
                    e(f"buffer_store_dwordx4 {vr(q1)}, v{vo + 1}, s[{SOUT}:{SOUT + 3}], s{ST} offen {OPT.get('ost', '')}")
                else:
                    for pr in range(2):
                        b0 = acc2(mt, 2 * pr)
                        e(f"buffer_store_dwordx4 {vr(b0)}, v{vo}, s[{SOUT}:{SOUT + 3}], s{ST} offen offset:{64 * pr} {OPT.get('ost', '')}")
                if mt < 3:
                    e(f"s_add_u32 s{ST}, s{ST}, 32768")
        if role == 1 and OPT.get('fl') == 2:
            e("s_waitcnt lgkmcnt(0)")
            for q in range(8):
                e(f"ds_read_b128 {vr(AC + 64 + 4 * q)}, v{vr_} offset:{1024 * q}")
            for q in range(8):
                e(f"s_waitcnt lgkmcnt({7 - q})")
                e(f"buffer_store_dwordx4 {vr(AC + 64 + 4 * q)}, v{vo}, s[{SOUT}:{SOUT + 3}], s{ST} offen {OPT.get('ost', '')}")
                if q < 7:
                    e(f"s_add_u32 s{ST}, s{ST}, 16384")
        if role == 0:
            e("s_waitcnt vmcnt(0)")
            setflag(3)
        stamp(a, 6)
        if DIAG and OPT.get('ts2'):
            e(f"s_mov_b32 s76, s{S_PTR + 20}")
            e(f"s_and_b32 s77, s{S_PTR + 21}, 0xffff")
            e(f"s_mov_b32 s78, 0x4000000")
            e(f"s_mov_b32 s79, 0x20000")
            e(f"s_lshl_b32 s75, s2, 2")
            e(f"s_add_u32 s75, s75, s{S_WAVE}")
            e(f"s_lshl_b32 s75, s75, 8")
            e(f"s_add_u32 s75, s75, {DIAG_OFF + 0x200000}")
            e(f"v_lshlrev_b32 v{VT}, 2, v{VL}")
            e(f"buffer_store_dword v{VT + 7}, v{VT}, s[76:79], s75 offen")
        if DIAG:
            e("s_waitcnt vmcnt(0)")
        stamp(a, 7)
        stamp_dump(a, 1, 8, SWAVE, S_PTR + 20, S_PTR + 21, VT + 5)
        e("s_endpgm")

    body(1)
    a.label("L_p2_r0")
    a.vm = vm_save
    body(0)


def fix_hazards(lines):
    out = []
    for i, ln in enumerate(lines):
        out.append(ln)
        if " m0," in ln and i + 1 < len(lines) and lines[i + 1].rstrip().endswith("lds"):
            out.append("  s_nop 0")
    return out


def gen_spin():
    a = Asm()
    e = a.e
    spec = OPT['spin']
    A_, B_, M = spec.split(",")
    a.lines.append(".globl spin_kernel\n.p2align 8\n.type spin_kernel,@function\nspin_kernel:")
    e("s_cmp_lg_u32 s2, 0")
    e("s_cbranch_scc1 L_spin_end")
    e("s_load_dwordx2 s[4:5], s[0:1], 80")
    e("v_lshlrev_b32 v1, 7, v0")
    e("s_waitcnt lgkmcnt(0)")
    e("s_mov_b32 s8, s4\ns_and_b32 s9, s5, 0xffff\ns_mov_b32 s10, 0x4000000\ns_mov_b32 s11, 0x20000")

    def red(sp, sdst):
        k, st, op = sp.split(".")
        base = DIAG_OFF + int(k) * 0x100000 + 8 * int(st) + 4
        for i in range(16):
            e(f"s_mov_b32 s12, {base + i * 8192}")
            e(f"buffer_load_dword v{8 + i}, v1, s[8:11], s12 offen")
        e("s_waitcnt vmcnt(0)")
        for i in range(1, 16):
            e(f"v_{op}_u32 v8, v8, v{8 + i}")
        e("s_nop 1")
        e(f"v_readlane_b32 s{sdst}, v8, 0")
        for l in range(1, 64):
            e(f"v_readlane_b32 s13, v8, {l}")
            e("s_nop 0")
            e(f"s_{op}_u32 s{sdst}, s{sdst}, s13")
    red("0.0.min", 20)
    red(A_, 21)
    red(B_, 22)
    e("s_sub_u32 s22, s22, s21")
    e(f"s_mul_i32 s22, s22, {M}")
    e("s_add_u32 s22, s22, 12000")
    e("s_min_u32 s22, s22, 90000")
    a.label("L_spin")
    e("s_memrealtime s[14:15]")
    e("s_waitcnt lgkmcnt(0)")
    e("s_sub_u32 s16, s14, s20")
    e("s_cmp_lt_u32 s16, s22")
    e("s_cbranch_scc1 L_spin")
    a.label("L_spin_end")
    e("s_endpgm")
    return a.lines


def kd(name, nfv, accum):
    return f""".amdhsa_kernel {name}
  .amdhsa_next_free_vgpr {nfv}
  .amdhsa_next_free_sgpr 102
  .amdhsa_accum_offset {accum}
  .amdhsa_group_segment_fixed_size 0
  .amdhsa_kernarg_size 88
  .amdhsa_user_sgpr_count 2
  .amdhsa_user_sgpr_kernarg_segment_ptr 1
  .amdhsa_system_sgpr_workgroup_id_x 1
.end_amdhsa_kernel"""


def main(path):
    hdr = open(f"cdna_kernels/{NAME}.s.ref").read().split("; Override launch")[0]
    out = [hdr.rstrip("\n")]
    kn = NAME + "_kernel"
    if OPT.get('spin'):
        out.append(f"; @launch kernel={kn} grid=(256,1,1) block=(256,1,1) lds={K2_LDS()}")
        out.append("; @launch kernel=spin_kernel grid=(1,1,1) block=(64,1,1) lds=0")
    else:
        out.append(f"; @launch grid=(256,1,1) block=(256,1,1) lds={K2_LDS()}")
    out.append('.amdgcn_target "amdgcn-amd-amdhsa--gfx950"')
    out.append(".text")
    out += [ln.replace("KNAME", kn) for ln in fix_hazards(gen_k1())]
    if OPT.get('spin'):
        out += gen_spin()
    out.append('.section .rodata,"a"')
    if OPT.get('spin'):
        out.append(".p2align 6")
        out.append(kd("spin_kernel", 32, 32))
    out.append(".p2align 6")
    out.append(kd(kn, 512 if OPT.get("pb") else 416, 256))
    open(path, "w").write("\n".join(out) + "\n")


if __name__ == "__main__":
    if "--dbgout" in sys.argv:
        DBGOUT = True
        sys.argv.remove("--dbgout")
    if "--diag" in sys.argv:
        DIAG = True
        sys.argv.remove("--diag")
    for arg in list(sys.argv):
        if "=" in arg:
            k_, v_ = arg.split("=")
            OPT[k_] = int(v_) if v_.isdigit() else v_.replace("+", " ")
            sys.argv.remove(arg)
    main(sys.argv[1] if len(sys.argv) > 1 else f"cdna_kernels/{NAME}.s")
```

```python
import sys

NAME = "gated_mix__linear_attn_block__dense_activation_mish__prompt"

AF_OFF = 0
AF_BYTES = 16 * 144 * 8 * 1024
KVP_OFF = AF_BYTES
KVP_BYTES = 16 * 8 * 12 * 1024
KVF_OFF = KVP_OFF + KVP_BYTES
KVF_BYTES = 32 * 3 * 1024
G_OFF = KVF_OFF + KVF_BYTES
PART_OFF = G_OFF + 8192
OF_OFF = PART_OFF + 128 * 65536
FLG_OFF = OF_OFF + 16 * 32 * 8192
FE_OFF = FLG_OFF - 0 + 32768 + 128 * 256
FA_OFF = FLG_OFF
FQ_OFF = FA_OFF + 8192
FO_OFF = FQ_OFF + 8192
FP_OFF = FO_OFF + 8192
FK_OFF = FE_OFF + 8192
WS_USED = FK_OFF + 2048
assert FP_OFF + 128 * 256 <= FE_OFF
V_TOK = 14

DIAG = False
DBGOUT = False
OPT = dict(k1a="", k1b="", k2a="", k2b="", st="sc1", ost="sc1", fl=1, pf=2, xpf=0, n0=34, o0=6, tr=5, cpf=2, map=0, fepos=1, S=4, pbf=1, pj=1, pprio=0, cprio=0, rdend=26)
DIAG_OFF = 0x2000000
EPS_HEX = "0x358637bd"
L2E_HEX = "0x3fb8aa3b"


class Asm:
    def __init__(self):
        self.lines = []
        self.vm = []

    def e(self, s):
        for ln in s.split("\n"):
            self.lines.append("  " + ln.strip())

    def label(self, s):
        self.lines.append(s + ":")

    def vmem(self, s, tag):
        self.e(s)
        self.vm.append(tag)

    def mark(self, tag):
        self.vm.append("#" + tag)

    def vm_count(self, tags, drop=True):
        idx = -1
        for i, t in enumerate(self.vm):
            if t in tags:
                idx = i
        if idx < 0:
            return None
        n = sum(1 for t in self.vm[idx + 1:] if not t.startswith("#"))
        if drop:
            self.vm = self.vm[idx + 1:]
        assert n <= 63, n
        return n

    def wait(self, tags=(), lgkm=False):
        n = self.vm_count(tags) if tags else None
        parts = []
        if n is not None:
            parts.append(f"vmcnt({n})")
        if lgkm:
            parts.append("lgkmcnt(0)")
        if parts:
            self.e("s_waitcnt " + " ".join(parts))


def stamp(a, idx, sbase=80):
    if not DIAG:
        return
    a.e(f"s_memtime s[{sbase - 4}:{sbase - 3}]")
    a.e(f"s_memrealtime s[{sbase - 2}:{sbase - 1}]")
    a.e("s_waitcnt lgkmcnt(0)")
    a.e(f"s_mov_b32 s{sbase + 2 * idx}, s{sbase - 4}")
    a.e(f"s_mov_b32 s{sbase + 2 * idx + 1}, s{sbase - 2}")


def stamp_dump(a, kidx, n, swave, sptr_lo, sptr_hi, vtmp, sbase=80):
    if not DIAG:
        return
    e = a.e
    e(f"s_mov_b32 s{sbase - 4}, s{sptr_lo}")
    e(f"s_and_b32 s{sbase - 3}, s{sptr_hi}, 0xffff")
    e(f"s_mov_b32 s{sbase - 2}, 0x4000000")
    e(f"s_mov_b32 s{sbase - 1}, 0x20000")
    e(f"s_lshl_b32 s75, s2, 2")
    e(f"s_add_u32 s75, s75, s{swave}")
    e(f"s_lshl_b32 s75, s75, 7")
    e(f"s_add_u32 s75, s75, {DIAG_OFF + kidx * 0x100000}")
    e(f"v_mov_b32 v{vtmp}, 0")
    e("s_mov_b64 exec, 1")
    for i in range(2 * n):
        e(f"v_mov_b32 v{vtmp + 1}, s{sbase + i}")
        e(f"buffer_store_dword v{vtmp + 1}, v{vtmp}, s[{sbase - 4}:{sbase - 1}], s75 offen offset:{4 * i}")
        e("s_nop 1")
    e("s_mov_b64 exec, -1")
    if DBGOUT:
        lab = f"L_dbg_{len(a.lines)}"
        e(f"s_cmp_lg_u32 s2, 1")
        e(f"s_cbranch_scc1 {lab}")
        e(f"s_cmp_lg_u32 s{swave}, 0")
        e(f"s_cbranch_scc1 {lab}")
        e(f"s_mov_b32 s{sbase - 4}, s{sptr_lo - 2}")
        e(f"s_and_b32 s{sbase - 3}, s{sptr_hi - 2}, 0xffff")
        e(f"s_mov_b32 s{sbase - 2}, 256")
        e("s_mov_b64 exec, 1")
        for i in range(n):
            e(f"v_mov_b32 v{vtmp + 1}, s{sbase + 2 * i + 1}")
            e(f"buffer_store_dword v{vtmp + 1}, v{vtmp}, s[{sbase - 4}:{sbase - 1}], 0 offen offset:{4 * i + 32 * kidx}")
            e("s_nop 1")
        e("s_mov_b64 exec, -1")
        a.label(lab)


def vr(b, n=4):
    return f"v[{b}:{b + n - 1}]"


def ar(b, n=4):
    return f"a[{b}:{b + n - 1}]"


def interleave(a, mf, fillers, start=0, end=None):
    n = len(mf)
    if end is None:
        end = n
    nf = len(fillers)
    pos = [start + (j * (end - start)) // max(nf, 1) for j in range(nf)]
    j = 0
    for m in range(n):
        a.e(mf[m])
        while j < nf and pos[j] <= m:
            f = fillers[j]
            f()
            j += 1
    while j < nf:
        fillers[j]()
        j += 1


def capture(a, fn, chunk=2):
    n0_ = len(a.lines)
    vm0 = list(a.vm)
    fn()
    lines = a.lines[n0_:]
    tags = a.vm[len(vm0):]
    del a.lines[n0_:]
    a.vm = vm0
    items = []
    cur = []
    depth = 0
    ti = 0
    for ln in lines:
        cur.append(ln)
        if "s_cbranch" in ln or "s_mov_b64 exec, " in ln and "-1" not in ln or "s_cmp" in ln or "s_getpc" in ln or "s_sub_u32" in ln and "KNAME" in ln:
            depth = 1
        if ln.endswith(":") and not ln.startswith(" ") and "L_pc" not in ln or "s_mov_b64 exec, -1" in ln and not any("s_cbranch" in x for x in cur) or "s_cselect" in ln or "s_subb_u32" in ln:
            depth = 0
        if depth == 0 and len(cur) >= chunk:
            items.append(cur)
            cur = []
    if cur:
        items.append(cur)
    out = []
    for it in items:
        guarded = any("s_cbranch" in x for x in it)
        nv = 0 if guarded else sum(1 for x in it if x.strip().startswith(("buffer_", "global_")))
        tg = tags[ti:ti + nv]
        ti += nv

        def emit(it=it, tg=tg):
            a.lines.extend(it)
            a.vm.extend(tg)
        out.append(emit)
    rest = tags[ti:]
    assert all(t.startswith("#") for t in rest), (ti, tags)
    if rest:
        out.append(lambda rest=rest: a.vm.extend(rest))
    return out


def srd(a, d, lo, hi, nbytes, bias=0):
    if bias:
        a.e(f"s_sub_u32 s{d}, s{lo}, {bias}")
        a.e(f"s_subb_u32 s{d + 1}, s{hi}, 0")
        a.e(f"s_and_b32 s{d + 1}, s{d + 1}, 0xffff")
    else:
        a.e(f"s_mov_b32 s{d}, s{lo}")
        a.e(f"s_and_b32 s{d + 1}, s{hi}, 0xffff")
    a.e(f"s_mov_b32 s{d + 2}, {nbytes + bias}")
    a.e(f"s_mov_b32 s{d + 3}, 0x20000")


K1_BSLOT = 13312
K1_AREA = 3328
K1_ABASE = 4 * K1_BSLOT
K1_LDS = K1_ABASE + 4 * 16384
ACC0 = 48


def acc(t, mt):
    return ACC0 + 16 * t + 4 * mt


V_LANE = 1
V_ARD = 2
V_QRD = 4
V_HRD = 8
V_ADMA = 9
V_BDMA = 13
V_L16 = 17
V_T = 18
S_X, S_Q, S_W1, S_WS, S_MISC = 4, 8, 12, 16, 20
S_WAVE, S_RB, S_P = 24, 25, 26
S_OFFA, S_OFFA2, S_OFFQ, S_OFFH = 27, 28, 29, 30
S_M0B, S_M0A = 31, 32
S_CNT = 33
S_QM = 34
S_PTR = 36
S_L2E = 58
S_T = 60
S_AFB = 72
S_GROW = 73
S_PO1, S_PO2 = 74, 3
S_PT, S_PTE = 100, 101
S_CB = 100
S_PF1, S_PF2 = 96, 20


def bset(s, t):
    return 52 * s + 4 * t


ASET = {"X": 104, "Y": 120, "Z": 136}


def k1_body(a, typ):
    T = "A" if typ == 0 else "B"
    nq = 8 if typ == 0 else 4
    nh = 13 - nq
    Ph = 2 * nh
    HB = 256 * nq
    e = a.e
    vi, vG, t0, t1, t2, t3 = V_T, V_T + 1, V_T + 2, V_T + 3, V_T + 4, V_T + 5
    e(f"v_and_b32 v{vi}, 15, v{V_LANE}")
    e(f"v_lshrrev_b32 v{vG}, 4, v{V_LANE}")
    e(f"s_mul_i32 s{S_T + 2}, s{S_P}, 448")
    if typ:
        e(f"s_add_u32 s{S_T + 2}, s{S_T + 2}, 160")

    e(f"s_lshr_b32 s{S_T + 8}, s{S_WAVE}, 1")
    e(f"s_lshl_b32 s{S_T + 8}, s{S_T + 8}, 4")
    e(f"s_and_b32 s{S_T + 9}, s{S_WAVE}, 1")
    e(f"s_lshl_b32 s{S_T + 9}, s{S_T + 9}, 2")
    e(f"s_add_u32 s{S_T + 8}, s{S_T + 8}, s{S_T + 9}")

    def krow(dst, kp, tmp):
        e(f"v_lshrrev_b32 v{tmp}, 2, v{kp}")
        e(f"v_lshlrev_b32 v{tmp}, 3, v{tmp}")
        e(f"v_and_b32 v{dst}, 3, v{kp}")
        e(f"v_add3_u32 v{dst}, v{dst}, v{tmp}, s{S_T + 8}")

    e(f"v_lshrrev_b32 v{t0}, 3, v{V_LANE}")
    krow(t1, t0, t2)
    e(f"v_mul_u32_u24 v{t1}, 6144, v{t1}")
    e(f"v_lshrrev_b32 v{t2}, 1, v{t0}")
    e(f"v_and_b32 v{t2}, 3, v{t2}")
    e(f"v_lshlrev_b32 v{t2}, 1, v{t2}")
    e(f"v_and_b32 v{t3}, 7, v{V_LANE}")
    e(f"v_xor_b32 v{t3}, v{t3}, v{t2}")
    e(f"v_lshlrev_b32 v{t3}, 4, v{t3}")
    e(f"v_add_u32 v{t1}, v{t1}, v{t3}")
    e(f"s_lshl_b32 s{S_T + 9}, s{S_P}, 7")
    e(f"s_add_u32 s{S_T + 9}, s{S_T + 9}, {4096 + (2048 if typ == 0 else 0)}")
    e(f"v_add_u32 v{V_BDMA}, s{S_T + 9}, v{t1}")
    if typ == 0:
        e(f"v_add_u32 v{V_BDMA + 1}, {2048 - 1024}, v{V_BDMA}")
    hins = [(2, 0), (3, 64)] if typ == 0 else [(1, 0), (2, 64), (3, 128)]
    magic, sh = (205, 11) if Ph == 10 else (57, 10)
    for s_ in range(8 * Ph + 64):
        if s_ < 8 * Ph:
            assert (s_ * magic) >> sh == s_ // Ph
    for slot, s0 in hins:
        e(f"v_add_u32 v{t0}, {s0}, v{V_LANE}")
        e(f"v_mul_u32_u24 v{t1}, {magic}, v{t0}")
        e(f"v_lshrrev_b32 v{t1}, {sh}, v{t1}")
        e(f"v_mul_u32_u24 v{t2}, {Ph}, v{t1}")
        e(f"v_sub_u32 v{t0}, v{t0}, v{t2}")
        e(f"v_and_b32 v{t1}, 7, v{t1}")
        krow(t2, t1, t3)
        e(f"v_mul_u32_u24 v{t2}, 7168, v{t2}")
        e(f"v_lshlrev_b32 v{t0}, 4, v{t0}")
        e(f"v_add3_u32 v{t0}, v{t0}, v{t2}, s{S_T + 2}")
        e(f"v_add_u32 v{V_BDMA + slot}, {4096 - 1024 * slot}, v{t0}")
    e(f"s_lshl_b32 s{S_T + 9}, s{S_RB}, 8")
    e(f"s_lshl_b32 s{S_T + 10}, s{S_WAVE}, 6")
    e(f"s_add_u32 s{S_T + 9}, s{S_T + 9}, s{S_T + 10}")
    e(f"s_lshl_b32 s{S_T + 9}, s{S_T + 9}, 11")
    e(f"v_lshrrev_b32 v{t0}, 3, v{V_LANE}")
    e(f"v_lshrrev_b32 v{t1}, 1, v{t0}")
    e(f"v_and_b32 v{t2}, 7, v{V_LANE}")
    e(f"v_xor_b32 v{t2}, v{t2}, v{t1}")
    e(f"v_lshlrev_b32 v{t0}, 11, v{t0}")
    e(f"v_add_u32 v{t0}, s{S_T + 9}, v{t0}")
    for j in range(4):
        if j & 1:
            e(f"v_xor_b32 v{t3}, 4, v{t2}")
            e(f"v_lshlrev_b32 v{t3}, 4, v{t3}")
        else:
            e(f"v_lshlrev_b32 v{t3}, 4, v{t2}")
        e(f"v_add_u32 v{t3}, v{t3}, v{t0}")
        e(f"v_add_u32 v{V_ADMA + j}, {j * (16384 - 1024)}, v{t3}")
    e(f"s_mul_i32 s{S_M0B}, s{S_WAVE}, {K1_AREA}")
    e(f"s_lshl_b32 s{S_M0A}, s{S_WAVE}, 14")
    e(f"s_add_u32 s{S_M0A}, s{S_M0A}, {K1_ABASE}")
    e(f"s_mov_b32 s{S_OFFA}, 0")
    e(f"s_mov_b32 s{S_OFFA2}, 65536")
    e(f"s_mov_b32 s{S_OFFQ}, 0")
    e(f"s_mov_b32 s{S_OFFH}, 0")
    e(f"s_mov_b32 s{S_QM}, 0xffff")
    e(f"s_mov_b32 s{S_QM + 1}, 0")

    def dmaB(tt):
        slot = tt % 4
        tag = f"B{tt}"
        f = []
        srcs = [(S_Q, S_OFFQ), (S_Q, S_OFFQ) if typ == 0 else (S_W1, S_OFFH), (S_W1, S_OFFH)]
        f.append(lambda: e(f"s_add_u32 m0, s{S_M0B}, {slot * K1_BSLOT}"))
        for j in range(3):
            sr, so = srcs[j]
            f.append(lambda j=j, sr=sr, so=so: a.vmem(
                f"buffer_load_dwordx4 v{V_BDMA + j}, s[{sr}:{sr + 3}], s{so} offen offset:{1024 * j} {OPT['k1b']} lds", tag))

        def q():
            e(f"s_mov_b64 exec, s[{S_QM}:{S_QM + 1}]")
            a.vmem(f"buffer_load_dwordx4 v{V_BDMA + 3}, s[{S_W1}:{S_W1 + 3}], s{S_OFFH} offen offset:3072 {OPT['k1b']} lds", tag)
            e("s_mov_b64 exec, -1")
        f.append(q)
        f.append(lambda: e(f"s_add_u32 s{S_OFFQ}, s{S_OFFQ}, {32 * 6144}"))
        f.append(lambda: e(f"s_add_u32 s{S_OFFH}, s{S_OFFH}, {32 * 7168}"))
        return f

    def dmaA(aa):
        slot = aa % 2
        tag = f"A{aa}"
        f = []
        for half in range(2):
            so = S_OFFA if half == 0 else S_OFFA2
            f.append(lambda half=half: e(f"s_add_u32 m0, s{S_M0A}, {slot * 8192 + half * 4096}"))
            for j in range(4):
                f.append(lambda j=j, so=so: a.vmem(
                    f"buffer_load_dwordx4 v{V_ADMA + j}, s[{S_X}:{S_X + 3}], s{so} offen offset:{1024 * j} {OPT['k1a']} lds", tag))
        f.append(lambda: e(f"s_add_u32 s{S_OFFA}, s{S_OFFA}, 128"))
        f.append(lambda: e(f"s_add_u32 s{S_OFFA2}, s{S_OFFA2}, 128"))
        return f

    def run_seq(fl):
        for fn in fl:
            n0 = len(a.lines)
            fn()
            if " m0," in a.lines[-1] and len(a.lines) == n0 + 1:
                e("s_nop 0")

    e("s_waitcnt lgkmcnt(0)")
    srd(a, S_Q, S_PTR + 2, S_PTR + 3, 1024 * 3072 * 2, bias=4096)
    srd(a, S_W1, S_PTR + 8, S_PTR + 9, 1024 * 3584 * 2, bias=4096)
    srd(a, S_X, S_PTR + 0, S_PTR + 1, 2048 * 1024 * 2)
    if not OPT.get('spin'):
        stamp(a, 0)
    if OPT.get('kst'):
        stamp(a, 4)
    run_seq(dmaB(0))
    run_seq(dmaA(0))
    srd(a, S_T + 4, S_PTR + 10, S_PTR + 11, 7168)
    e(f"v_lshlrev_b32 v{t1}, 3, v{vG}")
    for j in range(nh):
        a.vmem(f"buffer_load_dwordx2 {vr(acc(nq + j, 3), 2)}, v{t1}, s[{S_T + 4}:{S_T + 7}], s{S_T + 2} offen offset:{32 * j}", "bias")
    run_seq(dmaB(1))
    if not OPT.get('ramp'):
        run_seq(dmaB(2))
        run_seq(dmaA(1))
        run_seq(dmaB(3))
    if OPT.get('ramp') == 2:
        run_seq(dmaA(1))
    if OPT.get('ramp') == 3:
        run_seq(dmaB(2))
        run_seq(dmaA(1))
    e(f"v_lshrrev_b32 v{t0}, 3, v{vi}")
    e(f"v_lshlrev_b32 v{t0}, 6, v{t0}")
    e(f"v_and_b32 v{t1}, 7, v{vi}")
    e(f"v_lshlrev_b32 v{t1}, 3, v{t1}")
    e(f"v_add_u32 v{t0}, v{t0}, v{t1}")
    e(f"v_lshrrev_b32 v{t1}, 1, v{vi}")
    e(f"v_xor_b32 v{t1}, v{t1}, v{vG}")
    e(f"v_add_u32 v{t2}, v{t0}, v{t1}")
    e(f"v_lshlrev_b32 v{t2}, 4, v{t2}")
    e(f"v_add_u32 v{V_ARD}, s{S_M0A}, v{t2}")
    e(f"v_xor_b32 v{t1}, 4, v{t1}")
    e(f"v_add_u32 v{t2}, v{t0}, v{t1}")
    e(f"v_lshlrev_b32 v{t2}, 4, v{t2}")
    e(f"v_add_u32 v{V_ARD + 1}, s{S_M0A}, v{t2}")
    e(f"v_and_b32 v{t0}, 1, v{vG}")
    e(f"v_lshlrev_b32 v{t0}, 2, v{t0}")
    e(f"v_lshrrev_b32 v{t1}, 2, v{vi}")
    e(f"v_add_u32 v{t0}, v{t0}, v{t1}")
    e(f"v_lshrrev_b32 v{t1}, 1, v{vG}")
    e(f"v_mul_u32_u24 v{t1}, {2 * K1_AREA}, v{t1}")
    e(f"v_and_b32 v{t2}, 3, v{vi}")
    e(f"v_lshlrev_b32 v{t2}, 3, v{t2}")
    e(f"v_add_u32 v{t1}, v{t1}, v{t2}")
    e(f"v_mul_u32_u24 v{t3}, {16 * Ph}, v{t0}")
    e(f"v_add3_u32 v{V_HRD}, v{t1}, v{t3}, {0}")
    e(f"v_add_u32 v{V_HRD}, {HB}, v{V_HRD}")
    e(f"v_lshlrev_b32 v{t3}, 7, v{t0}")
    e(f"v_add_u32 v{t1}, v{t1}, v{t3}")
    e(f"v_lshrrev_b32 v{t2}, 1, v{t0}")
    e(f"v_and_b32 v{t2}, 3, v{t2}")
    for t in range(4):
        e(f"v_xor_b32 v{t3}, {t}, v{t2}")
        e(f"v_lshlrev_b32 v{t3}, 5, v{t3}")
        e(f"v_add_u32 v{V_QRD + t}, v{t1}, v{t3}")
    e(f"v_lshlrev_b32 v{V_L16}, 4, v{V_LANE}")

    gw, gx0, gx1 = V_T, V_T + 8, V_T + 16
    gt = V_T + 24
    nb = {0: 1, 1: 7, 2: 1, 3: 2, 4: 3}[OPT['pf']]
    PL1, PL2 = -(-56 // nb), -(-16 // nb)

    def misc_setup():
        srd(a, S_WS, S_PTR + 20, S_PTR + 21, WS_USED)
        tile_decode(a, S_T + 4, S_T + 5, S_T + 6, S_T + 7, S_T)
        e(f"s_lshl_b32 s{S_T}, s{S_RB}, 1")
        e(f"s_lshr_b32 s{S_T + 1}, s{S_WAVE}, 1")
        e(f"s_add_u32 s{S_T}, s{S_T}, s{S_T + 1}")
        e(f"s_lshl_b32 s{S_T}, s{S_T}, 5")
        e(f"s_lshl_b32 s{S_T + 1}, s{S_P}, 1")
        e(f"s_add_u32 s{S_T}, s{S_T}, s{S_T + 1}")
        if typ:
            e(f"s_add_u32 s{S_T}, s{S_T}, 1")
        e(f"s_lshl_b32 s{S_T}, s{S_T}, 1")
        e(f"s_and_b32 s{S_T + 1}, s{S_WAVE}, 1")
        e(f"s_add_u32 s{S_T}, s{S_T}, s{S_T + 1}")
        e(f"s_lshl_b32 s{S_T}, s{S_T}, 3")
        e(f"s_add_u32 s{S_T}, s{S_T}, {FA_OFF}")
        e(f"v_writelane_b32 v0, s{S_T}, 4")
        e(f"s_lshl_b32 s{S_T}, s{S_RB}, 1")
        e(f"s_lshr_b32 s{S_T + 3}, s{S_WAVE}, 1")
        e(f"s_add_u32 s{S_T}, s{S_T}, s{S_T + 3}")
        e(f"s_lshl_b32 s{S_T}, s{S_T}, 5")
        e(f"s_add_u32 s{S_T}, s{S_T}, s{S_P}")
        e(f"s_lshl_b32 s{S_T}, s{S_T}, 1")
        e(f"s_add_u32 s{S_T}, s{S_T}, s{S_T + 1}")
        e(f"s_lshl_b32 s{S_T}, s{S_T}, 3")
        e(f"s_add_u32 s{S_T}, s{S_T}, {FE_OFF + 256 * typ}")
        e(f"v_writelane_b32 v0, s{S_T}, 0")
        e(f"s_lshl_b32 s{S_T}, s{S_P}, 4")
        e(f"s_add_u32 s{S_T}, s{S_T}, s{S_RB}")
        e(f"s_lshl_b32 s{S_T}, s{S_T}, 2")
        e(f"s_add_u32 s{S_T}, s{S_T}, s{S_WAVE}")
        e(f"s_lshl_b32 s{S_T}, s{S_T}, 3")
        e(f"s_add_u32 s{S_T}, s{S_T}, {FQ_OFF + 256 * typ}")
        e(f"v_writelane_b32 v0, s{S_T}, 1")
        e(f"s_lshr_b32 s{S_T}, s2, 5")
        e(f"s_lshl_b32 s{S_T}, s{S_T}, 1")
        e(f"s_lshr_b32 s{S_T + 1}, s{S_WAVE}, 1")
        e(f"s_add_u32 s{S_T}, s{S_T}, s{S_T + 1}")
        e(f"s_lshl_b32 s{S_T}, s{S_T}, 9")
        e(f"s_and_b32 s{S_T + 1}, s2, 31")
        e(f"s_lshl_b32 s{S_T + 1}, s{S_T + 1}, 4")
        e(f"s_add_u32 s{S_T}, s{S_T}, s{S_T + 1}")
        e(f"s_and_b32 s{S_T + 1}, s{S_WAVE}, 1")
        e(f"s_lshl_b32 s{S_T + 1}, s{S_T + 1}, 3")
        e(f"s_add_u32 s{S_T}, s{S_T}, s{S_T + 1}")
        e(f"s_add_u32 s{S_T}, s{S_T}, {FO_OFF}")
        e(f"s_lshl_b32 s{S_T + 1}, s{S_T + 7}, 8")
        e(f"s_lshl_b32 s{S_T + 3}, s{S_WAVE}, 3")
        e(f"s_add_u32 s{S_T + 1}, s{S_T + 1}, s{S_T + 3}")
        e(f"s_add_u32 s{S_T + 1}, s{S_T + 1}, {FP_OFF}")
        e(f"s_cmp_eq_u32 s{S_T + 6}, 0")
        e(f"s_cselect_b32 s{S_T + 1}, s{S_T + 1}, 0x7ffffff0")
        e(f"v_writelane_b32 v0, s{S_T}, 2")
        e(f"v_writelane_b32 v0, s{S_T + 1}, 3")
        e(f"s_mul_i32 s{S_T}, s2, 171")
        e(f"s_lshr_b32 s{S_T}, s{S_T}, 10")
        e(f"s_lshl_b32 s{S_T}, s{S_T}, 1")
        e(f"s_add_u32 s{S_T}, s{S_T}, s2")
        e(f"s_lshl_b32 s{S_T}, s{S_T}, 3")
        e(f"s_add_u32 s{S_T}, s{S_T}, {FK_OFF}")
        e(f"v_writelane_b32 v0, s{S_T}, 5")

    def misc_setup2():
        if typ == 0:
            e(f"s_or_b32 s{S_T}, s2, s{S_WAVE}")
            e(f"s_cmp_lg_u32 s{S_T}, 0")
            e(f"s_cbranch_scc1 L_notok")
            e(f"s_memrealtime s[{S_T + 8}:{S_T + 9}]")
            srd(a, S_T + 4, S_PTR + 18, S_PTR + 19, 256)
            e("s_waitcnt lgkmcnt(0)")
            e(f"s_or_b32 s{S_T + 9}, s{S_T + 9}, 0x40000000")
            e(f"s_lshl_b32 s{S_T + 9}, s{S_T + 9}, 1")
            e(f"s_and_b32 s{S_T}, s{S_T + 8}, 1")
            e(f"s_or_b32 s{S_T + 9}, s{S_T + 9}, s{S_T}")
            e(f"s_or_b32 s{S_T + 8}, s{S_T + 8}, 1")
            e(f"v_mov_b32 v{V_T + 24}, s{S_T + 8}")
            e(f"v_mov_b32 v{V_T + 25}, s{S_T + 9}")
            e(f"v_mov_b32 v{V_T + 27}, 0")
            e("s_mov_b64 exec, 1")
            e(f"buffer_store_dwordx2 v[{V_T + 24}:{V_T + 25}], v{V_T + 27}, s[{S_T + 4}:{S_T + 7}], 0 offen sc1")
            e("s_mov_b64 exec, -1")
            e("s_nop 1")
            a.label("L_notok")
        if OPT.get('cpf') == 1:
            e(f"s_getpc_b64 s[{S_T + 4}:{S_T + 5}]")
            a.label(f"L_pc_{T}")
            e(f"s_sub_u32 s{S_T + 4}, s{S_T + 4}, L_pc_{T}-KNAME")
            e(f"s_subb_u32 s{S_T + 5}, s{S_T + 5}, 0")
            e(f"s_lshr_b32 s{S_T}, s2, 3")
            e(f"s_and_b32 s{S_T}, s{S_T}, 3")
            e(f"s_lshl_b32 s{S_T}, s{S_T}, 2")
            e(f"s_add_u32 s{S_T}, s{S_T}, s{S_WAVE}")
            e(f"s_lshl_b32 s{S_T}, s{S_T}, 13")
            e(f"v_lshlrev_b32 v{V_T + 29}, 7, v{V_LANE}")
            e(f"v_add_u32 v{V_T + 29}, s{S_T}, v{V_T + 29}")
            e(f"v_min_u32 v{V_T + 29}, L_code_end-KNAME-4, v{V_T + 29}")
            a.vmem(f"global_load_dword v{V_T + 29}, v{V_T + 29}, s[{S_T + 4}:{S_T + 5}]", "pf")
        if OPT.get('xpf') == 1:
            e(f"v_and_b32 v{V_T + 28}, 31, v{V_LANE}")
            e(f"v_lshlrev_b32 v{V_T + 28}, 7, v{V_T + 28}")
            e(f"s_lshl_b32 s{S_T}, s2, 2")
            e(f"s_add_u32 s{S_T}, s{S_T}, s{S_WAVE}")
            e(f"s_lshl_b32 s{S_T}, s{S_T}, 12")
            a.vmem(f"buffer_load_dword v{V_T + 28}, v{V_T + 28}, s[{S_X}:{S_X + 3}], s{S_T} offen", "pf")
        if OPT.get('xpf') == 2:
            e(f"v_lshlrev_b32 v{V_T + 27}, 7, v{V_LANE}")
            e(f"s_lshr_b32 s{S_T}, s2, 5")
            e(f"s_lshl_b32 s{S_T}, s{S_T}, 2")
            e(f"s_add_u32 s{S_T}, s{S_T}, s{S_WAVE}")
            e(f"s_lshl_b32 s{S_T}, s{S_T}, 14")
            e(f"s_lshl_b32 s{S_T + 1}, s{S_RB}, 19")
            e(f"s_add_u32 s{S_T}, s{S_T}, s{S_T + 1}")
            a.vmem(f"buffer_load_dword v{V_T + 28}, v{V_T + 27}, s[{S_X}:{S_X + 3}], s{S_T} offen", "pf")
            e(f"s_add_u32 s{S_T}, s{S_T}, 8192")
            a.vmem(f"buffer_load_dword v{V_T + 28}, v{V_T + 27}, s[{S_X}:{S_X + 3}], s{S_T} offen", "pf")

        e(f"v_lshlrev_b32 v{gt}, 5, v{V_LANE}")
        e(f"s_lshl_b32 s{S_GROW}, s{S_RB}, 8")
        e(f"s_lshl_b32 s{S_T + 1}, s{S_WAVE}, 6")
        e(f"s_add_u32 s{S_GROW}, s{S_GROW}, s{S_T + 1}")
        e(f"s_lshl_b32 s{S_T + 1}, s{S_P}, 2")
        e(f"s_add_u32 s{S_GROW}, s{S_GROW}, s{S_T + 1}")
        if typ:
            e(f"s_add_u32 s{S_GROW}, s{S_GROW}, 2")
        e(f"s_lshl_b32 s{S_T + 1}, s{S_GROW}, 11")
        srd(a, S_MISC, S_PTR + 14, S_PTR + 15, 2048)
        a.vmem(f"buffer_load_dwordx4 {vr(gw)}, v{gt}, s[{S_MISC}:{S_MISC + 3}], 0 offen", "g")
        a.vmem(f"buffer_load_dwordx4 {vr(gw + 4)}, v{gt}, s[{S_MISC}:{S_MISC + 3}], 0 offen offset:16", "g")
        a.vmem(f"buffer_load_dwordx4 {vr(gx0)}, v{gt}, s[{S_X}:{S_X + 3}], s{S_T + 1} offen", "g")
        a.vmem(f"buffer_load_dwordx4 {vr(gx0 + 4)}, v{gt}, s[{S_X}:{S_X + 3}], s{S_T + 1} offen offset:16", "g")
        a.vmem(f"buffer_load_dwordx4 {vr(gx1)}, v{gt}, s[{S_X}:{S_X + 3}], s{S_T + 1} offen offset:2048", "g")
        a.vmem(f"buffer_load_dwordx4 {vr(gx1 + 4)}, v{gt}, s[{S_X}:{S_X + 3}], s{S_T + 1} offen offset:2064", "g")

        if OPT['pf']:
            srd(a, S_PF1, S_PTR + 12, S_PTR + 13, 3584 * 1024 * 2)
            srd(a, S_PF2, S_PTR + 4, S_PTR + 5, 1024 * 1024 * 2)
            e(f"v_min_u32 v{V_T + 26}, {PL1 - 1}, v{V_LANE}")
            e(f"v_lshlrev_b32 v{V_T + 26}, 7, v{V_T + 26}")
            e(f"v_min_u32 v{V_T + 27}, {PL2 - 1}, v{V_LANE}")
            e(f"v_lshlrev_b32 v{V_T + 27}, 7, v{V_T + 27}")
            e(f"s_lshl_b32 s{S_T}, s2, 2")
            e(f"s_add_u32 s{S_T}, s{S_T}, s{S_WAVE}")
            e(f"s_mul_i32 s{S_PO1}, s{S_T}, 7168")
            e(f"s_lshl_b32 s{S_PO2}, s{S_T}, 11")


    if OPT.get('pt'):
        e(f"s_lshl_b32 s{S_T}, s{S_RB}, 1")
        e(f"s_lshr_b32 s{S_T + 1}, s{S_WAVE}, 1")
        e(f"s_add_u32 s{S_T}, s{S_T}, s{S_T + 1}")
        e(f"s_mul_i32 s{S_AFB}, s{S_T}, {144 * 8192}")
        e(f"s_and_b32 s{S_T + 1}, s{S_WAVE}, 1")
        e(f"s_lshl_b32 s{S_T + 1}, s{S_T + 1}, 12")
        e(f"s_add_u32 s{S_AFB}, s{S_AFB}, s{S_T + 1}")
        e(f"s_mul_i32 s{S_PT}, s{S_P}, {7 * 8192}")
        e(f"s_add_u32 s{S_PT}, s{S_PT}, s{S_AFB}")
        if typ:
            e(f"s_add_u32 s{S_PT}, s{S_PT}, {2 * 8192}")
        e(f"s_add_u32 s{S_PTE}, s{S_PT}, {(4 if typ else 2) * 8192}")
        e(f"v_and_b32 v{V_T + 25}, 31, v{V_LANE}")
        e(f"v_lshlrev_b32 v{V_T + 25}, 7, v{V_T + 25}")
        if typ:
            e(f"v_lshrrev_b32 v{V_T + 29}, 5, v{V_LANE}")
            e(f"v_lshlrev_b32 v{V_T + 29}, 13, v{V_T + 29}")
            e(f"v_add_u32 v{V_T + 29}, v{V_T + 29}, v{V_T + 25}")
            e(f"s_mul_i32 s{S_T}, s{S_P}, {2 * 8192}")
            e(f"s_add_u32 s{S_T}, s{S_T}, {112 * 8192}")
            e(f"s_add_u32 s{S_T}, s{S_T}, s{S_AFB}")
            a.vmem(f"buffer_load_dword v{V_T + 28}, v{V_T + 29}, s[{S_WS}:{S_WS + 3}], s{S_T} offen", "pf")

    def pt_items():
        return [lambda: a.vmem(f"buffer_load_dword v{V_T + 28}, v{V_T + 25}, s[{S_WS}:{S_WS + 3}], s{S_PT} offen", "pf"),
                lambda: e(f"s_add_u32 s{S_PT}, s{S_PT}, 8192"),
                lambda: e(f"s_min_u32 s{S_PT}, s{S_PT}, s{S_PTE}")]

    def pf_items(cond=None):
        if cond is None:
            return [lambda: a.vmem(f"buffer_load_dword v{V_T + 28}, v{V_T + 26}, s[{S_PF1}:{S_PF1 + 3}], s{S_PO1} offen", "pf"),
                    lambda: a.vmem(f"buffer_load_dword v{V_T + 28}, v{V_T + 27}, s[{S_PF2}:{S_PF2 + 3}], s{S_PO2} offen", "pf"),
                    lambda: e(f"s_add_u32 s{S_PO1}, s{S_PO1}, {128 * PL1}"),
                    lambda: e(f"s_add_u32 s{S_PO2}, s{S_PO2}, {128 * PL2}")]

        def blk():
            e(f"s_lshl_b32 s{S_T}, 1, s{S_CNT}")
            e(f"s_and_b32 s{S_T}, s{S_T}, {cond}")
            e(f"s_cbranch_scc0 L_k1{T}_nopf")
            e(f"buffer_load_dword v{V_T + 28}, v{V_T + 26}, s[{S_PF1}:{S_PF1 + 3}], s{S_PO1} offen")
            e(f"buffer_load_dword v{V_T + 28}, v{V_T + 27}, s[{S_PF2}:{S_PF2 + 3}], s{S_PO2} offen")
            e(f"s_add_u32 s{S_PO1}, s{S_PO1}, {128 * PL1}")
            e(f"s_add_u32 s{S_PO2}, s{S_PO2}, {128 * PL2}")
            a.label(f"L_k1{T}_nopf")
        return [blk]

    def g_items():
        d0, d1 = V_T + 24, V_T + 25
        L = []
        L.append(f"v_dot2_f32_bf16 v{d0}, v{gx0}, v{gw}, 0")
        L.append(f"v_dot2_f32_bf16 v{d1}, v{gx1}, v{gw}, 0")
        for j in range(1, 8):
            L.append(f"v_dot2_f32_bf16 v{d0}, v{gx0 + j}, v{gw + j}, v{d0}")
            L.append(f"v_dot2_f32_bf16 v{d1}, v{gx1 + j}, v{gw + j}, v{d1}")
        L.append("s_nop 3")
        for sh_ in (1, 2, 4, 8):
            L.append(f"s_nop 0\nv_add_f32_dpp v{d0}, v{d0}, v{d0} row_shr:{sh_} row_mask:0xf bank_mask:0xf bound_ctrl:0")
            L.append(f"s_nop 0\nv_add_f32_dpp v{d1}, v{d1}, v{d1} row_shr:{sh_} row_mask:0xf bank_mask:0xf bound_ctrl:0")
        L.append(f"s_nop 0\nv_add_f32_dpp v{d0}, v{d0}, v{d0} row_bcast:15 row_mask:0xa bank_mask:0xf")
        L.append(f"s_nop 0\nv_add_f32_dpp v{d1}, v{d1}, v{d1} row_bcast:15 row_mask:0xa bank_mask:0xf")
        L.append(f"s_nop 0\nv_add_f32_dpp v{d0}, v{d0}, v{d0} row_bcast:31 row_mask:0xc bank_mask:0xf")
        L.append(f"s_nop 0\nv_add_f32_dpp v{d1}, v{d1}, v{d1} row_bcast:31 row_mask:0xc bank_mask:0xf")
        L.append(f"v_mul_f32 v{d0}, 0xbfb8aa3b, v{d0}")
        L.append(f"v_mul_f32 v{d1}, 0xbfb8aa3b, v{d1}")
        L.append(f"v_exp_f32 v{d0}, v{d0}")
        L.append(f"v_exp_f32 v{d1}, v{d1}\ns_nop 0")
        L.append(f"v_add_f32 v{d0}, 1.0, v{d0}")
        L.append(f"v_add_f32 v{d1}, 1.0, v{d1}")
        L.append(f"v_rcp_f32 v{d0}, v{d0}")
        L.append(f"v_rcp_f32 v{d1}, v{d1}")
        L.append(f"v_mov_b32 v{gw}, 0")
        L.append(f"s_lshl_b32 s{S_T + 1}, s{S_GROW}, 2\ns_add_u32 s{S_T + 1}, s{S_T + 1}, {G_OFF}")
        L.append(f"s_lshl_b32 s{S_T + 3}, s2, 8\ns_add_u32 s{S_T + 3}, s{S_T + 3}, {FLG_OFF}")
        L.append(f"s_mov_b32 s{S_T + 8}, 0\ns_mov_b32 s{S_T + 9}, 0x80000000")
        F = [(lambda x=x: e(x)) for x in L]

        def st():
            e(f"s_mov_b64 exec, s[{S_T + 8}:{S_T + 9}]")
            a.vmem(f"buffer_store_dwordx2 v[{d0}:{d1}], v{gw}, s[{S_WS}:{S_WS + 3}], s{S_T + 1} offen sc1", "sq")
            e("s_mov_b64 exec, -1")
        F.append(st)
        return F

    if OPT.get('m2', 9) == 9:
        misc_setup2()
    a.wait(["bias"])
    for j in range(nh):
        src = acc(nq + j, 3)
        d = acc(nq + j, 0)
        e(f"v_lshlrev_b32 v{d}, 16, v{src}")
        e(f"v_and_b32 v{d + 1}, 0xffff0000, v{src}")
        e(f"v_lshlrev_b32 v{d + 2}, 16, v{src + 1}")
        e(f"v_and_b32 v{d + 3}, 0xffff0000, v{src + 1}")
    for t in range(4):
        for r in range(4):
            e(f"v_mov_b32 v{acc(t, 0) + r}, {EPS_HEX}")

    def rdB(tt):
        slot = tt % 4
        s = tt % 2
        f = []
        for t in range(13):
            for ins in range(2):
                if t < nq:
                    addr = V_QRD + (t & 3)
                    off = slot * K1_BSLOT + ins * K1_AREA + 1024 * (t >> 2)
                else:
                    addr = V_HRD
                    off = slot * K1_BSLOT + ins * K1_AREA + 32 * (t - nq)
                d = bset(s, t) + 2 * ins
                f.append(lambda d=d, addr=addr, off=off: e(f"ds_read_b64_tr_b16 {ar(d, 2)}, v{addr} offset:{off}"))
        return f

    def aset_of(tt):
        if tt % 2 == 0:
            return ASET["X"]
        return ASET["Y"] if tt % 4 == 1 else ASET["Z"]

    def rdA(aa):
        slot = aa % 2
        f = []
        for hh in range(2):
            base = aset_of(2 * aa + hh)
            for mt in range(4):
                f.append(lambda hh=hh, mt=mt, base=base: e(
                    f"ds_read_b128 {ar(base + 4 * mt)}, v{V_ARD + hh} offset:{slot * 8192 + mt * 2048}"))
        return f

    stamp(a, 1)
    a.wait(["B0", "A0"])
    e("s_barrier")
    stamp(a, 2)
    for fn in rdA(0) + rdB(0):
        fn()
    if OPT.get('ramp') == 1:
        run_seq(dmaA(1))
    if OPT.get('ramp') in (1, 2):
        run_seq(dmaB(2))
    a.wait(["B1"], lgkm=True)
    e("s_barrier")

    misc_items = capture(a, misc_setup)
    misc_items2 = capture(a, misc_setup2) if OPT.get('m2', 9) != 9 else []

    NSTEP = 32

    def step(tt):
        if DIAG and OPT.get('ts'):
            e("s_memrealtime s[76:77]")
            e("s_waitcnt lgkmcnt(0)")
            e("s_mov_b32 m0, s78")
            e("s_nop 0")
            e(f"v_writelane_b32 v{V_T + 29}, s76, m0")
            e("s_add_u32 s78, s78, 1")
        s = tt % 2
        ab = aset_of(tt)
        mf = []
        for t in range(13):
            order = [1, 2, 3, 0] if tt == 0 else [0, 1, 2, 3]
            for mt in order:
                D = vr(acc(t, mt))
                if tt == 0:
                    C = "0" if (typ == 0 and 4 <= t < 8) else vr(acc(t, 0))
                else:
                    C = D
                W = ar(bset(s, t))
                X = ar(ab + 4 * mt)
                if typ == 0 and t < 8:
                    mf.append(f"v_mfma_f32_16x16x32_bf16 {D}, {X}, {W}, {C}")
                else:
                    mf.append(f"v_mfma_f32_16x16x32_bf16 {D}, {W}, {X}, {C}")
        if OPT.get('fakechain') and tt > 0:
            import re
            m2 = []
            for i in range(0, 52, 2):
                x0, x1 = mf[i], mf[i + 1]
                pick = x0 if tt % 2 == 0 else x1
                D = re.match(r"v_mfma\S+ (v\[\d+:\d+\])", pick).group(1)
                for x in (x0, x1):
                    D0 = re.match(r"v_mfma\S+ (v\[\d+:\d+\])", x).group(1)
                    m2.append(x.replace(D0, D))
            mf = m2
        rd = []
        if tt + 1 < NSTEP:
            rd = rdB(tt + 1)
            if tt % 2 == 1:
                rd = rdA((tt + 1) // 2) + rd
        dm = []
        if tt == 0 and OPT.get('ramp'):
            dm += dmaB(3)
        if OPT.get('afirst', 1) and tt % 2 == 0 and tt // 2 + 2 < NSTEP // 2:
            dm += dmaA(tt // 2 + 2)
        if tt + 4 < NSTEP:
            dm += dmaB(tt + 4)
        if not OPT.get('afirst', 1) and tt % 2 == 0 and tt // 2 + 2 < NSTEP // 2:
            dm += dmaA(tt // 2 + 2)
        if OPT['pf'] == 1 and tt % 4 == 1 and tt < 28:
            dm += pf_items()
        if OPT.get('cpf') == 3 and tt == 28:
            dm.append(lambda: a.vmem(f"global_load_dword v{V_T + 28}, v{V_T + 29}, s[{S_CB}:{S_CB + 1}]", "pf"))
        if OPT['pf'] in (2, 3, 4) and tt == 28:
            dm += pf_items()
        if OPT['pf'] in (3, 4) and tt % 4 == 1 and 4 <= tt < 28:
            dm += pf_items({3: 1 << 4, 4: (1 << 5) | (1 << 3)}[OPT['pf']])
        if OPT.get('pt') and tt % 4 == 3 and tt < 28:
            dm += pt_items()
        if tt == OPT.get('m2', 9):
            dm += misc_items2
        if tt == 3:
            dm += misc_items
        fl = []
        i1 = i2 = 0
        n1, n2 = len(rd), len(dm)
        while i1 < n1 or i2 < n2:
            if i2 < n2 and (i1 >= n1 or i2 * n1 <= i1 * n2):
                fl.append(dm[i2]); i2 += 1
            else:
                fl.append(rd[i1]); i1 += 1
        if OPT.get('p2m'):
            if tt == NSTEP - 2:
                gi = g_items()
                fl2 = []
                for k_ in range(max(len(fl), len(gi))):
                    fl2 += fl[k_:k_ + 1] + gi[k_:k_ + 1]
                fl = fl2
            if tt == NSTEP - 1:
                fl = capture(a, lambda: p2_math(a), chunk=2)
        elif tt == NSTEP - 1:
            assert "g" not in a.vm
            fl = g_items()
        nb_ = OPT.get('bt', 0)
        fe_ = OPT.get('fe', 48)
        if OPT.get('rdf') and rd and dm:
            schedule(a, mf[:52 - nb_], [(rd, 0, OPT['rdf']), (dm, OPT.get('dm0', 1), fe_)])
        else:
            interleave(a, mf[:52 - nb_], fl, 0, fe_)
        if tt + 1 < NSTEP:
            tags = []
            if tt + 2 < NSTEP:
                tags.append(f"B{tt + 2}")
            if tt % 2 == 0:
                tags.append(f"A{tt // 2 + 1}")
            a.wait(tags, lgkm=True)
            if tt + 2 < NSTEP:
                e("s_barrier")
        for x in mf[52 - nb_:]:
            e(x)

    iters = []
    for it in range(8):
        n0 = len(a.lines)
        for tt in range(4 * it, 4 * it + 4):
            step(tt)
        iters.append(a.lines[n0:])
        del a.lines[n0:]
    for it in range(2, 7):
        assert iters[it] == iters[1], f"iteration {it} differs"
    stamp(a, 3)
    if DIAG and OPT.get('ts'):
        e("s_mov_b32 s78, 0")
    a.lines += iters[0]
    if not OPT.get('ts') and not OPT.get('kst'):
        stamp(a, 4)
    e(f"s_mov_b32 s{S_CNT}, 6")
    a.label(f"L_k1{T}_loop")
    a.lines += iters[1]
    e(f"s_sub_u32 s{S_CNT}, s{S_CNT}, 1")
    e(f"s_cmp_lg_u32 s{S_CNT}, 0")
    e(f"s_cbranch_scc1 L_k1{T}_loop")
    a.lines += iters[7]
    assert all(not t.startswith(("A", "B")) for t in a.vm), a.vm

    stamp(a, 5)

    def fin():
        stamp(a, 6)
        stamp(a, 7)
        k = a.vm_count(["#eA"], drop=False)
        if DIAG:
            k += 16
        stamp_dump(a, 0, 8, S_WAVE, S_PTR + 20, S_PTR + 21, V_T)
        e(f"s_cmp_eq_u32 s{P_SEARLY}, 0")
        e("s_cbranch_scc1 L_p2_late")
        e(f"s_waitcnt vmcnt({k})")
        e("s_branch L_p2_go")

    pb_state = [0]

    def pb(n=1):
        for _ in range(n):
            k = pb_state[0]
            if k >= OPT.get('pb', 0):
                return
            for i in range(4):
                a.vmem(f"buffer_load_dwordx4 {ar(128 + 16 * k + 4 * i)}, v{P_VBD + i}, s[{P_SW2}:{P_SW2 + 3}], s{P_SOB} offen offset:{1024 * i}", "pb")
            e(f"s_add_u32 s{P_SOB}, s{P_SOB}, s{P_SSB}")
            pb_state[0] += 1

    def fe_load():
        a.vmem(f"buffer_load_dwordx2 v[{P_VFL}:{P_VFL + 1}], v{P_VFA}, s[{S_WS}:{S_WS + 3}], 0 offen sc1", "fe")

    def fe_check():
        a.wait(["fe"])
        e(f"v_cmp_eq_u64 vcc, v[{P_VFL}:{P_VFL + 1}], v[{V_TOK}:{V_TOK + 1}]")
        e(f"s_mov_b32 s{P_SEARLY}, 0")
        e("s_nop 0")
        e("s_cmp_eq_u64 vcc, -1")
        e(f"s_cbranch_scc0 L_k1{T}_noearly")
        p2_issueA(a)
        e(f"s_mov_b32 s{P_SEARLY}, 1")
        a.label(f"L_k1{T}_noearly")
        a.mark("eA")

    def setflag(lane):
        a.label(f"L_k1{T}_tw")
        e(f"v_readfirstlane_b32 s{S_T}, v{V_TOK + 1}")
        e(f"v_readfirstlane_b32 s{S_T + 1}, v{V_TOK}")
        e("s_nop 3")
        e(f"s_min_u32 s{S_T}, s{S_T}, s{S_T + 1}")
        e(f"s_cmp_lg_u32 s{S_T}, 0")
        e(f"s_cbranch_scc1 L_k1{T}_tok")
        e("s_add_u32 s3, s3, 1")
        e("s_cmp_gt_u32 s3, 0x40000")
        e(f"s_cbranch_scc1 L_k1{T}_tok")
        e("s_sleep 4")
        e(f"buffer_load_dwordx2 v[{V_TOK}:{V_TOK + 1}], v12, s[{S_T + 4}:{S_T + 7}], 0 offen sc1")
        e("s_waitcnt vmcnt(0)")
        e(f"s_branch L_k1{T}_tw")
        a.label(f"L_k1{T}_tok")
        e(f"s_mov_b64 exec, {1 << lane}")
        a.vmem(f"buffer_store_dwordx2 v[{V_TOK}:{V_TOK + 1}], v0, s[{S_WS}:{S_WS + 3}], 0 offen sc1", "fl")
        e("s_mov_b64 exec, -1")
    e("s_barrier")
    e("s_mov_b32 s3, 0")
    e(f"s_mov_b32 s{S_L2E}, {L2E_HEX}")
    e(f"s_mov_b32 s{S_L2E + 1}, {L2E_HEX}")
    e(f"s_lshl_b32 s{S_T}, s{S_RB}, 1")
    e(f"s_lshr_b32 s{S_T + 1}, s{S_WAVE}, 1")
    e(f"s_add_u32 s{S_T}, s{S_T}, s{S_T + 1}")
    e(f"s_mul_i32 s{S_AFB}, s{S_T}, {144 * 8192}")
    e(f"s_and_b32 s{S_T + 1}, s{S_WAVE}, 1")
    e(f"s_lshl_b32 s{S_T + 1}, s{S_T + 1}, 12")
    e(f"s_add_u32 s{S_AFB}, s{S_AFB}, s{S_T + 1}")
    e("s_nop 7")
    TT, UU = V_T, V_T + 8

    def phi_group(ra, rb_):
        prs = [ra, ra + 2, rb_, rb_ + 2]
        for j, p in enumerate(prs):
            e(f"v_pk_mul_f32 {vr(TT + 2 * j, 2)}, {vr(p, 2)}, s[{S_L2E}:{S_L2E + 1}]")
        for j in range(8):
            e(f"v_exp_f32_e64 v{TT + j}, v{TT + j} clamp")
        for p in prs:
            e(f"v_max_f32 v{p}, {EPS_HEX}, v{p}")
            e(f"v_max_f32 v{p + 1}, {EPS_HEX}, v{p + 1}")
        for j, p in enumerate(prs):
            e(f"v_pk_add_f32 {vr(p, 2)}, {vr(p, 2)}, {vr(TT + 2 * j, 2)}")
        for j, p in enumerate(prs):
            e(f"v_cvt_pk_bf16_f32 v{ra + j}, v{p}, v{p + 1}")

    def cvt_group(ra, rb_):
        prs = [ra, ra + 2, rb_, rb_ + 2]
        for j, p in enumerate(prs):
            e(f"v_cvt_pk_bf16_f32 v{ra + j}, v{p}, v{p + 1}")

    def mish_group(ra, rb_, split=False, dst=None):
        prs = [ra, ra + 2, rb_, rb_ + 2]
        for j, p in enumerate(prs):
            e(f"v_pk_mul_f32 {vr(TT + 2 * j, 2)}, {vr(p, 2)}, s[{S_L2E}:{S_L2E + 1}]")
        for j in range(8):
            e(f"v_exp_f32 v{TT + j}, v{TT + j}")
        for j in range(4):
            e(f"v_pk_fma_f32 {vr(UU + 2 * j, 2)}, {vr(TT + 2 * j, 2)}, 0.5, 1.0 op_sel_hi:[1,0,0]")
        for j in range(4):
            e(f"v_pk_fma_f32 {vr(UU + 2 * j, 2)}, {vr(TT + 2 * j, 2)}, {vr(UU + 2 * j, 2)}, 1.0 op_sel_hi:[1,1,0]")
        for j in range(8):
            e(f"v_rcp_f32 v{UU + j}, v{UU + j}")
        for j, p in enumerate(prs):
            e(f"v_pk_fma_f32 {vr(p, 2)}, {vr(UU + 2 * j, 2)}, {vr(p, 2)}, {vr(p, 2)} neg_lo:[1,0,0] neg_hi:[1,0,0]")
        if split:
            e(f"v_cvt_pk_bf16_f32 v{ra}, v{ra}, v{ra + 1}")
            e(f"v_cvt_pk_bf16_f32 v{ra + 1}, v{ra + 2}, v{ra + 3}")
            e(f"v_cvt_pk_bf16_f32 v{rb_}, v{rb_}, v{rb_ + 1}")
            e(f"v_cvt_pk_bf16_f32 v{rb_ + 1}, v{rb_ + 2}, v{rb_ + 3}")
        else:
            dd = ra if dst is None else dst
            for j, p in enumerate(prs):
                e(f"v_cvt_pk_bf16_f32 v{dd + j}, v{p}, v{p + 1}")

    WS = f"s[{S_WS}:{S_WS + 3}]"

    def set_kb(sreg, mul, add):
        e(f"s_mul_i32 s{sreg}, s{S_P}, {mul * 8192}")
        e(f"s_add_u32 s{sreg}, s{sreg}, {add * 8192}")
        e(f"s_add_u32 s{sreg}, s{sreg}, s{S_AFB}")

    def h_late(tA, kbl, sreg, mid=None):
        set_kb(sreg, 7, kbl)
        for mt in range(4):
            mish_group(acc(tA, mt), acc(tA + 1, mt))
            if mt == 1 and mid:
                mid()

    def h_half_late(tA, half):
        set_kb(P_SL + 2, 7, 2)
        if half:
            e(f"s_add_u32 s{P_SL + 2}, s{P_SL + 2}, 512")
        for mp in range(2):
            mish_group(acc(tA, 2 * mp), acc(tA, 2 * mp + 1), dst=240 + 4 * mp)
        e("s_nop 1")
        for mp in range(2):
            e(f"v_permlane16_swap_b32 v{240 + 4 * mp}, v{242 + 4 * mp}")
            e(f"v_permlane16_swap_b32 v{241 + 4 * mp}, v{243 + 4 * mp}")

    def h_full(tA, kbl, tag='st'):
        set_kb(S_T + 2, 7, kbl)
        for mt in range(4):
            mish_group(acc(tA, mt), acc(tA + 1, mt))
            a.vmem(f"buffer_store_dwordx4 {vr(acc(tA, mt))}, v{V_L16}, {WS}, s{S_T + 2} offen offset:{1024 * mt} {OPT['st']}", tag)

    def h_half(tA, kbl, half):
        set_kb(S_T + 2, 7, kbl)
        for mp in range(2):
            mish_group(acc(tA, 2 * mp), acc(tA, 2 * mp + 1), split=True)
            for mt in (2 * mp, 2 * mp + 1):
                a.vmem(f"buffer_store_dwordx2 {vr(acc(tA, mt), 2)}, v{V_L16}, {WS}, s{S_T + 2} offen offset:{1024 * mt + 8 * half} {OPT['st']}", "st")

    if typ == 1:
        h_full(5, 3, "se")
        h_full(7, 4, "se")
        p2_early(a)
        for hd in range(2):
            set_kb(S_T + 2, 2, 112 + hd)
            for mt in range(4):
                phi_group(acc(2 * hd, mt), acc(2 * hd + 1, mt))
                a.vmem(f"buffer_store_dwordx4 {vr(acc(2 * hd, mt))}, v{V_L16}, {WS}, s{S_T + 2} offen offset:{1024 * mt} {OPT['st']}", "sq")
                if 4 * hd + mt == OPT.get('fepos', 4):
                    a.wait(["se", "zc"])
                    setflag(0)
                if 4 * hd + mt >= OPT.get('fepos', 4):
                    pb()
        pb(8)
        h_late(9, 5, P_SL, mid=fe_load)
        h_late(11, 6, P_SL + 1, mid=fe_check)
        h_half_late(4, 1)
        fin()
        return

    h_full(8, 0, "se")
    h_full(10, 1, "se")
    p2_early(a)
    ONES = V_T + 16
    for r in range(4):
        e(f"v_mov_b32 v{ONES + r}, 0x3f803f80")
    for t in range(4):
        for pr in range(2):
            phi_group(acc(t, 2 * pr), acc(t, 2 * pr + 1))
            if 2 * t + pr == OPT.get('fepos', 4):
                a.wait(["se", "zc"])
                setflag(0)
            if 2 * t + pr >= OPT.get('fepos', 4):
                pb()
    pb(8)
    for t in range(4, 8):
        for pr in range(2):
            cvt_group(acc(t, 2 * pr), acc(t, 2 * pr + 1))
    e("s_nop 1")
    free = [acc(t, m) for t in range(8) for m in (1, 3)]

    def Dt(tau):
        return free[tau]
    for pr in range(2):
        for hd in range(2):
            for dt in range(2):
                for et in range(3):
                    tau = hd * 6 + dt * 3 + et
                    Aop = vr(acc(2 * hd + dt, 2 * pr))
                    Bop = vr(acc(4 + 2 * hd + et, 2 * pr)) if et < 2 else vr(ONES)
                    C = "0" if pr == 0 else vr(Dt(tau))
                    e(f"v_mfma_f32_16x16x32_bf16 {vr(Dt(tau))}, {Aop}, {Bop}, {C}")
    vw, vrd = V_T + 20, V_T + 21
    e(f"s_mul_i32 s{S_T}, s{S_WAVE}, 12288")
    e(f"s_add_u32 s{S_T}, s{S_T}, 98304")
    e(f"v_add_u32 v{vw}, s{S_T}, v{V_L16}")
    e(f"s_mul_i32 s{S_T}, s{S_WAVE}, 3072")
    e(f"s_add_u32 s{S_T}, s{S_T}, 98304")
    e(f"v_add_u32 v{vrd}, s{S_T}, v{V_L16}")
    fe_load()
    e("s_nop 7")
    for tau in range(12):
        e(f"ds_write_b128 v{vw}, {vr(Dt(tau))} offset:{1024 * tau}")
    e(f"s_lshl_b32 s{S_T}, s{S_P}, 3")
    e(f"s_add_u32 s{S_T}, s{S_T}, s{S_RB}")
    e(f"s_mul_i32 s{S_T}, s{S_T}, 12288")
    e(f"s_mul_i32 s{S_T + 1}, s{S_WAVE}, 3072")
    e(f"s_add_u32 s{S_T}, s{S_T}, s{S_T + 1}")
    e(f"s_add_u32 s{S_T + 10}, s{S_T}, {KVP_OFF}")
    h_half_late(12, 0)
    e(f"s_mov_b32 s{P_SL}, 0x7ff00000")
    e(f"s_mov_b32 s{P_SL + 1}, 0x7ff00000")
    e("s_waitcnt lgkmcnt(0)")
    e("s_barrier")
    R = [acc(t, m) for t in range(8) for m in (0, 2)]
    for w2 in range(4):
        for j in range(3):
            e(f"ds_read_b128 {vr(R[3 * w2 + j])}, v{vrd} offset:{12288 * w2 + 1024 * j}")
    fe_check()
    e("s_waitcnt lgkmcnt(0)")
    for j in range(3):
        for h2 in range(2):
            b0 = R[j] + 2 * h2
            e(f"v_pk_add_f32 {vr(b0, 2)}, {vr(b0, 2)}, {vr(R[3 + j] + 2 * h2, 2)}")
            e(f"v_pk_add_f32 {vr(R[6 + j] + 2 * h2, 2)}, {vr(R[6 + j] + 2 * h2, 2)}, {vr(R[9 + j] + 2 * h2, 2)}")
        for h2 in range(2):
            b0 = R[j] + 2 * h2
            e(f"v_pk_add_f32 {vr(b0, 2)}, {vr(b0, 2)}, {vr(R[6 + j] + 2 * h2, 2)}")
        a.vmem(f"buffer_store_dwordx4 {vr(R[j])}, v{V_L16}, {WS}, s{S_T + 10} offen offset:{1024 * j} sc1", "sq")
    fin()


def gen_k1():
    a = Asm()
    e = a.e
    a.lines.append(".globl KNAME\n.p2align 8\n.type KNAME,@function\nKNAME:")
    if OPT.get('spin'):
        stamp(a, 0)
    e("s_cmp_ge_u32 s2, 256")
    e("s_cbranch_scc1 L_k1_exit")
    e(f"s_load_dwordx16 s[{S_PTR}:{S_PTR + 15}], s[0:1], 0")
    if OPT.get('cpf') >= 2:
        e(f"s_getpc_b64 s[{S_CB}:{S_CB + 1}]")
        a.label("L_pc_0")
        e(f"s_sub_u32 s{S_CB}, s{S_CB}, L_pc_0-KNAME")
        e(f"s_subb_u32 s{S_CB + 1}, s{S_CB + 1}, 0")
        e(f"s_lshl_b32 s{S_T}, s2, 12")
        e(f"s_and_b32 s{S_T}, s{S_T}, 0x18000")
        e(f"v_lshlrev_b32 v{V_T + 29}, 7, v0")
        e(f"v_add_u32 v{V_T + 29}, s{S_T}, v{V_T + 29}")
        e(f"v_min_u32 v{V_T + 29}, L_code_end-KNAME-4, v{V_T + 29}")
        e(f"global_load_dword v{V_T + 28}, v{V_T + 29}, s[{S_CB}:{S_CB + 1}]")
    e(f"s_load_dwordx4 s[{S_PTR + 16}:{S_PTR + 19}], s[0:1], 64")
    e(f"s_load_dwordx2 s[{S_PTR + 20}:{S_PTR + 21}], s[0:1], 80")
    e(f"v_and_b32 v{V_LANE}, 63, v0")
    e(f"v_lshrrev_b32 v{V_T}, 6, v0")
    e(f"s_and_b32 s{S_T}, s2, 7")
    e(f"v_readfirstlane_b32 s{S_WAVE}, v{V_T}")
    e(f"s_lshr_b32 s{S_T + 1}, s2, 3")
    if OPT.get('map1', 0) == 0:
        e(f"s_and_b32 s{S_RB}, s{S_T}, 1")
        e(f"s_lshl_b32 s{S_RB}, s{S_RB}, 2")
        e(f"s_and_b32 s{S_T + 2}, s{S_T + 1}, 3")
        e(f"s_add_u32 s{S_RB}, s{S_RB}, s{S_T + 2}")
        e(f"s_lshr_b32 s{S_T}, s{S_T}, 1")
        e(f"s_lshl_b32 s{S_T}, s{S_T}, 3")
        e(f"s_lshr_b32 s{S_T + 1}, s{S_T + 1}, 2")
        e(f"s_add_u32 s{S_T}, s{S_T}, s{S_T + 1}")
    elif OPT['map1'] == 1:
        e(f"s_and_b32 s{S_RB}, s{S_T + 1}, 7")
        e(f"s_lshl_b32 s{S_T}, s{S_T}, 2")
        e(f"s_lshr_b32 s{S_T + 1}, s{S_T + 1}, 3")
        e(f"s_add_u32 s{S_T}, s{S_T}, s{S_T + 1}")
    else:
        e(f"s_and_b32 s{S_RB}, s{S_T}, 3")
        e(f"s_lshl_b32 s{S_RB}, s{S_RB}, 1")
        e(f"s_and_b32 s{S_T + 2}, s{S_T + 1}, 1")
        e(f"s_add_u32 s{S_RB}, s{S_RB}, s{S_T + 2}")
        e(f"s_lshr_b32 s{S_T}, s{S_T}, 2")
        e(f"s_lshl_b32 s{S_T}, s{S_T}, 4")
        e(f"s_lshr_b32 s{S_T + 1}, s{S_T + 1}, 1")
        e(f"s_add_u32 s{S_T}, s{S_T}, s{S_T + 1}")
    e(f"s_lshr_b32 s{S_P}, s{S_T}, 1")
    e(f"s_and_b32 s{S_T + 3}, s{S_T}, 1")
    e(f"s_cmp_lg_u32 s{S_T + 3}, 0")
    e("s_cbranch_scc1 L_k1_typeB")
    k1_body(a, 0)
    a.label("L_k1_typeB")
    a.vm = []
    k1_body(a, 1)
    a.vm = []
    phase2(a)
    a.label("L_k1_exit")
    e("s_endpgm")
    a.label("L_code_end")
    return a.lines


def K2_LDS():
    return OPT['S'] * 32768 + 24576


def fold_loops(a, iters, period, scnt, name):
    n = len(iters)
    i = 0
    lab = 0
    while i < n:
        reps = 1
        while i + (reps + 1) * period <= n and all(
                iters[i + k] == iters[i + reps * period + k] for k in range(period)):
            reps += 1
        if reps >= 2:
            a.e(f"s_mov_b32 s{scnt}, {reps}")
            a.label(f"L_{name}_{lab}")
            for k in range(period):
                a.lines += iters[i + k]
            a.e(f"s_sub_u32 s{scnt}, s{scnt}, 1")
            a.e(f"s_cmp_lg_u32 s{scnt}, 0")
            a.e(f"s_cbranch_scc1 L_{name}_{lab}")
            lab += 1
            i += reps * period
        else:
            a.lines += iters[i]
            i += 1


def schedule(a, mf, streams):
    n = len(mf)
    placed = []
    for si, (items, start, end) in enumerate(streams):
        m = len(items)
        prev = 0
        for j, it in enumerate(items):
            fn, early = it if isinstance(it, tuple) else (it, 0)
            pos = start + (j * (end - start)) / max(m, 1)
            pos = max(pos, early, prev)
            prev = pos
            placed.append((pos, si, j, fn))
    placed.sort(key=lambda x: (x[0], x[1], x[2]))
    k = 0
    if n == 0:
        for p in placed:
            p[3]()
        return
    for i in range(n):
        a.e(mf[i])
        while k < len(placed) and placed[k][0] < i + 1:
            placed[k][3]()
            k += 1
    while k < len(placed):
        placed[k][3]()
        k += 1


P_SW2, P_SWO, P_SWS, P_SOUT = 96, 20, 16, 4
P_SMT, P_SNT, P_SROLE, P_STILE = 8, 9, 10, 11
P_SOA, P_SOB, P_SOP, P_SM0A, P_SM0B = 12, 13, 14, 15, 27
P_SHD, P_SM2, P_SEARLY = 28, 29, 30
P_VBD = 2
P_SLOT = 32768


def tile_decode(a, smt, snt, srole, stile, st):
    e = a.e
    e(f"s_and_b32 s{st}, s2, 7")
    e(f"s_lshr_b32 s{st + 1}, s2, 3")
    e(f"s_and_b32 s{srole}, s{st}, 1")
    if OPT.get('rsw'):
        e(f"s_xor_b32 s{srole}, s{srole}, 1")
    e(f"s_lshr_b32 s{st}, s{st}, 1")
    if OPT['map'] == 0:
        e(f"s_and_b32 s{smt}, s{st}, 1")
        e(f"s_lshl_b32 s{smt}, s{smt}, 3")
        e(f"s_and_b32 s{stile}, s{st + 1}, 7")
        e(f"s_add_u32 s{smt}, s{smt}, s{stile}")
        e(f"s_lshr_b32 s{snt}, s{st}, 1")
        e(f"s_lshl_b32 s{snt}, s{snt}, 2")
        e(f"s_lshr_b32 s{st + 1}, s{st + 1}, 3")
        e(f"s_add_u32 s{snt}, s{snt}, s{st + 1}")
    else:
        e(f"s_lshl_b32 s{smt}, s{st}, 2")
        e(f"s_and_b32 s{stile}, s{st + 1}, 3")
        e(f"s_add_u32 s{smt}, s{smt}, s{stile}")
        e(f"s_lshr_b32 s{snt}, s{st + 1}, 2")
    e(f"s_lshl_b32 s{stile}, s{smt}, 3")
    e(f"s_add_u32 s{stile}, s{stile}, s{snt}")


P_VAD, P_VFA, P_VFL = 8, 9, 10
P_SSA, P_SSB = 31, 32
P_SL = 4


def p2_setrun(a, first_expr, stride):
    e = a.e
    c0, c1 = first_expr
    e(f"s_lshr_b32 s{S_T + 11}, s{S_WAVE}, 1")
    e(f"s_mul_i32 s{S_T + 11}, s{S_T + 11}, {c1}")
    e(f"s_add_u32 s{S_T + 11}, s{S_T + 11}, {c0}")
    return S_T + 11


def p2_math(a):
    e = a.e
    S = OPT['S']
    ST = S_T
    tile_decode(a, P_SMT, P_SNT, P_SROLE, P_STILE, ST)
    vi, vG, t0, t1, t2 = 6, 7, 8, 9, 10
    e(f"v_and_b32 v{vi}, 15, v{V_LANE}")
    e(f"v_lshrrev_b32 v{vG}, 4, v{V_LANE}")
    e(f"s_lshl_b32 s{P_SM0A}, s{S_WAVE}, 12")
    e(f"s_add_u32 s{P_SM0B}, s{P_SM0A}, 16384")
    e(f"s_lshl_b32 s{ST}, s{P_SNT}, 8")
    e(f"s_and_b32 s{ST + 3}, s{S_WAVE}, 1")
    e(f"s_lshl_b32 s{ST + 1}, s{ST + 3}, 15")
    e(f"s_add_u32 s{ST}, s{ST}, s{ST + 1}")
    e(f"v_lshlrev_b32 v{t0}, 11, v{vG}")
    e(f"v_add_u32 v{t0}, s{ST}, v{t0}")
    e(f"v_lshlrev_b32 v{t1}, 1, v{vG}")
    e(f"v_xor_b32 v{t1}, v{t1}, v{vi}")
    for j in range(4):
        if j & 1:
            e(f"v_xor_b32 v{t2}, 8, v{t1}")
            e(f"v_lshlrev_b32 v{t2}, 4, v{t2}")
        else:
            e(f"v_lshlrev_b32 v{t2}, 4, v{t1}")
        e(f"v_add_u32 v{t2}, v{t2}, v{t0}")
        e(f"v_add_u32 v{P_VBD + j}, {j * (8192 - 1024)}, v{t2}")
    e(f"s_mul_i32 s{ST}, s{P_SROLE}, 3")
    e(f"s_lshr_b32 s{ST + 1}, s{S_WAVE}, 1")
    e(f"s_add_u32 s{ST}, s{ST}, s{ST + 1}")
    e(f"s_lshl_b32 s{P_SOB}, s{ST}, 16")
    e(f"s_mul_i32 s{P_SOA}, s{P_SMT}, 144")
    e(f"s_add_u32 s{P_SOA}, s{P_SOA}, s{ST}")
    e(f"s_lshl_b32 s{P_SOA}, s{P_SOA}, 13")
    e(f"s_mov_b32 s{P_SSA}, {7 * 8192}")
    e(f"s_mov_b32 s{P_SSB}, {7 * 65536}")
    e(f"s_lshl_b32 s{ST + 3}, s{ST + 3}, 12")
    e(f"v_add_u32 v{P_VAD}, s{ST + 3}, v{V_L16}")
    e(f"s_lshl_b32 s{ST}, s{P_SMT}, 1")
    e(f"s_add_u32 s{ST}, s{ST}, s{P_SROLE}")
    e(f"s_lshl_b32 s{ST}, s{ST}, 8")
    e(f"s_add_u32 s{ST}, s{ST}, {FE_OFF}")
    e(f"v_and_b32 v{P_VFA}, 31, v{V_LANE}")
    e(f"v_lshlrev_b32 v{P_VFA}, 3, v{P_VFA}")
    e(f"v_add_u32 v{P_VFA}, s{ST}, v{P_VFA}")


def p2_early(a):
    e = a.e
    S = OPT['S']
    ST = S_T
    if not OPT.get('p2m'):
        p2_math(a)
    srd(a, ST + 4, S_PTR + 18, S_PTR + 19, 256)
    e(f"v_mov_b32 v12, 0")
    a.vmem(f"buffer_load_dwordx2 v[{V_TOK}:{V_TOK + 1}], v12, s[{ST + 4}:{ST + 7}], 0 offen sc1", "zc")
    for j in range(S - 1):
        e(f"s_add_u32 m0, s{P_SM0B}, {j * P_SLOT}")
        e("s_nop 0")
        for i in range(4):
            a.vmem(f"buffer_load_dwordx4 v{P_VBD + i}, s[{P_SW2}:{P_SW2 + 3}], s{P_SOB} offen offset:{1024 * i} lds", "eB")
        e(f"s_add_u32 s{P_SOB}, s{P_SOB}, s{P_SSB}")


def p2_issueA(a):
    e = a.e
    for j in range(OPT['S'] - 1):
        e(f"s_add_u32 m0, s{P_SM0A}, {j * P_SLOT}")
        e("s_nop 0")
        for i in range(4):
            e(f"buffer_load_dwordx4 v{P_VAD}, s[{P_SWS}:{P_SWS + 3}], s{P_SOA} offen offset:{1024 * i} {OPT['k2a']} lds")
        e(f"s_add_u32 s{P_SOA}, s{P_SOA}, s{P_SSA}")


def phase2(a):
    e = a.e
    S = OPT['S']
    n0 = OPT['n0']
    SLOT = P_SLOT
    SCR = S * SLOT
    SWAVE = S_WAVE
    ST = S_T
    SCNT = S_CNT
    SMT, SNT, SROLE, STILE = P_SMT, P_SNT, P_SROLE, P_STILE
    SOA, SOB, SOP, SM0A, SM0B = P_SOA, P_SOB, P_SOP, P_SM0A, P_SM0B
    SW2, SWO, SOUT = P_SW2, P_SWO, P_SOUT
    WS = f"s[{P_SWS}:{P_SWS + 3}]"
    NBASE = (S + 1) // 2
    VL, VL16, VBD = V_LANE, V_L16, P_VBD
    vi, vG = 6, 7
    VZ = 11
    VAD = 8
    VFL = 10
    VFA = 9
    VAR = 12
    VBR = 18
    VT = 30
    VG = 38
    VOMG = 42
    VEPS = 46
    VEPS = 48
    CG = 52
    CR = 60
    CKV = 68
    CW = 80
    VX = 192
    VY = 84
    AC = 128
    t0, t1, t2, t3 = VT, VT + 1, VT + 2, VT + 3

    def acc2(mt, nt):
        return AC + 16 * mt + 4 * nt

    def FA(j, b, mt):
        return 64 * (j % 2) + 32 * b + 4 * mt

    def FB(j, b, nt):
        return 64 * (j % 2) + 32 * b + 16 + 4 * nt

    def setflag(*lanes):
        e(f"s_mov_b64 exec, {sum(1 << l for l in lanes)}")
        a.vmem(f"buffer_store_dwordx2 v[{V_TOK}:{V_TOK + 1}], v0, {WS}, 0 offen sc1", "fl")
        e("s_mov_b64 exec, -1")

    VQ = 120
    VH = 16

    def fq_load():
        a.vmem(f"buffer_load_dwordx2 v[{VQ}:{VQ + 1}], v{VQ + 2}, {WS}, 0 offen sc1", "fq")

    a.label("L_p2_late")
    e(f"buffer_load_dwordx2 v[{VFL}:{VFL + 1}], v{VFA}, {WS}, 0 offen sc1")
    e("s_waitcnt vmcnt(0)")
    e(f"v_cmp_eq_u64 vcc, v[{VFL}:{VFL + 1}], v[{V_TOK}:{V_TOK + 1}]")
    e("s_nop 1")
    e("s_cmp_eq_u64 vcc, -1")
    e("s_cbranch_scc1 L_p2_fok")
    e("s_add_u32 s3, s3, 1")
    e("s_cmp_gt_u32 s3, 0x40000")
    e("s_cbranch_scc1 L_p2_fok")
    e(f"s_sleep {OPT.get('slp', 4)}")
    e("s_branch L_p2_late")
    a.label("L_p2_fok")
    p2_issueA(a)
    e("s_waitcnt vmcnt(0)")
    a.label("L_p2_go")
    stamp(a, 0)
    a.vm = ["old"]
    e(f"s_and_b32 s{ST}, s{SWAVE}, 1")
    e(f"s_lshl_b32 s{ST}, s{ST}, 12")
    e(f"v_add_u32 v{VAR}, s{ST}, v{VL16}")
    for k in range(1, NBASE):
        e(f"v_add_u32 v{VAR + k}, {65536 * k}, v{VAR}")
    e(f"v_lshlrev_b32 v{t0}, 2, v{vG}")
    e(f"v_lshrrev_b32 v{t1}, 2, v{vi}")
    e(f"v_add_u32 v{t0}, v{t0}, v{t1}")
    e(f"v_and_b32 v{t1}, 7, v{t0}")
    e(f"s_lshr_b32 s{ST}, s{SWAVE}, 1")
    e(f"s_lshl_b32 s{ST}, s{ST}, 2")
    e(f"v_xor_b32 v{t1}, s{ST}, v{t1}")
    e(f"v_lshlrev_b32 v{t0}, 8, v{t0}")
    e(f"v_and_b32 v{t2}, 3, v{vi}")
    e(f"v_lshlrev_b32 v{t2}, 3, v{t2}")
    e(f"v_add_u32 v{t0}, v{t0}, v{t2}")
    e(f"v_add_u32 v{t0}, 16384, v{t0}")
    for nt in range(4):
        e(f"v_xor_b32 v{t3}, {nt}, v{t1}")
        e(f"v_lshlrev_b32 v{t3}, 5, v{t3}")
        e(f"v_add_u32 v{VBR + nt}, v{t0}, v{t3}")
        for k in range(1, NBASE):
            e(f"v_add_u32 v{VBR + 4 * k + nt}, {65536 * k}, v{VBR + nt}")
    VBW = 26
    e(f"v_add_u32 v{VBW}, s{SM0B}, v{VL16}")
    e(f"v_add_u32 v{VBW + 1}, 65536, v{VBW}")
    e(f"v_and_b32 v{t0}, 1, v{vG}")
    e(f"v_lshlrev_b32 v{t0}, 10, v{t0}")
    e(f"v_lshrrev_b32 v{t1}, 1, v{vG}")
    e(f"v_lshlrev_b32 v{t1}, 8, v{t1}")
    e(f"v_lshlrev_b32 v{VH}, 4, v{vi}")
    e(f"v_add3_u32 v{VH}, v{VH}, v{t0}, v{t1}")
    stamp(a, 1)
    e(f"s_cmp_eq_u32 s{SROLE}, 0")
    e(f"s_cbranch_scc1 L_p2_r0")
    vm_save = list(a.vm)

    import math
    PERIOD = S * 4 // math.gcd(S, 4)

    def body(role):
        R = f"r{role}"
        o0 = OPT.get('o0', 5)
        na0 = n0 - o0
        assert 16 < na0 <= 32 and 5 <= o0 <= 11
        nact = na0 if role == 0 else 56 - na0
        N = nact + (o0 if role == 0 else 16 - o0)
        JO = nact - (S - 1)
        JP = N - OPT['pj']
        if role == 0:
            runs = {16: (5, 1, 7)}
        else:
            nl1 = 32 - na0
            runs = {16 + nl1: (2, 7, 14)}
            if nl1:
                runs[16] = (5 + 7 * (na0 - 16), 1, 7)

        def bperm(op):
            e(f"s_and_b32 s{ST + 9}, s{SWAVE}, 1")
            e(f"s_mul_i32 s{ST + 9}, s{ST + 9}, {-12 * 2048}")
            for j4 in range(4):
                e(f"{op} v{VBD + j4}, s{ST + 9}, v{VBD + j4}")
                if j4 < 3:
                    e(f"s_add_u32 s{ST + 9}, s{ST + 9}, {4 * 2048}")

        def newrun(j):
            if j == nact:
                def sw():
                    e(f"s_lshr_b32 s{ST + 11}, s{SWAVE}, 1")
                    if role:
                        e(f"s_add_u32 s{ST + 11}, s{ST + 11}, {2 * o0}")
                    e(f"s_lshl_b32 s{SOB}, s{ST + 11}, 16")
                    e(f"s_lshl_b32 s{SOA}, s{SMT}, 5")
                    e(f"s_add_u32 s{SOA}, s{SOA}, s{ST + 11}")
                    e(f"s_lshl_b32 s{SOA}, s{SOA}, 13")
                    e(f"s_add_u32 s{SOA}, s{SOA}, {OF_OFF}")
                    e(f"s_mov_b32 s{P_SSA}, 16384")
                    e(f"s_mov_b32 s{P_SSB}, 131072")
                    if role == 1:
                        bperm("v_subrev_u32")
                return [sw]
            if j in runs:
                c0, c1, st_ = runs[j]

                def sw():
                    r = p2_setrun(a, (c0, c1), st_)
                    e(f"s_lshl_b32 s{SOB}, s{r}, 16")
                    e(f"s_mul_i32 s{SOA}, s{SMT}, 144")
                    e(f"s_add_u32 s{SOA}, s{SOA}, s{r}")
                    e(f"s_lshl_b32 s{SOA}, s{SOA}, 13")
                    e(f"s_mov_b32 s{P_SSA}, {st_ * 8192}")
                    e(f"s_mov_b32 s{P_SSB}, {st_ * 65536}")
                    if st_ == 14:
                        bperm("v_add_u32")
                return [sw]
            return []

        def dmaA(j):
            f = newrun(j)
            f.append(lambda: e(f"s_add_u32 m0, s{SM0A}, {(j % S) * SLOT}"))
            for i in range(4):
                f.append(lambda i=i: a.vmem(
                    f"buffer_load_dwordx4 v{VAD}, {WS}, s{SOA} offen offset:{1024 * i} {OPT['k2a']} lds", f"D{j}"))
            f.append(lambda: e(f"s_add_u32 s{SOA}, s{SOA}, s{P_SSA}"))
            return f

        def dmaB(j):
            sr = SW2 if j < nact else SWO
            f = []
            k = j - (S - 1)
            if 0 <= k < OPT.get('pb', 0):
                sl = j % S
                for i in range(4):
                    f.append(lambda i=i: e(
                        f"ds_write_b128 v{VBW + sl // 2}, {ar(128 + 16 * k + 4 * i)} offset:{(sl % 2) * SLOT + 1024 * i}"))
                return f
            f.append(lambda: e(f"s_add_u32 m0, s{SM0B}, {(j % S) * SLOT}"))
            for i in range(4):
                f.append(lambda i=i: a.vmem(
                    f"buffer_load_dwordx4 v{VBD + i}, s[{sr}:{sr + 3}], s{SOB} offen offset:{1024 * i} lds", f"D{j}"))
            f.append(lambda: e(f"s_add_u32 s{SOB}, s{SOB}, s{P_SSB}"))
            return f

        def reads(j):
            sl = j % S
            k, so = sl // 2, (sl % 2) * SLOT
            f = []
            for q in range(4):
                for b in range(2):
                    f.append(lambda b=b, q=q: e(
                        f"ds_read_b128 {ar(FA(j, b, q))}, v{VAR + k} offset:{so + 8192 * b + 1024 * q}"))
                    for ins in range(2):
                        f.append(lambda b=b, q=q, ins=ins: e(
                            f"ds_read_b64_tr_b16 {ar(FB(j, b, q) + 2 * ins, 2)}, v{VBR + 4 * k + q} offset:{so + 8192 * b + 4096 * ins}"))
            return f

        late = []
        for mp in range(2):
            late.append(f"buffer_store_dwordx4 {vr(240 + 4 * mp)}, v{VH}, {WS}, s{P_SL + 2} offen offset:{2048 * mp} sc1")
        for g_, base in enumerate((192, 224)):
            for mt in range(4):
                late.append(f"buffer_store_dwordx4 {vr(base + 4 * mt)}, v{VL16}, {WS}, s{P_SL + g_} offen offset:{1024 * mt} sc1")
        TR = OPT.get('tr', 3)
        TRS = OPT.get('trs', 0)
        NTR = -(-10 // TR) + TRS
        JFQ = OPT.get('jfq', 2)

        e("s_barrier")
        stamp(a, 2)
        VK = 48
        PD, PO, PEPS, PR = 48, 96, 112, 116

        def poll(lab, vv, reload):
            a.label(f"L_p2{R}_{lab}w")
            e(f"v_cmp_eq_u64 vcc, v[{vv}:{vv + 1}], v[{V_TOK}:{V_TOK + 1}]")
            e("s_nop 1")
            e("s_cmp_eq_u64 vcc, -1")
            e(f"s_cbranch_scc1 L_p2{R}_{lab}ok")
            e("s_add_u32 s3, s3, 1")
            e("s_cmp_gt_u32 s3, 0x40000")
            e(f"s_cbranch_scc1 L_p2{R}_{lab}ok")
            e("s_sleep 4")
            sv = list(a.vm)
            reload()
            a.vm = sv
            e("s_waitcnt vmcnt(0)")
            e(f"s_branch L_p2{R}_{lab}w")
            a.label(f"L_p2{R}_{lab}ok")

        def fl_load(tag="F"):
            a.vmem(f"buffer_load_dwordx2 v[{VFL}:{VFL + 1}], v{VFA}, {WS}, 0 offen sc1", tag)

        def red_guard(lab):
            e(f"s_cmp_eq_u32 s{P_SEARLY}, 0")
            e(f"s_cbranch_scc1 L_p2{R}_{lab}")

        J1 = OPT.get('j1', 4)
        J2 = OPT.get('j2', 12)

        def pre(j):
            if j == JFQ:
                a.wait(["old"])
            if j == NTR + 2:
                a.wait(["sl"])
            if j == 16 - S + 1:
                a.wait(["FL"])
                poll("l", VFL, fl_load)
            if j == J2 + 2:
                a.wait(["fq"])
                poll("k", VQ, fq_load)
            if j == J2 + 4:
                a.wait(["pq"])
            if j == J2 + 8:
                a.wait(["ost"])
            if j == JO:
                a.wait(["F"])
                poll("o", VFL, fl_load)
            if role == 1 and j == JP:
                a.wait(["F2"])
                poll("p", VFL, fl_load)

        def extra(j):
            if j == JFQ:
                setflag(1)
            if j == J1:
                e(f"s_and_b32 s{ST}, s2, 3")
                e(f"s_cmp_eq_u32 s{ST}, s{SWAVE}")
                e(f"s_cselect_b32 s{P_SEARLY}, 1, 0")
                e(f"s_cmp_lt_u32 s2, 192")
                e(f"s_cselect_b32 s{P_SEARLY}, s{P_SEARLY}, 0")
                e(f"s_mul_i32 s{P_SHD}, s2, 171")
                e(f"s_lshr_b32 s{P_SHD}, s{P_SHD}, 10")
                e(f"s_min_u32 s{P_SHD}, s{P_SHD}, 31")
                e(f"s_lshr_b32 s{ST}, s{P_SHD}, 1")
                e(f"s_lshl_b32 s{ST}, s{ST}, 9")
                e(f"s_add_u32 s{ST}, s{ST}, {FQ_OFF}")
                e(f"v_and_b32 v{VQ + 2}, 31, v{VL}")
                e(f"v_lshlrev_b32 v{VQ + 2}, 3, v{VQ + 2}")
                e(f"v_add_u32 v{VQ + 2}, s{ST}, v{VQ + 2}")
                fq_load()
            if j == NTR + 2:
                setflag(4)
                srd(a, SOUT, S_PTR + 16, S_PTR + 17, 2048 * 1024 * 2)
            if j == 16 - S - 1:
                e(f"s_lshl_b32 s{ST}, s{SMT}, 9")
                e(f"s_add_u32 s{ST}, s{ST}, {FA_OFF}")
                e(f"v_lshlrev_b32 v{VFA}, 3, v{VL}")
                e(f"v_add_u32 v{VFA}, s{ST}, v{VFA}")
                fl_load("FL")
            if j == 16 - S + 2:
                e(f"v_lshlrev_b32 v{t1}, 2, v{vi}")
                e(f"s_lshl_b32 s{ST}, s{SMT}, 9")
                e(f"s_and_b32 s{ST + 1}, s{SWAVE}, 1")
                e(f"s_lshl_b32 s{ST + 1}, s{ST + 1}, 8")
                e(f"s_add_u32 s{ST}, s{ST}, s{ST + 1}")
                e(f"s_add_u32 s{ST}, s{ST}, {G_OFF}")
                for i in range(4):
                    a.vmem(f"buffer_load_dword v{VG + i}, v{t1}, {WS}, s{ST} offen offset:{64 * i}", "g")
            if j == J2:
                e(f"s_and_b32 s{P_SHD}, s2, 31")
                e(f"s_lshr_b32 s{P_SM2}, s2, 5")
                e(f"s_lshr_b32 s{ST}, s{P_SHD}, 1")
                e(f"s_lshl_b32 s{ST}, s{ST}, 4")
                e(f"s_add_u32 s{ST}, s{ST}, s{P_SM2}")
                e(f"s_lshl_b32 s{ST}, s{ST}, 2")
                e(f"s_add_u32 s{ST}, s{ST}, s{SWAVE}")
                e(f"s_lshl_b32 s{ST}, s{ST}, 3")
                e(f"s_add_u32 s{ST}, s{ST}, {FQ_OFF + 256}")
                e(f"s_lshl_b32 s{ST + 1}, s{P_SHD}, 6")
                e(f"s_add_u32 s{ST + 1}, s{ST + 1}, {FK_OFF}")
                e(f"v_lshlrev_b32 v{VQ + 2}, 3, v{VL}")
                e(f"v_add_u32 v{VQ + 2}, s{ST + 1}, v{VQ + 2}")
                e(f"v_mov_b32 v{t0}, s{ST}")
                e(f"v_cmp_gt_u32 s[{ST + 2}:{ST + 3}], 6, v{VL}")
                e("s_nop 1")
                e(f"v_cndmask_b32 v{VQ + 2}, v{t0}, v{VQ + 2}, s[{ST + 2}:{ST + 3}]")
                e(f"s_lshl_b32 s{P_SM2}, s{P_SM2}, 1")
                e(f"s_lshr_b32 s{ST}, s{SWAVE}, 1")
                e(f"s_add_u32 s{P_SM2}, s{P_SM2}, s{ST}")
                fq_load()
            if j == J2 + 2:
                e(f"s_mul_i32 s{ST}, s{P_SHD}, 3072")
                e(f"s_add_u32 s{ST}, s{ST}, {KVF_OFF}")
                e(f"v_lshlrev_b32 v{t0}, 3, v{VL}")
                for i in range(6):
                    a.vmem(f"buffer_load_dwordx2 {ar(144 + 2 * i, 2)}, v{t0}, {WS}, s{ST} offen offset:{512 * i}", "pq")
                e(f"s_mul_i32 s{ST}, s{P_SM2}, 144")
                e(f"s_add_u32 s{ST}, s{ST}, s{P_SHD}")
                e(f"s_add_u32 s{ST}, s{ST}, 112")
                e(f"s_lshl_b32 s{ST}, s{ST}, 13")
                for i in range(4):
                    a.vmem(f"buffer_load_dwordx4 {ar(128 + 4 * i)}, v{VAD}, {WS}, s{ST} offen offset:{1024 * i}", "pq")
                e(f"s_lshl_b32 s{SOP}, s{P_SM2}, 5")
                e(f"s_add_u32 s{SOP}, s{SOP}, s{P_SHD}")
                e(f"s_lshl_b32 s{SOP}, s{SOP}, 13")
                e(f"s_add_u32 s{SOP}, s{SOP}, {OF_OFF}")
                for r in range(4):
                    e(f"v_mov_b32 v{PEPS + r}, {EPS_HEX}")
            if j == J2 + 5:
                for i in range(4):
                    e(f"v_rcp_f32 v{PR + i}, v{PD + 12 * i + 8}")
                e("s_nop 0")
                for i in range(4):
                    d = PD + 12 * i
                    for q in range(8):
                        e(f"v_mul_f32 v{d + q}, v{PR + i}, v{d + q}")
                    o = PO + 4 * i
                    for q in range(4):
                        e(f"v_cvt_pk_bf16_f32 v{o + q}, v{d + 2 * q}, v{d + 2 * q + 1}")
                    a.vmem(f"buffer_store_dwordx4 {vr(o)}, v{VAD}, {WS}, s{SOP} offen offset:{1024 * i} sc1", "ost")
            if j == J2 + 8:
                setflag(2)
            if j == JO - OPT.get('fod', 2):
                assert j > J2 + 8
                e(f"s_lshl_b32 s{ST}, s{SMT}, 9")
                e(f"s_add_u32 s{ST}, s{ST}, {FO_OFF}")
                if role == 0:
                    e(f"v_min_u32 v{VFA}, {4 * o0 - 1}, v{VL}")
                else:
                    e(f"v_max_u32 v{VFA}, {4 * o0}, v{VL}")
                e(f"v_lshlrev_b32 v{VFA}, 3, v{VFA}")
                e(f"v_add_u32 v{VFA}, s{ST}, v{VFA}")
                fl_load("F")
            if role == 1 and j == JP - 1:
                e(f"s_lshl_b32 s{ST}, s{STILE}, 8")
                e(f"s_lshl_b32 s{ST + 1}, s{SWAVE}, 3")
                e(f"s_add_u32 s{ST}, s{ST}, s{ST + 1}")
                e(f"s_add_u32 s{ST}, s{ST}, {FP_OFF}")
                e(f"v_mov_b32 v{VFA}, s{ST}")
                fl_load("F2")
            if role == 1 and j == JP:
                e(f"s_lshl_b32 s{ST}, s{STILE}, 16")
                e(f"s_lshl_b32 s{ST + 1}, s{SWAVE}, 13")
                e(f"s_add_u32 s{ST}, s{ST}, s{ST + 1}")
                e(f"s_add_u32 s{ST}, s{ST}, {PART_OFF}")
                for q in range(8):
                    if q == 4:
                        e(f"s_add_u32 s{ST}, s{ST}, 4096")
                    a.vmem(f"buffer_load_dwordx4 {vr(VY + 4 * q)}, v{VL16}, {WS}, s{ST} offen offset:{1024 * (q & 3)} sc1", "PT")

        def post(j):
            if j == J1 + 1:
                red_guard("nr1")
                n_ = a.vm_count(["fq"], drop=False)
                e(f"s_waitcnt vmcnt({n_})")
                poll("q", VQ, fq_load)
                e(f"s_lshr_b32 s{ST}, s{P_SHD}, 1")
                e(f"s_mul_i32 s{ST}, s{ST}, 84")
                e(f"s_add_u32 s{ST}, s{ST}, s2")
                e(f"s_lshl_b32 s{ST}, s{ST}, 10")
                e(f"s_add_u32 s{ST}, s{ST}, {KVP_OFF}")
                for r8 in range(8):
                    e(f"buffer_load_dwordx4 {vr(VK + 4 * r8)}, v{VL16}, {WS}, s{ST} offen")
                    if r8 < 7:
                        e(f"s_add_u32 s{ST}, s{ST}, 12288")
                a.label(f"L_p2{R}_nr1")
                a.mark("r1")
            if j == J1 + 3:
                red_guard("nr2")
                n_ = a.vm_count(["#r1"], drop=False)
                if n_ is not None:
                    e(f"s_waitcnt vmcnt({n_})")
                for st_ in (1, 2, 4):
                    for r8 in range(0, 8, 2 * st_):
                        for q in range(2):
                            b0 = VK + 4 * r8 + 2 * q
                            e(f"v_pk_add_f32 {vr(b0, 2)}, {vr(b0, 2)}, {vr(b0 + 4 * st_, 2)}")
                e(f"v_cvt_pk_bf16_f32 v{VK}, v{VK}, v{VK + 1}")
                e(f"v_cvt_pk_bf16_f32 v{VK + 1}, v{VK + 2}, v{VK + 3}")
                e(f"s_mul_i32 s{ST}, s{P_SHD}, 6")
                e(f"s_sub_u32 s{ST}, s2, s{ST}")
                e(f"s_cmp_ge_u32 s{ST}, 3")
                e(f"s_cselect_b32 s{ST + 1}, 1, 0")
                e(f"s_mul_i32 s{ST + 2}, s{ST + 1}, 3")
                e(f"s_sub_u32 s{ST}, s{ST}, s{ST + 2}")
                e(f"s_mul_i32 s{ST + 2}, s{P_SHD}, 3")
                e(f"s_add_u32 s{ST}, s{ST}, s{ST + 2}")
                e(f"s_lshl_b32 s{ST}, s{ST}, 10")
                e(f"s_lshl_b32 s{ST + 1}, s{ST + 1}, 9")
                e(f"s_add_u32 s{ST}, s{ST}, s{ST + 1}")
                e(f"s_add_u32 s{ST}, s{ST}, {KVF_OFF}")
                e(f"v_lshlrev_b32 v{t0}, 3, v{VL}")
                e(f"buffer_store_dwordx2 {vr(VK, 2)}, v{t0}, {WS}, s{ST} offen sc1")
                a.label(f"L_p2{R}_nr2")
                a.mark("r2")
            if j == J1 + 5:
                red_guard("nr3")
                n_ = a.vm_count(["#r2"], drop=False)
                if n_ is not None:
                    e(f"s_waitcnt vmcnt({n_})")
                e(f"s_mov_b64 exec, {1 << 5}")
                e(f"buffer_store_dwordx2 v[{V_TOK}:{V_TOK + 1}], v0, {WS}, 0 offen sc1")
                e("s_mov_b64 exec, -1")
                a.label(f"L_p2{R}_nr3")

        def interval(j):
            if DIAG and OPT.get('ts2'):
                if j == 0:
                    e("s_mov_b32 s74, 0")
                e("s_memrealtime s[76:77]")
                e("s_waitcnt lgkmcnt(0)")
                e("s_mov_b32 m0, s74")
                e("s_nop 0")
                e(f"v_writelane_b32 v{VT + 7}, s76, m0")
                e("s_add_u32 s74, s74, 1")
            main = []
            if j >= 1:
                for mt in range(4):
                    for nt in range(4):
                        D = vr(acc2(mt, nt) + (64 if j - 1 >= nact else 0))
                        for b in range(2):
                            C = "0" if (j in (1, nact + 1) and b == 0) else D
                            main.append(f"v_mfma_f32_16x16x32_bf16 {D}, {ar(FB(j - 1, b, nt))}, {ar(FA(j - 1, b, mt))}, {C}")
            pre(j)
            if j == J2 + 4:
                pm = []
                for i in range(4):
                    d = PD + 12 * i
                    pq = ar(128 + 4 * i)
                    pm += [f"v_mfma_f32_16x16x32_bf16 {vr(d + 8)}, {ar(152)}, {pq}, {vr(PEPS)}",
                           f"v_mfma_f32_16x16x32_bf16 {vr(d)}, {ar(144)}, {pq}, 0",
                           f"v_mfma_f32_16x16x32_bf16 {vr(d + 4)}, {ar(148)}, {pq}, 0"]
                main = pm + main
            rd = reads(j) if j < N else []
            dm = (dmaA(j + S - 1) + dmaB(j + S - 1)) if j + S - 1 < N else []
            for x in (late[TR * (j - TRS): TR * (j - TRS) + TR] if j >= TRS else []):
                dm.append(lambda x=x: a.vmem(x, "sl"))
            streams = []
            if nact + 1 <= j <= nact + 4:
                mt = j - (nact + 1)
                it = []
                if mt == 0:
                    a.wait(["g"])
                it.append(lambda mt=mt: e(f"v_sub_f32 v{VOMG + mt}, 1.0, v{VG + mt}"))
                for q in range(16):
                    it.append(lambda mt=mt, q=q: e(f"v_mul_f32 v{acc2(mt, 0) + q}, v{VOMG + mt}, v{acc2(mt, 0) + q}"))
                streams.append((it, 10, 30))
            n = max(len(main), 1)
            ex = capture(a, lambda: extra(j), chunk=1)
            if ex:
                streams.append((ex, 1, min(n * 0.97, 1 + 1.2 * len(ex))))
            schedule(a, main, [(rd, 0, n * 0.85), (dm, 0.5, n * 0.95)] + streams)
            post(j)
            if j < N:
                a.wait([f"D{j + 1}"] if j + 1 < N else [], lgkm=True)
                if j + 1 < N:
                    e("s_barrier")

        iters = []
        for j in range(N + 1):
            n_ = len(a.lines)
            if j == 4:
                stamp(a, 3)
            if j == nact:
                stamp(a, 4)
            interval(j)
            iters.append(a.lines[n_:])
            del a.lines[n_:]
        fold_loops(a, iters, PERIOD, SCNT, f"p2{R}")
        stamp(a, 5)
        if role == 0:
            e(f"s_lshl_b32 s{ST}, s{STILE}, 16")
            e(f"s_lshl_b32 s{ST + 1}, s{SWAVE}, 13")
            e(f"s_add_u32 s{ST}, s{ST}, s{ST + 1}")
            e(f"s_add_u32 s{ST}, s{ST}, {PART_OFF}")
            e("s_nop 7")
        else:
            vo = VT + 4
            if OPT.get('fl'):
                e(f"v_and_b32 v{t2}, 7, v{vi}")
                e(f"v_lshlrev_b32 v{t2}, 11, v{t2}")
                e(f"v_lshrrev_b32 v{t3}, 3, v{vi}")
                e(f"v_lshlrev_b32 v{t3}, 6, v{t3}")
                e(f"v_add_u32 v{t2}, v{t2}, v{t3}")
            else:
                e(f"v_lshlrev_b32 v{t2}, 11, v{vi}")
            e(f"v_bfe_u32 v{t3}, v{VL}, 4, 1")
            e(f"v_lshlrev_b32 v{t3}, 5, v{t3}")
            e(f"v_add_u32 v{t2}, v{t2}, v{t3}")
            e(f"v_lshrrev_b32 v{t3}, 5, v{VL}")
            e(f"v_lshlrev_b32 v{t3}, 4, v{t3}")
            e(f"v_add_u32 v{vo}, v{t2}, v{t3}")
            e(f"v_add_u32 v{vo + 1}, 16384, v{vo}")
            e(f"s_lshl_b32 s{ST}, s{SMT}, 7")
            e(f"s_and_b32 s{ST + 1}, s{SWAVE}, 1")
            e(f"s_lshl_b32 s{ST + 1}, s{ST + 1}, 6")
            e(f"s_add_u32 s{ST}, s{ST}, s{ST + 1}")
            e(f"s_lshl_b32 s{ST}, s{ST}, 11")
            e(f"s_lshl_b32 s{ST + 1}, s{SNT}, 8")
            e(f"s_add_u32 s{ST}, s{ST}, s{ST + 1}")
            e(f"s_lshr_b32 s{ST + 1}, s{SWAVE}, 1")
            e(f"s_lshl_b32 s{ST + 1}, s{ST + 1}, 7")
            e(f"s_add_u32 s{ST}, s{ST}, s{ST + 1}")
            if OPT.get('fl') == 2:
                vw_, vr_ = 116, 118
                e(f"s_lshl_b32 s{ST + 1}, s{SWAVE}, 13")
                e(f"s_add_u32 s{ST + 1}, s{ST + 1}, {((N - 2) % S) * SLOT}")
                e(f"v_and_b32 v{t0}, 1, v{vG}")
                e(f"v_lshlrev_b32 v{t0}, 1, v{t0}")
                e(f"v_lshrrev_b32 v{t1}, 1, v{vG}")
                e(f"v_add_u32 v{t0}, v{t0}, v{t1}")
                e(f"v_and_b32 v{t1}, 7, v{vi}")
                e(f"v_xor_b32 v{t0}, v{t0}, v{t1}")
                e(f"v_lshlrev_b32 v{t1}, 7, v{vi}")
                e(f"v_add_u32 v{t1}, s{ST + 1}, v{t1}")
                e(f"v_lshlrev_b32 v{t2}, 4, v{t0}")
                e(f"v_add_u32 v{vw_}, v{t1}, v{t2}")
                e(f"v_xor_b32 v{t2}, 64, v{t2}")
                e(f"v_add_u32 v{vw_ + 1}, v{t1}, v{t2}")
                e(f"v_lshrrev_b32 v{t0}, 3, v{VL}")
                e(f"v_and_b32 v{t1}, 7, v{VL}")
                e(f"v_xor_b32 v{t2}, v{t0}, v{t1}")
                e(f"v_lshlrev_b32 v{t2}, 4, v{t2}")
                e(f"v_lshlrev_b32 v{t3}, 7, v{t0}")
                e(f"v_add3_u32 v{vr_}, v{t2}, v{t3}, s{ST + 1}")
                e(f"v_lshlrev_b32 v{t0}, 11, v{t0}")
                e(f"v_lshlrev_b32 v{t1}, 4, v{t1}")
                e(f"v_add_u32 v{vo}, v{t0}, v{t1}")
            a.wait(["PT"])
        for mt in range(4):
            sel = "op_sel:[1,0,0] op_sel_hi:[1,1,1]" if mt & 1 else "op_sel_hi:[0,1,1]"
            for q in range(8):
                b0 = acc2(mt, 0) + 2 * q
                e(f"v_pk_fma_f32 {vr(b0, 2)}, {vr(VG + (mt & 2), 2)}, {vr(b0 + 64, 2)}, {vr(b0, 2)} {sel}")
            if role == 0:
                for h2 in range(2):
                    q = 2 * mt + h2
                    b0 = AC + 8 * q
                    for r in range(4):
                        e(f"v_cvt_pk_bf16_f32 v{b0 + r}, v{b0 + 2 * r}, v{b0 + 2 * r + 1}")
                    e(f"buffer_store_dwordx4 {vr(b0)}, v{VL16}, {WS}, s{ST} offen offset:{1024 * (q & 3)} sc1")
                    if q == 3:
                        e(f"s_add_u32 s{ST}, s{ST}, 4096")
            else:
                for q in range(8):
                    p0 = VY + 8 * mt + q
                    u = 48 + 2 * q
                    e(f"v_lshlrev_b32 v{u}, 16, v{p0}")
                    e(f"v_and_b32 v{u + 1}, 0xffff0000, v{p0}")
                for q in range(8):
                    b0 = acc2(mt, 0) + 2 * q
                    e(f"v_pk_add_f32 {vr(b0, 2)}, {vr(b0, 2)}, {vr(48 + 2 * q, 2)}")
                for pr in range(2):
                    b0 = acc2(mt, 2 * pr)
                    for q in range(4):
                        e(f"v_cvt_pk_bf16_f32 v{b0 + q}, v{b0 + 2 * q}, v{b0 + 2 * q + 1}")
                e("s_nop 1")
                for pr in range(2):
                    b0 = acc2(mt, 2 * pr)
                    e(f"v_permlane16_swap_b32 v{b0}, v{b0 + 2}")
                    e(f"v_permlane16_swap_b32 v{b0 + 1}, v{b0 + 3}")
                if OPT.get('fl') == 2:
                    for pr in range(2):
                        e(f"ds_write_b128 v{vw_ + pr}, {vr(acc2(mt, 2 * pr))} offset:{2048 * mt}")
                    continue
                elif OPT.get('fl'):
                    q0, q1 = acc2(mt, 0), acc2(mt, 2)
                    tq = q0 + 4
                    for r in range(4):
                        e(f"v_mov_b32 v{tq + r}, v{q0 + r}")
                    for r in range(4):
                        e(f"v_mov_b32_dpp v{q0 + r}, v{q1 + r} row_ror:8 row_mask:0xf bank_mask:0xc")
                    for r in range(4):
                        e(f"v_mov_b32_dpp v{q1 + r}, v{tq + r} row_ror:8 row_mask:0xf bank_mask:0x3")
                    e(f"buffer_store_dwordx4 {vr(q0)}, v{vo}, s[{SOUT}:{SOUT + 3}], s{ST} offen {OPT.get('ost', '')}")
                    e(f"buffer_store_dwordx4 {vr(q1)}, v{vo + 1}, s[{SOUT}:{SOUT + 3}], s{ST} offen {OPT.get('ost', '')}")
                else:
                    for pr in range(2):
                        b0 = acc2(mt, 2 * pr)
                        e(f"buffer_store_dwordx4 {vr(b0)}, v{vo}, s[{SOUT}:{SOUT + 3}], s{ST} offen offset:{64 * pr} {OPT.get('ost', '')}")
                if mt < 3:
                    e(f"s_add_u32 s{ST}, s{ST}, 32768")
        if role == 1 and OPT.get('fl') == 2:
            e("s_waitcnt lgkmcnt(0)")
            for q in range(8):
                e(f"ds_read_b128 {vr(AC + 64 + 4 * q)}, v{vr_} offset:{1024 * q}")
            for q in range(8):
                e(f"s_waitcnt lgkmcnt({7 - q})")
                e(f"buffer_store_dwordx4 {vr(AC + 64 + 4 * q)}, v{vo}, s[{SOUT}:{SOUT + 3}], s{ST} offen {OPT.get('ost', '')}")
                if q < 7:
                    e(f"s_add_u32 s{ST}, s{ST}, 16384")
        if role == 0:
            e("s_waitcnt vmcnt(0)")
            setflag(3)
        stamp(a, 6)
        if DIAG and OPT.get('ts2'):
            e(f"s_mov_b32 s76, s{S_PTR + 20}")
            e(f"s_and_b32 s77, s{S_PTR + 21}, 0xffff")
            e(f"s_mov_b32 s78, 0x4000000")
            e(f"s_mov_b32 s79, 0x20000")
            e(f"s_lshl_b32 s75, s2, 2")
            e(f"s_add_u32 s75, s75, s{S_WAVE}")
            e(f"s_lshl_b32 s75, s75, 8")
            e(f"s_add_u32 s75, s75, {DIAG_OFF + 0x200000}")
            e(f"v_lshlrev_b32 v{VT}, 2, v{VL}")
            e(f"buffer_store_dword v{VT + 7}, v{VT}, s[76:79], s75 offen")
        if DIAG:
            e("s_waitcnt vmcnt(0)")
        stamp(a, 7)
        stamp_dump(a, 1, 8, SWAVE, S_PTR + 20, S_PTR + 21, VT + 5)
        e("s_endpgm")

    body(1)
    a.label("L_p2_r0")
    a.vm = vm_save
    body(0)


def fix_hazards(lines):
    out = []
    for i, ln in enumerate(lines):
        out.append(ln)
        if " m0," in ln and i + 1 < len(lines) and lines[i + 1].rstrip().endswith("lds"):
            out.append("  s_nop 0")
    return out


def gen_spin():
    a = Asm()
    e = a.e
    spec = OPT['spin']
    A_, B_, M = spec.split(",")
    a.lines.append(".globl spin_kernel\n.p2align 8\n.type spin_kernel,@function\nspin_kernel:")
    e("s_cmp_lg_u32 s2, 0")
    e("s_cbranch_scc1 L_spin_end")
    e("s_load_dwordx2 s[4:5], s[0:1], 80")
    e("v_lshlrev_b32 v1, 7, v0")
    e("s_waitcnt lgkmcnt(0)")
    e("s_mov_b32 s8, s4\ns_and_b32 s9, s5, 0xffff\ns_mov_b32 s10, 0x4000000\ns_mov_b32 s11, 0x20000")

    def red(sp, sdst):
        k, st, op = sp.split(".")
        base = DIAG_OFF + int(k) * 0x100000 + 8 * int(st) + 4
        for i in range(16):
            e(f"s_mov_b32 s12, {base + i * 8192}")
            e(f"buffer_load_dword v{8 + i}, v1, s[8:11], s12 offen")
        e("s_waitcnt vmcnt(0)")
        for i in range(1, 16):
            e(f"v_{op}_u32 v8, v8, v{8 + i}")
        e("s_nop 1")
        e(f"v_readlane_b32 s{sdst}, v8, 0")
        for l in range(1, 64):
            e(f"v_readlane_b32 s13, v8, {l}")
            e("s_nop 0")
            e(f"s_{op}_u32 s{sdst}, s{sdst}, s13")
    red("0.0.min", 20)
    red(A_, 21)
    red(B_, 22)
    e("s_sub_u32 s22, s22, s21")
    e(f"s_mul_i32 s22, s22, {M}")
    e("s_add_u32 s22, s22, 12000")
    e("s_min_u32 s22, s22, 90000")
    a.label("L_spin")
    e("s_memrealtime s[14:15]")
    e("s_waitcnt lgkmcnt(0)")
    e("s_sub_u32 s16, s14, s20")
    e("s_cmp_lt_u32 s16, s22")
    e("s_cbranch_scc1 L_spin")
    a.label("L_spin_end")
    e("s_endpgm")
    return a.lines


def kd(name, nfv, accum):
    return f""".amdhsa_kernel {name}
  .amdhsa_next_free_vgpr {nfv}
  .amdhsa_next_free_sgpr 102
  .amdhsa_accum_offset {accum}
  .amdhsa_group_segment_fixed_size 0
  .amdhsa_kernarg_size 88
  .amdhsa_user_sgpr_count 2
  .amdhsa_user_sgpr_kernarg_segment_ptr 1
  .amdhsa_system_sgpr_workgroup_id_x 1
.end_amdhsa_kernel"""


def main(path):
    hdr = open(f"cdna_kernels/{NAME}.s.ref").read().split("; Override launch")[0]
    out = [hdr.rstrip("\n")]
    kn = NAME + "_kernel"
    if OPT.get('spin'):
        out.append(f"; @launch kernel={kn} grid=(256,1,1) block=(256,1,1) lds={K2_LDS()}")
        out.append("; @launch kernel=spin_kernel grid=(1,1,1) block=(64,1,1) lds=0")
    else:
        out.append(f"; @launch grid=(256,1,1) block=(256,1,1) lds={K2_LDS()}")
    out.append('.amdgcn_target "amdgcn-amd-amdhsa--gfx950"')
    out.append(".text")
    out += [ln.replace("KNAME", kn) for ln in fix_hazards(gen_k1())]
    if OPT.get('spin'):
        out += gen_spin()
    out.append('.section .rodata,"a"')
    if OPT.get('spin'):
        out.append(".p2align 6")
        out.append(kd("spin_kernel", 32, 32))
    out.append(".p2align 6")
    out.append(kd(kn, 512 if OPT.get("pb") else 416, 256))
    open(path, "w").write("\n".join(out) + "\n")


if __name__ == "__main__":
    if "--dbgout" in sys.argv:
        DBGOUT = True
        sys.argv.remove("--dbgout")
    if "--diag" in sys.argv:
        DIAG = True
        sys.argv.remove("--diag")
    for arg in list(sys.argv):
        if "=" in arg:
            k_, v_ = arg.split("=")
            OPT[k_] = int(v_) if v_.isdigit() else v_.replace("+", " ")
            sys.argv.remove(arg)
    main(sys.argv[1] if len(sys.argv) > 1 else f"cdna_kernels/{NAME}.s")
```

```python
import sys

NAME = "gated_mix__linear_attn_block__dense_activation_mish__prompt"

AF_OFF = 0
AF_BYTES = 16 * 144 * 8 * 1024
KVP_OFF = AF_BYTES
KVP_BYTES = 16 * 8 * 12 * 1024
KVF_OFF = KVP_OFF + KVP_BYTES
KVF_BYTES = 32 * 3 * 1024
G_OFF = KVF_OFF + KVF_BYTES
PART_OFF = G_OFF + 8192
OF_OFF = PART_OFF + 128 * 65536
FLG_OFF = OF_OFF + 16 * 32 * 8192
FE_OFF = FLG_OFF - 0 + 32768 + 128 * 256
FA_OFF = FLG_OFF
FQ_OFF = FA_OFF + 8192
FO_OFF = FQ_OFF + 8192
FP_OFF = FO_OFF + 8192
FK_OFF = FE_OFF + 8192
WS_USED = FK_OFF + 2048
assert FP_OFF + 128 * 256 <= FE_OFF
V_TOK = 14

DIAG = False
DBGOUT = False
OPT = dict(k1a="", k1b="", k2a="", k2b="", st="sc1", ost="sc1", fl=1, pf=2, xpf=0, n0=34, o0=6, tr=5, cpf=2, map=0, fepos=1, S=4, pbf=1, pj=1, pprio=0, cprio=0, rdend=26)
DIAG_OFF = 0x2000000
EPS_HEX = "0x358637bd"
L2E_HEX = "0x3fb8aa3b"


class Asm:
    def __init__(self):
        self.lines = []
        self.vm = []

    def e(self, s):
        for ln in s.split("\n"):
            self.lines.append("  " + ln.strip())

    def label(self, s):
        self.lines.append(s + ":")

    def vmem(self, s, tag):
        self.e(s)
        self.vm.append(tag)

    def mark(self, tag):
        self.vm.append("#" + tag)

    def vm_count(self, tags, drop=True):
        idx = -1
        for i, t in enumerate(self.vm):
            if t in tags:
                idx = i
        if idx < 0:
            return None
        n = sum(1 for t in self.vm[idx + 1:] if not t.startswith("#"))
        if drop:
            self.vm = self.vm[idx + 1:]
        assert n <= 63, n
        return n

    def wait(self, tags=(), lgkm=False):
        n = self.vm_count(tags) if tags else None
        parts = []
        if n is not None:
            parts.append(f"vmcnt({n})")
        if lgkm:
            parts.append("lgkmcnt(0)")
        if parts:
            self.e("s_waitcnt " + " ".join(parts))


def stamp(a, idx, sbase=80):
    if not DIAG:
        return
    a.e(f"s_memtime s[{sbase - 4}:{sbase - 3}]")
    a.e(f"s_memrealtime s[{sbase - 2}:{sbase - 1}]")
    a.e("s_waitcnt lgkmcnt(0)")
    a.e(f"s_mov_b32 s{sbase + 2 * idx}, s{sbase - 4}")
    a.e(f"s_mov_b32 s{sbase + 2 * idx + 1}, s{sbase - 2}")


def stamp_dump(a, kidx, n, swave, sptr_lo, sptr_hi, vtmp, sbase=80):
    if not DIAG:
        return
    e = a.e
    e(f"s_mov_b32 s{sbase - 4}, s{sptr_lo}")
    e(f"s_and_b32 s{sbase - 3}, s{sptr_hi}, 0xffff")
    e(f"s_mov_b32 s{sbase - 2}, 0x4000000")
    e(f"s_mov_b32 s{sbase - 1}, 0x20000")
    e(f"s_lshl_b32 s75, s2, 2")
    e(f"s_add_u32 s75, s75, s{swave}")
    e(f"s_lshl_b32 s75, s75, 7")
    e(f"s_add_u32 s75, s75, {DIAG_OFF + kidx * 0x100000}")
    e(f"v_mov_b32 v{vtmp}, 0")
    e("s_mov_b64 exec, 1")
    for i in range(2 * n):
        e(f"v_mov_b32 v{vtmp + 1}, s{sbase + i}")
        e(f"buffer_store_dword v{vtmp + 1}, v{vtmp}, s[{sbase - 4}:{sbase - 1}], s75 offen offset:{4 * i}")
        e("s_nop 1")
    e("s_mov_b64 exec, -1")
    if DBGOUT:
        lab = f"L_dbg_{len(a.lines)}"
        e(f"s_cmp_lg_u32 s2, 1")
        e(f"s_cbranch_scc1 {lab}")
        e(f"s_cmp_lg_u32 s{swave}, 0")
        e(f"s_cbranch_scc1 {lab}")
        e(f"s_mov_b32 s{sbase - 4}, s{sptr_lo - 2}")
        e(f"s_and_b32 s{sbase - 3}, s{sptr_hi - 2}, 0xffff")
        e(f"s_mov_b32 s{sbase - 2}, 256")
        e("s_mov_b64 exec, 1")
        for i in range(n):
            e(f"v_mov_b32 v{vtmp + 1}, s{sbase + 2 * i + 1}")
            e(f"buffer_store_dword v{vtmp + 1}, v{vtmp}, s[{sbase - 4}:{sbase - 1}], 0 offen offset:{4 * i + 32 * kidx}")
            e("s_nop 1")
        e("s_mov_b64 exec, -1")
        a.label(lab)


def vr(b, n=4):
    return f"v[{b}:{b + n - 1}]"


def ar(b, n=4):
    return f"a[{b}:{b + n - 1}]"


def interleave(a, mf, fillers, start=0, end=None):
    n = len(mf)
    if end is None:
        end = n
    nf = len(fillers)
    pos = [start + (j * (end - start)) // max(nf, 1) for j in range(nf)]
    j = 0
    for m in range(n):
        a.e(mf[m])
        while j < nf and pos[j] <= m:
            f = fillers[j]
            f()
            j += 1
    while j < nf:
        fillers[j]()
        j += 1


def capture(a, fn, chunk=2):
    n0_ = len(a.lines)
    vm0 = list(a.vm)
    fn()
    lines = a.lines[n0_:]
    tags = a.vm[len(vm0):]
    del a.lines[n0_:]
    a.vm = vm0
    items = []
    cur = []
    depth = 0
    ti = 0
    for ln in lines:
        cur.append(ln)
        if "s_cbranch" in ln or "s_mov_b64 exec, " in ln and "-1" not in ln or "s_cmp" in ln or "s_getpc" in ln or "s_sub_u32" in ln and "KNAME" in ln:
            depth = 1
        if ln.endswith(":") and not ln.startswith(" ") and "L_pc" not in ln or "s_mov_b64 exec, -1" in ln and not any("s_cbranch" in x for x in cur) or "s_cselect" in ln or "s_subb_u32" in ln:
            depth = 0
        if depth == 0 and len(cur) >= chunk:
            items.append(cur)
            cur = []
    if cur:
        items.append(cur)
    out = []
    for it in items:
        guarded = any("s_cbranch" in x for x in it)
        nv = 0 if guarded else sum(1 for x in it if x.strip().startswith(("buffer_", "global_")))
        tg = tags[ti:ti + nv]
        ti += nv

        def emit(it=it, tg=tg):
            a.lines.extend(it)
            a.vm.extend(tg)
        out.append(emit)
    rest = tags[ti:]
    assert all(t.startswith("#") for t in rest), (ti, tags)
    if rest:
        out.append(lambda rest=rest: a.vm.extend(rest))
    return out


def srd(a, d, lo, hi, nbytes, bias=0):
    if bias:
        a.e(f"s_sub_u32 s{d}, s{lo}, {bias}")
        a.e(f"s_subb_u32 s{d + 1}, s{hi}, 0")
        a.e(f"s_and_b32 s{d + 1}, s{d + 1}, 0xffff")
    else:
        a.e(f"s_mov_b32 s{d}, s{lo}")
        a.e(f"s_and_b32 s{d + 1}, s{hi}, 0xffff")
    a.e(f"s_mov_b32 s{d + 2}, {nbytes + bias}")
    a.e(f"s_mov_b32 s{d + 3}, 0x20000")


K1_BSLOT = 13312
K1_AREA = 3328
K1_ABASE = 4 * K1_BSLOT
K1_LDS = K1_ABASE + 4 * 16384
ACC0 = 48


def acc(t, mt):
    return ACC0 + 16 * t + 4 * mt


V_LANE = 1
V_ARD = 2
V_QRD = 4
V_HRD = 8
V_ADMA = 9
V_BDMA = 13
V_L16 = 17
V_T = 18
S_X, S_Q, S_W1, S_WS, S_MISC = 4, 8, 12, 16, 20
S_WAVE, S_RB, S_P = 24, 25, 26
S_OFFA, S_OFFA2, S_OFFQ, S_OFFH = 27, 28, 29, 30
S_M0B, S_M0A = 31, 32
S_CNT = 33
S_QM = 34
S_PTR = 36
S_L2E = 58
S_T = 60
S_AFB = 72
S_GROW = 73
S_PO1, S_PO2 = 74, 3
S_PT, S_PTE = 100, 101
S_CB = 100
S_PF1, S_PF2 = 96, 20


def bset(s, t):
    return 52 * s + 4 * t


ASET = {"X": 104, "Y": 120, "Z": 136}


def k1_body(a, typ):
    T = "A" if typ == 0 else "B"
    nq = 8 if typ == 0 else 4
    nh = 13 - nq
    Ph = 2 * nh
    HB = 256 * nq
    e = a.e
    vi, vG, t0, t1, t2, t3 = V_T, V_T + 1, V_T + 2, V_T + 3, V_T + 4, V_T + 5
    e(f"v_and_b32 v{vi}, 15, v{V_LANE}")
    e(f"v_lshrrev_b32 v{vG}, 4, v{V_LANE}")
    e(f"s_mul_i32 s{S_T + 2}, s{S_P}, 448")
    if typ:
        e(f"s_add_u32 s{S_T + 2}, s{S_T + 2}, 160")

    e(f"s_lshr_b32 s{S_T + 8}, s{S_WAVE}, 1")
    e(f"s_lshl_b32 s{S_T + 8}, s{S_T + 8}, 4")
    e(f"s_and_b32 s{S_T + 9}, s{S_WAVE}, 1")
    e(f"s_lshl_b32 s{S_T + 9}, s{S_T + 9}, 2")
    e(f"s_add_u32 s{S_T + 8}, s{S_T + 8}, s{S_T + 9}")

    def krow(dst, kp, tmp):
        e(f"v_lshrrev_b32 v{tmp}, 2, v{kp}")
        e(f"v_lshlrev_b32 v{tmp}, 3, v{tmp}")
        e(f"v_and_b32 v{dst}, 3, v{kp}")
        e(f"v_add3_u32 v{dst}, v{dst}, v{tmp}, s{S_T + 8}")

    e(f"v_lshrrev_b32 v{t0}, 3, v{V_LANE}")
    krow(t1, t0, t2)
    e(f"v_mul_u32_u24 v{t1}, 6144, v{t1}")
    e(f"v_lshrrev_b32 v{t2}, 1, v{t0}")
    e(f"v_and_b32 v{t2}, 3, v{t2}")
    e(f"v_lshlrev_b32 v{t2}, 1, v{t2}")
    e(f"v_and_b32 v{t3}, 7, v{V_LANE}")
    e(f"v_xor_b32 v{t3}, v{t3}, v{t2}")
    e(f"v_lshlrev_b32 v{t3}, 4, v{t3}")
    e(f"v_add_u32 v{t1}, v{t1}, v{t3}")
    e(f"s_lshl_b32 s{S_T + 9}, s{S_P}, 7")
    e(f"s_add_u32 s{S_T + 9}, s{S_T + 9}, {4096 + (2048 if typ == 0 else 0)}")
    e(f"v_add_u32 v{V_BDMA}, s{S_T + 9}, v{t1}")
    if typ == 0:
        e(f"v_add_u32 v{V_BDMA + 1}, {2048 - 1024}, v{V_BDMA}")
    hins = [(2, 0), (3, 64)] if typ == 0 else [(1, 0), (2, 64), (3, 128)]
    magic, sh = (205, 11) if Ph == 10 else (57, 10)
    for s_ in range(8 * Ph + 64):
        if s_ < 8 * Ph:
            assert (s_ * magic) >> sh == s_ // Ph
    for slot, s0 in hins:
        e(f"v_add_u32 v{t0}, {s0}, v{V_LANE}")
        e(f"v_mul_u32_u24 v{t1}, {magic}, v{t0}")
        e(f"v_lshrrev_b32 v{t1}, {sh}, v{t1}")
        e(f"v_mul_u32_u24 v{t2}, {Ph}, v{t1}")
        e(f"v_sub_u32 v{t0}, v{t0}, v{t2}")
        e(f"v_and_b32 v{t1}, 7, v{t1}")
        krow(t2, t1, t3)
        e(f"v_mul_u32_u24 v{t2}, 7168, v{t2}")
        e(f"v_lshlrev_b32 v{t0}, 4, v{t0}")
        e(f"v_add3_u32 v{t0}, v{t0}, v{t2}, s{S_T + 2}")
        e(f"v_add_u32 v{V_BDMA + slot}, {4096 - 1024 * slot}, v{t0}")
    e(f"s_lshl_b32 s{S_T + 9}, s{S_RB}, 8")
    e(f"s_lshl_b32 s{S_T + 10}, s{S_WAVE}, 6")
    e(f"s_add_u32 s{S_T + 9}, s{S_T + 9}, s{S_T + 10}")
    e(f"s_lshl_b32 s{S_T + 9}, s{S_T + 9}, 11")
    e(f"v_lshrrev_b32 v{t0}, 3, v{V_LANE}")
    e(f"v_lshrrev_b32 v{t1}, 1, v{t0}")
    e(f"v_and_b32 v{t2}, 7, v{V_LANE}")
    e(f"v_xor_b32 v{t2}, v{t2}, v{t1}")
    e(f"v_lshlrev_b32 v{t0}, 11, v{t0}")
    e(f"v_add_u32 v{t0}, s{S_T + 9}, v{t0}")
    for j in range(4):
        if j & 1:
            e(f"v_xor_b32 v{t3}, 4, v{t2}")
            e(f"v_lshlrev_b32 v{t3}, 4, v{t3}")
        else:
            e(f"v_lshlrev_b32 v{t3}, 4, v{t2}")
        e(f"v_add_u32 v{t3}, v{t3}, v{t0}")
        e(f"v_add_u32 v{V_ADMA + j}, {j * (16384 - 1024)}, v{t3}")
    e(f"s_mul_i32 s{S_M0B}, s{S_WAVE}, {K1_AREA}")
    e(f"s_lshl_b32 s{S_M0A}, s{S_WAVE}, 14")
    e(f"s_add_u32 s{S_M0A}, s{S_M0A}, {K1_ABASE}")
    e(f"s_mov_b32 s{S_OFFA}, 0")
    e(f"s_mov_b32 s{S_OFFA2}, 65536")
    e(f"s_mov_b32 s{S_OFFQ}, 0")
    e(f"s_mov_b32 s{S_OFFH}, 0")
    e(f"s_mov_b32 s{S_QM}, 0xffff")
    e(f"s_mov_b32 s{S_QM + 1}, 0")

    def dmaB(tt):
        slot = tt % 4
        tag = f"B{tt}"
        f = []
        srcs = [(S_Q, S_OFFQ), (S_Q, S_OFFQ) if typ == 0 else (S_W1, S_OFFH), (S_W1, S_OFFH)]
        f.append(lambda: e(f"s_add_u32 m0, s{S_M0B}, {slot * K1_BSLOT}"))
        for j in range(3):
            sr, so = srcs[j]
            f.append(lambda j=j, sr=sr, so=so: a.vmem(
                f"buffer_load_dwordx4 v{V_BDMA + j}, s[{sr}:{sr + 3}], s{so} offen offset:{1024 * j} {OPT['k1b']} lds", tag))

        def q():
            e(f"s_mov_b64 exec, s[{S_QM}:{S_QM + 1}]")
            a.vmem(f"buffer_load_dwordx4 v{V_BDMA + 3}, s[{S_W1}:{S_W1 + 3}], s{S_OFFH} offen offset:3072 {OPT['k1b']} lds", tag)
            e("s_mov_b64 exec, -1")
        f.append(q)
        f.append(lambda: e(f"s_add_u32 s{S_OFFQ}, s{S_OFFQ}, {32 * 6144}"))
        f.append(lambda: e(f"s_add_u32 s{S_OFFH}, s{S_OFFH}, {32 * 7168}"))
        return f

    def dmaA(aa):
        slot = aa % 2
        tag = f"A{aa}"
        f = []
        for half in range(2):
            so = S_OFFA if half == 0 else S_OFFA2
            f.append(lambda half=half: e(f"s_add_u32 m0, s{S_M0A}, {slot * 8192 + half * 4096}"))
            for j in range(4):
                f.append(lambda j=j, so=so: a.vmem(
                    f"buffer_load_dwordx4 v{V_ADMA + j}, s[{S_X}:{S_X + 3}], s{so} offen offset:{1024 * j} {OPT['k1a']} lds", tag))
        f.append(lambda: e(f"s_add_u32 s{S_OFFA}, s{S_OFFA}, 128"))
        f.append(lambda: e(f"s_add_u32 s{S_OFFA2}, s{S_OFFA2}, 128"))
        return f

    def run_seq(fl):
        for fn in fl:
            n0 = len(a.lines)
            fn()
            if " m0," in a.lines[-1] and len(a.lines) == n0 + 1:
                e("s_nop 0")

    e("s_waitcnt lgkmcnt(0)")
    srd(a, S_Q, S_PTR + 2, S_PTR + 3, 1024 * 3072 * 2, bias=4096)
    srd(a, S_W1, S_PTR + 8, S_PTR + 9, 1024 * 3584 * 2, bias=4096)
    srd(a, S_X, S_PTR + 0, S_PTR + 1, 2048 * 1024 * 2)
    if not OPT.get('spin'):
        stamp(a, 0)
    if OPT.get('kst'):
        stamp(a, 4)
    run_seq(dmaB(0))
    run_seq(dmaA(0))
    srd(a, S_T + 4, S_PTR + 10, S_PTR + 11, 7168)
    e(f"v_lshlrev_b32 v{t1}, 3, v{vG}")
    for j in range(nh):
        a.vmem(f"buffer_load_dwordx2 {vr(acc(nq + j, 3), 2)}, v{t1}, s[{S_T + 4}:{S_T + 7}], s{S_T + 2} offen offset:{32 * j}", "bias")
    run_seq(dmaB(1))
    if not OPT.get('ramp'):
        run_seq(dmaB(2))
        run_seq(dmaA(1))
        run_seq(dmaB(3))
    if OPT.get('ramp') == 2:
        run_seq(dmaA(1))
    if OPT.get('ramp') == 3:
        run_seq(dmaB(2))
        run_seq(dmaA(1))
    e(f"v_lshrrev_b32 v{t0}, 3, v{vi}")
    e(f"v_lshlrev_b32 v{t0}, 6, v{t0}")
    e(f"v_and_b32 v{t1}, 7, v{vi}")
    e(f"v_lshlrev_b32 v{t1}, 3, v{t1}")
    e(f"v_add_u32 v{t0}, v{t0}, v{t1}")
    e(f"v_lshrrev_b32 v{t1}, 1, v{vi}")
    e(f"v_xor_b32 v{t1}, v{t1}, v{vG}")
    e(f"v_add_u32 v{t2}, v{t0}, v{t1}")
    e(f"v_lshlrev_b32 v{t2}, 4, v{t2}")
    e(f"v_add_u32 v{V_ARD}, s{S_M0A}, v{t2}")
    e(f"v_xor_b32 v{t1}, 4, v{t1}")
    e(f"v_add_u32 v{t2}, v{t0}, v{t1}")
    e(f"v_lshlrev_b32 v{t2}, 4, v{t2}")
    e(f"v_add_u32 v{V_ARD + 1}, s{S_M0A}, v{t2}")
    e(f"v_and_b32 v{t0}, 1, v{vG}")
    e(f"v_lshlrev_b32 v{t0}, 2, v{t0}")
    e(f"v_lshrrev_b32 v{t1}, 2, v{vi}")
    e(f"v_add_u32 v{t0}, v{t0}, v{t1}")
    e(f"v_lshrrev_b32 v{t1}, 1, v{vG}")
    e(f"v_mul_u32_u24 v{t1}, {2 * K1_AREA}, v{t1}")
    e(f"v_and_b32 v{t2}, 3, v{vi}")
    e(f"v_lshlrev_b32 v{t2}, 3, v{t2}")
    e(f"v_add_u32 v{t1}, v{t1}, v{t2}")
    e(f"v_mul_u32_u24 v{t3}, {16 * Ph}, v{t0}")
    e(f"v_add3_u32 v{V_HRD}, v{t1}, v{t3}, {0}")
    e(f"v_add_u32 v{V_HRD}, {HB}, v{V_HRD}")
    e(f"v_lshlrev_b32 v{t3}, 7, v{t0}")
    e(f"v_add_u32 v{t1}, v{t1}, v{t3}")
    e(f"v_lshrrev_b32 v{t2}, 1, v{t0}")
    e(f"v_and_b32 v{t2}, 3, v{t2}")
    for t in range(4):
        e(f"v_xor_b32 v{t3}, {t}, v{t2}")
        e(f"v_lshlrev_b32 v{t3}, 5, v{t3}")
        e(f"v_add_u32 v{V_QRD + t}, v{t1}, v{t3}")
    e(f"v_lshlrev_b32 v{V_L16}, 4, v{V_LANE}")

    gw, gx0, gx1 = V_T, V_T + 8, V_T + 16
    gt = V_T + 24
    nb = {0: 1, 1: 7, 2: 1, 3: 2, 4: 3, 5: 1, 6: 1, 7: 2, 8: 2}[OPT['pf']]
    PL1, PL2 = -(-56 // nb), -(-16 // nb)

    def misc_setup():
        srd(a, S_WS, S_PTR + 20, S_PTR + 21, WS_USED)
        tile_decode(a, S_T + 4, S_T + 5, S_T + 6, S_T + 7, S_T)
        e(f"s_lshl_b32 s{S_T}, s{S_RB}, 1")
        e(f"s_lshr_b32 s{S_T + 1}, s{S_WAVE}, 1")
        e(f"s_add_u32 s{S_T}, s{S_T}, s{S_T + 1}")
        e(f"s_lshl_b32 s{S_T}, s{S_T}, 5")
        e(f"s_lshl_b32 s{S_T + 1}, s{S_P}, 1")
        e(f"s_add_u32 s{S_T}, s{S_T}, s{S_T + 1}")
        if typ:
            e(f"s_add_u32 s{S_T}, s{S_T}, 1")
        e(f"s_lshl_b32 s{S_T}, s{S_T}, 1")
        e(f"s_and_b32 s{S_T + 1}, s{S_WAVE}, 1")
        e(f"s_add_u32 s{S_T}, s{S_T}, s{S_T + 1}")
        e(f"s_lshl_b32 s{S_T}, s{S_T}, 3")
        e(f"s_add_u32 s{S_T}, s{S_T}, {FA_OFF}")
        e(f"v_writelane_b32 v0, s{S_T}, 4")
        e(f"s_lshl_b32 s{S_T}, s{S_RB}, 1")
        e(f"s_lshr_b32 s{S_T + 3}, s{S_WAVE}, 1")
        e(f"s_add_u32 s{S_T}, s{S_T}, s{S_T + 3}")
        e(f"s_lshl_b32 s{S_T}, s{S_T}, 5")
        e(f"s_add_u32 s{S_T}, s{S_T}, s{S_P}")
        e(f"s_lshl_b32 s{S_T}, s{S_T}, 1")
        e(f"s_add_u32 s{S_T}, s{S_T}, s{S_T + 1}")
        e(f"s_lshl_b32 s{S_T}, s{S_T}, 3")
        e(f"s_add_u32 s{S_T}, s{S_T}, {FE_OFF + 256 * typ}")
        e(f"v_writelane_b32 v0, s{S_T}, 0")
        e(f"s_lshl_b32 s{S_T}, s{S_P}, 4")
        e(f"s_add_u32 s{S_T}, s{S_T}, s{S_RB}")
        e(f"s_lshl_b32 s{S_T}, s{S_T}, 2")
        e(f"s_add_u32 s{S_T}, s{S_T}, s{S_WAVE}")
        e(f"s_lshl_b32 s{S_T}, s{S_T}, 3")
        e(f"s_add_u32 s{S_T}, s{S_T}, {FQ_OFF + 256 * typ}")
        e(f"v_writelane_b32 v0, s{S_T}, 1")
        e(f"s_lshr_b32 s{S_T}, s2, 5")
        e(f"s_lshl_b32 s{S_T}, s{S_T}, 1")
        e(f"s_lshr_b32 s{S_T + 1}, s{S_WAVE}, 1")
        e(f"s_add_u32 s{S_T}, s{S_T}, s{S_T + 1}")
        e(f"s_lshl_b32 s{S_T}, s{S_T}, 9")
        e(f"s_and_b32 s{S_T + 1}, s2, 31")
        e(f"s_lshl_b32 s{S_T + 1}, s{S_T + 1}, 4")
        e(f"s_add_u32 s{S_T}, s{S_T}, s{S_T + 1}")
        e(f"s_and_b32 s{S_T + 1}, s{S_WAVE}, 1")
        e(f"s_lshl_b32 s{S_T + 1}, s{S_T + 1}, 3")
        e(f"s_add_u32 s{S_T}, s{S_T}, s{S_T + 1}")
        e(f"s_add_u32 s{S_T}, s{S_T}, {FO_OFF}")
        e(f"s_lshl_b32 s{S_T + 1}, s{S_T + 7}, 8")
        e(f"s_lshl_b32 s{S_T + 3}, s{S_WAVE}, 3")
        e(f"s_add_u32 s{S_T + 1}, s{S_T + 1}, s{S_T + 3}")
        e(f"s_add_u32 s{S_T + 1}, s{S_T + 1}, {FP_OFF}")
        e(f"s_cmp_eq_u32 s{S_T + 6}, 0")
        e(f"s_cselect_b32 s{S_T + 1}, s{S_T + 1}, 0x7ffffff0")
        e(f"v_writelane_b32 v0, s{S_T}, 2")
        e(f"v_writelane_b32 v0, s{S_T + 1}, 3")
        e(f"s_mul_i32 s{S_T}, s2, 171")
        e(f"s_lshr_b32 s{S_T}, s{S_T}, 10")
        e(f"s_lshl_b32 s{S_T}, s{S_T}, 1")
        e(f"s_add_u32 s{S_T}, s{S_T}, s2")
        e(f"s_lshl_b32 s{S_T}, s{S_T}, 3")
        e(f"s_add_u32 s{S_T}, s{S_T}, {FK_OFF}")
        e(f"v_writelane_b32 v0, s{S_T}, 5")

    def misc_setup2():
        if typ == 0:
            e(f"s_or_b32 s{S_T}, s2, s{S_WAVE}")
            e(f"s_cmp_lg_u32 s{S_T}, 0")
            e(f"s_cbranch_scc1 L_notok")
            e(f"s_memrealtime s[{S_T + 8}:{S_T + 9}]")
            srd(a, S_T + 4, S_PTR + 18, S_PTR + 19, 256)
            e("s_waitcnt lgkmcnt(0)")
            e(f"s_or_b32 s{S_T + 9}, s{S_T + 9}, 0x40000000")
            e(f"s_lshl_b32 s{S_T + 9}, s{S_T + 9}, 1")
            e(f"s_and_b32 s{S_T}, s{S_T + 8}, 1")
            e(f"s_or_b32 s{S_T + 9}, s{S_T + 9}, s{S_T}")
            e(f"s_or_b32 s{S_T + 8}, s{S_T + 8}, 1")
            e(f"v_mov_b32 v{V_T + 24}, s{S_T + 8}")
            e(f"v_mov_b32 v{V_T + 25}, s{S_T + 9}")
            e(f"v_mov_b32 v{V_T + 27}, 0")
            e("s_mov_b64 exec, 1")
            e(f"buffer_store_dwordx2 v[{V_T + 24}:{V_T + 25}], v{V_T + 27}, s[{S_T + 4}:{S_T + 7}], 0 offen sc1")
            e("s_mov_b64 exec, -1")
            e("s_nop 1")
            a.label("L_notok")
        if OPT.get('cpf') == 1:
            e(f"s_getpc_b64 s[{S_T + 4}:{S_T + 5}]")
            a.label(f"L_pc_{T}")
            e(f"s_sub_u32 s{S_T + 4}, s{S_T + 4}, L_pc_{T}-KNAME")
            e(f"s_subb_u32 s{S_T + 5}, s{S_T + 5}, 0")
            e(f"s_lshr_b32 s{S_T}, s2, 3")
            e(f"s_and_b32 s{S_T}, s{S_T}, 3")
            e(f"s_lshl_b32 s{S_T}, s{S_T}, 2")
            e(f"s_add_u32 s{S_T}, s{S_T}, s{S_WAVE}")
            e(f"s_lshl_b32 s{S_T}, s{S_T}, 13")
            e(f"v_lshlrev_b32 v{V_T + 29}, 7, v{V_LANE}")
            e(f"v_add_u32 v{V_T + 29}, s{S_T}, v{V_T + 29}")
            e(f"v_min_u32 v{V_T + 29}, L_code_end-KNAME-4, v{V_T + 29}")
            a.vmem(f"global_load_dword v{V_T + 29}, v{V_T + 29}, s[{S_T + 4}:{S_T + 5}]", "pf")
        if OPT.get('xpf') == 1:
            e(f"v_and_b32 v{V_T + 28}, 31, v{V_LANE}")
            e(f"v_lshlrev_b32 v{V_T + 28}, 7, v{V_T + 28}")
            e(f"s_lshl_b32 s{S_T}, s2, 2")
            e(f"s_add_u32 s{S_T}, s{S_T}, s{S_WAVE}")
            e(f"s_lshl_b32 s{S_T}, s{S_T}, 12")
            a.vmem(f"buffer_load_dword v{V_T + 28}, v{V_T + 28}, s[{S_X}:{S_X + 3}], s{S_T} offen", "pf")
        if OPT.get('xpf') == 2:
            e(f"v_lshlrev_b32 v{V_T + 27}, 7, v{V_LANE}")
            e(f"s_lshr_b32 s{S_T}, s2, 5")
            e(f"s_lshl_b32 s{S_T}, s{S_T}, 2")
            e(f"s_add_u32 s{S_T}, s{S_T}, s{S_WAVE}")
            e(f"s_lshl_b32 s{S_T}, s{S_T}, 14")
            e(f"s_lshl_b32 s{S_T + 1}, s{S_RB}, 19")
            e(f"s_add_u32 s{S_T}, s{S_T}, s{S_T + 1}")
            a.vmem(f"buffer_load_dword v{V_T + 28}, v{V_T + 27}, s[{S_X}:{S_X + 3}], s{S_T} offen", "pf")
            e(f"s_add_u32 s{S_T}, s{S_T}, 8192")
            a.vmem(f"buffer_load_dword v{V_T + 28}, v{V_T + 27}, s[{S_X}:{S_X + 3}], s{S_T} offen", "pf")

        e(f"v_lshlrev_b32 v{gt}, 5, v{V_LANE}")
        e(f"s_lshl_b32 s{S_GROW}, s{S_RB}, 8")
        e(f"s_lshl_b32 s{S_T + 1}, s{S_WAVE}, 6")
        e(f"s_add_u32 s{S_GROW}, s{S_GROW}, s{S_T + 1}")
        e(f"s_lshl_b32 s{S_T + 1}, s{S_P}, 2")
        e(f"s_add_u32 s{S_GROW}, s{S_GROW}, s{S_T + 1}")
        if typ:
            e(f"s_add_u32 s{S_GROW}, s{S_GROW}, 2")
        e(f"s_lshl_b32 s{S_T + 1}, s{S_GROW}, 11")
        srd(a, S_MISC, S_PTR + 14, S_PTR + 15, 2048)
        a.vmem(f"buffer_load_dwordx4 {vr(gw)}, v{gt}, s[{S_MISC}:{S_MISC + 3}], 0 offen", "g")
        a.vmem(f"buffer_load_dwordx4 {vr(gw + 4)}, v{gt}, s[{S_MISC}:{S_MISC + 3}], 0 offen offset:16", "g")
        a.vmem(f"buffer_load_dwordx4 {vr(gx0)}, v{gt}, s[{S_X}:{S_X + 3}], s{S_T + 1} offen", "g")
        a.vmem(f"buffer_load_dwordx4 {vr(gx0 + 4)}, v{gt}, s[{S_X}:{S_X + 3}], s{S_T + 1} offen offset:16", "g")
        a.vmem(f"buffer_load_dwordx4 {vr(gx1)}, v{gt}, s[{S_X}:{S_X + 3}], s{S_T + 1} offen offset:2048", "g")
        a.vmem(f"buffer_load_dwordx4 {vr(gx1 + 4)}, v{gt}, s[{S_X}:{S_X + 3}], s{S_T + 1} offen offset:2064", "g")

        if OPT['pf']:
            srd(a, S_PF1, S_PTR + 12, S_PTR + 13, 3584 * 1024 * 2)
            srd(a, S_PF2, S_PTR + 4, S_PTR + 5, 1024 * 1024 * 2)
            e(f"v_min_u32 v{V_T + 26}, {PL1 - 1}, v{V_LANE}")
            e(f"v_lshlrev_b32 v{V_T + 26}, 7, v{V_T + 26}")
            e(f"v_min_u32 v{V_T + 27}, {PL2 - 1}, v{V_LANE}")
            e(f"v_lshlrev_b32 v{V_T + 27}, 7, v{V_T + 27}")
            e(f"s_lshl_b32 s{S_T}, s2, 2")
            e(f"s_add_u32 s{S_T}, s{S_T}, s{S_WAVE}")
            e(f"s_mul_i32 s{S_PO1}, s{S_T}, 7168")
            e(f"s_lshl_b32 s{S_PO2}, s{S_T}, 11")


    if OPT.get('pt'):
        e(f"s_lshl_b32 s{S_T}, s{S_RB}, 1")
        e(f"s_lshr_b32 s{S_T + 1}, s{S_WAVE}, 1")
        e(f"s_add_u32 s{S_T}, s{S_T}, s{S_T + 1}")
        e(f"s_mul_i32 s{S_AFB}, s{S_T}, {144 * 8192}")
        e(f"s_and_b32 s{S_T + 1}, s{S_WAVE}, 1")
        e(f"s_lshl_b32 s{S_T + 1}, s{S_T + 1}, 12")
        e(f"s_add_u32 s{S_AFB}, s{S_AFB}, s{S_T + 1}")
        e(f"s_mul_i32 s{S_PT}, s{S_P}, {7 * 8192}")
        e(f"s_add_u32 s{S_PT}, s{S_PT}, s{S_AFB}")
        if typ:
            e(f"s_add_u32 s{S_PT}, s{S_PT}, {2 * 8192}")
        e(f"s_add_u32 s{S_PTE}, s{S_PT}, {(4 if typ else 2) * 8192}")
        e(f"v_and_b32 v{V_T + 25}, 31, v{V_LANE}")
        e(f"v_lshlrev_b32 v{V_T + 25}, 7, v{V_T + 25}")
        if typ:
            e(f"v_lshrrev_b32 v{V_T + 29}, 5, v{V_LANE}")
            e(f"v_lshlrev_b32 v{V_T + 29}, 13, v{V_T + 29}")
            e(f"v_add_u32 v{V_T + 29}, v{V_T + 29}, v{V_T + 25}")
            e(f"s_mul_i32 s{S_T}, s{S_P}, {2 * 8192}")
            e(f"s_add_u32 s{S_T}, s{S_T}, {112 * 8192}")
            e(f"s_add_u32 s{S_T}, s{S_T}, s{S_AFB}")
            a.vmem(f"buffer_load_dword v{V_T + 28}, v{V_T + 29}, s[{S_WS}:{S_WS + 3}], s{S_T} offen", "pf")

    def pt_items():
        return [lambda: a.vmem(f"buffer_load_dword v{V_T + 28}, v{V_T + 25}, s[{S_WS}:{S_WS + 3}], s{S_PT} offen", "pf"),
                lambda: e(f"s_add_u32 s{S_PT}, s{S_PT}, 8192"),
                lambda: e(f"s_min_u32 s{S_PT}, s{S_PT}, s{S_PTE}")]

    def pf_items(cond=None):
        if cond is None:
            return [lambda: a.vmem(f"buffer_load_dword v{V_T + 28}, v{V_T + 26}, s[{S_PF1}:{S_PF1 + 3}], s{S_PO1} offen", "pf"),
                    lambda: a.vmem(f"buffer_load_dword v{V_T + 28}, v{V_T + 27}, s[{S_PF2}:{S_PF2 + 3}], s{S_PO2} offen", "pf"),
                    lambda: e(f"s_add_u32 s{S_PO1}, s{S_PO1}, {128 * PL1}"),
                    lambda: e(f"s_add_u32 s{S_PO2}, s{S_PO2}, {128 * PL2}")]

        def blk():
            e(f"s_lshl_b32 s{S_T}, 1, s{S_CNT}")
            e(f"s_and_b32 s{S_T}, s{S_T}, {cond}")
            e(f"s_cbranch_scc0 L_k1{T}_nopf")
            e(f"buffer_load_dword v{V_T + 28}, v{V_T + 26}, s[{S_PF1}:{S_PF1 + 3}], s{S_PO1} offen")
            e(f"buffer_load_dword v{V_T + 28}, v{V_T + 27}, s[{S_PF2}:{S_PF2 + 3}], s{S_PO2} offen")
            e(f"s_add_u32 s{S_PO1}, s{S_PO1}, {128 * PL1}")
            e(f"s_add_u32 s{S_PO2}, s{S_PO2}, {128 * PL2}")
            a.label(f"L_k1{T}_nopf")
        return [blk]

    def g_items():
        d0, d1 = V_T + 24, V_T + 25
        L = []
        L.append(f"v_dot2_f32_bf16 v{d0}, v{gx0}, v{gw}, 0")
        L.append(f"v_dot2_f32_bf16 v{d1}, v{gx1}, v{gw}, 0")
        for j in range(1, 8):
            L.append(f"v_dot2_f32_bf16 v{d0}, v{gx0 + j}, v{gw + j}, v{d0}")
            L.append(f"v_dot2_f32_bf16 v{d1}, v{gx1 + j}, v{gw + j}, v{d1}")
        L.append("s_nop 3")
        for sh_ in (1, 2, 4, 8):
            L.append(f"s_nop 0\nv_add_f32_dpp v{d0}, v{d0}, v{d0} row_shr:{sh_} row_mask:0xf bank_mask:0xf bound_ctrl:0")
            L.append(f"s_nop 0\nv_add_f32_dpp v{d1}, v{d1}, v{d1} row_shr:{sh_} row_mask:0xf bank_mask:0xf bound_ctrl:0")
        L.append(f"s_nop 0\nv_add_f32_dpp v{d0}, v{d0}, v{d0} row_bcast:15 row_mask:0xa bank_mask:0xf")
        L.append(f"s_nop 0\nv_add_f32_dpp v{d1}, v{d1}, v{d1} row_bcast:15 row_mask:0xa bank_mask:0xf")
        L.append(f"s_nop 0\nv_add_f32_dpp v{d0}, v{d0}, v{d0} row_bcast:31 row_mask:0xc bank_mask:0xf")
        L.append(f"s_nop 0\nv_add_f32_dpp v{d1}, v{d1}, v{d1} row_bcast:31 row_mask:0xc bank_mask:0xf")
        L.append(f"v_mul_f32 v{d0}, 0xbfb8aa3b, v{d0}")
        L.append(f"v_mul_f32 v{d1}, 0xbfb8aa3b, v{d1}")
        L.append(f"v_exp_f32 v{d0}, v{d0}")
        L.append(f"v_exp_f32 v{d1}, v{d1}\ns_nop 0")
        L.append(f"v_add_f32 v{d0}, 1.0, v{d0}")
        L.append(f"v_add_f32 v{d1}, 1.0, v{d1}")
        L.append(f"v_rcp_f32 v{d0}, v{d0}")
        L.append(f"v_rcp_f32 v{d1}, v{d1}")
        L.append(f"v_mov_b32 v{gw}, 0")
        L.append(f"s_lshl_b32 s{S_T + 1}, s{S_GROW}, 2\ns_add_u32 s{S_T + 1}, s{S_T + 1}, {G_OFF}")
        L.append(f"s_lshl_b32 s{S_T + 3}, s2, 8\ns_add_u32 s{S_T + 3}, s{S_T + 3}, {FLG_OFF}")
        L.append(f"s_mov_b32 s{S_T + 8}, 0\ns_mov_b32 s{S_T + 9}, 0x80000000")
        F = [(lambda x=x: e(x)) for x in L]

        def st():
            e(f"s_mov_b64 exec, s[{S_T + 8}:{S_T + 9}]")
            a.vmem(f"buffer_store_dwordx2 v[{d0}:{d1}], v{gw}, s[{S_WS}:{S_WS + 3}], s{S_T + 1} offen sc1", "sq")
            e("s_mov_b64 exec, -1")
        F.append(st)
        return F

    if OPT.get('m2', 9) == 9:
        misc_setup2()
    a.wait(["bias"])
    for j in range(nh):
        src = acc(nq + j, 3)
        d = acc(nq + j, 0)
        e(f"v_lshlrev_b32 v{d}, 16, v{src}")
        e(f"v_and_b32 v{d + 1}, 0xffff0000, v{src}")
        e(f"v_lshlrev_b32 v{d + 2}, 16, v{src + 1}")
        e(f"v_and_b32 v{d + 3}, 0xffff0000, v{src + 1}")
    for t in range(4):
        for r in range(4):
            e(f"v_mov_b32 v{acc(t, 0) + r}, {EPS_HEX}")

    def rdB(tt):
        slot = tt % 4
        s = tt % 2
        f = []
        for t in range(13):
            for ins in range(2):
                if t < nq:
                    addr = V_QRD + (t & 3)
                    off = slot * K1_BSLOT + ins * K1_AREA + 1024 * (t >> 2)
                else:
                    addr = V_HRD
                    off = slot * K1_BSLOT + ins * K1_AREA + 32 * (t - nq)
                d = bset(s, t) + 2 * ins
                f.append(lambda d=d, addr=addr, off=off: e(f"ds_read_b64_tr_b16 {ar(d, 2)}, v{addr} offset:{off}"))
        return f

    def aset_of(tt):
        if tt % 2 == 0:
            return ASET["X"]
        return ASET["Y"] if tt % 4 == 1 else ASET["Z"]

    def rdA(aa):
        slot = aa % 2
        f = []
        for hh in range(2):
            base = aset_of(2 * aa + hh)
            for mt in range(4):
                f.append(lambda hh=hh, mt=mt, base=base: e(
                    f"ds_read_b128 {ar(base + 4 * mt)}, v{V_ARD + hh} offset:{slot * 8192 + mt * 2048}"))
        return f

    stamp(a, 1)
    a.wait(["B0", "A0"])
    e("s_barrier")
    stamp(a, 2)
    for fn in rdA(0) + rdB(0):
        fn()
    if OPT.get('ramp') == 1:
        run_seq(dmaA(1))
    if OPT.get('ramp') in (1, 2):
        run_seq(dmaB(2))
    a.wait(["B1"], lgkm=True)
    e("s_barrier")

    misc_items = capture(a, misc_setup)
    misc_items2 = capture(a, misc_setup2) if OPT.get('m2', 9) != 9 else []

    NSTEP = 32

    def step(tt):
        if DIAG and OPT.get('ts'):
            e("s_memrealtime s[76:77]")
            e("s_waitcnt lgkmcnt(0)")
            e("s_mov_b32 m0, s78")
            e("s_nop 0")
            e(f"v_writelane_b32 v{V_T + 29}, s76, m0")
            e("s_add_u32 s78, s78, 1")
        s = tt % 2
        ab = aset_of(tt)
        mf = []
        for t in range(13):
            order = [1, 2, 3, 0] if tt == 0 else [0, 1, 2, 3]
            for mt in order:
                D = vr(acc(t, mt))
                if tt == 0:
                    C = "0" if (typ == 0 and 4 <= t < 8) else vr(acc(t, 0))
                else:
                    C = D
                W = ar(bset(s, t))
                X = ar(ab + 4 * mt)
                if typ == 0 and t < 8:
                    mf.append(f"v_mfma_f32_16x16x32_bf16 {D}, {X}, {W}, {C}")
                else:
                    mf.append(f"v_mfma_f32_16x16x32_bf16 {D}, {W}, {X}, {C}")
        if OPT.get('fakechain') and tt > 0:
            import re
            m2 = []
            for i in range(0, 52, 2):
                x0, x1 = mf[i], mf[i + 1]
                pick = x0 if tt % 2 == 0 else x1
                D = re.match(r"v_mfma\S+ (v\[\d+:\d+\])", pick).group(1)
                for x in (x0, x1):
                    D0 = re.match(r"v_mfma\S+ (v\[\d+:\d+\])", x).group(1)
                    m2.append(x.replace(D0, D))
            mf = m2
        rd = []
        if tt + 1 < NSTEP:
            rd = rdB(tt + 1)
            if tt % 2 == 1:
                rd = rdA((tt + 1) // 2) + rd
        dm = []
        if tt == 0 and OPT.get('ramp'):
            dm += dmaB(3)
        if OPT.get('afirst', 1) and tt % 2 == 0 and tt // 2 + 2 < NSTEP // 2:
            dm += dmaA(tt // 2 + 2)
        if tt + 4 < NSTEP:
            dm += dmaB(tt + 4)
        if not OPT.get('afirst', 1) and tt % 2 == 0 and tt // 2 + 2 < NSTEP // 2:
            dm += dmaA(tt // 2 + 2)
        if OPT['pf'] == 1 and tt % 4 == 1 and tt < 28:
            dm += pf_items()
        if OPT.get('cpf') == 3 and tt == 28:
            dm.append(lambda: a.vmem(f"global_load_dword v{V_T + 28}, v{V_T + 29}, s[{S_CB}:{S_CB + 1}]", "pf"))
        if OPT['pf'] in (2, 3, 4, 7) and tt == 28:
            dm += pf_items()
        if OPT['pf'] in (3, 4, 5, 6, 7, 8) and tt % 4 == 1 and 4 <= tt < 28:
            dm += pf_items({3: 1 << 4, 4: (1 << 5) | (1 << 3), 5: 1 << 1, 6: 1 << 3, 7: 1 << 1, 8: (1 << 2) | (1 << 4)}[OPT['pf']])
        if OPT.get('pt') and tt % 4 == 3 and tt < 28:
            dm += pt_items()
        if tt == OPT.get('m2', 9):
            dm += misc_items2
        if tt == 3:
            dm += misc_items
        fl = []
        i1 = i2 = 0
        n1, n2 = len(rd), len(dm)
        while i1 < n1 or i2 < n2:
            if i2 < n2 and (i1 >= n1 or i2 * n1 <= i1 * n2):
                fl.append(dm[i2]); i2 += 1
            else:
                fl.append(rd[i1]); i1 += 1
        if OPT.get('p2m'):
            if tt == NSTEP - 2:
                gi = g_items()
                fl2 = []
                for k_ in range(max(len(fl), len(gi))):
                    fl2 += fl[k_:k_ + 1] + gi[k_:k_ + 1]
                fl = fl2
            if tt == NSTEP - 1:
                fl = capture(a, lambda: p2_math(a), chunk=2)
        elif tt == NSTEP - 1:
            assert "g" not in a.vm
            fl = g_items()
        nb_ = OPT.get('bt', 0)
        fe_ = OPT.get('fe', 48)
        if OPT.get('rdf') and rd and dm:
            schedule(a, mf[:52 - nb_], [(rd, 0, OPT['rdf']), (dm, OPT.get('dm0', 1), fe_)])
        else:
            interleave(a, mf[:52 - nb_], fl, 0, fe_)
        if tt + 1 < NSTEP:
            tags = []
            if tt + 2 < NSTEP:
                tags.append(f"B{tt + 2}")
            if tt % 2 == 0:
                tags.append(f"A{tt // 2 + 1}")
            a.wait(tags, lgkm=True)
            if tt + 2 < NSTEP:
                e("s_barrier")
        for x in mf[52 - nb_:]:
            e(x)

    iters = []
    for it in range(8):
        n0 = len(a.lines)
        for tt in range(4 * it, 4 * it + 4):
            step(tt)
        iters.append(a.lines[n0:])
        del a.lines[n0:]
    for it in range(2, 7):
        assert iters[it] == iters[1], f"iteration {it} differs"
    stamp(a, 3)
    if DIAG and OPT.get('ts'):
        e("s_mov_b32 s78, 0")
    a.lines += iters[0]
    if not OPT.get('ts') and not OPT.get('kst'):
        stamp(a, 4)
    e(f"s_mov_b32 s{S_CNT}, 6")
    a.label(f"L_k1{T}_loop")
    a.lines += iters[1]
    e(f"s_sub_u32 s{S_CNT}, s{S_CNT}, 1")
    e(f"s_cmp_lg_u32 s{S_CNT}, 0")
    e(f"s_cbranch_scc1 L_k1{T}_loop")
    a.lines += iters[7]
    assert all(not t.startswith(("A", "B")) for t in a.vm), a.vm

    stamp(a, 5)

    def fin():
        stamp(a, 6)
        stamp(a, 7)
        k = a.vm_count(["#eA"], drop=False)
        if DIAG:
            k += 16
        stamp_dump(a, 0, 8, S_WAVE, S_PTR + 20, S_PTR + 21, V_T)
        e(f"s_cmp_eq_u32 s{P_SEARLY}, 0")
        e("s_cbranch_scc1 L_p2_late")
        e(f"s_waitcnt vmcnt({k})")
        e("s_branch L_p2_go")

    pb_state = [0]

    def pb(n=1):
        for _ in range(n):
            k = pb_state[0]
            if k >= OPT.get('pb', 0):
                return
            for i in range(4):
                a.vmem(f"buffer_load_dwordx4 {ar(128 + 16 * k + 4 * i)}, v{P_VBD + i}, s[{P_SW2}:{P_SW2 + 3}], s{P_SOB} offen offset:{1024 * i}", "pb")
            e(f"s_add_u32 s{P_SOB}, s{P_SOB}, s{P_SSB}")
            pb_state[0] += 1

    def fe_load():
        a.vmem(f"buffer_load_dwordx2 v[{P_VFL}:{P_VFL + 1}], v{P_VFA}, s[{S_WS}:{S_WS + 3}], 0 offen sc1", "fe")

    def fe_check():
        a.wait(["fe"])
        e(f"v_cmp_eq_u64 vcc, v[{P_VFL}:{P_VFL + 1}], v[{V_TOK}:{V_TOK + 1}]")
        e(f"s_mov_b32 s{P_SEARLY}, 0")
        e("s_nop 0")
        e("s_cmp_eq_u64 vcc, -1")
        e(f"s_cbranch_scc0 L_k1{T}_noearly")
        p2_issueA(a)
        e(f"s_mov_b32 s{P_SEARLY}, 1")
        a.label(f"L_k1{T}_noearly")
        a.mark("eA")

    def setflag(lane):
        a.label(f"L_k1{T}_tw")
        e(f"v_readfirstlane_b32 s{S_T}, v{V_TOK + 1}")
        e(f"v_readfirstlane_b32 s{S_T + 1}, v{V_TOK}")
        e("s_nop 3")
        e(f"s_min_u32 s{S_T}, s{S_T}, s{S_T + 1}")
        e(f"s_cmp_lg_u32 s{S_T}, 0")
        e(f"s_cbranch_scc1 L_k1{T}_tok")
        e("s_add_u32 s3, s3, 1")
        e("s_cmp_gt_u32 s3, 0x40000")
        e(f"s_cbranch_scc1 L_k1{T}_tok")
        e("s_sleep 4")
        e(f"buffer_load_dwordx2 v[{V_TOK}:{V_TOK + 1}], v12, s[{S_T + 4}:{S_T + 7}], 0 offen sc1")
        e("s_waitcnt vmcnt(0)")
        e(f"s_branch L_k1{T}_tw")
        a.label(f"L_k1{T}_tok")
        e(f"s_mov_b64 exec, {1 << lane}")
        a.vmem(f"buffer_store_dwordx2 v[{V_TOK}:{V_TOK + 1}], v0, s[{S_WS}:{S_WS + 3}], 0 offen sc1", "fl")
        e("s_mov_b64 exec, -1")
    e("s_barrier")
    if OPT.get('tke'):
        tok_load(a)
    e("s_mov_b32 s3, 0")
    e(f"s_mov_b32 s{S_L2E}, {L2E_HEX}")
    e(f"s_mov_b32 s{S_L2E + 1}, {L2E_HEX}")
    e(f"s_lshl_b32 s{S_T}, s{S_RB}, 1")
    e(f"s_lshr_b32 s{S_T + 1}, s{S_WAVE}, 1")
    e(f"s_add_u32 s{S_T}, s{S_T}, s{S_T + 1}")
    e(f"s_mul_i32 s{S_AFB}, s{S_T}, {144 * 8192}")
    e(f"s_and_b32 s{S_T + 1}, s{S_WAVE}, 1")
    e(f"s_lshl_b32 s{S_T + 1}, s{S_T + 1}, 12")
    e(f"s_add_u32 s{S_AFB}, s{S_AFB}, s{S_T + 1}")
    e("s_nop 7")
    TT, UU = V_T, V_T + 8

    def phi_group(ra, rb_):
        prs = [ra, ra + 2, rb_, rb_ + 2]
        for j, p in enumerate(prs):
            e(f"v_pk_mul_f32 {vr(TT + 2 * j, 2)}, {vr(p, 2)}, s[{S_L2E}:{S_L2E + 1}]")
        for j in range(8):
            e(f"v_exp_f32_e64 v{TT + j}, v{TT + j} clamp")
        for p in prs:
            e(f"v_max_f32 v{p}, {EPS_HEX}, v{p}")
            e(f"v_max_f32 v{p + 1}, {EPS_HEX}, v{p + 1}")
        for j, p in enumerate(prs):
            e(f"v_pk_add_f32 {vr(p, 2)}, {vr(p, 2)}, {vr(TT + 2 * j, 2)}")
        for j, p in enumerate(prs):
            e(f"v_cvt_pk_bf16_f32 v{ra + j}, v{p}, v{p + 1}")

    def cvt_group(ra, rb_):
        prs = [ra, ra + 2, rb_, rb_ + 2]
        for j, p in enumerate(prs):
            e(f"v_cvt_pk_bf16_f32 v{ra + j}, v{p}, v{p + 1}")

    def mish_group(ra, rb_, split=False, dst=None):
        prs = [ra, ra + 2, rb_, rb_ + 2]
        for j, p in enumerate(prs):
            e(f"v_pk_mul_f32 {vr(TT + 2 * j, 2)}, {vr(p, 2)}, s[{S_L2E}:{S_L2E + 1}]")
        for j in range(8):
            e(f"v_exp_f32 v{TT + j}, v{TT + j}")
        for j in range(4):
            e(f"v_pk_fma_f32 {vr(UU + 2 * j, 2)}, {vr(TT + 2 * j, 2)}, 0.5, 1.0 op_sel_hi:[1,0,0]")
        for j in range(4):
            e(f"v_pk_fma_f32 {vr(UU + 2 * j, 2)}, {vr(TT + 2 * j, 2)}, {vr(UU + 2 * j, 2)}, 1.0 op_sel_hi:[1,1,0]")
        for j in range(8):
            e(f"v_rcp_f32 v{UU + j}, v{UU + j}")
        for j, p in enumerate(prs):
            e(f"v_pk_fma_f32 {vr(p, 2)}, {vr(UU + 2 * j, 2)}, {vr(p, 2)}, {vr(p, 2)} neg_lo:[1,0,0] neg_hi:[1,0,0]")
        if split:
            e(f"v_cvt_pk_bf16_f32 v{ra}, v{ra}, v{ra + 1}")
            e(f"v_cvt_pk_bf16_f32 v{ra + 1}, v{ra + 2}, v{ra + 3}")
            e(f"v_cvt_pk_bf16_f32 v{rb_}, v{rb_}, v{rb_ + 1}")
            e(f"v_cvt_pk_bf16_f32 v{rb_ + 1}, v{rb_ + 2}, v{rb_ + 3}")
        else:
            dd = ra if dst is None else dst
            for j, p in enumerate(prs):
                e(f"v_cvt_pk_bf16_f32 v{dd + j}, v{p}, v{p + 1}")

    WS = f"s[{S_WS}:{S_WS + 3}]"

    def set_kb(sreg, mul, add):
        e(f"s_mul_i32 s{sreg}, s{S_P}, {mul * 8192}")
        e(f"s_add_u32 s{sreg}, s{sreg}, {add * 8192}")
        e(f"s_add_u32 s{sreg}, s{sreg}, s{S_AFB}")

    def h_late(tA, kbl, sreg, mid=None):
        set_kb(sreg, 7, kbl)
        for mt in range(4):
            mish_group(acc(tA, mt), acc(tA + 1, mt))
            if mt == 1 and mid:
                mid()

    def h_half_late(tA, half):
        set_kb(P_SL + 2, 7, 2)
        if half:
            e(f"s_add_u32 s{P_SL + 2}, s{P_SL + 2}, 512")
        for mp in range(2):
            mish_group(acc(tA, 2 * mp), acc(tA, 2 * mp + 1), dst=240 + 4 * mp)
        e("s_nop 1")
        for mp in range(2):
            e(f"v_permlane16_swap_b32 v{240 + 4 * mp}, v{242 + 4 * mp}")
            e(f"v_permlane16_swap_b32 v{241 + 4 * mp}, v{243 + 4 * mp}")

    def h_full(tA, kbl, tag='st'):
        set_kb(S_T + 2, 7, kbl)
        for mt in range(4):
            mish_group(acc(tA, mt), acc(tA + 1, mt))
            a.vmem(f"buffer_store_dwordx4 {vr(acc(tA, mt))}, v{V_L16}, {WS}, s{S_T + 2} offen offset:{1024 * mt} {OPT['st']}", tag)

    def h_half(tA, kbl, half):
        set_kb(S_T + 2, 7, kbl)
        for mp in range(2):
            mish_group(acc(tA, 2 * mp), acc(tA, 2 * mp + 1), split=True)
            for mt in (2 * mp, 2 * mp + 1):
                a.vmem(f"buffer_store_dwordx2 {vr(acc(tA, mt), 2)}, v{V_L16}, {WS}, s{S_T + 2} offen offset:{1024 * mt + 8 * half} {OPT['st']}", "st")

    if typ == 1:
        h_full(5, 3, "se")
        h_full(7, 4, "se")
        if OPT.get('fepos') == 10:
            a.wait(["se", "zc"])
            setflag(0)
        p2_early(a)
        if OPT.get('fepos') == 9:
            a.wait(["se", "zc"])
            setflag(0)
        for hd in range(2):
            set_kb(S_T + 2, 2, 112 + hd)
            for mt in range(4):
                phi_group(acc(2 * hd, mt), acc(2 * hd + 1, mt))
                a.vmem(f"buffer_store_dwordx4 {vr(acc(2 * hd, mt))}, v{V_L16}, {WS}, s{S_T + 2} offen offset:{1024 * mt} {OPT['st']}", "sq")
                if 4 * hd + mt == OPT.get('fepos', 4):
                    a.wait(["se", "zc"])
                    setflag(0)
                if 4 * hd + mt >= OPT.get('fepos', 4):
                    pb()
        pb(8)
        h_late(9, 5, P_SL, mid=fe_load)
        h_late(11, 6, P_SL + 1, mid=fe_check)
        h_half_late(4, 1)
        fin()
        return

    h_full(8, 0, "se")
    h_full(10, 1, "se")
    if OPT.get('fepos') == 10:
        a.wait(["se", "zc"])
        setflag(0)
    p2_early(a)
    if OPT.get('fepos') == 9:
        a.wait(["se", "zc"])
        setflag(0)
    ONES = V_T + 16
    for r in range(4):
        e(f"v_mov_b32 v{ONES + r}, 0x3f803f80")
    for t in range(4):
        for pr in range(2):
            phi_group(acc(t, 2 * pr), acc(t, 2 * pr + 1))
            if 2 * t + pr == OPT.get('fepos', 4):
                a.wait(["se", "zc"])
                setflag(0)
            if 2 * t + pr >= OPT.get('fepos', 4):
                pb()
    pb(8)
    for t in range(4, 8):
        for pr in range(2):
            cvt_group(acc(t, 2 * pr), acc(t, 2 * pr + 1))
    e("s_nop 1")
    free = [acc(t, m) for t in range(8) for m in (1, 3)]

    def Dt(tau):
        return free[tau]
    for pr in range(2):
        for hd in range(2):
            for dt in range(2):
                for et in range(3):
                    tau = hd * 6 + dt * 3 + et
                    Aop = vr(acc(2 * hd + dt, 2 * pr))
                    Bop = vr(acc(4 + 2 * hd + et, 2 * pr)) if et < 2 else vr(ONES)
                    C = "0" if pr == 0 else vr(Dt(tau))
                    e(f"v_mfma_f32_16x16x32_bf16 {vr(Dt(tau))}, {Aop}, {Bop}, {C}")
    vw, vrd = V_T + 20, V_T + 21
    e(f"s_mul_i32 s{S_T}, s{S_WAVE}, 12288")
    e(f"s_add_u32 s{S_T}, s{S_T}, 98304")
    e(f"v_add_u32 v{vw}, s{S_T}, v{V_L16}")
    e(f"s_mul_i32 s{S_T}, s{S_WAVE}, 3072")
    e(f"s_add_u32 s{S_T}, s{S_T}, 98304")
    e(f"v_add_u32 v{vrd}, s{S_T}, v{V_L16}")
    fe_load()
    e("s_nop 7")
    for tau in range(12):
        e(f"ds_write_b128 v{vw}, {vr(Dt(tau))} offset:{1024 * tau}")
    e(f"s_lshl_b32 s{S_T}, s{S_P}, 3")
    e(f"s_add_u32 s{S_T}, s{S_T}, s{S_RB}")
    e(f"s_mul_i32 s{S_T}, s{S_T}, 12288")
    e(f"s_mul_i32 s{S_T + 1}, s{S_WAVE}, 3072")
    e(f"s_add_u32 s{S_T}, s{S_T}, s{S_T + 1}")
    e(f"s_add_u32 s{S_T + 10}, s{S_T}, {KVP_OFF}")
    h_half_late(12, 0)
    e(f"s_mov_b32 s{P_SL}, 0x7ff00000")
    e(f"s_mov_b32 s{P_SL + 1}, 0x7ff00000")
    e("s_waitcnt lgkmcnt(0)")
    e("s_barrier")
    R = [acc(t, m) for t in range(8) for m in (0, 2)]
    for w2 in range(4):
        for j in range(3):
            e(f"ds_read_b128 {vr(R[3 * w2 + j])}, v{vrd} offset:{12288 * w2 + 1024 * j}")
    fe_check()
    e("s_waitcnt lgkmcnt(0)")
    for j in range(3):
        for h2 in range(2):
            b0 = R[j] + 2 * h2
            e(f"v_pk_add_f32 {vr(b0, 2)}, {vr(b0, 2)}, {vr(R[3 + j] + 2 * h2, 2)}")
            e(f"v_pk_add_f32 {vr(R[6 + j] + 2 * h2, 2)}, {vr(R[6 + j] + 2 * h2, 2)}, {vr(R[9 + j] + 2 * h2, 2)}")
        for h2 in range(2):
            b0 = R[j] + 2 * h2
            e(f"v_pk_add_f32 {vr(b0, 2)}, {vr(b0, 2)}, {vr(R[6 + j] + 2 * h2, 2)}")
        a.vmem(f"buffer_store_dwordx4 {vr(R[j])}, v{V_L16}, {WS}, s{S_T + 10} offen offset:{1024 * j} sc1", "sq")
    fin()


def gen_k1():
    a = Asm()
    e = a.e
    a.lines.append(".globl KNAME\n.p2align 8\n.type KNAME,@function\nKNAME:")
    if OPT.get('spin'):
        stamp(a, 0)
    e("s_cmp_ge_u32 s2, 256")
    e("s_cbranch_scc1 L_k1_exit")
    e(f"s_load_dwordx16 s[{S_PTR}:{S_PTR + 15}], s[0:1], 0")
    if OPT.get('cpf') >= 2:
        e(f"s_getpc_b64 s[{S_CB}:{S_CB + 1}]")
        a.label("L_pc_0")
        e(f"s_sub_u32 s{S_CB}, s{S_CB}, L_pc_0-KNAME")
        e(f"s_subb_u32 s{S_CB + 1}, s{S_CB + 1}, 0")
        e(f"s_lshl_b32 s{S_T}, s2, 12")
        e(f"s_and_b32 s{S_T}, s{S_T}, 0x18000")
        e(f"v_lshlrev_b32 v{V_T + 29}, 7, v0")
        e(f"v_add_u32 v{V_T + 29}, s{S_T}, v{V_T + 29}")
        e(f"v_min_u32 v{V_T + 29}, L_code_end-KNAME-4, v{V_T + 29}")
        e(f"global_load_dword v{V_T + 28}, v{V_T + 29}, s[{S_CB}:{S_CB + 1}]")
    e(f"s_load_dwordx4 s[{S_PTR + 16}:{S_PTR + 19}], s[0:1], 64")
    e(f"s_load_dwordx2 s[{S_PTR + 20}:{S_PTR + 21}], s[0:1], 80")
    e(f"v_and_b32 v{V_LANE}, 63, v0")
    e(f"v_lshrrev_b32 v{V_T}, 6, v0")
    e(f"s_and_b32 s{S_T}, s2, 7")
    e(f"v_readfirstlane_b32 s{S_WAVE}, v{V_T}")
    e(f"s_lshr_b32 s{S_T + 1}, s2, 3")
    if OPT.get('map1', 0) == 0:
        e(f"s_and_b32 s{S_RB}, s{S_T}, 1")
        e(f"s_lshl_b32 s{S_RB}, s{S_RB}, 2")
        e(f"s_and_b32 s{S_T + 2}, s{S_T + 1}, 3")
        e(f"s_add_u32 s{S_RB}, s{S_RB}, s{S_T + 2}")
        e(f"s_lshr_b32 s{S_T}, s{S_T}, 1")
        e(f"s_lshl_b32 s{S_T}, s{S_T}, 3")
        e(f"s_lshr_b32 s{S_T + 1}, s{S_T + 1}, 2")
        e(f"s_add_u32 s{S_T}, s{S_T}, s{S_T + 1}")
    elif OPT['map1'] == 1:
        e(f"s_and_b32 s{S_RB}, s{S_T + 1}, 7")
        e(f"s_lshl_b32 s{S_T}, s{S_T}, 2")
        e(f"s_lshr_b32 s{S_T + 1}, s{S_T + 1}, 3")
        e(f"s_add_u32 s{S_T}, s{S_T}, s{S_T + 1}")
    else:
        e(f"s_and_b32 s{S_RB}, s{S_T}, 3")
        e(f"s_lshl_b32 s{S_RB}, s{S_RB}, 1")
        e(f"s_and_b32 s{S_T + 2}, s{S_T + 1}, 1")
        e(f"s_add_u32 s{S_RB}, s{S_RB}, s{S_T + 2}")
        e(f"s_lshr_b32 s{S_T}, s{S_T}, 2")
        e(f"s_lshl_b32 s{S_T}, s{S_T}, 4")
        e(f"s_lshr_b32 s{S_T + 1}, s{S_T + 1}, 1")
        e(f"s_add_u32 s{S_T}, s{S_T}, s{S_T + 1}")
    e(f"s_lshr_b32 s{S_P}, s{S_T}, 1")
    e(f"s_and_b32 s{S_T + 3}, s{S_T}, 1")
    e(f"s_cmp_lg_u32 s{S_T + 3}, 0")
    e("s_cbranch_scc1 L_k1_typeB")
    k1_body(a, 0)
    a.label("L_k1_typeB")
    a.vm = []
    k1_body(a, 1)
    a.vm = []
    phase2(a)
    a.label("L_k1_exit")
    e("s_endpgm")
    a.label("L_code_end")
    return a.lines


def K2_LDS():
    return OPT['S'] * 32768 + 24576


def fold_loops(a, iters, period, scnt, name):
    n = len(iters)
    i = 0
    lab = 0
    while i < n:
        reps = 1
        while i + (reps + 1) * period <= n and all(
                iters[i + k] == iters[i + reps * period + k] for k in range(period)):
            reps += 1
        if reps >= 2:
            a.e(f"s_mov_b32 s{scnt}, {reps}")
            a.label(f"L_{name}_{lab}")
            for k in range(period):
                a.lines += iters[i + k]
            a.e(f"s_sub_u32 s{scnt}, s{scnt}, 1")
            a.e(f"s_cmp_lg_u32 s{scnt}, 0")
            a.e(f"s_cbranch_scc1 L_{name}_{lab}")
            lab += 1
            i += reps * period
        else:
            a.lines += iters[i]
            i += 1


def schedule(a, mf, streams):
    n = len(mf)
    placed = []
    for si, (items, start, end) in enumerate(streams):
        m = len(items)
        prev = 0
        for j, it in enumerate(items):
            fn, early = it if isinstance(it, tuple) else (it, 0)
            pos = start + (j * (end - start)) / max(m, 1)
            pos = max(pos, early, prev)
            prev = pos
            placed.append((pos, si, j, fn))
    placed.sort(key=lambda x: (x[0], x[1], x[2]))
    k = 0
    if n == 0:
        for p in placed:
            p[3]()
        return
    for i in range(n):
        a.e(mf[i])
        while k < len(placed) and placed[k][0] < i + 1:
            placed[k][3]()
            k += 1
    while k < len(placed):
        placed[k][3]()
        k += 1


P_SW2, P_SWO, P_SWS, P_SOUT = 96, 20, 16, 4
P_SMT, P_SNT, P_SROLE, P_STILE = 8, 9, 10, 11
P_SOA, P_SOB, P_SOP, P_SM0A, P_SM0B = 12, 13, 14, 15, 27
P_SHD, P_SM2, P_SEARLY = 28, 29, 30
P_VBD = 2
P_SLOT = 32768


def tile_decode(a, smt, snt, srole, stile, st):
    e = a.e
    e(f"s_and_b32 s{st}, s2, 7")
    e(f"s_lshr_b32 s{st + 1}, s2, 3")
    e(f"s_and_b32 s{srole}, s{st}, 1")
    if OPT.get('rsw'):
        e(f"s_xor_b32 s{srole}, s{srole}, 1")
    e(f"s_lshr_b32 s{st}, s{st}, 1")
    if OPT['map'] == 0:
        e(f"s_and_b32 s{smt}, s{st}, 1")
        e(f"s_lshl_b32 s{smt}, s{smt}, 3")
        e(f"s_and_b32 s{stile}, s{st + 1}, 7")
        e(f"s_add_u32 s{smt}, s{smt}, s{stile}")
        e(f"s_lshr_b32 s{snt}, s{st}, 1")
        e(f"s_lshl_b32 s{snt}, s{snt}, 2")
        e(f"s_lshr_b32 s{st + 1}, s{st + 1}, 3")
        e(f"s_add_u32 s{snt}, s{snt}, s{st + 1}")
    else:
        e(f"s_lshl_b32 s{smt}, s{st}, 2")
        e(f"s_and_b32 s{stile}, s{st + 1}, 3")
        e(f"s_add_u32 s{smt}, s{smt}, s{stile}")
        e(f"s_lshr_b32 s{snt}, s{st + 1}, 2")
    e(f"s_lshl_b32 s{stile}, s{smt}, 3")
    e(f"s_add_u32 s{stile}, s{stile}, s{snt}")


P_VAD, P_VFA, P_VFL = 8, 9, 10
P_SSA, P_SSB = 31, 32
P_SL = 4


def p2_setrun(a, first_expr, stride):
    e = a.e
    c0, c1 = first_expr
    e(f"s_lshr_b32 s{S_T + 11}, s{S_WAVE}, 1")
    e(f"s_mul_i32 s{S_T + 11}, s{S_T + 11}, {c1}")
    e(f"s_add_u32 s{S_T + 11}, s{S_T + 11}, {c0}")
    return S_T + 11


def p2_math(a):
    e = a.e
    S = OPT['S']
    ST = S_T
    tile_decode(a, P_SMT, P_SNT, P_SROLE, P_STILE, ST)
    vi, vG, t0, t1, t2 = 6, 7, 8, 9, 10
    e(f"v_and_b32 v{vi}, 15, v{V_LANE}")
    e(f"v_lshrrev_b32 v{vG}, 4, v{V_LANE}")
    e(f"s_lshl_b32 s{P_SM0A}, s{S_WAVE}, 12")
    e(f"s_add_u32 s{P_SM0B}, s{P_SM0A}, 16384")
    e(f"s_lshl_b32 s{ST}, s{P_SNT}, 8")
    e(f"s_and_b32 s{ST + 3}, s{S_WAVE}, 1")
    e(f"s_lshl_b32 s{ST + 1}, s{ST + 3}, 15")
    e(f"s_add_u32 s{ST}, s{ST}, s{ST + 1}")
    e(f"v_lshlrev_b32 v{t0}, 11, v{vG}")
    e(f"v_add_u32 v{t0}, s{ST}, v{t0}")
    e(f"v_lshlrev_b32 v{t1}, 1, v{vG}")
    e(f"v_xor_b32 v{t1}, v{t1}, v{vi}")
    for j in range(4):
        if j & 1:
            e(f"v_xor_b32 v{t2}, 8, v{t1}")
            e(f"v_lshlrev_b32 v{t2}, 4, v{t2}")
        else:
            e(f"v_lshlrev_b32 v{t2}, 4, v{t1}")
        e(f"v_add_u32 v{t2}, v{t2}, v{t0}")
        e(f"v_add_u32 v{P_VBD + j}, {j * (8192 - 1024)}, v{t2}")
    e(f"s_mul_i32 s{ST}, s{P_SROLE}, 3")
    e(f"s_lshr_b32 s{ST + 1}, s{S_WAVE}, 1")
    e(f"s_add_u32 s{ST}, s{ST}, s{ST + 1}")
    e(f"s_lshl_b32 s{P_SOB}, s{ST}, 16")
    e(f"s_mul_i32 s{P_SOA}, s{P_SMT}, 144")
    e(f"s_add_u32 s{P_SOA}, s{P_SOA}, s{ST}")
    e(f"s_lshl_b32 s{P_SOA}, s{P_SOA}, 13")
    e(f"s_mov_b32 s{P_SSA}, {7 * 8192}")
    e(f"s_mov_b32 s{P_SSB}, {7 * 65536}")
    e(f"s_lshl_b32 s{ST + 3}, s{ST + 3}, 12")
    e(f"v_add_u32 v{P_VAD}, s{ST + 3}, v{V_L16}")
    e(f"s_lshl_b32 s{ST}, s{P_SMT}, 1")
    e(f"s_add_u32 s{ST}, s{ST}, s{P_SROLE}")
    e(f"s_lshl_b32 s{ST}, s{ST}, 8")
    e(f"s_add_u32 s{ST}, s{ST}, {FE_OFF}")
    e(f"v_and_b32 v{P_VFA}, 31, v{V_LANE}")
    e(f"v_lshlrev_b32 v{P_VFA}, 3, v{P_VFA}")
    e(f"v_add_u32 v{P_VFA}, s{ST}, v{P_VFA}")


def tok_load(a):
    srd(a, S_T + 4, S_PTR + 18, S_PTR + 19, 256)
    a.e(f"v_mov_b32 v12, 0")
    a.vmem(f"buffer_load_dwordx2 v[{V_TOK}:{V_TOK + 1}], v12, s[{S_T + 4}:{S_T + 7}], 0 offen sc1", "zc")


def p2_early(a):
    e = a.e
    S = OPT['S']
    ST = S_T
    if not OPT.get('p2m'):
        p2_math(a)
    if not OPT.get('tke'):
        tok_load(a)
    for j in range(S - 1):
        e(f"s_add_u32 m0, s{P_SM0B}, {j * P_SLOT}")
        e("s_nop 0")
        for i in range(4):
            a.vmem(f"buffer_load_dwordx4 v{P_VBD + i}, s[{P_SW2}:{P_SW2 + 3}], s{P_SOB} offen offset:{1024 * i} lds", "eB")
        e(f"s_add_u32 s{P_SOB}, s{P_SOB}, s{P_SSB}")


def p2_issueA(a):
    e = a.e
    for j in range(OPT['S'] - 1):
        e(f"s_add_u32 m0, s{P_SM0A}, {j * P_SLOT}")
        e("s_nop 0")
        for i in range(4):
            e(f"buffer_load_dwordx4 v{P_VAD}, s[{P_SWS}:{P_SWS + 3}], s{P_SOA} offen offset:{1024 * i} {OPT['k2a']} lds")
        e(f"s_add_u32 s{P_SOA}, s{P_SOA}, s{P_SSA}")


def phase2(a):
    e = a.e
    S = OPT['S']
    n0 = OPT['n0']
    SLOT = P_SLOT
    SCR = S * SLOT
    SWAVE = S_WAVE
    ST = S_T
    SCNT = S_CNT
    SMT, SNT, SROLE, STILE = P_SMT, P_SNT, P_SROLE, P_STILE
    SOA, SOB, SOP, SM0A, SM0B = P_SOA, P_SOB, P_SOP, P_SM0A, P_SM0B
    SW2, SWO, SOUT = P_SW2, P_SWO, P_SOUT
    WS = f"s[{P_SWS}:{P_SWS + 3}]"
    NBASE = (S + 1) // 2
    VL, VL16, VBD = V_LANE, V_L16, P_VBD
    vi, vG = 6, 7
    VZ = 11
    VAD = 8
    VFL = 10
    VFA = 9
    VAR = 12
    VBR = 18
    VT = 30
    VG = 38
    VOMG = 42
    VEPS = 46
    VEPS = 48
    CG = 52
    CR = 60
    CKV = 68
    CW = 80
    VX = 192
    VY = 84
    AC = 128
    t0, t1, t2, t3 = VT, VT + 1, VT + 2, VT + 3

    def acc2(mt, nt):
        return AC + 16 * mt + 4 * nt

    def FA(j, b, mt):
        return 64 * (j % 2) + 32 * b + 4 * mt

    def FB(j, b, nt):
        return 64 * (j % 2) + 32 * b + 16 + 4 * nt

    def setflag(*lanes):
        e(f"s_mov_b64 exec, {sum(1 << l for l in lanes)}")
        a.vmem(f"buffer_store_dwordx2 v[{V_TOK}:{V_TOK + 1}], v0, {WS}, 0 offen sc1", "fl")
        e("s_mov_b64 exec, -1")

    VQ = 120
    VH = 16

    def fq_load():
        a.vmem(f"buffer_load_dwordx2 v[{VQ}:{VQ + 1}], v{VQ + 2}, {WS}, 0 offen sc1", "fq")

    a.label("L_p2_late")
    e(f"buffer_load_dwordx2 v[{VFL}:{VFL + 1}], v{VFA}, {WS}, 0 offen sc1")
    e("s_waitcnt vmcnt(0)")
    e(f"v_cmp_eq_u64 vcc, v[{VFL}:{VFL + 1}], v[{V_TOK}:{V_TOK + 1}]")
    e("s_nop 1")
    e("s_cmp_eq_u64 vcc, -1")
    e("s_cbranch_scc1 L_p2_fok")
    e("s_add_u32 s3, s3, 1")
    e("s_cmp_gt_u32 s3, 0x40000")
    e("s_cbranch_scc1 L_p2_fok")
    e(f"s_sleep {OPT.get('slp', 4)}")
    e("s_branch L_p2_late")
    a.label("L_p2_fok")
    p2_issueA(a)
    e("s_waitcnt vmcnt(0)")
    a.label("L_p2_go")
    stamp(a, 0)
    a.vm = ["old"]
    e(f"s_and_b32 s{ST}, s{SWAVE}, 1")
    e(f"s_lshl_b32 s{ST}, s{ST}, 12")
    e(f"v_add_u32 v{VAR}, s{ST}, v{VL16}")
    for k in range(1, NBASE):
        e(f"v_add_u32 v{VAR + k}, {65536 * k}, v{VAR}")
    e(f"v_lshlrev_b32 v{t0}, 2, v{vG}")
    e(f"v_lshrrev_b32 v{t1}, 2, v{vi}")
    e(f"v_add_u32 v{t0}, v{t0}, v{t1}")
    e(f"v_and_b32 v{t1}, 7, v{t0}")
    e(f"s_lshr_b32 s{ST}, s{SWAVE}, 1")
    e(f"s_lshl_b32 s{ST}, s{ST}, 2")
    e(f"v_xor_b32 v{t1}, s{ST}, v{t1}")
    e(f"v_lshlrev_b32 v{t0}, 8, v{t0}")
    e(f"v_and_b32 v{t2}, 3, v{vi}")
    e(f"v_lshlrev_b32 v{t2}, 3, v{t2}")
    e(f"v_add_u32 v{t0}, v{t0}, v{t2}")
    e(f"v_add_u32 v{t0}, 16384, v{t0}")
    for nt in range(4):
        e(f"v_xor_b32 v{t3}, {nt}, v{t1}")
        e(f"v_lshlrev_b32 v{t3}, 5, v{t3}")
        e(f"v_add_u32 v{VBR + nt}, v{t0}, v{t3}")
        for k in range(1, NBASE):
            e(f"v_add_u32 v{VBR + 4 * k + nt}, {65536 * k}, v{VBR + nt}")
    VBW = 26
    e(f"v_add_u32 v{VBW}, s{SM0B}, v{VL16}")
    e(f"v_add_u32 v{VBW + 1}, 65536, v{VBW}")
    e(f"v_and_b32 v{t0}, 1, v{vG}")
    e(f"v_lshlrev_b32 v{t0}, 10, v{t0}")
    e(f"v_lshrrev_b32 v{t1}, 1, v{vG}")
    e(f"v_lshlrev_b32 v{t1}, 8, v{t1}")
    e(f"v_lshlrev_b32 v{VH}, 4, v{vi}")
    e(f"v_add3_u32 v{VH}, v{VH}, v{t0}, v{t1}")
    stamp(a, 1)
    e(f"s_cmp_eq_u32 s{SROLE}, 0")
    e(f"s_cbranch_scc1 L_p2_r0")
    vm_save = list(a.vm)

    import math
    PERIOD = S * 4 // math.gcd(S, 4)

    def body(role):
        R = f"r{role}"
        o0 = OPT.get('o0', 5)
        na0 = n0 - o0
        assert 16 < na0 <= 32 and 5 <= o0 <= 11
        nact = na0 if role == 0 else 56 - na0
        N = nact + (o0 if role == 0 else 16 - o0)
        JO = nact - (S - 1)
        JP = N - OPT['pj']
        if role == 0:
            runs = {16: (5, 1, 7)}
        else:
            nl1 = 32 - na0
            runs = {16 + nl1: (2, 7, 14)}
            if nl1:
                runs[16] = (5 + 7 * (na0 - 16), 1, 7)

        def bperm(op):
            e(f"s_and_b32 s{ST + 9}, s{SWAVE}, 1")
            e(f"s_mul_i32 s{ST + 9}, s{ST + 9}, {-12 * 2048}")
            for j4 in range(4):
                e(f"{op} v{VBD + j4}, s{ST + 9}, v{VBD + j4}")
                if j4 < 3:
                    e(f"s_add_u32 s{ST + 9}, s{ST + 9}, {4 * 2048}")

        def newrun(j):
            if j == nact:
                def sw():
                    e(f"s_lshr_b32 s{ST + 11}, s{SWAVE}, 1")
                    if role:
                        e(f"s_add_u32 s{ST + 11}, s{ST + 11}, {2 * o0}")
                    e(f"s_lshl_b32 s{SOB}, s{ST + 11}, 16")
                    e(f"s_lshl_b32 s{SOA}, s{SMT}, 5")
                    e(f"s_add_u32 s{SOA}, s{SOA}, s{ST + 11}")
                    e(f"s_lshl_b32 s{SOA}, s{SOA}, 13")
                    e(f"s_add_u32 s{SOA}, s{SOA}, {OF_OFF}")
                    e(f"s_mov_b32 s{P_SSA}, 16384")
                    e(f"s_mov_b32 s{P_SSB}, 131072")
                    if role == 1:
                        bperm("v_subrev_u32")
                return [sw]
            if j in runs:
                c0, c1, st_ = runs[j]

                def sw():
                    r = p2_setrun(a, (c0, c1), st_)
                    e(f"s_lshl_b32 s{SOB}, s{r}, 16")
                    e(f"s_mul_i32 s{SOA}, s{SMT}, 144")
                    e(f"s_add_u32 s{SOA}, s{SOA}, s{r}")
                    e(f"s_lshl_b32 s{SOA}, s{SOA}, 13")
                    e(f"s_mov_b32 s{P_SSA}, {st_ * 8192}")
                    e(f"s_mov_b32 s{P_SSB}, {st_ * 65536}")
                    if st_ == 14:
                        bperm("v_add_u32")
                return [sw]
            return []

        def dmaA(j):
            f = newrun(j)
            f.append(lambda: e(f"s_add_u32 m0, s{SM0A}, {(j % S) * SLOT}"))
            for i in range(4):
                f.append(lambda i=i: a.vmem(
                    f"buffer_load_dwordx4 v{VAD}, {WS}, s{SOA} offen offset:{1024 * i} {OPT['k2a']} lds", f"D{j}"))
            f.append(lambda: e(f"s_add_u32 s{SOA}, s{SOA}, s{P_SSA}"))
            return f

        def dmaB(j):
            sr = SW2 if j < nact else SWO
            f = []
            k = j - (S - 1)
            if 0 <= k < OPT.get('pb', 0):
                sl = j % S
                for i in range(4):
                    f.append(lambda i=i: e(
                        f"ds_write_b128 v{VBW + sl // 2}, {ar(128 + 16 * k + 4 * i)} offset:{(sl % 2) * SLOT + 1024 * i}"))
                return f
            f.append(lambda: e(f"s_add_u32 m0, s{SM0B}, {(j % S) * SLOT}"))
            for i in range(4):
                f.append(lambda i=i: a.vmem(
                    f"buffer_load_dwordx4 v{VBD + i}, s[{sr}:{sr + 3}], s{SOB} offen offset:{1024 * i} lds", f"D{j}"))
            f.append(lambda: e(f"s_add_u32 s{SOB}, s{SOB}, s{P_SSB}"))
            return f

        def reads(j):
            sl = j % S
            k, so = sl // 2, (sl % 2) * SLOT
            f = []
            for q in range(4):
                for b in range(2):
                    f.append(lambda b=b, q=q: e(
                        f"ds_read_b128 {ar(FA(j, b, q))}, v{VAR + k} offset:{so + 8192 * b + 1024 * q}"))
                    for ins in range(2):
                        f.append(lambda b=b, q=q, ins=ins: e(
                            f"ds_read_b64_tr_b16 {ar(FB(j, b, q) + 2 * ins, 2)}, v{VBR + 4 * k + q} offset:{so + 8192 * b + 4096 * ins}"))
            return f

        late = []
        for mp in range(2):
            late.append(f"buffer_store_dwordx4 {vr(240 + 4 * mp)}, v{VH}, {WS}, s{P_SL + 2} offen offset:{2048 * mp} sc1")
        for g_, base in enumerate((192, 224)):
            for mt in range(4):
                late.append(f"buffer_store_dwordx4 {vr(base + 4 * mt)}, v{VL16}, {WS}, s{P_SL + g_} offen offset:{1024 * mt} sc1")
        TR = OPT.get('tr', 3)
        TRS = OPT.get('trs', 0)
        NTR = -(-10 // TR) + TRS
        JFQ = OPT.get('jfq', 2)

        e("s_barrier")
        stamp(a, 2)
        VK = 48
        PD, PO, PEPS, PR = 48, 96, 112, 116

        def poll(lab, vv, reload):
            a.label(f"L_p2{R}_{lab}w")
            e(f"v_cmp_eq_u64 vcc, v[{vv}:{vv + 1}], v[{V_TOK}:{V_TOK + 1}]")
            e("s_nop 1")
            e("s_cmp_eq_u64 vcc, -1")
            e(f"s_cbranch_scc1 L_p2{R}_{lab}ok")
            e("s_add_u32 s3, s3, 1")
            e("s_cmp_gt_u32 s3, 0x40000")
            e(f"s_cbranch_scc1 L_p2{R}_{lab}ok")
            e("s_sleep 4")
            sv = list(a.vm)
            reload()
            a.vm = sv
            e("s_waitcnt vmcnt(0)")
            e(f"s_branch L_p2{R}_{lab}w")
            a.label(f"L_p2{R}_{lab}ok")

        def fl_load(tag="F"):
            a.vmem(f"buffer_load_dwordx2 v[{VFL}:{VFL + 1}], v{VFA}, {WS}, 0 offen sc1", tag)

        def red_guard(lab):
            e(f"s_cmp_eq_u32 s{P_SEARLY}, 0")
            e(f"s_cbranch_scc1 L_p2{R}_{lab}")

        J1 = OPT.get('j1', 4)
        J2 = OPT.get('j2', 12)

        def pre(j):
            if j == JFQ:
                a.wait(["old"])
            if j == NTR + 2:
                a.wait(["sl"])
            if j == 16 - S + 1:
                a.wait(["FL"])
                poll("l", VFL, fl_load)
            if j == J2 + 2:
                a.wait(["fq"])
                poll("k", VQ, fq_load)
            if j == J2 + 4:
                a.wait(["pq"])
            if j == J2 + 8:
                a.wait(["ost"])
            if j == JO:
                a.wait(["F"])
                poll("o", VFL, fl_load)
            if role == 1 and j == JP:
                a.wait(["F2"])
                poll("p", VFL, fl_load)

        ft_hook = [None]

        def extra(j):
            if ft_hook[0] and ft_hook[0][0] == j:
                ft_hook[0][1]()
            if j == JFQ:
                setflag(1)
            if j == J1:
                e(f"s_and_b32 s{ST}, s2, 3")
                e(f"s_cmp_eq_u32 s{ST}, s{SWAVE}")
                e(f"s_cselect_b32 s{P_SEARLY}, 1, 0")
                e(f"s_cmp_lt_u32 s2, 192")
                e(f"s_cselect_b32 s{P_SEARLY}, s{P_SEARLY}, 0")
                e(f"s_mul_i32 s{P_SHD}, s2, 171")
                e(f"s_lshr_b32 s{P_SHD}, s{P_SHD}, 10")
                e(f"s_min_u32 s{P_SHD}, s{P_SHD}, 31")
                e(f"s_lshr_b32 s{ST}, s{P_SHD}, 1")
                e(f"s_lshl_b32 s{ST}, s{ST}, 9")
                e(f"s_add_u32 s{ST}, s{ST}, {FQ_OFF}")
                e(f"v_and_b32 v{VQ + 2}, 31, v{VL}")
                e(f"v_lshlrev_b32 v{VQ + 2}, 3, v{VQ + 2}")
                e(f"v_add_u32 v{VQ + 2}, s{ST}, v{VQ + 2}")
                fq_load()
            if j == NTR + 2:
                setflag(4)
                srd(a, SOUT, S_PTR + 16, S_PTR + 17, 2048 * 1024 * 2)
            if j == 16 - S - 1:
                e(f"s_lshl_b32 s{ST}, s{SMT}, 9")
                e(f"s_add_u32 s{ST}, s{ST}, {FA_OFF}")
                e(f"v_lshlrev_b32 v{VFA}, 3, v{VL}")
                e(f"v_add_u32 v{VFA}, s{ST}, v{VFA}")
                fl_load("FL")
            if j == 16 - S + 2:
                e(f"v_lshlrev_b32 v{t1}, 2, v{vi}")
                e(f"s_lshl_b32 s{ST}, s{SMT}, 9")
                e(f"s_and_b32 s{ST + 1}, s{SWAVE}, 1")
                e(f"s_lshl_b32 s{ST + 1}, s{ST + 1}, 8")
                e(f"s_add_u32 s{ST}, s{ST}, s{ST + 1}")
                e(f"s_add_u32 s{ST}, s{ST}, {G_OFF}")
                for i in range(4):
                    a.vmem(f"buffer_load_dword v{VG + i}, v{t1}, {WS}, s{ST} offen offset:{64 * i}", "g")
            if j == J2:
                e(f"s_and_b32 s{P_SHD}, s2, 31")
                e(f"s_lshr_b32 s{P_SM2}, s2, 5")
                e(f"s_lshr_b32 s{ST}, s{P_SHD}, 1")
                e(f"s_lshl_b32 s{ST}, s{ST}, 4")
                e(f"s_add_u32 s{ST}, s{ST}, s{P_SM2}")
                e(f"s_lshl_b32 s{ST}, s{ST}, 2")
                e(f"s_add_u32 s{ST}, s{ST}, s{SWAVE}")
                e(f"s_lshl_b32 s{ST}, s{ST}, 3")
                e(f"s_add_u32 s{ST}, s{ST}, {FQ_OFF + 256}")
                e(f"s_lshl_b32 s{ST + 1}, s{P_SHD}, 6")
                e(f"s_add_u32 s{ST + 1}, s{ST + 1}, {FK_OFF}")
                e(f"v_lshlrev_b32 v{VQ + 2}, 3, v{VL}")
                e(f"v_add_u32 v{VQ + 2}, s{ST + 1}, v{VQ + 2}")
                e(f"v_mov_b32 v{t0}, s{ST}")
                e(f"v_cmp_gt_u32 s[{ST + 2}:{ST + 3}], 6, v{VL}")
                e("s_nop 1")
                e(f"v_cndmask_b32 v{VQ + 2}, v{t0}, v{VQ + 2}, s[{ST + 2}:{ST + 3}]")
                e(f"s_lshl_b32 s{P_SM2}, s{P_SM2}, 1")
                e(f"s_lshr_b32 s{ST}, s{SWAVE}, 1")
                e(f"s_add_u32 s{P_SM2}, s{P_SM2}, s{ST}")
                fq_load()
            if j == J2 + 2:
                e(f"s_mul_i32 s{ST}, s{P_SHD}, 3072")
                e(f"s_add_u32 s{ST}, s{ST}, {KVF_OFF}")
                e(f"v_lshlrev_b32 v{t0}, 3, v{VL}")
                for i in range(6):
                    a.vmem(f"buffer_load_dwordx2 {ar(144 + 2 * i, 2)}, v{t0}, {WS}, s{ST} offen offset:{512 * i}", "pq")
                e(f"s_mul_i32 s{ST}, s{P_SM2}, 144")
                e(f"s_add_u32 s{ST}, s{ST}, s{P_SHD}")
                e(f"s_add_u32 s{ST}, s{ST}, 112")
                e(f"s_lshl_b32 s{ST}, s{ST}, 13")
                for i in range(4):
                    a.vmem(f"buffer_load_dwordx4 {ar(128 + 4 * i)}, v{VAD}, {WS}, s{ST} offen offset:{1024 * i}", "pq")
                e(f"s_lshl_b32 s{SOP}, s{P_SM2}, 5")
                e(f"s_add_u32 s{SOP}, s{SOP}, s{P_SHD}")
                e(f"s_lshl_b32 s{SOP}, s{SOP}, 13")
                e(f"s_add_u32 s{SOP}, s{SOP}, {OF_OFF}")
                for r in range(4):
                    e(f"v_mov_b32 v{PEPS + r}, {EPS_HEX}")
            if j == J2 + 5:
                for i in range(4):
                    e(f"v_rcp_f32 v{PR + i}, v{PD + 12 * i + 8}")
                e("s_nop 0")
                for i in range(4):
                    d = PD + 12 * i
                    for q in range(8):
                        e(f"v_mul_f32 v{d + q}, v{PR + i}, v{d + q}")
                    o = PO + 4 * i
                    for q in range(4):
                        e(f"v_cvt_pk_bf16_f32 v{o + q}, v{d + 2 * q}, v{d + 2 * q + 1}")
                    a.vmem(f"buffer_store_dwordx4 {vr(o)}, v{VAD}, {WS}, s{SOP} offen offset:{1024 * i} sc1", "ost")
            if j == J2 + 8:
                setflag(2)
            if j == JO - OPT.get('fod', 2):
                assert j > J2 + 8
                e(f"s_lshl_b32 s{ST}, s{SMT}, 9")
                e(f"s_add_u32 s{ST}, s{ST}, {FO_OFF}")
                if role == 0:
                    e(f"v_min_u32 v{VFA}, {4 * o0 - 1}, v{VL}")
                else:
                    e(f"v_max_u32 v{VFA}, {4 * o0}, v{VL}")
                e(f"v_lshlrev_b32 v{VFA}, 3, v{VFA}")
                e(f"v_add_u32 v{VFA}, s{ST}, v{VFA}")
                fl_load("F")
            if role == 1 and j == JP - 1:
                e(f"s_lshl_b32 s{ST}, s{STILE}, 8")
                e(f"s_lshl_b32 s{ST + 1}, s{SWAVE}, 3")
                e(f"s_add_u32 s{ST}, s{ST}, s{ST + 1}")
                e(f"s_add_u32 s{ST}, s{ST}, {FP_OFF}")
                e(f"v_mov_b32 v{VFA}, s{ST}")
                fl_load("F2")
            if role == 1 and j == JP:
                e(f"s_lshl_b32 s{ST}, s{STILE}, 16")
                e(f"s_lshl_b32 s{ST + 1}, s{SWAVE}, 13")
                e(f"s_add_u32 s{ST}, s{ST}, s{ST + 1}")
                e(f"s_add_u32 s{ST}, s{ST}, {PART_OFF}")
                for q in range(8):
                    if q == 4:
                        e(f"s_add_u32 s{ST}, s{ST}, 4096")
                    a.vmem(f"buffer_load_dwordx4 {vr(VY + 4 * q)}, v{VL16}, {WS}, s{ST} offen offset:{1024 * (q & 3)} sc1", "PT")

        def post(j):
            if j == J1 + 1:
                red_guard("nr1")
                n_ = a.vm_count(["fq"], drop=False)
                e(f"s_waitcnt vmcnt({n_})")
                poll("q", VQ, fq_load)
                e(f"s_lshr_b32 s{ST}, s{P_SHD}, 1")
                e(f"s_mul_i32 s{ST}, s{ST}, 84")
                e(f"s_add_u32 s{ST}, s{ST}, s2")
                e(f"s_lshl_b32 s{ST}, s{ST}, 10")
                e(f"s_add_u32 s{ST}, s{ST}, {KVP_OFF}")
                for r8 in range(8):
                    e(f"buffer_load_dwordx4 {vr(VK + 4 * r8)}, v{VL16}, {WS}, s{ST} offen")
                    if r8 < 7:
                        e(f"s_add_u32 s{ST}, s{ST}, 12288")
                a.label(f"L_p2{R}_nr1")
                a.mark("r1")
            if j == J1 + 3:
                red_guard("nr2")
                n_ = a.vm_count(["#r1"], drop=False)
                if n_ is not None:
                    e(f"s_waitcnt vmcnt({n_})")
                for st_ in (1, 2, 4):
                    for r8 in range(0, 8, 2 * st_):
                        for q in range(2):
                            b0 = VK + 4 * r8 + 2 * q
                            e(f"v_pk_add_f32 {vr(b0, 2)}, {vr(b0, 2)}, {vr(b0 + 4 * st_, 2)}")
                e(f"v_cvt_pk_bf16_f32 v{VK}, v{VK}, v{VK + 1}")
                e(f"v_cvt_pk_bf16_f32 v{VK + 1}, v{VK + 2}, v{VK + 3}")
                e(f"s_mul_i32 s{ST}, s{P_SHD}, 6")
                e(f"s_sub_u32 s{ST}, s2, s{ST}")
                e(f"s_cmp_ge_u32 s{ST}, 3")
                e(f"s_cselect_b32 s{ST + 1}, 1, 0")
                e(f"s_mul_i32 s{ST + 2}, s{ST + 1}, 3")
                e(f"s_sub_u32 s{ST}, s{ST}, s{ST + 2}")
                e(f"s_mul_i32 s{ST + 2}, s{P_SHD}, 3")
                e(f"s_add_u32 s{ST}, s{ST}, s{ST + 2}")
                e(f"s_lshl_b32 s{ST}, s{ST}, 10")
                e(f"s_lshl_b32 s{ST + 1}, s{ST + 1}, 9")
                e(f"s_add_u32 s{ST}, s{ST}, s{ST + 1}")
                e(f"s_add_u32 s{ST}, s{ST}, {KVF_OFF}")
                e(f"v_lshlrev_b32 v{t0}, 3, v{VL}")
                e(f"buffer_store_dwordx2 {vr(VK, 2)}, v{t0}, {WS}, s{ST} offen sc1")
                a.label(f"L_p2{R}_nr2")
                a.mark("r2")
            if j == J1 + 5:
                red_guard("nr3")
                n_ = a.vm_count(["#r2"], drop=False)
                if n_ is not None:
                    e(f"s_waitcnt vmcnt({n_})")
                e(f"s_mov_b64 exec, {1 << 5}")
                e(f"buffer_store_dwordx2 v[{V_TOK}:{V_TOK + 1}], v0, {WS}, 0 offen sc1")
                e("s_mov_b64 exec, -1")
                a.label(f"L_p2{R}_nr3")

        def interval(j):
            if DIAG and OPT.get('ts2'):
                if j == 0:
                    e("s_mov_b32 s74, 0")
                e("s_memrealtime s[76:77]")
                e("s_waitcnt lgkmcnt(0)")
                e("s_mov_b32 m0, s74")
                e("s_nop 0")
                e(f"v_writelane_b32 v{VT + 7}, s76, m0")
                e("s_add_u32 s74, s74, 1")
            main = []
            if j >= 1:
                for mt in range(4):
                    for nt in range(4):
                        D = vr(acc2(mt, nt) + (64 if j - 1 >= nact else 0))
                        for b in range(2):
                            C = "0" if (j in (1, nact + 1) and b == 0) else D
                            main.append(f"v_mfma_f32_16x16x32_bf16 {D}, {ar(FB(j - 1, b, nt))}, {ar(FA(j - 1, b, mt))}, {C}")
            pre(j)
            if j == J2 + 4:
                pm = []
                for i in range(4):
                    d = PD + 12 * i
                    pq = ar(128 + 4 * i)
                    pm += [f"v_mfma_f32_16x16x32_bf16 {vr(d + 8)}, {ar(152)}, {pq}, {vr(PEPS)}",
                           f"v_mfma_f32_16x16x32_bf16 {vr(d)}, {ar(144)}, {pq}, 0",
                           f"v_mfma_f32_16x16x32_bf16 {vr(d + 4)}, {ar(148)}, {pq}, 0"]
                main = pm + main
            rd = reads(j) if j < N else []
            dm = (dmaA(j + S - 1) + dmaB(j + S - 1)) if j + S - 1 < N else []
            for x in (late[TR * (j - TRS): TR * (j - TRS) + TR] if j >= TRS else []):
                dm.append(lambda x=x: a.vmem(x, "sl"))
            streams = []
            if nact + 1 <= j <= nact + 4:
                mt = j - (nact + 1)
                it = []
                if mt == 0:
                    a.wait(["g"])
                it.append(lambda mt=mt: e(f"v_sub_f32 v{VOMG + mt}, 1.0, v{VG + mt}"))
                for q in range(16):
                    it.append(lambda mt=mt, q=q: e(f"v_mul_f32 v{acc2(mt, 0) + q}, v{VOMG + mt}, v{acc2(mt, 0) + q}"))
                streams.append((it, 10, 30))
            n = max(len(main), 1)
            ex = capture(a, lambda: extra(j), chunk=1)
            if ex:
                streams.append((ex, 1, min(n * 0.97, 1 + 1.2 * len(ex))))
            schedule(a, main, [(rd, 0, n * 0.85), (dm, 0.5, n * 0.95)] + streams)
            post(j)
            if j < N:
                a.wait([f"D{j + 1}"] if j + 1 < N else [], lgkm=True)
                if j + 1 < N:
                    e("s_barrier")

        FT = OPT.get('ft', 0)
        SEL = 48
        SFO = P_SHD
        vo = VT + 4

        def ft_setup():
            if role == 0:
                e(f"s_lshl_b32 s{SFO}, s{STILE}, 16")
                e(f"s_lshl_b32 s{ST + 1}, s{SWAVE}, 13")
                e(f"s_add_u32 s{SFO}, s{SFO}, s{ST + 1}")
                e(f"s_add_u32 s{SFO}, s{SFO}, {PART_OFF}")
                return
            e(f"v_and_b32 v{t2}, 7, v{vi}")
            e(f"v_lshlrev_b32 v{t2}, 11, v{t2}")
            e(f"v_lshrrev_b32 v{t3}, 3, v{vi}")
            e(f"v_lshlrev_b32 v{t3}, 6, v{t3}")
            e(f"v_add_u32 v{t2}, v{t2}, v{t3}")
            e(f"v_bfe_u32 v{t3}, v{VL}, 4, 1")
            e(f"v_lshlrev_b32 v{t3}, 5, v{t3}")
            e(f"v_add_u32 v{t2}, v{t2}, v{t3}")
            e(f"v_lshrrev_b32 v{t3}, 5, v{VL}")
            e(f"v_lshlrev_b32 v{t3}, 4, v{t3}")
            e(f"v_add_u32 v{vo}, v{t2}, v{t3}")
            e(f"v_add_u32 v{vo + 1}, 16384, v{vo}")
            e(f"s_lshl_b32 s{SFO}, s{SMT}, 7")
            e(f"s_and_b32 s{ST + 1}, s{SWAVE}, 1")
            e(f"s_lshl_b32 s{ST + 1}, s{ST + 1}, 6")
            e(f"s_add_u32 s{SFO}, s{SFO}, s{ST + 1}")
            e(f"s_lshl_b32 s{SFO}, s{SFO}, 11")
            e(f"s_lshl_b32 s{ST + 1}, s{SNT}, 8")
            e(f"s_add_u32 s{SFO}, s{SFO}, s{ST + 1}")
            e(f"s_lshr_b32 s{ST + 1}, s{SWAVE}, 1")
            e(f"s_lshl_b32 s{ST + 1}, s{ST + 1}, 7")
            e(f"s_add_u32 s{SFO}, s{SFO}, s{ST + 1}")
            e(f"v_lshlrev_b32 v{t0}, 2, v{vG}")
            e(f"v_sub_u32 v{t0}, v{vi}, v{t0}")
            for r in (0, 1, 4, 5):
                e(f"v_mov_b32 v{SEL + r}, 0")
            e(f"v_mov_b32 v{t1}, 0x3f80")
            e(f"v_mov_b32 v{t2}, 0x3f800000")
            for pi in range(2):
                e(f"v_cmp_eq_u32 s[{ST + 4}:{ST + 5}], {2 * pi}, v{t0}")
                e(f"v_cmp_eq_u32 s[{ST + 6}:{ST + 7}], {2 * pi + 1}, v{t0}")
                e("s_nop 1")
                e(f"v_cndmask_b32 v{SEL + 2 + pi}, 0, v{t1}, s[{ST + 4}:{ST + 5}]")
                e(f"v_cndmask_b32 v{SEL + 2 + pi}, v{SEL + 2 + pi}, v{t2}, s[{ST + 6}:{ST + 7}]")
        ft_hook[0] = (N - 3, ft_setup) if FT else None

        def ft_last():
            M = []
            for mt in range(4):
                L = []
                for nt in range(4):
                    D = vr(acc2(mt, nt) + 64)
                    for b in range(2):
                        L.append(f"v_mfma_f32_16x16x32_bf16 {D}, {ar(FB(N - 1, b, nt))}, {ar(FA(N - 1, b, mt))}, {D}")
                M.append(L)
            done = {}
            if role == 1:
                Sx = []
                for mt in range(4):
                    L = []
                    for pr in range(2):
                        for h2 in range(2):
                            D = vr(acc2(mt, 2 * pr + h2))
                            L.append(f"v_mfma_f32_16x16x32_bf16 {D}, {vr(SEL + 2) if h2 == 0 else vr(SEL)}, {vr(VY + 8 * mt + 4 * pr)}, {D}")
                    Sx.append(L)
                n_ = a.vm_count(["PT"])
                main = M[0] + M[1] + M[2] + [f"s_waitcnt vmcnt({n_})"] + Sx[0] + Sx[1] + M[3] + Sx[2] + Sx[3]
                done = {0: 29, 1: 33, 2: 45, 3: 49}
            else:
                main = M[0] + M[1] + M[2] + M[3]
                done = {0: 8, 1: 16, 2: 24, 3: 32}
            items = []
            for mt in range(4):
                def ep(mt=mt):
                    if mt == 3:
                        e("s_nop 7")
                    for q in range(16):
                        b0 = acc2(mt, 0) + q
                        e(f"v_fmac_f32 v{b0}, v{VG + mt}, v{b0 + 64}")
                    for pr in range(2):
                        b0 = acc2(mt, 2 * pr)
                        for q in range(4):
                            e(f"v_cvt_pk_bf16_f32 v{b0 + q}, v{b0 + 2 * q}, v{b0 + 2 * q + 1}")
                        if role == 0:
                            q = 2 * mt + pr
                            a.vmem(f"buffer_store_dwordx4 {vr(b0)}, v{VL16}, {WS}, s{SFO} offen offset:{1024 * (q & 3)} sc1", "fs")
                            if q == 3:
                                e(f"s_add_u32 s{SFO}, s{SFO}, 4096")
                    if role == 0:
                        return
                    e("s_nop 1")
                    for pr in range(2):
                        b0 = acc2(mt, 2 * pr)
                        e(f"v_permlane16_swap_b32 v{b0}, v{b0 + 2}")
                        e(f"v_permlane16_swap_b32 v{b0 + 1}, v{b0 + 3}")
                    q0, q1 = acc2(mt, 0), acc2(mt, 2)
                    tq = q0 + 4
                    for r in range(4):
                        e(f"v_mov_b32 v{tq + r}, v{q0 + r}")
                    for r in range(4):
                        e(f"v_mov_b32_dpp v{q0 + r}, v{q1 + r} row_ror:8 row_mask:0xf bank_mask:0xc")
                    for r in range(4):
                        e(f"v_mov_b32_dpp v{q1 + r}, v{tq + r} row_ror:8 row_mask:0xf bank_mask:0x3")
                    a.vmem(f"buffer_store_dwordx4 {vr(q0)}, v{vo}, s[{SOUT}:{SOUT + 3}], s{SFO} offen sc1", "fs")
                    a.vmem(f"buffer_store_dwordx4 {vr(q1)}, v{vo + 1}, s[{SOUT}:{SOUT + 3}], s{SFO} offen sc1", "fs")
                    if mt < 3:
                        e(f"s_add_u32 s{SFO}, s{SFO}, 32768")
                for k_, fn in enumerate(capture(a, ep, chunk=1)):
                    items.append((fn, done[mt] + 8 + k_ / 2.5))
            schedule(a, main, [(items, 0, 0)])
            stamp(a, 5)
            if role == 0:
                e("s_waitcnt vmcnt(0)")
                setflag(3)
            stamp(a, 6)
            if DIAG:
                e("s_waitcnt vmcnt(0)")
            stamp(a, 7)
            stamp_dump(a, 1, 8, SWAVE, S_PTR + 20, S_PTR + 21, VT + 5)
            e("s_endpgm")

        iters = []
        for j in range(N + (0 if FT else 1)):
            n_ = len(a.lines)
            if j == 4:
                stamp(a, 3)
            if j == nact:
                stamp(a, 4)
            interval(j)
            iters.append(a.lines[n_:])
            del a.lines[n_:]
        fold_loops(a, iters, PERIOD, SCNT, f"p2{R}")
        if FT:
            assert nact + 4 < N
            ft_last()
            return
        stamp(a, 5)
        if role == 0:
            e(f"s_lshl_b32 s{ST}, s{STILE}, 16")
            e(f"s_lshl_b32 s{ST + 1}, s{SWAVE}, 13")
            e(f"s_add_u32 s{ST}, s{ST}, s{ST + 1}")
            e(f"s_add_u32 s{ST}, s{ST}, {PART_OFF}")
            e("s_nop 7")
        else:
            vo = VT + 4
            if OPT.get('fl'):
                e(f"v_and_b32 v{t2}, 7, v{vi}")
                e(f"v_lshlrev_b32 v{t2}, 11, v{t2}")
                e(f"v_lshrrev_b32 v{t3}, 3, v{vi}")
                e(f"v_lshlrev_b32 v{t3}, 6, v{t3}")
                e(f"v_add_u32 v{t2}, v{t2}, v{t3}")
            else:
                e(f"v_lshlrev_b32 v{t2}, 11, v{vi}")
            e(f"v_bfe_u32 v{t3}, v{VL}, 4, 1")
            e(f"v_lshlrev_b32 v{t3}, 5, v{t3}")
            e(f"v_add_u32 v{t2}, v{t2}, v{t3}")
            e(f"v_lshrrev_b32 v{t3}, 5, v{VL}")
            e(f"v_lshlrev_b32 v{t3}, 4, v{t3}")
            e(f"v_add_u32 v{vo}, v{t2}, v{t3}")
            e(f"v_add_u32 v{vo + 1}, 16384, v{vo}")
            e(f"s_lshl_b32 s{ST}, s{SMT}, 7")
            e(f"s_and_b32 s{ST + 1}, s{SWAVE}, 1")
            e(f"s_lshl_b32 s{ST + 1}, s{ST + 1}, 6")
            e(f"s_add_u32 s{ST}, s{ST}, s{ST + 1}")
            e(f"s_lshl_b32 s{ST}, s{ST}, 11")
            e(f"s_lshl_b32 s{ST + 1}, s{SNT}, 8")
            e(f"s_add_u32 s{ST}, s{ST}, s{ST + 1}")
            e(f"s_lshr_b32 s{ST + 1}, s{SWAVE}, 1")
            e(f"s_lshl_b32 s{ST + 1}, s{ST + 1}, 7")
            e(f"s_add_u32 s{ST}, s{ST}, s{ST + 1}")
            if OPT.get('fl') == 2:
                vw_, vr_ = 116, 118
                e(f"s_lshl_b32 s{ST + 1}, s{SWAVE}, 13")
                e(f"s_add_u32 s{ST + 1}, s{ST + 1}, {((N - 2) % S) * SLOT}")
                e(f"v_and_b32 v{t0}, 1, v{vG}")
                e(f"v_lshlrev_b32 v{t0}, 1, v{t0}")
                e(f"v_lshrrev_b32 v{t1}, 1, v{vG}")
                e(f"v_add_u32 v{t0}, v{t0}, v{t1}")
                e(f"v_and_b32 v{t1}, 7, v{vi}")
                e(f"v_xor_b32 v{t0}, v{t0}, v{t1}")
                e(f"v_lshlrev_b32 v{t1}, 7, v{vi}")
                e(f"v_add_u32 v{t1}, s{ST + 1}, v{t1}")
                e(f"v_lshlrev_b32 v{t2}, 4, v{t0}")
                e(f"v_add_u32 v{vw_}, v{t1}, v{t2}")
                e(f"v_xor_b32 v{t2}, 64, v{t2}")
                e(f"v_add_u32 v{vw_ + 1}, v{t1}, v{t2}")
                e(f"v_lshrrev_b32 v{t0}, 3, v{VL}")
                e(f"v_and_b32 v{t1}, 7, v{VL}")
                e(f"v_xor_b32 v{t2}, v{t0}, v{t1}")
                e(f"v_lshlrev_b32 v{t2}, 4, v{t2}")
                e(f"v_lshlrev_b32 v{t3}, 7, v{t0}")
                e(f"v_add3_u32 v{vr_}, v{t2}, v{t3}, s{ST + 1}")
                e(f"v_lshlrev_b32 v{t0}, 11, v{t0}")
                e(f"v_lshlrev_b32 v{t1}, 4, v{t1}")
                e(f"v_add_u32 v{vo}, v{t0}, v{t1}")
            a.wait(["PT"])
        for mt in range(4):
            sel = "op_sel:[1,0,0] op_sel_hi:[1,1,1]" if mt & 1 else "op_sel_hi:[0,1,1]"
            for q in range(8):
                b0 = acc2(mt, 0) + 2 * q
                e(f"v_pk_fma_f32 {vr(b0, 2)}, {vr(VG + (mt & 2), 2)}, {vr(b0 + 64, 2)}, {vr(b0, 2)} {sel}")
            if role == 0:
                for h2 in range(2):
                    q = 2 * mt + h2
                    b0 = AC + 8 * q
                    for r in range(4):
                        e(f"v_cvt_pk_bf16_f32 v{b0 + r}, v{b0 + 2 * r}, v{b0 + 2 * r + 1}")
                    e(f"buffer_store_dwordx4 {vr(b0)}, v{VL16}, {WS}, s{ST} offen offset:{1024 * (q & 3)} sc1")
                    if q == 3:
                        e(f"s_add_u32 s{ST}, s{ST}, 4096")
            else:
                for q in range(8):
                    p0 = VY + 8 * mt + q
                    u = 48 + 2 * q
                    e(f"v_lshlrev_b32 v{u}, 16, v{p0}")
                    e(f"v_and_b32 v{u + 1}, 0xffff0000, v{p0}")
                for q in range(8):
                    b0 = acc2(mt, 0) + 2 * q
                    e(f"v_pk_add_f32 {vr(b0, 2)}, {vr(b0, 2)}, {vr(48 + 2 * q, 2)}")
                for pr in range(2):
                    b0 = acc2(mt, 2 * pr)
                    for q in range(4):
                        e(f"v_cvt_pk_bf16_f32 v{b0 + q}, v{b0 + 2 * q}, v{b0 + 2 * q + 1}")
                e("s_nop 1")
                for pr in range(2):
                    b0 = acc2(mt, 2 * pr)
                    e(f"v_permlane16_swap_b32 v{b0}, v{b0 + 2}")
                    e(f"v_permlane16_swap_b32 v{b0 + 1}, v{b0 + 3}")
                if OPT.get('fl') == 2:
                    for pr in range(2):
                        e(f"ds_write_b128 v{vw_ + pr}, {vr(acc2(mt, 2 * pr))} offset:{2048 * mt}")
                    continue
                elif OPT.get('fl'):
                    q0, q1 = acc2(mt, 0), acc2(mt, 2)
                    tq = q0 + 4
                    for r in range(4):
                        e(f"v_mov_b32 v{tq + r}, v{q0 + r}")
                    for r in range(4):
                        e(f"v_mov_b32_dpp v{q0 + r}, v{q1 + r} row_ror:8 row_mask:0xf bank_mask:0xc")
                    for r in range(4):
                        e(f"v_mov_b32_dpp v{q1 + r}, v{tq + r} row_ror:8 row_mask:0xf bank_mask:0x3")
                    e(f"buffer_store_dwordx4 {vr(q0)}, v{vo}, s[{SOUT}:{SOUT + 3}], s{ST} offen {OPT.get('ost', '')}")
                    e(f"buffer_store_dwordx4 {vr(q1)}, v{vo + 1}, s[{SOUT}:{SOUT + 3}], s{ST} offen {OPT.get('ost', '')}")
                else:
                    for pr in range(2):
                        b0 = acc2(mt, 2 * pr)
                        e(f"buffer_store_dwordx4 {vr(b0)}, v{vo}, s[{SOUT}:{SOUT + 3}], s{ST} offen offset:{64 * pr} {OPT.get('ost', '')}")
                if mt < 3:
                    e(f"s_add_u32 s{ST}, s{ST}, 32768")
        if role == 1 and OPT.get('fl') == 2:
            e("s_waitcnt lgkmcnt(0)")
            for q in range(8):
                e(f"ds_read_b128 {vr(AC + 64 + 4 * q)}, v{vr_} offset:{1024 * q}")
            for q in range(8):
                e(f"s_waitcnt lgkmcnt({7 - q})")
                e(f"buffer_store_dwordx4 {vr(AC + 64 + 4 * q)}, v{vo}, s[{SOUT}:{SOUT + 3}], s{ST} offen {OPT.get('ost', '')}")
                if q < 7:
                    e(f"s_add_u32 s{ST}, s{ST}, 16384")
        if role == 0:
            e("s_waitcnt vmcnt(0)")
            setflag(3)
        stamp(a, 6)
        if DIAG and OPT.get('ts2'):
            e(f"s_mov_b32 s76, s{S_PTR + 20}")
            e(f"s_and_b32 s77, s{S_PTR + 21}, 0xffff")
            e(f"s_mov_b32 s78, 0x4000000")
            e(f"s_mov_b32 s79, 0x20000")
            e(f"s_lshl_b32 s75, s2, 2")
            e(f"s_add_u32 s75, s75, s{S_WAVE}")
            e(f"s_lshl_b32 s75, s75, 8")
            e(f"s_add_u32 s75, s75, {DIAG_OFF + 0x200000}")
            e(f"v_lshlrev_b32 v{VT}, 2, v{VL}")
            e(f"buffer_store_dword v{VT + 7}, v{VT}, s[76:79], s75 offen")
        if DIAG:
            e("s_waitcnt vmcnt(0)")
        stamp(a, 7)
        stamp_dump(a, 1, 8, SWAVE, S_PTR + 20, S_PTR + 21, VT + 5)
        e("s_endpgm")

    body(1)
    a.label("L_p2_r0")
    a.vm = vm_save
    body(0)


def fix_hazards(lines):
    out = []
    for i, ln in enumerate(lines):
        out.append(ln)
        if " m0," in ln and i + 1 < len(lines) and lines[i + 1].rstrip().endswith("lds"):
            out.append("  s_nop 0")
    return out


def gen_spin():
    a = Asm()
    e = a.e
    spec = OPT['spin']
    A_, B_, M = spec.split(",")
    a.lines.append(".globl spin_kernel\n.p2align 8\n.type spin_kernel,@function\nspin_kernel:")
    e("s_cmp_lg_u32 s2, 0")
    e("s_cbranch_scc1 L_spin_end")
    e("s_load_dwordx2 s[4:5], s[0:1], 80")
    e("v_lshlrev_b32 v1, 7, v0")
    e("s_waitcnt lgkmcnt(0)")
    e("s_mov_b32 s8, s4\ns_and_b32 s9, s5, 0xffff\ns_mov_b32 s10, 0x4000000\ns_mov_b32 s11, 0x20000")

    def red(sp, sdst):
        k, st, op = sp.split(".")
        base = DIAG_OFF + int(k) * 0x100000 + 8 * int(st) + 4
        for i in range(16):
            e(f"s_mov_b32 s12, {base + i * 8192}")
            e(f"buffer_load_dword v{8 + i}, v1, s[8:11], s12 offen")
        e("s_waitcnt vmcnt(0)")
        for i in range(1, 16):
            e(f"v_{op}_u32 v8, v8, v{8 + i}")
        e("s_nop 1")
        e(f"v_readlane_b32 s{sdst}, v8, 0")
        for l in range(1, 64):
            e(f"v_readlane_b32 s13, v8, {l}")
            e("s_nop 0")
            e(f"s_{op}_u32 s{sdst}, s{sdst}, s13")
    red("0.0.min", 20)
    red(A_, 21)
    red(B_, 22)
    e("s_sub_u32 s22, s22, s21")
    e(f"s_mul_i32 s22, s22, {M}")
    e("s_add_u32 s22, s22, 12000")
    e("s_min_u32 s22, s22, 90000")
    a.label("L_spin")
    e("s_memrealtime s[14:15]")
    e("s_waitcnt lgkmcnt(0)")
    e("s_sub_u32 s16, s14, s20")
    e("s_cmp_lt_u32 s16, s22")
    e("s_cbranch_scc1 L_spin")
    a.label("L_spin_end")
    e("s_endpgm")
    return a.lines


def kd(name, nfv, accum):
    return f""".amdhsa_kernel {name}
  .amdhsa_next_free_vgpr {nfv}
  .amdhsa_next_free_sgpr 102
  .amdhsa_accum_offset {accum}
  .amdhsa_group_segment_fixed_size 0
  .amdhsa_kernarg_size 88
  .amdhsa_user_sgpr_count 2
  .amdhsa_user_sgpr_kernarg_segment_ptr 1
  .amdhsa_system_sgpr_workgroup_id_x 1
.end_amdhsa_kernel"""


def main(path):
    hdr = open(f"cdna_kernels/{NAME}.s.ref").read().split("; Override launch")[0]
    out = [hdr.rstrip("\n")]
    kn = NAME + "_kernel"
    if OPT.get('spin'):
        out.append(f"; @launch kernel={kn} grid=(256,1,1) block=(256,1,1) lds={K2_LDS()}")
        out.append("; @launch kernel=spin_kernel grid=(1,1,1) block=(64,1,1) lds=0")
    else:
        out.append(f"; @launch grid=(256,1,1) block=(256,1,1) lds={K2_LDS()}")
    out.append('.amdgcn_target "amdgcn-amd-amdhsa--gfx950"')
    out.append(".text")
    out += [ln.replace("KNAME", kn) for ln in fix_hazards(gen_k1())]
    if OPT.get('spin'):
        out += gen_spin()
    out.append('.section .rodata,"a"')
    if OPT.get('spin'):
        out.append(".p2align 6")
        out.append(kd("spin_kernel", 32, 32))
    out.append(".p2align 6")
    out.append(kd(kn, 512 if OPT.get("pb") else 416, 256))
    open(path, "w").write("\n".join(out) + "\n")


if __name__ == "__main__":
    if "--dbgout" in sys.argv:
        DBGOUT = True
        sys.argv.remove("--dbgout")
    if "--diag" in sys.argv:
        DIAG = True
        sys.argv.remove("--diag")
    for arg in list(sys.argv):
        if "=" in arg:
            k_, v_ = arg.split("=")
            OPT[k_] = int(v_) if v_.isdigit() else v_.replace("+", " ")
            sys.argv.remove(arg)
    main(sys.argv[1] if len(sys.argv) > 1 else f"cdna_kernels/{NAME}.s")
```

```python
import sys

NAME = "gated_mix__linear_attn_block__dense_activation_mish__prompt"

AF_OFF = 0
AF_BYTES = 16 * 144 * 8 * 1024
KVP_OFF = AF_BYTES
KVP_BYTES = 16 * 8 * 12 * 1024
KVF_OFF = KVP_OFF + KVP_BYTES
KVF_BYTES = 32 * 3 * 1024
G_OFF = KVF_OFF + KVF_BYTES
PART_OFF = G_OFF + 8192
OF_OFF = PART_OFF + 128 * 65536
FLG_OFF = OF_OFF + 16 * 32 * 8192
FE_OFF = FLG_OFF - 0 + 32768 + 128 * 256
FA_OFF = FLG_OFF
FQ_OFF = FA_OFF + 8192
FO_OFF = FQ_OFF + 8192
FP_OFF = FO_OFF + 8192
FK_OFF = FE_OFF + 8192
WS_USED = FK_OFF + 2048
assert FP_OFF + 128 * 256 <= FE_OFF
V_TOK = 14

DIAG = False
DBGOUT = False
OPT = dict(k1a="", k1b="", k2a="", k2b="", st="sc1", ost="sc1", fl=1, pf=2, xpf=0, n0=34, o0=6, tr=5, cpf=2, map=0, fepos=1, S=4, pbf=1, pj=1, pprio=0, cprio=0, rdend=26)
DIAG_OFF = 0x2000000
EPS_HEX = "0x358637bd"
L2E_HEX = "0x3fb8aa3b"


class Asm:
    def __init__(self):
        self.lines = []
        self.vm = []

    def e(self, s):
        for ln in s.split("\n"):
            self.lines.append("  " + ln.strip())

    def label(self, s):
        self.lines.append(s + ":")

    def vmem(self, s, tag):
        self.e(s)
        self.vm.append(tag)

    def mark(self, tag):
        self.vm.append("#" + tag)

    def vm_count(self, tags, drop=True):
        idx = -1
        for i, t in enumerate(self.vm):
            if t in tags:
                idx = i
        if idx < 0:
            return None
        n = sum(1 for t in self.vm[idx + 1:] if not t.startswith("#"))
        if drop:
            self.vm = self.vm[idx + 1:]
        assert n <= 63, n
        return n

    def wait(self, tags=(), lgkm=False):
        n = self.vm_count(tags) if tags else None
        parts = []
        if n is not None:
            parts.append(f"vmcnt({n})")
        if lgkm:
            parts.append("lgkmcnt(0)")
        if parts:
            self.e("s_waitcnt " + " ".join(parts))


def stamp(a, idx, sbase=80):
    if not DIAG:
        return
    a.e(f"s_memtime s[{sbase - 4}:{sbase - 3}]")
    a.e(f"s_memrealtime s[{sbase - 2}:{sbase - 1}]")
    a.e("s_waitcnt lgkmcnt(0)")
    a.e(f"s_mov_b32 s{sbase + 2 * idx}, s{sbase - 4}")
    a.e(f"s_mov_b32 s{sbase + 2 * idx + 1}, s{sbase - 2}")


def stamp_dump(a, kidx, n, swave, sptr_lo, sptr_hi, vtmp, sbase=80):
    if not DIAG:
        return
    e = a.e
    e(f"s_mov_b32 s{sbase - 4}, s{sptr_lo}")
    e(f"s_and_b32 s{sbase - 3}, s{sptr_hi}, 0xffff")
    e(f"s_mov_b32 s{sbase - 2}, 0x4000000")
    e(f"s_mov_b32 s{sbase - 1}, 0x20000")
    e(f"s_lshl_b32 s75, s2, 2")
    e(f"s_add_u32 s75, s75, s{swave}")
    e(f"s_lshl_b32 s75, s75, 7")
    e(f"s_add_u32 s75, s75, {DIAG_OFF + kidx * 0x100000}")
    e(f"v_mov_b32 v{vtmp}, 0")
    e("s_mov_b64 exec, 1")
    for i in range(2 * n):
        e(f"v_mov_b32 v{vtmp + 1}, s{sbase + i}")
        e(f"buffer_store_dword v{vtmp + 1}, v{vtmp}, s[{sbase - 4}:{sbase - 1}], s75 offen offset:{4 * i}")
        e("s_nop 1")
    e("s_mov_b64 exec, -1")
    if DBGOUT:
        lab = f"L_dbg_{len(a.lines)}"
        e(f"s_cmp_lg_u32 s2, 1")
        e(f"s_cbranch_scc1 {lab}")
        e(f"s_cmp_lg_u32 s{swave}, 0")
        e(f"s_cbranch_scc1 {lab}")
        e(f"s_mov_b32 s{sbase - 4}, s{sptr_lo - 2}")
        e(f"s_and_b32 s{sbase - 3}, s{sptr_hi - 2}, 0xffff")
        e(f"s_mov_b32 s{sbase - 2}, 256")
        e("s_mov_b64 exec, 1")
        for i in range(n):
            e(f"v_mov_b32 v{vtmp + 1}, s{sbase + 2 * i + 1}")
            e(f"buffer_store_dword v{vtmp + 1}, v{vtmp}, s[{sbase - 4}:{sbase - 1}], 0 offen offset:{4 * i + 32 * kidx}")
            e("s_nop 1")
        e("s_mov_b64 exec, -1")
        a.label(lab)


def vr(b, n=4):
    return f"v[{b}:{b + n - 1}]"


def ar(b, n=4):
    return f"a[{b}:{b + n - 1}]"


def interleave(a, mf, fillers, start=0, end=None):
    n = len(mf)
    if end is None:
        end = n
    nf = len(fillers)
    pos = [start + (j * (end - start)) // max(nf, 1) for j in range(nf)]
    j = 0
    for m in range(n):
        a.e(mf[m])
        while j < nf and pos[j] <= m:
            f = fillers[j]
            f()
            j += 1
    while j < nf:
        fillers[j]()
        j += 1


def capture(a, fn, chunk=2):
    n0_ = len(a.lines)
    vm0 = list(a.vm)
    fn()
    lines = a.lines[n0_:]
    tags = a.vm[len(vm0):]
    del a.lines[n0_:]
    a.vm = vm0
    items = []
    cur = []
    depth = 0
    ti = 0
    for ln in lines:
        cur.append(ln)
        if "s_cbranch" in ln or "s_mov_b64 exec, " in ln and "-1" not in ln or "s_cmp" in ln or "s_getpc" in ln or "s_sub_u32" in ln and "KNAME" in ln:
            depth = 1
        if ln.endswith(":") and not ln.startswith(" ") and "L_pc" not in ln or "s_mov_b64 exec, -1" in ln and not any("s_cbranch" in x for x in cur) or "s_cselect" in ln or "s_subb_u32" in ln:
            depth = 0
        if depth == 0 and len(cur) >= chunk:
            items.append(cur)
            cur = []
    if cur:
        items.append(cur)
    out = []
    for it in items:
        guarded = any("s_cbranch" in x for x in it)
        nv = 0 if guarded else sum(1 for x in it if x.strip().startswith(("buffer_", "global_")))
        tg = tags[ti:ti + nv]
        ti += nv

        def emit(it=it, tg=tg):
            a.lines.extend(it)
            a.vm.extend(tg)
        out.append(emit)
    rest = tags[ti:]
    assert all(t.startswith("#") for t in rest), (ti, tags)
    if rest:
        out.append(lambda rest=rest: a.vm.extend(rest))
    return out


def srd(a, d, lo, hi, nbytes, bias=0):
    if bias:
        a.e(f"s_sub_u32 s{d}, s{lo}, {bias}")
        a.e(f"s_subb_u32 s{d + 1}, s{hi}, 0")
        a.e(f"s_and_b32 s{d + 1}, s{d + 1}, 0xffff")
    else:
        a.e(f"s_mov_b32 s{d}, s{lo}")
        a.e(f"s_and_b32 s{d + 1}, s{hi}, 0xffff")
    a.e(f"s_mov_b32 s{d + 2}, {nbytes + bias}")
    a.e(f"s_mov_b32 s{d + 3}, 0x20000")


K1_BSLOT = 13312
K1_AREA = 3328
K1_ABASE = 4 * K1_BSLOT
K1_LDS = K1_ABASE + 4 * 16384
ACC0 = 48


def acc(t, mt):
    return ACC0 + 16 * t + 4 * mt


V_LANE = 1
V_ARD = 2
V_QRD = 4
V_HRD = 8
V_ADMA = 9
V_BDMA = 13
V_L16 = 17
V_T = 18
S_X, S_Q, S_W1, S_WS, S_MISC = 4, 8, 12, 16, 20
S_WAVE, S_RB, S_P = 24, 25, 26
S_OFFA, S_OFFA2, S_OFFQ, S_OFFH = 27, 28, 29, 30
S_M0B, S_M0A = 31, 32
S_CNT = 33
S_QM = 34
S_PTR = 36
S_L2E = 58
S_T = 60
S_AFB = 72
S_GROW = 73
S_PO1, S_PO2 = 74, 3
S_PT, S_PTE = 100, 101
S_CB = 100
S_PF1, S_PF2 = 96, 20


def bset(s, t):
    return 52 * s + 4 * t


ASET = {"X": 104, "Y": 120, "Z": 136}


def k1_body(a, typ):
    T = "A" if typ == 0 else "B"
    nq = 8 if typ == 0 else 4
    nh = 13 - nq
    Ph = 2 * nh
    HB = 256 * nq
    e = a.e
    vi, vG, t0, t1, t2, t3 = V_T, V_T + 1, V_T + 2, V_T + 3, V_T + 4, V_T + 5
    e(f"v_and_b32 v{vi}, 15, v{V_LANE}")
    e(f"v_lshrrev_b32 v{vG}, 4, v{V_LANE}")
    e(f"s_mul_i32 s{S_T + 2}, s{S_P}, 448")
    if typ:
        e(f"s_add_u32 s{S_T + 2}, s{S_T + 2}, 160")

    e(f"s_lshr_b32 s{S_T + 8}, s{S_WAVE}, 1")
    e(f"s_lshl_b32 s{S_T + 8}, s{S_T + 8}, 4")
    e(f"s_and_b32 s{S_T + 9}, s{S_WAVE}, 1")
    e(f"s_lshl_b32 s{S_T + 9}, s{S_T + 9}, 2")
    e(f"s_add_u32 s{S_T + 8}, s{S_T + 8}, s{S_T + 9}")

    def krow(dst, kp, tmp):
        e(f"v_lshrrev_b32 v{tmp}, 2, v{kp}")
        e(f"v_lshlrev_b32 v{tmp}, 3, v{tmp}")
        e(f"v_and_b32 v{dst}, 3, v{kp}")
        e(f"v_add3_u32 v{dst}, v{dst}, v{tmp}, s{S_T + 8}")

    e(f"v_lshrrev_b32 v{t0}, 3, v{V_LANE}")
    krow(t1, t0, t2)
    e(f"v_mul_u32_u24 v{t1}, 6144, v{t1}")
    e(f"v_lshrrev_b32 v{t2}, 1, v{t0}")
    e(f"v_and_b32 v{t2}, 3, v{t2}")
    e(f"v_lshlrev_b32 v{t2}, 1, v{t2}")
    e(f"v_and_b32 v{t3}, 7, v{V_LANE}")
    e(f"v_xor_b32 v{t3}, v{t3}, v{t2}")
    e(f"v_lshlrev_b32 v{t3}, 4, v{t3}")
    e(f"v_add_u32 v{t1}, v{t1}, v{t3}")
    e(f"s_lshl_b32 s{S_T + 9}, s{S_P}, 7")
    e(f"s_add_u32 s{S_T + 9}, s{S_T + 9}, {4096 + (2048 if typ == 0 else 0)}")
    e(f"v_add_u32 v{V_BDMA}, s{S_T + 9}, v{t1}")
    if typ == 0:
        e(f"v_add_u32 v{V_BDMA + 1}, {2048 - 1024}, v{V_BDMA}")
    hins = [(2, 0), (3, 64)] if typ == 0 else [(1, 0), (2, 64), (3, 128)]
    magic, sh = (205, 11) if Ph == 10 else (57, 10)
    for s_ in range(8 * Ph + 64):
        if s_ < 8 * Ph:
            assert (s_ * magic) >> sh == s_ // Ph
    for slot, s0 in hins:
        e(f"v_add_u32 v{t0}, {s0}, v{V_LANE}")
        e(f"v_mul_u32_u24 v{t1}, {magic}, v{t0}")
        e(f"v_lshrrev_b32 v{t1}, {sh}, v{t1}")
        e(f"v_mul_u32_u24 v{t2}, {Ph}, v{t1}")
        e(f"v_sub_u32 v{t0}, v{t0}, v{t2}")
        e(f"v_and_b32 v{t1}, 7, v{t1}")
        krow(t2, t1, t3)
        e(f"v_mul_u32_u24 v{t2}, 7168, v{t2}")
        e(f"v_lshlrev_b32 v{t0}, 4, v{t0}")
        e(f"v_add3_u32 v{t0}, v{t0}, v{t2}, s{S_T + 2}")
        e(f"v_add_u32 v{V_BDMA + slot}, {4096 - 1024 * slot}, v{t0}")
    e(f"s_lshl_b32 s{S_T + 9}, s{S_RB}, 8")
    e(f"s_lshl_b32 s{S_T + 10}, s{S_WAVE}, 6")
    e(f"s_add_u32 s{S_T + 9}, s{S_T + 9}, s{S_T + 10}")
    e(f"s_lshl_b32 s{S_T + 9}, s{S_T + 9}, 11")
    e(f"v_lshrrev_b32 v{t0}, 3, v{V_LANE}")
    e(f"v_lshrrev_b32 v{t1}, 1, v{t0}")
    e(f"v_and_b32 v{t2}, 7, v{V_LANE}")
    e(f"v_xor_b32 v{t2}, v{t2}, v{t1}")
    e(f"v_lshlrev_b32 v{t0}, 11, v{t0}")
    e(f"v_add_u32 v{t0}, s{S_T + 9}, v{t0}")
    for j in range(4):
        if j & 1:
            e(f"v_xor_b32 v{t3}, 4, v{t2}")
            e(f"v_lshlrev_b32 v{t3}, 4, v{t3}")
        else:
            e(f"v_lshlrev_b32 v{t3}, 4, v{t2}")
        e(f"v_add_u32 v{t3}, v{t3}, v{t0}")
        e(f"v_add_u32 v{V_ADMA + j}, {j * (16384 - 1024)}, v{t3}")
    e(f"s_mul_i32 s{S_M0B}, s{S_WAVE}, {K1_AREA}")
    e(f"s_lshl_b32 s{S_M0A}, s{S_WAVE}, 14")
    e(f"s_add_u32 s{S_M0A}, s{S_M0A}, {K1_ABASE}")
    e(f"s_mov_b32 s{S_OFFA}, 0")
    e(f"s_mov_b32 s{S_OFFA2}, 65536")
    e(f"s_mov_b32 s{S_OFFQ}, 0")
    e(f"s_mov_b32 s{S_OFFH}, 0")
    e(f"s_mov_b32 s{S_QM}, 0xffff")
    e(f"s_mov_b32 s{S_QM + 1}, 0")

    def dmaB(tt):
        slot = tt % 4
        tag = f"B{tt}"
        f = []
        srcs = [(S_Q, S_OFFQ), (S_Q, S_OFFQ) if typ == 0 else (S_W1, S_OFFH), (S_W1, S_OFFH)]
        f.append(lambda: e(f"s_add_u32 m0, s{S_M0B}, {slot * K1_BSLOT}"))
        for j in range(3):
            sr, so = srcs[j]
            f.append(lambda j=j, sr=sr, so=so: a.vmem(
                f"buffer_load_dwordx4 v{V_BDMA + j}, s[{sr}:{sr + 3}], s{so} offen offset:{1024 * j} {OPT['k1b']} lds", tag))

        def q():
            e(f"s_mov_b64 exec, s[{S_QM}:{S_QM + 1}]")
            a.vmem(f"buffer_load_dwordx4 v{V_BDMA + 3}, s[{S_W1}:{S_W1 + 3}], s{S_OFFH} offen offset:3072 {OPT['k1b']} lds", tag)
            e("s_mov_b64 exec, -1")
        f.append(q)
        f.append(lambda: e(f"s_add_u32 s{S_OFFQ}, s{S_OFFQ}, {32 * 6144}"))
        f.append(lambda: e(f"s_add_u32 s{S_OFFH}, s{S_OFFH}, {32 * 7168}"))
        return f

    def dmaA(aa):
        slot = aa % 2
        tag = f"A{aa}"
        f = []
        for half in range(2):
            so = S_OFFA if half == 0 else S_OFFA2
            f.append(lambda half=half: e(f"s_add_u32 m0, s{S_M0A}, {slot * 8192 + half * 4096}"))
            for j in range(4):
                f.append(lambda j=j, so=so: a.vmem(
                    f"buffer_load_dwordx4 v{V_ADMA + j}, s[{S_X}:{S_X + 3}], s{so} offen offset:{1024 * j} {OPT['k1a']} lds", tag))
        f.append(lambda: e(f"s_add_u32 s{S_OFFA}, s{S_OFFA}, 128"))
        f.append(lambda: e(f"s_add_u32 s{S_OFFA2}, s{S_OFFA2}, 128"))
        return f

    def run_seq(fl):
        for fn in fl:
            n0 = len(a.lines)
            fn()
            if " m0," in a.lines[-1] and len(a.lines) == n0 + 1:
                e("s_nop 0")

    e("s_waitcnt lgkmcnt(0)")
    srd(a, S_Q, S_PTR + 2, S_PTR + 3, 1024 * 3072 * 2, bias=4096)
    srd(a, S_W1, S_PTR + 8, S_PTR + 9, 1024 * 3584 * 2, bias=4096)
    srd(a, S_X, S_PTR + 0, S_PTR + 1, 2048 * 1024 * 2)
    if not OPT.get('spin'):
        stamp(a, 0)
    if OPT.get('kst'):
        stamp(a, 4)
    run_seq(dmaB(0))
    run_seq(dmaA(0))
    srd(a, S_T + 4, S_PTR + 10, S_PTR + 11, 7168)
    e(f"v_lshlrev_b32 v{t1}, 3, v{vG}")
    for j in range(nh):
        a.vmem(f"buffer_load_dwordx2 {vr(acc(nq + j, 3), 2)}, v{t1}, s[{S_T + 4}:{S_T + 7}], s{S_T + 2} offen offset:{32 * j}", "bias")
    run_seq(dmaB(1))
    if not OPT.get('ramp'):
        run_seq(dmaB(2))
        run_seq(dmaA(1))
        run_seq(dmaB(3))
    if OPT.get('ramp') == 2:
        run_seq(dmaA(1))
    if OPT.get('ramp') == 3:
        run_seq(dmaB(2))
        run_seq(dmaA(1))
    e(f"v_lshrrev_b32 v{t0}, 3, v{vi}")
    e(f"v_lshlrev_b32 v{t0}, 6, v{t0}")
    e(f"v_and_b32 v{t1}, 7, v{vi}")
    e(f"v_lshlrev_b32 v{t1}, 3, v{t1}")
    e(f"v_add_u32 v{t0}, v{t0}, v{t1}")
    e(f"v_lshrrev_b32 v{t1}, 1, v{vi}")
    e(f"v_xor_b32 v{t1}, v{t1}, v{vG}")
    e(f"v_add_u32 v{t2}, v{t0}, v{t1}")
    e(f"v_lshlrev_b32 v{t2}, 4, v{t2}")
    e(f"v_add_u32 v{V_ARD}, s{S_M0A}, v{t2}")
    e(f"v_xor_b32 v{t1}, 4, v{t1}")
    e(f"v_add_u32 v{t2}, v{t0}, v{t1}")
    e(f"v_lshlrev_b32 v{t2}, 4, v{t2}")
    e(f"v_add_u32 v{V_ARD + 1}, s{S_M0A}, v{t2}")
    e(f"v_and_b32 v{t0}, 1, v{vG}")
    e(f"v_lshlrev_b32 v{t0}, 2, v{t0}")
    e(f"v_lshrrev_b32 v{t1}, 2, v{vi}")
    e(f"v_add_u32 v{t0}, v{t0}, v{t1}")
    e(f"v_lshrrev_b32 v{t1}, 1, v{vG}")
    e(f"v_mul_u32_u24 v{t1}, {2 * K1_AREA}, v{t1}")
    e(f"v_and_b32 v{t2}, 3, v{vi}")
    e(f"v_lshlrev_b32 v{t2}, 3, v{t2}")
    e(f"v_add_u32 v{t1}, v{t1}, v{t2}")
    e(f"v_mul_u32_u24 v{t3}, {16 * Ph}, v{t0}")
    e(f"v_add3_u32 v{V_HRD}, v{t1}, v{t3}, {0}")
    e(f"v_add_u32 v{V_HRD}, {HB}, v{V_HRD}")
    e(f"v_lshlrev_b32 v{t3}, 7, v{t0}")
    e(f"v_add_u32 v{t1}, v{t1}, v{t3}")
    e(f"v_lshrrev_b32 v{t2}, 1, v{t0}")
    e(f"v_and_b32 v{t2}, 3, v{t2}")
    for t in range(4):
        e(f"v_xor_b32 v{t3}, {t}, v{t2}")
        e(f"v_lshlrev_b32 v{t3}, 5, v{t3}")
        e(f"v_add_u32 v{V_QRD + t}, v{t1}, v{t3}")
    e(f"v_lshlrev_b32 v{V_L16}, 4, v{V_LANE}")

    gw, gx0, gx1 = V_T, V_T + 8, V_T + 16
    gt = V_T + 24
    nb = {0: 1, 1: 7, 2: 1, 3: 2, 4: 3, 5: 1, 6: 1, 7: 2, 8: 2}[OPT['pf']]
    PL1, PL2 = -(-56 // nb), -(-16 // nb)

    def misc_setup():
        srd(a, S_WS, S_PTR + 20, S_PTR + 21, WS_USED)
        tile_decode(a, S_T + 4, S_T + 5, S_T + 6, S_T + 7, S_T)
        e(f"s_lshl_b32 s{S_T}, s{S_RB}, 1")
        e(f"s_lshr_b32 s{S_T + 1}, s{S_WAVE}, 1")
        e(f"s_add_u32 s{S_T}, s{S_T}, s{S_T + 1}")
        e(f"s_lshl_b32 s{S_T}, s{S_T}, 5")
        e(f"s_lshl_b32 s{S_T + 1}, s{S_P}, 1")
        e(f"s_add_u32 s{S_T}, s{S_T}, s{S_T + 1}")
        if typ:
            e(f"s_add_u32 s{S_T}, s{S_T}, 1")
        e(f"s_lshl_b32 s{S_T}, s{S_T}, 1")
        e(f"s_and_b32 s{S_T + 1}, s{S_WAVE}, 1")
        e(f"s_add_u32 s{S_T}, s{S_T}, s{S_T + 1}")
        e(f"s_lshl_b32 s{S_T}, s{S_T}, 3")
        e(f"s_add_u32 s{S_T}, s{S_T}, {FA_OFF}")
        e(f"v_writelane_b32 v0, s{S_T}, 4")
        e(f"s_lshl_b32 s{S_T}, s{S_RB}, 1")
        e(f"s_lshr_b32 s{S_T + 3}, s{S_WAVE}, 1")
        e(f"s_add_u32 s{S_T}, s{S_T}, s{S_T + 3}")
        e(f"s_lshl_b32 s{S_T}, s{S_T}, 5")
        e(f"s_add_u32 s{S_T}, s{S_T}, s{S_P}")
        e(f"s_lshl_b32 s{S_T}, s{S_T}, 1")
        e(f"s_add_u32 s{S_T}, s{S_T}, s{S_T + 1}")
        e(f"s_lshl_b32 s{S_T}, s{S_T}, 3")
        e(f"s_add_u32 s{S_T}, s{S_T}, {FE_OFF + 256 * typ}")
        e(f"v_writelane_b32 v0, s{S_T}, 0")
        e(f"s_lshl_b32 s{S_T}, s{S_P}, 4")
        e(f"s_add_u32 s{S_T}, s{S_T}, s{S_RB}")
        e(f"s_lshl_b32 s{S_T}, s{S_T}, 2")
        e(f"s_add_u32 s{S_T}, s{S_T}, s{S_WAVE}")
        e(f"s_lshl_b32 s{S_T}, s{S_T}, 3")
        e(f"s_add_u32 s{S_T}, s{S_T}, {FQ_OFF + 256 * typ}")
        e(f"v_writelane_b32 v0, s{S_T}, 1")
        e(f"s_lshr_b32 s{S_T}, s2, 5")
        e(f"s_lshl_b32 s{S_T}, s{S_T}, 1")
        e(f"s_lshr_b32 s{S_T + 1}, s{S_WAVE}, 1")
        e(f"s_add_u32 s{S_T}, s{S_T}, s{S_T + 1}")
        e(f"s_lshl_b32 s{S_T}, s{S_T}, 9")
        e(f"s_and_b32 s{S_T + 1}, s2, 31")
        e(f"s_lshl_b32 s{S_T + 1}, s{S_T + 1}, 4")
        e(f"s_add_u32 s{S_T}, s{S_T}, s{S_T + 1}")
        e(f"s_and_b32 s{S_T + 1}, s{S_WAVE}, 1")
        e(f"s_lshl_b32 s{S_T + 1}, s{S_T + 1}, 3")
        e(f"s_add_u32 s{S_T}, s{S_T}, s{S_T + 1}")
        e(f"s_add_u32 s{S_T}, s{S_T}, {FO_OFF}")
        e(f"s_lshl_b32 s{S_T + 1}, s{S_T + 7}, 8")
        e(f"s_lshl_b32 s{S_T + 3}, s{S_WAVE}, 3")
        e(f"s_add_u32 s{S_T + 1}, s{S_T + 1}, s{S_T + 3}")
        e(f"s_add_u32 s{S_T + 1}, s{S_T + 1}, {FP_OFF}")
        e(f"s_cmp_eq_u32 s{S_T + 6}, 0")
        e(f"s_cselect_b32 s{S_T + 1}, s{S_T + 1}, 0x7ffffff0")
        e(f"v_writelane_b32 v0, s{S_T}, 2")
        e(f"v_writelane_b32 v0, s{S_T + 1}, 3")
        e(f"s_mul_i32 s{S_T}, s2, 171")
        e(f"s_lshr_b32 s{S_T}, s{S_T}, 10")
        e(f"s_lshl_b32 s{S_T}, s{S_T}, 1")
        e(f"s_add_u32 s{S_T}, s{S_T}, s2")
        e(f"s_lshl_b32 s{S_T}, s{S_T}, 3")
        e(f"s_add_u32 s{S_T}, s{S_T}, {FK_OFF}")
        e(f"v_writelane_b32 v0, s{S_T}, 5")

    def misc_setup2():
        if typ == 0:
            e(f"s_or_b32 s{S_T}, s2, s{S_WAVE}")
            e(f"s_cmp_lg_u32 s{S_T}, 0")
            e(f"s_cbranch_scc1 L_notok")
            e(f"s_memrealtime s[{S_T + 8}:{S_T + 9}]")
            srd(a, S_T + 4, S_PTR + 18, S_PTR + 19, 256)
            e("s_waitcnt lgkmcnt(0)")
            e(f"s_or_b32 s{S_T + 9}, s{S_T + 9}, 0x40000000")
            e(f"s_lshl_b32 s{S_T + 9}, s{S_T + 9}, 1")
            e(f"s_and_b32 s{S_T}, s{S_T + 8}, 1")
            e(f"s_or_b32 s{S_T + 9}, s{S_T + 9}, s{S_T}")
            e(f"s_or_b32 s{S_T + 8}, s{S_T + 8}, 1")
            e(f"v_mov_b32 v{V_T + 24}, s{S_T + 8}")
            e(f"v_mov_b32 v{V_T + 25}, s{S_T + 9}")
            e(f"v_mov_b32 v{V_T + 27}, 0")
            e("s_mov_b64 exec, 1")
            e(f"buffer_store_dwordx2 v[{V_T + 24}:{V_T + 25}], v{V_T + 27}, s[{S_T + 4}:{S_T + 7}], 0 offen sc1")
            e("s_mov_b64 exec, -1")
            e("s_nop 1")
            a.label("L_notok")
        if OPT.get('cpf') == 1:
            e(f"s_getpc_b64 s[{S_T + 4}:{S_T + 5}]")
            a.label(f"L_pc_{T}")
            e(f"s_sub_u32 s{S_T + 4}, s{S_T + 4}, L_pc_{T}-KNAME")
            e(f"s_subb_u32 s{S_T + 5}, s{S_T + 5}, 0")
            e(f"s_lshr_b32 s{S_T}, s2, 3")
            e(f"s_and_b32 s{S_T}, s{S_T}, 3")
            e(f"s_lshl_b32 s{S_T}, s{S_T}, 2")
            e(f"s_add_u32 s{S_T}, s{S_T}, s{S_WAVE}")
            e(f"s_lshl_b32 s{S_T}, s{S_T}, 13")
            e(f"v_lshlrev_b32 v{V_T + 29}, 7, v{V_LANE}")
            e(f"v_add_u32 v{V_T + 29}, s{S_T}, v{V_T + 29}")
            e(f"v_min_u32 v{V_T + 29}, L_code_end-KNAME-4, v{V_T + 29}")
            a.vmem(f"global_load_dword v{V_T + 29}, v{V_T + 29}, s[{S_T + 4}:{S_T + 5}]", "pf")
        if OPT.get('xpf') == 1:
            e(f"v_and_b32 v{V_T + 28}, 31, v{V_LANE}")
            e(f"v_lshlrev_b32 v{V_T + 28}, 7, v{V_T + 28}")
            e(f"s_lshl_b32 s{S_T}, s2, 2")
            e(f"s_add_u32 s{S_T}, s{S_T}, s{S_WAVE}")
            e(f"s_lshl_b32 s{S_T}, s{S_T}, 12")
            a.vmem(f"buffer_load_dword v{V_T + 28}, v{V_T + 28}, s[{S_X}:{S_X + 3}], s{S_T} offen", "pf")
        if OPT.get('xpf') == 2:
            e(f"v_lshlrev_b32 v{V_T + 27}, 7, v{V_LANE}")
            e(f"s_lshr_b32 s{S_T}, s2, 5")
            e(f"s_lshl_b32 s{S_T}, s{S_T}, 2")
            e(f"s_add_u32 s{S_T}, s{S_T}, s{S_WAVE}")
            e(f"s_lshl_b32 s{S_T}, s{S_T}, 14")
            e(f"s_lshl_b32 s{S_T + 1}, s{S_RB}, 19")
            e(f"s_add_u32 s{S_T}, s{S_T}, s{S_T + 1}")
            a.vmem(f"buffer_load_dword v{V_T + 28}, v{V_T + 27}, s[{S_X}:{S_X + 3}], s{S_T} offen", "pf")
            e(f"s_add_u32 s{S_T}, s{S_T}, 8192")
            a.vmem(f"buffer_load_dword v{V_T + 28}, v{V_T + 27}, s[{S_X}:{S_X + 3}], s{S_T} offen", "pf")

        e(f"v_lshlrev_b32 v{gt}, 5, v{V_LANE}")
        e(f"s_lshl_b32 s{S_GROW}, s{S_RB}, 8")
        e(f"s_lshl_b32 s{S_T + 1}, s{S_WAVE}, 6")
        e(f"s_add_u32 s{S_GROW}, s{S_GROW}, s{S_T + 1}")
        e(f"s_lshl_b32 s{S_T + 1}, s{S_P}, 2")
        e(f"s_add_u32 s{S_GROW}, s{S_GROW}, s{S_T + 1}")
        if typ:
            e(f"s_add_u32 s{S_GROW}, s{S_GROW}, 2")
        e(f"s_lshl_b32 s{S_T + 1}, s{S_GROW}, 11")
        srd(a, S_MISC, S_PTR + 14, S_PTR + 15, 2048)
        a.vmem(f"buffer_load_dwordx4 {vr(gw)}, v{gt}, s[{S_MISC}:{S_MISC + 3}], 0 offen", "g")
        a.vmem(f"buffer_load_dwordx4 {vr(gw + 4)}, v{gt}, s[{S_MISC}:{S_MISC + 3}], 0 offen offset:16", "g")
        a.vmem(f"buffer_load_dwordx4 {vr(gx0)}, v{gt}, s[{S_X}:{S_X + 3}], s{S_T + 1} offen", "g")
        a.vmem(f"buffer_load_dwordx4 {vr(gx0 + 4)}, v{gt}, s[{S_X}:{S_X + 3}], s{S_T + 1} offen offset:16", "g")
        a.vmem(f"buffer_load_dwordx4 {vr(gx1)}, v{gt}, s[{S_X}:{S_X + 3}], s{S_T + 1} offen offset:2048", "g")
        a.vmem(f"buffer_load_dwordx4 {vr(gx1 + 4)}, v{gt}, s[{S_X}:{S_X + 3}], s{S_T + 1} offen offset:2064", "g")

        if OPT['pf']:
            srd(a, S_PF1, S_PTR + 12, S_PTR + 13, 3584 * 1024 * 2)
            srd(a, S_PF2, S_PTR + 4, S_PTR + 5, 1024 * 1024 * 2)
            e(f"v_min_u32 v{V_T + 26}, {PL1 - 1}, v{V_LANE}")
            e(f"v_lshlrev_b32 v{V_T + 26}, 7, v{V_T + 26}")
            e(f"v_min_u32 v{V_T + 27}, {PL2 - 1}, v{V_LANE}")
            e(f"v_lshlrev_b32 v{V_T + 27}, 7, v{V_T + 27}")
            e(f"s_lshl_b32 s{S_T}, s2, 2")
            e(f"s_add_u32 s{S_T}, s{S_T}, s{S_WAVE}")
            e(f"s_mul_i32 s{S_PO1}, s{S_T}, 7168")
            e(f"s_lshl_b32 s{S_PO2}, s{S_T}, 11")


    if OPT.get('pt'):
        e(f"s_lshl_b32 s{S_T}, s{S_RB}, 1")
        e(f"s_lshr_b32 s{S_T + 1}, s{S_WAVE}, 1")
        e(f"s_add_u32 s{S_T}, s{S_T}, s{S_T + 1}")
        e(f"s_mul_i32 s{S_AFB}, s{S_T}, {144 * 8192}")
        e(f"s_and_b32 s{S_T + 1}, s{S_WAVE}, 1")
        e(f"s_lshl_b32 s{S_T + 1}, s{S_T + 1}, 12")
        e(f"s_add_u32 s{S_AFB}, s{S_AFB}, s{S_T + 1}")
        e(f"s_mul_i32 s{S_PT}, s{S_P}, {7 * 8192}")
        e(f"s_add_u32 s{S_PT}, s{S_PT}, s{S_AFB}")
        if typ:
            e(f"s_add_u32 s{S_PT}, s{S_PT}, {2 * 8192}")
        e(f"s_add_u32 s{S_PTE}, s{S_PT}, {(4 if typ else 2) * 8192}")
        e(f"v_and_b32 v{V_T + 25}, 31, v{V_LANE}")
        e(f"v_lshlrev_b32 v{V_T + 25}, 7, v{V_T + 25}")
        if typ:
            e(f"v_lshrrev_b32 v{V_T + 29}, 5, v{V_LANE}")
            e(f"v_lshlrev_b32 v{V_T + 29}, 13, v{V_T + 29}")
            e(f"v_add_u32 v{V_T + 29}, v{V_T + 29}, v{V_T + 25}")
            e(f"s_mul_i32 s{S_T}, s{S_P}, {2 * 8192}")
            e(f"s_add_u32 s{S_T}, s{S_T}, {112 * 8192}")
            e(f"s_add_u32 s{S_T}, s{S_T}, s{S_AFB}")
            a.vmem(f"buffer_load_dword v{V_T + 28}, v{V_T + 29}, s[{S_WS}:{S_WS + 3}], s{S_T} offen", "pf")

    def pt_items():
        return [lambda: a.vmem(f"buffer_load_dword v{V_T + 28}, v{V_T + 25}, s[{S_WS}:{S_WS + 3}], s{S_PT} offen", "pf"),
                lambda: e(f"s_add_u32 s{S_PT}, s{S_PT}, 8192"),
                lambda: e(f"s_min_u32 s{S_PT}, s{S_PT}, s{S_PTE}")]

    def pf_items(cond=None):
        if cond is None:
            return [lambda: a.vmem(f"buffer_load_dword v{V_T + 28}, v{V_T + 26}, s[{S_PF1}:{S_PF1 + 3}], s{S_PO1} offen", "pf"),
                    lambda: a.vmem(f"buffer_load_dword v{V_T + 28}, v{V_T + 27}, s[{S_PF2}:{S_PF2 + 3}], s{S_PO2} offen", "pf"),
                    lambda: e(f"s_add_u32 s{S_PO1}, s{S_PO1}, {128 * PL1}"),
                    lambda: e(f"s_add_u32 s{S_PO2}, s{S_PO2}, {128 * PL2}")]

        def blk():
            e(f"s_lshl_b32 s{S_T}, 1, s{S_CNT}")
            e(f"s_and_b32 s{S_T}, s{S_T}, {cond}")
            e(f"s_cbranch_scc0 L_k1{T}_nopf")
            e(f"buffer_load_dword v{V_T + 28}, v{V_T + 26}, s[{S_PF1}:{S_PF1 + 3}], s{S_PO1} offen")
            e(f"buffer_load_dword v{V_T + 28}, v{V_T + 27}, s[{S_PF2}:{S_PF2 + 3}], s{S_PO2} offen")
            e(f"s_add_u32 s{S_PO1}, s{S_PO1}, {128 * PL1}")
            e(f"s_add_u32 s{S_PO2}, s{S_PO2}, {128 * PL2}")
            a.label(f"L_k1{T}_nopf")
        return [blk]

    def g_items():
        d0, d1 = V_T + 24, V_T + 25
        L = []
        L.append(f"v_dot2_f32_bf16 v{d0}, v{gx0}, v{gw}, 0")
        L.append(f"v_dot2_f32_bf16 v{d1}, v{gx1}, v{gw}, 0")
        for j in range(1, 8):
            L.append(f"v_dot2_f32_bf16 v{d0}, v{gx0 + j}, v{gw + j}, v{d0}")
            L.append(f"v_dot2_f32_bf16 v{d1}, v{gx1 + j}, v{gw + j}, v{d1}")
        L.append("s_nop 3")
        for sh_ in (1, 2, 4, 8):
            L.append(f"s_nop 0\nv_add_f32_dpp v{d0}, v{d0}, v{d0} row_shr:{sh_} row_mask:0xf bank_mask:0xf bound_ctrl:0")
            L.append(f"s_nop 0\nv_add_f32_dpp v{d1}, v{d1}, v{d1} row_shr:{sh_} row_mask:0xf bank_mask:0xf bound_ctrl:0")
        L.append(f"s_nop 0\nv_add_f32_dpp v{d0}, v{d0}, v{d0} row_bcast:15 row_mask:0xa bank_mask:0xf")
        L.append(f"s_nop 0\nv_add_f32_dpp v{d1}, v{d1}, v{d1} row_bcast:15 row_mask:0xa bank_mask:0xf")
        L.append(f"s_nop 0\nv_add_f32_dpp v{d0}, v{d0}, v{d0} row_bcast:31 row_mask:0xc bank_mask:0xf")
        L.append(f"s_nop 0\nv_add_f32_dpp v{d1}, v{d1}, v{d1} row_bcast:31 row_mask:0xc bank_mask:0xf")
        L.append(f"v_mul_f32 v{d0}, 0xbfb8aa3b, v{d0}")
        L.append(f"v_mul_f32 v{d1}, 0xbfb8aa3b, v{d1}")
        L.append(f"v_exp_f32 v{d0}, v{d0}")
        L.append(f"v_exp_f32 v{d1}, v{d1}\ns_nop 0")
        L.append(f"v_add_f32 v{d0}, 1.0, v{d0}")
        L.append(f"v_add_f32 v{d1}, 1.0, v{d1}")
        L.append(f"v_rcp_f32 v{d0}, v{d0}")
        L.append(f"v_rcp_f32 v{d1}, v{d1}")
        L.append(f"v_mov_b32 v{gw}, 0")
        L.append(f"s_lshl_b32 s{S_T + 1}, s{S_GROW}, 2\ns_add_u32 s{S_T + 1}, s{S_T + 1}, {G_OFF}")
        L.append(f"s_lshl_b32 s{S_T + 3}, s2, 8\ns_add_u32 s{S_T + 3}, s{S_T + 3}, {FLG_OFF}")
        L.append(f"s_mov_b32 s{S_T + 8}, 0\ns_mov_b32 s{S_T + 9}, 0x80000000")
        F = [(lambda x=x: e(x)) for x in L]

        def st():
            e(f"s_mov_b64 exec, s[{S_T + 8}:{S_T + 9}]")
            a.vmem(f"buffer_store_dwordx2 v[{d0}:{d1}], v{gw}, s[{S_WS}:{S_WS + 3}], s{S_T + 1} offen sc1", "sq")
            e("s_mov_b64 exec, -1")
        F.append(st)
        return F

    if OPT.get('m2', 9) == 9:
        misc_setup2()
    a.wait(["bias"])
    for j in range(nh):
        src = acc(nq + j, 3)
        d = acc(nq + j, 0)
        e(f"v_lshlrev_b32 v{d}, 16, v{src}")
        e(f"v_and_b32 v{d + 1}, 0xffff0000, v{src}")
        e(f"v_lshlrev_b32 v{d + 2}, 16, v{src + 1}")
        e(f"v_and_b32 v{d + 3}, 0xffff0000, v{src + 1}")
    for t in range(4):
        for r in range(4):
            e(f"v_mov_b32 v{acc(t, 0) + r}, {EPS_HEX}")

    def rdB(tt):
        slot = tt % 4
        s = tt % 2
        f = []
        for t in range(13):
            for ins in range(2):
                if t < nq:
                    addr = V_QRD + (t & 3)
                    off = slot * K1_BSLOT + ins * K1_AREA + 1024 * (t >> 2)
                else:
                    addr = V_HRD
                    off = slot * K1_BSLOT + ins * K1_AREA + 32 * (t - nq)
                d = bset(s, t) + 2 * ins
                f.append(lambda d=d, addr=addr, off=off: e(f"ds_read_b64_tr_b16 {ar(d, 2)}, v{addr} offset:{off}"))
        return f

    def aset_of(tt):
        if tt % 2 == 0:
            return ASET["X"]
        return ASET["Y"] if tt % 4 == 1 else ASET["Z"]

    def rdA(aa):
        slot = aa % 2
        f = []
        for hh in range(2):
            base = aset_of(2 * aa + hh)
            for mt in range(4):
                f.append(lambda hh=hh, mt=mt, base=base: e(
                    f"ds_read_b128 {ar(base + 4 * mt)}, v{V_ARD + hh} offset:{slot * 8192 + mt * 2048}"))
        return f

    stamp(a, 1)
    a.wait(["B0", "A0"])
    e("s_barrier")
    stamp(a, 2)
    for fn in rdA(0) + rdB(0):
        fn()
    if OPT.get('ramp') == 1:
        run_seq(dmaA(1))
    if OPT.get('ramp') in (1, 2):
        run_seq(dmaB(2))
    a.wait(["B1"], lgkm=True)
    e("s_barrier")

    misc_items = capture(a, misc_setup)
    misc_items2 = capture(a, misc_setup2) if OPT.get('m2', 9) != 9 else []

    NSTEP = 32

    def step(tt):
        if DIAG and OPT.get('ts'):
            e("s_memrealtime s[76:77]")
            e("s_waitcnt lgkmcnt(0)")
            e("s_mov_b32 m0, s78")
            e("s_nop 0")
            e(f"v_writelane_b32 v{V_T + 29}, s76, m0")
            e("s_add_u32 s78, s78, 1")
        s = tt % 2
        ab = aset_of(tt)
        mf = []
        for t in range(13):
            order = [1, 2, 3, 0] if tt == 0 else [0, 1, 2, 3]
            for mt in order:
                D = vr(acc(t, mt))
                if tt == 0:
                    C = "0" if (typ == 0 and 4 <= t < 8) else vr(acc(t, 0))
                else:
                    C = D
                W = ar(bset(s, t))
                X = ar(ab + 4 * mt)
                if typ == 0 and t < 8:
                    mf.append(f"v_mfma_f32_16x16x32_bf16 {D}, {X}, {W}, {C}")
                else:
                    mf.append(f"v_mfma_f32_16x16x32_bf16 {D}, {W}, {X}, {C}")
        if OPT.get('fakechain') and tt > 0:
            import re
            m2 = []
            for i in range(0, 52, 2):
                x0, x1 = mf[i], mf[i + 1]
                pick = x0 if tt % 2 == 0 else x1
                D = re.match(r"v_mfma\S+ (v\[\d+:\d+\])", pick).group(1)
                for x in (x0, x1):
                    D0 = re.match(r"v_mfma\S+ (v\[\d+:\d+\])", x).group(1)
                    m2.append(x.replace(D0, D))
            mf = m2
        rd = []
        if tt + 1 < NSTEP:
            rd = rdB(tt + 1)
            if tt % 2 == 1:
                rd = rdA((tt + 1) // 2) + rd
        dm = []
        if tt == 0 and OPT.get('ramp'):
            dm += dmaB(3)
        if OPT.get('afirst', 1) and tt % 2 == 0 and tt // 2 + 2 < NSTEP // 2:
            dm += dmaA(tt // 2 + 2)
        if tt + 4 < NSTEP:
            dm += dmaB(tt + 4)
        if not OPT.get('afirst', 1) and tt % 2 == 0 and tt // 2 + 2 < NSTEP // 2:
            dm += dmaA(tt // 2 + 2)
        if OPT['pf'] == 1 and tt % 4 == 1 and tt < 28:
            dm += pf_items()
        if OPT.get('cpf') == 3 and tt == 28:
            dm.append(lambda: a.vmem(f"global_load_dword v{V_T + 28}, v{V_T + 29}, s[{S_CB}:{S_CB + 1}]", "pf"))
        if OPT['pf'] in (2, 3, 4, 7) and tt == 28:
            dm += pf_items()
        if OPT['pf'] in (3, 4, 5, 6, 7, 8) and tt % 4 == 1 and 4 <= tt < 28:
            dm += pf_items({3: 1 << 4, 4: (1 << 5) | (1 << 3), 5: 1 << 1, 6: 1 << 3, 7: 1 << 1, 8: (1 << 2) | (1 << 4)}[OPT['pf']])
        if OPT.get('pt') and tt % 4 == 3 and tt < 28:
            dm += pt_items()
        if tt == OPT.get('m2', 9):
            dm += misc_items2
        if tt == 3:
            dm += misc_items
        fl = []
        i1 = i2 = 0
        n1, n2 = len(rd), len(dm)
        while i1 < n1 or i2 < n2:
            if i2 < n2 and (i1 >= n1 or i2 * n1 <= i1 * n2):
                fl.append(dm[i2]); i2 += 1
            else:
                fl.append(rd[i1]); i1 += 1
        if OPT.get('p2m'):
            if tt == NSTEP - 2:
                gi = g_items()
                fl2 = []
                for k_ in range(max(len(fl), len(gi))):
                    fl2 += fl[k_:k_ + 1] + gi[k_:k_ + 1]
                fl = fl2
            if tt == NSTEP - 1:
                fl = capture(a, lambda: p2_math(a), chunk=2)
        elif tt == NSTEP - 1:
            assert "g" not in a.vm
            fl = g_items()
        nb_ = OPT.get('bt', 0)
        fe_ = OPT.get('fe', 48)
        if OPT.get('rdf') and rd and dm:
            schedule(a, mf[:52 - nb_], [(rd, 0, OPT['rdf']), (dm, OPT.get('dm0', 1), fe_)])
        else:
            interleave(a, mf[:52 - nb_], fl, 0, fe_)
        if tt + 1 < NSTEP:
            tags = []
            if tt + 2 < NSTEP:
                tags.append(f"B{tt + 2}")
            if tt % 2 == 0:
                tags.append(f"A{tt // 2 + 1}")
            a.wait(tags, lgkm=True)
            if tt + 2 < NSTEP:
                e("s_barrier")
        for x in mf[52 - nb_:]:
            e(x)

    iters = []
    for it in range(8):
        n0 = len(a.lines)
        for tt in range(4 * it, 4 * it + 4):
            step(tt)
        iters.append(a.lines[n0:])
        del a.lines[n0:]
    for it in range(2, 7):
        assert iters[it] == iters[1], f"iteration {it} differs"
    stamp(a, 3)
    if DIAG and OPT.get('ts'):
        e("s_mov_b32 s78, 0")
    a.lines += iters[0]
    if not OPT.get('ts') and not OPT.get('kst'):
        stamp(a, 4)
    e(f"s_mov_b32 s{S_CNT}, 6")
    a.label(f"L_k1{T}_loop")
    a.lines += iters[1]
    e(f"s_sub_u32 s{S_CNT}, s{S_CNT}, 1")
    e(f"s_cmp_lg_u32 s{S_CNT}, 0")
    e(f"s_cbranch_scc1 L_k1{T}_loop")
    a.lines += iters[7]
    assert all(not t.startswith(("A", "B")) for t in a.vm), a.vm

    stamp(a, 5)

    def fin():
        stamp(a, 6)
        stamp(a, 7)
        k = a.vm_count(["#eA"], drop=False)
        if DIAG:
            k += 16
        stamp_dump(a, 0, 8, S_WAVE, S_PTR + 20, S_PTR + 21, V_T)
        e(f"s_cmp_eq_u32 s{P_SEARLY}, 0")
        e("s_cbranch_scc1 L_p2_late")
        e(f"s_waitcnt vmcnt({k})")
        e("s_branch L_p2_go")

    pb_state = [0]

    def pb(n=1):
        for _ in range(n):
            k = pb_state[0]
            if k >= OPT.get('pb', 0):
                return
            for i in range(4):
                a.vmem(f"buffer_load_dwordx4 {ar(128 + 16 * k + 4 * i)}, v{P_VBD + i}, s[{P_SW2}:{P_SW2 + 3}], s{P_SOB} offen offset:{1024 * i}", "pb")
            e(f"s_add_u32 s{P_SOB}, s{P_SOB}, s{P_SSB}")
            pb_state[0] += 1

    def fe_load():
        a.vmem(f"buffer_load_dwordx2 v[{P_VFL}:{P_VFL + 1}], v{P_VFA}, s[{S_WS}:{S_WS + 3}], 0 offen sc1", "fe")

    def fe_check():
        a.wait(["fe"])
        e(f"v_cmp_eq_u64 vcc, v[{P_VFL}:{P_VFL + 1}], v[{V_TOK}:{V_TOK + 1}]")
        e(f"s_mov_b32 s{P_SEARLY}, 0")
        e("s_nop 0")
        e("s_cmp_eq_u64 vcc, -1")
        e(f"s_cbranch_scc0 L_k1{T}_noearly")
        p2_issueA(a)
        e(f"s_mov_b32 s{P_SEARLY}, 1")
        a.label(f"L_k1{T}_noearly")
        a.mark("eA")

    def setflag(lane):
        a.label(f"L_k1{T}_tw")
        e(f"v_readfirstlane_b32 s{S_T}, v{V_TOK + 1}")
        e(f"v_readfirstlane_b32 s{S_T + 1}, v{V_TOK}")
        e("s_nop 3")
        e(f"s_min_u32 s{S_T}, s{S_T}, s{S_T + 1}")
        e(f"s_cmp_lg_u32 s{S_T}, 0")
        e(f"s_cbranch_scc1 L_k1{T}_tok")
        e("s_add_u32 s3, s3, 1")
        e("s_cmp_gt_u32 s3, 0x40000")
        e(f"s_cbranch_scc1 L_k1{T}_tok")
        e("s_sleep 4")
        e(f"buffer_load_dwordx2 v[{V_TOK}:{V_TOK + 1}], v12, s[{S_T + 4}:{S_T + 7}], 0 offen sc1")
        e("s_waitcnt vmcnt(0)")
        e(f"s_branch L_k1{T}_tw")
        a.label(f"L_k1{T}_tok")
        e(f"s_mov_b64 exec, {1 << lane}")
        a.vmem(f"buffer_store_dwordx2 v[{V_TOK}:{V_TOK + 1}], v0, s[{S_WS}:{S_WS + 3}], 0 offen sc1", "fl")
        e("s_mov_b64 exec, -1")
    e("s_barrier")
    if OPT.get('tke'):
        tok_load(a)
    e("s_mov_b32 s3, 0")
    e(f"s_mov_b32 s{S_L2E}, {L2E_HEX}")
    e(f"s_mov_b32 s{S_L2E + 1}, {L2E_HEX}")
    e(f"s_lshl_b32 s{S_T}, s{S_RB}, 1")
    e(f"s_lshr_b32 s{S_T + 1}, s{S_WAVE}, 1")
    e(f"s_add_u32 s{S_T}, s{S_T}, s{S_T + 1}")
    e(f"s_mul_i32 s{S_AFB}, s{S_T}, {144 * 8192}")
    e(f"s_and_b32 s{S_T + 1}, s{S_WAVE}, 1")
    e(f"s_lshl_b32 s{S_T + 1}, s{S_T + 1}, 12")
    e(f"s_add_u32 s{S_AFB}, s{S_AFB}, s{S_T + 1}")
    e("s_nop 7")
    TT, UU = V_T, V_T + 8

    def phi_group(ra, rb_):
        prs = [ra, ra + 2, rb_, rb_ + 2]
        for j, p in enumerate(prs):
            e(f"v_pk_mul_f32 {vr(TT + 2 * j, 2)}, {vr(p, 2)}, s[{S_L2E}:{S_L2E + 1}]")
        for j in range(8):
            e(f"v_exp_f32_e64 v{TT + j}, v{TT + j} clamp")
        for p in prs:
            e(f"v_max_f32 v{p}, {EPS_HEX}, v{p}")
            e(f"v_max_f32 v{p + 1}, {EPS_HEX}, v{p + 1}")
        for j, p in enumerate(prs):
            e(f"v_pk_add_f32 {vr(p, 2)}, {vr(p, 2)}, {vr(TT + 2 * j, 2)}")
        for j, p in enumerate(prs):
            e(f"v_cvt_pk_bf16_f32 v{ra + j}, v{p}, v{p + 1}")

    def cvt_group(ra, rb_):
        prs = [ra, ra + 2, rb_, rb_ + 2]
        for j, p in enumerate(prs):
            e(f"v_cvt_pk_bf16_f32 v{ra + j}, v{p}, v{p + 1}")

    def mish_group(ra, rb_, split=False, dst=None):
        prs = [ra, ra + 2, rb_, rb_ + 2]
        for j, p in enumerate(prs):
            e(f"v_pk_mul_f32 {vr(TT + 2 * j, 2)}, {vr(p, 2)}, s[{S_L2E}:{S_L2E + 1}]")
        for j in range(8):
            e(f"v_exp_f32 v{TT + j}, v{TT + j}")
        for j in range(4):
            e(f"v_pk_fma_f32 {vr(UU + 2 * j, 2)}, {vr(TT + 2 * j, 2)}, 0.5, 1.0 op_sel_hi:[1,0,0]")
        for j in range(4):
            e(f"v_pk_fma_f32 {vr(UU + 2 * j, 2)}, {vr(TT + 2 * j, 2)}, {vr(UU + 2 * j, 2)}, 1.0 op_sel_hi:[1,1,0]")
        for j in range(8):
            e(f"v_rcp_f32 v{UU + j}, v{UU + j}")
        for j, p in enumerate(prs):
            e(f"v_pk_fma_f32 {vr(p, 2)}, {vr(UU + 2 * j, 2)}, {vr(p, 2)}, {vr(p, 2)} neg_lo:[1,0,0] neg_hi:[1,0,0]")
        if split:
            e(f"v_cvt_pk_bf16_f32 v{ra}, v{ra}, v{ra + 1}")
            e(f"v_cvt_pk_bf16_f32 v{ra + 1}, v{ra + 2}, v{ra + 3}")
            e(f"v_cvt_pk_bf16_f32 v{rb_}, v{rb_}, v{rb_ + 1}")
            e(f"v_cvt_pk_bf16_f32 v{rb_ + 1}, v{rb_ + 2}, v{rb_ + 3}")
        else:
            dd = ra if dst is None else dst
            for j, p in enumerate(prs):
                e(f"v_cvt_pk_bf16_f32 v{dd + j}, v{p}, v{p + 1}")

    WS = f"s[{S_WS}:{S_WS + 3}]"

    def set_kb(sreg, mul, add):
        e(f"s_mul_i32 s{sreg}, s{S_P}, {mul * 8192}")
        e(f"s_add_u32 s{sreg}, s{sreg}, {add * 8192}")
        e(f"s_add_u32 s{sreg}, s{sreg}, s{S_AFB}")

    def h_late(tA, kbl, sreg, mid=None):
        set_kb(sreg, 7, kbl)
        for mt in range(4):
            mish_group(acc(tA, mt), acc(tA + 1, mt))
            if mt == 1 and mid:
                mid()

    def h_half_late(tA, half):
        set_kb(P_SL + 2, 7, 2)
        if half:
            e(f"s_add_u32 s{P_SL + 2}, s{P_SL + 2}, 512")
        for mp in range(2):
            mish_group(acc(tA, 2 * mp), acc(tA, 2 * mp + 1), dst=240 + 4 * mp)
        e("s_nop 1")
        for mp in range(2):
            e(f"v_permlane16_swap_b32 v{240 + 4 * mp}, v{242 + 4 * mp}")
            e(f"v_permlane16_swap_b32 v{241 + 4 * mp}, v{243 + 4 * mp}")

    def h_full(tA, kbl, tag='st'):
        set_kb(S_T + 2, 7, kbl)
        for mt in range(4):
            mish_group(acc(tA, mt), acc(tA + 1, mt))
            a.vmem(f"buffer_store_dwordx4 {vr(acc(tA, mt))}, v{V_L16}, {WS}, s{S_T + 2} offen offset:{1024 * mt} {OPT['st']}", tag)

    def h_half(tA, kbl, half):
        set_kb(S_T + 2, 7, kbl)
        for mp in range(2):
            mish_group(acc(tA, 2 * mp), acc(tA, 2 * mp + 1), split=True)
            for mt in (2 * mp, 2 * mp + 1):
                a.vmem(f"buffer_store_dwordx2 {vr(acc(tA, mt), 2)}, v{V_L16}, {WS}, s{S_T + 2} offen offset:{1024 * mt + 8 * half} {OPT['st']}", "st")

    if typ == 1:
        h_full(5, 3, "se")
        h_full(7, 4, "se")
        if OPT.get('fepos') == 10:
            a.wait(["se", "zc"])
            setflag(0)
        p2_early(a)
        if OPT.get('fepos') == 9:
            a.wait(["se", "zc"])
            setflag(0)
        for hd in range(2):
            set_kb(S_T + 2, 2, 112 + hd)
            for mt in range(4):
                phi_group(acc(2 * hd, mt), acc(2 * hd + 1, mt))
                a.vmem(f"buffer_store_dwordx4 {vr(acc(2 * hd, mt))}, v{V_L16}, {WS}, s{S_T + 2} offen offset:{1024 * mt} {OPT['st']}", "sq")
                if 4 * hd + mt == OPT.get('fepos', 4):
                    a.wait(["se", "zc"])
                    setflag(0)
                if 4 * hd + mt >= OPT.get('fepos', 4):
                    pb()
        pb(8)
        h_late(9, 5, P_SL, mid=fe_load)
        h_late(11, 6, P_SL + 1, mid=fe_check)
        h_half_late(4, 1)
        fin()
        return

    h_full(8, 0, "se")
    h_full(10, 1, "se")
    if OPT.get('fepos') == 10:
        a.wait(["se", "zc"])
        setflag(0)
    p2_early(a)
    if OPT.get('fepos') == 9:
        a.wait(["se", "zc"])
        setflag(0)
    ONES = V_T + 16
    for r in range(4):
        e(f"v_mov_b32 v{ONES + r}, 0x3f803f80")
    for t in range(4):
        for pr in range(2):
            phi_group(acc(t, 2 * pr), acc(t, 2 * pr + 1))
            if 2 * t + pr == OPT.get('fepos', 4):
                a.wait(["se", "zc"])
                setflag(0)
            if 2 * t + pr >= OPT.get('fepos', 4):
                pb()
    pb(8)
    for t in range(4, 8):
        for pr in range(2):
            cvt_group(acc(t, 2 * pr), acc(t, 2 * pr + 1))
    e("s_nop 1")
    free = [acc(t, m) for t in range(8) for m in (1, 3)]

    def Dt(tau):
        return free[tau]
    for pr in range(2):
        for hd in range(2):
            for dt in range(2):
                for et in range(3):
                    tau = hd * 6 + dt * 3 + et
                    Aop = vr(acc(2 * hd + dt, 2 * pr))
                    Bop = vr(acc(4 + 2 * hd + et, 2 * pr)) if et < 2 else vr(ONES)
                    C = "0" if pr == 0 else vr(Dt(tau))
                    e(f"v_mfma_f32_16x16x32_bf16 {vr(Dt(tau))}, {Aop}, {Bop}, {C}")
    vw, vrd = V_T + 20, V_T + 21
    e(f"s_mul_i32 s{S_T}, s{S_WAVE}, 12288")
    e(f"s_add_u32 s{S_T}, s{S_T}, 98304")
    e(f"v_add_u32 v{vw}, s{S_T}, v{V_L16}")
    e(f"s_mul_i32 s{S_T}, s{S_WAVE}, 3072")
    e(f"s_add_u32 s{S_T}, s{S_T}, 98304")
    e(f"v_add_u32 v{vrd}, s{S_T}, v{V_L16}")
    fe_load()
    e("s_nop 7")
    for tau in range(12):
        e(f"ds_write_b128 v{vw}, {vr(Dt(tau))} offset:{1024 * tau}")
    e(f"s_lshl_b32 s{S_T}, s{S_P}, 3")
    e(f"s_add_u32 s{S_T}, s{S_T}, s{S_RB}")
    e(f"s_mul_i32 s{S_T}, s{S_T}, 12288")
    e(f"s_mul_i32 s{S_T + 1}, s{S_WAVE}, 3072")
    e(f"s_add_u32 s{S_T}, s{S_T}, s{S_T + 1}")
    e(f"s_add_u32 s{S_T + 10}, s{S_T}, {KVP_OFF}")
    h_half_late(12, 0)
    e(f"s_mov_b32 s{P_SL}, 0x7ff00000")
    e(f"s_mov_b32 s{P_SL + 1}, 0x7ff00000")
    e("s_waitcnt lgkmcnt(0)")
    e("s_barrier")
    R = [acc(t, m) for t in range(8) for m in (0, 2)]
    for w2 in range(4):
        for j in range(3):
            e(f"ds_read_b128 {vr(R[3 * w2 + j])}, v{vrd} offset:{12288 * w2 + 1024 * j}")
    fe_check()
    e("s_waitcnt lgkmcnt(0)")
    for j in range(3):
        for h2 in range(2):
            b0 = R[j] + 2 * h2
            e(f"v_pk_add_f32 {vr(b0, 2)}, {vr(b0, 2)}, {vr(R[3 + j] + 2 * h2, 2)}")
            e(f"v_pk_add_f32 {vr(R[6 + j] + 2 * h2, 2)}, {vr(R[6 + j] + 2 * h2, 2)}, {vr(R[9 + j] + 2 * h2, 2)}")
        for h2 in range(2):
            b0 = R[j] + 2 * h2
            e(f"v_pk_add_f32 {vr(b0, 2)}, {vr(b0, 2)}, {vr(R[6 + j] + 2 * h2, 2)}")
        a.vmem(f"buffer_store_dwordx4 {vr(R[j])}, v{V_L16}, {WS}, s{S_T + 10} offen offset:{1024 * j} sc1", "sq")
    fin()


def gen_k1():
    a = Asm()
    e = a.e
    a.lines.append(".globl KNAME\n.p2align 8\n.type KNAME,@function\nKNAME:")
    if OPT.get('spin'):
        stamp(a, 0)
    e("s_cmp_ge_u32 s2, 256")
    e("s_cbranch_scc1 L_k1_exit")
    e(f"s_load_dwordx16 s[{S_PTR}:{S_PTR + 15}], s[0:1], 0")
    if OPT.get('cpf') >= 2:
        e(f"s_getpc_b64 s[{S_CB}:{S_CB + 1}]")
        a.label("L_pc_0")
        e(f"s_sub_u32 s{S_CB}, s{S_CB}, L_pc_0-KNAME")
        e(f"s_subb_u32 s{S_CB + 1}, s{S_CB + 1}, 0")
        e(f"s_lshl_b32 s{S_T}, s2, 12")
        e(f"s_and_b32 s{S_T}, s{S_T}, 0x18000")
        e(f"v_lshlrev_b32 v{V_T + 29}, 7, v0")
        e(f"v_add_u32 v{V_T + 29}, s{S_T}, v{V_T + 29}")
        e(f"v_min_u32 v{V_T + 29}, L_code_end-KNAME-4, v{V_T + 29}")
        e(f"global_load_dword v{V_T + 28}, v{V_T + 29}, s[{S_CB}:{S_CB + 1}]")
    e(f"s_load_dwordx4 s[{S_PTR + 16}:{S_PTR + 19}], s[0:1], 64")
    e(f"s_load_dwordx2 s[{S_PTR + 20}:{S_PTR + 21}], s[0:1], 80")
    e(f"v_and_b32 v{V_LANE}, 63, v0")
    e(f"v_lshrrev_b32 v{V_T}, 6, v0")
    e(f"s_and_b32 s{S_T}, s2, 7")
    e(f"v_readfirstlane_b32 s{S_WAVE}, v{V_T}")
    e(f"s_lshr_b32 s{S_T + 1}, s2, 3")
    if OPT.get('map1', 0) == 0:
        e(f"s_and_b32 s{S_RB}, s{S_T}, 1")
        e(f"s_lshl_b32 s{S_RB}, s{S_RB}, 2")
        e(f"s_and_b32 s{S_T + 2}, s{S_T + 1}, 3")
        e(f"s_add_u32 s{S_RB}, s{S_RB}, s{S_T + 2}")
        e(f"s_lshr_b32 s{S_T}, s{S_T}, 1")
        e(f"s_lshl_b32 s{S_T}, s{S_T}, 3")
        e(f"s_lshr_b32 s{S_T + 1}, s{S_T + 1}, 2")
        e(f"s_add_u32 s{S_T}, s{S_T}, s{S_T + 1}")
    elif OPT['map1'] == 1:
        e(f"s_and_b32 s{S_RB}, s{S_T + 1}, 7")
        e(f"s_lshl_b32 s{S_T}, s{S_T}, 2")
        e(f"s_lshr_b32 s{S_T + 1}, s{S_T + 1}, 3")
        e(f"s_add_u32 s{S_T}, s{S_T}, s{S_T + 1}")
    else:
        e(f"s_and_b32 s{S_RB}, s{S_T}, 3")
        e(f"s_lshl_b32 s{S_RB}, s{S_RB}, 1")
        e(f"s_and_b32 s{S_T + 2}, s{S_T + 1}, 1")
        e(f"s_add_u32 s{S_RB}, s{S_RB}, s{S_T + 2}")
        e(f"s_lshr_b32 s{S_T}, s{S_T}, 2")
        e(f"s_lshl_b32 s{S_T}, s{S_T}, 4")
        e(f"s_lshr_b32 s{S_T + 1}, s{S_T + 1}, 1")
        e(f"s_add_u32 s{S_T}, s{S_T}, s{S_T + 1}")
    e(f"s_lshr_b32 s{S_P}, s{S_T}, 1")
    e(f"s_and_b32 s{S_T + 3}, s{S_T}, 1")
    e(f"s_cmp_lg_u32 s{S_T + 3}, 0")
    e("s_cbranch_scc1 L_k1_typeB")
    k1_body(a, 0)
    a.label("L_k1_typeB")
    a.vm = []
    k1_body(a, 1)
    a.vm = []
    phase2(a)
    a.label("L_k1_exit")
    e("s_endpgm")
    a.label("L_code_end")
    return a.lines


def K2_LDS():
    return max(OPT['S'] * 32768, 147456) + (24576 if OPT['S'] == 4 else 0) - (16384 if OPT['S'] == 4 else 0)


def fold_loops(a, iters, period, scnt, name):
    n = len(iters)
    i = 0
    lab = 0
    while i < n:
        reps = 1
        while i + (reps + 1) * period <= n and all(
                iters[i + k] == iters[i + reps * period + k] for k in range(period)):
            reps += 1
        if reps >= 2:
            a.e(f"s_mov_b32 s{scnt}, {reps}")
            a.label(f"L_{name}_{lab}")
            for k in range(period):
                a.lines += iters[i + k]
            a.e(f"s_sub_u32 s{scnt}, s{scnt}, 1")
            a.e(f"s_cmp_lg_u32 s{scnt}, 0")
            a.e(f"s_cbranch_scc1 L_{name}_{lab}")
            lab += 1
            i += reps * period
        else:
            a.lines += iters[i]
            i += 1


def schedule(a, mf, streams):
    n = len(mf)
    placed = []
    for si, (items, start, end) in enumerate(streams):
        m = len(items)
        prev = 0
        for j, it in enumerate(items):
            fn, early = it if isinstance(it, tuple) else (it, 0)
            pos = start + (j * (end - start)) / max(m, 1)
            pos = max(pos, early, prev)
            prev = pos
            placed.append((pos, si, j, fn))
    placed.sort(key=lambda x: (x[0], x[1], x[2]))
    k = 0
    if n == 0:
        for p in placed:
            p[3]()
        return
    for i in range(n):
        a.e(mf[i])
        while k < len(placed) and placed[k][0] < i + 1:
            placed[k][3]()
            k += 1
    while k < len(placed):
        placed[k][3]()
        k += 1


P_SW2, P_SWO, P_SWS, P_SOUT = 96, 20, 16, 4
P_SMT, P_SNT, P_SROLE, P_STILE = 8, 9, 10, 11
P_SOA, P_SOB, P_SOP, P_SM0A, P_SM0B = 12, 13, 14, 15, 27
P_SHD, P_SM2, P_SEARLY = 28, 29, 30
P_VBD = 2
P_SLOT = 32768


def tile_decode(a, smt, snt, srole, stile, st):
    e = a.e
    e(f"s_and_b32 s{st}, s2, 7")
    e(f"s_lshr_b32 s{st + 1}, s2, 3")
    e(f"s_and_b32 s{srole}, s{st}, 1")
    if OPT.get('rsw'):
        e(f"s_xor_b32 s{srole}, s{srole}, 1")
    e(f"s_lshr_b32 s{st}, s{st}, 1")
    if OPT['map'] == 0:
        e(f"s_and_b32 s{smt}, s{st}, 1")
        e(f"s_lshl_b32 s{smt}, s{smt}, 3")
        e(f"s_and_b32 s{stile}, s{st + 1}, 7")
        e(f"s_add_u32 s{smt}, s{smt}, s{stile}")
        e(f"s_lshr_b32 s{snt}, s{st}, 1")
        e(f"s_lshl_b32 s{snt}, s{snt}, 2")
        e(f"s_lshr_b32 s{st + 1}, s{st + 1}, 3")
        e(f"s_add_u32 s{snt}, s{snt}, s{st + 1}")
    else:
        e(f"s_lshl_b32 s{smt}, s{st}, 2")
        e(f"s_and_b32 s{stile}, s{st + 1}, 3")
        e(f"s_add_u32 s{smt}, s{smt}, s{stile}")
        e(f"s_lshr_b32 s{snt}, s{st + 1}, 2")
    e(f"s_lshl_b32 s{stile}, s{smt}, 3")
    e(f"s_add_u32 s{stile}, s{stile}, s{snt}")


P_VAD, P_VFA, P_VFL = 8, 9, 10
P_SSA, P_SSB = 31, 32
P_SL = 4


def p2_setrun(a, first_expr, stride):
    e = a.e
    c0, c1 = first_expr
    e(f"s_lshr_b32 s{S_T + 11}, s{S_WAVE}, 1")
    e(f"s_mul_i32 s{S_T + 11}, s{S_T + 11}, {c1}")
    e(f"s_add_u32 s{S_T + 11}, s{S_T + 11}, {c0}")
    return S_T + 11


def p2_math(a):
    e = a.e
    S = OPT['S']
    ST = S_T
    tile_decode(a, P_SMT, P_SNT, P_SROLE, P_STILE, ST)
    vi, vG, t0, t1, t2 = 6, 7, 8, 9, 10
    e(f"v_and_b32 v{vi}, 15, v{V_LANE}")
    e(f"v_lshrrev_b32 v{vG}, 4, v{V_LANE}")
    e(f"s_lshl_b32 s{P_SM0A}, s{S_WAVE}, 12")
    e(f"s_add_u32 s{P_SM0B}, s{P_SM0A}, 16384")
    e(f"s_lshl_b32 s{ST}, s{P_SNT}, 8")
    e(f"s_and_b32 s{ST + 3}, s{S_WAVE}, 1")
    e(f"s_lshl_b32 s{ST + 1}, s{ST + 3}, 15")
    e(f"s_add_u32 s{ST}, s{ST}, s{ST + 1}")
    e(f"v_lshlrev_b32 v{t0}, 11, v{vG}")
    e(f"v_add_u32 v{t0}, s{ST}, v{t0}")
    e(f"v_lshlrev_b32 v{t1}, 1, v{vG}")
    e(f"v_xor_b32 v{t1}, v{t1}, v{vi}")
    for j in range(4):
        if j & 1:
            e(f"v_xor_b32 v{t2}, 8, v{t1}")
            e(f"v_lshlrev_b32 v{t2}, 4, v{t2}")
        else:
            e(f"v_lshlrev_b32 v{t2}, 4, v{t1}")
        e(f"v_add_u32 v{t2}, v{t2}, v{t0}")
        e(f"v_add_u32 v{P_VBD + j}, {j * (8192 - 1024)}, v{t2}")
    e(f"s_mul_i32 s{ST}, s{P_SROLE}, 3")
    e(f"s_lshr_b32 s{ST + 1}, s{S_WAVE}, 1")
    e(f"s_add_u32 s{ST}, s{ST}, s{ST + 1}")
    e(f"s_lshl_b32 s{P_SOB}, s{ST}, 16")
    e(f"s_mul_i32 s{P_SOA}, s{P_SMT}, 144")
    e(f"s_add_u32 s{P_SOA}, s{P_SOA}, s{ST}")
    e(f"s_lshl_b32 s{P_SOA}, s{P_SOA}, 13")
    e(f"s_mov_b32 s{P_SSA}, {7 * 8192}")
    e(f"s_mov_b32 s{P_SSB}, {7 * 65536}")
    e(f"s_lshl_b32 s{ST + 3}, s{ST + 3}, 12")
    e(f"v_add_u32 v{P_VAD}, s{ST + 3}, v{V_L16}")
    e(f"s_lshl_b32 s{ST}, s{P_SMT}, 1")
    e(f"s_add_u32 s{ST}, s{ST}, s{P_SROLE}")
    e(f"s_lshl_b32 s{ST}, s{ST}, 8")
    e(f"s_add_u32 s{ST}, s{ST}, {FE_OFF}")
    e(f"v_and_b32 v{P_VFA}, 31, v{V_LANE}")
    e(f"v_lshlrev_b32 v{P_VFA}, 3, v{P_VFA}")
    e(f"v_add_u32 v{P_VFA}, s{ST}, v{P_VFA}")


def tok_load(a):
    srd(a, S_T + 4, S_PTR + 18, S_PTR + 19, 256)
    a.e(f"v_mov_b32 v12, 0")
    a.vmem(f"buffer_load_dwordx2 v[{V_TOK}:{V_TOK + 1}], v12, s[{S_T + 4}:{S_T + 7}], 0 offen sc1", "zc")


def p2_early(a):
    e = a.e
    S = OPT['S']
    ST = S_T
    if not OPT.get('p2m'):
        p2_math(a)
    if not OPT.get('tke'):
        tok_load(a)
    for j in range(3):
        e(f"s_add_u32 m0, s{P_SM0B}, {j * P_SLOT}")
        e("s_nop 0")
        for i in range(4):
            a.vmem(f"buffer_load_dwordx4 v{P_VBD + i}, s[{P_SW2}:{P_SW2 + 3}], s{P_SOB} offen offset:{1024 * i} lds", "eB")
        e(f"s_add_u32 s{P_SOB}, s{P_SOB}, s{P_SSB}")


def p2_issueA(a):
    e = a.e
    for j in range(3):
        e(f"s_add_u32 m0, s{P_SM0A}, {j * P_SLOT}")
        e("s_nop 0")
        for i in range(4):
            e(f"buffer_load_dwordx4 v{P_VAD}, s[{P_SWS}:{P_SWS + 3}], s{P_SOA} offen offset:{1024 * i} {OPT['k2a']} lds")
        e(f"s_add_u32 s{P_SOA}, s{P_SOA}, s{P_SSA}")


def phase2(a):
    e = a.e
    S = OPT['S']
    n0 = OPT['n0']
    SLOT = P_SLOT
    SCR = S * SLOT
    SWAVE = S_WAVE
    ST = S_T
    SCNT = S_CNT
    SMT, SNT, SROLE, STILE = P_SMT, P_SNT, P_SROLE, P_STILE
    SOA, SOB, SOP, SM0A, SM0B = P_SOA, P_SOB, P_SOP, P_SM0A, P_SM0B
    SW2, SWO, SOUT = P_SW2, P_SWO, P_SOUT
    WS = f"s[{P_SWS}:{P_SWS + 3}]"
    NBASE = (S + 1) // 2
    VL, VL16, VBD = V_LANE, V_L16, P_VBD
    vi, vG = 6, 7
    VZ = 11
    VAD = 8
    VFL = 10
    VFA = 9
    VAR = 12 if S <= 4 else 124
    VBR = 18
    VT = 30
    VG = 38
    VOMG = 42
    VEPS = 46
    VEPS = 48
    CG = 52
    CR = 60
    CKV = 68
    CW = 80
    VX = 192
    VY = 84
    AC = 128
    t0, t1, t2, t3 = VT, VT + 1, VT + 2, VT + 3

    def acc2(mt, nt):
        return AC + 16 * mt + 4 * nt

    def FA(j, b, mt):
        return 64 * (j % 2) + 32 * b + 4 * mt

    def FB(j, b, nt):
        return 64 * (j % 2) + 32 * b + 16 + 4 * nt

    def setflag(*lanes):
        e(f"s_mov_b64 exec, {sum(1 << l for l in lanes)}")
        a.vmem(f"buffer_store_dwordx2 v[{V_TOK}:{V_TOK + 1}], v0, {WS}, 0 offen sc1", "fl")
        e("s_mov_b64 exec, -1")

    VQ = 120
    VH = 16

    def fq_load():
        a.vmem(f"buffer_load_dwordx2 v[{VQ}:{VQ + 1}], v{VQ + 2}, {WS}, 0 offen sc1", "fq")

    a.label("L_p2_late")
    e(f"buffer_load_dwordx2 v[{VFL}:{VFL + 1}], v{VFA}, {WS}, 0 offen sc1")
    e("s_waitcnt vmcnt(0)")
    e(f"v_cmp_eq_u64 vcc, v[{VFL}:{VFL + 1}], v[{V_TOK}:{V_TOK + 1}]")
    e("s_nop 1")
    e("s_cmp_eq_u64 vcc, -1")
    e("s_cbranch_scc1 L_p2_fok")
    e("s_add_u32 s3, s3, 1")
    e("s_cmp_gt_u32 s3, 0x40000")
    e("s_cbranch_scc1 L_p2_fok")
    e(f"s_sleep {OPT.get('slp', 4)}")
    e("s_branch L_p2_late")
    a.label("L_p2_fok")
    p2_issueA(a)
    e("s_waitcnt vmcnt(0)")
    a.label("L_p2_go")
    stamp(a, 0)
    a.vm = ["old"]
    e(f"s_and_b32 s{ST}, s{SWAVE}, 1")
    e(f"s_lshl_b32 s{ST}, s{ST}, 12")
    e(f"v_add_u32 v{VAR}, s{ST}, v{VL16}")
    for k in range(1, NBASE):
        e(f"v_add_u32 v{VAR + k}, {65536 * k}, v{VAR}")
    e(f"v_lshlrev_b32 v{t0}, 2, v{vG}")
    e(f"v_lshrrev_b32 v{t1}, 2, v{vi}")
    e(f"v_add_u32 v{t0}, v{t0}, v{t1}")
    e(f"v_and_b32 v{t1}, 7, v{t0}")
    e(f"s_lshr_b32 s{ST}, s{SWAVE}, 1")
    e(f"s_lshl_b32 s{ST}, s{ST}, 2")
    e(f"v_xor_b32 v{t1}, s{ST}, v{t1}")
    e(f"v_lshlrev_b32 v{t0}, 8, v{t0}")
    e(f"v_and_b32 v{t2}, 3, v{vi}")
    e(f"v_lshlrev_b32 v{t2}, 3, v{t2}")
    e(f"v_add_u32 v{t0}, v{t0}, v{t2}")
    e(f"v_add_u32 v{t0}, 16384, v{t0}")
    for nt in range(4):
        e(f"v_xor_b32 v{t3}, {nt}, v{t1}")
        e(f"v_lshlrev_b32 v{t3}, 5, v{t3}")
        e(f"v_add_u32 v{VBR + nt}, v{t0}, v{t3}")
        for k in range(1, NBASE):
            e(f"v_add_u32 v{VBR + 4 * k + nt}, {65536 * k}, v{VBR + nt}")
    VBW = 26
    if OPT.get('pb'):
        e(f"v_add_u32 v{VBW}, s{SM0B}, v{VL16}")
        e(f"v_add_u32 v{VBW + 1}, 65536, v{VBW}")
    e(f"v_and_b32 v{t0}, 1, v{vG}")
    e(f"v_lshlrev_b32 v{t0}, 10, v{t0}")
    e(f"v_lshrrev_b32 v{t1}, 1, v{vG}")
    e(f"v_lshlrev_b32 v{t1}, 8, v{t1}")
    e(f"v_lshlrev_b32 v{VH}, 4, v{vi}")
    e(f"v_add3_u32 v{VH}, v{VH}, v{t0}, v{t1}")
    stamp(a, 1)
    e(f"s_cmp_eq_u32 s{SROLE}, 0")
    e(f"s_cbranch_scc1 L_p2_r0")
    vm_save = list(a.vm)

    import math
    PERIOD = S * 4 // math.gcd(S, 4)

    def body(role):
        R = f"r{role}"
        o0 = OPT.get('o0', 5)
        na0 = n0 - o0
        assert 16 < na0 <= 32 and 5 <= o0 <= 11
        nact = na0 if role == 0 else 56 - na0
        N = nact + (o0 if role == 0 else 16 - o0)
        JO = nact - (S - 1)
        JP = N - OPT['pj']
        if role == 0:
            runs = {16: (5, 1, 7)}
        else:
            nl1 = 32 - na0
            runs = {16 + nl1: (2, 7, 14)}
            if nl1:
                runs[16] = (5 + 7 * (na0 - 16), 1, 7)

        def bperm(op):
            e(f"s_and_b32 s{ST + 9}, s{SWAVE}, 1")
            e(f"s_mul_i32 s{ST + 9}, s{ST + 9}, {-12 * 2048}")
            for j4 in range(4):
                e(f"{op} v{VBD + j4}, s{ST + 9}, v{VBD + j4}")
                if j4 < 3:
                    e(f"s_add_u32 s{ST + 9}, s{ST + 9}, {4 * 2048}")

        def newrun(j):
            if j == nact:
                def sw():
                    e(f"s_lshr_b32 s{ST + 11}, s{SWAVE}, 1")
                    if role:
                        e(f"s_add_u32 s{ST + 11}, s{ST + 11}, {2 * o0}")
                    e(f"s_lshl_b32 s{SOB}, s{ST + 11}, 16")
                    e(f"s_lshl_b32 s{SOA}, s{SMT}, 5")
                    e(f"s_add_u32 s{SOA}, s{SOA}, s{ST + 11}")
                    e(f"s_lshl_b32 s{SOA}, s{SOA}, 13")
                    e(f"s_add_u32 s{SOA}, s{SOA}, {OF_OFF}")
                    e(f"s_mov_b32 s{P_SSA}, 16384")
                    e(f"s_mov_b32 s{P_SSB}, 131072")
                    if role == 1:
                        bperm("v_subrev_u32")
                return [sw]
            if j in runs:
                c0, c1, st_ = runs[j]

                def sw():
                    r = p2_setrun(a, (c0, c1), st_)
                    e(f"s_lshl_b32 s{SOB}, s{r}, 16")
                    e(f"s_mul_i32 s{SOA}, s{SMT}, 144")
                    e(f"s_add_u32 s{SOA}, s{SOA}, s{r}")
                    e(f"s_lshl_b32 s{SOA}, s{SOA}, 13")
                    e(f"s_mov_b32 s{P_SSA}, {st_ * 8192}")
                    e(f"s_mov_b32 s{P_SSB}, {st_ * 65536}")
                    if st_ == 14:
                        bperm("v_add_u32")
                return [sw]
            return []

        def dmaA(j):
            f = newrun(j)
            f.append(lambda: e(f"s_add_u32 m0, s{SM0A}, {(j % S) * SLOT}"))
            for i in range(4):
                f.append(lambda i=i: a.vmem(
                    f"buffer_load_dwordx4 v{VAD}, {WS}, s{SOA} offen offset:{1024 * i} {OPT['k2a']} lds", f"D{j}"))
            f.append(lambda: e(f"s_add_u32 s{SOA}, s{SOA}, s{P_SSA}"))
            return f

        def dmaB(j):
            sr = SW2 if j < nact else SWO
            f = []
            k = j - (S - 1)
            if 0 <= k < OPT.get('pb', 0):
                sl = j % S
                for i in range(4):
                    f.append(lambda i=i: e(
                        f"ds_write_b128 v{VBW + sl // 2}, {ar(128 + 16 * k + 4 * i)} offset:{(sl % 2) * SLOT + 1024 * i}"))
                return f
            f.append(lambda: e(f"s_add_u32 m0, s{SM0B}, {(j % S) * SLOT}"))
            for i in range(4):
                f.append(lambda i=i: a.vmem(
                    f"buffer_load_dwordx4 v{VBD + i}, s[{sr}:{sr + 3}], s{SOB} offen offset:{1024 * i} lds", f"D{j}"))
            f.append(lambda: e(f"s_add_u32 s{SOB}, s{SOB}, s{P_SSB}"))
            return f

        def reads(j):
            sl = j % S
            k, so = sl // 2, (sl % 2) * SLOT
            f = []
            for q in range(4):
                for b in range(2):
                    f.append(lambda b=b, q=q: e(
                        f"ds_read_b128 {ar(FA(j, b, q))}, v{VAR + k} offset:{so + 8192 * b + 1024 * q}"))
                    for ins in range(2):
                        f.append(lambda b=b, q=q, ins=ins: e(
                            f"ds_read_b64_tr_b16 {ar(FB(j, b, q) + 2 * ins, 2)}, v{VBR + 4 * k + q} offset:{so + 8192 * b + 4096 * ins}"))
            return f

        late = []
        for mp in range(2):
            late.append(f"buffer_store_dwordx4 {vr(240 + 4 * mp)}, v{VH}, {WS}, s{P_SL + 2} offen offset:{2048 * mp} sc1")
        for g_, base in enumerate((192, 224)):
            for mt in range(4):
                late.append(f"buffer_store_dwordx4 {vr(base + 4 * mt)}, v{VL16}, {WS}, s{P_SL + g_} offen offset:{1024 * mt} sc1")
        TR = OPT.get('tr', 3)
        TRS = OPT.get('trs', 0)
        NTR = -(-10 // TR) + TRS
        JFQ = OPT.get('jfq', 2)

        e("s_barrier")
        stamp(a, 2)
        VK = 48
        PD, PO, PEPS, PR = 48, 96, 112, 116

        def poll(lab, vv, reload):
            a.label(f"L_p2{R}_{lab}w")
            e(f"v_cmp_eq_u64 vcc, v[{vv}:{vv + 1}], v[{V_TOK}:{V_TOK + 1}]")
            e("s_nop 1")
            e("s_cmp_eq_u64 vcc, -1")
            e(f"s_cbranch_scc1 L_p2{R}_{lab}ok")
            e("s_add_u32 s3, s3, 1")
            e("s_cmp_gt_u32 s3, 0x40000")
            e(f"s_cbranch_scc1 L_p2{R}_{lab}ok")
            e("s_sleep 4")
            sv = list(a.vm)
            reload()
            a.vm = sv
            e("s_waitcnt vmcnt(0)")
            e(f"s_branch L_p2{R}_{lab}w")
            a.label(f"L_p2{R}_{lab}ok")

        def fl_load(tag="F"):
            a.vmem(f"buffer_load_dwordx2 v[{VFL}:{VFL + 1}], v{VFA}, {WS}, 0 offen sc1", tag)

        def red_guard(lab):
            e(f"s_cmp_eq_u32 s{P_SEARLY}, 0")
            e(f"s_cbranch_scc1 L_p2{R}_{lab}")

        J1 = OPT.get('j1', 4)
        J2 = OPT.get('j2', 12)

        def pre(j):
            if j == JFQ:
                a.wait(["old"])
            if j == NTR + 2:
                a.wait(["sl"])
            if j == 16 - S + 1:
                a.wait(["FL"])
                poll("l", VFL, fl_load)
            if j == J2 + 2:
                a.wait(["fq"])
                poll("k", VQ, fq_load)
            if j == J2 + 4:
                a.wait(["pq"])
            if j == J2 + 8:
                a.wait(["ost"])
            if j == JO:
                a.wait(["F"])
                poll("o", VFL, fl_load)
            if role == 1 and j == JP:
                a.wait(["F2"])
                poll("p", VFL, fl_load)

        ft_hook = [None]

        def extra(j):
            if ft_hook[0] and ft_hook[0][0] == j:
                ft_hook[0][1]()
            if j == JFQ:
                setflag(1)
            if j == J1:
                e(f"s_and_b32 s{ST}, s2, 3")
                e(f"s_cmp_eq_u32 s{ST}, s{SWAVE}")
                e(f"s_cselect_b32 s{P_SEARLY}, 1, 0")
                e(f"s_cmp_lt_u32 s2, 192")
                e(f"s_cselect_b32 s{P_SEARLY}, s{P_SEARLY}, 0")
                e(f"s_mul_i32 s{P_SHD}, s2, 171")
                e(f"s_lshr_b32 s{P_SHD}, s{P_SHD}, 10")
                e(f"s_min_u32 s{P_SHD}, s{P_SHD}, 31")
                e(f"s_lshr_b32 s{ST}, s{P_SHD}, 1")
                e(f"s_lshl_b32 s{ST}, s{ST}, 9")
                e(f"s_add_u32 s{ST}, s{ST}, {FQ_OFF}")
                e(f"v_and_b32 v{VQ + 2}, 31, v{VL}")
                e(f"v_lshlrev_b32 v{VQ + 2}, 3, v{VQ + 2}")
                e(f"v_add_u32 v{VQ + 2}, s{ST}, v{VQ + 2}")
                fq_load()
            if j == NTR + 2:
                setflag(4)
                srd(a, SOUT, S_PTR + 16, S_PTR + 17, 2048 * 1024 * 2)
            if j == 16 - S - 1:
                e(f"s_lshl_b32 s{ST}, s{SMT}, 9")
                e(f"s_add_u32 s{ST}, s{ST}, {FA_OFF}")
                e(f"v_lshlrev_b32 v{VFA}, 3, v{VL}")
                e(f"v_add_u32 v{VFA}, s{ST}, v{VFA}")
                fl_load("FL")
            if j == 16 - S + 2:
                e(f"v_lshlrev_b32 v{t1}, 2, v{vi}")
                e(f"s_lshl_b32 s{ST}, s{SMT}, 9")
                e(f"s_and_b32 s{ST + 1}, s{SWAVE}, 1")
                e(f"s_lshl_b32 s{ST + 1}, s{ST + 1}, 8")
                e(f"s_add_u32 s{ST}, s{ST}, s{ST + 1}")
                e(f"s_add_u32 s{ST}, s{ST}, {G_OFF}")
                for i in range(4):
                    a.vmem(f"buffer_load_dword v{VG + i}, v{t1}, {WS}, s{ST} offen offset:{64 * i}", "g")
            if j == J2:
                e(f"s_and_b32 s{P_SHD}, s2, 31")
                e(f"s_lshr_b32 s{P_SM2}, s2, 5")
                e(f"s_lshr_b32 s{ST}, s{P_SHD}, 1")
                e(f"s_lshl_b32 s{ST}, s{ST}, 4")
                e(f"s_add_u32 s{ST}, s{ST}, s{P_SM2}")
                e(f"s_lshl_b32 s{ST}, s{ST}, 2")
                e(f"s_add_u32 s{ST}, s{ST}, s{SWAVE}")
                e(f"s_lshl_b32 s{ST}, s{ST}, 3")
                e(f"s_add_u32 s{ST}, s{ST}, {FQ_OFF + 256}")
                e(f"s_lshl_b32 s{ST + 1}, s{P_SHD}, 6")
                e(f"s_add_u32 s{ST + 1}, s{ST + 1}, {FK_OFF}")
                e(f"v_lshlrev_b32 v{VQ + 2}, 3, v{VL}")
                e(f"v_add_u32 v{VQ + 2}, s{ST + 1}, v{VQ + 2}")
                e(f"v_mov_b32 v{t0}, s{ST}")
                e(f"v_cmp_gt_u32 s[{ST + 2}:{ST + 3}], 6, v{VL}")
                e("s_nop 1")
                e(f"v_cndmask_b32 v{VQ + 2}, v{t0}, v{VQ + 2}, s[{ST + 2}:{ST + 3}]")
                e(f"s_lshl_b32 s{P_SM2}, s{P_SM2}, 1")
                e(f"s_lshr_b32 s{ST}, s{SWAVE}, 1")
                e(f"s_add_u32 s{P_SM2}, s{P_SM2}, s{ST}")
                fq_load()
            if j == J2 + 2:
                e(f"s_mul_i32 s{ST}, s{P_SHD}, 3072")
                e(f"s_add_u32 s{ST}, s{ST}, {KVF_OFF}")
                e(f"v_lshlrev_b32 v{t0}, 3, v{VL}")
                for i in range(6):
                    a.vmem(f"buffer_load_dwordx2 {ar(144 + 2 * i, 2)}, v{t0}, {WS}, s{ST} offen offset:{512 * i}", "pq")
                e(f"s_mul_i32 s{ST}, s{P_SM2}, 144")
                e(f"s_add_u32 s{ST}, s{ST}, s{P_SHD}")
                e(f"s_add_u32 s{ST}, s{ST}, 112")
                e(f"s_lshl_b32 s{ST}, s{ST}, 13")
                for i in range(4):
                    a.vmem(f"buffer_load_dwordx4 {ar(128 + 4 * i)}, v{VAD}, {WS}, s{ST} offen offset:{1024 * i}", "pq")
                e(f"s_lshl_b32 s{SOP}, s{P_SM2}, 5")
                e(f"s_add_u32 s{SOP}, s{SOP}, s{P_SHD}")
                e(f"s_lshl_b32 s{SOP}, s{SOP}, 13")
                e(f"s_add_u32 s{SOP}, s{SOP}, {OF_OFF}")
                for r in range(4):
                    e(f"v_mov_b32 v{PEPS + r}, {EPS_HEX}")
            if j == J2 + 5:
                for i in range(4):
                    e(f"v_rcp_f32 v{PR + i}, v{PD + 12 * i + 8}")
                e("s_nop 0")
                for i in range(4):
                    d = PD + 12 * i
                    for q in range(8):
                        e(f"v_mul_f32 v{d + q}, v{PR + i}, v{d + q}")
                    o = PO + 4 * i
                    for q in range(4):
                        e(f"v_cvt_pk_bf16_f32 v{o + q}, v{d + 2 * q}, v{d + 2 * q + 1}")
                    a.vmem(f"buffer_store_dwordx4 {vr(o)}, v{VAD}, {WS}, s{SOP} offen offset:{1024 * i} sc1", "ost")
            if j == J2 + 8:
                setflag(2)
            if j == JO - OPT.get('fod', 2):
                assert j > J2 + 8
                e(f"s_lshl_b32 s{ST}, s{SMT}, 9")
                e(f"s_add_u32 s{ST}, s{ST}, {FO_OFF}")
                if role == 0:
                    e(f"v_min_u32 v{VFA}, {4 * o0 - 1}, v{VL}")
                else:
                    e(f"v_max_u32 v{VFA}, {4 * o0}, v{VL}")
                e(f"v_lshlrev_b32 v{VFA}, 3, v{VFA}")
                e(f"v_add_u32 v{VFA}, s{ST}, v{VFA}")
                fl_load("F")
            if role == 1 and j == JP - 1:
                e(f"s_lshl_b32 s{ST}, s{STILE}, 8")
                e(f"s_lshl_b32 s{ST + 1}, s{SWAVE}, 3")
                e(f"s_add_u32 s{ST}, s{ST}, s{ST + 1}")
                e(f"s_add_u32 s{ST}, s{ST}, {FP_OFF}")
                e(f"v_mov_b32 v{VFA}, s{ST}")
                fl_load("F2")
            if role == 1 and j == JP:
                e(f"s_lshl_b32 s{ST}, s{STILE}, 16")
                e(f"s_lshl_b32 s{ST + 1}, s{SWAVE}, 13")
                e(f"s_add_u32 s{ST}, s{ST}, s{ST + 1}")
                e(f"s_add_u32 s{ST}, s{ST}, {PART_OFF}")
                for q in range(8):
                    if q == 4:
                        e(f"s_add_u32 s{ST}, s{ST}, 4096")
                    a.vmem(f"buffer_load_dwordx4 {vr(VY + 4 * q)}, v{VL16}, {WS}, s{ST} offen offset:{1024 * (q & 3)} sc1", "PT")

        def post(j):
            if j == J1 + 1:
                red_guard("nr1")
                n_ = a.vm_count(["fq"], drop=False)
                e(f"s_waitcnt vmcnt({n_})")
                poll("q", VQ, fq_load)
                e(f"s_lshr_b32 s{ST}, s{P_SHD}, 1")
                e(f"s_mul_i32 s{ST}, s{ST}, 84")
                e(f"s_add_u32 s{ST}, s{ST}, s2")
                e(f"s_lshl_b32 s{ST}, s{ST}, 10")
                e(f"s_add_u32 s{ST}, s{ST}, {KVP_OFF}")
                for r8 in range(8):
                    e(f"buffer_load_dwordx4 {vr(VK + 4 * r8)}, v{VL16}, {WS}, s{ST} offen")
                    if r8 < 7:
                        e(f"s_add_u32 s{ST}, s{ST}, 12288")
                a.label(f"L_p2{R}_nr1")
                a.mark("r1")
            if j == J1 + 3:
                red_guard("nr2")
                n_ = a.vm_count(["#r1"], drop=False)
                if n_ is not None:
                    e(f"s_waitcnt vmcnt({n_})")
                for st_ in (1, 2, 4):
                    for r8 in range(0, 8, 2 * st_):
                        for q in range(2):
                            b0 = VK + 4 * r8 + 2 * q
                            e(f"v_pk_add_f32 {vr(b0, 2)}, {vr(b0, 2)}, {vr(b0 + 4 * st_, 2)}")
                e(f"v_cvt_pk_bf16_f32 v{VK}, v{VK}, v{VK + 1}")
                e(f"v_cvt_pk_bf16_f32 v{VK + 1}, v{VK + 2}, v{VK + 3}")
                e(f"s_mul_i32 s{ST}, s{P_SHD}, 6")
                e(f"s_sub_u32 s{ST}, s2, s{ST}")
                e(f"s_cmp_ge_u32 s{ST}, 3")
                e(f"s_cselect_b32 s{ST + 1}, 1, 0")
                e(f"s_mul_i32 s{ST + 2}, s{ST + 1}, 3")
                e(f"s_sub_u32 s{ST}, s{ST}, s{ST + 2}")
                e(f"s_mul_i32 s{ST + 2}, s{P_SHD}, 3")
                e(f"s_add_u32 s{ST}, s{ST}, s{ST + 2}")
                e(f"s_lshl_b32 s{ST}, s{ST}, 10")
                e(f"s_lshl_b32 s{ST + 1}, s{ST + 1}, 9")
                e(f"s_add_u32 s{ST}, s{ST}, s{ST + 1}")
                e(f"s_add_u32 s{ST}, s{ST}, {KVF_OFF}")
                e(f"v_lshlrev_b32 v{t0}, 3, v{VL}")
                e(f"buffer_store_dwordx2 {vr(VK, 2)}, v{t0}, {WS}, s{ST} offen sc1")
                a.label(f"L_p2{R}_nr2")
                a.mark("r2")
            if j == J1 + 5:
                red_guard("nr3")
                n_ = a.vm_count(["#r2"], drop=False)
                if n_ is not None:
                    e(f"s_waitcnt vmcnt({n_})")
                e(f"s_mov_b64 exec, {1 << 5}")
                e(f"buffer_store_dwordx2 v[{V_TOK}:{V_TOK + 1}], v0, {WS}, 0 offen sc1")
                e("s_mov_b64 exec, -1")
                a.label(f"L_p2{R}_nr3")

        def interval(j):
            if DIAG and OPT.get('ts2'):
                if j == 0:
                    e("s_mov_b32 s74, 0")
                e("s_memrealtime s[76:77]")
                e("s_waitcnt lgkmcnt(0)")
                e("s_mov_b32 m0, s74")
                e("s_nop 0")
                e(f"v_writelane_b32 v{VT + 7}, s76, m0")
                e("s_add_u32 s74, s74, 1")
            main = []
            if j >= 1:
                for mt in range(4):
                    for nt in range(4):
                        D = vr(acc2(mt, nt) + (64 if j - 1 >= nact else 0))
                        for b in range(2):
                            C = "0" if (j in (1, nact + 1) and b == 0) else D
                            main.append(f"v_mfma_f32_16x16x32_bf16 {D}, {ar(FB(j - 1, b, nt))}, {ar(FA(j - 1, b, mt))}, {C}")
            pre(j)
            if j == J2 + 4:
                pm = []
                for i in range(4):
                    d = PD + 12 * i
                    pq = ar(128 + 4 * i)
                    pm += [f"v_mfma_f32_16x16x32_bf16 {vr(d + 8)}, {ar(152)}, {pq}, {vr(PEPS)}",
                           f"v_mfma_f32_16x16x32_bf16 {vr(d)}, {ar(144)}, {pq}, 0",
                           f"v_mfma_f32_16x16x32_bf16 {vr(d + 4)}, {ar(148)}, {pq}, 0"]
                main = pm + main
            rd = reads(j) if j < N else []
            dm = (dmaA(j + S - 1) + dmaB(j + S - 1)) if j + S - 1 < N else []
            if j == 0 and S == 5:
                dm = dmaA(3) + dmaB(3) + dm
            for x in (late[TR * (j - TRS): TR * (j - TRS) + TR] if j >= TRS else []):
                dm.append(lambda x=x: a.vmem(x, "sl"))
            streams = []
            if nact + 1 <= j <= nact + 4:
                mt = j - (nact + 1)
                it = []
                if mt == 0:
                    a.wait(["g"])
                it.append(lambda mt=mt: e(f"v_sub_f32 v{VOMG + mt}, 1.0, v{VG + mt}"))
                for q in range(16):
                    it.append(lambda mt=mt, q=q: e(f"v_mul_f32 v{acc2(mt, 0) + q}, v{VOMG + mt}, v{acc2(mt, 0) + q}"))
                streams.append((it, 10, 30))
            n = max(len(main), 1)
            ex = capture(a, lambda: extra(j), chunk=1)
            if ex:
                streams.append((ex, 1, min(n * 0.97, 1 + 1.2 * len(ex))))
            schedule(a, main, [(rd, 0, n * 0.85), (dm, 0.5, n * 0.95)] + streams)
            post(j)
            if j < N:
                a.wait([f"D{j + 1}"] if j + 1 < N else [], lgkm=True)
                if j + 1 < N:
                    e("s_barrier")

        FT = OPT.get('ft', 0)
        SEL = 48
        SFO = P_SHD
        vo = VT + 4

        def ft_setup():
            if role == 0:
                e(f"s_lshl_b32 s{SFO}, s{STILE}, 16")
                e(f"s_lshl_b32 s{ST + 1}, s{SWAVE}, 13")
                e(f"s_add_u32 s{SFO}, s{SFO}, s{ST + 1}")
                e(f"s_add_u32 s{SFO}, s{SFO}, {PART_OFF}")
                return
            e(f"v_and_b32 v{t2}, 7, v{vi}")
            e(f"v_lshlrev_b32 v{t2}, 11, v{t2}")
            e(f"v_lshrrev_b32 v{t3}, 3, v{vi}")
            e(f"v_lshlrev_b32 v{t3}, 6, v{t3}")
            e(f"v_add_u32 v{t2}, v{t2}, v{t3}")
            e(f"v_bfe_u32 v{t3}, v{VL}, 4, 1")
            e(f"v_lshlrev_b32 v{t3}, 5, v{t3}")
            e(f"v_add_u32 v{t2}, v{t2}, v{t3}")
            e(f"v_lshrrev_b32 v{t3}, 5, v{VL}")
            e(f"v_lshlrev_b32 v{t3}, 4, v{t3}")
            e(f"v_add_u32 v{vo}, v{t2}, v{t3}")
            e(f"v_add_u32 v{vo + 1}, 16384, v{vo}")
            e(f"s_lshl_b32 s{SFO}, s{SMT}, 7")
            e(f"s_and_b32 s{ST + 1}, s{SWAVE}, 1")
            e(f"s_lshl_b32 s{ST + 1}, s{ST + 1}, 6")
            e(f"s_add_u32 s{SFO}, s{SFO}, s{ST + 1}")
            e(f"s_lshl_b32 s{SFO}, s{SFO}, 11")
            e(f"s_lshl_b32 s{ST + 1}, s{SNT}, 8")
            e(f"s_add_u32 s{SFO}, s{SFO}, s{ST + 1}")
            e(f"s_lshr_b32 s{ST + 1}, s{SWAVE}, 1")
            e(f"s_lshl_b32 s{ST + 1}, s{ST + 1}, 7")
            e(f"s_add_u32 s{SFO}, s{SFO}, s{ST + 1}")
            e(f"v_lshlrev_b32 v{t0}, 2, v{vG}")
            e(f"v_sub_u32 v{t0}, v{vi}, v{t0}")
            for r in (0, 1, 4, 5):
                e(f"v_mov_b32 v{SEL + r}, 0")
            e(f"v_mov_b32 v{t1}, 0x3f80")
            e(f"v_mov_b32 v{t2}, 0x3f800000")
            for pi in range(2):
                e(f"v_cmp_eq_u32 s[{ST + 4}:{ST + 5}], {2 * pi}, v{t0}")
                e(f"v_cmp_eq_u32 s[{ST + 6}:{ST + 7}], {2 * pi + 1}, v{t0}")
                e("s_nop 1")
                e(f"v_cndmask_b32 v{SEL + 2 + pi}, 0, v{t1}, s[{ST + 4}:{ST + 5}]")
                e(f"v_cndmask_b32 v{SEL + 2 + pi}, v{SEL + 2 + pi}, v{t2}, s[{ST + 6}:{ST + 7}]")
        ft_hook[0] = (N - 3, ft_setup) if FT else None

        def ft_last():
            M = []
            for mt in range(4):
                L = []
                for nt in range(4):
                    D = vr(acc2(mt, nt) + 64)
                    for b in range(2):
                        L.append(f"v_mfma_f32_16x16x32_bf16 {D}, {ar(FB(N - 1, b, nt))}, {ar(FA(N - 1, b, mt))}, {D}")
                M.append(L)
            done = {}
            if role == 1:
                Sx = []
                for mt in range(4):
                    L = []
                    for pr in range(2):
                        for h2 in range(2):
                            D = vr(acc2(mt, 2 * pr + h2))
                            L.append(f"v_mfma_f32_16x16x32_bf16 {D}, {vr(SEL + 2) if h2 == 0 else vr(SEL)}, {vr(VY + 8 * mt + 4 * pr)}, {D}")
                    Sx.append(L)
                n_ = a.vm_count(["PT"])
                main = M[0] + M[1] + M[2] + [f"s_waitcnt vmcnt({n_})"] + Sx[0] + Sx[1] + M[3] + Sx[2] + Sx[3]
                done = {0: 29, 1: 33, 2: 45, 3: 49}
            else:
                main = M[0] + M[1] + M[2] + M[3]
                done = {0: 8, 1: 16, 2: 24, 3: 32}
            items = []
            for mt in range(4):
                def ep(mt=mt):
                    if mt == 3:
                        e("s_nop 7")
                    for q in range(16):
                        b0 = acc2(mt, 0) + q
                        e(f"v_fmac_f32 v{b0}, v{VG + mt}, v{b0 + 64}")
                    for pr in range(2):
                        b0 = acc2(mt, 2 * pr)
                        for q in range(4):
                            e(f"v_cvt_pk_bf16_f32 v{b0 + q}, v{b0 + 2 * q}, v{b0 + 2 * q + 1}")
                        if role == 0:
                            q = 2 * mt + pr
                            a.vmem(f"buffer_store_dwordx4 {vr(b0)}, v{VL16}, {WS}, s{SFO} offen offset:{1024 * (q & 3)} sc1", "fs")
                            if q == 3:
                                e(f"s_add_u32 s{SFO}, s{SFO}, 4096")
                    if role == 0:
                        return
                    e("s_nop 1")
                    for pr in range(2):
                        b0 = acc2(mt, 2 * pr)
                        e(f"v_permlane16_swap_b32 v{b0}, v{b0 + 2}")
                        e(f"v_permlane16_swap_b32 v{b0 + 1}, v{b0 + 3}")
                    q0, q1 = acc2(mt, 0), acc2(mt, 2)
                    tq = q0 + 4
                    for r in range(4):
                        e(f"v_mov_b32 v{tq + r}, v{q0 + r}")
                    for r in range(4):
                        e(f"v_mov_b32_dpp v{q0 + r}, v{q1 + r} row_ror:8 row_mask:0xf bank_mask:0xc")
                    for r in range(4):
                        e(f"v_mov_b32_dpp v{q1 + r}, v{tq + r} row_ror:8 row_mask:0xf bank_mask:0x3")
                    a.vmem(f"buffer_store_dwordx4 {vr(q0)}, v{vo}, s[{SOUT}:{SOUT + 3}], s{SFO} offen sc1", "fs")
                    a.vmem(f"buffer_store_dwordx4 {vr(q1)}, v{vo + 1}, s[{SOUT}:{SOUT + 3}], s{SFO} offen sc1", "fs")
                    if mt < 3:
                        e(f"s_add_u32 s{SFO}, s{SFO}, 32768")
                for k_, fn in enumerate(capture(a, ep, chunk=1)):
                    items.append((fn, done[mt] + 8 + k_ / 2.5))
            schedule(a, main, [(items, 0, 0)])
            stamp(a, 5)
            if role == 0:
                e("s_waitcnt vmcnt(0)")
                setflag(3)
            stamp(a, 6)
            if DIAG:
                e("s_waitcnt vmcnt(0)")
            stamp(a, 7)
            stamp_dump(a, 1, 8, SWAVE, S_PTR + 20, S_PTR + 21, VT + 5)
            e("s_endpgm")

        iters = []
        for j in range(N + (0 if FT else 1)):
            n_ = len(a.lines)
            if j == 4:
                stamp(a, 3)
            if j == nact:
                stamp(a, 4)
            interval(j)
            iters.append(a.lines[n_:])
            del a.lines[n_:]
        fold_loops(a, iters, PERIOD, SCNT, f"p2{R}")
        if FT:
            assert nact + 4 < N
            ft_last()
            return
        stamp(a, 5)
        if role == 0:
            e(f"s_lshl_b32 s{ST}, s{STILE}, 16")
            e(f"s_lshl_b32 s{ST + 1}, s{SWAVE}, 13")
            e(f"s_add_u32 s{ST}, s{ST}, s{ST + 1}")
            e(f"s_add_u32 s{ST}, s{ST}, {PART_OFF}")
            e("s_nop 7")
        else:
            vo = VT + 4
            if OPT.get('fl'):
                e(f"v_and_b32 v{t2}, 7, v{vi}")
                e(f"v_lshlrev_b32 v{t2}, 11, v{t2}")
                e(f"v_lshrrev_b32 v{t3}, 3, v{vi}")
                e(f"v_lshlrev_b32 v{t3}, 6, v{t3}")
                e(f"v_add_u32 v{t2}, v{t2}, v{t3}")
            else:
                e(f"v_lshlrev_b32 v{t2}, 11, v{vi}")
            e(f"v_bfe_u32 v{t3}, v{VL}, 4, 1")
            e(f"v_lshlrev_b32 v{t3}, 5, v{t3}")
            e(f"v_add_u32 v{t2}, v{t2}, v{t3}")
            e(f"v_lshrrev_b32 v{t3}, 5, v{VL}")
            e(f"v_lshlrev_b32 v{t3}, 4, v{t3}")
            e(f"v_add_u32 v{vo}, v{t2}, v{t3}")
            e(f"v_add_u32 v{vo + 1}, 16384, v{vo}")
            e(f"s_lshl_b32 s{ST}, s{SMT}, 7")
            e(f"s_and_b32 s{ST + 1}, s{SWAVE}, 1")
            e(f"s_lshl_b32 s{ST + 1}, s{ST + 1}, 6")
            e(f"s_add_u32 s{ST}, s{ST}, s{ST + 1}")
            e(f"s_lshl_b32 s{ST}, s{ST}, 11")
            e(f"s_lshl_b32 s{ST + 1}, s{SNT}, 8")
            e(f"s_add_u32 s{ST}, s{ST}, s{ST + 1}")
            e(f"s_lshr_b32 s{ST + 1}, s{SWAVE}, 1")
            e(f"s_lshl_b32 s{ST + 1}, s{ST + 1}, 7")
            e(f"s_add_u32 s{ST}, s{ST}, s{ST + 1}")
            if OPT.get('fl') == 2:
                vw_, vr_ = 116, 118
                e(f"s_lshl_b32 s{ST + 1}, s{SWAVE}, 13")
                e(f"s_add_u32 s{ST + 1}, s{ST + 1}, {((N - 2) % S) * SLOT}")
                e(f"v_and_b32 v{t0}, 1, v{vG}")
                e(f"v_lshlrev_b32 v{t0}, 1, v{t0}")
                e(f"v_lshrrev_b32 v{t1}, 1, v{vG}")
                e(f"v_add_u32 v{t0}, v{t0}, v{t1}")
                e(f"v_and_b32 v{t1}, 7, v{vi}")
                e(f"v_xor_b32 v{t0}, v{t0}, v{t1}")
                e(f"v_lshlrev_b32 v{t1}, 7, v{vi}")
                e(f"v_add_u32 v{t1}, s{ST + 1}, v{t1}")
                e(f"v_lshlrev_b32 v{t2}, 4, v{t0}")
                e(f"v_add_u32 v{vw_}, v{t1}, v{t2}")
                e(f"v_xor_b32 v{t2}, 64, v{t2}")
                e(f"v_add_u32 v{vw_ + 1}, v{t1}, v{t2}")
                e(f"v_lshrrev_b32 v{t0}, 3, v{VL}")
                e(f"v_and_b32 v{t1}, 7, v{VL}")
                e(f"v_xor_b32 v{t2}, v{t0}, v{t1}")
                e(f"v_lshlrev_b32 v{t2}, 4, v{t2}")
                e(f"v_lshlrev_b32 v{t3}, 7, v{t0}")
                e(f"v_add3_u32 v{vr_}, v{t2}, v{t3}, s{ST + 1}")
                e(f"v_lshlrev_b32 v{t0}, 11, v{t0}")
                e(f"v_lshlrev_b32 v{t1}, 4, v{t1}")
                e(f"v_add_u32 v{vo}, v{t0}, v{t1}")
            a.wait(["PT"])
        for mt in range(4):
            sel = "op_sel:[1,0,0] op_sel_hi:[1,1,1]" if mt & 1 else "op_sel_hi:[0,1,1]"
            for q in range(8):
                b0 = acc2(mt, 0) + 2 * q
                e(f"v_pk_fma_f32 {vr(b0, 2)}, {vr(VG + (mt & 2), 2)}, {vr(b0 + 64, 2)}, {vr(b0, 2)} {sel}")
            if role == 0:
                for h2 in range(2):
                    q = 2 * mt + h2
                    b0 = AC + 8 * q
                    for r in range(4):
                        e(f"v_cvt_pk_bf16_f32 v{b0 + r}, v{b0 + 2 * r}, v{b0 + 2 * r + 1}")
                    e(f"buffer_store_dwordx4 {vr(b0)}, v{VL16}, {WS}, s{ST} offen offset:{1024 * (q & 3)} sc1")
                    if q == 3:
                        e(f"s_add_u32 s{ST}, s{ST}, 4096")
            else:
                for q in range(8):
                    p0 = VY + 8 * mt + q
                    u = 48 + 2 * q
                    e(f"v_lshlrev_b32 v{u}, 16, v{p0}")
                    e(f"v_and_b32 v{u + 1}, 0xffff0000, v{p0}")
                for q in range(8):
                    b0 = acc2(mt, 0) + 2 * q
                    e(f"v_pk_add_f32 {vr(b0, 2)}, {vr(b0, 2)}, {vr(48 + 2 * q, 2)}")
                for pr in range(2):
                    b0 = acc2(mt, 2 * pr)
                    for q in range(4):
                        e(f"v_cvt_pk_bf16_f32 v{b0 + q}, v{b0 + 2 * q}, v{b0 + 2 * q + 1}")
                e("s_nop 1")
                for pr in range(2):
                    b0 = acc2(mt, 2 * pr)
                    e(f"v_permlane16_swap_b32 v{b0}, v{b0 + 2}")
                    e(f"v_permlane16_swap_b32 v{b0 + 1}, v{b0 + 3}")
                if OPT.get('fl') == 2:
                    for pr in range(2):
                        e(f"ds_write_b128 v{vw_ + pr}, {vr(acc2(mt, 2 * pr))} offset:{2048 * mt}")
                    continue
                elif OPT.get('fl'):
                    q0, q1 = acc2(mt, 0), acc2(mt, 2)
                    tq = q0 + 4
                    for r in range(4):
                        e(f"v_mov_b32 v{tq + r}, v{q0 + r}")
                    for r in range(4):
                        e(f"v_mov_b32_dpp v{q0 + r}, v{q1 + r} row_ror:8 row_mask:0xf bank_mask:0xc")
                    for r in range(4):
                        e(f"v_mov_b32_dpp v{q1 + r}, v{tq + r} row_ror:8 row_mask:0xf bank_mask:0x3")
                    e(f"buffer_store_dwordx4 {vr(q0)}, v{vo}, s[{SOUT}:{SOUT + 3}], s{ST} offen {OPT.get('ost', '')}")
                    e(f"buffer_store_dwordx4 {vr(q1)}, v{vo + 1}, s[{SOUT}:{SOUT + 3}], s{ST} offen {OPT.get('ost', '')}")
                else:
                    for pr in range(2):
                        b0 = acc2(mt, 2 * pr)
                        e(f"buffer_store_dwordx4 {vr(b0)}, v{vo}, s[{SOUT}:{SOUT + 3}], s{ST} offen offset:{64 * pr} {OPT.get('ost', '')}")
                if mt < 3:
                    e(f"s_add_u32 s{ST}, s{ST}, 32768")
        if role == 1 and OPT.get('fl') == 2:
            e("s_waitcnt lgkmcnt(0)")
            for q in range(8):
                e(f"ds_read_b128 {vr(AC + 64 + 4 * q)}, v{vr_} offset:{1024 * q}")
            for q in range(8):
                e(f"s_waitcnt lgkmcnt({7 - q})")
                e(f"buffer_store_dwordx4 {vr(AC + 64 + 4 * q)}, v{vo}, s[{SOUT}:{SOUT + 3}], s{ST} offen {OPT.get('ost', '')}")
                if q < 7:
                    e(f"s_add_u32 s{ST}, s{ST}, 16384")
        if role == 0:
            e("s_waitcnt vmcnt(0)")
            setflag(3)
        stamp(a, 6)
        if DIAG and OPT.get('ts2'):
            e(f"s_mov_b32 s76, s{S_PTR + 20}")
            e(f"s_and_b32 s77, s{S_PTR + 21}, 0xffff")
            e(f"s_mov_b32 s78, 0x4000000")
            e(f"s_mov_b32 s79, 0x20000")
            e(f"s_lshl_b32 s75, s2, 2")
            e(f"s_add_u32 s75, s75, s{S_WAVE}")
            e(f"s_lshl_b32 s75, s75, 8")
            e(f"s_add_u32 s75, s75, {DIAG_OFF + 0x200000}")
            e(f"v_lshlrev_b32 v{VT}, 2, v{VL}")
            e(f"buffer_store_dword v{VT + 7}, v{VT}, s[76:79], s75 offen")
        if DIAG:
            e("s_waitcnt vmcnt(0)")
        stamp(a, 7)
        stamp_dump(a, 1, 8, SWAVE, S_PTR + 20, S_PTR + 21, VT + 5)
        e("s_endpgm")

    body(1)
    a.label("L_p2_r0")
    a.vm = vm_save
    body(0)


def fix_hazards(lines):
    out = []
    for i, ln in enumerate(lines):
        out.append(ln)
        if " m0," in ln and i + 1 < len(lines) and lines[i + 1].rstrip().endswith("lds"):
            out.append("  s_nop 0")
    return out


def gen_spin():
    a = Asm()
    e = a.e
    spec = OPT['spin']
    A_, B_, M = spec.split(",")
    a.lines.append(".globl spin_kernel\n.p2align 8\n.type spin_kernel,@function\nspin_kernel:")
    e("s_cmp_lg_u32 s2, 0")
    e("s_cbranch_scc1 L_spin_end")
    e("s_load_dwordx2 s[4:5], s[0:1], 80")
    e("v_lshlrev_b32 v1, 7, v0")
    e("s_waitcnt lgkmcnt(0)")
    e("s_mov_b32 s8, s4\ns_and_b32 s9, s5, 0xffff\ns_mov_b32 s10, 0x4000000\ns_mov_b32 s11, 0x20000")

    def red(sp, sdst):
        k, st, op = sp.split(".")
        base = DIAG_OFF + int(k) * 0x100000 + 8 * int(st) + 4
        for i in range(16):
            e(f"s_mov_b32 s12, {base + i * 8192}")
            e(f"buffer_load_dword v{8 + i}, v1, s[8:11], s12 offen")
        e("s_waitcnt vmcnt(0)")
        for i in range(1, 16):
            e(f"v_{op}_u32 v8, v8, v{8 + i}")
        e("s_nop 1")
        e(f"v_readlane_b32 s{sdst}, v8, 0")
        for l in range(1, 64):
            e(f"v_readlane_b32 s13, v8, {l}")
            e("s_nop 0")
            e(f"s_{op}_u32 s{sdst}, s{sdst}, s13")
    red("0.0.min", 20)
    red(A_, 21)
    red(B_, 22)
    e("s_sub_u32 s22, s22, s21")
    e(f"s_mul_i32 s22, s22, {M}")
    e("s_add_u32 s22, s22, 12000")
    e("s_min_u32 s22, s22, 90000")
    a.label("L_spin")
    e("s_memrealtime s[14:15]")
    e("s_waitcnt lgkmcnt(0)")
    e("s_sub_u32 s16, s14, s20")
    e("s_cmp_lt_u32 s16, s22")
    e("s_cbranch_scc1 L_spin")
    a.label("L_spin_end")
    e("s_endpgm")
    return a.lines


def kd(name, nfv, accum):
    return f""".amdhsa_kernel {name}
  .amdhsa_next_free_vgpr {nfv}
  .amdhsa_next_free_sgpr 102
  .amdhsa_accum_offset {accum}
  .amdhsa_group_segment_fixed_size 0
  .amdhsa_kernarg_size 88
  .amdhsa_user_sgpr_count 2
  .amdhsa_user_sgpr_kernarg_segment_ptr 1
  .amdhsa_system_sgpr_workgroup_id_x 1
.end_amdhsa_kernel"""


def main(path):
    hdr = open(f"cdna_kernels/{NAME}.s.ref").read().split("; Override launch")[0]
    out = [hdr.rstrip("\n")]
    kn = NAME + "_kernel"
    if OPT.get('spin'):
        out.append(f"; @launch kernel={kn} grid=(256,1,1) block=(256,1,1) lds={K2_LDS()}")
        out.append("; @launch kernel=spin_kernel grid=(1,1,1) block=(64,1,1) lds=0")
    else:
        out.append(f"; @launch grid=(256,1,1) block=(256,1,1) lds={K2_LDS()}")
    out.append('.amdgcn_target "amdgcn-amd-amdhsa--gfx950"')
    out.append(".text")
    out += [ln.replace("KNAME", kn) for ln in fix_hazards(gen_k1())]
    if OPT.get('spin'):
        out += gen_spin()
    out.append('.section .rodata,"a"')
    if OPT.get('spin'):
        out.append(".p2align 6")
        out.append(kd("spin_kernel", 32, 32))
    out.append(".p2align 6")
    out.append(kd(kn, 512 if OPT.get("pb") else 416, 256))
    open(path, "w").write("\n".join(out) + "\n")


if __name__ == "__main__":
    if "--dbgout" in sys.argv:
        DBGOUT = True
        sys.argv.remove("--dbgout")
    if "--diag" in sys.argv:
        DIAG = True
        sys.argv.remove("--diag")
    for arg in list(sys.argv):
        if "=" in arg:
            k_, v_ = arg.split("=")
            OPT[k_] = int(v_) if v_.isdigit() else v_.replace("+", " ")
            sys.argv.remove(arg)
    main(sys.argv[1] if len(sys.argv) > 1 else f"cdna_kernels/{NAME}.s")
```
